```python
import torch

def _softmax(x, axis=-1):
    return torch.softmax(x, dim=axis)
def _gelu(x):
    return torch.nn.functional.gelu(x, approximate="tanh")
def _silu(x):
    return torch.nn.functional.silu(x)
def _sigmoid(x):
    return torch.sigmoid(x)
def _layernorm(x, axis=-1, eps=1e-5):
    m = x.mean(dim=axis, keepdim=True)
    v = x.var(dim=axis, keepdim=True, unbiased=False)
    return (x - m) / torch.sqrt(v + eps)
def _scatter_add(tgt, idx, src, axis=0):
    return tgt.clone().index_add_(axis, idx, src)
def _segment_sum(src, seg, n):
    out = torch.zeros((n,) + src.shape[1:], dtype=src.dtype)
    return out.index_add_(0, seg, src)
def _pad(x, pw):
    flat = tuple(v for pair in reversed(pw) for v in pair)
    return torch.nn.functional.pad(x, flat)

kernel_name = 'sequential_preLN__ssm_conv_s4__swiglu_ffn__prompt'

def setup_inputs():

    _w = (lambda a: (lambda t: t.to(torch.bfloat16) if t.is_floating_point() else t)(torch.as_tensor(a)))
    def _A_setup():
        B, L, D, N = 1, 2048, 448, 256
        A_re = -(lambda _x: torch.exp(torch.as_tensor(_x)))((lambda *s: torch.randn(*s, dtype=torch.bfloat16) * 3.2)(D, N))
        A_im = torch.pi * (lambda *s: torch.randn(*s, dtype=torch.bfloat16) * 0.05)(D, N)
        B_re = (lambda *s: torch.randn(*s, dtype=torch.bfloat16) * 0.05)(D, N)
        B_im = (lambda *s: torch.randn(*s, dtype=torch.bfloat16) * 0.05)(D, N)
        C_re = (lambda *s: torch.randn(*s, dtype=torch.bfloat16) * 0.05)(D, N)
        C_im = (lambda *s: torch.randn(*s, dtype=torch.bfloat16) * 0.05)(D, N)
        log_dt = (lambda *s: torch.randn(*s, dtype=torch.bfloat16) * 0.05)(D) * 0.5 - 4.0
        Dskip = (lambda *s: torch.randn(*s, dtype=torch.bfloat16) * 0.05)(D)
        return {
            "u": _w((lambda *s: torch.randn(*s, dtype=torch.bfloat16) * 0.05)(B, L, D)),
            "A_re": _w(A_re),
            "A_im": _w(A_im),
            "B_re": _w(B_re),
            "B_im": _w(B_im),
            "C_re": _w(C_re),
            "C_im": _w(C_im),
            "log_dt": _w(log_dt),
            "Dskip": _w(Dskip),
        }
    _A_in = _A_setup()

    def _B_setup():
        B, S, D, F = 1, 2048, 448, 1792
        return {
            "x": _w((lambda *s: torch.randn(*s, dtype=torch.bfloat16) * 0.05)(B, S, D)),
            "w_gate": _w((lambda *s: torch.randn(*s, dtype=torch.bfloat16) * 0.05)(D, F)),
            "w_up": _w((lambda *s: torch.randn(*s, dtype=torch.bfloat16) * 0.05)(D, F)),
            "w_down": _w((lambda *s: torch.randn(*s, dtype=torch.bfloat16) * 0.05)(F, D)),
        }
    _B_in = _B_setup()

    return {
        "A_u": _A_in["u"],
        "A_A_re": _A_in["A_re"],
        "A_A_im": _A_in["A_im"],
        "A_B_re": _A_in["B_re"],
        "A_B_im": _A_in["B_im"],
        "A_C_re": _A_in["C_re"],
        "A_C_im": _A_in["C_im"],
        "A_log_dt": _A_in["log_dt"],
        "A_Dskip": _A_in["Dskip"],
        "B_x": _B_in["x"],
        "B_w_gate": _B_in["w_gate"],
        "B_w_up": _B_in["w_up"],
        "B_w_down": _B_in["w_down"],
    }

def reference(A_u, A_A_re, A_A_im, A_B_re, A_B_im, A_C_re, A_C_im, A_log_dt, A_Dskip, B_x, B_w_gate, B_w_up, B_w_down):
    def _A_ref(u, A_re, A_im, B_re, B_im, C_re, C_im, log_dt, Dskip):
        Bsz, L, D = u.shape
        dt = torch.exp(log_dt)[:, None]
        A = A_re + 1j * A_im
        Bc = B_re + 1j * B_im
        Cc = C_re + 1j * C_im
        logdA = dt * A
        dB = dt * Bc
        l = (lambda x, dt: x.to(dt))(torch.arange(L), A_re.dtype)
        P = torch.exp(logdA[:, :, None] * l[None, None, :])
        K = torch.einsum("dn,dnl,dn->dl", Cc, P, dB).real
        L2 = 2 * L
        Kp = _pad(K, ((0, 0), (0, L)))
        up = (lambda x, *d: x.permute(*d))(u, 0, 2, 1)
        up = _pad(up, ((0, 0), (0, 0), (0, L)))
        Kf = (lambda x, axes=(-2,-1): torch.fft.rfft2(x.float(), dim=axes))(Kp[:, None, :], axes=(-2, -1))
        Uf = (lambda x, axes=(-2,-1): torch.fft.rfft2(x.float(), dim=axes))(up[:, :, None, :], axes=(-2, -1))
        Yf = Uf * Kf[None, :, :, :]
        y = (lambda x, s, axes=(-2,-1): torch.fft.irfft2(x, s=s, dim=axes).to(torch.bfloat16))(Yf, (1, L2), axes=(-2, -1))[:, :, 0, :L]
        y = (lambda x, *d: x.permute(*d))(y, 0, 2, 1) + u * Dskip[None, None, :]
        return y

    def _B_ref(x, w_gate, w_up, w_down):
        g = _silu(x @ w_gate)
        u = x @ w_up
        return (g * u) @ w_down

    x = A_u
    h = x + _A_ref(_layernorm(x, axis=-1), A_A_re, A_A_im, A_B_re, A_B_im, A_C_re, A_C_im, A_log_dt, A_Dskip)
    h2 = h + _B_ref(_layernorm(h, axis=-1), B_w_gate, B_w_up, B_w_down)
    return h2
```

```python
import re

class Regs:
    def __init__(self, prefix, n, start=0):
        self.p = prefix; self.n = n; self.used = [False] * n
        for i in range(start): self.used[i] = True
        self.hi = start
    def alloc(self, cnt=1, align=None):
        if align is None: align = 1 if cnt == 1 else 2
        i = 0
        while i + cnt <= self.n:
            if i % align == 0 and not any(self.used[i:i+cnt]):
                for k in range(i, i+cnt): self.used[k] = True
                self.hi = max(self.hi, i + cnt)
                return i
            i += 1
        raise RuntimeError(f'out of {self.p} regs (need {cnt})')
    def take(self, base, cnt):
        assert not any(self.used[base:base+cnt]), (base, cnt)
        for k in range(base, base+cnt): self.used[k] = True
        self.hi = max(self.hi, base + cnt)
        return base
    def free(self, base, cnt=1):
        for k in range(base, base+cnt):
            assert self.used[k], (self.p, k)
            self.used[k] = False
    def nfree(self): return self.used.count(False)

def vr(b, n=1, p='v'):
    return f'{p}{b}' if n == 1 else f'{p}[{b}:{b+n-1}]'
def ar(b, n=1): return vr(b, n, 'a')
def sr(b, n=1): return vr(b, n, 's')

class Counter:
    def __init__(self, name, maxv):
        self.name = name; self.maxv = maxv; self.q = []
    def issue(self, tag): self.q.append(tag)
    def need(self, tag):
        tags = tag if isinstance(tag, (list, tuple, set)) else [tag]
        last = -1
        for i, t in enumerate(self.q):
            if t in tags: last = i
        if last < 0: return None
        n = len(self.q) - 1 - last
        n = min(n, self.maxv)
        self.q = self.q[len(self.q) - n:] if n > 0 else []
        return n
    def drain(self): self.q = []

class Asm:
    def __init__(self):
        self.lines = []
        self.vm = Counter('vmcnt', 62); self.lg = Counter('lgkmcnt', 14)
    def e(self, s):
        for l in s.split('\n'):
            l = l.strip()
            if l: self.lines.append(l)
    def label(self, name): self.lines.append(name + ':')
    def c(self, s): self.lines.append('; ' + s)
    def vmem(self, s, tag='x'): self.e(s); self.vm.issue(tag)
    def ds(self, s, tag='x'): self.e(s); self.lg.issue(tag)
    def wait_vm(self, tag):
        n = self.vm.need(tag)
        if n is not None: self.e(f's_waitcnt vmcnt({n})')
    def wait_lg(self, tag):
        n = self.lg.need(tag)
        if n is not None: self.e(f's_waitcnt lgkmcnt({n})')
    def wait_all_lg(self): self.e('s_waitcnt lgkmcnt(0)'); self.lg.drain()
    def wait_all_vm(self): self.e('s_waitcnt vmcnt(0)'); self.vm.drain()
    def wait_all(self): self.e('s_waitcnt vmcnt(0) lgkmcnt(0)'); self.vm.drain(); self.lg.drain()

_REG = re.compile(r'^(-|abs\()?([vas])(\d+)\)?$|^(-|abs\()?([vas])\[(\d+):(\d+)\]\)?$')
def regs_of(op):
    op = op.strip()
    op = op.replace('|', '')
    m = _REG.match(op)
    if m:
        if m.group(2): return {(m.group(2), int(m.group(3)))}
        return {(m.group(5), k) for k in range(int(m.group(6)), int(m.group(7)) + 1)}
    if op == 'vcc': return {('s', 'vcc')}
    if op in ('vcc_lo', 'vcc_hi'): return {('s', 'vcc')}
    if op == 'exec': return {('s', 'exec')}
    if op == 'm0': return {('s', 'm0')}
    return set()

TRANS = ('v_exp_f32', 'v_log_f32', 'v_rcp_f32', 'v_rsq_f32', 'v_sqrt_f32', 'v_sin_f32', 'v_cos_f32')
class Ins:
    __slots__ = ('text', 'op', 'kind', 'defs', 'uses', 'passes', 'ws', 'cuses', 'isdpp', 'storedata')
def parse(line):
    t = line.split(';')[0].strip()
    if not t or t.endswith(':') or t.startswith('.'): return None
    parts = t.split(None, 1)
    op = parts[0]; rest = parts[1] if len(parts) > 1 else ''
    ops = []; depth = 0; cur = ''
    for ch in rest:
        if ch == '[': depth += 1
        if ch == ']': depth -= 1
        if ch == ',' and depth == 0: ops.append(cur.strip()); cur = ''
        else: cur += ch
    if cur.strip(): ops.append(cur.strip())
    mods = ''
    if ops:
        toks = ops[-1].split()
        if len(toks) > 1:
            ops[-1] = toks[0]; mods = ' '.join(toks[1:])
        elif ':' in toks[0] and not toks[0].startswith(('v[', 'a[', 's[', '-v[')) :
            mods = toks[0]
    I = Ins(); I.text = line; I.op = op; I.defs = set(); I.uses = set(); I.passes = 0; I.ws = 1; I.cuses = set(); I.isdpp = False; I.storedata = set()
    R = [regs_of(o) for o in ops]
    base = re.sub(r'_(e32|e64|dpp|sdwa)$', '', op)
    if op == 's_nop':
        I.kind = 'nop'; I.ws = int(ops[0], 0) + 1
    elif op.startswith('v_mfma'):
        I.kind = 'mfma'; I.defs = R[0]; I.uses = R[1] | R[2]; I.cuses = R[3] if len(R) > 3 else set()
        I.passes = 8 if '32x32x16' in op else 4 if '16x16x32' in op else 16
    elif op.startswith('v_'):
        I.kind = 'valu'
        I.isdpp = ('_dpp' in op) or ('quad_perm' in mods) or ('row_' in mods) or ('wave_' in mods)
        if base.startswith('v_cmp'):
            I.defs = R[0]; I.uses = set().union(*R[1:])
        elif base in ('v_readfirstlane_b32', 'v_readlane_b32'):
            I.defs = R[0]; I.uses = set().union(*R[1:])
        elif base.startswith('v_permlane') and 'swap' in base:
            I.defs = R[0] | R[1]; I.uses = R[0] | R[1]
        elif base in ('v_add_co_u32', 'v_sub_co_u32', 'v_addc_co_u32', 'v_subb_co_u32'):
            I.defs = R[0] | R[1]; I.uses = set().union(*R[2:])
        elif base in ('v_fmac_f32', 'v_dot2c_f32_bf16', 'v_pk_fmac_f16'):
            I.defs = R[0]; I.uses = set().union(*R)
        elif base == 'v_cndmask_b32':
            I.defs = R[0]; I.uses = set().union(*R[1:]) | ({('s', 'vcc')} if len(ops) < 4 else set())
        elif base == 'v_writelane_b32':
            I.defs = R[0]; I.uses = set().union(*R)
        else:
            I.defs = R[0] if R else set(); I.uses = set().union(*R[1:]) if len(R) > 1 else set()
            if I.isdpp: I.uses |= I.defs
    elif op.startswith('ds_'):
        I.kind = 'ds'
        if op.startswith(('ds_read', 'ds_bpermute', 'ds_permute', 'ds_swizzle')):
            I.defs = R[0]; I.uses = set().union(*R[1:]) if len(R) > 1 else set()
        else:
            I.uses = set().union(*R)
    elif op.startswith(('buffer_', 'global_')):
        I.kind = 'vmem'
        islds = ' lds' in (' ' + mods) or '_lds_' in op
        if op.startswith(('buffer_inv', 'buffer_wbl2')): pass
        elif 'load' in op and not islds:
            I.defs = R[0]; I.uses = set().union(*R[1:])
        elif 'load' in op and islds:
            I.uses = set().union(*R) | {('s', 'm0')}
        elif 'atomic' in op and 'sc0' in mods:
            I.defs = R[0]; I.uses = set().union(*R)
        else:
            I.uses = set().union(*R)
            if 'store' in op and ('x3' in op or 'x4' in op):
                I.storedata = R[0] if op.startswith('buffer_') else R[1]
    elif op.startswith('s_'):
        I.kind = 'salu'
        if op.startswith(('s_cmp', 's_cbranch', 's_branch', 's_waitcnt', 's_barrier', 's_endpgm', 's_sleep', 's_setprio', 's_bitcmp')):
            I.uses = set().union(*R) if R else set()
        elif op.startswith(('s_load', 's_memtime', 's_memrealtime', 's_getreg', 's_getpc')):
            I.defs = R[0]; I.uses = set().union(*R[1:]) if len(R) > 1 else set()
        elif 'saveexec' in op:
            I.defs = R[0] | {('s', 'exec')}; I.uses = set().union(*R[1:]) | {('s', 'exec')}
        else:
            I.defs = R[0] if R else set(); I.uses = set().union(*R[1:]) if len(R) > 1 else set()
    else:
        I.kind = 'other'
    return I

def isv(r): return r[0] in ('v', 'a')
XDL_RAW = {2: 5, 4: 8, 8: 12, 16: 20}
XDL_C = {2: 4, 4: 6, 8: 10, 16: 18}
XDL_WAR = {2: 1, 4: 3, 8: 7, 16: 15}
def required(P, C):
    n = 0
    base = re.sub(r'_(e32|e64|dpp|sdwa)$', '', C.op)
    pbase = re.sub(r'_(e32|e64|dpp|sdwa)$', '', P.op)
    if P.kind == 'valu':
        vd = {r for r in P.defs if isv(r)}; sd = {r for r in P.defs if r[0] == 's'}
        if C.kind == 'mfma' and vd & (C.uses | C.cuses): n = max(n, 2)
        if C.kind == 'valu':
            if pbase in TRANS and base not in TRANS and vd & C.uses: n = max(n, 1)
            if pbase in TRANS and base in TRANS and vd & C.uses: n = max(n, 1)
            if base in ('v_readfirstlane_b32', 'v_readlane_b32') and vd & C.uses: n = max(n, 1)
            if C.isdpp and vd & C.uses: n = max(n, 2)
            if base.startswith('v_permlane') and vd & C.uses: n = max(n, 2)
            if sd & C.uses:
                n = max(n, 4 if base in ('v_readlane_b32', 'v_writelane_b32') else 2)
        if C.kind == 'vmem' and sd & C.uses: n = max(n, 5)
        if C.kind == 'salu' and sd & C.uses: n = max(n, 1)
    if P.kind == 'valu' and pbase.startswith('v_dot'):
        vd = P.defs
        if C.kind in ('valu', 'ds', 'vmem', 'mfma'):
            if base == pbase:
                ops = C.text.split(None, 1)[1].split(',')
                ab = regs_of(ops[1]) | regs_of(ops[2])
                if vd & ab: n = max(n, 3)
            elif vd & (C.uses | C.defs | C.cuses): n = max(n, 3)
    if P.kind == 'mfma':
        if C.kind in ('valu', 'ds', 'vmem'):
            if P.defs & (C.uses | C.defs): n = max(n, XDL_RAW[P.passes])
            if C.kind == 'valu' and P.cuses & C.defs: n = max(n, XDL_WAR[P.passes])
        if C.kind == 'mfma':
            if P.defs & C.uses: n = max(n, XDL_RAW[P.passes])
            if P.defs & C.cuses:
                if not (P.defs == C.cuses and P.passes == C.passes): n = max(n, XDL_C[P.passes])
            elif P.defs & C.defs:
                n = max(n, XDL_C[P.passes])
    if P.kind == 'vmem' and P.storedata:
        if P.storedata & C.defs: n = max(n, 2 if C.kind == 'valu' else 1)
    if P.kind == 'salu':
        if ('s', 'm0') in P.defs and ('s', 'm0') in C.uses and C.kind == 'vmem': n = max(n, 1)
    return n

def fix_hazards(lines, window=24, verbose=False):
    out = []; hist = []
    added = 0
    for line in lines:
        I = parse(line)
        if I is None:
            out.append(line); continue
        need = 0; dist = 0
        for P in reversed(hist[-window:]):
            r = required(P, I)
            if r > dist: need = max(need, r - dist)
            dist += P.ws
            if dist >= 20: break
        while need > 0:
            k = min(need, 16)
            nop = f's_nop {k-1}'
            out.append(nop); hist.append(parse(nop)); need -= k; added += 1
        out.append(line); hist.append(I)
    labels = {}; ins = []
    for line in out:
        t = line.split(';')[0].strip()
        if t.endswith(':'): labels[t[:-1]] = len(ins)
        else:
            I = parse(line)
            if I is not None: ins.append(I)
    problems = []
    for e, I in enumerate(ins):
        if I.op.startswith(('s_cbranch', 's_branch')):
            tgt = I.text.split()[-1]
            if tgt in labels:
                s = labels[tgt]
                pre = ins[max(0, e - window): e + 1]
                post = ins[s: s + window]
                for ci, C in enumerate(post):
                    dist = sum(x.ws for x in post[:ci])
                    for P in reversed(pre):
                        r = required(P, C)
                        if r > dist: problems.append((P.text, C.text, r, dist, tgt))
                        dist += P.ws
                        if dist >= 20: break
    if verbose: print(f'hazard fixer: inserted {added} nops')
    return out, problems
```

```python
import sys, os, math, struct
sys.path.insert(0, os.path.dirname(os.path.abspath(__file__)))
from asmlib import *

NAME = 'sequential_preLN__ssm_conv_s4__swiglu_ffn__prompt_kernel'
def f2u(x): return struct.unpack('<I', struct.pack('<f', x))[0]
def fx(x): return hex(f2u(x))
LOG2E = 1.4426950408889634
WS_STATS = 0x0
WS_FLAG2 = 0x4000
WS_FLAG3 = 0xC000
WS_CS    = 0x10000
WS_HT    = 0x20000
HT_STRIDE = 4352
WS_HD    = 0x200000
WS_ACT   = 0x400000
WS_DBG   = 0xC00000
WS_SIZE  = 0x2000000
FLAG_STRIDE = 16
TBL_E = 2112; TBL_C = 18 * TBL_E
L_TBL = 0
L_EX = 2 * TBL_C
L_STG = 92672
K32_C = 9344
L_KC = 0; KC_S = 4160; KC_C = 4 * KC_S
L_U = 2 * KC_C; U_C = 5120
L_X = L_U + 2 * U_C; X_C = 4096
L_RED = L_X + 2 * X_C
L_K32 = L_RED
LDS_SIZE = 163840
S_X, S_ARE, S_AIM, S_BRE, S_BIM, S_CRE, S_CIM, S_LDT, S_DSK, S_BX, S_WG, S_WU, S_WD, S_OUT, S_DBG, S_WS = range(4, 36, 2)
R_X, R_WS, R_DBG, R_WG, R_WU, R_WD, R_OUT = 36, 40, 44, 48, 52, 56, 60
S_W, S_NONCE, S_XCD, S_J, S_CP, S_T0, S_T1, S_T2, S_T3, S_T4, S_T5 = 64, 65, 66, 67, 68, 69, 70, 71, 72, 73, 74
S_LD, S_DK = 75, 76
S_RB, S_FB, S_RB2, S_DB = 77, 78, 79, 80
S_M0, S_M1, S_M2, S_M3 = 82, 84, 86, 88
S_CNT = 90
S_HID = 91
S_TS = 92
SPIN_MAX = 200000

class Gen(Asm):
    def __init__(self, opt):
        super().__init__()
        self.o = opt
        self.V = Regs('v', 256, start=2)
        self.uid = 0
    def lab(self, s):
        self.uid += 1
        return f'L{s}_{self.uid}'
    def srd(self, r, ptr, size):
        self.e(f's_mov_b32 s{r}, s{ptr}\ns_mov_b32 s{r+1}, s{ptr+1}\ns_mov_b32 s{r+2}, {hex(size)}\ns_mov_b32 s{r+3}, 0x20000')
    def cmul(self, d, a, b, t=None):
        t = d if t is None else t
        self.e(f'v_pk_mul_f32 {vr(t,2)}, {vr(a,2)}, {vr(b,2)} op_sel:[0,0] op_sel_hi:[0,1]')
        self.e(f'v_pk_fma_f32 {vr(d,2)}, {vr(a,2)}, {vr(b,2)}, {vr(t,2)} op_sel:[1,1,0] op_sel_hi:[1,0,1] neg_lo:[0,1,0]')
    def cmul_multi(self, items):
        for d, a, b, t in items:
            t = d if t is None else t
            self.e(f'v_pk_mul_f32 {vr(t,2)}, {vr(a,2)}, {vr(b,2)} op_sel:[0,0] op_sel_hi:[0,1]')
        for d, a, b, t in items:
            t = d if t is None else t
            self.e(f'v_pk_fma_f32 {vr(d,2)}, {vr(a,2)}, {vr(b,2)}, {vr(t,2)} op_sel:[1,1,0] op_sel_hi:[1,0,1] neg_lo:[0,1,0]')
    def stamp(self, i):
        if self.o.get('stamps'):
            self.e(f's_mem{"time" if self.o.get("cyc") else "realtime"} s[{S_TS}:{S_TS+1}]')
            self.e('s_waitcnt lgkmcnt(0)'); self.lg.drain()
            v = self.V.alloc(2)
            self.e(f'v_mov_b32 v{v}, s{S_TS}')
            self.e(f's_lshl_b32 s{S_TS+2}, s2, 9\ns_lshl_b32 s{S_TS+3}, s{S_W}, 7\ns_add_u32 s{S_TS+2}, s{S_TS+2}, s{S_TS+3}\ns_add_u32 s{S_TS+2}, s{S_TS+2}, {WS_DBG + 4*i}')
            self.e(f'v_mov_b32 v{v+1}, s{S_TS+2}')
            self.e(f's_mov_b64 s[{S_TS+4}:{S_TS+5}], exec\ns_mov_b64 exec, 1')
            self.vmem(f'buffer_store_dword v{v}, v{v+1}, s[{R_WS}:{R_WS+3}], 0 offen', 'stamp')
            self.e(f's_mov_b64 exec, s[{S_TS+4}:{S_TS+5}]')
            self.V.free(v, 2)

    def prologue(self):
        e = self.e
        e(f's_cmp_ge_u32 s2, 256\ns_cbranch_scc1 L_end')
        e(f's_load_dwordx16 s[4:19], s[0:1], 0\ns_load_dwordx16 s[20:35], s[0:1], 64')
        e(f's_memrealtime s[{S_M0}:{S_M0+1}]')
        e('v_and_b32 v1, 63, v0')
        v = self.V.alloc(1)
        e(f'v_lshrrev_b32 v{v}, 6, v0')
        e(f's_and_b32 s{S_XCD}, s2, 7\ns_lshr_b32 s{S_J}, s2, 3')
        e(f'v_readfirstlane_b32 s{S_W}, v{v}')
        self.V.free(v)
        e('s_waitcnt lgkmcnt(0)')
        self.srd(R_X, S_X, 2048 * 448 * 2)
        self.srd(R_WS, S_WS, WS_SIZE)
        self.srd(R_DBG, S_DBG, 256)
        self.srd(R_WG, S_WG, 448 * 1792 * 2)
        self.srd(R_WU, S_WU, 448 * 1792 * 2)
        self.srd(R_WD, S_WD, 448 * 1792 * 2)
        self.srd(R_OUT, S_OUT, 2048 * 448 * 2)
        e(f's_or_b32 s{S_NONCE}, s{S_M0}, 1')
        lab = self.lab('non')
        e(f's_or_b32 s{S_T0}, s2, s{S_W}\ns_cmp_lg_u32 s{S_T0}, 0\ns_cbranch_scc1 {lab}')
        v = self.V.alloc(2)
        e(f'v_mov_b32 v{v}, s{S_NONCE}\nv_mov_b32 v{v+1}, 0')
        e(f's_mov_b64 s[{S_M1}:{S_M1+1}], exec\ns_mov_b64 exec, 1')
        e(f'buffer_store_dword v{v}, v{v+1}, s[{R_DBG}:{R_DBG+3}], 0 offen sc1')
        e(f's_mov_b64 exec, s[{S_M1}:{S_M1+1}]')
        self.V.free(v, 2)
        self.label(lab)
        self.stamp(0)
        self.vm.drain()

    def get_nonce(self):
        e = self.e
        v = self.V.alloc(2)
        l0 = self.lab('gn'); l1 = self.lab('gnd')
        e(f'v_mov_b32 v{v+1}, 0\ns_mov_b32 s{S_CNT}, 0')
        self.label(l0)
        e(f'buffer_load_dword v{v}, v{v+1}, s[{R_DBG}:{R_DBG+3}], 0 offen sc1')
        e('s_waitcnt vmcnt(0)'); self.vm.drain()
        e(f'v_readfirstlane_b32 s{S_NONCE}, v{v}')
        e(f's_cmp_lg_u32 s{S_NONCE}, 0\ns_cbranch_scc1 {l1}')
        e(f's_add_u32 s{S_CNT}, s{S_CNT}, 1\ns_cmp_lt_u32 s{S_CNT}, {SPIN_MAX}\ns_cbranch_scc1 {l0}')
        self.label(l1)
        self.V.free(v, 2)

    def helper(self):
        e = self.e; V = self.V
        self.c('================= helper: LN1 stats')
        e(f's_sub_u32 s{S_HID}, s{S_J}, 28\ns_lshl_b32 s{S_T0}, s{S_XCD}, 2\ns_add_u32 s{S_HID}, s{S_HID}, s{S_T0}')
        xa = V.alloc(56, 4); va = V.alloc(1); t0 = V.alloc(1); t1 = V.alloc(1)
        e(f's_lshl_b32 s{S_T0}, s{S_HID}, 6\ns_lshl_b32 s{S_T1}, s{S_W}, 4\ns_add_u32 s{S_T0}, s{S_T0}, s{S_T1}')
        e(f'v_and_b32 v{t0}, 15, v1\nv_add_u32 v{t0}, s{S_T0}, v{t0}')
        e(f'v_mul_u32_u24 v{va}, 896, v{t0}\nv_lshrrev_b32 v{t1}, 4, v1\nv_lshl_add_u32 v{va}, v{t1}, 4, v{va}')
        for s in range(14):
            self.vmem(f'buffer_load_dwordx4 {vr(xa+4*s,4)}, v{va}, s[{R_X}:{R_X+3}], 0 offen offset:{64*s}', f'x{s}')
        acc = V.alloc(8, 2)
        e(f's_mov_b32 s{S_T2}, 0x3f803f80')
        for i in range(8): e(f'v_mov_b32 v{acc+i}, 0')
        for s in range(14):
            self.wait_vm(f'x{s}')
            for r in range(4):
                e(f'v_dot2_f32_bf16 v{acc+r}, v{xa+4*s+r}, s{S_T2}, v{acc+r}')
                e(f'v_dot2_f32_bf16 v{acc+4+r}, v{xa+4*s+r}, v{xa+4*s+r}, v{acc+4+r}')
        e(f'v_add_f32 v{acc}, v{acc}, v{acc+1}\nv_add_f32 v{acc+2}, v{acc+2}, v{acc+3}\nv_add_f32 v{acc+4}, v{acc+4}, v{acc+5}\nv_add_f32 v{acc+6}, v{acc+6}, v{acc+7}')
        e(f'v_add_f32 v{acc}, v{acc}, v{acc+2}\nv_add_f32 v{acc+4}, v{acc+4}, v{acc+6}')
        S = acc; Q = acc + 4
        for swap in ('v_permlane32_swap_b32', 'v_permlane16_swap_b32'):
            e(f'v_mov_b32 v{acc+1}, v{S}\nv_mov_b32 v{acc+5}, v{Q}')
            e(f'{swap} v{S}, v{acc+1}\n{swap} v{Q}, v{acc+5}')
            e(f'v_add_f32 v{S}, v{S}, v{acc+1}\nv_add_f32 v{Q}, v{Q}, v{acc+5}')
        pk = V.alloc(2, 2)
        self.ln_finalize(S, Q, acc + 1, acc + 2, acc + 3)
        e(f'v_lshrrev_b32 v{pk}, 16, v{acc+1}\nv_or_b32 v{pk}, v{pk}, v{acc+2}')
        self.get_nonce()
        e(f'v_mov_b32 v{pk+1}, s{S_NONCE}')
        e(f'v_lshlrev_b32 v{t0}, 3, v{t0}')
        if WS_STATS: e(f'v_add_u32 v{t0}, {WS_STATS}, v{t0}')
        e(f's_mov_b64 s[{S_M1}:{S_M1+1}], exec\ns_mov_b64 exec, 0xffff')
        self.vmem(f'buffer_store_dwordx2 {vr(pk,2)}, v{t0}, s[{R_WS}:{R_WS+3}], 0 offen sc1', 'st')
        e(f's_mov_b64 exec, s[{S_M1}:{S_M1+1}]')
        self.stamp(1)
        V.free(pk, 2); V.free(acc, 8); V.free(xa, 56)
        self.c('helper: column sums')
        wv = V.alloc(28 * 4, 4); cs = V.alloc(8, 2)
        lg = self.lab('hg'); ld = self.lab('hd')
        e(f'v_lshrrev_b32 v{t0}, 4, v0\nv_and_b32 v{t1}, 15, v0')
        e(f'v_mul_u32_u24 v{va}, 3584, v{t0}\nv_min_u32 v{t1}, 13, v{t1}\nv_lshl_add_u32 v{va}, v{t1}, 4, v{va}')
        e(f's_and_b32 s{S_T0}, s{S_HID}, 15\ns_mul_i32 s{S_T0}, s{S_T0}, 224')
        e(f'v_add_u32 v{va}, s{S_T0}, v{va}')
        e(f's_cmp_ge_u32 s{S_HID}, 16\ns_cbranch_scc1 {lg}')
        save = list(self.vm.q)
        for k in range(28):
            e(f's_mov_b32 s{S_T1}, {k*16*3584}')
            self.vmem(f'buffer_load_dwordx4 {vr(wv+4*k,4)}, v{va}, s[{R_WG}:{R_WG+3}], s{S_T1} offen', f'w{k}')
        e(f's_branch {ld}')
        self.label(lg)
        self.vm.q = list(save)
        for k in range(28):
            e(f's_mov_b32 s{S_T1}, {k*16*3584}')
            self.vmem(f'buffer_load_dwordx4 {vr(wv+4*k,4)}, v{va}, s[{R_WU}:{R_WU+3}], s{S_T1} offen', f'w{k}')
        self.label(ld)
        e(f's_mov_b32 s{S_T2}, 0x00003f80\ns_mov_b32 s{S_T3}, 0x3f800000')
        for i in range(8): e(f'v_mov_b32 v{cs+i}, 0')
        for k in range(28):
            self.wait_vm(f'w{k}')
            for r in range(4):
                e(f'v_dot2_f32_bf16 v{cs+2*r}, v{wv+4*k+r}, s{S_T2}, v{cs+2*r}')
                e(f'v_dot2_f32_bf16 v{cs+2*r+1}, v{wv+4*k+r}, s{S_T3}, v{cs+2*r+1}')
        tmp = V.alloc(8, 2)
        for swap in ('v_permlane32_swap_b32', 'v_permlane16_swap_b32'):
            for i in range(8): e(f'v_mov_b32 v{tmp+i}, v{cs+i}')
            for i in range(8): e(f'{swap} v{cs+i}, v{tmp+i}')
            for i in range(8): e(f'v_add_f32 v{cs+i}, v{cs+i}, v{tmp+i}')
        e(f'v_and_b32 v{t1}, 15, v1\nv_lshlrev_b32 v{t0}, 5, v{t1}\ns_lshl_b32 s{S_T0}, s{S_W}, 9\nv_add_u32 v{t0}, s{S_T0}, v{t0}')
        self.ds(f'ds_write_b128 v{t0}, {vr(cs,4)}'); self.ds(f'ds_write_b128 v{t0}, {vr(cs+4,4)} offset:16')
        self.wait_all_lg(); e('s_barrier')
        e(f'v_lshlrev_b32 v{t0}, 2, v0')
        for w in range(4): self.ds(f'ds_read_b32 v{tmp+w}, v{t0} offset:{512*w}')
        self.wait_all_lg()
        e(f'v_add_f32 v{tmp}, v{tmp}, v{tmp+1}\nv_add_f32 v{tmp+2}, v{tmp+2}, v{tmp+3}\nv_add_f32 v{tmp}, v{tmp}, v{tmp+2}')
        e(f's_mul_i32 s{S_T0}, s{S_HID}, 448\ns_add_u32 s{S_T0}, s{S_T0}, {WS_CS}\nv_add_u32 v{t0}, s{S_T0}, v{t0}')
        e(f'v_cmp_gt_u32 vcc, 112, v0\ns_and_saveexec_b64 s[{S_M1}:{S_M1+1}], vcc')
        lx = self.lab('hcs')
        e(f's_cbranch_execz {lx}')
        e(f'buffer_store_dword v{tmp}, v{t0}, s[{R_WS}:{R_WS+3}], 0 offen sc1')
        self.label(lx)
        e(f's_mov_b64 exec, s[{S_M1}:{S_M1+1}]')
        V.free(tmp, 8); V.free(cs, 8); V.free(wv, 112)
        if self.o.get('touch_wd', True):
            tv = V.alloc(52, 4)
            e(f's_mul_i32 s{S_T0}, s{S_HID}, 50176\nv_lshlrev_b32 v{t0}, 4, v0\nv_add_u32 v{t0}, s{S_T0}, v{t0}')
            for k in range(13):
                e(f's_mov_b32 s{S_T1}, {k*4096}')
                e(f'buffer_load_dwordx4 {vr(tv+4*k,4)}, v{t0}, s[{R_WD}:{R_WD+3}], s{S_T1} offen')
            V.free(tv, 52)
        e('s_waitcnt vmcnt(0)'); self.vm.drain()
        e('s_barrier')
        self.signal(WS_FLAG2, 's2')
        self.stamp(2)
        V.free(va); V.free(t0); V.free(t1)
        e('s_branch L_end')

    def signal(self, base, sidx):
        e = self.e; V = self.V
        lab = self.lab('sig')
        e(f's_cmp_lg_u32 s{S_W}, 0\ns_cbranch_scc1 {lab}')
        v = V.alloc(2, 2)
        e(f's_mul_i32 s{S_T0}, {sidx}, {FLAG_STRIDE}\ns_add_u32 s{S_T0}, s{S_T0}, {base}')
        e(f'v_mov_b32 v{v}, s{S_NONCE}\nv_mov_b32 v{v+1}, s{S_T0}')
        e(f's_mov_b64 s[{S_M1}:{S_M1+1}], exec\ns_mov_b64 exec, 1')
        e(f'buffer_store_dword v{v}, v{v+1}, s[{R_WS}:{R_WS+3}], 0 offen sc1')
        e(f's_mov_b64 exec, s[{S_M1}:{S_M1+1}]')
        V.free(v, 2)
        self.label(lab)

    def rbf(self, d, s, pre=''):
        self.e(f'v_cvt_pk_bf16_f32 v{d}, v{s}, v{s}\nv_lshlrev_b32 v{d}, 16, v{d}')
    def ln_finalize(self, S, Q, dm, ds_, dt):
        e = self.e
        e(f'v_mul_f32 v{S}, {fx(1/448)}, v{S}')
        e(f'v_mul_f32 v{Q}, {fx(1/448)}, v{Q}')
        e(f'v_fma_f32 v{Q}, -v{S}, v{S}, v{Q}')
        e(f'v_max_f32 v{Q}, 0, v{Q}')
        self.rbf(dm, S)
        self.rbf(dt, Q)
        e(f'v_add_f32 v{dt}, {fx(1e-5)}, v{dt}')
        self.rbf(dt, dt)
        e(f'v_sqrt_f32 v{dt}, v{dt}')
        self.rbf(ds_, dt)

    def w1_setup(self):
        e = self.e; V = self.V
        self.vW1 = V.alloc(1); self.vTR = V.alloc(1)
        t = V.alloc(1)
        e(f'v_lshrrev_b32 v{t}, 2, v1\nv_mul_u32_u24 v{self.vW1}, 3584, v{t}\nv_and_b32 v{t}, 3, v1\nv_lshl_add_u32 v{self.vW1}, v{t}, 4, v{self.vW1}')
        e(f's_lshl_b32 s{S_T0}, s{S_FB}, 8\ns_lshl_b32 s{S_T1}, s{S_W}, 6\ns_add_u32 s{S_T0}, s{S_T0}, s{S_T1}\nv_add_u32 v{self.vW1}, s{S_T0}, v{self.vW1}')
        self.tr_addr64(self.vTR, t)
        self.vTS = V.alloc(1)
        e(f's_lshl_b32 s{S_T2}, s{S_W}, 14\ns_add_u32 s{S_T2}, s{S_T2}, {L_STG}\nv_add_u32 v{self.vTS}, s{S_T2}, v{self.vTR}')
        V.free(t)
    def tr_addr64(self, d, t):
        e = self.e
        e(f'v_lshrrev_b32 v{t}, 5, v1\nv_lshlrev_b32 v{d}, 8, v{t}')
        e(f'v_bfe_u32 v{t}, v1, 2, 2\nv_lshl_add_u32 v{d}, v{t}, 6, v{d}')
        e(f'v_bfe_u32 v{t}, v1, 4, 1\nv_lshl_add_u32 v{d}, v{t}, 5, v{d}')
        e(f'v_and_b32 v{t}, 3, v1\nv_lshl_add_u32 v{d}, v{t}, 3, v{d}')
    def w1_issue(self, k0, k1):
        e = self.e
        e(f's_lshl_b32 s{S_T2}, s{S_W}, 14\ns_add_u32 s{S_T2}, s{S_T2}, {L_STG}')
        for k in range(k0, k1):
            sl = (k - k0) * 2048
            e(f's_mov_b32 s{S_T1}, {k*16*3584}')
            e(f's_add_u32 m0, s{S_T2}, {sl}')
            self.vmem(f'buffer_load_dwordx4 v{self.vW1}, s[{R_WG}:{R_WG+3}], s{S_T1} offen lds', f'w1_{k0}')
            e(f's_add_u32 m0, s{S_T2}, {sl+1024}')
            self.vmem(f'buffer_load_dwordx4 v{self.vW1}, s[{R_WU}:{R_WU+3}], s{S_T1} offen lds', f'w1_{k0}')
    def w1_read_k(self, t, k0, k):
        sl = (k - k0) * 2048
        self.ds(f'ds_read_b64_tr_b16 {ar(8*k,2)}, v{t} offset:{sl}', 'w1r')
        self.ds(f'ds_read_b64_tr_b16 {ar(8*k+2,2)}, v{t} offset:{sl+512}', 'w1r')
        self.ds(f'ds_read_b64_tr_b16 {ar(8*k+4,2)}, v{t} offset:{sl+1024}', 'w1r')
        self.ds(f'ds_read_b64_tr_b16 {ar(8*k+6,2)}, v{t} offset:{sl+1536}', 'w1r')
    def w1_fetch(self, k0, k1):
        e = self.e; V = self.V
        self.wait_vm(f'w1_{k0}')
        for k in range(k0, k1): self.w1_read_k(self.vTS, k0, k)
        self.wait_all_lg()

    def phaseA(self):
        e = self.e; V = self.V; o = self.o
        self.c('================= phase A')
        e(f's_mul_i32 s{S_CP}, s{S_XCD}, 28\ns_add_u32 s{S_CP}, s{S_CP}, s{S_J}')
        self.map_bc()
        par = V.alloc(6); xg = V.alloc(8); t0 = V.alloc(1); t1 = V.alloc(1)
        e(f's_lshl_b32 s{S_T0}, s{S_CP}, 2')
        e(f's_load_dword s{S_LD}, s[{S_LDT}:{S_LDT+1}], s{S_T0}\ns_load_dword s{S_DK}, s[{S_DSK}:{S_DSK+1}], s{S_T0}')
        e(f's_lshl_b32 s{S_T1}, s{S_CP}, 10\nv_lshl_add_u32 v{t0}, v0, 2, s{S_T1}')
        for i, sp in enumerate((S_ARE, S_AIM, S_BRE, S_BIM, S_CRE, S_CIM)):
            self.vmem(f'global_load_dword v{par+i}, v{t0}, s[{sp}:{sp+1}]', 'par')
        xa0 = V.alloc(1); xa1 = V.alloc(1)
        e(f'v_mul_u32_u24 v{xa0}, 7168, v0\nv_add_u32 v{xa0}, s{S_T0}, v{xa0}\nv_add_u32 v{xa1}, 4480, v{xa0}')
        def xgather(k):
            if k < 5: self.vmem(f'buffer_load_dword v{xg+k}, v{xa0}, s[{R_X}:{R_X+3}], 0 offen offset:{896*k}', 'xg')
            else: self.vmem(f'buffer_load_dword v{xg+k}, v{xa1}, s[{R_X}:{R_X+3}], 0 offen offset:{896*(k-5)}', 'xg')
        pre = o.get('w1pre', True)
        if pre:
            self.w1_setup()
            self.w1_issue(0, 8)
        self.stamp(1)
        ga = V.alloc(12, 2)
        self.ga = ga
        e(f'v_lshlrev_b32 v{t0}, 3, v0\nv_sub_u32 v{t0}, 2048, v{t0}')
        for k in range(1, 12):
            e(f'v_subrev_u32 v{ga+k-1}, {k}, v{t0}')
        e(f'v_mov_b32 v{ga+11}, 0')
        tt = V.alloc(2, 2)
        for k in range(0, 12, 2):
            a, b = ga + k, ga + k + 1
            e(f'v_max_i32 v{tt}, 0, v{a}\nv_max_i32 v{tt+1}, 0, v{b}')
            e(f'v_cvt_f32_u32 v{tt}, v{tt}\nv_cvt_f32_u32 v{tt+1}, v{tt+1}')
            e(f'v_cvt_pk_bf16_f32 v{t1}, v{tt}, v{tt+1}')
            e(f'v_lshlrev_b32 v{tt}, 16, v{t1}\nv_and_b32 v{tt+1}, 0xffff0000, v{t1}')
            e(f'v_cvt_u32_f32 v{tt}, v{tt}\nv_cvt_u32_f32 v{tt+1}, v{tt+1}')
            for x, r in ((tt, a), (tt + 1, b)):
                e(f'v_lshrrev_b32 v{t1}, 3, v{x}\nv_add_u32 v{x}, v{x}, v{t1}')
                if k >= 8:
                    e(f'v_cmp_gt_i32 vcc, 0, v{r}\nv_mov_b32 v{t1}, 2320\nv_cndmask_b32 v{x}, v{x}, v{t1}, vcc')
                e(f'v_lshlrev_b32 v{x}, 2, v{x}\nv_add_u32 v{r}, {L_K32}, v{x}')
        V.free(tt, 2)
        e('s_waitcnt lgkmcnt(0)'); self.lg.drain()
        e(f's_lshr_b32 s{S_T0}, s{S_W}, 1\ns_lshl_b32 s{S_T0}, s{S_T0}, 4')
        e(f's_lshr_b32 s{S_LD}, s{S_LD}, s{S_T0}\ns_lshl_b32 s{S_LD}, s{S_LD}, 16')
        e(f's_lshr_b32 s{S_DK}, s{S_DK}, s{S_T0}\ns_lshl_b32 s{S_DK}, s{S_DK}, 16')
        dt = V.alloc(2, 2); tt = V.alloc(2, 2)
        L_hi = struct.unpack('<f', struct.pack('<f', LOG2E))[0]; L_lo = LOG2E - L_hi
        e(f'v_mov_b32 v{dt}, s{S_LD}\nv_mul_f32 v{tt}, {fx(L_hi)}, v{dt}')
        e(f's_mov_b32 s{S_T1}, {fx(L_hi)}')
        e(f'v_fma_f32 v{tt+1}, v{dt}, s{S_T1}, -v{tt}\nv_fmac_f32 v{tt+1}, {fx(L_lo)}, v{dt}')
        e(f'v_exp_f32 v{tt}, v{tt}\nv_mul_f32 v{tt+1}, {fx(math.log(2))}, v{tt+1}')
        e(f'v_fma_f32 v{dt}, v{tt}, v{tt+1}, v{tt}')
        self.rbf(dt, dt)
        V.free(tt, 2)
        self.wait_vm('par')
        self.stamp(2)
        sc = V.alloc(12, 2)
        e(f'v_lshlrev_b32 v{sc}, 16, v{par}\nv_and_b32 v{sc+1}, 0xffff0000, v{par}')
        e(f'v_lshlrev_b32 v{sc+2}, 16, v{par+1}\nv_and_b32 v{sc+3}, 0xffff0000, v{par+1}')
        e(f'v_lshlrev_b32 v{sc+4}, 16, v{par+2}\nv_and_b32 v{sc+6}, 0xffff0000, v{par+2}')
        e(f'v_lshlrev_b32 v{sc+5}, 16, v{par+3}\nv_and_b32 v{sc+7}, 0xffff0000, v{par+3}')
        e(f'v_lshlrev_b32 v{sc+8}, 16, v{par+4}\nv_and_b32 v{sc+10}, 0xffff0000, v{par+4}')
        e(f'v_lshlrev_b32 v{sc+9}, 16, v{par+5}\nv_and_b32 v{sc+11}, 0xffff0000, v{par+5}')
        V.free(par, 6)
        for i in range(8):
            e(f'v_mul_f32 v{sc+i}, v{dt}, v{sc+i}')
        e(f'v_mul_f32 v{sc}, {fx(LOG2E)}, v{sc}\nv_mul_f32 v{sc+1}, {fx(LOG2E)}, v{sc+1}')
        e(f'v_mul_f32 v{sc+2}, {fx(1/(2*math.pi))}, v{sc+2}\nv_mul_f32 v{sc+3}, {fx(1/(2*math.pi))}, v{sc+3}')
        V.free(dt, 2)
        Q = lambda: V.alloc(4, 4)
        tq = Q()
        def direct(dst, ex):
            for m in range(2):
                if ex == 1:
                    e(f'v_exp_f32 v{tq+m}, v{sc+m}\nv_fract_f32 v{tq+2+m}, v{sc+2+m}')
                else:
                    e(f'v_mul_f32 v{tq+m}, {fx(float(ex))}, v{sc+m}\nv_mul_f32 v{tq+2+m}, {fx(float(ex))}, v{sc+2+m}')
            if ex != 1:
                for m in range(2): e(f'v_exp_f32 v{tq+m}, v{tq+m}\nv_fract_f32 v{tq+2+m}, v{tq+2+m}')
            for m in range(2):
                e(f'v_cos_f32 v{dst+2*m}, v{tq+2+m}\nv_sin_f32 v{dst+2*m+1}, v{tq+2+m}')
            for m in range(2):
                e(f'v_mul_f32 v{dst+2*m}, v{tq+m}, v{dst+2*m}\nv_mul_f32 v{dst+2*m+1}, v{tq+m}, v{dst+2*m+1}')
        def qmul(d, a, b):
            self.cmul_multi([(d, a, b, None), (d + 2, a + 2, b + 2, None)])
        wa = V.alloc(1)
        e(f'v_and_b32 v{wa}, 127, v0\nv_lshlrev_b32 v{wa}, 4, v{wa}\ns_lshr_b32 s{S_T0}, s{S_W}, 1\ns_mul_i32 s{S_T0}, s{S_T0}, {TBL_C}\nv_add_u32 v{wa}, s{S_T0}, v{wa}')
        def put(q, ent): self.ds(f'ds_write_b128 v{wa}, {vr(q,4)} offset:{ent*TBL_E}')
        one = Q()
        e(f'v_mov_b32 v{one}, 1.0\nv_mov_b32 v{one+1}, 0\nv_mov_b32 v{one+2}, 1.0\nv_mov_b32 v{one+3}, 0')
        put(one, 0); put(one, 4); put(one, 12)
        V.free(one, 4)
        z1 = Q(); z2 = Q(); z3 = Q(); z4 = Q()
        direct(z1, 1); put(z1, 1)
        qmul(z2, z1, z1); put(z2, 2)
        qmul(z3, z2, z1); put(z3, 3)
        qmul(z4, z2, z2); put(z4, 5)
        qmul(z1, z4, z4); put(z1, 6)
        qmul(z2, z1, z4); put(z2, 7)
        qmul(z3, z1, z1); put(z3, 16)
        CB = Q()
        qmul(CB, sc + 8, sc + 4); put(CB, 8)
        direct(z1, 32)
        qmul(z4, CB, z1); put(z4, 9)
        qmul(z2, z1, z1)
        qmul(z4, CB, z2); put(z4, 10)
        qmul(z3, z2, z1)
        qmul(z4, CB, z3); put(z4, 11)
        qmul(z1, z2, z2); put(z1, 13)
        qmul(z2, z1, z1); put(z2, 14)
        qmul(z3, z2, z1); put(z3, 15)
        direct(z1, 512); put(z1, 17)
        qmul(z2, z1, z1)
        qmul(z3, z2, z2)
        c48 = V.alloc(2, 2)
        e(f'v_mul_f32 v{c48}, v{CB}, v{z3}\nv_fma_f32 v{c48}, -v{CB+1}, v{z3+1}, v{c48}')
        e(f'v_fmac_f32 v{c48}, v{CB+2}, v{z3+2}\nv_fma_f32 v{c48}, -v{CB+3}, v{z3+3}, v{c48}')
        for q in (z1, z2, z3, z4, CB, tq): V.free(q, 4)
        V.free(sc, 12); V.free(wa)
        for mod in ('quad_perm:[1,0,3,2]', 'quad_perm:[2,3,0,1]', 'row_half_mirror', 'row_mirror'):
            e(f'v_add_f32_dpp v{c48}, v{c48}, v{c48} {mod} row_mask:0xf bank_mask:0xf')
        for swap in ('v_permlane16_swap_b32', 'v_permlane32_swap_b32'):
            e(f'v_mov_b32 v{c48+1}, v{c48}\n{swap} v{c48}, v{c48+1}\nv_add_f32 v{c48}, v{c48}, v{c48+1}')
        self.wait_all_lg(); e('s_barrier')
        self.stamp(3)
        def hook(st):
            xgather(st)
            if pre:
                if st == 0: self.wait_vm('w1_0')
                self.w1_read_k(self.vTS, 0, st)
        self.kgen_main(c48, hook)
        V.free(c48, 2); V.free(xa0); V.free(xa1)
        self.wait_all_lg(); e('s_barrier')
        self.stamp(4)
        self.get_nonce()
        sg = V.alloc(16, 4); sa = V.alloc(1)
        e(f'v_lshlrev_b32 v{sa}, 6, v0')
        if WS_STATS: e(f'v_add_u32 v{sa}, {WS_STATS}, v{sa}')
        for i in range(4): self.vmem(f'buffer_load_dwordx4 {vr(sg+4*i,4)}, v{sa}, s[{R_WS}:{R_WS+3}], 0 offen offset:{16*i} sc1', 'sg')
        if pre: self.w1_issue(8, 16)
        self.expand()
        self.stamp(5)
        self.normalize(xg, sg, sa)
        V.free(sg, 16); V.free(sa); V.free(xg, 8)
        if pre:
            self.wait_vm('w1_8')
            for k in range(8, 16): self.w1_read_k(self.vTS, 8, k)
        self.wait_all_lg(); e('s_barrier')
        self.stamp(6)
        if pre: self.w1_issue(16, 24)
        self.conv()
        V.free(t0); V.free(t1)
        self.stamp(8)
        if pre:
            self.w1_fetch(16, 24); self.w1_issue(24, 28)
        self.wait_vm('ht'); e('s_barrier')
        self.signal(WS_FLAG2, 's2')
        self.stamp(9)
        if pre: self.w1_fetch(24, 28)

    def map_bc(self):
        e = self.e
        if self.o.get('mapB', 'rows') == 'rows':
            e(f's_cmp_ge_u32 s{S_J}, 14\ns_cselect_b32 s{S_T0}, 1, 0\ns_lshl_b32 s{S_RB}, s{S_XCD}, 1\ns_add_u32 s{S_RB}, s{S_RB}, s{S_T0}')
            e(f's_mul_i32 s{S_T0}, s{S_T0}, 14\ns_sub_u32 s{S_FB}, s{S_J}, s{S_T0}')
        else:
            e(f's_mul_i32 s{S_T0}, s{S_J}, 37\ns_lshr_b32 s{S_T0}, s{S_T0}, 8')
            e(f's_lshr_b32 s{S_RB}, s{S_XCD}, 1\ns_lshl_b32 s{S_RB}, s{S_RB}, 2\ns_add_u32 s{S_RB}, s{S_RB}, s{S_T0}')
            e(f's_mul_i32 s{S_T0}, s{S_T0}, 7\ns_sub_u32 s{S_FB}, s{S_J}, s{S_T0}\ns_and_b32 s{S_T0}, s{S_XCD}, 1\ns_mul_i32 s{S_T0}, s{S_T0}, 7\ns_add_u32 s{S_FB}, s{S_FB}, s{S_T0}')
        e(f's_mul_i32 s{S_T0}, s{S_J}, 37\ns_lshr_b32 s{S_T0}, s{S_T0}, 8')
        e(f's_lshl_b32 s{S_RB2}, s{S_XCD}, 2\ns_add_u32 s{S_RB2}, s{S_RB2}, s{S_T0}\ns_mul_i32 s{S_T0}, s{S_T0}, 7\ns_sub_u32 s{S_DB}, s{S_J}, s{S_T0}')

    def kgen_main(self, c48, hook):
        e = self.e; V = self.V
        self.c('---- kgen main')
        aLo = V.alloc(1); aHi = V.alloc(1); aC = V.alloc(1); t = V.alloc(1)
        e(f's_lshr_b32 s{S_T0}, s{S_W}, 1\ns_mul_i32 s{S_T0}, s{S_T0}, {TBL_C}\ns_and_b32 s{S_T1}, s{S_W}, 1\ns_lshl_b32 s{S_T1}, s{S_T1}, 10\ns_add_u32 s{S_T0}, s{S_T0}, s{S_T1}')
        e(f'v_lshrrev_b32 v{t}, 4, v1\nv_lshlrev_b32 v{aC}, 5, v{t}\nv_add_u32 v{aC}, s{S_T0}, v{aC}')
        e(f'v_and_b32 v{t}, 3, v1\nv_mul_u32_u24 v{t}, {TBL_E}, v{t}\nv_add_u32 v{aLo}, v{aC}, v{t}')
        e(f'v_bfe_u32 v{t}, v1, 2, 2\nv_mul_u32_u24 v{t}, {TBL_E}, v{t}\nv_add_u32 v{aHi}, v{aC}, v{t}')
        T1 = V.alloc(8, 4); T2 = V.alloc(8, 4); T3 = V.alloc(8, 4); T4 = V.alloc(8, 4); Z16 = V.alloc(8, 4); Z512 = V.alloc(8, 4)
        Va = V.alloc(8, 2); W = V.alloc(8, 2); tmp = V.alloc(8, 2)
        PV = [V.alloc(4, 4) for _ in range(2)]; PW = [V.alloc(4, 4) for _ in range(4)]
        D = [[V.alloc(4, 4) for s in range(2)] for t_ in range(4)]
        def rd(dst, addr, ent, st, tag):
            for h in range(2):
                self.ds(f'ds_read_b128 {vr(dst+4*h,4)}, v{addr} offset:{ent*TBL_E + st*128 + 16*h}', tag)
        rd(T1, aLo, 0, 0, 't12'); rd(T2, aHi, 4, 0, 't12'); rd(Z16, aC, 16, 0, 'z16'); rd(T3, aLo, 8, 0, 't34'); rd(T4, aHi, 12, 0, 't34'); rd(Z512, aC, 17, 0, 'z512')
        for st in range(8):
            nx = st + 1 < 8
            hook(st)
            self.wait_lg('t12')
            self.cmul_multi([(Va + 2*c, T1 + 2*c, T2 + 2*c, None) for c in range(4)])
            if nx: rd(T1, aLo, 0, st + 1, 't12'); rd(T2, aHi, 4, st + 1, 't12')
            for c in range(4): e(f'v_cvt_pk_bf16_f32 v{PV[0]+c}, v{Va+2*c}, v{Va+2*c+1}')
            self.wait_lg('z16')
            self.cmul_multi([(Va + 2*c, Va + 2*c, Z16 + 2*c, tmp + 2*c) for c in range(4)])
            if nx: rd(Z16, aC, 16, st + 1, 'z16')
            for c in range(4): e(f'v_cvt_pk_bf16_f32 v{PV[1]+c}, v{Va+2*c}, v{Va+2*c+1}')
            self.wait_lg('t34')
            self.cmul_multi([(W + 2*c, T3 + 2*c, T4 + 2*c, None) for c in range(4)])
            if nx: rd(T3, aLo, 8, st + 1, 't34'); rd(T4, aHi, 12, st + 1, 't34')
            for tt in range(4):
                for c in range(4): e(f'v_cvt_pk_bf16_f32 v{PW[tt]+c}, v{W+2*c}, -v{W+2*c+1}')
                if tt < 3:
                    if tt == 0: self.wait_lg('z512')
                    self.cmul_multi([(W + 2*c, W + 2*c, Z512 + 2*c, tmp + 2*c) for c in range(4)])
                    if tt == 2 and nx: rd(Z512, aC, 17, st + 1, 'z512')
                for s in range(2):
                    cin = '0' if st == 0 else vr(D[tt][s], 4)
                    e(f'v_mfma_f32_16x16x32_bf16 {vr(D[tt][s],4)}, {vr(PW[tt],4)}, {vr(PV[s],4)}, {cin}')
        self.stamp(13)
        e(f's_lshl_b32 s{S_T0}, s{S_W}, 12\ns_add_u32 s{S_T0}, s{S_T0}, {L_EX}\nv_lshl_add_u32 v{aHi}, v1, 4, s{S_T0}')
        keep = V.alloc(16, 4)
        lh = self.lab('k1'); ld = self.lab('kd')
        e(f's_and_b32 s{S_T1}, s{S_W}, 1\ns_cmp_lg_u32 s{S_T1}, 0\ns_cbranch_scc1 {lh}')
        for half, lab_ in ((0, None), (1, lh)):
            if lab_: self.label(lab_); e('s_nop 7')
            snd = [(t_, s) for t_ in (2 - 2*half, 3 - 2*half) for s in range(2)]
            kp = [(t_, s) for t_ in (2*half, 2*half + 1) for s in range(2)]
            for i, (t_, s) in enumerate(snd): e(f'ds_write_b128 v{aHi}, {vr(D[t_][s],4)} offset:{1024*i}')
            for i, (t_, s) in enumerate(kp):
                for r in range(4): e(f'v_mov_b32 v{keep+4*i+r}, v{D[t_][s]+r}')
            if half == 0: e(f's_branch {ld}')
        self.label(ld)
        e(f's_lshl_b32 s{S_T0}, s{S_W}, 2\ns_add_u32 s{S_T0}, s{S_T0}, {L_EX + 16384}\nv_mov_b32 v{aC}, s{S_T0}')
        e(f's_mov_b64 s[{S_M1}:{S_M1+1}], exec\ns_mov_b64 exec, 1')
        e(f'ds_write_b32 v{aC}, v{c48}')
        e(f's_mov_b64 exec, s[{S_M1}:{S_M1+1}]')
        e('s_waitcnt lgkmcnt(0)'); self.lg.drain()
        e('s_barrier')
        e(f's_xor_b32 s{S_T0}, s{S_W}, 1\ns_lshl_b32 s{S_T2}, s{S_T0}, 12\ns_add_u32 s{S_T2}, s{S_T2}, {L_EX}\nv_lshl_add_u32 v{aHi}, v1, 4, s{S_T2}')
        for i in range(4): self.ds(f'ds_read_b128 {vr(T1 if i == 0 else T2 if i == 1 else T3 if i == 2 else T4,4)}, v{aHi} offset:{1024*i}', 'ex')
        e(f's_lshl_b32 s{S_T0}, s{S_T0}, 2\ns_add_u32 s{S_T0}, s{S_T0}, {L_EX + 16384}\nv_mov_b32 v{aC}, s{S_T0}')
        self.ds(f'ds_read_b32 v{Va}, v{aC}', 'ex')
        e(f'v_and_b32 v{aLo}, 15, v1\nv_lshrrev_b32 v{t}, 3, v{aLo}\nv_add_u32 v{aLo}, v{aLo}, v{t}')
        e(f'v_lshrrev_b32 v{t}, 4, v1\nv_mul_u32_u24 v{t}, 144, v{t}\nv_add_u32 v{aLo}, v{aLo}, v{t}\nv_lshlrev_b32 v{aLo}, 2, v{aLo}')
        e(f's_lshr_b32 s{S_T0}, s{S_W}, 1\ns_mul_i32 s{S_T0}, s{S_T0}, {K32_C}\ns_add_u32 s{S_T0}, s{S_T0}, {L_K32}')
        e(f's_mul_i32 s{S_T1}, s{S_T1}, {4*576*2}\ns_add_u32 s{S_T1}, s{S_T1}, s{S_T0}\nv_add_u32 v{aLo}, s{S_T1}, v{aLo}')
        self.wait_lg('ex')
        for i, q in enumerate((T1, T2, T3, T4)):
            e(f'v_pk_add_f32 {vr(keep+4*i,2)}, {vr(keep+4*i,2)}, {vr(q,2)}\nv_pk_add_f32 {vr(keep+4*i+2,2)}, {vr(keep+4*i+2,2)}, {vr(q+2,2)}')
        e(f'v_add_f32 v{c48}, v{c48}, v{Va}\nv_mov_b32 v{c48+1}, 0\nv_mov_b32 v{aHi}, s{S_T0}')
        for i in range(4):
            t_, s = i >> 1, i & 1
            for r in range(4):
                self.ds(f'ds_write_b32 v{aLo}, v{keep+4*i+r} offset:{4*(576*t_ + 36*r + 18*s)}')
        e(f's_mov_b64 s[{S_M1}:{S_M1+1}], exec\ns_mov_b64 exec, 1')
        self.ds(f'ds_write_b32 v{aHi}, v{c48} offset:9216')
        self.ds(f'ds_write_b32 v{aHi}, v{c48+1} offset:9280')
        e(f's_mov_b64 exec, s[{S_M1}:{S_M1+1}]')
        V.free(keep, 16)
        for x in (T1, T2, T3, T4, Z16, Z512, Va, W, tmp): V.free(x, 8)
        for x in PV + PW: V.free(x, 4)
        for row in D:
            for x in row: V.free(x, 4)
        for x in (aLo, aHi, aC, t): V.free(x)

    def expand(self):
        e = self.e; V = self.V; ga = self.ga
        self.c('---- expand K into 4 shifted bf16 copies')
        g = V.alloc(22, 2); P = V.alloc(16, 4); wa = V.alloc(1); z = V.alloc(4, 4)
        e(f'v_lshlrev_b32 v{wa}, 4, v0')
        for c in range(2):
            for k in range(11): self.ds(f'ds_read_b32 v{g+11*c+k}, v{ga+k} offset:{c*K32_C}', f'g{c}')
        for i in range(4): e(f'v_mov_b32 v{z+i}, 0')
        t = V.alloc(1); t2 = V.alloc(1)
        e(f'v_lshrrev_b32 v{t}, 2, v0\nv_mul_u32_u24 v{t}, {KC_S}, v{t}\nv_and_b32 v{t2}, 3, v0\nv_lshl_add_u32 v{t}, v{t2}, 4, v{t}')
        e(f'v_cmp_gt_u32 vcc, 32, v0\ns_and_saveexec_b64 s[{S_M1}:{S_M1+1}], vcc')
        la = self.lab('zc'); e(f's_cbranch_execz {la}')
        e(f'ds_write_b128 v{t}, {vr(z,4)} offset:{L_KC + 4096}')
        self.label(la); e(f's_mov_b64 exec, s[{S_M1}:{S_M1+1}]')
        e(f'v_lshrrev_b32 v{t}, 6, v0\nv_mul_u32_u24 v{t}, {U_C}, v{t}\nv_lshl_add_u32 v{t}, v1, 4, v{t}')
        e(f'v_cmp_gt_u32 vcc, 128, v0\ns_and_saveexec_b64 s[{S_M1}:{S_M1+1}], vcc')
        la = self.lab('zu'); e(f's_cbranch_execz {la}')
        e(f'ds_write_b128 v{t}, {vr(z,4)} offset:{L_U}')
        self.label(la); e(f's_mov_b64 exec, s[{S_M1}:{S_M1+1}]')
        V.free(t); V.free(t2); V.free(z, 4)
        self.wait_all_lg()
        for c in range(2):
            v = lambda k: g + 11 * c + (k - 1)
            for sc_ in range(4):
                s = 4 - sc_
                for dd in range(4):
                    e(f'v_cvt_pk_bf16_f32 v{P+4*sc_+dd}, v{v(s+2*dd)}, v{v(s+2*dd+1)}')
            for sc_ in range(4):
                self.ds(f'ds_write_b128 v{wa}, {vr(P+4*sc_,4)} offset:{L_KC + c*KC_C + sc_*KC_S}')
        if self.o.get('dumpK'):
            d = V.alloc(1)
            self.wait_all_lg(); e('s_barrier')
            e(f's_lshl_b32 s{S_T0}, s{S_CP}, 13\ns_add_u32 s{S_T0}, s{S_T0}, {WS_DBG + 0x100000}')
            for c in range(2):
                self.ds(f'ds_read_b128 {vr(P,4)}, v{wa} offset:{L_KC + c*KC_C}'); self.wait_all_lg()
                e(f'v_add_u32 v{d}, s{S_T0}, v{wa}')
                self.vmem(f'buffer_store_dwordx4 {vr(P,4)}, v{d}, s[{R_WS}:{R_WS+3}], 0 offen offset:{0}' if c == 0 else
                          f'buffer_store_dwordx4 {vr(P,4)}, v{d}, s[{R_WS}:{R_WS+3}], s{S_T1} offen', 'dbg') if c == 0 else None
                if c == 1:
                    e(f's_mov_b32 s{S_T1}, 4096')
                    self.vmem(f'buffer_store_dwordx4 {vr(P,4)}, v{d}, s[{R_WS}:{R_WS+3}], s{S_T1} offen', 'dbg')
                self.wait_all_vm()
            V.free(d)
        V.free(g, 22); V.free(P, 16); V.free(wa); V.free(ga, 12)

    def normalize(self, xg, sg, sa):
        e = self.e; V = self.V
        self.c('---- LN1 normalize own columns')
        xa = V.alloc(16, 2)
        XP = V.alloc(8, 4)
        self.wait_vm('xg')
        for k in range(8):
            e(f'v_lshlrev_b32 v{xa+k}, 16, v{xg+k}\nv_and_b32 v{xa+8+k}, 0xffff0000, v{xg+k}')
        e(f's_mov_b32 s{S_T0}, 0x05040100\ns_mov_b32 s{S_T1}, 0x07060302')
        for d in range(4):
            e(f'v_perm_b32 v{XP+d}, v{xg+2*d+1}, v{xg+2*d}, s{S_T0}\nv_perm_b32 v{XP+4+d}, v{xg+2*d+1}, v{xg+2*d}, s{S_T1}')
        wa = V.alloc(1); t = V.alloc(1)
        e(f'v_bfe_u32 v{t}, v0, 4, 1\nv_lshlrev_b32 v{t}, 1, v{t}\nv_xor_b32 v{wa}, v0, v{t}\nv_lshlrev_b32 v{wa}, 4, v{wa}')
        for c in range(2): self.ds(f'ds_write_b128 v{wa}, {vr(XP+4*c,4)} offset:{L_X + c*X_C}')
        l0 = self.lab('sp'); l1 = self.lab('spd')
        self.wait_vm('sg')
        e(f's_mov_b32 s{S_CNT}, 0')
        self.label(l0)
        e(f'v_cmp_ne_u32 vcc, s{S_NONCE}, v{sg+1}')
        for k in range(1, 8):
            e(f'v_cmp_ne_u32 s[{S_M2}:{S_M2+1}], s{S_NONCE}, v{sg+2*k+1}\ns_or_b64 vcc, vcc, s[{S_M2}:{S_M2+1}]')
        e(f's_cbranch_vccz {l1}')
        for i in range(4): e(f'buffer_load_dwordx4 {vr(sg+4*i,4)}, v{sa}, s[{R_WS}:{R_WS+3}], 0 offen offset:{16*i} sc1')
        e('s_waitcnt vmcnt(0)')
        e(f's_add_u32 s{S_CNT}, s{S_CNT}, 1\ns_cmp_lt_u32 s{S_CNT}, {SPIN_MAX}\ns_cbranch_scc1 {l0}')
        self.label(l1)
        self.stamp(7)
        ms = V.alloc(16, 2)
        for k in range(8):
            e(f'v_lshlrev_b32 v{ms+k}, 16, v{sg+2*k}\nv_and_b32 v{ms+8+k}, 0xffff0000, v{sg+2*k}')
        for k in range(8): e(f'v_rcp_f32 v{ms+8+k}, v{ms+8+k}')
        UP = XP
        for c in range(2):
            for d in range(4):
                x = xa + 8*c + 2*d
                e(f'v_pk_add_f32 {vr(x,2)}, {vr(x,2)}, {vr(ms+2*d,2)} neg_lo:[0,1] neg_hi:[0,1]')
            for d in range(4):
                x = xa + 8*c + 2*d
                e(f'v_cvt_pk_bf16_f32 v{x+1}, v{x}, v{x+1}')
            for d in range(4):
                x = xa + 8*c + 2*d
                e(f'v_lshlrev_b32 v{x}, 16, v{x+1}\nv_and_b32 v{x+1}, 0xffff0000, v{x+1}')
            for d in range(4):
                x = xa + 8*c + 2*d
                e(f'v_pk_mul_f32 {vr(x,2)}, {vr(x,2)}, {vr(ms+8+2*d,2)}')
            for d in range(4):
                x = xa + 8*c + 2*d
                e(f'v_cvt_pk_bf16_f32 v{UP+4*c+d}, v{x}, v{x+1}')
            self.ds(f'ds_write_b128 v{wa}, {vr(UP+4*c,4)} offset:{L_U + c*U_C + 1024}')
        V.free(ms, 16); V.free(xa, 16); V.free(XP, 8); V.free(wa); V.free(t)

    def conv(self):
        e = self.e; V = self.V
        self.c('---- Toeplitz convolution')
        vF = V.alloc(1); vG = V.alloc(8); t = V.alloc(1); t2 = V.alloc(1)
        e(f's_lshr_b32 s{S_T0}, s{S_W}, 1\ns_mul_i32 s{S_T0}, s{S_T0}, {KC_C}\ns_and_b32 s{S_T1}, s{S_W}, 1\ns_lshl_b32 s{S_T2}, s{S_T1}, 9\ns_sub_u32 s{S_T0}, s{S_T0}, s{S_T2}\ns_add_u32 s{S_T0}, s{S_T0}, {L_KC + 24 + 512}')
        e(f'v_and_b32 v{t}, 3, v1\nv_mul_u32_u24 v{vF}, {KC_S}, v{t}')
        e(f'v_bfe_u32 v{t}, v1, 2, 2\nv_lshlrev_b32 v{t}, 3, v{t}\nv_sub_u32 v{vF}, v{vF}, v{t}')
        e(f'v_lshrrev_b32 v{t}, 4, v1\nv_lshl_add_u32 v{vF}, v{t}, 4, v{vF}\nv_add_u32 v{vF}, s{S_T0}, v{vF}')
        e(f's_lshr_b32 s{S_T0}, s{S_W}, 1\ns_mul_i32 s{S_T0}, s{S_T0}, {U_C}\ns_add_u32 s{S_T0}, s{S_T0}, {L_U}')
        e(f's_lshl_b32 s{S_T1}, s{S_T1}, 3')
        for pp in range(8):
            e(f'v_and_b32 v{t}, 15, v1\nv_add_u32 v{t}, {16 - pp}, v{t}\nv_subrev_u32 v{t}, s{S_T1}, v{t}')
            e(f'v_bfe_u32 v{t2}, v{t}, 2, 1\nv_lshlrev_b32 v{t2}, 1, v{t2}\nv_lshrrev_b32 v{vG+pp}, 4, v1\nv_xor_b32 v{t2}, v{t2}, v{vG+pp}')
            e(f'v_lshlrev_b32 v{t}, 6, v{t}\nv_lshl_add_u32 v{t}, v{t2}, 4, v{t}\nv_add_u32 v{vG+pp}, s{S_T0}, v{t}')
        G = [V.alloc(16, 4) for _ in range(2)]
        F = V.alloc(32, 4)
        acc = V.alloc(32, 4)
        A = lambda b, m: acc + 8 * b + 4 * m
        def rdG(pp):
            for s in range(4): self.ds(f'ds_read_b128 {vr(G[pp&1]+4*s,4)}, v{vG+pp} offset:{1024*s}', f'G{pp}')
        def rdF(pp, q):
            for m in range(2):
                off = 32 * (111 - 32*q - 2*pp - m)
                self.ds(f'ds_read_b64 {vr(F+8*q+4*m,2)}, v{vF} offset:{off}', f'F{pp}_{q}')
                self.ds(f'ds_read_b64 {vr(F+8*q+4*m+2,2)}, v{vF} offset:{off+8}', f'F{pp}_{q}')
        rdG(0)
        for q in range(4): rdF(0, q)
        for pp in range(8):
            self.wait_lg(f'G{pp}')
            for q in range(4):
                self.wait_lg(f'F{pp}_{q}')
                if q == 0 and pp + 1 < 8: rdG(pp + 1)
                for m in range(2):
                    for s in range(4 - q):
                        b = q + s
                        cin = '0' if (pp == 0 and q == 0) else vr(A(b, m), 4)
                        e(f'v_mfma_f32_16x16x32_bf16 {vr(A(b,m),4)}, {vr(F+8*q+4*m,4)}, {vr(G[pp&1]+4*s,4)}, {cin}')
                if pp + 1 < 8: rdF(pp + 1, q)
        for x in G: V.free(x, 16)
        V.free(F, 32); V.free(vG, 8)
        self.stamp(10)
        ra = V.alloc(1)
        e(f's_lshl_b32 s{S_T0}, s{S_W}, 12\ns_add_u32 s{S_T0}, s{S_T0}, {L_RED}\nv_lshl_add_u32 v{ra}, v1, 4, s{S_T0}')
        keep = V.alloc(16, 4)
        lh = self.lab('h1'); ld = self.lab('hd')
        e(f's_and_b32 s{S_T1}, s{S_W}, 1\ns_cmp_lg_u32 s{S_T1}, 0\ns_cbranch_scc1 {lh}')
        for i in range(4): e(f'ds_write_b128 v{ra}, {vr(acc+16+4*i,4)} offset:{1024*i}')
        for i in range(16): e(f'v_mov_b32 v{keep+i}, v{acc+i}')
        e(f's_branch {ld}')
        self.label(lh)
        e('s_nop 7')
        for i in range(4): e(f'ds_write_b128 v{ra}, {vr(acc+4*i,4)} offset:{1024*i}')
        for i in range(16): e(f'v_mov_b32 v{keep+i}, v{acc+16+i}')
        self.label(ld)
        e('s_waitcnt lgkmcnt(0)'); self.lg.drain()
        e('s_barrier')
        e(f's_xor_b32 s{S_T0}, s{S_W}, 1\ns_lshl_b32 s{S_T0}, s{S_T0}, 12\ns_add_u32 s{S_T0}, s{S_T0}, {L_RED}\nv_lshl_add_u32 v{ra}, v1, 4, s{S_T0}')
        for i in range(4): self.ds(f'ds_read_b128 {vr(acc+4*i,4)}, v{ra} offset:{1024*i}', 'red')
        ua = V.alloc(1)
        e(f'v_bfe_u32 v{t}, v1, 2, 1\nv_lshlrev_b32 v{t}, 1, v{t}\nv_lshrrev_b32 v{t2}, 4, v1\nv_xor_b32 v{t}, v{t}, v{t2}')
        e(f'v_and_b32 v{t2}, 15, v1\nv_lshlrev_b32 v{t2}, 6, v{t2}\nv_lshl_add_u32 v{ua}, v{t}, 4, v{t2}')
        e(f's_and_b32 s{S_T1}, s{S_W}, 1\ns_lshl_b32 s{S_T1}, s{S_T1}, 11')
        e(f's_lshr_b32 s{S_T0}, s{S_W}, 1\ns_mul_i32 s{S_T2}, s{S_T0}, {U_C}\ns_add_u32 s{S_T2}, s{S_T2}, s{S_T1}')
        xa_ = V.alloc(1)
        e(f's_mul_i32 s{S_T3}, s{S_T0}, {X_C}\ns_add_u32 s{S_T3}, s{S_T3}, s{S_T1}')
        e(f'v_add_u32 v{xa_}, s{S_T3}, v{ua}\nv_add_u32 v{ua}, s{S_T2}, v{ua}')
        UU = V.alloc(8, 4); XX = V.alloc(8, 4)
        for bb in range(2):
            self.ds(f'ds_read_b128 {vr(UU+4*bb,4)}, v{ua} offset:{L_U + 1024 + 1024*bb}', 'ux')
            self.ds(f'ds_read_b128 {vr(XX+4*bb,4)}, v{xa_} offset:{L_X + 1024*bb}', 'ux')
        self.wait_lg('red')
        for i in range(0, 16, 2):
            e(f'v_pk_add_f32 {vr(keep+i,2)}, {vr(keep+i,2)}, {vr(acc+i,2)}')
        sa = V.alloc(1)
        e(f'v_and_b32 v{t}, 15, v1\nv_lshlrev_b32 v{t}, 6, v{t}\nv_lshrrev_b32 v{t2}, 4, v1\nv_lshl_add_u32 v{sa}, v{t2}, 4, v{t}')
        e(f's_lshl_b32 s{S_T2}, s{S_CP}, 1\ns_add_u32 s{S_T2}, s{S_T2}, s{S_T0}\ns_mul_i32 s{S_T2}, s{S_T2}, {HT_STRIDE}\ns_add_u32 s{S_T2}, s{S_T2}, s{S_T1}\ns_add_u32 s{S_T2}, s{S_T2}, {WS_HT}')
        e(f'v_add_u32 v{sa}, s{S_T2}, v{sa}')
        self.wait_lg('ux')
        Y = V.alloc(4, 4); w8 = V.alloc(16, 2); dk = V.alloc(2, 2)
        e(f'v_mov_b32 v{dk}, s{S_DK}')
        for bb in range(2):
            k0 = keep + 8 * bb
            e(f'v_cvt_pk_bf16_f32 v{Y}, v{k0}, v{k0+1}\nv_cvt_pk_bf16_f32 v{Y+1}, v{k0+2}, v{k0+3}')
            e(f'v_cvt_pk_bf16_f32 v{Y+2}, v{k0+4}, v{k0+5}\nv_cvt_pk_bf16_f32 v{Y+3}, v{k0+6}, v{k0+7}')
            e(f'v_permlane32_swap_b32 v{Y}, v{Y+2}\nv_permlane32_swap_b32 v{Y+1}, v{Y+3}')
            e(f'v_permlane16_swap_b32 v{Y}, v{Y+2}\nv_permlane16_swap_b32 v{Y+1}, v{Y+3}')
            a = w8; b = w8 + 8
            for d in range(4):
                e(f'v_lshlrev_b32 v{a+2*d}, 16, v{UU+4*bb+d}\nv_and_b32 v{a+2*d+1}, 0xffff0000, v{UU+4*bb+d}')
            for d in range(4): e(f'v_pk_mul_f32 {vr(a+2*d,2)}, {vr(a+2*d,2)}, {vr(dk,2)} op_sel_hi:[1,0]')
            for d in range(4): e(f'v_cvt_pk_bf16_f32 v{UU+4*bb+d}, v{a+2*d}, v{a+2*d+1}')
            for d in range(4):
                e(f'v_lshlrev_b32 v{a+2*d}, 16, v{UU+4*bb+d}\nv_and_b32 v{a+2*d+1}, 0xffff0000, v{UU+4*bb+d}')
                e(f'v_lshlrev_b32 v{b+2*d}, 16, v{Y+d}\nv_and_b32 v{b+2*d+1}, 0xffff0000, v{Y+d}')
            for d in range(4): e(f'v_pk_add_f32 {vr(a+2*d,2)}, {vr(a+2*d,2)}, {vr(b+2*d,2)}')
            for d in range(4): e(f'v_cvt_pk_bf16_f32 v{Y+d}, v{a+2*d}, v{a+2*d+1}')
            for d in range(4):
                e(f'v_lshlrev_b32 v{a+2*d}, 16, v{Y+d}\nv_and_b32 v{a+2*d+1}, 0xffff0000, v{Y+d}')
                e(f'v_lshlrev_b32 v{b+2*d}, 16, v{XX+4*bb+d}\nv_and_b32 v{b+2*d+1}, 0xffff0000, v{XX+4*bb+d}')
            for d in range(4): e(f'v_pk_add_f32 {vr(a+2*d,2)}, {vr(a+2*d,2)}, {vr(b+2*d,2)}')
            for d in range(4): e(f'v_cvt_pk_bf16_f32 v{XX+4*bb+d}, v{a+2*d}, v{a+2*d+1}')
            self.vmem(f'buffer_store_dwordx4 {vr(XX+4*bb,4)}, v{sa}, s[{R_WS}:{R_WS+3}], 0 offen offset:{1024*bb} sc1', 'ht')
        V.free(Y, 4); V.free(w8, 16); V.free(dk, 2); V.free(UU, 8); V.free(XX, 8); V.free(sa); V.free(ua); V.free(xa_); V.free(ra)
        V.free(keep, 16); V.free(acc, 32); V.free(vF); V.free(t); V.free(t2)

    def interleave(self, main, fill, per_gap):
        n = len(main); fi = 0
        for i, m in enumerate(main):
            m()
            tgt = (len(fill) * (i + 1) + n - 1) // n if per_gap is None else min(len(fill), fi + per_gap)
            while fi < tgt:
                fill[fi](); fi += 1
        while fi < len(fill):
            fill[fi](); fi += 1

    def poll_flags(self, base, nflags_expr_lanes, nloads, sbase=None):
        e = self.e; V = self.V
        skip = self.lab('pf'); l0 = self.lab('pl'); l1 = self.lab('pd')
        e(f's_cmp_lg_u32 s{S_W}, 0\ns_cbranch_scc1 {skip}')
        a = V.alloc(1); d = V.alloc(4, 2)
        e(f'v_mul_u32_u24 v{a}, {FLAG_STRIDE}, v1\nv_add_u32 v{a}, {base}, v{a}')
        if sbase is not None: e(f'v_add_u32 v{a}, s{sbase}, v{a}')
        e(f's_mov_b64 s[{S_M1}:{S_M1+1}], exec')
        if nflags_expr_lanes < 64: e(f's_mov_b64 exec, {hex((1 << nflags_expr_lanes) - 1)}')
        e(f's_mov_b32 s{S_CNT}, 0')
        self.label(l0)
        for k in range(nloads):
            e(f'buffer_load_dword v{d+k}, v{a}, s[{R_WS}:{R_WS+3}], 0 offen offset:{64*FLAG_STRIDE*k} sc1')
        e('s_waitcnt vmcnt(0)')
        e(f'v_cmp_ne_u32 vcc, s{S_NONCE}, v{d}')
        for k in range(1, nloads):
            e(f'v_cmp_ne_u32 s[{S_M2}:{S_M2+1}], s{S_NONCE}, v{d+k}\ns_or_b64 vcc, vcc, s[{S_M2}:{S_M2+1}]')
        e(f's_cbranch_vccz {l1}')
        e(f's_add_u32 s{S_CNT}, s{S_CNT}, 1\ns_cmp_lt_u32 s{S_CNT}, {SPIN_MAX}\ns_cbranch_scc1 {l0}')
        self.label(l1)
        e(f's_mov_b64 exec, s[{S_M1}:{S_M1+1}]')
        V.free(a); V.free(d, 4)
        self.label(skip)
        e('s_barrier')

    def phaseB(self):
        e = self.e; V = self.V; o = self.o
        self.c('================= phase B')
        L_H = 0; HG = 28672; L_STP = 4 * HG
        vD = V.alloc(1); vB = V.alloc(1); vS = V.alloc(1); t = V.alloc(1)
        e(f'v_lshrrev_b32 v{t}, 2, v1\nv_mul_u32_u24 v{vD}, {HT_STRIDE}, v{t}\nv_and_b32 v{t}, 3, v1\nv_lshl_add_u32 v{vD}, v{t}, 4, v{vD}')
        e(f's_lshl_b32 s{S_T0}, s{S_RB}, 8\ns_add_u32 s{S_T0}, s{S_T0}, {WS_HT}\nv_add_u32 v{vD}, s{S_T0}, v{vD}')
        e(f'v_mov_b32 v{vB}, v{self.vTR}')
        e(f's_lshl_b32 s{S_T0}, s{S_W}, 10\nv_add_u32 v{vS}, s{S_T0}, v{vB}')
        self.poll_flags(WS_FLAG2, 64, 4)
        self.vm.drain(); self.lg.drain()
        self.stamp(16)
        def hdma(g, i):
            def f():
                e(f's_lshl_b32 s{S_T1}, s{S_W}, 10\ns_add_u32 m0, s{S_T1}, {L_H + g*HG + i*4096}')
                e(f's_mul_i32 s{S_T1}, s{S_W}, {16*HT_STRIDE}\ns_add_u32 s{S_T1}, s{S_T1}, {i*4*16*HT_STRIDE + 64*g}')
                self.vmem(f'buffer_load_dwordx4 v{vD}, s[{R_WS}:{R_WS+3}], s{S_T1} offen sc1 lds', f'h{g}')
            return f
        for i in range(7): hdma(0, i)()
        cs = V.alloc(32, 4)
        e(f'v_lshrrev_b32 v{t}, 5, v1\nv_lshlrev_b32 v{t}, 4, v{t}\ns_lshl_b32 s{S_T0}, s{S_FB}, 9\ns_lshl_b32 s{S_T1}, s{S_W}, 7\ns_add_u32 s{S_T0}, s{S_T0}, s{S_T1}\ns_add_u32 s{S_T0}, s{S_T0}, {WS_CS}\nv_add_u32 v{t}, s{S_T0}, v{t}')
        e(f's_mov_b32 s{S_T2}, {1792*4}')
        for rho in range(4): self.vmem(f'buffer_load_dwordx4 {vr(cs+4*rho,4)}, v{t}, s[{R_WS}:{R_WS+3}], 0 offen offset:{32*rho} sc1', 'cs')
        for rho in range(4): self.vmem(f'buffer_load_dwordx4 {vr(cs+16+4*rho,4)}, v{t}, s[{R_WS}:{R_WS+3}], s{S_T2} offen offset:{32*rho} sc1', 'cs')
        for g in range(1, 4):
            for i in range(7): hdma(g, i)()
        vA = V.alloc(1)
        e(f's_mul_i32 s{S_T0}, s{S_RB}, {4*112}\ns_lshl_b32 s{S_T1}, s{S_FB}, 3\ns_add_u32 s{S_T0}, s{S_T0}, s{S_T1}\ns_lshl_b32 s{S_T1}, s{S_W}, 1\ns_add_u32 s{S_T0}, s{S_T0}, s{S_T1}')
        e(f's_lshl_b32 s{S_T0}, s{S_T0}, 10\ns_add_u32 s{S_T0}, s{S_T0}, {WS_ACT}\nv_lshl_add_u32 v{vA}, v1, 4, s{S_T0}')
        vH = V.alloc(1); vHs = V.alloc(1)
        e(f's_lshl_b32 s{S_T0}, s{S_FB}, 11\nv_add_u32 v{vH}, s{S_T0}, v{vB}')
        e(f's_mul_i32 s{S_T0}, s{S_RB}, {4*28}\ns_lshl_b32 s{S_T1}, s{S_FB}, 1\ns_add_u32 s{S_T0}, s{S_T0}, s{S_T1}\ns_lshl_b32 s{S_T0}, s{S_T0}, 10\ns_add_u32 s{S_T0}, s{S_T0}, {WS_HD}\nv_lshl_add_u32 v{vHs}, v1, 4, s{S_T0}')
        NB = 6
        B = V.alloc(4 * NB, 4); SB = V.alloc(8, 4)
        acc = [V.alloc(32, 4), V.alloc(32, 4)]
        sacc = V.alloc(8, 2)
        st = V.alloc(8, 2)
        par = V.alloc(6, 2)
        tmp = V.alloc(16, 2); pk = V.alloc(8, 4)
        vP = V.alloc(1); vPw = V.alloc(1)
        e(f'v_and_b32 v{vP}, 31, v1\nv_lshlrev_b32 v{vP}, 3, v{vP}\nv_add_u32 v{vP}, {L_STP}, v{vP}')
        e(f's_lshl_b32 s{S_T0}, s{S_W}, 8\nv_add_u32 v{vPw}, s{S_T0}, v{vP}')
        e(f's_mov_b32 s{S_T3}, 0x3f803f80')
        def rdB(g, k):
            s = k % NB
            self.ds(f'ds_read_b64_tr_b16 {vr(B+4*s,2)}, v{vB} offset:{g*HG + k*1024}' if g*HG + k*1024 + 512 < 65536 else
                    f'ds_read_b64_tr_b16 {vr(B+4*s,2)}, v{self.vB2} offset:{g*HG + k*1024 - 57344}', f'B{g}_{k}')
            self.ds(f'ds_read_b64_tr_b16 {vr(B+4*s+2,2)}, v{vB} offset:{g*HG + k*1024 + 512}' if g*HG + k*1024 + 512 < 65536 else
                    f'ds_read_b64_tr_b16 {vr(B+4*s+2,2)}, v{self.vB2} offset:{g*HG + k*1024 + 512 - 57344}', f'B{g}_{k}')
        self.vB2 = V.alloc(1); vS2 = V.alloc(1); vH2 = V.alloc(1)
        e(f'v_add_u32 v{self.vB2}, 57344, v{vB}\nv_add_u32 v{vS2}, 57344, v{vS}\nv_add_u32 v{vH2}, 57344, v{vH}')
        def addr(base, base2, off): return (base, off) if off + 512 < 65536 else (base2, off - 57344)
        def epilogue_ops(g):
            A_ = acc[g & 1]; ops = []
            par_ = par
            def rd():
                for w_ in range(4): self.ds(f'ds_read_b64 {vr(st+2*w_,2)}, v{vP} offset:{(g&1)*1024 + 256*w_}', f'st{g}')
            ops.append(rd)
            def fin0():
                self.wait_lg(f'st{g}')
                e(f'v_pk_add_f32 {vr(st,2)}, {vr(st,2)}, {vr(st+2,2)}')
            ops.append(fin0)
            ops.append(lambda: e(f'v_pk_add_f32 {vr(st+4,2)}, {vr(st+4,2)}, {vr(st+6,2)}'))
            ops.append(lambda: e(f'v_pk_add_f32 {vr(st,2)}, {vr(st,2)}, {vr(st+4,2)}'))
            save = self.lines; self.lines = []
            self.ln_finalize(st, st + 1, st + 2, st + 3, st + 4)
            e(f'v_sub_f32 v{par_}, 0, v{st+2}')
            e(f'v_rcp_f32 v{st+4}, v{st+3}')
            e(f'v_mul_f32 v{par_+4}, v{st+3}, v{st+3}')
            e(f'v_mul_f32 v{par_+2}, {fx(-LOG2E)}, v{st+4}')
            fl = self.lines; self.lines = save
            for l in fl: ops.append(lambda l=l: e(l))
            ops.append(lambda: self.wait_vm('cs'))
            for p in range(8):
                r = 2 * p; T = tmp + 8 * (p & 1)
                tg, tu, ar_, dd = T, T + 2, T + 4, T + 6
                ops.append(lambda r=r, tg=tg: e(f'v_pk_fma_f32 {vr(tg,2)}, {vr(cs+r,2)}, {vr(par_,2)}, {vr(A_+r,2)} op_sel_hi:[1,0,1]'))
                ops.append(lambda r=r, tu=tu: e(f'v_pk_fma_f32 {vr(tu,2)}, {vr(cs+16+r,2)}, {vr(par_,2)}, {vr(A_+16+r,2)} op_sel_hi:[1,0,1]'))
                ops.append(lambda tg=tg, ar_=ar_: e(f'v_pk_mul_f32 {vr(ar_,2)}, {vr(tg,2)}, {vr(par_+2,2)} op_sel_hi:[1,0]'))
                ops.append(lambda tg=tg, tu=tu: e(f'v_pk_mul_f32 {vr(tg,2)}, {vr(tg,2)}, {vr(tu,2)}'))
                ops.append(lambda ar_=ar_: e(f'v_exp_f32 v{ar_}, v{ar_}'))
                ops.append(lambda ar_=ar_: e(f'v_exp_f32 v{ar_+1}, v{ar_+1}'))
                ops.append(lambda ar_=ar_, dd=dd: e(f'v_pk_fma_f32 {vr(dd,2)}, {vr(ar_,2)}, {vr(par_+4,2)}, {vr(par_+4,2)} op_sel_hi:[1,0,0]'))
                ops.append(lambda dd=dd: e(f'v_rcp_f32 v{dd}, v{dd}'))
                ops.append(lambda dd=dd: e(f'v_rcp_f32 v{dd+1}, v{dd+1}'))
                ops.append(lambda tg=tg, dd=dd: e(f'v_pk_mul_f32 {vr(tg,2)}, {vr(tg,2)}, {vr(dd,2)}'))
                ops.append(lambda tg=tg, p=p: e(f'v_cvt_pk_bf16_f32 v{pk+p}, v{tg}, v{tg+1}'))
                if p in (3, 7):
                    kk = p >> 2
                    ops.append(lambda kk=kk: self.vmem(f'buffer_store_dwordx4 {vr(pk+4*kk,4)}, v{vA}, s[{R_WS}:{R_WS+3}], s{S_T4} offen offset:{1024*kk} sc1', 'act'))
            return ops
        for g in range(4):
            self.c(f'---- pass {g}')
            self.wait_vm(f'h{g}')
            self.wait_all_lg()
            e('s_barrier')
            if g == 0: self.stamp(17)
            lab = self.lab('hd')
            e(f's_cmp_lg_u32 s{S_W}, {g}\ns_cbranch_scc1 {lab}')
            for kk in range(2):
                for h_ in range(2):
                    b_, off = addr(vH, vH2, g*HG + kk*1024 + 512*h_)
                    e(f'ds_read_b64_tr_b16 {vr(tmp+4*kk+2*h_,2)}, v{b_} offset:{off}')
            e(f's_mov_b32 s{S_T0}, {g*28*1024}')
            e('s_waitcnt lgkmcnt(0)')
            for kk in range(2): e(f'buffer_store_dwordx4 {vr(tmp+4*kk,4)}, v{vHs}, s[{R_WS}:{R_WS+3}], s{S_T0} offen offset:{1024*kk} sc1')
            e('s_nop 1')
            self.label(lab)
            for k in range(4): rdB(g, k)
            A_ = acc[g & 1]
            main = []
            for k in range(28):
                def mg(k=k):
                    self.wait_lg(f'B{g}_{k}')
                    cin = '0' if k == 0 else vr(A_, 16)
                    e(f'v_mfma_f32_32x32x16_bf16 {vr(A_,16)}, {ar(8*k,4)}, {vr(B+4*(k%NB),4)}, {cin}')
                def mu(k=k):
                    cin = '0' if k == 0 else vr(A_ + 16, 16)
                    e(f'v_mfma_f32_32x32x16_bf16 {vr(A_+16,16)}, {ar(8*k+4,4)}, {vr(B+4*(k%NB),4)}, {cin}')
                    if k + 4 < 28: rdB(g, k + 4)
                main += [mg, mu]
            fill = []
            if g > 0:
                fill.append(lambda g=g: e(f's_mov_b32 s{S_T4}, {(g-1)*112*1024}'))
                fill += epilogue_ops(g - 1)
            sf = []
            def z():
                for i in range(8): e(f'v_mov_b32 v{sacc+i}, 0')
            sf.append(z)
            for i in range(7):
                sb = SB + 4 * (i & 1)
                def rs(i=i, sb=sb):
                    for h_ in range(2):
                        b_, off = addr(vS, vS2, g*HG + i*4096 + 512*h_)
                        self.ds(f'ds_read_b64_tr_b16 {vr(sb+2*h_,2)}, v{b_} offset:{off}', f'S{g}_{i}')
                def dots(i=i, sb=sb, r=0):
                    if r == 0: self.wait_lg(f'S{g}_{i}')
                    e(f'v_dot2_f32_bf16 v{sacc+r}, v{sb+r}, s{S_T3}, v{sacc+r}')
                    e(f'v_dot2_f32_bf16 v{sacc+4+r}, v{sb+r}, v{sb+r}, v{sacc+4+r}')
                if i == 0: sf.append(rs)
                nxt = None
                if i + 1 < 7:
                    sb2 = SB + 4 * ((i + 1) & 1)
                    def rs2(i=i + 1, sb=sb2):
                        for h_ in range(2):
                            b_, off = addr(vS, vS2, g*HG + i*4096 + 512*h_)
                            self.ds(f'ds_read_b64_tr_b16 {vr(sb+2*h_,2)}, v{b_} offset:{off}', f'S{g}_{i}')
                    sf.append(rs2)
                for r in range(4): sf.append(lambda i=i, sb=sb, r=r: dots(i, sb, r))
            def red():
                e(f'v_add_f32 v{sacc}, v{sacc}, v{sacc+1}\nv_add_f32 v{sacc+2}, v{sacc+2}, v{sacc+3}\nv_add_f32 v{sacc+4}, v{sacc+4}, v{sacc+5}\nv_add_f32 v{sacc+6}, v{sacc+6}, v{sacc+7}')
                e(f'v_add_f32 v{sacc}, v{sacc}, v{sacc+2}\nv_add_f32 v{sacc+1}, v{sacc+4}, v{sacc+6}')
                e(f'v_mov_b32 v{sacc+2}, v{sacc}\nv_mov_b32 v{sacc+3}, v{sacc+1}')
                e(f'v_permlane32_swap_b32 v{sacc}, v{sacc+2}\nv_permlane32_swap_b32 v{sacc+1}, v{sacc+3}')
                e(f'v_pk_add_f32 {vr(sacc,2)}, {vr(sacc,2)}, {vr(sacc+2,2)}')
                self.ds(f'ds_write_b64 v{vPw}, {vr(sacc,2)} offset:{(g&1)*1024}', 'stw')
            sf.append(red)
            merged = []; a_, b_ = list(fill), list(sf)
            while a_ or b_:
                for _ in range(3):
                    if a_: merged.append(a_.pop(0))
                if b_: merged.append(b_.pop(0))
            self.interleave(main[:52], merged, None)
            for m in main[52:]: m()
        self.stamp(18)
        self.wait_all_lg(); e('s_barrier')
        e(f's_mov_b32 s{S_T4}, {3*112*1024}')
        for f in epilogue_ops(3): f()
        self.stamp(19)
        for x, n in ((vD,1),(vB,1),(vS,1),(t,1),(cs,32),(vA,1),(vH,1),(vHs,1),(B,4*NB),(SB,8),(acc[0],32),(acc[1],32),(sacc,8),(st,8),(par,6),(tmp,16),(pk,8),(vP,1),(vPw,1),(self.vB2,1),(vS2,1),(vH2,1)):
            V.free(x, n)
        self.wait_all_vm(); e('s_barrier')
        e(f's_lshl_b32 s{S_T1}, s{S_RB}, 4\ns_add_u32 s{S_T1}, s{S_T1}, s{S_FB}')
        self.signal(WS_FLAG3, f's{S_T1}')
        self.stamp(20)

    def phaseC(self):
        e = self.e; V = self.V; o = self.o
        self.c('================= phase C')
        STG = 40960
        vD = V.alloc(1); t = V.alloc(1); t2 = V.alloc(1); vT = V.alloc(2)
        e(f'v_lshrrev_b32 v{t}, 3, v1\nv_mul_u32_u24 v{vD}, 896, v{t}\nv_bfe_u32 v{t}, v1, 4, 1\nv_lshlrev_b32 v{t}, 2, v{t}\nv_and_b32 v{t2}, 7, v1\nv_xor_b32 v{t}, v{t}, v{t2}\nv_lshl_add_u32 v{vD}, v{t}, 4, v{vD}')
        e(f's_lshl_b32 s{S_T0}, s{S_DB}, 7\ns_mul_i32 s{S_T1}, s{S_W}, {448*896}\ns_add_u32 s{S_T0}, s{S_T0}, s{S_T1}\nv_add_u32 v{vD}, s{S_T0}, v{vD}')
        e(f'v_lshrrev_b32 v{t}, 5, v1\nv_lshlrev_b32 v{vT}, 9, v{t}\nv_bfe_u32 v{t}, v1, 2, 2\nv_lshl_add_u32 v{vT}, v{t}, 7, v{vT}')
        e(f'v_bfe_u32 v{t}, v1, 4, 1\nv_lshl_add_u32 v{vT}, v{t}, 5, v{vT}\nv_and_b32 v{t}, 3, v1\nv_lshl_add_u32 v{vT}, v{t}, 3, v{vT}')
        e(f's_mul_i32 s{S_T2}, s{S_W}, {STG}\nv_add_u32 v{vT}, s{S_T2}, v{vT}')
        e(f'v_bfe_u32 v{t}, v1, 3, 1\nv_lshlrev_b32 v{t}, 6, v{t}')
        e(f'v_xor_b32 v{t2}, 64, v{t}\nv_add_u32 v{vT+1}, v{vT}, v{t2}\nv_add_u32 v{vT}, v{vT}, v{t}')
        def wd_issue(k0, k1):
            for k in range(k0, k1):
                for hh in range(2):
                    e(f's_mov_b32 s{S_T1}, {(16*k + 8*hh)*896}\ns_add_u32 m0, s{S_T2}, {(k-k0)*2048 + hh*1024}')
                    self.vmem(f'buffer_load_dwordx4 v{vD}, s[{R_WD}:{R_WD+3}], s{S_T1} offen lds', f'wd{k0}')
        def wd_fetch(k0, k1):
            self.wait_vm(f'wd{k0}')
            for k in range(k0, k1):
                for mt in range(2):
                    self.ds(f'ds_read_b64_tr_b16 {ar(8*k+4*mt,2)}, v{vT+mt} offset:{(k-k0)*2048}', 'wdr')
                    self.ds(f'ds_read_b64_tr_b16 {ar(8*k+4*mt+2,2)}, v{vT+mt} offset:{(k-k0)*2048 + 1024}', 'wdr')
            self.wait_all_lg()
        wd_issue(0, 20); wd_fetch(0, 20); wd_issue(20, 28); wd_fetch(20, 28)
        self.stamp(21)
        e(f's_lshr_b32 s{S_T0}, s{S_RB2}, 1\ns_mul_i32 s{S_T0}, s{S_T0}, {16*FLAG_STRIDE}')
        self.poll_flags(WS_FLAG3, 14, 1, sbase=S_T0)
        self.vm.drain(); self.lg.drain()
        self.stamp(22)
        vA = V.alloc(1)
        e(f's_mul_i32 s{S_T0}, s{S_RB2}, {2*112}\ns_mul_i32 s{S_T1}, s{S_W}, 28\ns_add_u32 s{S_T0}, s{S_T0}, s{S_T1}\ns_lshl_b32 s{S_T0}, s{S_T0}, 10\ns_add_u32 s{S_T0}, s{S_T0}, {WS_ACT}\nv_lshl_add_u32 v{vA}, v1, 4, s{S_T0}')
        NR = 16
        Bf = V.alloc(8 * NR, 4); acc = V.alloc(64, 4)
        def ld(k):
            for nt in range(2):
                e(f's_mov_b32 s{S_T1}, {(nt*112 + k)*1024}')
                self.vmem(f'buffer_load_dwordx4 {vr(Bf+8*(k%NR)+4*nt,4)}, v{vA}, s[{R_WS}:{R_WS+3}], s{S_T1} offen sc1', f'a{k}')
        for k in range(NR): ld(k)
        hres = V.alloc(8, 4); vR = V.alloc(1)
        e(f's_lshl_b32 s{S_T0}, s{S_RB2}, 1\ns_and_b32 s{S_T1}, s{S_W}, 1\ns_add_u32 s{S_T0}, s{S_T0}, s{S_T1}\ns_mul_i32 s{S_T0}, s{S_T0}, 28')
        e(f's_lshl_b32 s{S_T1}, s{S_DB}, 2\ns_add_u32 s{S_T0}, s{S_T0}, s{S_T1}\ns_and_b32 s{S_T1}, s{S_W}, 2\ns_add_u32 s{S_T0}, s{S_T0}, s{S_T1}\ns_lshl_b32 s{S_T0}, s{S_T0}, 10\ns_add_u32 s{S_T0}, s{S_T0}, {WS_HD}\nv_lshl_add_u32 v{vR}, v1, 4, s{S_T0}')
        A = lambda mt, nt: acc + 16 * (2 * mt + nt)
        for k in range(28):
            self.wait_vm(f'a{k}')
            for mt in range(2):
                for nt in range(2):
                    cin = '0' if k == 0 else vr(A(mt, nt), 16)
                    e(f'v_mfma_f32_32x32x16_bf16 {vr(A(mt,nt),16)}, {ar(8*k+4*mt,4)}, {vr(Bf+8*(k%NR)+4*nt,4)}, {cin}')
            if k + NR < 28: ld(k + NR)
            if k == 12:
                for kk in range(2): self.vmem(f'buffer_load_dwordx4 {vr(hres+4*kk,4)}, v{vR}, s[{R_WS}:{R_WS+3}], 0 offen offset:{1024*kk} sc1', 'hres')
        self.stamp(23)
        V.free(Bf, 8 * NR)
        ra = V.alloc(1); keep = V.alloc(16, 4); rr = V.alloc(48, 4)
        e(f's_lshl_b32 s{S_T0}, s{S_W}, 12\nv_lshl_add_u32 v{ra}, v1, 4, s{S_T0}')
        labs = [self.lab(f'r{w}') for w in range(4)]; ld_ = self.lab('rd')
        for w in range(1, 4): e(f's_cmp_eq_u32 s{S_W}, {w}\ns_cbranch_scc1 {labs[w]}')
        for w in range(4):
            if w: self.label(labs[w]); e('s_nop 7\ns_nop 3')
            for T in range(4):
                if T == w: continue
                for q in range(4): e(f'ds_write_b128 v{ra}, {vr(acc+16*T+4*q,4)} offset:{T*16384 + q*1024}')
            for i in range(16): e(f'v_mov_b32 v{keep+i}, v{acc+16*w+i}')
            if w < 3: e(f's_branch {ld_}')
        self.label(ld_)
        e('s_waitcnt lgkmcnt(0)'); self.lg.drain()
        e('s_barrier')
        e(f's_lshl_b32 s{S_T0}, s{S_W}, 14\nv_lshl_add_u32 v{ra}, v1, 4, s{S_T0}')
        for j in range(1, 4):
            e(f's_add_u32 s{S_T1}, s{S_W}, {j}\ns_and_b32 s{S_T1}, s{S_T1}, 3\ns_lshl_b32 s{S_T1}, s{S_T1}, 12\nv_add_u32 v{t}, s{S_T1}, v{ra}')
            for q in range(4): self.ds(f'ds_read_b128 {vr(rr+16*(j-1)+4*q,4)}, v{t} offset:{q*1024}', f'rr{j}')
        vO = V.alloc(1)
        e(f'v_and_b32 v{t}, 31, v1\nv_mul_u32_u24 v{vO}, 896, v{t}\nv_lshrrev_b32 v{t}, 5, v1\nv_lshl_add_u32 v{vO}, v{t}, 4, v{vO}')
        e(f's_lshl_b32 s{S_T0}, s{S_RB2}, 1\ns_and_b32 s{S_T1}, s{S_W}, 1\ns_add_u32 s{S_T0}, s{S_T0}, s{S_T1}\ns_mul_i32 s{S_T0}, s{S_T0}, {32*896}')
        e(f's_lshl_b32 s{S_T1}, s{S_DB}, 7\ns_add_u32 s{S_T0}, s{S_T0}, s{S_T1}\ns_and_b32 s{S_T1}, s{S_W}, 2\ns_lshl_b32 s{S_T1}, s{S_T1}, 5\ns_add_u32 s{S_T0}, s{S_T0}, s{S_T1}\nv_add_u32 v{vO}, s{S_T0}, v{vO}')
        for j in range(1, 4):
            self.wait_lg(f'rr{j}')
            for i in range(0, 16, 2): e(f'v_pk_add_f32 {vr(keep+i,2)}, {vr(keep+i,2)}, {vr(rr+16*(j-1)+i,2)}')
        self.wait_vm('hres')
        P = V.alloc(8, 4); w8 = rr
        for d in range(8): e(f'v_cvt_pk_bf16_f32 v{P+d}, v{keep+2*d}, v{keep+2*d+1}')
        for d in range(8):
            e(f'v_lshlrev_b32 v{w8+2*d}, 16, v{P+d}\nv_and_b32 v{w8+2*d+1}, 0xffff0000, v{P+d}')
            e(f'v_lshlrev_b32 v{w8+16+2*d}, 16, v{hres+d}\nv_and_b32 v{w8+16+2*d+1}, 0xffff0000, v{hres+d}')
        for d in range(8): e(f'v_pk_add_f32 {vr(w8+2*d,2)}, {vr(w8+2*d,2)}, {vr(w8+16+2*d,2)}')
        for d in range(8): e(f'v_cvt_pk_bf16_f32 v{P+d}, v{w8+2*d}, v{w8+2*d+1}')
        for kk in range(2):
            b = P + 4 * kk
            e(f'v_permlane32_swap_b32 v{b}, v{b+2}\nv_permlane32_swap_b32 v{b+1}, v{b+3}')
        for kk in range(2):
            self.vmem(f'buffer_store_dwordx4 {vr(P+4*kk,4)}, v{vO}, s[{R_OUT}:{R_OUT+3}], 0 offen offset:{32*kk}', 'out')
        self.stamp(24)

    def build(self):
        e = self.e
        self.prologue()
        e(f's_cmp_ge_u32 s{S_J}, 28\ns_cbranch_scc0 L_worker')
        saveV = list(self.V.used)
        self.helper()
        self.V.used = saveV; self.vm.drain(); self.lg.drain()
        self.label('L_worker')
        self.phaseA()
        upto = self.o.get('upto', 'C')
        if upto in ('B', 'C'): self.phaseB()
        if upto == 'C': self.phaseC()
        self.label('L_end')
        e('s_endpgm')

HEADER = open(os.path.join(os.path.dirname(os.path.abspath(__file__)), 'header.txt')).read() if os.path.exists(os.path.join(os.path.dirname(os.path.abspath(__file__)), 'header.txt')) else ''

def generate(opt):
    g = Gen(opt)
    g.build()
    lines, problems = fix_hazards(g.lines, verbose=opt.get('verbose', False))
    for p in problems: print('BACKEDGE HAZARD:', p, file=sys.stderr)
    out = [HEADER.rstrip('\n').replace('@@GRID@@', f'; @launch grid=(256,1,1) block=(256,1,1) lds={LDS_SIZE}')]
    out += ['.amdgcn_target "amdgcn-amd-amdhsa--gfx950"', '.text', f'.globl {NAME}', '.p2align 8', f'.type {NAME},@function', f'{NAME}:']
    for l in lines:
        out.append(l if l.endswith(':') else '    ' + l)
    out += ['.section .rodata,"a"', '.p2align 6', f'.amdhsa_kernel {NAME}',
            '  .amdhsa_next_free_vgpr 512', '  .amdhsa_next_free_sgpr 102', '  .amdhsa_accum_offset 256',
            '  .amdhsa_group_segment_fixed_size 0', '  .amdhsa_kernarg_size 128', '  .amdhsa_user_sgpr_count 2',
            '  .amdhsa_user_sgpr_kernarg_segment_ptr 1', '  .amdhsa_system_sgpr_workgroup_id_x 1',
            '  .amdhsa_float_denorm_mode_32 3', '.end_amdhsa_kernel', '']
    if opt.get('verbose'): print('max arch vgpr', g.V.hi, 'lines', len(lines))
    return '\n'.join(out)

if __name__ == '__main__':
    import json
    opt = json.loads(sys.argv[2]) if len(sys.argv) > 2 else {}
    opt['verbose'] = True
    txt = generate(opt)
    open(sys.argv[1], 'w').write(txt)
```

```python
import sys, os, math, struct
sys.path.insert(0, os.path.dirname(os.path.abspath(__file__)))
from asmlib import *

NAME = 'sequential_preLN__ssm_conv_s4__swiglu_ffn__prompt_kernel'
def f2u(x): return struct.unpack('<I', struct.pack('<f', x))[0]
def fx(x): return hex(f2u(x))
LOG2E = 1.4426950408889634
WS_STATS = 0x0
WS_FLAG2 = 0x4000
WS_FLAG3 = 0xC000
WS_CS    = 0x10000
WS_HT    = 0x20000
HT_STRIDE = 4352
WS_HD    = 0x200000
WS_ACT   = 0x400000
WS_DBG   = 0xC00000
WS_SIZE  = 0x2000000
FLAG_STRIDE = 16
TBL_E = 2112; TBL_C = 18 * TBL_E
L_TBL = 0
L_EX = 2 * TBL_C
L_STG = 92672
K32_C = 9344
L_KC = 0; KC_S = 4160; KC_C = 4 * KC_S
L_U = 2 * KC_C; U_C = 5120
L_X = L_U + 2 * U_C; X_C = 4096
L_RED = L_X + 2 * X_C
L_K32 = L_RED
LDS_SIZE = 163840
S_X, S_ARE, S_AIM, S_BRE, S_BIM, S_CRE, S_CIM, S_LDT, S_DSK, S_BX, S_WG, S_WU, S_WD, S_OUT, S_DBG, S_WS = range(4, 36, 2)
R_X, R_WS, R_DBG, R_WG, R_WU, R_WD, R_OUT = 36, 40, 44, 48, 52, 56, 60
S_W, S_NONCE, S_XCD, S_J, S_CP, S_T0, S_T1, S_T2, S_T3, S_T4, S_T5 = 64, 65, 66, 67, 68, 69, 70, 71, 72, 73, 74
S_LD, S_DK = 75, 76
S_RB, S_FB, S_RB2, S_DB = 77, 78, 79, 80
S_M0, S_M1, S_M2, S_M3 = 82, 84, 86, 88
S_CNT = 90
S_HID = 91
S_TS = 92
SPIN_MAX = 200000

class Gen(Asm):
    def __init__(self, opt):
        super().__init__()
        self.o = opt
        self.V = Regs('v', 256, start=2)
        self.uid = 0
    def lab(self, s):
        self.uid += 1
        return f'L{s}_{self.uid}'
    def srd(self, r, ptr, size):
        self.e(f's_mov_b32 s{r}, s{ptr}\ns_mov_b32 s{r+1}, s{ptr+1}\ns_mov_b32 s{r+2}, {hex(size)}\ns_mov_b32 s{r+3}, 0x20000')
    def cmul(self, d, a, b, t=None):
        t = d if t is None else t
        self.e(f'v_pk_mul_f32 {vr(t,2)}, {vr(a,2)}, {vr(b,2)} op_sel:[0,0] op_sel_hi:[0,1]')
        self.e(f'v_pk_fma_f32 {vr(d,2)}, {vr(a,2)}, {vr(b,2)}, {vr(t,2)} op_sel:[1,1,0] op_sel_hi:[1,0,1] neg_lo:[0,1,0]')
    def cmul_multi(self, items):
        for d, a, b, t in items:
            t = d if t is None else t
            self.e(f'v_pk_mul_f32 {vr(t,2)}, {vr(a,2)}, {vr(b,2)} op_sel:[0,0] op_sel_hi:[0,1]')
        for d, a, b, t in items:
            t = d if t is None else t
            self.e(f'v_pk_fma_f32 {vr(d,2)}, {vr(a,2)}, {vr(b,2)}, {vr(t,2)} op_sel:[1,1,0] op_sel_hi:[1,0,1] neg_lo:[0,1,0]')
    def stamp(self, i):
        dm = self.o.get('dbgmap')
        if dm and i in dm:
            lab = self.lab('ds')
            self.e(f's_cmp_lg_u32 s2, {self.o.get("dbgwg", 8)}\ns_cbranch_scc1 {lab}\ns_cmp_lg_u32 s{S_W}, 0\ns_cbranch_scc1 {lab}')
            self.e(f's_memrealtime s[{S_TS}:{S_TS+1}]\ns_waitcnt lgkmcnt(0)')
            v = self.V.alloc(2)
            self.e(f's_sub_u32 s{S_TS}, s{S_TS}, s{S_TS+6}\nv_mov_b32 v{v}, s{S_TS}\nv_mov_b32 v{v+1}, {4*(1+dm.index(i))}')
            self.e(f's_mov_b64 s[{S_TS+4}:{S_TS+5}], exec\ns_mov_b64 exec, 1')
            self.e(f'buffer_store_dword v{v}, v{v+1}, s[{R_DBG}:{R_DBG+3}], 0 offen')
            self.e(f's_mov_b64 exec, s[{S_TS+4}:{S_TS+5}]')
            self.V.free(v, 2)
            self.label(lab)
            self.e('s_waitcnt lgkmcnt(0)')
            self.lg.drain()
        if self.o.get('stamps'):
            self.e(f's_mem{"time" if self.o.get("cyc") else "realtime"} s[{S_TS}:{S_TS+1}]')
            self.e('s_waitcnt lgkmcnt(0)'); self.lg.drain()
            v = self.V.alloc(2)
            self.e(f'v_mov_b32 v{v}, s{S_TS}')
            self.e(f's_lshl_b32 s{S_TS+2}, s2, 9\ns_lshl_b32 s{S_TS+3}, s{S_W}, 7\ns_add_u32 s{S_TS+2}, s{S_TS+2}, s{S_TS+3}\ns_add_u32 s{S_TS+2}, s{S_TS+2}, {WS_DBG + 4*i}')
            self.e(f'v_mov_b32 v{v+1}, s{S_TS+2}')
            self.e(f's_mov_b64 s[{S_TS+4}:{S_TS+5}], exec\ns_mov_b64 exec, 1')
            self.vmem(f'buffer_store_dword v{v}, v{v+1}, s[{R_WS}:{R_WS+3}], 0 offen', 'stamp')
            self.e(f's_mov_b64 exec, s[{S_TS+4}:{S_TS+5}]')
            self.V.free(v, 2)

    def prologue(self):
        e = self.e
        e(f's_cmp_ge_u32 s2, 256\ns_cbranch_scc1 L_end')
        e(f's_load_dwordx16 s[4:19], s[0:1], 0\ns_load_dwordx16 s[20:35], s[0:1], 64')
        e(f's_memrealtime s[{S_M0}:{S_M0+1}]')
        e('v_and_b32 v1, 63, v0')
        v = self.V.alloc(1)
        e(f'v_lshrrev_b32 v{v}, 6, v0')
        e(f's_and_b32 s{S_XCD}, s2, 7\ns_lshr_b32 s{S_J}, s2, 3')
        e(f'v_readfirstlane_b32 s{S_W}, v{v}')
        self.V.free(v)
        e('s_waitcnt lgkmcnt(0)')
        self.srd(R_X, S_X, 2048 * 448 * 2)
        self.srd(R_WS, S_WS, WS_SIZE)
        self.srd(R_DBG, S_DBG, 256)
        self.srd(R_WG, S_WG, 448 * 1792 * 2)
        self.srd(R_WU, S_WU, 448 * 1792 * 2)
        self.srd(R_WD, S_WD, 448 * 1792 * 2)
        self.srd(R_OUT, S_OUT, 2048 * 448 * 2)
        e(f's_or_b32 s{S_NONCE}, s{S_M0}, 1\ns_mov_b32 s{S_TS+6}, s{S_M0}')
        lab = self.lab('non')
        e(f's_or_b32 s{S_T0}, s2, s{S_W}\ns_cmp_lg_u32 s{S_T0}, 0\ns_cbranch_scc1 {lab}')
        v = self.V.alloc(2)
        e(f'v_mov_b32 v{v}, s{S_NONCE}\nv_mov_b32 v{v+1}, 0')
        e(f's_mov_b64 s[{S_M1}:{S_M1+1}], exec\ns_mov_b64 exec, 1')
        e(f'buffer_store_dword v{v}, v{v+1}, s[{R_DBG}:{R_DBG+3}], 0 offen sc1')
        e(f's_mov_b64 exec, s[{S_M1}:{S_M1+1}]')
        self.V.free(v, 2)
        self.label(lab)
        self.stamp(0)
        self.vm.drain()

    def get_nonce(self):
        e = self.e
        v = self.V.alloc(2)
        l0 = self.lab('gn'); l1 = self.lab('gnd')
        e(f'v_mov_b32 v{v+1}, 0\ns_mov_b32 s{S_CNT}, 0')
        self.label(l0)
        e(f'buffer_load_dword v{v}, v{v+1}, s[{R_DBG}:{R_DBG+3}], 0 offen sc1')
        e('s_waitcnt vmcnt(0)'); self.vm.drain()
        e(f'v_readfirstlane_b32 s{S_NONCE}, v{v}')
        e(f's_cmp_lg_u32 s{S_NONCE}, 0\ns_cbranch_scc1 {l1}')
        e(f's_add_u32 s{S_CNT}, s{S_CNT}, 1\ns_cmp_lt_u32 s{S_CNT}, {SPIN_MAX}\ns_cbranch_scc1 {l0}')
        self.label(l1)
        self.V.free(v, 2)

    def helper(self):
        e = self.e; V = self.V
        self.c('================= helper: LN1 stats')
        e(f's_sub_u32 s{S_HID}, s{S_J}, 28\ns_lshl_b32 s{S_T0}, s{S_XCD}, 2\ns_add_u32 s{S_HID}, s{S_HID}, s{S_T0}')
        xa = V.alloc(56, 4); va = V.alloc(1); t0 = V.alloc(1); t1 = V.alloc(1)
        e(f's_lshl_b32 s{S_T0}, s{S_HID}, 6\ns_lshl_b32 s{S_T1}, s{S_W}, 4\ns_add_u32 s{S_T0}, s{S_T0}, s{S_T1}')
        e(f'v_and_b32 v{t0}, 15, v1\nv_add_u32 v{t0}, s{S_T0}, v{t0}')
        e(f'v_mul_u32_u24 v{va}, 896, v{t0}\nv_lshrrev_b32 v{t1}, 4, v1\nv_lshl_add_u32 v{va}, v{t1}, 4, v{va}')
        for s in range(14):
            self.vmem(f'buffer_load_dwordx4 {vr(xa+4*s,4)}, v{va}, s[{R_X}:{R_X+3}], 0 offen offset:{64*s}', f'x{s}')
        acc = V.alloc(8, 2)
        e(f's_mov_b32 s{S_T2}, 0x3f803f80')
        for i in range(8): e(f'v_mov_b32 v{acc+i}, 0')
        for s in range(14):
            self.wait_vm(f'x{s}')
            for r in range(4):
                e(f'v_dot2_f32_bf16 v{acc+r}, v{xa+4*s+r}, s{S_T2}, v{acc+r}')
                e(f'v_dot2_f32_bf16 v{acc+4+r}, v{xa+4*s+r}, v{xa+4*s+r}, v{acc+4+r}')
        e(f'v_add_f32 v{acc}, v{acc}, v{acc+1}\nv_add_f32 v{acc+2}, v{acc+2}, v{acc+3}\nv_add_f32 v{acc+4}, v{acc+4}, v{acc+5}\nv_add_f32 v{acc+6}, v{acc+6}, v{acc+7}')
        e(f'v_add_f32 v{acc}, v{acc}, v{acc+2}\nv_add_f32 v{acc+4}, v{acc+4}, v{acc+6}')
        S = acc; Q = acc + 4
        for swap in ('v_permlane32_swap_b32', 'v_permlane16_swap_b32'):
            e(f'v_mov_b32 v{acc+1}, v{S}\nv_mov_b32 v{acc+5}, v{Q}')
            e(f'{swap} v{S}, v{acc+1}\n{swap} v{Q}, v{acc+5}')
            e(f'v_add_f32 v{S}, v{S}, v{acc+1}\nv_add_f32 v{Q}, v{Q}, v{acc+5}')
        pk = V.alloc(2, 2)
        self.ln_finalize(S, Q, acc + 1, acc + 2, acc + 3)
        e(f'v_lshrrev_b32 v{pk}, 16, v{acc+1}\nv_or_b32 v{pk}, v{pk}, v{acc+2}')
        self.get_nonce()
        e(f'v_mov_b32 v{pk+1}, s{S_NONCE}')
        e(f'v_lshlrev_b32 v{t0}, 3, v{t0}')
        if WS_STATS: e(f'v_add_u32 v{t0}, {WS_STATS}, v{t0}')
        e(f's_mov_b64 s[{S_M1}:{S_M1+1}], exec\ns_mov_b64 exec, 0xffff')
        self.vmem(f'buffer_store_dwordx2 {vr(pk,2)}, v{t0}, s[{R_WS}:{R_WS+3}], 0 offen sc1', 'st')
        e(f's_mov_b64 exec, s[{S_M1}:{S_M1+1}]')
        self.stamp(1)
        V.free(pk, 2); V.free(acc, 8); V.free(xa, 56)
        self.c('helper: column sums')
        wv = V.alloc(28 * 4, 4); cs = V.alloc(8, 2)
        lg = self.lab('hg'); ld = self.lab('hd')
        e(f'v_lshrrev_b32 v{t0}, 4, v0\nv_and_b32 v{t1}, 15, v0')
        e(f'v_mul_u32_u24 v{va}, 3584, v{t0}\nv_min_u32 v{t1}, 13, v{t1}\nv_lshl_add_u32 v{va}, v{t1}, 4, v{va}')
        e(f's_and_b32 s{S_T0}, s{S_HID}, 15\ns_mul_i32 s{S_T0}, s{S_T0}, 224')
        e(f'v_add_u32 v{va}, s{S_T0}, v{va}')
        e(f's_cmp_ge_u32 s{S_HID}, 16\ns_cbranch_scc1 {lg}')
        save = list(self.vm.q)
        for k in range(28):
            e(f's_mov_b32 s{S_T1}, {k*16*3584}')
            self.vmem(f'buffer_load_dwordx4 {vr(wv+4*k,4)}, v{va}, s[{R_WG}:{R_WG+3}], s{S_T1} offen', f'w{k}')
        e(f's_branch {ld}')
        self.label(lg)
        self.vm.q = list(save)
        for k in range(28):
            e(f's_mov_b32 s{S_T1}, {k*16*3584}')
            self.vmem(f'buffer_load_dwordx4 {vr(wv+4*k,4)}, v{va}, s[{R_WU}:{R_WU+3}], s{S_T1} offen', f'w{k}')
        self.label(ld)
        e(f's_mov_b32 s{S_T2}, 0x00003f80\ns_mov_b32 s{S_T3}, 0x3f800000')
        for i in range(8): e(f'v_mov_b32 v{cs+i}, 0')
        for k in range(28):
            self.wait_vm(f'w{k}')
            for r in range(4):
                e(f'v_dot2_f32_bf16 v{cs+2*r}, v{wv+4*k+r}, s{S_T2}, v{cs+2*r}')
                e(f'v_dot2_f32_bf16 v{cs+2*r+1}, v{wv+4*k+r}, s{S_T3}, v{cs+2*r+1}')
        tmp = V.alloc(8, 2)
        for swap in ('v_permlane32_swap_b32', 'v_permlane16_swap_b32'):
            for i in range(8): e(f'v_mov_b32 v{tmp+i}, v{cs+i}')
            for i in range(8): e(f'{swap} v{cs+i}, v{tmp+i}')
            for i in range(8): e(f'v_add_f32 v{cs+i}, v{cs+i}, v{tmp+i}')
        e(f'v_and_b32 v{t1}, 15, v1\nv_lshlrev_b32 v{t0}, 5, v{t1}\ns_lshl_b32 s{S_T0}, s{S_W}, 9\nv_add_u32 v{t0}, s{S_T0}, v{t0}')
        self.ds(f'ds_write_b128 v{t0}, {vr(cs,4)}'); self.ds(f'ds_write_b128 v{t0}, {vr(cs+4,4)} offset:16')
        self.wait_all_lg(); e('s_barrier')
        e(f'v_lshlrev_b32 v{t0}, 2, v0')
        for w in range(4): self.ds(f'ds_read_b32 v{tmp+w}, v{t0} offset:{512*w}')
        self.wait_all_lg()
        e(f'v_add_f32 v{tmp}, v{tmp}, v{tmp+1}\nv_add_f32 v{tmp+2}, v{tmp+2}, v{tmp+3}\nv_add_f32 v{tmp}, v{tmp}, v{tmp+2}')
        e(f's_mul_i32 s{S_T0}, s{S_HID}, 448\ns_add_u32 s{S_T0}, s{S_T0}, {WS_CS}\nv_add_u32 v{t0}, s{S_T0}, v{t0}')
        e(f'v_cmp_gt_u32 vcc, 112, v0\ns_and_saveexec_b64 s[{S_M1}:{S_M1+1}], vcc')
        lx = self.lab('hcs')
        e(f's_cbranch_execz {lx}')
        e(f'buffer_store_dword v{tmp}, v{t0}, s[{R_WS}:{R_WS+3}], 0 offen sc1')
        self.label(lx)
        e(f's_mov_b64 exec, s[{S_M1}:{S_M1+1}]')
        V.free(tmp, 8); V.free(cs, 8); V.free(wv, 112)
        if self.o.get('touch_wd', True):
            tv = V.alloc(52, 4)
            e(f's_mul_i32 s{S_T0}, s{S_HID}, 50176\nv_lshlrev_b32 v{t0}, 4, v0\nv_add_u32 v{t0}, s{S_T0}, v{t0}')
            for k in range(13):
                e(f's_mov_b32 s{S_T1}, {k*4096}')
                e(f'buffer_load_dwordx4 {vr(tv+4*k,4)}, v{t0}, s[{R_WD}:{R_WD+3}], s{S_T1} offen')
            V.free(tv, 52)
        e('s_waitcnt vmcnt(0)'); self.vm.drain()
        e('s_barrier')
        self.signal(WS_FLAG2, 's2')
        self.stamp(2)
        V.free(va); V.free(t0); V.free(t1)
        e('s_branch L_end')

    def signal(self, base, sidx):
        e = self.e; V = self.V
        lab = self.lab('sig')
        e(f's_cmp_lg_u32 s{S_W}, 0\ns_cbranch_scc1 {lab}')
        v = V.alloc(2, 2)
        e(f's_mul_i32 s{S_T0}, {sidx}, {FLAG_STRIDE}\ns_add_u32 s{S_T0}, s{S_T0}, {base}')
        e(f'v_mov_b32 v{v}, s{S_NONCE}\nv_mov_b32 v{v+1}, s{S_T0}')
        e(f's_mov_b64 s[{S_M1}:{S_M1+1}], exec\ns_mov_b64 exec, 1')
        e(f'buffer_store_dword v{v}, v{v+1}, s[{R_WS}:{R_WS+3}], 0 offen sc1')
        e(f's_mov_b64 exec, s[{S_M1}:{S_M1+1}]')
        V.free(v, 2)
        self.label(lab)

    def rbf(self, d, s, pre=''):
        self.e(f'v_cvt_pk_bf16_f32 v{d}, v{s}, v{s}\nv_lshlrev_b32 v{d}, 16, v{d}')
    def ln_finalize(self, S, Q, dm, ds_, dt):
        e = self.e
        e(f'v_mul_f32 v{S}, {fx(1/448)}, v{S}')
        e(f'v_mul_f32 v{Q}, {fx(1/448)}, v{Q}')
        e(f'v_fma_f32 v{Q}, -v{S}, v{S}, v{Q}')
        e(f'v_max_f32 v{Q}, 0, v{Q}')
        self.rbf(dm, S)
        self.rbf(dt, Q)
        e(f'v_add_f32 v{dt}, {fx(1e-5)}, v{dt}')
        self.rbf(dt, dt)
        e(f'v_sqrt_f32 v{dt}, v{dt}')
        self.rbf(ds_, dt)

    def w1_setup(self):
        e = self.e; V = self.V
        self.vW1 = V.alloc(1); self.vTR = V.alloc(1)
        t = V.alloc(1)
        e(f'v_lshrrev_b32 v{t}, 2, v1\nv_mul_u32_u24 v{self.vW1}, 3584, v{t}\nv_and_b32 v{t}, 3, v1\nv_lshl_add_u32 v{self.vW1}, v{t}, 4, v{self.vW1}')
        e(f's_lshl_b32 s{S_T0}, s{S_FB}, 8\ns_lshl_b32 s{S_T1}, s{S_W}, 6\ns_add_u32 s{S_T0}, s{S_T0}, s{S_T1}\nv_add_u32 v{self.vW1}, s{S_T0}, v{self.vW1}')
        self.tr_addr64(self.vTR, t)
        self.vTS = V.alloc(1)
        e(f's_lshl_b32 s{S_T2}, s{S_W}, 14\ns_add_u32 s{S_T2}, s{S_T2}, {L_STG}\nv_add_u32 v{self.vTS}, s{S_T2}, v{self.vTR}')
        V.free(t)
    def tr_addr64(self, d, t):
        e = self.e
        e(f'v_lshrrev_b32 v{t}, 5, v1\nv_lshlrev_b32 v{d}, 8, v{t}')
        e(f'v_bfe_u32 v{t}, v1, 2, 2\nv_lshl_add_u32 v{d}, v{t}, 6, v{d}')
        e(f'v_bfe_u32 v{t}, v1, 4, 1\nv_lshl_add_u32 v{d}, v{t}, 5, v{d}')
        e(f'v_and_b32 v{t}, 3, v1\nv_lshl_add_u32 v{d}, v{t}, 3, v{d}')
    def w1_issue(self, k0, k1):
        e = self.e
        e(f's_lshl_b32 s{S_T2}, s{S_W}, 14\ns_add_u32 s{S_T2}, s{S_T2}, {L_STG}')
        for k in range(k0, k1):
            sl = (k - k0) * 2048
            e(f's_mov_b32 s{S_T1}, {k*16*3584}')
            e(f's_add_u32 m0, s{S_T2}, {sl}')
            self.vmem(f'buffer_load_dwordx4 v{self.vW1}, s[{R_WG}:{R_WG+3}], s{S_T1} offen lds', f'w1_{k0}')
            e(f's_add_u32 m0, s{S_T2}, {sl+1024}')
            self.vmem(f'buffer_load_dwordx4 v{self.vW1}, s[{R_WU}:{R_WU+3}], s{S_T1} offen lds', f'w1_{k0}')
    def w1_read_k(self, t, k0, k):
        sl = (k - k0) * 2048
        self.ds(f'ds_read_b64_tr_b16 {ar(8*k,2)}, v{t} offset:{sl}', 'w1r')
        self.ds(f'ds_read_b64_tr_b16 {ar(8*k+2,2)}, v{t} offset:{sl+512}', 'w1r')
        self.ds(f'ds_read_b64_tr_b16 {ar(8*k+4,2)}, v{t} offset:{sl+1024}', 'w1r')
        self.ds(f'ds_read_b64_tr_b16 {ar(8*k+6,2)}, v{t} offset:{sl+1536}', 'w1r')
    def w1_fetch(self, k0, k1):
        e = self.e; V = self.V
        self.wait_vm(f'w1_{k0}')
        for k in range(k0, k1): self.w1_read_k(self.vTS, k0, k)
        self.wait_all_lg()

    def phaseA(self):
        e = self.e; V = self.V; o = self.o
        self.c('================= phase A')
        e(f's_mul_i32 s{S_CP}, s{S_XCD}, 28\ns_add_u32 s{S_CP}, s{S_CP}, s{S_J}')
        self.map_bc()
        par = V.alloc(6); xg = V.alloc(8); t0 = V.alloc(1); t1 = V.alloc(1)
        e(f's_lshl_b32 s{S_T0}, s{S_CP}, 2')
        e(f's_load_dword s{S_LD}, s[{S_LDT}:{S_LDT+1}], s{S_T0}\ns_load_dword s{S_DK}, s[{S_DSK}:{S_DSK+1}], s{S_T0}')
        e(f's_lshl_b32 s{S_T1}, s{S_CP}, 10\nv_lshl_add_u32 v{t0}, v0, 2, s{S_T1}')
        for i, sp in enumerate((S_ARE, S_AIM, S_BRE, S_BIM, S_CRE, S_CIM)):
            self.vmem(f'global_load_dword v{par+i}, v{t0}, s[{sp}:{sp+1}]', 'par')
        xa0 = V.alloc(1); xa1 = V.alloc(1)
        e(f'v_mul_u32_u24 v{xa0}, 7168, v0\nv_add_u32 v{xa0}, s{S_T0}, v{xa0}\nv_add_u32 v{xa1}, 4480, v{xa0}')
        def xgather(k):
            if k < 5: self.vmem(f'buffer_load_dword v{xg+k}, v{xa0}, s[{R_X}:{R_X+3}], 0 offen offset:{896*k}', 'xg')
            else: self.vmem(f'buffer_load_dword v{xg+k}, v{xa1}, s[{R_X}:{R_X+3}], 0 offen offset:{896*(k-5)}', 'xg')
        pre = o.get('w1pre', True)
        if pre:
            self.w1_setup()
            self.w1_issue(0, 8)
        self.stamp(1)
        ga = V.alloc(12, 2)
        self.ga = ga
        e(f'v_lshlrev_b32 v{t0}, 3, v0\nv_sub_u32 v{t0}, 2048, v{t0}')
        for k in range(1, 12):
            e(f'v_subrev_u32 v{ga+k-1}, {k}, v{t0}')
        e(f'v_mov_b32 v{ga+11}, 0')
        tt = V.alloc(2, 2)
        for k in range(0, 12, 2):
            a, b = ga + k, ga + k + 1
            e(f'v_max_i32 v{tt}, 0, v{a}\nv_max_i32 v{tt+1}, 0, v{b}')
            e(f'v_cvt_f32_u32 v{tt}, v{tt}\nv_cvt_f32_u32 v{tt+1}, v{tt+1}')
            e(f'v_cvt_pk_bf16_f32 v{t1}, v{tt}, v{tt+1}')
            e(f'v_lshlrev_b32 v{tt}, 16, v{t1}\nv_and_b32 v{tt+1}, 0xffff0000, v{t1}')
            e(f'v_cvt_u32_f32 v{tt}, v{tt}\nv_cvt_u32_f32 v{tt+1}, v{tt+1}')
            for x, r in ((tt, a), (tt + 1, b)):
                e(f'v_lshrrev_b32 v{t1}, 3, v{x}\nv_add_u32 v{x}, v{x}, v{t1}')
                if k >= 8:
                    e(f'v_cmp_gt_i32 vcc, 0, v{r}\nv_mov_b32 v{t1}, 2320\nv_cndmask_b32 v{x}, v{x}, v{t1}, vcc')
                e(f'v_lshlrev_b32 v{x}, 2, v{x}\nv_add_u32 v{r}, {L_K32}, v{x}')
        V.free(tt, 2)
        e('s_waitcnt lgkmcnt(0)'); self.lg.drain()
        e(f's_lshr_b32 s{S_T0}, s{S_W}, 1\ns_lshl_b32 s{S_T0}, s{S_T0}, 4')
        e(f's_lshr_b32 s{S_LD}, s{S_LD}, s{S_T0}\ns_lshl_b32 s{S_LD}, s{S_LD}, 16')
        e(f's_lshr_b32 s{S_DK}, s{S_DK}, s{S_T0}\ns_lshl_b32 s{S_DK}, s{S_DK}, 16')
        dt = V.alloc(2, 2); tt = V.alloc(2, 2)
        L_hi = struct.unpack('<f', struct.pack('<f', LOG2E))[0]; L_lo = LOG2E - L_hi
        e(f'v_mov_b32 v{dt}, s{S_LD}\nv_mul_f32 v{tt}, {fx(L_hi)}, v{dt}')
        e(f's_mov_b32 s{S_T1}, {fx(L_hi)}')
        e(f'v_fma_f32 v{tt+1}, v{dt}, s{S_T1}, -v{tt}\nv_fmac_f32 v{tt+1}, {fx(L_lo)}, v{dt}')
        e(f'v_exp_f32 v{tt}, v{tt}\nv_mul_f32 v{tt+1}, {fx(math.log(2))}, v{tt+1}')
        e(f'v_fma_f32 v{dt}, v{tt}, v{tt+1}, v{tt}')
        self.rbf(dt, dt)
        V.free(tt, 2)
        self.wait_vm('par')
        self.stamp(2)
        sc = V.alloc(12, 2)
        e(f'v_lshlrev_b32 v{sc}, 16, v{par}\nv_and_b32 v{sc+1}, 0xffff0000, v{par}')
        e(f'v_lshlrev_b32 v{sc+2}, 16, v{par+1}\nv_and_b32 v{sc+3}, 0xffff0000, v{par+1}')
        e(f'v_lshlrev_b32 v{sc+4}, 16, v{par+2}\nv_and_b32 v{sc+6}, 0xffff0000, v{par+2}')
        e(f'v_lshlrev_b32 v{sc+5}, 16, v{par+3}\nv_and_b32 v{sc+7}, 0xffff0000, v{par+3}')
        e(f'v_lshlrev_b32 v{sc+8}, 16, v{par+4}\nv_and_b32 v{sc+10}, 0xffff0000, v{par+4}')
        e(f'v_lshlrev_b32 v{sc+9}, 16, v{par+5}\nv_and_b32 v{sc+11}, 0xffff0000, v{par+5}')
        V.free(par, 6)
        for i in range(8):
            e(f'v_mul_f32 v{sc+i}, v{dt}, v{sc+i}')
        e(f'v_mul_f32 v{sc}, {fx(LOG2E)}, v{sc}\nv_mul_f32 v{sc+1}, {fx(LOG2E)}, v{sc+1}')
        e(f'v_mul_f32 v{sc+2}, {fx(1/(2*math.pi))}, v{sc+2}\nv_mul_f32 v{sc+3}, {fx(1/(2*math.pi))}, v{sc+3}')
        V.free(dt, 2)
        Q = lambda: V.alloc(4, 4)
        tq = Q()
        def direct(dst, ex):
            for m in range(2):
                if ex == 1:
                    e(f'v_exp_f32 v{tq+m}, v{sc+m}\nv_fract_f32 v{tq+2+m}, v{sc+2+m}')
                else:
                    e(f'v_mul_f32 v{tq+m}, {fx(float(ex))}, v{sc+m}\nv_mul_f32 v{tq+2+m}, {fx(float(ex))}, v{sc+2+m}')
            if ex != 1:
                for m in range(2): e(f'v_exp_f32 v{tq+m}, v{tq+m}\nv_fract_f32 v{tq+2+m}, v{tq+2+m}')
            for m in range(2):
                e(f'v_cos_f32 v{dst+2*m}, v{tq+2+m}\nv_sin_f32 v{dst+2*m+1}, v{tq+2+m}')
            for m in range(2):
                e(f'v_mul_f32 v{dst+2*m}, v{tq+m}, v{dst+2*m}\nv_mul_f32 v{dst+2*m+1}, v{tq+m}, v{dst+2*m+1}')
        def qmul(d, a, b):
            self.cmul_multi([(d, a, b, None), (d + 2, a + 2, b + 2, None)])
        wa = V.alloc(1)
        e(f'v_and_b32 v{wa}, 127, v0\nv_lshlrev_b32 v{wa}, 4, v{wa}\ns_lshr_b32 s{S_T0}, s{S_W}, 1\ns_mul_i32 s{S_T0}, s{S_T0}, {TBL_C}\nv_add_u32 v{wa}, s{S_T0}, v{wa}')
        def put(q, ent): self.ds(f'ds_write_b128 v{wa}, {vr(q,4)} offset:{ent*TBL_E}')
        one = Q()
        e(f'v_mov_b32 v{one}, 1.0\nv_mov_b32 v{one+1}, 0\nv_mov_b32 v{one+2}, 1.0\nv_mov_b32 v{one+3}, 0')
        put(one, 0); put(one, 4); put(one, 12)
        V.free(one, 4)
        z1 = Q(); z2 = Q(); z3 = Q(); z4 = Q()
        direct(z1, 1); put(z1, 1)
        qmul(z2, z1, z1); put(z2, 2)
        qmul(z3, z2, z1); put(z3, 3)
        qmul(z4, z2, z2); put(z4, 5)
        qmul(z1, z4, z4); put(z1, 6)
        qmul(z2, z1, z4); put(z2, 7)
        qmul(z3, z1, z1); put(z3, 16)
        CB = Q()
        qmul(CB, sc + 8, sc + 4); put(CB, 8)
        direct(z1, 32)
        qmul(z4, CB, z1); put(z4, 9)
        qmul(z2, z1, z1)
        qmul(z4, CB, z2); put(z4, 10)
        qmul(z3, z2, z1)
        qmul(z4, CB, z3); put(z4, 11)
        qmul(z1, z2, z2); put(z1, 13)
        qmul(z2, z1, z1); put(z2, 14)
        qmul(z3, z2, z1); put(z3, 15)
        direct(z1, 512); put(z1, 17)
        qmul(z2, z1, z1)
        qmul(z3, z2, z2)
        c48 = V.alloc(2, 2)
        e(f'v_mul_f32 v{c48}, v{CB}, v{z3}\nv_fma_f32 v{c48}, -v{CB+1}, v{z3+1}, v{c48}')
        e(f'v_fmac_f32 v{c48}, v{CB+2}, v{z3+2}\nv_fma_f32 v{c48}, -v{CB+3}, v{z3+3}, v{c48}')
        for q in (z1, z2, z3, z4, CB, tq): V.free(q, 4)
        V.free(sc, 12); V.free(wa)
        for mod in ('quad_perm:[1,0,3,2]', 'quad_perm:[2,3,0,1]', 'row_half_mirror', 'row_mirror'):
            e(f'v_add_f32_dpp v{c48}, v{c48}, v{c48} {mod} row_mask:0xf bank_mask:0xf')
        for swap in ('v_permlane16_swap_b32', 'v_permlane32_swap_b32'):
            e(f'v_mov_b32 v{c48+1}, v{c48}\n{swap} v{c48}, v{c48+1}\nv_add_f32 v{c48}, v{c48}, v{c48+1}')
        self.wait_all_lg(); e('s_barrier')
        self.stamp(3)
        def hook(st):
            xgather(st)
            if pre:
                if st == 0: self.wait_vm('w1_0')
                self.w1_read_k(self.vTS, 0, st)
        self.kgen_main(c48, hook)
        V.free(c48, 2); V.free(xa0); V.free(xa1)
        self.wait_all_lg(); e('s_barrier')
        self.stamp(4)
        self.get_nonce()
        sg = V.alloc(16, 4); sa = V.alloc(1)
        e(f'v_lshlrev_b32 v{sa}, 6, v0')
        if WS_STATS: e(f'v_add_u32 v{sa}, {WS_STATS}, v{sa}')
        for i in range(4): self.vmem(f'buffer_load_dwordx4 {vr(sg+4*i,4)}, v{sa}, s[{R_WS}:{R_WS+3}], 0 offen offset:{16*i} sc1', 'sg')
        if pre: self.w1_issue(8, 16)
        self.expand()
        self.stamp(5)
        self.normalize(xg, sg, sa)
        V.free(sg, 16); V.free(sa); V.free(xg, 8)
        if pre:
            self.wait_vm('w1_8')
            for k in range(8, 16): self.w1_read_k(self.vTS, 8, k)
        self.wait_all_lg(); e('s_barrier')
        self.stamp(6)
        if pre: self.w1_issue(16, 24)
        self.conv()
        V.free(t0); V.free(t1)
        self.stamp(8)
        if pre:
            self.w1_fetch(16, 24); self.w1_issue(24, 28)
        self.wait_vm('ht'); e('s_barrier')
        self.signal(WS_FLAG2, 's2')
        self.stamp(9)
        if pre: self.w1_fetch(24, 28)

    def map_bc(self):
        e = self.e
        if self.o.get('mapB', 'rows') == 'rows':
            e(f's_cmp_ge_u32 s{S_J}, 14\ns_cselect_b32 s{S_T0}, 1, 0\ns_lshl_b32 s{S_RB}, s{S_XCD}, 1\ns_add_u32 s{S_RB}, s{S_RB}, s{S_T0}')
            e(f's_mul_i32 s{S_T0}, s{S_T0}, 14\ns_sub_u32 s{S_FB}, s{S_J}, s{S_T0}')
        else:
            e(f's_mul_i32 s{S_T0}, s{S_J}, 37\ns_lshr_b32 s{S_T0}, s{S_T0}, 8')
            e(f's_lshr_b32 s{S_RB}, s{S_XCD}, 1\ns_lshl_b32 s{S_RB}, s{S_RB}, 2\ns_add_u32 s{S_RB}, s{S_RB}, s{S_T0}')
            e(f's_mul_i32 s{S_T0}, s{S_T0}, 7\ns_sub_u32 s{S_FB}, s{S_J}, s{S_T0}\ns_and_b32 s{S_T0}, s{S_XCD}, 1\ns_mul_i32 s{S_T0}, s{S_T0}, 7\ns_add_u32 s{S_FB}, s{S_FB}, s{S_T0}')
        e(f's_mul_i32 s{S_T0}, s{S_J}, 37\ns_lshr_b32 s{S_T0}, s{S_T0}, 8')
        e(f's_lshl_b32 s{S_RB2}, s{S_XCD}, 2\ns_add_u32 s{S_RB2}, s{S_RB2}, s{S_T0}\ns_mul_i32 s{S_T0}, s{S_T0}, 7\ns_sub_u32 s{S_DB}, s{S_J}, s{S_T0}')

    def kgen_main(self, c48, hook):
        e = self.e; V = self.V
        self.c('---- kgen main')
        aLo = V.alloc(1); aHi = V.alloc(1); aC = V.alloc(1); t = V.alloc(1)
        e(f's_lshr_b32 s{S_T0}, s{S_W}, 1\ns_mul_i32 s{S_T0}, s{S_T0}, {TBL_C}\ns_and_b32 s{S_T1}, s{S_W}, 1\ns_lshl_b32 s{S_T1}, s{S_T1}, 10\ns_add_u32 s{S_T0}, s{S_T0}, s{S_T1}')
        e(f'v_lshrrev_b32 v{t}, 4, v1\nv_lshlrev_b32 v{aC}, 5, v{t}\nv_add_u32 v{aC}, s{S_T0}, v{aC}')
        e(f'v_and_b32 v{t}, 3, v1\nv_mul_u32_u24 v{t}, {TBL_E}, v{t}\nv_add_u32 v{aLo}, v{aC}, v{t}')
        e(f'v_bfe_u32 v{t}, v1, 2, 2\nv_mul_u32_u24 v{t}, {TBL_E}, v{t}\nv_add_u32 v{aHi}, v{aC}, v{t}')
        T1 = V.alloc(8, 4); T2 = V.alloc(8, 4); T3 = V.alloc(8, 4); T4 = V.alloc(8, 4); Z16 = V.alloc(8, 4); Z512 = V.alloc(8, 4)
        Va = V.alloc(8, 2); W = V.alloc(8, 2); tmp = V.alloc(8, 2)
        PV = [V.alloc(4, 4) for _ in range(2)]; PW = [V.alloc(4, 4) for _ in range(4)]
        D = [[V.alloc(4, 4) for s in range(2)] for t_ in range(4)]
        def rd(dst, addr, ent, st, tag):
            for h in range(2):
                self.ds(f'ds_read_b128 {vr(dst+4*h,4)}, v{addr} offset:{ent*TBL_E + st*128 + 16*h}', tag)
        rd(T1, aLo, 0, 0, 't12'); rd(T2, aHi, 4, 0, 't12'); rd(Z16, aC, 16, 0, 'z16'); rd(T3, aLo, 8, 0, 't34'); rd(T4, aHi, 12, 0, 't34'); rd(Z512, aC, 17, 0, 'z512')
        for st in range(8):
            nx = st + 1 < 8
            hook(st)
            self.wait_lg('t12')
            self.cmul_multi([(Va + 2*c, T1 + 2*c, T2 + 2*c, None) for c in range(4)])
            if nx: rd(T1, aLo, 0, st + 1, 't12'); rd(T2, aHi, 4, st + 1, 't12')
            for c in range(4): e(f'v_cvt_pk_bf16_f32 v{PV[0]+c}, v{Va+2*c}, v{Va+2*c+1}')
            self.wait_lg('z16')
            self.cmul_multi([(Va + 2*c, Va + 2*c, Z16 + 2*c, tmp + 2*c) for c in range(4)])
            if nx: rd(Z16, aC, 16, st + 1, 'z16')
            for c in range(4): e(f'v_cvt_pk_bf16_f32 v{PV[1]+c}, v{Va+2*c}, v{Va+2*c+1}')
            self.wait_lg('t34')
            self.cmul_multi([(W + 2*c, T3 + 2*c, T4 + 2*c, None) for c in range(4)])
            if nx: rd(T3, aLo, 8, st + 1, 't34'); rd(T4, aHi, 12, st + 1, 't34')
            for tt in range(4):
                for c in range(4): e(f'v_cvt_pk_bf16_f32 v{PW[tt]+c}, v{W+2*c}, -v{W+2*c+1}')
                if tt < 3:
                    if tt == 0: self.wait_lg('z512')
                    self.cmul_multi([(W + 2*c, W + 2*c, Z512 + 2*c, tmp + 2*c) for c in range(4)])
                    if tt == 2 and nx: rd(Z512, aC, 17, st + 1, 'z512')
                for s in range(2):
                    cin = '0' if st == 0 else vr(D[tt][s], 4)
                    e(f'v_mfma_f32_16x16x32_bf16 {vr(D[tt][s],4)}, {vr(PW[tt],4)}, {vr(PV[s],4)}, {cin}')
        self.stamp(13)
        e(f's_lshl_b32 s{S_T0}, s{S_W}, 12\ns_add_u32 s{S_T0}, s{S_T0}, {L_EX}\nv_lshl_add_u32 v{aHi}, v1, 4, s{S_T0}')
        keep = V.alloc(16, 4)
        lh = self.lab('k1'); ld = self.lab('kd')
        e(f's_and_b32 s{S_T1}, s{S_W}, 1\ns_cmp_lg_u32 s{S_T1}, 0\ns_cbranch_scc1 {lh}')
        for half, lab_ in ((0, None), (1, lh)):
            if lab_: self.label(lab_); e('s_nop 7')
            snd = [(t_, s) for t_ in (2 - 2*half, 3 - 2*half) for s in range(2)]
            kp = [(t_, s) for t_ in (2*half, 2*half + 1) for s in range(2)]
            for i, (t_, s) in enumerate(snd): e(f'ds_write_b128 v{aHi}, {vr(D[t_][s],4)} offset:{1024*i}')
            for i, (t_, s) in enumerate(kp):
                for r in range(4): e(f'v_mov_b32 v{keep+4*i+r}, v{D[t_][s]+r}')
            if half == 0: e(f's_branch {ld}')
        self.label(ld)
        e(f's_lshl_b32 s{S_T0}, s{S_W}, 2\ns_add_u32 s{S_T0}, s{S_T0}, {L_EX + 16384}\nv_mov_b32 v{aC}, s{S_T0}')
        e(f's_mov_b64 s[{S_M1}:{S_M1+1}], exec\ns_mov_b64 exec, 1')
        e(f'ds_write_b32 v{aC}, v{c48}')
        e(f's_mov_b64 exec, s[{S_M1}:{S_M1+1}]')
        e('s_waitcnt lgkmcnt(0)'); self.lg.drain()
        e('s_barrier')
        e(f's_xor_b32 s{S_T0}, s{S_W}, 1\ns_lshl_b32 s{S_T2}, s{S_T0}, 12\ns_add_u32 s{S_T2}, s{S_T2}, {L_EX}\nv_lshl_add_u32 v{aHi}, v1, 4, s{S_T2}')
        for i in range(4): self.ds(f'ds_read_b128 {vr(T1 if i == 0 else T2 if i == 1 else T3 if i == 2 else T4,4)}, v{aHi} offset:{1024*i}', 'ex')
        e(f's_lshl_b32 s{S_T0}, s{S_T0}, 2\ns_add_u32 s{S_T0}, s{S_T0}, {L_EX + 16384}\nv_mov_b32 v{aC}, s{S_T0}')
        self.ds(f'ds_read_b32 v{Va}, v{aC}', 'ex')
        e(f'v_and_b32 v{aLo}, 15, v1\nv_lshrrev_b32 v{t}, 3, v{aLo}\nv_add_u32 v{aLo}, v{aLo}, v{t}')
        e(f'v_lshrrev_b32 v{t}, 4, v1\nv_mul_u32_u24 v{t}, 144, v{t}\nv_add_u32 v{aLo}, v{aLo}, v{t}\nv_lshlrev_b32 v{aLo}, 2, v{aLo}')
        e(f's_lshr_b32 s{S_T0}, s{S_W}, 1\ns_mul_i32 s{S_T0}, s{S_T0}, {K32_C}\ns_add_u32 s{S_T0}, s{S_T0}, {L_K32}')
        e(f's_mul_i32 s{S_T1}, s{S_T1}, {4*576*2}\ns_add_u32 s{S_T1}, s{S_T1}, s{S_T0}\nv_add_u32 v{aLo}, s{S_T1}, v{aLo}')
        self.wait_lg('ex')
        for i, q in enumerate((T1, T2, T3, T4)):
            e(f'v_pk_add_f32 {vr(keep+4*i,2)}, {vr(keep+4*i,2)}, {vr(q,2)}\nv_pk_add_f32 {vr(keep+4*i+2,2)}, {vr(keep+4*i+2,2)}, {vr(q+2,2)}')
        e(f'v_add_f32 v{c48}, v{c48}, v{Va}\nv_mov_b32 v{c48+1}, 0\nv_mov_b32 v{aHi}, s{S_T0}')
        for i in range(4):
            t_, s = i >> 1, i & 1
            for r in range(4):
                self.ds(f'ds_write_b32 v{aLo}, v{keep+4*i+r} offset:{4*(576*t_ + 36*r + 18*s)}')
        e(f's_mov_b64 s[{S_M1}:{S_M1+1}], exec\ns_mov_b64 exec, 1')
        self.ds(f'ds_write_b32 v{aHi}, v{c48} offset:9216')
        self.ds(f'ds_write_b32 v{aHi}, v{c48+1} offset:9280')
        e(f's_mov_b64 exec, s[{S_M1}:{S_M1+1}]')
        V.free(keep, 16)
        for x in (T1, T2, T3, T4, Z16, Z512, Va, W, tmp): V.free(x, 8)
        for x in PV + PW: V.free(x, 4)
        for row in D:
            for x in row: V.free(x, 4)
        for x in (aLo, aHi, aC, t): V.free(x)

    def expand(self):
        e = self.e; V = self.V; ga = self.ga
        self.c('---- expand K into 4 shifted bf16 copies')
        g = V.alloc(22, 2); P = V.alloc(16, 4); wa = V.alloc(1); z = V.alloc(4, 4)
        e(f'v_lshlrev_b32 v{wa}, 4, v0')
        for c in range(2):
            for k in range(11): self.ds(f'ds_read_b32 v{g+11*c+k}, v{ga+k} offset:{c*K32_C}', f'g{c}')
        for i in range(4): e(f'v_mov_b32 v{z+i}, 0')
        t = V.alloc(1); t2 = V.alloc(1)
        e(f'v_lshrrev_b32 v{t}, 2, v0\nv_mul_u32_u24 v{t}, {KC_S}, v{t}\nv_and_b32 v{t2}, 3, v0\nv_lshl_add_u32 v{t}, v{t2}, 4, v{t}')
        e(f'v_cmp_gt_u32 vcc, 32, v0\ns_and_saveexec_b64 s[{S_M1}:{S_M1+1}], vcc')
        la = self.lab('zc'); e(f's_cbranch_execz {la}')
        e(f'ds_write_b128 v{t}, {vr(z,4)} offset:{L_KC + 4096}')
        self.label(la); e(f's_mov_b64 exec, s[{S_M1}:{S_M1+1}]')
        e(f'v_lshrrev_b32 v{t}, 6, v0\nv_mul_u32_u24 v{t}, {U_C}, v{t}\nv_lshl_add_u32 v{t}, v1, 4, v{t}')
        e(f'v_cmp_gt_u32 vcc, 128, v0\ns_and_saveexec_b64 s[{S_M1}:{S_M1+1}], vcc')
        la = self.lab('zu'); e(f's_cbranch_execz {la}')
        e(f'ds_write_b128 v{t}, {vr(z,4)} offset:{L_U}')
        self.label(la); e(f's_mov_b64 exec, s[{S_M1}:{S_M1+1}]')
        V.free(t); V.free(t2); V.free(z, 4)
        self.wait_all_lg()
        for c in range(2):
            v = lambda k: g + 11 * c + (k - 1)
            for sc_ in range(4):
                s = 4 - sc_
                for dd in range(4):
                    e(f'v_cvt_pk_bf16_f32 v{P+4*sc_+dd}, v{v(s+2*dd)}, v{v(s+2*dd+1)}')
            for sc_ in range(4):
                self.ds(f'ds_write_b128 v{wa}, {vr(P+4*sc_,4)} offset:{L_KC + c*KC_C + sc_*KC_S}')
        if self.o.get('dumpK'):
            d = V.alloc(1)
            self.wait_all_lg(); e('s_barrier')
            e(f's_lshl_b32 s{S_T0}, s{S_CP}, 13\ns_add_u32 s{S_T0}, s{S_T0}, {WS_DBG + 0x100000}')
            for c in range(2):
                self.ds(f'ds_read_b128 {vr(P,4)}, v{wa} offset:{L_KC + c*KC_C}'); self.wait_all_lg()
                e(f'v_add_u32 v{d}, s{S_T0}, v{wa}')
                self.vmem(f'buffer_store_dwordx4 {vr(P,4)}, v{d}, s[{R_WS}:{R_WS+3}], 0 offen offset:{0}' if c == 0 else
                          f'buffer_store_dwordx4 {vr(P,4)}, v{d}, s[{R_WS}:{R_WS+3}], s{S_T1} offen', 'dbg') if c == 0 else None
                if c == 1:
                    e(f's_mov_b32 s{S_T1}, 4096')
                    self.vmem(f'buffer_store_dwordx4 {vr(P,4)}, v{d}, s[{R_WS}:{R_WS+3}], s{S_T1} offen', 'dbg')
                self.wait_all_vm()
            V.free(d)
        V.free(g, 22); V.free(P, 16); V.free(wa); V.free(ga, 12)

    def normalize(self, xg, sg, sa):
        e = self.e; V = self.V
        self.c('---- LN1 normalize own columns')
        xa = V.alloc(16, 2)
        XP = V.alloc(8, 4)
        self.wait_vm('xg')
        for k in range(8):
            e(f'v_lshlrev_b32 v{xa+k}, 16, v{xg+k}\nv_and_b32 v{xa+8+k}, 0xffff0000, v{xg+k}')
        e(f's_mov_b32 s{S_T0}, 0x05040100\ns_mov_b32 s{S_T1}, 0x07060302')
        for d in range(4):
            e(f'v_perm_b32 v{XP+d}, v{xg+2*d+1}, v{xg+2*d}, s{S_T0}\nv_perm_b32 v{XP+4+d}, v{xg+2*d+1}, v{xg+2*d}, s{S_T1}')
        wa = V.alloc(1); t = V.alloc(1)
        e(f'v_bfe_u32 v{t}, v0, 4, 1\nv_lshlrev_b32 v{t}, 1, v{t}\nv_xor_b32 v{wa}, v0, v{t}\nv_lshlrev_b32 v{wa}, 4, v{wa}')
        for c in range(2): self.ds(f'ds_write_b128 v{wa}, {vr(XP+4*c,4)} offset:{L_X + c*X_C}')
        l0 = self.lab('sp'); l1 = self.lab('spd')
        self.wait_vm('sg')
        e(f's_mov_b32 s{S_CNT}, 0')
        self.label(l0)
        e(f'v_cmp_ne_u32 vcc, s{S_NONCE}, v{sg+1}')
        for k in range(1, 8):
            e(f'v_cmp_ne_u32 s[{S_M2}:{S_M2+1}], s{S_NONCE}, v{sg+2*k+1}\ns_or_b64 vcc, vcc, s[{S_M2}:{S_M2+1}]')
        e(f's_cbranch_vccz {l1}')
        for i in range(4): e(f'buffer_load_dwordx4 {vr(sg+4*i,4)}, v{sa}, s[{R_WS}:{R_WS+3}], 0 offen offset:{16*i} sc1')
        e('s_waitcnt vmcnt(0)')
        e(f's_add_u32 s{S_CNT}, s{S_CNT}, 1\ns_cmp_lt_u32 s{S_CNT}, {SPIN_MAX}\ns_cbranch_scc1 {l0}')
        self.label(l1)
        self.stamp(7)
        ms = V.alloc(16, 2)
        for k in range(8):
            e(f'v_lshlrev_b32 v{ms+k}, 16, v{sg+2*k}\nv_and_b32 v{ms+8+k}, 0xffff0000, v{sg+2*k}')
        for k in range(8): e(f'v_rcp_f32 v{ms+8+k}, v{ms+8+k}')
        UP = XP
        for c in range(2):
            for d in range(4):
                x = xa + 8*c + 2*d
                e(f'v_pk_add_f32 {vr(x,2)}, {vr(x,2)}, {vr(ms+2*d,2)} neg_lo:[0,1] neg_hi:[0,1]')
            for d in range(4):
                x = xa + 8*c + 2*d
                e(f'v_cvt_pk_bf16_f32 v{x+1}, v{x}, v{x+1}')
            for d in range(4):
                x = xa + 8*c + 2*d
                e(f'v_lshlrev_b32 v{x}, 16, v{x+1}\nv_and_b32 v{x+1}, 0xffff0000, v{x+1}')
            for d in range(4):
                x = xa + 8*c + 2*d
                e(f'v_pk_mul_f32 {vr(x,2)}, {vr(x,2)}, {vr(ms+8+2*d,2)}')
            for d in range(4):
                x = xa + 8*c + 2*d
                e(f'v_cvt_pk_bf16_f32 v{UP+4*c+d}, v{x}, v{x+1}')
            self.ds(f'ds_write_b128 v{wa}, {vr(UP+4*c,4)} offset:{L_U + c*U_C + 1024}')
        V.free(ms, 16); V.free(xa, 16); V.free(XP, 8); V.free(wa); V.free(t)

    def conv(self):
        e = self.e; V = self.V
        self.c('---- Toeplitz convolution')
        vF = V.alloc(1); vG = V.alloc(8); t = V.alloc(1); t2 = V.alloc(1)
        e(f's_lshr_b32 s{S_T0}, s{S_W}, 1\ns_mul_i32 s{S_T0}, s{S_T0}, {KC_C}\ns_and_b32 s{S_T1}, s{S_W}, 1\ns_lshl_b32 s{S_T2}, s{S_T1}, 9\ns_sub_u32 s{S_T0}, s{S_T0}, s{S_T2}\ns_add_u32 s{S_T0}, s{S_T0}, {L_KC + 24 + 512}')
        e(f'v_and_b32 v{t}, 3, v1\nv_mul_u32_u24 v{vF}, {KC_S}, v{t}')
        e(f'v_bfe_u32 v{t}, v1, 2, 2\nv_lshlrev_b32 v{t}, 3, v{t}\nv_sub_u32 v{vF}, v{vF}, v{t}')
        e(f'v_lshrrev_b32 v{t}, 4, v1\nv_lshl_add_u32 v{vF}, v{t}, 4, v{vF}\nv_add_u32 v{vF}, s{S_T0}, v{vF}')
        e(f's_lshr_b32 s{S_T0}, s{S_W}, 1\ns_mul_i32 s{S_T0}, s{S_T0}, {U_C}\ns_add_u32 s{S_T0}, s{S_T0}, {L_U}')
        e(f's_lshl_b32 s{S_T1}, s{S_T1}, 3')
        for pp in range(8):
            e(f'v_and_b32 v{t}, 15, v1\nv_add_u32 v{t}, {16 - pp}, v{t}\nv_subrev_u32 v{t}, s{S_T1}, v{t}')
            e(f'v_bfe_u32 v{t2}, v{t}, 2, 1\nv_lshlrev_b32 v{t2}, 1, v{t2}\nv_lshrrev_b32 v{vG+pp}, 4, v1\nv_xor_b32 v{t2}, v{t2}, v{vG+pp}')
            e(f'v_lshlrev_b32 v{t}, 6, v{t}\nv_lshl_add_u32 v{t}, v{t2}, 4, v{t}\nv_add_u32 v{vG+pp}, s{S_T0}, v{t}')
        G = [V.alloc(16, 4) for _ in range(2)]
        F = V.alloc(32, 4)
        acc = V.alloc(32, 4)
        A = lambda b, m: acc + 8 * b + 4 * m
        def rdG(pp):
            for s in range(4): self.ds(f'ds_read_b128 {vr(G[pp&1]+4*s,4)}, v{vG+pp} offset:{1024*s}', f'G{pp}')
        def rdF(pp, q):
            for m in range(2):
                off = 32 * (111 - 32*q - 2*pp - m)
                self.ds(f'ds_read_b64 {vr(F+8*q+4*m,2)}, v{vF} offset:{off}', f'F{pp}_{q}')
                self.ds(f'ds_read_b64 {vr(F+8*q+4*m+2,2)}, v{vF} offset:{off+8}', f'F{pp}_{q}')
        rdG(0)
        for q in range(4): rdF(0, q)
        for pp in range(8):
            self.wait_lg(f'G{pp}')
            for q in range(4):
                self.wait_lg(f'F{pp}_{q}')
                if q == 0 and pp + 1 < 8: rdG(pp + 1)
                for m in range(2):
                    for s in range(4 - q):
                        b = q + s
                        cin = '0' if (pp == 0 and q == 0) else vr(A(b, m), 4)
                        e(f'v_mfma_f32_16x16x32_bf16 {vr(A(b,m),4)}, {vr(F+8*q+4*m,4)}, {vr(G[pp&1]+4*s,4)}, {cin}')
                if pp + 1 < 8: rdF(pp + 1, q)
        for x in G: V.free(x, 16)
        V.free(F, 32); V.free(vG, 8)
        self.stamp(10)
        ra = V.alloc(1)
        e(f's_lshl_b32 s{S_T0}, s{S_W}, 12\ns_add_u32 s{S_T0}, s{S_T0}, {L_RED}\nv_lshl_add_u32 v{ra}, v1, 4, s{S_T0}')
        keep = V.alloc(16, 4)
        lh = self.lab('h1'); ld = self.lab('hd')
        e(f's_and_b32 s{S_T1}, s{S_W}, 1\ns_cmp_lg_u32 s{S_T1}, 0\ns_cbranch_scc1 {lh}')
        for i in range(4): e(f'ds_write_b128 v{ra}, {vr(acc+16+4*i,4)} offset:{1024*i}')
        for i in range(16): e(f'v_mov_b32 v{keep+i}, v{acc+i}')
        e(f's_branch {ld}')
        self.label(lh)
        e('s_nop 7')
        for i in range(4): e(f'ds_write_b128 v{ra}, {vr(acc+4*i,4)} offset:{1024*i}')
        for i in range(16): e(f'v_mov_b32 v{keep+i}, v{acc+16+i}')
        self.label(ld)
        e('s_waitcnt lgkmcnt(0)'); self.lg.drain()
        e('s_barrier')
        e(f's_xor_b32 s{S_T0}, s{S_W}, 1\ns_lshl_b32 s{S_T0}, s{S_T0}, 12\ns_add_u32 s{S_T0}, s{S_T0}, {L_RED}\nv_lshl_add_u32 v{ra}, v1, 4, s{S_T0}')
        for i in range(4): self.ds(f'ds_read_b128 {vr(acc+4*i,4)}, v{ra} offset:{1024*i}', 'red')
        ua = V.alloc(1)
        e(f'v_bfe_u32 v{t}, v1, 2, 1\nv_lshlrev_b32 v{t}, 1, v{t}\nv_lshrrev_b32 v{t2}, 4, v1\nv_xor_b32 v{t}, v{t}, v{t2}')
        e(f'v_and_b32 v{t2}, 15, v1\nv_lshlrev_b32 v{t2}, 6, v{t2}\nv_lshl_add_u32 v{ua}, v{t}, 4, v{t2}')
        e(f's_and_b32 s{S_T1}, s{S_W}, 1\ns_lshl_b32 s{S_T1}, s{S_T1}, 11')
        e(f's_lshr_b32 s{S_T0}, s{S_W}, 1\ns_mul_i32 s{S_T2}, s{S_T0}, {U_C}\ns_add_u32 s{S_T2}, s{S_T2}, s{S_T1}')
        xa_ = V.alloc(1)
        e(f's_mul_i32 s{S_T3}, s{S_T0}, {X_C}\ns_add_u32 s{S_T3}, s{S_T3}, s{S_T1}')
        e(f'v_add_u32 v{xa_}, s{S_T3}, v{ua}\nv_add_u32 v{ua}, s{S_T2}, v{ua}')
        UU = V.alloc(8, 4); XX = V.alloc(8, 4)
        for bb in range(2):
            self.ds(f'ds_read_b128 {vr(UU+4*bb,4)}, v{ua} offset:{L_U + 1024 + 1024*bb}', 'ux')
            self.ds(f'ds_read_b128 {vr(XX+4*bb,4)}, v{xa_} offset:{L_X + 1024*bb}', 'ux')
        self.wait_lg('red')
        for i in range(0, 16, 2):
            e(f'v_pk_add_f32 {vr(keep+i,2)}, {vr(keep+i,2)}, {vr(acc+i,2)}')
        sa = V.alloc(1)
        e(f'v_and_b32 v{t}, 15, v1\nv_lshlrev_b32 v{t}, 6, v{t}\nv_lshrrev_b32 v{t2}, 4, v1\nv_lshl_add_u32 v{sa}, v{t2}, 4, v{t}')
        e(f's_lshl_b32 s{S_T2}, s{S_CP}, 1\ns_add_u32 s{S_T2}, s{S_T2}, s{S_T0}\ns_mul_i32 s{S_T2}, s{S_T2}, {HT_STRIDE}\ns_add_u32 s{S_T2}, s{S_T2}, s{S_T1}\ns_add_u32 s{S_T2}, s{S_T2}, {WS_HT}')
        e(f'v_add_u32 v{sa}, s{S_T2}, v{sa}')
        self.wait_lg('ux')
        Y = V.alloc(4, 4); w8 = V.alloc(16, 2); dk = V.alloc(2, 2)
        e(f'v_mov_b32 v{dk}, s{S_DK}')
        for bb in range(2):
            k0 = keep + 8 * bb
            e(f'v_cvt_pk_bf16_f32 v{Y}, v{k0}, v{k0+1}\nv_cvt_pk_bf16_f32 v{Y+1}, v{k0+2}, v{k0+3}')
            e(f'v_cvt_pk_bf16_f32 v{Y+2}, v{k0+4}, v{k0+5}\nv_cvt_pk_bf16_f32 v{Y+3}, v{k0+6}, v{k0+7}')
            e(f'v_permlane32_swap_b32 v{Y}, v{Y+2}\nv_permlane32_swap_b32 v{Y+1}, v{Y+3}')
            e(f'v_permlane16_swap_b32 v{Y}, v{Y+2}\nv_permlane16_swap_b32 v{Y+1}, v{Y+3}')
            a = w8; b = w8 + 8
            for d in range(4):
                e(f'v_lshlrev_b32 v{a+2*d}, 16, v{UU+4*bb+d}\nv_and_b32 v{a+2*d+1}, 0xffff0000, v{UU+4*bb+d}')
            for d in range(4): e(f'v_pk_mul_f32 {vr(a+2*d,2)}, {vr(a+2*d,2)}, {vr(dk,2)} op_sel_hi:[1,0]')
            for d in range(4): e(f'v_cvt_pk_bf16_f32 v{UU+4*bb+d}, v{a+2*d}, v{a+2*d+1}')
            for d in range(4):
                e(f'v_lshlrev_b32 v{a+2*d}, 16, v{UU+4*bb+d}\nv_and_b32 v{a+2*d+1}, 0xffff0000, v{UU+4*bb+d}')
                e(f'v_lshlrev_b32 v{b+2*d}, 16, v{Y+d}\nv_and_b32 v{b+2*d+1}, 0xffff0000, v{Y+d}')
            for d in range(4): e(f'v_pk_add_f32 {vr(a+2*d,2)}, {vr(a+2*d,2)}, {vr(b+2*d,2)}')
            for d in range(4): e(f'v_cvt_pk_bf16_f32 v{Y+d}, v{a+2*d}, v{a+2*d+1}')
            for d in range(4):
                e(f'v_lshlrev_b32 v{a+2*d}, 16, v{Y+d}\nv_and_b32 v{a+2*d+1}, 0xffff0000, v{Y+d}')
                e(f'v_lshlrev_b32 v{b+2*d}, 16, v{XX+4*bb+d}\nv_and_b32 v{b+2*d+1}, 0xffff0000, v{XX+4*bb+d}')
            for d in range(4): e(f'v_pk_add_f32 {vr(a+2*d,2)}, {vr(a+2*d,2)}, {vr(b+2*d,2)}')
            for d in range(4): e(f'v_cvt_pk_bf16_f32 v{XX+4*bb+d}, v{a+2*d}, v{a+2*d+1}')
            self.vmem(f'buffer_store_dwordx4 {vr(XX+4*bb,4)}, v{sa}, s[{R_WS}:{R_WS+3}], 0 offen offset:{1024*bb} sc1', 'ht')
        V.free(Y, 4); V.free(w8, 16); V.free(dk, 2); V.free(UU, 8); V.free(XX, 8); V.free(sa); V.free(ua); V.free(xa_); V.free(ra)
        V.free(keep, 16); V.free(acc, 32); V.free(vF); V.free(t); V.free(t2)

    def interleave(self, main, fill, per_gap):
        n = len(main); fi = 0
        for i, m in enumerate(main):
            m()
            tgt = (len(fill) * (i + 1) + n - 1) // n if per_gap is None else min(len(fill), fi + per_gap)
            while fi < tgt:
                fill[fi](); fi += 1
        while fi < len(fill):
            fill[fi](); fi += 1

    def poll_flags(self, base, nflags_expr_lanes, nloads, sbase=None):
        e = self.e; V = self.V
        skip = self.lab('pf'); l0 = self.lab('pl'); l1 = self.lab('pd')
        e(f's_cmp_lg_u32 s{S_W}, 0\ns_cbranch_scc1 {skip}')
        a = V.alloc(1); d = V.alloc(4, 2)
        e(f'v_mul_u32_u24 v{a}, {FLAG_STRIDE}, v1\nv_add_u32 v{a}, {base}, v{a}')
        if sbase is not None: e(f'v_add_u32 v{a}, s{sbase}, v{a}')
        e(f's_mov_b64 s[{S_M1}:{S_M1+1}], exec')
        if nflags_expr_lanes < 64: e(f's_mov_b64 exec, {hex((1 << nflags_expr_lanes) - 1)}')
        e(f's_mov_b32 s{S_CNT}, 0')
        self.label(l0)
        for k in range(nloads):
            e(f'buffer_load_dword v{d+k}, v{a}, s[{R_WS}:{R_WS+3}], 0 offen offset:{64*FLAG_STRIDE*k} sc1')
        e('s_waitcnt vmcnt(0)')
        e(f'v_cmp_ne_u32 vcc, s{S_NONCE}, v{d}')
        for k in range(1, nloads):
            e(f'v_cmp_ne_u32 s[{S_M2}:{S_M2+1}], s{S_NONCE}, v{d+k}\ns_or_b64 vcc, vcc, s[{S_M2}:{S_M2+1}]')
        e(f's_cbranch_vccz {l1}')
        e(f's_add_u32 s{S_CNT}, s{S_CNT}, 1\ns_cmp_lt_u32 s{S_CNT}, {SPIN_MAX}\ns_cbranch_scc1 {l0}')
        self.label(l1)
        e(f's_mov_b64 exec, s[{S_M1}:{S_M1+1}]')
        V.free(a); V.free(d, 4)
        self.label(skip)
        e('s_barrier')

    def phaseB(self):
        e = self.e; V = self.V; o = self.o
        self.c('================= phase B')
        L_H = 0; HG = 28672; L_STP = 4 * HG
        vD = V.alloc(1); vB = V.alloc(1); vS = V.alloc(1); t = V.alloc(1)
        e(f'v_lshrrev_b32 v{t}, 2, v1\nv_mul_u32_u24 v{vD}, {HT_STRIDE}, v{t}\nv_and_b32 v{t}, 3, v1\nv_lshl_add_u32 v{vD}, v{t}, 4, v{vD}')
        e(f's_lshl_b32 s{S_T0}, s{S_RB}, 8\ns_add_u32 s{S_T0}, s{S_T0}, {WS_HT}\nv_add_u32 v{vD}, s{S_T0}, v{vD}')
        e(f'v_mov_b32 v{vB}, v{self.vTR}')
        e(f's_lshl_b32 s{S_T0}, s{S_W}, 10\nv_add_u32 v{vS}, s{S_T0}, v{vB}')
        self.poll_flags(WS_FLAG2, 64, 4)
        self.vm.drain(); self.lg.drain()
        self.stamp(16)
        def hdma(g, i):
            def f():
                e(f's_lshl_b32 s{S_T1}, s{S_W}, 10\ns_add_u32 m0, s{S_T1}, {L_H + g*HG + i*4096}')
                e(f's_mul_i32 s{S_T1}, s{S_W}, {16*HT_STRIDE}\ns_add_u32 s{S_T1}, s{S_T1}, {i*4*16*HT_STRIDE + 64*g}')
                self.vmem(f'buffer_load_dwordx4 v{vD}, s[{R_WS}:{R_WS+3}], s{S_T1} offen sc1 lds', f'h{g}')
            return f
        for i in range(7): hdma(0, i)()
        cs = V.alloc(32, 4)
        e(f'v_lshrrev_b32 v{t}, 5, v1\nv_lshlrev_b32 v{t}, 4, v{t}\ns_lshl_b32 s{S_T0}, s{S_FB}, 9\ns_lshl_b32 s{S_T1}, s{S_W}, 7\ns_add_u32 s{S_T0}, s{S_T0}, s{S_T1}\ns_add_u32 s{S_T0}, s{S_T0}, {WS_CS}\nv_add_u32 v{t}, s{S_T0}, v{t}')
        e(f's_mov_b32 s{S_T2}, {1792*4}')
        for rho in range(4): self.vmem(f'buffer_load_dwordx4 {vr(cs+4*rho,4)}, v{t}, s[{R_WS}:{R_WS+3}], 0 offen offset:{32*rho} sc1', 'cs')
        for rho in range(4): self.vmem(f'buffer_load_dwordx4 {vr(cs+16+4*rho,4)}, v{t}, s[{R_WS}:{R_WS+3}], s{S_T2} offen offset:{32*rho} sc1', 'cs')
        for g in range(1, 4):
            for i in range(7): hdma(g, i)()
        vA = V.alloc(1)
        e(f's_mul_i32 s{S_T0}, s{S_RB}, {4*112}\ns_lshl_b32 s{S_T1}, s{S_FB}, 3\ns_add_u32 s{S_T0}, s{S_T0}, s{S_T1}\ns_lshl_b32 s{S_T1}, s{S_W}, 1\ns_add_u32 s{S_T0}, s{S_T0}, s{S_T1}')
        e(f's_lshl_b32 s{S_T0}, s{S_T0}, 10\ns_add_u32 s{S_T0}, s{S_T0}, {WS_ACT}\nv_lshl_add_u32 v{vA}, v1, 4, s{S_T0}')
        vH = V.alloc(1); vHs = V.alloc(1)
        e(f's_lshl_b32 s{S_T0}, s{S_FB}, 11\nv_add_u32 v{vH}, s{S_T0}, v{vB}')
        e(f's_mul_i32 s{S_T0}, s{S_RB}, {4*28}\ns_lshl_b32 s{S_T1}, s{S_FB}, 1\ns_add_u32 s{S_T0}, s{S_T0}, s{S_T1}\ns_lshl_b32 s{S_T0}, s{S_T0}, 10\ns_add_u32 s{S_T0}, s{S_T0}, {WS_HD}\nv_lshl_add_u32 v{vHs}, v1, 4, s{S_T0}')
        NB = 6
        B = V.alloc(4 * NB, 4); SB = V.alloc(8, 4)
        acc = [V.alloc(32, 4), V.alloc(32, 4)]
        sacc = V.alloc(8, 2)
        st = V.alloc(8, 2)
        par = V.alloc(6, 2)
        tmp = V.alloc(16, 2); pk = V.alloc(8, 4)
        vP = V.alloc(1); vPw = V.alloc(1)
        e(f'v_and_b32 v{vP}, 31, v1\nv_lshlrev_b32 v{vP}, 3, v{vP}\nv_add_u32 v{vP}, {L_STP}, v{vP}')
        e(f's_lshl_b32 s{S_T0}, s{S_W}, 8\nv_add_u32 v{vPw}, s{S_T0}, v{vP}')
        e(f's_mov_b32 s{S_T3}, 0x3f803f80')
        def rdB(g, k):
            s = k % NB
            self.ds(f'ds_read_b64_tr_b16 {vr(B+4*s,2)}, v{vB} offset:{g*HG + k*1024}' if g*HG + k*1024 + 512 < 65536 else
                    f'ds_read_b64_tr_b16 {vr(B+4*s,2)}, v{self.vB2} offset:{g*HG + k*1024 - 57344}', f'B{g}_{k}')
            self.ds(f'ds_read_b64_tr_b16 {vr(B+4*s+2,2)}, v{vB} offset:{g*HG + k*1024 + 512}' if g*HG + k*1024 + 512 < 65536 else
                    f'ds_read_b64_tr_b16 {vr(B+4*s+2,2)}, v{self.vB2} offset:{g*HG + k*1024 + 512 - 57344}', f'B{g}_{k}')
        self.vB2 = V.alloc(1); vS2 = V.alloc(1); vH2 = V.alloc(1)
        e(f'v_add_u32 v{self.vB2}, 57344, v{vB}\nv_add_u32 v{vS2}, 57344, v{vS}\nv_add_u32 v{vH2}, 57344, v{vH}')
        def addr(base, base2, off): return (base, off) if off + 512 < 65536 else (base2, off - 57344)
        def epilogue_ops(g):
            A_ = acc[g & 1]; ops = []
            par_ = par
            def rd():
                for w_ in range(4): self.ds(f'ds_read_b64 {vr(st+2*w_,2)}, v{vP} offset:{(g&1)*1024 + 256*w_}', f'st{g}')
            ops.append(rd)
            def fin0():
                self.wait_lg(f'st{g}')
                e(f'v_pk_add_f32 {vr(st,2)}, {vr(st,2)}, {vr(st+2,2)}')
            ops.append(fin0)
            ops.append(lambda: e(f'v_pk_add_f32 {vr(st+4,2)}, {vr(st+4,2)}, {vr(st+6,2)}'))
            ops.append(lambda: e(f'v_pk_add_f32 {vr(st,2)}, {vr(st,2)}, {vr(st+4,2)}'))
            save = self.lines; self.lines = []
            self.ln_finalize(st, st + 1, st + 2, st + 3, st + 4)
            e(f'v_sub_f32 v{par_}, 0, v{st+2}')
            e(f'v_rcp_f32 v{st+4}, v{st+3}')
            e(f'v_mul_f32 v{par_+4}, v{st+3}, v{st+3}')
            e(f'v_mul_f32 v{par_+2}, {fx(-LOG2E)}, v{st+4}')
            fl = self.lines; self.lines = save
            for l in fl: ops.append(lambda l=l: e(l))
            ops.append(lambda: self.wait_vm('cs'))
            for p in range(8):
                r = 2 * p; T = tmp + 8 * (p & 1)
                tg, tu, ar_, dd = T, T + 2, T + 4, T + 6
                ops.append(lambda r=r, tg=tg: e(f'v_pk_fma_f32 {vr(tg,2)}, {vr(cs+r,2)}, {vr(par_,2)}, {vr(A_+r,2)} op_sel_hi:[1,0,1]'))
                ops.append(lambda r=r, tu=tu: e(f'v_pk_fma_f32 {vr(tu,2)}, {vr(cs+16+r,2)}, {vr(par_,2)}, {vr(A_+16+r,2)} op_sel_hi:[1,0,1]'))
                ops.append(lambda tg=tg, ar_=ar_: e(f'v_pk_mul_f32 {vr(ar_,2)}, {vr(tg,2)}, {vr(par_+2,2)} op_sel_hi:[1,0]'))
                ops.append(lambda tg=tg, tu=tu: e(f'v_pk_mul_f32 {vr(tg,2)}, {vr(tg,2)}, {vr(tu,2)}'))
                ops.append(lambda ar_=ar_: e(f'v_exp_f32 v{ar_}, v{ar_}'))
                ops.append(lambda ar_=ar_: e(f'v_exp_f32 v{ar_+1}, v{ar_+1}'))
                ops.append(lambda ar_=ar_, dd=dd: e(f'v_pk_fma_f32 {vr(dd,2)}, {vr(ar_,2)}, {vr(par_+4,2)}, {vr(par_+4,2)} op_sel_hi:[1,0,0]'))
                ops.append(lambda dd=dd: e(f'v_rcp_f32 v{dd}, v{dd}'))
                ops.append(lambda dd=dd: e(f'v_rcp_f32 v{dd+1}, v{dd+1}'))
                ops.append(lambda tg=tg, dd=dd: e(f'v_pk_mul_f32 {vr(tg,2)}, {vr(tg,2)}, {vr(dd,2)}'))
                ops.append(lambda tg=tg, p=p: e(f'v_cvt_pk_bf16_f32 v{pk+p}, v{tg}, v{tg+1}'))
                if p in (3, 7):
                    kk = p >> 2
                    ops.append(lambda kk=kk: self.vmem(f'buffer_store_dwordx4 {vr(pk+4*kk,4)}, v{vA}, s[{R_WS}:{R_WS+3}], s{S_T4} offen offset:{1024*kk} sc1', 'act'))
            return ops
        for g in range(4):
            self.c(f'---- pass {g}')
            self.wait_vm(f'h{g}')
            self.wait_all_lg()
            e('s_barrier')
            if g == 0: self.stamp(17)
            lab = self.lab('hd')
            e(f's_cmp_lg_u32 s{S_W}, {g}\ns_cbranch_scc1 {lab}')
            for kk in range(2):
                for h_ in range(2):
                    b_, off = addr(vH, vH2, g*HG + kk*1024 + 512*h_)
                    e(f'ds_read_b64_tr_b16 {vr(tmp+4*kk+2*h_,2)}, v{b_} offset:{off}')
            e(f's_mov_b32 s{S_T0}, {g*28*1024}')
            e('s_waitcnt lgkmcnt(0)')
            for kk in range(2): e(f'buffer_store_dwordx4 {vr(tmp+4*kk,4)}, v{vHs}, s[{R_WS}:{R_WS+3}], s{S_T0} offen offset:{1024*kk} sc1')
            e('s_nop 1')
            self.label(lab)
            for k in range(4): rdB(g, k)
            A_ = acc[g & 1]
            main = []
            for k in range(28):
                def mg(k=k):
                    self.wait_lg(f'B{g}_{k}')
                    cin = '0' if k == 0 else vr(A_, 16)
                    e(f'v_mfma_f32_32x32x16_bf16 {vr(A_,16)}, {ar(8*k,4)}, {vr(B+4*(k%NB),4)}, {cin}')
                def mu(k=k):
                    cin = '0' if k == 0 else vr(A_ + 16, 16)
                    e(f'v_mfma_f32_32x32x16_bf16 {vr(A_+16,16)}, {ar(8*k+4,4)}, {vr(B+4*(k%NB),4)}, {cin}')
                    if k + 4 < 28: rdB(g, k + 4)
                main += [mg, mu]
            fill = []
            if g > 0:
                fill.append(lambda g=g: e(f's_mov_b32 s{S_T4}, {(g-1)*112*1024}'))
                fill += epilogue_ops(g - 1)
            sf = []
            def z():
                for i in range(8): e(f'v_mov_b32 v{sacc+i}, 0')
            sf.append(z)
            for i in range(7):
                sb = SB + 4 * (i & 1)
                def rs(i=i, sb=sb):
                    for h_ in range(2):
                        b_, off = addr(vS, vS2, g*HG + i*4096 + 512*h_)
                        self.ds(f'ds_read_b64_tr_b16 {vr(sb+2*h_,2)}, v{b_} offset:{off}', f'S{g}_{i}')
                def dots(i=i, sb=sb, r=0):
                    if r == 0: self.wait_lg(f'S{g}_{i}')
                    e(f'v_dot2_f32_bf16 v{sacc+r}, v{sb+r}, s{S_T3}, v{sacc+r}')
                    e(f'v_dot2_f32_bf16 v{sacc+4+r}, v{sb+r}, v{sb+r}, v{sacc+4+r}')
                if i == 0: sf.append(rs)
                nxt = None
                if i + 1 < 7:
                    sb2 = SB + 4 * ((i + 1) & 1)
                    def rs2(i=i + 1, sb=sb2):
                        for h_ in range(2):
                            b_, off = addr(vS, vS2, g*HG + i*4096 + 512*h_)
                            self.ds(f'ds_read_b64_tr_b16 {vr(sb+2*h_,2)}, v{b_} offset:{off}', f'S{g}_{i}')
                    sf.append(rs2)
                for r in range(4): sf.append(lambda i=i, sb=sb, r=r: dots(i, sb, r))
            def red():
                e(f'v_add_f32 v{sacc}, v{sacc}, v{sacc+1}\nv_add_f32 v{sacc+2}, v{sacc+2}, v{sacc+3}\nv_add_f32 v{sacc+4}, v{sacc+4}, v{sacc+5}\nv_add_f32 v{sacc+6}, v{sacc+6}, v{sacc+7}')
                e(f'v_add_f32 v{sacc}, v{sacc}, v{sacc+2}\nv_add_f32 v{sacc+1}, v{sacc+4}, v{sacc+6}')
                e(f'v_mov_b32 v{sacc+2}, v{sacc}\nv_mov_b32 v{sacc+3}, v{sacc+1}')
                e(f'v_permlane32_swap_b32 v{sacc}, v{sacc+2}\nv_permlane32_swap_b32 v{sacc+1}, v{sacc+3}')
                e(f'v_pk_add_f32 {vr(sacc,2)}, {vr(sacc,2)}, {vr(sacc+2,2)}')
                self.ds(f'ds_write_b64 v{vPw}, {vr(sacc,2)} offset:{(g&1)*1024}', 'stw')
            sf.append(red)
            merged = []; a_, b_ = list(fill), list(sf)
            while a_ or b_:
                for _ in range(3):
                    if a_: merged.append(a_.pop(0))
                if b_: merged.append(b_.pop(0))
            self.interleave(main[:52], merged, None)
            for m in main[52:]: m()
        self.stamp(18)
        self.wait_all_lg(); e('s_barrier')
        e(f's_mov_b32 s{S_T4}, {3*112*1024}')
        for f in epilogue_ops(3): f()
        self.stamp(19)
        for x, n in ((vD,1),(vB,1),(vS,1),(t,1),(cs,32),(vA,1),(vH,1),(vHs,1),(B,4*NB),(SB,8),(acc[0],32),(acc[1],32),(sacc,8),(st,8),(par,6),(tmp,16),(pk,8),(vP,1),(vPw,1),(self.vB2,1),(vS2,1),(vH2,1)):
            V.free(x, n)
        self.wait_all_vm(); e('s_barrier')
        e(f's_lshl_b32 s{S_T1}, s{S_RB}, 4\ns_add_u32 s{S_T1}, s{S_T1}, s{S_FB}')
        self.signal(WS_FLAG3, f's{S_T1}')
        self.stamp(20)

    def phaseC(self):
        e = self.e; V = self.V; o = self.o
        self.c('================= phase C')
        STG = 40960
        vD = V.alloc(1); t = V.alloc(1); t2 = V.alloc(1); vT = V.alloc(2)
        e(f'v_lshrrev_b32 v{t}, 3, v1\nv_mul_u32_u24 v{vD}, 896, v{t}\nv_bfe_u32 v{t}, v1, 4, 1\nv_lshlrev_b32 v{t}, 2, v{t}\nv_and_b32 v{t2}, 7, v1\nv_xor_b32 v{t}, v{t}, v{t2}\nv_lshl_add_u32 v{vD}, v{t}, 4, v{vD}')
        e(f's_lshl_b32 s{S_T0}, s{S_DB}, 7\ns_mul_i32 s{S_T1}, s{S_W}, {448*896}\ns_add_u32 s{S_T0}, s{S_T0}, s{S_T1}\nv_add_u32 v{vD}, s{S_T0}, v{vD}')
        e(f'v_lshrrev_b32 v{t}, 5, v1\nv_lshlrev_b32 v{vT}, 9, v{t}\nv_bfe_u32 v{t}, v1, 2, 2\nv_lshl_add_u32 v{vT}, v{t}, 7, v{vT}')
        e(f'v_bfe_u32 v{t}, v1, 4, 1\nv_lshl_add_u32 v{vT}, v{t}, 5, v{vT}\nv_and_b32 v{t}, 3, v1\nv_lshl_add_u32 v{vT}, v{t}, 3, v{vT}')
        e(f's_mul_i32 s{S_T2}, s{S_W}, {STG}\nv_add_u32 v{vT}, s{S_T2}, v{vT}')
        e(f'v_bfe_u32 v{t}, v1, 3, 1\nv_lshlrev_b32 v{t}, 6, v{t}')
        e(f'v_xor_b32 v{t2}, 64, v{t}\nv_add_u32 v{vT+1}, v{vT}, v{t2}\nv_add_u32 v{vT}, v{vT}, v{t}')
        def wd_issue(k0, k1):
            for k in range(k0, k1):
                for hh in range(2):
                    e(f's_mov_b32 s{S_T1}, {(16*k + 8*hh)*896}\ns_add_u32 m0, s{S_T2}, {(k-k0)*2048 + hh*1024}')
                    self.vmem(f'buffer_load_dwordx4 v{vD}, s[{R_WD}:{R_WD+3}], s{S_T1} offen lds', f'wd{k0}')
        def wd_fetch(k0, k1):
            self.wait_vm(f'wd{k0}')
            for k in range(k0, k1):
                for mt in range(2):
                    self.ds(f'ds_read_b64_tr_b16 {ar(8*k+4*mt,2)}, v{vT+mt} offset:{(k-k0)*2048}', 'wdr')
                    self.ds(f'ds_read_b64_tr_b16 {ar(8*k+4*mt+2,2)}, v{vT+mt} offset:{(k-k0)*2048 + 1024}', 'wdr')
            self.wait_all_lg()
        wd_issue(0, 20); wd_fetch(0, 20); wd_issue(20, 28); wd_fetch(20, 28)
        self.stamp(21)
        e(f's_lshr_b32 s{S_T0}, s{S_RB2}, 1\ns_mul_i32 s{S_T0}, s{S_T0}, {16*FLAG_STRIDE}')
        self.poll_flags(WS_FLAG3, 14, 1, sbase=S_T0)
        self.vm.drain(); self.lg.drain()
        self.stamp(22)
        vA = V.alloc(1)
        e(f's_mul_i32 s{S_T0}, s{S_RB2}, {2*112}\ns_mul_i32 s{S_T1}, s{S_W}, 28\ns_add_u32 s{S_T0}, s{S_T0}, s{S_T1}\ns_lshl_b32 s{S_T0}, s{S_T0}, 10\ns_add_u32 s{S_T0}, s{S_T0}, {WS_ACT}\nv_lshl_add_u32 v{vA}, v1, 4, s{S_T0}')
        NR = 16
        Bf = V.alloc(8 * NR, 4); acc = V.alloc(64, 4)
        def ld(k):
            for nt in range(2):
                e(f's_mov_b32 s{S_T1}, {(nt*112 + k)*1024}')
                self.vmem(f'buffer_load_dwordx4 {vr(Bf+8*(k%NR)+4*nt,4)}, v{vA}, s[{R_WS}:{R_WS+3}], s{S_T1} offen sc1', f'a{k}')
        for k in range(NR): ld(k)
        hres = V.alloc(8, 4); vR = V.alloc(1)
        e(f's_lshl_b32 s{S_T0}, s{S_RB2}, 1\ns_and_b32 s{S_T1}, s{S_W}, 1\ns_add_u32 s{S_T0}, s{S_T0}, s{S_T1}\ns_mul_i32 s{S_T0}, s{S_T0}, 28')
        e(f's_lshl_b32 s{S_T1}, s{S_DB}, 2\ns_add_u32 s{S_T0}, s{S_T0}, s{S_T1}\ns_and_b32 s{S_T1}, s{S_W}, 2\ns_add_u32 s{S_T0}, s{S_T0}, s{S_T1}\ns_lshl_b32 s{S_T0}, s{S_T0}, 10\ns_add_u32 s{S_T0}, s{S_T0}, {WS_HD}\nv_lshl_add_u32 v{vR}, v1, 4, s{S_T0}')
        A = lambda mt, nt: acc + 16 * (2 * mt + nt)
        for k in range(28):
            self.wait_vm(f'a{k}')
            for mt in range(2):
                for nt in range(2):
                    cin = '0' if k == 0 else vr(A(mt, nt), 16)
                    e(f'v_mfma_f32_32x32x16_bf16 {vr(A(mt,nt),16)}, {ar(8*k+4*mt,4)}, {vr(Bf+8*(k%NR)+4*nt,4)}, {cin}')
            if k + NR < 28: ld(k + NR)
            if k == 12:
                for kk in range(2): self.vmem(f'buffer_load_dwordx4 {vr(hres+4*kk,4)}, v{vR}, s[{R_WS}:{R_WS+3}], 0 offen offset:{1024*kk} sc1', 'hres')
        self.stamp(23)
        V.free(Bf, 8 * NR)
        ra = V.alloc(1); keep = V.alloc(16, 4); rr = V.alloc(48, 4)
        e(f's_lshl_b32 s{S_T0}, s{S_W}, 12\nv_lshl_add_u32 v{ra}, v1, 4, s{S_T0}')
        labs = [self.lab(f'r{w}') for w in range(4)]; ld_ = self.lab('rd')
        for w in range(1, 4): e(f's_cmp_eq_u32 s{S_W}, {w}\ns_cbranch_scc1 {labs[w]}')
        for w in range(4):
            if w: self.label(labs[w]); e('s_nop 7\ns_nop 3')
            for T in range(4):
                if T == w: continue
                for q in range(4): e(f'ds_write_b128 v{ra}, {vr(acc+16*T+4*q,4)} offset:{T*16384 + q*1024}')
            for i in range(16): e(f'v_mov_b32 v{keep+i}, v{acc+16*w+i}')
            if w < 3: e(f's_branch {ld_}')
        self.label(ld_)
        e('s_waitcnt lgkmcnt(0)'); self.lg.drain()
        e('s_barrier')
        e(f's_lshl_b32 s{S_T0}, s{S_W}, 14\nv_lshl_add_u32 v{ra}, v1, 4, s{S_T0}')
        for j in range(1, 4):
            e(f's_add_u32 s{S_T1}, s{S_W}, {j}\ns_and_b32 s{S_T1}, s{S_T1}, 3\ns_lshl_b32 s{S_T1}, s{S_T1}, 12\nv_add_u32 v{t}, s{S_T1}, v{ra}')
            for q in range(4): self.ds(f'ds_read_b128 {vr(rr+16*(j-1)+4*q,4)}, v{t} offset:{q*1024}', f'rr{j}')
        vO = V.alloc(1)
        e(f'v_and_b32 v{t}, 31, v1\nv_mul_u32_u24 v{vO}, 896, v{t}\nv_lshrrev_b32 v{t}, 5, v1\nv_lshl_add_u32 v{vO}, v{t}, 4, v{vO}')
        e(f's_lshl_b32 s{S_T0}, s{S_RB2}, 1\ns_and_b32 s{S_T1}, s{S_W}, 1\ns_add_u32 s{S_T0}, s{S_T0}, s{S_T1}\ns_mul_i32 s{S_T0}, s{S_T0}, {32*896}')
        e(f's_lshl_b32 s{S_T1}, s{S_DB}, 7\ns_add_u32 s{S_T0}, s{S_T0}, s{S_T1}\ns_and_b32 s{S_T1}, s{S_W}, 2\ns_lshl_b32 s{S_T1}, s{S_T1}, 5\ns_add_u32 s{S_T0}, s{S_T0}, s{S_T1}\nv_add_u32 v{vO}, s{S_T0}, v{vO}')
        for j in range(1, 4):
            self.wait_lg(f'rr{j}')
            for i in range(0, 16, 2): e(f'v_pk_add_f32 {vr(keep+i,2)}, {vr(keep+i,2)}, {vr(rr+16*(j-1)+i,2)}')
        self.wait_vm('hres')
        P = V.alloc(8, 4); w8 = rr
        for d in range(8): e(f'v_cvt_pk_bf16_f32 v{P+d}, v{keep+2*d}, v{keep+2*d+1}')
        for d in range(8):
            e(f'v_lshlrev_b32 v{w8+2*d}, 16, v{P+d}\nv_and_b32 v{w8+2*d+1}, 0xffff0000, v{P+d}')
            e(f'v_lshlrev_b32 v{w8+16+2*d}, 16, v{hres+d}\nv_and_b32 v{w8+16+2*d+1}, 0xffff0000, v{hres+d}')
        for d in range(8): e(f'v_pk_add_f32 {vr(w8+2*d,2)}, {vr(w8+2*d,2)}, {vr(w8+16+2*d,2)}')
        for d in range(8): e(f'v_cvt_pk_bf16_f32 v{P+d}, v{w8+2*d}, v{w8+2*d+1}')
        for kk in range(2):
            b = P + 4 * kk
            e(f'v_permlane32_swap_b32 v{b}, v{b+2}\nv_permlane32_swap_b32 v{b+1}, v{b+3}')
        for kk in range(2):
            self.vmem(f'buffer_store_dwordx4 {vr(P+4*kk,4)}, v{vO}, s[{R_OUT}:{R_OUT+3}], 0 offen offset:{32*kk}', 'out')
        self.stamp(24)

    def build(self):
        e = self.e
        self.prologue()
        e(f's_cmp_ge_u32 s{S_J}, 28\ns_cbranch_scc0 L_worker')
        saveV = list(self.V.used)
        self.helper()
        self.V.used = saveV; self.vm.drain(); self.lg.drain()
        self.label('L_worker')
        self.phaseA()
        upto = self.o.get('upto', 'C')
        if upto in ('B', 'C'): self.phaseB()
        if upto == 'C': self.phaseC()
        self.label('L_end')
        e('s_endpgm')

HEADER = open(os.path.join(os.path.dirname(os.path.abspath(__file__)), 'header.txt')).read() if os.path.exists(os.path.join(os.path.dirname(os.path.abspath(__file__)), 'header.txt')) else ''

def generate(opt):
    g = Gen(opt)
    g.build()
    lines, problems = fix_hazards(g.lines, verbose=opt.get('verbose', False))
    for p in problems: print('BACKEDGE HAZARD:', p, file=sys.stderr)
    out = [HEADER.rstrip('\n').replace('@@GRID@@', f'; @launch grid=(256,1,1) block=(256,1,1) lds={LDS_SIZE}')]
    out += ['.amdgcn_target "amdgcn-amd-amdhsa--gfx950"', '.text', f'.globl {NAME}', '.p2align 8', f'.type {NAME},@function', f'{NAME}:']
    for l in lines:
        out.append(l if l.endswith(':') else '    ' + l)
    out += ['.section .rodata,"a"', '.p2align 6', f'.amdhsa_kernel {NAME}',
            '  .amdhsa_next_free_vgpr 512', '  .amdhsa_next_free_sgpr 102', '  .amdhsa_accum_offset 256',
            '  .amdhsa_group_segment_fixed_size 0', '  .amdhsa_kernarg_size 128', '  .amdhsa_user_sgpr_count 2',
            '  .amdhsa_user_sgpr_kernarg_segment_ptr 1', '  .amdhsa_system_sgpr_workgroup_id_x 1',
            '  .amdhsa_float_denorm_mode_32 3', '.end_amdhsa_kernel', '']
    if opt.get('verbose'): print('max arch vgpr', g.V.hi, 'lines', len(lines))
    return '\n'.join(out)

if __name__ == '__main__':
    import json
    opt = json.loads(sys.argv[2]) if len(sys.argv) > 2 else {}
    opt['verbose'] = True
    txt = generate(opt)
    open(sys.argv[1], 'w').write(txt)
```

```python
import sys, os, math, struct
sys.path.insert(0, os.path.dirname(os.path.abspath(__file__)))
from asmlib import *

NAME = 'sequential_preLN__ssm_conv_s4__swiglu_ffn__prompt_kernel'
def f2u(x): return struct.unpack('<I', struct.pack('<f', x))[0]
def fx(x): return hex(f2u(x))
LOG2E = 1.4426950408889634
WS_STATS = 0x0
WS_FLAG2 = 0x4000
WS_FLAG3 = 0xC000
WS_CS    = 0x10000
WS_HT    = 0x20000
HT_STRIDE = 4352
WS_HD    = 0x200000
WS_ACT   = 0x400000
WS_DBG   = 0xC00000
WS_SIZE  = 0x2000000
FLAG_STRIDE = 16
TBL_E = 2112; TBL_C = 18 * TBL_E
L_TBL = 0
L_EX = 2 * TBL_C
L_STG = 92672
K32_C = 9344
L_KC = 0; KC_S = 4160; KC_C = 4 * KC_S
L_U = 2 * KC_C; U_C = 5120
L_X = L_U + 2 * U_C; X_C = 4096
L_RED = L_X + 2 * X_C
L_K32 = L_RED
LDS_SIZE = 163840
S_X, S_ARE, S_AIM, S_BRE, S_BIM, S_CRE, S_CIM, S_LDT, S_DSK, S_BX, S_WG, S_WU, S_WD, S_OUT, S_DBG, S_WS = range(4, 36, 2)
R_X, R_WS, R_DBG, R_WG, R_WU, R_WD, R_OUT = 36, 40, 44, 48, 52, 56, 60
S_W, S_NONCE, S_XCD, S_J, S_CP, S_T0, S_T1, S_T2, S_T3, S_T4, S_T5 = 64, 65, 66, 67, 68, 69, 70, 71, 72, 73, 74
S_LD, S_DK = 75, 76
S_RB, S_FB, S_RB2, S_DB = 77, 78, 79, 80
S_M0, S_M1, S_M2, S_M3 = 82, 84, 86, 88
S_CNT = 90
S_HID = 91
S_TS = 92
SPIN_MAX = 200000

class Gen(Asm):
    def __init__(self, opt):
        super().__init__()
        self.o = opt
        self.V = Regs('v', 256, start=2)
        self.uid = 0
    def lab(self, s):
        self.uid += 1
        return f'L{s}_{self.uid}'
    def srd(self, r, ptr, size):
        self.e(f's_mov_b32 s{r}, s{ptr}\ns_mov_b32 s{r+1}, s{ptr+1}\ns_mov_b32 s{r+2}, {hex(size)}\ns_mov_b32 s{r+3}, 0x20000')
    def cmul(self, d, a, b, t=None):
        t = d if t is None else t
        self.e(f'v_pk_mul_f32 {vr(t,2)}, {vr(a,2)}, {vr(b,2)} op_sel:[0,0] op_sel_hi:[0,1]')
        self.e(f'v_pk_fma_f32 {vr(d,2)}, {vr(a,2)}, {vr(b,2)}, {vr(t,2)} op_sel:[1,1,0] op_sel_hi:[1,0,1] neg_lo:[0,1,0]')
    def cmul_multi(self, items):
        for d, a, b, t in items:
            t = d if t is None else t
            self.e(f'v_pk_mul_f32 {vr(t,2)}, {vr(a,2)}, {vr(b,2)} op_sel:[0,0] op_sel_hi:[0,1]')
        for d, a, b, t in items:
            t = d if t is None else t
            self.e(f'v_pk_fma_f32 {vr(d,2)}, {vr(a,2)}, {vr(b,2)}, {vr(t,2)} op_sel:[1,1,0] op_sel_hi:[1,0,1] neg_lo:[0,1,0]')
    def stamp(self, i):
        dm = self.o.get('dbgmap')
        if dm and i in dm:
            lab = self.lab('ds')
            self.e(f's_cmp_lg_u32 s2, {self.o.get("dbgwg", 8)}\ns_cbranch_scc1 {lab}\ns_cmp_lg_u32 s{S_W}, 0\ns_cbranch_scc1 {lab}')
            self.e(f's_memrealtime s[{S_TS}:{S_TS+1}]\ns_waitcnt lgkmcnt(0)')
            v = self.V.alloc(2)
            self.e(f's_sub_u32 s{S_TS}, s{S_TS}, s{S_TS+6}\nv_mov_b32 v{v}, s{S_TS}\nv_mov_b32 v{v+1}, {4*(1+dm.index(i))}')
            self.e(f's_mov_b64 s[{S_TS+4}:{S_TS+5}], exec\ns_mov_b64 exec, 1')
            self.e(f'buffer_store_dword v{v}, v{v+1}, s[{R_DBG}:{R_DBG+3}], 0 offen')
            self.e(f's_mov_b64 exec, s[{S_TS+4}:{S_TS+5}]')
            self.V.free(v, 2)
            self.label(lab)
            self.e('s_waitcnt lgkmcnt(0)')
            self.lg.drain()
        if self.o.get('stamps'):
            self.e(f's_mem{"time" if self.o.get("cyc") else "realtime"} s[{S_TS}:{S_TS+1}]')
            self.e('s_waitcnt lgkmcnt(0)'); self.lg.drain()
            v = self.V.alloc(2)
            self.e(f'v_mov_b32 v{v}, s{S_TS}')
            self.e(f's_lshl_b32 s{S_TS+2}, s2, 9\ns_lshl_b32 s{S_TS+3}, s{S_W}, 7\ns_add_u32 s{S_TS+2}, s{S_TS+2}, s{S_TS+3}\ns_add_u32 s{S_TS+2}, s{S_TS+2}, {WS_DBG + 4*i}')
            self.e(f'v_mov_b32 v{v+1}, s{S_TS+2}')
            self.e(f's_mov_b64 s[{S_TS+4}:{S_TS+5}], exec\ns_mov_b64 exec, 1')
            self.vmem(f'buffer_store_dword v{v}, v{v+1}, s[{R_WS}:{R_WS+3}], 0 offen', 'stamp')
            self.e(f's_mov_b64 exec, s[{S_TS+4}:{S_TS+5}]')
            self.V.free(v, 2)

    def prologue(self):
        e = self.e
        e(f's_cmp_ge_u32 s2, 256\ns_cbranch_scc1 L_end')
        e(f's_load_dwordx16 s[4:19], s[0:1], 0\ns_load_dwordx16 s[20:35], s[0:1], 64')
        e(f's_memrealtime s[{S_M0}:{S_M0+1}]')
        e('v_and_b32 v1, 63, v0')
        v = self.V.alloc(1)
        e(f'v_lshrrev_b32 v{v}, 6, v0')
        e(f's_and_b32 s{S_XCD}, s2, 7\ns_lshr_b32 s{S_J}, s2, 3')
        e(f'v_readfirstlane_b32 s{S_W}, v{v}')
        self.V.free(v)
        e('s_waitcnt lgkmcnt(0)')
        self.srd(R_X, S_X, 2048 * 448 * 2)
        self.srd(R_WS, S_WS, WS_SIZE)
        self.srd(R_DBG, S_DBG, 256)
        self.srd(R_WG, S_WG, 448 * 1792 * 2)
        self.srd(R_WU, S_WU, 448 * 1792 * 2)
        self.srd(R_WD, S_WD, 448 * 1792 * 2)
        self.srd(R_OUT, S_OUT, 2048 * 448 * 2)
        e(f's_or_b32 s{S_NONCE}, s{S_M0}, 1\ns_mov_b32 s{S_TS+6}, s{S_M0}')
        lab = self.lab('non')
        e(f's_or_b32 s{S_T0}, s2, s{S_W}\ns_cmp_lg_u32 s{S_T0}, 0\ns_cbranch_scc1 {lab}')
        v = self.V.alloc(2)
        e(f'v_mov_b32 v{v}, s{S_NONCE}\nv_mov_b32 v{v+1}, 0')
        e(f's_mov_b64 s[{S_M1}:{S_M1+1}], exec\ns_mov_b64 exec, 1')
        e(f'buffer_store_dword v{v}, v{v+1}, s[{R_DBG}:{R_DBG+3}], 0 offen sc1')
        e(f's_mov_b64 exec, s[{S_M1}:{S_M1+1}]')
        self.V.free(v, 2)
        self.label(lab)
        self.stamp(0)
        self.vm.drain()

    def get_nonce(self):
        e = self.e
        v = self.V.alloc(2)
        l0 = self.lab('gn'); l1 = self.lab('gnd')
        e(f'v_mov_b32 v{v+1}, 0\ns_mov_b32 s{S_CNT}, 0')
        self.label(l0)
        e(f'buffer_load_dword v{v}, v{v+1}, s[{R_DBG}:{R_DBG+3}], 0 offen sc1')
        e('s_waitcnt vmcnt(0)'); self.vm.drain()
        e(f'v_readfirstlane_b32 s{S_NONCE}, v{v}')
        e(f's_cmp_lg_u32 s{S_NONCE}, 0\ns_cbranch_scc1 {l1}')
        e(f's_add_u32 s{S_CNT}, s{S_CNT}, 1\ns_cmp_lt_u32 s{S_CNT}, {SPIN_MAX}\ns_cbranch_scc1 {l0}')
        self.label(l1)
        self.V.free(v, 2)

    def helper(self):
        e = self.e; V = self.V
        self.c('================= helper: LN1 stats')
        e(f's_sub_u32 s{S_HID}, s{S_J}, 28\ns_lshl_b32 s{S_T0}, s{S_XCD}, 2\ns_add_u32 s{S_HID}, s{S_HID}, s{S_T0}')
        xa = V.alloc(56, 4); va = V.alloc(1); t0 = V.alloc(1); t1 = V.alloc(1)
        e(f's_lshl_b32 s{S_T0}, s{S_HID}, 6\ns_lshl_b32 s{S_T1}, s{S_W}, 4\ns_add_u32 s{S_T0}, s{S_T0}, s{S_T1}')
        e(f'v_and_b32 v{t0}, 15, v1\nv_add_u32 v{t0}, s{S_T0}, v{t0}')
        e(f'v_mul_u32_u24 v{va}, 896, v{t0}\nv_lshrrev_b32 v{t1}, 4, v1\nv_lshl_add_u32 v{va}, v{t1}, 4, v{va}')
        for s in range(14):
            self.vmem(f'buffer_load_dwordx4 {vr(xa+4*s,4)}, v{va}, s[{R_X}:{R_X+3}], 0 offen offset:{64*s}', f'x{s}')
        acc = V.alloc(8, 2)
        e(f's_mov_b32 s{S_T2}, 0x3f803f80')
        for i in range(8): e(f'v_mov_b32 v{acc+i}, 0')
        for s in range(14):
            self.wait_vm(f'x{s}')
            for r in range(4):
                e(f'v_dot2_f32_bf16 v{acc+r}, v{xa+4*s+r}, s{S_T2}, v{acc+r}')
                e(f'v_dot2_f32_bf16 v{acc+4+r}, v{xa+4*s+r}, v{xa+4*s+r}, v{acc+4+r}')
        e(f'v_add_f32 v{acc}, v{acc}, v{acc+1}\nv_add_f32 v{acc+2}, v{acc+2}, v{acc+3}\nv_add_f32 v{acc+4}, v{acc+4}, v{acc+5}\nv_add_f32 v{acc+6}, v{acc+6}, v{acc+7}')
        e(f'v_add_f32 v{acc}, v{acc}, v{acc+2}\nv_add_f32 v{acc+4}, v{acc+4}, v{acc+6}')
        S = acc; Q = acc + 4
        for swap in ('v_permlane32_swap_b32', 'v_permlane16_swap_b32'):
            e(f'v_mov_b32 v{acc+1}, v{S}\nv_mov_b32 v{acc+5}, v{Q}')
            e(f'{swap} v{S}, v{acc+1}\n{swap} v{Q}, v{acc+5}')
            e(f'v_add_f32 v{S}, v{S}, v{acc+1}\nv_add_f32 v{Q}, v{Q}, v{acc+5}')
        pk = V.alloc(2, 2)
        self.ln_finalize(S, Q, acc + 1, acc + 2, acc + 3)
        e(f'v_lshrrev_b32 v{pk}, 16, v{acc+1}\nv_or_b32 v{pk}, v{pk}, v{acc+2}')
        self.get_nonce()
        e(f'v_mov_b32 v{pk+1}, s{S_NONCE}')
        e(f'v_lshlrev_b32 v{t0}, 3, v{t0}')
        if WS_STATS: e(f'v_add_u32 v{t0}, {WS_STATS}, v{t0}')
        e(f's_mov_b64 s[{S_M1}:{S_M1+1}], exec\ns_mov_b64 exec, 0xffff')
        self.vmem(f'buffer_store_dwordx2 {vr(pk,2)}, v{t0}, s[{R_WS}:{R_WS+3}], 0 offen sc1', 'st')
        e(f's_mov_b64 exec, s[{S_M1}:{S_M1+1}]')
        self.stamp(1)
        V.free(pk, 2); V.free(acc, 8); V.free(xa, 56)
        self.c('helper: column sums')
        wv = V.alloc(28 * 4, 4); cs = V.alloc(8, 2)
        lg = self.lab('hg'); ld = self.lab('hd')
        e(f'v_lshrrev_b32 v{t0}, 4, v0\nv_and_b32 v{t1}, 15, v0')
        e(f'v_mul_u32_u24 v{va}, 3584, v{t0}\nv_min_u32 v{t1}, 13, v{t1}\nv_lshl_add_u32 v{va}, v{t1}, 4, v{va}')
        e(f's_and_b32 s{S_T0}, s{S_HID}, 15\ns_mul_i32 s{S_T0}, s{S_T0}, 224')
        e(f'v_add_u32 v{va}, s{S_T0}, v{va}')
        e(f's_cmp_ge_u32 s{S_HID}, 16\ns_cbranch_scc1 {lg}')
        save = list(self.vm.q)
        for k in range(28):
            e(f's_mov_b32 s{S_T1}, {k*16*3584}')
            self.vmem(f'buffer_load_dwordx4 {vr(wv+4*k,4)}, v{va}, s[{R_WG}:{R_WG+3}], s{S_T1} offen', f'w{k}')
        e(f's_branch {ld}')
        self.label(lg)
        self.vm.q = list(save)
        for k in range(28):
            e(f's_mov_b32 s{S_T1}, {k*16*3584}')
            self.vmem(f'buffer_load_dwordx4 {vr(wv+4*k,4)}, v{va}, s[{R_WU}:{R_WU+3}], s{S_T1} offen', f'w{k}')
        self.label(ld)
        e(f's_mov_b32 s{S_T2}, 0x00003f80\ns_mov_b32 s{S_T3}, 0x3f800000')
        for i in range(8): e(f'v_mov_b32 v{cs+i}, 0')
        for k in range(28):
            self.wait_vm(f'w{k}')
            for r in range(4):
                e(f'v_dot2_f32_bf16 v{cs+2*r}, v{wv+4*k+r}, s{S_T2}, v{cs+2*r}')
                e(f'v_dot2_f32_bf16 v{cs+2*r+1}, v{wv+4*k+r}, s{S_T3}, v{cs+2*r+1}')
        tmp = V.alloc(8, 2)
        for swap in ('v_permlane32_swap_b32', 'v_permlane16_swap_b32'):
            for i in range(8): e(f'v_mov_b32 v{tmp+i}, v{cs+i}')
            for i in range(8): e(f'{swap} v{cs+i}, v{tmp+i}')
            for i in range(8): e(f'v_add_f32 v{cs+i}, v{cs+i}, v{tmp+i}')
        e(f'v_and_b32 v{t1}, 15, v1\nv_lshlrev_b32 v{t0}, 5, v{t1}\ns_lshl_b32 s{S_T0}, s{S_W}, 9\nv_add_u32 v{t0}, s{S_T0}, v{t0}')
        self.ds(f'ds_write_b128 v{t0}, {vr(cs,4)}'); self.ds(f'ds_write_b128 v{t0}, {vr(cs+4,4)} offset:16')
        self.wait_all_lg(); e('s_barrier')
        e(f'v_lshlrev_b32 v{t0}, 2, v0')
        for w in range(4): self.ds(f'ds_read_b32 v{tmp+w}, v{t0} offset:{512*w}')
        self.wait_all_lg()
        e(f'v_add_f32 v{tmp}, v{tmp}, v{tmp+1}\nv_add_f32 v{tmp+2}, v{tmp+2}, v{tmp+3}\nv_add_f32 v{tmp}, v{tmp}, v{tmp+2}')
        e(f's_mul_i32 s{S_T0}, s{S_HID}, 448\ns_add_u32 s{S_T0}, s{S_T0}, {WS_CS}\nv_add_u32 v{t0}, s{S_T0}, v{t0}')
        e(f'v_cmp_gt_u32 vcc, 112, v0\ns_and_saveexec_b64 s[{S_M1}:{S_M1+1}], vcc')
        lx = self.lab('hcs')
        e(f's_cbranch_execz {lx}')
        e(f'buffer_store_dword v{tmp}, v{t0}, s[{R_WS}:{R_WS+3}], 0 offen sc1')
        self.label(lx)
        e(f's_mov_b64 exec, s[{S_M1}:{S_M1+1}]')
        V.free(tmp, 8); V.free(cs, 8); V.free(wv, 112)
        if self.o.get('touch_wd', True):
            tv = V.alloc(52, 4)
            e(f's_mul_i32 s{S_T0}, s{S_HID}, 50176\nv_lshlrev_b32 v{t0}, 4, v0\nv_add_u32 v{t0}, s{S_T0}, v{t0}')
            for k in range(13):
                e(f's_mov_b32 s{S_T1}, {k*4096}')
                e(f'buffer_load_dwordx4 {vr(tv+4*k,4)}, v{t0}, s[{R_WD}:{R_WD+3}], s{S_T1} offen')
            V.free(tv, 52)
        e('s_waitcnt vmcnt(0)'); self.vm.drain()
        e('s_barrier')
        self.signal(WS_FLAG2, 's2')
        self.stamp(2)
        V.free(va); V.free(t0); V.free(t1)
        e('s_branch L_end')

    def signal(self, base, sidx):
        e = self.e; V = self.V
        lab = self.lab('sig')
        e(f's_cmp_lg_u32 s{S_W}, 0\ns_cbranch_scc1 {lab}')
        v = V.alloc(2, 2)
        e(f's_mul_i32 s{S_T0}, {sidx}, {FLAG_STRIDE}\ns_add_u32 s{S_T0}, s{S_T0}, {base}')
        e(f'v_mov_b32 v{v}, s{S_NONCE}\nv_mov_b32 v{v+1}, s{S_T0}')
        e(f's_mov_b64 s[{S_M1}:{S_M1+1}], exec\ns_mov_b64 exec, 1')
        e(f'buffer_store_dword v{v}, v{v+1}, s[{R_WS}:{R_WS+3}], 0 offen sc1')
        e(f's_mov_b64 exec, s[{S_M1}:{S_M1+1}]')
        V.free(v, 2)
        self.label(lab)

    def rbf(self, d, s, pre=''):
        self.e(f'v_cvt_pk_bf16_f32 v{d}, v{s}, v{s}\nv_lshlrev_b32 v{d}, 16, v{d}')
    def ln_finalize(self, S, Q, dm, ds_, dt):
        e = self.e
        e(f'v_mul_f32 v{S}, {fx(1/448)}, v{S}')
        e(f'v_mul_f32 v{Q}, {fx(1/448)}, v{Q}')
        e(f'v_fma_f32 v{Q}, -v{S}, v{S}, v{Q}')
        e(f'v_max_f32 v{Q}, 0, v{Q}')
        self.rbf(dm, S)
        self.rbf(dt, Q)
        e(f'v_add_f32 v{dt}, {fx(1e-5)}, v{dt}')
        self.rbf(dt, dt)
        e(f'v_sqrt_f32 v{dt}, v{dt}')
        self.rbf(ds_, dt)

    def w1_setup(self):
        e = self.e; V = self.V
        self.vW1 = V.alloc(1); self.vTR = V.alloc(1)
        t = V.alloc(1)
        e(f'v_lshrrev_b32 v{t}, 2, v1\nv_mul_u32_u24 v{self.vW1}, 3584, v{t}\nv_and_b32 v{t}, 3, v1\nv_lshl_add_u32 v{self.vW1}, v{t}, 4, v{self.vW1}')
        e(f's_lshl_b32 s{S_T0}, s{S_FB}, 8\ns_lshl_b32 s{S_T1}, s{S_W}, 6\ns_add_u32 s{S_T0}, s{S_T0}, s{S_T1}\nv_add_u32 v{self.vW1}, s{S_T0}, v{self.vW1}')
        self.tr_addr64(self.vTR, t)
        self.vTS = V.alloc(1)
        e(f's_lshl_b32 s{S_T2}, s{S_W}, 14\ns_add_u32 s{S_T2}, s{S_T2}, {L_STG}\nv_add_u32 v{self.vTS}, s{S_T2}, v{self.vTR}')
        V.free(t)
    def tr_addr64(self, d, t):
        e = self.e
        e(f'v_lshrrev_b32 v{t}, 5, v1\nv_lshlrev_b32 v{d}, 8, v{t}')
        e(f'v_bfe_u32 v{t}, v1, 2, 2\nv_lshl_add_u32 v{d}, v{t}, 6, v{d}')
        e(f'v_bfe_u32 v{t}, v1, 4, 1\nv_lshl_add_u32 v{d}, v{t}, 5, v{d}')
        e(f'v_and_b32 v{t}, 3, v1\nv_lshl_add_u32 v{d}, v{t}, 3, v{d}')
    def w1_issue(self, k0, k1):
        e = self.e
        e(f's_lshl_b32 s{S_T2}, s{S_W}, 14\ns_add_u32 s{S_T2}, s{S_T2}, {L_STG}')
        for k in range(k0, k1):
            sl = (k - k0) * 2048
            e(f's_mov_b32 s{S_T1}, {k*16*3584}')
            e(f's_add_u32 m0, s{S_T2}, {sl}')
            self.vmem(f'buffer_load_dwordx4 v{self.vW1}, s[{R_WG}:{R_WG+3}], s{S_T1} offen lds', f'w1_{k0}')
            e(f's_add_u32 m0, s{S_T2}, {sl+1024}')
            self.vmem(f'buffer_load_dwordx4 v{self.vW1}, s[{R_WU}:{R_WU+3}], s{S_T1} offen lds', f'w1_{k0}')
    def w1_read_k(self, t, k0, k):
        sl = (k - k0) * 2048
        self.ds(f'ds_read_b64_tr_b16 {ar(8*k,2)}, v{t} offset:{sl}', 'w1r')
        self.ds(f'ds_read_b64_tr_b16 {ar(8*k+2,2)}, v{t} offset:{sl+512}', 'w1r')
        self.ds(f'ds_read_b64_tr_b16 {ar(8*k+4,2)}, v{t} offset:{sl+1024}', 'w1r')
        self.ds(f'ds_read_b64_tr_b16 {ar(8*k+6,2)}, v{t} offset:{sl+1536}', 'w1r')
    def w1_fetch(self, k0, k1):
        e = self.e; V = self.V
        self.wait_vm(f'w1_{k0}')
        for k in range(k0, k1): self.w1_read_k(self.vTS, k0, k)
        self.wait_all_lg()

    def phaseA(self):
        e = self.e; V = self.V; o = self.o
        self.c('================= phase A')
        e(f's_mul_i32 s{S_CP}, s{S_XCD}, 28\ns_add_u32 s{S_CP}, s{S_CP}, s{S_J}')
        self.map_bc()
        par = V.alloc(6); xg = V.alloc(8); t0 = V.alloc(1); t1 = V.alloc(1)
        e(f's_lshl_b32 s{S_T0}, s{S_CP}, 2')
        e(f's_load_dword s{S_LD}, s[{S_LDT}:{S_LDT+1}], s{S_T0}\ns_load_dword s{S_DK}, s[{S_DSK}:{S_DSK+1}], s{S_T0}')
        e(f's_lshl_b32 s{S_T1}, s{S_CP}, 10\nv_lshl_add_u32 v{t0}, v0, 2, s{S_T1}')
        for i, sp in enumerate((S_ARE, S_AIM, S_BRE, S_BIM, S_CRE, S_CIM)):
            self.vmem(f'global_load_dword v{par+i}, v{t0}, s[{sp}:{sp+1}]', 'par')
        xa0 = V.alloc(1); xa1 = V.alloc(1)
        e(f'v_mul_u32_u24 v{xa0}, 7168, v0\nv_add_u32 v{xa0}, s{S_T0}, v{xa0}\nv_add_u32 v{xa1}, 4480, v{xa0}')
        def xgather(k):
            if k < 5: self.vmem(f'buffer_load_dword v{xg+k}, v{xa0}, s[{R_X}:{R_X+3}], 0 offen offset:{896*k}', 'xg')
            else: self.vmem(f'buffer_load_dword v{xg+k}, v{xa1}, s[{R_X}:{R_X+3}], 0 offen offset:{896*(k-5)}', 'xg')
        pre = o.get('w1pre', True)
        if pre:
            self.w1_setup()
            self.w1_issue(0, 8)
        self.stamp(1)
        ga = V.alloc(12, 2)
        self.ga = ga
        e(f'v_lshlrev_b32 v{t0}, 3, v0\nv_sub_u32 v{t0}, 2048, v{t0}')
        for k in range(1, 12):
            e(f'v_subrev_u32 v{ga+k-1}, {k}, v{t0}')
        e(f'v_mov_b32 v{ga+11}, 0')
        tt = V.alloc(2, 2)
        for k in range(0, 12, 2):
            a, b = ga + k, ga + k + 1
            e(f'v_max_i32 v{tt}, 0, v{a}\nv_max_i32 v{tt+1}, 0, v{b}')
            e(f'v_cvt_f32_u32 v{tt}, v{tt}\nv_cvt_f32_u32 v{tt+1}, v{tt+1}')
            e(f'v_cvt_pk_bf16_f32 v{t1}, v{tt}, v{tt+1}')
            e(f'v_lshlrev_b32 v{tt}, 16, v{t1}\nv_and_b32 v{tt+1}, 0xffff0000, v{t1}')
            e(f'v_cvt_u32_f32 v{tt}, v{tt}\nv_cvt_u32_f32 v{tt+1}, v{tt+1}')
            for x, r in ((tt, a), (tt + 1, b)):
                e(f'v_lshrrev_b32 v{t1}, 3, v{x}\nv_add_u32 v{x}, v{x}, v{t1}')
                if k >= 8:
                    e(f'v_cmp_gt_i32 vcc, 0, v{r}\nv_mov_b32 v{t1}, 2320\nv_cndmask_b32 v{x}, v{x}, v{t1}, vcc')
                e(f'v_lshlrev_b32 v{x}, 2, v{x}\nv_add_u32 v{r}, {L_K32}, v{x}')
        V.free(tt, 2)
        e('s_waitcnt lgkmcnt(0)'); self.lg.drain()
        e(f's_lshr_b32 s{S_T0}, s{S_W}, 1\ns_lshl_b32 s{S_T0}, s{S_T0}, 4')
        e(f's_lshr_b32 s{S_LD}, s{S_LD}, s{S_T0}\ns_lshl_b32 s{S_LD}, s{S_LD}, 16')
        e(f's_lshr_b32 s{S_DK}, s{S_DK}, s{S_T0}\ns_lshl_b32 s{S_DK}, s{S_DK}, 16')
        dt = V.alloc(2, 2); tt = V.alloc(2, 2)
        L_hi = struct.unpack('<f', struct.pack('<f', LOG2E))[0]; L_lo = LOG2E - L_hi
        e(f'v_mov_b32 v{dt}, s{S_LD}\nv_mul_f32 v{tt}, {fx(L_hi)}, v{dt}')
        e(f's_mov_b32 s{S_T1}, {fx(L_hi)}')
        e(f'v_fma_f32 v{tt+1}, v{dt}, s{S_T1}, -v{tt}\nv_fmac_f32 v{tt+1}, {fx(L_lo)}, v{dt}')
        e(f'v_exp_f32 v{tt}, v{tt}\nv_mul_f32 v{tt+1}, {fx(math.log(2))}, v{tt+1}')
        e(f'v_fma_f32 v{dt}, v{tt}, v{tt+1}, v{tt}')
        self.rbf(dt, dt)
        V.free(tt, 2)
        self.wait_vm('par')
        self.stamp(2)
        sc = V.alloc(12, 2)
        e(f'v_lshlrev_b32 v{sc}, 16, v{par}\nv_and_b32 v{sc+1}, 0xffff0000, v{par}')
        e(f'v_lshlrev_b32 v{sc+2}, 16, v{par+1}\nv_and_b32 v{sc+3}, 0xffff0000, v{par+1}')
        e(f'v_lshlrev_b32 v{sc+4}, 16, v{par+2}\nv_and_b32 v{sc+6}, 0xffff0000, v{par+2}')
        e(f'v_lshlrev_b32 v{sc+5}, 16, v{par+3}\nv_and_b32 v{sc+7}, 0xffff0000, v{par+3}')
        e(f'v_lshlrev_b32 v{sc+8}, 16, v{par+4}\nv_and_b32 v{sc+10}, 0xffff0000, v{par+4}')
        e(f'v_lshlrev_b32 v{sc+9}, 16, v{par+5}\nv_and_b32 v{sc+11}, 0xffff0000, v{par+5}')
        V.free(par, 6)
        for i in range(8):
            e(f'v_mul_f32 v{sc+i}, v{dt}, v{sc+i}')
        e(f'v_mul_f32 v{sc}, {fx(LOG2E)}, v{sc}\nv_mul_f32 v{sc+1}, {fx(LOG2E)}, v{sc+1}')
        e(f'v_mul_f32 v{sc+2}, {fx(1/(2*math.pi))}, v{sc+2}\nv_mul_f32 v{sc+3}, {fx(1/(2*math.pi))}, v{sc+3}')
        V.free(dt, 2)
        Q = lambda: V.alloc(4, 4)
        tq = Q()
        def direct(dst, ex):
            for m in range(2):
                if ex == 1:
                    e(f'v_exp_f32 v{tq+m}, v{sc+m}\nv_fract_f32 v{tq+2+m}, v{sc+2+m}')
                else:
                    e(f'v_mul_f32 v{tq+m}, {fx(float(ex))}, v{sc+m}\nv_mul_f32 v{tq+2+m}, {fx(float(ex))}, v{sc+2+m}')
            if ex != 1:
                for m in range(2): e(f'v_exp_f32 v{tq+m}, v{tq+m}\nv_fract_f32 v{tq+2+m}, v{tq+2+m}')
            for m in range(2):
                e(f'v_cos_f32 v{dst+2*m}, v{tq+2+m}\nv_sin_f32 v{dst+2*m+1}, v{tq+2+m}')
            for m in range(2):
                e(f'v_mul_f32 v{dst+2*m}, v{tq+m}, v{dst+2*m}\nv_mul_f32 v{dst+2*m+1}, v{tq+m}, v{dst+2*m+1}')
        def qmul(d, a, b):
            self.cmul_multi([(d, a, b, None), (d + 2, a + 2, b + 2, None)])
        wa = V.alloc(1)
        e(f'v_and_b32 v{wa}, 127, v0\nv_lshlrev_b32 v{wa}, 4, v{wa}\ns_lshr_b32 s{S_T0}, s{S_W}, 1\ns_mul_i32 s{S_T0}, s{S_T0}, {TBL_C}\nv_add_u32 v{wa}, s{S_T0}, v{wa}')
        def put(q, ent): self.ds(f'ds_write_b128 v{wa}, {vr(q,4)} offset:{ent*TBL_E}')
        one = Q()
        e(f'v_mov_b32 v{one}, 1.0\nv_mov_b32 v{one+1}, 0\nv_mov_b32 v{one+2}, 1.0\nv_mov_b32 v{one+3}, 0')
        put(one, 0); put(one, 4); put(one, 12)
        V.free(one, 4)
        z1 = Q(); z2 = Q(); z3 = Q(); z4 = Q()
        direct(z1, 1); put(z1, 1)
        qmul(z2, z1, z1); put(z2, 2)
        qmul(z3, z2, z1); put(z3, 3)
        qmul(z4, z2, z2); put(z4, 5)
        qmul(z1, z4, z4); put(z1, 6)
        qmul(z2, z1, z4); put(z2, 7)
        qmul(z3, z1, z1); put(z3, 16)
        CB = Q()
        qmul(CB, sc + 8, sc + 4); put(CB, 8)
        direct(z1, 32)
        qmul(z4, CB, z1); put(z4, 9)
        qmul(z2, z1, z1)
        qmul(z4, CB, z2); put(z4, 10)
        qmul(z3, z2, z1)
        qmul(z4, CB, z3); put(z4, 11)
        qmul(z1, z2, z2); put(z1, 13)
        qmul(z2, z1, z1); put(z2, 14)
        qmul(z3, z2, z1); put(z3, 15)
        direct(z1, 512); put(z1, 17)
        qmul(z2, z1, z1)
        qmul(z3, z2, z2)
        c48 = V.alloc(2, 2)
        e(f'v_mul_f32 v{c48}, v{CB}, v{z3}\nv_fma_f32 v{c48}, -v{CB+1}, v{z3+1}, v{c48}')
        e(f'v_fmac_f32 v{c48}, v{CB+2}, v{z3+2}\nv_fma_f32 v{c48}, -v{CB+3}, v{z3+3}, v{c48}')
        for q in (z1, z2, z3, z4, CB, tq): V.free(q, 4)
        V.free(sc, 12); V.free(wa)
        for mod in ('quad_perm:[1,0,3,2]', 'quad_perm:[2,3,0,1]', 'row_half_mirror', 'row_mirror'):
            e(f'v_add_f32_dpp v{c48}, v{c48}, v{c48} {mod} row_mask:0xf bank_mask:0xf')
        for swap in ('v_permlane16_swap_b32', 'v_permlane32_swap_b32'):
            e(f'v_mov_b32 v{c48+1}, v{c48}\n{swap} v{c48}, v{c48+1}\nv_add_f32 v{c48}, v{c48}, v{c48+1}')
        self.wait_all_lg(); e('s_barrier')
        self.stamp(3)
        def hook(st):
            xgather(st)
            if pre:
                if st == 0: self.wait_vm('w1_0')
                self.w1_read_k(self.vTS, 0, st)
        self.kgen_main(c48, hook)
        V.free(c48, 2); V.free(xa0); V.free(xa1)
        self.wait_all_lg(); e('s_barrier')
        self.stamp(4)
        self.get_nonce()
        sg = V.alloc(16, 4); sa = V.alloc(1)
        e(f'v_lshlrev_b32 v{sa}, 6, v0')
        if WS_STATS: e(f'v_add_u32 v{sa}, {WS_STATS}, v{sa}')
        for i in range(4): self.vmem(f'buffer_load_dwordx4 {vr(sg+4*i,4)}, v{sa}, s[{R_WS}:{R_WS+3}], 0 offen offset:{16*i} sc1', 'sg')
        if pre: self.w1_issue(8, 16)
        self.expand()
        self.stamp(5)
        self.normalize(xg, sg, sa)
        V.free(sg, 16); V.free(sa); V.free(xg, 8)
        if pre:
            self.wait_vm('w1_8')
            for k in range(8, 16): self.w1_read_k(self.vTS, 8, k)
        self.wait_all_lg(); e('s_barrier')
        self.stamp(6)
        if pre: self.w1_issue(16, 24)
        self.conv()
        V.free(t0); V.free(t1)
        self.stamp(8)
        if pre:
            self.w1_fetch(16, 24); self.w1_issue(24, 28)
        self.wait_vm('ht'); e('s_barrier')
        self.signal(WS_FLAG2, 's2')
        self.stamp(9)
        if pre: self.w1_fetch(24, 28)

    def map_bc(self):
        e = self.e
        if self.o.get('mapB', 'rows') == 'rows':
            e(f's_cmp_ge_u32 s{S_J}, 14\ns_cselect_b32 s{S_T0}, 1, 0\ns_lshl_b32 s{S_RB}, s{S_XCD}, 1\ns_add_u32 s{S_RB}, s{S_RB}, s{S_T0}')
            e(f's_mul_i32 s{S_T0}, s{S_T0}, 14\ns_sub_u32 s{S_FB}, s{S_J}, s{S_T0}')
        else:
            e(f's_mul_i32 s{S_T0}, s{S_J}, 37\ns_lshr_b32 s{S_T0}, s{S_T0}, 8')
            e(f's_lshr_b32 s{S_RB}, s{S_XCD}, 1\ns_lshl_b32 s{S_RB}, s{S_RB}, 2\ns_add_u32 s{S_RB}, s{S_RB}, s{S_T0}')
            e(f's_mul_i32 s{S_T0}, s{S_T0}, 7\ns_sub_u32 s{S_FB}, s{S_J}, s{S_T0}\ns_and_b32 s{S_T0}, s{S_XCD}, 1\ns_mul_i32 s{S_T0}, s{S_T0}, 7\ns_add_u32 s{S_FB}, s{S_FB}, s{S_T0}')
        e(f's_mul_i32 s{S_T0}, s{S_J}, 37\ns_lshr_b32 s{S_T0}, s{S_T0}, 8')
        e(f's_lshl_b32 s{S_RB2}, s{S_XCD}, 2\ns_add_u32 s{S_RB2}, s{S_RB2}, s{S_T0}\ns_mul_i32 s{S_T0}, s{S_T0}, 7\ns_sub_u32 s{S_DB}, s{S_J}, s{S_T0}')

    def kgen_main(self, c48, hook):
        e = self.e; V = self.V
        self.c('---- kgen main')
        aLo = V.alloc(1); aHi = V.alloc(1); aC = V.alloc(1); t = V.alloc(1)
        e(f's_lshr_b32 s{S_T0}, s{S_W}, 1\ns_mul_i32 s{S_T0}, s{S_T0}, {TBL_C}\ns_and_b32 s{S_T1}, s{S_W}, 1\ns_lshl_b32 s{S_T1}, s{S_T1}, 10\ns_add_u32 s{S_T0}, s{S_T0}, s{S_T1}')
        e(f'v_lshrrev_b32 v{t}, 4, v1\nv_lshlrev_b32 v{aC}, 5, v{t}\nv_add_u32 v{aC}, s{S_T0}, v{aC}')
        e(f'v_and_b32 v{t}, 3, v1\nv_mul_u32_u24 v{t}, {TBL_E}, v{t}\nv_add_u32 v{aLo}, v{aC}, v{t}')
        e(f'v_bfe_u32 v{t}, v1, 2, 2\nv_mul_u32_u24 v{t}, {TBL_E}, v{t}\nv_add_u32 v{aHi}, v{aC}, v{t}')
        T1 = V.alloc(8, 4); T2 = V.alloc(8, 4); T3 = V.alloc(8, 4); T4 = V.alloc(8, 4); Z16 = V.alloc(8, 4); Z512 = V.alloc(8, 4)
        Va = V.alloc(8, 2); W = V.alloc(8, 2); tmp = V.alloc(8, 2)
        PV = [V.alloc(4, 4) for _ in range(2)]; PW = [V.alloc(4, 4) for _ in range(4)]
        D = [[V.alloc(4, 4) for s in range(2)] for t_ in range(4)]
        def rd(dst, addr, ent, st, tag):
            for h in range(2):
                self.ds(f'ds_read_b128 {vr(dst+4*h,4)}, v{addr} offset:{ent*TBL_E + st*128 + 16*h}', tag)
        rd(T1, aLo, 0, 0, 't12'); rd(T2, aHi, 4, 0, 't12'); rd(Z16, aC, 16, 0, 'z16'); rd(T3, aLo, 8, 0, 't34'); rd(T4, aHi, 12, 0, 't34'); rd(Z512, aC, 17, 0, 'z512')
        for st in range(8):
            nx = st + 1 < 8
            hook(st)
            self.wait_lg('t12')
            self.cmul_multi([(Va + 2*c, T1 + 2*c, T2 + 2*c, None) for c in range(4)])
            if nx: rd(T1, aLo, 0, st + 1, 't12'); rd(T2, aHi, 4, st + 1, 't12')
            for c in range(4): e(f'v_cvt_pk_bf16_f32 v{PV[0]+c}, v{Va+2*c}, v{Va+2*c+1}')
            self.wait_lg('z16')
            self.cmul_multi([(Va + 2*c, Va + 2*c, Z16 + 2*c, tmp + 2*c) for c in range(4)])
            if nx: rd(Z16, aC, 16, st + 1, 'z16')
            for c in range(4): e(f'v_cvt_pk_bf16_f32 v{PV[1]+c}, v{Va+2*c}, v{Va+2*c+1}')
            self.wait_lg('t34')
            self.cmul_multi([(W + 2*c, T3 + 2*c, T4 + 2*c, None) for c in range(4)])
            if nx: rd(T3, aLo, 8, st + 1, 't34'); rd(T4, aHi, 12, st + 1, 't34')
            for tt in range(4):
                for c in range(4): e(f'v_cvt_pk_bf16_f32 v{PW[tt]+c}, v{W+2*c}, -v{W+2*c+1}')
                if tt < 3:
                    if tt == 0: self.wait_lg('z512')
                    self.cmul_multi([(W + 2*c, W + 2*c, Z512 + 2*c, tmp + 2*c) for c in range(4)])
                    if tt == 2 and nx: rd(Z512, aC, 17, st + 1, 'z512')
                for s in range(2):
                    cin = '0' if st == 0 else vr(D[tt][s], 4)
                    e(f'v_mfma_f32_16x16x32_bf16 {vr(D[tt][s],4)}, {vr(PW[tt],4)}, {vr(PV[s],4)}, {cin}')
        self.stamp(13)
        e(f's_lshl_b32 s{S_T0}, s{S_W}, 12\ns_add_u32 s{S_T0}, s{S_T0}, {L_EX}\nv_lshl_add_u32 v{aHi}, v1, 4, s{S_T0}')
        keep = V.alloc(16, 4)
        lh = self.lab('k1'); ld = self.lab('kd')
        e(f's_and_b32 s{S_T1}, s{S_W}, 1\ns_cmp_lg_u32 s{S_T1}, 0\ns_cbranch_scc1 {lh}')
        for half, lab_ in ((0, None), (1, lh)):
            if lab_: self.label(lab_); e('s_nop 7')
            snd = [(t_, s) for t_ in (2 - 2*half, 3 - 2*half) for s in range(2)]
            kp = [(t_, s) for t_ in (2*half, 2*half + 1) for s in range(2)]
            for i, (t_, s) in enumerate(snd): e(f'ds_write_b128 v{aHi}, {vr(D[t_][s],4)} offset:{1024*i}')
            for i, (t_, s) in enumerate(kp):
                for r in range(4): e(f'v_mov_b32 v{keep+4*i+r}, v{D[t_][s]+r}')
            if half == 0: e(f's_branch {ld}')
        self.label(ld)
        e(f's_lshl_b32 s{S_T0}, s{S_W}, 2\ns_add_u32 s{S_T0}, s{S_T0}, {L_EX + 16384}\nv_mov_b32 v{aC}, s{S_T0}')
        e(f's_mov_b64 s[{S_M1}:{S_M1+1}], exec\ns_mov_b64 exec, 1')
        e(f'ds_write_b32 v{aC}, v{c48}')
        e(f's_mov_b64 exec, s[{S_M1}:{S_M1+1}]')
        e('s_waitcnt lgkmcnt(0)'); self.lg.drain()
        e('s_barrier')
        e(f's_xor_b32 s{S_T0}, s{S_W}, 1\ns_lshl_b32 s{S_T2}, s{S_T0}, 12\ns_add_u32 s{S_T2}, s{S_T2}, {L_EX}\nv_lshl_add_u32 v{aHi}, v1, 4, s{S_T2}')
        for i in range(4): self.ds(f'ds_read_b128 {vr(T1 if i == 0 else T2 if i == 1 else T3 if i == 2 else T4,4)}, v{aHi} offset:{1024*i}', 'ex')
        e(f's_lshl_b32 s{S_T0}, s{S_T0}, 2\ns_add_u32 s{S_T0}, s{S_T0}, {L_EX + 16384}\nv_mov_b32 v{aC}, s{S_T0}')
        self.ds(f'ds_read_b32 v{Va}, v{aC}', 'ex')
        e(f'v_and_b32 v{aLo}, 15, v1\nv_lshrrev_b32 v{t}, 3, v{aLo}\nv_add_u32 v{aLo}, v{aLo}, v{t}')
        e(f'v_lshrrev_b32 v{t}, 4, v1\nv_mul_u32_u24 v{t}, 144, v{t}\nv_add_u32 v{aLo}, v{aLo}, v{t}\nv_lshlrev_b32 v{aLo}, 2, v{aLo}')
        e(f's_lshr_b32 s{S_T0}, s{S_W}, 1\ns_mul_i32 s{S_T0}, s{S_T0}, {K32_C}\ns_add_u32 s{S_T0}, s{S_T0}, {L_K32}')
        e(f's_mul_i32 s{S_T1}, s{S_T1}, {4*576*2}\ns_add_u32 s{S_T1}, s{S_T1}, s{S_T0}\nv_add_u32 v{aLo}, s{S_T1}, v{aLo}')
        self.wait_lg('ex')
        for i, q in enumerate((T1, T2, T3, T4)):
            e(f'v_pk_add_f32 {vr(keep+4*i,2)}, {vr(keep+4*i,2)}, {vr(q,2)}\nv_pk_add_f32 {vr(keep+4*i+2,2)}, {vr(keep+4*i+2,2)}, {vr(q+2,2)}')
        e(f'v_add_f32 v{c48}, v{c48}, v{Va}\nv_mov_b32 v{c48+1}, 0\nv_mov_b32 v{aHi}, s{S_T0}')
        for i in range(4):
            t_, s = i >> 1, i & 1
            for r in range(4):
                self.ds(f'ds_write_b32 v{aLo}, v{keep+4*i+r} offset:{4*(576*t_ + 36*r + 18*s)}')
        e(f's_mov_b64 s[{S_M1}:{S_M1+1}], exec\ns_mov_b64 exec, 1')
        self.ds(f'ds_write_b32 v{aHi}, v{c48} offset:9216')
        self.ds(f'ds_write_b32 v{aHi}, v{c48+1} offset:9280')
        e(f's_mov_b64 exec, s[{S_M1}:{S_M1+1}]')
        V.free(keep, 16)
        for x in (T1, T2, T3, T4, Z16, Z512, Va, W, tmp): V.free(x, 8)
        for x in PV + PW: V.free(x, 4)
        for row in D:
            for x in row: V.free(x, 4)
        for x in (aLo, aHi, aC, t): V.free(x)

    def expand(self):
        e = self.e; V = self.V; ga = self.ga
        self.c('---- expand K into 4 shifted bf16 copies')
        g = V.alloc(22, 2); P = V.alloc(16, 4); wa = V.alloc(1); z = V.alloc(4, 4)
        e(f'v_lshlrev_b32 v{wa}, 4, v0')
        for c in range(2):
            for k in range(11): self.ds(f'ds_read_b32 v{g+11*c+k}, v{ga+k} offset:{c*K32_C}', f'g{c}')
        for i in range(4): e(f'v_mov_b32 v{z+i}, 0')
        t = V.alloc(1); t2 = V.alloc(1)
        e(f'v_lshrrev_b32 v{t}, 2, v0\nv_mul_u32_u24 v{t}, {KC_S}, v{t}\nv_and_b32 v{t2}, 3, v0\nv_lshl_add_u32 v{t}, v{t2}, 4, v{t}')
        e(f'v_cmp_gt_u32 vcc, 32, v0\ns_and_saveexec_b64 s[{S_M1}:{S_M1+1}], vcc')
        la = self.lab('zc'); e(f's_cbranch_execz {la}')
        e(f'ds_write_b128 v{t}, {vr(z,4)} offset:{L_KC + 4096}')
        self.label(la); e(f's_mov_b64 exec, s[{S_M1}:{S_M1+1}]')
        e(f'v_lshrrev_b32 v{t}, 6, v0\nv_mul_u32_u24 v{t}, {U_C}, v{t}\nv_lshl_add_u32 v{t}, v1, 4, v{t}')
        e(f'v_cmp_gt_u32 vcc, 128, v0\ns_and_saveexec_b64 s[{S_M1}:{S_M1+1}], vcc')
        la = self.lab('zu'); e(f's_cbranch_execz {la}')
        e(f'ds_write_b128 v{t}, {vr(z,4)} offset:{L_U}')
        self.label(la); e(f's_mov_b64 exec, s[{S_M1}:{S_M1+1}]')
        V.free(t); V.free(t2); V.free(z, 4)
        self.wait_all_lg()
        for c in range(2):
            v = lambda k: g + 11 * c + (k - 1)
            for sc_ in range(4):
                s = 4 - sc_
                for dd in range(4):
                    e(f'v_cvt_pk_bf16_f32 v{P+4*sc_+dd}, v{v(s+2*dd)}, v{v(s+2*dd+1)}')
            for sc_ in range(4):
                self.ds(f'ds_write_b128 v{wa}, {vr(P+4*sc_,4)} offset:{L_KC + c*KC_C + sc_*KC_S}')
        if self.o.get('dumpK'):
            d = V.alloc(1)
            self.wait_all_lg(); e('s_barrier')
            e(f's_lshl_b32 s{S_T0}, s{S_CP}, 13\ns_add_u32 s{S_T0}, s{S_T0}, {WS_DBG + 0x100000}')
            for c in range(2):
                self.ds(f'ds_read_b128 {vr(P,4)}, v{wa} offset:{L_KC + c*KC_C}'); self.wait_all_lg()
                e(f'v_add_u32 v{d}, s{S_T0}, v{wa}')
                self.vmem(f'buffer_store_dwordx4 {vr(P,4)}, v{d}, s[{R_WS}:{R_WS+3}], 0 offen offset:{0}' if c == 0 else
                          f'buffer_store_dwordx4 {vr(P,4)}, v{d}, s[{R_WS}:{R_WS+3}], s{S_T1} offen', 'dbg') if c == 0 else None
                if c == 1:
                    e(f's_mov_b32 s{S_T1}, 4096')
                    self.vmem(f'buffer_store_dwordx4 {vr(P,4)}, v{d}, s[{R_WS}:{R_WS+3}], s{S_T1} offen', 'dbg')
                self.wait_all_vm()
            V.free(d)
        V.free(g, 22); V.free(P, 16); V.free(wa); V.free(ga, 12)

    def normalize(self, xg, sg, sa):
        e = self.e; V = self.V
        self.c('---- LN1 normalize own columns')
        xa = V.alloc(16, 2)
        XP = V.alloc(8, 4)
        self.wait_vm('xg')
        for k in range(8):
            e(f'v_lshlrev_b32 v{xa+k}, 16, v{xg+k}\nv_and_b32 v{xa+8+k}, 0xffff0000, v{xg+k}')
        e(f's_mov_b32 s{S_T0}, 0x05040100\ns_mov_b32 s{S_T1}, 0x07060302')
        for d in range(4):
            e(f'v_perm_b32 v{XP+d}, v{xg+2*d+1}, v{xg+2*d}, s{S_T0}\nv_perm_b32 v{XP+4+d}, v{xg+2*d+1}, v{xg+2*d}, s{S_T1}')
        wa = V.alloc(1); t = V.alloc(1)
        e(f'v_bfe_u32 v{t}, v0, 4, 1\nv_lshlrev_b32 v{t}, 1, v{t}\nv_xor_b32 v{wa}, v0, v{t}\nv_lshlrev_b32 v{wa}, 4, v{wa}')
        for c in range(2): self.ds(f'ds_write_b128 v{wa}, {vr(XP+4*c,4)} offset:{L_X + c*X_C}')
        l0 = self.lab('sp'); l1 = self.lab('spd')
        self.wait_vm('sg')
        e(f's_mov_b32 s{S_CNT}, 0')
        self.label(l0)
        e(f'v_cmp_ne_u32 vcc, s{S_NONCE}, v{sg+1}')
        for k in range(1, 8):
            e(f'v_cmp_ne_u32 s[{S_M2}:{S_M2+1}], s{S_NONCE}, v{sg+2*k+1}\ns_or_b64 vcc, vcc, s[{S_M2}:{S_M2+1}]')
        e(f's_cbranch_vccz {l1}')
        for i in range(4): e(f'buffer_load_dwordx4 {vr(sg+4*i,4)}, v{sa}, s[{R_WS}:{R_WS+3}], 0 offen offset:{16*i} sc1')
        e('s_waitcnt vmcnt(0)')
        e(f's_add_u32 s{S_CNT}, s{S_CNT}, 1\ns_cmp_lt_u32 s{S_CNT}, {SPIN_MAX}\ns_cbranch_scc1 {l0}')
        self.label(l1)
        self.stamp(7)
        ms = V.alloc(16, 2)
        for k in range(8):
            e(f'v_lshlrev_b32 v{ms+k}, 16, v{sg+2*k}\nv_and_b32 v{ms+8+k}, 0xffff0000, v{sg+2*k}')
        for k in range(8): e(f'v_rcp_f32 v{ms+8+k}, v{ms+8+k}')
        UP = XP
        for c in range(2):
            for d in range(4):
                x = xa + 8*c + 2*d
                e(f'v_pk_add_f32 {vr(x,2)}, {vr(x,2)}, {vr(ms+2*d,2)} neg_lo:[0,1] neg_hi:[0,1]')
            for d in range(4):
                x = xa + 8*c + 2*d
                e(f'v_cvt_pk_bf16_f32 v{x+1}, v{x}, v{x+1}')
            for d in range(4):
                x = xa + 8*c + 2*d
                e(f'v_lshlrev_b32 v{x}, 16, v{x+1}\nv_and_b32 v{x+1}, 0xffff0000, v{x+1}')
            for d in range(4):
                x = xa + 8*c + 2*d
                e(f'v_pk_mul_f32 {vr(x,2)}, {vr(x,2)}, {vr(ms+8+2*d,2)}')
            for d in range(4):
                x = xa + 8*c + 2*d
                e(f'v_cvt_pk_bf16_f32 v{UP+4*c+d}, v{x}, v{x+1}')
            self.ds(f'ds_write_b128 v{wa}, {vr(UP+4*c,4)} offset:{L_U + c*U_C + 1024}')
        V.free(ms, 16); V.free(xa, 16); V.free(XP, 8); V.free(wa); V.free(t)

    def conv(self):
        e = self.e; V = self.V
        self.c('---- Toeplitz convolution')
        vF = V.alloc(1); vG = V.alloc(8); t = V.alloc(1); t2 = V.alloc(1)
        e(f's_lshr_b32 s{S_T0}, s{S_W}, 1\ns_mul_i32 s{S_T0}, s{S_T0}, {KC_C}\ns_and_b32 s{S_T1}, s{S_W}, 1\ns_lshl_b32 s{S_T2}, s{S_T1}, 9\ns_sub_u32 s{S_T0}, s{S_T0}, s{S_T2}\ns_add_u32 s{S_T0}, s{S_T0}, {L_KC + 24 + 512}')
        e(f'v_and_b32 v{t}, 3, v1\nv_mul_u32_u24 v{vF}, {KC_S}, v{t}')
        e(f'v_bfe_u32 v{t}, v1, 2, 2\nv_lshlrev_b32 v{t}, 3, v{t}\nv_sub_u32 v{vF}, v{vF}, v{t}')
        e(f'v_lshrrev_b32 v{t}, 4, v1\nv_lshl_add_u32 v{vF}, v{t}, 4, v{vF}\nv_add_u32 v{vF}, s{S_T0}, v{vF}')
        e(f's_lshr_b32 s{S_T0}, s{S_W}, 1\ns_mul_i32 s{S_T0}, s{S_T0}, {U_C}\ns_add_u32 s{S_T0}, s{S_T0}, {L_U}')
        e(f's_lshl_b32 s{S_T1}, s{S_T1}, 3')
        for pp in range(8):
            e(f'v_and_b32 v{t}, 15, v1\nv_add_u32 v{t}, {16 - pp}, v{t}\nv_subrev_u32 v{t}, s{S_T1}, v{t}')
            e(f'v_bfe_u32 v{t2}, v{t}, 2, 1\nv_lshlrev_b32 v{t2}, 1, v{t2}\nv_lshrrev_b32 v{vG+pp}, 4, v1\nv_xor_b32 v{t2}, v{t2}, v{vG+pp}')
            e(f'v_lshlrev_b32 v{t}, 6, v{t}\nv_lshl_add_u32 v{t}, v{t2}, 4, v{t}\nv_add_u32 v{vG+pp}, s{S_T0}, v{t}')
        G = [V.alloc(16, 4) for _ in range(2)]
        F = V.alloc(32, 4)
        acc = V.alloc(32, 4)
        A = lambda b, m: acc + 8 * b + 4 * m
        def rdG(pp):
            for s in range(4): self.ds(f'ds_read_b128 {vr(G[pp&1]+4*s,4)}, v{vG+pp} offset:{1024*s}', f'G{pp}')
        def rdF(pp, q):
            for m in range(2):
                off = 32 * (111 - 32*q - 2*pp - m)
                self.ds(f'ds_read_b64 {vr(F+8*q+4*m,2)}, v{vF} offset:{off}', f'F{pp}_{q}')
                self.ds(f'ds_read_b64 {vr(F+8*q+4*m+2,2)}, v{vF} offset:{off+8}', f'F{pp}_{q}')
        rdG(0)
        for q in range(4): rdF(0, q)
        for pp in range(8):
            self.wait_lg(f'G{pp}')
            for q in range(4):
                self.wait_lg(f'F{pp}_{q}')
                if q == 0 and pp + 1 < 8: rdG(pp + 1)
                for m in range(2):
                    for s in range(4 - q):
                        b = q + s
                        cin = '0' if (pp == 0 and q == 0) else vr(A(b, m), 4)
                        e(f'v_mfma_f32_16x16x32_bf16 {vr(A(b,m),4)}, {vr(F+8*q+4*m,4)}, {vr(G[pp&1]+4*s,4)}, {cin}')
                if pp + 1 < 8: rdF(pp + 1, q)
        for x in G: V.free(x, 16)
        V.free(F, 32); V.free(vG, 8)
        self.stamp(10)
        ra = V.alloc(1)
        e(f's_lshl_b32 s{S_T0}, s{S_W}, 12\ns_add_u32 s{S_T0}, s{S_T0}, {L_RED}\nv_lshl_add_u32 v{ra}, v1, 4, s{S_T0}')
        keep = V.alloc(16, 4)
        lh = self.lab('h1'); ld = self.lab('hd')
        e(f's_and_b32 s{S_T1}, s{S_W}, 1\ns_cmp_lg_u32 s{S_T1}, 0\ns_cbranch_scc1 {lh}')
        for i in range(4): e(f'ds_write_b128 v{ra}, {vr(acc+16+4*i,4)} offset:{1024*i}')
        for i in range(16): e(f'v_mov_b32 v{keep+i}, v{acc+i}')
        e(f's_branch {ld}')
        self.label(lh)
        e('s_nop 7')
        for i in range(4): e(f'ds_write_b128 v{ra}, {vr(acc+4*i,4)} offset:{1024*i}')
        for i in range(16): e(f'v_mov_b32 v{keep+i}, v{acc+16+i}')
        self.label(ld)
        e('s_waitcnt lgkmcnt(0)'); self.lg.drain()
        e('s_barrier')
        e(f's_xor_b32 s{S_T0}, s{S_W}, 1\ns_lshl_b32 s{S_T0}, s{S_T0}, 12\ns_add_u32 s{S_T0}, s{S_T0}, {L_RED}\nv_lshl_add_u32 v{ra}, v1, 4, s{S_T0}')
        for i in range(4): self.ds(f'ds_read_b128 {vr(acc+4*i,4)}, v{ra} offset:{1024*i}', 'red')
        ua = V.alloc(1)
        e(f'v_bfe_u32 v{t}, v1, 2, 1\nv_lshlrev_b32 v{t}, 1, v{t}\nv_lshrrev_b32 v{t2}, 4, v1\nv_xor_b32 v{t}, v{t}, v{t2}')
        e(f'v_and_b32 v{t2}, 15, v1\nv_lshlrev_b32 v{t2}, 6, v{t2}\nv_lshl_add_u32 v{ua}, v{t}, 4, v{t2}')
        e(f's_and_b32 s{S_T1}, s{S_W}, 1\ns_lshl_b32 s{S_T1}, s{S_T1}, 11')
        e(f's_lshr_b32 s{S_T0}, s{S_W}, 1\ns_mul_i32 s{S_T2}, s{S_T0}, {U_C}\ns_add_u32 s{S_T2}, s{S_T2}, s{S_T1}')
        xa_ = V.alloc(1)
        e(f's_mul_i32 s{S_T3}, s{S_T0}, {X_C}\ns_add_u32 s{S_T3}, s{S_T3}, s{S_T1}')
        e(f'v_add_u32 v{xa_}, s{S_T3}, v{ua}\nv_add_u32 v{ua}, s{S_T2}, v{ua}')
        UU = V.alloc(8, 4); XX = V.alloc(8, 4)
        for bb in range(2):
            self.ds(f'ds_read_b128 {vr(UU+4*bb,4)}, v{ua} offset:{L_U + 1024 + 1024*bb}', 'ux')
            self.ds(f'ds_read_b128 {vr(XX+4*bb,4)}, v{xa_} offset:{L_X + 1024*bb}', 'ux')
        self.wait_lg('red')
        for i in range(0, 16, 2):
            e(f'v_pk_add_f32 {vr(keep+i,2)}, {vr(keep+i,2)}, {vr(acc+i,2)}')
        sa = V.alloc(1)
        e(f'v_and_b32 v{t}, 15, v1\nv_lshlrev_b32 v{t}, 6, v{t}\nv_lshrrev_b32 v{t2}, 4, v1\nv_lshl_add_u32 v{sa}, v{t2}, 4, v{t}')
        e(f's_lshl_b32 s{S_T2}, s{S_CP}, 1\ns_add_u32 s{S_T2}, s{S_T2}, s{S_T0}\ns_mul_i32 s{S_T2}, s{S_T2}, {HT_STRIDE}\ns_add_u32 s{S_T2}, s{S_T2}, s{S_T1}\ns_add_u32 s{S_T2}, s{S_T2}, {WS_HT}')
        e(f'v_add_u32 v{sa}, s{S_T2}, v{sa}')
        self.wait_lg('ux')
        Y = V.alloc(4, 4); w8 = V.alloc(16, 2); dk = V.alloc(2, 2)
        e(f'v_mov_b32 v{dk}, s{S_DK}')
        for bb in range(2):
            k0 = keep + 8 * bb
            e(f'v_cvt_pk_bf16_f32 v{Y}, v{k0}, v{k0+1}\nv_cvt_pk_bf16_f32 v{Y+1}, v{k0+2}, v{k0+3}')
            e(f'v_cvt_pk_bf16_f32 v{Y+2}, v{k0+4}, v{k0+5}\nv_cvt_pk_bf16_f32 v{Y+3}, v{k0+6}, v{k0+7}')
            e(f'v_permlane32_swap_b32 v{Y}, v{Y+2}\nv_permlane32_swap_b32 v{Y+1}, v{Y+3}')
            e(f'v_permlane16_swap_b32 v{Y}, v{Y+2}\nv_permlane16_swap_b32 v{Y+1}, v{Y+3}')
            a = w8; b = w8 + 8
            for d in range(4):
                e(f'v_lshlrev_b32 v{a+2*d}, 16, v{UU+4*bb+d}\nv_and_b32 v{a+2*d+1}, 0xffff0000, v{UU+4*bb+d}')
            for d in range(4): e(f'v_pk_mul_f32 {vr(a+2*d,2)}, {vr(a+2*d,2)}, {vr(dk,2)} op_sel_hi:[1,0]')
            for d in range(4): e(f'v_cvt_pk_bf16_f32 v{UU+4*bb+d}, v{a+2*d}, v{a+2*d+1}')
            for d in range(4):
                e(f'v_lshlrev_b32 v{a+2*d}, 16, v{UU+4*bb+d}\nv_and_b32 v{a+2*d+1}, 0xffff0000, v{UU+4*bb+d}')
                e(f'v_lshlrev_b32 v{b+2*d}, 16, v{Y+d}\nv_and_b32 v{b+2*d+1}, 0xffff0000, v{Y+d}')
            for d in range(4): e(f'v_pk_add_f32 {vr(a+2*d,2)}, {vr(a+2*d,2)}, {vr(b+2*d,2)}')
            for d in range(4): e(f'v_cvt_pk_bf16_f32 v{Y+d}, v{a+2*d}, v{a+2*d+1}')
            for d in range(4):
                e(f'v_lshlrev_b32 v{a+2*d}, 16, v{Y+d}\nv_and_b32 v{a+2*d+1}, 0xffff0000, v{Y+d}')
                e(f'v_lshlrev_b32 v{b+2*d}, 16, v{XX+4*bb+d}\nv_and_b32 v{b+2*d+1}, 0xffff0000, v{XX+4*bb+d}')
            for d in range(4): e(f'v_pk_add_f32 {vr(a+2*d,2)}, {vr(a+2*d,2)}, {vr(b+2*d,2)}')
            for d in range(4): e(f'v_cvt_pk_bf16_f32 v{XX+4*bb+d}, v{a+2*d}, v{a+2*d+1}')
            self.vmem(f'buffer_store_dwordx4 {vr(XX+4*bb,4)}, v{sa}, s[{R_WS}:{R_WS+3}], 0 offen offset:{1024*bb} sc1', 'ht')
        V.free(Y, 4); V.free(w8, 16); V.free(dk, 2); V.free(UU, 8); V.free(XX, 8); V.free(sa); V.free(ua); V.free(xa_); V.free(ra)
        V.free(keep, 16); V.free(acc, 32); V.free(vF); V.free(t); V.free(t2)

    def interleave(self, main, fill, per_gap):
        n = len(main); fi = 0
        for i, m in enumerate(main):
            m()
            tgt = (len(fill) * (i + 1) + n - 1) // n if per_gap is None else min(len(fill), fi + per_gap)
            while fi < tgt:
                fill[fi](); fi += 1
        while fi < len(fill):
            fill[fi](); fi += 1

    def poll_flags(self, base, nflags_expr_lanes, nloads, sbase=None):
        e = self.e; V = self.V
        skip = self.lab('pf'); l0 = self.lab('pl'); l1 = self.lab('pd')
        e(f's_cmp_lg_u32 s{S_W}, 0\ns_cbranch_scc1 {skip}')
        a = V.alloc(1); d = V.alloc(4, 2)
        e(f'v_mul_u32_u24 v{a}, {FLAG_STRIDE}, v1\nv_add_u32 v{a}, {base}, v{a}')
        if sbase is not None: e(f'v_add_u32 v{a}, s{sbase}, v{a}')
        e(f's_mov_b64 s[{S_M1}:{S_M1+1}], exec')
        if nflags_expr_lanes < 64: e(f's_mov_b64 exec, {hex((1 << nflags_expr_lanes) - 1)}')
        e(f's_mov_b32 s{S_CNT}, 0')
        self.label(l0)
        for k in range(nloads):
            e(f'buffer_load_dword v{d+k}, v{a}, s[{R_WS}:{R_WS+3}], 0 offen offset:{64*FLAG_STRIDE*k} sc1')
        e('s_waitcnt vmcnt(0)')
        e(f'v_cmp_ne_u32 vcc, s{S_NONCE}, v{d}')
        for k in range(1, nloads):
            e(f'v_cmp_ne_u32 s[{S_M2}:{S_M2+1}], s{S_NONCE}, v{d+k}\ns_or_b64 vcc, vcc, s[{S_M2}:{S_M2+1}]')
        e(f's_cbranch_vccz {l1}')
        e(f's_add_u32 s{S_CNT}, s{S_CNT}, 1\ns_cmp_lt_u32 s{S_CNT}, {SPIN_MAX}\ns_cbranch_scc1 {l0}')
        self.label(l1)
        e(f's_mov_b64 exec, s[{S_M1}:{S_M1+1}]')
        V.free(a); V.free(d, 4)
        self.label(skip)
        e('s_barrier')

    def phaseB(self):
        e = self.e; V = self.V; o = self.o
        self.c('================= phase B')
        L_H = 0; HG = 28672; L_STP = 4 * HG
        vD = V.alloc(1); vB = V.alloc(1); vS = V.alloc(1); t = V.alloc(1)
        e(f'v_lshrrev_b32 v{t}, 2, v1\nv_mul_u32_u24 v{vD}, {HT_STRIDE}, v{t}\nv_and_b32 v{t}, 3, v1\nv_lshl_add_u32 v{vD}, v{t}, 4, v{vD}')
        e(f's_lshl_b32 s{S_T0}, s{S_RB}, 8\ns_add_u32 s{S_T0}, s{S_T0}, {WS_HT}\nv_add_u32 v{vD}, s{S_T0}, v{vD}')
        e(f'v_mov_b32 v{vB}, v{self.vTR}')
        e(f's_lshl_b32 s{S_T0}, s{S_W}, 10\nv_add_u32 v{vS}, s{S_T0}, v{vB}')
        self.poll_flags(WS_FLAG2, 64, 4)
        self.vm.drain(); self.lg.drain()
        self.stamp(16)
        def hdma(g, i):
            def f():
                e(f's_lshl_b32 s{S_T1}, s{S_W}, 10\ns_add_u32 m0, s{S_T1}, {L_H + g*HG + i*4096}')
                e(f's_mul_i32 s{S_T1}, s{S_W}, {16*HT_STRIDE}\ns_add_u32 s{S_T1}, s{S_T1}, {i*4*16*HT_STRIDE + 64*g}')
                self.vmem(f'buffer_load_dwordx4 v{vD}, s[{R_WS}:{R_WS+3}], s{S_T1} offen sc1 lds', f'h{g}')
            return f
        for i in range(7): hdma(0, i)()
        cs = V.alloc(32, 4)
        e(f'v_lshrrev_b32 v{t}, 5, v1\nv_lshlrev_b32 v{t}, 4, v{t}\ns_lshl_b32 s{S_T0}, s{S_FB}, 9\ns_lshl_b32 s{S_T1}, s{S_W}, 7\ns_add_u32 s{S_T0}, s{S_T0}, s{S_T1}\ns_add_u32 s{S_T0}, s{S_T0}, {WS_CS}\nv_add_u32 v{t}, s{S_T0}, v{t}')
        e(f's_mov_b32 s{S_T2}, {1792*4}')
        for rho in range(4): self.vmem(f'buffer_load_dwordx4 {vr(cs+4*rho,4)}, v{t}, s[{R_WS}:{R_WS+3}], 0 offen offset:{32*rho} sc1', 'cs')
        for rho in range(4): self.vmem(f'buffer_load_dwordx4 {vr(cs+16+4*rho,4)}, v{t}, s[{R_WS}:{R_WS+3}], s{S_T2} offen offset:{32*rho} sc1', 'cs')
        for g in range(1, 4):
            for i in range(7): hdma(g, i)()
        vA = V.alloc(1)
        e(f's_mul_i32 s{S_T0}, s{S_RB}, {4*112}\ns_lshl_b32 s{S_T1}, s{S_FB}, 3\ns_add_u32 s{S_T0}, s{S_T0}, s{S_T1}\ns_lshl_b32 s{S_T1}, s{S_W}, 1\ns_add_u32 s{S_T0}, s{S_T0}, s{S_T1}')
        e(f's_lshl_b32 s{S_T0}, s{S_T0}, 10\ns_add_u32 s{S_T0}, s{S_T0}, {WS_ACT}\nv_lshl_add_u32 v{vA}, v1, 4, s{S_T0}')
        vH = V.alloc(1); vHs = V.alloc(1)
        e(f's_lshl_b32 s{S_T0}, s{S_FB}, 11\nv_add_u32 v{vH}, s{S_T0}, v{vB}')
        e(f's_mul_i32 s{S_T0}, s{S_RB}, {4*28}\ns_lshl_b32 s{S_T1}, s{S_FB}, 1\ns_add_u32 s{S_T0}, s{S_T0}, s{S_T1}\ns_lshl_b32 s{S_T0}, s{S_T0}, 10\ns_add_u32 s{S_T0}, s{S_T0}, {WS_HD}\nv_lshl_add_u32 v{vHs}, v1, 4, s{S_T0}')
        NB = 6
        B = V.alloc(4 * NB, 4); SB = V.alloc(8, 4)
        acc = [V.alloc(32, 4), V.alloc(32, 4)]
        sacc = V.alloc(8, 2)
        st = V.alloc(8, 2)
        par = V.alloc(6, 2)
        tmp = V.alloc(16, 2); pk = V.alloc(8, 4)
        vP = V.alloc(1); vPw = V.alloc(1)
        e(f'v_and_b32 v{vP}, 31, v1\nv_lshlrev_b32 v{vP}, 3, v{vP}\nv_add_u32 v{vP}, {L_STP}, v{vP}')
        e(f's_lshl_b32 s{S_T0}, s{S_W}, 8\nv_add_u32 v{vPw}, s{S_T0}, v{vP}')
        e(f's_mov_b32 s{S_T3}, 0x3f803f80')
        def rdB(g, k):
            s = k % NB
            self.ds(f'ds_read_b64_tr_b16 {vr(B+4*s,2)}, v{vB} offset:{g*HG + k*1024}' if g*HG + k*1024 + 512 < 65536 else
                    f'ds_read_b64_tr_b16 {vr(B+4*s,2)}, v{self.vB2} offset:{g*HG + k*1024 - 57344}', f'B{g}_{k}')
            self.ds(f'ds_read_b64_tr_b16 {vr(B+4*s+2,2)}, v{vB} offset:{g*HG + k*1024 + 512}' if g*HG + k*1024 + 512 < 65536 else
                    f'ds_read_b64_tr_b16 {vr(B+4*s+2,2)}, v{self.vB2} offset:{g*HG + k*1024 + 512 - 57344}', f'B{g}_{k}')
        self.vB2 = V.alloc(1); vS2 = V.alloc(1); vH2 = V.alloc(1)
        e(f'v_add_u32 v{self.vB2}, 57344, v{vB}\nv_add_u32 v{vS2}, 57344, v{vS}\nv_add_u32 v{vH2}, 57344, v{vH}')
        def addr(base, base2, off): return (base, off) if off + 512 < 65536 else (base2, off - 57344)
        def epilogue_ops(g):
            A_ = acc[g & 1]; ops = []
            par_ = par
            def rd():
                for w_ in range(4): self.ds(f'ds_read_b64 {vr(st+2*w_,2)}, v{vP} offset:{(g&1)*1024 + 256*w_}', f'st{g}')
            ops.append(rd)
            def fin0():
                self.wait_lg(f'st{g}')
                e(f'v_pk_add_f32 {vr(st,2)}, {vr(st,2)}, {vr(st+2,2)}')
            ops.append(fin0)
            ops.append(lambda: e(f'v_pk_add_f32 {vr(st+4,2)}, {vr(st+4,2)}, {vr(st+6,2)}'))
            ops.append(lambda: e(f'v_pk_add_f32 {vr(st,2)}, {vr(st,2)}, {vr(st+4,2)}'))
            save = self.lines; self.lines = []
            self.ln_finalize(st, st + 1, st + 2, st + 3, st + 4)
            e(f'v_sub_f32 v{par_}, 0, v{st+2}')
            e(f'v_rcp_f32 v{st+4}, v{st+3}')
            e(f'v_mul_f32 v{par_+4}, v{st+3}, v{st+3}')
            e(f'v_mul_f32 v{par_+2}, {fx(-LOG2E)}, v{st+4}')
            fl = self.lines; self.lines = save
            for l in fl: ops.append(lambda l=l: e(l))
            ops.append(lambda: self.wait_vm('cs'))
            for p in range(8):
                r = 2 * p; T = tmp + 8 * (p & 1)
                tg, tu, ar_, dd = T, T + 2, T + 4, T + 6
                ops.append(lambda r=r, tg=tg: e(f'v_pk_fma_f32 {vr(tg,2)}, {vr(cs+r,2)}, {vr(par_,2)}, {vr(A_+r,2)} op_sel_hi:[1,0,1]'))
                ops.append(lambda r=r, tu=tu: e(f'v_pk_fma_f32 {vr(tu,2)}, {vr(cs+16+r,2)}, {vr(par_,2)}, {vr(A_+16+r,2)} op_sel_hi:[1,0,1]'))
                ops.append(lambda tg=tg, ar_=ar_: e(f'v_pk_mul_f32 {vr(ar_,2)}, {vr(tg,2)}, {vr(par_+2,2)} op_sel_hi:[1,0]'))
                ops.append(lambda tg=tg, tu=tu: e(f'v_pk_mul_f32 {vr(tg,2)}, {vr(tg,2)}, {vr(tu,2)}'))
                ops.append(lambda ar_=ar_: e(f'v_exp_f32 v{ar_}, v{ar_}'))
                ops.append(lambda ar_=ar_: e(f'v_exp_f32 v{ar_+1}, v{ar_+1}'))
                ops.append(lambda ar_=ar_, dd=dd: e(f'v_pk_fma_f32 {vr(dd,2)}, {vr(ar_,2)}, {vr(par_+4,2)}, {vr(par_+4,2)} op_sel_hi:[1,0,0]'))
                ops.append(lambda dd=dd: e(f'v_rcp_f32 v{dd}, v{dd}'))
                ops.append(lambda dd=dd: e(f'v_rcp_f32 v{dd+1}, v{dd+1}'))
                ops.append(lambda tg=tg, dd=dd: e(f'v_pk_mul_f32 {vr(tg,2)}, {vr(tg,2)}, {vr(dd,2)}'))
                ops.append(lambda tg=tg, p=p: e(f'v_cvt_pk_bf16_f32 v{pk+p}, v{tg}, v{tg+1}'))
                if p in (3, 7):
                    kk = p >> 2
                    ops.append(lambda kk=kk: self.vmem(f'buffer_store_dwordx4 {vr(pk+4*kk,4)}, v{vA}, s[{R_WS}:{R_WS+3}], s{S_T4} offen offset:{1024*kk} sc1', 'act'))
            return ops
        for g in range(4):
            self.c(f'---- pass {g}')
            self.wait_vm(f'h{g}')
            self.wait_all_lg()
            e('s_barrier')
            if g == 0: self.stamp(17)
            lab = self.lab('hd')
            e(f's_cmp_lg_u32 s{S_W}, {g}\ns_cbranch_scc1 {lab}')
            for kk in range(2):
                for h_ in range(2):
                    b_, off = addr(vH, vH2, g*HG + kk*1024 + 512*h_)
                    e(f'ds_read_b64_tr_b16 {vr(tmp+4*kk+2*h_,2)}, v{b_} offset:{off}')
            e(f's_mov_b32 s{S_T0}, {g*28*1024}')
            e('s_waitcnt lgkmcnt(0)')
            for kk in range(2): e(f'buffer_store_dwordx4 {vr(tmp+4*kk,4)}, v{vHs}, s[{R_WS}:{R_WS+3}], s{S_T0} offen offset:{1024*kk} sc1')
            e('s_nop 1')
            self.label(lab)
            for k in range(4): rdB(g, k)
            A_ = acc[g & 1]
            main = []
            for k in range(28):
                def mg(k=k):
                    self.wait_lg(f'B{g}_{k}')
                    cin = '0' if k == 0 else vr(A_, 16)
                    e(f'v_mfma_f32_32x32x16_bf16 {vr(A_,16)}, {ar(8*k,4)}, {vr(B+4*(k%NB),4)}, {cin}')
                def mu(k=k):
                    cin = '0' if k == 0 else vr(A_ + 16, 16)
                    e(f'v_mfma_f32_32x32x16_bf16 {vr(A_+16,16)}, {ar(8*k+4,4)}, {vr(B+4*(k%NB),4)}, {cin}')
                    if k + 4 < 28: rdB(g, k + 4)
                main += [mg, mu]
            fill = []
            if g > 0:
                fill.append(lambda g=g: e(f's_mov_b32 s{S_T4}, {(g-1)*112*1024}'))
                fill += epilogue_ops(g - 1)
            sf = []
            def z():
                for i in range(8): e(f'v_mov_b32 v{sacc+i}, 0')
            sf.append(z)
            for i in range(7):
                sb = SB + 4 * (i & 1)
                def rs(i=i, sb=sb):
                    for h_ in range(2):
                        b_, off = addr(vS, vS2, g*HG + i*4096 + 512*h_)
                        self.ds(f'ds_read_b64_tr_b16 {vr(sb+2*h_,2)}, v{b_} offset:{off}', f'S{g}_{i}')
                def dots(i=i, sb=sb, r=0):
                    if r == 0: self.wait_lg(f'S{g}_{i}')
                    e(f'v_dot2_f32_bf16 v{sacc+r}, v{sb+r}, s{S_T3}, v{sacc+r}')
                    e(f'v_dot2_f32_bf16 v{sacc+4+r}, v{sb+r}, v{sb+r}, v{sacc+4+r}')
                if i == 0: sf.append(rs)
                nxt = None
                if i + 1 < 7:
                    sb2 = SB + 4 * ((i + 1) & 1)
                    def rs2(i=i + 1, sb=sb2):
                        for h_ in range(2):
                            b_, off = addr(vS, vS2, g*HG + i*4096 + 512*h_)
                            self.ds(f'ds_read_b64_tr_b16 {vr(sb+2*h_,2)}, v{b_} offset:{off}', f'S{g}_{i}')
                    sf.append(rs2)
                for r in range(4): sf.append(lambda i=i, sb=sb, r=r: dots(i, sb, r))
            def red():
                e(f'v_add_f32 v{sacc}, v{sacc}, v{sacc+1}\nv_add_f32 v{sacc+2}, v{sacc+2}, v{sacc+3}\nv_add_f32 v{sacc+4}, v{sacc+4}, v{sacc+5}\nv_add_f32 v{sacc+6}, v{sacc+6}, v{sacc+7}')
                e(f'v_add_f32 v{sacc}, v{sacc}, v{sacc+2}\nv_add_f32 v{sacc+1}, v{sacc+4}, v{sacc+6}')
                e(f'v_mov_b32 v{sacc+2}, v{sacc}\nv_mov_b32 v{sacc+3}, v{sacc+1}')
                e(f'v_permlane32_swap_b32 v{sacc}, v{sacc+2}\nv_permlane32_swap_b32 v{sacc+1}, v{sacc+3}')
                e(f'v_pk_add_f32 {vr(sacc,2)}, {vr(sacc,2)}, {vr(sacc+2,2)}')
                self.ds(f'ds_write_b64 v{vPw}, {vr(sacc,2)} offset:{(g&1)*1024}', 'stw')
            sf.append(red)
            merged = []; a_, b_ = list(fill), list(sf)
            while a_ or b_:
                for _ in range(3):
                    if a_: merged.append(a_.pop(0))
                if b_: merged.append(b_.pop(0))
            self.interleave(main[:52], merged, None)
            for m in main[52:]: m()
        self.stamp(18)
        self.wait_all_lg(); e('s_barrier')
        e(f's_mov_b32 s{S_T4}, {3*112*1024}')
        for f in epilogue_ops(3): f()
        self.stamp(19)
        for x, n in ((vD,1),(vB,1),(vS,1),(t,1),(cs,32),(vA,1),(vH,1),(vHs,1),(B,4*NB),(SB,8),(acc[0],32),(acc[1],32),(sacc,8),(st,8),(par,6),(tmp,16),(pk,8),(vP,1),(vPw,1),(self.vB2,1),(vS2,1),(vH2,1)):
            V.free(x, n)
        self.wait_all_vm(); e('s_barrier')
        e(f's_lshl_b32 s{S_T1}, s{S_RB}, 4\ns_add_u32 s{S_T1}, s{S_T1}, s{S_FB}')
        self.signal(WS_FLAG3, f's{S_T1}')
        self.stamp(20)

    def phaseC(self):
        e = self.e; V = self.V; o = self.o
        self.c('================= phase C')
        STG = 40960
        vD = V.alloc(1); t = V.alloc(1); t2 = V.alloc(1); vT = V.alloc(2)
        e(f'v_lshrrev_b32 v{t}, 3, v1\nv_mul_u32_u24 v{vD}, 896, v{t}\nv_bfe_u32 v{t}, v1, 4, 1\nv_lshlrev_b32 v{t}, 2, v{t}\nv_and_b32 v{t2}, 7, v1\nv_xor_b32 v{t}, v{t}, v{t2}\nv_lshl_add_u32 v{vD}, v{t}, 4, v{vD}')
        e(f's_lshl_b32 s{S_T0}, s{S_DB}, 7\ns_mul_i32 s{S_T1}, s{S_W}, {448*896}\ns_add_u32 s{S_T0}, s{S_T0}, s{S_T1}\nv_add_u32 v{vD}, s{S_T0}, v{vD}')
        e(f'v_lshrrev_b32 v{t}, 5, v1\nv_lshlrev_b32 v{vT}, 9, v{t}\nv_bfe_u32 v{t}, v1, 2, 2\nv_lshl_add_u32 v{vT}, v{t}, 7, v{vT}')
        e(f'v_bfe_u32 v{t}, v1, 4, 1\nv_lshl_add_u32 v{vT}, v{t}, 5, v{vT}\nv_and_b32 v{t}, 3, v1\nv_lshl_add_u32 v{vT}, v{t}, 3, v{vT}')
        e(f's_mul_i32 s{S_T2}, s{S_W}, {STG}\nv_add_u32 v{vT}, s{S_T2}, v{vT}')
        e(f'v_bfe_u32 v{t}, v1, 3, 1\nv_lshlrev_b32 v{t}, 6, v{t}')
        e(f'v_xor_b32 v{t2}, 64, v{t}\nv_add_u32 v{vT+1}, v{vT}, v{t2}\nv_add_u32 v{vT}, v{vT}, v{t}')
        def wd_issue(k0, k1):
            for k in range(k0, k1):
                for hh in range(2):
                    e(f's_mov_b32 s{S_T1}, {(16*k + 8*hh)*896}\ns_add_u32 m0, s{S_T2}, {(k-k0)*2048 + hh*1024}')
                    self.vmem(f'buffer_load_dwordx4 v{vD}, s[{R_WD}:{R_WD+3}], s{S_T1} offen lds', f'wd{k0}')
        def wd_fetch(k0, k1):
            self.wait_vm(f'wd{k0}')
            for k in range(k0, k1):
                for mt in range(2):
                    self.ds(f'ds_read_b64_tr_b16 {ar(8*k+4*mt,2)}, v{vT+mt} offset:{(k-k0)*2048}', 'wdr')
                    self.ds(f'ds_read_b64_tr_b16 {ar(8*k+4*mt+2,2)}, v{vT+mt} offset:{(k-k0)*2048 + 1024}', 'wdr')
            self.wait_all_lg()
        wd_issue(0, 20); wd_fetch(0, 20); wd_issue(20, 28); wd_fetch(20, 28)
        self.stamp(21)
        e(f's_lshr_b32 s{S_T0}, s{S_RB2}, 1\ns_mul_i32 s{S_T0}, s{S_T0}, {16*FLAG_STRIDE}')
        self.poll_flags(WS_FLAG3, 14, 1, sbase=S_T0)
        self.vm.drain(); self.lg.drain()
        self.stamp(22)
        vA = V.alloc(1)
        e(f's_mul_i32 s{S_T0}, s{S_RB2}, {2*112}\ns_mul_i32 s{S_T1}, s{S_W}, 28\ns_add_u32 s{S_T0}, s{S_T0}, s{S_T1}\ns_lshl_b32 s{S_T0}, s{S_T0}, 10\ns_add_u32 s{S_T0}, s{S_T0}, {WS_ACT}\nv_lshl_add_u32 v{vA}, v1, 4, s{S_T0}')
        NR = 16
        Bf = V.alloc(8 * NR, 4); acc = V.alloc(64, 4)
        def ld(k):
            for nt in range(2):
                e(f's_mov_b32 s{S_T1}, {(nt*112 + k)*1024}')
                self.vmem(f'buffer_load_dwordx4 {vr(Bf+8*(k%NR)+4*nt,4)}, v{vA}, s[{R_WS}:{R_WS+3}], s{S_T1} offen sc1', f'a{k}')
        for k in range(NR): ld(k)
        hres = V.alloc(8, 4); vR = V.alloc(1)
        e(f's_lshl_b32 s{S_T0}, s{S_RB2}, 1\ns_and_b32 s{S_T1}, s{S_W}, 1\ns_add_u32 s{S_T0}, s{S_T0}, s{S_T1}\ns_mul_i32 s{S_T0}, s{S_T0}, 28')
        e(f's_lshl_b32 s{S_T1}, s{S_DB}, 2\ns_add_u32 s{S_T0}, s{S_T0}, s{S_T1}\ns_and_b32 s{S_T1}, s{S_W}, 2\ns_add_u32 s{S_T0}, s{S_T0}, s{S_T1}\ns_lshl_b32 s{S_T0}, s{S_T0}, 10\ns_add_u32 s{S_T0}, s{S_T0}, {WS_HD}\nv_lshl_add_u32 v{vR}, v1, 4, s{S_T0}')
        A = lambda mt, nt: acc + 16 * (2 * mt + nt)
        for k in range(28):
            self.wait_vm(f'a{k}')
            for mt in range(2):
                for nt in range(2):
                    cin = '0' if k == 0 else vr(A(mt, nt), 16)
                    e(f'v_mfma_f32_32x32x16_bf16 {vr(A(mt,nt),16)}, {ar(8*k+4*mt,4)}, {vr(Bf+8*(k%NR)+4*nt,4)}, {cin}')
            if k + NR < 28: ld(k + NR)
            if k == 12:
                for kk in range(2): self.vmem(f'buffer_load_dwordx4 {vr(hres+4*kk,4)}, v{vR}, s[{R_WS}:{R_WS+3}], 0 offen offset:{1024*kk} sc1', 'hres')
        self.stamp(23)
        V.free(Bf, 8 * NR)
        ra = V.alloc(1); keep = V.alloc(16, 4); rr = V.alloc(48, 4)
        e(f's_lshl_b32 s{S_T0}, s{S_W}, 12\nv_lshl_add_u32 v{ra}, v1, 4, s{S_T0}')
        labs = [self.lab(f'r{w}') for w in range(4)]; ld_ = self.lab('rd')
        for w in range(1, 4): e(f's_cmp_eq_u32 s{S_W}, {w}\ns_cbranch_scc1 {labs[w]}')
        for w in range(4):
            if w: self.label(labs[w]); e('s_nop 7\ns_nop 3')
            for T in range(4):
                if T == w: continue
                for q in range(4): e(f'ds_write_b128 v{ra}, {vr(acc+16*T+4*q,4)} offset:{T*16384 + q*1024}')
            for i in range(16): e(f'v_mov_b32 v{keep+i}, v{acc+16*w+i}')
            if w < 3: e(f's_branch {ld_}')
        self.label(ld_)
        e('s_waitcnt lgkmcnt(0)'); self.lg.drain()
        e('s_barrier')
        e(f's_lshl_b32 s{S_T0}, s{S_W}, 14\nv_lshl_add_u32 v{ra}, v1, 4, s{S_T0}')
        for j in range(1, 4):
            e(f's_add_u32 s{S_T1}, s{S_W}, {j}\ns_and_b32 s{S_T1}, s{S_T1}, 3\ns_lshl_b32 s{S_T1}, s{S_T1}, 12\nv_add_u32 v{t}, s{S_T1}, v{ra}')
            for q in range(4): self.ds(f'ds_read_b128 {vr(rr+16*(j-1)+4*q,4)}, v{t} offset:{q*1024}', f'rr{j}')
        vO = V.alloc(1)
        e(f'v_and_b32 v{t}, 31, v1\nv_mul_u32_u24 v{vO}, 896, v{t}\nv_lshrrev_b32 v{t}, 5, v1\nv_lshl_add_u32 v{vO}, v{t}, 4, v{vO}')
        e(f's_lshl_b32 s{S_T0}, s{S_RB2}, 1\ns_and_b32 s{S_T1}, s{S_W}, 1\ns_add_u32 s{S_T0}, s{S_T0}, s{S_T1}\ns_mul_i32 s{S_T0}, s{S_T0}, {32*896}')
        e(f's_lshl_b32 s{S_T1}, s{S_DB}, 7\ns_add_u32 s{S_T0}, s{S_T0}, s{S_T1}\ns_and_b32 s{S_T1}, s{S_W}, 2\ns_lshl_b32 s{S_T1}, s{S_T1}, 5\ns_add_u32 s{S_T0}, s{S_T0}, s{S_T1}\nv_add_u32 v{vO}, s{S_T0}, v{vO}')
        for j in range(1, 4):
            self.wait_lg(f'rr{j}')
            for i in range(0, 16, 2): e(f'v_pk_add_f32 {vr(keep+i,2)}, {vr(keep+i,2)}, {vr(rr+16*(j-1)+i,2)}')
        self.wait_vm('hres')
        P = V.alloc(8, 4); w8 = rr
        for d in range(8): e(f'v_cvt_pk_bf16_f32 v{P+d}, v{keep+2*d}, v{keep+2*d+1}')
        for d in range(8):
            e(f'v_lshlrev_b32 v{w8+2*d}, 16, v{P+d}\nv_and_b32 v{w8+2*d+1}, 0xffff0000, v{P+d}')
            e(f'v_lshlrev_b32 v{w8+16+2*d}, 16, v{hres+d}\nv_and_b32 v{w8+16+2*d+1}, 0xffff0000, v{hres+d}')
        for d in range(8): e(f'v_pk_add_f32 {vr(w8+2*d,2)}, {vr(w8+2*d,2)}, {vr(w8+16+2*d,2)}')
        for d in range(8): e(f'v_cvt_pk_bf16_f32 v{P+d}, v{w8+2*d}, v{w8+2*d+1}')
        for kk in range(2):
            b = P + 4 * kk
            e(f'v_permlane32_swap_b32 v{b}, v{b+2}\nv_permlane32_swap_b32 v{b+1}, v{b+3}')
        for kk in range(2):
            self.vmem(f'buffer_store_dwordx4 {vr(P+4*kk,4)}, v{vO}, s[{R_OUT}:{R_OUT+3}], 0 offen offset:{32*kk} {o.get("outflags", "")}', 'out')
        self.stamp(24)

    def build(self):
        e = self.e
        self.prologue()
        e(f's_cmp_ge_u32 s{S_J}, 28\ns_cbranch_scc0 L_worker')
        saveV = list(self.V.used)
        self.helper()
        self.V.used = saveV; self.vm.drain(); self.lg.drain()
        self.label('L_worker')
        self.phaseA()
        upto = self.o.get('upto', 'C')
        if upto in ('B', 'C'): self.phaseB()
        if upto == 'C': self.phaseC()
        if self.o.get('padto'):
            e('s_waitcnt vmcnt(0)')
            self.label('L_pad')
            e(f's_memrealtime s[{S_TS}:{S_TS+1}]\ns_waitcnt lgkmcnt(0)\ns_sub_u32 s{S_TS}, s{S_TS}, s{S_TS+6}\ns_cmp_lt_u32 s{S_TS}, {self.o.get("padto")}\ns_cbranch_scc1 L_pad')
        self.label('L_end')
        e('s_endpgm')

HEADER = open(os.path.join(os.path.dirname(os.path.abspath(__file__)), 'header.txt')).read() if os.path.exists(os.path.join(os.path.dirname(os.path.abspath(__file__)), 'header.txt')) else ''

def generate(opt):
    g = Gen(opt)
    g.build()
    lines, problems = fix_hazards(g.lines, verbose=opt.get('verbose', False))
    for p in problems: print('BACKEDGE HAZARD:', p, file=sys.stderr)
    out = [HEADER.rstrip('\n').replace('@@GRID@@', f'; @launch grid=(256,1,1) block=(256,1,1) lds={LDS_SIZE}')]
    out += ['.amdgcn_target "amdgcn-amd-amdhsa--gfx950"', '.text', f'.globl {NAME}', '.p2align 8', f'.type {NAME},@function', f'{NAME}:']
    for l in lines:
        out.append(l if l.endswith(':') else '    ' + l)
    out += ['.section .rodata,"a"', '.p2align 6', f'.amdhsa_kernel {NAME}',
            '  .amdhsa_next_free_vgpr 512', '  .amdhsa_next_free_sgpr 102', '  .amdhsa_accum_offset 256',
            '  .amdhsa_group_segment_fixed_size 0', '  .amdhsa_kernarg_size 128', '  .amdhsa_user_sgpr_count 2',
            '  .amdhsa_user_sgpr_kernarg_segment_ptr 1', '  .amdhsa_system_sgpr_workgroup_id_x 1',
            '  .amdhsa_float_denorm_mode_32 3', '.end_amdhsa_kernel', '']
    if opt.get('verbose'): print('max arch vgpr', g.V.hi, 'lines', len(lines))
    return '\n'.join(out)

if __name__ == '__main__':
    import json
    opt = json.loads(sys.argv[2]) if len(sys.argv) > 2 else {}
    opt['verbose'] = True
    txt = generate(opt)
    open(sys.argv[1], 'w').write(txt)
```

```python
import sys, os, math, struct
sys.path.insert(0, os.path.dirname(os.path.abspath(__file__)))
from asmlib import *

NAME = 'sequential_preLN__ssm_conv_s4__swiglu_ffn__prompt_kernel'
def f2u(x): return struct.unpack('<I', struct.pack('<f', x))[0]
def fx(x): return hex(f2u(x))
LOG2E = 1.4426950408889634
WS_STATS = 0x0
WS_FLAG2 = 0x4000
WS_FLAG3 = 0xC000
WS_STATS2 = 0x10000
WS_HT    = 0x20000
HT_STRIDE = 4352
WS_HD    = 0x200000
WS_ACT   = 0x400000
WS_XT    = 0xB00000
XT_STRIDE = 4352
WS_DBG   = 0xE00000
WS_SIZE  = 0x2000000
FLAG_STRIDE = 16
TBL_E = 1088; TBL_C = 18 * TBL_E
L_TBL = 0
L_EX = 2 * TBL_C
L_K32 = 55680; K32_C = 9344
L_RED = L_K32
L_STG = 87040; STG_SLOT = 8192
L_STGX = 74496
L_KC = 0; KC_S = 4160; KC_C = 4 * KC_S
L_U = 2 * KC_C; U_C = 5120
L_X = L_U + 2 * U_C; X_C = 4096
LDS_SIZE = 163840
HX_STRIDE = 912
S_X, S_ARE, S_AIM, S_BRE, S_BIM, S_CRE, S_CIM, S_LDT, S_DSK, S_BX, S_WG, S_WU, S_WD, S_OUT, S_DBG, S_WS = range(4, 36, 2)
R_X, R_WS, R_DBG, R_WG, R_WU, R_WD, R_OUT = 36, 40, 44, 48, 52, 56, 60
S_W, S_NONCE, S_XCD, S_J, S_CP, S_T0, S_T1, S_T2, S_T3, S_T4, S_T5 = 64, 65, 66, 67, 68, 69, 70, 71, 72, 73, 74
S_LD, S_DK = 75, 76
S_RB, S_FB, S_RB2, S_DB = 77, 78, 79, 80
S_M0, S_M1, S_M2, S_M3 = 82, 84, 86, 88
S_CNT = 90
S_HID = 91
S_WM, S_WO, S_US = 81, 100, 101
S_ROT = 99
S_WA, S_WB, S_WC = 18, 19, 20
S_RW0, S_RA0 = 24, 28
S_Q0 = 14
S_TS = 92
SPIN_MAX = 200000

class Gen(Asm):
    def __init__(self, opt):
        super().__init__()
        self.o = opt
        self.V = Regs('v', 256, start=2)
        self.uid = 0
    def lab(self, s):
        self.uid += 1
        return f'L{s}_{self.uid}'
    def srd(self, r, ptr, size):
        self.e(f's_mov_b32 s{r}, s{ptr}\ns_mov_b32 s{r+1}, s{ptr+1}\ns_mov_b32 s{r+2}, {hex(size)}\ns_mov_b32 s{r+3}, 0x20000')
    def cmul(self, d, a, b, t=None):
        t = d if t is None else t
        self.e(f'v_pk_mul_f32 {vr(t,2)}, {vr(a,2)}, {vr(b,2)} op_sel:[0,0] op_sel_hi:[0,1]')
        self.e(f'v_pk_fma_f32 {vr(d,2)}, {vr(a,2)}, {vr(b,2)}, {vr(t,2)} op_sel:[1,1,0] op_sel_hi:[1,0,1] neg_lo:[0,1,0]')
    def cmul_multi(self, items):
        for d, a, b, t in items:
            t = d if t is None else t
            self.e(f'v_pk_mul_f32 {vr(t,2)}, {vr(a,2)}, {vr(b,2)} op_sel:[0,0] op_sel_hi:[0,1]')
        for d, a, b, t in items:
            t = d if t is None else t
            self.e(f'v_pk_fma_f32 {vr(d,2)}, {vr(a,2)}, {vr(b,2)}, {vr(t,2)} op_sel:[1,1,0] op_sel_hi:[1,0,1] neg_lo:[0,1,0]')
    def stamp(self, i):
        dm = self.o.get('dbgmap')
        if dm and i in dm:
            lab = self.lab('ds')
            self.e(f's_cmp_lg_u32 s2, {self.o.get("dbgwg", 8)}\ns_cbranch_scc1 {lab}\ns_cmp_lg_u32 s{S_W}, 0\ns_cbranch_scc1 {lab}')
            self.e(f's_memrealtime s[{S_TS}:{S_TS+1}]\ns_waitcnt lgkmcnt(0)')
            v = self.V.alloc(2)
            self.e(f's_sub_u32 s{S_TS}, s{S_TS}, s{S_TS+6}\nv_mov_b32 v{v}, s{S_TS}\nv_mov_b32 v{v+1}, {4*(1+dm.index(i))}')
            self.e(f's_mov_b64 s[{S_TS+4}:{S_TS+5}], exec\ns_mov_b64 exec, 1')
            self.e(f'buffer_store_dword v{v}, v{v+1}, s[{R_DBG}:{R_DBG+3}], 0 offen')
            self.e(f's_mov_b64 exec, s[{S_TS+4}:{S_TS+5}]')
            self.V.free(v, 2)
            self.label(lab)
            self.e('s_waitcnt lgkmcnt(0)')
            self.lg.drain()
        if self.o.get('stamps'):
            self.e(f's_memrealtime s[{S_TS}:{S_TS+1}]\ns_memtime s[{S_TS+4}:{S_TS+5}]')
            self.e('s_waitcnt lgkmcnt(0)'); self.lg.drain()
            v = self.V.alloc(3)
            self.e(f'v_mov_b32 v{v}, s{S_TS}\nv_mov_b32 v{v+2}, s{S_TS+4}')
            self.e(f's_lshl_b32 s{S_TS+2}, s2, 10\ns_lshl_b32 s{S_TS+3}, s{S_W}, 8\ns_add_u32 s{S_TS+2}, s{S_TS+2}, s{S_TS+3}\ns_add_u32 s{S_TS+2}, s{S_TS+2}, {WS_DBG + 4*i}')
            self.e(f'v_mov_b32 v{v+1}, s{S_TS+2}')
            self.e(f's_mov_b64 s[{S_TS+4}:{S_TS+5}], exec\ns_mov_b64 exec, 1')
            self.vmem(f'buffer_store_dword v{v}, v{v+1}, s[{R_WS}:{R_WS+3}], 0 offen', 'stamp')
            self.vmem(f'buffer_store_dword v{v+2}, v{v+1}, s[{R_WS}:{R_WS+3}], 0 offen offset:128', 'stamp')
            self.e(f's_mov_b64 exec, s[{S_TS+4}:{S_TS+5}]')
            self.V.free(v, 3)

    def prologue(self):
        e = self.e
        e(f's_cmp_ge_u32 s2, 256\ns_cbranch_scc1 L_end')
        e(f's_load_dwordx16 s[4:19], s[0:1], 0\ns_load_dwordx16 s[20:35], s[0:1], 64')
        e(f's_memrealtime s[{S_M0}:{S_M0+1}]')
        e('v_and_b32 v1, 63, v0')
        v = self.V.alloc(1)
        e(f'v_lshrrev_b32 v{v}, 6, v0')
        e(f's_and_b32 s{S_XCD}, s2, 7\ns_lshr_b32 s{S_J}, s2, 3')
        e(f'v_readfirstlane_b32 s{S_W}, v{v}')
        self.V.free(v)
        e('s_waitcnt lgkmcnt(0)')
        self.srd(R_X, S_X, 2048 * 448 * 2)
        self.srd(R_WS, S_WS, WS_SIZE)
        self.srd(R_DBG, S_DBG, 256)
        self.srd(R_WG, S_WG, 448 * 1792 * 2)
        self.srd(R_WU, S_WU, 448 * 1792 * 2)
        self.srd(R_WD, S_WD, 448 * 1792 * 2)
        self.srd(R_OUT, S_OUT, 2048 * 448 * 2)
        e(f's_or_b32 s{S_NONCE}, s{S_M0}, 1\ns_mov_b32 s{S_TS+6}, s{S_M0}')
        lab = self.lab('non')
        e(f's_or_b32 s{S_T0}, s2, s{S_W}\ns_cmp_lg_u32 s{S_T0}, 0\ns_cbranch_scc1 {lab}')
        v = self.V.alloc(2)
        e(f'v_mov_b32 v{v}, s{S_NONCE}\nv_mov_b32 v{v+1}, 0')
        e(f's_mov_b64 s[{S_M1}:{S_M1+1}], exec\ns_mov_b64 exec, 1')
        e(f'buffer_store_dword v{v}, v{v+1}, s[{R_DBG}:{R_DBG+3}], 0 offen sc1')
        e(f's_mov_b64 exec, s[{S_M1}:{S_M1+1}]')
        self.V.free(v, 2)
        self.label(lab)
        self.stamp(0)
        self.vm.drain()

    def get_nonce(self):
        e = self.e
        v = self.V.alloc(2)
        l0 = self.lab('gn'); l1 = self.lab('gnd')
        e(f'v_mov_b32 v{v+1}, 0\ns_mov_b32 s{S_CNT}, 0')
        self.label(l0)
        e(f'buffer_load_dword v{v}, v{v+1}, s[{R_DBG}:{R_DBG+3}], 0 offen sc1')
        e('s_waitcnt vmcnt(0)'); self.vm.drain()
        e(f'v_readfirstlane_b32 s{S_NONCE}, v{v}')
        e(f's_cmp_lg_u32 s{S_NONCE}, 0\ns_cbranch_scc1 {l1}')
        e(f's_add_u32 s{S_CNT}, s{S_CNT}, 1\ns_cmp_lt_u32 s{S_CNT}, {SPIN_MAX}\ns_cbranch_scc1 {l0}')
        self.label(l1)
        self.V.free(v, 2)

    def helper(self):
        e = self.e; V = self.V
        self.c('================= helper: x^T + LN1 stats')
        e(f's_sub_u32 s{S_HID}, s{S_J}, 28\ns_lshl_b32 s{S_T0}, s{S_XCD}, 2\ns_add_u32 s{S_HID}, s{S_HID}, s{S_T0}')
        va = V.alloc(1); t0 = V.alloc(1); t1 = V.alloc(1)
        e(f's_lshl_b32 s{S_T0}, s{S_HID}, 6\ns_lshl_b32 s{S_T1}, s{S_W}, 4\ns_add_u32 s{S_T0}, s{S_T0}, s{S_T1}')
        e(f's_mul_i32 s{S_T2}, s{S_T0}, 896\ns_mul_i32 s{S_T3}, s{S_T1}, {HX_STRIDE}')
        e(f'v_lshlrev_b32 v{va}, 4, v1')
        e(f's_mov_b64 s[{S_M1}:{S_M1+1}], exec\ns_mov_b32 exec_lo, -1\ns_mov_b32 exec_hi, 0x00ffffff')
        for r in range(16):
            e(f's_add_u32 m0, s{S_T3}, {r*HX_STRIDE}\ns_add_u32 s{S_T4}, s{S_T2}, {r*896}')
            self.vmem(f'buffer_load_dwordx4 v{va}, s[{R_X}:{R_X+3}], s{S_T4} offen lds', 'x')
        e(f's_mov_b64 exec, s[{S_M1}:{S_M1+1}]')
        vT = V.alloc(1); vO = V.alloc(1); vA = V.alloc(1)
        e(f'v_lshrrev_b32 v{t0}, 4, v1\nv_lshlrev_b32 v{t0}, 1, v{t0}\nv_bfe_u32 v{t1}, v1, 1, 1\nv_add_u32 v{t0}, v{t0}, v{t1}\nv_lshlrev_b32 v{t0}, 3, v{t0}')
        e(f'v_bfe_u32 v{t1}, v1, 2, 2\nv_add_u32 v{t0}, v{t0}, v{t1}\nv_mul_u32_u24 v{vT}, {HX_STRIDE}, v{t0}')
        e(f'v_and_b32 v{t1}, 1, v1\nv_lshl_add_u32 v{vT}, v{t1}, 3, v{vT}\ns_lshl_b32 s{S_T0}, s{S_W}, 4\nv_add_u32 v{vT}, s{S_T0}, v{vT}')
        e(f's_lshl_b32 s{S_T0}, s{S_W}, 15\ns_lshl_b32 s{S_T1}, s{S_HID}, 10\ns_add_u32 s{S_T0}, s{S_T0}, s{S_T1}\ns_add_u32 s{S_T0}, s{S_T0}, {WS_XT}\nv_lshl_add_u32 v{vO}, v1, 4, s{S_T0}')
        e(f'v_and_b32 v{t0}, 15, v1\nv_lshrrev_b32 v{t1}, 4, v1')
        e(f's_lshl_b32 s{S_T0}, s{S_W}, 4\nv_add_u32 v{t0}, s{S_T0}, v{t0}\nv_mul_u32_u24 v{vA}, {HX_STRIDE}, v{t0}\nv_lshl_add_u32 v{vA}, v{t1}, 4, v{vA}')
        e(f's_lshl_b32 s{S_T0}, s{S_HID}, 6\nv_add_u32 v{t0}, s{S_T0}, v{t0}')
        self.get_nonce()
        e('s_barrier')
        self.stamp(3)
        Q = V.alloc(56, 4)
        for u in range(14):
            for k_ in range(2):
                self.ds(f'ds_read_b64_tr_b16 {vr(Q+4*u+2*k_,2)}, v{vT} offset:{64*u + 4*k_*HX_STRIDE}', f'q{u}')
        for u in range(14):
            self.wait_lg(f'q{u}')
            e(f's_mov_b32 s{S_T1}, {u*4*32768}')
            self.vmem(f'buffer_store_dwordx4 {vr(Q+4*u,4)}, v{vO}, s[{R_WS}:{R_WS+3}], s{S_T1} offen sc1', 'xt')
        self.stamp(4)
        xa = V.alloc(56, 4)
        for s in range(14): self.ds(f'ds_read_b128 {vr(xa+4*s,4)}, v{vA} offset:{64*s}', f'x{s}')
        acc = V.alloc(8, 2)
        e(f's_mov_b32 s{S_T2}, 0x3f803f80')
        for i in range(8): e(f'v_mov_b32 v{acc+i}, 0')
        for s in range(14):
            self.wait_lg(f'x{s}')
            for r in range(4):
                e(f'v_dot2_f32_bf16 v{acc+r}, v{xa+4*s+r}, s{S_T2}, v{acc+r}')
                e(f'v_dot2_f32_bf16 v{acc+4+r}, v{xa+4*s+r}, v{xa+4*s+r}, v{acc+4+r}')
        e(f'v_add_f32 v{acc}, v{acc}, v{acc+1}\nv_add_f32 v{acc+2}, v{acc+2}, v{acc+3}\nv_add_f32 v{acc+4}, v{acc+4}, v{acc+5}\nv_add_f32 v{acc+6}, v{acc+6}, v{acc+7}')
        e(f'v_add_f32 v{acc}, v{acc}, v{acc+2}\nv_add_f32 v{acc+4}, v{acc+4}, v{acc+6}')
        S = acc; Qs = acc + 4
        for swap in ('v_permlane32_swap_b32', 'v_permlane16_swap_b32'):
            e(f'v_mov_b32 v{acc+1}, v{S}\nv_mov_b32 v{acc+5}, v{Qs}')
            e(f'{swap} v{S}, v{acc+1}\n{swap} v{Qs}, v{acc+5}')
            e(f'v_add_f32 v{S}, v{S}, v{acc+1}\nv_add_f32 v{Qs}, v{Qs}, v{acc+5}')
        pk = V.alloc(2, 2)
        self.ln_finalize(S, Qs, acc + 1, acc + 2, acc + 3)
        e(f'v_lshrrev_b32 v{pk}, 16, v{acc+1}\nv_or_b32 v{pk}, v{pk}, v{acc+2}')
        self.stamp(5)
        self.wait_all_vm()
        e('s_barrier')
        self.stamp(6)
        e(f'v_mov_b32 v{pk+1}, s{S_NONCE}')
        e(f'v_lshlrev_b32 v{t0}, 3, v{t0}')
        if WS_STATS: e(f'v_add_u32 v{t0}, {WS_STATS}, v{t0}')
        e(f's_mov_b64 s[{S_M1}:{S_M1+1}], exec\ns_mov_b64 exec, 0xffff')
        self.vmem(f'buffer_store_dwordx2 {vr(pk,2)}, v{t0}, s[{R_WS}:{R_WS+3}], 0 offen sc1', 'st')
        e(f's_mov_b64 exec, s[{S_M1}:{S_M1+1}]')
        self.stamp(1)
        V.free(pk, 2); V.free(acc, 8); V.free(xa, 56); V.free(Q, 56); V.free(vT); V.free(vO); V.free(vA)
        e('s_barrier')
        if self.o.get('touch_wd', True):
            tv = V.alloc(52, 4)
            e(f's_mul_i32 s{S_T0}, s{S_HID}, 50176\nv_lshlrev_b32 v{t0}, 4, v0\nv_add_u32 v{t0}, s{S_T0}, v{t0}')
            for k in range(13):
                e(f's_mov_b32 s{S_T1}, {k*4096}')
                e(f'buffer_load_dwordx4 {vr(tv+4*k,4)}, v{t0}, s[{R_WD}:{R_WD+3}], s{S_T1} offen')
            self.wait_all_vm()
            V.free(tv, 52)
        self.c('helper: LN2 stats + hD')
        vD = V.alloc(1); vB = V.alloc(2); vS = V.alloc(1); vHs = V.alloc(1)
        e(f'v_lshrrev_b32 v{t0}, 3, v1\nv_mul_u32_u24 v{vD}, {HT_STRIDE}, v{t0}\nv_bfe_u32 v{t0}, v1, 4, 1\nv_lshlrev_b32 v{t0}, 2, v{t0}\nv_and_b32 v{t1}, 7, v1\nv_xor_b32 v{t0}, v{t0}, v{t1}\nv_lshl_add_u32 v{vD}, v{t0}, 4, v{vD}')
        e(f's_lshl_b32 s{S_T0}, s{S_HID}, 7\ns_mul_i32 s{S_T1}, s{S_W}, {8*HT_STRIDE}\ns_add_u32 s{S_T0}, s{S_T0}, s{S_T1}\ns_add_u32 s{S_T0}, s{S_T0}, {WS_HT}\nv_add_u32 v{vD}, s{S_T0}, v{vD}')
        e(f'v_lshrrev_b32 v{t0}, 5, v1\nv_lshlrev_b32 v{vB}, 9, v{t0}\nv_bfe_u32 v{t0}, v1, 2, 2\nv_lshl_add_u32 v{vB}, v{t0}, 7, v{vB}')
        e(f'v_bfe_u32 v{t0}, v1, 4, 1\nv_lshl_add_u32 v{vB}, v{t0}, 5, v{vB}\nv_and_b32 v{t0}, 3, v1\nv_lshl_add_u32 v{vB}, v{t0}, 3, v{vB}')
        e(f'v_bfe_u32 v{t0}, v1, 3, 1\nv_lshlrev_b32 v{t0}, 6, v{t0}\nv_xor_b32 v{t1}, 64, v{t0}\nv_add_u32 v{vB+1}, v{vB}, v{t1}\nv_add_u32 v{vB}, v{vB}, v{t0}')
        e(f'v_lshrrev_b32 v{t0}, 4, v1\nv_lshlrev_b32 v{vS}, 9, v{t0}\nv_bfe_u32 v{t0}, v1, 2, 2\nv_lshl_add_u32 v{vS}, v{t0}, 7, v{vS}\nv_and_b32 v{t0}, 3, v1\nv_lshl_add_u32 v{vS}, v{t0}, 3, v{vS}')
        e(f'v_bfe_u32 v{t0}, v1, 3, 1\ns_lshr_b32 s{S_T0}, s{S_W}, 1\nv_xor_b32 v{t0}, s{S_T0}, v{t0}\nv_lshl_add_u32 v{vS}, v{t0}, 6, v{vS}\ns_and_b32 s{S_T0}, s{S_W}, 1\ns_lshl_b32 s{S_T0}, s{S_T0}, 5\nv_add_u32 v{vS}, s{S_T0}, v{vS}')
        e(f's_mul_i32 s{S_T0}, s{S_HID}, {2*28}\ns_add_u32 s{S_T0}, s{S_T0}, s{S_W}\ns_lshl_b32 s{S_T0}, s{S_T0}, 10\ns_add_u32 s{S_T0}, s{S_T0}, {WS_HD}\nv_lshl_add_u32 v{vHs}, v1, 4, s{S_T0}')
        ones = V.alloc(4, 4); SG = V.alloc(8, 4); SB = V.alloc(56, 4)
        for i in range(4): e(f'v_mov_b32 v{ones+i}, 0x3f803f80')
        K1, K2, K3 = 6, 8, 10
        e(f's_mov_b32 s{K1}, 0x22222222\ns_mov_b32 s{K1+1}, 0x22222222\ns_mov_b32 s{K2}, 0x44444444\ns_mov_b32 s{K2+1}, 0x44444444')
        e(f's_mov_b32 s{K3}, 0x88888888\ns_mov_b32 s{K3+1}, 0x88888888\ns_mov_b32 s12, 0x00f0000f\ns_mov_b32 s13, 0xf0000f00')
        self.poll_flags(WS_FLAG2, 64, 4, last_lanes=32)
        self.vm.drain(); self.lg.drain()
        self.stamp(7)
        e(f's_lshl_b32 s{S_T2}, s{S_W}, 10')
        for i in range(14):
            e(f's_add_u32 m0, s{S_T2}, {i*4096}\ns_mov_b32 s{S_T1}, {i*32*HT_STRIDE}')
            self.vmem(f'buffer_load_dwordx4 v{vD}, s[{R_WS}:{R_WS+3}], s{S_T1} offen sc1 lds', 'h')
        self.wait_all_vm(); e('s_barrier')
        self.stamp(8)
        for i in range(14):
            for h_ in range(2): self.ds(f'ds_read_b64_tr_b16 {vr(SB+4*i+2*h_,2)}, v{vS} offset:{i*4096 + 2048*h_}', f's{i}')
        for i in range(14):
            self.wait_lg(f's{i}')
            e(f'v_mfma_f32_16x16x32_bf16 {vr(SG,4)}, {vr(SB+4*i,4)}, {vr(SB+4*i,4)}, {"0" if i == 0 else vr(SG,4)}')
            e(f'v_mfma_f32_16x16x32_bf16 {vr(SG+4,4)}, {vr(ones,4)}, {vr(SB+4*i,4)}, {"0" if i == 0 else vr(SG+4,4)}')
        HB = V.alloc(56, 4)
        e(f'v_cndmask_b32 v{SG}, v{SG}, v{SG+1}, s[{K1}:{K1+1}]\nv_cndmask_b32 v{SG}, v{SG}, v{SG+2}, s[{K2}:{K2+1}]\nv_cndmask_b32 v{SG+5}, v{SG}, v{SG+3}, s[{K3}:{K3+1}]')
        self.ln_finalize(SG + 4, SG + 5, SG + 1, SG + 2, SG + 3)
        e(f'v_lshrrev_b32 v{SG}, 16, v{SG+1}\nv_or_b32 v{SG}, v{SG}, v{SG+2}\nv_mov_b32 v{SG+1}, s{S_NONCE}')
        e(f'v_and_b32 v{t0}, 15, v1\ns_lshl_b32 s{S_T0}, s{S_HID}, 6\ns_lshl_b32 s{S_T1}, s{S_W}, 4\ns_add_u32 s{S_T0}, s{S_T0}, s{S_T1}\nv_add_u32 v{t0}, s{S_T0}, v{t0}\nv_lshlrev_b32 v{t0}, 3, v{t0}\nv_add_u32 v{t0}, {WS_STATS2}, v{t0}')
        e(f's_mov_b64 s[{S_M1}:{S_M1+1}], exec\ns_mov_b64 exec, s[12:13]')
        self.vmem(f'buffer_store_dwordx2 {vr(SG,2)}, v{t0}, s[{R_WS}:{R_WS+3}], 0 offen sc1', 'st2')
        e(f's_mov_b64 exec, s[{S_M1}:{S_M1+1}]')
        self.stamp(9)
        e(f's_lshl_b32 s{S_T0}, s{S_W}, 11\nv_add_u32 v{vB}, s{S_T0}, v{vB}\nv_add_u32 v{vB+1}, s{S_T0}, v{vB+1}')
        for i in range(7):
            for gp in range(2):
                for h_ in range(2):
                    self.ds(f'ds_read_b64_tr_b16 {vr(HB+8*i+4*gp+2*h_,2)}, v{vB+gp} offset:{i*8192 + 1024*h_}', f'hb{i}_{gp}')
        for i in range(7):
            for gp in range(2):
                self.wait_lg(f'hb{i}_{gp}')
                e(f's_mov_b32 s{S_T1}, {(gp*28 + 4*i)*1024}')
                self.vmem(f'buffer_store_dwordx4 {vr(HB+8*i+4*gp,4)}, v{vHs}, s[{R_WS}:{R_WS+3}], s{S_T1} offen sc1', 'hd')
        self.wait_all_vm(); e('s_barrier')
        e(f's_lshr_b32 s{S_T1}, s{S_HID}, 1\ns_lshl_b32 s{S_T1}, s{S_T1}, 4\ns_and_b32 s{S_T2}, s{S_HID}, 1\ns_add_u32 s{S_T1}, s{S_T1}, s{S_T2}\ns_add_u32 s{S_T1}, s{S_T1}, 14')
        self.signal(WS_FLAG3, f's{S_T1}')
        self.stamp(2)
        e('s_branch L_end')

    def signal(self, base, sidx):
        e = self.e; V = self.V
        lab = self.lab('sig')
        e(f's_cmp_lg_u32 s{S_W}, 0\ns_cbranch_scc1 {lab}')
        v = V.alloc(2, 2)
        e(f's_mul_i32 s{S_T0}, {sidx}, {FLAG_STRIDE}\ns_add_u32 s{S_T0}, s{S_T0}, {base}')
        e(f'v_mov_b32 v{v}, s{S_NONCE}\nv_mov_b32 v{v+1}, s{S_T0}')
        e(f's_mov_b64 s[{S_M1}:{S_M1+1}], exec\ns_mov_b64 exec, 1')
        e(f'buffer_store_dword v{v}, v{v+1}, s[{R_WS}:{R_WS+3}], 0 offen sc1')
        e(f's_mov_b64 exec, s[{S_M1}:{S_M1+1}]')
        V.free(v, 2)
        self.label(lab)

    def rbf(self, d, s, pre=''):
        self.e(f'v_cvt_pk_bf16_f32 v{d}, v{s}, v{s}\nv_lshlrev_b32 v{d}, 16, v{d}')
    def ln_finalize(self, S, Q, dm, ds_, dt):
        e = self.e
        e(f'v_mul_f32 v{S}, {fx(1/448)}, v{S}')
        e(f'v_mul_f32 v{Q}, {fx(1/448)}, v{Q}')
        e(f'v_fma_f32 v{Q}, -v{S}, v{S}, v{Q}')
        e(f'v_max_f32 v{Q}, 0, v{Q}')
        self.rbf(dm, S)
        self.rbf(dt, Q)
        e(f'v_add_f32 v{dt}, {fx(1e-5)}, v{dt}')
        self.rbf(dt, dt)
        e(f'v_sqrt_f32 v{dt}, v{dt}')
        self.rbf(ds_, dt)

    def w1_setup(self):
        e = self.e; V = self.V
        self.vW1 = V.alloc(1); self.vTS = V.alloc(4)
        t = V.alloc(1); t2 = V.alloc(1)
        e(f'v_lshrrev_b32 v{t}, 4, v1\nv_mul_u32_u24 v{self.vW1}, 3584, v{t}\nv_lshlrev_b32 v{t}, 2, v{t}\nv_and_b32 v{t2}, 15, v1\nv_xor_b32 v{t}, v{t}, v{t2}\nv_lshl_add_u32 v{self.vW1}, v{t}, 4, v{self.vW1}')
        e(f's_lshl_b32 s{S_T0}, s{S_FB}, 8\ns_mul_i32 s{S_T1}, s{S_W}, {4*3584}\ns_add_u32 s{S_T0}, s{S_T0}, s{S_T1}\nv_add_u32 v{self.vW1}, s{S_T0}, v{self.vW1}')
        e(f's_lshl_b32 s{S_WM}, s{S_W}, 10\ns_add_u32 s{S_WM}, s{S_WM}, {L_STG}')
        a = self.vTS
        e(f'v_lshrrev_b32 v{t}, 5, v1\nv_lshlrev_b32 v{a}, 10, v{t}\nv_bfe_u32 v{t}, v1, 2, 2\nv_lshl_add_u32 v{a}, v{t}, 8, v{a}')
        e(f'v_xor_b32 v{t}, s{S_W}, v{t}\nv_lshl_add_u32 v{a}, v{t}, 6, v{a}')
        e(f'v_bfe_u32 v{t}, v1, 4, 1\nv_lshl_add_u32 v{a}, v{t}, 5, v{a}\nv_and_b32 v{t}, 3, v1\nv_lshl_add_u32 v{a}, v{t}, 3, v{a}')
        e(f'v_add_u32 v{a+1}, {L_STGX}, v{a}\nv_add_u32 v{a+2}, {L_STG + 65536}, v{a}\nv_add_u32 v{a+3}, 57344, v{a}\nv_add_u32 v{a}, {L_STG}, v{a}')
        for q in range(4):
            e(f's_add_u32 s{S_T0}, s{S_ROT}, {q}\ns_and_b32 s{S_T0}, s{S_T0}, 3\ns_mul_i32 s{S_Q0+q}, s{S_T0}, {7*16*3584}')
        V.free(t); V.free(t2)
    W1SLOT = [0,1,2,3, 4,5,6,7,8,9, 0,1,2,3, 4,5,6,7,8,9, 0,1,2,3, 10,11, 4,5]
    def w1_slot_off(self, k):
        s = self.W1SLOT[k]
        return s * STG_SLOT if s < 9 else (L_STGX - L_STG if s == 9 else 57344 + (s - 10)*STG_SLOT - L_STG)
    def w1_dma(self, k, tag, slot=None):
        e = self.e; sl = self.w1_slot_off(k)
        def m0(x): return f's_add_u32 m0, s{S_WM}, {x}' if x >= 0 else f's_sub_u32 m0, s{S_WM}, {-x}'
        return [lambda: e(f's_add_u32 s{S_WO}, s{S_Q0 + k // 7}, {(k % 7)*16*3584}'),
                lambda: e(m0(sl)),
                lambda: self.vmem(f'buffer_load_dwordx4 v{self.vW1}, s[{R_WG}:{R_WG+3}], s{S_WO} offen lds', tag),
                lambda: e(m0(sl + 4096)),
                lambda: self.vmem(f'buffer_load_dwordx4 v{self.vW1}, s[{R_WU}:{R_WU+3}], s{S_WO} offen lds', tag)]
    def w1_issue(self, k0, k1, tag):
        for k in range(k0, k1):
            for f in self.w1_dma(k, tag): f()
    def w1_reads(self, k):
        s = self.W1SLOT[k]
        if s == 9: a, sl = self.vTS + 1, 0
        elif s >= 10: a, sl = self.vTS + 3, (s - 10) * STG_SLOT
        else: a, sl = self.vTS, s * STG_SLOT
        assert sl + 6144 < 65536 + 8192
        out = []
        for q in range(4):
            off = sl + 2048 * q
            aa = a
            if off >= 65536: aa, off = self.vTS + 2, off - 65536
            out.append(lambda q=q, aa=aa, off=off: self.ds(f'ds_read_b64_tr_b16 {ar(8*k+2*q,2)}, v{aa} offset:{off}', 'w1r'))
        return out
    def w1_read(self, k0, k1):
        for k in range(k0, k1):
            for f in self.w1_reads(k): f()

    def phaseA(self):
        e = self.e; V = self.V; o = self.o
        self.c('================= phase A')
        e(f's_mul_i32 s{S_CP}, s{S_XCD}, 28\ns_add_u32 s{S_CP}, s{S_CP}, s{S_J}')
        self.map_bc()
        par = V.alloc(6); t0 = V.alloc(1); t1 = V.alloc(1)
        e(f's_lshl_b32 s{S_T0}, s{S_CP}, 2')
        e(f's_load_dword s{S_LD}, s[{S_LDT}:{S_LDT+1}], s{S_T0}\ns_load_dword s{S_DK}, s[{S_DSK}:{S_DSK+1}], s{S_T0}')
        e(f's_lshl_b32 s{S_T1}, s{S_CP}, 10\nv_lshl_add_u32 v{t0}, v0, 2, s{S_T1}')
        for i, sp in enumerate((S_ARE, S_AIM, S_BRE, S_BIM, S_CRE, S_CIM)):
            self.vmem(f'global_load_dword v{par+i}, v{t0}, s[{sp}:{sp+1}]', 'par')
        self.w1_setup()
        self.w1_issue(0, 2, 'wa')
        self.stamp(1)
        ga = V.alloc(12, 2)
        self.ga = ga
        e(f'v_lshlrev_b32 v{t0}, 3, v0\nv_sub_u32 v{t0}, 2048, v{t0}')
        for k in range(1, 12):
            e(f'v_subrev_u32 v{ga+k-1}, {k}, v{t0}')
        e(f'v_mov_b32 v{ga+11}, 0')
        tt = V.alloc(2, 2)
        for k in range(0, 12, 2):
            a, b = ga + k, ga + k + 1
            e(f'v_max_i32 v{tt}, 0, v{a}\nv_max_i32 v{tt+1}, 0, v{b}')
            e(f'v_cvt_f32_u32 v{tt}, v{tt}\nv_cvt_f32_u32 v{tt+1}, v{tt+1}')
            e(f'v_cvt_pk_bf16_f32 v{t1}, v{tt}, v{tt+1}')
            e(f'v_lshlrev_b32 v{tt}, 16, v{t1}\nv_and_b32 v{tt+1}, 0xffff0000, v{t1}')
            e(f'v_cvt_u32_f32 v{tt}, v{tt}\nv_cvt_u32_f32 v{tt+1}, v{tt+1}')
            for x, r in ((tt, a), (tt + 1, b)):
                e(f'v_lshrrev_b32 v{t1}, 3, v{x}\nv_add_u32 v{x}, v{x}, v{t1}')
                if k >= 8:
                    e(f'v_cmp_gt_i32 vcc, 0, v{r}\nv_mov_b32 v{t1}, 2320\nv_cndmask_b32 v{x}, v{x}, v{t1}, vcc')
                e(f'v_lshlrev_b32 v{x}, 2, v{x}\nv_add_u32 v{r}, {L_K32}, v{x}')
        V.free(tt, 2)
        e('s_waitcnt lgkmcnt(0)'); self.lg.drain()
        e(f's_lshr_b32 s{S_T0}, s{S_W}, 1\ns_lshl_b32 s{S_T0}, s{S_T0}, 4')
        e(f's_lshr_b32 s{S_LD}, s{S_LD}, s{S_T0}\ns_lshl_b32 s{S_LD}, s{S_LD}, 16')
        e(f's_lshr_b32 s{S_DK}, s{S_DK}, s{S_T0}\ns_lshl_b32 s{S_DK}, s{S_DK}, 16')
        dt = V.alloc(2, 2); tt = V.alloc(2, 2)
        L_hi = struct.unpack('<f', struct.pack('<f', LOG2E))[0]; L_lo = LOG2E - L_hi
        e(f'v_mov_b32 v{dt}, s{S_LD}\nv_mul_f32 v{tt}, {fx(L_hi)}, v{dt}')
        e(f's_mov_b32 s{S_T1}, {fx(L_hi)}')
        e(f'v_fma_f32 v{tt+1}, v{dt}, s{S_T1}, -v{tt}\nv_fmac_f32 v{tt+1}, {fx(L_lo)}, v{dt}')
        e(f'v_exp_f32 v{tt}, v{tt}\nv_mul_f32 v{tt+1}, {fx(math.log(2))}, v{tt+1}')
        e(f'v_fma_f32 v{dt}, v{tt}, v{tt+1}, v{tt}')
        self.rbf(dt, dt)
        V.free(tt, 2)
        self.wait_vm('par')
        self.stamp(2)
        sc = V.alloc(12, 2)
        e(f'v_lshlrev_b32 v{sc+4}, 16, v{par+2}\nv_and_b32 v{sc+6}, 0xffff0000, v{par+2}')
        e(f'v_lshlrev_b32 v{sc+5}, 16, v{par+3}\nv_and_b32 v{sc+7}, 0xffff0000, v{par+3}')
        e(f'v_lshlrev_b32 v{sc+8}, 16, v{par+4}\nv_and_b32 v{sc+10}, 0xffff0000, v{par+4}')
        e(f'v_lshlrev_b32 v{sc+9}, 16, v{par+5}\nv_and_b32 v{sc+11}, 0xffff0000, v{par+5}')
        e(f'v_lshlrev_b32 v{sc}, 16, v{par}\nv_and_b32 v{sc+1}, 0xffff0000, v{par}')
        e(f'v_lshlrev_b32 v{sc+2}, 16, v{par+1}\nv_and_b32 v{sc+3}, 0xffff0000, v{par+1}')
        V.free(par, 6)
        for i in (4, 5, 6, 7, 0, 1, 2, 3): e(f'v_mul_f32 v{sc+i}, v{dt}, v{sc+i}')
        V.free(dt, 2)
        Q = lambda: V.alloc(4, 4)
        tq = Q(); pkt = V.alloc(4, 2); npk = [0]
        def qmul(d, a, b):
            self.cmul_multi([(d, a, b, None), (d + 2, a + 2, b + 2, None)])
        CB = Q()
        qmul(CB, sc + 8, sc + 4)
        mx = V.alloc(2, 2)
        e(f'v_max_f32 v{mx}, |v{CB}|, |v{CB+1}|\nv_max_f32 v{mx+1}, |v{CB+2}|, |v{CB+3}|')
        e(f'v_mul_f32 v{sc}, {fx(LOG2E)}, v{sc}\nv_mul_f32 v{sc+1}, {fx(LOG2E)}, v{sc+1}')
        e(f'v_max_f32 v{mx}, v{mx}, v{mx+1}')
        e(f'v_mul_f32 v{sc+2}, {fx(1/(2*math.pi))}, v{sc+2}\nv_mul_f32 v{sc+3}, {fx(1/(2*math.pi))}, v{sc+3}')
        for mod in ('quad_perm:[1,0,3,2]', 'quad_perm:[2,3,0,1]', 'row_half_mirror', 'row_mirror'):
            e(f'v_max_f32_dpp v{mx}, v{mx}, v{mx} {mod} row_mask:0xf bank_mask:0xf')
        for swap in ('v_permlane16_swap_b32', 'v_permlane32_swap_b32'):
            e(f'v_mov_b32 v{mx+1}, v{mx}\n{swap} v{mx}, v{mx+1}\nv_max_f32 v{mx}, v{mx}, v{mx+1}')
        e(f'v_readfirstlane_b32 s{S_T0}, v{mx}')
        e(f's_lshr_b32 s{S_T0}, s{S_T0}, 23\ns_max_u32 s{S_T0}, s{S_T0}, 14\ns_min_u32 s{S_T0}, s{S_T0}, 254')
        e(f's_sub_u32 s{S_T1}, 267, s{S_T0}\ns_lshl_b32 s{S_T1}, s{S_T1}, 23\ns_sub_u32 s{S_US}, s{S_T0}, 13\ns_lshl_b32 s{S_US}, s{S_US}, 23')
        V.free(mx, 2)
        self.w1_issue(2, 3, 'wa')
        def direct(dst, ex):
            for m in range(2):
                if ex == 1:
                    e(f'v_exp_f32 v{tq+m}, v{sc+m}\nv_fract_f32 v{tq+2+m}, v{sc+2+m}')
                else:
                    e(f'v_mul_f32 v{tq+m}, {fx(float(ex))}, v{sc+m}\nv_mul_f32 v{tq+2+m}, {fx(float(ex))}, v{sc+2+m}')
            if ex != 1:
                for m in range(2): e(f'v_exp_f32 v{tq+m}, v{tq+m}\nv_fract_f32 v{tq+2+m}, v{tq+2+m}')
            for m in range(2):
                e(f'v_cos_f32 v{dst+2*m}, v{tq+2+m}\nv_sin_f32 v{dst+2*m+1}, v{tq+2+m}')
            for m in range(2):
                e(f'v_mul_f32 v{dst+2*m}, v{tq+m}, v{dst+2*m}\nv_mul_f32 v{dst+2*m+1}, v{tq+m}, v{dst+2*m+1}')
        wa = V.alloc(1)
        e(f'v_and_b32 v{wa}, 127, v0\nv_lshlrev_b32 v{wa}, 3, v{wa}\ns_lshr_b32 s{S_T0}, s{S_W}, 1\ns_mul_i32 s{S_T0}, s{S_T0}, {TBL_C}\nv_add_u32 v{wa}, s{S_T0}, v{wa}')
        def put(q, ent, conj=False):
            p = pkt + 2 * (npk[0] & 1); npk[0] += 1
            n = '-' if conj else ''
            e(f'v_cvt_pk_f16_f32 v{p}, v{q}, {n}v{q+1}\nv_cvt_pk_f16_f32 v{p+1}, v{q+2}, {n}v{q+3}')
            self.ds(f'ds_write_b64 v{wa}, {vr(p,2)} offset:{ent*TBL_E}')
        one = V.alloc(2, 2)
        e(f'v_mov_b32 v{one}, 0x3c00\nv_mov_b32 v{one+1}, 0x3c00')
        for ent in (0, 4, 12): self.ds(f'ds_write_b64 v{wa}, {vr(one,2)} offset:{ent*TBL_E}')
        V.free(one, 2)
        z1 = Q(); z2 = Q(); z3 = Q(); z4 = Q(); CS = Q()
        direct(z1, 1); put(z1, 1)
        for m in range(4): e(f'v_mul_f32 v{CS+m}, s{S_T1}, v{CB+m}')
        put(CS, 8, True)
        qmul(z2, z1, z1); put(z2, 2)
        qmul(z3, z2, z1); put(z3, 3)
        qmul(z4, z2, z2); put(z4, 5)
        qmul(z1, z4, z4); put(z1, 6)
        qmul(z2, z1, z4); put(z2, 7)
        qmul(z3, z1, z1); put(z3, 16)
        self.w1_issue(3, 4, 'wa')
        qmul(z1, z3, z3)
        qmul(z4, CS, z1); put(z4, 9, True)
        qmul(z2, z1, z1)
        qmul(z4, CS, z2); put(z4, 10, True)
        qmul(z3, z2, z1)
        qmul(z4, CS, z3); put(z4, 11, True)
        qmul(z1, z2, z2); put(z1, 13, True)
        qmul(z2, z1, z1); put(z2, 14, True)
        qmul(z3, z2, z1); put(z3, 15, True)
        qmul(z1, z2, z2); put(z1, 17, True)
        qmul(z2, z1, z1)
        qmul(z3, z2, z2)
        c48 = V.alloc(2, 2)
        e(f'v_mul_f32 v{c48}, v{CB}, v{z3}\nv_fma_f32 v{c48}, -v{CB+1}, v{z3+1}, v{c48}')
        e(f'v_fmac_f32 v{c48}, v{CB+2}, v{z3+2}\nv_fma_f32 v{c48}, -v{CB+3}, v{z3+3}, v{c48}')
        for q in (z1, z2, z3, z4, CB, CS, tq): V.free(q, 4)
        V.free(sc, 12); V.free(wa); V.free(pkt, 4)
        for mod in ('quad_perm:[1,0,3,2]', 'quad_perm:[2,3,0,1]', 'row_half_mirror', 'row_mirror'):
            e(f'v_add_f32_dpp v{c48}, v{c48}, v{c48} {mod} row_mask:0xf bank_mask:0xf')
        for swap in ('v_permlane16_swap_b32', 'v_permlane32_swap_b32'):
            e(f'v_mov_b32 v{c48+1}, v{c48}\n{swap} v{c48}, v{c48+1}\nv_add_f32 v{c48}, v{c48}, v{c48+1}')
        nv = V.alloc(2, 2)
        e(f'v_mov_b32 v{nv+1}, 0')
        self.wait_vm('wa')
        self.vmem(f'buffer_load_dword v{nv}, v{nv+1}, s[{R_DBG}:{R_DBG+3}], 0 offen sc1', 'nonce')
        self.wait_all_lg(); e('s_barrier')
        self.stamp(3)
        sg = V.alloc(16, 4); sa = V.alloc(1)
        def after_main():
            self.wait_vm('nonce')
            lab = self.lab('nz')
            e(f'v_readfirstlane_b32 s{S_NONCE}, v{nv}\ns_cmp_lg_u32 s{S_NONCE}, 0\ns_cbranch_scc1 {lab}')
            save = list(self.vm.q)
            self.get_nonce()
            self.vm.q = save
            self.label(lab)
        def after_b2a():
            e(f'v_lshlrev_b32 v{sa}, 6, v0')
            if WS_STATS: e(f'v_add_u32 v{sa}, {WS_STATS}, v{sa}')
            for i in range(4): self.vmem(f'buffer_load_dwordx4 {vr(sg+4*i,4)}, v{sa}, s[{R_WS}:{R_WS+3}], 0 offen offset:{16*i} sc1', 'sg')
            self.w1_issue(10, 12, 'wc')
        self.kgen_main(c48, after_main, after_b2a)
        V.free(c48, 2); V.free(nv, 2)
        self.wait_vm('wb')
        self.wait_all_lg(); e('s_barrier')
        self.stamp(4)
        XP = V.alloc(8, 4)
        self.poll_stats(sg, sa)
        xo = V.alloc(1)
        e(f's_lshr_b32 s{S_T0}, s{S_CP}, 2\ns_lshl_b32 s{S_T0}, s{S_T0}, 15\ns_and_b32 s{S_T1}, s{S_CP}, 3\ns_lshl_b32 s{S_T1}, s{S_T1}, 5\ns_add_u32 s{S_T0}, s{S_T0}, s{S_T1}\ns_add_u32 s{S_T0}, s{S_T0}, {WS_XT}\nv_lshl_add_u32 v{xo}, v0, 7, s{S_T0}')
        self.vmem(f'buffer_load_dwordx4 {vr(XP,4)}, v{xo}, s[{R_WS}:{R_WS+3}], 0 offen sc1', 'xt')
        self.vmem(f'buffer_load_dwordx4 {vr(XP+4,4)}, v{xo}, s[{R_WS}:{R_WS+3}], 0 offen offset:16 sc1', 'xt')
        V.free(xo)
        self.stamp(7)
        self.expand()
        self.w1_read(4, 10)
        self.w1_issue(12, 14, 'wc')
        self.stamp(5)
        self.normalize(XP, sg)
        V.free(sg, 16); V.free(sa); V.free(XP, 8)
        self.wait_all_lg(); e('s_barrier')
        self.stamp(6)
        fill = []
        for k in range(14, 20): fill += self.w1_dma(k, 'wd_')
        self.conv(fill)
        V.free(t0); V.free(t1)
        self.stamp(8)
        self.wait_vm('ht'); self.wait_all_lg(); e('s_barrier')
        self.signal(WS_FLAG2, 's2')
        self.stamp(9)
        self.w1_issue(20, 26, 'we')
        self.cs = V.alloc(32, 4); self.ones = V.alloc(4, 4)
        for i in range(4): e(f'v_mov_b32 v{self.ones+i}, 0x3f803f80')
        self.cs_mfma(0, 14)
        self.wait_vm('wd_'); e('s_barrier')
        self.w1_read(14, 20)
        self.wait_all_lg()
        self.cs_mfma(14, 20)

    def cs_mfma(self, k0, k1):
        for k in range(k0, k1):
            for u in range(2):
                c = '0' if k == 0 else vr(self.cs + 16*u, 16)
                self.e(f'v_mfma_f32_32x32x16_bf16 {vr(self.cs+16*u,16)}, {ar(8*k+4*u,4)}, {vr(self.ones,4)}, {c}')

    def poll_stats(self, sg, sa):
        e = self.e
        l0 = self.lab('sp'); l1 = self.lab('spd')
        self.wait_vm('sg')
        e(f's_mov_b32 s{S_CNT}, 0')
        self.label(l0)
        e(f'v_cmp_ne_u32 vcc, s{S_NONCE}, v{sg+1}')
        for k in range(1, 8):
            e(f'v_cmp_ne_u32 s[{S_M2}:{S_M2+1}], s{S_NONCE}, v{sg+2*k+1}\ns_or_b64 vcc, vcc, s[{S_M2}:{S_M2+1}]')
        e(f's_cbranch_vccz {l1}')
        for i in range(4): e(f'buffer_load_dwordx4 {vr(sg+4*i,4)}, v{sa}, s[{R_WS}:{R_WS+3}], 0 offen offset:{16*i} sc1')
        e('s_waitcnt vmcnt(0)')
        e(f's_add_u32 s{S_CNT}, s{S_CNT}, 1\ns_cmp_lt_u32 s{S_CNT}, {SPIN_MAX}\ns_cbranch_scc1 {l0}')
        self.label(l1)

    def map_bc(self):
        e = self.e
        if self.o.get('mapB', '47') == 'rows':
            e(f's_cmp_ge_u32 s{S_J}, 14\ns_cselect_b32 s{S_T0}, 1, 0\ns_lshl_b32 s{S_RB}, s{S_XCD}, 1\ns_add_u32 s{S_RB}, s{S_RB}, s{S_T0}')
            e(f's_mul_i32 s{S_T0}, s{S_T0}, 14\ns_sub_u32 s{S_FB}, s{S_J}, s{S_T0}')
        else:
            e(f's_mul_i32 s{S_T0}, s{S_J}, 37\ns_lshr_b32 s{S_T0}, s{S_T0}, 8')
            e(f's_lshr_b32 s{S_RB}, s{S_XCD}, 1\ns_lshl_b32 s{S_RB}, s{S_RB}, 2\ns_add_u32 s{S_RB}, s{S_RB}, s{S_T0}')
            e(f's_mul_i32 s{S_T0}, s{S_T0}, 7\ns_sub_u32 s{S_FB}, s{S_J}, s{S_T0}\ns_and_b32 s{S_T0}, s{S_XCD}, 1\ns_mul_i32 s{S_T0}, s{S_T0}, 7\ns_add_u32 s{S_FB}, s{S_FB}, s{S_T0}')
        if self.o.get('rot', True): e(f's_and_b32 s{S_ROT}, s{S_RB}, 3')
        else: e(f's_mov_b32 s{S_ROT}, 0')
        e(f's_mul_i32 s{S_T0}, s{S_J}, 37\ns_lshr_b32 s{S_T0}, s{S_T0}, 8')
        e(f's_lshl_b32 s{S_RB2}, s{S_XCD}, 2\ns_add_u32 s{S_RB2}, s{S_RB2}, s{S_T0}\ns_mul_i32 s{S_T0}, s{S_T0}, 7\ns_sub_u32 s{S_DB}, s{S_J}, s{S_T0}')

    def kgen_main(self, c48, after_main, after_b2a):
        e = self.e; V = self.V
        self.c('---- kgen main (f16 operands)')
        aLo = V.alloc(1); aHi = V.alloc(1); aC = V.alloc(1); t = V.alloc(1)
        e(f's_lshr_b32 s{S_T0}, s{S_W}, 1\ns_mul_i32 s{S_T0}, s{S_T0}, {TBL_C}\ns_and_b32 s{S_T1}, s{S_W}, 1\ns_lshl_b32 s{S_T1}, s{S_T1}, 9\ns_add_u32 s{S_T0}, s{S_T0}, s{S_T1}')
        e(f'v_lshrrev_b32 v{t}, 4, v1\nv_lshlrev_b32 v{aC}, 4, v{t}\nv_add_u32 v{aC}, s{S_T0}, v{aC}')
        e(f'v_and_b32 v{t}, 3, v1\nv_mul_u32_u24 v{t}, {TBL_E}, v{t}\nv_add_u32 v{aLo}, v{aC}, v{t}')
        e(f'v_bfe_u32 v{t}, v1, 2, 2\nv_mul_u32_u24 v{t}, {TBL_E}, v{t}\nv_add_u32 v{aHi}, v{aC}, v{t}')
        TB = [[V.alloc(4, 4) for _ in range(6)] for _ in range(2)]
        tmp = V.alloc(4, 4)
        PV = [[V.alloc(4, 4) for _ in range(2)] for _ in range(2)]
        PW = [V.alloc(4, 4) for _ in range(4)]
        D = [[V.alloc(4, 4) for s in range(2)] for t_ in range(4)]
        ents = ((aLo, 0), (aHi, 4), (aC, 16), (aLo, 8), (aHi, 12), (aC, 17))
        def rd(st, i):
            ad, ent = ents[i]
            self.ds(f'ds_read_b128 {vr(TB[st&1][i],4)}, v{ad} offset:{ent*TBL_E + st*64}', f'tb{st}')
        def cm(d, a, b):
            L = [f'v_pk_mul_f16 v{tmp+c}, v{a+c}, v{b+c} op_sel:[0,0] op_sel_hi:[0,1]' for c in range(4)]
            L += [f'v_pk_fma_f16 v{d+c}, v{a+c}, v{b+c}, v{tmp+c} op_sel:[1,1,0] op_sel_hi:[1,0,1] neg_lo:[0,1,0]' for c in range(4)]
            return L
        for i in range(6): rd(0, i)
        pend = []
        for st in range(8):
            T1, T2, Z16, T3, T4, Z512 = TB[st & 1]; pv = PV[st & 1]
            extra = []
            if st + 1 < 8: extra += [lambda i=i, st=st: rd(st + 1, i) for i in range(6)]
            if st < 4: extra += self.w1_reads(st)
            if 1 <= st <= 6: extra += self.w1_dma(3 + st, 'wb')
            self.wait_lg(f'tb{st}')
            blocks = [(cm(pv[0], T1, T2), []), (cm(pv[1], pv[0], Z16), []), (cm(PW[0], T3, T4), [])]
            for tt in range(1, 4): blocks.append((cm(PW[tt], PW[tt-1], Z512), tt - 1))
            blocks.append(([], 3))
            for bi, (ins, mf) in enumerate(blocks):
                for q, l in enumerate(ins):
                    e(l)
                    if q in (1, 5) and pend: pend.pop(0)()
                    if q in (2, 3, 6, 7) and extra: extra.pop(0)()
                if bi >= 2 and bi <= 5:
                    tt = bi - 2
                    for s in range(2):
                        cin = '0' if st == 0 else vr(D[tt][s], 4)
                        pend.append(lambda tt=tt, s=s, cin=cin, pv=pv: e(f'v_mfma_f32_16x16x32_f16 {vr(D[tt][s],4)}, {vr(PW[tt],4)}, {vr(pv[s],4)}, {cin}'))
            while len(pend) > 2: pend.pop(0)()
            for x in extra: x()
        while pend: pend.pop(0)()
        self.stamp(13)
        after_main()
        e(f's_lshl_b32 s{S_T0}, s{S_W}, 12\ns_add_u32 s{S_T0}, s{S_T0}, {L_EX}\nv_lshl_add_u32 v{aHi}, v1, 4, s{S_T0}')
        for t_ in range(4):
            for s in range(2):
                for r in range(4): e(f'v_mul_f32 v{D[t_][s]+r}, s{S_US}, v{D[t_][s]+r}')
        keep = V.alloc(16, 4)
        lh = self.lab('k1'); ld = self.lab('kd')
        e(f's_and_b32 s{S_T1}, s{S_W}, 1\ns_cmp_lg_u32 s{S_T1}, 0\ns_cbranch_scc1 {lh}')
        for half, lab_ in ((0, None), (1, lh)):
            if lab_: self.label(lab_)
            snd = [(t_, s) for t_ in (2 - 2*half, 3 - 2*half) for s in range(2)]
            kp = [(t_, s) for t_ in (2*half, 2*half + 1) for s in range(2)]
            for i, (t_, s) in enumerate(snd): e(f'ds_write_b128 v{aHi}, {vr(D[t_][s],4)} offset:{1024*i}')
            for i, (t_, s) in enumerate(kp):
                for r in range(4): e(f'v_mov_b32 v{keep+4*i+r}, v{D[t_][s]+r}')
            if half == 0: e(f's_branch {ld}')
        self.label(ld)
        e(f's_lshl_b32 s{S_T0}, s{S_W}, 2\ns_add_u32 s{S_T0}, s{S_T0}, {L_EX + 16384}\nv_mov_b32 v{aC}, s{S_T0}')
        e(f's_mov_b64 s[{S_M1}:{S_M1+1}], exec\ns_mov_b64 exec, 1')
        e(f'ds_write_b32 v{aC}, v{c48}')
        e(f's_mov_b64 exec, s[{S_M1}:{S_M1+1}]')
        e('s_waitcnt lgkmcnt(0)'); self.lg.drain()
        e('s_barrier')
        e(f's_xor_b32 s{S_T0}, s{S_W}, 1\ns_lshl_b32 s{S_T2}, s{S_T0}, 12\ns_add_u32 s{S_T2}, s{S_T2}, {L_EX}\nv_lshl_add_u32 v{aHi}, v1, 4, s{S_T2}')
        R4 = TB[0][:4]; Va = tmp
        for i in range(4): self.ds(f'ds_read_b128 {vr(R4[i],4)}, v{aHi} offset:{1024*i}', 'ex')
        e(f's_lshl_b32 s{S_T0}, s{S_T0}, 2\ns_add_u32 s{S_T0}, s{S_T0}, {L_EX + 16384}\nv_mov_b32 v{aC}, s{S_T0}')
        self.ds(f'ds_read_b32 v{Va}, v{aC}', 'ex')
        after_b2a()
        e(f'v_and_b32 v{aLo}, 15, v1\nv_lshrrev_b32 v{t}, 3, v{aLo}\nv_add_u32 v{aLo}, v{aLo}, v{t}')
        e(f'v_lshrrev_b32 v{t}, 4, v1\nv_mul_u32_u24 v{t}, 144, v{t}\nv_add_u32 v{aLo}, v{aLo}, v{t}\nv_lshlrev_b32 v{aLo}, 2, v{aLo}')
        e(f's_lshr_b32 s{S_T0}, s{S_W}, 1\ns_mul_i32 s{S_T0}, s{S_T0}, {K32_C}\ns_add_u32 s{S_T0}, s{S_T0}, {L_K32}')
        e(f's_mul_i32 s{S_T1}, s{S_T1}, {4*576*2}\ns_add_u32 s{S_T1}, s{S_T1}, s{S_T0}\nv_add_u32 v{aLo}, s{S_T1}, v{aLo}')
        self.wait_lg('ex')
        for i, q in enumerate(R4):
            e(f'v_pk_add_f32 {vr(keep+4*i,2)}, {vr(keep+4*i,2)}, {vr(q,2)}\nv_pk_add_f32 {vr(keep+4*i+2,2)}, {vr(keep+4*i+2,2)}, {vr(q+2,2)}')
        e(f'v_add_f32 v{c48}, v{c48}, v{Va}\nv_mov_b32 v{c48+1}, 0\nv_mov_b32 v{aHi}, s{S_T0}')
        for i in range(4):
            t_, s = i >> 1, i & 1
            for r in range(4):
                self.ds(f'ds_write_b32 v{aLo}, v{keep+4*i+r} offset:{4*(576*t_ + 36*r + 18*s)}')
        e(f's_mov_b64 s[{S_M1}:{S_M1+1}], exec\ns_mov_b64 exec, 1')
        self.ds(f'ds_write_b32 v{aHi}, v{c48} offset:9216')
        self.ds(f'ds_write_b32 v{aHi}, v{c48+1} offset:9280')
        e(f's_mov_b64 exec, s[{S_M1}:{S_M1+1}]')
        V.free(keep, 16)
        for row in TB + PV:
            for x in row: V.free(x, 4)
        for x in PW: V.free(x, 4)
        V.free(tmp, 4)
        for row in D:
            for x in row: V.free(x, 4)
        for x in (aLo, aHi, aC, t): V.free(x)

    def expand(self):
        e = self.e; V = self.V; ga = self.ga
        self.c('---- expand K into 4 shifted bf16 copies')
        g = V.alloc(22, 2); P = V.alloc(16, 4); wa = V.alloc(1); z = V.alloc(4, 4)
        e(f'v_lshlrev_b32 v{wa}, 4, v0')
        for c in range(2):
            for k in range(11): self.ds(f'ds_read_b32 v{g+11*c+k}, v{ga+k} offset:{c*K32_C}', f'g{c}')
        for i in range(4): e(f'v_mov_b32 v{z+i}, 0')
        t = V.alloc(1); t2 = V.alloc(1)
        e(f'v_lshrrev_b32 v{t}, 2, v0\nv_mul_u32_u24 v{t}, {KC_S}, v{t}\nv_and_b32 v{t2}, 3, v0\nv_lshl_add_u32 v{t}, v{t2}, 4, v{t}')
        e(f'v_cmp_gt_u32 vcc, 32, v0\ns_and_saveexec_b64 s[{S_M1}:{S_M1+1}], vcc')
        la = self.lab('zc'); e(f's_cbranch_execz {la}')
        e(f'ds_write_b128 v{t}, {vr(z,4)} offset:{L_KC + 4096}')
        self.label(la); e(f's_mov_b64 exec, s[{S_M1}:{S_M1+1}]')
        e(f'v_lshrrev_b32 v{t}, 6, v0\nv_mul_u32_u24 v{t}, {U_C}, v{t}\nv_lshl_add_u32 v{t}, v1, 4, v{t}')
        e(f'v_cmp_gt_u32 vcc, 128, v0\ns_and_saveexec_b64 s[{S_M1}:{S_M1+1}], vcc')
        la = self.lab('zu'); e(f's_cbranch_execz {la}')
        e(f'ds_write_b128 v{t}, {vr(z,4)} offset:{L_U}')
        self.label(la); e(f's_mov_b64 exec, s[{S_M1}:{S_M1+1}]')
        V.free(t); V.free(t2); V.free(z, 4)
        self.wait_all_lg()
        for c in range(2):
            v = lambda k: g + 11 * c + (k - 1)
            for sc_ in range(4):
                s = 4 - sc_
                for dd in range(4):
                    e(f'v_cvt_pk_bf16_f32 v{P+4*sc_+dd}, v{v(s+2*dd)}, v{v(s+2*dd+1)}')
            for sc_ in range(4):
                self.ds(f'ds_write_b128 v{wa}, {vr(P+4*sc_,4)} offset:{L_KC + c*KC_C + sc_*KC_S}')
        if self.o.get('dumpK'):
            d = V.alloc(1)
            self.wait_all_lg(); e('s_barrier')
            e(f's_lshl_b32 s{S_T0}, s{S_CP}, 13\ns_add_u32 s{S_T0}, s{S_T0}, {WS_DBG + 0x100000}')
            for c in range(2):
                self.ds(f'ds_read_b128 {vr(P,4)}, v{wa} offset:{L_KC + c*KC_C}'); self.wait_all_lg()
                e(f'v_add_u32 v{d}, s{S_T0}, v{wa}')
                self.vmem(f'buffer_store_dwordx4 {vr(P,4)}, v{d}, s[{R_WS}:{R_WS+3}], 0 offen offset:{0}' if c == 0 else
                          f'buffer_store_dwordx4 {vr(P,4)}, v{d}, s[{R_WS}:{R_WS+3}], s{S_T1} offen', 'dbg') if c == 0 else None
                if c == 1:
                    e(f's_mov_b32 s{S_T1}, 4096')
                    self.vmem(f'buffer_store_dwordx4 {vr(P,4)}, v{d}, s[{R_WS}:{R_WS+3}], s{S_T1} offen', 'dbg')
                self.wait_all_vm()
            V.free(d)
        V.free(g, 22); V.free(P, 16); V.free(wa); V.free(ga, 12)

    def normalize(self, XP, sg):
        e = self.e; V = self.V
        self.c('---- LN1 normalize own columns')
        xa = V.alloc(16, 2)
        ms = V.alloc(16, 2)
        for k in range(8):
            e(f'v_lshlrev_b32 v{ms+k}, 16, v{sg+2*k}\nv_and_b32 v{ms+8+k}, 0xffff0000, v{sg+2*k}')
        for k in range(8): e(f'v_rcp_f32 v{ms+8+k}, v{ms+8+k}')
        wa = V.alloc(1); t = V.alloc(1)
        e(f'v_bfe_u32 v{t}, v0, 4, 1\nv_lshlrev_b32 v{t}, 1, v{t}\nv_xor_b32 v{wa}, v0, v{t}\nv_lshlrev_b32 v{wa}, 4, v{wa}')
        self.wait_vm('xt')
        for c in range(2): self.ds(f'ds_write_b128 v{wa}, {vr(XP+4*c,4)} offset:{L_X + c*X_C}')
        for c in range(2):
            for d in range(4):
                e(f'v_lshlrev_b32 v{xa+8*c+2*d}, 16, v{XP+4*c+d}\nv_and_b32 v{xa+8*c+2*d+1}, 0xffff0000, v{XP+4*c+d}')
        UP = V.alloc(8, 4)
        for c in range(2):
            for d in range(4):
                x = xa + 8*c + 2*d
                e(f'v_pk_add_f32 {vr(x,2)}, {vr(x,2)}, {vr(ms+2*d,2)} neg_lo:[0,1] neg_hi:[0,1]')
            for d in range(4):
                x = xa + 8*c + 2*d
                e(f'v_cvt_pk_bf16_f32 v{x+1}, v{x}, v{x+1}')
            for d in range(4):
                x = xa + 8*c + 2*d
                e(f'v_lshlrev_b32 v{x}, 16, v{x+1}\nv_and_b32 v{x+1}, 0xffff0000, v{x+1}')
            for d in range(4):
                x = xa + 8*c + 2*d
                e(f'v_pk_mul_f32 {vr(x,2)}, {vr(x,2)}, {vr(ms+8+2*d,2)}')
            for d in range(4):
                x = xa + 8*c + 2*d
                e(f'v_cvt_pk_bf16_f32 v{UP+4*c+d}, v{x}, v{x+1}')
            self.ds(f'ds_write_b128 v{wa}, {vr(UP+4*c,4)} offset:{L_U + c*U_C + 1024}')
        V.free(ms, 16); V.free(xa, 16); V.free(UP, 8); V.free(wa); V.free(t)

    def conv(self, fill):
        e = self.e; V = self.V
        self.c('---- Toeplitz convolution')
        vF = V.alloc(1); vG = V.alloc(8); t = V.alloc(1); t2 = V.alloc(1)
        e(f's_lshr_b32 s{S_T0}, s{S_W}, 1\ns_mul_i32 s{S_T0}, s{S_T0}, {KC_C}\ns_and_b32 s{S_T1}, s{S_W}, 1\ns_lshl_b32 s{S_T2}, s{S_T1}, 9\ns_sub_u32 s{S_T0}, s{S_T0}, s{S_T2}\ns_add_u32 s{S_T0}, s{S_T0}, {L_KC + 24 + 512}')
        e(f'v_and_b32 v{t}, 3, v1\nv_mul_u32_u24 v{vF}, {KC_S}, v{t}')
        e(f'v_bfe_u32 v{t}, v1, 2, 2\nv_lshlrev_b32 v{t}, 3, v{t}\nv_sub_u32 v{vF}, v{vF}, v{t}')
        e(f'v_lshrrev_b32 v{t}, 4, v1\nv_lshl_add_u32 v{vF}, v{t}, 4, v{vF}\nv_add_u32 v{vF}, s{S_T0}, v{vF}')
        e(f's_lshr_b32 s{S_T0}, s{S_W}, 1\ns_mul_i32 s{S_T0}, s{S_T0}, {U_C}\ns_add_u32 s{S_T0}, s{S_T0}, {L_U}')
        e(f's_lshl_b32 s{S_T1}, s{S_T1}, 3')
        for pp in range(8):
            e(f'v_and_b32 v{t}, 15, v1\nv_add_u32 v{t}, {16 - pp}, v{t}\nv_subrev_u32 v{t}, s{S_T1}, v{t}')
            e(f'v_bfe_u32 v{t2}, v{t}, 2, 1\nv_lshlrev_b32 v{t2}, 1, v{t2}\nv_lshrrev_b32 v{vG+pp}, 4, v1\nv_xor_b32 v{t2}, v{t2}, v{vG+pp}')
            e(f'v_lshlrev_b32 v{t}, 6, v{t}\nv_lshl_add_u32 v{t}, v{t2}, 4, v{t}\nv_add_u32 v{vG+pp}, s{S_T0}, v{t}')
        G = [V.alloc(16, 4) for _ in range(2)]
        F = V.alloc(32, 4)
        acc = V.alloc(32, 4)
        A = lambda b, m: acc + 8 * b + 4 * m
        def rdG(pp):
            for s in range(4): self.ds(f'ds_read_b128 {vr(G[pp&1]+4*s,4)}, v{vG+pp} offset:{1024*s}', f'G{pp}')
        def rdF(pp, q):
            for m in range(2):
                off = 32 * (111 - 32*q - 2*pp - m)
                self.ds(f'ds_read_b64 {vr(F+8*q+4*m,2)}, v{vF} offset:{off}', f'F{pp}_{q}')
                self.ds(f'ds_read_b64 {vr(F+8*q+4*m+2,2)}, v{vF} offset:{off+8}', f'F{pp}_{q}')
        rdG(0)
        for q in range(4): rdF(0, q)
        def rdG1(pp, s): self.ds(f'ds_read_b128 {vr(G[pp&1]+4*s,4)}, v{vG+pp} offset:{1024*s}', f'G{pp}')
        def rdF1(pp, q, m, h_):
            off = 32 * (111 - 32*q - 2*pp - m) + 8 * h_
            self.ds(f'ds_read_b64 {vr(F+8*q+4*m+2*h_,2)}, v{vF} offset:{off}', f'F{pp}_{q}')
        mains = []
        pend = []
        for pp in range(8):
            for q in range(4):
                first = True
                for m in range(2):
                    for s in range(4 - q):
                        b = q + s
                        cin = '0' if (pp == 0 and q == 0) else vr(A(b, m), 4)
                        pre = []
                        if first:
                            if q == 0: pre.append(lambda pp=pp: (self.wait_lg(f'G{pp}'), self.wait_lg(f'F{pp}_0')))
                            else: pre.append(lambda pp=pp, q=q: self.wait_lg(f'F{pp}_{q}'))
                            first = False
                        mf = lambda b=b, m=m, q=q, s=s, pp=pp, cin=cin: e(f'v_mfma_f32_16x16x32_bf16 {vr(A(b,m),4)}, {vr(F+8*q+4*m,4)}, {vr(G[pp&1]+4*s,4)}, {cin}')
                        post = [pend.pop(0)] if pend else []
                        mains.append((pre, mf, 16, post))
                    if pp + 1 < 8:
                        pend += [lambda pp=pp, q=q, m=m, h_=h_: rdF1(pp + 1, q, m, h_) for h_ in range(2)]
                if q == 0 and pp + 1 < 8:
                    pend += [lambda pp=pp, s=s: rdG1(pp + 1, s) for s in range(4)]
        assert not pend
        self.sched(mains, fill)
        for x in G: V.free(x, 16)
        V.free(F, 32); V.free(vG, 8)
        self.stamp(10)
        ra = V.alloc(1)
        e(f's_lshl_b32 s{S_T0}, s{S_W}, 12\ns_add_u32 s{S_T0}, s{S_T0}, {L_RED}\nv_lshl_add_u32 v{ra}, v1, 4, s{S_T0}')
        keep = V.alloc(16, 4)
        lh = self.lab('h1'); ld = self.lab('hd')
        e(f's_and_b32 s{S_T1}, s{S_W}, 1\ns_cmp_lg_u32 s{S_T1}, 0\ns_cbranch_scc1 {lh}')
        for i in range(4): e(f'ds_write_b128 v{ra}, {vr(acc+16+4*i,4)} offset:{1024*i}')
        for i in range(16): e(f'v_mov_b32 v{keep+i}, v{acc+i}')
        e(f's_branch {ld}')
        self.label(lh)
        e('s_nop 7')
        for i in range(4): e(f'ds_write_b128 v{ra}, {vr(acc+4*i,4)} offset:{1024*i}')
        for i in range(16): e(f'v_mov_b32 v{keep+i}, v{acc+16+i}')
        self.label(ld)
        self.wait_vm('wc')
        e('s_waitcnt lgkmcnt(0)'); self.lg.drain()
        e('s_barrier')
        e(f's_xor_b32 s{S_T0}, s{S_W}, 1\ns_lshl_b32 s{S_T0}, s{S_T0}, 12\ns_add_u32 s{S_T0}, s{S_T0}, {L_RED}\nv_lshl_add_u32 v{ra}, v1, 4, s{S_T0}')
        for i in range(4): self.ds(f'ds_read_b128 {vr(acc+4*i,4)}, v{ra} offset:{1024*i}', 'red')
        ua = V.alloc(1)
        e(f'v_bfe_u32 v{t}, v1, 2, 1\nv_lshlrev_b32 v{t}, 1, v{t}\nv_lshrrev_b32 v{t2}, 4, v1\nv_xor_b32 v{t}, v{t}, v{t2}')
        e(f'v_and_b32 v{t2}, 15, v1\nv_lshlrev_b32 v{t2}, 6, v{t2}\nv_lshl_add_u32 v{ua}, v{t}, 4, v{t2}')
        e(f's_and_b32 s{S_T1}, s{S_W}, 1\ns_lshl_b32 s{S_T1}, s{S_T1}, 11')
        e(f's_lshr_b32 s{S_T0}, s{S_W}, 1\ns_mul_i32 s{S_T2}, s{S_T0}, {U_C}\ns_add_u32 s{S_T2}, s{S_T2}, s{S_T1}')
        xa_ = V.alloc(1)
        e(f's_mul_i32 s{S_T3}, s{S_T0}, {X_C}\ns_add_u32 s{S_T3}, s{S_T3}, s{S_T1}')
        e(f'v_add_u32 v{xa_}, s{S_T3}, v{ua}\nv_add_u32 v{ua}, s{S_T2}, v{ua}')
        UU = V.alloc(8, 4); XX = V.alloc(8, 4)
        for bb in range(2):
            self.ds(f'ds_read_b128 {vr(UU+4*bb,4)}, v{ua} offset:{L_U + 1024 + 1024*bb}', 'ux')
            self.ds(f'ds_read_b128 {vr(XX+4*bb,4)}, v{xa_} offset:{L_X + 1024*bb}', 'ux')
        self.wait_lg('red')
        for i in range(0, 16, 2):
            e(f'v_pk_add_f32 {vr(keep+i,2)}, {vr(keep+i,2)}, {vr(acc+i,2)}')
        sa = V.alloc(1)
        e(f'v_and_b32 v{t}, 15, v1\nv_lshlrev_b32 v{t}, 6, v{t}\nv_lshrrev_b32 v{t2}, 4, v1\nv_lshl_add_u32 v{sa}, v{t2}, 4, v{t}')
        e(f's_lshl_b32 s{S_T2}, s{S_CP}, 1\ns_add_u32 s{S_T2}, s{S_T2}, s{S_T0}\ns_mul_i32 s{S_T2}, s{S_T2}, {HT_STRIDE}\ns_add_u32 s{S_T2}, s{S_T2}, s{S_T1}\ns_add_u32 s{S_T2}, s{S_T2}, {WS_HT}')
        e(f'v_add_u32 v{sa}, s{S_T2}, v{sa}')
        self.wait_lg('ux')
        Y = V.alloc(4, 4); w8 = V.alloc(16, 2); dk = V.alloc(2, 2)
        e(f'v_mov_b32 v{dk}, s{S_DK}')
        for bb in range(2):
            k0 = keep + 8 * bb
            e(f'v_cvt_pk_bf16_f32 v{Y}, v{k0}, v{k0+1}\nv_cvt_pk_bf16_f32 v{Y+1}, v{k0+2}, v{k0+3}')
            e(f'v_cvt_pk_bf16_f32 v{Y+2}, v{k0+4}, v{k0+5}\nv_cvt_pk_bf16_f32 v{Y+3}, v{k0+6}, v{k0+7}')
            e(f'v_permlane32_swap_b32 v{Y}, v{Y+2}\nv_permlane32_swap_b32 v{Y+1}, v{Y+3}')
            e(f'v_permlane16_swap_b32 v{Y}, v{Y+2}\nv_permlane16_swap_b32 v{Y+1}, v{Y+3}')
            a = w8; b = w8 + 8
            for d in range(4):
                e(f'v_lshlrev_b32 v{a+2*d}, 16, v{UU+4*bb+d}\nv_and_b32 v{a+2*d+1}, 0xffff0000, v{UU+4*bb+d}')
            for d in range(4): e(f'v_pk_mul_f32 {vr(a+2*d,2)}, {vr(a+2*d,2)}, {vr(dk,2)} op_sel_hi:[1,0]')
            for d in range(4): e(f'v_cvt_pk_bf16_f32 v{UU+4*bb+d}, v{a+2*d}, v{a+2*d+1}')
            for d in range(4):
                e(f'v_lshlrev_b32 v{a+2*d}, 16, v{UU+4*bb+d}\nv_and_b32 v{a+2*d+1}, 0xffff0000, v{UU+4*bb+d}')
                e(f'v_lshlrev_b32 v{b+2*d}, 16, v{Y+d}\nv_and_b32 v{b+2*d+1}, 0xffff0000, v{Y+d}')
            for d in range(4): e(f'v_pk_add_f32 {vr(a+2*d,2)}, {vr(a+2*d,2)}, {vr(b+2*d,2)}')
            for d in range(4): e(f'v_cvt_pk_bf16_f32 v{Y+d}, v{a+2*d}, v{a+2*d+1}')
            for d in range(4):
                e(f'v_lshlrev_b32 v{a+2*d}, 16, v{Y+d}\nv_and_b32 v{a+2*d+1}, 0xffff0000, v{Y+d}')
                e(f'v_lshlrev_b32 v{b+2*d}, 16, v{XX+4*bb+d}\nv_and_b32 v{b+2*d+1}, 0xffff0000, v{XX+4*bb+d}')
            for d in range(4): e(f'v_pk_add_f32 {vr(a+2*d,2)}, {vr(a+2*d,2)}, {vr(b+2*d,2)}')
            for d in range(4): e(f'v_cvt_pk_bf16_f32 v{XX+4*bb+d}, v{a+2*d}, v{a+2*d+1}')
            self.vmem(f'buffer_store_dwordx4 {vr(XX+4*bb,4)}, v{sa}, s[{R_WS}:{R_WS+3}], 0 offen offset:{1024*bb} sc1', 'ht')
        self.w1_read(10, 14)
        V.free(Y, 4); V.free(w8, 16); V.free(dk, 2); V.free(UU, 8); V.free(XX, 8); V.free(sa); V.free(ua); V.free(xa_); V.free(ra)
        V.free(keep, 16); V.free(acc, 32); V.free(vF); V.free(t); V.free(t2)

    def interleave(self, main, fill, per_gap):
        n = len(main); fi = 0
        for i, m in enumerate(main):
            m()
            tgt = (len(fill) * (i + 1) + n - 1) // n if per_gap is None else min(len(fill), fi + per_gap)
            while fi < tgt:
                fill[fi](); fi += 1
        while fi < len(fill):
            fill[fi](); fi += 1

    def sched(self, mains, fillers, tail_free=0, segs=None):
        def cost(x): return x[1] if isinstance(x, tuple) else 1
        def run(x): (x[0] if isinstance(x, tuple) else x)()
        n = len(mains)
        bud = []
        for i, (pre, m, dur, post) in enumerate(mains):
            b = (dur - 8) / 4 - sum(cost(x) for x in post)
            if i + 1 < n: b -= sum(cost(x) for x in mains[i+1][0])
            bud.append(b)
        if segs is None: segs = [(0, n - tail_free, fillers)]
        plan = [[] for _ in range(n)]
        for (a, b_, fl) in segs:
            free = sum(max(0, x) for x in bud[a:b_]); need = sum(cost(x) for x in fl)
            over = max(0.0, (need - free) / max(1, b_ - a)); frac = min(1.0, need / free) if free > 0 else 1.0
            fi = 0; credit = 0.0
            for i in range(a, b_):
                credit += max(0, bud[i]) * frac + over
                while fi < len(fl) and cost(fl[fi]) <= credit + 1e-9:
                    credit -= cost(fl[fi]); plan[i].append(fl[fi]); fi += 1
            plan[b_ - 1] += fl[fi:]
            for i in range(a, b_): bud[i] = 0
        for i, (pre, m, dur, post) in enumerate(mains):
            for x in pre: run(x)
            m()
            for x in post: run(x)
            for x in plan[i]: run(x)

    def poll_flags(self, base, nflags_expr_lanes, nloads, sbase=None, last_lanes=None):
        e = self.e; V = self.V
        skip = self.lab('pf'); l0 = self.lab('pl'); l1 = self.lab('pd')
        e(f's_cmp_lg_u32 s{S_W}, 0\ns_cbranch_scc1 {skip}')
        a = V.alloc(1); d = V.alloc(4, 2)
        e(f'v_mul_u32_u24 v{a}, {FLAG_STRIDE}, v1\nv_add_u32 v{a}, {base}, v{a}')
        if sbase is not None: e(f'v_add_u32 v{a}, s{sbase}, v{a}')
        e(f's_mov_b64 s[{S_M1}:{S_M1+1}], exec')
        if nflags_expr_lanes < 64: e(f's_mov_b64 exec, {hex((1 << nflags_expr_lanes) - 1)}')
        e(f's_mov_b32 s{S_CNT}, 0')
        self.label(l0)
        for k in range(nloads):
            e(f'buffer_load_dword v{d+k}, v{a}, s[{R_WS}:{R_WS+3}], 0 offen offset:{64*FLAG_STRIDE*k} sc1')
        e('s_waitcnt vmcnt(0)')
        e(f'v_cmp_ne_u32 vcc, s{S_NONCE}, v{d}')
        for k in range(1, nloads):
            e(f'v_cmp_ne_u32 s[{S_M2}:{S_M2+1}], s{S_NONCE}, v{d+k}')
            if last_lanes and k == nloads - 1:
                assert last_lanes == 32
                e(f's_and_b32 s{S_M2+1}, s{S_M2+1}, 0')
            e(f's_or_b64 vcc, vcc, s[{S_M2}:{S_M2+1}]')
        e(f's_cbranch_vccz {l1}')
        e(f's_add_u32 s{S_CNT}, s{S_CNT}, 1\ns_cmp_lt_u32 s{S_CNT}, {SPIN_MAX}\ns_cbranch_scc1 {l0}')
        self.label(l1)
        e(f's_mov_b64 exec, s[{S_M1}:{S_M1+1}]')
        V.free(a); V.free(d, 4)
        self.label(skip)
        e('s_barrier')

    WDREG = ['A']*9 + ['B']*3 + ['C']*3 + ['A']*9 + ['B']*3 + ['C']
    WDIDX = list(range(9)) + [0,1,2] + [0,1,2] + list(range(9)) + [0,1,2] + [0]
    def wd_setup(self):
        e = self.e; V = self.V
        self.vWD = V.alloc(2); self.vWT = V.alloc(6)
        t = V.alloc(1); t2 = V.alloc(1); vD = self.vWD; vT = self.vWT
        e(f'v_lshrrev_b32 v{t}, 3, v1\nv_mul_u32_u24 v{vD}, 896, v{t}\nv_bfe_u32 v{t}, v1, 4, 1\nv_lshlrev_b32 v{t}, 2, v{t}\nv_and_b32 v{t2}, 7, v1\nv_xor_b32 v{t}, v{t}, v{t2}\nv_lshl_add_u32 v{vD}, v{t}, 4, v{vD}')
        e(f's_lshl_b32 s{S_T0}, s{S_DB}, 7\ns_mul_i32 s{S_T1}, s{S_W}, {448*896}\ns_add_u32 s{S_T0}, s{S_T0}, s{S_T1}\nv_add_u32 v{vD}, s{S_T0}, v{vD}\nv_add_u32 v{vD+1}, 7168, v{vD}')
        e(f'v_lshrrev_b32 v{t}, 5, v1\nv_lshlrev_b32 v{vT}, 9, v{t}\nv_bfe_u32 v{t}, v1, 2, 2\nv_lshl_add_u32 v{vT}, v{t}, 7, v{vT}')
        e(f'v_bfe_u32 v{t}, v1, 4, 1\nv_lshl_add_u32 v{vT}, v{t}, 5, v{vT}\nv_and_b32 v{t}, 3, v1\nv_lshl_add_u32 v{vT}, v{t}, 3, v{vT}')
        e(f'v_bfe_u32 v{t}, v1, 3, 1\nv_lshlrev_b32 v{t}, 6, v{t}')
        e(f'v_xor_b32 v{t2}, 64, v{t}\nv_add_u32 v{vT+1}, v{vT}, v{t2}\nv_add_u32 v{vT}, v{vT}, v{t}')
        e(f's_mul_i32 s{S_WA}, s{S_W}, 18432\ns_add_u32 s{S_WA}, s{S_WA}, 87040')
        e(f's_mul_i32 s{S_WB}, s{S_W}, 7168\ns_add_u32 s{S_WC}, s{S_WB}, 57344\ns_add_u32 s{S_WB}, s{S_WB}, 28672')
        e(f'v_add_u32 v{vT+2}, s{S_WB}, v{vT}\nv_add_u32 v{vT+3}, s{S_WB}, v{vT+1}\nv_add_u32 v{vT+4}, s{S_WC}, v{vT}\nv_add_u32 v{vT+5}, s{S_WC}, v{vT+1}')
        e(f'v_add_u32 v{vT}, s{S_WA}, v{vT}\nv_add_u32 v{vT+1}, s{S_WA}, v{vT+1}')
        e(f's_add_u32 s{S_T1}, s{S_DB}, s{S_RB2}' if self.o.get('rot2', True) else f's_mov_b32 s{S_T1}, 0')
        for q in range(4):
            e(f's_add_u32 s{S_T0}, s{S_T1}, {q}\ns_and_b32 s{S_T0}, s{S_T0}, 3\ns_mul_i32 s{S_RW0+q}, s{S_T0}, {7*16*896}\ns_mul_i32 s{S_RA0+q}, s{S_T0}, {7*1024}')
        V.free(t); V.free(t2)
    def wd_dma(self, k, tag):
        e = self.e; sb = {'A': S_WA, 'B': S_WB, 'C': S_WC}[self.WDREG[k]]; sl = self.WDIDX[k] * 2048
        return [lambda: e(f's_add_u32 s{S_WO}, s{S_RW0 + k//7}, {(k%7)*16*896}'),
                lambda: e(f's_add_u32 m0, s{sb}, {sl}'),
                lambda: self.vmem(f'buffer_load_dwordx4 v{self.vWD}, s[{R_WD}:{R_WD+3}], s{S_WO} offen lds', tag),
                lambda: e(f's_add_u32 m0, s{sb}, {sl + 1024}'),
                lambda: self.vmem(f'buffer_load_dwordx4 v{self.vWD+1}, s[{R_WD}:{R_WD+3}], s{S_WO} offen lds', tag)]
    def wd_reads(self, k):
        a = self.vWT + {'A': 0, 'B': 2, 'C': 4}[self.WDREG[k]]; sl = self.WDIDX[k] * 2048
        return [lambda mt=mt, hh=hh: self.ds(f'ds_read_b64_tr_b16 {ar(8*k+4*mt+2*hh,2)}, v{a+mt} offset:{sl + 1024*hh}', f'wdr{k}') for mt in range(2) for hh in range(2)]

    def phaseB(self):
        e = self.e; V = self.V; o = self.o
        self.c('================= phase B')
        L_H = 0; HG = 28672; L_STP = 3 * HG
        HS = lambda g_: (g_ % 3) * HG
        S_HB, S_MB = S_T5, S_HID
        vD = V.alloc(1); vB = V.alloc(1); vS = V.alloc(1); t = V.alloc(1); t2 = V.alloc(1)
        e(f'v_lshrrev_b32 v{t}, 2, v1\nv_mul_u32_u24 v{vD}, {HT_STRIDE}, v{t}\nv_bfe_u32 v{t2}, v1, 4, 1\nv_lshlrev_b32 v{t2}, 1, v{t2}\nv_and_b32 v{t}, 3, v1\nv_xor_b32 v{t}, v{t}, v{t2}\nv_lshl_add_u32 v{vD}, v{t}, 4, v{vD}')
        e(f's_lshl_b32 s{S_T0}, s{S_RB}, 8\ns_add_u32 s{S_T0}, s{S_T0}, {WS_HT}\nv_add_u32 v{vD}, s{S_T0}, v{vD}')
        e(f's_mul_i32 s{S_HB}, s{S_W}, {16*HT_STRIDE}\ns_lshl_b32 s{S_MB}, s{S_W}, 10')
        e(f'v_lshrrev_b32 v{t}, 5, v1\nv_lshlrev_b32 v{vB}, 8, v{t}\nv_bfe_u32 v{t2}, v1, 4, 1\nv_xor_b32 v{t2}, v{t2}, v{t}\nv_lshl_add_u32 v{vB}, v{t2}, 5, v{vB}')
        e(f'v_bfe_u32 v{t}, v1, 2, 2\nv_lshl_add_u32 v{vB}, v{t}, 6, v{vB}\nv_and_b32 v{t}, 3, v1\nv_lshl_add_u32 v{vB}, v{t}, 3, v{vB}')
        e(f'v_lshrrev_b32 v{t}, 4, v1\nv_lshlrev_b32 v{vS}, 8, v{t}\nv_and_b32 v{t}, 1, v{t}\ns_and_b32 s{S_T0}, s{S_W}, 1\nv_xor_b32 v{t}, s{S_T0}, v{t}\nv_lshl_add_u32 v{vS}, v{t}, 5, v{vS}')
        e(f'v_bfe_u32 v{t}, v1, 2, 2\nv_lshl_add_u32 v{vS}, v{t}, 6, v{vS}\nv_and_b32 v{t}, 3, v1\nv_lshl_add_u32 v{vS}, v{t}, 3, v{vS}')
        e(f's_lshr_b32 s{S_T0}, s{S_W}, 1\ns_mul_i32 s{S_T0}, s{S_T0}, {7*2048}\nv_add_u32 v{vS}, s{S_T0}, v{vS}')
        vA = V.alloc(1)
        e(f's_mul_i32 s{S_T0}, s{S_RB}, {4*112}\ns_lshl_b32 s{S_T1}, s{S_FB}, 3\ns_add_u32 s{S_T0}, s{S_T0}, s{S_T1}\ns_lshl_b32 s{S_T1}, s{S_W}, 1\ns_add_u32 s{S_T0}, s{S_T0}, s{S_T1}')
        e(f's_lshl_b32 s{S_T0}, s{S_T0}, 10\ns_add_u32 s{S_T0}, s{S_T0}, {WS_ACT}\nv_lshl_add_u32 v{vA}, v1, 4, s{S_T0}')
        vG2 = V.alloc(1); sg2 = V.alloc(6, 2)
        e(f'v_and_b32 v{t}, 31, v1\nv_lshlrev_b32 v{vG2}, 3, v{t}\ns_lshl_b32 s{S_T0}, s{S_RB}, 10\ns_add_u32 s{S_T0}, s{S_T0}, {WS_STATS2}\nv_add_u32 v{vG2}, s{S_T0}, v{vG2}')
        NB = 6
        cs = self.cs; ones = self.ones
        B = V.alloc(4 * NB, 4); SB = V.alloc(8, 4); SG = V.alloc(8, 4)
        acc = [V.alloc(32, 4), V.alloc(32, 4)]
        st = V.alloc(6, 2); par = V.alloc(3); tmp = V.alloc(8, 4); pk = V.alloc(8, 4)
        vP = V.alloc(1); vPw = V.alloc(1)
        e(f'v_bfe_u32 v{t}, v1, 4, 1\nv_lshlrev_b32 v{vP}, 7, v{t}\nv_and_b32 v{t}, 15, v1\nv_lshl_add_u32 v{vP}, v{t}, 3, v{vP}\nv_add_u32 v{vP}, {L_STP}, v{vP}')
        e(f's_lshl_b32 s{S_T0}, s{S_W}, 7\ns_add_u32 s{S_T0}, s{S_T0}, {L_STP}\nv_lshl_add_u32 v{vPw}, v{t}, 3, s{S_T0}')
        K1, K2, K3, KD = 6, 8, 10, 12
        e(f's_mov_b32 s{K1}, 0x22222222\ns_mov_b32 s{K1+1}, 0x22222222\ns_mov_b32 s{K2}, 0x44444444\ns_mov_b32 s{K2+1}, 0x44444444')
        e(f's_mov_b32 s{K3}, 0x88888888\ns_mov_b32 s{K3+1}, 0x88888888\ns_mov_b32 s{KD}, 0x00f0000f\ns_mov_b32 s{KD+1}, 0xf0000f00')
        vBq = V.alloc(4); vS2 = V.alloc(1)
        e(f'v_add_u32 v{vS2}, 57344, v{vS}')
        for q in range(4):
            e(f's_add_u32 s{S_T0}, s{S_ROT}, {q}\ns_and_b32 s{S_T0}, s{S_T0}, 3\ns_mul_i32 s{S_T0}, s{S_T0}, {7*1024}\nv_add_u32 v{vBq+q}, s{S_T0}, v{vB}')
        self.wd_setup()
        self.wait_vm('we')
        self.poll_flags(WS_FLAG2, 64, 4, last_lanes=32)
        self.vm.drain(); self.lg.drain()
        self.stamp(16)
        def hdma(g, i):
            return [lambda: e(f's_add_u32 m0, s{S_MB}, {L_H + HS(g) + i*4096}'),
                    lambda: e(f's_add_u32 s{S_T1}, s{S_HB}, {i*4*16*HT_STRIDE + 64*g}'),
                    lambda: self.vmem(f'buffer_load_dwordx4 v{vD}, s[{R_WS}:{R_WS+3}], s{S_T1} offen {o.get("hflags", "sc1")} lds', f'h{g}')]
        for i in range(7):
            for f in hdma(0, i): f()
        self.w1_issue(26, 28, 'wf')
        self.w1_read(20, 26)
        for i in range(7):
            for f in hdma(1, i): f()
        self.wait_all_lg()
        self.cs_mfma(20, 26)
        def rdB(g, k):
            s = k % NB
            for h_ in range(2):
                self.ds(f'ds_read_b64_tr_b16 {vr(B+4*s+2*h_,2)}, v{vBq + k//7} offset:{HS(g) + (k%7)*1024 + 512*h_}', f'B{g}_{k}')
        def st_reads(g):
            for k_ in range(2): self.ds(f'ds_read_b64 {vr(st+2*k_,2)}, v{vP} offset:{(g&1)*512 + 256*k_}', f'st{g}')
        def epilogue_ops(g):
            A_ = acc[g & 1]; ops = []
            nm, rsl, s2 = par, par + 1, par + 2
            save = self.lines; self.lines = []
            if g == 0:
                self.ln_finalize(st, st + 1, st + 2, st + 3, st + 4)
            else:
                e(f'v_lshlrev_b32 v{st+2}, 16, v{sg2+2*(g-1)}')
                e(f'v_and_b32 v{st+3}, 0xffff0000, v{sg2+2*(g-1)}')
            e(f'v_sub_f32 v{nm}, 0, v{st+2}')
            e(f'v_rcp_f32 v{st+4}, v{st+3}')
            e(f'v_mul_f32 v{s2}, v{st+3}, v{st+3}')
            e(f'v_mul_f32 v{rsl}, {fx(-LOG2E)}, v{st+4}')
            fl = self.lines; self.lines = save
            if g == 0:
                def fin0():
                    self.wait_lg('st0')
                    e(f'v_add_f32 v{st}, v{st}, v{st+2}')
                ops.append(fin0)
                ops.append(lambda: e(f'v_add_f32 v{st+1}, v{st+1}, v{st+3}'))
            for l in fl: ops.append(lambda l=l: e(l))
            def el(r):
                G_, U_, T_ = A_ + r, A_ + 16 + r, tmp + (r & 7)
                return [f'v_fma_f32 v{G_}, v{cs+r}, v{nm}, v{G_}',
                        f'v_fma_f32 v{U_}, v{cs+16+r}, v{nm}, v{U_}',
                        f'v_mul_f32 v{T_}, v{rsl}, v{G_}',
                        f'v_mul_f32 v{G_}, v{G_}, v{U_}',
                        f'v_exp_f32 v{T_}, v{T_}',
                        f'v_fma_f32 v{T_}, v{T_}, v{s2}, v{s2}',
                        f'v_rcp_f32 v{T_}, v{T_}',
                        f'v_mul_f32 v{G_}, v{G_}, v{T_}']
            for q in range(4):
                els = [el(4*q + x) for x in range(4)]
                for s_ in range(8):
                    for x in range(4): ops.append((lambda l=els[x][s_]: e(l), 2 if s_ in (4, 6) else 1))
                for x in range(2):
                    r = 4*q + 2*x
                    ops.append(lambda r=r: e(f'v_cvt_pk_bf16_f32 v{pk + r//2}, v{A_+r}, v{A_+r+1}'))
                if q in (1, 3):
                    kk = q >> 1
                    ops.append(lambda kk=kk: self.vmem(f'buffer_store_dwordx4 {vr(pk+4*kk,4)}, v{vA}, s[{R_WS}:{R_WS+3}], s{S_T4} offen offset:{1024*kk} sc1', 'act'))
            return ops
        DS = 1.5
        def rdB1(g, k, h_):
            s = (28 * g + k) % NB
            return (lambda: self.ds(f'ds_read_b64_tr_b16 {vr(B+4*s+2*h_,2)}, v{vBq + k//7} offset:{HS(g) + (k%7)*1024 + 512*h_}', f'B{g}_{k}'), DS)
        def rs(g, i):
            sb = SB + 4 * (i & 1); out = []
            for h_ in range(2):
                b_, off = (vS, HS(g) + i*2048 + 1024*h_) if HS(g) < 57344 else (vS2, i*2048 + 1024*h_)
                out.append((lambda b_=b_, off=off, h_=h_, sb=sb, i=i: self.ds(f'ds_read_b64_tr_b16 {vr(sb+2*h_,2)}, v{b_} offset:{off}', f'S{g}_{i}'), DS))
            return out
        def s2_loads():
            return [lambda gg=gg: self.vmem(f'buffer_load_dwordx2 {vr(sg2+2*(gg-1),2)}, v{vG2}, s[{R_WS}:{R_WS+3}], 0 offen offset:{256*gg} sc1', 'sg2') for gg in range(1, 4)]
        def s2_check():
            l0 = self.lab('s2'); l1 = self.lab('s2d')
            self.wait_vm('sg2')
            e(f's_mov_b32 s{S_CNT}, 0')
            self.label(l0)
            e(f'v_cmp_ne_u32 vcc, s{S_NONCE}, v{sg2+1}')
            for gg in (2, 3): e(f'v_cmp_ne_u32 s[{S_M2}:{S_M2+1}], s{S_NONCE}, v{sg2+2*gg-1}\ns_or_b64 vcc, vcc, s[{S_M2}:{S_M2+1}]')
            e(f's_cbranch_vccz {l1}')
            for gg in range(1, 4): e(f'buffer_load_dwordx2 {vr(sg2+2*(gg-1),2)}, v{vG2}, s[{R_WS}:{R_WS+3}], 0 offen offset:{256*gg} sc1')
            e('s_waitcnt vmcnt(0)')
            e(f's_add_u32 s{S_CNT}, s{S_CNT}, 1\ns_cmp_lt_u32 s{S_CNT}, {SPIN_MAX}\ns_cbranch_scc1 {l0}')
            self.label(l1)
        def red_ops(g):
            return [lambda: e(f'v_cndmask_b32 v{SG}, v{SG}, v{SG+1}, s[{K1}:{K1+1}]'),
                    lambda: e(f'v_cndmask_b32 v{SG}, v{SG}, v{SG+2}, s[{K2}:{K2+1}]'),
                    lambda: e(f'v_cndmask_b32 v{SG+5}, v{SG}, v{SG+3}, s[{K3}:{K3+1}]'),
                    lambda: e(f's_mov_b64 exec, s[{KD}:{KD+1}]'),
                    lambda: self.ds(f'ds_write_b64 v{vPw}, {vr(SG+4,2)} offset:{(g&1)*512}', f'stw{g}'),
                    lambda: e('s_mov_b64 exec, -1')]
        self.wait_vm('h0'); self.wait_all_lg(); e('s_barrier')
        self.stamp(17)
        for k in range(4):
            for h_ in range(2): rdB1(0, k, h_)[0]()
        for f in rs(0, 0) + rs(0, 1): f[0]()
        mains = []; segs = []
        KB = 22
        for g in range(4):
            A_ = acc[g & 1]; base = len(mains); pos = {}
            for k in range(28):
                cg = '0' if k == 0 else vr(A_, 16); cu = '0' if k == 0 else vr(A_ + 16, 16)
                pre = []
                if g == 1 and k == 2: pre.append(lambda: e('s_barrier'))
                if g in (2, 3) and k == 2: pre.append(lambda: e('s_barrier'))
                if g == 0 and k == 26: pre.append(lambda: self.wait_lg('w1r'))
                if k == KB:
                    if g < 3: pre.append(lambda g=g: self.wait_vm(f'h{g+1}'))
                    if g == 0: pre.append(lambda g=g: self.wait_lg(f'stw{g}'))
                    pre.append(lambda: e('s_barrier'))
                    if o.get('passstamps'): pre.append(lambda g=g: self.stamp(26 + g))
                pre.append(lambda k=k, g=g: self.wait_lg(f'B{g}_{k}'))
                nx = (g, k + 4) if k + 4 < 28 else ((g + 1, k + 4 - 28) if g < 3 else None)
                p0 = [rdB1(nx[0], nx[1], 0)] if nx else []; p1 = [rdB1(nx[0], nx[1], 1)] if nx else []
                pos[k] = len(mains)
                mains.append((pre, lambda k=k, cg=cg, A_=A_, g=g: e(f'v_mfma_f32_32x32x16_bf16 {vr(A_,16)}, {ar(8*k,4)}, {vr(B+4*((28*g+k)%NB),4)}, {cg}'), 32, p0))
                mains.append(([], lambda k=k, cu=cu, A_=A_, g=g: e(f'v_mfma_f32_32x32x16_bf16 {vr(A_+16,16)}, {ar(8*k+4,4)}, {vr(B+4*((28*g+k)%NB),4)}, {cu}'), 32, p1))
                if g == 0:
                    if k % 3 == 0 and k < 21:
                        i_ = k // 3; sb = SB + 4 * (i_ & 1); c_ = '0' if i_ == 0 else vr(SG, 4)
                        mains.append(([lambda i_=i_, g=g: self.wait_lg(f'S{g}_{i_}')], lambda sb=sb, c_=c_: e(f'v_mfma_f32_16x16x32_bf16 {vr(SG,4)}, {vr(sb,4)}, {vr(sb,4)}, {c_}'), 16, []))
                    if k % 3 == 1 and k < 21:
                        i_ = k // 3; sb = SB + 4 * (i_ & 1); c_ = '0' if i_ == 0 else vr(SG + 4, 4)
                        mains.append(([], lambda sb=sb, c_=c_: e(f'v_mfma_f32_16x16x32_bf16 {vr(SG+4,4)}, {vr(ones,4)}, {vr(sb,4)}, {c_}'), 16,
                                      rs(g, i_ + 2) if i_ + 2 < 7 else []))
            def addpost(k, items, which=0):
                pre_, m_, d_, post_ = mains[pos[k] + which]
                mains[pos[k] + which] = (pre_, m_, d_, post_ + items)
            if g == 0:
                addpost(KB - 1, red_ops(g), 1)
                w1t = [(f, DS) for k in (26, 27) for f in self.w1_reads(k)]
                for q in range(8): addpost(KB + (q >> 2), [w1t[q]], (q >> 1) & 1)
                for k_ in (26, 27):
                    for u_ in range(2):
                        mains.append(([], lambda k_=k_, u_=u_: e(f'v_mfma_f32_32x32x16_bf16 {vr(cs+16*u_,16)}, {ar(8*k_+4*u_,4)}, {vr(ones,4)}, {vr(cs+16*u_,16)}'), 32, []))
            if g == 3:
                for i_ in range(9):
                    rr = [(f, DS) for f in self.wd_reads(i_)]
                    for q in range(4): addpost(10 + 2*i_ + (q >> 1), [rr[q]], q & 1)
                pre_, m_, d_, post_ = mains[pos[10]]
                mains[pos[10]] = (pre_, m_, d_, post_[:1] + [lambda: self.wait_vm('wdA')] + post_[1:])
            if g == 1:
                addpost(4, s2_loads(), 1)
                addpost(26, [(s2_check, 8)], 1)
            ep = []
            if g > 0:
                if g == 1: ep.append(lambda g=g: st_reads(0))
                ep.append(lambda g=g: e(f's_mov_b32 s{S_T4}, {(g-1)*112*1024}'))
                ep += epilogue_ops(g - 1)
            mf = []
            if g == 0:
                for i in range(7): mf += hdma(2, i)
            mf2 = []
            if g == 0:
                pass
            mf3 = []
            if g == 1:
                for i in range(7): mf2 += hdma(3, i)
                for k_ in range(0, 5): mf3 += self.wd_dma(k_, 'wdA')
            if g == 2:
                for k_ in range(5, 9): mf3 += self.wd_dma(k_, 'wdA')
                for k_ in range(9, 12): mf3 += self.wd_dma(k_, 'wdB')
            if g == 3:
                for k_ in range(12, 15): mf3 += self.wd_dma(k_, 'wdC')
            if o.get('x_noep'): ep = []
            merged = []; a_, c_ = list(ep), list(mf)
            ra = len(a_) / max(1, len(a_) + len(c_)); acc_ = 0.0
            while a_ or c_:
                acc_ += ra
                if (acc_ >= 1.0 - 1e-9 and a_) or not c_:
                    acc_ -= 1.0; merged.append(a_.pop(0))
                else: merged.append(c_.pop(0))
            end = len(mains) if g < 3 else len(mains) - 2
            if mf2: segs.append((pos[2], pos[12], mf2))
            if mf3: segs.append((pos[12] if mf2 else pos[2], pos[27] if g < 3 else pos[10], mf3))
            segs.append((base, end, merged))
        self.sched(mains, None, segs=segs)
        self.stamp(18)
        e(f's_mov_b32 s{S_T4}, {3*112*1024}')
        for f in epilogue_ops(3): (f[0] if isinstance(f, tuple) else f)()
        self.stamp(19)
        for x, n in ((vD,1),(vB,1),(vS,1),(t,1),(t2,1),(cs,32),(vA,1),(vG2,1),(sg2,6),(B,4*NB),(SB,8),(ones,4),(SG,8),(acc[0],32),(acc[1],32),(st,6),(par,3),(tmp,8),(pk,8),(vP,1),(vPw,1),(vBq,4),(vS2,1)):
            V.free(x, n)
        V.free(self.vTS, 4); V.free(self.vW1)
        self.wait_lg('wdr3')
        for k_ in range(15, 19):
            for f in self.wd_dma(k_, 'wdD'): f()
        self.wait_vm('act'); e('s_barrier')
        e(f's_lshl_b32 s{S_T1}, s{S_RB}, 4\ns_add_u32 s{S_T1}, s{S_T1}, s{S_FB}')
        self.signal(WS_FLAG3, f's{S_T1}')
        self.stamp(20)

    def phaseC(self):
        e = self.e; V = self.V; o = self.o
        self.c('================= phase C')
        t = V.alloc(1); t2 = V.alloc(1)
        self.wait_all_lg()
        for k_ in range(19, 24):
            for f in self.wd_dma(k_, 'wdE'): f()
        self.wait_vm('wdC')
        for k_ in range(9, 15):
            for f in self.wd_reads(k_): f()
        self.wait_all_lg()
        for k_ in range(24, 28):
            for f in self.wd_dma(k_, 'wdF'): f()
        self.wait_vm('wdE')
        for k_ in range(15, 24):
            for f in self.wd_reads(k_): f()
        self.wait_vm('wdF')
        for k_ in range(24, 28):
            for f in self.wd_reads(k_): f()
        self.wait_all_lg()
        V.free(self.vWD, 2); V.free(self.vWT, 6)
        self.stamp(21)
        e(f's_lshr_b32 s{S_T0}, s{S_RB2}, 1\ns_mul_i32 s{S_T0}, s{S_T0}, {16*FLAG_STRIDE}')
        self.poll_flags(WS_FLAG3, 16, 1, sbase=S_T0)
        self.vm.drain(); self.lg.drain()
        self.stamp(22)
        vA = V.alloc(1)
        e(f's_mul_i32 s{S_T0}, s{S_RB2}, {2*112}\ns_mul_i32 s{S_T1}, s{S_W}, 28\ns_add_u32 s{S_T0}, s{S_T0}, s{S_T1}\ns_lshl_b32 s{S_T0}, s{S_T0}, 10\ns_add_u32 s{S_T0}, s{S_T0}, {WS_ACT}\nv_lshl_add_u32 v{vA}, v1, 4, s{S_T0}')
        NR = 16
        Bf = V.alloc(8 * NR, 4); acc = V.alloc(64, 4)
        def ld(k):
            for nt in range(2):
                e(f's_add_u32 s{S_T1}, s{S_RA0 + k//7}, {(nt*112 + k%7)*1024}')
                self.vmem(f'buffer_load_dwordx4 {vr(Bf+8*(k%NR)+4*nt,4)}, v{vA}, s[{R_WS}:{R_WS+3}], s{S_T1} offen {o.get("aflags", "sc1")}', f'a{k}')
        for k in range(NR): ld(k)
        hres = V.alloc(8, 4); vR = V.alloc(1)
        e(f's_lshl_b32 s{S_T0}, s{S_RB2}, 1\ns_and_b32 s{S_T1}, s{S_W}, 1\ns_add_u32 s{S_T0}, s{S_T0}, s{S_T1}\ns_mul_i32 s{S_T0}, s{S_T0}, 28')
        e(f's_lshl_b32 s{S_T1}, s{S_DB}, 2\ns_add_u32 s{S_T0}, s{S_T0}, s{S_T1}\ns_and_b32 s{S_T1}, s{S_W}, 2\ns_add_u32 s{S_T0}, s{S_T0}, s{S_T1}\ns_lshl_b32 s{S_T0}, s{S_T0}, 10\ns_add_u32 s{S_T0}, s{S_T0}, {WS_HD}\nv_lshl_add_u32 v{vR}, v1, 4, s{S_T0}')
        A = lambda mt, nt: acc + 16 * (2 * mt + nt)
        for k in range(28):
            self.wait_vm(f'a{k}')
            for mt in range(2):
                for nt in range(2):
                    cin = '0' if k == 0 else vr(A(mt, nt), 16)
                    e(f'v_mfma_f32_32x32x16_bf16 {vr(A(mt,nt),16)}, {ar(8*k+4*mt,4)}, {vr(Bf+8*(k%NR)+4*nt,4)}, {cin}')
            if k + NR < 28: ld(k + NR)
            if k == 12:
                for kk in range(2): self.vmem(f'buffer_load_dwordx4 {vr(hres+4*kk,4)}, v{vR}, s[{R_WS}:{R_WS+3}], 0 offen offset:{1024*kk} sc1', 'hres')
        self.stamp(23)
        V.free(Bf, 8 * NR)
        ra = V.alloc(1); keep = V.alloc(16, 4); rr = V.alloc(48, 4)
        e(f's_lshl_b32 s{S_T0}, s{S_W}, 12\nv_lshl_add_u32 v{ra}, v1, 4, s{S_T0}')
        labs = [self.lab(f'r{w}') for w in range(4)]; ld_ = self.lab('rd')
        for w in range(1, 4): e(f's_cmp_eq_u32 s{S_W}, {w}\ns_cbranch_scc1 {labs[w]}')
        for w in range(4):
            if w: self.label(labs[w]); e('s_nop 7\ns_nop 3')
            for T in range(4):
                if T == w: continue
                for q in range(4): e(f'ds_write_b128 v{ra}, {vr(acc+16*T+4*q,4)} offset:{T*16384 + q*1024}')
            for i in range(16): e(f'v_mov_b32 v{keep+i}, v{acc+16*w+i}')
            if w < 3: e(f's_branch {ld_}')
        self.label(ld_)
        e('s_waitcnt lgkmcnt(0)'); self.lg.drain()
        e('s_barrier')
        e(f's_lshl_b32 s{S_T0}, s{S_W}, 14\nv_lshl_add_u32 v{ra}, v1, 4, s{S_T0}')
        for j in range(1, 4):
            e(f's_add_u32 s{S_T1}, s{S_W}, {j}\ns_and_b32 s{S_T1}, s{S_T1}, 3\ns_lshl_b32 s{S_T1}, s{S_T1}, 12\nv_add_u32 v{t}, s{S_T1}, v{ra}')
            for q in range(4): self.ds(f'ds_read_b128 {vr(rr+16*(j-1)+4*q,4)}, v{t} offset:{q*1024}', f'rr{j}')
        vO = V.alloc(1)
        e(f'v_and_b32 v{t}, 31, v1\nv_mul_u32_u24 v{vO}, 896, v{t}\nv_lshrrev_b32 v{t}, 5, v1\nv_lshl_add_u32 v{vO}, v{t}, 4, v{vO}')
        e(f's_lshl_b32 s{S_T0}, s{S_RB2}, 1\ns_and_b32 s{S_T1}, s{S_W}, 1\ns_add_u32 s{S_T0}, s{S_T0}, s{S_T1}\ns_mul_i32 s{S_T0}, s{S_T0}, {32*896}')
        e(f's_lshl_b32 s{S_T1}, s{S_DB}, 7\ns_add_u32 s{S_T0}, s{S_T0}, s{S_T1}\ns_and_b32 s{S_T1}, s{S_W}, 2\ns_lshl_b32 s{S_T1}, s{S_T1}, 5\ns_add_u32 s{S_T0}, s{S_T0}, s{S_T1}\nv_add_u32 v{vO}, s{S_T0}, v{vO}')
        for j in range(1, 4):
            self.wait_lg(f'rr{j}')
            for i in range(0, 16, 2): e(f'v_pk_add_f32 {vr(keep+i,2)}, {vr(keep+i,2)}, {vr(rr+16*(j-1)+i,2)}')
        self.wait_vm('hres')
        P = V.alloc(8, 4); w8 = rr
        for d in range(8): e(f'v_cvt_pk_bf16_f32 v{P+d}, v{keep+2*d}, v{keep+2*d+1}')
        for d in range(8):
            e(f'v_lshlrev_b32 v{w8+2*d}, 16, v{P+d}\nv_and_b32 v{w8+2*d+1}, 0xffff0000, v{P+d}')
            e(f'v_lshlrev_b32 v{w8+16+2*d}, 16, v{hres+d}\nv_and_b32 v{w8+16+2*d+1}, 0xffff0000, v{hres+d}')
        for d in range(8): e(f'v_pk_add_f32 {vr(w8+2*d,2)}, {vr(w8+2*d,2)}, {vr(w8+16+2*d,2)}')
        for d in range(8): e(f'v_cvt_pk_bf16_f32 v{P+d}, v{w8+2*d}, v{w8+2*d+1}')
        for kk in range(2):
            b = P + 4 * kk
            e(f'v_permlane32_swap_b32 v{b}, v{b+2}\nv_permlane32_swap_b32 v{b+1}, v{b+3}')
        for kk in range(2):
            self.vmem(f'buffer_store_dwordx4 {vr(P+4*kk,4)}, v{vO}, s[{R_OUT}:{R_OUT+3}], 0 offen offset:{32*kk} {o.get("outflags", "")}', 'out')
        self.stamp(24)

    def build(self):
        e = self.e
        self.prologue()
        e(f's_cmp_ge_u32 s{S_J}, 28\ns_cbranch_scc0 L_worker')
        saveV = list(self.V.used)
        self.helper()
        self.V.used = saveV; self.vm.drain(); self.lg.drain()
        self.label('L_worker')
        self.phaseA()
        upto = self.o.get('upto', 'C')
        if upto in ('B', 'C'): self.phaseB()
        if upto == 'C': self.phaseC()
        if self.o.get('padto'):
            e('s_waitcnt vmcnt(0)')
            self.label('L_pad')
            e(f's_memrealtime s[{S_TS}:{S_TS+1}]\ns_waitcnt lgkmcnt(0)\ns_sub_u32 s{S_TS}, s{S_TS}, s{S_TS+6}\ns_cmp_lt_u32 s{S_TS}, {self.o.get("padto")}\ns_cbranch_scc1 L_pad')
        self.label('L_end')
        e('s_endpgm')

HEADER = open(os.path.join(os.path.dirname(os.path.abspath(__file__)), 'header.txt')).read() if os.path.exists(os.path.join(os.path.dirname(os.path.abspath(__file__)), 'header.txt')) else ''

def generate(opt):
    g = Gen(opt)
    g.build()
    lines, problems = fix_hazards(g.lines, verbose=opt.get('verbose', False))
    for p in problems: print('BACKEDGE HAZARD:', p, file=sys.stderr)
    out = [HEADER.rstrip('\n').replace('@@GRID@@', f'; @launch grid=(256,1,1) block=(256,1,1) lds={LDS_SIZE}')]
    out += ['.amdgcn_target "amdgcn-amd-amdhsa--gfx950"', '.text', f'.globl {NAME}', '.p2align 8', f'.type {NAME},@function', f'{NAME}:']
    for l in lines:
        out.append(l if l.endswith(':') else '    ' + l)
    out += ['.section .rodata,"a"', '.p2align 6', f'.amdhsa_kernel {NAME}',
            '  .amdhsa_next_free_vgpr 512', '  .amdhsa_next_free_sgpr 102', '  .amdhsa_accum_offset 256',
            '  .amdhsa_group_segment_fixed_size 0', '  .amdhsa_kernarg_size 128', '  .amdhsa_user_sgpr_count 2',
            '  .amdhsa_user_sgpr_kernarg_segment_ptr 1', '  .amdhsa_system_sgpr_workgroup_id_x 1',
            '  .amdhsa_float_denorm_mode_32 3', '.end_amdhsa_kernel', '']
    if opt.get('verbose'): print('max arch vgpr', g.V.hi, 'lines', len(lines))
    return '\n'.join(out)

if __name__ == '__main__':
    import json
    opt = json.loads(sys.argv[2]) if len(sys.argv) > 2 else {}
    opt['verbose'] = True
    txt = generate(opt)
    open(sys.argv[1], 'w').write(txt)
```

```python
import sys, os, math, struct
sys.path.insert(0, os.path.dirname(os.path.abspath(__file__)))
from asmlib import *

NAME = 'sequential_preLN__ssm_conv_s4__swiglu_ffn__prompt_kernel'
def f2u(x): return struct.unpack('<I', struct.pack('<f', x))[0]
def fx(x): return hex(f2u(x))
LOG2E = 1.4426950408889634
WS_STATS = 0x0
WS_FLAG2 = 0x4000
WS_FLAG3 = 0xC000
WS_STATS2 = 0x10000
WS_HT    = 0x20000
HT_STRIDE = 4352
WS_HD    = 0x200000
WS_ACT   = 0x400000
WS_XT    = 0xB00000
XT_STRIDE = 4352
WS_DBG   = 0xE00000
WS_SIZE  = 0x2000000
FLAG_STRIDE = 16
TBL_E = 1088; TBL_C = 18 * TBL_E
L_TBL = 0
L_EX = 2 * TBL_C
L_K32 = 55680; K32_C = 9344
L_RED = L_K32
L_STG = 87040; STG_SLOT = 8192
L_STGX = 74496
L_KC = 0; KC_S = 4160; KC_C = 4 * KC_S
L_U = 2 * KC_C; U_C = 5120
L_X = L_U + 2 * U_C; X_C = 4096
LDS_SIZE = 163840
HX_STRIDE = 912
S_X, S_ARE, S_AIM, S_BRE, S_BIM, S_CRE, S_CIM, S_LDT, S_DSK, S_BX, S_WG, S_WU, S_WD, S_OUT, S_DBG, S_WS = range(4, 36, 2)
R_X, R_WS, R_DBG, R_WG, R_WU, R_WD, R_OUT = 36, 40, 44, 48, 52, 56, 60
S_W, S_NONCE, S_XCD, S_J, S_CP, S_T0, S_T1, S_T2, S_T3, S_T4, S_T5 = 64, 65, 66, 67, 68, 69, 70, 71, 72, 73, 74
S_LD, S_DK = 75, 76
S_RB, S_FB, S_RB2, S_DB = 77, 78, 79, 80
S_M0, S_M1, S_M2, S_M3 = 82, 84, 86, 88
S_CNT = 90
S_HID = 91
S_WM, S_WO, S_US = 81, 100, 101
S_ROT = 99
S_WA, S_WB, S_WC = 18, 19, 20
S_RW0, S_RA0 = 24, 28
S_Q0 = 14
S_TS = 92
SPIN_MAX = 200000

class Gen(Asm):
    def __init__(self, opt):
        super().__init__()
        self.o = opt
        self.V = Regs('v', 256, start=2)
        if opt.get('stamps'): self.V.take(253, 3)
        self.uid = 0
    def lab(self, s):
        self.uid += 1
        return f'L{s}_{self.uid}'
    def srd(self, r, ptr, size):
        self.e(f's_mov_b32 s{r}, s{ptr}\ns_mov_b32 s{r+1}, s{ptr+1}\ns_mov_b32 s{r+2}, {hex(size)}\ns_mov_b32 s{r+3}, 0x20000')
    def cmul(self, d, a, b, t=None):
        t = d if t is None else t
        self.e(f'v_pk_mul_f32 {vr(t,2)}, {vr(a,2)}, {vr(b,2)} op_sel:[0,0] op_sel_hi:[0,1]')
        self.e(f'v_pk_fma_f32 {vr(d,2)}, {vr(a,2)}, {vr(b,2)}, {vr(t,2)} op_sel:[1,1,0] op_sel_hi:[1,0,1] neg_lo:[0,1,0]')
    def cmul_multi(self, items):
        for d, a, b, t in items:
            t = d if t is None else t
            self.e(f'v_pk_mul_f32 {vr(t,2)}, {vr(a,2)}, {vr(b,2)} op_sel:[0,0] op_sel_hi:[0,1]')
        for d, a, b, t in items:
            t = d if t is None else t
            self.e(f'v_pk_fma_f32 {vr(d,2)}, {vr(a,2)}, {vr(b,2)}, {vr(t,2)} op_sel:[1,1,0] op_sel_hi:[1,0,1] neg_lo:[0,1,0]')
    def stamp(self, i):
        dm = self.o.get('dbgmap')
        if dm and i in dm:
            lab = self.lab('ds')
            self.e(f's_cmp_lg_u32 s2, {self.o.get("dbgwg", 8)}\ns_cbranch_scc1 {lab}\ns_cmp_lg_u32 s{S_W}, 0\ns_cbranch_scc1 {lab}')
            self.e(f's_memrealtime s[{S_TS}:{S_TS+1}]\ns_waitcnt lgkmcnt(0)')
            v = self.V.alloc(2)
            self.e(f's_sub_u32 s{S_TS}, s{S_TS}, s{S_TS+6}\nv_mov_b32 v{v}, s{S_TS}\nv_mov_b32 v{v+1}, {4*(1+dm.index(i))}')
            self.e(f's_mov_b64 s[{S_TS+4}:{S_TS+5}], exec\ns_mov_b64 exec, 1')
            self.e(f'buffer_store_dword v{v}, v{v+1}, s[{R_DBG}:{R_DBG+3}], 0 offen')
            self.e(f's_mov_b64 exec, s[{S_TS+4}:{S_TS+5}]')
            self.V.free(v, 2)
            self.label(lab)
            self.e('s_waitcnt lgkmcnt(0)')
            self.lg.drain()
        if self.o.get('stamps') and (self.o.get('only') is None or i in self.o['only']):
            self.e(f's_memrealtime s[{S_TS}:{S_TS+1}]\ns_memtime s[{S_TS+4}:{S_TS+5}]')
            self.e('s_waitcnt lgkmcnt(0)'); self.lg.drain()
            self.e(f'v_writelane_b32 v254, s{S_TS}, {i}\nv_writelane_b32 v255, s{S_TS+4}, {i}')

    def stamps_out(self):
        if self.o.get('stamps'):
            e = self.e
            e(f's_lshl_b32 s{S_TS+2}, s2, 10\ns_lshl_b32 s{S_TS+3}, s{S_W}, 8\ns_add_u32 s{S_TS+2}, s{S_TS+2}, s{S_TS+3}\ns_add_u32 s{S_TS+2}, s{S_TS+2}, {WS_DBG}')
            e(f'v_lshl_add_u32 v253, v1, 2, s{S_TS+2}\ns_mov_b32 exec_lo, -1\ns_mov_b32 exec_hi, 0')
            e(f'buffer_store_dword v254, v253, s[{R_WS}:{R_WS+3}], 0 offen\nbuffer_store_dword v255, v253, s[{R_WS}:{R_WS+3}], 0 offen offset:128')

    def prologue(self):
        e = self.e
        e(f's_cmp_ge_u32 s2, 256\ns_cbranch_scc1 L_end')
        e(f's_load_dwordx16 s[4:19], s[0:1], 0\ns_load_dwordx16 s[20:35], s[0:1], 64')
        e(f's_memrealtime s[{S_M0}:{S_M0+1}]')
        e('v_and_b32 v1, 63, v0')
        if self.o.get('stamps'): e('v_mov_b32 v254, 0x5a5a5a5a\nv_mov_b32 v255, 0x5a5a5a5a')
        v = self.V.alloc(1)
        e(f'v_lshrrev_b32 v{v}, 6, v0')
        e(f's_and_b32 s{S_XCD}, s2, 7\ns_lshr_b32 s{S_J}, s2, 3')
        e(f'v_readfirstlane_b32 s{S_W}, v{v}')
        self.V.free(v)
        e(f's_mul_i32 s{S_CP}, s{S_XCD}, 28\ns_add_u32 s{S_CP}, s{S_CP}, s{S_J}')
        e(f's_cmp_ge_u32 s{S_J}, 28\ns_cbranch_scc0 L_worker')

    def srds(self, skip=()):
        e = self.e
        for r, p, n in ((R_X, S_X, 2048*448*2), (R_WS, S_WS, WS_SIZE), (R_DBG, S_DBG, 256), (R_WG, S_WG, 448*1792*2), (R_WU, S_WU, 448*1792*2),
                        (R_WD, S_WD, 448*1792*2), (R_OUT, S_OUT, 2048*448*2)):
            if r not in skip: self.srd(r, p, n)

    def publish_nonce(self):
        e = self.e
        e(f's_or_b32 s{S_NONCE}, s{S_M0}, 1\ns_mov_b32 s{S_TS+6}, s{S_M0}')
        lab = self.lab('non')
        e(f's_or_b32 s{S_T0}, s2, s{S_W}\ns_cmp_lg_u32 s{S_T0}, 0\ns_cbranch_scc1 {lab}')
        v = self.V.alloc(2)
        e(f'v_mov_b32 v{v}, s{S_NONCE}\nv_mov_b32 v{v+1}, 0')
        e(f's_mov_b64 s[{S_M1}:{S_M1+1}], exec\ns_mov_b64 exec, 1')
        e(f'buffer_store_dword v{v}, v{v+1}, s[{R_DBG}:{R_DBG+3}], 0 offen sc1')
        e(f's_mov_b64 exec, s[{S_M1}:{S_M1+1}]')
        self.V.free(v, 2)
        self.label(lab)

    def capture(self, fn):
        save = self.lines; self.lines = []
        r = fn()
        fl = self.lines; self.lines = save
        return r, [(lambda l=l: self.e(l)) for l in fl if not l.startswith(';')]

    def two_paths(self, fn, nop=7):
        e = self.e; l1 = self.lab('p1'); ld = self.lab('pd')
        e(f's_and_b32 s{S_T5}, s{S_W}, 1\ns_cmp_lg_u32 s{S_T5}, 0\ns_cbranch_scc1 {l1}')
        st = (list(self.vm.q), list(self.lg.q), list(self.V.used))
        fn(0)
        e(f's_branch {ld}')
        end = (list(self.vm.q), list(self.lg.q), list(self.V.used))
        self.vm.q, self.lg.q, self.V.used = list(st[0]), list(st[1]), list(st[2])
        self.label(l1)
        e(f's_nop {nop}')
        fn(1)
        assert (self.vm.q, self.lg.q, self.V.used) == end, 'paths diverge'
        self.label(ld)

    def get_nonce(self):
        e = self.e
        v = self.V.alloc(2)
        l0 = self.lab('gn'); l1 = self.lab('gnd')
        e(f'v_mov_b32 v{v+1}, 0\ns_mov_b32 s{S_CNT}, 0')
        self.label(l0)
        e(f'buffer_load_dword v{v}, v{v+1}, s[{R_DBG}:{R_DBG+3}], 0 offen sc1')
        e('s_waitcnt vmcnt(0)'); self.vm.drain()
        e(f'v_readfirstlane_b32 s{S_NONCE}, v{v}')
        e(f's_cmp_lg_u32 s{S_NONCE}, 0\ns_cbranch_scc1 {l1}')
        e(f's_add_u32 s{S_CNT}, s{S_CNT}, 1\ns_cmp_lt_u32 s{S_CNT}, {SPIN_MAX}\ns_cbranch_scc1 {l0}')
        self.label(l1)
        self.V.free(v, 2)

    def helper(self):
        e = self.e; V = self.V
        self.c('================= helper: x^T + LN1 stats')
        e('s_waitcnt lgkmcnt(0)')
        self.srd(R_X, S_X, 2048*448*2)
        e(f's_mov_b32 s{S_TS+6}, s{S_M0}')
        e(f's_sub_u32 s{S_HID}, s{S_J}, 28\ns_lshl_b32 s{S_T0}, s{S_XCD}, 2\ns_add_u32 s{S_HID}, s{S_HID}, s{S_T0}')
        va = V.alloc(1); t0 = V.alloc(1); t1 = V.alloc(1)
        e(f's_lshl_b32 s{S_T0}, s{S_HID}, 6\ns_lshl_b32 s{S_T1}, s{S_W}, 4\ns_add_u32 s{S_T0}, s{S_T0}, s{S_T1}')
        e(f's_mul_i32 s{S_T2}, s{S_T0}, 896\ns_mul_i32 s{S_T3}, s{S_T1}, {HX_STRIDE}')
        e(f'v_lshlrev_b32 v{va}, 4, v1')
        e(f's_mov_b64 s[{S_M1}:{S_M1+1}], exec\ns_mov_b32 exec_lo, -1\ns_mov_b32 exec_hi, 0x00ffffff')
        for r in range(16):
            e(f's_add_u32 m0, s{S_T3}, {r*HX_STRIDE}\ns_add_u32 s{S_T4}, s{S_T2}, {r*896}')
            self.vmem(f'buffer_load_dwordx4 v{va}, s[{R_X}:{R_X+3}], s{S_T4} offen lds', 'x')
        e(f's_mov_b64 exec, s[{S_M1}:{S_M1+1}]')
        self.srds(skip=(R_X,))
        self.stamp(0)
        vT = V.alloc(1); vO = V.alloc(1); vA = V.alloc(1)
        e(f'v_lshrrev_b32 v{t0}, 4, v1\nv_lshlrev_b32 v{t0}, 1, v{t0}\nv_bfe_u32 v{t1}, v1, 1, 1\nv_add_u32 v{t0}, v{t0}, v{t1}\nv_lshlrev_b32 v{t0}, 3, v{t0}')
        e(f'v_bfe_u32 v{t1}, v1, 2, 2\nv_add_u32 v{t0}, v{t0}, v{t1}\nv_mul_u32_u24 v{vT}, {HX_STRIDE}, v{t0}')
        e(f'v_and_b32 v{t1}, 1, v1\nv_lshl_add_u32 v{vT}, v{t1}, 3, v{vT}\ns_lshl_b32 s{S_T0}, s{S_W}, 4\nv_add_u32 v{vT}, s{S_T0}, v{vT}')
        e(f's_lshl_b32 s{S_T0}, s{S_W}, 15\ns_lshl_b32 s{S_T1}, s{S_HID}, 10\ns_add_u32 s{S_T0}, s{S_T0}, s{S_T1}\ns_add_u32 s{S_T0}, s{S_T0}, {WS_XT}\nv_lshl_add_u32 v{vO}, v1, 4, s{S_T0}')
        e(f'v_and_b32 v{t0}, 15, v1\nv_lshrrev_b32 v{t1}, 4, v1')
        e(f's_lshl_b32 s{S_T0}, s{S_W}, 4\nv_add_u32 v{t0}, s{S_T0}, v{t0}\nv_mul_u32_u24 v{vA}, {HX_STRIDE}, v{t0}\nv_lshl_add_u32 v{vA}, v{t1}, 4, v{vA}')
        e(f's_lshl_b32 s{S_T0}, s{S_HID}, 6\nv_add_u32 v{t0}, s{S_T0}, v{t0}')
        self.get_nonce()
        e('s_barrier')
        self.stamp(3)
        Q = V.alloc(56, 4)
        for u in range(14):
            for k_ in range(2):
                self.ds(f'ds_read_b64_tr_b16 {vr(Q+4*u+2*k_,2)}, v{vT} offset:{64*u + 4*k_*HX_STRIDE}', f'q{u}')
        for u in range(14):
            self.wait_lg(f'q{u}')
            e(f's_mov_b32 s{S_T1}, {u*4*32768}')
            self.vmem(f'buffer_store_dwordx4 {vr(Q+4*u,4)}, v{vO}, s[{R_WS}:{R_WS+3}], s{S_T1} offen sc1', 'xt')
        self.stamp(4)
        xa = V.alloc(56, 4)
        for s in range(14): self.ds(f'ds_read_b128 {vr(xa+4*s,4)}, v{vA} offset:{64*s}', f'x{s}')
        acc = V.alloc(8, 2)
        e(f's_mov_b32 s{S_T2}, 0x3f803f80')
        for i in range(8): e(f'v_mov_b32 v{acc+i}, 0')
        for s in range(14):
            self.wait_lg(f'x{s}')
            for r in range(4):
                e(f'v_dot2_f32_bf16 v{acc+r}, v{xa+4*s+r}, s{S_T2}, v{acc+r}')
                e(f'v_dot2_f32_bf16 v{acc+4+r}, v{xa+4*s+r}, v{xa+4*s+r}, v{acc+4+r}')
        e(f'v_add_f32 v{acc}, v{acc}, v{acc+1}\nv_add_f32 v{acc+2}, v{acc+2}, v{acc+3}\nv_add_f32 v{acc+4}, v{acc+4}, v{acc+5}\nv_add_f32 v{acc+6}, v{acc+6}, v{acc+7}')
        e(f'v_add_f32 v{acc}, v{acc}, v{acc+2}\nv_add_f32 v{acc+4}, v{acc+4}, v{acc+6}')
        S = acc; Qs = acc + 4
        for swap in ('v_permlane32_swap_b32', 'v_permlane16_swap_b32'):
            e(f'v_mov_b32 v{acc+1}, v{S}\nv_mov_b32 v{acc+5}, v{Qs}')
            e(f'{swap} v{S}, v{acc+1}\n{swap} v{Qs}, v{acc+5}')
            e(f'v_add_f32 v{S}, v{S}, v{acc+1}\nv_add_f32 v{Qs}, v{Qs}, v{acc+5}')
        pk = V.alloc(2, 2)
        self.ln_finalize(S, Qs, acc + 1, acc + 2, acc + 3)
        e(f'v_lshrrev_b32 v{pk}, 16, v{acc+1}\nv_or_b32 v{pk}, v{pk}, v{acc+2}')
        self.stamp(5)
        self.wait_all_vm()
        e('s_barrier')
        self.stamp(6)
        e(f'v_mov_b32 v{pk+1}, s{S_NONCE}')
        e(f'v_lshlrev_b32 v{t0}, 3, v{t0}')
        if WS_STATS: e(f'v_add_u32 v{t0}, {WS_STATS}, v{t0}')
        e(f's_mov_b64 s[{S_M1}:{S_M1+1}], exec\ns_mov_b64 exec, 0xffff')
        self.vmem(f'buffer_store_dwordx2 {vr(pk,2)}, v{t0}, s[{R_WS}:{R_WS+3}], 0 offen sc1', 'st')
        e(f's_mov_b64 exec, s[{S_M1}:{S_M1+1}]')
        self.stamp(1)
        V.free(pk, 2); V.free(acc, 8); V.free(xa, 56); V.free(Q, 56); V.free(vT); V.free(vO); V.free(vA)
        e('s_barrier')
        if self.o.get('touch_wd', True):
            tv = V.alloc(13); ta = V.alloc(2)
            e(f's_sub_u32 s{S_T0}, s{S_J}, 28\ns_mul_i32 s{S_T0}, s{S_T0}, {448*896}')
            for k in range(13):
                e(f'v_add_u32 v{ta}, {256*k}, v0\nv_min_u32 v{ta}, 3135, v{ta}\nv_mul_u32_u24 v{ta+1}, 9363, v{ta}\nv_lshrrev_b32 v{ta+1}, 16, v{ta+1}')
                e(f'v_mul_u32_u24 v{tv+k}, 7, v{ta+1}\nv_sub_u32 v{ta}, v{ta}, v{tv+k}\nv_mul_u32_u24 v{ta+1}, 896, v{ta+1}\nv_lshl_add_u32 v{ta+1}, v{ta}, 7, v{ta+1}')
                e(f'buffer_load_dword v{tv+k}, v{ta+1}, s[{R_WD}:{R_WD+3}], s{S_T0} offen')
            self.wait_all_vm()
            V.free(tv, 13); V.free(ta, 2)
        self.c('helper: LN2 stats + hD')
        vD = V.alloc(1); vB = V.alloc(2); vS = V.alloc(1); vHs = V.alloc(1)
        e(f'v_lshrrev_b32 v{t0}, 3, v1\nv_mul_u32_u24 v{vD}, {HT_STRIDE}, v{t0}\nv_bfe_u32 v{t0}, v1, 4, 1\nv_lshlrev_b32 v{t0}, 2, v{t0}\nv_and_b32 v{t1}, 7, v1\nv_xor_b32 v{t0}, v{t0}, v{t1}\nv_lshl_add_u32 v{vD}, v{t0}, 4, v{vD}')
        e(f's_lshl_b32 s{S_T0}, s{S_HID}, 7\ns_mul_i32 s{S_T1}, s{S_W}, {8*HT_STRIDE}\ns_add_u32 s{S_T0}, s{S_T0}, s{S_T1}\ns_add_u32 s{S_T0}, s{S_T0}, {WS_HT}\nv_add_u32 v{vD}, s{S_T0}, v{vD}')
        e(f'v_lshrrev_b32 v{t0}, 5, v1\nv_lshlrev_b32 v{vB}, 9, v{t0}\nv_bfe_u32 v{t0}, v1, 2, 2\nv_lshl_add_u32 v{vB}, v{t0}, 7, v{vB}')
        e(f'v_bfe_u32 v{t0}, v1, 4, 1\nv_lshl_add_u32 v{vB}, v{t0}, 5, v{vB}\nv_and_b32 v{t0}, 3, v1\nv_lshl_add_u32 v{vB}, v{t0}, 3, v{vB}')
        e(f'v_bfe_u32 v{t0}, v1, 3, 1\nv_lshlrev_b32 v{t0}, 6, v{t0}\nv_xor_b32 v{t1}, 64, v{t0}\nv_add_u32 v{vB+1}, v{vB}, v{t1}\nv_add_u32 v{vB}, v{vB}, v{t0}')
        e(f'v_lshrrev_b32 v{t0}, 4, v1\nv_lshlrev_b32 v{vS}, 9, v{t0}\nv_bfe_u32 v{t0}, v1, 2, 2\nv_lshl_add_u32 v{vS}, v{t0}, 7, v{vS}\nv_and_b32 v{t0}, 3, v1\nv_lshl_add_u32 v{vS}, v{t0}, 3, v{vS}')
        e(f'v_bfe_u32 v{t0}, v1, 3, 1\ns_lshr_b32 s{S_T0}, s{S_W}, 1\nv_xor_b32 v{t0}, s{S_T0}, v{t0}\nv_lshl_add_u32 v{vS}, v{t0}, 6, v{vS}\ns_and_b32 s{S_T0}, s{S_W}, 1\ns_lshl_b32 s{S_T0}, s{S_T0}, 5\nv_add_u32 v{vS}, s{S_T0}, v{vS}')
        e(f's_mul_i32 s{S_T0}, s{S_HID}, {2*28}\ns_add_u32 s{S_T0}, s{S_T0}, s{S_W}\ns_lshl_b32 s{S_T0}, s{S_T0}, 10\ns_add_u32 s{S_T0}, s{S_T0}, {WS_HD}\nv_lshl_add_u32 v{vHs}, v1, 4, s{S_T0}')
        ones = V.alloc(4, 4); SG = V.alloc(8, 4); SB = V.alloc(56, 4)
        for i in range(4): e(f'v_mov_b32 v{ones+i}, 0x3f803f80')
        K1, K2, K3 = 6, 8, 10
        e(f's_mov_b32 s{K1}, 0x22222222\ns_mov_b32 s{K1+1}, 0x22222222\ns_mov_b32 s{K2}, 0x44444444\ns_mov_b32 s{K2+1}, 0x44444444')
        e(f's_mov_b32 s{K3}, 0x88888888\ns_mov_b32 s{K3+1}, 0x88888888\ns_mov_b32 s12, 0x00f0000f\ns_mov_b32 s13, 0xf0000f00')
        self.poll_flags(WS_FLAG2, 64, 4, last_lanes=32)
        self.vm.drain(); self.lg.drain()
        self.stamp(7)
        e(f's_lshl_b32 s{S_T2}, s{S_W}, 10')
        for i in range(14):
            e(f's_add_u32 m0, s{S_T2}, {i*4096}\ns_mov_b32 s{S_T1}, {i*32*HT_STRIDE}')
            self.vmem(f'buffer_load_dwordx4 v{vD}, s[{R_WS}:{R_WS+3}], s{S_T1} offen sc1 lds', 'h')
        self.wait_all_vm(); e('s_barrier')
        self.stamp(8)
        for i in range(14):
            for h_ in range(2): self.ds(f'ds_read_b64_tr_b16 {vr(SB+4*i+2*h_,2)}, v{vS} offset:{i*4096 + 2048*h_}', f's{i}')
        for i in range(14):
            self.wait_lg(f's{i}')
            e(f'v_mfma_f32_16x16x32_bf16 {vr(SG,4)}, {vr(SB+4*i,4)}, {vr(SB+4*i,4)}, {"0" if i == 0 else vr(SG,4)}')
            e(f'v_mfma_f32_16x16x32_bf16 {vr(SG+4,4)}, {vr(ones,4)}, {vr(SB+4*i,4)}, {"0" if i == 0 else vr(SG+4,4)}')
        HB = V.alloc(56, 4)
        e(f'v_cndmask_b32 v{SG}, v{SG}, v{SG+1}, s[{K1}:{K1+1}]\nv_cndmask_b32 v{SG}, v{SG}, v{SG+2}, s[{K2}:{K2+1}]\nv_cndmask_b32 v{SG+5}, v{SG}, v{SG+3}, s[{K3}:{K3+1}]')
        self.ln_finalize(SG + 4, SG + 5, SG + 1, SG + 2, SG + 3)
        e(f'v_lshrrev_b32 v{SG}, 16, v{SG+1}\nv_or_b32 v{SG}, v{SG}, v{SG+2}\nv_mov_b32 v{SG+1}, s{S_NONCE}')
        e(f'v_and_b32 v{t0}, 15, v1\ns_lshl_b32 s{S_T0}, s{S_HID}, 6\ns_lshl_b32 s{S_T1}, s{S_W}, 4\ns_add_u32 s{S_T0}, s{S_T0}, s{S_T1}\nv_add_u32 v{t0}, s{S_T0}, v{t0}\nv_lshlrev_b32 v{t0}, 3, v{t0}\nv_add_u32 v{t0}, {WS_STATS2}, v{t0}')
        e(f's_mov_b64 s[{S_M1}:{S_M1+1}], exec\ns_mov_b64 exec, s[12:13]')
        self.vmem(f'buffer_store_dwordx2 {vr(SG,2)}, v{t0}, s[{R_WS}:{R_WS+3}], 0 offen sc1', 'st2')
        e(f's_mov_b64 exec, s[{S_M1}:{S_M1+1}]')
        self.stamp(9)
        e(f's_lshl_b32 s{S_T0}, s{S_W}, 11\nv_add_u32 v{vB}, s{S_T0}, v{vB}\nv_add_u32 v{vB+1}, s{S_T0}, v{vB+1}')
        for i in range(7):
            for gp in range(2):
                for h_ in range(2):
                    self.ds(f'ds_read_b64_tr_b16 {vr(HB+8*i+4*gp+2*h_,2)}, v{vB+gp} offset:{i*8192 + 1024*h_}', f'hb{i}_{gp}')
        for i in range(7):
            for gp in range(2):
                self.wait_lg(f'hb{i}_{gp}')
                e(f's_mov_b32 s{S_T1}, {(gp*28 + 4*i)*1024}')
                self.vmem(f'buffer_store_dwordx4 {vr(HB+8*i+4*gp,4)}, v{vHs}, s[{R_WS}:{R_WS+3}], s{S_T1} offen sc1', 'hd')
        self.wait_all_vm(); e('s_barrier')
        e(f's_lshr_b32 s{S_T1}, s{S_HID}, 1\ns_lshl_b32 s{S_T1}, s{S_T1}, 4\ns_and_b32 s{S_T2}, s{S_HID}, 1\ns_add_u32 s{S_T1}, s{S_T1}, s{S_T2}\ns_add_u32 s{S_T1}, s{S_T1}, 14')
        self.signal(WS_FLAG3, f's{S_T1}')
        self.stamp(2)
        self.stamps_out()
        e('s_branch L_end')

    def signal(self, base, sidx):
        e = self.e; V = self.V
        lab = self.lab('sig')
        e(f's_cmp_lg_u32 s{S_W}, 0\ns_cbranch_scc1 {lab}')
        v = V.alloc(2, 2)
        e(f's_mul_i32 s{S_T0}, {sidx}, {FLAG_STRIDE}\ns_add_u32 s{S_T0}, s{S_T0}, {base}')
        e(f'v_mov_b32 v{v}, s{S_NONCE}\nv_mov_b32 v{v+1}, s{S_T0}')
        e(f's_mov_b64 s[{S_M1}:{S_M1+1}], exec\ns_mov_b64 exec, 1')
        e(f'buffer_store_dword v{v}, v{v+1}, s[{R_WS}:{R_WS+3}], 0 offen sc1')
        e(f's_mov_b64 exec, s[{S_M1}:{S_M1+1}]')
        V.free(v, 2)
        self.label(lab)

    def rbf(self, d, s, pre=''):
        self.e(f'v_cvt_pk_bf16_f32 v{d}, v{s}, v{s}\nv_lshlrev_b32 v{d}, 16, v{d}')
    def ln_finalize(self, S, Q, dm, ds_, dt):
        e = self.e
        e(f'v_mul_f32 v{S}, {fx(1/448)}, v{S}')
        e(f'v_mul_f32 v{Q}, {fx(1/448)}, v{Q}')
        e(f'v_fma_f32 v{Q}, -v{S}, v{S}, v{Q}')
        e(f'v_max_f32 v{Q}, 0, v{Q}')
        self.rbf(dm, S)
        self.rbf(dt, Q)
        e(f'v_add_f32 v{dt}, {fx(1e-5)}, v{dt}')
        self.rbf(dt, dt)
        e(f'v_sqrt_f32 v{dt}, v{dt}')
        self.rbf(ds_, dt)

    def w1_setup(self):
        e = self.e; V = self.V
        self.vW1 = V.alloc(1); self.vTS = V.alloc(5)
        t = V.alloc(1); t2 = V.alloc(1)
        e(f'v_lshrrev_b32 v{t}, 4, v1\nv_mul_u32_u24 v{self.vW1}, 3584, v{t}\nv_lshlrev_b32 v{t}, 2, v{t}\nv_and_b32 v{t2}, 15, v1\nv_xor_b32 v{t}, v{t}, v{t2}\nv_lshl_add_u32 v{self.vW1}, v{t}, 4, v{self.vW1}')
        e(f's_lshl_b32 s{S_T0}, s{S_FB}, 8\ns_mul_i32 s{S_T1}, s{S_W}, {4*3584}\ns_add_u32 s{S_T0}, s{S_T0}, s{S_T1}\nv_add_u32 v{self.vW1}, s{S_T0}, v{self.vW1}')
        e(f's_lshl_b32 s{S_WM}, s{S_W}, 10\ns_add_u32 s{S_WM}, s{S_WM}, {L_STG}')
        a = self.vTS
        e(f'v_lshrrev_b32 v{t}, 5, v1\nv_lshlrev_b32 v{a}, 10, v{t}\nv_bfe_u32 v{t}, v1, 2, 2\nv_lshl_add_u32 v{a}, v{t}, 8, v{a}')
        e(f'v_xor_b32 v{t}, s{S_W}, v{t}\nv_lshl_add_u32 v{a}, v{t}, 6, v{a}')
        e(f'v_bfe_u32 v{t}, v1, 4, 1\nv_lshl_add_u32 v{a}, v{t}, 5, v{a}\nv_and_b32 v{t}, 3, v1\nv_lshl_add_u32 v{a}, v{t}, 3, v{a}')
        e(f'v_add_u32 v{a+1}, {L_STGX}, v{a}\nv_add_u32 v{a+2}, {L_STG + 65536}, v{a}\nv_add_u32 v{a+3}, 57344, v{a}\nv_mov_b32 v{a+4}, v{a}\nv_add_u32 v{a}, {L_STG}, v{a}')
        for q in range(4):
            e(f's_add_u32 s{S_T0}, s{S_ROT}, {q}\ns_and_b32 s{S_T0}, s{S_T0}, 3\ns_mul_i32 s{S_Q0+q}, s{S_T0}, {7*16*3584}')
        V.free(t); V.free(t2)
    W1SLOT = [0,1,2,3,4, 5,6,7,8,9, 0,1,2,3,4, 0,1,2,3,5,6,7,8,9, 10,11,12,13]
    def w1_slot_off(self, k):
        s = self.W1SLOT[k]
        return s * STG_SLOT if s < 9 else (L_STGX - L_STG if s == 9 else (57344 + (s - 10)*STG_SLOT - L_STG if s < 12 else (s - 12)*STG_SLOT - L_STG))
    def w1_dma(self, k, tag, slot=None):
        e = self.e; sl = self.w1_slot_off(k)
        def m0(x): return f's_add_u32 m0, s{S_WM}, {x}' if x >= 0 else f's_sub_u32 m0, s{S_WM}, {-x}'
        return [lambda: e(f's_add_u32 s{S_WO}, s{S_Q0 + k // 7}, {(k % 7)*16*3584}'),
                lambda: e(m0(sl)),
                lambda: self.vmem(f'buffer_load_dwordx4 v{self.vW1}, s[{R_WG}:{R_WG+3}], s{S_WO} offen lds', tag),
                lambda: e(m0(sl + 4096)),
                lambda: self.vmem(f'buffer_load_dwordx4 v{self.vW1}, s[{R_WU}:{R_WU+3}], s{S_WO} offen lds', tag)]
    def w1_issue(self, k0, k1, tag):
        for k in range(k0, k1):
            for f in self.w1_dma(k, tag): f()
    def w1_reads(self, k):
        s = self.W1SLOT[k]
        if s == 9: a, sl = self.vTS + 1, 0
        elif s >= 12: a, sl = self.vTS + 4, (s - 12) * STG_SLOT
        elif s >= 10: a, sl = self.vTS + 3, (s - 10) * STG_SLOT
        else: a, sl = self.vTS, s * STG_SLOT
        assert sl + 6144 < 65536 + 8192
        out = []
        for q in range(4):
            off = sl + 2048 * q
            aa = a
            if off >= 65536: aa, off = self.vTS + 2, off - 65536
            out.append(lambda q=q, aa=aa, off=off: self.ds(f'ds_read_b64_tr_b16 {ar(8*k+2*q,2)}, v{aa} offset:{off}', 'w1r'))
        return out
    def w1_read(self, k0, k1):
        for k in range(k0, k1):
            for f in self.w1_reads(k): f()

    def phaseA(self):
        e = self.e; V = self.V; o = self.o
        self.c('================= phase A')
        par = V.alloc(6); t0 = V.alloc(1); t1 = V.alloc(1)
        e(f's_lshl_b32 s{S_T1}, s{S_CP}, 10\nv_lshl_add_u32 v{t0}, v0, 2, s{S_T1}\ns_lshl_b32 s{S_T0}, s{S_CP}, 2')
        e('s_waitcnt lgkmcnt(0)')
        for i, sp in enumerate((S_ARE, S_AIM, S_BRE, S_BIM, S_CRE, S_CIM)):
            self.vmem(f'global_load_dword v{par+i}, v{t0}, s[{sp}:{sp+1}]', 'par')
        e(f's_load_dword s{S_LD}, s[{S_LDT}:{S_LDT+1}], s{S_T0}\ns_load_dword s{S_DK}, s[{S_DSK}:{S_DSK+1}], s{S_T0}')
        self.srds()
        self.publish_nonce()
        self.stamp(0)
        self.map_bc()
        tch = V.alloc(4); self.tch = tch
        if o.get('touch_w1', False):
            e(f'v_mul_u32_u24 v{t1}, 4682, v0\nv_lshrrev_b32 v{t1}, 16, v{t1}\nv_mul_u32_u24 v{tch}, 14, v{t1}\nv_sub_u32 v{tch}, v0, v{tch}')
            e(f's_lshl_b32 s{S_T0}, s{S_J}, 4\nv_add_u32 v{t1}, s{S_T0}, v{t1}\nv_mul_u32_u24 v{t1}, 3584, v{t1}\nv_lshl_add_u32 v{t1}, v{tch}, 7, v{t1}')
            e(f's_and_b32 s{S_T0}, s{S_XCD}, 1\ns_mul_i32 s{S_T0}, s{S_T0}, 1792\nv_add_u32 v{t1}, s{S_T0}, v{t1}')
            e(f'v_cmp_gt_u32 vcc, 224, v0\ns_and_saveexec_b64 s[{S_M1}:{S_M1+1}], vcc')
            la = self.lab('tw'); e(f's_cbranch_execz {la}')
            self.vmem(f'buffer_load_dword v{tch}, v{t1}, s[{R_WG}:{R_WG+3}], 0 offen', 'tw')
            self.vmem(f'buffer_load_dword v{tch+1}, v{t1}, s[{R_WU}:{R_WU+3}], 0 offen', 'tw')
            self.label(la); e(f's_mov_b64 exec, s[{S_M1}:{S_M1+1}]')
        self.w1_setup()
        TW = o.get('touch_w1', False)
        if not TW: self.w1_issue(0, o.get('w0', 2), 'wa')
        self.stamp(1)
        ga = V.alloc(12, 2)
        self.ga = ga
        e(f'v_lshlrev_b32 v{t0}, 3, v0\nv_sub_u32 v{t0}, 2048, v{t0}')
        for k in range(1, 12):
            e(f'v_subrev_u32 v{ga+k-1}, {k}, v{t0}')
        e(f'v_mov_b32 v{ga+11}, 0')
        tt = V.alloc(2, 2)
        for k in range(0, 12, 2):
            a, b = ga + k, ga + k + 1
            e(f'v_max_i32 v{tt}, 0, v{a}\nv_max_i32 v{tt+1}, 0, v{b}')
            e(f'v_cvt_f32_u32 v{tt}, v{tt}\nv_cvt_f32_u32 v{tt+1}, v{tt+1}')
            e(f'v_cvt_pk_bf16_f32 v{t1}, v{tt}, v{tt+1}')
            e(f'v_lshlrev_b32 v{tt}, 16, v{t1}\nv_and_b32 v{tt+1}, 0xffff0000, v{t1}')
            e(f'v_cvt_u32_f32 v{tt}, v{tt}\nv_cvt_u32_f32 v{tt+1}, v{tt+1}')
            for x, r in ((tt, a), (tt + 1, b)):
                e(f'v_lshrrev_b32 v{t1}, 3, v{x}\nv_add_u32 v{x}, v{x}, v{t1}')
                if k >= 8:
                    e(f'v_cmp_gt_i32 vcc, 0, v{r}\nv_mov_b32 v{t1}, 2320\nv_cndmask_b32 v{x}, v{x}, v{t1}, vcc')
                e(f'v_lshlrev_b32 v{x}, 2, v{x}\nv_add_u32 v{r}, {L_K32}, v{x}')
        V.free(tt, 2)
        e('s_waitcnt lgkmcnt(0)'); self.lg.drain()
        e(f's_lshr_b32 s{S_T0}, s{S_W}, 1\ns_lshl_b32 s{S_T0}, s{S_T0}, 4')
        e(f's_lshr_b32 s{S_LD}, s{S_LD}, s{S_T0}\ns_lshl_b32 s{S_LD}, s{S_LD}, 16')
        e(f's_lshr_b32 s{S_DK}, s{S_DK}, s{S_T0}\ns_lshl_b32 s{S_DK}, s{S_DK}, 16')
        dt = V.alloc(2, 2); tt = V.alloc(2, 2)
        L_hi = struct.unpack('<f', struct.pack('<f', LOG2E))[0]; L_lo = LOG2E - L_hi
        e(f'v_mov_b32 v{dt}, s{S_LD}\nv_mul_f32 v{tt}, {fx(L_hi)}, v{dt}')
        e(f's_mov_b32 s{S_T1}, {fx(L_hi)}')
        e(f'v_fma_f32 v{tt+1}, v{dt}, s{S_T1}, -v{tt}\nv_fmac_f32 v{tt+1}, {fx(L_lo)}, v{dt}')
        e(f'v_exp_f32 v{tt}, v{tt}\nv_mul_f32 v{tt+1}, {fx(math.log(2))}, v{tt+1}')
        e(f'v_fma_f32 v{dt}, v{tt}, v{tt+1}, v{tt}')
        self.rbf(dt, dt)
        V.free(tt, 2)
        self.wait_vm('par')
        self.stamp(2)
        sc = V.alloc(12, 2)
        e(f'v_lshlrev_b32 v{sc+4}, 16, v{par+2}\nv_and_b32 v{sc+6}, 0xffff0000, v{par+2}')
        e(f'v_lshlrev_b32 v{sc+5}, 16, v{par+3}\nv_and_b32 v{sc+7}, 0xffff0000, v{par+3}')
        e(f'v_lshlrev_b32 v{sc+8}, 16, v{par+4}\nv_and_b32 v{sc+10}, 0xffff0000, v{par+4}')
        e(f'v_lshlrev_b32 v{sc+9}, 16, v{par+5}\nv_and_b32 v{sc+11}, 0xffff0000, v{par+5}')
        e(f'v_lshlrev_b32 v{sc}, 16, v{par}\nv_and_b32 v{sc+1}, 0xffff0000, v{par}')
        e(f'v_lshlrev_b32 v{sc+2}, 16, v{par+1}\nv_and_b32 v{sc+3}, 0xffff0000, v{par+1}')
        V.free(par, 6)
        for i in (4, 5, 6, 7, 0, 1, 2, 3): e(f'v_mul_f32 v{sc+i}, v{dt}, v{sc+i}')
        V.free(dt, 2)
        Q = lambda: V.alloc(4, 4)
        tq = Q(); pkt = V.alloc(4, 2); npk = [0]
        def qmul(d, a, b):
            self.cmul_multi([(d, a, b, None), (d + 2, a + 2, b + 2, None)])
        CB = Q()
        qmul(CB, sc + 8, sc + 4)
        mx = V.alloc(2, 2)
        e(f'v_max_f32 v{mx}, |v{CB}|, |v{CB+1}|\nv_max_f32 v{mx+1}, |v{CB+2}|, |v{CB+3}|')
        e(f'v_mul_f32 v{sc}, {fx(LOG2E)}, v{sc}\nv_mul_f32 v{sc+1}, {fx(LOG2E)}, v{sc+1}')
        e(f'v_max_f32 v{mx}, v{mx}, v{mx+1}')
        e(f'v_mul_f32 v{sc+2}, {fx(1/(2*math.pi))}, v{sc+2}\nv_mul_f32 v{sc+3}, {fx(1/(2*math.pi))}, v{sc+3}')
        for mod in ('quad_perm:[1,0,3,2]', 'quad_perm:[2,3,0,1]', 'row_half_mirror', 'row_mirror'):
            e(f'v_max_f32_dpp v{mx}, v{mx}, v{mx} {mod} row_mask:0xf bank_mask:0xf')
        for swap in ('v_permlane16_swap_b32', 'v_permlane32_swap_b32'):
            e(f'v_mov_b32 v{mx+1}, v{mx}\n{swap} v{mx}, v{mx+1}\nv_max_f32 v{mx}, v{mx}, v{mx+1}')
        e(f'v_readfirstlane_b32 s{S_T0}, v{mx}')
        e(f's_lshr_b32 s{S_T0}, s{S_T0}, 23\ns_max_u32 s{S_T0}, s{S_T0}, 14\ns_min_u32 s{S_T0}, s{S_T0}, 254')
        e(f's_sub_u32 s{S_T1}, 267, s{S_T0}\ns_lshl_b32 s{S_T1}, s{S_T1}, 23\ns_sub_u32 s{S_US}, s{S_T0}, 13\ns_lshl_b32 s{S_US}, s{S_US}, 23')
        V.free(mx, 2)
        if not TW: self.w1_issue(o.get('w0', 2), 5, 'wa')
        def direct(dst, ex):
            for m in range(2):
                if ex == 1:
                    e(f'v_exp_f32 v{tq+m}, v{sc+m}\nv_fract_f32 v{tq+2+m}, v{sc+2+m}')
                else:
                    e(f'v_mul_f32 v{tq+m}, {fx(float(ex))}, v{sc+m}\nv_mul_f32 v{tq+2+m}, {fx(float(ex))}, v{sc+2+m}')
            if ex != 1:
                for m in range(2): e(f'v_exp_f32 v{tq+m}, v{tq+m}\nv_fract_f32 v{tq+2+m}, v{tq+2+m}')
            for m in range(2):
                e(f'v_cos_f32 v{dst+2*m}, v{tq+2+m}\nv_sin_f32 v{dst+2*m+1}, v{tq+2+m}')
            for m in range(2):
                e(f'v_mul_f32 v{dst+2*m}, v{tq+m}, v{dst+2*m}\nv_mul_f32 v{dst+2*m+1}, v{tq+m}, v{dst+2*m+1}')
        wa = V.alloc(1)
        e(f'v_and_b32 v{wa}, 127, v0\nv_lshlrev_b32 v{wa}, 3, v{wa}\ns_lshr_b32 s{S_T0}, s{S_W}, 1\ns_mul_i32 s{S_T0}, s{S_T0}, {TBL_C}\nv_add_u32 v{wa}, s{S_T0}, v{wa}')
        def put(q, ent, conj=False):
            p = pkt + 2 * (npk[0] & 1); npk[0] += 1
            n = '-' if conj else ''
            e(f'v_cvt_pk_f16_f32 v{p}, v{q}, {n}v{q+1}\nv_cvt_pk_f16_f32 v{p+1}, v{q+2}, {n}v{q+3}')
            self.ds(f'ds_write_b64 v{wa}, {vr(p,2)} offset:{ent*TBL_E}')
        one = V.alloc(2, 2)
        e(f'v_mov_b32 v{one}, 0x3c00\nv_mov_b32 v{one+1}, 0x3c00')
        for ent in (0, 4, 12): self.ds(f'ds_write_b64 v{wa}, {vr(one,2)} offset:{ent*TBL_E}')
        V.free(one, 2)
        z1 = Q(); z2 = Q(); z3 = Q(); z4 = Q(); CS = Q()
        direct(z1, 1); put(z1, 1)
        for m in range(4): e(f'v_mul_f32 v{CS+m}, s{S_T1}, v{CB+m}')
        put(CS, 8, True)
        qmul(z2, z1, z1); put(z2, 2)
        qmul(z3, z2, z1); put(z3, 3)
        qmul(z4, z2, z2); put(z4, 5)
        qmul(z1, z4, z4); put(z1, 6)
        qmul(z2, z1, z4); put(z2, 7)
        qmul(z3, z1, z1); put(z3, 16)
        qmul(z1, z3, z3)
        qmul(z4, CS, z1); put(z4, 9, True)
        qmul(z2, z1, z1)
        qmul(z4, CS, z2); put(z4, 10, True)
        qmul(z3, z2, z1)
        qmul(z4, CS, z3); put(z4, 11, True)
        qmul(z1, z2, z2); put(z1, 13, True)
        qmul(z2, z1, z1); put(z2, 14, True)
        qmul(z3, z2, z1); put(z3, 15, True)
        qmul(z1, z2, z2); put(z1, 17, True)
        qmul(z2, z1, z1)
        qmul(z3, z2, z2)
        c48 = V.alloc(2, 2)
        e(f'v_mul_f32 v{c48}, v{CB}, v{z3}\nv_fma_f32 v{c48}, -v{CB+1}, v{z3+1}, v{c48}')
        e(f'v_fmac_f32 v{c48}, v{CB+2}, v{z3+2}\nv_fma_f32 v{c48}, -v{CB+3}, v{z3+3}, v{c48}')
        for q in (z1, z2, z3, z4, CB, CS, tq): V.free(q, 4)
        V.free(sc, 12); V.free(wa); V.free(pkt, 4)
        for mod in ('quad_perm:[1,0,3,2]', 'quad_perm:[2,3,0,1]', 'row_half_mirror', 'row_mirror'):
            e(f'v_add_f32_dpp v{c48}, v{c48}, v{c48} {mod} row_mask:0xf bank_mask:0xf')
        for swap in ('v_permlane16_swap_b32', 'v_permlane32_swap_b32'):
            e(f'v_mov_b32 v{c48+1}, v{c48}\n{swap} v{c48}, v{c48+1}\nv_add_f32 v{c48}, v{c48}, v{c48+1}')
        nv = V.alloc(2, 2)
        e(f'v_mov_b32 v{nv+1}, 0')
        if not TW: self.wait_vm('wa')
        self.wait_all_lg(); e('s_barrier')
        self.stamp(3)
        sg = V.alloc(16, 4); sa = V.alloc(1)
        def after_main():
            self.vmem(f'buffer_load_dword v{nv}, v{nv+1}, s[{R_DBG}:{R_DBG+3}], 0 offen sc1', 'sg')
            e(f'v_lshlrev_b32 v{sa}, 6, v0')
            if WS_STATS: e(f'v_add_u32 v{sa}, {WS_STATS}, v{sa}')
            for i in range(4): self.vmem(f'buffer_load_dwordx4 {vr(sg+4*i,4)}, v{sa}, s[{R_WS}:{R_WS+3}], 0 offen offset:{16*i} sc1', 'sg')
            if TW: self.wait_vm('wa')
        def after_b2a():
            if TW: self.w1_read(0, 5)
            self.w1_issue(8, 9, 'wb')
        self.kgen_main(c48, after_main, after_b2a)
        V.free(c48, 2)
        self.wait_all_lg(); e('s_barrier')
        self.stamp(4)
        XP = V.alloc(8, 4)
        gat = self.expand_gather()
        self.poll_stats(sg, sa, nv)
        V.free(nv, 2)
        xo = V.alloc(1)
        e(f's_lshr_b32 s{S_T0}, s{S_CP}, 2\ns_lshl_b32 s{S_T0}, s{S_T0}, 15\ns_and_b32 s{S_T1}, s{S_CP}, 3\ns_lshl_b32 s{S_T1}, s{S_T1}, 5\ns_add_u32 s{S_T0}, s{S_T0}, s{S_T1}\ns_add_u32 s{S_T0}, s{S_T0}, {WS_XT}\nv_lshl_add_u32 v{xo}, v0, 7, s{S_T0}')
        self.vmem(f'buffer_load_dwordx4 {vr(XP,4)}, v{xo}, s[{R_WS}:{R_WS+3}], 0 offen sc1', 'xt')
        self.vmem(f'buffer_load_dwordx4 {vr(XP+4,4)}, v{xo}, s[{R_WS}:{R_WS+3}], 0 offen offset:16 sc1', 'xt')
        V.free(xo)
        self.stamp(7)
        self.w1_issue(9, 10, 'wb')
        self.expand_write(gat)
        self.w1_issue(10, 11, 'wc')
        self.stamp(5)
        cv = self.conv_setup()
        self.normalize(XP, sg)
        V.free(sg, 16); V.free(sa); V.free(XP, 8)
        self.wait_all_lg(); e('s_barrier')
        self.stamp(6)
        if o.get('touch_wd2', False):
            ta = V.alloc(2)
            for q in range(2):
                e(f'v_add_u32 v{ta}, {224*q}, v0\nv_mul_u32_u24 v{ta+1}, 9363, v{ta}\nv_lshrrev_b32 v{ta+1}, 16, v{ta+1}\nv_mul_u32_u24 v{tch+q}, 7, v{ta+1}\nv_sub_u32 v{ta}, v{ta}, v{tch+q}')
                e(f's_lshl_b32 s{S_T0}, s{S_J}, 6\nv_add_u32 v{ta+1}, s{S_T0}, v{ta+1}\nv_mul_u32_u24 v{ta+1}, 896, v{ta+1}\nv_lshl_add_u32 v{ta+1}, v{ta}, 7, v{ta+1}')
                e(f'v_cmp_gt_u32 vcc, 224, v0\ns_and_saveexec_b64 s[{S_M1}:{S_M1+1}], vcc')
                la = self.lab('td'); e(f's_cbranch_execz {la}')
                e(f'buffer_load_dword v{tch+2+q}, v{ta+1}, s[{R_WD}:{R_WD+3}], 0 offen')
                self.label(la); e(f's_mov_b64 exec, s[{S_M1}:{S_M1+1}]')
            V.free(ta, 2)
        fill = []
        for k in range(11, 14): fill += self.w1_dma(k, 'wc')
        self.conv(cv, fill)
        V.free(t0); V.free(t1)
        self.stamp(8)
        self.wait_vm('ht'); self.wait_all_lg(); e('s_barrier')
        self.signal(WS_FLAG2, 's2')
        self.stamp(9)
        V.free(tch, 4)
        self.cs = V.alloc(32, 4); self.ones = V.alloc(4, 4)
        for i in range(4): e(f'v_mov_b32 v{self.ones+i}, 0x3f803f80')
        _, setup = self.capture(self.phaseB_setup)
        dma = [f for k in range(15, 28) for f in self.w1_dma(k, 'we')]
        mains = []
        for k in range(14):
            for u in range(2):
                c = '0' if k == 0 else vr(self.cs + 16*u, 16)
                mains.append(([], lambda k=k, u=u, c=c: e(f'v_mfma_f32_32x32x16_bf16 {vr(self.cs+16*u,16)}, {ar(8*k+4*u,4)}, {vr(self.ones,4)}, {c}'), 32, []))
        merged = []
        while dma or setup:
            for _ in range(2):
                if dma: merged.append(dma.pop(0))
            for _ in range(5):
                if setup: merged.append(setup.pop(0))
        self.sched(mains, [(x, 1) for x in merged])
        self.stamp(12)

    def cs_mfma(self, k0, k1):
        for k in range(k0, k1):
            for u in range(2):
                c = '0' if k == 0 else vr(self.cs + 16*u, 16)
                self.e(f'v_mfma_f32_32x32x16_bf16 {vr(self.cs+16*u,16)}, {ar(8*k+4*u,4)}, {vr(self.ones,4)}, {c}')

    def poll_stats(self, sg, sa, nv):
        e = self.e
        l0 = self.lab('sp'); l1 = self.lab('spd'); l2 = self.lab('spr')
        self.wait_vm('sg')
        e(f's_mov_b32 s{S_CNT}, 0')
        self.label(l0)
        e(f'v_readfirstlane_b32 s{S_NONCE}, v{nv}')
        e(f's_cmp_eq_u32 s{S_NONCE}, 0\ns_cbranch_scc1 {l2}')
        e(f'v_cmp_ne_u32 vcc, s{S_NONCE}, v{sg+1}')
        for k in range(1, 8):
            e(f'v_cmp_ne_u32 s[{S_M2}:{S_M2+1}], s{S_NONCE}, v{sg+2*k+1}\ns_or_b64 vcc, vcc, s[{S_M2}:{S_M2+1}]')
        e(f's_cbranch_vccz {l1}')
        self.label(l2)
        e(f'buffer_load_dword v{nv}, v{nv+1}, s[{R_DBG}:{R_DBG+3}], 0 offen sc1')
        for i in range(4): e(f'buffer_load_dwordx4 {vr(sg+4*i,4)}, v{sa}, s[{R_WS}:{R_WS+3}], 0 offen offset:{16*i} sc1')
        e('s_waitcnt vmcnt(0)')
        e(f's_add_u32 s{S_CNT}, s{S_CNT}, 1\ns_cmp_lt_u32 s{S_CNT}, {SPIN_MAX}\ns_cbranch_scc1 {l0}')
        self.label(l1)

    def map_bc(self):
        e = self.e
        if self.o.get('mapB', '47') == 'rows':
            e(f's_cmp_ge_u32 s{S_J}, 14\ns_cselect_b32 s{S_T0}, 1, 0\ns_lshl_b32 s{S_RB}, s{S_XCD}, 1\ns_add_u32 s{S_RB}, s{S_RB}, s{S_T0}')
            e(f's_mul_i32 s{S_T0}, s{S_T0}, 14\ns_sub_u32 s{S_FB}, s{S_J}, s{S_T0}')
        else:
            e(f's_mul_i32 s{S_T0}, s{S_J}, 37\ns_lshr_b32 s{S_T0}, s{S_T0}, 8')
            e(f's_lshr_b32 s{S_RB}, s{S_XCD}, 1\ns_lshl_b32 s{S_RB}, s{S_RB}, 2\ns_add_u32 s{S_RB}, s{S_RB}, s{S_T0}')
            e(f's_mul_i32 s{S_T0}, s{S_T0}, 7\ns_sub_u32 s{S_FB}, s{S_J}, s{S_T0}\ns_and_b32 s{S_T0}, s{S_XCD}, 1\ns_mul_i32 s{S_T0}, s{S_T0}, 7\ns_add_u32 s{S_FB}, s{S_FB}, s{S_T0}')
        if self.o.get('rot', True): e(f's_and_b32 s{S_ROT}, s{S_RB}, 3')
        else: e(f's_mov_b32 s{S_ROT}, 0')
        e(f's_mul_i32 s{S_T0}, s{S_J}, 37\ns_lshr_b32 s{S_T0}, s{S_T0}, 8')
        e(f's_lshl_b32 s{S_RB2}, s{S_XCD}, 2\ns_add_u32 s{S_RB2}, s{S_RB2}, s{S_T0}\ns_mul_i32 s{S_T0}, s{S_T0}, 7\ns_sub_u32 s{S_DB}, s{S_J}, s{S_T0}')

    def kgen_main(self, c48, after_main, after_b2a):
        e = self.e; V = self.V
        self.c('---- kgen main (f16 operands)')
        aLo = V.alloc(1); aHi = V.alloc(1); aC = V.alloc(1); t = V.alloc(1)
        e(f's_lshr_b32 s{S_T0}, s{S_W}, 1\ns_mul_i32 s{S_T0}, s{S_T0}, {TBL_C}\ns_and_b32 s{S_T1}, s{S_W}, 1\ns_lshl_b32 s{S_T1}, s{S_T1}, 9\ns_add_u32 s{S_T0}, s{S_T0}, s{S_T1}')
        e(f'v_lshrrev_b32 v{t}, 4, v1\nv_lshlrev_b32 v{aC}, 4, v{t}\nv_add_u32 v{aC}, s{S_T0}, v{aC}')
        e(f'v_and_b32 v{t}, 3, v1\nv_mul_u32_u24 v{t}, {TBL_E}, v{t}\nv_add_u32 v{aLo}, v{aC}, v{t}')
        e(f'v_bfe_u32 v{t}, v1, 2, 2\nv_mul_u32_u24 v{t}, {TBL_E}, v{t}\nv_add_u32 v{aHi}, v{aC}, v{t}')
        TB = [[V.alloc(4, 4) for _ in range(6)] for _ in range(2)]
        tmp = V.alloc(4, 4)
        PV = [[V.alloc(4, 4) for _ in range(2)] for _ in range(2)]
        PW = [V.alloc(4, 4) for _ in range(4)]
        D = [[V.alloc(4, 4) for s in range(2)] for t_ in range(4)]
        ents = ((aLo, 0), (aHi, 4), (aC, 16), (aLo, 8), (aHi, 12), (aC, 17))
        def rd(st, i):
            ad, ent = ents[i]
            self.ds(f'ds_read_b128 {vr(TB[st&1][i],4)}, v{ad} offset:{ent*TBL_E + st*64}', f'tb{st}')
        def cm(d, a, b):
            L = [f'v_pk_mul_f16 v{tmp+c}, v{a+c}, v{b+c} op_sel:[0,0] op_sel_hi:[0,1]' for c in range(4)]
            L += [f'v_pk_fma_f16 v{d+c}, v{a+c}, v{b+c}, v{tmp+c} op_sel:[1,1,0] op_sel_hi:[1,0,1] neg_lo:[0,1,0]' for c in range(4)]
            return L
        for i in range(6): rd(0, i)
        pend = []
        for st in range(8):
            T1, T2, Z16, T3, T4, Z512 = TB[st & 1]; pv = PV[st & 1]
            extra = []
            if st + 1 < 8: extra += [lambda i=i, st=st: rd(st + 1, i) for i in range(6)]
            if not self.o.get('touch_w1', False):
                if st < 5: extra += self.w1_reads(st)
                if st in (0, 3, 6): extra += self.w1_dma(5 + st // 3, 'wb')
            else:
                extra += self.w1_dma(st, 'wa' if st < 5 else 'wb')
            self.wait_lg(f'tb{st}')
            blocks = [cm(pv[0], T1, T2), cm(pv[1], pv[0], Z16), cm(PW[0], T3, T4)]
            for tt in range(1, 4): blocks.append(cm(PW[tt], PW[tt-1], Z512))
            def popm():
                if pend:
                    pend.pop(0)()
                    for _ in range(2):
                        if extra: extra.pop(0)()
            for bi, ins in enumerate(blocks):
                for q, l in enumerate(ins):
                    e(l)
                    if q in (1, 5): popm()
                if bi >= 2:
                    tt = bi - 2
                    for s in range(2):
                        cin = '0' if st == 0 else vr(D[tt][s], 4)
                        pend.append(lambda tt=tt, s=s, cin=cin, pv=pv: e(f'v_mfma_f32_16x16x32_f16 {vr(D[tt][s],4)}, {vr(PW[tt],4)}, {vr(pv[s],4)}, {cin}'))
            while len(pend) > 2: popm()
            for x in extra: x()
        while pend: pend.pop(0)()
        self.stamp(13)
        after_main()
        e(f's_lshl_b32 s{S_T0}, s{S_W}, 12\ns_add_u32 s{S_T0}, s{S_T0}, {L_EX}\nv_lshl_add_u32 v{aHi}, v1, 4, s{S_T0}')
        us = V.alloc(2, 2)
        e(f'v_mov_b32 v{us}, s{S_US}')
        e(f's_lshl_b32 s{S_T0}, s{S_W}, 2\ns_add_u32 s{S_T0}, s{S_T0}, {L_EX + 16384}\nv_mov_b32 v{aC}, s{S_T0}')
        e(f'v_and_b32 v{aLo}, 15, v1\nv_lshrrev_b32 v{t}, 3, v{aLo}\nv_add_u32 v{aLo}, v{aLo}, v{t}')
        e(f'v_lshrrev_b32 v{t}, 4, v1\nv_mul_u32_u24 v{t}, 144, v{t}\nv_add_u32 v{aLo}, v{aLo}, v{t}\nv_lshlrev_b32 v{aLo}, 2, v{aLo}')
        e(f's_lshr_b32 s{S_T0}, s{S_W}, 1\ns_mul_i32 s{S_T0}, s{S_T0}, {K32_C}\ns_add_u32 s{S_T3}, s{S_T0}, {L_K32}')
        e(f's_and_b32 s{S_T1}, s{S_W}, 1\ns_mul_i32 s{S_T1}, s{S_T1}, {4*576*2}\ns_add_u32 s{S_T1}, s{S_T1}, s{S_T3}\nv_add_u32 v{aLo}, s{S_T1}, v{aLo}')
        R4 = TB[0][:4]; Va = tmp
        def exch(half):
            snd = [(t_, s) for t_ in (2 - 2*half, 3 - 2*half) for s in range(2)]
            kp = [(t_, s) for t_ in (2*half, 2*half + 1) for s in range(2)]
            for (t_, s) in snd:
                for r in (0, 2): e(f'v_pk_mul_f32 {vr(D[t_][s]+r,2)}, {vr(D[t_][s]+r,2)}, {vr(us,2)} op_sel_hi:[1,0]')
            for i, (t_, s) in enumerate(snd): self.ds(f'ds_write_b128 v{aHi}, {vr(D[t_][s],4)} offset:{1024*i}', 'exw')
            e(f's_mov_b64 s[{S_M1}:{S_M1+1}], exec\ns_mov_b64 exec, 1')
            self.ds(f'ds_write_b32 v{aC}, v{c48}', 'exw')
            e(f's_mov_b64 exec, s[{S_M1}:{S_M1+1}]')
            self.wait_all_lg()
            e('s_barrier')
            e(f's_xor_b32 s{S_T0}, s{S_W}, 1\ns_lshl_b32 s{S_T2}, s{S_T0}, 12\ns_add_u32 s{S_T2}, s{S_T2}, {L_EX}\nv_lshl_add_u32 v{aHi}, v1, 4, s{S_T2}')
            for i in range(4): self.ds(f'ds_read_b128 {vr(R4[i],4)}, v{aHi} offset:{1024*i}', 'ex')
            e(f's_lshl_b32 s{S_T0}, s{S_T0}, 2\ns_add_u32 s{S_T0}, s{S_T0}, {L_EX + 16384}\nv_mov_b32 v{aC}, s{S_T0}')
            self.ds(f'ds_read_b32 v{Va}, v{aC}', 'ex')
            self.wait_lg('ex')
            for i, (t_, s) in enumerate(kp):
                for r in (0, 2): e(f'v_pk_fma_f32 {vr(D[t_][s]+r,2)}, {vr(D[t_][s]+r,2)}, {vr(us,2)}, {vr(R4[i]+r,2)} op_sel_hi:[1,0,1]')
            e(f'v_add_f32 v{c48}, v{c48}, v{Va}\nv_mov_b32 v{c48+1}, 0\nv_mov_b32 v{aHi}, s{S_T3}')
            for i, (t_, s) in enumerate(kp):
                for r in range(4):
                    self.ds(f'ds_write_b32 v{aLo}, v{D[t_][s]+r} offset:{4*(576*(i >> 1) + 36*r + 18*s)}')
            e(f's_mov_b64 s[{S_M1}:{S_M1+1}], exec\ns_mov_b64 exec, 1')
            self.ds(f'ds_write_b32 v{aHi}, v{c48} offset:9216')
            self.ds(f'ds_write_b32 v{aHi}, v{c48+1} offset:9280')
            e(f's_mov_b64 exec, s[{S_M1}:{S_M1+1}]')
        self.two_paths(exch)
        after_b2a()
        V.free(us, 2)
        for row in TB + PV:
            for x in row: V.free(x, 4)
        for x in PW: V.free(x, 4)
        V.free(tmp, 4)
        for row in D:
            for x in row: V.free(x, 4)
        for x in (aLo, aHi, aC, t): V.free(x)

    def expand_gather(self):
        e = self.e; V = self.V; ga = self.ga
        self.c('---- expand K into 4 shifted bf16 copies')
        z = V.alloc(4, 4); t = V.alloc(1); t2 = V.alloc(1)
        g = V.alloc(22, 2)
        for i in range(4): e(f'v_mov_b32 v{z+i}, 0')
        e(f'v_lshrrev_b32 v{t}, 2, v0\nv_mul_u32_u24 v{t}, {KC_S}, v{t}\nv_and_b32 v{t2}, 3, v0\nv_lshl_add_u32 v{t}, v{t2}, 4, v{t}')
        e(f'v_cmp_gt_u32 vcc, 32, v0\ns_and_saveexec_b64 s[{S_M1}:{S_M1+1}], vcc')
        la = self.lab('zc'); e(f's_cbranch_execz {la}')
        e(f'ds_write_b128 v{t}, {vr(z,4)} offset:{L_KC + 4096}')
        self.label(la); e(f's_mov_b64 exec, s[{S_M1}:{S_M1+1}]')
        e(f'v_lshrrev_b32 v{t}, 6, v0\nv_mul_u32_u24 v{t}, {U_C}, v{t}\nv_lshl_add_u32 v{t}, v1, 4, v{t}')
        e(f'v_cmp_gt_u32 vcc, 128, v0\ns_and_saveexec_b64 s[{S_M1}:{S_M1+1}], vcc')
        la = self.lab('zu'); e(f's_cbranch_execz {la}')
        e(f'ds_write_b128 v{t}, {vr(z,4)} offset:{L_U}')
        self.label(la); e(f's_mov_b64 exec, s[{S_M1}:{S_M1+1}]')
        for k in range(11): self.ds(f'ds_read_b32 v{g+k}, v{ga+k} offset:0', 'g0')
        for k in range(11): self.ds(f'ds_read_b32 v{g+11+k}, v{ga+k} offset:{K32_C}', 'g1')
        V.free(t); V.free(t2); V.free(z, 4)
        return g
    def expand_write(self, g):
        e = self.e; V = self.V; ga = self.ga
        P = V.alloc(32, 4); wa = V.alloc(1)
        e(f'v_lshlrev_b32 v{wa}, 4, v0')
        for c in range(2):
            self.wait_lg(f'g{c}')
            v = lambda k: g + 11 * c + (k - 1)
            for sc_ in range(4):
                s = 4 - sc_
                for dd in range(4):
                    e(f'v_cvt_pk_bf16_f32 v{P+16*c+4*sc_+dd}, v{v(s+2*dd)}, v{v(s+2*dd+1)}')
                self.ds(f'ds_write_b128 v{wa}, {vr(P+16*c+4*sc_,4)} offset:{L_KC + c*KC_C + sc_*KC_S}')
        V.free(g, 22); V.free(P, 32); V.free(wa); V.free(ga, 12)

    def normalize(self, XP, sg):
        e = self.e; V = self.V
        self.c('---- LN1 normalize own columns')
        xa = V.alloc(16, 2)
        ms = V.alloc(16, 2)
        for k in range(8):
            e(f'v_lshlrev_b32 v{ms+k}, 16, v{sg+2*k}\nv_and_b32 v{ms+8+k}, 0xffff0000, v{sg+2*k}')
        for k in range(8): e(f'v_rcp_f32 v{ms+8+k}, v{ms+8+k}')
        wa = V.alloc(1); t = V.alloc(1)
        e(f'v_bfe_u32 v{t}, v0, 4, 1\nv_lshlrev_b32 v{t}, 1, v{t}\nv_xor_b32 v{wa}, v0, v{t}\nv_lshlrev_b32 v{wa}, 4, v{wa}')
        self.wait_vm('xt')
        for c in range(2): self.ds(f'ds_write_b128 v{wa}, {vr(XP+4*c,4)} offset:{L_X + c*X_C}')
        for c in range(2):
            for d in range(4):
                e(f'v_lshlrev_b32 v{xa+8*c+2*d}, 16, v{XP+4*c+d}\nv_and_b32 v{xa+8*c+2*d+1}, 0xffff0000, v{XP+4*c+d}')
        UP = V.alloc(8, 4)
        for c in range(2):
            for d in range(4):
                x = xa + 8*c + 2*d
                e(f'v_pk_add_f32 {vr(x,2)}, {vr(x,2)}, {vr(ms+2*d,2)} neg_lo:[0,1] neg_hi:[0,1]')
            for d in range(4):
                x = xa + 8*c + 2*d
                e(f'v_cvt_pk_bf16_f32 v{x+1}, v{x}, v{x+1}')
            for d in range(4):
                x = xa + 8*c + 2*d
                e(f'v_lshlrev_b32 v{x}, 16, v{x+1}\nv_and_b32 v{x+1}, 0xffff0000, v{x+1}')
            for d in range(4):
                x = xa + 8*c + 2*d
                e(f'v_pk_mul_f32 {vr(x,2)}, {vr(x,2)}, {vr(ms+8+2*d,2)}')
            for d in range(4):
                x = xa + 8*c + 2*d
                e(f'v_cvt_pk_bf16_f32 v{UP+4*c+d}, v{x}, v{x+1}')
            self.ds(f'ds_write_b128 v{wa}, {vr(UP+4*c,4)} offset:{L_U + c*U_C + 1024}')
        V.free(ms, 16); V.free(xa, 16); V.free(UP, 8); V.free(wa); V.free(t)

    def conv_setup(self):
        e = self.e; V = self.V
        vF = V.alloc(1); vG = V.alloc(8); t = V.alloc(1); t2 = V.alloc(1)
        e(f's_lshr_b32 s{S_T0}, s{S_W}, 1\ns_mul_i32 s{S_T0}, s{S_T0}, {KC_C}\ns_and_b32 s{S_T1}, s{S_W}, 1\ns_lshl_b32 s{S_T2}, s{S_T1}, 9\ns_sub_u32 s{S_T0}, s{S_T0}, s{S_T2}\ns_add_u32 s{S_T0}, s{S_T0}, {L_KC + 24 + 512}')
        e(f'v_and_b32 v{t}, 3, v1\nv_mul_u32_u24 v{vF}, {KC_S}, v{t}')
        e(f'v_bfe_u32 v{t}, v1, 2, 2\nv_lshlrev_b32 v{t}, 3, v{t}\nv_sub_u32 v{vF}, v{vF}, v{t}')
        e(f'v_lshrrev_b32 v{t}, 4, v1\nv_lshl_add_u32 v{vF}, v{t}, 4, v{vF}\nv_add_u32 v{vF}, s{S_T0}, v{vF}')
        e(f's_lshr_b32 s{S_T0}, s{S_W}, 1\ns_mul_i32 s{S_T0}, s{S_T0}, {U_C}\ns_add_u32 s{S_T0}, s{S_T0}, {L_U}')
        e(f's_lshl_b32 s{S_T1}, s{S_T1}, 3')
        kg = V.alloc(1); col = V.alloc(1)
        e(f'v_lshrrev_b32 v{kg}, 4, v1\nv_and_b32 v{col}, 15, v1\nv_subrev_u32 v{col}, s{S_T1}, v{col}')
        for pp in range(8):
            e(f'v_add_u32 v{t}, {16 - pp}, v{col}')
            e(f'v_bfe_u32 v{t2}, v{t}, 2, 1\nv_lshlrev_b32 v{t2}, 1, v{t2}\nv_xor_b32 v{t2}, v{t2}, v{kg}')
            e(f'v_lshlrev_b32 v{t}, 6, v{t}\nv_lshl_add_u32 v{t}, v{t2}, 4, v{t}\nv_add_u32 v{vG+pp}, s{S_T0}, v{t}')
        V.free(kg); V.free(col)
        ua = V.alloc(1); xa_ = V.alloc(1); ra = V.alloc(2); sa = V.alloc(1)
        e(f'v_bfe_u32 v{t}, v1, 2, 1\nv_lshlrev_b32 v{t}, 1, v{t}\nv_lshrrev_b32 v{t2}, 4, v1\nv_xor_b32 v{t}, v{t}, v{t2}')
        e(f'v_and_b32 v{t2}, 15, v1\nv_lshlrev_b32 v{t2}, 6, v{t2}\nv_lshl_add_u32 v{ua}, v{t}, 4, v{t2}')
        e(f's_and_b32 s{S_T1}, s{S_W}, 1\ns_lshl_b32 s{S_T1}, s{S_T1}, 11')
        e(f's_lshr_b32 s{S_T0}, s{S_W}, 1\ns_mul_i32 s{S_T2}, s{S_T0}, {U_C}\ns_add_u32 s{S_T2}, s{S_T2}, s{S_T1}')
        e(f's_mul_i32 s{S_T3}, s{S_T0}, {X_C}\ns_add_u32 s{S_T3}, s{S_T3}, s{S_T1}')
        e(f'v_add_u32 v{xa_}, s{S_T3}, v{ua}\nv_add_u32 v{ua}, s{S_T2}, v{ua}')
        e(f'v_lshrrev_b32 v{t}, 4, v1\nv_lshl_add_u32 v{sa}, v{t}, 4, v{t2}')
        e(f's_lshl_b32 s{S_T2}, s{S_CP}, 1\ns_add_u32 s{S_T2}, s{S_T2}, s{S_T0}\ns_mul_i32 s{S_T2}, s{S_T2}, {HT_STRIDE}\ns_add_u32 s{S_T2}, s{S_T2}, s{S_T1}\ns_add_u32 s{S_T2}, s{S_T2}, {WS_HT}')
        e(f'v_add_u32 v{sa}, s{S_T2}, v{sa}')
        e(f's_lshl_b32 s{S_T0}, s{S_W}, 12\ns_add_u32 s{S_T0}, s{S_T0}, {L_RED}\nv_lshl_add_u32 v{ra}, v1, 4, s{S_T0}')
        e(f's_xor_b32 s{S_T0}, s{S_W}, 1\ns_lshl_b32 s{S_T0}, s{S_T0}, 12\ns_add_u32 s{S_T0}, s{S_T0}, {L_RED}\nv_lshl_add_u32 v{ra+1}, v1, 4, s{S_T0}')
        V.free(t); V.free(t2)
        return (vF, vG, ua, xa_, ra, sa)

    def conv(self, cv, fill):
        e = self.e; V = self.V
        vF, vG, ua, xa_, ra, sa = cv
        self.c('---- Toeplitz convolution')
        G = [V.alloc(16, 4) for _ in range(2)]
        F = V.alloc(32, 4)
        acc = V.alloc(32, 4)
        A = lambda b, m: acc + 8 * b + 4 * m
        def rdG(pp):
            for s in range(4): self.ds(f'ds_read_b128 {vr(G[pp&1]+4*s,4)}, v{vG+pp} offset:{1024*s}', f'G{pp}')
        def rdF(pp, q):
            for m in range(2):
                off = 32 * (111 - 32*q - 2*pp - m)
                self.ds(f'ds_read_b64 {vr(F+8*q+4*m,2)}, v{vF} offset:{off}', f'F{pp}_{q}')
                self.ds(f'ds_read_b64 {vr(F+8*q+4*m+2,2)}, v{vF} offset:{off+8}', f'F{pp}_{q}')
        rdG(0)
        for q in range(4): rdF(0, q)
        def rdG1(pp, s): self.ds(f'ds_read_b128 {vr(G[pp&1]+4*s,4)}, v{vG+pp} offset:{1024*s}', f'G{pp}')
        def rdF1(pp, q, m, h_):
            off = 32 * (111 - 32*q - 2*pp - m) + 8 * h_
            self.ds(f'ds_read_b64 {vr(F+8*q+4*m+2*h_,2)}, v{vF} offset:{off}', f'F{pp}_{q}')
        mains = []
        pend = []
        for pp in range(8):
            for q in range(4):
                first = True
                for m in range(2):
                    for s in range(4 - q):
                        b = q + s
                        cin = '0' if (pp == 0 and q == 0) else vr(A(b, m), 4)
                        pre = []
                        if first:
                            if q == 0: pre.append(lambda pp=pp: (self.wait_lg(f'G{pp}'), self.wait_lg(f'F{pp}_0')))
                            else: pre.append(lambda pp=pp, q=q: self.wait_lg(f'F{pp}_{q}'))
                            first = False
                        mf = lambda b=b, m=m, q=q, s=s, pp=pp, cin=cin: e(f'v_mfma_f32_16x16x32_bf16 {vr(A(b,m),4)}, {vr(F+8*q+4*m,4)}, {vr(G[pp&1]+4*s,4)}, {cin}')
                        post = [pend.pop(0)] if pend else []
                        mains.append((pre, mf, 16, post))
                    if pp + 1 < 8:
                        pend += [lambda pp=pp, q=q, m=m, h_=h_: rdF1(pp + 1, q, m, h_) for h_ in range(2)]
                if q == 0 and pp + 1 < 8:
                    pend += [lambda pp=pp, s=s: rdG1(pp + 1, s) for s in range(4)]
        assert not pend
        self.sched(mains, fill)
        for x in G: V.free(x, 16)
        V.free(F, 32); V.free(vG, 8)
        self.stamp(10)
        UU = V.alloc(8, 4); XX = V.alloc(8, 4); t1f = V.alloc(16, 2); xf = V.alloc(16, 2); rr = V.alloc(16, 4)
        Y = V.alloc(8, 4); w8 = V.alloc(16, 2); dk = V.alloc(2, 2)
        for bb in range(2):
            self.ds(f'ds_read_b128 {vr(UU+4*bb,4)}, v{ua} offset:{L_U + 1024 + 1024*bb}', 'ux')
            self.ds(f'ds_read_b128 {vr(XX+4*bb,4)}, v{xa_} offset:{L_X + 1024*bb}', 'ux')
        e(f'v_mov_b32 v{dk}, s{S_DK}')
        def epi(half):
            snd = acc + 16 * (1 - half); keep = acc + 16 * half
            for i in range(4): self.ds(f'ds_write_b128 v{ra}, {vr(snd+4*i,4)} offset:{1024*i}', 'rw')
            self.wait_lg('ux')
            for q in range(8): e(f'v_lshlrev_b32 v{t1f+2*q}, 16, v{UU+q}\nv_and_b32 v{t1f+2*q+1}, 0xffff0000, v{UU+q}')
            for q in range(8): e(f'v_pk_mul_f32 {vr(t1f+2*q,2)}, {vr(t1f+2*q,2)}, {vr(dk,2)} op_sel_hi:[1,0]')
            for q in range(8): e(f'v_cvt_pk_bf16_f32 v{UU+q}, v{t1f+2*q}, v{t1f+2*q+1}')
            for q in range(8): e(f'v_lshlrev_b32 v{xf+2*q}, 16, v{XX+q}\nv_and_b32 v{xf+2*q+1}, 0xffff0000, v{XX+q}')
            for q in range(8): e(f'v_lshlrev_b32 v{t1f+2*q}, 16, v{UU+q}\nv_and_b32 v{t1f+2*q+1}, 0xffff0000, v{UU+q}')
            self.wait_vm('wc')
            self.wait_all_lg()
            e('s_barrier')
            for i in range(4): self.ds(f'ds_read_b128 {vr(rr+4*i,4)}, v{ra+1} offset:{1024*i}', 'red')
            self.wait_lg('red')
            for i in range(0, 16, 2): e(f'v_pk_add_f32 {vr(keep+i,2)}, {vr(keep+i,2)}, {vr(rr+i,2)}')
            for bb in range(2):
                k0 = keep + 8 * bb; y = Y + 4 * bb
                e(f'v_cvt_pk_bf16_f32 v{y}, v{k0}, v{k0+1}\nv_cvt_pk_bf16_f32 v{y+1}, v{k0+2}, v{k0+3}')
                e(f'v_cvt_pk_bf16_f32 v{y+2}, v{k0+4}, v{k0+5}\nv_cvt_pk_bf16_f32 v{y+3}, v{k0+6}, v{k0+7}')
            for bb in range(2):
                y = Y + 4 * bb
                e(f'v_permlane32_swap_b32 v{y}, v{y+2}\nv_permlane32_swap_b32 v{y+1}, v{y+3}')
            for bb in range(2):
                y = Y + 4 * bb
                e(f'v_permlane16_swap_b32 v{y}, v{y+2}\nv_permlane16_swap_b32 v{y+1}, v{y+3}')
            for q in range(8): e(f'v_lshlrev_b32 v{w8+2*q}, 16, v{Y+q}\nv_and_b32 v{w8+2*q+1}, 0xffff0000, v{Y+q}')
            for q in range(8): e(f'v_pk_add_f32 {vr(w8+2*q,2)}, {vr(w8+2*q,2)}, {vr(t1f+2*q,2)}')
            for q in range(8): e(f'v_cvt_pk_bf16_f32 v{Y+q}, v{w8+2*q}, v{w8+2*q+1}')
            for q in range(8): e(f'v_lshlrev_b32 v{w8+2*q}, 16, v{Y+q}\nv_and_b32 v{w8+2*q+1}, 0xffff0000, v{Y+q}')
            for q in range(8): e(f'v_pk_add_f32 {vr(w8+2*q,2)}, {vr(w8+2*q,2)}, {vr(xf+2*q,2)}')
            for bb in range(2):
                for d in range(4): e(f'v_cvt_pk_bf16_f32 v{Y+4*bb+d}, v{w8+8*bb+2*d}, v{w8+8*bb+2*d+1}')
                self.vmem(f'buffer_store_dwordx4 {vr(Y+4*bb,4)}, v{sa}, s[{R_WS}:{R_WS+3}], 0 offen offset:{1024*bb} sc1', 'ht')
        self.two_paths(epi)
        self.w1_read(5, 14)
        self.w1_issue(14, 15, 'we')
        for x, n in ((UU,8),(XX,8),(t1f,16),(xf,16),(rr,16),(Y,8),(w8,16),(dk,2),(sa,1),(ua,1),(xa_,1),(ra,2),(acc,32),(vF,1)): V.free(x, n)

    def interleave(self, main, fill, per_gap):
        n = len(main); fi = 0
        for i, m in enumerate(main):
            m()
            tgt = (len(fill) * (i + 1) + n - 1) // n if per_gap is None else min(len(fill), fi + per_gap)
            while fi < tgt:
                fill[fi](); fi += 1
        while fi < len(fill):
            fill[fi](); fi += 1

    def sched(self, mains, fillers, tail_free=0, segs=None):
        def cost(x): return x[1] if isinstance(x, tuple) else 1
        def run(x): (x[0] if isinstance(x, tuple) else x)()
        n = len(mains)
        bud = []
        for i, (pre, m, dur, post) in enumerate(mains):
            b = (dur - 8) / 4 - sum(cost(x) for x in post)
            if i + 1 < n: b -= sum(cost(x) for x in mains[i+1][0])
            bud.append(b)
        if segs is None: segs = [(0, n - tail_free, fillers)]
        plan = [[] for _ in range(n)]
        for (a, b_, fl) in segs:
            free = sum(max(0, x) for x in bud[a:b_]); need = sum(cost(x) for x in fl)
            over = max(0.0, (need - free) / max(1, b_ - a)); frac = min(1.0, need / free) if free > 0 else 1.0
            fi = 0; credit = 0.0
            for i in range(a, b_):
                credit += max(0, bud[i]) * frac + over
                while fi < len(fl) and cost(fl[fi]) <= credit + 1e-9:
                    credit -= cost(fl[fi]); plan[i].append(fl[fi]); fi += 1
            plan[b_ - 1] += fl[fi:]
            for i in range(a, b_): bud[i] = 0
        for i, (pre, m, dur, post) in enumerate(mains):
            for x in pre: run(x)
            m()
            for x in post: run(x)
            for x in plan[i]: run(x)

    def poll_flags(self, base, nflags_expr_lanes, nloads, sbase=None, last_lanes=None):
        e = self.e; V = self.V
        skip = self.lab('pf'); l0 = self.lab('pl'); l1 = self.lab('pd')
        e(f's_cmp_lg_u32 s{S_W}, 0\ns_cbranch_scc1 {skip}')
        a = V.alloc(1); d = V.alloc(4, 2)
        e(f'v_mul_u32_u24 v{a}, {FLAG_STRIDE}, v1\nv_add_u32 v{a}, {base}, v{a}')
        if sbase is not None: e(f'v_add_u32 v{a}, s{sbase}, v{a}')
        e(f's_mov_b64 s[{S_M1}:{S_M1+1}], exec')
        if nflags_expr_lanes < 64: e(f's_mov_b64 exec, {hex((1 << nflags_expr_lanes) - 1)}')
        e(f's_mov_b32 s{S_CNT}, 0')
        self.label(l0)
        for k in range(nloads):
            e(f'buffer_load_dword v{d+k}, v{a}, s[{R_WS}:{R_WS+3}], 0 offen offset:{64*FLAG_STRIDE*k} sc1')
        e('s_waitcnt vmcnt(0)')
        e(f'v_cmp_ne_u32 vcc, s{S_NONCE}, v{d}')
        for k in range(1, nloads):
            e(f'v_cmp_ne_u32 s[{S_M2}:{S_M2+1}], s{S_NONCE}, v{d+k}')
            if last_lanes and k == nloads - 1:
                assert last_lanes == 32
                e(f's_and_b32 s{S_M2+1}, s{S_M2+1}, 0')
            e(f's_or_b64 vcc, vcc, s[{S_M2}:{S_M2+1}]')
        e(f's_cbranch_vccz {l1}')
        e(f's_add_u32 s{S_CNT}, s{S_CNT}, 1\ns_cmp_lt_u32 s{S_CNT}, {SPIN_MAX}\ns_cbranch_scc1 {l0}')
        self.label(l1)
        e(f's_mov_b64 exec, s[{S_M1}:{S_M1+1}]')
        V.free(a); V.free(d, 4)
        self.label(skip)
        e('s_barrier')

    WDREG = ['A']*9 + ['B']*3 + ['C']*3 + ['A']*9 + ['B']*3 + ['C']
    WDIDX = list(range(9)) + [0,1,2] + [0,1,2] + list(range(9)) + [0,1,2] + [0]
    def wd_setup(self):
        e = self.e; V = self.V
        self.vWD = V.alloc(2); self.vWT = V.alloc(6)
        t = V.alloc(1); t2 = V.alloc(1); vD = self.vWD; vT = self.vWT
        e(f'v_lshrrev_b32 v{t}, 3, v1\nv_mul_u32_u24 v{vD}, 896, v{t}\nv_bfe_u32 v{t}, v1, 4, 1\nv_lshlrev_b32 v{t}, 2, v{t}\nv_and_b32 v{t2}, 7, v1\nv_xor_b32 v{t}, v{t}, v{t2}\nv_lshl_add_u32 v{vD}, v{t}, 4, v{vD}')
        e(f's_lshl_b32 s{S_T0}, s{S_DB}, 7\ns_mul_i32 s{S_T1}, s{S_W}, {448*896}\ns_add_u32 s{S_T0}, s{S_T0}, s{S_T1}\nv_add_u32 v{vD}, s{S_T0}, v{vD}\nv_add_u32 v{vD+1}, 7168, v{vD}')
        e(f'v_lshrrev_b32 v{t}, 5, v1\nv_lshlrev_b32 v{vT}, 9, v{t}\nv_bfe_u32 v{t}, v1, 2, 2\nv_lshl_add_u32 v{vT}, v{t}, 7, v{vT}')
        e(f'v_bfe_u32 v{t}, v1, 4, 1\nv_lshl_add_u32 v{vT}, v{t}, 5, v{vT}\nv_and_b32 v{t}, 3, v1\nv_lshl_add_u32 v{vT}, v{t}, 3, v{vT}')
        e(f'v_bfe_u32 v{t}, v1, 3, 1\nv_lshlrev_b32 v{t}, 6, v{t}')
        e(f'v_xor_b32 v{t2}, 64, v{t}\nv_add_u32 v{vT+1}, v{vT}, v{t2}\nv_add_u32 v{vT}, v{vT}, v{t}')
        e(f's_mul_i32 s{S_WA}, s{S_W}, 18432\ns_add_u32 s{S_WA}, s{S_WA}, 87040')
        e(f's_mul_i32 s{S_WB}, s{S_W}, 7168\ns_add_u32 s{S_WC}, s{S_WB}, 57344\ns_add_u32 s{S_WB}, s{S_WB}, 28672')
        e(f'v_add_u32 v{vT+2}, s{S_WB}, v{vT}\nv_add_u32 v{vT+3}, s{S_WB}, v{vT+1}\nv_add_u32 v{vT+4}, s{S_WC}, v{vT}\nv_add_u32 v{vT+5}, s{S_WC}, v{vT+1}')
        e(f'v_add_u32 v{vT}, s{S_WA}, v{vT}\nv_add_u32 v{vT+1}, s{S_WA}, v{vT+1}')
        e(f's_add_u32 s{S_T1}, s{S_DB}, s{S_RB2}' if self.o.get('rot2', True) else f's_mov_b32 s{S_T1}, 0')
        for q in range(4):
            e(f's_add_u32 s{S_T0}, s{S_T1}, {q}\ns_and_b32 s{S_T0}, s{S_T0}, 3\ns_mul_i32 s{S_RW0+q}, s{S_T0}, {7*16*896}\ns_mul_i32 s{S_RA0+q}, s{S_T0}, {7*1024}')
        V.free(t); V.free(t2)
    def wd_dma(self, k, tag):
        e = self.e; sb = {'A': S_WA, 'B': S_WB, 'C': S_WC}[self.WDREG[k]]; sl = self.WDIDX[k] * 2048
        return [lambda: e(f's_add_u32 s{S_WO}, s{S_RW0 + k//7}, {(k%7)*16*896}'),
                lambda: e(f's_add_u32 m0, s{sb}, {sl}'),
                lambda: self.vmem(f'buffer_load_dwordx4 v{self.vWD}, s[{R_WD}:{R_WD+3}], s{S_WO} offen lds', tag),
                lambda: e(f's_add_u32 m0, s{sb}, {sl + 1024}'),
                lambda: self.vmem(f'buffer_load_dwordx4 v{self.vWD+1}, s[{R_WD}:{R_WD+3}], s{S_WO} offen lds', tag)]
    def wd_reads(self, k):
        a = self.vWT + {'A': 0, 'B': 2, 'C': 4}[self.WDREG[k]]; sl = self.WDIDX[k] * 2048
        return [lambda mt=mt, hh=hh: self.ds(f'ds_read_b64_tr_b16 {ar(8*k+4*mt+2*hh,2)}, v{a+mt} offset:{sl + 1024*hh}', f'wdr{k}') for mt in range(2) for hh in range(2)]

    def phaseB_setup(self):
        e = self.e; V = self.V; o = self.o
        L_H = 0; HG = 28672; L_STP = 3 * HG
        HS = lambda g_: (g_ % 3) * HG
        S_HB, S_MB = S_T5, S_HID
        vD = V.alloc(1); vB = V.alloc(1); vS = V.alloc(1); t = V.alloc(1); t2 = V.alloc(1)
        e(f'v_lshrrev_b32 v{t}, 2, v1\nv_mul_u32_u24 v{vD}, {HT_STRIDE}, v{t}\nv_bfe_u32 v{t2}, v1, 4, 1\nv_lshlrev_b32 v{t2}, 1, v{t2}\nv_and_b32 v{t}, 3, v1\nv_xor_b32 v{t}, v{t}, v{t2}\nv_lshl_add_u32 v{vD}, v{t}, 4, v{vD}')
        e(f's_lshl_b32 s{S_T0}, s{S_RB}, 8\ns_add_u32 s{S_T0}, s{S_T0}, {WS_HT}\nv_add_u32 v{vD}, s{S_T0}, v{vD}')
        e(f's_mul_i32 s{S_HB}, s{S_W}, {16*HT_STRIDE}\ns_lshl_b32 s{S_MB}, s{S_W}, 10')
        e(f'v_lshrrev_b32 v{t}, 5, v1\nv_lshlrev_b32 v{vB}, 8, v{t}\nv_bfe_u32 v{t2}, v1, 4, 1\nv_xor_b32 v{t2}, v{t2}, v{t}\nv_lshl_add_u32 v{vB}, v{t2}, 5, v{vB}')
        e(f'v_bfe_u32 v{t}, v1, 2, 2\nv_lshl_add_u32 v{vB}, v{t}, 6, v{vB}\nv_and_b32 v{t}, 3, v1\nv_lshl_add_u32 v{vB}, v{t}, 3, v{vB}')
        e(f'v_lshrrev_b32 v{t}, 4, v1\nv_lshlrev_b32 v{vS}, 8, v{t}\nv_and_b32 v{t}, 1, v{t}\ns_and_b32 s{S_T0}, s{S_W}, 1\nv_xor_b32 v{t}, s{S_T0}, v{t}\nv_lshl_add_u32 v{vS}, v{t}, 5, v{vS}')
        e(f'v_bfe_u32 v{t}, v1, 2, 2\nv_lshl_add_u32 v{vS}, v{t}, 6, v{vS}\nv_and_b32 v{t}, 3, v1\nv_lshl_add_u32 v{vS}, v{t}, 3, v{vS}')
        e(f's_lshr_b32 s{S_T0}, s{S_W}, 1\ns_mul_i32 s{S_T0}, s{S_T0}, {7*2048}\nv_add_u32 v{vS}, s{S_T0}, v{vS}')
        vA = V.alloc(1)
        e(f's_mul_i32 s{S_T0}, s{S_RB}, {4*112}\ns_lshl_b32 s{S_T1}, s{S_FB}, 3\ns_add_u32 s{S_T0}, s{S_T0}, s{S_T1}\ns_lshl_b32 s{S_T1}, s{S_W}, 1\ns_add_u32 s{S_T0}, s{S_T0}, s{S_T1}')
        e(f's_lshl_b32 s{S_T0}, s{S_T0}, 10\ns_add_u32 s{S_T0}, s{S_T0}, {WS_ACT}\nv_lshl_add_u32 v{vA}, v1, 4, s{S_T0}')
        vG2 = V.alloc(1); sg2 = V.alloc(6, 2)
        e(f'v_and_b32 v{t}, 31, v1\nv_lshlrev_b32 v{vG2}, 3, v{t}\ns_lshl_b32 s{S_T0}, s{S_RB}, 10\ns_add_u32 s{S_T0}, s{S_T0}, {WS_STATS2}\nv_add_u32 v{vG2}, s{S_T0}, v{vG2}')
        NB = 6
        cs = self.cs; ones = self.ones
        B = V.alloc(4 * NB, 4); SB = V.alloc(8, 4); SG = V.alloc(8, 4)
        acc = [V.alloc(32, 4), V.alloc(32, 4)]
        st = V.alloc(6, 2); par = V.alloc(3); tmp = V.alloc(8, 4); pk = V.alloc(8, 4)
        vP = V.alloc(1); vPw = V.alloc(1)
        e(f'v_bfe_u32 v{t}, v1, 4, 1\nv_lshlrev_b32 v{vP}, 7, v{t}\nv_and_b32 v{t}, 15, v1\nv_lshl_add_u32 v{vP}, v{t}, 3, v{vP}\nv_add_u32 v{vP}, {L_STP}, v{vP}')
        e(f's_lshl_b32 s{S_T0}, s{S_W}, 7\ns_add_u32 s{S_T0}, s{S_T0}, {L_STP}\nv_lshl_add_u32 v{vPw}, v{t}, 3, s{S_T0}')
        K1, K2, K3, KD = 6, 8, 10, 12
        e(f's_mov_b32 s{K1}, 0x22222222\ns_mov_b32 s{K1+1}, 0x22222222\ns_mov_b32 s{K2}, 0x44444444\ns_mov_b32 s{K2+1}, 0x44444444')
        e(f's_mov_b32 s{K3}, 0x88888888\ns_mov_b32 s{K3+1}, 0x88888888\ns_mov_b32 s{KD}, 0x00f0000f\ns_mov_b32 s{KD+1}, 0xf0000f00')
        vBq = V.alloc(4); vS2 = V.alloc(1)
        e(f'v_add_u32 v{vS2}, 57344, v{vS}')
        for q in range(4):
            e(f's_add_u32 s{S_T0}, s{S_ROT}, {q}\ns_and_b32 s{S_T0}, s{S_T0}, 3\ns_mul_i32 s{S_T0}, s{S_T0}, {7*1024}\nv_add_u32 v{vBq+q}, s{S_T0}, v{vB}')
        self.wd_setup()
        self.pb = dict(locals())

    def phaseB(self):
        e = self.e; V = self.V; o = self.o
        self.c('================= phase B')
        pb = self.pb
        L_H, HG, L_STP, HS, S_HB, S_MB = pb['L_H'], pb['HG'], pb['L_STP'], pb['HS'], pb['S_HB'], pb['S_MB']
        vD, vB, vS, t, t2, vA, vG2, sg2, NB, cs, ones, B, SB, SG = [pb[k] for k in 'vD vB vS t t2 vA vG2 sg2 NB cs ones B SB SG'.split()]
        acc, st, par, tmp, pk, vP, vPw, K1, K2, K3, KD, vBq, vS2 = [pb[k] for k in 'acc st par tmp pk vP vPw K1 K2 K3 KD vBq vS2'.split()]
        self.stamp(14)
        self.wait_vm('we'); e('s_barrier')
        self.stamp(15)
        self.w1_read(14, 28)
        self.wait_all_lg()
        self.stamp(25)
        V.free(self.vTS, 5); V.free(self.vW1)
        self.poll_flags(WS_FLAG2, 64, 4, last_lanes=32)
        self.vm.drain(); self.lg.drain()
        self.stamp(16)
        def hdma(g, i):
            return [lambda: e(f's_add_u32 m0, s{S_MB}, {L_H + HS(g) + i*4096}'),
                    lambda: e(f's_add_u32 s{S_T1}, s{S_HB}, {i*4*16*HT_STRIDE + 64*g}'),
                    lambda: self.vmem(f'buffer_load_dwordx4 v{vD}, s[{R_WS}:{R_WS+3}], s{S_T1} offen {o.get("hflags", "sc1")} lds', f'h{g}')]
        for gg in range(2):
            for i in range(7):
                for f in hdma(gg, i): f()
        self.cs_mfma(14, 28)
        def rdB(g, k):
            s = k % NB
            for h_ in range(2):
                self.ds(f'ds_read_b64_tr_b16 {vr(B+4*s+2*h_,2)}, v{vBq + k//7} offset:{HS(g) + (k%7)*1024 + 512*h_}', f'B{g}_{k}')
        def st_reads(g):
            for k_ in range(2): self.ds(f'ds_read_b64 {vr(st+2*k_,2)}, v{vP} offset:{(g&1)*512 + 256*k_}', f'st{g}')
        def epilogue_ops(g):
            A_ = acc[g & 1]; ops = []
            nm, rsl, s2 = par, par + 1, par + 2
            save = self.lines; self.lines = []
            if g == 0:
                self.ln_finalize(st, st + 1, st + 2, st + 3, st + 4)
            else:
                e(f'v_lshlrev_b32 v{st+2}, 16, v{sg2+2*(g-1)}')
                e(f'v_and_b32 v{st+3}, 0xffff0000, v{sg2+2*(g-1)}')
            e(f'v_sub_f32 v{nm}, 0, v{st+2}')
            e(f'v_rcp_f32 v{st+4}, v{st+3}')
            e(f'v_mul_f32 v{s2}, v{st+3}, v{st+3}')
            e(f'v_mul_f32 v{rsl}, {fx(-LOG2E)}, v{st+4}')
            fl = self.lines; self.lines = save
            if g == 0:
                def fin0():
                    self.wait_lg('st0')
                    e(f'v_add_f32 v{st}, v{st}, v{st+2}')
                ops.append(fin0)
                ops.append(lambda: e(f'v_add_f32 v{st+1}, v{st+1}, v{st+3}'))
            for l in fl: ops.append(lambda l=l: e(l))
            def el(r):
                G_, U_, T_ = A_ + r, A_ + 16 + r, tmp + (r & 7)
                return [f'v_fma_f32 v{G_}, v{cs+r}, v{nm}, v{G_}',
                        f'v_fma_f32 v{U_}, v{cs+16+r}, v{nm}, v{U_}',
                        f'v_mul_f32 v{T_}, v{rsl}, v{G_}',
                        f'v_mul_f32 v{G_}, v{G_}, v{U_}',
                        f'v_exp_f32 v{T_}, v{T_}',
                        f'v_fma_f32 v{T_}, v{T_}, v{s2}, v{s2}',
                        f'v_rcp_f32 v{T_}, v{T_}',
                        f'v_mul_f32 v{G_}, v{G_}, v{T_}']
            for q in range(4):
                els = [el(4*q + x) for x in range(4)]
                for s_ in range(8):
                    for x in range(4): ops.append((lambda l=els[x][s_]: e(l), 2 if s_ in (4, 6) else 1))
                for x in range(2):
                    r = 4*q + 2*x
                    ops.append(lambda r=r: e(f'v_cvt_pk_bf16_f32 v{pk + r//2}, v{A_+r}, v{A_+r+1}'))
                if q in (1, 3):
                    kk = q >> 1
                    ops.append(lambda kk=kk: self.vmem(f'buffer_store_dwordx4 {vr(pk+4*kk,4)}, v{vA}, s[{R_WS}:{R_WS+3}], s{S_T4} offen offset:{1024*kk} sc1', 'act'))
            return ops
        DS = 1.5
        def rdB1(g, k, h_):
            s = (28 * g + k) % NB
            return (lambda: self.ds(f'ds_read_b64_tr_b16 {vr(B+4*s+2*h_,2)}, v{vBq + k//7} offset:{HS(g) + (k%7)*1024 + 512*h_}', f'B{g}_{k}'), DS)
        def rs(g, i):
            sb = SB + 4 * (i & 1); out = []
            for h_ in range(2):
                b_, off = (vS, HS(g) + i*2048 + 1024*h_) if HS(g) < 57344 else (vS2, i*2048 + 1024*h_)
                out.append((lambda b_=b_, off=off, h_=h_, sb=sb, i=i: self.ds(f'ds_read_b64_tr_b16 {vr(sb+2*h_,2)}, v{b_} offset:{off}', f'S{g}_{i}'), DS))
            return out
        def s2_loads():
            return [lambda gg=gg: self.vmem(f'buffer_load_dwordx2 {vr(sg2+2*(gg-1),2)}, v{vG2}, s[{R_WS}:{R_WS+3}], 0 offen offset:{256*gg} sc1', 'sg2') for gg in range(1, 4)]
        def s2_check():
            l0 = self.lab('s2'); l1 = self.lab('s2d')
            self.wait_vm('sg2')
            e(f's_mov_b32 s{S_CNT}, 0')
            self.label(l0)
            e(f'v_cmp_ne_u32 vcc, s{S_NONCE}, v{sg2+1}')
            for gg in (2, 3): e(f'v_cmp_ne_u32 s[{S_M2}:{S_M2+1}], s{S_NONCE}, v{sg2+2*gg-1}\ns_or_b64 vcc, vcc, s[{S_M2}:{S_M2+1}]')
            e(f's_cbranch_vccz {l1}')
            for gg in range(1, 4): e(f'buffer_load_dwordx2 {vr(sg2+2*(gg-1),2)}, v{vG2}, s[{R_WS}:{R_WS+3}], 0 offen offset:{256*gg} sc1')
            e('s_waitcnt vmcnt(0)')
            e(f's_add_u32 s{S_CNT}, s{S_CNT}, 1\ns_cmp_lt_u32 s{S_CNT}, {SPIN_MAX}\ns_cbranch_scc1 {l0}')
            self.label(l1)
        def red_ops(g):
            return [lambda: e(f'v_cndmask_b32 v{SG}, v{SG}, v{SG+1}, s[{K1}:{K1+1}]'),
                    lambda: e(f'v_cndmask_b32 v{SG}, v{SG}, v{SG+2}, s[{K2}:{K2+1}]'),
                    lambda: e(f'v_cndmask_b32 v{SG+5}, v{SG}, v{SG+3}, s[{K3}:{K3+1}]'),
                    lambda: e(f's_mov_b64 exec, s[{KD}:{KD+1}]'),
                    lambda: self.ds(f'ds_write_b64 v{vPw}, {vr(SG+4,2)} offset:{(g&1)*512}', f'stw{g}'),
                    lambda: e('s_mov_b64 exec, -1')]
        self.wait_vm('h0'); self.wait_all_lg(); e('s_barrier')
        self.stamp(17)
        for k in range(4):
            for h_ in range(2): rdB1(0, k, h_)[0]()
        for f in rs(0, 0) + rs(0, 1): f[0]()
        mains = []; segs = []
        KB = 22
        for g in range(4):
            A_ = acc[g & 1]; base = len(mains); pos = {}
            for k in range(28):
                cg = '0' if k == 0 else vr(A_, 16); cu = '0' if k == 0 else vr(A_ + 16, 16)
                pre = []
                if g == 1 and k == 2: pre.append(lambda: e('s_barrier'))
                if g in (2, 3) and k == 2: pre.append(lambda: e('s_barrier'))
                if k == KB:
                    if g < 3: pre.append(lambda g=g: self.wait_vm(f'h{g+1}'))
                    if g == 0: pre.append(lambda g=g: self.wait_lg(f'stw{g}'))
                    pre.append(lambda: e('s_barrier'))
                    if o.get('passstamps'): pre.append(lambda g=g: self.stamp(26 + g))
                pre.append(lambda k=k, g=g: self.wait_lg(f'B{g}_{k}'))
                nx = (g, k + 4) if k + 4 < 28 else ((g + 1, k + 4 - 28) if g < 3 else None)
                p0 = [rdB1(nx[0], nx[1], 0)] if nx else []; p1 = [rdB1(nx[0], nx[1], 1)] if nx else []
                pos[k] = len(mains)
                mains.append((pre, lambda k=k, cg=cg, A_=A_, g=g: e(f'v_mfma_f32_32x32x16_bf16 {vr(A_,16)}, {ar(8*k,4)}, {vr(B+4*((28*g+k)%NB),4)}, {cg}'), 32, p0))
                mains.append(([], lambda k=k, cu=cu, A_=A_, g=g: e(f'v_mfma_f32_32x32x16_bf16 {vr(A_+16,16)}, {ar(8*k+4,4)}, {vr(B+4*((28*g+k)%NB),4)}, {cu}'), 32, p1))
                if g == 0:
                    if k % 3 == 0 and k < 21:
                        i_ = k // 3; sb = SB + 4 * (i_ & 1); c_ = '0' if i_ == 0 else vr(SG, 4)
                        mains.append(([lambda i_=i_, g=g: self.wait_lg(f'S{g}_{i_}')], lambda sb=sb, c_=c_: e(f'v_mfma_f32_16x16x32_bf16 {vr(SG,4)}, {vr(sb,4)}, {vr(sb,4)}, {c_}'), 16, []))
                    if k % 3 == 1 and k < 21:
                        i_ = k // 3; sb = SB + 4 * (i_ & 1); c_ = '0' if i_ == 0 else vr(SG + 4, 4)
                        mains.append(([], lambda sb=sb, c_=c_: e(f'v_mfma_f32_16x16x32_bf16 {vr(SG+4,4)}, {vr(ones,4)}, {vr(sb,4)}, {c_}'), 16,
                                      rs(g, i_ + 2) if i_ + 2 < 7 else []))
            def addpost(k, items, which=0):
                pre_, m_, d_, post_ = mains[pos[k] + which]
                mains[pos[k] + which] = (pre_, m_, d_, post_ + items)
            if g == 0:
                addpost(KB - 1, red_ops(g), 1)
            if g == 3:
                for i_ in range(9):
                    rr = [(f, DS) for f in self.wd_reads(i_)]
                    for q in range(4): addpost(10 + 2*i_ + (q >> 1), [rr[q]], q & 1)
                pre_, m_, d_, post_ = mains[pos[10]]
                mains[pos[10]] = (pre_, m_, d_, post_[:1] + [lambda: self.wait_vm('wdA')] + post_[1:])
            if g == 1:
                addpost(4, s2_loads(), 1)
                addpost(26, [(s2_check, 8)], 1)
            ep = []
            if g > 0:
                if g == 1: ep.append(lambda g=g: st_reads(0))
                ep.append(lambda g=g: e(f's_mov_b32 s{S_T4}, {(g-1)*112*1024}'))
                ep += epilogue_ops(g - 1)
            mf = []
            if g == 0:
                for i in range(7): mf += hdma(2, i)
            mf2 = []
            if g == 0:
                pass
            mf3 = []
            if g == 1:
                for i in range(7): mf2 += hdma(3, i)
                for k_ in range(0, 5): mf3 += self.wd_dma(k_, 'wdA')
            if g == 2:
                for k_ in range(5, 9): mf3 += self.wd_dma(k_, 'wdA')
                for k_ in range(9, 12): mf3 += self.wd_dma(k_, 'wdB')
            if g == 3:
                for k_ in range(12, 15): mf3 += self.wd_dma(k_, 'wdC')
            if o.get('x_noep'): ep = []
            merged = []; a_, c_ = list(ep), list(mf)
            ra = len(a_) / max(1, len(a_) + len(c_)); acc_ = 0.0
            while a_ or c_:
                acc_ += ra
                if (acc_ >= 1.0 - 1e-9 and a_) or not c_:
                    acc_ -= 1.0; merged.append(a_.pop(0))
                else: merged.append(c_.pop(0))
            end = len(mains) if g < 3 else len(mains) - 2
            if mf2: segs.append((pos[2], pos[12], mf2))
            if mf3: segs.append((pos[12] if mf2 else pos[2], pos[27] if g < 3 else pos[10], mf3))
            segs.append((base, end, merged))
        self.sched(mains, None, segs=segs)
        self.stamp(18)
        e(f's_mov_b32 s{S_T4}, {3*112*1024}')
        for f in epilogue_ops(3): (f[0] if isinstance(f, tuple) else f)()
        self.stamp(19)
        for x, n in ((vD,1),(vB,1),(vS,1),(t,1),(t2,1),(cs,32),(vA,1),(vG2,1),(sg2,6),(B,4*NB),(SB,8),(ones,4),(SG,8),(acc[0],32),(acc[1],32),(st,6),(par,3),(tmp,8),(pk,8),(vP,1),(vPw,1),(vBq,4),(vS2,1)):
            V.free(x, n)
        pass
        self.wait_lg('wdr3')
        for k_ in range(15, 19):
            for f in self.wd_dma(k_, 'wdD'): f()
        self.wait_vm('act'); e('s_barrier')
        e(f's_lshl_b32 s{S_T1}, s{S_RB}, 4\ns_add_u32 s{S_T1}, s{S_T1}, s{S_FB}')
        self.signal(WS_FLAG3, f's{S_T1}')
        self.stamp(20)

    def phaseC(self):
        e = self.e; V = self.V; o = self.o
        self.c('================= phase C')
        t = V.alloc(1); t2 = V.alloc(1)
        self.wait_all_lg()
        for k_ in range(19, 24):
            for f in self.wd_dma(k_, 'wdE'): f()
        self.wait_vm('wdC')
        for k_ in range(9, 15):
            for f in self.wd_reads(k_): f()
        self.wait_all_lg()
        for k_ in range(24, 28):
            for f in self.wd_dma(k_, 'wdF'): f()
        self.wait_vm('wdE')
        for k_ in range(15, 24):
            for f in self.wd_reads(k_): f()
        self.wait_vm('wdF')
        for k_ in range(24, 28):
            for f in self.wd_reads(k_): f()
        self.wait_all_lg()
        V.free(self.vWD, 2); V.free(self.vWT, 6)
        self.stamp(21)
        e(f's_lshr_b32 s{S_T0}, s{S_RB2}, 1\ns_mul_i32 s{S_T0}, s{S_T0}, {16*FLAG_STRIDE}')
        self.poll_flags(WS_FLAG3, 16, 1, sbase=S_T0)
        self.vm.drain(); self.lg.drain()
        self.stamp(22)
        vA = V.alloc(1)
        e(f's_mul_i32 s{S_T0}, s{S_RB2}, {2*112}\ns_mul_i32 s{S_T1}, s{S_W}, 28\ns_add_u32 s{S_T0}, s{S_T0}, s{S_T1}\ns_lshl_b32 s{S_T0}, s{S_T0}, 10\ns_add_u32 s{S_T0}, s{S_T0}, {WS_ACT}\nv_lshl_add_u32 v{vA}, v1, 4, s{S_T0}')
        NR = o.get('NR', 7)
        Bf = V.alloc(8 * NR, 4); acc = V.alloc(64, 4)
        def ld(k):
            for nt in range(2):
                e(f's_add_u32 s{S_T1}, s{S_RA0 + k//7}, {(nt*112 + k%7)*1024}')
                self.vmem(f'buffer_load_dwordx4 {vr(Bf+8*(k%NR)+4*nt,4)}, v{vA}, s[{R_WS}:{R_WS+3}], s{S_T1} offen {o.get("aflags", "sc1")}', f'a{k}')
        for k in range(NR): ld(k)
        hres = V.alloc(8, 4); vR = V.alloc(1)
        e(f's_lshl_b32 s{S_T0}, s{S_RB2}, 1\ns_and_b32 s{S_T1}, s{S_W}, 1\ns_add_u32 s{S_T0}, s{S_T0}, s{S_T1}\ns_mul_i32 s{S_T0}, s{S_T0}, 28')
        e(f's_lshl_b32 s{S_T1}, s{S_DB}, 2\ns_add_u32 s{S_T0}, s{S_T0}, s{S_T1}\ns_and_b32 s{S_T1}, s{S_W}, 2\ns_add_u32 s{S_T0}, s{S_T0}, s{S_T1}\ns_lshl_b32 s{S_T0}, s{S_T0}, 10\ns_add_u32 s{S_T0}, s{S_T0}, {WS_HD}\nv_lshl_add_u32 v{vR}, v1, 4, s{S_T0}')
        A = lambda mt, nt: acc + 16 * (2 * mt + nt)
        for k in range(28):
            self.wait_vm(f'a{k}')
            for mt in range(2):
                for nt in range(2):
                    cin = '0' if k == 0 else vr(A(mt, nt), 16)
                    if o.get('x_nomfma2') and k > 0: continue
                    e(f'v_mfma_f32_32x32x16_bf16 {vr(A(mt,nt),16)}, {ar(8*k+4*mt,4)}, {vr(Bf+8*(k%NR)+4*nt,4)}, {cin}')
            if k + NR < 28: ld(k + NR)
            if o.get('g2stamps'):
                if k in (0, 7, 14, 21): self.stamp(26 + k // 7)
            if k == 28 - NR:
                for kk in range(2): self.vmem(f'buffer_load_dwordx4 {vr(hres+4*kk,4)}, v{vR}, s[{R_WS}:{R_WS+3}], 0 offen offset:{1024*kk} sc1', 'hres')
        self.stamp(23)
        V.free(Bf, 8 * NR)
        ra = V.alloc(1); keep = V.alloc(16, 4); rr = V.alloc(48, 4)
        e(f's_lshl_b32 s{S_T0}, s{S_W}, 12\nv_lshl_add_u32 v{ra}, v1, 4, s{S_T0}')
        labs = [self.lab(f'r{w}') for w in range(4)]; ld_ = self.lab('rd')
        for w in range(1, 4): e(f's_cmp_eq_u32 s{S_W}, {w}\ns_cbranch_scc1 {labs[w]}')
        for w in range(4):
            if w: self.label(labs[w]); e('s_nop 7\ns_nop 3')
            for T in range(4):
                if T == w: continue
                for q in range(4): e(f'ds_write_b128 v{ra}, {vr(acc+16*T+4*q,4)} offset:{T*16384 + q*1024}')
            for i in range(16): e(f'v_mov_b32 v{keep+i}, v{acc+16*w+i}')
            if w < 3: e(f's_branch {ld_}')
        self.label(ld_)
        e('s_waitcnt lgkmcnt(0)'); self.lg.drain()
        e('s_barrier')
        e(f's_lshl_b32 s{S_T0}, s{S_W}, 14\nv_lshl_add_u32 v{ra}, v1, 4, s{S_T0}')
        for j in range(1, 4):
            e(f's_add_u32 s{S_T1}, s{S_W}, {j}\ns_and_b32 s{S_T1}, s{S_T1}, 3\ns_lshl_b32 s{S_T1}, s{S_T1}, 12\nv_add_u32 v{t}, s{S_T1}, v{ra}')
            for q in range(4): self.ds(f'ds_read_b128 {vr(rr+16*(j-1)+4*q,4)}, v{t} offset:{q*1024}', f'rr{j}')
        vO = V.alloc(1)
        e(f'v_and_b32 v{t}, 31, v1\nv_mul_u32_u24 v{vO}, 896, v{t}\nv_lshrrev_b32 v{t}, 5, v1\nv_lshl_add_u32 v{vO}, v{t}, 4, v{vO}')
        e(f's_lshl_b32 s{S_T0}, s{S_RB2}, 1\ns_and_b32 s{S_T1}, s{S_W}, 1\ns_add_u32 s{S_T0}, s{S_T0}, s{S_T1}\ns_mul_i32 s{S_T0}, s{S_T0}, {32*896}')
        e(f's_lshl_b32 s{S_T1}, s{S_DB}, 7\ns_add_u32 s{S_T0}, s{S_T0}, s{S_T1}\ns_and_b32 s{S_T1}, s{S_W}, 2\ns_lshl_b32 s{S_T1}, s{S_T1}, 5\ns_add_u32 s{S_T0}, s{S_T0}, s{S_T1}\nv_add_u32 v{vO}, s{S_T0}, v{vO}')
        for j in range(1, 4):
            self.wait_lg(f'rr{j}')
            for i in range(0, 16, 2): e(f'v_pk_add_f32 {vr(keep+i,2)}, {vr(keep+i,2)}, {vr(rr+16*(j-1)+i,2)}')
        self.wait_vm('hres')
        P = V.alloc(8, 4); w8 = rr
        for d in range(8): e(f'v_cvt_pk_bf16_f32 v{P+d}, v{keep+2*d}, v{keep+2*d+1}')
        for d in range(8):
            e(f'v_lshlrev_b32 v{w8+2*d}, 16, v{P+d}\nv_and_b32 v{w8+2*d+1}, 0xffff0000, v{P+d}')
            e(f'v_lshlrev_b32 v{w8+16+2*d}, 16, v{hres+d}\nv_and_b32 v{w8+16+2*d+1}, 0xffff0000, v{hres+d}')
        for d in range(8): e(f'v_pk_add_f32 {vr(w8+2*d,2)}, {vr(w8+2*d,2)}, {vr(w8+16+2*d,2)}')
        for d in range(8): e(f'v_cvt_pk_bf16_f32 v{P+d}, v{w8+2*d}, v{w8+2*d+1}')
        for kk in range(2):
            b = P + 4 * kk
            e(f'v_permlane32_swap_b32 v{b}, v{b+2}\nv_permlane32_swap_b32 v{b+1}, v{b+3}')
        for kk in range(2):
            self.vmem(f'buffer_store_dwordx4 {vr(P+4*kk,4)}, v{vO}, s[{R_OUT}:{R_OUT+3}], 0 offen offset:{32*kk} {o.get("outflags", "")}', 'out')
        self.stamp(24)

    def build(self):
        e = self.e
        self.prologue()
        saveV = list(self.V.used)
        self.helper()
        self.V.used = saveV; self.vm.drain(); self.lg.drain()
        self.label('L_worker')
        self.phaseA()
        upto = self.o.get('upto', 'C')
        if upto in ('B', 'C'): self.phaseB()
        if upto == 'C': self.phaseC()
        self.stamps_out()
        if self.o.get('padto'):
            e('s_waitcnt vmcnt(0)')
            self.label('L_pad')
            e(f's_memrealtime s[{S_TS}:{S_TS+1}]\ns_waitcnt lgkmcnt(0)\ns_sub_u32 s{S_TS}, s{S_TS}, s{S_TS+6}\ns_cmp_lt_u32 s{S_TS}, {self.o.get("padto")}\ns_cbranch_scc1 L_pad')
        self.label('L_end')
        e('s_endpgm')

HEADER = open(os.path.join(os.path.dirname(os.path.abspath(__file__)), 'header.txt')).read() if os.path.exists(os.path.join(os.path.dirname(os.path.abspath(__file__)), 'header.txt')) else ''

def generate(opt):
    g = Gen(opt)
    g.build()
    lines, problems = fix_hazards(g.lines, verbose=opt.get('verbose', False))
    for p in problems: print('BACKEDGE HAZARD:', p, file=sys.stderr)
    out = [HEADER.rstrip('\n').replace('@@GRID@@', f'; @launch grid=(256,1,1) block=(256,1,1) lds={LDS_SIZE}')]
    out += ['.amdgcn_target "amdgcn-amd-amdhsa--gfx950"', '.text', f'.globl {NAME}', '.p2align 8', f'.type {NAME},@function', f'{NAME}:']
    for l in lines:
        out.append(l if l.endswith(':') else '    ' + l)
    out += ['.section .rodata,"a"', '.p2align 6', f'.amdhsa_kernel {NAME}',
            '  .amdhsa_next_free_vgpr 512', '  .amdhsa_next_free_sgpr 102', '  .amdhsa_accum_offset 256',
            '  .amdhsa_group_segment_fixed_size 0', '  .amdhsa_kernarg_size 128', '  .amdhsa_user_sgpr_count 2',
            '  .amdhsa_user_sgpr_kernarg_segment_ptr 1', '  .amdhsa_system_sgpr_workgroup_id_x 1',
            '  .amdhsa_float_denorm_mode_32 3', '.end_amdhsa_kernel', '']
    if opt.get('verbose'): print('max arch vgpr', g.V.hi, 'lines', len(lines))
    return '\n'.join(out)

if __name__ == '__main__':
    import json
    opt = json.loads(sys.argv[2]) if len(sys.argv) > 2 else {}
    opt['verbose'] = True
    txt = generate(opt)
    open(sys.argv[1], 'w').write(txt)
```

```python
import re

class Regs:
    def __init__(self, prefix, n, start=0):
        self.p = prefix; self.n = n; self.used = [False] * n
        for i in range(start): self.used[i] = True
        self.hi = start
    def alloc(self, cnt=1, align=None):
        if align is None: align = 1 if cnt == 1 else 2
        i = 0
        while i + cnt <= self.n:
            if i % align == 0 and not any(self.used[i:i+cnt]):
                for k in range(i, i+cnt): self.used[k] = True
                self.hi = max(self.hi, i + cnt)
                return i
            i += 1
        raise RuntimeError(f'out of {self.p} regs (need {cnt})')
    def take(self, base, cnt):
        assert not any(self.used[base:base+cnt]), (base, cnt)
        for k in range(base, base+cnt): self.used[k] = True
        self.hi = max(self.hi, base + cnt)
        return base
    def free(self, base, cnt=1):
        for k in range(base, base+cnt):
            assert self.used[k], (self.p, k)
            self.used[k] = False
    def nfree(self): return self.used.count(False)

def vr(b, n=1, p='v'):
    return f'{p}{b}' if n == 1 else f'{p}[{b}:{b+n-1}]'
def ar(b, n=1): return vr(b, n, 'a')
def sr(b, n=1): return vr(b, n, 's')

class Counter:
    def __init__(self, name, maxv):
        self.name = name; self.maxv = maxv; self.q = []
    def issue(self, tag): self.q.append(tag)
    def need(self, tag):
        tags = tag if isinstance(tag, (list, tuple, set)) else [tag]
        last = -1
        for i, t in enumerate(self.q):
            if t in tags: last = i
        if last < 0: return None
        n = len(self.q) - 1 - last
        n = min(n, self.maxv)
        self.q = self.q[len(self.q) - n:] if n > 0 else []
        return n
    def drain(self): self.q = []

class Asm:
    def __init__(self):
        self.lines = []
        self.vm = Counter('vmcnt', 62); self.lg = Counter('lgkmcnt', 14)
    def e(self, s):
        for l in s.split('\n'):
            l = l.strip()
            if l: self.lines.append(l)
    def label(self, name): self.lines.append(name + ':')
    def c(self, s): self.lines.append('; ' + s)
    def vmem(self, s, tag='x'): self.e(s); self.vm.issue(tag)
    def ds(self, s, tag='x'): self.e(s); self.lg.issue(tag)
    def wait_vm(self, tag):
        n = self.vm.need(tag)
        if n is not None: self.e(f's_waitcnt vmcnt({n})')
    def wait_lg(self, tag):
        n = self.lg.need(tag)
        if n is not None: self.e(f's_waitcnt lgkmcnt({n})')
    def wait_all_lg(self): self.e('s_waitcnt lgkmcnt(0)'); self.lg.drain()
    def wait_all_vm(self): self.e('s_waitcnt vmcnt(0)'); self.vm.drain()
    def wait_all(self): self.e('s_waitcnt vmcnt(0) lgkmcnt(0)'); self.vm.drain(); self.lg.drain()

_REG = re.compile(r'^(-|abs\()?([vas])(\d+)\)?$|^(-|abs\()?([vas])\[(\d+):(\d+)\]\)?$')
def regs_of(op):
    op = op.strip()
    op = op.replace('|', '')
    m = _REG.match(op)
    if m:
        if m.group(2): return {(m.group(2), int(m.group(3)))}
        return {(m.group(5), k) for k in range(int(m.group(6)), int(m.group(7)) + 1)}
    if op == 'vcc': return {('s', 'vcc')}
    if op in ('vcc_lo', 'vcc_hi'): return {('s', 'vcc')}
    if op == 'exec': return {('s', 'exec')}
    if op == 'm0': return {('s', 'm0')}
    return set()

TRANS = ('v_exp_f32', 'v_log_f32', 'v_rcp_f32', 'v_rsq_f32', 'v_sqrt_f32', 'v_sin_f32', 'v_cos_f32')
class Ins:
    __slots__ = ('text', 'op', 'kind', 'defs', 'uses', 'passes', 'ws', 'cuses', 'isdpp', 'storedata')
def parse(line):
    t = line.split(';')[0].strip()
    if not t or t.endswith(':') or t.startswith('.'): return None
    parts = t.split(None, 1)
    op = parts[0]; rest = parts[1] if len(parts) > 1 else ''
    ops = []; depth = 0; cur = ''
    for ch in rest:
        if ch == '[': depth += 1
        if ch == ']': depth -= 1
        if ch == ',' and depth == 0: ops.append(cur.strip()); cur = ''
        else: cur += ch
    if cur.strip(): ops.append(cur.strip())
    mods = ''
    if ops:
        toks = ops[-1].split()
        if len(toks) > 1:
            ops[-1] = toks[0]; mods = ' '.join(toks[1:])
        elif ':' in toks[0] and not toks[0].startswith(('v[', 'a[', 's[', '-v[')) :
            mods = toks[0]
    I = Ins(); I.text = line; I.op = op; I.defs = set(); I.uses = set(); I.passes = 0; I.ws = 1; I.cuses = set(); I.isdpp = False; I.storedata = set()
    R = [regs_of(o) for o in ops]
    base = re.sub(r'_(e32|e64|dpp|sdwa)$', '', op)
    if op == 's_nop':
        I.kind = 'nop'; I.ws = int(ops[0], 0) + 1
    elif op.startswith('v_mfma'):
        I.kind = 'mfma'; I.defs = R[0]; I.uses = R[1] | R[2]; I.cuses = R[3] if len(R) > 3 else set()
        I.passes = 8 if '32x32x16' in op else 4 if '16x16x32' in op else 16
    elif op.startswith('v_'):
        I.kind = 'valu'
        I.isdpp = ('_dpp' in op) or ('quad_perm' in mods) or ('row_' in mods) or ('wave_' in mods)
        if base.startswith('v_cmp'):
            I.defs = R[0]; I.uses = set().union(*R[1:])
        elif base in ('v_readfirstlane_b32', 'v_readlane_b32'):
            I.defs = R[0]; I.uses = set().union(*R[1:])
        elif base.startswith('v_permlane') and 'swap' in base:
            I.defs = R[0] | R[1]; I.uses = R[0] | R[1]
        elif base in ('v_add_co_u32', 'v_sub_co_u32', 'v_addc_co_u32', 'v_subb_co_u32'):
            I.defs = R[0] | R[1]; I.uses = set().union(*R[2:])
        elif base in ('v_fmac_f32', 'v_dot2c_f32_bf16', 'v_pk_fmac_f16'):
            I.defs = R[0]; I.uses = set().union(*R)
        elif base == 'v_cndmask_b32':
            I.defs = R[0]; I.uses = set().union(*R[1:]) | ({('s', 'vcc')} if len(ops) < 4 else set())
        elif base == 'v_writelane_b32':
            I.defs = R[0]; I.uses = set().union(*R)
        else:
            I.defs = R[0] if R else set(); I.uses = set().union(*R[1:]) if len(R) > 1 else set()
            if I.isdpp: I.uses |= I.defs
    elif op.startswith('ds_'):
        I.kind = 'ds'
        if op.startswith(('ds_read', 'ds_bpermute', 'ds_permute', 'ds_swizzle')):
            I.defs = R[0]; I.uses = set().union(*R[1:]) if len(R) > 1 else set()
        else:
            I.uses = set().union(*R)
    elif op.startswith(('buffer_', 'global_')):
        I.kind = 'vmem'
        islds = ' lds' in (' ' + mods) or '_lds_' in op
        if op.startswith(('buffer_inv', 'buffer_wbl2')): pass
        elif 'load' in op and not islds:
            I.defs = R[0]; I.uses = set().union(*R[1:])
        elif 'load' in op and islds:
            I.uses = set().union(*R) | {('s', 'm0')}
        elif 'atomic' in op and 'sc0' in mods:
            I.defs = R[0]; I.uses = set().union(*R)
        else:
            I.uses = set().union(*R)
            if 'store' in op and ('x3' in op or 'x4' in op):
                I.storedata = R[0] if op.startswith('buffer_') else R[1]
    elif op.startswith('s_'):
        I.kind = 'salu'
        if op.startswith(('s_cmp', 's_cbranch', 's_branch', 's_waitcnt', 's_barrier', 's_endpgm', 's_sleep', 's_setprio', 's_bitcmp')):
            I.uses = set().union(*R) if R else set()
        elif op.startswith(('s_load', 's_memtime', 's_memrealtime', 's_getreg', 's_getpc')):
            I.defs = R[0]; I.uses = set().union(*R[1:]) if len(R) > 1 else set()
        elif 'saveexec' in op:
            I.defs = R[0] | {('s', 'exec')}; I.uses = set().union(*R[1:]) | {('s', 'exec')}
        else:
            I.defs = R[0] if R else set(); I.uses = set().union(*R[1:]) if len(R) > 1 else set()
    else:
        I.kind = 'other'
    return I

def isv(r): return r[0] in ('v', 'a')
XDL_RAW = {2: 5, 4: 8, 8: 12, 16: 20}
XDL_C = {2: 4, 4: 6, 8: 10, 16: 18}
XDL_WAR = {2: 1, 4: 3, 8: 7, 16: 15}
def required(P, C):
    n = 0
    base = re.sub(r'_(e32|e64|dpp|sdwa)$', '', C.op)
    pbase = re.sub(r'_(e32|e64|dpp|sdwa)$', '', P.op)
    if P.kind == 'valu':
        vd = {r for r in P.defs if isv(r)}; sd = {r for r in P.defs if r[0] == 's'}
        if C.kind == 'mfma' and vd & (C.uses | C.cuses): n = max(n, 2)
        if C.kind == 'valu':
            if pbase in TRANS and base not in TRANS and vd & C.uses: n = max(n, 1)
            if pbase in TRANS and base in TRANS and vd & C.uses: n = max(n, 1)
            if base in ('v_readfirstlane_b32', 'v_readlane_b32') and vd & C.uses: n = max(n, 1)
            if C.isdpp and vd & C.uses: n = max(n, 2)
            if base.startswith('v_permlane') and vd & C.uses: n = max(n, 2)
            if sd & C.uses:
                n = max(n, 4 if base in ('v_readlane_b32', 'v_writelane_b32') else 2)
        if C.kind == 'vmem' and sd & C.uses: n = max(n, 5)
        if C.kind == 'salu' and sd & C.uses: n = max(n, 1)
    if P.kind == 'valu' and pbase.startswith('v_dot'):
        vd = P.defs
        if C.kind in ('valu', 'ds', 'vmem', 'mfma'):
            if base == pbase:
                ops = C.text.split(None, 1)[1].split(',')
                ab = regs_of(ops[1]) | regs_of(ops[2])
                if vd & ab: n = max(n, 3)
            elif vd & (C.uses | C.defs | C.cuses): n = max(n, 3)
    if P.kind == 'mfma':
        if C.kind in ('valu', 'ds', 'vmem'):
            if P.defs & (C.uses | C.defs): n = max(n, XDL_RAW[P.passes])
            if C.kind == 'valu' and P.cuses & C.defs: n = max(n, XDL_WAR[P.passes])
        if C.kind == 'mfma':
            if P.defs & C.uses: n = max(n, XDL_RAW[P.passes])
            if P.defs & C.cuses:
                if not (P.defs == C.cuses and P.passes == C.passes): n = max(n, XDL_C[P.passes])
            elif P.defs & C.defs:
                n = max(n, XDL_C[P.passes])
    if P.kind == 'vmem' and P.storedata:
        if P.storedata & C.defs: n = max(n, 2 if C.kind == 'valu' else 1)
    if P.kind == 'salu':
        if ('s', 'm0') in P.defs and ('s', 'm0') in C.uses and C.kind == 'vmem': n = max(n, 1)
    return n

def fix_hazards(lines, window=24, verbose=False):
    out = []; hist = []
    added = 0
    for line in lines:
        I = parse(line)
        if I is None:
            out.append(line); continue
        need = 0; dist = 0
        for P in reversed(hist[-window:]):
            r = required(P, I)
            if r > dist: need = max(need, r - dist)
            dist += P.ws
            if dist >= 20: break
        while need > 0:
            k = min(need, 16)
            nop = f's_nop {k-1}'
            out.append(nop); hist.append(parse(nop)); need -= k; added += 1
        out.append(line); hist.append(I)
    labels = {}; ins = []
    for line in out:
        t = line.split(';')[0].strip()
        if t.endswith(':'): labels[t[:-1]] = len(ins)
        else:
            I = parse(line)
            if I is not None: ins.append(I)
    problems = []
    for e, I in enumerate(ins):
        if I.op.startswith(('s_cbranch', 's_branch')):
            tgt = I.text.split()[-1]
            if tgt in labels:
                s = labels[tgt]
                pre = ins[max(0, e - window): e + 1]
                post = ins[s: s + window]
                for ci, C in enumerate(post):
                    dist = sum(x.ws for x in post[:ci])
                    for P in reversed(pre):
                        r = required(P, C)
                        if r > dist: problems.append((P.text, C.text, r, dist, tgt))
                        dist += P.ws
                        if dist >= 20: break
    if verbose: print(f'hazard fixer: inserted {added} nops')
    return out, problems

def _implicit(I):
    d = set(I.defs); u = set(I.uses) | set(I.cuses)
    op = re.sub(r'_(e32|e64|dpp|sdwa)$', '', I.op)
    if I.kind == 'valu' or I.kind in ('ds', 'vmem', 'mfma'): u.add(('s', 'exec'))
    if I.kind == 'salu':
        if not op.startswith(('s_mov', 's_mul_i32', 's_mul_hi', 's_cselect', 's_movk', 's_nop', 's_getreg', 's_memtime', 's_memrealtime', 's_load')): d.add(('s', 'scc'))
        if op.startswith(('s_cselect', 's_addc', 's_subb', 's_cbranch_scc')): u.add(('s', 'scc'))
    if op.startswith('v_cmp') and not I.defs: d.add(('s', 'vcc'))
    return d, u

def resched(lines):
    out = []; chunk = []
    def fence(I):
        if I is None: return True
        if I.op.startswith(('s_waitcnt', 's_barrier', 's_cbranch', 's_branch', 's_endpgm', 's_nop', 's_sleep', 's_setprio')): return True
        if ('s', 'exec') in I.defs or 'exec' in I.text.split(';')[0].split(',')[0]: return True
        if 'saveexec' in I.op: return True
        return False
    def flush():
        n = len(chunk)
        if n == 0: return
        P = [parse(l) for l in chunk]; DU = [_implicit(I) for I in P]
        preds = [dict() for _ in range(n)]
        lastmem = None
        for j in range(n):
            dj, uj = DU[j]
            for i in range(j):
                di, ui = DU[i]
                if (di & uj) or (di & dj) or (ui & dj):
                    preds[j][i] = 1 + required(P[i], P[j])
            if P[j].kind in ('ds', 'vmem'):
                if lastmem is not None: preds[j][lastmem] = max(preds[j].get(lastmem, 1), 1)
                lastmem = j
        succ = [[] for _ in range(n)]
        for j in range(n):
            for i in preds[j]: succ[i].append(j)
        prio = [0] * n
        for i in range(n - 1, -1, -1):
            prio[i] = 1 + max([prio[j] + preds[j][i] - 1 for j in succ[i]], default=0)
        pos = {}; t = 0; left = set(range(n)); order = []
        while left:
            ready = [j for j in left if all(i in pos for i in preds[j])]
            def start(j): return max([pos[i] + preds[j][i] for i in preds[j]], default=0)
            now = [j for j in ready if start(j) <= t]
            if now: j = max(now, key=lambda j: (prio[j], -j))
            else: j = min(ready, key=lambda j: (start(j), -prio[j], j))
            t = max(t, start(j)); pos[j] = t; t += P[j].ws
            order.append(j); left.discard(j)
        out.extend(chunk[j] for j in order)
        chunk.clear()
    for l in lines:
        I = parse(l)
        if fence(I): flush(); out.append(l)
        else: chunk.append(l)
    flush()
    return out
```

```python
import sys, os, math, struct
sys.path.insert(0, os.path.dirname(os.path.abspath(__file__)))
from asmlib import *

NAME = 'sequential_preLN__ssm_conv_s4__swiglu_ffn__prompt_kernel'
def f2u(x): return struct.unpack('<I', struct.pack('<f', x))[0]
def fx(x): return hex(f2u(x))
LOG2E = 1.4426950408889634
WS_STATS = 0x0
WS_FLAG2 = 0x4000
WS_FLAG3 = 0xC000
WS_STATS2 = 0x10000
WS_HT    = 0x20000
HT_STRIDE = 4352
WS_HD    = 0x200000
WS_ACT   = 0x400000
WS_XT    = 0xB00000
XT_STRIDE = 4352
WS_DBG   = 0xE00000
WS_SIZE  = 0x2000000
FLAG_STRIDE = 16
TBL_E = 1088; TBL_C = 18 * TBL_E
L_TBL = 0
L_EX = 2 * TBL_C
L_K32 = 55680; K32_C = 9344
L_RED = L_K32
L_STG = 87040; STG_SLOT = 8192
L_STGX = 74496
L_KC = 0; KC_S = 4160; KC_C = 4 * KC_S
L_U = 2 * KC_C; U_C = 5120
L_X = L_U + 2 * U_C; X_C = 4096
LDS_SIZE = 163840
HX_STRIDE = 912
S_X, S_ARE, S_AIM, S_BRE, S_BIM, S_CRE, S_CIM, S_LDT, S_DSK, S_BX, S_WG, S_WU, S_WD, S_OUT, S_DBG, S_WS = range(4, 36, 2)
R_X, R_WS, R_DBG, R_WG, R_WU, R_WD, R_OUT = 36, 40, 44, 48, 52, 56, 60
S_W, S_NONCE, S_XCD, S_J, S_CP, S_T0, S_T1, S_T2, S_T3, S_T4, S_T5 = 64, 65, 66, 67, 68, 69, 70, 71, 72, 73, 74
S_LD, S_DK = 75, 76
S_RB, S_FB, S_RB2, S_DB = 77, 78, 79, 80
S_M0, S_M1, S_M2, S_M3 = 82, 84, 86, 88
S_CNT = 90
S_HID = 91
S_WM, S_WO, S_US = 81, 100, 101
S_ROT = 99
S_WA, S_WB, S_WC = 18, 19, 20
S_RW0, S_RA0 = 24, 28
S_Q0 = 14
S_TS = 92
SPIN_MAX = 200000

class Gen(Asm):
    def __init__(self, opt):
        super().__init__()
        self.o = opt
        self.V = Regs('v', 256, start=2)
        if opt.get('stamps'): self.V.take(253, 3)
        self.uid = 0
    def lab(self, s):
        self.uid += 1
        return f'L{s}_{self.uid}'
    def srd(self, r, ptr, size):
        self.e(f's_mov_b32 s{r}, s{ptr}\ns_mov_b32 s{r+1}, s{ptr+1}\ns_mov_b32 s{r+2}, {hex(size)}\ns_mov_b32 s{r+3}, 0x20000')
    def cmul(self, d, a, b, t=None):
        t = d if t is None else t
        self.e(f'v_pk_mul_f32 {vr(t,2)}, {vr(a,2)}, {vr(b,2)} op_sel:[0,0] op_sel_hi:[0,1]')
        self.e(f'v_pk_fma_f32 {vr(d,2)}, {vr(a,2)}, {vr(b,2)}, {vr(t,2)} op_sel:[1,1,0] op_sel_hi:[1,0,1] neg_lo:[0,1,0]')
    def cmul_multi(self, items):
        for d, a, b, t in items:
            t = d if t is None else t
            self.e(f'v_pk_mul_f32 {vr(t,2)}, {vr(a,2)}, {vr(b,2)} op_sel:[0,0] op_sel_hi:[0,1]')
        for d, a, b, t in items:
            t = d if t is None else t
            self.e(f'v_pk_fma_f32 {vr(d,2)}, {vr(a,2)}, {vr(b,2)}, {vr(t,2)} op_sel:[1,1,0] op_sel_hi:[1,0,1] neg_lo:[0,1,0]')
    def stamp(self, i):
        dm = self.o.get('dbgmap')
        if dm and i in dm:
            lab = self.lab('ds')
            self.e(f's_cmp_lg_u32 s2, {self.o.get("dbgwg", 8)}\ns_cbranch_scc1 {lab}\ns_cmp_lg_u32 s{S_W}, 0\ns_cbranch_scc1 {lab}')
            self.e(f's_memrealtime s[{S_TS}:{S_TS+1}]\ns_waitcnt lgkmcnt(0)')
            v = self.V.alloc(2)
            self.e(f's_sub_u32 s{S_TS}, s{S_TS}, s{S_TS+6}\nv_mov_b32 v{v}, s{S_TS}\nv_mov_b32 v{v+1}, {4*(1+dm.index(i))}')
            self.e(f's_mov_b64 s[{S_TS+4}:{S_TS+5}], exec\ns_mov_b64 exec, 1')
            self.e(f'buffer_store_dword v{v}, v{v+1}, s[{R_DBG}:{R_DBG+3}], 0 offen')
            self.e(f's_mov_b64 exec, s[{S_TS+4}:{S_TS+5}]')
            self.V.free(v, 2)
            self.label(lab)
            self.e('s_waitcnt lgkmcnt(0)')
            self.lg.drain()
        if self.o.get('stamps') and (self.o.get('only') is None or i in self.o['only']):
            self.e(f's_memrealtime s[{S_TS}:{S_TS+1}]\ns_memtime s[{S_TS+4}:{S_TS+5}]')
            self.e('s_waitcnt lgkmcnt(0)'); self.lg.drain()
            self.e(f'v_writelane_b32 v254, s{S_TS}, {i}\nv_writelane_b32 v255, s{S_TS+4}, {i}')

    def stamps_out(self):
        if self.o.get('stamps'):
            e = self.e
            e(f's_lshl_b32 s{S_TS+2}, s2, 10\ns_lshl_b32 s{S_TS+3}, s{S_W}, 8\ns_add_u32 s{S_TS+2}, s{S_TS+2}, s{S_TS+3}\ns_add_u32 s{S_TS+2}, s{S_TS+2}, {WS_DBG}')
            e(f'v_lshl_add_u32 v253, v1, 2, s{S_TS+2}\ns_mov_b32 exec_lo, -1\ns_mov_b32 exec_hi, 0')
            e(f'buffer_store_dword v254, v253, s[{R_WS}:{R_WS+3}], 0 offen\nbuffer_store_dword v255, v253, s[{R_WS}:{R_WS+3}], 0 offen offset:128')

    def prologue(self):
        e = self.e
        e(f's_cmp_ge_u32 s2, 256\ns_cbranch_scc1 L_end')
        e(f's_load_dwordx16 s[4:19], s[0:1], 0\ns_load_dwordx16 s[20:35], s[0:1], 64')
        e(f's_memrealtime s[{S_M0}:{S_M0+1}]')
        e('v_and_b32 v1, 63, v0')
        if self.o.get('stamps'): e('v_mov_b32 v254, 0x5a5a5a5a\nv_mov_b32 v255, 0x5a5a5a5a')
        v = self.V.alloc(1)
        e(f'v_lshrrev_b32 v{v}, 6, v0')
        e(f's_and_b32 s{S_XCD}, s2, 7\ns_lshr_b32 s{S_J}, s2, 3')
        e(f'v_readfirstlane_b32 s{S_W}, v{v}')
        self.V.free(v)
        e(f's_cmp_lt_u32 s{S_J}, 4\ns_cbranch_scc1 L_helper')
        e(f's_sub_u32 s{S_J}, s{S_J}, 4\ns_mul_i32 s{S_CP}, s{S_XCD}, 28\ns_add_u32 s{S_CP}, s{S_CP}, s{S_J}\ns_branch L_worker')
        self.label('L_helper')

    def srds(self, skip=()):
        e = self.e
        for r, p, n in ((R_X, S_X, 2048*448*2), (R_WS, S_WS, WS_SIZE), (R_DBG, S_DBG, 256), (R_WG, S_WG, 448*1792*2), (R_WU, S_WU, 448*1792*2),
                        (R_WD, S_WD, 448*1792*2), (R_OUT, S_OUT, 2048*448*2)):
            if r not in skip: self.srd(r, p, n)

    def publish_nonce(self):
        e = self.e
        e(f's_or_b32 s{S_NONCE}, s{S_M0}, 1\ns_mov_b32 s{S_TS+6}, s{S_M0}')
        lab = self.lab('non')
        e(f's_or_b32 s{S_T0}, s2, s{S_W}\ns_cmp_lg_u32 s{S_T0}, 0\ns_cbranch_scc1 {lab}')
        v = self.V.alloc(2)
        e(f'v_mov_b32 v{v}, s{S_NONCE}\nv_mov_b32 v{v+1}, 0')
        e(f's_mov_b64 s[{S_M1}:{S_M1+1}], exec\ns_mov_b64 exec, 1')
        e(f'buffer_store_dword v{v}, v{v+1}, s[{R_DBG}:{R_DBG+3}], 0 offen sc1')
        e(f's_mov_b64 exec, s[{S_M1}:{S_M1+1}]')
        self.V.free(v, 2)
        self.label(lab)

    def capture(self, fn):
        save = self.lines; self.lines = []
        r = fn()
        fl = self.lines; self.lines = save
        return r, [(lambda l=l: self.e(l)) for l in fl if not l.startswith(';')]

    def region(self, fn):
        save = self.lines; self.lines = []
        r = fn()
        fl = self.lines; self.lines = save
        self.lines.extend(resched(fl) if self.o.get('resched', True) else fl)
        return r

    def two_paths(self, fn, nop=7):
        e = self.e; l1 = self.lab('p1'); ld = self.lab('pd')
        e(f's_and_b32 s{S_T5}, s{S_W}, 1\ns_cmp_lg_u32 s{S_T5}, 0\ns_cbranch_scc1 {l1}')
        st = (list(self.vm.q), list(self.lg.q), list(self.V.used))
        fn(0)
        e(f's_branch {ld}')
        end = (list(self.vm.q), list(self.lg.q), list(self.V.used))
        self.vm.q, self.lg.q, self.V.used = list(st[0]), list(st[1]), list(st[2])
        self.label(l1)
        e(f's_nop {nop}')
        fn(1)
        assert (self.vm.q, self.lg.q, self.V.used) == end, 'paths diverge'
        self.label(ld)

    def get_nonce(self):
        e = self.e
        v = self.V.alloc(2)
        l0 = self.lab('gn'); l1 = self.lab('gnd')
        e(f'v_mov_b32 v{v+1}, 0\ns_mov_b32 s{S_CNT}, 0')
        self.label(l0)
        e(f'buffer_load_dword v{v}, v{v+1}, s[{R_DBG}:{R_DBG+3}], 0 offen sc1')
        e('s_waitcnt vmcnt(0)'); self.vm.drain()
        e(f'v_readfirstlane_b32 s{S_NONCE}, v{v}')
        e(f's_cmp_lg_u32 s{S_NONCE}, 0\ns_cbranch_scc1 {l1}')
        e(f's_add_u32 s{S_CNT}, s{S_CNT}, 1\ns_cmp_lt_u32 s{S_CNT}, {SPIN_MAX}\ns_cbranch_scc1 {l0}')
        self.label(l1)
        self.V.free(v, 2)

    def helper(self):
        e = self.e; V = self.V
        self.c('================= helper: x^T + LN1 stats')
        e('s_waitcnt lgkmcnt(0)')
        self.srd(R_X, S_X, 2048*448*2)
        e(f's_mov_b32 s{S_TS+6}, s{S_M0}')
        e(f's_lshl_b32 s{S_T0}, s{S_XCD}, 2\ns_add_u32 s{S_HID}, s{S_J}, s{S_T0}')
        va = V.alloc(1); t0 = V.alloc(1); t1 = V.alloc(1)
        e(f's_lshl_b32 s{S_T0}, s{S_HID}, 6\ns_lshl_b32 s{S_T1}, s{S_W}, 4\ns_add_u32 s{S_T0}, s{S_T0}, s{S_T1}')
        e(f's_mul_i32 s{S_T2}, s{S_T0}, 896\ns_mul_i32 s{S_T3}, s{S_T1}, {HX_STRIDE}')
        e(f'v_lshlrev_b32 v{va}, 4, v1')
        e(f's_mov_b64 s[{S_M1}:{S_M1+1}], exec\ns_mov_b32 exec_lo, -1\ns_mov_b32 exec_hi, 0x00ffffff')
        for r in range(16):
            e(f's_add_u32 m0, s{S_T3}, {r*HX_STRIDE}\ns_add_u32 s{S_T4}, s{S_T2}, {r*896}')
            self.vmem(f'buffer_load_dwordx4 v{va}, s[{R_X}:{R_X+3}], s{S_T4} offen lds', 'x')
        e(f's_mov_b64 exec, s[{S_M1}:{S_M1+1}]')
        self.srds(skip=(R_X,))
        self.publish_nonce()
        self.stamp(0)
        vT = V.alloc(1); vO = V.alloc(1); vA = V.alloc(1)
        e(f'v_lshrrev_b32 v{t0}, 4, v1\nv_lshlrev_b32 v{t0}, 1, v{t0}\nv_bfe_u32 v{t1}, v1, 1, 1\nv_add_u32 v{t0}, v{t0}, v{t1}\nv_lshlrev_b32 v{t0}, 3, v{t0}')
        e(f'v_bfe_u32 v{t1}, v1, 2, 2\nv_add_u32 v{t0}, v{t0}, v{t1}\nv_mul_u32_u24 v{vT}, {HX_STRIDE}, v{t0}')
        e(f'v_and_b32 v{t1}, 1, v1\nv_lshl_add_u32 v{vT}, v{t1}, 3, v{vT}\ns_lshl_b32 s{S_T0}, s{S_W}, 4\nv_add_u32 v{vT}, s{S_T0}, v{vT}')
        e(f's_lshl_b32 s{S_T0}, s{S_W}, 15\ns_lshl_b32 s{S_T1}, s{S_HID}, 10\ns_add_u32 s{S_T0}, s{S_T0}, s{S_T1}\ns_add_u32 s{S_T0}, s{S_T0}, {WS_XT}\nv_lshl_add_u32 v{vO}, v1, 4, s{S_T0}')
        e(f'v_and_b32 v{t0}, 15, v1\nv_lshrrev_b32 v{t1}, 4, v1')
        e(f's_lshl_b32 s{S_T0}, s{S_W}, 4\nv_add_u32 v{t0}, s{S_T0}, v{t0}\nv_mul_u32_u24 v{vA}, {HX_STRIDE}, v{t0}\nv_lshl_add_u32 v{vA}, v{t1}, 4, v{vA}')
        e(f's_lshl_b32 s{S_T0}, s{S_HID}, 6\nv_add_u32 v{t0}, s{S_T0}, v{t0}')
        XG = self.o.get('xg', True)
        self.get_nonce()
        Q = V.alloc(56, 4)
        if not XG:
            e('s_barrier')
            self.stamp(3)
            for u in range(14):
                for k_ in range(2):
                    self.ds(f'ds_read_b64_tr_b16 {vr(Q+4*u+2*k_,2)}, v{vT} offset:{64*u + 4*k_*HX_STRIDE}', f'q{u}')
            for u in range(14):
                self.wait_lg(f'q{u}')
                e(f's_mov_b32 s{S_T1}, {u*4*32768}')
                self.vmem(f'buffer_store_dwordx4 {vr(Q+4*u,4)}, v{vO}, s[{R_WS}:{R_WS+3}], s{S_T1} offen sc1', 'xt')
            self.stamp(4)
        else: self.stamp(3)
        xa = V.alloc(56, 4)
        for s in range(14): self.ds(f'ds_read_b128 {vr(xa+4*s,4)}, v{vA} offset:{64*s}', f'x{s}')
        acc = V.alloc(8, 4); ones = V.alloc(4, 4)
        for i in range(4): e(f'v_mov_b32 v{ones+i}, 0x3f803f80')
        e(f's_mov_b32 s6, 0x22222222\ns_mov_b32 s7, 0x22222222\ns_mov_b32 s8, 0x44444444\ns_mov_b32 s9, 0x44444444\ns_mov_b32 s10, 0x88888888\ns_mov_b32 s11, 0x88888888\ns_mov_b32 s12, 0x00f0000f\ns_mov_b32 s13, 0xf0000f00')
        for s in range(14):
            self.wait_lg(f'x{s}')
            e(f'v_mfma_f32_16x16x32_bf16 {vr(acc,4)}, {vr(xa+4*s,4)}, {vr(xa+4*s,4)}, {"0" if s == 0 else vr(acc,4)}')
            e(f'v_mfma_f32_16x16x32_bf16 {vr(acc+4,4)}, {vr(ones,4)}, {vr(xa+4*s,4)}, {"0" if s == 0 else vr(acc+4,4)}')
        e(f'v_cndmask_b32 v{acc}, v{acc}, v{acc+1}, s[6:7]\nv_cndmask_b32 v{acc}, v{acc}, v{acc+2}, s[8:9]\nv_cndmask_b32 v{acc+5}, v{acc}, v{acc+3}, s[10:11]')
        e(f'v_mov_b32 v{acc}, v{acc+4}\nv_mov_b32 v{acc+4}, v{acc+5}')
        S = acc; Qs = acc + 4
        pk = V.alloc(2, 2)
        self.ln_finalize(S, Qs, acc + 1, acc + 2, acc + 3)
        e(f'v_lshrrev_b32 v{pk}, 16, v{acc+1}\nv_or_b32 v{pk}, v{pk}, v{acc+2}')
        self.stamp(5)
        if not XG:
            self.wait_all_vm()
            e('s_barrier')
        self.stamp(6)
        e(f'v_mov_b32 v{pk+1}, s{S_NONCE}')
        e(f'v_lshlrev_b32 v{t0}, 3, v{t0}')
        if WS_STATS: e(f'v_add_u32 v{t0}, {WS_STATS}, v{t0}')
        e(f's_mov_b64 s[{S_M1}:{S_M1+1}], exec\ns_mov_b64 exec, s[12:13]')
        self.vmem(f'buffer_store_dwordx2 {vr(pk,2)}, v{t0}, s[{R_WS}:{R_WS+3}], 0 offen sc1', 'st')
        e(f's_mov_b64 exec, s[{S_M1}:{S_M1+1}]')
        self.stamp(1)
        V.free(pk, 2); V.free(acc, 8); V.free(ones, 4); V.free(xa, 56); V.free(Q, 56); V.free(vT); V.free(vO); V.free(vA)
        e('s_barrier')
        tw = self.o.get('touch_wd', 'mall')
        if tw:
            nl = 13 if tw == 'l2' else 2
            tv = V.alloc(13); ta = V.alloc(2)
            if tw == 'l2': e(f's_mul_i32 s{S_T0}, s{S_J}, {448*896}')
            else: e(f's_mul_i32 s{S_T0}, s{S_HID}, {56*896}')
            for k in range(nl):
                e(f'v_add_u32 v{ta}, {256*k}, v0\nv_min_u32 v{ta}, {3135 if tw == "l2" else 391}, v{ta}\nv_mul_u32_u24 v{ta+1}, 9363, v{ta}\nv_lshrrev_b32 v{ta+1}, 16, v{ta+1}')
                e(f'v_mul_u32_u24 v{tv+k}, 7, v{ta+1}\nv_sub_u32 v{ta}, v{ta}, v{tv+k}\nv_mul_u32_u24 v{ta+1}, 896, v{ta+1}\nv_lshl_add_u32 v{ta+1}, v{ta}, 7, v{ta+1}')
                e(f'buffer_load_dword v{tv+k}, v{ta+1}, s[{R_WD}:{R_WD+3}], s{S_T0} offen')
            self.wait_all_vm()
            V.free(tv, 13); V.free(ta, 2)
        self.c('helper: LN2 stats + hD')
        vD = V.alloc(1); vB = V.alloc(2); vS = V.alloc(1); vHs = V.alloc(1)
        e(f'v_lshrrev_b32 v{t0}, 3, v1\nv_mul_u32_u24 v{vD}, {HT_STRIDE}, v{t0}\nv_bfe_u32 v{t0}, v1, 4, 1\nv_lshlrev_b32 v{t0}, 2, v{t0}\nv_and_b32 v{t1}, 7, v1\nv_xor_b32 v{t0}, v{t0}, v{t1}\nv_lshl_add_u32 v{vD}, v{t0}, 4, v{vD}')
        e(f's_lshl_b32 s{S_T0}, s{S_HID}, 7\ns_mul_i32 s{S_T1}, s{S_W}, {8*HT_STRIDE}\ns_add_u32 s{S_T0}, s{S_T0}, s{S_T1}\ns_add_u32 s{S_T0}, s{S_T0}, {WS_HT}\nv_add_u32 v{vD}, s{S_T0}, v{vD}')
        e(f'v_lshrrev_b32 v{t0}, 5, v1\nv_lshlrev_b32 v{vB}, 9, v{t0}\nv_bfe_u32 v{t0}, v1, 2, 2\nv_lshl_add_u32 v{vB}, v{t0}, 7, v{vB}')
        e(f'v_bfe_u32 v{t0}, v1, 4, 1\nv_lshl_add_u32 v{vB}, v{t0}, 5, v{vB}\nv_and_b32 v{t0}, 3, v1\nv_lshl_add_u32 v{vB}, v{t0}, 3, v{vB}')
        e(f'v_bfe_u32 v{t0}, v1, 3, 1\nv_lshlrev_b32 v{t0}, 6, v{t0}\nv_xor_b32 v{t1}, 64, v{t0}\nv_add_u32 v{vB+1}, v{vB}, v{t1}\nv_add_u32 v{vB}, v{vB}, v{t0}')
        e(f'v_lshrrev_b32 v{t0}, 4, v1\nv_lshlrev_b32 v{vS}, 9, v{t0}\nv_bfe_u32 v{t0}, v1, 2, 2\nv_lshl_add_u32 v{vS}, v{t0}, 7, v{vS}\nv_and_b32 v{t0}, 3, v1\nv_lshl_add_u32 v{vS}, v{t0}, 3, v{vS}')
        e(f'v_bfe_u32 v{t0}, v1, 3, 1\ns_lshr_b32 s{S_T0}, s{S_W}, 1\nv_xor_b32 v{t0}, s{S_T0}, v{t0}\nv_lshl_add_u32 v{vS}, v{t0}, 6, v{vS}\ns_and_b32 s{S_T0}, s{S_W}, 1\ns_lshl_b32 s{S_T0}, s{S_T0}, 5\nv_add_u32 v{vS}, s{S_T0}, v{vS}')
        e(f's_mul_i32 s{S_T0}, s{S_HID}, {2*28}\ns_add_u32 s{S_T0}, s{S_T0}, s{S_W}\ns_lshl_b32 s{S_T0}, s{S_T0}, 10\ns_add_u32 s{S_T0}, s{S_T0}, {WS_HD}\nv_lshl_add_u32 v{vHs}, v1, 4, s{S_T0}')
        ones = V.alloc(4, 4); SG = V.alloc(8, 4); SB = V.alloc(56, 4)
        for i in range(4): e(f'v_mov_b32 v{ones+i}, 0x3f803f80')
        K1, K2, K3 = 6, 8, 10
        e(f's_mov_b32 s{K1}, 0x22222222\ns_mov_b32 s{K1+1}, 0x22222222\ns_mov_b32 s{K2}, 0x44444444\ns_mov_b32 s{K2+1}, 0x44444444')
        e(f's_mov_b32 s{K3}, 0x88888888\ns_mov_b32 s{K3+1}, 0x88888888\ns_mov_b32 s12, 0x00f0000f\ns_mov_b32 s13, 0xf0000f00')
        self.poll_flags(WS_FLAG2 + 32*FLAG_STRIDE, 64, 4, last_lanes=32, sleep=self.o.get('hsleep', 20))
        self.vm.drain(); self.lg.drain()
        self.stamp(7)
        e(f's_lshl_b32 s{S_T2}, s{S_W}, 10')
        for i in range(14):
            e(f's_add_u32 m0, s{S_T2}, {i*4096}\ns_mov_b32 s{S_T1}, {i*32*HT_STRIDE}')
            self.vmem(f'buffer_load_dwordx4 v{vD}, s[{R_WS}:{R_WS+3}], s{S_T1} offen sc1 lds', 'h')
        self.wait_all_vm(); e('s_barrier')
        self.stamp(8)
        for i in range(14):
            for h_ in range(2): self.ds(f'ds_read_b64_tr_b16 {vr(SB+4*i+2*h_,2)}, v{vS} offset:{i*4096 + 2048*h_}', f's{i}')
        for i in range(14):
            self.wait_lg(f's{i}')
            e(f'v_mfma_f32_16x16x32_bf16 {vr(SG,4)}, {vr(SB+4*i,4)}, {vr(SB+4*i,4)}, {"0" if i == 0 else vr(SG,4)}')
            e(f'v_mfma_f32_16x16x32_bf16 {vr(SG+4,4)}, {vr(ones,4)}, {vr(SB+4*i,4)}, {"0" if i == 0 else vr(SG+4,4)}')
        HB = V.alloc(56, 4)
        e(f'v_cndmask_b32 v{SG}, v{SG}, v{SG+1}, s[{K1}:{K1+1}]\nv_cndmask_b32 v{SG}, v{SG}, v{SG+2}, s[{K2}:{K2+1}]\nv_cndmask_b32 v{SG+5}, v{SG}, v{SG+3}, s[{K3}:{K3+1}]')
        self.ln_finalize(SG + 4, SG + 5, SG + 1, SG + 2, SG + 3)
        e(f'v_lshrrev_b32 v{SG}, 16, v{SG+1}\nv_or_b32 v{SG}, v{SG}, v{SG+2}\nv_mov_b32 v{SG+1}, s{S_NONCE}')
        e(f'v_and_b32 v{t0}, 15, v1\ns_lshl_b32 s{S_T0}, s{S_HID}, 6\ns_lshl_b32 s{S_T1}, s{S_W}, 4\ns_add_u32 s{S_T0}, s{S_T0}, s{S_T1}\nv_add_u32 v{t0}, s{S_T0}, v{t0}\nv_lshlrev_b32 v{t0}, 3, v{t0}\nv_add_u32 v{t0}, {WS_STATS2}, v{t0}')
        e(f's_mov_b64 s[{S_M1}:{S_M1+1}], exec\ns_mov_b64 exec, s[12:13]')
        self.vmem(f'buffer_store_dwordx2 {vr(SG,2)}, v{t0}, s[{R_WS}:{R_WS+3}], 0 offen sc1', 'st2')
        e(f's_mov_b64 exec, s[{S_M1}:{S_M1+1}]')
        self.stamp(9)
        e(f's_lshl_b32 s{S_T0}, s{S_W}, 11\nv_add_u32 v{vB}, s{S_T0}, v{vB}\nv_add_u32 v{vB+1}, s{S_T0}, v{vB+1}')
        for i in range(7):
            for gp in range(2):
                for h_ in range(2):
                    self.ds(f'ds_read_b64_tr_b16 {vr(HB+8*i+4*gp+2*h_,2)}, v{vB+gp} offset:{i*8192 + 1024*h_}', f'hb{i}_{gp}')
        for i in range(7):
            for gp in range(2):
                self.wait_lg(f'hb{i}_{gp}')
                e(f's_mov_b32 s{S_T1}, {(gp*28 + 4*i)*1024}')
                self.vmem(f'buffer_store_dwordx4 {vr(HB+8*i+4*gp,4)}, v{vHs}, s[{R_WS}:{R_WS+3}], s{S_T1} offen sc1', 'hd')
        self.wait_all_vm(); e('s_barrier')
        e(f's_lshr_b32 s{S_T1}, s{S_HID}, 1\ns_lshl_b32 s{S_T1}, s{S_T1}, 4\ns_and_b32 s{S_T2}, s{S_HID}, 1\ns_add_u32 s{S_T1}, s{S_T1}, s{S_T2}\ns_add_u32 s{S_T1}, s{S_T1}, 14')
        self.signal(WS_FLAG3, f's{S_T1}')
        self.stamp(2)
        self.stamps_out()
        e('s_branch L_end')

    def signal(self, base, sidx):
        e = self.e; V = self.V
        lab = self.lab('sig')
        e(f's_cmp_lg_u32 s{S_W}, 0\ns_cbranch_scc1 {lab}')
        v = V.alloc(2, 2)
        e(f's_mul_i32 s{S_T0}, {sidx}, {FLAG_STRIDE}\ns_add_u32 s{S_T0}, s{S_T0}, {base}')
        e(f'v_mov_b32 v{v}, s{S_NONCE}\nv_mov_b32 v{v+1}, s{S_T0}')
        e(f's_mov_b64 s[{S_M1}:{S_M1+1}], exec\ns_mov_b64 exec, 1')
        e(f'buffer_store_dword v{v}, v{v+1}, s[{R_WS}:{R_WS+3}], 0 offen sc1')
        e(f's_mov_b64 exec, s[{S_M1}:{S_M1+1}]')
        V.free(v, 2)
        self.label(lab)

    def rbf(self, d, s, pre=''):
        self.e(f'v_cvt_pk_bf16_f32 v{d}, v{s}, v{s}\nv_lshlrev_b32 v{d}, 16, v{d}')
    def ln_finalize(self, S, Q, dm, ds_, dt):
        e = self.e
        e(f'v_mul_f32 v{S}, {fx(1/448)}, v{S}')
        e(f'v_mul_f32 v{Q}, {fx(1/448)}, v{Q}')
        e(f'v_fma_f32 v{Q}, -v{S}, v{S}, v{Q}')
        e(f'v_max_f32 v{Q}, 0, v{Q}')
        self.rbf(dm, S)
        self.rbf(dt, Q)
        e(f'v_add_f32 v{dt}, {fx(1e-5)}, v{dt}')
        self.rbf(dt, dt)
        e(f'v_sqrt_f32 v{dt}, v{dt}')
        self.rbf(ds_, dt)

    def w1_setup(self):
        e = self.e; V = self.V
        self.vW1 = V.alloc(1); self.vTS = V.alloc(5)
        t = V.alloc(1); t2 = V.alloc(1)
        e(f'v_lshrrev_b32 v{t}, 4, v1\nv_mul_u32_u24 v{self.vW1}, 3584, v{t}\nv_lshlrev_b32 v{t}, 2, v{t}\nv_and_b32 v{t2}, 15, v1\nv_xor_b32 v{t}, v{t}, v{t2}\nv_lshl_add_u32 v{self.vW1}, v{t}, 4, v{self.vW1}')
        e(f's_lshl_b32 s{S_T0}, s{S_FB}, 8\ns_mul_i32 s{S_T1}, s{S_W}, {4*3584}\ns_add_u32 s{S_T0}, s{S_T0}, s{S_T1}\nv_add_u32 v{self.vW1}, s{S_T0}, v{self.vW1}')
        e(f's_lshl_b32 s{S_WM}, s{S_W}, 10\ns_add_u32 s{S_WM}, s{S_WM}, {L_STG}')
        a = self.vTS
        e(f'v_lshrrev_b32 v{t}, 5, v1\nv_lshlrev_b32 v{a}, 10, v{t}\nv_bfe_u32 v{t}, v1, 2, 2\nv_lshl_add_u32 v{a}, v{t}, 8, v{a}')
        e(f'v_xor_b32 v{t}, s{S_W}, v{t}\nv_lshl_add_u32 v{a}, v{t}, 6, v{a}')
        e(f'v_bfe_u32 v{t}, v1, 4, 1\nv_lshl_add_u32 v{a}, v{t}, 5, v{a}\nv_and_b32 v{t}, 3, v1\nv_lshl_add_u32 v{a}, v{t}, 3, v{a}')
        e(f'v_add_u32 v{a+1}, {L_STGX}, v{a}\nv_add_u32 v{a+2}, {L_STG + 65536}, v{a}\nv_add_u32 v{a+3}, 57344, v{a}\nv_mov_b32 v{a+4}, v{a}\nv_add_u32 v{a}, {L_STG}, v{a}')
        for q in range(4):
            e(f's_add_u32 s{S_T0}, s{S_ROT}, {q}\ns_and_b32 s{S_T0}, s{S_T0}, 3\ns_mul_i32 s{S_Q0+q}, s{S_T0}, {7*16*3584}')
        V.free(t); V.free(t2)
    @property
    def W1SLOT(self):
        if self.o.get('xg', True): return [0,1,2,3,4, 5,6,7,8,9, 0,1,2,3, 4,5,6,7,8,9, 10,11, 12,13,14,15,16,17]
        return [0,1,2,3,4, 5,6,7,8,9, 0,1,2,3,4, 0,1,2,3,5,6,7,8,9, 10,11,12,13]
    def w1_slot_off(self, k):
        s = self.W1SLOT[k]
        return s * STG_SLOT if s < 9 else (L_STGX - L_STG if s == 9 else (57344 + (s - 10)*STG_SLOT - L_STG if s < 12 else (s - 12)*STG_SLOT - L_STG))
    def w1_dma(self, k, tag, slot=None):
        e = self.e; sl = self.w1_slot_off(k)
        def m0(x): return f's_add_u32 m0, s{S_WM}, {x}' if x >= 0 else f's_sub_u32 m0, s{S_WM}, {-x}'
        return [lambda: e(f's_add_u32 s{S_WO}, s{S_Q0 + k // 7}, {(k % 7)*16*3584}'),
                lambda: e(m0(sl)),
                lambda: self.vmem(f'buffer_load_dwordx4 v{self.vW1}, s[{R_WG}:{R_WG+3}], s{S_WO} offen lds', tag),
                lambda: e(m0(sl + 4096)),
                lambda: self.vmem(f'buffer_load_dwordx4 v{self.vW1}, s[{R_WU}:{R_WU+3}], s{S_WO} offen lds', tag)]
    def w1_issue(self, k0, k1, tag):
        for k in range(k0, k1):
            for f in self.w1_dma(k, tag): f()
    def w1_reads(self, k):
        s = self.W1SLOT[k]
        if s == 9: a, sl = self.vTS + 1, 0
        elif s >= 12: a, sl = self.vTS + 4, (s - 12) * STG_SLOT
        elif s >= 10: a, sl = self.vTS + 3, (s - 10) * STG_SLOT
        else: a, sl = self.vTS, s * STG_SLOT
        assert sl + 6144 < 65536 + 8192
        out = []
        for q in range(4):
            off = sl + 2048 * q
            aa = a
            if off >= 65536: aa, off = self.vTS + 2, off - 65536
            out.append(lambda q=q, aa=aa, off=off: self.ds(f'ds_read_b64_tr_b16 {ar(8*k+2*q,2)}, v{aa} offset:{off}', 'w1r'))
        return out
    def w1_read(self, k0, k1):
        for k in range(k0, k1):
            for f in self.w1_reads(k): f()

    def phaseA(self):
        e = self.e; V = self.V; o = self.o
        self.c('================= phase A')
        par = V.alloc(6); t0 = V.alloc(1); t1 = V.alloc(1)
        e(f's_lshl_b32 s{S_T1}, s{S_CP}, 10\nv_lshl_add_u32 v{t0}, v0, 2, s{S_T1}\ns_lshl_b32 s{S_T0}, s{S_CP}, 2')
        e('s_waitcnt lgkmcnt(0)')
        for i, sp in enumerate((S_ARE, S_AIM, S_BRE, S_BIM, S_CRE, S_CIM)):
            self.vmem(f'global_load_dword v{par+i}, v{t0}, s[{sp}:{sp+1}]', 'par')
        e(f's_load_dword s{S_LD}, s[{S_LDT}:{S_LDT+1}], s{S_T0}\ns_load_dword s{S_DK}, s[{S_DSK}:{S_DSK+1}], s{S_T0}')
        self.srds()
        e(f's_mov_b32 s{S_TS+6}, s{S_M0}')
        self.stamp(0)
        XG = o.get('xg', True)
        xg = V.alloc(8); xa0 = V.alloc(1); xa1 = V.alloc(1)
        e(f's_lshl_b32 s{S_T0}, s{S_CP}, 2\nv_mul_u32_u24 v{xa0}, 7168, v0\nv_add_u32 v{xa0}, s{S_T0}, v{xa0}\nv_add_u32 v{xa1}, 4480, v{xa0}')
        def xgather(k):
            if k < 5: self.vmem(f'buffer_load_dword v{xg+k}, v{xa0}, s[{R_X}:{R_X+3}], 0 offen offset:{896*k}', 'xg')
            else: self.vmem(f'buffer_load_dword v{xg+k}, v{xa1}, s[{R_X}:{R_X+3}], 0 offen offset:{896*(k-5)}', 'xg')
        self.xgather = xgather
        tch = V.alloc(4); self.tch = tch
        if o.get('touch_x', True):
            e(f's_lshl_b32 s{S_T0}, s{S_J}, 6\ns_lshl_b32 s{S_T1}, s{S_W}, 4\ns_add_u32 s{S_T0}, s{S_T0}, s{S_T1}')
            e(f'v_add_u32 v{tch}, s{S_T0}, v1\nv_mul_u32_u24 v{tch+1}, 9363, v{tch}\nv_lshrrev_b32 v{tch+1}, 16, v{tch+1}')
            e(f'v_mul_u32_u24 v{tch+2}, 7, v{tch+1}\nv_sub_u32 v{tch}, v{tch}, v{tch+2}\ns_lshl_b32 s{S_T0}, s{S_XCD}, 8\nv_add_u32 v{tch+1}, s{S_T0}, v{tch+1}')
            e(f'v_mul_u32_u24 v{tch+1}, 896, v{tch+1}\nv_lshl_add_u32 v{tch+1}, v{tch}, 7, v{tch+1}')
            e(f's_mov_b64 s[{S_M1}:{S_M1+1}], exec\ns_mov_b64 exec, 0xffff')
            self.vmem(f'buffer_load_dword v{tch+3}, v{tch+1}, s[{R_X}:{R_X+3}], 0 offen', 'tx')
            e(f's_mov_b64 exec, s[{S_M1}:{S_M1+1}]')
        self.map_bc()
        if o.get('touch_w1', False):
            e(f'v_mul_u32_u24 v{t1}, 4682, v0\nv_lshrrev_b32 v{t1}, 16, v{t1}\nv_mul_u32_u24 v{tch}, 14, v{t1}\nv_sub_u32 v{tch}, v0, v{tch}')
            e(f's_lshl_b32 s{S_T0}, s{S_J}, 4\nv_add_u32 v{t1}, s{S_T0}, v{t1}\nv_mul_u32_u24 v{t1}, 3584, v{t1}\nv_lshl_add_u32 v{t1}, v{tch}, 7, v{t1}')
            e(f's_and_b32 s{S_T0}, s{S_XCD}, 1\ns_mul_i32 s{S_T0}, s{S_T0}, 1792\nv_add_u32 v{t1}, s{S_T0}, v{t1}')
            e(f'v_cmp_gt_u32 vcc, 224, v0\ns_and_saveexec_b64 s[{S_M1}:{S_M1+1}], vcc')
            la = self.lab('tw'); e(f's_cbranch_execz {la}')
            self.vmem(f'buffer_load_dword v{tch}, v{t1}, s[{R_WG}:{R_WG+3}], 0 offen', 'tw')
            self.vmem(f'buffer_load_dword v{tch+1}, v{t1}, s[{R_WU}:{R_WU+3}], 0 offen', 'tw')
            self.label(la); e(f's_mov_b64 exec, s[{S_M1}:{S_M1+1}]')
        self.w1_setup()
        TW = o.get('touch_w1', False)
        if XG:
            for k in range(o.get('xg0', 3)): xgather(k)
        elif not TW: self.w1_issue(0, o.get('w0', 2), 'wa')
        self.stamp(1)
        ga = V.alloc(12, 2)
        self.ga = ga
        e(f'v_lshlrev_b32 v{t0}, 3, v0\nv_sub_u32 v{t0}, 2048, v{t0}')
        for k in range(1, 12):
            e(f'v_subrev_u32 v{ga+k-1}, {k}, v{t0}')
        e(f'v_mov_b32 v{ga+11}, 0')
        tt = V.alloc(2, 2)
        for k in range(0, 12, 2):
            a, b = ga + k, ga + k + 1
            e(f'v_max_i32 v{tt}, 0, v{a}\nv_max_i32 v{tt+1}, 0, v{b}')
            e(f'v_cvt_f32_u32 v{tt}, v{tt}\nv_cvt_f32_u32 v{tt+1}, v{tt+1}')
            e(f'v_cvt_pk_bf16_f32 v{t1}, v{tt}, v{tt+1}')
            e(f'v_lshlrev_b32 v{tt}, 16, v{t1}\nv_and_b32 v{tt+1}, 0xffff0000, v{t1}')
            e(f'v_cvt_u32_f32 v{tt}, v{tt}\nv_cvt_u32_f32 v{tt+1}, v{tt+1}')
            for x, r in ((tt, a), (tt + 1, b)):
                e(f'v_lshrrev_b32 v{t1}, 3, v{x}\nv_add_u32 v{x}, v{x}, v{t1}')
                if k >= 8:
                    e(f'v_cmp_gt_i32 vcc, 0, v{r}\nv_mov_b32 v{t1}, 2320\nv_cndmask_b32 v{x}, v{x}, v{t1}, vcc')
                e(f'v_lshlrev_b32 v{x}, 2, v{x}\nv_add_u32 v{r}, {L_K32}, v{x}')
        V.free(tt, 2)
        e('s_waitcnt lgkmcnt(0)'); self.lg.drain()
        e(f's_lshr_b32 s{S_T0}, s{S_W}, 1\ns_lshl_b32 s{S_T0}, s{S_T0}, 4')
        e(f's_lshr_b32 s{S_LD}, s{S_LD}, s{S_T0}\ns_lshl_b32 s{S_LD}, s{S_LD}, 16')
        e(f's_lshr_b32 s{S_DK}, s{S_DK}, s{S_T0}\ns_lshl_b32 s{S_DK}, s{S_DK}, 16')
        dt = V.alloc(2, 2); tt = V.alloc(2, 2)
        L_hi = struct.unpack('<f', struct.pack('<f', LOG2E))[0]; L_lo = LOG2E - L_hi
        e(f'v_mov_b32 v{dt}, s{S_LD}\nv_mul_f32 v{tt}, {fx(L_hi)}, v{dt}')
        e(f's_mov_b32 s{S_T1}, {fx(L_hi)}')
        e(f'v_fma_f32 v{tt+1}, v{dt}, s{S_T1}, -v{tt}\nv_fmac_f32 v{tt+1}, {fx(L_lo)}, v{dt}')
        e(f'v_exp_f32 v{tt}, v{tt}\nv_mul_f32 v{tt+1}, {fx(math.log(2))}, v{tt+1}')
        e(f'v_fma_f32 v{dt}, v{tt}, v{tt+1}, v{tt}')
        self.rbf(dt, dt)
        V.free(tt, 2)
        ka = self.kgen_setup()
        cv = self.conv_setup()
        xo = V.alloc(1)
        e(f's_lshr_b32 s{S_T0}, s{S_CP}, 2\ns_lshl_b32 s{S_T0}, s{S_T0}, 15\ns_and_b32 s{S_T1}, s{S_CP}, 3\ns_lshl_b32 s{S_T1}, s{S_T1}, 5\ns_add_u32 s{S_T0}, s{S_T0}, s{S_T1}\ns_add_u32 s{S_T0}, s{S_T0}, {WS_XT}\nv_lshl_add_u32 v{xo}, v0, 7, s{S_T0}')
        sa = V.alloc(1); nv = V.alloc(2, 2); lp = V.alloc(2, 2)
        e(f'v_lshlrev_b32 v{sa}, 6, v0\nv_mov_b32 v{nv+1}, 0')
        e(f'v_and_b32 v{lp+1}, 31, v1\nv_lshlrev_b32 v{lp+1}, 7, v{lp+1}\ns_lshl_b32 s{S_T0}, s{S_W}, 12\ns_add_u32 s{S_T0}, s{S_T0}, {WS_STATS + 4}\nv_add_u32 v{lp+1}, s{S_T0}, v{lp+1}')
        if WS_STATS: e(f'v_add_u32 v{sa}, {WS_STATS}, v{sa}')
        xs = list(range(o.get('xg0', 3), 8))
        if XG and xs: xgather(xs.pop(0))
        self.wait_vm('par')
        self.stamp(2)
        save_lines = self.lines; self.lines = []
        sc = V.alloc(12, 2)
        e(f'v_lshlrev_b32 v{sc+4}, 16, v{par+2}\nv_and_b32 v{sc+6}, 0xffff0000, v{par+2}')
        e(f'v_lshlrev_b32 v{sc+5}, 16, v{par+3}\nv_and_b32 v{sc+7}, 0xffff0000, v{par+3}')
        e(f'v_lshlrev_b32 v{sc+8}, 16, v{par+4}\nv_and_b32 v{sc+10}, 0xffff0000, v{par+4}')
        e(f'v_lshlrev_b32 v{sc+9}, 16, v{par+5}\nv_and_b32 v{sc+11}, 0xffff0000, v{par+5}')
        e(f'v_lshlrev_b32 v{sc}, 16, v{par}\nv_and_b32 v{sc+1}, 0xffff0000, v{par}')
        e(f'v_lshlrev_b32 v{sc+2}, 16, v{par+1}\nv_and_b32 v{sc+3}, 0xffff0000, v{par+1}')
        V.free(par, 6)
        for i in (4, 5, 6, 7, 0, 1, 2, 3): e(f'v_mul_f32 v{sc+i}, v{dt}, v{sc+i}')
        V.free(dt, 2)
        Q = lambda: V.alloc(4, 4)
        tq = Q(); pkt = V.alloc(4, 2); npk = [0]
        def qmul(d, a, b):
            self.cmul_multi([(d, a, b, None), (d + 2, a + 2, b + 2, None)])
        CB = Q()
        qmul(CB, sc + 8, sc + 4)
        mx = V.alloc(2, 2)
        e(f'v_max_f32 v{mx}, |v{CB}|, |v{CB+1}|\nv_max_f32 v{mx+1}, |v{CB+2}|, |v{CB+3}|')
        e(f'v_mul_f32 v{sc}, {fx(LOG2E)}, v{sc}\nv_mul_f32 v{sc+1}, {fx(LOG2E)}, v{sc+1}')
        e(f'v_max_f32 v{mx}, v{mx}, v{mx+1}')
        e(f'v_mul_f32 v{sc+2}, {fx(1/(2*math.pi))}, v{sc+2}\nv_mul_f32 v{sc+3}, {fx(1/(2*math.pi))}, v{sc+3}')
        for mod in ('quad_perm:[1,0,3,2]', 'quad_perm:[2,3,0,1]', 'row_half_mirror', 'row_mirror'):
            e(f'v_max_f32_dpp v{mx}, v{mx}, v{mx} {mod} row_mask:0xf bank_mask:0xf')
        for swap in ('v_permlane16_swap_b32', 'v_permlane32_swap_b32'):
            e(f'v_mov_b32 v{mx+1}, v{mx}\n{swap} v{mx}, v{mx+1}\nv_max_f32 v{mx}, v{mx}, v{mx+1}')
        e(f'v_readfirstlane_b32 s{S_T0}, v{mx}')
        e(f's_lshr_b32 s{S_T0}, s{S_T0}, 23\ns_max_u32 s{S_T0}, s{S_T0}, 14\ns_min_u32 s{S_T0}, s{S_T0}, 254')
        e(f's_sub_u32 s{S_T1}, 267, s{S_T0}\ns_lshl_b32 s{S_T1}, s{S_T1}, 23\ns_sub_u32 s{S_US}, s{S_T0}, 13\ns_lshl_b32 s{S_US}, s{S_US}, 23')
        V.free(mx, 2)
        if XG:
            if xs: xgather(xs.pop(0))
        elif not TW: self.w1_issue(o.get('w0', 2), 5, 'wa2')
        def direct(dst, ex):
            for m in range(2):
                if ex == 1:
                    e(f'v_exp_f32 v{tq+m}, v{sc+m}\nv_fract_f32 v{tq+2+m}, v{sc+2+m}')
                else:
                    e(f'v_mul_f32 v{tq+m}, {fx(float(ex))}, v{sc+m}\nv_mul_f32 v{tq+2+m}, {fx(float(ex))}, v{sc+2+m}')
            if ex != 1:
                for m in range(2): e(f'v_exp_f32 v{tq+m}, v{tq+m}\nv_fract_f32 v{tq+2+m}, v{tq+2+m}')
            for m in range(2):
                e(f'v_cos_f32 v{dst+2*m}, v{tq+2+m}\nv_sin_f32 v{dst+2*m+1}, v{tq+2+m}')
            for m in range(2):
                e(f'v_mul_f32 v{dst+2*m}, v{tq+m}, v{dst+2*m}\nv_mul_f32 v{dst+2*m+1}, v{tq+m}, v{dst+2*m+1}')
        wa = V.alloc(1)
        e(f'v_and_b32 v{wa}, 127, v0\nv_lshlrev_b32 v{wa}, 3, v{wa}\ns_lshr_b32 s{S_T0}, s{S_W}, 1\ns_mul_i32 s{S_T0}, s{S_T0}, {TBL_C}\nv_add_u32 v{wa}, s{S_T0}, v{wa}')
        def put(q, ent, conj=False):
            p = pkt + 2 * (npk[0] & 1); npk[0] += 1
            n = '-' if conj else ''
            e(f'v_cvt_pk_f16_f32 v{p}, v{q}, {n}v{q+1}\nv_cvt_pk_f16_f32 v{p+1}, v{q+2}, {n}v{q+3}')
            self.ds(f'ds_write_b64 v{wa}, {vr(p,2)} offset:{ent*TBL_E}')
        one = V.alloc(2, 2)
        e(f'v_mov_b32 v{one}, 0x3c00\nv_mov_b32 v{one+1}, 0x3c00')
        for ent in (0, 4, 12): self.ds(f'ds_write_b64 v{wa}, {vr(one,2)} offset:{ent*TBL_E}')
        V.free(one, 2)
        z1 = Q(); z2 = Q(); z3 = Q(); z4 = Q(); CS = Q()
        direct(z1, 1); put(z1, 1)
        for m in range(4): e(f'v_mul_f32 v{CS+m}, s{S_T1}, v{CB+m}')
        put(CS, 8, True)
        qmul(z2, z1, z1); put(z2, 2)
        qmul(z3, z2, z1); put(z3, 3)
        qmul(z4, z2, z2); put(z4, 5)
        qmul(z1, z4, z4); put(z1, 6)
        qmul(z2, z1, z4); put(z2, 7)
        qmul(z3, z1, z1); put(z3, 16)
        qmul(z1, z3, z3)
        qmul(z4, CS, z1); put(z4, 9, True)
        qmul(z2, z1, z1)
        qmul(z4, CS, z2); put(z4, 10, True)
        qmul(z3, z2, z1)
        qmul(z4, CS, z3); put(z4, 11, True)
        qmul(z1, z2, z2); put(z1, 13, True)
        qmul(z2, z1, z1); put(z2, 14, True)
        qmul(z3, z2, z1); put(z3, 15, True)
        qmul(z1, z2, z2); put(z1, 17, True)
        if XG and xs: xgather(xs.pop(0))
        self.xs = xs
        qmul(z2, z1, z1)
        qmul(z3, z2, z2)
        c48 = V.alloc(2, 2)
        e(f'v_mul_f32 v{c48}, v{CB}, v{z3}\nv_fma_f32 v{c48}, -v{CB+1}, v{z3+1}, v{c48}')
        e(f'v_fmac_f32 v{c48}, v{CB+2}, v{z3+2}\nv_fma_f32 v{c48}, -v{CB+3}, v{z3+3}, v{c48}')
        for q in (z1, z2, z3, z4, CB, CS, tq): V.free(q, 4)
        V.free(sc, 12); V.free(wa); V.free(pkt, 4)
        for mod in ('quad_perm:[1,0,3,2]', 'quad_perm:[2,3,0,1]', 'row_half_mirror', 'row_mirror'):
            e(f'v_add_f32_dpp v{c48}, v{c48}, v{c48} {mod} row_mask:0xf bank_mask:0xf')
        for swap in ('v_permlane16_swap_b32', 'v_permlane32_swap_b32'):
            e(f'v_mov_b32 v{c48+1}, v{c48}\n{swap} v{c48}, v{c48+1}\nv_add_f32 v{c48}, v{c48}, v{c48+1}')
        fl = self.lines; self.lines = save_lines
        self.lines.extend(resched(fl) if o.get('resched', True) else fl)
        if not TW and not XG: self.wait_vm('wa')
        self.wait_all_lg(); e('s_barrier')
        self.stamp(3)
        sg = V.alloc(16, 4); XP = V.alloc(8, 4)
        def light_loads(model=True):
            a = f'buffer_load_dword v{nv}, v{nv+1}, s[{R_DBG}:{R_DBG+3}], 0 offen sc1'
            b = f'buffer_load_dword v{lp}, v{lp+1}, s[{R_WS}:{R_WS+3}], 0 offen sc1'
            if model: self.vmem(a, 'lp'); self.vmem(b, 'lp')
            else: e(a); e(b)
        def light_wait():
            l0 = self.lab('lp'); l1 = self.lab('lpd'); l2 = self.lab('lpr')
            self.wait_vm('lp')
            e(f's_mov_b32 s{S_CNT}, 0')
            self.label(l0)
            e(f'v_readfirstlane_b32 s{S_NONCE}, v{nv}')
            e(f's_cmp_eq_u32 s{S_NONCE}, 0\ns_cbranch_scc1 {l2}')
            e(f'v_cmp_ne_u32 vcc, s{S_NONCE}, v{lp}\ns_cbranch_vccz {l1}')
            self.label(l2)
            e(f's_sleep {o.get("lsleep", 2)}')
            light_loads(False)
            e('s_waitcnt vmcnt(0)')
            e(f's_add_u32 s{S_CNT}, s{S_CNT}, 1\ns_cmp_lt_u32 s{S_CNT}, {SPIN_MAX}\ns_cbranch_scc1 {l0}')
            self.label(l1)
        def data_loads():
            for i in range(4): self.vmem(f'buffer_load_dwordx4 {vr(sg+4*i,4)}, v{sa}, s[{R_WS}:{R_WS+3}], 0 offen offset:{16*i} sc1', 'sg')
            self.vmem(f'buffer_load_dwordx4 {vr(XP,4)}, v{xo}, s[{R_WS}:{R_WS+3}], 0 offen sc1', 'sg')
            self.vmem(f'buffer_load_dwordx4 {vr(XP+4,4)}, v{xo}, s[{R_WS}:{R_WS+3}], 0 offen offset:16 sc1', 'sg')
        EARLY = o.get('early', True)
        self.light_loads = light_loads
        def full_poll():
            return [lambda: self.vmem(f'buffer_load_dword v{nv}, v{nv+1}, s[{R_DBG}:{R_DBG+3}], 0 offen sc1', 'sg')] + \
                   [lambda i=i: self.vmem(f'buffer_load_dwordx4 {vr(sg+4*i,4)}, v{sa}, s[{R_WS}:{R_WS+3}], 0 offen offset:{16*i} sc1', 'sg') for i in range(4)]
        self.full_poll = full_poll
        def after_main():
            if XG: return
            if EARLY: light_wait(); data_loads()
            else: light_loads()
            if TW: self.wait_vm('wa')
            else: self.wait_vm('wa2')
        def after_b2a():
            if XG:
                self.w1_issue(3, 5, 'wa'); return
            if TW: self.w1_read(0, 5)
            else: self.w1_read(o.get('w0', 2), 5)
            self.w1_issue(8, 9, 'wb')
        self.kgen_main(ka, c48, after_main, after_b2a)
        V.free(c48, 2)
        self.wait_all_lg(); e('s_barrier')
        self.stamp(4)
        gat = self.expand_gather()
        if not XG and not EARLY: light_wait(); data_loads()
        V.free(lp, 2)
        self.stamp(7)
        if XG: self.w1_issue(5, 6, 'wb')
        else: self.w1_issue(9, 10, 'wb')
        self.expand_write(gat)
        if XG: self.w1_issue(6, 7, 'wb')
        else: self.w1_issue(10, 11, 'wc')
        self.stamp(5)
        if XG:
            self.wait_vm('xg')
            e(f's_mov_b32 s{S_T0}, 0x05040100\ns_mov_b32 s{S_T1}, 0x07060302')
            for d in range(4):
                e(f'v_perm_b32 v{XP+d}, v{xg+2*d+1}, v{xg+2*d}, s{S_T0}\nv_perm_b32 v{XP+4+d}, v{xg+2*d+1}, v{xg+2*d}, s{S_T1}')
            self.verify_stats(sg, sa, nv, with_nonce=True)
        else: self.verify_stats(sg, sa, nv)
        V.free(nv, 2); V.free(xo); V.free(xg, 8); V.free(xa0); V.free(xa1)
        self.region(lambda: self.normalize(XP, sg))
        V.free(sg, 16); V.free(sa); V.free(XP, 8)
        if XG: self.wait_vm('wa')
        self.wait_all_lg(); e('s_barrier')
        self.stamp(6)
        if XG: self.w1_read(0, 5)
        if o.get('touch_wd2', False):
            ta = V.alloc(2)
            for q in range(2):
                e(f'v_add_u32 v{ta}, {224*q}, v0\nv_mul_u32_u24 v{ta+1}, 9363, v{ta}\nv_lshrrev_b32 v{ta+1}, 16, v{ta+1}\nv_mul_u32_u24 v{tch+q}, 7, v{ta+1}\nv_sub_u32 v{ta}, v{ta}, v{tch+q}')
                e(f's_lshl_b32 s{S_T0}, s{S_J}, 6\nv_add_u32 v{ta+1}, s{S_T0}, v{ta+1}\nv_mul_u32_u24 v{ta+1}, 896, v{ta+1}\nv_lshl_add_u32 v{ta+1}, v{ta}, 7, v{ta+1}')
                e(f'v_cmp_gt_u32 vcc, 224, v0\ns_and_saveexec_b64 s[{S_M1}:{S_M1+1}], vcc')
                la = self.lab('td'); e(f's_cbranch_execz {la}')
                e(f'buffer_load_dword v{tch+2+q}, v{ta+1}, s[{R_WD}:{R_WD+3}], 0 offen')
                self.label(la); e(f's_mov_b64 exec, s[{S_M1}:{S_M1+1}]')
            V.free(ta, 2)
        fill = []
        for k in (range(7, 10) if XG else range(11, 14)): fill += self.w1_dma(k, 'wc')
        self.conv(cv, fill)
        V.free(t0); V.free(t1)
        self.stamp(8)
        self.wait_vm('ht'); self.wait_all_lg(); e('s_barrier')
        self.signal(WS_FLAG2, 's2')
        self.stamp(9)
        V.free(tch, 4)
        self.cs = V.alloc(32, 4); self.ones = V.alloc(4, 4)
        for i in range(4): e(f'v_mov_b32 v{self.ones+i}, 0x3f803f80')
        _, setup = self.capture(self.phaseB_setup)
        self.K0 = 10 if XG else 14
        dma = [f for k in range(14 if XG else 15, 28) for f in self.w1_dma(k, 'we')]
        mains = []
        for k in range(self.K0):
            for u in range(2):
                c = '0' if k == 0 else vr(self.cs + 16*u, 16)
                mains.append(([], lambda k=k, u=u, c=c: e(f'v_mfma_f32_32x32x16_bf16 {vr(self.cs+16*u,16)}, {ar(8*k+4*u,4)}, {vr(self.ones,4)}, {c}'), 32, []))
        merged = []
        while dma or setup:
            for _ in range(2):
                if dma: merged.append(dma.pop(0))
            for _ in range(5):
                if setup: merged.append(setup.pop(0))
        self.sched(mains, [(x, 1) for x in merged])
        self.stamp(12)

    def cs_mfma(self, k0, k1):
        for k in range(k0, k1):
            for u in range(2):
                c = '0' if k == 0 else vr(self.cs + 16*u, 16)
                self.e(f'v_mfma_f32_32x32x16_bf16 {vr(self.cs+16*u,16)}, {ar(8*k+4*u,4)}, {vr(self.ones,4)}, {c}')

    def verify_stats(self, sg, sa, nv, with_nonce=False):
        e = self.e; V = self.V
        l0 = self.lab('sp'); l1 = self.lab('spd')
        t = V.alloc(2)
        self.wait_vm('sg')
        e(f's_mov_b32 s{S_CNT}, 0')
        self.label(l0)
        l2 = self.lab('spr')
        if with_nonce:
            e(f'v_readfirstlane_b32 s{S_NONCE}, v{nv}')
            e(f's_cmp_eq_u32 s{S_NONCE}, 0\ns_cbranch_scc1 {l2}')
        e(f'v_min3_u32 v{t}, v{sg+1}, v{sg+3}, v{sg+5}\nv_max3_u32 v{t+1}, v{sg+1}, v{sg+3}, v{sg+5}')
        e(f'v_min3_u32 v{t}, v{t}, v{sg+7}, v{sg+9}\nv_max3_u32 v{t+1}, v{t+1}, v{sg+7}, v{sg+9}')
        e(f'v_min3_u32 v{t}, v{t}, v{sg+11}, v{sg+13}\nv_max3_u32 v{t+1}, v{t+1}, v{sg+11}, v{sg+13}')
        e(f'v_min_u32 v{t}, v{t}, v{sg+15}\nv_max_u32 v{t+1}, v{t+1}, v{sg+15}')
        e(f'v_xor_b32 v{t}, s{S_NONCE}, v{t}\nv_xor_b32 v{t+1}, s{S_NONCE}, v{t+1}\nv_or_b32 v{t}, v{t}, v{t+1}\nv_cmp_ne_u32 vcc, 0, v{t}')
        e(f's_cbranch_vccz {l1}')
        self.label(l2)
        if with_nonce: e(f's_sleep 2\nbuffer_load_dword v{nv}, v{nv+1}, s[{R_DBG}:{R_DBG+3}], 0 offen sc1')
        for i in range(4): e(f'buffer_load_dwordx4 {vr(sg+4*i,4)}, v{sa}, s[{R_WS}:{R_WS+3}], 0 offen offset:{16*i} sc1')
        e('s_waitcnt vmcnt(0)')
        e(f's_add_u32 s{S_CNT}, s{S_CNT}, 1\ns_cmp_lt_u32 s{S_CNT}, {SPIN_MAX}\ns_cbranch_scc1 {l0}')
        self.label(l1)
        V.free(t, 2)

    def map_bc(self):
        e = self.e
        if self.o.get('mapB', '47') == 'rows':
            e(f's_cmp_ge_u32 s{S_J}, 14\ns_cselect_b32 s{S_T0}, 1, 0\ns_lshl_b32 s{S_RB}, s{S_XCD}, 1\ns_add_u32 s{S_RB}, s{S_RB}, s{S_T0}')
            e(f's_mul_i32 s{S_T0}, s{S_T0}, 14\ns_sub_u32 s{S_FB}, s{S_J}, s{S_T0}')
        else:
            e(f's_mul_i32 s{S_T0}, s{S_J}, 37\ns_lshr_b32 s{S_T0}, s{S_T0}, 8')
            e(f's_lshr_b32 s{S_RB}, s{S_XCD}, 1\ns_lshl_b32 s{S_RB}, s{S_RB}, 2\ns_add_u32 s{S_RB}, s{S_RB}, s{S_T0}')
            e(f's_mul_i32 s{S_T0}, s{S_T0}, 7\ns_sub_u32 s{S_FB}, s{S_J}, s{S_T0}\ns_and_b32 s{S_T0}, s{S_XCD}, 1\ns_mul_i32 s{S_T0}, s{S_T0}, 7\ns_add_u32 s{S_FB}, s{S_FB}, s{S_T0}')
        if self.o.get('rot', True): e(f's_and_b32 s{S_ROT}, s{S_RB}, 3')
        else: e(f's_mov_b32 s{S_ROT}, 0')
        e(f's_mul_i32 s{S_T0}, s{S_J}, 37\ns_lshr_b32 s{S_T0}, s{S_T0}, 8')
        e(f's_lshl_b32 s{S_RB2}, s{S_XCD}, 2\ns_add_u32 s{S_RB2}, s{S_RB2}, s{S_T0}\ns_mul_i32 s{S_T0}, s{S_T0}, 7\ns_sub_u32 s{S_DB}, s{S_J}, s{S_T0}')

    def kgen_setup(self):
        e = self.e; V = self.V
        aLo = V.alloc(1); aHi = V.alloc(1); aC = V.alloc(1); t = V.alloc(1)
        aEx = V.alloc(2); aS = V.alloc(2); aK = V.alloc(2)
        e(f's_lshr_b32 s{S_T0}, s{S_W}, 1\ns_mul_i32 s{S_T0}, s{S_T0}, {TBL_C}\ns_and_b32 s{S_T1}, s{S_W}, 1\ns_lshl_b32 s{S_T1}, s{S_T1}, 9\ns_add_u32 s{S_T0}, s{S_T0}, s{S_T1}')
        e(f'v_lshrrev_b32 v{t}, 4, v1\nv_lshlrev_b32 v{aC}, 4, v{t}\nv_add_u32 v{aC}, s{S_T0}, v{aC}')
        e(f'v_and_b32 v{t}, 3, v1\nv_mul_u32_u24 v{t}, {TBL_E}, v{t}\nv_add_u32 v{aLo}, v{aC}, v{t}')
        e(f'v_bfe_u32 v{t}, v1, 2, 2\nv_mul_u32_u24 v{t}, {TBL_E}, v{t}\nv_add_u32 v{aHi}, v{aC}, v{t}')
        e(f's_lshl_b32 s{S_T0}, s{S_W}, 12\ns_add_u32 s{S_T0}, s{S_T0}, {L_EX}\nv_lshl_add_u32 v{aEx}, v1, 4, s{S_T0}')
        e(f's_xor_b32 s{S_T1}, s{S_W}, 1\ns_lshl_b32 s{S_T0}, s{S_T1}, 12\ns_add_u32 s{S_T0}, s{S_T0}, {L_EX}\nv_lshl_add_u32 v{aEx+1}, v1, 4, s{S_T0}')
        e(f's_lshl_b32 s{S_T0}, s{S_W}, 2\ns_add_u32 s{S_T0}, s{S_T0}, {L_EX + 16384}\nv_mov_b32 v{aS}, s{S_T0}')
        e(f's_lshl_b32 s{S_T0}, s{S_T1}, 2\ns_add_u32 s{S_T0}, s{S_T0}, {L_EX + 16384}\nv_mov_b32 v{aS+1}, s{S_T0}')
        e(f'v_and_b32 v{aK}, 15, v1\nv_lshrrev_b32 v{t}, 3, v{aK}\nv_add_u32 v{aK}, v{aK}, v{t}')
        e(f'v_lshrrev_b32 v{t}, 4, v1\nv_mul_u32_u24 v{t}, 144, v{t}\nv_add_u32 v{aK}, v{aK}, v{t}\nv_lshlrev_b32 v{aK}, 2, v{aK}')
        e(f's_lshr_b32 s{S_T0}, s{S_W}, 1\ns_mul_i32 s{S_T0}, s{S_T0}, {K32_C}\ns_add_u32 s{S_T0}, s{S_T0}, {L_K32}\nv_mov_b32 v{aK+1}, s{S_T0}')
        e(f's_and_b32 s{S_T1}, s{S_W}, 1\ns_mul_i32 s{S_T1}, s{S_T1}, {4*576*2}\ns_add_u32 s{S_T1}, s{S_T1}, s{S_T0}\nv_add_u32 v{aK}, s{S_T1}, v{aK}')
        V.free(t)
        return (aLo, aHi, aC, aEx, aS, aK)

    def kgen_main(self, ka, c48, after_main, after_b2a):
        e = self.e; V = self.V
        self.c('---- kgen main (f16 operands)')
        aLo, aHi, aC, aEx, aS, aK = ka
        TB = [[V.alloc(4, 4) for _ in range(6)] for _ in range(2)]
        tmp = V.alloc(4, 4)
        PV = [[V.alloc(4, 4) for _ in range(2)] for _ in range(2)]
        PW = [V.alloc(4, 4) for _ in range(4)]
        D = [[V.alloc(4, 4) for s in range(2)] for t_ in range(4)]
        ents = ((aLo, 0), (aHi, 4), (aC, 16), (aLo, 8), (aHi, 12), (aC, 17))
        def rd(st, i):
            ad, ent = ents[i]
            self.ds(f'ds_read_b128 {vr(TB[st&1][i],4)}, v{ad} offset:{ent*TBL_E + st*64}', f'tb{st}')
        def cm(d, a, b):
            L = [f'v_pk_mul_f16 v{tmp+c}, v{a+c}, v{b+c} op_sel:[0,0] op_sel_hi:[0,1]' for c in range(4)]
            L += [f'v_pk_fma_f16 v{d+c}, v{a+c}, v{b+c}, v{tmp+c} op_sel:[1,1,0] op_sel_hi:[1,0,1] neg_lo:[0,1,0]' for c in range(4)]
            return L
        for i in range(6): rd(0, i)
        pend = []
        for st in range(8):
            T1, T2, Z16, T3, T4, Z512 = TB[st & 1]; pv = PV[st & 1]
            extra = []
            if st + 1 < 8: extra += [lambda i=i, st=st: rd(st + 1, i) for i in range(6)]
            if self.o.get('xg', True):
                if st in (1, 3, 4, 5) and self.xs: extra += [lambda k=self.xs.pop(0): self.xgather(k)]
                if st == self.o.get('pollstep', 6): extra += self.full_poll()
                wst = self.o.get('wst', [4, 6, 7])
                if st in wst: extra += self.w1_dma(wst.index(st), 'wa')
            else:
                if st == self.o.get('pollstep', 5) and self.o.get('early', True): extra += [lambda: self.light_loads()]
                if not self.o.get('touch_w1', False):
                    if st < self.o.get('w0', 2): extra += self.w1_reads(st)
                    ks = self.o.get('kdma', [0, 1, 2])
                    if st in ks: extra += self.w1_dma(5 + ks.index(st), 'wb')
                else:
                    extra += self.w1_dma(st, 'wa' if st < 5 else 'wb')
            self.wait_lg(f'tb{st}')
            blocks = [cm(pv[0], T1, T2), cm(pv[1], pv[0], Z16), cm(PW[0], T3, T4)]
            for tt in range(1, 4): blocks.append(cm(PW[tt], PW[tt-1], Z512))
            def popm():
                if pend:
                    pend.pop(0)()
                    for _ in range(2):
                        if extra: extra.pop(0)()
            for bi, ins in enumerate(blocks):
                for q, l in enumerate(ins):
                    e(l)
                    if q in (1, 5): popm()
                if bi >= 2:
                    tt = bi - 2
                    for s in range(2):
                        cin = '0' if st == 0 else vr(D[tt][s], 4)
                        pend.append(lambda tt=tt, s=s, cin=cin, pv=pv: e(f'v_mfma_f32_16x16x32_f16 {vr(D[tt][s],4)}, {vr(PW[tt],4)}, {vr(pv[s],4)}, {cin}'))
            while len(pend) > 2: popm()
            for x in extra: x()
        while pend: pend.pop(0)()
        self.stamp(13)
        after_main()
        us = V.alloc(2, 2)
        e(f'v_mov_b32 v{us}, s{S_US}')
        R4 = TB[0][:4]; Va = tmp
        def exch(half):
            snd = [(t_, s) for t_ in (2 - 2*half, 3 - 2*half) for s in range(2)]
            kp = [(t_, s) for t_ in (2*half, 2*half + 1) for s in range(2)]
            for i, (t_, s) in enumerate(snd):
                for r in (0, 2): e(f'v_pk_mul_f32 {vr(D[t_][s]+r,2)}, {vr(D[t_][s]+r,2)}, {vr(us,2)} op_sel_hi:[1,0]')
                self.ds(f'ds_write_b128 v{aEx}, {vr(D[t_][s],4)} offset:{1024*i}', 'exw')
            e(f's_mov_b64 s[{S_M1}:{S_M1+1}], exec\ns_mov_b64 exec, 1')
            self.ds(f'ds_write_b32 v{aS}, v{c48}', 'exw')
            e(f's_mov_b64 exec, s[{S_M1}:{S_M1+1}]')
            self.wait_all_lg()
            e('s_barrier')
            for i in range(4): self.ds(f'ds_read_b128 {vr(R4[i],4)}, v{aEx+1} offset:{1024*i}', f'ex{i}')
            self.ds(f'ds_read_b32 v{Va}, v{aS+1}', 'exc')
            for i, (t_, s) in enumerate(kp):
                self.wait_lg(f'ex{i}')
                for r in (0, 2): e(f'v_pk_fma_f32 {vr(D[t_][s]+r,2)}, {vr(D[t_][s]+r,2)}, {vr(us,2)}, {vr(R4[i]+r,2)} op_sel_hi:[1,0,1]')
                for r in range(4):
                    self.ds(f'ds_write_b32 v{aK}, v{D[t_][s]+r} offset:{4*(576*(i >> 1) + 36*r + 18*s)}')
            self.wait_lg('exc')
            e(f'v_add_f32 v{c48}, v{c48}, v{Va}\nv_mov_b32 v{c48+1}, 0')
            e(f's_mov_b64 s[{S_M1}:{S_M1+1}], exec\ns_mov_b64 exec, 1')
            self.ds(f'ds_write_b32 v{aK+1}, v{c48} offset:9216')
            self.ds(f'ds_write_b32 v{aK+1}, v{c48+1} offset:9280')
            e(f's_mov_b64 exec, s[{S_M1}:{S_M1+1}]')
        self.two_paths(exch)
        after_b2a()
        V.free(us, 2)
        for row in TB + PV:
            for x in row: V.free(x, 4)
        for x in PW: V.free(x, 4)
        V.free(tmp, 4)
        for row in D:
            for x in row: V.free(x, 4)
        for x in (aLo, aHi, aC): V.free(x)
        V.free(aEx, 2); V.free(aS, 2); V.free(aK, 2)

    def expand_gather(self):
        e = self.e; V = self.V; ga = self.ga
        self.c('---- expand K into 4 shifted bf16 copies')
        z = V.alloc(4, 4); t = V.alloc(1); t2 = V.alloc(1)
        g = V.alloc(22, 2)
        for i in range(4): e(f'v_mov_b32 v{z+i}, 0')
        e(f'v_lshrrev_b32 v{t}, 2, v0\nv_mul_u32_u24 v{t}, {KC_S}, v{t}\nv_and_b32 v{t2}, 3, v0\nv_lshl_add_u32 v{t}, v{t2}, 4, v{t}')
        e(f'v_cmp_gt_u32 vcc, 32, v0\ns_and_saveexec_b64 s[{S_M1}:{S_M1+1}], vcc')
        la = self.lab('zc'); e(f's_cbranch_execz {la}')
        e(f'ds_write_b128 v{t}, {vr(z,4)} offset:{L_KC + 4096}')
        self.label(la); e(f's_mov_b64 exec, s[{S_M1}:{S_M1+1}]')
        e(f'v_lshrrev_b32 v{t}, 6, v0\nv_mul_u32_u24 v{t}, {U_C}, v{t}\nv_lshl_add_u32 v{t}, v1, 4, v{t}')
        e(f'v_cmp_gt_u32 vcc, 128, v0\ns_and_saveexec_b64 s[{S_M1}:{S_M1+1}], vcc')
        la = self.lab('zu'); e(f's_cbranch_execz {la}')
        e(f'ds_write_b128 v{t}, {vr(z,4)} offset:{L_U}')
        self.label(la); e(f's_mov_b64 exec, s[{S_M1}:{S_M1+1}]')
        for k in range(11): self.ds(f'ds_read_b32 v{g+k}, v{ga+k} offset:0', 'g0')
        for k in range(11): self.ds(f'ds_read_b32 v{g+11+k}, v{ga+k} offset:{K32_C}', 'g1')
        V.free(t); V.free(t2); V.free(z, 4)
        return g
    def expand_write(self, g):
        e = self.e; V = self.V; ga = self.ga
        P = V.alloc(32, 4); wa = V.alloc(1)
        e(f'v_lshlrev_b32 v{wa}, 4, v0')
        for c in range(2):
            self.wait_lg(f'g{c}')
            v = lambda k: g + 11 * c + (k - 1)
            for sc_ in range(4):
                s = 4 - sc_
                for dd in range(4):
                    e(f'v_cvt_pk_bf16_f32 v{P+16*c+4*sc_+dd}, v{v(s+2*dd)}, v{v(s+2*dd+1)}')
                self.ds(f'ds_write_b128 v{wa}, {vr(P+16*c+4*sc_,4)} offset:{L_KC + c*KC_C + sc_*KC_S}')
        V.free(g, 22); V.free(P, 32); V.free(wa); V.free(ga, 12)

    def normalize(self, XP, sg):
        e = self.e; V = self.V
        self.c('---- LN1 normalize own columns')
        xa = V.alloc(16, 2)
        ms = V.alloc(16, 2)
        for k in range(8):
            e(f'v_lshlrev_b32 v{ms+k}, 16, v{sg+2*k}\nv_and_b32 v{ms+8+k}, 0xffff0000, v{sg+2*k}')
        for k in range(8): e(f'v_rcp_f32 v{ms+8+k}, v{ms+8+k}')
        wa = V.alloc(1); t = V.alloc(1)
        e(f'v_bfe_u32 v{t}, v0, 4, 1\nv_lshlrev_b32 v{t}, 1, v{t}\nv_xor_b32 v{wa}, v0, v{t}\nv_lshlrev_b32 v{wa}, 4, v{wa}')
        for c in range(2): self.ds(f'ds_write_b128 v{wa}, {vr(XP+4*c,4)} offset:{L_X + c*X_C}')
        for c in range(2):
            for d in range(4):
                e(f'v_lshlrev_b32 v{xa+8*c+2*d}, 16, v{XP+4*c+d}\nv_and_b32 v{xa+8*c+2*d+1}, 0xffff0000, v{XP+4*c+d}')
        UP = V.alloc(8, 4)
        for c in range(2):
            for d in range(4):
                x = xa + 8*c + 2*d
                e(f'v_pk_add_f32 {vr(x,2)}, {vr(x,2)}, {vr(ms+2*d,2)} neg_lo:[0,1] neg_hi:[0,1]')
            for d in range(4):
                x = xa + 8*c + 2*d
                e(f'v_cvt_pk_bf16_f32 v{x+1}, v{x}, v{x+1}')
            for d in range(4):
                x = xa + 8*c + 2*d
                e(f'v_lshlrev_b32 v{x}, 16, v{x+1}\nv_and_b32 v{x+1}, 0xffff0000, v{x+1}')
            for d in range(4):
                x = xa + 8*c + 2*d
                e(f'v_pk_mul_f32 {vr(x,2)}, {vr(x,2)}, {vr(ms+8+2*d,2)}')
            for d in range(4):
                x = xa + 8*c + 2*d
                e(f'v_cvt_pk_bf16_f32 v{UP+4*c+d}, v{x}, v{x+1}')
            self.ds(f'ds_write_b128 v{wa}, {vr(UP+4*c,4)} offset:{L_U + c*U_C + 1024}')
        V.free(ms, 16); V.free(xa, 16); V.free(UP, 8); V.free(wa); V.free(t)

    def conv_setup(self):
        e = self.e; V = self.V
        vF = V.alloc(1); vG = V.alloc(8); t = V.alloc(1); t2 = V.alloc(1)
        e(f's_lshr_b32 s{S_T0}, s{S_W}, 1\ns_mul_i32 s{S_T0}, s{S_T0}, {KC_C}\ns_and_b32 s{S_T1}, s{S_W}, 1\ns_lshl_b32 s{S_T2}, s{S_T1}, 9\ns_sub_u32 s{S_T0}, s{S_T0}, s{S_T2}\ns_add_u32 s{S_T0}, s{S_T0}, {L_KC + 24 + 512}')
        e(f'v_and_b32 v{t}, 3, v1\nv_mul_u32_u24 v{vF}, {KC_S}, v{t}')
        e(f'v_bfe_u32 v{t}, v1, 2, 2\nv_lshlrev_b32 v{t}, 3, v{t}\nv_sub_u32 v{vF}, v{vF}, v{t}')
        e(f'v_lshrrev_b32 v{t}, 4, v1\nv_lshl_add_u32 v{vF}, v{t}, 4, v{vF}\nv_add_u32 v{vF}, s{S_T0}, v{vF}')
        e(f's_lshr_b32 s{S_T0}, s{S_W}, 1\ns_mul_i32 s{S_T0}, s{S_T0}, {U_C}\ns_add_u32 s{S_T0}, s{S_T0}, {L_U}')
        e(f's_lshl_b32 s{S_T1}, s{S_T1}, 3')
        kg = V.alloc(1); col = V.alloc(1)
        e(f'v_lshrrev_b32 v{kg}, 4, v1\nv_and_b32 v{col}, 15, v1\nv_subrev_u32 v{col}, s{S_T1}, v{col}')
        for pp in range(8):
            e(f'v_add_u32 v{t}, {16 - pp}, v{col}')
            e(f'v_bfe_u32 v{t2}, v{t}, 2, 1\nv_lshlrev_b32 v{t2}, 1, v{t2}\nv_xor_b32 v{t2}, v{t2}, v{kg}')
            e(f'v_lshlrev_b32 v{t}, 6, v{t}\nv_lshl_add_u32 v{t}, v{t2}, 4, v{t}\nv_add_u32 v{vG+pp}, s{S_T0}, v{t}')
        V.free(kg); V.free(col)
        ua = V.alloc(1); xa_ = V.alloc(1); ra = V.alloc(2); sa = V.alloc(1)
        e(f'v_bfe_u32 v{t}, v1, 2, 1\nv_lshlrev_b32 v{t}, 1, v{t}\nv_lshrrev_b32 v{t2}, 4, v1\nv_xor_b32 v{t}, v{t}, v{t2}')
        e(f'v_and_b32 v{t2}, 15, v1\nv_lshlrev_b32 v{t2}, 6, v{t2}\nv_lshl_add_u32 v{ua}, v{t}, 4, v{t2}')
        e(f's_and_b32 s{S_T1}, s{S_W}, 1\ns_lshl_b32 s{S_T1}, s{S_T1}, 11')
        e(f's_lshr_b32 s{S_T0}, s{S_W}, 1\ns_mul_i32 s{S_T2}, s{S_T0}, {U_C}\ns_add_u32 s{S_T2}, s{S_T2}, s{S_T1}')
        e(f's_mul_i32 s{S_T3}, s{S_T0}, {X_C}\ns_add_u32 s{S_T3}, s{S_T3}, s{S_T1}')
        e(f'v_add_u32 v{xa_}, s{S_T3}, v{ua}\nv_add_u32 v{ua}, s{S_T2}, v{ua}')
        e(f'v_lshrrev_b32 v{t}, 4, v1\nv_lshl_add_u32 v{sa}, v{t}, 4, v{t2}')
        e(f's_lshl_b32 s{S_T2}, s{S_CP}, 1\ns_add_u32 s{S_T2}, s{S_T2}, s{S_T0}\ns_mul_i32 s{S_T2}, s{S_T2}, {HT_STRIDE}\ns_add_u32 s{S_T2}, s{S_T2}, s{S_T1}\ns_add_u32 s{S_T2}, s{S_T2}, {WS_HT}')
        e(f'v_add_u32 v{sa}, s{S_T2}, v{sa}')
        e(f's_lshl_b32 s{S_T0}, s{S_W}, 12\ns_add_u32 s{S_T0}, s{S_T0}, {L_RED}\nv_lshl_add_u32 v{ra}, v1, 4, s{S_T0}')
        e(f's_xor_b32 s{S_T0}, s{S_W}, 1\ns_lshl_b32 s{S_T0}, s{S_T0}, 12\ns_add_u32 s{S_T0}, s{S_T0}, {L_RED}\nv_lshl_add_u32 v{ra+1}, v1, 4, s{S_T0}')
        V.free(t); V.free(t2)
        return (vF, vG, ua, xa_, ra, sa)

    def conv(self, cv, fill):
        e = self.e; V = self.V
        vF, vG, ua, xa_, ra, sa = cv
        self.c('---- Toeplitz convolution')
        G = [V.alloc(16, 4) for _ in range(2)]
        F = V.alloc(32, 4)
        acc = V.alloc(32, 4)
        A = lambda b, m: acc + 8 * b + 4 * m
        def rdG(pp):
            for s in range(4): self.ds(f'ds_read_b128 {vr(G[pp&1]+4*s,4)}, v{vG+pp} offset:{1024*s}', f'G{pp}')
        def rdF(pp, q):
            for m in range(2):
                off = 32 * (111 - 32*q - 2*pp - m)
                self.ds(f'ds_read_b64 {vr(F+8*q+4*m,2)}, v{vF} offset:{off}', f'F{pp}_{q}')
                self.ds(f'ds_read_b64 {vr(F+8*q+4*m+2,2)}, v{vF} offset:{off+8}', f'F{pp}_{q}')
        rdG(0)
        for q in range(4): rdF(0, q)
        def rdG1(pp, s): self.ds(f'ds_read_b128 {vr(G[pp&1]+4*s,4)}, v{vG+pp} offset:{1024*s}', f'G{pp}')
        def rdF1(pp, q, m, h_):
            off = 32 * (111 - 32*q - 2*pp - m) + 8 * h_
            self.ds(f'ds_read_b64 {vr(F+8*q+4*m+2*h_,2)}, v{vF} offset:{off}', f'F{pp}_{q}')
        mains = []
        pend = []
        for pp in range(8):
            for q in range(4):
                first = True
                for m in range(2):
                    for s in range(4 - q):
                        b = q + s
                        cin = '0' if (pp == 0 and q == 0) else vr(A(b, m), 4)
                        pre = []
                        if first:
                            if q == 0: pre.append(lambda pp=pp: (self.wait_lg(f'G{pp}'), self.wait_lg(f'F{pp}_0')))
                            else: pre.append(lambda pp=pp, q=q: self.wait_lg(f'F{pp}_{q}'))
                            first = False
                        mf = lambda b=b, m=m, q=q, s=s, pp=pp, cin=cin: e(f'v_mfma_f32_16x16x32_bf16 {vr(A(b,m),4)}, {vr(F+8*q+4*m,4)}, {vr(G[pp&1]+4*s,4)}, {cin}')
                        post = [pend.pop(0)] if pend else []
                        mains.append((pre, mf, 16, post))
                    if pp + 1 < 8:
                        pend += [lambda pp=pp, q=q, m=m, h_=h_: rdF1(pp + 1, q, m, h_) for h_ in range(2)]
                if q == 0 and pp + 1 < 8:
                    pend += [lambda pp=pp, s=s: rdG1(pp + 1, s) for s in range(4)]
        assert not pend
        self.sched(mains, None, segs=[(0, 90, fill)])
        for x in G: V.free(x, 16)
        V.free(F, 32); V.free(vG, 8)
        self.stamp(10)
        UU = V.alloc(8, 4); XX = V.alloc(8, 4); t1f = V.alloc(16, 2); xf = V.alloc(16, 2); rr = V.alloc(16, 4)
        Y = V.alloc(8, 4); w8 = V.alloc(16, 2); dk = V.alloc(2, 2)
        for bb in range(2):
            self.ds(f'ds_read_b128 {vr(UU+4*bb,4)}, v{ua} offset:{L_U + 1024 + 1024*bb}', 'ux')
            self.ds(f'ds_read_b128 {vr(XX+4*bb,4)}, v{xa_} offset:{L_X + 1024*bb}', 'ux')
        e(f'v_mov_b32 v{dk}, s{S_DK}')
        def epi(half):
            snd = acc + 16 * (1 - half); keep = acc + 16 * half
            for i in range(4): self.ds(f'ds_write_b128 v{ra}, {vr(snd+4*i,4)} offset:{1024*i}', 'rw')
            self.wait_lg('ux')
            for q in range(8): e(f'v_lshlrev_b32 v{t1f+2*q}, 16, v{UU+q}\nv_and_b32 v{t1f+2*q+1}, 0xffff0000, v{UU+q}')
            for q in range(8): e(f'v_pk_mul_f32 {vr(t1f+2*q,2)}, {vr(t1f+2*q,2)}, {vr(dk,2)} op_sel_hi:[1,0]')
            for q in range(8): e(f'v_cvt_pk_bf16_f32 v{UU+q}, v{t1f+2*q}, v{t1f+2*q+1}')
            for q in range(8): e(f'v_lshlrev_b32 v{xf+2*q}, 16, v{XX+q}\nv_and_b32 v{xf+2*q+1}, 0xffff0000, v{XX+q}')
            for q in range(8): e(f'v_lshlrev_b32 v{t1f+2*q}, 16, v{UU+q}\nv_and_b32 v{t1f+2*q+1}, 0xffff0000, v{UU+q}')
            self.wait_vm('wc')
            self.wait_all_lg()
            e('s_barrier')
            for i in range(4): self.ds(f'ds_read_b128 {vr(rr+4*i,4)}, v{ra+1} offset:{1024*i}', 'red')
            self.wait_lg('red')
            for i in range(0, 16, 2): e(f'v_pk_add_f32 {vr(keep+i,2)}, {vr(keep+i,2)}, {vr(rr+i,2)}')
            for bb in range(2):
                k0 = keep + 8 * bb; y = Y + 4 * bb
                e(f'v_cvt_pk_bf16_f32 v{y}, v{k0}, v{k0+1}\nv_cvt_pk_bf16_f32 v{y+1}, v{k0+2}, v{k0+3}')
                e(f'v_cvt_pk_bf16_f32 v{y+2}, v{k0+4}, v{k0+5}\nv_cvt_pk_bf16_f32 v{y+3}, v{k0+6}, v{k0+7}')
            for bb in range(2):
                y = Y + 4 * bb
                e(f'v_permlane32_swap_b32 v{y}, v{y+2}\nv_permlane32_swap_b32 v{y+1}, v{y+3}')
            for bb in range(2):
                y = Y + 4 * bb
                e(f'v_permlane16_swap_b32 v{y}, v{y+2}\nv_permlane16_swap_b32 v{y+1}, v{y+3}')
            for q in range(8): e(f'v_lshlrev_b32 v{w8+2*q}, 16, v{Y+q}\nv_and_b32 v{w8+2*q+1}, 0xffff0000, v{Y+q}')
            for q in range(8): e(f'v_pk_add_f32 {vr(w8+2*q,2)}, {vr(w8+2*q,2)}, {vr(t1f+2*q,2)}')
            for q in range(8): e(f'v_cvt_pk_bf16_f32 v{Y+q}, v{w8+2*q}, v{w8+2*q+1}')
            for q in range(8): e(f'v_lshlrev_b32 v{w8+2*q}, 16, v{Y+q}\nv_and_b32 v{w8+2*q+1}, 0xffff0000, v{Y+q}')
            for q in range(8): e(f'v_pk_add_f32 {vr(w8+2*q,2)}, {vr(w8+2*q,2)}, {vr(xf+2*q,2)}')
            for bb in range(2):
                for d in range(4): e(f'v_cvt_pk_bf16_f32 v{Y+4*bb+d}, v{w8+8*bb+2*d}, v{w8+8*bb+2*d+1}')
                self.vmem(f'buffer_store_dwordx4 {vr(Y+4*bb,4)}, v{sa}, s[{R_WS}:{R_WS+3}], 0 offen offset:{1024*bb} sc1', 'ht')
        self.two_paths(epi)
        if self.o.get('xg', True):
            self.w1_read(5, 10)
            self.w1_issue(10, 14, 'we')
        else:
            self.w1_read(5, 14)
            self.w1_issue(14, 15, 'we')
        for x, n in ((UU,8),(XX,8),(t1f,16),(xf,16),(rr,16),(Y,8),(w8,16),(dk,2),(sa,1),(ua,1),(xa_,1),(ra,2),(acc,32),(vF,1)): V.free(x, n)

    def interleave(self, main, fill, per_gap):
        n = len(main); fi = 0
        for i, m in enumerate(main):
            m()
            tgt = (len(fill) * (i + 1) + n - 1) // n if per_gap is None else min(len(fill), fi + per_gap)
            while fi < tgt:
                fill[fi](); fi += 1
        while fi < len(fill):
            fill[fi](); fi += 1

    def sched(self, mains, fillers, tail_free=0, segs=None):
        def cost(x): return x[1] if isinstance(x, tuple) else 1
        def run(x): (x[0] if isinstance(x, tuple) else x)()
        n = len(mains)
        bud = []
        for i, (pre, m, dur, post) in enumerate(mains):
            b = (dur - 8) / 4 - sum(cost(x) for x in post)
            if i + 1 < n: b -= sum(cost(x) for x in mains[i+1][0])
            bud.append(b)
        if segs is None: segs = [(0, n - tail_free, fillers)]
        plan = [[] for _ in range(n)]
        for (a, b_, fl) in segs:
            free = sum(max(0, x) for x in bud[a:b_]); need = sum(cost(x) for x in fl)
            over = max(0.0, (need - free) / max(1, b_ - a)); frac = min(1.0, need / free) if free > 0 else 1.0
            fi = 0; credit = 0.0
            for i in range(a, b_):
                credit += max(0, bud[i]) * frac + over
                while fi < len(fl) and cost(fl[fi]) <= credit + 1e-9:
                    credit -= cost(fl[fi]); plan[i].append(fl[fi]); fi += 1
            plan[b_ - 1] += fl[fi:]
            for i in range(a, b_): bud[i] = 0
        for i, (pre, m, dur, post) in enumerate(mains):
            for x in pre: run(x)
            m()
            for x in post: run(x)
            for x in plan[i]: run(x)

    def poll_flags(self, base, nflags_expr_lanes, nloads, sbase=None, last_lanes=None, sleep=0):
        e = self.e; V = self.V
        skip = self.lab('pf'); l0 = self.lab('pl'); l1 = self.lab('pd')
        e(f's_cmp_lg_u32 s{S_W}, 0\ns_cbranch_scc1 {skip}')
        a = V.alloc(1); d = V.alloc(4, 2)
        e(f'v_mul_u32_u24 v{a}, {FLAG_STRIDE}, v1\nv_add_u32 v{a}, {base}, v{a}')
        if sbase is not None: e(f'v_add_u32 v{a}, s{sbase}, v{a}')
        e(f's_mov_b64 s[{S_M1}:{S_M1+1}], exec')
        if nflags_expr_lanes < 64: e(f's_mov_b64 exec, {hex((1 << nflags_expr_lanes) - 1)}')
        e(f's_mov_b32 s{S_CNT}, 0')
        self.label(l0)
        for k in range(nloads):
            e(f'buffer_load_dword v{d+k}, v{a}, s[{R_WS}:{R_WS+3}], 0 offen offset:{64*FLAG_STRIDE*k} sc1')
        e('s_waitcnt vmcnt(0)')
        e(f'v_cmp_ne_u32 vcc, s{S_NONCE}, v{d}')
        for k in range(1, nloads):
            e(f'v_cmp_ne_u32 s[{S_M2}:{S_M2+1}], s{S_NONCE}, v{d+k}')
            if last_lanes and k == nloads - 1:
                assert last_lanes == 32
                e(f's_and_b32 s{S_M2+1}, s{S_M2+1}, 0')
            e(f's_or_b64 vcc, vcc, s[{S_M2}:{S_M2+1}]')
        e(f's_cbranch_vccz {l1}')
        if sleep: e(f's_sleep {sleep}')
        e(f's_add_u32 s{S_CNT}, s{S_CNT}, 1\ns_cmp_lt_u32 s{S_CNT}, {SPIN_MAX}\ns_cbranch_scc1 {l0}')
        self.label(l1)
        e(f's_mov_b64 exec, s[{S_M1}:{S_M1+1}]')
        V.free(a); V.free(d, 4)
        self.label(skip)
        e('s_barrier')

    WDREG = ['A']*9 + ['B']*3 + ['C']*3 + ['A']*9 + ['B']*3 + ['C']
    WDIDX = list(range(9)) + [0,1,2] + [0,1,2] + list(range(9)) + [0,1,2] + [0]
    def wd_setup(self):
        e = self.e; V = self.V
        self.vWD = V.alloc(2); self.vWT = V.alloc(6)
        t = V.alloc(1); t2 = V.alloc(1); vD = self.vWD; vT = self.vWT
        e(f'v_lshrrev_b32 v{t}, 3, v1\nv_mul_u32_u24 v{vD}, 896, v{t}\nv_bfe_u32 v{t}, v1, 4, 1\nv_lshlrev_b32 v{t}, 2, v{t}\nv_and_b32 v{t2}, 7, v1\nv_xor_b32 v{t}, v{t}, v{t2}\nv_lshl_add_u32 v{vD}, v{t}, 4, v{vD}')
        e(f's_lshl_b32 s{S_T0}, s{S_DB}, 7\ns_mul_i32 s{S_T1}, s{S_W}, {448*896}\ns_add_u32 s{S_T0}, s{S_T0}, s{S_T1}\nv_add_u32 v{vD}, s{S_T0}, v{vD}\nv_add_u32 v{vD+1}, 7168, v{vD}')
        e(f'v_lshrrev_b32 v{t}, 5, v1\nv_lshlrev_b32 v{vT}, 9, v{t}\nv_bfe_u32 v{t}, v1, 2, 2\nv_lshl_add_u32 v{vT}, v{t}, 7, v{vT}')
        e(f'v_bfe_u32 v{t}, v1, 4, 1\nv_lshl_add_u32 v{vT}, v{t}, 5, v{vT}\nv_and_b32 v{t}, 3, v1\nv_lshl_add_u32 v{vT}, v{t}, 3, v{vT}')
        e(f'v_bfe_u32 v{t}, v1, 3, 1\nv_lshlrev_b32 v{t}, 6, v{t}')
        e(f'v_xor_b32 v{t2}, 64, v{t}\nv_add_u32 v{vT+1}, v{vT}, v{t2}\nv_add_u32 v{vT}, v{vT}, v{t}')
        e(f's_mul_i32 s{S_WA}, s{S_W}, 18432\ns_add_u32 s{S_WA}, s{S_WA}, 87040')
        e(f's_mul_i32 s{S_WB}, s{S_W}, 7168\ns_add_u32 s{S_WC}, s{S_WB}, 57344\ns_add_u32 s{S_WB}, s{S_WB}, 28672')
        e(f'v_add_u32 v{vT+2}, s{S_WB}, v{vT}\nv_add_u32 v{vT+3}, s{S_WB}, v{vT+1}\nv_add_u32 v{vT+4}, s{S_WC}, v{vT}\nv_add_u32 v{vT+5}, s{S_WC}, v{vT+1}')
        e(f'v_add_u32 v{vT}, s{S_WA}, v{vT}\nv_add_u32 v{vT+1}, s{S_WA}, v{vT+1}')
        e(f's_add_u32 s{S_T1}, s{S_DB}, s{S_RB2}' if self.o.get('rot2', True) else f's_mov_b32 s{S_T1}, 0')
        for q in range(4):
            e(f's_add_u32 s{S_T0}, s{S_T1}, {q}\ns_and_b32 s{S_T0}, s{S_T0}, 3\ns_mul_i32 s{S_RW0+q}, s{S_T0}, {7*16*896}\ns_mul_i32 s{S_RA0+q}, s{S_T0}, {7*1024}')
        V.free(t); V.free(t2)
    def wd_dma(self, k, tag):
        e = self.e; sb = {'A': S_WA, 'B': S_WB, 'C': S_WC}[self.WDREG[k]]; sl = self.WDIDX[k] * 2048
        return [lambda: e(f's_add_u32 s{S_WO}, s{S_RW0 + k//7}, {(k%7)*16*896}'),
                lambda: e(f's_add_u32 m0, s{sb}, {sl}'),
                lambda: self.vmem(f'buffer_load_dwordx4 v{self.vWD}, s[{R_WD}:{R_WD+3}], s{S_WO} offen lds', tag),
                lambda: e(f's_add_u32 m0, s{sb}, {sl + 1024}'),
                lambda: self.vmem(f'buffer_load_dwordx4 v{self.vWD+1}, s[{R_WD}:{R_WD+3}], s{S_WO} offen lds', tag)]
    def wd_reads(self, k):
        a = self.vWT + {'A': 0, 'B': 2, 'C': 4}[self.WDREG[k]]; sl = self.WDIDX[k] * 2048
        return [lambda mt=mt, hh=hh: self.ds(f'ds_read_b64_tr_b16 {ar(8*k+4*mt+2*hh,2)}, v{a+mt} offset:{sl + 1024*hh}', f'wdr{k}') for mt in range(2) for hh in range(2)]

    def phaseB_setup(self):
        e = self.e; V = self.V; o = self.o
        L_H = 0; HG = 28672; L_STP = 3 * HG
        HS = lambda g_: (g_ % 3) * HG
        S_HB, S_MB = S_T5, S_HID
        vD = V.alloc(1); vB = V.alloc(1); vS = V.alloc(1); t = V.alloc(1); t2 = V.alloc(1)
        e(f'v_lshrrev_b32 v{t}, 2, v1\nv_mul_u32_u24 v{vD}, {HT_STRIDE}, v{t}\nv_bfe_u32 v{t2}, v1, 4, 1\nv_lshlrev_b32 v{t2}, 1, v{t2}\nv_and_b32 v{t}, 3, v1\nv_xor_b32 v{t}, v{t}, v{t2}\nv_lshl_add_u32 v{vD}, v{t}, 4, v{vD}')
        e(f's_lshl_b32 s{S_T0}, s{S_RB}, 8\ns_add_u32 s{S_T0}, s{S_T0}, {WS_HT}\nv_add_u32 v{vD}, s{S_T0}, v{vD}')
        e(f's_mul_i32 s{S_HB}, s{S_W}, {16*HT_STRIDE}\ns_lshl_b32 s{S_MB}, s{S_W}, 10')
        e(f'v_lshrrev_b32 v{t}, 5, v1\nv_lshlrev_b32 v{vB}, 8, v{t}\nv_bfe_u32 v{t2}, v1, 4, 1\nv_xor_b32 v{t2}, v{t2}, v{t}\nv_lshl_add_u32 v{vB}, v{t2}, 5, v{vB}')
        e(f'v_bfe_u32 v{t}, v1, 2, 2\nv_lshl_add_u32 v{vB}, v{t}, 6, v{vB}\nv_and_b32 v{t}, 3, v1\nv_lshl_add_u32 v{vB}, v{t}, 3, v{vB}')
        e(f'v_lshrrev_b32 v{t}, 4, v1\nv_lshlrev_b32 v{vS}, 8, v{t}\nv_and_b32 v{t}, 1, v{t}\ns_and_b32 s{S_T0}, s{S_W}, 1\nv_xor_b32 v{t}, s{S_T0}, v{t}\nv_lshl_add_u32 v{vS}, v{t}, 5, v{vS}')
        e(f'v_bfe_u32 v{t}, v1, 2, 2\nv_lshl_add_u32 v{vS}, v{t}, 6, v{vS}\nv_and_b32 v{t}, 3, v1\nv_lshl_add_u32 v{vS}, v{t}, 3, v{vS}')
        e(f's_lshr_b32 s{S_T0}, s{S_W}, 1\ns_mul_i32 s{S_T0}, s{S_T0}, {7*2048}\nv_add_u32 v{vS}, s{S_T0}, v{vS}')
        vA = V.alloc(1)
        e(f's_mul_i32 s{S_T0}, s{S_RB}, {4*112}\ns_lshl_b32 s{S_T1}, s{S_FB}, 3\ns_add_u32 s{S_T0}, s{S_T0}, s{S_T1}\ns_lshl_b32 s{S_T1}, s{S_W}, 1\ns_add_u32 s{S_T0}, s{S_T0}, s{S_T1}')
        e(f's_lshl_b32 s{S_T0}, s{S_T0}, 10\ns_add_u32 s{S_T0}, s{S_T0}, {WS_ACT}\nv_lshl_add_u32 v{vA}, v1, 4, s{S_T0}')
        vG2 = V.alloc(1); sg2 = V.alloc(6, 2)
        e(f'v_and_b32 v{t}, 31, v1\nv_lshlrev_b32 v{vG2}, 3, v{t}\ns_lshl_b32 s{S_T0}, s{S_RB}, 10\ns_add_u32 s{S_T0}, s{S_T0}, {WS_STATS2}\nv_add_u32 v{vG2}, s{S_T0}, v{vG2}')
        NB = 6
        cs = self.cs; ones = self.ones
        B = V.alloc(4 * NB, 4); SB = V.alloc(8, 4); SG = V.alloc(8, 4)
        acc = [V.alloc(32, 4), V.alloc(32, 4)]
        st = V.alloc(6, 2); par = V.alloc(3); tmp = V.alloc(8, 4); pk = V.alloc(8, 4)
        vP = V.alloc(1); vPw = V.alloc(1)
        e(f'v_bfe_u32 v{t}, v1, 4, 1\nv_lshlrev_b32 v{vP}, 7, v{t}\nv_and_b32 v{t}, 15, v1\nv_lshl_add_u32 v{vP}, v{t}, 3, v{vP}\nv_add_u32 v{vP}, {L_STP}, v{vP}')
        e(f's_lshl_b32 s{S_T0}, s{S_W}, 7\ns_add_u32 s{S_T0}, s{S_T0}, {L_STP}\nv_lshl_add_u32 v{vPw}, v{t}, 3, s{S_T0}')
        K1, K2, K3, KD = 6, 8, 10, 12
        e(f's_mov_b32 s{K1}, 0x22222222\ns_mov_b32 s{K1+1}, 0x22222222\ns_mov_b32 s{K2}, 0x44444444\ns_mov_b32 s{K2+1}, 0x44444444')
        e(f's_mov_b32 s{K3}, 0x88888888\ns_mov_b32 s{K3+1}, 0x88888888\ns_mov_b32 s{KD}, 0x00f0000f\ns_mov_b32 s{KD+1}, 0xf0000f00')
        vBq = V.alloc(4); vS2 = V.alloc(1)
        e(f'v_add_u32 v{vS2}, 57344, v{vS}')
        for q in range(4):
            e(f's_add_u32 s{S_T0}, s{S_ROT}, {q}\ns_and_b32 s{S_T0}, s{S_T0}, 3\ns_mul_i32 s{S_T0}, s{S_T0}, {7*1024}\nv_add_u32 v{vBq+q}, s{S_T0}, v{vB}')
        S_KI = [0, 1, 3, 4, 5, 22, 23]
        for i in range(7):
            e(f's_add_u32 s{S_T0}, s{S_W}, {4*i}\ns_mul_i32 s{S_T1}, s{S_T0}, 37\ns_lshr_b32 s{S_T1}, s{S_T1}, 8')
            e(f's_mul_i32 s{S_T2}, s{S_T1}, 7\ns_sub_u32 s{S_T0}, s{S_T0}, s{S_T2}\ns_add_u32 s{S_T1}, s{S_T1}, s{S_ROT}\ns_and_b32 s{S_T1}, s{S_T1}, 3')
            e(f's_mul_i32 s{S_T1}, s{S_T1}, 7\ns_add_u32 s{S_KI[i]}, s{S_T1}, s{S_T0}')
        self.wd_setup()
        self.pb = dict(locals())

    def phaseB(self):
        e = self.e; V = self.V; o = self.o
        self.c('================= phase B')
        pb = self.pb
        L_H, HG, L_STP, HS, S_HB, S_MB = pb['L_H'], pb['HG'], pb['L_STP'], pb['HS'], pb['S_HB'], pb['S_MB']
        vD, vB, vS, t, t2, vA, vG2, sg2, NB, cs, ones, B, SB, SG = [pb[k] for k in 'vD vB vS t t2 vA vG2 sg2 NB cs ones B SB SG'.split()]
        acc, st, par, tmp, pk, vP, vPw, K1, K2, K3, KD, vBq, vS2 = [pb[k] for k in 'acc st par tmp pk vP vPw K1 K2 K3 KD vBq vS2'.split()]
        self.stamp(14)
        self.wait_vm('we'); e('s_barrier')
        self.stamp(15)
        self.w1_read(self.K0, 28)
        self.wait_all_lg()
        self.stamp(25)
        V.free(self.vTS, 5); V.free(self.vW1)
        self.poll_flags(WS_FLAG2 + 32*FLAG_STRIDE, 64, 4, last_lanes=32, sleep=self.o.get('wsleep', 2))
        self.vm.drain(); self.lg.drain()
        self.stamp(16)
        def hdma(g, i, tag=None):
            return [lambda: e(f's_add_u32 m0, s{S_MB}, {L_H + HS(g) + i*4096}'),
                    lambda: e(f's_add_u32 s{S_T1}, s{S_HB}, {i*4*16*HT_STRIDE + 64*g}'),
                    lambda: self.vmem(f'buffer_load_dwordx4 v{vD}, s[{R_WS}:{R_WS+3}], s{S_T1} offen {o.get("hflags", "sc1")} lds', tag or f'h{g}')]
        S_KI = pb['S_KI']; PROG = o.get('prog', True)
        for i in range(7):
            e(f's_lshl_b32 m0, s{S_KI[i]}, 10\ns_mul_i32 s{S_T1}, s{S_KI[i]}, {16*HT_STRIDE}')
            self.vmem(f'buffer_load_dwordx4 v{vD}, s[{R_WS}:{R_WS+3}], s{S_T1} offen {o.get("hflags", "sc1")} lds', 'h0a' if (i < 3 and PROG) else 'h0')
        self.cs_mfma(self.K0, 28)
        H1F = o.get('h1fill', True)
        if not H1F:
            for i in range(7):
                for f in hdma(1, i): f()
        def rdB(g, k):
            s = k % NB
            for h_ in range(2):
                self.ds(f'ds_read_b64_tr_b16 {vr(B+4*s+2*h_,2)}, v{vBq + k//7} offset:{HS(g) + (k%7)*1024 + 512*h_}', f'B{g}_{k}')
        def st_reads(g):
            for k_ in range(2): self.ds(f'ds_read_b64 {vr(st+2*k_,2)}, v{vP} offset:{(g&1)*512 + 256*k_}', f'st{g}')
        def epilogue_ops(g):
            A_ = acc[g & 1]; ops = []
            nm, rsl, s2 = par, par + 1, par + 2
            save = self.lines; self.lines = []
            if g == 0:
                self.ln_finalize(st, st + 1, st + 2, st + 3, st + 4)
            else:
                e(f'v_lshlrev_b32 v{st+2}, 16, v{sg2+2*(g-1)}')
                e(f'v_and_b32 v{st+3}, 0xffff0000, v{sg2+2*(g-1)}')
            e(f'v_sub_f32 v{nm}, 0, v{st+2}')
            e(f'v_rcp_f32 v{st+4}, v{st+3}')
            e(f'v_mul_f32 v{s2}, v{st+3}, v{st+3}')
            e(f'v_mul_f32 v{rsl}, {fx(-LOG2E)}, v{st+4}')
            fl = self.lines; self.lines = save
            if g == 0:
                def fin0():
                    self.wait_lg('st0')
                    e(f'v_add_f32 v{st}, v{st}, v{st+2}')
                ops.append(fin0)
                ops.append(lambda: e(f'v_add_f32 v{st+1}, v{st+1}, v{st+3}'))
            for l in fl: ops.append(lambda l=l: e(l))
            def el(r):
                G_, U_, T_ = A_ + r, A_ + 16 + r, tmp + (r & 7)
                return [f'v_fma_f32 v{G_}, v{cs+r}, v{nm}, v{G_}',
                        f'v_fma_f32 v{U_}, v{cs+16+r}, v{nm}, v{U_}',
                        f'v_mul_f32 v{T_}, v{rsl}, v{G_}',
                        f'v_mul_f32 v{G_}, v{G_}, v{U_}',
                        f'v_exp_f32 v{T_}, v{T_}',
                        f'v_fma_f32 v{T_}, v{T_}, v{s2}, v{s2}',
                        f'v_rcp_f32 v{T_}, v{T_}',
                        f'v_mul_f32 v{G_}, v{G_}, v{T_}']
            for q in range(4):
                els = [el(4*q + x) for x in range(4)]
                for s_ in range(8):
                    for x in range(4): ops.append((lambda l=els[x][s_]: e(l), 2 if s_ in (4, 6) else 1))
                for x in range(2):
                    r = 4*q + 2*x
                    ops.append(lambda r=r: e(f'v_cvt_pk_bf16_f32 v{pk + r//2}, v{A_+r}, v{A_+r+1}'))
                if q in (1, 3):
                    kk = q >> 1
                    ops.append(lambda kk=kk: self.vmem(f'buffer_store_dwordx4 {vr(pk+4*kk,4)}, v{vA}, s[{R_WS}:{R_WS+3}], s{S_T4} offen offset:{1024*kk} sc1', 'act'))
            return ops
        DS = 1.5
        def rdB1(g, k, h_):
            s = (28 * g + k) % NB
            return (lambda: self.ds(f'ds_read_b64_tr_b16 {vr(B+4*s+2*h_,2)}, v{vBq + k//7} offset:{HS(g) + (k%7)*1024 + 512*h_}', f'B{g}_{k}'), DS)
        def rs(g, i):
            sb = SB + 4 * (i & 1); out = []
            for h_ in range(2):
                b_, off = (vS, HS(g) + i*2048 + 1024*h_) if HS(g) < 57344 else (vS2, i*2048 + 1024*h_)
                out.append((lambda b_=b_, off=off, h_=h_, sb=sb, i=i: self.ds(f'ds_read_b64_tr_b16 {vr(sb+2*h_,2)}, v{b_} offset:{off}', f'S{g}_{i}'), DS))
            return out
        def s2_loads():
            return [lambda gg=gg: self.vmem(f'buffer_load_dwordx2 {vr(sg2+2*(gg-1),2)}, v{vG2}, s[{R_WS}:{R_WS+3}], 0 offen offset:{256*gg} sc1', 'sg2') for gg in range(1, 4)]
        def s2_check():
            l0 = self.lab('s2'); l1 = self.lab('s2d')
            self.wait_vm('sg2')
            e(f's_mov_b32 s{S_CNT}, 0')
            self.label(l0)
            e(f'v_cmp_ne_u32 vcc, s{S_NONCE}, v{sg2+1}')
            for gg in (2, 3): e(f'v_cmp_ne_u32 s[{S_M2}:{S_M2+1}], s{S_NONCE}, v{sg2+2*gg-1}\ns_or_b64 vcc, vcc, s[{S_M2}:{S_M2+1}]')
            e(f's_cbranch_vccz {l1}')
            for gg in range(1, 4): e(f'buffer_load_dwordx2 {vr(sg2+2*(gg-1),2)}, v{vG2}, s[{R_WS}:{R_WS+3}], 0 offen offset:{256*gg} sc1')
            e('s_waitcnt vmcnt(0)')
            e(f's_add_u32 s{S_CNT}, s{S_CNT}, 1\ns_cmp_lt_u32 s{S_CNT}, {SPIN_MAX}\ns_cbranch_scc1 {l0}')
            self.label(l1)
        def red_ops(g):
            return [lambda: e(f'v_cndmask_b32 v{SG}, v{SG}, v{SG+1}, s[{K1}:{K1+1}]'),
                    lambda: e(f'v_cndmask_b32 v{SG}, v{SG}, v{SG+2}, s[{K2}:{K2+1}]'),
                    lambda: e(f'v_cndmask_b32 v{SG+5}, v{SG}, v{SG+3}, s[{K3}:{K3+1}]'),
                    lambda: e(f's_mov_b64 exec, s[{KD}:{KD+1}]'),
                    lambda: self.ds(f'ds_write_b64 v{vPw}, {vr(SG+4,2)} offset:{(g&1)*512}', f'stw{g}'),
                    lambda: e('s_mov_b64 exec, -1')]
        self.wait_vm('h0a' if PROG else 'h0'); self.wait_all_lg(); e('s_barrier')
        self.stamp(17)
        for k in range(4):
            for h_ in range(2): rdB1(0, k, h_)[0]()
        if not PROG:
            for f in rs(0, 0) + rs(0, 1): f[0]()
        mains = []; segs = []
        KB = 22
        for g in range(4):
            A_ = acc[g & 1]; base = len(mains); pos = {}
            for k in range(28):
                cg = '0' if k == 0 else vr(A_, 16); cu = '0' if k == 0 else vr(A_ + 16, 16)
                pre = []
                if g == 1 and k == 2: pre.append(lambda: e('s_barrier'))
                if g in (2, 3) and k == 2: pre.append(lambda: e('s_barrier'))
                if g == 0 and k == 8 and PROG:
                    pre.append(lambda: self.wait_vm('h0')); pre.append(lambda: e('s_barrier'))
                if k == KB:
                    if g < 3: pre.append(lambda g=g: self.wait_vm(f'h{g+1}'))
                    if g == 0: pre.append(lambda g=g: self.wait_lg(f'stw{g}'))
                    pre.append(lambda: e('s_barrier'))
                    if o.get('passstamps'): pre.append(lambda g=g: self.stamp(26 + g))
                pre.append(lambda k=k, g=g: self.wait_lg(f'B{g}_{k}'))
                nx = (g, k + 4) if k + 4 < 28 else ((g + 1, k + 4 - 28) if g < 3 else None)
                p0 = [rdB1(nx[0], nx[1], 0)] if nx else []; p1 = [rdB1(nx[0], nx[1], 1)] if nx else []
                pos[k] = len(mains)
                mains.append((pre, lambda k=k, cg=cg, A_=A_, g=g: e(f'v_mfma_f32_32x32x16_bf16 {vr(A_,16)}, {ar(8*k,4)}, {vr(B+4*((28*g+k)%NB),4)}, {cg}'), 32, p0))
                mains.append(([], lambda k=k, cu=cu, A_=A_, g=g: e(f'v_mfma_f32_32x32x16_bf16 {vr(A_+16,16)}, {ar(8*k+4,4)}, {vr(B+4*((28*g+k)%NB),4)}, {cu}'), 32, p1))
                if g == 0:
                    gpos = [10, 11, 13, 14, 16, 17, 19] if PROG else [0, 3, 6, 9, 12, 15, 18]
                    spos = gpos if PROG else [x + 1 for x in gpos]
                    if k in gpos:
                        i_ = gpos.index(k); sb = SB + 4 * (i_ & 1); c_ = '0' if i_ == 0 else vr(SG, 4)
                        mains.append(([lambda i_=i_, g=g: self.wait_lg(f'S{g}_{i_}')], lambda sb=sb, c_=c_: e(f'v_mfma_f32_16x16x32_bf16 {vr(SG,4)}, {vr(sb,4)}, {vr(sb,4)}, {c_}'), 16, []))
                    if k in spos:
                        i_ = spos.index(k); sb = SB + 4 * (i_ & 1); c_ = '0' if i_ == 0 else vr(SG + 4, 4)
                        mains.append(([], lambda sb=sb, c_=c_: e(f'v_mfma_f32_16x16x32_bf16 {vr(SG+4,4)}, {vr(ones,4)}, {vr(sb,4)}, {c_}'), 16,
                                      rs(g, i_ + 2) if i_ + 2 < 7 else []))
            def addpost(k, items, which=0):
                pre_, m_, d_, post_ = mains[pos[k] + which]
                mains[pos[k] + which] = (pre_, m_, d_, post_ + items)
            if g == 0:
                addpost(KB - 1, red_ops(g), 1)
                if PROG:
                    r0 = rs(0, 0) + rs(0, 1)
                    addpost(8, r0[:2], 0); addpost(8, r0[2:], 1)
            if g == 3:
                for i_ in range(9):
                    rr = [(f, DS) for f in self.wd_reads(i_)]
                    for q in range(4): addpost(10 + 2*i_ + (q >> 1), [rr[q]], q & 1)
                pre_, m_, d_, post_ = mains[pos[10]]
                mains[pos[10]] = (pre_, m_, d_, post_[:1] + [lambda: self.wait_vm('wdA')] + post_[1:])
            if g == 1:
                addpost(4, s2_loads(), 1)
                addpost(26, [(s2_check, 8)], 1)
            ep = []
            if g > 0:
                if g == 1: ep.append(lambda g=g: st_reads(0))
                ep.append(lambda g=g: e(f's_mov_b32 s{S_T4}, {(g-1)*112*1024}'))
                ep += epilogue_ops(g - 1)
            mf = []; mf2 = []
            if g == 0:
                if H1F:
                    for i in range(7): mf2 += hdma(1, i)
                for i in range(7): mf += hdma(2, i)
            if g == 0:
                pass
            mf3 = []
            if g == 1:
                for i in range(7): mf2 += hdma(3, i)
                for k_ in range(0, 5): mf3 += self.wd_dma(k_, 'wdA')
            if g == 2:
                for k_ in range(5, 9): mf3 += self.wd_dma(k_, 'wdA')
                for k_ in range(9, 12): mf3 += self.wd_dma(k_, 'wdB')
            if g == 3:
                for k_ in range(12, 15): mf3 += self.wd_dma(k_, 'wdC')
            if o.get('x_noep'): ep = []
            merged = []; a_, c_ = list(ep), list(mf)
            ra = len(a_) / max(1, len(a_) + len(c_)); acc_ = 0.0
            while a_ or c_:
                acc_ += ra
                if (acc_ >= 1.0 - 1e-9 and a_) or not c_:
                    acc_ -= 1.0; merged.append(a_.pop(0))
                else: merged.append(c_.pop(0))
            end = len(mains) if g < 3 else len(mains) - 2
            if mf2: segs.append((pos[2], pos[12], mf2) if g else (pos[0], pos[6], mf2))
            if mf3: segs.append((pos[12] if mf2 else pos[2], pos[27] if g < 3 else pos[10], mf3))
            segs.append((pos[8] if (g == 0 and H1F) else base, end, merged))
        self.sched(mains, None, segs=segs)
        self.stamp(18)
        e(f's_mov_b32 s{S_T4}, {3*112*1024}')
        for f in epilogue_ops(3): (f[0] if isinstance(f, tuple) else f)()
        self.stamp(19)
        for x, n in ((vD,1),(vB,1),(vS,1),(t,1),(t2,1),(cs,32),(vA,1),(vG2,1),(sg2,6),(B,4*NB),(SB,8),(ones,4),(SG,8),(acc[0],32),(acc[1],32),(st,6),(par,3),(tmp,8),(pk,8),(vP,1),(vPw,1),(vBq,4),(vS2,1)):
            V.free(x, n)
        pass
        self.wait_lg('wdr3')
        for k_ in range(15, 19):
            for f in self.wd_dma(k_, 'wdD'): f()
        self.wait_vm('act'); e('s_barrier')
        e(f's_lshl_b32 s{S_T1}, s{S_RB}, 4\ns_add_u32 s{S_T1}, s{S_T1}, s{S_FB}')
        self.signal(WS_FLAG3, f's{S_T1}')
        self.stamp(20)

    def phaseC(self):
        e = self.e; V = self.V; o = self.o
        self.c('================= phase C')
        t = V.alloc(1); t2 = V.alloc(1)
        self.wait_all_lg()
        for k_ in range(19, 24):
            for f in self.wd_dma(k_, 'wdE'): f()
        self.wait_vm('wdC')
        for k_ in range(9, 15):
            for f in self.wd_reads(k_): f()
        self.wait_all_lg()
        for k_ in range(24, 28):
            for f in self.wd_dma(k_, 'wdF'): f()
        self.wait_vm('wdE')
        for k_ in range(15, 24):
            for f in self.wd_reads(k_): f()
        self.wait_vm('wdF')
        for k_ in range(24, 28):
            for f in self.wd_reads(k_): f()
        self.wait_all_lg()
        V.free(self.vWD, 2); V.free(self.vWT, 6)
        self.stamp(21)
        e(f's_lshr_b32 s{S_T0}, s{S_RB2}, 1\ns_mul_i32 s{S_T0}, s{S_T0}, {16*FLAG_STRIDE}')
        self.poll_flags(WS_FLAG3, 16, 1, sbase=S_T0, sleep=self.o.get('wsleep3', 1))
        self.vm.drain(); self.lg.drain()
        self.stamp(22)
        vA = V.alloc(1)
        e(f's_mul_i32 s{S_T0}, s{S_RB2}, {2*112}\ns_mul_i32 s{S_T1}, s{S_W}, 28\ns_add_u32 s{S_T0}, s{S_T0}, s{S_T1}\ns_lshl_b32 s{S_T0}, s{S_T0}, 10\ns_add_u32 s{S_T0}, s{S_T0}, {WS_ACT}\nv_lshl_add_u32 v{vA}, v1, 4, s{S_T0}')
        NR = o.get('NR', 7)
        Bf = V.alloc(8 * NR, 4); acc = V.alloc(64, 4)
        def ld(k):
            for nt in range(2):
                e(f's_add_u32 s{S_T1}, s{S_RA0 + k//7}, {(nt*112 + k%7)*1024}')
                self.vmem(f'buffer_load_dwordx4 {vr(Bf+8*(k%NR)+4*nt,4)}, v{vA}, s[{R_WS}:{R_WS+3}], s{S_T1} offen {o.get("aflags", "sc1")}', f'a{k}')
        for k in range(NR): ld(k)
        hres = V.alloc(8, 4); vR = V.alloc(1)
        e(f's_lshl_b32 s{S_T0}, s{S_RB2}, 1\ns_and_b32 s{S_T1}, s{S_W}, 1\ns_add_u32 s{S_T0}, s{S_T0}, s{S_T1}\ns_mul_i32 s{S_T0}, s{S_T0}, 28')
        e(f's_lshl_b32 s{S_T1}, s{S_DB}, 2\ns_add_u32 s{S_T0}, s{S_T0}, s{S_T1}\ns_and_b32 s{S_T1}, s{S_W}, 2\ns_add_u32 s{S_T0}, s{S_T0}, s{S_T1}\ns_lshl_b32 s{S_T0}, s{S_T0}, 10\ns_add_u32 s{S_T0}, s{S_T0}, {WS_HD}\nv_lshl_add_u32 v{vR}, v1, 4, s{S_T0}')
        A = lambda mt, nt: acc + 16 * (2 * mt + nt)
        for k in range(28):
            self.wait_vm(f'a{k}')
            for mt in range(2):
                for nt in range(2):
                    cin = '0' if k == 0 else vr(A(mt, nt), 16)
                    if o.get('x_nomfma2') and k > 0: continue
                    e(f'v_mfma_f32_32x32x16_bf16 {vr(A(mt,nt),16)}, {ar(8*k+4*mt,4)}, {vr(Bf+8*(k%NR)+4*nt,4)}, {cin}')
            if k + NR < 28: ld(k + NR)
            if o.get('g2stamps'):
                if k in (0, 7, 14, 21): self.stamp(26 + k // 7)
            if k == 28 - NR:
                for kk in range(2): self.vmem(f'buffer_load_dwordx4 {vr(hres+4*kk,4)}, v{vR}, s[{R_WS}:{R_WS+3}], 0 offen offset:{1024*kk} sc1', 'hres')
        self.stamp(23)
        V.free(Bf, 8 * NR)
        ra = V.alloc(1); keep = V.alloc(16, 4); rr = V.alloc(48, 4)
        e(f's_lshl_b32 s{S_T0}, s{S_W}, 12\nv_lshl_add_u32 v{ra}, v1, 4, s{S_T0}')
        labs = [self.lab(f'r{w}') for w in range(4)]; ld_ = self.lab('rd')
        for w in range(1, 4): e(f's_cmp_eq_u32 s{S_W}, {w}\ns_cbranch_scc1 {labs[w]}')
        for w in range(4):
            if w: self.label(labs[w]); e('s_nop 7\ns_nop 3')
            for T in range(4):
                if T == w: continue
                for q in range(4): e(f'ds_write_b128 v{ra}, {vr(acc+16*T+4*q,4)} offset:{T*16384 + q*1024}')
            for i in range(16): e(f'v_mov_b32 v{keep+i}, v{acc+16*w+i}')
            if w < 3: e(f's_branch {ld_}')
        self.label(ld_)
        e('s_waitcnt lgkmcnt(0)'); self.lg.drain()
        e('s_barrier')
        e(f's_lshl_b32 s{S_T0}, s{S_W}, 14\nv_lshl_add_u32 v{ra}, v1, 4, s{S_T0}')
        for j in range(1, 4):
            e(f's_add_u32 s{S_T1}, s{S_W}, {j}\ns_and_b32 s{S_T1}, s{S_T1}, 3\ns_lshl_b32 s{S_T1}, s{S_T1}, 12\nv_add_u32 v{t}, s{S_T1}, v{ra}')
            for q in range(4): self.ds(f'ds_read_b128 {vr(rr+16*(j-1)+4*q,4)}, v{t} offset:{q*1024}', f'rr{j}')
        vO = V.alloc(1)
        e(f'v_and_b32 v{t}, 31, v1\nv_mul_u32_u24 v{vO}, 896, v{t}\nv_lshrrev_b32 v{t}, 5, v1\nv_lshl_add_u32 v{vO}, v{t}, 4, v{vO}')
        e(f's_lshl_b32 s{S_T0}, s{S_RB2}, 1\ns_and_b32 s{S_T1}, s{S_W}, 1\ns_add_u32 s{S_T0}, s{S_T0}, s{S_T1}\ns_mul_i32 s{S_T0}, s{S_T0}, {32*896}')
        e(f's_lshl_b32 s{S_T1}, s{S_DB}, 7\ns_add_u32 s{S_T0}, s{S_T0}, s{S_T1}\ns_and_b32 s{S_T1}, s{S_W}, 2\ns_lshl_b32 s{S_T1}, s{S_T1}, 5\ns_add_u32 s{S_T0}, s{S_T0}, s{S_T1}\nv_add_u32 v{vO}, s{S_T0}, v{vO}')
        for j in range(1, 4):
            self.wait_lg(f'rr{j}')
            for i in range(0, 16, 2): e(f'v_pk_add_f32 {vr(keep+i,2)}, {vr(keep+i,2)}, {vr(rr+16*(j-1)+i,2)}')
        self.wait_vm('hres')
        P = V.alloc(8, 4); w8 = rr
        for d in range(8): e(f'v_cvt_pk_bf16_f32 v{P+d}, v{keep+2*d}, v{keep+2*d+1}')
        for d in range(8):
            e(f'v_lshlrev_b32 v{w8+2*d}, 16, v{P+d}\nv_and_b32 v{w8+2*d+1}, 0xffff0000, v{P+d}')
            e(f'v_lshlrev_b32 v{w8+16+2*d}, 16, v{hres+d}\nv_and_b32 v{w8+16+2*d+1}, 0xffff0000, v{hres+d}')
        for d in range(8): e(f'v_pk_add_f32 {vr(w8+2*d,2)}, {vr(w8+2*d,2)}, {vr(w8+16+2*d,2)}')
        for d in range(8): e(f'v_cvt_pk_bf16_f32 v{P+d}, v{w8+2*d}, v{w8+2*d+1}')
        for kk in range(2):
            b = P + 4 * kk
            e(f'v_permlane32_swap_b32 v{b}, v{b+2}\nv_permlane32_swap_b32 v{b+1}, v{b+3}')
        for kk in range(2):
            self.vmem(f'buffer_store_dwordx4 {vr(P+4*kk,4)}, v{vO}, s[{R_OUT}:{R_OUT+3}], 0 offen offset:{32*kk} {o.get("outflags", "")}', 'out')
        self.stamp(24)

    def build(self):
        e = self.e
        self.prologue()
        saveV = list(self.V.used)
        self.helper()
        self.V.used = saveV; self.vm.drain(); self.lg.drain()
        self.label('L_worker')
        self.phaseA()
        upto = self.o.get('upto', 'C')
        if upto in ('B', 'C'): self.phaseB()
        if upto == 'C': self.phaseC()
        self.stamps_out()
        if self.o.get('padto'):
            e('s_waitcnt vmcnt(0)')
            self.label('L_pad')
            e(f's_memrealtime s[{S_TS}:{S_TS+1}]\ns_waitcnt lgkmcnt(0)\ns_sub_u32 s{S_TS}, s{S_TS}, s{S_TS+6}\ns_cmp_lt_u32 s{S_TS}, {self.o.get("padto")}\ns_cbranch_scc1 L_pad')
        self.label('L_end')
        e('s_endpgm')

HEADER = open(os.path.join(os.path.dirname(os.path.abspath(__file__)), 'header.txt')).read() if os.path.exists(os.path.join(os.path.dirname(os.path.abspath(__file__)), 'header.txt')) else ''

def generate(opt):
    g = Gen(opt)
    g.build()
    lines, problems = fix_hazards(g.lines, verbose=opt.get('verbose', False))
    for p in problems: print('BACKEDGE HAZARD:', p, file=sys.stderr)
    out = [HEADER.rstrip('\n').replace('@@GRID@@', f'; @launch grid=(256,1,1) block=(256,1,1) lds={LDS_SIZE}')]
    out += ['.amdgcn_target "amdgcn-amd-amdhsa--gfx950"', '.text', f'.globl {NAME}', '.p2align 8', f'.type {NAME},@function', f'{NAME}:']
    for l in lines:
        out.append(l if l.endswith(':') else '    ' + l)
    out += ['.section .rodata,"a"', '.p2align 6', f'.amdhsa_kernel {NAME}',
            '  .amdhsa_next_free_vgpr 512', '  .amdhsa_next_free_sgpr 102', '  .amdhsa_accum_offset 256',
            '  .amdhsa_group_segment_fixed_size 0', '  .amdhsa_kernarg_size 128', '  .amdhsa_user_sgpr_count 2',
            '  .amdhsa_user_sgpr_kernarg_segment_ptr 1', '  .amdhsa_system_sgpr_workgroup_id_x 1',
            '  .amdhsa_float_denorm_mode_32 3', '.end_amdhsa_kernel', '']
    if opt.get('verbose'): print('max arch vgpr', g.V.hi, 'lines', len(lines))
    return '\n'.join(out)

if __name__ == '__main__':
    import json
    opt = json.loads(sys.argv[2]) if len(sys.argv) > 2 else {}
    opt['verbose'] = True
    txt = generate(opt)
    open(sys.argv[1], 'w').write(txt)
```

```python
import sys, os, math, struct
sys.path.insert(0, os.path.dirname(os.path.abspath(__file__)))
from asmlib import *

NAME = 'sequential_preLN__ssm_conv_s4__swiglu_ffn__prompt_kernel'
def f2u(x): return struct.unpack('<I', struct.pack('<f', x))[0]
def fx(x): return hex(f2u(x))
LOG2E = 1.4426950408889634
WS_STATS = 0x0
WS_FLAG2 = 0x4000
WS_FLAG3 = 0xC000
WS_STATS2 = 0x10000
WS_HT    = 0x20000
HT_STRIDE = 4352
WS_HD    = 0x200000
WS_ACT   = 0x400000
WS_XT    = 0xB00000
XT_STRIDE = 4352
WS_DBG   = 0xE00000
WS_SIZE  = 0x2000000
FLAG_STRIDE = 16
TBL_E = 1088; TBL_C = 18 * TBL_E
L_TBL = 0
L_EX = 2 * TBL_C
L_K32 = 55680; K32_C = 9344
L_RED = L_K32
L_STG = 87040; STG_SLOT = 8192
L_STGX = 74496
L_KC = 0; KC_S = 4160; KC_C = 4 * KC_S
L_U = 2 * KC_C; U_C = 5120
L_X = L_U + 2 * U_C; X_C = 4096
LDS_SIZE = 163840
HX_STRIDE = 912
S_X, S_ARE, S_AIM, S_BRE, S_BIM, S_CRE, S_CIM, S_LDT, S_DSK, S_BX, S_WG, S_WU, S_WD, S_OUT, S_DBG, S_WS = range(4, 36, 2)
R_X, R_WS, R_DBG, R_WG, R_WU, R_WD, R_OUT = 36, 40, 44, 48, 52, 56, 60
S_W, S_NONCE, S_XCD, S_J, S_CP, S_T0, S_T1, S_T2, S_T3, S_T4, S_T5 = 64, 65, 66, 67, 68, 69, 70, 71, 72, 73, 74
S_LD, S_DK = 75, 76
S_RB, S_FB, S_RB2, S_DB = 77, 78, 79, 80
S_M0, S_M1, S_M2, S_M3 = 82, 84, 86, 88
S_CNT = 90
S_HID = 91
S_WM, S_WO, S_US = 81, 100, 101
S_ROT = 99
S_WA, S_WB, S_WC = 18, 19, 20
S_RW0, S_RA0 = 24, 28
S_Q0 = 14
S_TS = 92
SPIN_MAX = 5000

class Gen(Asm):
    def __init__(self, opt):
        super().__init__()
        self.o = opt
        self.V = Regs('v', 256, start=2)
        if opt.get('stamps'): self.V.take(253, 3)
        self.uid = 0
    def lab(self, s):
        self.uid += 1
        return f'L{s}_{self.uid}'
    def srd(self, r, ptr, size):
        self.e(f's_mov_b32 s{r}, s{ptr}\ns_mov_b32 s{r+1}, s{ptr+1}\ns_mov_b32 s{r+2}, {hex(size)}\ns_mov_b32 s{r+3}, 0x20000')
    def cmul(self, d, a, b, t=None):
        t = d if t is None else t
        self.e(f'v_pk_mul_f32 {vr(t,2)}, {vr(a,2)}, {vr(b,2)} op_sel:[0,0] op_sel_hi:[0,1]')
        self.e(f'v_pk_fma_f32 {vr(d,2)}, {vr(a,2)}, {vr(b,2)}, {vr(t,2)} op_sel:[1,1,0] op_sel_hi:[1,0,1] neg_lo:[0,1,0]')
    def cmul_multi(self, items):
        for d, a, b, t in items:
            t = d if t is None else t
            self.e(f'v_pk_mul_f32 {vr(t,2)}, {vr(a,2)}, {vr(b,2)} op_sel:[0,0] op_sel_hi:[0,1]')
        for d, a, b, t in items:
            t = d if t is None else t
            self.e(f'v_pk_fma_f32 {vr(d,2)}, {vr(a,2)}, {vr(b,2)}, {vr(t,2)} op_sel:[1,1,0] op_sel_hi:[1,0,1] neg_lo:[0,1,0]')
    def stamp(self, i):
        dm = self.o.get('dbgmap')
        if dm and i in dm:
            lab = self.lab('ds')
            self.e(f's_cmp_lg_u32 s2, {self.o.get("dbgwg", 8)}\ns_cbranch_scc1 {lab}\ns_cmp_lg_u32 s{S_W}, 0\ns_cbranch_scc1 {lab}')
            self.e(f's_memrealtime s[{S_TS}:{S_TS+1}]\ns_waitcnt lgkmcnt(0)')
            v = self.V.alloc(2)
            self.e(f's_sub_u32 s{S_TS}, s{S_TS}, s{S_TS+6}\nv_mov_b32 v{v}, s{S_TS}\nv_mov_b32 v{v+1}, {4*(1+dm.index(i))}')
            self.e(f's_mov_b64 s[{S_TS+4}:{S_TS+5}], exec\ns_mov_b64 exec, 1')
            self.e(f'buffer_store_dword v{v}, v{v+1}, s[{R_DBG}:{R_DBG+3}], 0 offen')
            self.e(f's_mov_b64 exec, s[{S_TS+4}:{S_TS+5}]')
            self.V.free(v, 2)
            self.label(lab)
            self.e('s_waitcnt lgkmcnt(0)')
            self.lg.drain()
        if self.o.get('stamps') and (self.o.get('only') is None or i in self.o['only']):
            self.e(f's_memrealtime s[{S_TS}:{S_TS+1}]\ns_memtime s[{S_TS+4}:{S_TS+5}]')
            self.e('s_waitcnt lgkmcnt(0)'); self.lg.drain()
            self.e(f'v_writelane_b32 v254, s{S_TS}, {i}\nv_writelane_b32 v255, s{S_TS+4}, {i}')

    def stamps_out(self):
        if self.o.get('stamps'):
            e = self.e
            e(f's_lshl_b32 s{S_TS+2}, s2, 10\ns_lshl_b32 s{S_TS+3}, s{S_W}, 8\ns_add_u32 s{S_TS+2}, s{S_TS+2}, s{S_TS+3}\ns_add_u32 s{S_TS+2}, s{S_TS+2}, {WS_DBG}')
            e(f'v_lshl_add_u32 v253, v1, 2, s{S_TS+2}\ns_mov_b32 exec_lo, -1\ns_mov_b32 exec_hi, 0')
            e(f'buffer_store_dword v254, v253, s[{R_WS}:{R_WS+3}], 0 offen\nbuffer_store_dword v255, v253, s[{R_WS}:{R_WS+3}], 0 offen offset:128')

    def prologue(self):
        e = self.e
        e(f's_cmp_ge_u32 s2, 256\ns_cbranch_scc1 L_end')
        e(f's_load_dwordx16 s[4:19], s[0:1], 0\ns_load_dwordx16 s[20:35], s[0:1], 64')
        e(f's_memrealtime s[{S_M0}:{S_M0+1}]')
        e('v_and_b32 v1, 63, v0')
        if self.o.get('stamps'): e('v_mov_b32 v254, 0x5a5a5a5a\nv_mov_b32 v255, 0x5a5a5a5a')
        v = self.V.alloc(1)
        e(f'v_lshrrev_b32 v{v}, 6, v0')
        e(f's_and_b32 s{S_XCD}, s2, 7\ns_lshr_b32 s{S_J}, s2, 3')
        e(f'v_readfirstlane_b32 s{S_W}, v{v}')
        self.V.free(v)
        e(f's_cmp_lt_u32 s{S_J}, 4\ns_cbranch_scc1 L_helper')
        e(f's_sub_u32 s{S_J}, s{S_J}, 4\ns_mul_i32 s{S_CP}, s{S_XCD}, 28\ns_add_u32 s{S_CP}, s{S_CP}, s{S_J}\ns_branch L_worker')
        self.label('L_helper')

    def srds(self, skip=()):
        e = self.e
        for r, p, n in ((R_X, S_X, 2048*448*2), (R_WS, S_WS, WS_SIZE), (R_DBG, S_DBG, 256), (R_WG, S_WG, 448*1792*2), (R_WU, S_WU, 448*1792*2),
                        (R_WD, S_WD, 448*1792*2), (R_OUT, S_OUT, 2048*448*2)):
            if r not in skip: self.srd(r, p, n)

    def publish_nonce(self):
        e = self.e
        e(f's_or_b32 s{S_NONCE}, s{S_M0}, 1\ns_mov_b32 s{S_TS+6}, s{S_M0}')
        lab = self.lab('non')
        e(f's_or_b32 s{S_T0}, s2, s{S_W}\ns_cmp_lg_u32 s{S_T0}, 0\ns_cbranch_scc1 {lab}')
        v = self.V.alloc(2)
        e(f'v_mov_b32 v{v}, s{S_NONCE}\nv_mov_b32 v{v+1}, 0')
        e(f's_mov_b64 s[{S_M1}:{S_M1+1}], exec\ns_mov_b64 exec, 1')
        e(f'buffer_store_dword v{v}, v{v+1}, s[{R_DBG}:{R_DBG+3}], 0 offen sc1')
        e(f's_mov_b64 exec, s[{S_M1}:{S_M1+1}]')
        self.V.free(v, 2)
        self.label(lab)

    def capture(self, fn):
        save = self.lines; self.lines = []
        r = fn()
        fl = self.lines; self.lines = save
        return r, [(lambda l=l: self.e(l)) for l in fl if not l.startswith(';')]

    def region(self, fn):
        save = self.lines; self.lines = []
        r = fn()
        fl = self.lines; self.lines = save
        self.lines.extend(resched(fl) if self.o.get('resched', True) else fl)
        return r

    def two_paths(self, fn, nop=7):
        e = self.e; l1 = self.lab('p1'); ld = self.lab('pd')
        e(f's_and_b32 s{S_T5}, s{S_W}, 1\ns_cmp_lg_u32 s{S_T5}, 0\ns_cbranch_scc1 {l1}')
        st = (list(self.vm.q), list(self.lg.q), list(self.V.used))
        fn(0)
        e(f's_branch {ld}')
        end = (list(self.vm.q), list(self.lg.q), list(self.V.used))
        self.vm.q, self.lg.q, self.V.used = list(st[0]), list(st[1]), list(st[2])
        self.label(l1)
        e(f's_nop {nop}')
        fn(1)
        assert (self.vm.q, self.lg.q, self.V.used) == end, 'paths diverge'
        self.label(ld)

    def get_nonce(self):
        e = self.e
        v = self.V.alloc(2)
        l0 = self.lab('gn'); l1 = self.lab('gnd')
        e(f'v_mov_b32 v{v+1}, 0\ns_mov_b32 s{S_CNT}, 0')
        self.label(l0)
        e(f'buffer_load_dword v{v}, v{v+1}, s[{R_DBG}:{R_DBG+3}], 0 offen sc1')
        e('s_waitcnt vmcnt(0)'); self.vm.drain()
        e(f'v_readfirstlane_b32 s{S_NONCE}, v{v}')
        e(f's_cmp_lg_u32 s{S_NONCE}, 0\ns_cbranch_scc1 {l1}')
        e(f's_add_u32 s{S_CNT}, s{S_CNT}, 1\ns_cmp_lt_u32 s{S_CNT}, {SPIN_MAX}\ns_cbranch_scc1 {l0}')
        self.label(l1)
        self.V.free(v, 2)

    def helper(self):
        e = self.e; V = self.V
        self.c('================= helper: x^T + LN1 stats')
        e('s_waitcnt lgkmcnt(0)')
        self.srd(R_DBG, S_DBG, 256)
        self.publish_nonce()
        self.srd(R_X, S_X, 2048*448*2)
        e(f's_mov_b32 s{S_TS+6}, s{S_M0}')
        e(f's_lshl_b32 s{S_T0}, s{S_XCD}, 2\ns_add_u32 s{S_HID}, s{S_J}, s{S_T0}')
        va = V.alloc(1); t0 = V.alloc(1); t1 = V.alloc(1)
        e(f's_lshl_b32 s{S_T0}, s{S_HID}, 6\ns_lshl_b32 s{S_T1}, s{S_W}, 4\ns_add_u32 s{S_T0}, s{S_T0}, s{S_T1}')
        e(f's_mul_i32 s{S_T2}, s{S_T0}, 896\ns_mul_i32 s{S_T3}, s{S_T1}, {HX_STRIDE}')
        e(f'v_lshlrev_b32 v{va}, 4, v1')
        e(f's_mov_b64 s[{S_M1}:{S_M1+1}], exec\ns_mov_b32 exec_lo, -1\ns_mov_b32 exec_hi, 0x00ffffff')
        for r in range(16):
            e(f's_add_u32 m0, s{S_T3}, {r*HX_STRIDE}\ns_add_u32 s{S_T4}, s{S_T2}, {r*896}')
            self.vmem(f'buffer_load_dwordx4 v{va}, s[{R_X}:{R_X+3}], s{S_T4} offen lds', 'x')
        e(f's_mov_b64 exec, s[{S_M1}:{S_M1+1}]')
        self.srds(skip=(R_X, R_DBG))
        self.stamp(0)
        vT = V.alloc(1); vO = V.alloc(1); vA = V.alloc(1)
        e(f'v_lshrrev_b32 v{t0}, 4, v1\nv_lshlrev_b32 v{t0}, 1, v{t0}\nv_bfe_u32 v{t1}, v1, 1, 1\nv_add_u32 v{t0}, v{t0}, v{t1}\nv_lshlrev_b32 v{t0}, 3, v{t0}')
        e(f'v_bfe_u32 v{t1}, v1, 2, 2\nv_add_u32 v{t0}, v{t0}, v{t1}\nv_mul_u32_u24 v{vT}, {HX_STRIDE}, v{t0}')
        e(f'v_and_b32 v{t1}, 1, v1\nv_lshl_add_u32 v{vT}, v{t1}, 3, v{vT}\ns_lshl_b32 s{S_T0}, s{S_W}, 4\nv_add_u32 v{vT}, s{S_T0}, v{vT}')
        e(f's_lshl_b32 s{S_T0}, s{S_W}, 15\ns_lshl_b32 s{S_T1}, s{S_HID}, 10\ns_add_u32 s{S_T0}, s{S_T0}, s{S_T1}\ns_add_u32 s{S_T0}, s{S_T0}, {WS_XT}\nv_lshl_add_u32 v{vO}, v1, 4, s{S_T0}')
        e(f'v_and_b32 v{t0}, 15, v1\nv_lshrrev_b32 v{t1}, 4, v1')
        e(f's_lshl_b32 s{S_T0}, s{S_W}, 4\nv_add_u32 v{t0}, s{S_T0}, v{t0}\nv_mul_u32_u24 v{vA}, {HX_STRIDE}, v{t0}\nv_lshl_add_u32 v{vA}, v{t1}, 4, v{vA}')
        e(f's_lshl_b32 s{S_T0}, s{S_HID}, 6\nv_add_u32 v{t0}, s{S_T0}, v{t0}')
        XG = self.o.get('xg', True)
        self.get_nonce()
        Q = V.alloc(56, 4)
        if not XG:
            e('s_barrier')
            self.stamp(3)
            for u in range(14):
                for k_ in range(2):
                    self.ds(f'ds_read_b64_tr_b16 {vr(Q+4*u+2*k_,2)}, v{vT} offset:{64*u + 4*k_*HX_STRIDE}', f'q{u}')
            for u in range(14):
                self.wait_lg(f'q{u}')
                e(f's_mov_b32 s{S_T1}, {u*4*32768}')
                self.vmem(f'buffer_store_dwordx4 {vr(Q+4*u,4)}, v{vO}, s[{R_WS}:{R_WS+3}], s{S_T1} offen sc1', 'xt')
            self.stamp(4)
        else: self.stamp(3)
        xa = V.alloc(56, 4)
        for s in range(14): self.ds(f'ds_read_b128 {vr(xa+4*s,4)}, v{vA} offset:{64*s}', f'x{s}')
        acc = V.alloc(8, 4); ones = V.alloc(4, 4)
        for i in range(4): e(f'v_mov_b32 v{ones+i}, 0x3f803f80')
        e(f's_mov_b32 s6, 0x22222222\ns_mov_b32 s7, 0x22222222\ns_mov_b32 s8, 0x44444444\ns_mov_b32 s9, 0x44444444\ns_mov_b32 s10, 0x88888888\ns_mov_b32 s11, 0x88888888\ns_mov_b32 s12, 0x00f0000f\ns_mov_b32 s13, 0xf0000f00')
        for s in range(14):
            self.wait_lg(f'x{s}')
            e(f'v_mfma_f32_16x16x32_bf16 {vr(acc,4)}, {vr(xa+4*s,4)}, {vr(xa+4*s,4)}, {"0" if s == 0 else vr(acc,4)}')
            e(f'v_mfma_f32_16x16x32_bf16 {vr(acc+4,4)}, {vr(ones,4)}, {vr(xa+4*s,4)}, {"0" if s == 0 else vr(acc+4,4)}')
        e(f'v_cndmask_b32 v{acc}, v{acc}, v{acc+1}, s[6:7]\nv_cndmask_b32 v{acc}, v{acc}, v{acc+2}, s[8:9]\nv_cndmask_b32 v{acc+5}, v{acc}, v{acc+3}, s[10:11]')
        e(f'v_mov_b32 v{acc}, v{acc+4}\nv_mov_b32 v{acc+4}, v{acc+5}')
        S = acc; Qs = acc + 4
        pk = V.alloc(2, 2)
        self.ln_finalize(S, Qs, acc + 1, acc + 2, acc + 3)
        e(f'v_lshrrev_b32 v{pk}, 16, v{acc+1}\nv_or_b32 v{pk}, v{pk}, v{acc+2}')
        self.stamp(5)
        if not XG:
            self.wait_all_vm()
            e('s_barrier')
        self.stamp(6)
        e(f'v_mov_b32 v{pk+1}, s{S_NONCE}')
        e(f'v_lshlrev_b32 v{t0}, 3, v{t0}')
        if WS_STATS: e(f'v_add_u32 v{t0}, {WS_STATS}, v{t0}')
        e(f's_mov_b64 s[{S_M1}:{S_M1+1}], exec\ns_mov_b64 exec, s[12:13]')
        self.vmem(f'buffer_store_dwordx2 {vr(pk,2)}, v{t0}, s[{R_WS}:{R_WS+3}], 0 offen sc1', 'st')
        e(f's_mov_b64 exec, s[{S_M1}:{S_M1+1}]')
        self.stamp(1)
        V.free(pk, 2); V.free(acc, 8); V.free(ones, 4); V.free(xa, 56); V.free(Q, 56); V.free(vT); V.free(vO); V.free(vA)
        e('s_barrier')
        tw = self.o.get('touch_wd', 'mall')
        if tw:
            nl = 13 if tw == 'l2' else 2
            tv = V.alloc(13); ta = V.alloc(2)
            if tw == 'l2': e(f's_mul_i32 s{S_T0}, s{S_J}, {448*896}')
            else: e(f's_mul_i32 s{S_T0}, s{S_HID}, {56*896}')
            for k in range(nl):
                e(f'v_add_u32 v{ta}, {256*k}, v0\nv_min_u32 v{ta}, {3135 if tw == "l2" else 391}, v{ta}\nv_mul_u32_u24 v{ta+1}, 9363, v{ta}\nv_lshrrev_b32 v{ta+1}, 16, v{ta+1}')
                e(f'v_mul_u32_u24 v{tv+k}, 7, v{ta+1}\nv_sub_u32 v{ta}, v{ta}, v{tv+k}\nv_mul_u32_u24 v{ta+1}, 896, v{ta+1}\nv_lshl_add_u32 v{ta+1}, v{ta}, 7, v{ta+1}')
                e(f'buffer_load_dword v{tv+k}, v{ta+1}, s[{R_WD}:{R_WD+3}], s{S_T0} offen')
            self.wait_all_vm()
            V.free(tv, 13); V.free(ta, 2)
        self.c('helper: LN2 stats + hD')
        vD = V.alloc(1); vB = V.alloc(2); vS = V.alloc(1); vHs = V.alloc(1)
        e(f'v_lshrrev_b32 v{t0}, 3, v1\nv_mul_u32_u24 v{vD}, {HT_STRIDE}, v{t0}\nv_bfe_u32 v{t0}, v1, 4, 1\nv_lshlrev_b32 v{t0}, 2, v{t0}\nv_and_b32 v{t1}, 7, v1\nv_xor_b32 v{t0}, v{t0}, v{t1}\nv_lshl_add_u32 v{vD}, v{t0}, 4, v{vD}')
        e(f's_lshl_b32 s{S_T0}, s{S_HID}, 7\ns_mul_i32 s{S_T1}, s{S_W}, {8*HT_STRIDE}\ns_add_u32 s{S_T0}, s{S_T0}, s{S_T1}\ns_add_u32 s{S_T0}, s{S_T0}, {WS_HT}\nv_add_u32 v{vD}, s{S_T0}, v{vD}')
        e(f'v_lshrrev_b32 v{t0}, 5, v1\nv_lshlrev_b32 v{vB}, 9, v{t0}\nv_bfe_u32 v{t0}, v1, 2, 2\nv_lshl_add_u32 v{vB}, v{t0}, 7, v{vB}')
        e(f'v_bfe_u32 v{t0}, v1, 4, 1\nv_lshl_add_u32 v{vB}, v{t0}, 5, v{vB}\nv_and_b32 v{t0}, 3, v1\nv_lshl_add_u32 v{vB}, v{t0}, 3, v{vB}')
        e(f'v_bfe_u32 v{t0}, v1, 3, 1\nv_lshlrev_b32 v{t0}, 6, v{t0}\nv_xor_b32 v{t1}, 64, v{t0}\nv_add_u32 v{vB+1}, v{vB}, v{t1}\nv_add_u32 v{vB}, v{vB}, v{t0}')
        e(f'v_lshrrev_b32 v{t0}, 4, v1\nv_lshlrev_b32 v{vS}, 9, v{t0}\nv_bfe_u32 v{t0}, v1, 2, 2\nv_lshl_add_u32 v{vS}, v{t0}, 7, v{vS}\nv_and_b32 v{t0}, 3, v1\nv_lshl_add_u32 v{vS}, v{t0}, 3, v{vS}')
        e(f'v_bfe_u32 v{t0}, v1, 3, 1\ns_lshr_b32 s{S_T0}, s{S_W}, 1\nv_xor_b32 v{t0}, s{S_T0}, v{t0}\nv_lshl_add_u32 v{vS}, v{t0}, 6, v{vS}\ns_and_b32 s{S_T0}, s{S_W}, 1\ns_lshl_b32 s{S_T0}, s{S_T0}, 5\nv_add_u32 v{vS}, s{S_T0}, v{vS}')
        e(f's_mul_i32 s{S_T0}, s{S_HID}, {2*28}\ns_add_u32 s{S_T0}, s{S_T0}, s{S_W}\ns_lshl_b32 s{S_T0}, s{S_T0}, 10\ns_add_u32 s{S_T0}, s{S_T0}, {WS_HD}\nv_lshl_add_u32 v{vHs}, v1, 4, s{S_T0}')
        ones = V.alloc(4, 4); SG = V.alloc(8, 4); SB = V.alloc(56, 4)
        for i in range(4): e(f'v_mov_b32 v{ones+i}, 0x3f803f80')
        K1, K2, K3 = 6, 8, 10
        e(f's_mov_b32 s{K1}, 0x22222222\ns_mov_b32 s{K1+1}, 0x22222222\ns_mov_b32 s{K2}, 0x44444444\ns_mov_b32 s{K2+1}, 0x44444444')
        e(f's_mov_b32 s{K3}, 0x88888888\ns_mov_b32 s{K3+1}, 0x88888888\ns_mov_b32 s12, 0x00f0000f\ns_mov_b32 s13, 0xf0000f00')
        self.poll_flags(WS_FLAG2 + 32*FLAG_STRIDE, 64, 4, last_lanes=32, sleep=self.o.get('hsleep', 20))
        self.vm.drain(); self.lg.drain()
        self.stamp(7)
        e(f's_lshl_b32 s{S_T2}, s{S_W}, 10')
        for i in range(14):
            e(f's_add_u32 m0, s{S_T2}, {i*4096}\ns_mov_b32 s{S_T1}, {i*32*HT_STRIDE}')
            self.vmem(f'buffer_load_dwordx4 v{vD}, s[{R_WS}:{R_WS+3}], s{S_T1} offen sc1 lds', 'h')
        self.wait_all_vm(); e('s_barrier')
        self.stamp(8)
        for i in range(14):
            for h_ in range(2): self.ds(f'ds_read_b64_tr_b16 {vr(SB+4*i+2*h_,2)}, v{vS} offset:{i*4096 + 2048*h_}', f's{i}')
        for i in range(14):
            self.wait_lg(f's{i}')
            e(f'v_mfma_f32_16x16x32_bf16 {vr(SG,4)}, {vr(SB+4*i,4)}, {vr(SB+4*i,4)}, {"0" if i == 0 else vr(SG,4)}')
            e(f'v_mfma_f32_16x16x32_bf16 {vr(SG+4,4)}, {vr(ones,4)}, {vr(SB+4*i,4)}, {"0" if i == 0 else vr(SG+4,4)}')
        HB = V.alloc(56, 4)
        e(f'v_cndmask_b32 v{SG}, v{SG}, v{SG+1}, s[{K1}:{K1+1}]\nv_cndmask_b32 v{SG}, v{SG}, v{SG+2}, s[{K2}:{K2+1}]\nv_cndmask_b32 v{SG+5}, v{SG}, v{SG+3}, s[{K3}:{K3+1}]')
        self.ln_finalize(SG + 4, SG + 5, SG + 1, SG + 2, SG + 3)
        e(f'v_lshrrev_b32 v{SG}, 16, v{SG+1}\nv_or_b32 v{SG}, v{SG}, v{SG+2}\nv_mov_b32 v{SG+1}, s{S_NONCE}')
        e(f'v_and_b32 v{t0}, 15, v1\ns_lshl_b32 s{S_T0}, s{S_HID}, 6\ns_lshl_b32 s{S_T1}, s{S_W}, 4\ns_add_u32 s{S_T0}, s{S_T0}, s{S_T1}\nv_add_u32 v{t0}, s{S_T0}, v{t0}\nv_lshlrev_b32 v{t0}, 3, v{t0}\nv_add_u32 v{t0}, {WS_STATS2}, v{t0}')
        e(f's_mov_b64 s[{S_M1}:{S_M1+1}], exec\ns_mov_b64 exec, s[12:13]')
        self.vmem(f'buffer_store_dwordx2 {vr(SG,2)}, v{t0}, s[{R_WS}:{R_WS+3}], 0 offen sc1', 'st2')
        e(f's_mov_b64 exec, s[{S_M1}:{S_M1+1}]')
        self.stamp(9)
        e(f's_lshl_b32 s{S_T0}, s{S_W}, 11\nv_add_u32 v{vB}, s{S_T0}, v{vB}\nv_add_u32 v{vB+1}, s{S_T0}, v{vB+1}')
        for i in range(7):
            for gp in range(2):
                for h_ in range(2):
                    self.ds(f'ds_read_b64_tr_b16 {vr(HB+8*i+4*gp+2*h_,2)}, v{vB+gp} offset:{i*8192 + 1024*h_}', f'hb{i}_{gp}')
        for i in range(7):
            for gp in range(2):
                self.wait_lg(f'hb{i}_{gp}')
                e(f's_mov_b32 s{S_T1}, {(gp*28 + 4*i)*1024}')
                self.vmem(f'buffer_store_dwordx4 {vr(HB+8*i+4*gp,4)}, v{vHs}, s[{R_WS}:{R_WS+3}], s{S_T1} offen sc1', 'hd')
        self.wait_all_vm(); e('s_barrier')
        e(f's_lshr_b32 s{S_T1}, s{S_HID}, 1\ns_lshl_b32 s{S_T1}, s{S_T1}, 4\ns_and_b32 s{S_T2}, s{S_HID}, 1\ns_add_u32 s{S_T1}, s{S_T1}, s{S_T2}\ns_add_u32 s{S_T1}, s{S_T1}, 14')
        self.signal(WS_FLAG3, f's{S_T1}')
        self.stamp(2)
        self.stamps_out()
        e('s_branch L_end')

    def signal(self, base, sidx):
        e = self.e; V = self.V
        lab = self.lab('sig')
        e(f's_cmp_lg_u32 s{S_W}, 0\ns_cbranch_scc1 {lab}')
        v = V.alloc(2, 2)
        e(f's_mul_i32 s{S_T0}, {sidx}, {FLAG_STRIDE}\ns_add_u32 s{S_T0}, s{S_T0}, {base}')
        e(f'v_mov_b32 v{v}, s{S_NONCE}\nv_mov_b32 v{v+1}, s{S_T0}')
        e(f's_mov_b64 s[{S_M1}:{S_M1+1}], exec\ns_mov_b64 exec, 1')
        e(f'buffer_store_dword v{v}, v{v+1}, s[{R_WS}:{R_WS+3}], 0 offen sc1')
        e(f's_mov_b64 exec, s[{S_M1}:{S_M1+1}]')
        V.free(v, 2)
        self.label(lab)

    def rbf(self, d, s, pre=''):
        self.e(f'v_cvt_pk_bf16_f32 v{d}, v{s}, v{s}\nv_lshlrev_b32 v{d}, 16, v{d}')
    def ln_finalize(self, S, Q, dm, ds_, dt):
        e = self.e
        e(f'v_mul_f32 v{S}, {fx(1/448)}, v{S}')
        e(f'v_mul_f32 v{Q}, {fx(1/448)}, v{Q}')
        e(f'v_fma_f32 v{Q}, -v{S}, v{S}, v{Q}')
        e(f'v_max_f32 v{Q}, 0, v{Q}')
        self.rbf(dm, S)
        self.rbf(dt, Q)
        e(f'v_add_f32 v{dt}, {fx(1e-5)}, v{dt}')
        self.rbf(dt, dt)
        e(f'v_sqrt_f32 v{dt}, v{dt}')
        self.rbf(ds_, dt)

    def w1_setup(self):
        e = self.e; V = self.V
        self.vW1 = V.alloc(1); self.vTS = V.alloc(5)
        t = V.alloc(1); t2 = V.alloc(1)
        e(f'v_lshrrev_b32 v{t}, 4, v1\nv_mul_u32_u24 v{self.vW1}, 3584, v{t}\nv_lshlrev_b32 v{t}, 2, v{t}\nv_and_b32 v{t2}, 15, v1\nv_xor_b32 v{t}, v{t}, v{t2}\nv_lshl_add_u32 v{self.vW1}, v{t}, 4, v{self.vW1}')
        e(f's_lshl_b32 s{S_T0}, s{S_FB}, 8\ns_mul_i32 s{S_T1}, s{S_W}, {4*3584}\ns_add_u32 s{S_T0}, s{S_T0}, s{S_T1}\nv_add_u32 v{self.vW1}, s{S_T0}, v{self.vW1}')
        e(f's_lshl_b32 s{S_WM}, s{S_W}, 10\ns_add_u32 s{S_WM}, s{S_WM}, {L_STG}')
        a = self.vTS
        e(f'v_lshrrev_b32 v{t}, 5, v1\nv_lshlrev_b32 v{a}, 10, v{t}\nv_bfe_u32 v{t}, v1, 2, 2\nv_lshl_add_u32 v{a}, v{t}, 8, v{a}')
        e(f'v_xor_b32 v{t}, s{S_W}, v{t}\nv_lshl_add_u32 v{a}, v{t}, 6, v{a}')
        e(f'v_bfe_u32 v{t}, v1, 4, 1\nv_lshl_add_u32 v{a}, v{t}, 5, v{a}\nv_and_b32 v{t}, 3, v1\nv_lshl_add_u32 v{a}, v{t}, 3, v{a}')
        e(f'v_add_u32 v{a+1}, {L_STGX}, v{a}\nv_add_u32 v{a+2}, {L_STG + 65536}, v{a}\nv_add_u32 v{a+3}, 57344, v{a}\nv_mov_b32 v{a+4}, v{a}\nv_add_u32 v{a}, {L_STG}, v{a}')
        for q in range(4):
            e(f's_add_u32 s{S_T0}, s{S_ROT}, {q}\ns_and_b32 s{S_T0}, s{S_T0}, 3\ns_mul_i32 s{S_Q0+q}, s{S_T0}, {7*16*3584}')
        V.free(t); V.free(t2)
    @property
    def W1SLOT(self):
        if self.o.get('xg', True): return [0,1,2,3,4, 5,6,7,8,9, 0,1,2,3, 4,5,6,7,8,9, 10,11, 12,13,14,15,16,17]
        return [0,1,2,3,4, 5,6,7,8,9, 0,1,2,3,4, 0,1,2,3,5,6,7,8,9, 10,11,12,13]
    def w1_slot_off(self, k):
        s = self.W1SLOT[k]
        return s * STG_SLOT if s < 9 else (L_STGX - L_STG if s == 9 else (57344 + (s - 10)*STG_SLOT - L_STG if s < 12 else (s - 12)*STG_SLOT - L_STG))
    def w1_dma(self, k, tag, slot=None):
        e = self.e; sl = self.w1_slot_off(k)
        def m0(x): return f's_add_u32 m0, s{S_WM}, {x}' if x >= 0 else f's_sub_u32 m0, s{S_WM}, {-x}'
        return [lambda: e(f's_add_u32 s{S_WO}, s{S_Q0 + k // 7}, {(k % 7)*16*3584}'),
                lambda: e(m0(sl)),
                lambda: self.vmem(f'buffer_load_dwordx4 v{self.vW1}, s[{R_WG}:{R_WG+3}], s{S_WO} offen lds', tag),
                lambda: e(m0(sl + 4096)),
                lambda: self.vmem(f'buffer_load_dwordx4 v{self.vW1}, s[{R_WU}:{R_WU+3}], s{S_WO} offen lds', tag)]
    def w1_issue(self, k0, k1, tag):
        for k in range(k0, k1):
            for f in self.w1_dma(k, tag): f()
    def w1_reads(self, k):
        s = self.W1SLOT[k]
        if s == 9: a, sl = self.vTS + 1, 0
        elif s >= 12: a, sl = self.vTS + 4, (s - 12) * STG_SLOT
        elif s >= 10: a, sl = self.vTS + 3, (s - 10) * STG_SLOT
        else: a, sl = self.vTS, s * STG_SLOT
        assert sl + 6144 < 65536 + 8192
        out = []
        for q in range(4):
            off = sl + 2048 * q
            aa = a
            if off >= 65536: aa, off = self.vTS + 2, off - 65536
            out.append(lambda q=q, aa=aa, off=off: self.ds(f'ds_read_b64_tr_b16 {ar(8*k+2*q,2)}, v{aa} offset:{off}', 'w1r'))
        return out
    def w1_read(self, k0, k1):
        for k in range(k0, k1):
            for f in self.w1_reads(k): f()

    def phaseA(self):
        e = self.e; V = self.V; o = self.o
        self.c('================= phase A')
        par = V.alloc(6); t0 = V.alloc(1); t1 = V.alloc(1)
        e(f's_lshl_b32 s{S_T1}, s{S_CP}, 10\nv_lshl_add_u32 v{t0}, v0, 2, s{S_T1}\ns_lshl_b32 s{S_T0}, s{S_CP}, 2')
        e('s_waitcnt lgkmcnt(0)')
        for i, sp in enumerate((S_ARE, S_AIM, S_BRE, S_BIM, S_CRE, S_CIM)):
            self.vmem(f'global_load_dword v{par+i}, v{t0}, s[{sp}:{sp+1}]', 'par')
        e(f's_load_dword s{S_LD}, s[{S_LDT}:{S_LDT+1}], s{S_T0}\ns_load_dword s{S_DK}, s[{S_DSK}:{S_DSK+1}], s{S_T0}')
        self.srds()
        e(f's_mov_b32 s{S_TS+6}, s{S_M0}')
        self.stamp(0)
        XG = o.get('xg', True)
        xg = V.alloc(8); xa0 = V.alloc(1); xa1 = V.alloc(1)
        e(f's_lshl_b32 s{S_T0}, s{S_CP}, 2\nv_mul_u32_u24 v{xa0}, 7168, v0\nv_add_u32 v{xa0}, s{S_T0}, v{xa0}\nv_add_u32 v{xa1}, 4480, v{xa0}')
        def xgather(k):
            if k < 5: self.vmem(f'buffer_load_dword v{xg+k}, v{xa0}, s[{R_X}:{R_X+3}], 0 offen offset:{896*k}', 'xg')
            else: self.vmem(f'buffer_load_dword v{xg+k}, v{xa1}, s[{R_X}:{R_X+3}], 0 offen offset:{896*(k-5)}', 'xg')
        self.xgather = xgather
        tch = V.alloc(4); self.tch = tch
        if o.get('touch_x', True):
            e(f's_lshl_b32 s{S_T0}, s{S_J}, 6\ns_lshl_b32 s{S_T1}, s{S_W}, 4\ns_add_u32 s{S_T0}, s{S_T0}, s{S_T1}')
            e(f'v_add_u32 v{tch}, s{S_T0}, v1\nv_mul_u32_u24 v{tch+1}, 9363, v{tch}\nv_lshrrev_b32 v{tch+1}, 16, v{tch+1}')
            e(f'v_mul_u32_u24 v{tch+2}, 7, v{tch+1}\nv_sub_u32 v{tch}, v{tch}, v{tch+2}\ns_lshl_b32 s{S_T0}, s{S_XCD}, 8\nv_add_u32 v{tch+1}, s{S_T0}, v{tch+1}')
            e(f'v_mul_u32_u24 v{tch+1}, 896, v{tch+1}\nv_lshl_add_u32 v{tch+1}, v{tch}, 7, v{tch+1}')
            e(f's_mov_b64 s[{S_M1}:{S_M1+1}], exec\ns_mov_b64 exec, 0xffff')
            self.vmem(f'buffer_load_dword v{tch+3}, v{tch+1}, s[{R_X}:{R_X+3}], 0 offen', 'tx')
            e(f's_mov_b64 exec, s[{S_M1}:{S_M1+1}]')
        self.map_bc()
        if o.get('touch_w1', False):
            e(f'v_mul_u32_u24 v{t1}, 4682, v0\nv_lshrrev_b32 v{t1}, 16, v{t1}\nv_mul_u32_u24 v{tch}, 14, v{t1}\nv_sub_u32 v{tch}, v0, v{tch}')
            e(f's_lshl_b32 s{S_T0}, s{S_J}, 4\nv_add_u32 v{t1}, s{S_T0}, v{t1}\nv_mul_u32_u24 v{t1}, 3584, v{t1}\nv_lshl_add_u32 v{t1}, v{tch}, 7, v{t1}')
            e(f's_and_b32 s{S_T0}, s{S_XCD}, 1\ns_mul_i32 s{S_T0}, s{S_T0}, 1792\nv_add_u32 v{t1}, s{S_T0}, v{t1}')
            e(f'v_cmp_gt_u32 vcc, 224, v0\ns_and_saveexec_b64 s[{S_M1}:{S_M1+1}], vcc')
            la = self.lab('tw'); e(f's_cbranch_execz {la}')
            self.vmem(f'buffer_load_dword v{tch}, v{t1}, s[{R_WG}:{R_WG+3}], 0 offen', 'tw')
            self.vmem(f'buffer_load_dword v{tch+1}, v{t1}, s[{R_WU}:{R_WU+3}], 0 offen', 'tw')
            self.label(la); e(f's_mov_b64 exec, s[{S_M1}:{S_M1+1}]')
        self.w1_setup()
        TW = o.get('touch_w1', False)
        if XG:
            for k in range(o.get('xg0', 3)): xgather(k)
        elif not TW: self.w1_issue(0, o.get('w0', 2), 'wa')
        self.stamp(1)
        ga = V.alloc(12, 2)
        self.ga = ga
        e(f'v_lshlrev_b32 v{t0}, 3, v0\nv_sub_u32 v{t0}, 2048, v{t0}')
        for k in range(1, 12):
            e(f'v_subrev_u32 v{ga+k-1}, {k}, v{t0}')
        e(f'v_mov_b32 v{ga+11}, 0')
        tt = V.alloc(2, 2)
        for k in range(0, 12, 2):
            a, b = ga + k, ga + k + 1
            e(f'v_max_i32 v{tt}, 0, v{a}\nv_max_i32 v{tt+1}, 0, v{b}')
            e(f'v_cvt_f32_u32 v{tt}, v{tt}\nv_cvt_f32_u32 v{tt+1}, v{tt+1}')
            e(f'v_cvt_pk_bf16_f32 v{t1}, v{tt}, v{tt+1}')
            e(f'v_lshlrev_b32 v{tt}, 16, v{t1}\nv_and_b32 v{tt+1}, 0xffff0000, v{t1}')
            e(f'v_cvt_u32_f32 v{tt}, v{tt}\nv_cvt_u32_f32 v{tt+1}, v{tt+1}')
            for x, r in ((tt, a), (tt + 1, b)):
                e(f'v_lshrrev_b32 v{t1}, 3, v{x}\nv_add_u32 v{x}, v{x}, v{t1}')
                if k >= 8:
                    e(f'v_cmp_gt_i32 vcc, 0, v{r}\nv_mov_b32 v{t1}, 2320\nv_cndmask_b32 v{x}, v{x}, v{t1}, vcc')
                e(f'v_lshlrev_b32 v{x}, 2, v{x}\nv_add_u32 v{r}, {L_K32}, v{x}')
        V.free(tt, 2)
        e('s_waitcnt lgkmcnt(0)'); self.lg.drain()
        e(f's_lshr_b32 s{S_T0}, s{S_W}, 1\ns_lshl_b32 s{S_T0}, s{S_T0}, 4')
        e(f's_lshr_b32 s{S_LD}, s{S_LD}, s{S_T0}\ns_lshl_b32 s{S_LD}, s{S_LD}, 16')
        e(f's_lshr_b32 s{S_DK}, s{S_DK}, s{S_T0}\ns_lshl_b32 s{S_DK}, s{S_DK}, 16')
        dt = V.alloc(2, 2); tt = V.alloc(2, 2)
        L_hi = struct.unpack('<f', struct.pack('<f', LOG2E))[0]; L_lo = LOG2E - L_hi
        e(f'v_mov_b32 v{dt}, s{S_LD}\nv_mul_f32 v{tt}, {fx(L_hi)}, v{dt}')
        e(f's_mov_b32 s{S_T1}, {fx(L_hi)}')
        e(f'v_fma_f32 v{tt+1}, v{dt}, s{S_T1}, -v{tt}\nv_fmac_f32 v{tt+1}, {fx(L_lo)}, v{dt}')
        e(f'v_exp_f32 v{tt}, v{tt}\nv_mul_f32 v{tt+1}, {fx(math.log(2))}, v{tt+1}')
        e(f'v_fma_f32 v{dt}, v{tt}, v{tt+1}, v{tt}')
        self.rbf(dt, dt)
        V.free(tt, 2)
        ka = self.kgen_setup()
        cv = self.conv_setup()
        xo = V.alloc(1)
        e(f's_lshr_b32 s{S_T0}, s{S_CP}, 2\ns_lshl_b32 s{S_T0}, s{S_T0}, 15\ns_and_b32 s{S_T1}, s{S_CP}, 3\ns_lshl_b32 s{S_T1}, s{S_T1}, 5\ns_add_u32 s{S_T0}, s{S_T0}, s{S_T1}\ns_add_u32 s{S_T0}, s{S_T0}, {WS_XT}\nv_lshl_add_u32 v{xo}, v0, 7, s{S_T0}')
        sa = V.alloc(1); nv = V.alloc(2, 2); lp = V.alloc(2, 2)
        e(f'v_lshlrev_b32 v{sa}, 6, v0\nv_mov_b32 v{nv+1}, 0')
        e(f'v_and_b32 v{lp+1}, 31, v1\nv_lshlrev_b32 v{lp+1}, 7, v{lp+1}\ns_lshl_b32 s{S_T0}, s{S_W}, 12\ns_add_u32 s{S_T0}, s{S_T0}, {WS_STATS + 4}\nv_add_u32 v{lp+1}, s{S_T0}, v{lp+1}')
        if WS_STATS: e(f'v_add_u32 v{sa}, {WS_STATS}, v{sa}')
        xs = list(range(o.get('xg0', 3), 8))
        if XG and xs: xgather(xs.pop(0))
        self.wait_vm('par')
        self.stamp(2)
        save_lines = self.lines; self.lines = []
        sc = V.alloc(12, 2)
        e(f'v_lshlrev_b32 v{sc+4}, 16, v{par+2}\nv_and_b32 v{sc+6}, 0xffff0000, v{par+2}')
        e(f'v_lshlrev_b32 v{sc+5}, 16, v{par+3}\nv_and_b32 v{sc+7}, 0xffff0000, v{par+3}')
        e(f'v_lshlrev_b32 v{sc+8}, 16, v{par+4}\nv_and_b32 v{sc+10}, 0xffff0000, v{par+4}')
        e(f'v_lshlrev_b32 v{sc+9}, 16, v{par+5}\nv_and_b32 v{sc+11}, 0xffff0000, v{par+5}')
        e(f'v_lshlrev_b32 v{sc}, 16, v{par}\nv_and_b32 v{sc+1}, 0xffff0000, v{par}')
        e(f'v_lshlrev_b32 v{sc+2}, 16, v{par+1}\nv_and_b32 v{sc+3}, 0xffff0000, v{par+1}')
        V.free(par, 6)
        for i in (4, 5, 6, 7, 0, 1, 2, 3): e(f'v_mul_f32 v{sc+i}, v{dt}, v{sc+i}')
        V.free(dt, 2)
        Q = lambda: V.alloc(4, 4)
        tq = Q(); pkt = V.alloc(4, 2); npk = [0]
        def qmul(d, a, b):
            self.cmul_multi([(d, a, b, None), (d + 2, a + 2, b + 2, None)])
        CB = Q()
        qmul(CB, sc + 8, sc + 4)
        mx = V.alloc(2, 2)
        e(f'v_max_f32 v{mx}, |v{CB}|, |v{CB+1}|\nv_max_f32 v{mx+1}, |v{CB+2}|, |v{CB+3}|')
        e(f'v_mul_f32 v{sc}, {fx(LOG2E)}, v{sc}\nv_mul_f32 v{sc+1}, {fx(LOG2E)}, v{sc+1}')
        e(f'v_max_f32 v{mx}, v{mx}, v{mx+1}')
        e(f'v_mul_f32 v{sc+2}, {fx(1/(2*math.pi))}, v{sc+2}\nv_mul_f32 v{sc+3}, {fx(1/(2*math.pi))}, v{sc+3}')
        for mod in ('quad_perm:[1,0,3,2]', 'quad_perm:[2,3,0,1]', 'row_half_mirror', 'row_mirror'):
            e(f'v_max_f32_dpp v{mx}, v{mx}, v{mx} {mod} row_mask:0xf bank_mask:0xf')
        for swap in ('v_permlane16_swap_b32', 'v_permlane32_swap_b32'):
            e(f'v_mov_b32 v{mx+1}, v{mx}\n{swap} v{mx}, v{mx+1}\nv_max_f32 v{mx}, v{mx}, v{mx+1}')
        e(f'v_readfirstlane_b32 s{S_T0}, v{mx}')
        e(f's_lshr_b32 s{S_T0}, s{S_T0}, 23\ns_max_u32 s{S_T0}, s{S_T0}, 14\ns_min_u32 s{S_T0}, s{S_T0}, 254')
        e(f's_sub_u32 s{S_T1}, 267, s{S_T0}\ns_lshl_b32 s{S_T1}, s{S_T1}, 23\ns_sub_u32 s{S_US}, s{S_T0}, 13\ns_lshl_b32 s{S_US}, s{S_US}, 23')
        V.free(mx, 2)
        if XG:
            if xs: xgather(xs.pop(0))
        elif not TW: self.w1_issue(o.get('w0', 2), 5, 'wa2')
        def direct(dst, ex):
            for m in range(2):
                if ex == 1:
                    e(f'v_exp_f32 v{tq+m}, v{sc+m}\nv_fract_f32 v{tq+2+m}, v{sc+2+m}')
                else:
                    e(f'v_mul_f32 v{tq+m}, {fx(float(ex))}, v{sc+m}\nv_mul_f32 v{tq+2+m}, {fx(float(ex))}, v{sc+2+m}')
            if ex != 1:
                for m in range(2): e(f'v_exp_f32 v{tq+m}, v{tq+m}\nv_fract_f32 v{tq+2+m}, v{tq+2+m}')
            for m in range(2):
                e(f'v_cos_f32 v{dst+2*m}, v{tq+2+m}\nv_sin_f32 v{dst+2*m+1}, v{tq+2+m}')
            for m in range(2):
                e(f'v_mul_f32 v{dst+2*m}, v{tq+m}, v{dst+2*m}\nv_mul_f32 v{dst+2*m+1}, v{tq+m}, v{dst+2*m+1}')
        wa = V.alloc(1)
        e(f'v_and_b32 v{wa}, 127, v0\nv_lshlrev_b32 v{wa}, 3, v{wa}\ns_lshr_b32 s{S_T0}, s{S_W}, 1\ns_mul_i32 s{S_T0}, s{S_T0}, {TBL_C}\nv_add_u32 v{wa}, s{S_T0}, v{wa}')
        def put(q, ent, conj=False):
            p = pkt + 2 * (npk[0] & 1); npk[0] += 1
            n = '-' if conj else ''
            e(f'v_cvt_pk_f16_f32 v{p}, v{q}, {n}v{q+1}\nv_cvt_pk_f16_f32 v{p+1}, v{q+2}, {n}v{q+3}')
            self.ds(f'ds_write_b64 v{wa}, {vr(p,2)} offset:{ent*TBL_E}')
        one = V.alloc(2, 2)
        e(f'v_mov_b32 v{one}, 0x3c00\nv_mov_b32 v{one+1}, 0x3c00')
        for ent in (0, 4, 12): self.ds(f'ds_write_b64 v{wa}, {vr(one,2)} offset:{ent*TBL_E}')
        V.free(one, 2)
        z1 = Q(); z2 = Q(); z3 = Q(); z4 = Q(); CS = Q()
        direct(z1, 1); put(z1, 1)
        for m in range(4): e(f'v_mul_f32 v{CS+m}, s{S_T1}, v{CB+m}')
        put(CS, 8, True)
        qmul(z2, z1, z1); put(z2, 2)
        qmul(z3, z2, z1); put(z3, 3)
        qmul(z4, z2, z2); put(z4, 5)
        qmul(z1, z4, z4); put(z1, 6)
        qmul(z2, z1, z4); put(z2, 7)
        qmul(z3, z1, z1); put(z3, 16)
        qmul(z1, z3, z3)
        qmul(z4, CS, z1); put(z4, 9, True)
        qmul(z2, z1, z1)
        qmul(z4, CS, z2); put(z4, 10, True)
        qmul(z3, z2, z1)
        qmul(z4, CS, z3); put(z4, 11, True)
        qmul(z1, z2, z2); put(z1, 13, True)
        qmul(z2, z1, z1); put(z2, 14, True)
        qmul(z3, z2, z1); put(z3, 15, True)
        qmul(z1, z2, z2); put(z1, 17, True)
        if XG and xs: xgather(xs.pop(0))
        self.xs = xs
        qmul(z2, z1, z1)
        qmul(z3, z2, z2)
        c48 = V.alloc(2, 2)
        e(f'v_mul_f32 v{c48}, v{CB}, v{z3}\nv_fma_f32 v{c48}, -v{CB+1}, v{z3+1}, v{c48}')
        e(f'v_fmac_f32 v{c48}, v{CB+2}, v{z3+2}\nv_fma_f32 v{c48}, -v{CB+3}, v{z3+3}, v{c48}')
        for q in (z1, z2, z3, z4, CB, CS, tq): V.free(q, 4)
        V.free(sc, 12); V.free(wa); V.free(pkt, 4)
        for mod in ('quad_perm:[1,0,3,2]', 'quad_perm:[2,3,0,1]', 'row_half_mirror', 'row_mirror'):
            e(f'v_add_f32_dpp v{c48}, v{c48}, v{c48} {mod} row_mask:0xf bank_mask:0xf')
        for swap in ('v_permlane16_swap_b32', 'v_permlane32_swap_b32'):
            e(f'v_mov_b32 v{c48+1}, v{c48}\n{swap} v{c48}, v{c48+1}\nv_add_f32 v{c48}, v{c48}, v{c48+1}')
        fl = self.lines; self.lines = save_lines
        self.lines.extend(resched(fl) if o.get('resched', True) else fl)
        if not TW and not XG: self.wait_vm('wa')
        self.wait_all_lg(); e('s_barrier')
        self.stamp(3)
        sg = V.alloc(16, 4); XP = V.alloc(8, 4)
        def light_loads(model=True):
            a = f'buffer_load_dword v{nv}, v{nv+1}, s[{R_DBG}:{R_DBG+3}], 0 offen sc1'
            b = f'buffer_load_dword v{lp}, v{lp+1}, s[{R_WS}:{R_WS+3}], 0 offen sc1'
            if model: self.vmem(a, 'lp'); self.vmem(b, 'lp')
            else: e(a); e(b)
        def light_wait():
            l0 = self.lab('lp'); l1 = self.lab('lpd'); l2 = self.lab('lpr')
            self.wait_vm('lp')
            e(f's_mov_b32 s{S_CNT}, 0')
            self.label(l0)
            e(f'v_readfirstlane_b32 s{S_NONCE}, v{nv}')
            e(f's_cmp_eq_u32 s{S_NONCE}, 0\ns_cbranch_scc1 {l2}')
            e(f'v_cmp_ne_u32 vcc, s{S_NONCE}, v{lp}\ns_cbranch_vccz {l1}')
            self.label(l2)
            e(f's_sleep {o.get("lsleep", 2)}')
            light_loads(False)
            e('s_waitcnt vmcnt(0)')
            e(f's_add_u32 s{S_CNT}, s{S_CNT}, 1\ns_cmp_lt_u32 s{S_CNT}, {SPIN_MAX}\ns_cbranch_scc1 {l0}')
            self.label(l1)
        def data_loads():
            for i in range(4): self.vmem(f'buffer_load_dwordx4 {vr(sg+4*i,4)}, v{sa}, s[{R_WS}:{R_WS+3}], 0 offen offset:{16*i} sc1', 'sg')
            self.vmem(f'buffer_load_dwordx4 {vr(XP,4)}, v{xo}, s[{R_WS}:{R_WS+3}], 0 offen sc1', 'sg')
            self.vmem(f'buffer_load_dwordx4 {vr(XP+4,4)}, v{xo}, s[{R_WS}:{R_WS+3}], 0 offen offset:16 sc1', 'sg')
        EARLY = o.get('early', True)
        self.light_loads = light_loads
        def full_poll():
            return [lambda: self.vmem(f'buffer_load_dword v{nv}, v{nv+1}, s[{R_DBG}:{R_DBG+3}], 0 offen sc1', 'sg')] + \
                   [lambda i=i: self.vmem(f'buffer_load_dwordx4 {vr(sg+4*i,4)}, v{sa}, s[{R_WS}:{R_WS+3}], 0 offen offset:{16*i} sc1', 'sg') for i in range(4)]
        self.full_poll = full_poll
        def after_main():
            if XG: return
            if EARLY: light_wait(); data_loads()
            else: light_loads()
            if TW: self.wait_vm('wa')
            else: self.wait_vm('wa2')
        def after_b2a():
            if XG:
                self.w1_issue(3, 5, 'wa'); return
            if TW: self.w1_read(0, 5)
            else: self.w1_read(o.get('w0', 2), 5)
            self.w1_issue(8, 9, 'wb')
        self.kgen_main(ka, c48, after_main, after_b2a)
        V.free(c48, 2)
        self.wait_all_lg(); e('s_barrier')
        self.stamp(4)
        gat = self.expand_gather()
        if not XG and not EARLY: light_wait(); data_loads()
        V.free(lp, 2)
        self.stamp(7)
        if XG: self.w1_issue(5, 6, 'wb')
        else: self.w1_issue(9, 10, 'wb')
        self.expand_write(gat)
        if XG: self.w1_issue(6, 7, 'wb')
        else: self.w1_issue(10, 11, 'wc')
        self.stamp(5)
        if XG:
            self.wait_vm('xg')
            e(f's_mov_b32 s{S_T0}, 0x05040100\ns_mov_b32 s{S_T1}, 0x07060302')
            for d in range(4):
                e(f'v_perm_b32 v{XP+d}, v{xg+2*d+1}, v{xg+2*d}, s{S_T0}\nv_perm_b32 v{XP+4+d}, v{xg+2*d+1}, v{xg+2*d}, s{S_T1}')
            self.verify_stats(sg, sa, nv, with_nonce=True)
        else: self.verify_stats(sg, sa, nv)
        V.free(nv, 2); V.free(xo); V.free(xg, 8); V.free(xa0); V.free(xa1)
        self.region(lambda: self.normalize(XP, sg))
        V.free(sg, 16); V.free(sa); V.free(XP, 8)
        if XG: self.wait_vm('wa')
        self.wait_all_lg(); e('s_barrier')
        self.stamp(6)
        if XG: self.w1_read(0, 5)
        if o.get('touch_wd2', False):
            ta = V.alloc(2)
            for q in range(2):
                e(f'v_add_u32 v{ta}, {224*q}, v0\nv_mul_u32_u24 v{ta+1}, 9363, v{ta}\nv_lshrrev_b32 v{ta+1}, 16, v{ta+1}\nv_mul_u32_u24 v{tch+q}, 7, v{ta+1}\nv_sub_u32 v{ta}, v{ta}, v{tch+q}')
                e(f's_lshl_b32 s{S_T0}, s{S_J}, 6\nv_add_u32 v{ta+1}, s{S_T0}, v{ta+1}\nv_mul_u32_u24 v{ta+1}, 896, v{ta+1}\nv_lshl_add_u32 v{ta+1}, v{ta}, 7, v{ta+1}')
                e(f'v_cmp_gt_u32 vcc, 224, v0\ns_and_saveexec_b64 s[{S_M1}:{S_M1+1}], vcc')
                la = self.lab('td'); e(f's_cbranch_execz {la}')
                e(f'buffer_load_dword v{tch+2+q}, v{ta+1}, s[{R_WD}:{R_WD+3}], 0 offen')
                self.label(la); e(f's_mov_b64 exec, s[{S_M1}:{S_M1+1}]')
            V.free(ta, 2)
        fill = []
        for k in (range(7, 10) if XG else range(11, 14)): fill += self.w1_dma(k, 'wc')
        self.conv(cv, fill)
        V.free(t0); V.free(t1)
        self.stamp(8)
        self.wait_vm('ht'); self.wait_all_lg(); e('s_barrier')
        self.signal(WS_FLAG2, 's2')
        self.stamp(9)
        V.free(tch, 4)
        self.cs = V.alloc(32, 4); self.ones = V.alloc(4, 4)
        for i in range(4): e(f'v_mov_b32 v{self.ones+i}, 0x3f803f80')
        _, setup = self.capture(self.phaseB_setup)
        self.K0 = 10 if XG else 14
        dma = [f for k in range(14 if XG else 15, 28) for f in self.w1_dma(k, 'we')]
        mains = []
        for k in range(self.K0):
            for u in range(2):
                c = '0' if k == 0 else vr(self.cs + 16*u, 16)
                mains.append(([], lambda k=k, u=u, c=c: e(f'v_mfma_f32_32x32x16_bf16 {vr(self.cs+16*u,16)}, {ar(8*k+4*u,4)}, {vr(self.ones,4)}, {c}'), 32, []))
        merged = []
        while dma or setup:
            for _ in range(2):
                if dma: merged.append(dma.pop(0))
            for _ in range(5):
                if setup: merged.append(setup.pop(0))
        self.sched(mains, [(x, 1) for x in merged])
        self.stamp(12)

    def cs_mfma(self, k0, k1):
        for k in range(k0, k1):
            for u in range(2):
                c = '0' if k == 0 else vr(self.cs + 16*u, 16)
                self.e(f'v_mfma_f32_32x32x16_bf16 {vr(self.cs+16*u,16)}, {ar(8*k+4*u,4)}, {vr(self.ones,4)}, {c}')

    def verify_stats(self, sg, sa, nv, with_nonce=False):
        e = self.e; V = self.V
        l0 = self.lab('sp'); l1 = self.lab('spd')
        t = V.alloc(2)
        self.wait_vm('sg')
        e(f's_mov_b32 s{S_CNT}, 0')
        self.label(l0)
        l2 = self.lab('spr')
        if with_nonce:
            e(f'v_readfirstlane_b32 s{S_NONCE}, v{nv}')
            e(f's_cmp_eq_u32 s{S_NONCE}, 0\ns_cbranch_scc1 {l2}')
        e(f'v_min3_u32 v{t}, v{sg+1}, v{sg+3}, v{sg+5}\nv_max3_u32 v{t+1}, v{sg+1}, v{sg+3}, v{sg+5}')
        e(f'v_min3_u32 v{t}, v{t}, v{sg+7}, v{sg+9}\nv_max3_u32 v{t+1}, v{t+1}, v{sg+7}, v{sg+9}')
        e(f'v_min3_u32 v{t}, v{t}, v{sg+11}, v{sg+13}\nv_max3_u32 v{t+1}, v{t+1}, v{sg+11}, v{sg+13}')
        e(f'v_min_u32 v{t}, v{t}, v{sg+15}\nv_max_u32 v{t+1}, v{t+1}, v{sg+15}')
        e(f'v_xor_b32 v{t}, s{S_NONCE}, v{t}\nv_xor_b32 v{t+1}, s{S_NONCE}, v{t+1}\nv_or_b32 v{t}, v{t}, v{t+1}\nv_cmp_ne_u32 vcc, 0, v{t}')
        e(f's_cbranch_vccz {l1}')
        self.label(l2)
        if with_nonce: e(f's_sleep 2\nbuffer_load_dword v{nv}, v{nv+1}, s[{R_DBG}:{R_DBG+3}], 0 offen sc1')
        for i in range(4): e(f'buffer_load_dwordx4 {vr(sg+4*i,4)}, v{sa}, s[{R_WS}:{R_WS+3}], 0 offen offset:{16*i} sc1')
        e('s_waitcnt vmcnt(0)')
        e(f's_add_u32 s{S_CNT}, s{S_CNT}, 1\ns_cmp_lt_u32 s{S_CNT}, {SPIN_MAX}\ns_cbranch_scc1 {l0}')
        self.label(l1)
        V.free(t, 2)

    def map_bc(self):
        e = self.e
        if self.o.get('mapB', '47') == 'rows':
            e(f's_cmp_ge_u32 s{S_J}, 14\ns_cselect_b32 s{S_T0}, 1, 0\ns_lshl_b32 s{S_RB}, s{S_XCD}, 1\ns_add_u32 s{S_RB}, s{S_RB}, s{S_T0}')
            e(f's_mul_i32 s{S_T0}, s{S_T0}, 14\ns_sub_u32 s{S_FB}, s{S_J}, s{S_T0}')
        else:
            e(f's_mul_i32 s{S_T0}, s{S_J}, 37\ns_lshr_b32 s{S_T0}, s{S_T0}, 8')
            e(f's_lshr_b32 s{S_RB}, s{S_XCD}, 1\ns_lshl_b32 s{S_RB}, s{S_RB}, 2\ns_add_u32 s{S_RB}, s{S_RB}, s{S_T0}')
            e(f's_mul_i32 s{S_T0}, s{S_T0}, 7\ns_sub_u32 s{S_FB}, s{S_J}, s{S_T0}\ns_and_b32 s{S_T0}, s{S_XCD}, 1\ns_mul_i32 s{S_T0}, s{S_T0}, 7\ns_add_u32 s{S_FB}, s{S_FB}, s{S_T0}')
        if self.o.get('rot', True): e(f's_and_b32 s{S_ROT}, s{S_RB}, 3')
        else: e(f's_mov_b32 s{S_ROT}, 0')
        e(f's_mul_i32 s{S_T0}, s{S_J}, 37\ns_lshr_b32 s{S_T0}, s{S_T0}, 8')
        e(f's_lshl_b32 s{S_RB2}, s{S_XCD}, 2\ns_add_u32 s{S_RB2}, s{S_RB2}, s{S_T0}\ns_mul_i32 s{S_T0}, s{S_T0}, 7\ns_sub_u32 s{S_DB}, s{S_J}, s{S_T0}')

    def kgen_setup(self):
        e = self.e; V = self.V
        aLo = V.alloc(1); aHi = V.alloc(1); aC = V.alloc(1); t = V.alloc(1)
        aEx = V.alloc(2); aS = V.alloc(2); aK = V.alloc(2)
        e(f's_lshr_b32 s{S_T0}, s{S_W}, 1\ns_mul_i32 s{S_T0}, s{S_T0}, {TBL_C}\ns_and_b32 s{S_T1}, s{S_W}, 1\ns_lshl_b32 s{S_T1}, s{S_T1}, 9\ns_add_u32 s{S_T0}, s{S_T0}, s{S_T1}')
        e(f'v_lshrrev_b32 v{t}, 4, v1\nv_lshlrev_b32 v{aC}, 4, v{t}\nv_add_u32 v{aC}, s{S_T0}, v{aC}')
        e(f'v_and_b32 v{t}, 3, v1\nv_mul_u32_u24 v{t}, {TBL_E}, v{t}\nv_add_u32 v{aLo}, v{aC}, v{t}')
        e(f'v_bfe_u32 v{t}, v1, 2, 2\nv_mul_u32_u24 v{t}, {TBL_E}, v{t}\nv_add_u32 v{aHi}, v{aC}, v{t}')
        e(f's_lshl_b32 s{S_T0}, s{S_W}, 12\ns_add_u32 s{S_T0}, s{S_T0}, {L_EX}\nv_lshl_add_u32 v{aEx}, v1, 4, s{S_T0}')
        e(f's_xor_b32 s{S_T1}, s{S_W}, 1\ns_lshl_b32 s{S_T0}, s{S_T1}, 12\ns_add_u32 s{S_T0}, s{S_T0}, {L_EX}\nv_lshl_add_u32 v{aEx+1}, v1, 4, s{S_T0}')
        e(f's_lshl_b32 s{S_T0}, s{S_W}, 2\ns_add_u32 s{S_T0}, s{S_T0}, {L_EX + 16384}\nv_mov_b32 v{aS}, s{S_T0}')
        e(f's_lshl_b32 s{S_T0}, s{S_T1}, 2\ns_add_u32 s{S_T0}, s{S_T0}, {L_EX + 16384}\nv_mov_b32 v{aS+1}, s{S_T0}')
        e(f'v_and_b32 v{aK}, 15, v1\nv_lshrrev_b32 v{t}, 3, v{aK}\nv_add_u32 v{aK}, v{aK}, v{t}')
        e(f'v_lshrrev_b32 v{t}, 4, v1\nv_mul_u32_u24 v{t}, 144, v{t}\nv_add_u32 v{aK}, v{aK}, v{t}\nv_lshlrev_b32 v{aK}, 2, v{aK}')
        e(f's_lshr_b32 s{S_T0}, s{S_W}, 1\ns_mul_i32 s{S_T0}, s{S_T0}, {K32_C}\ns_add_u32 s{S_T0}, s{S_T0}, {L_K32}\nv_mov_b32 v{aK+1}, s{S_T0}')
        e(f's_and_b32 s{S_T1}, s{S_W}, 1\ns_mul_i32 s{S_T1}, s{S_T1}, {4*576*2}\ns_add_u32 s{S_T1}, s{S_T1}, s{S_T0}\nv_add_u32 v{aK}, s{S_T1}, v{aK}')
        V.free(t)
        return (aLo, aHi, aC, aEx, aS, aK)

    def kgen_main(self, ka, c48, after_main, after_b2a):
        e = self.e; V = self.V
        self.c('---- kgen main (f16 operands)')
        aLo, aHi, aC, aEx, aS, aK = ka
        TB = [[V.alloc(4, 4) for _ in range(6)] for _ in range(2)]
        tmp = V.alloc(4, 4)
        PV = [[V.alloc(4, 4) for _ in range(2)] for _ in range(2)]
        PW = [V.alloc(4, 4) for _ in range(4)]
        D = [[V.alloc(4, 4) for s in range(2)] for t_ in range(4)]
        ents = ((aLo, 0), (aHi, 4), (aC, 16), (aLo, 8), (aHi, 12), (aC, 17))
        def rd(st, i):
            ad, ent = ents[i]
            self.ds(f'ds_read_b128 {vr(TB[st&1][i],4)}, v{ad} offset:{ent*TBL_E + st*64}', f'tb{st}')
        def cm(d, a, b):
            L = [f'v_pk_mul_f16 v{tmp+c}, v{a+c}, v{b+c} op_sel:[0,0] op_sel_hi:[0,1]' for c in range(4)]
            L += [f'v_pk_fma_f16 v{d+c}, v{a+c}, v{b+c}, v{tmp+c} op_sel:[1,1,0] op_sel_hi:[1,0,1] neg_lo:[0,1,0]' for c in range(4)]
            return L
        for i in range(6): rd(0, i)
        pend = []
        for st in range(8):
            T1, T2, Z16, T3, T4, Z512 = TB[st & 1]; pv = PV[st & 1]
            extra = []
            if st + 1 < 8: extra += [lambda i=i, st=st: rd(st + 1, i) for i in range(6)]
            if self.o.get('xg', True):
                if st in (1, 3, 4, 5) and self.xs: extra += [lambda k=self.xs.pop(0): self.xgather(k)]
                if st == self.o.get('pollstep', 6): extra += self.full_poll()
                wst = self.o.get('wst', [4, 6, 7])
                if st in wst: extra += self.w1_dma(wst.index(st), 'wa')
            else:
                if st == self.o.get('pollstep', 5) and self.o.get('early', True): extra += [lambda: self.light_loads()]
                if not self.o.get('touch_w1', False):
                    if st < self.o.get('w0', 2): extra += self.w1_reads(st)
                    ks = self.o.get('kdma', [0, 1, 2])
                    if st in ks: extra += self.w1_dma(5 + ks.index(st), 'wb')
                else:
                    extra += self.w1_dma(st, 'wa' if st < 5 else 'wb')
            self.wait_lg(f'tb{st}')
            blocks = [cm(pv[0], T1, T2), cm(pv[1], pv[0], Z16), cm(PW[0], T3, T4)]
            for tt in range(1, 4): blocks.append(cm(PW[tt], PW[tt-1], Z512))
            def popm():
                if pend:
                    pend.pop(0)()
                    for _ in range(2):
                        if extra: extra.pop(0)()
            for bi, ins in enumerate(blocks):
                for q, l in enumerate(ins):
                    e(l)
                    if q in (1, 5): popm()
                if bi >= 2:
                    tt = bi - 2
                    for s in range(2):
                        cin = '0' if st == 0 else vr(D[tt][s], 4)
                        pend.append(lambda tt=tt, s=s, cin=cin, pv=pv: e(f'v_mfma_f32_16x16x32_f16 {vr(D[tt][s],4)}, {vr(PW[tt],4)}, {vr(pv[s],4)}, {cin}'))
            while len(pend) > 2: popm()
            for x in extra: x()
        while pend: pend.pop(0)()
        self.stamp(13)
        after_main()
        us = V.alloc(2, 2)
        e(f'v_mov_b32 v{us}, s{S_US}')
        R4 = TB[0][:4]; Va = tmp
        def exch(half):
            snd = [(t_, s) for t_ in (2 - 2*half, 3 - 2*half) for s in range(2)]
            kp = [(t_, s) for t_ in (2*half, 2*half + 1) for s in range(2)]
            for i, (t_, s) in enumerate(snd):
                for r in (0, 2): e(f'v_pk_mul_f32 {vr(D[t_][s]+r,2)}, {vr(D[t_][s]+r,2)}, {vr(us,2)} op_sel_hi:[1,0]')
                self.ds(f'ds_write_b128 v{aEx}, {vr(D[t_][s],4)} offset:{1024*i}', 'exw')
            e(f's_mov_b64 s[{S_M1}:{S_M1+1}], exec\ns_mov_b64 exec, 1')
            self.ds(f'ds_write_b32 v{aS}, v{c48}', 'exw')
            e(f's_mov_b64 exec, s[{S_M1}:{S_M1+1}]')
            self.wait_all_lg()
            e('s_barrier')
            for i in range(4): self.ds(f'ds_read_b128 {vr(R4[i],4)}, v{aEx+1} offset:{1024*i}', f'ex{i}')
            self.ds(f'ds_read_b32 v{Va}, v{aS+1}', 'exc')
            for i, (t_, s) in enumerate(kp):
                self.wait_lg(f'ex{i}')
                for r in (0, 2): e(f'v_pk_fma_f32 {vr(D[t_][s]+r,2)}, {vr(D[t_][s]+r,2)}, {vr(us,2)}, {vr(R4[i]+r,2)} op_sel_hi:[1,0,1]')
                for r in range(4):
                    self.ds(f'ds_write_b32 v{aK}, v{D[t_][s]+r} offset:{4*(576*(i >> 1) + 36*r + 18*s)}')
            self.wait_lg('exc')
            e(f'v_add_f32 v{c48}, v{c48}, v{Va}\nv_mov_b32 v{c48+1}, 0')
            e(f's_mov_b64 s[{S_M1}:{S_M1+1}], exec\ns_mov_b64 exec, 1')
            self.ds(f'ds_write_b32 v{aK+1}, v{c48} offset:9216')
            self.ds(f'ds_write_b32 v{aK+1}, v{c48+1} offset:9280')
            e(f's_mov_b64 exec, s[{S_M1}:{S_M1+1}]')
        self.two_paths(exch)
        after_b2a()
        V.free(us, 2)
        for row in TB + PV:
            for x in row: V.free(x, 4)
        for x in PW: V.free(x, 4)
        V.free(tmp, 4)
        for row in D:
            for x in row: V.free(x, 4)
        for x in (aLo, aHi, aC): V.free(x)
        V.free(aEx, 2); V.free(aS, 2); V.free(aK, 2)

    def expand_gather(self):
        e = self.e; V = self.V; ga = self.ga
        self.c('---- expand K into 4 shifted bf16 copies')
        z = V.alloc(4, 4); t = V.alloc(1); t2 = V.alloc(1)
        g = V.alloc(22, 2)
        for i in range(4): e(f'v_mov_b32 v{z+i}, 0')
        e(f'v_lshrrev_b32 v{t}, 2, v0\nv_mul_u32_u24 v{t}, {KC_S}, v{t}\nv_and_b32 v{t2}, 3, v0\nv_lshl_add_u32 v{t}, v{t2}, 4, v{t}')
        e(f'v_cmp_gt_u32 vcc, 32, v0\ns_and_saveexec_b64 s[{S_M1}:{S_M1+1}], vcc')
        la = self.lab('zc'); e(f's_cbranch_execz {la}')
        e(f'ds_write_b128 v{t}, {vr(z,4)} offset:{L_KC + 4096}')
        self.label(la); e(f's_mov_b64 exec, s[{S_M1}:{S_M1+1}]')
        e(f'v_lshrrev_b32 v{t}, 6, v0\nv_mul_u32_u24 v{t}, {U_C}, v{t}\nv_lshl_add_u32 v{t}, v1, 4, v{t}')
        e(f'v_cmp_gt_u32 vcc, 128, v0\ns_and_saveexec_b64 s[{S_M1}:{S_M1+1}], vcc')
        la = self.lab('zu'); e(f's_cbranch_execz {la}')
        e(f'ds_write_b128 v{t}, {vr(z,4)} offset:{L_U}')
        self.label(la); e(f's_mov_b64 exec, s[{S_M1}:{S_M1+1}]')
        for k in range(11): self.ds(f'ds_read_b32 v{g+k}, v{ga+k} offset:0', 'g0')
        for k in range(11): self.ds(f'ds_read_b32 v{g+11+k}, v{ga+k} offset:{K32_C}', 'g1')
        V.free(t); V.free(t2); V.free(z, 4)
        return g
    def expand_write(self, g):
        e = self.e; V = self.V; ga = self.ga
        P = V.alloc(32, 4); wa = V.alloc(1)
        e(f'v_lshlrev_b32 v{wa}, 4, v0')
        for c in range(2):
            self.wait_lg(f'g{c}')
            v = lambda k: g + 11 * c + (k - 1)
            for sc_ in range(4):
                s = 4 - sc_
                for dd in range(4):
                    e(f'v_cvt_pk_bf16_f32 v{P+16*c+4*sc_+dd}, v{v(s+2*dd)}, v{v(s+2*dd+1)}')
                self.ds(f'ds_write_b128 v{wa}, {vr(P+16*c+4*sc_,4)} offset:{L_KC + c*KC_C + sc_*KC_S}')
        V.free(g, 22); V.free(P, 32); V.free(wa); V.free(ga, 12)

    def normalize(self, XP, sg):
        e = self.e; V = self.V
        self.c('---- LN1 normalize own columns')
        xa = V.alloc(16, 2)
        ms = V.alloc(16, 2)
        for k in range(8):
            e(f'v_lshlrev_b32 v{ms+k}, 16, v{sg+2*k}\nv_and_b32 v{ms+8+k}, 0xffff0000, v{sg+2*k}')
        for k in range(8): e(f'v_rcp_f32 v{ms+8+k}, v{ms+8+k}')
        wa = V.alloc(1); t = V.alloc(1)
        e(f'v_bfe_u32 v{t}, v0, 4, 1\nv_lshlrev_b32 v{t}, 1, v{t}\nv_xor_b32 v{wa}, v0, v{t}\nv_lshlrev_b32 v{wa}, 4, v{wa}')
        for c in range(2): self.ds(f'ds_write_b128 v{wa}, {vr(XP+4*c,4)} offset:{L_X + c*X_C}')
        for c in range(2):
            for d in range(4):
                e(f'v_lshlrev_b32 v{xa+8*c+2*d}, 16, v{XP+4*c+d}\nv_and_b32 v{xa+8*c+2*d+1}, 0xffff0000, v{XP+4*c+d}')
        UP = V.alloc(8, 4)
        for c in range(2):
            for d in range(4):
                x = xa + 8*c + 2*d
                e(f'v_pk_add_f32 {vr(x,2)}, {vr(x,2)}, {vr(ms+2*d,2)} neg_lo:[0,1] neg_hi:[0,1]')
            for d in range(4):
                x = xa + 8*c + 2*d
                e(f'v_cvt_pk_bf16_f32 v{x+1}, v{x}, v{x+1}')
            for d in range(4):
                x = xa + 8*c + 2*d
                e(f'v_lshlrev_b32 v{x}, 16, v{x+1}\nv_and_b32 v{x+1}, 0xffff0000, v{x+1}')
            for d in range(4):
                x = xa + 8*c + 2*d
                e(f'v_pk_mul_f32 {vr(x,2)}, {vr(x,2)}, {vr(ms+8+2*d,2)}')
            for d in range(4):
                x = xa + 8*c + 2*d
                e(f'v_cvt_pk_bf16_f32 v{UP+4*c+d}, v{x}, v{x+1}')
            self.ds(f'ds_write_b128 v{wa}, {vr(UP+4*c,4)} offset:{L_U + c*U_C + 1024}')
        V.free(ms, 16); V.free(xa, 16); V.free(UP, 8); V.free(wa); V.free(t)

    def conv_setup(self):
        e = self.e; V = self.V
        vF = V.alloc(1); vG = V.alloc(8); t = V.alloc(1); t2 = V.alloc(1)
        e(f's_lshr_b32 s{S_T0}, s{S_W}, 1\ns_mul_i32 s{S_T0}, s{S_T0}, {KC_C}\ns_and_b32 s{S_T1}, s{S_W}, 1\ns_lshl_b32 s{S_T2}, s{S_T1}, 9\ns_sub_u32 s{S_T0}, s{S_T0}, s{S_T2}\ns_add_u32 s{S_T0}, s{S_T0}, {L_KC + 24 + 512}')
        e(f'v_and_b32 v{t}, 3, v1\nv_mul_u32_u24 v{vF}, {KC_S}, v{t}')
        e(f'v_bfe_u32 v{t}, v1, 2, 2\nv_lshlrev_b32 v{t}, 3, v{t}\nv_sub_u32 v{vF}, v{vF}, v{t}')
        e(f'v_lshrrev_b32 v{t}, 4, v1\nv_lshl_add_u32 v{vF}, v{t}, 4, v{vF}\nv_add_u32 v{vF}, s{S_T0}, v{vF}')
        e(f's_lshr_b32 s{S_T0}, s{S_W}, 1\ns_mul_i32 s{S_T0}, s{S_T0}, {U_C}\ns_add_u32 s{S_T0}, s{S_T0}, {L_U}')
        e(f's_lshl_b32 s{S_T1}, s{S_T1}, 3')
        kg = V.alloc(1); col = V.alloc(1)
        e(f'v_lshrrev_b32 v{kg}, 4, v1\nv_and_b32 v{col}, 15, v1\nv_subrev_u32 v{col}, s{S_T1}, v{col}')
        for pp in range(8):
            e(f'v_add_u32 v{t}, {16 - pp}, v{col}')
            e(f'v_bfe_u32 v{t2}, v{t}, 2, 1\nv_lshlrev_b32 v{t2}, 1, v{t2}\nv_xor_b32 v{t2}, v{t2}, v{kg}')
            e(f'v_lshlrev_b32 v{t}, 6, v{t}\nv_lshl_add_u32 v{t}, v{t2}, 4, v{t}\nv_add_u32 v{vG+pp}, s{S_T0}, v{t}')
        V.free(kg); V.free(col)
        ua = V.alloc(1); xa_ = V.alloc(1); ra = V.alloc(2); sa = V.alloc(1)
        e(f'v_bfe_u32 v{t}, v1, 2, 1\nv_lshlrev_b32 v{t}, 1, v{t}\nv_lshrrev_b32 v{t2}, 4, v1\nv_xor_b32 v{t}, v{t}, v{t2}')
        e(f'v_and_b32 v{t2}, 15, v1\nv_lshlrev_b32 v{t2}, 6, v{t2}\nv_lshl_add_u32 v{ua}, v{t}, 4, v{t2}')
        e(f's_and_b32 s{S_T1}, s{S_W}, 1\ns_lshl_b32 s{S_T1}, s{S_T1}, 11')
        e(f's_lshr_b32 s{S_T0}, s{S_W}, 1\ns_mul_i32 s{S_T2}, s{S_T0}, {U_C}\ns_add_u32 s{S_T2}, s{S_T2}, s{S_T1}')
        e(f's_mul_i32 s{S_T3}, s{S_T0}, {X_C}\ns_add_u32 s{S_T3}, s{S_T3}, s{S_T1}')
        e(f'v_add_u32 v{xa_}, s{S_T3}, v{ua}\nv_add_u32 v{ua}, s{S_T2}, v{ua}')
        e(f'v_lshrrev_b32 v{t}, 4, v1\nv_lshl_add_u32 v{sa}, v{t}, 4, v{t2}')
        e(f's_lshl_b32 s{S_T2}, s{S_CP}, 1\ns_add_u32 s{S_T2}, s{S_T2}, s{S_T0}\ns_mul_i32 s{S_T2}, s{S_T2}, {HT_STRIDE}\ns_add_u32 s{S_T2}, s{S_T2}, s{S_T1}\ns_add_u32 s{S_T2}, s{S_T2}, {WS_HT}')
        e(f'v_add_u32 v{sa}, s{S_T2}, v{sa}')
        e(f's_lshl_b32 s{S_T0}, s{S_W}, 12\ns_add_u32 s{S_T0}, s{S_T0}, {L_RED}\nv_lshl_add_u32 v{ra}, v1, 4, s{S_T0}')
        e(f's_xor_b32 s{S_T0}, s{S_W}, 1\ns_lshl_b32 s{S_T0}, s{S_T0}, 12\ns_add_u32 s{S_T0}, s{S_T0}, {L_RED}\nv_lshl_add_u32 v{ra+1}, v1, 4, s{S_T0}')
        V.free(t); V.free(t2)
        return (vF, vG, ua, xa_, ra, sa)

    def conv(self, cv, fill):
        e = self.e; V = self.V
        vF, vG, ua, xa_, ra, sa = cv
        self.c('---- Toeplitz convolution')
        G = [V.alloc(16, 4) for _ in range(2)]
        F = V.alloc(32, 4)
        acc = V.alloc(32, 4)
        A = lambda b, m: acc + 8 * b + 4 * m
        def rdG(pp):
            for s in range(4): self.ds(f'ds_read_b128 {vr(G[pp&1]+4*s,4)}, v{vG+pp} offset:{1024*s}', f'G{pp}')
        def rdF(pp, q):
            for m in range(2):
                off = 32 * (111 - 32*q - 2*pp - m)
                self.ds(f'ds_read_b64 {vr(F+8*q+4*m,2)}, v{vF} offset:{off}', f'F{pp}_{q}')
                self.ds(f'ds_read_b64 {vr(F+8*q+4*m+2,2)}, v{vF} offset:{off+8}', f'F{pp}_{q}')
        rdG(0)
        for q in range(4): rdF(0, q)
        def rdG1(pp, s): self.ds(f'ds_read_b128 {vr(G[pp&1]+4*s,4)}, v{vG+pp} offset:{1024*s}', f'G{pp}')
        def rdF1(pp, q, m, h_):
            off = 32 * (111 - 32*q - 2*pp - m) + 8 * h_
            self.ds(f'ds_read_b64 {vr(F+8*q+4*m+2*h_,2)}, v{vF} offset:{off}', f'F{pp}_{q}')
        mains = []
        pend = []
        for pp in range(8):
            for q in range(4):
                first = True
                for m in range(2):
                    for s in range(4 - q):
                        b = q + s
                        cin = '0' if (pp == 0 and q == 0) else vr(A(b, m), 4)
                        pre = []
                        if first:
                            if q == 0: pre.append(lambda pp=pp: (self.wait_lg(f'G{pp}'), self.wait_lg(f'F{pp}_0')))
                            else: pre.append(lambda pp=pp, q=q: self.wait_lg(f'F{pp}_{q}'))
                            first = False
                        mf = lambda b=b, m=m, q=q, s=s, pp=pp, cin=cin: e(f'v_mfma_f32_16x16x32_bf16 {vr(A(b,m),4)}, {vr(F+8*q+4*m,4)}, {vr(G[pp&1]+4*s,4)}, {cin}')
                        post = [pend.pop(0)] if pend else []
                        mains.append((pre, mf, 16, post))
                    if pp + 1 < 8:
                        pend += [lambda pp=pp, q=q, m=m, h_=h_: rdF1(pp + 1, q, m, h_) for h_ in range(2)]
                if q == 0 and pp + 1 < 8:
                    pend += [lambda pp=pp, s=s: rdG1(pp + 1, s) for s in range(4)]
        assert not pend
        self.sched(mains, None, segs=[(0, 90, fill)])
        for x in G: V.free(x, 16)
        V.free(F, 32); V.free(vG, 8)
        self.stamp(10)
        UU = V.alloc(8, 4); XX = V.alloc(8, 4); t1f = V.alloc(16, 2); xf = V.alloc(16, 2); rr = V.alloc(16, 4)
        Y = V.alloc(8, 4); w8 = V.alloc(16, 2); dk = V.alloc(2, 2)
        for bb in range(2):
            self.ds(f'ds_read_b128 {vr(UU+4*bb,4)}, v{ua} offset:{L_U + 1024 + 1024*bb}', 'ux')
            self.ds(f'ds_read_b128 {vr(XX+4*bb,4)}, v{xa_} offset:{L_X + 1024*bb}', 'ux')
        e(f'v_mov_b32 v{dk}, s{S_DK}')
        def epi(half):
            snd = acc + 16 * (1 - half); keep = acc + 16 * half
            for i in range(4): self.ds(f'ds_write_b128 v{ra}, {vr(snd+4*i,4)} offset:{1024*i}', 'rw')
            self.wait_lg('ux')
            for q in range(8): e(f'v_lshlrev_b32 v{t1f+2*q}, 16, v{UU+q}\nv_and_b32 v{t1f+2*q+1}, 0xffff0000, v{UU+q}')
            for q in range(8): e(f'v_pk_mul_f32 {vr(t1f+2*q,2)}, {vr(t1f+2*q,2)}, {vr(dk,2)} op_sel_hi:[1,0]')
            for q in range(8): e(f'v_cvt_pk_bf16_f32 v{UU+q}, v{t1f+2*q}, v{t1f+2*q+1}')
            for q in range(8): e(f'v_lshlrev_b32 v{xf+2*q}, 16, v{XX+q}\nv_and_b32 v{xf+2*q+1}, 0xffff0000, v{XX+q}')
            for q in range(8): e(f'v_lshlrev_b32 v{t1f+2*q}, 16, v{UU+q}\nv_and_b32 v{t1f+2*q+1}, 0xffff0000, v{UU+q}')
            self.wait_vm('wc')
            self.wait_all_lg()
            e('s_barrier')
            for i in range(4): self.ds(f'ds_read_b128 {vr(rr+4*i,4)}, v{ra+1} offset:{1024*i}', 'red')
            self.wait_lg('red')
            for i in range(0, 16, 2): e(f'v_pk_add_f32 {vr(keep+i,2)}, {vr(keep+i,2)}, {vr(rr+i,2)}')
            for bb in range(2):
                k0 = keep + 8 * bb; y = Y + 4 * bb
                e(f'v_cvt_pk_bf16_f32 v{y}, v{k0}, v{k0+1}\nv_cvt_pk_bf16_f32 v{y+1}, v{k0+2}, v{k0+3}')
                e(f'v_cvt_pk_bf16_f32 v{y+2}, v{k0+4}, v{k0+5}\nv_cvt_pk_bf16_f32 v{y+3}, v{k0+6}, v{k0+7}')
            for bb in range(2):
                y = Y + 4 * bb
                e(f'v_permlane32_swap_b32 v{y}, v{y+2}\nv_permlane32_swap_b32 v{y+1}, v{y+3}')
            for bb in range(2):
                y = Y + 4 * bb
                e(f'v_permlane16_swap_b32 v{y}, v{y+2}\nv_permlane16_swap_b32 v{y+1}, v{y+3}')
            for q in range(8): e(f'v_lshlrev_b32 v{w8+2*q}, 16, v{Y+q}\nv_and_b32 v{w8+2*q+1}, 0xffff0000, v{Y+q}')
            for q in range(8): e(f'v_pk_add_f32 {vr(w8+2*q,2)}, {vr(w8+2*q,2)}, {vr(t1f+2*q,2)}')
            for q in range(8): e(f'v_cvt_pk_bf16_f32 v{Y+q}, v{w8+2*q}, v{w8+2*q+1}')
            for q in range(8): e(f'v_lshlrev_b32 v{w8+2*q}, 16, v{Y+q}\nv_and_b32 v{w8+2*q+1}, 0xffff0000, v{Y+q}')
            for q in range(8): e(f'v_pk_add_f32 {vr(w8+2*q,2)}, {vr(w8+2*q,2)}, {vr(xf+2*q,2)}')
            for bb in range(2):
                for d in range(4): e(f'v_cvt_pk_bf16_f32 v{Y+4*bb+d}, v{w8+8*bb+2*d}, v{w8+8*bb+2*d+1}')
                self.vmem(f'buffer_store_dwordx4 {vr(Y+4*bb,4)}, v{sa}, s[{R_WS}:{R_WS+3}], 0 offen offset:{1024*bb} sc1', 'ht')
        self.two_paths(epi)
        if self.o.get('xg', True):
            self.w1_read(5, 10)
            self.w1_issue(10, 14, 'we')
        else:
            self.w1_read(5, 14)
            self.w1_issue(14, 15, 'we')
        for x, n in ((UU,8),(XX,8),(t1f,16),(xf,16),(rr,16),(Y,8),(w8,16),(dk,2),(sa,1),(ua,1),(xa_,1),(ra,2),(acc,32),(vF,1)): V.free(x, n)

    def interleave(self, main, fill, per_gap):
        n = len(main); fi = 0
        for i, m in enumerate(main):
            m()
            tgt = (len(fill) * (i + 1) + n - 1) // n if per_gap is None else min(len(fill), fi + per_gap)
            while fi < tgt:
                fill[fi](); fi += 1
        while fi < len(fill):
            fill[fi](); fi += 1

    def sched(self, mains, fillers, tail_free=0, segs=None):
        def cost(x): return x[1] if isinstance(x, tuple) else 1
        def run(x): (x[0] if isinstance(x, tuple) else x)()
        n = len(mains)
        bud = []
        for i, (pre, m, dur, post) in enumerate(mains):
            b = (dur - 8) / 4 - sum(cost(x) for x in post)
            if i + 1 < n: b -= sum(cost(x) for x in mains[i+1][0])
            bud.append(b)
        if segs is None: segs = [(0, n - tail_free, fillers)]
        plan = [[] for _ in range(n)]
        for (a, b_, fl) in segs:
            free = sum(max(0, x) for x in bud[a:b_]); need = sum(cost(x) for x in fl)
            over = max(0.0, (need - free) / max(1, b_ - a)); frac = min(1.0, need / free) if free > 0 else 1.0
            fi = 0; credit = 0.0
            for i in range(a, b_):
                credit += max(0, bud[i]) * frac + over
                while fi < len(fl) and cost(fl[fi]) <= credit + 1e-9:
                    credit -= cost(fl[fi]); plan[i].append(fl[fi]); fi += 1
            plan[b_ - 1] += fl[fi:]
            for i in range(a, b_): bud[i] = 0
        for i, (pre, m, dur, post) in enumerate(mains):
            for x in pre: run(x)
            m()
            for x in post: run(x)
            for x in plan[i]: run(x)

    def poll_flags(self, base, nflags_expr_lanes, nloads, sbase=None, last_lanes=None, sleep=0):
        e = self.e; V = self.V
        skip = self.lab('pf'); l0 = self.lab('pl'); l1 = self.lab('pd')
        e(f's_cmp_lg_u32 s{S_W}, 0\ns_cbranch_scc1 {skip}')
        a = V.alloc(1); d = V.alloc(4, 2)
        e(f'v_mul_u32_u24 v{a}, {FLAG_STRIDE}, v1\nv_add_u32 v{a}, {base}, v{a}')
        if sbase is not None: e(f'v_add_u32 v{a}, s{sbase}, v{a}')
        e(f's_mov_b64 s[{S_M1}:{S_M1+1}], exec')
        if nflags_expr_lanes < 64: e(f's_mov_b64 exec, {hex((1 << nflags_expr_lanes) - 1)}')
        e(f's_mov_b32 s{S_CNT}, 0')
        self.label(l0)
        for k in range(nloads):
            e(f'buffer_load_dword v{d+k}, v{a}, s[{R_WS}:{R_WS+3}], 0 offen offset:{64*FLAG_STRIDE*k} sc1')
        e('s_waitcnt vmcnt(0)')
        e(f'v_cmp_ne_u32 vcc, s{S_NONCE}, v{d}')
        for k in range(1, nloads):
            e(f'v_cmp_ne_u32 s[{S_M2}:{S_M2+1}], s{S_NONCE}, v{d+k}')
            if last_lanes and k == nloads - 1:
                assert last_lanes == 32
                e(f's_and_b32 s{S_M2+1}, s{S_M2+1}, 0')
            e(f's_or_b64 vcc, vcc, s[{S_M2}:{S_M2+1}]')
        e(f's_cbranch_vccz {l1}')
        if sleep: e(f's_sleep {sleep}')
        e(f's_add_u32 s{S_CNT}, s{S_CNT}, 1\ns_cmp_lt_u32 s{S_CNT}, {SPIN_MAX}\ns_cbranch_scc1 {l0}')
        self.label(l1)
        e(f's_mov_b64 exec, s[{S_M1}:{S_M1+1}]')
        V.free(a); V.free(d, 4)
        self.label(skip)
        e('s_barrier')

    WDREG = ['A']*9 + ['B']*3 + ['C']*3 + ['A']*9 + ['B']*3 + ['C']
    WDIDX = list(range(9)) + [0,1,2] + [0,1,2] + list(range(9)) + [0,1,2] + [0]
    def wd_setup(self):
        e = self.e; V = self.V
        self.vWD = V.alloc(2); self.vWT = V.alloc(6)
        t = V.alloc(1); t2 = V.alloc(1); vD = self.vWD; vT = self.vWT
        e(f'v_lshrrev_b32 v{t}, 3, v1\nv_mul_u32_u24 v{vD}, 896, v{t}\nv_bfe_u32 v{t}, v1, 4, 1\nv_lshlrev_b32 v{t}, 2, v{t}\nv_and_b32 v{t2}, 7, v1\nv_xor_b32 v{t}, v{t}, v{t2}\nv_lshl_add_u32 v{vD}, v{t}, 4, v{vD}')
        e(f's_lshl_b32 s{S_T0}, s{S_DB}, 7\ns_mul_i32 s{S_T1}, s{S_W}, {448*896}\ns_add_u32 s{S_T0}, s{S_T0}, s{S_T1}\nv_add_u32 v{vD}, s{S_T0}, v{vD}\nv_add_u32 v{vD+1}, 7168, v{vD}')
        e(f'v_lshrrev_b32 v{t}, 5, v1\nv_lshlrev_b32 v{vT}, 9, v{t}\nv_bfe_u32 v{t}, v1, 2, 2\nv_lshl_add_u32 v{vT}, v{t}, 7, v{vT}')
        e(f'v_bfe_u32 v{t}, v1, 4, 1\nv_lshl_add_u32 v{vT}, v{t}, 5, v{vT}\nv_and_b32 v{t}, 3, v1\nv_lshl_add_u32 v{vT}, v{t}, 3, v{vT}')
        e(f'v_bfe_u32 v{t}, v1, 3, 1\nv_lshlrev_b32 v{t}, 6, v{t}')
        e(f'v_xor_b32 v{t2}, 64, v{t}\nv_add_u32 v{vT+1}, v{vT}, v{t2}\nv_add_u32 v{vT}, v{vT}, v{t}')
        e(f's_mul_i32 s{S_WA}, s{S_W}, 18432\ns_add_u32 s{S_WA}, s{S_WA}, 87040')
        e(f's_mul_i32 s{S_WB}, s{S_W}, 7168\ns_add_u32 s{S_WC}, s{S_WB}, 57344\ns_add_u32 s{S_WB}, s{S_WB}, 28672')
        e(f'v_add_u32 v{vT+2}, s{S_WB}, v{vT}\nv_add_u32 v{vT+3}, s{S_WB}, v{vT+1}\nv_add_u32 v{vT+4}, s{S_WC}, v{vT}\nv_add_u32 v{vT+5}, s{S_WC}, v{vT+1}')
        e(f'v_add_u32 v{vT}, s{S_WA}, v{vT}\nv_add_u32 v{vT+1}, s{S_WA}, v{vT+1}')
        e(f's_add_u32 s{S_T1}, s{S_DB}, s{S_RB2}' if self.o.get('rot2', True) else f's_mov_b32 s{S_T1}, 0')
        for q in range(4):
            e(f's_add_u32 s{S_T0}, s{S_T1}, {q}\ns_and_b32 s{S_T0}, s{S_T0}, 3\ns_mul_i32 s{S_RW0+q}, s{S_T0}, {7*16*896}\ns_mul_i32 s{S_RA0+q}, s{S_T0}, {7*1024}')
        V.free(t); V.free(t2)
    def wd_dma(self, k, tag):
        e = self.e; sb = {'A': S_WA, 'B': S_WB, 'C': S_WC}[self.WDREG[k]]; sl = self.WDIDX[k] * 2048
        return [lambda: e(f's_add_u32 s{S_WO}, s{S_RW0 + k//7}, {(k%7)*16*896}'),
                lambda: e(f's_add_u32 m0, s{sb}, {sl}'),
                lambda: self.vmem(f'buffer_load_dwordx4 v{self.vWD}, s[{R_WD}:{R_WD+3}], s{S_WO} offen lds', tag),
                lambda: e(f's_add_u32 m0, s{sb}, {sl + 1024}'),
                lambda: self.vmem(f'buffer_load_dwordx4 v{self.vWD+1}, s[{R_WD}:{R_WD+3}], s{S_WO} offen lds', tag)]
    def wd_reads(self, k):
        a = self.vWT + {'A': 0, 'B': 2, 'C': 4}[self.WDREG[k]]; sl = self.WDIDX[k] * 2048
        return [lambda mt=mt, hh=hh: self.ds(f'ds_read_b64_tr_b16 {ar(8*k+4*mt+2*hh,2)}, v{a+mt} offset:{sl + 1024*hh}', f'wdr{k}') for mt in range(2) for hh in range(2)]

    def phaseB_setup(self):
        e = self.e; V = self.V; o = self.o
        L_H = 0; HG = 28672; L_STP = 3 * HG
        HS = lambda g_: (g_ % 3) * HG
        S_HB, S_MB = S_T5, S_HID
        vD = V.alloc(1); vB = V.alloc(1); vS = V.alloc(1); t = V.alloc(1); t2 = V.alloc(1)
        e(f'v_lshrrev_b32 v{t}, 2, v1\nv_mul_u32_u24 v{vD}, {HT_STRIDE}, v{t}\nv_bfe_u32 v{t2}, v1, 4, 1\nv_lshlrev_b32 v{t2}, 1, v{t2}\nv_and_b32 v{t}, 3, v1\nv_xor_b32 v{t}, v{t}, v{t2}\nv_lshl_add_u32 v{vD}, v{t}, 4, v{vD}')
        e(f's_lshl_b32 s{S_T0}, s{S_RB}, 8\ns_add_u32 s{S_T0}, s{S_T0}, {WS_HT}\nv_add_u32 v{vD}, s{S_T0}, v{vD}')
        e(f's_mul_i32 s{S_HB}, s{S_W}, {16*HT_STRIDE}\ns_lshl_b32 s{S_MB}, s{S_W}, 10')
        e(f'v_lshrrev_b32 v{t}, 5, v1\nv_lshlrev_b32 v{vB}, 8, v{t}\nv_bfe_u32 v{t2}, v1, 4, 1\nv_xor_b32 v{t2}, v{t2}, v{t}\nv_lshl_add_u32 v{vB}, v{t2}, 5, v{vB}')
        e(f'v_bfe_u32 v{t}, v1, 2, 2\nv_lshl_add_u32 v{vB}, v{t}, 6, v{vB}\nv_and_b32 v{t}, 3, v1\nv_lshl_add_u32 v{vB}, v{t}, 3, v{vB}')
        e(f'v_lshrrev_b32 v{t}, 4, v1\nv_lshlrev_b32 v{vS}, 8, v{t}\nv_and_b32 v{t}, 1, v{t}\ns_and_b32 s{S_T0}, s{S_W}, 1\nv_xor_b32 v{t}, s{S_T0}, v{t}\nv_lshl_add_u32 v{vS}, v{t}, 5, v{vS}')
        e(f'v_bfe_u32 v{t}, v1, 2, 2\nv_lshl_add_u32 v{vS}, v{t}, 6, v{vS}\nv_and_b32 v{t}, 3, v1\nv_lshl_add_u32 v{vS}, v{t}, 3, v{vS}')
        e(f's_lshr_b32 s{S_T0}, s{S_W}, 1\ns_mul_i32 s{S_T0}, s{S_T0}, {7*2048}\nv_add_u32 v{vS}, s{S_T0}, v{vS}')
        vA = V.alloc(1)
        e(f's_mul_i32 s{S_T0}, s{S_RB}, {4*112}\ns_lshl_b32 s{S_T1}, s{S_FB}, 3\ns_add_u32 s{S_T0}, s{S_T0}, s{S_T1}\ns_lshl_b32 s{S_T1}, s{S_W}, 1\ns_add_u32 s{S_T0}, s{S_T0}, s{S_T1}')
        e(f's_lshl_b32 s{S_T0}, s{S_T0}, 10\ns_add_u32 s{S_T0}, s{S_T0}, {WS_ACT}\nv_lshl_add_u32 v{vA}, v1, 4, s{S_T0}')
        vG2 = V.alloc(1); sg2 = V.alloc(6, 2)
        e(f'v_and_b32 v{t}, 31, v1\nv_lshlrev_b32 v{vG2}, 3, v{t}\ns_lshl_b32 s{S_T0}, s{S_RB}, 10\ns_add_u32 s{S_T0}, s{S_T0}, {WS_STATS2}\nv_add_u32 v{vG2}, s{S_T0}, v{vG2}')
        NB = 6
        cs = self.cs; ones = self.ones
        B = V.alloc(4 * NB, 4); SB = V.alloc(8, 4); SG = V.alloc(8, 4)
        acc = [V.alloc(32, 4), V.alloc(32, 4)]
        st = V.alloc(6, 2); par = V.alloc(3); tmp = V.alloc(8, 4); pk = V.alloc(8, 4)
        vP = V.alloc(1); vPw = V.alloc(1)
        e(f'v_bfe_u32 v{t}, v1, 4, 1\nv_lshlrev_b32 v{vP}, 7, v{t}\nv_and_b32 v{t}, 15, v1\nv_lshl_add_u32 v{vP}, v{t}, 3, v{vP}\nv_add_u32 v{vP}, {L_STP}, v{vP}')
        e(f's_lshl_b32 s{S_T0}, s{S_W}, 7\ns_add_u32 s{S_T0}, s{S_T0}, {L_STP}\nv_lshl_add_u32 v{vPw}, v{t}, 3, s{S_T0}')
        K1, K2, K3, KD = 6, 8, 10, 12
        e(f's_mov_b32 s{K1}, 0x22222222\ns_mov_b32 s{K1+1}, 0x22222222\ns_mov_b32 s{K2}, 0x44444444\ns_mov_b32 s{K2+1}, 0x44444444')
        e(f's_mov_b32 s{K3}, 0x88888888\ns_mov_b32 s{K3+1}, 0x88888888\ns_mov_b32 s{KD}, 0x00f0000f\ns_mov_b32 s{KD+1}, 0xf0000f00')
        vBq = V.alloc(4); vS2 = V.alloc(1)
        e(f'v_add_u32 v{vS2}, 57344, v{vS}')
        for q in range(4):
            e(f's_add_u32 s{S_T0}, s{S_ROT}, {q}\ns_and_b32 s{S_T0}, s{S_T0}, 3\ns_mul_i32 s{S_T0}, s{S_T0}, {7*1024}\nv_add_u32 v{vBq+q}, s{S_T0}, v{vB}')
        S_KI = [0, 1, 3, 4, 5, 22, 23]
        for i in range(7):
            e(f's_add_u32 s{S_T0}, s{S_W}, {4*i}\ns_mul_i32 s{S_T1}, s{S_T0}, 37\ns_lshr_b32 s{S_T1}, s{S_T1}, 8')
            e(f's_mul_i32 s{S_T2}, s{S_T1}, 7\ns_sub_u32 s{S_T0}, s{S_T0}, s{S_T2}\ns_add_u32 s{S_T1}, s{S_T1}, s{S_ROT}\ns_and_b32 s{S_T1}, s{S_T1}, 3')
            e(f's_mul_i32 s{S_T1}, s{S_T1}, 7\ns_add_u32 s{S_KI[i]}, s{S_T1}, s{S_T0}')
        self.wd_setup()
        self.pb = dict(locals())

    def phaseB(self):
        e = self.e; V = self.V; o = self.o
        self.c('================= phase B')
        pb = self.pb
        L_H, HG, L_STP, HS, S_HB, S_MB = pb['L_H'], pb['HG'], pb['L_STP'], pb['HS'], pb['S_HB'], pb['S_MB']
        vD, vB, vS, t, t2, vA, vG2, sg2, NB, cs, ones, B, SB, SG = [pb[k] for k in 'vD vB vS t t2 vA vG2 sg2 NB cs ones B SB SG'.split()]
        acc, st, par, tmp, pk, vP, vPw, K1, K2, K3, KD, vBq, vS2 = [pb[k] for k in 'acc st par tmp pk vP vPw K1 K2 K3 KD vBq vS2'.split()]
        self.stamp(14)
        self.wait_vm('we'); e('s_barrier')
        self.stamp(15)
        self.w1_read(self.K0, 28)
        self.wait_all_lg()
        self.stamp(25)
        V.free(self.vTS, 5); V.free(self.vW1)
        self.poll_flags(WS_FLAG2 + 32*FLAG_STRIDE, 64, 4, last_lanes=32, sleep=self.o.get('wsleep', 2))
        self.vm.drain(); self.lg.drain()
        self.stamp(16)
        def hdma(g, i, tag=None):
            return [lambda: e(f's_add_u32 m0, s{S_MB}, {L_H + HS(g) + i*4096}'),
                    lambda: e(f's_add_u32 s{S_T1}, s{S_HB}, {i*4*16*HT_STRIDE + 64*g}'),
                    lambda: self.vmem(f'buffer_load_dwordx4 v{vD}, s[{R_WS}:{R_WS+3}], s{S_T1} offen {o.get("hflags", "sc1")} lds', tag or f'h{g}')]
        S_KI = pb['S_KI']; PROG = o.get('prog', True)
        for i in range(7):
            e(f's_lshl_b32 m0, s{S_KI[i]}, 10\ns_mul_i32 s{S_T1}, s{S_KI[i]}, {16*HT_STRIDE}')
            self.vmem(f'buffer_load_dwordx4 v{vD}, s[{R_WS}:{R_WS+3}], s{S_T1} offen {o.get("hflags", "sc1")} lds', 'h0a' if (i < 3 and PROG) else 'h0')
        self.cs_mfma(self.K0, 28)
        H1F = o.get('h1fill', True)
        if not H1F:
            for i in range(7):
                for f in hdma(1, i): f()
        def rdB(g, k):
            s = k % NB
            for h_ in range(2):
                self.ds(f'ds_read_b64_tr_b16 {vr(B+4*s+2*h_,2)}, v{vBq + k//7} offset:{HS(g) + (k%7)*1024 + 512*h_}', f'B{g}_{k}')
        def st_reads(g):
            for k_ in range(2): self.ds(f'ds_read_b64 {vr(st+2*k_,2)}, v{vP} offset:{(g&1)*512 + 256*k_}', f'st{g}')
        def epilogue_ops(g):
            A_ = acc[g & 1]; ops = []
            nm, rsl, s2 = par, par + 1, par + 2
            save = self.lines; self.lines = []
            if g == 0:
                self.ln_finalize(st, st + 1, st + 2, st + 3, st + 4)
            else:
                e(f'v_lshlrev_b32 v{st+2}, 16, v{sg2+2*(g-1)}')
                e(f'v_and_b32 v{st+3}, 0xffff0000, v{sg2+2*(g-1)}')
            e(f'v_sub_f32 v{nm}, 0, v{st+2}')
            e(f'v_rcp_f32 v{st+4}, v{st+3}')
            e(f'v_mul_f32 v{s2}, v{st+3}, v{st+3}')
            e(f'v_mul_f32 v{rsl}, {fx(-LOG2E)}, v{st+4}')
            fl = self.lines; self.lines = save
            if g == 0:
                def fin0():
                    self.wait_lg('st0')
                    e(f'v_add_f32 v{st}, v{st}, v{st+2}')
                ops.append(fin0)
                ops.append(lambda: e(f'v_add_f32 v{st+1}, v{st+1}, v{st+3}'))
            for l in fl: ops.append(lambda l=l: e(l))
            def el(r):
                G_, U_, T_ = A_ + r, A_ + 16 + r, tmp + (r & 7)
                return [f'v_fma_f32 v{G_}, v{cs+r}, v{nm}, v{G_}',
                        f'v_fma_f32 v{U_}, v{cs+16+r}, v{nm}, v{U_}',
                        f'v_mul_f32 v{T_}, v{rsl}, v{G_}',
                        f'v_mul_f32 v{G_}, v{G_}, v{U_}',
                        f'v_exp_f32 v{T_}, v{T_}',
                        f'v_fma_f32 v{T_}, v{T_}, v{s2}, v{s2}',
                        f'v_rcp_f32 v{T_}, v{T_}',
                        f'v_mul_f32 v{G_}, v{G_}, v{T_}']
            for q in range(4):
                els = [el(4*q + x) for x in range(4)]
                for s_ in range(8):
                    for x in range(4): ops.append((lambda l=els[x][s_]: e(l), 2 if s_ in (4, 6) else 1))
                for x in range(2):
                    r = 4*q + 2*x
                    ops.append(lambda r=r: e(f'v_cvt_pk_bf16_f32 v{pk + r//2}, v{A_+r}, v{A_+r+1}'))
                if q in (1, 3):
                    kk = q >> 1
                    ops.append(lambda kk=kk: self.vmem(f'buffer_store_dwordx4 {vr(pk+4*kk,4)}, v{vA}, s[{R_WS}:{R_WS+3}], s{S_T4} offen offset:{1024*kk} sc1', 'act'))
            return ops
        DS = 1.5
        def rdB1(g, k, h_):
            s = (28 * g + k) % NB
            return (lambda: self.ds(f'ds_read_b64_tr_b16 {vr(B+4*s+2*h_,2)}, v{vBq + k//7} offset:{HS(g) + (k%7)*1024 + 512*h_}', f'B{g}_{k}'), DS)
        def rs(g, i):
            sb = SB + 4 * (i & 1); out = []
            for h_ in range(2):
                b_, off = (vS, HS(g) + i*2048 + 1024*h_) if HS(g) < 57344 else (vS2, i*2048 + 1024*h_)
                out.append((lambda b_=b_, off=off, h_=h_, sb=sb, i=i: self.ds(f'ds_read_b64_tr_b16 {vr(sb+2*h_,2)}, v{b_} offset:{off}', f'S{g}_{i}'), DS))
            return out
        def s2_loads():
            return [lambda gg=gg: self.vmem(f'buffer_load_dwordx2 {vr(sg2+2*(gg-1),2)}, v{vG2}, s[{R_WS}:{R_WS+3}], 0 offen offset:{256*gg} sc1', 'sg2') for gg in range(1, 4)]
        def s2_check():
            l0 = self.lab('s2'); l1 = self.lab('s2d')
            self.wait_vm('sg2')
            e(f's_mov_b32 s{S_CNT}, 0')
            self.label(l0)
            e(f'v_cmp_ne_u32 vcc, s{S_NONCE}, v{sg2+1}')
            for gg in (2, 3): e(f'v_cmp_ne_u32 s[{S_M2}:{S_M2+1}], s{S_NONCE}, v{sg2+2*gg-1}\ns_or_b64 vcc, vcc, s[{S_M2}:{S_M2+1}]')
            e(f's_cbranch_vccz {l1}')
            for gg in range(1, 4): e(f'buffer_load_dwordx2 {vr(sg2+2*(gg-1),2)}, v{vG2}, s[{R_WS}:{R_WS+3}], 0 offen offset:{256*gg} sc1')
            e('s_waitcnt vmcnt(0)')
            e(f's_add_u32 s{S_CNT}, s{S_CNT}, 1\ns_cmp_lt_u32 s{S_CNT}, {SPIN_MAX}\ns_cbranch_scc1 {l0}')
            self.label(l1)
        def red_ops(g):
            return [lambda: e(f'v_cndmask_b32 v{SG}, v{SG}, v{SG+1}, s[{K1}:{K1+1}]'),
                    lambda: e(f'v_cndmask_b32 v{SG}, v{SG}, v{SG+2}, s[{K2}:{K2+1}]'),
                    lambda: e(f'v_cndmask_b32 v{SG+5}, v{SG}, v{SG+3}, s[{K3}:{K3+1}]'),
                    lambda: e(f's_mov_b64 exec, s[{KD}:{KD+1}]'),
                    lambda: self.ds(f'ds_write_b64 v{vPw}, {vr(SG+4,2)} offset:{(g&1)*512}', f'stw{g}'),
                    lambda: e('s_mov_b64 exec, -1')]
        self.wait_vm('h0a' if PROG else 'h0'); self.wait_all_lg(); e('s_barrier')
        self.stamp(17)
        for k in range(4):
            for h_ in range(2): rdB1(0, k, h_)[0]()
        if not PROG:
            for f in rs(0, 0) + rs(0, 1): f[0]()
        mains = []; segs = []
        KB = 22
        for g in range(4):
            A_ = acc[g & 1]; base = len(mains); pos = {}
            for k in range(28):
                cg = '0' if k == 0 else vr(A_, 16); cu = '0' if k == 0 else vr(A_ + 16, 16)
                pre = []
                if g == 1 and k == 2: pre.append(lambda: e('s_barrier'))
                if g in (2, 3) and k == 2: pre.append(lambda: e('s_barrier'))
                if g == 0 and k == 8 and PROG:
                    pre.append(lambda: self.wait_vm('h0')); pre.append(lambda: e('s_barrier'))
                if k == KB:
                    if g < 3: pre.append(lambda g=g: self.wait_vm(f'h{g+1}'))
                    if g == 0: pre.append(lambda g=g: self.wait_lg(f'stw{g}'))
                    pre.append(lambda: e('s_barrier'))
                    if o.get('passstamps'): pre.append(lambda g=g: self.stamp(26 + g))
                pre.append(lambda k=k, g=g: self.wait_lg(f'B{g}_{k}'))
                nx = (g, k + 4) if k + 4 < 28 else ((g + 1, k + 4 - 28) if g < 3 else None)
                p0 = [rdB1(nx[0], nx[1], 0)] if nx else []; p1 = [rdB1(nx[0], nx[1], 1)] if nx else []
                pos[k] = len(mains)
                mains.append((pre, lambda k=k, cg=cg, A_=A_, g=g: e(f'v_mfma_f32_32x32x16_bf16 {vr(A_,16)}, {ar(8*k,4)}, {vr(B+4*((28*g+k)%NB),4)}, {cg}'), 32, p0))
                mains.append(([], lambda k=k, cu=cu, A_=A_, g=g: e(f'v_mfma_f32_32x32x16_bf16 {vr(A_+16,16)}, {ar(8*k+4,4)}, {vr(B+4*((28*g+k)%NB),4)}, {cu}'), 32, p1))
                if g == 0:
                    gpos = [10, 11, 13, 14, 16, 17, 19] if PROG else [0, 3, 6, 9, 12, 15, 18]
                    spos = gpos if PROG else [x + 1 for x in gpos]
                    if k in gpos:
                        i_ = gpos.index(k); sb = SB + 4 * (i_ & 1); c_ = '0' if i_ == 0 else vr(SG, 4)
                        mains.append(([lambda i_=i_, g=g: self.wait_lg(f'S{g}_{i_}')], lambda sb=sb, c_=c_: e(f'v_mfma_f32_16x16x32_bf16 {vr(SG,4)}, {vr(sb,4)}, {vr(sb,4)}, {c_}'), 16, []))
                    if k in spos:
                        i_ = spos.index(k); sb = SB + 4 * (i_ & 1); c_ = '0' if i_ == 0 else vr(SG + 4, 4)
                        mains.append(([], lambda sb=sb, c_=c_: e(f'v_mfma_f32_16x16x32_bf16 {vr(SG+4,4)}, {vr(ones,4)}, {vr(sb,4)}, {c_}'), 16,
                                      rs(g, i_ + 2) if i_ + 2 < 7 else []))
            def addpost(k, items, which=0):
                pre_, m_, d_, post_ = mains[pos[k] + which]
                mains[pos[k] + which] = (pre_, m_, d_, post_ + items)
            if g == 0:
                addpost(KB - 1, red_ops(g), 1)
                if PROG:
                    r0 = rs(0, 0) + rs(0, 1)
                    addpost(8, r0[:2], 0); addpost(8, r0[2:], 1)
            if g == 3:
                for i_ in range(9):
                    rr = [(f, DS) for f in self.wd_reads(i_)]
                    for q in range(4): addpost(10 + 2*i_ + (q >> 1), [rr[q]], q & 1)
                pre_, m_, d_, post_ = mains[pos[10]]
                mains[pos[10]] = (pre_, m_, d_, post_[:1] + [lambda: self.wait_vm('wdA')] + post_[1:])
            if g == 1:
                addpost(4, s2_loads(), 1)
                addpost(26, [(s2_check, 8)], 1)
            ep = []
            if g > 0:
                if g == 1: ep.append(lambda g=g: st_reads(0))
                ep.append(lambda g=g: e(f's_mov_b32 s{S_T4}, {(g-1)*112*1024}'))
                ep += epilogue_ops(g - 1)
            mf = []; mf2 = []
            if g == 0:
                if H1F:
                    for i in range(7): mf2 += hdma(1, i)
                for i in range(7): mf += hdma(2, i)
            if g == 0:
                pass
            mf3 = []
            if g == 1:
                for i in range(7): mf2 += hdma(3, i)
                for k_ in range(0, 5): mf3 += self.wd_dma(k_, 'wdA')
            if g == 2:
                for k_ in range(5, 9): mf3 += self.wd_dma(k_, 'wdA')
                for k_ in range(9, 12): mf3 += self.wd_dma(k_, 'wdB')
            if g == 3:
                for k_ in range(12, 15): mf3 += self.wd_dma(k_, 'wdC')
            if o.get('x_noep'): ep = []
            merged = []; a_, c_ = list(ep), list(mf)
            ra = len(a_) / max(1, len(a_) + len(c_)); acc_ = 0.0
            while a_ or c_:
                acc_ += ra
                if (acc_ >= 1.0 - 1e-9 and a_) or not c_:
                    acc_ -= 1.0; merged.append(a_.pop(0))
                else: merged.append(c_.pop(0))
            end = len(mains) if g < 3 else len(mains) - 2
            if mf2: segs.append((pos[2], pos[12], mf2) if g else (pos[0], pos[6], mf2))
            if mf3: segs.append((pos[12] if mf2 else pos[2], pos[27] if g < 3 else pos[10], mf3))
            segs.append((pos[8] if (g == 0 and H1F) else base, end, merged))
        self.sched(mains, None, segs=segs)
        self.stamp(18)
        e(f's_mov_b32 s{S_T4}, {3*112*1024}')
        for f in epilogue_ops(3): (f[0] if isinstance(f, tuple) else f)()
        self.stamp(19)
        for x, n in ((vD,1),(vB,1),(vS,1),(t,1),(t2,1),(cs,32),(vA,1),(vG2,1),(sg2,6),(B,4*NB),(SB,8),(ones,4),(SG,8),(acc[0],32),(acc[1],32),(st,6),(par,3),(tmp,8),(pk,8),(vP,1),(vPw,1),(vBq,4),(vS2,1)):
            V.free(x, n)
        pass
        self.wait_lg('wdr3')
        for k_ in range(15, 19):
            for f in self.wd_dma(k_, 'wdD'): f()
        self.wait_vm('act'); e('s_barrier')
        e(f's_lshl_b32 s{S_T1}, s{S_RB}, 4\ns_add_u32 s{S_T1}, s{S_T1}, s{S_FB}')
        self.signal(WS_FLAG3, f's{S_T1}')
        self.stamp(20)

    def phaseC(self):
        e = self.e; V = self.V; o = self.o
        self.c('================= phase C')
        t = V.alloc(1); t2 = V.alloc(1)
        self.wait_all_lg()
        for k_ in range(19, 24):
            for f in self.wd_dma(k_, 'wdE'): f()
        self.wait_vm('wdC')
        for k_ in range(9, 15):
            for f in self.wd_reads(k_): f()
        self.wait_all_lg()
        for k_ in range(24, 28):
            for f in self.wd_dma(k_, 'wdF'): f()
        self.wait_vm('wdE')
        for k_ in range(15, 24):
            for f in self.wd_reads(k_): f()
        self.wait_vm('wdF')
        for k_ in range(24, 28):
            for f in self.wd_reads(k_): f()
        self.wait_all_lg()
        V.free(self.vWD, 2); V.free(self.vWT, 6)
        self.stamp(21)
        e(f's_lshr_b32 s{S_T0}, s{S_RB2}, 1\ns_mul_i32 s{S_T0}, s{S_T0}, {16*FLAG_STRIDE}')
        self.poll_flags(WS_FLAG3, 16, 1, sbase=S_T0, sleep=self.o.get('wsleep3', 1))
        self.vm.drain(); self.lg.drain()
        self.stamp(22)
        vA = V.alloc(1)
        e(f's_mul_i32 s{S_T0}, s{S_RB2}, {2*112}\ns_mul_i32 s{S_T1}, s{S_W}, 28\ns_add_u32 s{S_T0}, s{S_T0}, s{S_T1}\ns_lshl_b32 s{S_T0}, s{S_T0}, 10\ns_add_u32 s{S_T0}, s{S_T0}, {WS_ACT}\nv_lshl_add_u32 v{vA}, v1, 4, s{S_T0}')
        NR = o.get('NR', 7)
        Bf = V.alloc(8 * NR, 4); acc = V.alloc(64, 4)
        def ld(k):
            for nt in range(2):
                e(f's_add_u32 s{S_T1}, s{S_RA0 + k//7}, {(nt*112 + k%7)*1024}')
                self.vmem(f'buffer_load_dwordx4 {vr(Bf+8*(k%NR)+4*nt,4)}, v{vA}, s[{R_WS}:{R_WS+3}], s{S_T1} offen {o.get("aflags", "sc1")}', f'a{k}')
        for k in range(NR): ld(k)
        hres = V.alloc(8, 4); vR = V.alloc(1)
        e(f's_lshl_b32 s{S_T0}, s{S_RB2}, 1\ns_and_b32 s{S_T1}, s{S_W}, 1\ns_add_u32 s{S_T0}, s{S_T0}, s{S_T1}\ns_mul_i32 s{S_T0}, s{S_T0}, 28')
        e(f's_lshl_b32 s{S_T1}, s{S_DB}, 2\ns_add_u32 s{S_T0}, s{S_T0}, s{S_T1}\ns_and_b32 s{S_T1}, s{S_W}, 2\ns_add_u32 s{S_T0}, s{S_T0}, s{S_T1}\ns_lshl_b32 s{S_T0}, s{S_T0}, 10\ns_add_u32 s{S_T0}, s{S_T0}, {WS_HD}\nv_lshl_add_u32 v{vR}, v1, 4, s{S_T0}')
        A = lambda mt, nt: acc + 16 * (2 * mt + nt)
        for k in range(28):
            self.wait_vm(f'a{k}')
            for mt in range(2):
                for nt in range(2):
                    cin = '0' if k == 0 else vr(A(mt, nt), 16)
                    if o.get('x_nomfma2') and k > 0: continue
                    e(f'v_mfma_f32_32x32x16_bf16 {vr(A(mt,nt),16)}, {ar(8*k+4*mt,4)}, {vr(Bf+8*(k%NR)+4*nt,4)}, {cin}')
            if k + NR < 28: ld(k + NR)
            if o.get('g2stamps'):
                if k in (0, 7, 14, 21): self.stamp(26 + k // 7)
            if k == 28 - NR:
                for kk in range(2): self.vmem(f'buffer_load_dwordx4 {vr(hres+4*kk,4)}, v{vR}, s[{R_WS}:{R_WS+3}], 0 offen offset:{1024*kk} sc1', 'hres')
        self.stamp(23)
        V.free(Bf, 8 * NR)
        ra = V.alloc(1); keep = V.alloc(16, 4); rr = V.alloc(48, 4)
        e(f's_lshl_b32 s{S_T0}, s{S_W}, 12\nv_lshl_add_u32 v{ra}, v1, 4, s{S_T0}')
        labs = [self.lab(f'r{w}') for w in range(4)]; ld_ = self.lab('rd')
        for w in range(1, 4): e(f's_cmp_eq_u32 s{S_W}, {w}\ns_cbranch_scc1 {labs[w]}')
        for w in range(4):
            if w: self.label(labs[w]); e('s_nop 7\ns_nop 3')
            for T in range(4):
                if T == w: continue
                for q in range(4): e(f'ds_write_b128 v{ra}, {vr(acc+16*T+4*q,4)} offset:{T*16384 + q*1024}')
            for i in range(16): e(f'v_mov_b32 v{keep+i}, v{acc+16*w+i}')
            if w < 3: e(f's_branch {ld_}')
        self.label(ld_)
        e('s_waitcnt lgkmcnt(0)'); self.lg.drain()
        e('s_barrier')
        e(f's_lshl_b32 s{S_T0}, s{S_W}, 14\nv_lshl_add_u32 v{ra}, v1, 4, s{S_T0}')
        for j in range(1, 4):
            e(f's_add_u32 s{S_T1}, s{S_W}, {j}\ns_and_b32 s{S_T1}, s{S_T1}, 3\ns_lshl_b32 s{S_T1}, s{S_T1}, 12\nv_add_u32 v{t}, s{S_T1}, v{ra}')
            for q in range(4): self.ds(f'ds_read_b128 {vr(rr+16*(j-1)+4*q,4)}, v{t} offset:{q*1024}', f'rr{j}')
        vO = V.alloc(1)
        e(f'v_and_b32 v{t}, 31, v1\nv_mul_u32_u24 v{vO}, 896, v{t}\nv_lshrrev_b32 v{t}, 5, v1\nv_lshl_add_u32 v{vO}, v{t}, 4, v{vO}')
        e(f's_lshl_b32 s{S_T0}, s{S_RB2}, 1\ns_and_b32 s{S_T1}, s{S_W}, 1\ns_add_u32 s{S_T0}, s{S_T0}, s{S_T1}\ns_mul_i32 s{S_T0}, s{S_T0}, {32*896}')
        e(f's_lshl_b32 s{S_T1}, s{S_DB}, 7\ns_add_u32 s{S_T0}, s{S_T0}, s{S_T1}\ns_and_b32 s{S_T1}, s{S_W}, 2\ns_lshl_b32 s{S_T1}, s{S_T1}, 5\ns_add_u32 s{S_T0}, s{S_T0}, s{S_T1}\nv_add_u32 v{vO}, s{S_T0}, v{vO}')
        for j in range(1, 4):
            self.wait_lg(f'rr{j}')
            for i in range(0, 16, 2): e(f'v_pk_add_f32 {vr(keep+i,2)}, {vr(keep+i,2)}, {vr(rr+16*(j-1)+i,2)}')
        self.wait_vm('hres')
        P = V.alloc(8, 4); w8 = rr
        for d in range(8): e(f'v_cvt_pk_bf16_f32 v{P+d}, v{keep+2*d}, v{keep+2*d+1}')
        for d in range(8):
            e(f'v_lshlrev_b32 v{w8+2*d}, 16, v{P+d}\nv_and_b32 v{w8+2*d+1}, 0xffff0000, v{P+d}')
            e(f'v_lshlrev_b32 v{w8+16+2*d}, 16, v{hres+d}\nv_and_b32 v{w8+16+2*d+1}, 0xffff0000, v{hres+d}')
        for d in range(8): e(f'v_pk_add_f32 {vr(w8+2*d,2)}, {vr(w8+2*d,2)}, {vr(w8+16+2*d,2)}')
        for d in range(8): e(f'v_cvt_pk_bf16_f32 v{P+d}, v{w8+2*d}, v{w8+2*d+1}')
        for kk in range(2):
            b = P + 4 * kk
            e(f'v_permlane32_swap_b32 v{b}, v{b+2}\nv_permlane32_swap_b32 v{b+1}, v{b+3}')
        for kk in range(2):
            self.vmem(f'buffer_store_dwordx4 {vr(P+4*kk,4)}, v{vO}, s[{R_OUT}:{R_OUT+3}], 0 offen offset:{32*kk} {o.get("outflags", "")}', 'out')
        self.stamp(24)

    def build(self):
        e = self.e
        self.prologue()
        saveV = list(self.V.used)
        self.helper()
        self.V.used = saveV; self.vm.drain(); self.lg.drain()
        self.label('L_worker')
        self.phaseA()
        upto = self.o.get('upto', 'C')
        if upto in ('B', 'C'): self.phaseB()
        if upto == 'C': self.phaseC()
        self.stamps_out()
        if self.o.get('padto'):
            e('s_waitcnt vmcnt(0)')
            self.label('L_pad')
            e(f's_memrealtime s[{S_TS}:{S_TS+1}]\ns_waitcnt lgkmcnt(0)\ns_sub_u32 s{S_TS}, s{S_TS}, s{S_TS+6}\ns_cmp_lt_u32 s{S_TS}, {self.o.get("padto")}\ns_cbranch_scc1 L_pad')
        self.label('L_end')
        e('s_endpgm')

HEADER = open(os.path.join(os.path.dirname(os.path.abspath(__file__)), 'header.txt')).read() if os.path.exists(os.path.join(os.path.dirname(os.path.abspath(__file__)), 'header.txt')) else ''

def generate(opt):
    g = Gen(opt)
    g.build()
    lines, problems = fix_hazards(g.lines, verbose=opt.get('verbose', False))
    for p in problems: print('BACKEDGE HAZARD:', p, file=sys.stderr)
    out = [HEADER.rstrip('\n').replace('@@GRID@@', f'; @launch grid=(256,1,1) block=(256,1,1) lds={LDS_SIZE}')]
    out += ['.amdgcn_target "amdgcn-amd-amdhsa--gfx950"', '.text', f'.globl {NAME}', '.p2align 8', f'.type {NAME},@function', f'{NAME}:']
    for l in lines:
        out.append(l if l.endswith(':') else '    ' + l)
    out += ['.section .rodata,"a"', '.p2align 6', f'.amdhsa_kernel {NAME}',
            '  .amdhsa_next_free_vgpr 512', '  .amdhsa_next_free_sgpr 102', '  .amdhsa_accum_offset 256',
            '  .amdhsa_group_segment_fixed_size 0', '  .amdhsa_kernarg_size 128', '  .amdhsa_user_sgpr_count 2',
            '  .amdhsa_user_sgpr_kernarg_segment_ptr 1', '  .amdhsa_system_sgpr_workgroup_id_x 1',
            '  .amdhsa_float_denorm_mode_32 3', '.end_amdhsa_kernel', '']
    if opt.get('verbose'): print('max arch vgpr', g.V.hi, 'lines', len(lines))
    return '\n'.join(out)

if __name__ == '__main__':
    import json
    opt = json.loads(sys.argv[2]) if len(sys.argv) > 2 else {}
    opt['verbose'] = True
    txt = generate(opt)
    open(sys.argv[1], 'w').write(txt)
```

```python
import sys, os, math, struct
sys.path.insert(0, os.path.dirname(os.path.abspath(__file__)))
from asmlib import *

NAME = 'sequential_preLN__ssm_conv_s4__swiglu_ffn__prompt_kernel'
def f2u(x): return struct.unpack('<I', struct.pack('<f', x))[0]
def fx(x): return hex(f2u(x))
LOG2E = 1.4426950408889634
WS_STATS = 0x0
WS_FLAG2 = 0x4000
WS_FLAG3 = 0xC000
WS_STATS2 = 0x10000
WS_HT    = 0x20000
HT_STRIDE = 4352
WS_HD    = 0x200000
WS_ACT   = 0x400000
WS_XT    = 0xB00000
XT_STRIDE = 4352
WS_DBG   = 0xE00000
WS_SIZE  = 0x2000000
FLAG_STRIDE = 16
TBL_E = 1088; TBL_C = 18 * TBL_E
L_TBL = 0
L_EX = 2 * TBL_C
L_K32 = 55680; K32_C = 9344
L_RED = L_K32
L_STG = 87040; STG_SLOT = 8192
L_STGX = 74496
L_KC = 0; KC_S = 4160; KC_C = 4 * KC_S
L_U = 2 * KC_C; U_C = 5120
L_X = L_U + 2 * U_C; X_C = 4096
LDS_SIZE = 163840
HX_STRIDE = 912
S_X, S_ARE, S_AIM, S_BRE, S_BIM, S_CRE, S_CIM, S_LDT, S_DSK, S_BX, S_WG, S_WU, S_WD, S_OUT, S_DBG, S_WS = range(4, 36, 2)
R_X, R_WS, R_DBG, R_WG, R_WU, R_WD, R_OUT = 36, 40, 44, 48, 52, 56, 60
S_W, S_NONCE, S_XCD, S_J, S_CP, S_T0, S_T1, S_T2, S_T3, S_T4, S_T5 = 64, 65, 66, 67, 68, 69, 70, 71, 72, 73, 74
S_LD, S_DK = 75, 76
S_RB, S_FB, S_RB2, S_DB = 77, 78, 79, 80
S_M0, S_M1, S_M2, S_M3 = 82, 84, 86, 88
S_CNT = 90
S_HID = 91
S_WM, S_WO, S_US = 81, 100, 101
S_ROT = 99
S_WA, S_WB, S_WC = 18, 19, 20
S_RW0, S_RA0 = 24, 28
S_Q0 = 14
S_TS = 92
SPIN_MAX = 5000

class Gen(Asm):
    def __init__(self, opt):
        super().__init__()
        self.o = opt
        self.V = Regs('v', 256, start=2)
        if opt.get('stamps'): self.V.take(253, 3)
        self.uid = 0
    def lab(self, s):
        self.uid += 1
        return f'L{s}_{self.uid}'
    def srd(self, r, ptr, size):
        self.e(f's_mov_b32 s{r}, s{ptr}\ns_mov_b32 s{r+1}, s{ptr+1}\ns_mov_b32 s{r+2}, {hex(size)}\ns_mov_b32 s{r+3}, 0x20000')
    def cmul(self, d, a, b, t=None):
        t = d if t is None else t
        self.e(f'v_pk_mul_f32 {vr(t,2)}, {vr(a,2)}, {vr(b,2)} op_sel:[0,0] op_sel_hi:[0,1]')
        self.e(f'v_pk_fma_f32 {vr(d,2)}, {vr(a,2)}, {vr(b,2)}, {vr(t,2)} op_sel:[1,1,0] op_sel_hi:[1,0,1] neg_lo:[0,1,0]')
    def cmul_multi(self, items):
        for d, a, b, t in items:
            t = d if t is None else t
            self.e(f'v_pk_mul_f32 {vr(t,2)}, {vr(a,2)}, {vr(b,2)} op_sel:[0,0] op_sel_hi:[0,1]')
        for d, a, b, t in items:
            t = d if t is None else t
            self.e(f'v_pk_fma_f32 {vr(d,2)}, {vr(a,2)}, {vr(b,2)}, {vr(t,2)} op_sel:[1,1,0] op_sel_hi:[1,0,1] neg_lo:[0,1,0]')
    def stamp(self, i):
        dm = self.o.get('dbgmap')
        if dm and i in dm:
            lab = self.lab('ds')
            self.e(f's_cmp_lg_u32 s2, {self.o.get("dbgwg", 8)}\ns_cbranch_scc1 {lab}\ns_cmp_lg_u32 s{S_W}, 0\ns_cbranch_scc1 {lab}')
            self.e(f's_memrealtime s[{S_TS}:{S_TS+1}]\ns_waitcnt lgkmcnt(0)')
            v = self.V.alloc(2)
            self.e(f's_sub_u32 s{S_TS}, s{S_TS}, s{S_TS+6}\nv_mov_b32 v{v}, s{S_TS}\nv_mov_b32 v{v+1}, {4*(1+dm.index(i))}')
            self.e(f's_mov_b64 s[{S_TS+4}:{S_TS+5}], exec\ns_mov_b64 exec, 1')
            self.e(f'buffer_store_dword v{v}, v{v+1}, s[{R_DBG}:{R_DBG+3}], 0 offen')
            self.e(f's_mov_b64 exec, s[{S_TS+4}:{S_TS+5}]')
            self.V.free(v, 2)
            self.label(lab)
            self.e('s_waitcnt lgkmcnt(0)')
            self.lg.drain()
        if self.o.get('stamps') and (self.o.get('only') is None or i in self.o['only']):
            self.e(f's_memrealtime s[{S_TS}:{S_TS+1}]\ns_memtime s[{S_TS+4}:{S_TS+5}]')
            self.e('s_waitcnt lgkmcnt(0)'); self.lg.drain()
            self.e(f'v_writelane_b32 v254, s{S_TS}, {i}\nv_writelane_b32 v255, s{S_TS+4}, {i}')

    def stamps_out(self):
        if self.o.get('stamps'):
            e = self.e
            e(f's_lshl_b32 s{S_TS+2}, s2, 10\ns_lshl_b32 s{S_TS+3}, s{S_W}, 8\ns_add_u32 s{S_TS+2}, s{S_TS+2}, s{S_TS+3}\ns_add_u32 s{S_TS+2}, s{S_TS+2}, {WS_DBG}')
            e(f'v_lshl_add_u32 v253, v1, 2, s{S_TS+2}\ns_mov_b32 exec_lo, -1\ns_mov_b32 exec_hi, 0')
            e(f'buffer_store_dword v254, v253, s[{R_WS}:{R_WS+3}], 0 offen\nbuffer_store_dword v255, v253, s[{R_WS}:{R_WS+3}], 0 offen offset:128')

    def prologue(self):
        e = self.e
        e(f's_cmp_ge_u32 s2, 256\ns_cbranch_scc1 L_end')
        e(f's_load_dwordx16 s[4:19], s[0:1], 0\ns_load_dwordx16 s[20:35], s[0:1], 64')
        e(f's_memrealtime s[{S_M0}:{S_M0+1}]')
        e('v_and_b32 v1, 63, v0')
        if self.o.get('stamps'): e('v_mov_b32 v254, 0x5a5a5a5a\nv_mov_b32 v255, 0x5a5a5a5a')
        v = self.V.alloc(1)
        e(f'v_lshrrev_b32 v{v}, 6, v0')
        e(f's_and_b32 s{S_XCD}, s2, 7\ns_lshr_b32 s{S_J}, s2, 3')
        e(f'v_readfirstlane_b32 s{S_W}, v{v}')
        self.V.free(v)
        e(f's_cmp_lt_u32 s{S_J}, 4\ns_cbranch_scc1 L_helper')
        e(f's_sub_u32 s{S_J}, s{S_J}, 4\ns_mul_i32 s{S_CP}, s{S_XCD}, 28\ns_add_u32 s{S_CP}, s{S_CP}, s{S_J}\ns_branch L_worker')
        self.label('L_helper')

    def srds(self, skip=()):
        e = self.e
        for r, p, n in ((R_X, S_X, 2048*448*2), (R_WS, S_WS, WS_SIZE), (R_DBG, S_DBG, 256), (R_WG, S_WG, 448*1792*2), (R_WU, S_WU, 448*1792*2),
                        (R_WD, S_WD, 448*1792*2), (R_OUT, S_OUT, 2048*448*2)):
            if r not in skip: self.srd(r, p, n)

    def publish_nonce(self):
        e = self.e
        e(f's_or_b32 s{S_NONCE}, s{S_M0}, 1\ns_mov_b32 s{S_TS+6}, s{S_M0}')
        lab = self.lab('non')
        e(f's_or_b32 s{S_T0}, s2, s{S_W}\ns_cmp_lg_u32 s{S_T0}, 0\ns_cbranch_scc1 {lab}')
        v = self.V.alloc(2)
        e(f'v_mov_b32 v{v}, s{S_NONCE}\nv_mov_b32 v{v+1}, 0')
        e(f's_mov_b64 s[{S_M1}:{S_M1+1}], exec\ns_mov_b64 exec, 1')
        e(f'buffer_store_dword v{v}, v{v+1}, s[{R_DBG}:{R_DBG+3}], 0 offen sc1')
        e(f's_mov_b64 exec, s[{S_M1}:{S_M1+1}]')
        self.V.free(v, 2)
        self.label(lab)

    def capture(self, fn):
        save = self.lines; self.lines = []
        r = fn()
        fl = self.lines; self.lines = save
        return r, [(lambda l=l: self.e(l)) for l in fl if not l.startswith(';')]

    def region(self, fn):
        save = self.lines; self.lines = []
        r = fn()
        fl = self.lines; self.lines = save
        self.lines.extend(resched(fl) if self.o.get('resched', True) else fl)
        return r

    def two_paths(self, fn, nop=7):
        e = self.e; l1 = self.lab('p1'); ld = self.lab('pd')
        e(f's_and_b32 s{S_T5}, s{S_W}, 1\ns_cmp_lg_u32 s{S_T5}, 0\ns_cbranch_scc1 {l1}')
        st = (list(self.vm.q), list(self.lg.q), list(self.V.used))
        fn(0)
        e(f's_branch {ld}')
        end = (list(self.vm.q), list(self.lg.q), list(self.V.used))
        self.vm.q, self.lg.q, self.V.used = list(st[0]), list(st[1]), list(st[2])
        self.label(l1)
        e(f's_nop {nop}')
        fn(1)
        assert (self.vm.q, self.lg.q, self.V.used) == end, 'paths diverge'
        self.label(ld)

    def get_nonce(self):
        e = self.e
        v = self.V.alloc(2)
        l0 = self.lab('gn'); l1 = self.lab('gnd')
        e(f'v_mov_b32 v{v+1}, 0\ns_mov_b32 s{S_CNT}, 0')
        self.label(l0)
        e(f'buffer_load_dword v{v}, v{v+1}, s[{R_DBG}:{R_DBG+3}], 0 offen sc1')
        e('s_waitcnt vmcnt(0)'); self.vm.drain()
        e(f'v_readfirstlane_b32 s{S_NONCE}, v{v}')
        e(f's_cmp_lg_u32 s{S_NONCE}, 0\ns_cbranch_scc1 {l1}')
        e(f's_add_u32 s{S_CNT}, s{S_CNT}, 1\ns_cmp_lt_u32 s{S_CNT}, {SPIN_MAX}\ns_cbranch_scc1 {l0}')
        self.label(l1)
        self.V.free(v, 2)

    def helper(self):
        e = self.e; V = self.V
        self.c('================= helper: x^T + LN1 stats')
        e('s_waitcnt lgkmcnt(0)')
        self.srd(R_DBG, S_DBG, 256)
        self.publish_nonce()
        self.srd(R_X, S_X, 2048*448*2)
        e(f's_mov_b32 s{S_TS+6}, s{S_M0}')
        e(f's_lshl_b32 s{S_T0}, s{S_XCD}, 2\ns_add_u32 s{S_HID}, s{S_J}, s{S_T0}')
        va = V.alloc(1); t0 = V.alloc(1); t1 = V.alloc(1)
        e(f's_lshl_b32 s{S_T0}, s{S_HID}, 6\ns_lshl_b32 s{S_T1}, s{S_W}, 4\ns_add_u32 s{S_T0}, s{S_T0}, s{S_T1}')
        e(f's_mul_i32 s{S_T2}, s{S_T0}, 896\ns_mul_i32 s{S_T3}, s{S_T1}, {HX_STRIDE}')
        e(f'v_lshlrev_b32 v{va}, 4, v1')
        e(f's_mov_b64 s[{S_M1}:{S_M1+1}], exec\ns_mov_b32 exec_lo, -1\ns_mov_b32 exec_hi, 0x00ffffff')
        for r in range(16):
            e(f's_add_u32 m0, s{S_T3}, {r*HX_STRIDE}\ns_add_u32 s{S_T4}, s{S_T2}, {r*896}')
            self.vmem(f'buffer_load_dwordx4 v{va}, s[{R_X}:{R_X+3}], s{S_T4} offen lds', 'x')
        e(f's_mov_b64 exec, s[{S_M1}:{S_M1+1}]')
        self.srds(skip=(R_X, R_DBG))
        self.stamp(0)
        vT = V.alloc(1); vO = V.alloc(1); vA = V.alloc(1)
        e(f'v_lshrrev_b32 v{t0}, 4, v1\nv_lshlrev_b32 v{t0}, 1, v{t0}\nv_bfe_u32 v{t1}, v1, 1, 1\nv_add_u32 v{t0}, v{t0}, v{t1}\nv_lshlrev_b32 v{t0}, 3, v{t0}')
        e(f'v_bfe_u32 v{t1}, v1, 2, 2\nv_add_u32 v{t0}, v{t0}, v{t1}\nv_mul_u32_u24 v{vT}, {HX_STRIDE}, v{t0}')
        e(f'v_and_b32 v{t1}, 1, v1\nv_lshl_add_u32 v{vT}, v{t1}, 3, v{vT}\ns_lshl_b32 s{S_T0}, s{S_W}, 4\nv_add_u32 v{vT}, s{S_T0}, v{vT}')
        e(f's_lshl_b32 s{S_T0}, s{S_W}, 15\ns_lshl_b32 s{S_T1}, s{S_HID}, 10\ns_add_u32 s{S_T0}, s{S_T0}, s{S_T1}\ns_add_u32 s{S_T0}, s{S_T0}, {WS_XT}\nv_lshl_add_u32 v{vO}, v1, 4, s{S_T0}')
        e(f'v_and_b32 v{t0}, 15, v1\nv_lshrrev_b32 v{t1}, 4, v1')
        e(f's_lshl_b32 s{S_T0}, s{S_W}, 4\nv_add_u32 v{t0}, s{S_T0}, v{t0}\nv_mul_u32_u24 v{vA}, {HX_STRIDE}, v{t0}\nv_lshl_add_u32 v{vA}, v{t1}, 4, v{vA}')
        e(f's_lshl_b32 s{S_T0}, s{S_HID}, 6\nv_add_u32 v{t0}, s{S_T0}, v{t0}')
        XG = self.o.get('xg', True)
        self.get_nonce()
        Q = V.alloc(56, 4)
        if not XG:
            e('s_barrier')
            self.stamp(3)
            for u in range(14):
                for k_ in range(2):
                    self.ds(f'ds_read_b64_tr_b16 {vr(Q+4*u+2*k_,2)}, v{vT} offset:{64*u + 4*k_*HX_STRIDE}', f'q{u}')
            for u in range(14):
                self.wait_lg(f'q{u}')
                e(f's_mov_b32 s{S_T1}, {u*4*32768}')
                self.vmem(f'buffer_store_dwordx4 {vr(Q+4*u,4)}, v{vO}, s[{R_WS}:{R_WS+3}], s{S_T1} offen sc1', 'xt')
            self.stamp(4)
        else: self.stamp(3)
        xa = V.alloc(56, 4)
        for s in range(14): self.ds(f'ds_read_b128 {vr(xa+4*s,4)}, v{vA} offset:{64*s}', f'x{s}')
        acc = V.alloc(8, 4); ones = V.alloc(4, 4)
        for i in range(4): e(f'v_mov_b32 v{ones+i}, 0x3f803f80')
        e(f's_mov_b32 s6, 0x22222222\ns_mov_b32 s7, 0x22222222\ns_mov_b32 s8, 0x44444444\ns_mov_b32 s9, 0x44444444\ns_mov_b32 s10, 0x88888888\ns_mov_b32 s11, 0x88888888\ns_mov_b32 s12, 0x00f0000f\ns_mov_b32 s13, 0xf0000f00')
        for s in range(14):
            self.wait_lg(f'x{s}')
            e(f'v_mfma_f32_16x16x32_bf16 {vr(acc,4)}, {vr(xa+4*s,4)}, {vr(xa+4*s,4)}, {"0" if s == 0 else vr(acc,4)}')
            e(f'v_mfma_f32_16x16x32_bf16 {vr(acc+4,4)}, {vr(ones,4)}, {vr(xa+4*s,4)}, {"0" if s == 0 else vr(acc+4,4)}')
        e(f'v_cndmask_b32 v{acc}, v{acc}, v{acc+1}, s[6:7]\nv_cndmask_b32 v{acc}, v{acc}, v{acc+2}, s[8:9]\nv_cndmask_b32 v{acc+5}, v{acc}, v{acc+3}, s[10:11]')
        e(f'v_mov_b32 v{acc}, v{acc+4}\nv_mov_b32 v{acc+4}, v{acc+5}')
        S = acc; Qs = acc + 4
        pk = V.alloc(2, 2)
        self.ln_finalize(S, Qs, acc + 1, acc + 2, acc + 3)
        e(f'v_lshrrev_b32 v{pk}, 16, v{acc+1}\nv_or_b32 v{pk}, v{pk}, v{acc+2}')
        self.stamp(5)
        if not XG:
            self.wait_all_vm()
            e('s_barrier')
        self.stamp(6)
        e(f'v_mov_b32 v{pk+1}, s{S_NONCE}')
        e(f'v_lshlrev_b32 v{t0}, 3, v{t0}')
        if WS_STATS: e(f'v_add_u32 v{t0}, {WS_STATS}, v{t0}')
        e(f's_mov_b64 s[{S_M1}:{S_M1+1}], exec\ns_mov_b64 exec, s[12:13]')
        self.vmem(f'buffer_store_dwordx2 {vr(pk,2)}, v{t0}, s[{R_WS}:{R_WS+3}], 0 offen sc1', 'st')
        e(f's_mov_b64 exec, s[{S_M1}:{S_M1+1}]')
        self.stamp(1)
        V.free(pk, 2); V.free(acc, 8); V.free(ones, 4); V.free(xa, 56); V.free(Q, 56); V.free(vT); V.free(vO); V.free(vA)
        e('s_barrier')
        tw = self.o.get('touch_wd', 'mall')
        if tw:
            nl = 13 if tw == 'l2' else 2
            tv = V.alloc(13); ta = V.alloc(2)
            if tw == 'l2': e(f's_mul_i32 s{S_T0}, s{S_J}, {448*896}')
            else: e(f's_mul_i32 s{S_T0}, s{S_HID}, {56*896}')
            for k in range(nl):
                e(f'v_add_u32 v{ta}, {256*k}, v0\nv_min_u32 v{ta}, {3135 if tw == "l2" else 391}, v{ta}\nv_mul_u32_u24 v{ta+1}, 9363, v{ta}\nv_lshrrev_b32 v{ta+1}, 16, v{ta+1}')
                e(f'v_mul_u32_u24 v{tv+k}, 7, v{ta+1}\nv_sub_u32 v{ta}, v{ta}, v{tv+k}\nv_mul_u32_u24 v{ta+1}, 896, v{ta+1}\nv_lshl_add_u32 v{ta+1}, v{ta}, 7, v{ta+1}')
                e(f'buffer_load_dword v{tv+k}, v{ta+1}, s[{R_WD}:{R_WD+3}], s{S_T0} offen')
            self.wait_all_vm()
            V.free(tv, 13); V.free(ta, 2)
        self.c('helper: LN2 stats + hD')
        vD = V.alloc(1); vB = V.alloc(2); vS = V.alloc(1); vHs = V.alloc(1)
        e(f'v_lshrrev_b32 v{t0}, 3, v1\nv_mul_u32_u24 v{vD}, {HT_STRIDE}, v{t0}\nv_bfe_u32 v{t0}, v1, 4, 1\nv_lshlrev_b32 v{t0}, 2, v{t0}\nv_and_b32 v{t1}, 7, v1\nv_xor_b32 v{t0}, v{t0}, v{t1}\nv_lshl_add_u32 v{vD}, v{t0}, 4, v{vD}')
        e(f's_lshl_b32 s{S_T0}, s{S_HID}, 7\ns_mul_i32 s{S_T1}, s{S_W}, {8*HT_STRIDE}\ns_add_u32 s{S_T0}, s{S_T0}, s{S_T1}\ns_add_u32 s{S_T0}, s{S_T0}, {WS_HT}\nv_add_u32 v{vD}, s{S_T0}, v{vD}')
        e(f'v_lshrrev_b32 v{t0}, 5, v1\nv_lshlrev_b32 v{vB}, 9, v{t0}\nv_bfe_u32 v{t0}, v1, 2, 2\nv_lshl_add_u32 v{vB}, v{t0}, 7, v{vB}')
        e(f'v_bfe_u32 v{t0}, v1, 4, 1\nv_lshl_add_u32 v{vB}, v{t0}, 5, v{vB}\nv_and_b32 v{t0}, 3, v1\nv_lshl_add_u32 v{vB}, v{t0}, 3, v{vB}')
        e(f'v_bfe_u32 v{t0}, v1, 3, 1\nv_lshlrev_b32 v{t0}, 6, v{t0}\nv_xor_b32 v{t1}, 64, v{t0}\nv_add_u32 v{vB+1}, v{vB}, v{t1}\nv_add_u32 v{vB}, v{vB}, v{t0}')
        e(f'v_lshrrev_b32 v{t0}, 4, v1\nv_lshlrev_b32 v{vS}, 9, v{t0}\nv_bfe_u32 v{t0}, v1, 2, 2\nv_lshl_add_u32 v{vS}, v{t0}, 7, v{vS}\nv_and_b32 v{t0}, 3, v1\nv_lshl_add_u32 v{vS}, v{t0}, 3, v{vS}')
        e(f'v_bfe_u32 v{t0}, v1, 3, 1\ns_lshr_b32 s{S_T0}, s{S_W}, 1\nv_xor_b32 v{t0}, s{S_T0}, v{t0}\nv_lshl_add_u32 v{vS}, v{t0}, 6, v{vS}\ns_and_b32 s{S_T0}, s{S_W}, 1\ns_lshl_b32 s{S_T0}, s{S_T0}, 5\nv_add_u32 v{vS}, s{S_T0}, v{vS}')
        e(f's_mul_i32 s{S_T0}, s{S_HID}, {2*28}\ns_add_u32 s{S_T0}, s{S_T0}, s{S_W}\ns_lshl_b32 s{S_T0}, s{S_T0}, 10\ns_add_u32 s{S_T0}, s{S_T0}, {WS_HD}\nv_lshl_add_u32 v{vHs}, v1, 4, s{S_T0}')
        ones = V.alloc(4, 4); SG = V.alloc(8, 4); SB = V.alloc(56, 4)
        for i in range(4): e(f'v_mov_b32 v{ones+i}, 0x3f803f80')
        K1, K2, K3 = 6, 8, 10
        e(f's_mov_b32 s{K1}, 0x22222222\ns_mov_b32 s{K1+1}, 0x22222222\ns_mov_b32 s{K2}, 0x44444444\ns_mov_b32 s{K2+1}, 0x44444444')
        e(f's_mov_b32 s{K3}, 0x88888888\ns_mov_b32 s{K3+1}, 0x88888888\ns_mov_b32 s12, 0x00f0000f\ns_mov_b32 s13, 0xf0000f00')
        self.poll_flags(WS_FLAG2 + 32*FLAG_STRIDE, 64, 4, last_lanes=32, sleep=self.o.get('hsleep', 20))
        self.vm.drain(); self.lg.drain()
        self.stamp(7)
        e(f's_lshl_b32 s{S_T2}, s{S_W}, 10')
        for i in range(14):
            e(f's_add_u32 m0, s{S_T2}, {i*4096}\ns_mov_b32 s{S_T1}, {i*32*HT_STRIDE}')
            self.vmem(f'buffer_load_dwordx4 v{vD}, s[{R_WS}:{R_WS+3}], s{S_T1} offen sc1 lds', 'h')
        self.wait_all_vm(); e('s_barrier')
        self.stamp(8)
        for i in range(14):
            for h_ in range(2): self.ds(f'ds_read_b64_tr_b16 {vr(SB+4*i+2*h_,2)}, v{vS} offset:{i*4096 + 2048*h_}', f's{i}')
        for i in range(14):
            self.wait_lg(f's{i}')
            e(f'v_mfma_f32_16x16x32_bf16 {vr(SG,4)}, {vr(SB+4*i,4)}, {vr(SB+4*i,4)}, {"0" if i == 0 else vr(SG,4)}')
            e(f'v_mfma_f32_16x16x32_bf16 {vr(SG+4,4)}, {vr(ones,4)}, {vr(SB+4*i,4)}, {"0" if i == 0 else vr(SG+4,4)}')
        HB = V.alloc(56, 4)
        e(f'v_cndmask_b32 v{SG}, v{SG}, v{SG+1}, s[{K1}:{K1+1}]\nv_cndmask_b32 v{SG}, v{SG}, v{SG+2}, s[{K2}:{K2+1}]\nv_cndmask_b32 v{SG+5}, v{SG}, v{SG+3}, s[{K3}:{K3+1}]')
        self.ln_finalize(SG + 4, SG + 5, SG + 1, SG + 2, SG + 3)
        e(f'v_lshrrev_b32 v{SG}, 16, v{SG+1}\nv_or_b32 v{SG}, v{SG}, v{SG+2}\nv_mov_b32 v{SG+1}, s{S_NONCE}')
        e(f'v_and_b32 v{t0}, 15, v1\ns_lshl_b32 s{S_T0}, s{S_HID}, 6\ns_lshl_b32 s{S_T1}, s{S_W}, 4\ns_add_u32 s{S_T0}, s{S_T0}, s{S_T1}\nv_add_u32 v{t0}, s{S_T0}, v{t0}\nv_lshlrev_b32 v{t0}, 3, v{t0}\nv_add_u32 v{t0}, {WS_STATS2}, v{t0}')
        e(f's_mov_b64 s[{S_M1}:{S_M1+1}], exec\ns_mov_b64 exec, s[12:13]')
        self.vmem(f'buffer_store_dwordx2 {vr(SG,2)}, v{t0}, s[{R_WS}:{R_WS+3}], 0 offen sc1', 'st2')
        e(f's_mov_b64 exec, s[{S_M1}:{S_M1+1}]')
        self.stamp(9)
        e(f's_lshl_b32 s{S_T0}, s{S_W}, 11\nv_add_u32 v{vB}, s{S_T0}, v{vB}\nv_add_u32 v{vB+1}, s{S_T0}, v{vB+1}')
        for i in range(7):
            for gp in range(2):
                for h_ in range(2):
                    self.ds(f'ds_read_b64_tr_b16 {vr(HB+8*i+4*gp+2*h_,2)}, v{vB+gp} offset:{i*8192 + 1024*h_}', f'hb{i}_{gp}')
        for i in range(7):
            for gp in range(2):
                self.wait_lg(f'hb{i}_{gp}')
                e(f's_mov_b32 s{S_T1}, {(gp*28 + 4*i)*1024}')
                self.vmem(f'buffer_store_dwordx4 {vr(HB+8*i+4*gp,4)}, v{vHs}, s[{R_WS}:{R_WS+3}], s{S_T1} offen sc1', 'hd')
        self.wait_all_vm(); e('s_barrier')
        e(f's_lshr_b32 s{S_T1}, s{S_HID}, 1\ns_lshl_b32 s{S_T1}, s{S_T1}, 4\ns_and_b32 s{S_T2}, s{S_HID}, 1\ns_add_u32 s{S_T1}, s{S_T1}, s{S_T2}\ns_add_u32 s{S_T1}, s{S_T1}, 14')
        self.signal(WS_FLAG3, f's{S_T1}')
        self.stamp(2)
        self.stamps_out()
        e('s_branch L_end')

    def signal(self, base, sidx):
        e = self.e; V = self.V
        lab = self.lab('sig')
        e(f's_cmp_lg_u32 s{S_W}, 0\ns_cbranch_scc1 {lab}')
        v = V.alloc(2, 2)
        e(f's_mul_i32 s{S_T0}, {sidx}, {FLAG_STRIDE}\ns_add_u32 s{S_T0}, s{S_T0}, {base}')
        e(f'v_mov_b32 v{v}, s{S_NONCE}\nv_mov_b32 v{v+1}, s{S_T0}')
        e(f's_mov_b64 s[{S_M1}:{S_M1+1}], exec\ns_mov_b64 exec, 1')
        e(f'buffer_store_dword v{v}, v{v+1}, s[{R_WS}:{R_WS+3}], 0 offen sc1')
        e(f's_mov_b64 exec, s[{S_M1}:{S_M1+1}]')
        V.free(v, 2)
        self.label(lab)

    def rbf(self, d, s, pre=''):
        self.e(f'v_cvt_pk_bf16_f32 v{d}, v{s}, v{s}\nv_lshlrev_b32 v{d}, 16, v{d}')
    def ln_finalize(self, S, Q, dm, ds_, dt):
        e = self.e
        e(f'v_mul_f32 v{S}, {fx(1/448)}, v{S}')
        e(f'v_mul_f32 v{Q}, {fx(1/448)}, v{Q}')
        e(f'v_fma_f32 v{Q}, -v{S}, v{S}, v{Q}')
        e(f'v_max_f32 v{Q}, 0, v{Q}')
        self.rbf(dm, S)
        self.rbf(dt, Q)
        e(f'v_add_f32 v{dt}, {fx(1e-5)}, v{dt}')
        self.rbf(dt, dt)
        e(f'v_sqrt_f32 v{dt}, v{dt}')
        self.rbf(ds_, dt)

    def w1_setup(self):
        e = self.e; V = self.V
        self.vW1 = V.alloc(1); self.vTS = V.alloc(5)
        t = V.alloc(1); t2 = V.alloc(1)
        e(f'v_lshrrev_b32 v{t}, 4, v1\nv_mul_u32_u24 v{self.vW1}, 3584, v{t}\nv_lshlrev_b32 v{t}, 2, v{t}\nv_and_b32 v{t2}, 15, v1\nv_xor_b32 v{t}, v{t}, v{t2}\nv_lshl_add_u32 v{self.vW1}, v{t}, 4, v{self.vW1}')
        e(f's_lshl_b32 s{S_T0}, s{S_FB}, 8\ns_mul_i32 s{S_T1}, s{S_W}, {4*3584}\ns_add_u32 s{S_T0}, s{S_T0}, s{S_T1}\nv_add_u32 v{self.vW1}, s{S_T0}, v{self.vW1}')
        e(f's_lshl_b32 s{S_WM}, s{S_W}, 10\ns_add_u32 s{S_WM}, s{S_WM}, {L_STG}')
        a = self.vTS
        e(f'v_lshrrev_b32 v{t}, 5, v1\nv_lshlrev_b32 v{a}, 10, v{t}\nv_bfe_u32 v{t}, v1, 2, 2\nv_lshl_add_u32 v{a}, v{t}, 8, v{a}')
        e(f'v_xor_b32 v{t}, s{S_W}, v{t}\nv_lshl_add_u32 v{a}, v{t}, 6, v{a}')
        e(f'v_bfe_u32 v{t}, v1, 4, 1\nv_lshl_add_u32 v{a}, v{t}, 5, v{a}\nv_and_b32 v{t}, 3, v1\nv_lshl_add_u32 v{a}, v{t}, 3, v{a}')
        e(f'v_add_u32 v{a+1}, {L_STGX}, v{a}\nv_add_u32 v{a+2}, {L_STG + 65536}, v{a}\nv_add_u32 v{a+3}, 57344, v{a}\nv_mov_b32 v{a+4}, v{a}\nv_add_u32 v{a}, {L_STG}, v{a}')
        for q in range(4):
            e(f's_add_u32 s{S_T0}, s{S_ROT}, {q}\ns_and_b32 s{S_T0}, s{S_T0}, 3\ns_mul_i32 s{S_Q0+q}, s{S_T0}, {7*16*3584}')
        V.free(t); V.free(t2)
    @property
    def W1SLOT(self):
        if self.o.get('xg', True): return [0,1,2,3,4, 5,6,7,8,9, 0,1,2,3, 4,5,6,7,8,9, 10,11, 12,13,14,15,16,17]
        return [0,1,2,3,4, 5,6,7,8,9, 0,1,2,3,4, 0,1,2,3,5,6,7,8,9, 10,11,12,13]
    def w1_slot_off(self, k):
        s = self.W1SLOT[k]
        return s * STG_SLOT if s < 9 else (L_STGX - L_STG if s == 9 else (57344 + (s - 10)*STG_SLOT - L_STG if s < 12 else (s - 12)*STG_SLOT - L_STG))
    def w1_dma(self, k, tag, slot=None):
        e = self.e; sl = self.w1_slot_off(k)
        def m0(x): return f's_add_u32 m0, s{S_WM}, {x}' if x >= 0 else f's_sub_u32 m0, s{S_WM}, {-x}'
        return [lambda: e(f's_add_u32 s{S_WO}, s{S_Q0 + k // 7}, {(k % 7)*16*3584}'),
                lambda: e(m0(sl)),
                lambda: self.vmem(f'buffer_load_dwordx4 v{self.vW1}, s[{R_WG}:{R_WG+3}], s{S_WO} offen lds', tag),
                lambda: e(m0(sl + 4096)),
                lambda: self.vmem(f'buffer_load_dwordx4 v{self.vW1}, s[{R_WU}:{R_WU+3}], s{S_WO} offen lds', tag)]
    def w1_issue(self, k0, k1, tag):
        for k in range(k0, k1):
            for f in self.w1_dma(k, tag): f()
    def w1_reads(self, k):
        s = self.W1SLOT[k]
        if s == 9: a, sl = self.vTS + 1, 0
        elif s >= 12: a, sl = self.vTS + 4, (s - 12) * STG_SLOT
        elif s >= 10: a, sl = self.vTS + 3, (s - 10) * STG_SLOT
        else: a, sl = self.vTS, s * STG_SLOT
        assert sl + 6144 < 65536 + 8192
        out = []
        for q in range(4):
            off = sl + 2048 * q
            aa = a
            if off >= 65536: aa, off = self.vTS + 2, off - 65536
            out.append(lambda q=q, aa=aa, off=off: self.ds(f'ds_read_b64_tr_b16 {ar(8*k+2*q,2)}, v{aa} offset:{off}', 'w1r'))
        return out
    def w1_read(self, k0, k1):
        for k in range(k0, k1):
            for f in self.w1_reads(k): f()

    def phaseA(self):
        e = self.e; V = self.V; o = self.o
        self.c('================= phase A')
        par = V.alloc(6); t0 = V.alloc(1); t1 = V.alloc(1)
        e(f's_lshl_b32 s{S_T1}, s{S_CP}, 10\nv_lshl_add_u32 v{t0}, v0, 2, s{S_T1}\ns_lshl_b32 s{S_T0}, s{S_CP}, 2')
        e('s_waitcnt lgkmcnt(0)')
        for i, sp in enumerate((S_ARE, S_AIM, S_BRE, S_BIM, S_CRE, S_CIM)):
            self.vmem(f'global_load_dword v{par+i}, v{t0}, s[{sp}:{sp+1}]', 'par')
        e(f's_load_dword s{S_LD}, s[{S_LDT}:{S_LDT+1}], s{S_T0}\ns_load_dword s{S_DK}, s[{S_DSK}:{S_DSK+1}], s{S_T0}')
        self.srds()
        e(f's_mov_b32 s{S_TS+6}, s{S_M0}')
        self.stamp(0)
        XG = o.get('xg', True)
        xg = V.alloc(8); xa0 = V.alloc(1); xa1 = V.alloc(1)
        e(f's_lshl_b32 s{S_T0}, s{S_CP}, 2\nv_mul_u32_u24 v{xa0}, 7168, v0\nv_add_u32 v{xa0}, s{S_T0}, v{xa0}\nv_add_u32 v{xa1}, 4480, v{xa0}')
        def xgather(k):
            if k < 5: self.vmem(f'buffer_load_dword v{xg+k}, v{xa0}, s[{R_X}:{R_X+3}], 0 offen offset:{896*k}', 'xg')
            else: self.vmem(f'buffer_load_dword v{xg+k}, v{xa1}, s[{R_X}:{R_X+3}], 0 offen offset:{896*(k-5)}', 'xg')
        self.xgather = xgather
        tch = V.alloc(6, 2); self.tch = tch
        if o.get('codepf', True):
            lpc = self.lab('pc')
            e(f's_getpc_b64 s[{S_M2}:{S_M2+1}]')
            self.label(lpc)
            e(f's_sub_u32 s{S_M2}, s{S_M2}, {lpc}-{NAME}\ns_subb_u32 s{S_M2+1}, s{S_M2+1}, 0')
            e(f's_lshl_b32 s{S_T0}, s{S_J}, 4\ns_lshl_b32 s{S_T1}, s{S_W}, 2\ns_add_u32 s{S_T0}, s{S_T0}, s{S_T1}')
            e(f'v_add_u32 v{tch+3}, s{S_T0}, v1\nv_lshlrev_b32 v{tch+3}, 7, v{tch+3}\nv_min_u32 v{tch+3}, L_end-{NAME}, v{tch+3}')
            e(f'v_mov_b32 v{tch+5}, s{S_M2+1}\nv_add_co_u32 v{tch+4}, vcc, s{S_M2}, v{tch+3}\nv_addc_co_u32 v{tch+5}, vcc, 0, v{tch+5}, vcc')
            e(f's_mov_b64 s[{S_M1}:{S_M1+1}], exec\ns_mov_b64 exec, 15')
            self.vmem(f'global_load_dword v{tch+2}, v[{tch+4}:{tch+5}], off', 'cpf')
            e(f's_mov_b64 exec, s[{S_M1}:{S_M1+1}]')
        if o.get('touch_x', False):
            e(f's_lshl_b32 s{S_T0}, s{S_J}, 6\ns_lshl_b32 s{S_T1}, s{S_W}, 4\ns_add_u32 s{S_T0}, s{S_T0}, s{S_T1}')
            e(f'v_add_u32 v{tch}, s{S_T0}, v1\nv_mul_u32_u24 v{tch+1}, 9363, v{tch}\nv_lshrrev_b32 v{tch+1}, 16, v{tch+1}')
            e(f'v_mul_u32_u24 v{tch+2}, 7, v{tch+1}\nv_sub_u32 v{tch}, v{tch}, v{tch+2}\ns_lshl_b32 s{S_T0}, s{S_XCD}, 8\nv_add_u32 v{tch+1}, s{S_T0}, v{tch+1}')
            e(f'v_mul_u32_u24 v{tch+1}, 896, v{tch+1}\nv_lshl_add_u32 v{tch+1}, v{tch}, 7, v{tch+1}')
            e(f's_mov_b64 s[{S_M1}:{S_M1+1}], exec\ns_mov_b64 exec, 0xffff')
            self.vmem(f'buffer_load_dword v{tch+3}, v{tch+1}, s[{R_X}:{R_X+3}], 0 offen', 'tx')
            e(f's_mov_b64 exec, s[{S_M1}:{S_M1+1}]')
        self.map_bc()
        if o.get('touch_w1', False):
            e(f'v_mul_u32_u24 v{t1}, 4682, v0\nv_lshrrev_b32 v{t1}, 16, v{t1}\nv_mul_u32_u24 v{tch}, 14, v{t1}\nv_sub_u32 v{tch}, v0, v{tch}')
            e(f's_lshl_b32 s{S_T0}, s{S_J}, 4\nv_add_u32 v{t1}, s{S_T0}, v{t1}\nv_mul_u32_u24 v{t1}, 3584, v{t1}\nv_lshl_add_u32 v{t1}, v{tch}, 7, v{t1}')
            e(f's_and_b32 s{S_T0}, s{S_XCD}, 1\ns_mul_i32 s{S_T0}, s{S_T0}, 1792\nv_add_u32 v{t1}, s{S_T0}, v{t1}')
            e(f'v_cmp_gt_u32 vcc, 224, v0\ns_and_saveexec_b64 s[{S_M1}:{S_M1+1}], vcc')
            la = self.lab('tw'); e(f's_cbranch_execz {la}')
            self.vmem(f'buffer_load_dword v{tch}, v{t1}, s[{R_WG}:{R_WG+3}], 0 offen', 'tw')
            self.vmem(f'buffer_load_dword v{tch+1}, v{t1}, s[{R_WU}:{R_WU+3}], 0 offen', 'tw')
            self.label(la); e(f's_mov_b64 exec, s[{S_M1}:{S_M1+1}]')
        self.w1_setup()
        TW = o.get('touch_w1', False)
        if XG:
            for k in range(o.get('xg0', 3)): xgather(k)
        elif not TW: self.w1_issue(0, o.get('w0', 2), 'wa')
        self.stamp(1)
        ga = V.alloc(12, 2)
        self.ga = ga
        e(f'v_lshlrev_b32 v{t0}, 3, v0\nv_sub_u32 v{t0}, 2048, v{t0}')
        for k in range(1, 12):
            e(f'v_subrev_u32 v{ga+k-1}, {k}, v{t0}')
        e(f'v_mov_b32 v{ga+11}, 0')
        tt = V.alloc(2, 2)
        for k in range(0, 12, 2):
            a, b = ga + k, ga + k + 1
            e(f'v_max_i32 v{tt}, 0, v{a}\nv_max_i32 v{tt+1}, 0, v{b}')
            e(f'v_cvt_f32_u32 v{tt}, v{tt}\nv_cvt_f32_u32 v{tt+1}, v{tt+1}')
            e(f'v_cvt_pk_bf16_f32 v{t1}, v{tt}, v{tt+1}')
            e(f'v_lshlrev_b32 v{tt}, 16, v{t1}\nv_and_b32 v{tt+1}, 0xffff0000, v{t1}')
            e(f'v_cvt_u32_f32 v{tt}, v{tt}\nv_cvt_u32_f32 v{tt+1}, v{tt+1}')
            for x, r in ((tt, a), (tt + 1, b)):
                e(f'v_lshrrev_b32 v{t1}, 3, v{x}\nv_add_u32 v{x}, v{x}, v{t1}')
                if k >= 8:
                    e(f'v_cmp_gt_i32 vcc, 0, v{r}\nv_mov_b32 v{t1}, 2320\nv_cndmask_b32 v{x}, v{x}, v{t1}, vcc')
                e(f'v_lshlrev_b32 v{x}, 2, v{x}\nv_add_u32 v{r}, {L_K32}, v{x}')
        V.free(tt, 2)
        e('s_waitcnt lgkmcnt(0)'); self.lg.drain()
        e(f's_lshr_b32 s{S_T0}, s{S_W}, 1\ns_lshl_b32 s{S_T0}, s{S_T0}, 4')
        e(f's_lshr_b32 s{S_LD}, s{S_LD}, s{S_T0}\ns_lshl_b32 s{S_LD}, s{S_LD}, 16')
        e(f's_lshr_b32 s{S_DK}, s{S_DK}, s{S_T0}\ns_lshl_b32 s{S_DK}, s{S_DK}, 16')
        dt = V.alloc(2, 2); tt = V.alloc(2, 2)
        L_hi = struct.unpack('<f', struct.pack('<f', LOG2E))[0]; L_lo = LOG2E - L_hi
        e(f'v_mov_b32 v{dt}, s{S_LD}\nv_mul_f32 v{tt}, {fx(L_hi)}, v{dt}')
        e(f's_mov_b32 s{S_T1}, {fx(L_hi)}')
        e(f'v_fma_f32 v{tt+1}, v{dt}, s{S_T1}, -v{tt}\nv_fmac_f32 v{tt+1}, {fx(L_lo)}, v{dt}')
        e(f'v_exp_f32 v{tt}, v{tt}\nv_mul_f32 v{tt+1}, {fx(math.log(2))}, v{tt+1}')
        e(f'v_fma_f32 v{dt}, v{tt}, v{tt+1}, v{tt}')
        self.rbf(dt, dt)
        V.free(tt, 2)
        ka = self.kgen_setup()
        cv = self.conv_setup()
        xo = V.alloc(1)
        e(f's_lshr_b32 s{S_T0}, s{S_CP}, 2\ns_lshl_b32 s{S_T0}, s{S_T0}, 15\ns_and_b32 s{S_T1}, s{S_CP}, 3\ns_lshl_b32 s{S_T1}, s{S_T1}, 5\ns_add_u32 s{S_T0}, s{S_T0}, s{S_T1}\ns_add_u32 s{S_T0}, s{S_T0}, {WS_XT}\nv_lshl_add_u32 v{xo}, v0, 7, s{S_T0}')
        sa = V.alloc(1); nv = V.alloc(2, 2); lp = V.alloc(2, 2)
        e(f'v_lshlrev_b32 v{sa}, 6, v0\nv_mov_b32 v{nv+1}, 0')
        e(f'v_and_b32 v{lp+1}, 31, v1\nv_lshlrev_b32 v{lp+1}, 7, v{lp+1}\ns_lshl_b32 s{S_T0}, s{S_W}, 12\ns_add_u32 s{S_T0}, s{S_T0}, {WS_STATS + 4}\nv_add_u32 v{lp+1}, s{S_T0}, v{lp+1}')
        if WS_STATS: e(f'v_add_u32 v{sa}, {WS_STATS}, v{sa}')
        xs = list(range(o.get('xg0', 3), 8))
        if XG and xs: xgather(xs.pop(0))
        self.wait_vm('par')
        self.stamp(2)
        save_lines = self.lines; self.lines = []
        sc = V.alloc(12, 2)
        e(f'v_lshlrev_b32 v{sc+4}, 16, v{par+2}\nv_and_b32 v{sc+6}, 0xffff0000, v{par+2}')
        e(f'v_lshlrev_b32 v{sc+5}, 16, v{par+3}\nv_and_b32 v{sc+7}, 0xffff0000, v{par+3}')
        e(f'v_lshlrev_b32 v{sc+8}, 16, v{par+4}\nv_and_b32 v{sc+10}, 0xffff0000, v{par+4}')
        e(f'v_lshlrev_b32 v{sc+9}, 16, v{par+5}\nv_and_b32 v{sc+11}, 0xffff0000, v{par+5}')
        e(f'v_lshlrev_b32 v{sc}, 16, v{par}\nv_and_b32 v{sc+1}, 0xffff0000, v{par}')
        e(f'v_lshlrev_b32 v{sc+2}, 16, v{par+1}\nv_and_b32 v{sc+3}, 0xffff0000, v{par+1}')
        V.free(par, 6)
        for i in (4, 5, 6, 7, 0, 1, 2, 3): e(f'v_mul_f32 v{sc+i}, v{dt}, v{sc+i}')
        V.free(dt, 2)
        Q = lambda: V.alloc(4, 4)
        tq = Q(); pkt = V.alloc(4, 2); npk = [0]
        def qmul(d, a, b):
            self.cmul_multi([(d, a, b, None), (d + 2, a + 2, b + 2, None)])
        CB = Q()
        qmul(CB, sc + 8, sc + 4)
        mx = V.alloc(2, 2)
        e(f'v_max_f32 v{mx}, |v{CB}|, |v{CB+1}|\nv_max_f32 v{mx+1}, |v{CB+2}|, |v{CB+3}|')
        e(f'v_mul_f32 v{sc}, {fx(LOG2E)}, v{sc}\nv_mul_f32 v{sc+1}, {fx(LOG2E)}, v{sc+1}')
        e(f'v_max_f32 v{mx}, v{mx}, v{mx+1}')
        e(f'v_mul_f32 v{sc+2}, {fx(1/(2*math.pi))}, v{sc+2}\nv_mul_f32 v{sc+3}, {fx(1/(2*math.pi))}, v{sc+3}')
        for mod in ('quad_perm:[1,0,3,2]', 'quad_perm:[2,3,0,1]', 'row_half_mirror', 'row_mirror'):
            e(f'v_max_f32_dpp v{mx}, v{mx}, v{mx} {mod} row_mask:0xf bank_mask:0xf')
        for swap in ('v_permlane16_swap_b32', 'v_permlane32_swap_b32'):
            e(f'v_mov_b32 v{mx+1}, v{mx}\n{swap} v{mx}, v{mx+1}\nv_max_f32 v{mx}, v{mx}, v{mx+1}')
        e(f'v_readfirstlane_b32 s{S_T0}, v{mx}')
        e(f's_lshr_b32 s{S_T0}, s{S_T0}, 23\ns_max_u32 s{S_T0}, s{S_T0}, 14\ns_min_u32 s{S_T0}, s{S_T0}, 254')
        e(f's_sub_u32 s{S_T1}, 267, s{S_T0}\ns_lshl_b32 s{S_T1}, s{S_T1}, 23\ns_sub_u32 s{S_US}, s{S_T0}, 13\ns_lshl_b32 s{S_US}, s{S_US}, 23')
        V.free(mx, 2)
        if XG:
            if xs: xgather(xs.pop(0))
        elif not TW: self.w1_issue(o.get('w0', 2), 5, 'wa2')
        def direct(dst, ex):
            for m in range(2):
                if ex == 1:
                    e(f'v_exp_f32 v{tq+m}, v{sc+m}\nv_fract_f32 v{tq+2+m}, v{sc+2+m}')
                else:
                    e(f'v_mul_f32 v{tq+m}, {fx(float(ex))}, v{sc+m}\nv_mul_f32 v{tq+2+m}, {fx(float(ex))}, v{sc+2+m}')
            if ex != 1:
                for m in range(2): e(f'v_exp_f32 v{tq+m}, v{tq+m}\nv_fract_f32 v{tq+2+m}, v{tq+2+m}')
            for m in range(2):
                e(f'v_cos_f32 v{dst+2*m}, v{tq+2+m}\nv_sin_f32 v{dst+2*m+1}, v{tq+2+m}')
            for m in range(2):
                e(f'v_mul_f32 v{dst+2*m}, v{tq+m}, v{dst+2*m}\nv_mul_f32 v{dst+2*m+1}, v{tq+m}, v{dst+2*m+1}')
        wa = V.alloc(1)
        e(f'v_and_b32 v{wa}, 127, v0\nv_lshlrev_b32 v{wa}, 3, v{wa}\ns_lshr_b32 s{S_T0}, s{S_W}, 1\ns_mul_i32 s{S_T0}, s{S_T0}, {TBL_C}\nv_add_u32 v{wa}, s{S_T0}, v{wa}')
        def put(q, ent, conj=False):
            p = pkt + 2 * (npk[0] & 1); npk[0] += 1
            n = '-' if conj else ''
            e(f'v_cvt_pk_f16_f32 v{p}, v{q}, {n}v{q+1}\nv_cvt_pk_f16_f32 v{p+1}, v{q+2}, {n}v{q+3}')
            self.ds(f'ds_write_b64 v{wa}, {vr(p,2)} offset:{ent*TBL_E}')
        one = V.alloc(2, 2)
        e(f'v_mov_b32 v{one}, 0x3c00\nv_mov_b32 v{one+1}, 0x3c00')
        for ent in (0, 4, 12): self.ds(f'ds_write_b64 v{wa}, {vr(one,2)} offset:{ent*TBL_E}')
        V.free(one, 2)
        z1 = Q(); z2 = Q(); z3 = Q(); z4 = Q(); CS = Q()
        direct(z1, 1); put(z1, 1)
        for m in range(4): e(f'v_mul_f32 v{CS+m}, s{S_T1}, v{CB+m}')
        put(CS, 8, True)
        qmul(z2, z1, z1); put(z2, 2)
        qmul(z3, z2, z1); put(z3, 3)
        qmul(z4, z2, z2); put(z4, 5)
        qmul(z1, z4, z4); put(z1, 6)
        qmul(z2, z1, z4); put(z2, 7)
        qmul(z3, z1, z1); put(z3, 16)
        qmul(z1, z3, z3)
        qmul(z4, CS, z1); put(z4, 9, True)
        qmul(z2, z1, z1)
        qmul(z4, CS, z2); put(z4, 10, True)
        qmul(z3, z2, z1)
        qmul(z4, CS, z3); put(z4, 11, True)
        qmul(z1, z2, z2); put(z1, 13, True)
        qmul(z2, z1, z1); put(z2, 14, True)
        qmul(z3, z2, z1); put(z3, 15, True)
        qmul(z1, z2, z2); put(z1, 17, True)
        if XG and xs: xgather(xs.pop(0))
        self.xs = xs
        qmul(z2, z1, z1)
        qmul(z3, z2, z2)
        c48 = V.alloc(2, 2)
        e(f'v_mul_f32 v{c48}, v{CB}, v{z3}\nv_fma_f32 v{c48}, -v{CB+1}, v{z3+1}, v{c48}')
        e(f'v_fmac_f32 v{c48}, v{CB+2}, v{z3+2}\nv_fma_f32 v{c48}, -v{CB+3}, v{z3+3}, v{c48}')
        for q in (z1, z2, z3, z4, CB, CS, tq): V.free(q, 4)
        V.free(sc, 12); V.free(wa); V.free(pkt, 4)
        for mod in ('quad_perm:[1,0,3,2]', 'quad_perm:[2,3,0,1]', 'row_half_mirror', 'row_mirror'):
            e(f'v_add_f32_dpp v{c48}, v{c48}, v{c48} {mod} row_mask:0xf bank_mask:0xf')
        for swap in ('v_permlane16_swap_b32', 'v_permlane32_swap_b32'):
            e(f'v_mov_b32 v{c48+1}, v{c48}\n{swap} v{c48}, v{c48+1}\nv_add_f32 v{c48}, v{c48}, v{c48+1}')
        fl = self.lines; self.lines = save_lines
        self.lines.extend(resched(fl) if o.get('resched', True) else fl)
        if not TW and not XG: self.wait_vm('wa')
        self.wait_all_lg(); e('s_barrier')
        self.stamp(3)
        sg = V.alloc(16, 4); XP = V.alloc(8, 4)
        def light_loads(model=True):
            a = f'buffer_load_dword v{nv}, v{nv+1}, s[{R_DBG}:{R_DBG+3}], 0 offen sc1'
            b = f'buffer_load_dword v{lp}, v{lp+1}, s[{R_WS}:{R_WS+3}], 0 offen sc1'
            if model: self.vmem(a, 'lp'); self.vmem(b, 'lp')
            else: e(a); e(b)
        def light_wait():
            l0 = self.lab('lp'); l1 = self.lab('lpd'); l2 = self.lab('lpr')
            self.wait_vm('lp')
            e(f's_mov_b32 s{S_CNT}, 0')
            self.label(l0)
            e(f'v_readfirstlane_b32 s{S_NONCE}, v{nv}')
            e(f's_cmp_eq_u32 s{S_NONCE}, 0\ns_cbranch_scc1 {l2}')
            e(f'v_cmp_ne_u32 vcc, s{S_NONCE}, v{lp}\ns_cbranch_vccz {l1}')
            self.label(l2)
            e(f's_sleep {o.get("lsleep", 2)}')
            light_loads(False)
            e('s_waitcnt vmcnt(0)')
            e(f's_add_u32 s{S_CNT}, s{S_CNT}, 1\ns_cmp_lt_u32 s{S_CNT}, {SPIN_MAX}\ns_cbranch_scc1 {l0}')
            self.label(l1)
        def data_loads():
            for i in range(4): self.vmem(f'buffer_load_dwordx4 {vr(sg+4*i,4)}, v{sa}, s[{R_WS}:{R_WS+3}], 0 offen offset:{16*i} sc1', 'sg')
            self.vmem(f'buffer_load_dwordx4 {vr(XP,4)}, v{xo}, s[{R_WS}:{R_WS+3}], 0 offen sc1', 'sg')
            self.vmem(f'buffer_load_dwordx4 {vr(XP+4,4)}, v{xo}, s[{R_WS}:{R_WS+3}], 0 offen offset:16 sc1', 'sg')
        EARLY = o.get('early', True)
        self.light_loads = light_loads
        def full_poll():
            return [lambda: self.vmem(f'buffer_load_dword v{nv}, v{nv+1}, s[{R_DBG}:{R_DBG+3}], 0 offen sc1', 'sg')] + \
                   [lambda i=i: self.vmem(f'buffer_load_dwordx4 {vr(sg+4*i,4)}, v{sa}, s[{R_WS}:{R_WS+3}], 0 offen offset:{16*i} sc1', 'sg') for i in range(4)]
        self.full_poll = full_poll
        def after_main():
            if XG: return
            if EARLY: light_wait(); data_loads()
            else: light_loads()
            if TW: self.wait_vm('wa')
            else: self.wait_vm('wa2')
        def after_b2a():
            if XG:
                self.w1_issue(3, 5, 'wa'); return
            if TW: self.w1_read(0, 5)
            else: self.w1_read(o.get('w0', 2), 5)
            self.w1_issue(8, 9, 'wb')
        self.kgen_main(ka, c48, after_main, after_b2a)
        V.free(c48, 2)
        self.wait_all_lg(); e('s_barrier')
        self.stamp(4)
        gat = self.expand_gather()
        if not XG and not EARLY: light_wait(); data_loads()
        V.free(lp, 2)
        self.stamp(7)
        if XG: self.w1_issue(5, 6, 'wb')
        else: self.w1_issue(9, 10, 'wb')
        self.expand_write(gat)
        if XG: self.w1_issue(6, 7, 'wb')
        else: self.w1_issue(10, 11, 'wc')
        self.stamp(5)
        if XG:
            self.wait_vm('xg')
            e(f's_mov_b32 s{S_T0}, 0x05040100\ns_mov_b32 s{S_T1}, 0x07060302')
            for d in range(4):
                e(f'v_perm_b32 v{XP+d}, v{xg+2*d+1}, v{xg+2*d}, s{S_T0}\nv_perm_b32 v{XP+4+d}, v{xg+2*d+1}, v{xg+2*d}, s{S_T1}')
            self.verify_stats(sg, sa, nv, with_nonce=True)
        else: self.verify_stats(sg, sa, nv)
        V.free(nv, 2); V.free(xo); V.free(xg, 8); V.free(xa0); V.free(xa1)
        self.region(lambda: self.normalize(XP, sg))
        V.free(sg, 16); V.free(sa); V.free(XP, 8)
        if XG: self.wait_vm('wa')
        self.wait_all_lg(); e('s_barrier')
        self.stamp(6)
        if XG: self.w1_read(0, 5)
        if o.get('touch_wd2', False):
            ta = V.alloc(2)
            for q in range(2):
                e(f'v_add_u32 v{ta}, {224*q}, v0\nv_mul_u32_u24 v{ta+1}, 9363, v{ta}\nv_lshrrev_b32 v{ta+1}, 16, v{ta+1}\nv_mul_u32_u24 v{tch+q}, 7, v{ta+1}\nv_sub_u32 v{ta}, v{ta}, v{tch+q}')
                e(f's_lshl_b32 s{S_T0}, s{S_J}, 6\nv_add_u32 v{ta+1}, s{S_T0}, v{ta+1}\nv_mul_u32_u24 v{ta+1}, 896, v{ta+1}\nv_lshl_add_u32 v{ta+1}, v{ta}, 7, v{ta+1}')
                e(f'v_cmp_gt_u32 vcc, 224, v0\ns_and_saveexec_b64 s[{S_M1}:{S_M1+1}], vcc')
                la = self.lab('td'); e(f's_cbranch_execz {la}')
                e(f'buffer_load_dword v{tch+2+q}, v{ta+1}, s[{R_WD}:{R_WD+3}], 0 offen')
                self.label(la); e(f's_mov_b64 exec, s[{S_M1}:{S_M1+1}]')
            V.free(ta, 2)
        fill = []
        for k in (range(7, 10) if XG else range(11, 14)): fill += self.w1_dma(k, 'wc')
        self.conv(cv, fill)
        V.free(t0); V.free(t1)
        self.stamp(8)
        self.wait_vm('ht'); self.wait_all_lg(); e('s_barrier')
        self.signal(WS_FLAG2, 's2')
        self.stamp(9)
        V.free(tch, 6)
        self.cs = V.alloc(32, 4); self.ones = V.alloc(4, 4)
        for i in range(4): e(f'v_mov_b32 v{self.ones+i}, 0x3f803f80')
        _, setup = self.capture(self.phaseB_setup)
        self.K0 = 10 if XG else 14
        dma = [f for k in range(14 if XG else 15, 28) for f in self.w1_dma(k, 'we')]
        mains = []
        for k in range(self.K0):
            for u in range(2):
                c = '0' if k == 0 else vr(self.cs + 16*u, 16)
                mains.append(([], lambda k=k, u=u, c=c: e(f'v_mfma_f32_32x32x16_bf16 {vr(self.cs+16*u,16)}, {ar(8*k+4*u,4)}, {vr(self.ones,4)}, {c}'), 32, []))
        merged = []
        while dma or setup:
            for _ in range(2):
                if dma: merged.append(dma.pop(0))
            for _ in range(5):
                if setup: merged.append(setup.pop(0))
        self.sched(mains, [(x, 1) for x in merged])
        self.stamp(12)

    def cs_mfma(self, k0, k1):
        for k in range(k0, k1):
            for u in range(2):
                c = '0' if k == 0 else vr(self.cs + 16*u, 16)
                self.e(f'v_mfma_f32_32x32x16_bf16 {vr(self.cs+16*u,16)}, {ar(8*k+4*u,4)}, {vr(self.ones,4)}, {c}')

    def verify_stats(self, sg, sa, nv, with_nonce=False):
        e = self.e; V = self.V
        l0 = self.lab('sp'); l1 = self.lab('spd')
        t = V.alloc(2)
        self.wait_vm('sg')
        e(f's_mov_b32 s{S_CNT}, 0')
        self.label(l0)
        l2 = self.lab('spr')
        if with_nonce:
            e(f'v_readfirstlane_b32 s{S_NONCE}, v{nv}')
            e(f's_cmp_eq_u32 s{S_NONCE}, 0\ns_cbranch_scc1 {l2}')
        e(f'v_min3_u32 v{t}, v{sg+1}, v{sg+3}, v{sg+5}\nv_max3_u32 v{t+1}, v{sg+1}, v{sg+3}, v{sg+5}')
        e(f'v_min3_u32 v{t}, v{t}, v{sg+7}, v{sg+9}\nv_max3_u32 v{t+1}, v{t+1}, v{sg+7}, v{sg+9}')
        e(f'v_min3_u32 v{t}, v{t}, v{sg+11}, v{sg+13}\nv_max3_u32 v{t+1}, v{t+1}, v{sg+11}, v{sg+13}')
        e(f'v_min_u32 v{t}, v{t}, v{sg+15}\nv_max_u32 v{t+1}, v{t+1}, v{sg+15}')
        e(f'v_xor_b32 v{t}, s{S_NONCE}, v{t}\nv_xor_b32 v{t+1}, s{S_NONCE}, v{t+1}\nv_or_b32 v{t}, v{t}, v{t+1}\nv_cmp_ne_u32 vcc, 0, v{t}')
        e(f's_cbranch_vccz {l1}')
        self.label(l2)
        if with_nonce: e(f's_sleep 2\nbuffer_load_dword v{nv}, v{nv+1}, s[{R_DBG}:{R_DBG+3}], 0 offen sc1')
        for i in range(4): e(f'buffer_load_dwordx4 {vr(sg+4*i,4)}, v{sa}, s[{R_WS}:{R_WS+3}], 0 offen offset:{16*i} sc1')
        e('s_waitcnt vmcnt(0)')
        e(f's_add_u32 s{S_CNT}, s{S_CNT}, 1\ns_cmp_lt_u32 s{S_CNT}, {SPIN_MAX}\ns_cbranch_scc1 {l0}')
        self.label(l1)
        V.free(t, 2)

    def map_bc(self):
        e = self.e
        if self.o.get('mapB', '47') == 'rows':
            e(f's_cmp_ge_u32 s{S_J}, 14\ns_cselect_b32 s{S_T0}, 1, 0\ns_lshl_b32 s{S_RB}, s{S_XCD}, 1\ns_add_u32 s{S_RB}, s{S_RB}, s{S_T0}')
            e(f's_mul_i32 s{S_T0}, s{S_T0}, 14\ns_sub_u32 s{S_FB}, s{S_J}, s{S_T0}')
        else:
            e(f's_mul_i32 s{S_T0}, s{S_J}, 37\ns_lshr_b32 s{S_T0}, s{S_T0}, 8')
            e(f's_lshr_b32 s{S_RB}, s{S_XCD}, 1\ns_lshl_b32 s{S_RB}, s{S_RB}, 2\ns_add_u32 s{S_RB}, s{S_RB}, s{S_T0}')
            e(f's_mul_i32 s{S_T0}, s{S_T0}, 7\ns_sub_u32 s{S_FB}, s{S_J}, s{S_T0}\ns_and_b32 s{S_T0}, s{S_XCD}, 1\ns_mul_i32 s{S_T0}, s{S_T0}, 7\ns_add_u32 s{S_FB}, s{S_FB}, s{S_T0}')
        if self.o.get('rot', True): e(f's_and_b32 s{S_ROT}, s{S_RB}, 3')
        else: e(f's_mov_b32 s{S_ROT}, 0')
        e(f's_mul_i32 s{S_T0}, s{S_J}, 37\ns_lshr_b32 s{S_T0}, s{S_T0}, 8')
        e(f's_lshl_b32 s{S_RB2}, s{S_XCD}, 2\ns_add_u32 s{S_RB2}, s{S_RB2}, s{S_T0}\ns_mul_i32 s{S_T0}, s{S_T0}, 7\ns_sub_u32 s{S_DB}, s{S_J}, s{S_T0}')

    def kgen_setup(self):
        e = self.e; V = self.V
        aLo = V.alloc(1); aHi = V.alloc(1); aC = V.alloc(1); t = V.alloc(1)
        aEx = V.alloc(2); aS = V.alloc(2); aK = V.alloc(2)
        e(f's_lshr_b32 s{S_T0}, s{S_W}, 1\ns_mul_i32 s{S_T0}, s{S_T0}, {TBL_C}\ns_and_b32 s{S_T1}, s{S_W}, 1\ns_lshl_b32 s{S_T1}, s{S_T1}, 9\ns_add_u32 s{S_T0}, s{S_T0}, s{S_T1}')
        e(f'v_lshrrev_b32 v{t}, 4, v1\nv_lshlrev_b32 v{aC}, 4, v{t}\nv_add_u32 v{aC}, s{S_T0}, v{aC}')
        e(f'v_and_b32 v{t}, 3, v1\nv_mul_u32_u24 v{t}, {TBL_E}, v{t}\nv_add_u32 v{aLo}, v{aC}, v{t}')
        e(f'v_bfe_u32 v{t}, v1, 2, 2\nv_mul_u32_u24 v{t}, {TBL_E}, v{t}\nv_add_u32 v{aHi}, v{aC}, v{t}')
        e(f's_lshl_b32 s{S_T0}, s{S_W}, 12\ns_add_u32 s{S_T0}, s{S_T0}, {L_EX}\nv_lshl_add_u32 v{aEx}, v1, 4, s{S_T0}')
        e(f's_xor_b32 s{S_T1}, s{S_W}, 1\ns_lshl_b32 s{S_T0}, s{S_T1}, 12\ns_add_u32 s{S_T0}, s{S_T0}, {L_EX}\nv_lshl_add_u32 v{aEx+1}, v1, 4, s{S_T0}')
        e(f's_lshl_b32 s{S_T0}, s{S_W}, 2\ns_add_u32 s{S_T0}, s{S_T0}, {L_EX + 16384}\nv_mov_b32 v{aS}, s{S_T0}')
        e(f's_lshl_b32 s{S_T0}, s{S_T1}, 2\ns_add_u32 s{S_T0}, s{S_T0}, {L_EX + 16384}\nv_mov_b32 v{aS+1}, s{S_T0}')
        e(f'v_and_b32 v{aK}, 15, v1\nv_lshrrev_b32 v{t}, 3, v{aK}\nv_add_u32 v{aK}, v{aK}, v{t}')
        e(f'v_lshrrev_b32 v{t}, 4, v1\nv_mul_u32_u24 v{t}, 144, v{t}\nv_add_u32 v{aK}, v{aK}, v{t}\nv_lshlrev_b32 v{aK}, 2, v{aK}')
        e(f's_lshr_b32 s{S_T0}, s{S_W}, 1\ns_mul_i32 s{S_T0}, s{S_T0}, {K32_C}\ns_add_u32 s{S_T0}, s{S_T0}, {L_K32}\nv_mov_b32 v{aK+1}, s{S_T0}')
        e(f's_and_b32 s{S_T1}, s{S_W}, 1\ns_mul_i32 s{S_T1}, s{S_T1}, {4*576*2}\ns_add_u32 s{S_T1}, s{S_T1}, s{S_T0}\nv_add_u32 v{aK}, s{S_T1}, v{aK}')
        V.free(t)
        return (aLo, aHi, aC, aEx, aS, aK)

    def kgen_main(self, ka, c48, after_main, after_b2a):
        e = self.e; V = self.V
        self.c('---- kgen main (f16 operands)')
        aLo, aHi, aC, aEx, aS, aK = ka
        TB = [[V.alloc(4, 4) for _ in range(6)] for _ in range(2)]
        tmp = V.alloc(4, 4)
        PV = [[V.alloc(4, 4) for _ in range(2)] for _ in range(2)]
        PW = [V.alloc(4, 4) for _ in range(4)]
        D = [[V.alloc(4, 4) for s in range(2)] for t_ in range(4)]
        ents = ((aLo, 0), (aHi, 4), (aC, 16), (aLo, 8), (aHi, 12), (aC, 17))
        def rd(st, i):
            ad, ent = ents[i]
            self.ds(f'ds_read_b128 {vr(TB[st&1][i],4)}, v{ad} offset:{ent*TBL_E + st*64}', f'tb{st}')
        def cm(d, a, b):
            L = [f'v_pk_mul_f16 v{tmp+c}, v{a+c}, v{b+c} op_sel:[0,0] op_sel_hi:[0,1]' for c in range(4)]
            L += [f'v_pk_fma_f16 v{d+c}, v{a+c}, v{b+c}, v{tmp+c} op_sel:[1,1,0] op_sel_hi:[1,0,1] neg_lo:[0,1,0]' for c in range(4)]
            return L
        for i in range(6): rd(0, i)
        pend = []
        for st in range(8):
            T1, T2, Z16, T3, T4, Z512 = TB[st & 1]; pv = PV[st & 1]
            extra = []
            if st + 1 < 8: extra += [lambda i=i, st=st: rd(st + 1, i) for i in range(6)]
            if self.o.get('xg', True):
                if st in (1, 3, 4, 5) and self.xs: extra += [lambda k=self.xs.pop(0): self.xgather(k)]
                if st == self.o.get('pollstep', 6): extra += self.full_poll()
                wst = self.o.get('wst', [4, 6, 7])
                if st in wst: extra += self.w1_dma(wst.index(st), 'wa')
            else:
                if st == self.o.get('pollstep', 5) and self.o.get('early', True): extra += [lambda: self.light_loads()]
                if not self.o.get('touch_w1', False):
                    if st < self.o.get('w0', 2): extra += self.w1_reads(st)
                    ks = self.o.get('kdma', [0, 1, 2])
                    if st in ks: extra += self.w1_dma(5 + ks.index(st), 'wb')
                else:
                    extra += self.w1_dma(st, 'wa' if st < 5 else 'wb')
            self.wait_lg(f'tb{st}')
            blocks = [cm(pv[0], T1, T2), cm(pv[1], pv[0], Z16), cm(PW[0], T3, T4)]
            for tt in range(1, 4): blocks.append(cm(PW[tt], PW[tt-1], Z512))
            def popm():
                if pend:
                    pend.pop(0)()
                    for _ in range(2):
                        if extra: extra.pop(0)()
            for bi, ins in enumerate(blocks):
                for q, l in enumerate(ins):
                    e(l)
                    if q in (1, 5): popm()
                if bi >= 2:
                    tt = bi - 2
                    for s in range(2):
                        cin = '0' if st == 0 else vr(D[tt][s], 4)
                        pend.append(lambda tt=tt, s=s, cin=cin, pv=pv: e(f'v_mfma_f32_16x16x32_f16 {vr(D[tt][s],4)}, {vr(PW[tt],4)}, {vr(pv[s],4)}, {cin}'))
            while len(pend) > 2: popm()
            for x in extra: x()
        while pend: pend.pop(0)()
        self.stamp(13)
        after_main()
        us = V.alloc(2, 2)
        e(f'v_mov_b32 v{us}, s{S_US}')
        R4 = TB[0][:4]; Va = tmp
        def exch(half):
            snd = [(t_, s) for t_ in (2 - 2*half, 3 - 2*half) for s in range(2)]
            kp = [(t_, s) for t_ in (2*half, 2*half + 1) for s in range(2)]
            for i, (t_, s) in enumerate(snd):
                for r in (0, 2): e(f'v_pk_mul_f32 {vr(D[t_][s]+r,2)}, {vr(D[t_][s]+r,2)}, {vr(us,2)} op_sel_hi:[1,0]')
                self.ds(f'ds_write_b128 v{aEx}, {vr(D[t_][s],4)} offset:{1024*i}', 'exw')
            e(f's_mov_b64 s[{S_M1}:{S_M1+1}], exec\ns_mov_b64 exec, 1')
            self.ds(f'ds_write_b32 v{aS}, v{c48}', 'exw')
            e(f's_mov_b64 exec, s[{S_M1}:{S_M1+1}]')
            self.wait_all_lg()
            e('s_barrier')
            for i in range(4): self.ds(f'ds_read_b128 {vr(R4[i],4)}, v{aEx+1} offset:{1024*i}', f'ex{i}')
            self.ds(f'ds_read_b32 v{Va}, v{aS+1}', 'exc')
            for i, (t_, s) in enumerate(kp):
                self.wait_lg(f'ex{i}')
                for r in (0, 2): e(f'v_pk_fma_f32 {vr(D[t_][s]+r,2)}, {vr(D[t_][s]+r,2)}, {vr(us,2)}, {vr(R4[i]+r,2)} op_sel_hi:[1,0,1]')
                for r in range(4):
                    self.ds(f'ds_write_b32 v{aK}, v{D[t_][s]+r} offset:{4*(576*(i >> 1) + 36*r + 18*s)}')
            self.wait_lg('exc')
            e(f'v_add_f32 v{c48}, v{c48}, v{Va}\nv_mov_b32 v{c48+1}, 0')
            e(f's_mov_b64 s[{S_M1}:{S_M1+1}], exec\ns_mov_b64 exec, 1')
            self.ds(f'ds_write_b32 v{aK+1}, v{c48} offset:9216')
            self.ds(f'ds_write_b32 v{aK+1}, v{c48+1} offset:9280')
            e(f's_mov_b64 exec, s[{S_M1}:{S_M1+1}]')
        self.two_paths(exch)
        after_b2a()
        V.free(us, 2)
        for row in TB + PV:
            for x in row: V.free(x, 4)
        for x in PW: V.free(x, 4)
        V.free(tmp, 4)
        for row in D:
            for x in row: V.free(x, 4)
        for x in (aLo, aHi, aC): V.free(x)
        V.free(aEx, 2); V.free(aS, 2); V.free(aK, 2)

    def expand_gather(self):
        e = self.e; V = self.V; ga = self.ga
        self.c('---- expand K into 4 shifted bf16 copies')
        z = V.alloc(4, 4); t = V.alloc(1); t2 = V.alloc(1)
        g = V.alloc(22, 2)
        for i in range(4): e(f'v_mov_b32 v{z+i}, 0')
        e(f'v_lshrrev_b32 v{t}, 2, v0\nv_mul_u32_u24 v{t}, {KC_S}, v{t}\nv_and_b32 v{t2}, 3, v0\nv_lshl_add_u32 v{t}, v{t2}, 4, v{t}')
        e(f'v_cmp_gt_u32 vcc, 32, v0\ns_and_saveexec_b64 s[{S_M1}:{S_M1+1}], vcc')
        la = self.lab('zc'); e(f's_cbranch_execz {la}')
        e(f'ds_write_b128 v{t}, {vr(z,4)} offset:{L_KC + 4096}')
        self.label(la); e(f's_mov_b64 exec, s[{S_M1}:{S_M1+1}]')
        e(f'v_lshrrev_b32 v{t}, 6, v0\nv_mul_u32_u24 v{t}, {U_C}, v{t}\nv_lshl_add_u32 v{t}, v1, 4, v{t}')
        e(f'v_cmp_gt_u32 vcc, 128, v0\ns_and_saveexec_b64 s[{S_M1}:{S_M1+1}], vcc')
        la = self.lab('zu'); e(f's_cbranch_execz {la}')
        e(f'ds_write_b128 v{t}, {vr(z,4)} offset:{L_U}')
        self.label(la); e(f's_mov_b64 exec, s[{S_M1}:{S_M1+1}]')
        for k in range(11): self.ds(f'ds_read_b32 v{g+k}, v{ga+k} offset:0', 'g0')
        for k in range(11): self.ds(f'ds_read_b32 v{g+11+k}, v{ga+k} offset:{K32_C}', 'g1')
        V.free(t); V.free(t2); V.free(z, 4)
        return g
    def expand_write(self, g):
        e = self.e; V = self.V; ga = self.ga
        P = V.alloc(32, 4); wa = V.alloc(1)
        e(f'v_lshlrev_b32 v{wa}, 4, v0')
        for c in range(2):
            self.wait_lg(f'g{c}')
            v = lambda k: g + 11 * c + (k - 1)
            for sc_ in range(4):
                s = 4 - sc_
                for dd in range(4):
                    e(f'v_cvt_pk_bf16_f32 v{P+16*c+4*sc_+dd}, v{v(s+2*dd)}, v{v(s+2*dd+1)}')
                self.ds(f'ds_write_b128 v{wa}, {vr(P+16*c+4*sc_,4)} offset:{L_KC + c*KC_C + sc_*KC_S}')
        V.free(g, 22); V.free(P, 32); V.free(wa); V.free(ga, 12)

    def normalize(self, XP, sg):
        e = self.e; V = self.V
        self.c('---- LN1 normalize own columns')
        xa = V.alloc(16, 2)
        ms = V.alloc(16, 2)
        for k in range(8):
            e(f'v_lshlrev_b32 v{ms+k}, 16, v{sg+2*k}\nv_and_b32 v{ms+8+k}, 0xffff0000, v{sg+2*k}')
        for k in range(8): e(f'v_rcp_f32 v{ms+8+k}, v{ms+8+k}')
        wa = V.alloc(1); t = V.alloc(1)
        e(f'v_bfe_u32 v{t}, v0, 4, 1\nv_lshlrev_b32 v{t}, 1, v{t}\nv_xor_b32 v{wa}, v0, v{t}\nv_lshlrev_b32 v{wa}, 4, v{wa}')
        for c in range(2): self.ds(f'ds_write_b128 v{wa}, {vr(XP+4*c,4)} offset:{L_X + c*X_C}')
        for c in range(2):
            for d in range(4):
                e(f'v_lshlrev_b32 v{xa+8*c+2*d}, 16, v{XP+4*c+d}\nv_and_b32 v{xa+8*c+2*d+1}, 0xffff0000, v{XP+4*c+d}')
        UP = V.alloc(8, 4)
        for c in range(2):
            for d in range(4):
                x = xa + 8*c + 2*d
                e(f'v_pk_add_f32 {vr(x,2)}, {vr(x,2)}, {vr(ms+2*d,2)} neg_lo:[0,1] neg_hi:[0,1]')
            for d in range(4):
                x = xa + 8*c + 2*d
                e(f'v_cvt_pk_bf16_f32 v{x+1}, v{x}, v{x+1}')
            for d in range(4):
                x = xa + 8*c + 2*d
                e(f'v_lshlrev_b32 v{x}, 16, v{x+1}\nv_and_b32 v{x+1}, 0xffff0000, v{x+1}')
            for d in range(4):
                x = xa + 8*c + 2*d
                e(f'v_pk_mul_f32 {vr(x,2)}, {vr(x,2)}, {vr(ms+8+2*d,2)}')
            for d in range(4):
                x = xa + 8*c + 2*d
                e(f'v_cvt_pk_bf16_f32 v{UP+4*c+d}, v{x}, v{x+1}')
            self.ds(f'ds_write_b128 v{wa}, {vr(UP+4*c,4)} offset:{L_U + c*U_C + 1024}')
        V.free(ms, 16); V.free(xa, 16); V.free(UP, 8); V.free(wa); V.free(t)

    def conv_setup(self):
        e = self.e; V = self.V
        vF = V.alloc(1); vG = V.alloc(8); t = V.alloc(1); t2 = V.alloc(1)
        e(f's_lshr_b32 s{S_T0}, s{S_W}, 1\ns_mul_i32 s{S_T0}, s{S_T0}, {KC_C}\ns_and_b32 s{S_T1}, s{S_W}, 1\ns_lshl_b32 s{S_T2}, s{S_T1}, 9\ns_sub_u32 s{S_T0}, s{S_T0}, s{S_T2}\ns_add_u32 s{S_T0}, s{S_T0}, {L_KC + 24 + 512}')
        e(f'v_and_b32 v{t}, 3, v1\nv_mul_u32_u24 v{vF}, {KC_S}, v{t}')
        e(f'v_bfe_u32 v{t}, v1, 2, 2\nv_lshlrev_b32 v{t}, 3, v{t}\nv_sub_u32 v{vF}, v{vF}, v{t}')
        e(f'v_lshrrev_b32 v{t}, 4, v1\nv_lshl_add_u32 v{vF}, v{t}, 4, v{vF}\nv_add_u32 v{vF}, s{S_T0}, v{vF}')
        e(f's_lshr_b32 s{S_T0}, s{S_W}, 1\ns_mul_i32 s{S_T0}, s{S_T0}, {U_C}\ns_add_u32 s{S_T0}, s{S_T0}, {L_U}')
        e(f's_lshl_b32 s{S_T1}, s{S_T1}, 3')
        kg = V.alloc(1); col = V.alloc(1)
        e(f'v_lshrrev_b32 v{kg}, 4, v1\nv_and_b32 v{col}, 15, v1\nv_subrev_u32 v{col}, s{S_T1}, v{col}')
        for pp in range(8):
            e(f'v_add_u32 v{t}, {16 - pp}, v{col}')
            e(f'v_bfe_u32 v{t2}, v{t}, 2, 1\nv_lshlrev_b32 v{t2}, 1, v{t2}\nv_xor_b32 v{t2}, v{t2}, v{kg}')
            e(f'v_lshlrev_b32 v{t}, 6, v{t}\nv_lshl_add_u32 v{t}, v{t2}, 4, v{t}\nv_add_u32 v{vG+pp}, s{S_T0}, v{t}')
        V.free(kg); V.free(col)
        ua = V.alloc(1); xa_ = V.alloc(1); ra = V.alloc(2); sa = V.alloc(1)
        e(f'v_bfe_u32 v{t}, v1, 2, 1\nv_lshlrev_b32 v{t}, 1, v{t}\nv_lshrrev_b32 v{t2}, 4, v1\nv_xor_b32 v{t}, v{t}, v{t2}')
        e(f'v_and_b32 v{t2}, 15, v1\nv_lshlrev_b32 v{t2}, 6, v{t2}\nv_lshl_add_u32 v{ua}, v{t}, 4, v{t2}')
        e(f's_and_b32 s{S_T1}, s{S_W}, 1\ns_lshl_b32 s{S_T1}, s{S_T1}, 11')
        e(f's_lshr_b32 s{S_T0}, s{S_W}, 1\ns_mul_i32 s{S_T2}, s{S_T0}, {U_C}\ns_add_u32 s{S_T2}, s{S_T2}, s{S_T1}')
        e(f's_mul_i32 s{S_T3}, s{S_T0}, {X_C}\ns_add_u32 s{S_T3}, s{S_T3}, s{S_T1}')
        e(f'v_add_u32 v{xa_}, s{S_T3}, v{ua}\nv_add_u32 v{ua}, s{S_T2}, v{ua}')
        e(f'v_lshrrev_b32 v{t}, 4, v1\nv_lshl_add_u32 v{sa}, v{t}, 4, v{t2}')
        e(f's_lshl_b32 s{S_T2}, s{S_CP}, 1\ns_add_u32 s{S_T2}, s{S_T2}, s{S_T0}\ns_mul_i32 s{S_T2}, s{S_T2}, {HT_STRIDE}\ns_add_u32 s{S_T2}, s{S_T2}, s{S_T1}\ns_add_u32 s{S_T2}, s{S_T2}, {WS_HT}')
        e(f'v_add_u32 v{sa}, s{S_T2}, v{sa}')
        e(f's_lshl_b32 s{S_T0}, s{S_W}, 12\ns_add_u32 s{S_T0}, s{S_T0}, {L_RED}\nv_lshl_add_u32 v{ra}, v1, 4, s{S_T0}')
        e(f's_xor_b32 s{S_T0}, s{S_W}, 1\ns_lshl_b32 s{S_T0}, s{S_T0}, 12\ns_add_u32 s{S_T0}, s{S_T0}, {L_RED}\nv_lshl_add_u32 v{ra+1}, v1, 4, s{S_T0}')
        V.free(t); V.free(t2)
        return (vF, vG, ua, xa_, ra, sa)

    def conv(self, cv, fill):
        e = self.e; V = self.V
        vF, vG, ua, xa_, ra, sa = cv
        self.c('---- Toeplitz convolution')
        G = [V.alloc(16, 4) for _ in range(2)]
        F = V.alloc(32, 4)
        acc = V.alloc(32, 4)
        A = lambda b, m: acc + 8 * b + 4 * m
        def rdG(pp):
            for s in range(4): self.ds(f'ds_read_b128 {vr(G[pp&1]+4*s,4)}, v{vG+pp} offset:{1024*s}', f'G{pp}')
        def rdF(pp, q):
            for m in range(2):
                off = 32 * (111 - 32*q - 2*pp - m)
                self.ds(f'ds_read_b64 {vr(F+8*q+4*m,2)}, v{vF} offset:{off}', f'F{pp}_{q}')
                self.ds(f'ds_read_b64 {vr(F+8*q+4*m+2,2)}, v{vF} offset:{off+8}', f'F{pp}_{q}')
        rdG(0)
        for q in range(4): rdF(0, q)
        def rdG1(pp, s): self.ds(f'ds_read_b128 {vr(G[pp&1]+4*s,4)}, v{vG+pp} offset:{1024*s}', f'G{pp}')
        def rdF1(pp, q, m, h_):
            off = 32 * (111 - 32*q - 2*pp - m) + 8 * h_
            self.ds(f'ds_read_b64 {vr(F+8*q+4*m+2*h_,2)}, v{vF} offset:{off}', f'F{pp}_{q}')
        mains = []
        pend = []
        for pp in range(8):
            for q in range(4):
                first = True
                for m in range(2):
                    for s in range(4 - q):
                        b = q + s
                        cin = '0' if (pp == 0 and q == 0) else vr(A(b, m), 4)
                        pre = []
                        if first:
                            if q == 0: pre.append(lambda pp=pp: (self.wait_lg(f'G{pp}'), self.wait_lg(f'F{pp}_0')))
                            else: pre.append(lambda pp=pp, q=q: self.wait_lg(f'F{pp}_{q}'))
                            first = False
                        mf = lambda b=b, m=m, q=q, s=s, pp=pp, cin=cin: e(f'v_mfma_f32_16x16x32_bf16 {vr(A(b,m),4)}, {vr(F+8*q+4*m,4)}, {vr(G[pp&1]+4*s,4)}, {cin}')
                        post = [pend.pop(0)] if pend else []
                        mains.append((pre, mf, 16, post))
                    if pp + 1 < 8:
                        pend += [lambda pp=pp, q=q, m=m, h_=h_: rdF1(pp + 1, q, m, h_) for h_ in range(2)]
                if q == 0 and pp + 1 < 8:
                    pend += [lambda pp=pp, s=s: rdG1(pp + 1, s) for s in range(4)]
        assert not pend
        self.sched(mains, None, segs=[(0, 90, fill)])
        for x in G: V.free(x, 16)
        V.free(F, 32); V.free(vG, 8)
        self.stamp(10)
        UU = V.alloc(8, 4); XX = V.alloc(8, 4); t1f = V.alloc(16, 2); xf = V.alloc(16, 2); rr = V.alloc(16, 4)
        Y = V.alloc(8, 4); w8 = V.alloc(16, 2); dk = V.alloc(2, 2)
        for bb in range(2):
            self.ds(f'ds_read_b128 {vr(UU+4*bb,4)}, v{ua} offset:{L_U + 1024 + 1024*bb}', 'ux')
            self.ds(f'ds_read_b128 {vr(XX+4*bb,4)}, v{xa_} offset:{L_X + 1024*bb}', 'ux')
        e(f'v_mov_b32 v{dk}, s{S_DK}')
        def epi(half):
            snd = acc + 16 * (1 - half); keep = acc + 16 * half
            for i in range(4): self.ds(f'ds_write_b128 v{ra}, {vr(snd+4*i,4)} offset:{1024*i}', 'rw')
            self.wait_lg('ux')
            for q in range(8): e(f'v_lshlrev_b32 v{t1f+2*q}, 16, v{UU+q}\nv_and_b32 v{t1f+2*q+1}, 0xffff0000, v{UU+q}')
            for q in range(8): e(f'v_pk_mul_f32 {vr(t1f+2*q,2)}, {vr(t1f+2*q,2)}, {vr(dk,2)} op_sel_hi:[1,0]')
            for q in range(8): e(f'v_cvt_pk_bf16_f32 v{UU+q}, v{t1f+2*q}, v{t1f+2*q+1}')
            for q in range(8): e(f'v_lshlrev_b32 v{xf+2*q}, 16, v{XX+q}\nv_and_b32 v{xf+2*q+1}, 0xffff0000, v{XX+q}')
            for q in range(8): e(f'v_lshlrev_b32 v{t1f+2*q}, 16, v{UU+q}\nv_and_b32 v{t1f+2*q+1}, 0xffff0000, v{UU+q}')
            self.wait_vm('wc')
            self.wait_all_lg()
            e('s_barrier')
            for i in range(4): self.ds(f'ds_read_b128 {vr(rr+4*i,4)}, v{ra+1} offset:{1024*i}', 'red')
            self.wait_lg('red')
            for i in range(0, 16, 2): e(f'v_pk_add_f32 {vr(keep+i,2)}, {vr(keep+i,2)}, {vr(rr+i,2)}')
            for bb in range(2):
                k0 = keep + 8 * bb; y = Y + 4 * bb
                e(f'v_cvt_pk_bf16_f32 v{y}, v{k0}, v{k0+1}\nv_cvt_pk_bf16_f32 v{y+1}, v{k0+2}, v{k0+3}')
                e(f'v_cvt_pk_bf16_f32 v{y+2}, v{k0+4}, v{k0+5}\nv_cvt_pk_bf16_f32 v{y+3}, v{k0+6}, v{k0+7}')
            for bb in range(2):
                y = Y + 4 * bb
                e(f'v_permlane32_swap_b32 v{y}, v{y+2}\nv_permlane32_swap_b32 v{y+1}, v{y+3}')
            for bb in range(2):
                y = Y + 4 * bb
                e(f'v_permlane16_swap_b32 v{y}, v{y+2}\nv_permlane16_swap_b32 v{y+1}, v{y+3}')
            for q in range(8): e(f'v_lshlrev_b32 v{w8+2*q}, 16, v{Y+q}\nv_and_b32 v{w8+2*q+1}, 0xffff0000, v{Y+q}')
            for q in range(8): e(f'v_pk_add_f32 {vr(w8+2*q,2)}, {vr(w8+2*q,2)}, {vr(t1f+2*q,2)}')
            for q in range(8): e(f'v_cvt_pk_bf16_f32 v{Y+q}, v{w8+2*q}, v{w8+2*q+1}')
            for q in range(8): e(f'v_lshlrev_b32 v{w8+2*q}, 16, v{Y+q}\nv_and_b32 v{w8+2*q+1}, 0xffff0000, v{Y+q}')
            for q in range(8): e(f'v_pk_add_f32 {vr(w8+2*q,2)}, {vr(w8+2*q,2)}, {vr(xf+2*q,2)}')
            for bb in range(2):
                for d in range(4): e(f'v_cvt_pk_bf16_f32 v{Y+4*bb+d}, v{w8+8*bb+2*d}, v{w8+8*bb+2*d+1}')
                self.vmem(f'buffer_store_dwordx4 {vr(Y+4*bb,4)}, v{sa}, s[{R_WS}:{R_WS+3}], 0 offen offset:{1024*bb} sc1', 'ht')
        self.two_paths(epi)
        if self.o.get('xg', True):
            self.w1_read(5, 10)
            self.w1_issue(10, 14, 'we')
        else:
            self.w1_read(5, 14)
            self.w1_issue(14, 15, 'we')
        for x, n in ((UU,8),(XX,8),(t1f,16),(xf,16),(rr,16),(Y,8),(w8,16),(dk,2),(sa,1),(ua,1),(xa_,1),(ra,2),(acc,32),(vF,1)): V.free(x, n)

    def interleave(self, main, fill, per_gap):
        n = len(main); fi = 0
        for i, m in enumerate(main):
            m()
            tgt = (len(fill) * (i + 1) + n - 1) // n if per_gap is None else min(len(fill), fi + per_gap)
            while fi < tgt:
                fill[fi](); fi += 1
        while fi < len(fill):
            fill[fi](); fi += 1

    def sched(self, mains, fillers, tail_free=0, segs=None):
        def cost(x): return x[1] if isinstance(x, tuple) else 1
        def run(x): (x[0] if isinstance(x, tuple) else x)()
        n = len(mains)
        bud = []
        for i, (pre, m, dur, post) in enumerate(mains):
            b = (dur - 8) / 4 - sum(cost(x) for x in post)
            if i + 1 < n: b -= sum(cost(x) for x in mains[i+1][0])
            bud.append(b)
        if segs is None: segs = [(0, n - tail_free, fillers)]
        plan = [[] for _ in range(n)]
        for (a, b_, fl) in segs:
            free = sum(max(0, x) for x in bud[a:b_]); need = sum(cost(x) for x in fl)
            over = max(0.0, (need - free) / max(1, b_ - a)); frac = min(1.0, need / free) if free > 0 else 1.0
            fi = 0; credit = 0.0
            for i in range(a, b_):
                credit += max(0, bud[i]) * frac + over
                while fi < len(fl) and cost(fl[fi]) <= credit + 1e-9:
                    credit -= cost(fl[fi]); plan[i].append(fl[fi]); fi += 1
            plan[b_ - 1] += fl[fi:]
            for i in range(a, b_): bud[i] = 0
        for i, (pre, m, dur, post) in enumerate(mains):
            for x in pre: run(x)
            m()
            for x in post: run(x)
            for x in plan[i]: run(x)

    def poll_flags(self, base, nflags_expr_lanes, nloads, sbase=None, last_lanes=None, sleep=0):
        e = self.e; V = self.V
        skip = self.lab('pf'); l0 = self.lab('pl'); l1 = self.lab('pd')
        e(f's_cmp_lg_u32 s{S_W}, 0\ns_cbranch_scc1 {skip}')
        a = V.alloc(1); d = V.alloc(4, 2)
        e(f'v_mul_u32_u24 v{a}, {FLAG_STRIDE}, v1\nv_add_u32 v{a}, {base}, v{a}')
        if sbase is not None: e(f'v_add_u32 v{a}, s{sbase}, v{a}')
        e(f's_mov_b64 s[{S_M1}:{S_M1+1}], exec')
        if nflags_expr_lanes < 64: e(f's_mov_b64 exec, {hex((1 << nflags_expr_lanes) - 1)}')
        e(f's_mov_b32 s{S_CNT}, 0')
        self.label(l0)
        for k in range(nloads):
            e(f'buffer_load_dword v{d+k}, v{a}, s[{R_WS}:{R_WS+3}], 0 offen offset:{64*FLAG_STRIDE*k} sc1')
        e('s_waitcnt vmcnt(0)')
        e(f'v_cmp_ne_u32 vcc, s{S_NONCE}, v{d}')
        for k in range(1, nloads):
            e(f'v_cmp_ne_u32 s[{S_M2}:{S_M2+1}], s{S_NONCE}, v{d+k}')
            if last_lanes and k == nloads - 1:
                assert last_lanes == 32
                e(f's_and_b32 s{S_M2+1}, s{S_M2+1}, 0')
            e(f's_or_b64 vcc, vcc, s[{S_M2}:{S_M2+1}]')
        e(f's_cbranch_vccz {l1}')
        if sleep: e(f's_sleep {sleep}')
        e(f's_add_u32 s{S_CNT}, s{S_CNT}, 1\ns_cmp_lt_u32 s{S_CNT}, {SPIN_MAX}\ns_cbranch_scc1 {l0}')
        self.label(l1)
        e(f's_mov_b64 exec, s[{S_M1}:{S_M1+1}]')
        V.free(a); V.free(d, 4)
        self.label(skip)
        e('s_barrier')

    WDREG = ['A']*9 + ['B']*3 + ['C']*3 + ['A']*9 + ['B']*3 + ['C']
    WDIDX = list(range(9)) + [0,1,2] + [0,1,2] + list(range(9)) + [0,1,2] + [0]
    def wd_setup(self):
        e = self.e; V = self.V
        self.vWD = V.alloc(2); self.vWT = V.alloc(6)
        t = V.alloc(1); t2 = V.alloc(1); vD = self.vWD; vT = self.vWT
        e(f'v_lshrrev_b32 v{t}, 3, v1\nv_mul_u32_u24 v{vD}, 896, v{t}\nv_bfe_u32 v{t}, v1, 4, 1\nv_lshlrev_b32 v{t}, 2, v{t}\nv_and_b32 v{t2}, 7, v1\nv_xor_b32 v{t}, v{t}, v{t2}\nv_lshl_add_u32 v{vD}, v{t}, 4, v{vD}')
        e(f's_lshl_b32 s{S_T0}, s{S_DB}, 7\ns_mul_i32 s{S_T1}, s{S_W}, {448*896}\ns_add_u32 s{S_T0}, s{S_T0}, s{S_T1}\nv_add_u32 v{vD}, s{S_T0}, v{vD}\nv_add_u32 v{vD+1}, 7168, v{vD}')
        e(f'v_lshrrev_b32 v{t}, 5, v1\nv_lshlrev_b32 v{vT}, 9, v{t}\nv_bfe_u32 v{t}, v1, 2, 2\nv_lshl_add_u32 v{vT}, v{t}, 7, v{vT}')
        e(f'v_bfe_u32 v{t}, v1, 4, 1\nv_lshl_add_u32 v{vT}, v{t}, 5, v{vT}\nv_and_b32 v{t}, 3, v1\nv_lshl_add_u32 v{vT}, v{t}, 3, v{vT}')
        e(f'v_bfe_u32 v{t}, v1, 3, 1\nv_lshlrev_b32 v{t}, 6, v{t}')
        e(f'v_xor_b32 v{t2}, 64, v{t}\nv_add_u32 v{vT+1}, v{vT}, v{t2}\nv_add_u32 v{vT}, v{vT}, v{t}')
        e(f's_mul_i32 s{S_WA}, s{S_W}, 18432\ns_add_u32 s{S_WA}, s{S_WA}, 87040')
        e(f's_mul_i32 s{S_WB}, s{S_W}, 7168\ns_add_u32 s{S_WC}, s{S_WB}, 57344\ns_add_u32 s{S_WB}, s{S_WB}, 28672')
        e(f'v_add_u32 v{vT+2}, s{S_WB}, v{vT}\nv_add_u32 v{vT+3}, s{S_WB}, v{vT+1}\nv_add_u32 v{vT+4}, s{S_WC}, v{vT}\nv_add_u32 v{vT+5}, s{S_WC}, v{vT+1}')
        e(f'v_add_u32 v{vT}, s{S_WA}, v{vT}\nv_add_u32 v{vT+1}, s{S_WA}, v{vT+1}')
        e(f's_add_u32 s{S_T1}, s{S_DB}, s{S_RB2}' if self.o.get('rot2', True) else f's_mov_b32 s{S_T1}, 0')
        for q in range(4):
            e(f's_add_u32 s{S_T0}, s{S_T1}, {q}\ns_and_b32 s{S_T0}, s{S_T0}, 3\ns_mul_i32 s{S_RW0+q}, s{S_T0}, {7*16*896}\ns_mul_i32 s{S_RA0+q}, s{S_T0}, {7*1024}')
        V.free(t); V.free(t2)
    def wd_dma(self, k, tag):
        e = self.e; sb = {'A': S_WA, 'B': S_WB, 'C': S_WC}[self.WDREG[k]]; sl = self.WDIDX[k] * 2048
        return [lambda: e(f's_add_u32 s{S_WO}, s{S_RW0 + k//7}, {(k%7)*16*896}'),
                lambda: e(f's_add_u32 m0, s{sb}, {sl}'),
                lambda: self.vmem(f'buffer_load_dwordx4 v{self.vWD}, s[{R_WD}:{R_WD+3}], s{S_WO} offen lds', tag),
                lambda: e(f's_add_u32 m0, s{sb}, {sl + 1024}'),
                lambda: self.vmem(f'buffer_load_dwordx4 v{self.vWD+1}, s[{R_WD}:{R_WD+3}], s{S_WO} offen lds', tag)]
    def wd_reads(self, k):
        a = self.vWT + {'A': 0, 'B': 2, 'C': 4}[self.WDREG[k]]; sl = self.WDIDX[k] * 2048
        return [lambda mt=mt, hh=hh: self.ds(f'ds_read_b64_tr_b16 {ar(8*k+4*mt+2*hh,2)}, v{a+mt} offset:{sl + 1024*hh}', f'wdr{k}') for mt in range(2) for hh in range(2)]

    def phaseB_setup(self):
        e = self.e; V = self.V; o = self.o
        L_H = 0; HG = 28672; L_STP = 3 * HG
        HS = lambda g_: (g_ % 3) * HG
        S_HB, S_MB = S_T5, S_HID
        vD = V.alloc(1); vB = V.alloc(1); vS = V.alloc(1); t = V.alloc(1); t2 = V.alloc(1)
        e(f'v_lshrrev_b32 v{t}, 2, v1\nv_mul_u32_u24 v{vD}, {HT_STRIDE}, v{t}\nv_bfe_u32 v{t2}, v1, 4, 1\nv_lshlrev_b32 v{t2}, 1, v{t2}\nv_and_b32 v{t}, 3, v1\nv_xor_b32 v{t}, v{t}, v{t2}\nv_lshl_add_u32 v{vD}, v{t}, 4, v{vD}')
        e(f's_lshl_b32 s{S_T0}, s{S_RB}, 8\ns_add_u32 s{S_T0}, s{S_T0}, {WS_HT}\nv_add_u32 v{vD}, s{S_T0}, v{vD}')
        e(f's_mul_i32 s{S_HB}, s{S_W}, {16*HT_STRIDE}\ns_lshl_b32 s{S_MB}, s{S_W}, 10')
        e(f'v_lshrrev_b32 v{t}, 5, v1\nv_lshlrev_b32 v{vB}, 8, v{t}\nv_bfe_u32 v{t2}, v1, 4, 1\nv_xor_b32 v{t2}, v{t2}, v{t}\nv_lshl_add_u32 v{vB}, v{t2}, 5, v{vB}')
        e(f'v_bfe_u32 v{t}, v1, 2, 2\nv_lshl_add_u32 v{vB}, v{t}, 6, v{vB}\nv_and_b32 v{t}, 3, v1\nv_lshl_add_u32 v{vB}, v{t}, 3, v{vB}')
        e(f'v_lshrrev_b32 v{t}, 4, v1\nv_lshlrev_b32 v{vS}, 8, v{t}\nv_and_b32 v{t}, 1, v{t}\ns_and_b32 s{S_T0}, s{S_W}, 1\nv_xor_b32 v{t}, s{S_T0}, v{t}\nv_lshl_add_u32 v{vS}, v{t}, 5, v{vS}')
        e(f'v_bfe_u32 v{t}, v1, 2, 2\nv_lshl_add_u32 v{vS}, v{t}, 6, v{vS}\nv_and_b32 v{t}, 3, v1\nv_lshl_add_u32 v{vS}, v{t}, 3, v{vS}')
        e(f's_lshr_b32 s{S_T0}, s{S_W}, 1\ns_mul_i32 s{S_T0}, s{S_T0}, {7*2048}\nv_add_u32 v{vS}, s{S_T0}, v{vS}')
        vA = V.alloc(1)
        e(f's_mul_i32 s{S_T0}, s{S_RB}, {4*112}\ns_lshl_b32 s{S_T1}, s{S_FB}, 3\ns_add_u32 s{S_T0}, s{S_T0}, s{S_T1}\ns_lshl_b32 s{S_T1}, s{S_W}, 1\ns_add_u32 s{S_T0}, s{S_T0}, s{S_T1}')
        e(f's_lshl_b32 s{S_T0}, s{S_T0}, 10\ns_add_u32 s{S_T0}, s{S_T0}, {WS_ACT}\nv_lshl_add_u32 v{vA}, v1, 4, s{S_T0}')
        vG2 = V.alloc(1); sg2 = V.alloc(6, 2)
        e(f'v_and_b32 v{t}, 31, v1\nv_lshlrev_b32 v{vG2}, 3, v{t}\ns_lshl_b32 s{S_T0}, s{S_RB}, 10\ns_add_u32 s{S_T0}, s{S_T0}, {WS_STATS2}\nv_add_u32 v{vG2}, s{S_T0}, v{vG2}')
        NB = 6
        cs = self.cs; ones = self.ones
        B = V.alloc(4 * NB, 4); SB = V.alloc(8, 4); SG = V.alloc(8, 4)
        acc = [V.alloc(32, 4), V.alloc(32, 4)]
        st = V.alloc(6, 2); par = V.alloc(3); tmp = V.alloc(8, 4); pk = V.alloc(8, 4)
        vP = V.alloc(1); vPw = V.alloc(1)
        e(f'v_bfe_u32 v{t}, v1, 4, 1\nv_lshlrev_b32 v{vP}, 7, v{t}\nv_and_b32 v{t}, 15, v1\nv_lshl_add_u32 v{vP}, v{t}, 3, v{vP}\nv_add_u32 v{vP}, {L_STP}, v{vP}')
        e(f's_lshl_b32 s{S_T0}, s{S_W}, 7\ns_add_u32 s{S_T0}, s{S_T0}, {L_STP}\nv_lshl_add_u32 v{vPw}, v{t}, 3, s{S_T0}')
        K1, K2, K3, KD = 6, 8, 10, 12
        e(f's_mov_b32 s{K1}, 0x22222222\ns_mov_b32 s{K1+1}, 0x22222222\ns_mov_b32 s{K2}, 0x44444444\ns_mov_b32 s{K2+1}, 0x44444444')
        e(f's_mov_b32 s{K3}, 0x88888888\ns_mov_b32 s{K3+1}, 0x88888888\ns_mov_b32 s{KD}, 0x00f0000f\ns_mov_b32 s{KD+1}, 0xf0000f00')
        vBq = V.alloc(4); vS2 = V.alloc(1)
        e(f'v_add_u32 v{vS2}, 57344, v{vS}')
        for q in range(4):
            e(f's_add_u32 s{S_T0}, s{S_ROT}, {q}\ns_and_b32 s{S_T0}, s{S_T0}, 3\ns_mul_i32 s{S_T0}, s{S_T0}, {7*1024}\nv_add_u32 v{vBq+q}, s{S_T0}, v{vB}')
        S_KI = [0, 1, 3, 4, 5, 22, 23]
        for i in range(7):
            e(f's_add_u32 s{S_T0}, s{S_W}, {4*i}\ns_mul_i32 s{S_T1}, s{S_T0}, 37\ns_lshr_b32 s{S_T1}, s{S_T1}, 8')
            e(f's_mul_i32 s{S_T2}, s{S_T1}, 7\ns_sub_u32 s{S_T0}, s{S_T0}, s{S_T2}\ns_add_u32 s{S_T1}, s{S_T1}, s{S_ROT}\ns_and_b32 s{S_T1}, s{S_T1}, 3')
            e(f's_mul_i32 s{S_T1}, s{S_T1}, 7\ns_add_u32 s{S_KI[i]}, s{S_T1}, s{S_T0}')
        self.wd_setup()
        self.pb = dict(locals())

    def phaseB(self):
        e = self.e; V = self.V; o = self.o
        self.c('================= phase B')
        pb = self.pb
        L_H, HG, L_STP, HS, S_HB, S_MB = pb['L_H'], pb['HG'], pb['L_STP'], pb['HS'], pb['S_HB'], pb['S_MB']
        vD, vB, vS, t, t2, vA, vG2, sg2, NB, cs, ones, B, SB, SG = [pb[k] for k in 'vD vB vS t t2 vA vG2 sg2 NB cs ones B SB SG'.split()]
        acc, st, par, tmp, pk, vP, vPw, K1, K2, K3, KD, vBq, vS2 = [pb[k] for k in 'acc st par tmp pk vP vPw K1 K2 K3 KD vBq vS2'.split()]
        self.stamp(14)
        self.wait_vm('we'); e('s_barrier')
        self.stamp(15)
        self.w1_read(self.K0, 28)
        self.wait_all_lg()
        self.stamp(25)
        V.free(self.vTS, 5); V.free(self.vW1)
        self.poll_flags(WS_FLAG2 + 32*FLAG_STRIDE, 64, 4, last_lanes=32, sleep=self.o.get('wsleep', 2))
        self.vm.drain(); self.lg.drain()
        self.stamp(16)
        def hdma(g, i, tag=None):
            return [lambda: e(f's_add_u32 m0, s{S_MB}, {L_H + HS(g) + i*4096}'),
                    lambda: e(f's_add_u32 s{S_T1}, s{S_HB}, {i*4*16*HT_STRIDE + 64*g}'),
                    lambda: self.vmem(f'buffer_load_dwordx4 v{vD}, s[{R_WS}:{R_WS+3}], s{S_T1} offen {o.get("hflags", "sc1")} lds', tag or f'h{g}')]
        S_KI = pb['S_KI']; PROG = o.get('prog', True)
        for i in range(7):
            e(f's_lshl_b32 m0, s{S_KI[i]}, 10\ns_mul_i32 s{S_T1}, s{S_KI[i]}, {16*HT_STRIDE}')
            self.vmem(f'buffer_load_dwordx4 v{vD}, s[{R_WS}:{R_WS+3}], s{S_T1} offen {o.get("hflags", "sc1")} lds', 'h0a' if (i < 3 and PROG) else 'h0')
        self.cs_mfma(self.K0, 28)
        H1F = o.get('h1fill', True)
        if not H1F:
            for i in range(7):
                for f in hdma(1, i): f()
        def rdB(g, k):
            s = k % NB
            for h_ in range(2):
                self.ds(f'ds_read_b64_tr_b16 {vr(B+4*s+2*h_,2)}, v{vBq + k//7} offset:{HS(g) + (k%7)*1024 + 512*h_}', f'B{g}_{k}')
        def st_reads(g):
            for k_ in range(2): self.ds(f'ds_read_b64 {vr(st+2*k_,2)}, v{vP} offset:{(g&1)*512 + 256*k_}', f'st{g}')
        def epilogue_ops(g):
            A_ = acc[g & 1]; ops = []
            nm, rsl, s2 = par, par + 1, par + 2
            save = self.lines; self.lines = []
            if g == 0:
                self.ln_finalize(st, st + 1, st + 2, st + 3, st + 4)
            else:
                e(f'v_lshlrev_b32 v{st+2}, 16, v{sg2+2*(g-1)}')
                e(f'v_and_b32 v{st+3}, 0xffff0000, v{sg2+2*(g-1)}')
            e(f'v_sub_f32 v{nm}, 0, v{st+2}')
            e(f'v_rcp_f32 v{st+4}, v{st+3}')
            e(f'v_mul_f32 v{s2}, v{st+3}, v{st+3}')
            e(f'v_mul_f32 v{rsl}, {fx(-LOG2E)}, v{st+4}')
            fl = self.lines; self.lines = save
            if g == 0:
                def fin0():
                    self.wait_lg('st0')
                    e(f'v_add_f32 v{st}, v{st}, v{st+2}')
                ops.append(fin0)
                ops.append(lambda: e(f'v_add_f32 v{st+1}, v{st+1}, v{st+3}'))
            for l in fl: ops.append(lambda l=l: e(l))
            def el(r):
                G_, U_, T_ = A_ + r, A_ + 16 + r, tmp + (r & 7)
                return [f'v_fma_f32 v{G_}, v{cs+r}, v{nm}, v{G_}',
                        f'v_fma_f32 v{U_}, v{cs+16+r}, v{nm}, v{U_}',
                        f'v_mul_f32 v{T_}, v{rsl}, v{G_}',
                        f'v_mul_f32 v{G_}, v{G_}, v{U_}',
                        f'v_exp_f32 v{T_}, v{T_}',
                        f'v_fma_f32 v{T_}, v{T_}, v{s2}, v{s2}',
                        f'v_rcp_f32 v{T_}, v{T_}',
                        f'v_mul_f32 v{G_}, v{G_}, v{T_}']
            for q in range(4):
                els = [el(4*q + x) for x in range(4)]
                for s_ in range(8):
                    for x in range(4): ops.append((lambda l=els[x][s_]: e(l), 2 if s_ in (4, 6) else 1))
                for x in range(2):
                    r = 4*q + 2*x
                    ops.append(lambda r=r: e(f'v_cvt_pk_bf16_f32 v{pk + r//2}, v{A_+r}, v{A_+r+1}'))
                if q in (1, 3):
                    kk = q >> 1
                    ops.append(lambda kk=kk: self.vmem(f'buffer_store_dwordx4 {vr(pk+4*kk,4)}, v{vA}, s[{R_WS}:{R_WS+3}], s{S_T4} offen offset:{1024*kk} sc1', 'act'))
            return ops
        DS = 1.5
        def rdB1(g, k, h_):
            s = (28 * g + k) % NB
            return (lambda: self.ds(f'ds_read_b64_tr_b16 {vr(B+4*s+2*h_,2)}, v{vBq + k//7} offset:{HS(g) + (k%7)*1024 + 512*h_}', f'B{g}_{k}'), DS)
        def rs(g, i):
            sb = SB + 4 * (i & 1); out = []
            for h_ in range(2):
                b_, off = (vS, HS(g) + i*2048 + 1024*h_) if HS(g) < 57344 else (vS2, i*2048 + 1024*h_)
                out.append((lambda b_=b_, off=off, h_=h_, sb=sb, i=i: self.ds(f'ds_read_b64_tr_b16 {vr(sb+2*h_,2)}, v{b_} offset:{off}', f'S{g}_{i}'), DS))
            return out
        def s2_loads():
            return [lambda gg=gg: self.vmem(f'buffer_load_dwordx2 {vr(sg2+2*(gg-1),2)}, v{vG2}, s[{R_WS}:{R_WS+3}], 0 offen offset:{256*gg} sc1', 'sg2') for gg in range(1, 4)]
        def s2_check():
            l0 = self.lab('s2'); l1 = self.lab('s2d')
            self.wait_vm('sg2')
            e(f's_mov_b32 s{S_CNT}, 0')
            self.label(l0)
            e(f'v_cmp_ne_u32 vcc, s{S_NONCE}, v{sg2+1}')
            for gg in (2, 3): e(f'v_cmp_ne_u32 s[{S_M2}:{S_M2+1}], s{S_NONCE}, v{sg2+2*gg-1}\ns_or_b64 vcc, vcc, s[{S_M2}:{S_M2+1}]')
            e(f's_cbranch_vccz {l1}')
            for gg in range(1, 4): e(f'buffer_load_dwordx2 {vr(sg2+2*(gg-1),2)}, v{vG2}, s[{R_WS}:{R_WS+3}], 0 offen offset:{256*gg} sc1')
            e('s_waitcnt vmcnt(0)')
            e(f's_add_u32 s{S_CNT}, s{S_CNT}, 1\ns_cmp_lt_u32 s{S_CNT}, {SPIN_MAX}\ns_cbranch_scc1 {l0}')
            self.label(l1)
        def red_ops(g):
            return [lambda: e(f'v_cndmask_b32 v{SG}, v{SG}, v{SG+1}, s[{K1}:{K1+1}]'),
                    lambda: e(f'v_cndmask_b32 v{SG}, v{SG}, v{SG+2}, s[{K2}:{K2+1}]'),
                    lambda: e(f'v_cndmask_b32 v{SG+5}, v{SG}, v{SG+3}, s[{K3}:{K3+1}]'),
                    lambda: e(f's_mov_b64 exec, s[{KD}:{KD+1}]'),
                    lambda: self.ds(f'ds_write_b64 v{vPw}, {vr(SG+4,2)} offset:{(g&1)*512}', f'stw{g}'),
                    lambda: e('s_mov_b64 exec, -1')]
        self.wait_vm('h0a' if PROG else 'h0'); self.wait_all_lg(); e('s_barrier')
        self.stamp(17)
        for k in range(4):
            for h_ in range(2): rdB1(0, k, h_)[0]()
        if not PROG:
            for f in rs(0, 0) + rs(0, 1): f[0]()
        mains = []; segs = []
        KB = 22
        for g in range(4):
            A_ = acc[g & 1]; base = len(mains); pos = {}
            for k in range(28):
                cg = '0' if k == 0 else vr(A_, 16); cu = '0' if k == 0 else vr(A_ + 16, 16)
                pre = []
                if g == 1 and k == 2: pre.append(lambda: e('s_barrier'))
                if g in (2, 3) and k == 2: pre.append(lambda: e('s_barrier'))
                if g == 0 and k == 8 and PROG:
                    pre.append(lambda: self.wait_vm('h0')); pre.append(lambda: e('s_barrier'))
                if k == KB:
                    if g < 3: pre.append(lambda g=g: self.wait_vm(f'h{g+1}'))
                    if g == 0: pre.append(lambda g=g: self.wait_lg(f'stw{g}'))
                    pre.append(lambda: e('s_barrier'))
                    if o.get('passstamps'): pre.append(lambda g=g: self.stamp(26 + g))
                pre.append(lambda k=k, g=g: self.wait_lg(f'B{g}_{k}'))
                nx = (g, k + 4) if k + 4 < 28 else ((g + 1, k + 4 - 28) if g < 3 else None)
                p0 = [rdB1(nx[0], nx[1], 0)] if nx else []; p1 = [rdB1(nx[0], nx[1], 1)] if nx else []
                pos[k] = len(mains)
                mains.append((pre, lambda k=k, cg=cg, A_=A_, g=g: e(f'v_mfma_f32_32x32x16_bf16 {vr(A_,16)}, {ar(8*k,4)}, {vr(B+4*((28*g+k)%NB),4)}, {cg}'), 32, p0))
                mains.append(([], lambda k=k, cu=cu, A_=A_, g=g: e(f'v_mfma_f32_32x32x16_bf16 {vr(A_+16,16)}, {ar(8*k+4,4)}, {vr(B+4*((28*g+k)%NB),4)}, {cu}'), 32, p1))
                if g == 0:
                    gpos = [10, 11, 13, 14, 16, 17, 19] if PROG else [0, 3, 6, 9, 12, 15, 18]
                    spos = gpos if PROG else [x + 1 for x in gpos]
                    if k in gpos:
                        i_ = gpos.index(k); sb = SB + 4 * (i_ & 1); c_ = '0' if i_ == 0 else vr(SG, 4)
                        mains.append(([lambda i_=i_, g=g: self.wait_lg(f'S{g}_{i_}')], lambda sb=sb, c_=c_: e(f'v_mfma_f32_16x16x32_bf16 {vr(SG,4)}, {vr(sb,4)}, {vr(sb,4)}, {c_}'), 16, []))
                    if k in spos:
                        i_ = spos.index(k); sb = SB + 4 * (i_ & 1); c_ = '0' if i_ == 0 else vr(SG + 4, 4)
                        mains.append(([], lambda sb=sb, c_=c_: e(f'v_mfma_f32_16x16x32_bf16 {vr(SG+4,4)}, {vr(ones,4)}, {vr(sb,4)}, {c_}'), 16,
                                      rs(g, i_ + 2) if i_ + 2 < 7 else []))
            def addpost(k, items, which=0):
                pre_, m_, d_, post_ = mains[pos[k] + which]
                mains[pos[k] + which] = (pre_, m_, d_, post_ + items)
            if g == 0:
                addpost(KB - 1, red_ops(g), 1)
                if PROG:
                    r0 = rs(0, 0) + rs(0, 1)
                    addpost(8, r0[:2], 0); addpost(8, r0[2:], 1)
            if g == 3:
                for i_ in range(9):
                    rr = [(f, DS) for f in self.wd_reads(i_)]
                    for q in range(4): addpost(10 + 2*i_ + (q >> 1), [rr[q]], q & 1)
                pre_, m_, d_, post_ = mains[pos[10]]
                mains[pos[10]] = (pre_, m_, d_, post_[:1] + [lambda: self.wait_vm('wdA')] + post_[1:])
            if g == 1:
                addpost(4, s2_loads(), 1)
                addpost(26, [(s2_check, 8)], 1)
            ep = []
            if g > 0:
                if g == 1: ep.append(lambda g=g: st_reads(0))
                ep.append(lambda g=g: e(f's_mov_b32 s{S_T4}, {(g-1)*112*1024}'))
                ep += epilogue_ops(g - 1)
            mf = []; mf2 = []
            if g == 0:
                if H1F:
                    for i in range(7): mf2 += hdma(1, i)
                for i in range(7): mf += hdma(2, i)
            if g == 0:
                pass
            mf3 = []
            if g == 1:
                for i in range(7): mf2 += hdma(3, i)
                for k_ in range(0, 5): mf3 += self.wd_dma(k_, 'wdA')
            if g == 2:
                for k_ in range(5, 9): mf3 += self.wd_dma(k_, 'wdA')
                for k_ in range(9, 12): mf3 += self.wd_dma(k_, 'wdB')
            if g == 3:
                for k_ in range(12, 15): mf3 += self.wd_dma(k_, 'wdC')
            if o.get('x_noep'): ep = []
            merged = []; a_, c_ = list(ep), list(mf)
            ra = len(a_) / max(1, len(a_) + len(c_)); acc_ = 0.0
            while a_ or c_:
                acc_ += ra
                if (acc_ >= 1.0 - 1e-9 and a_) or not c_:
                    acc_ -= 1.0; merged.append(a_.pop(0))
                else: merged.append(c_.pop(0))
            end = len(mains) if g < 3 else len(mains) - 2
            if mf2: segs.append((pos[2], pos[12], mf2) if g else (pos[0], pos[6], mf2))
            if mf3: segs.append((pos[12] if mf2 else pos[2], pos[27] if g < 3 else pos[10], mf3))
            segs.append((pos[8] if (g == 0 and H1F) else base, end, merged))
        self.sched(mains, None, segs=segs)
        self.stamp(18)
        e(f's_mov_b32 s{S_T4}, {3*112*1024}')
        for f in epilogue_ops(3): (f[0] if isinstance(f, tuple) else f)()
        self.stamp(19)
        for x, n in ((vD,1),(vB,1),(vS,1),(t,1),(t2,1),(cs,32),(vA,1),(vG2,1),(sg2,6),(B,4*NB),(SB,8),(ones,4),(SG,8),(acc[0],32),(acc[1],32),(st,6),(par,3),(tmp,8),(pk,8),(vP,1),(vPw,1),(vBq,4),(vS2,1)):
            V.free(x, n)
        pass
        self.wait_lg('wdr3')
        for k_ in range(15, 19):
            for f in self.wd_dma(k_, 'wdD'): f()
        self.wait_vm('act'); e('s_barrier')
        e(f's_lshl_b32 s{S_T1}, s{S_RB}, 4\ns_add_u32 s{S_T1}, s{S_T1}, s{S_FB}')
        self.signal(WS_FLAG3, f's{S_T1}')
        self.stamp(20)

    def phaseC(self):
        e = self.e; V = self.V; o = self.o
        self.c('================= phase C')
        t = V.alloc(1); t2 = V.alloc(1)
        self.wait_all_lg()
        for k_ in range(19, 24):
            for f in self.wd_dma(k_, 'wdE'): f()
        self.wait_vm('wdC')
        for k_ in range(9, 15):
            for f in self.wd_reads(k_): f()
        self.wait_all_lg()
        for k_ in range(24, 28):
            for f in self.wd_dma(k_, 'wdF'): f()
        self.wait_vm('wdE')
        for k_ in range(15, 24):
            for f in self.wd_reads(k_): f()
        self.wait_vm('wdF')
        for k_ in range(24, 28):
            for f in self.wd_reads(k_): f()
        self.wait_all_lg()
        V.free(self.vWD, 2); V.free(self.vWT, 6)
        self.stamp(21)
        e(f's_lshr_b32 s{S_T0}, s{S_RB2}, 1\ns_mul_i32 s{S_T0}, s{S_T0}, {16*FLAG_STRIDE}')
        self.poll_flags(WS_FLAG3, 16, 1, sbase=S_T0, sleep=self.o.get('wsleep3', 1))
        self.vm.drain(); self.lg.drain()
        self.stamp(22)
        vA = V.alloc(1)
        e(f's_mul_i32 s{S_T0}, s{S_RB2}, {2*112}\ns_mul_i32 s{S_T1}, s{S_W}, 28\ns_add_u32 s{S_T0}, s{S_T0}, s{S_T1}\ns_lshl_b32 s{S_T0}, s{S_T0}, 10\ns_add_u32 s{S_T0}, s{S_T0}, {WS_ACT}\nv_lshl_add_u32 v{vA}, v1, 4, s{S_T0}')
        NR = o.get('NR', 7)
        Bf = V.alloc(8 * NR, 4); acc = V.alloc(64, 4)
        def ld(k):
            for nt in range(2):
                e(f's_add_u32 s{S_T1}, s{S_RA0 + k//7}, {(nt*112 + k%7)*1024}')
                self.vmem(f'buffer_load_dwordx4 {vr(Bf+8*(k%NR)+4*nt,4)}, v{vA}, s[{R_WS}:{R_WS+3}], s{S_T1} offen {o.get("aflags", "sc1")}', f'a{k}')
        for k in range(NR): ld(k)
        hres = V.alloc(8, 4); vR = V.alloc(1)
        e(f's_lshl_b32 s{S_T0}, s{S_RB2}, 1\ns_and_b32 s{S_T1}, s{S_W}, 1\ns_add_u32 s{S_T0}, s{S_T0}, s{S_T1}\ns_mul_i32 s{S_T0}, s{S_T0}, 28')
        e(f's_lshl_b32 s{S_T1}, s{S_DB}, 2\ns_add_u32 s{S_T0}, s{S_T0}, s{S_T1}\ns_and_b32 s{S_T1}, s{S_W}, 2\ns_add_u32 s{S_T0}, s{S_T0}, s{S_T1}\ns_lshl_b32 s{S_T0}, s{S_T0}, 10\ns_add_u32 s{S_T0}, s{S_T0}, {WS_HD}\nv_lshl_add_u32 v{vR}, v1, 4, s{S_T0}')
        A = lambda mt, nt: acc + 16 * (2 * mt + nt)
        for k in range(28):
            self.wait_vm(f'a{k}')
            for mt in range(2):
                for nt in range(2):
                    cin = '0' if k == 0 else vr(A(mt, nt), 16)
                    if o.get('x_nomfma2') and k > 0: continue
                    e(f'v_mfma_f32_32x32x16_bf16 {vr(A(mt,nt),16)}, {ar(8*k+4*mt,4)}, {vr(Bf+8*(k%NR)+4*nt,4)}, {cin}')
            if k + NR < 28: ld(k + NR)
            if o.get('g2stamps'):
                if k in (0, 7, 14, 21): self.stamp(26 + k // 7)
            if k == 28 - NR:
                for kk in range(2): self.vmem(f'buffer_load_dwordx4 {vr(hres+4*kk,4)}, v{vR}, s[{R_WS}:{R_WS+3}], 0 offen offset:{1024*kk} sc1', 'hres')
        self.stamp(23)
        V.free(Bf, 8 * NR)
        ra = V.alloc(1); keep = V.alloc(16, 4); rr = V.alloc(48, 4)
        e(f's_lshl_b32 s{S_T0}, s{S_W}, 12\nv_lshl_add_u32 v{ra}, v1, 4, s{S_T0}')
        labs = [self.lab(f'r{w}') for w in range(4)]; ld_ = self.lab('rd')
        for w in range(1, 4): e(f's_cmp_eq_u32 s{S_W}, {w}\ns_cbranch_scc1 {labs[w]}')
        for w in range(4):
            if w: self.label(labs[w]); e('s_nop 7\ns_nop 3')
            for T in range(4):
                if T == w: continue
                for q in range(4): e(f'ds_write_b128 v{ra}, {vr(acc+16*T+4*q,4)} offset:{T*16384 + q*1024}')
            for i in range(16): e(f'v_mov_b32 v{keep+i}, v{acc+16*w+i}')
            if w < 3: e(f's_branch {ld_}')
        self.label(ld_)
        e('s_waitcnt lgkmcnt(0)'); self.lg.drain()
        e('s_barrier')
        e(f's_lshl_b32 s{S_T0}, s{S_W}, 14\nv_lshl_add_u32 v{ra}, v1, 4, s{S_T0}')
        for j in range(1, 4):
            e(f's_add_u32 s{S_T1}, s{S_W}, {j}\ns_and_b32 s{S_T1}, s{S_T1}, 3\ns_lshl_b32 s{S_T1}, s{S_T1}, 12\nv_add_u32 v{t}, s{S_T1}, v{ra}')
            for q in range(4): self.ds(f'ds_read_b128 {vr(rr+16*(j-1)+4*q,4)}, v{t} offset:{q*1024}', f'rr{j}')
        vO = V.alloc(1)
        e(f'v_and_b32 v{t}, 31, v1\nv_mul_u32_u24 v{vO}, 896, v{t}\nv_lshrrev_b32 v{t}, 5, v1\nv_lshl_add_u32 v{vO}, v{t}, 4, v{vO}')
        e(f's_lshl_b32 s{S_T0}, s{S_RB2}, 1\ns_and_b32 s{S_T1}, s{S_W}, 1\ns_add_u32 s{S_T0}, s{S_T0}, s{S_T1}\ns_mul_i32 s{S_T0}, s{S_T0}, {32*896}')
        e(f's_lshl_b32 s{S_T1}, s{S_DB}, 7\ns_add_u32 s{S_T0}, s{S_T0}, s{S_T1}\ns_and_b32 s{S_T1}, s{S_W}, 2\ns_lshl_b32 s{S_T1}, s{S_T1}, 5\ns_add_u32 s{S_T0}, s{S_T0}, s{S_T1}\nv_add_u32 v{vO}, s{S_T0}, v{vO}')
        for j in range(1, 4):
            self.wait_lg(f'rr{j}')
            for i in range(0, 16, 2): e(f'v_pk_add_f32 {vr(keep+i,2)}, {vr(keep+i,2)}, {vr(rr+16*(j-1)+i,2)}')
        self.wait_vm('hres')
        P = V.alloc(8, 4); w8 = rr
        for d in range(8): e(f'v_cvt_pk_bf16_f32 v{P+d}, v{keep+2*d}, v{keep+2*d+1}')
        for d in range(8):
            e(f'v_lshlrev_b32 v{w8+2*d}, 16, v{P+d}\nv_and_b32 v{w8+2*d+1}, 0xffff0000, v{P+d}')
            e(f'v_lshlrev_b32 v{w8+16+2*d}, 16, v{hres+d}\nv_and_b32 v{w8+16+2*d+1}, 0xffff0000, v{hres+d}')
        for d in range(8): e(f'v_pk_add_f32 {vr(w8+2*d,2)}, {vr(w8+2*d,2)}, {vr(w8+16+2*d,2)}')
        for d in range(8): e(f'v_cvt_pk_bf16_f32 v{P+d}, v{w8+2*d}, v{w8+2*d+1}')
        for kk in range(2):
            b = P + 4 * kk
            e(f'v_permlane32_swap_b32 v{b}, v{b+2}\nv_permlane32_swap_b32 v{b+1}, v{b+3}')
        for kk in range(2):
            self.vmem(f'buffer_store_dwordx4 {vr(P+4*kk,4)}, v{vO}, s[{R_OUT}:{R_OUT+3}], 0 offen offset:{32*kk} {o.get("outflags", "")}', 'out')
        self.stamp(24)

    def build(self):
        e = self.e
        self.prologue()
        saveV = list(self.V.used)
        self.helper()
        self.V.used = saveV; self.vm.drain(); self.lg.drain()
        self.label('L_worker')
        self.phaseA()
        upto = self.o.get('upto', 'C')
        if upto in ('B', 'C'): self.phaseB()
        if upto == 'C': self.phaseC()
        self.stamps_out()
        if self.o.get('padto'):
            e('s_waitcnt vmcnt(0)')
            self.label('L_pad')
            e(f's_memrealtime s[{S_TS}:{S_TS+1}]\ns_waitcnt lgkmcnt(0)\ns_sub_u32 s{S_TS}, s{S_TS}, s{S_TS+6}\ns_cmp_lt_u32 s{S_TS}, {self.o.get("padto")}\ns_cbranch_scc1 L_pad')
        self.label('L_end')
        e('s_endpgm')

HEADER = open(os.path.join(os.path.dirname(os.path.abspath(__file__)), 'header.txt')).read() if os.path.exists(os.path.join(os.path.dirname(os.path.abspath(__file__)), 'header.txt')) else ''

def generate(opt):
    g = Gen(opt)
    g.build()
    lines, problems = fix_hazards(g.lines, verbose=opt.get('verbose', False))
    for p in problems: print('BACKEDGE HAZARD:', p, file=sys.stderr)
    out = [HEADER.rstrip('\n').replace('@@GRID@@', f'; @launch grid=(256,1,1) block=(256,1,1) lds={LDS_SIZE}')]
    out += ['.amdgcn_target "amdgcn-amd-amdhsa--gfx950"', '.text', f'.globl {NAME}', '.p2align 8', f'.type {NAME},@function', f'{NAME}:']
    for l in lines:
        out.append(l if l.endswith(':') else '    ' + l)
    out += ['.section .rodata,"a"', '.p2align 6', f'.amdhsa_kernel {NAME}',
            '  .amdhsa_next_free_vgpr 512', '  .amdhsa_next_free_sgpr 102', '  .amdhsa_accum_offset 256',
            '  .amdhsa_group_segment_fixed_size 0', '  .amdhsa_kernarg_size 128', '  .amdhsa_user_sgpr_count 2',
            '  .amdhsa_user_sgpr_kernarg_segment_ptr 1', '  .amdhsa_system_sgpr_workgroup_id_x 1',
            '  .amdhsa_float_denorm_mode_32 3', '.end_amdhsa_kernel', '']
    if opt.get('verbose'): print('max arch vgpr', g.V.hi, 'lines', len(lines))
    return '\n'.join(out)

if __name__ == '__main__':
    import json
    opt = json.loads(sys.argv[2]) if len(sys.argv) > 2 else {}
    opt['verbose'] = True
    txt = generate(opt)
    open(sys.argv[1], 'w').write(txt)
```

```python
import sys, os, math, struct
sys.path.insert(0, os.path.dirname(os.path.abspath(__file__)))
from asmlib import *

NAME = 'sequential_preLN__ssm_conv_s4__swiglu_ffn__prompt_kernel'
def f2u(x): return struct.unpack('<I', struct.pack('<f', x))[0]
def fx(x): return hex(f2u(x))
LOG2E = 1.4426950408889634
WS_STATS = 0x0
WS_FLAG2 = 0x4000
WS_FLAG3 = 0xC000
WS_STATS2 = 0x10000
WS_HT    = 0x20000
HT_STRIDE = 4352
WS_HD    = 0x200000
WS_ACT   = 0x400000
WS_XT    = 0xB00000
XT_STRIDE = 4352
WS_DBG   = 0xE00000
WS_SIZE  = 0x2000000
FLAG_STRIDE = 16
TBL_E = 1088; TBL_C = 18 * TBL_E
L_TBL = 0
L_EX = 2 * TBL_C
L_K32 = 55680; K32_C = 9344
L_RED = L_K32
L_STG = 87040; STG_SLOT = 8192
L_STGX = 74496
L_KC = 0; KC_S = 4160; KC_C = 4 * KC_S
L_U = 2 * KC_C; U_C = 5120
L_X = L_U + 2 * U_C; X_C = 4096
LDS_SIZE = 163840
HX_STRIDE = 912
S_X, S_ARE, S_AIM, S_BRE, S_BIM, S_CRE, S_CIM, S_LDT, S_DSK, S_BX, S_WG, S_WU, S_WD, S_OUT, S_DBG, S_WS = range(4, 36, 2)
R_X, R_WS, R_DBG, R_WG, R_WU, R_WD, R_OUT = 36, 40, 44, 48, 52, 56, 60
S_W, S_NONCE, S_XCD, S_J, S_CP, S_T0, S_T1, S_T2, S_T3, S_T4, S_T5 = 64, 65, 66, 67, 68, 69, 70, 71, 72, 73, 74
S_LD, S_DK = 75, 76
S_RB, S_FB, S_RB2, S_DB = 77, 78, 79, 80
S_M0, S_M1, S_M2, S_M3 = 82, 84, 86, 88
S_CNT = 90
S_HID = 91
S_WM, S_WO, S_US = 81, 100, 101
S_ROT = 99
S_WA, S_WB, S_WC = 18, 19, 20
S_RW0, S_RA0 = 24, 28
S_Q0 = 14
S_TS = 92
SPIN_MAX = 5000

class Gen(Asm):
    def __init__(self, opt):
        super().__init__()
        self.o = opt
        self.V = Regs('v', 256, start=2)
        if opt.get('stamps'): self.V.take(254, 2)
        self.V.take(250, 4)
        self.uid = 0
    def lab(self, s):
        self.uid += 1
        return f'L{s}_{self.uid}'
    def srd(self, r, ptr, size):
        self.e(f's_mov_b32 s{r}, s{ptr}\ns_mov_b32 s{r+1}, s{ptr+1}\ns_mov_b32 s{r+2}, {hex(size)}\ns_mov_b32 s{r+3}, 0x20000')
    def cmul(self, d, a, b, t=None):
        t = d if t is None else t
        self.e(f'v_pk_mul_f32 {vr(t,2)}, {vr(a,2)}, {vr(b,2)} op_sel:[0,0] op_sel_hi:[0,1]')
        self.e(f'v_pk_fma_f32 {vr(d,2)}, {vr(a,2)}, {vr(b,2)}, {vr(t,2)} op_sel:[1,1,0] op_sel_hi:[1,0,1] neg_lo:[0,1,0]')
    def cmul_multi(self, items):
        for d, a, b, t in items:
            t = d if t is None else t
            self.e(f'v_pk_mul_f32 {vr(t,2)}, {vr(a,2)}, {vr(b,2)} op_sel:[0,0] op_sel_hi:[0,1]')
        for d, a, b, t in items:
            t = d if t is None else t
            self.e(f'v_pk_fma_f32 {vr(d,2)}, {vr(a,2)}, {vr(b,2)}, {vr(t,2)} op_sel:[1,1,0] op_sel_hi:[1,0,1] neg_lo:[0,1,0]')
    def stamp(self, i):
        dm = self.o.get('dbgmap')
        if dm and i in dm:
            lab = self.lab('ds')
            self.e(f's_cmp_lg_u32 s2, {self.o.get("dbgwg", 8)}\ns_cbranch_scc1 {lab}\ns_cmp_lg_u32 s{S_W}, 0\ns_cbranch_scc1 {lab}')
            self.e(f's_memrealtime s[{S_TS}:{S_TS+1}]\ns_waitcnt lgkmcnt(0)')
            v = self.V.alloc(2)
            self.e(f's_sub_u32 s{S_TS}, s{S_TS}, s{S_TS+6}\nv_mov_b32 v{v}, s{S_TS}\nv_mov_b32 v{v+1}, {4*(1+dm.index(i))}')
            self.e(f's_mov_b64 s[{S_TS+4}:{S_TS+5}], exec\ns_mov_b64 exec, 1')
            self.e(f'buffer_store_dword v{v}, v{v+1}, s[{R_DBG}:{R_DBG+3}], 0 offen')
            self.e(f's_mov_b64 exec, s[{S_TS+4}:{S_TS+5}]')
            self.V.free(v, 2)
            self.label(lab)
            self.e('s_waitcnt lgkmcnt(0)')
            self.lg.drain()
        if self.o.get('stamps') and (self.o.get('only') is None or i in self.o['only']):
            self.e(f's_memrealtime s[{S_TS}:{S_TS+1}]\ns_memtime s[{S_TS+4}:{S_TS+5}]')
            self.e('s_waitcnt lgkmcnt(0)'); self.lg.drain()
            self.e(f'v_writelane_b32 v254, s{S_TS}, {i}\nv_writelane_b32 v255, s{S_TS+4}, {i}')

    def stamps_out(self):
        if self.o.get('stamps'):
            e = self.e
            e(f's_lshl_b32 s{S_TS+2}, s2, 10\ns_lshl_b32 s{S_TS+3}, s{S_W}, 8\ns_add_u32 s{S_TS+2}, s{S_TS+2}, s{S_TS+3}\ns_add_u32 s{S_TS+2}, s{S_TS+2}, {WS_DBG}')
            e(f'v_lshl_add_u32 v252, v1, 2, s{S_TS+2}\ns_mov_b32 exec_lo, -1\ns_mov_b32 exec_hi, 0')
            e(f'buffer_store_dword v254, v252, s[{R_WS}:{R_WS+3}], 0 offen\nbuffer_store_dword v255, v252, s[{R_WS}:{R_WS+3}], 0 offen offset:128')

    def prologue(self):
        e = self.e
        e(f's_cmp_ge_u32 s2, 256\ns_cbranch_scc1 L_end')
        e(f's_load_dwordx16 s[4:19], s[0:1], 0\ns_load_dwordx16 s[20:35], s[0:1], 64')
        e(f's_memrealtime s[{S_M0}:{S_M0+1}]')
        e('v_and_b32 v1, 63, v0')
        if self.o.get('codepf', True):
            lpc = self.lab('pc'); a = 250
            e(f's_getpc_b64 s[{S_M2}:{S_M2+1}]')
            self.label(lpc)
            e(f's_sub_u32 s{S_M2}, s{S_M2}, {lpc}-{NAME}\ns_subb_u32 s{S_M2+1}, s{S_M2+1}, 0')
            e(f's_lshr_b32 s{S_T0}, s2, 3\ns_lshl_b32 s{S_T0}, s{S_T0}, 4')
            e(f'v_lshrrev_b32 v{a}, 6, v0\nv_lshl_add_u32 v{a}, v{a}, 2, v1\nv_add_u32 v{a}, s{S_T0}, v{a}\nv_lshlrev_b32 v{a}, 7, v{a}\nv_min_u32 v{a}, L_end-{NAME}, v{a}')
            e(f'v_mov_b32 v{a+3}, s{S_M2+1}\nv_add_co_u32 v{a+2}, vcc, s{S_M2}, v{a}\nv_addc_co_u32 v{a+3}, vcc, 0, v{a+3}, vcc')
            e(f's_mov_b64 s[{S_M1}:{S_M1+1}], exec\ns_mov_b64 exec, 15')
            e(f'global_load_dword v{a+1}, v[{a+2}:{a+3}], off')
            e(f's_mov_b64 exec, s[{S_M1}:{S_M1+1}]')
        if self.o.get('stamps'): e('v_mov_b32 v254, 0x5a5a5a5a\nv_mov_b32 v255, 0x5a5a5a5a')
        v = self.V.alloc(1)
        e(f'v_lshrrev_b32 v{v}, 6, v0')
        e(f's_and_b32 s{S_XCD}, s2, 7\ns_lshr_b32 s{S_J}, s2, 3')
        e(f'v_readfirstlane_b32 s{S_W}, v{v}')
        self.V.free(v)
        e(f's_cmp_lt_u32 s{S_J}, 4\ns_cbranch_scc1 L_helper')
        e(f's_sub_u32 s{S_J}, s{S_J}, 4\ns_mul_i32 s{S_CP}, s{S_XCD}, 28\ns_add_u32 s{S_CP}, s{S_CP}, s{S_J}\ns_branch L_worker')
        self.label('L_helper')

    def srds(self, skip=()):
        e = self.e
        for r, p, n in ((R_X, S_X, 2048*448*2), (R_WS, S_WS, WS_SIZE), (R_DBG, S_DBG, 256), (R_WG, S_WG, 448*1792*2), (R_WU, S_WU, 448*1792*2),
                        (R_WD, S_WD, 448*1792*2), (R_OUT, S_OUT, 2048*448*2)):
            if r not in skip: self.srd(r, p, n)

    def publish_nonce(self):
        e = self.e
        e(f's_or_b32 s{S_NONCE}, s{S_M0}, 1\ns_mov_b32 s{S_TS+6}, s{S_M0}')
        lab = self.lab('non')
        e(f's_or_b32 s{S_T0}, s2, s{S_W}\ns_cmp_lg_u32 s{S_T0}, 0\ns_cbranch_scc1 {lab}')
        v = self.V.alloc(2)
        e(f'v_mov_b32 v{v}, s{S_NONCE}\nv_mov_b32 v{v+1}, 0')
        e(f's_mov_b64 s[{S_M1}:{S_M1+1}], exec\ns_mov_b64 exec, 1')
        e(f'buffer_store_dword v{v}, v{v+1}, s[{R_DBG}:{R_DBG+3}], 0 offen sc1')
        e(f's_mov_b64 exec, s[{S_M1}:{S_M1+1}]')
        self.V.free(v, 2)
        self.label(lab)

    def capture(self, fn):
        save = self.lines; self.lines = []
        r = fn()
        fl = self.lines; self.lines = save
        return r, [(lambda l=l: self.e(l)) for l in fl if not l.startswith(';')]

    def region(self, fn):
        save = self.lines; self.lines = []
        r = fn()
        fl = self.lines; self.lines = save
        self.lines.extend(resched(fl) if self.o.get('resched', True) else fl)
        return r

    def two_paths(self, fn, nop=7):
        e = self.e; l1 = self.lab('p1'); ld = self.lab('pd')
        e(f's_and_b32 s{S_T5}, s{S_W}, 1\ns_cmp_lg_u32 s{S_T5}, 0\ns_cbranch_scc1 {l1}')
        st = (list(self.vm.q), list(self.lg.q), list(self.V.used))
        fn(0)
        e(f's_branch {ld}')
        end = (list(self.vm.q), list(self.lg.q), list(self.V.used))
        self.vm.q, self.lg.q, self.V.used = list(st[0]), list(st[1]), list(st[2])
        self.label(l1)
        e(f's_nop {nop}')
        fn(1)
        assert (self.vm.q, self.lg.q, self.V.used) == end, 'paths diverge'
        self.label(ld)

    def get_nonce(self):
        e = self.e
        v = self.V.alloc(2)
        l0 = self.lab('gn'); l1 = self.lab('gnd')
        e(f'v_mov_b32 v{v+1}, 0\ns_mov_b32 s{S_CNT}, 0')
        self.label(l0)
        e(f'buffer_load_dword v{v}, v{v+1}, s[{R_DBG}:{R_DBG+3}], 0 offen sc1')
        e('s_waitcnt vmcnt(0)'); self.vm.drain()
        e(f'v_readfirstlane_b32 s{S_NONCE}, v{v}')
        e(f's_cmp_lg_u32 s{S_NONCE}, 0\ns_cbranch_scc1 {l1}')
        e(f's_add_u32 s{S_CNT}, s{S_CNT}, 1\ns_cmp_lt_u32 s{S_CNT}, {SPIN_MAX}\ns_cbranch_scc1 {l0}')
        self.label(l1)
        self.V.free(v, 2)

    def helper(self):
        e = self.e; V = self.V
        self.c('================= helper: x^T + LN1 stats')
        e('s_waitcnt lgkmcnt(0)')
        self.srd(R_DBG, S_DBG, 256)
        self.publish_nonce()
        self.srd(R_X, S_X, 2048*448*2)
        e(f's_mov_b32 s{S_TS+6}, s{S_M0}')
        e(f's_lshl_b32 s{S_T0}, s{S_XCD}, 2\ns_add_u32 s{S_HID}, s{S_J}, s{S_T0}')
        va = V.alloc(1); t0 = V.alloc(1); t1 = V.alloc(1)
        e(f's_lshl_b32 s{S_T0}, s{S_HID}, 6\ns_lshl_b32 s{S_T1}, s{S_W}, 4\ns_add_u32 s{S_T0}, s{S_T0}, s{S_T1}')
        e(f's_mul_i32 s{S_T2}, s{S_T0}, 896\ns_mul_i32 s{S_T3}, s{S_T1}, {HX_STRIDE}')
        e(f'v_lshlrev_b32 v{va}, 4, v1')
        e(f's_mov_b64 s[{S_M1}:{S_M1+1}], exec\ns_mov_b32 exec_lo, -1\ns_mov_b32 exec_hi, 0x00ffffff')
        for r in range(16):
            e(f's_add_u32 m0, s{S_T3}, {r*HX_STRIDE}\ns_add_u32 s{S_T4}, s{S_T2}, {r*896}')
            self.vmem(f'buffer_load_dwordx4 v{va}, s[{R_X}:{R_X+3}], s{S_T4} offen lds', 'x')
        e(f's_mov_b64 exec, s[{S_M1}:{S_M1+1}]')
        self.srds(skip=(R_X, R_DBG))
        self.stamp(0)
        vT = V.alloc(1); vO = V.alloc(1); vA = V.alloc(1)
        e(f'v_lshrrev_b32 v{t0}, 4, v1\nv_lshlrev_b32 v{t0}, 1, v{t0}\nv_bfe_u32 v{t1}, v1, 1, 1\nv_add_u32 v{t0}, v{t0}, v{t1}\nv_lshlrev_b32 v{t0}, 3, v{t0}')
        e(f'v_bfe_u32 v{t1}, v1, 2, 2\nv_add_u32 v{t0}, v{t0}, v{t1}\nv_mul_u32_u24 v{vT}, {HX_STRIDE}, v{t0}')
        e(f'v_and_b32 v{t1}, 1, v1\nv_lshl_add_u32 v{vT}, v{t1}, 3, v{vT}\ns_lshl_b32 s{S_T0}, s{S_W}, 4\nv_add_u32 v{vT}, s{S_T0}, v{vT}')
        e(f's_lshl_b32 s{S_T0}, s{S_W}, 15\ns_lshl_b32 s{S_T1}, s{S_HID}, 10\ns_add_u32 s{S_T0}, s{S_T0}, s{S_T1}\ns_add_u32 s{S_T0}, s{S_T0}, {WS_XT}\nv_lshl_add_u32 v{vO}, v1, 4, s{S_T0}')
        e(f'v_and_b32 v{t0}, 15, v1\nv_lshrrev_b32 v{t1}, 4, v1')
        e(f's_lshl_b32 s{S_T0}, s{S_W}, 4\nv_add_u32 v{t0}, s{S_T0}, v{t0}\nv_mul_u32_u24 v{vA}, {HX_STRIDE}, v{t0}\nv_lshl_add_u32 v{vA}, v{t1}, 4, v{vA}')
        e(f's_lshl_b32 s{S_T0}, s{S_HID}, 6\nv_add_u32 v{t0}, s{S_T0}, v{t0}')
        XG = self.o.get('xg', True)
        self.get_nonce()
        Q = V.alloc(56, 4)
        if not XG:
            e('s_barrier')
            self.stamp(3)
            for u in range(14):
                for k_ in range(2):
                    self.ds(f'ds_read_b64_tr_b16 {vr(Q+4*u+2*k_,2)}, v{vT} offset:{64*u + 4*k_*HX_STRIDE}', f'q{u}')
            for u in range(14):
                self.wait_lg(f'q{u}')
                e(f's_mov_b32 s{S_T1}, {u*4*32768}')
                self.vmem(f'buffer_store_dwordx4 {vr(Q+4*u,4)}, v{vO}, s[{R_WS}:{R_WS+3}], s{S_T1} offen sc1', 'xt')
            self.stamp(4)
        else: self.stamp(3)
        xa = V.alloc(56, 4)
        for s in range(14): self.ds(f'ds_read_b128 {vr(xa+4*s,4)}, v{vA} offset:{64*s}', f'x{s}')
        acc = V.alloc(8, 4); ones = V.alloc(4, 4)
        for i in range(4): e(f'v_mov_b32 v{ones+i}, 0x3f803f80')
        e(f's_mov_b32 s6, 0x22222222\ns_mov_b32 s7, 0x22222222\ns_mov_b32 s8, 0x44444444\ns_mov_b32 s9, 0x44444444\ns_mov_b32 s10, 0x88888888\ns_mov_b32 s11, 0x88888888\ns_mov_b32 s12, 0x00f0000f\ns_mov_b32 s13, 0xf0000f00')
        for s in range(14):
            self.wait_lg(f'x{s}')
            e(f'v_mfma_f32_16x16x32_bf16 {vr(acc,4)}, {vr(xa+4*s,4)}, {vr(xa+4*s,4)}, {"0" if s == 0 else vr(acc,4)}')
            e(f'v_mfma_f32_16x16x32_bf16 {vr(acc+4,4)}, {vr(ones,4)}, {vr(xa+4*s,4)}, {"0" if s == 0 else vr(acc+4,4)}')
        e(f'v_cndmask_b32 v{acc}, v{acc}, v{acc+1}, s[6:7]\nv_cndmask_b32 v{acc}, v{acc}, v{acc+2}, s[8:9]\nv_cndmask_b32 v{acc+5}, v{acc}, v{acc+3}, s[10:11]')
        e(f'v_mov_b32 v{acc}, v{acc+4}\nv_mov_b32 v{acc+4}, v{acc+5}')
        S = acc; Qs = acc + 4
        pk = V.alloc(2, 2)
        self.ln_finalize(S, Qs, acc + 1, acc + 2, acc + 3)
        e(f'v_lshrrev_b32 v{pk}, 16, v{acc+1}\nv_or_b32 v{pk}, v{pk}, v{acc+2}')
        self.stamp(5)
        if not XG:
            self.wait_all_vm()
            e('s_barrier')
        self.stamp(6)
        e(f'v_mov_b32 v{pk+1}, s{S_NONCE}')
        e(f'v_lshlrev_b32 v{t0}, 3, v{t0}')
        if WS_STATS: e(f'v_add_u32 v{t0}, {WS_STATS}, v{t0}')
        e(f's_mov_b64 s[{S_M1}:{S_M1+1}], exec\ns_mov_b64 exec, s[12:13]')
        self.vmem(f'buffer_store_dwordx2 {vr(pk,2)}, v{t0}, s[{R_WS}:{R_WS+3}], 0 offen sc1', 'st')
        e(f's_mov_b64 exec, s[{S_M1}:{S_M1+1}]')
        self.stamp(1)
        V.free(pk, 2); V.free(acc, 8); V.free(ones, 4); V.free(xa, 56); V.free(Q, 56); V.free(vT); V.free(vO); V.free(vA)
        e('s_barrier')
        tw = self.o.get('touch_wd', 'mall')
        if tw:
            nl = 13 if tw == 'l2' else 2
            tv = V.alloc(13); ta = V.alloc(2)
            if tw == 'l2': e(f's_mul_i32 s{S_T0}, s{S_J}, {448*896}')
            else: e(f's_mul_i32 s{S_T0}, s{S_HID}, {56*896}')
            for k in range(nl):
                e(f'v_add_u32 v{ta}, {256*k}, v0\nv_min_u32 v{ta}, {3135 if tw == "l2" else 391}, v{ta}\nv_mul_u32_u24 v{ta+1}, 9363, v{ta}\nv_lshrrev_b32 v{ta+1}, 16, v{ta+1}')
                e(f'v_mul_u32_u24 v{tv+k}, 7, v{ta+1}\nv_sub_u32 v{ta}, v{ta}, v{tv+k}\nv_mul_u32_u24 v{ta+1}, 896, v{ta+1}\nv_lshl_add_u32 v{ta+1}, v{ta}, 7, v{ta+1}')
                e(f'buffer_load_dword v{tv+k}, v{ta+1}, s[{R_WD}:{R_WD+3}], s{S_T0} offen')
            self.wait_all_vm()
            V.free(tv, 13); V.free(ta, 2)
        self.c('helper: LN2 stats + hD')
        vD = V.alloc(1); vB = V.alloc(2); vS = V.alloc(1); vHs = V.alloc(1)
        e(f'v_lshrrev_b32 v{t0}, 3, v1\nv_mul_u32_u24 v{vD}, {HT_STRIDE}, v{t0}\nv_bfe_u32 v{t0}, v1, 4, 1\nv_lshlrev_b32 v{t0}, 2, v{t0}\nv_and_b32 v{t1}, 7, v1\nv_xor_b32 v{t0}, v{t0}, v{t1}\nv_lshl_add_u32 v{vD}, v{t0}, 4, v{vD}')
        e(f's_lshl_b32 s{S_T0}, s{S_HID}, 7\ns_mul_i32 s{S_T1}, s{S_W}, {8*HT_STRIDE}\ns_add_u32 s{S_T0}, s{S_T0}, s{S_T1}\ns_add_u32 s{S_T0}, s{S_T0}, {WS_HT}\nv_add_u32 v{vD}, s{S_T0}, v{vD}')
        e(f'v_lshrrev_b32 v{t0}, 5, v1\nv_lshlrev_b32 v{vB}, 9, v{t0}\nv_bfe_u32 v{t0}, v1, 2, 2\nv_lshl_add_u32 v{vB}, v{t0}, 7, v{vB}')
        e(f'v_bfe_u32 v{t0}, v1, 4, 1\nv_lshl_add_u32 v{vB}, v{t0}, 5, v{vB}\nv_and_b32 v{t0}, 3, v1\nv_lshl_add_u32 v{vB}, v{t0}, 3, v{vB}')
        e(f'v_bfe_u32 v{t0}, v1, 3, 1\nv_lshlrev_b32 v{t0}, 6, v{t0}\nv_xor_b32 v{t1}, 64, v{t0}\nv_add_u32 v{vB+1}, v{vB}, v{t1}\nv_add_u32 v{vB}, v{vB}, v{t0}')
        e(f'v_lshrrev_b32 v{t0}, 4, v1\nv_lshlrev_b32 v{vS}, 9, v{t0}\nv_bfe_u32 v{t0}, v1, 2, 2\nv_lshl_add_u32 v{vS}, v{t0}, 7, v{vS}\nv_and_b32 v{t0}, 3, v1\nv_lshl_add_u32 v{vS}, v{t0}, 3, v{vS}')
        e(f'v_bfe_u32 v{t0}, v1, 3, 1\ns_lshr_b32 s{S_T0}, s{S_W}, 1\nv_xor_b32 v{t0}, s{S_T0}, v{t0}\nv_lshl_add_u32 v{vS}, v{t0}, 6, v{vS}\ns_and_b32 s{S_T0}, s{S_W}, 1\ns_lshl_b32 s{S_T0}, s{S_T0}, 5\nv_add_u32 v{vS}, s{S_T0}, v{vS}')
        e(f's_mul_i32 s{S_T0}, s{S_HID}, {2*28}\ns_add_u32 s{S_T0}, s{S_T0}, s{S_W}\ns_lshl_b32 s{S_T0}, s{S_T0}, 10\ns_add_u32 s{S_T0}, s{S_T0}, {WS_HD}\nv_lshl_add_u32 v{vHs}, v1, 4, s{S_T0}')
        ones = V.alloc(4, 4); SG = V.alloc(8, 4); SB = V.alloc(56, 4)
        for i in range(4): e(f'v_mov_b32 v{ones+i}, 0x3f803f80')
        K1, K2, K3 = 6, 8, 10
        e(f's_mov_b32 s{K1}, 0x22222222\ns_mov_b32 s{K1+1}, 0x22222222\ns_mov_b32 s{K2}, 0x44444444\ns_mov_b32 s{K2+1}, 0x44444444')
        e(f's_mov_b32 s{K3}, 0x88888888\ns_mov_b32 s{K3+1}, 0x88888888\ns_mov_b32 s12, 0x00f0000f\ns_mov_b32 s13, 0xf0000f00')
        self.poll_flags(WS_FLAG2 + 32*FLAG_STRIDE, 64, 4, last_lanes=32, sleep=self.o.get('hsleep', 20))
        self.vm.drain(); self.lg.drain()
        self.stamp(7)
        e(f's_lshl_b32 s{S_T2}, s{S_W}, 10')
        for i in range(14):
            e(f's_add_u32 m0, s{S_T2}, {i*4096}\ns_mov_b32 s{S_T1}, {i*32*HT_STRIDE}')
            self.vmem(f'buffer_load_dwordx4 v{vD}, s[{R_WS}:{R_WS+3}], s{S_T1} offen sc1 lds', 'h')
        self.wait_all_vm(); e('s_barrier')
        self.stamp(8)
        for i in range(14):
            for h_ in range(2): self.ds(f'ds_read_b64_tr_b16 {vr(SB+4*i+2*h_,2)}, v{vS} offset:{i*4096 + 2048*h_}', f's{i}')
        for i in range(14):
            self.wait_lg(f's{i}')
            e(f'v_mfma_f32_16x16x32_bf16 {vr(SG,4)}, {vr(SB+4*i,4)}, {vr(SB+4*i,4)}, {"0" if i == 0 else vr(SG,4)}')
            e(f'v_mfma_f32_16x16x32_bf16 {vr(SG+4,4)}, {vr(ones,4)}, {vr(SB+4*i,4)}, {"0" if i == 0 else vr(SG+4,4)}')
        HB = V.alloc(56, 4)
        e(f'v_cndmask_b32 v{SG}, v{SG}, v{SG+1}, s[{K1}:{K1+1}]\nv_cndmask_b32 v{SG}, v{SG}, v{SG+2}, s[{K2}:{K2+1}]\nv_cndmask_b32 v{SG+5}, v{SG}, v{SG+3}, s[{K3}:{K3+1}]')
        self.ln_finalize(SG + 4, SG + 5, SG + 1, SG + 2, SG + 3)
        e(f'v_lshrrev_b32 v{SG}, 16, v{SG+1}\nv_or_b32 v{SG}, v{SG}, v{SG+2}\nv_mov_b32 v{SG+1}, s{S_NONCE}')
        e(f'v_and_b32 v{t0}, 15, v1\ns_lshl_b32 s{S_T0}, s{S_HID}, 6\ns_lshl_b32 s{S_T1}, s{S_W}, 4\ns_add_u32 s{S_T0}, s{S_T0}, s{S_T1}\nv_add_u32 v{t0}, s{S_T0}, v{t0}\nv_lshlrev_b32 v{t0}, 3, v{t0}\nv_add_u32 v{t0}, {WS_STATS2}, v{t0}')
        e(f's_mov_b64 s[{S_M1}:{S_M1+1}], exec\ns_mov_b64 exec, s[12:13]')
        self.vmem(f'buffer_store_dwordx2 {vr(SG,2)}, v{t0}, s[{R_WS}:{R_WS+3}], 0 offen sc1', 'st2')
        e(f's_mov_b64 exec, s[{S_M1}:{S_M1+1}]')
        self.stamp(9)
        e(f's_lshl_b32 s{S_T0}, s{S_W}, 11\nv_add_u32 v{vB}, s{S_T0}, v{vB}\nv_add_u32 v{vB+1}, s{S_T0}, v{vB+1}')
        for i in range(7):
            for gp in range(2):
                for h_ in range(2):
                    self.ds(f'ds_read_b64_tr_b16 {vr(HB+8*i+4*gp+2*h_,2)}, v{vB+gp} offset:{i*8192 + 1024*h_}', f'hb{i}_{gp}')
        for i in range(7):
            for gp in range(2):
                self.wait_lg(f'hb{i}_{gp}')
                e(f's_mov_b32 s{S_T1}, {(gp*28 + 4*i)*1024}')
                self.vmem(f'buffer_store_dwordx4 {vr(HB+8*i+4*gp,4)}, v{vHs}, s[{R_WS}:{R_WS+3}], s{S_T1} offen sc1', 'hd')
        self.wait_all_vm(); e('s_barrier')
        e(f's_lshr_b32 s{S_T1}, s{S_HID}, 1\ns_lshl_b32 s{S_T1}, s{S_T1}, 4\ns_and_b32 s{S_T2}, s{S_HID}, 1\ns_add_u32 s{S_T1}, s{S_T1}, s{S_T2}\ns_add_u32 s{S_T1}, s{S_T1}, 14')
        self.signal(WS_FLAG3, f's{S_T1}')
        self.stamp(2)
        self.stamps_out()
        e('s_branch L_end')

    def signal(self, base, sidx):
        e = self.e; V = self.V
        lab = self.lab('sig')
        e(f's_cmp_lg_u32 s{S_W}, 0\ns_cbranch_scc1 {lab}')
        v = V.alloc(2, 2)
        e(f's_mul_i32 s{S_T0}, {sidx}, {FLAG_STRIDE}\ns_add_u32 s{S_T0}, s{S_T0}, {base}')
        e(f'v_mov_b32 v{v}, s{S_NONCE}\nv_mov_b32 v{v+1}, s{S_T0}')
        e(f's_mov_b64 s[{S_M1}:{S_M1+1}], exec\ns_mov_b64 exec, 1')
        e(f'buffer_store_dword v{v}, v{v+1}, s[{R_WS}:{R_WS+3}], 0 offen sc1')
        e(f's_mov_b64 exec, s[{S_M1}:{S_M1+1}]')
        V.free(v, 2)
        self.label(lab)

    def rbf(self, d, s, pre=''):
        self.e(f'v_cvt_pk_bf16_f32 v{d}, v{s}, v{s}\nv_lshlrev_b32 v{d}, 16, v{d}')
    def ln_finalize(self, S, Q, dm, ds_, dt):
        e = self.e
        e(f'v_mul_f32 v{S}, {fx(1/448)}, v{S}')
        e(f'v_mul_f32 v{Q}, {fx(1/448)}, v{Q}')
        e(f'v_fma_f32 v{Q}, -v{S}, v{S}, v{Q}')
        e(f'v_max_f32 v{Q}, 0, v{Q}')
        self.rbf(dm, S)
        self.rbf(dt, Q)
        e(f'v_add_f32 v{dt}, {fx(1e-5)}, v{dt}')
        self.rbf(dt, dt)
        e(f'v_sqrt_f32 v{dt}, v{dt}')
        self.rbf(ds_, dt)

    def w1_setup(self):
        e = self.e; V = self.V
        self.vW1 = V.alloc(1); self.vTS = V.alloc(5)
        t = V.alloc(1); t2 = V.alloc(1)
        e(f'v_lshrrev_b32 v{t}, 4, v1\nv_mul_u32_u24 v{self.vW1}, 3584, v{t}\nv_lshlrev_b32 v{t}, 2, v{t}\nv_and_b32 v{t2}, 15, v1\nv_xor_b32 v{t}, v{t}, v{t2}\nv_lshl_add_u32 v{self.vW1}, v{t}, 4, v{self.vW1}')
        e(f's_lshl_b32 s{S_T0}, s{S_FB}, 8\ns_mul_i32 s{S_T1}, s{S_W}, {4*3584}\ns_add_u32 s{S_T0}, s{S_T0}, s{S_T1}\nv_add_u32 v{self.vW1}, s{S_T0}, v{self.vW1}')
        e(f's_lshl_b32 s{S_WM}, s{S_W}, 10\ns_add_u32 s{S_WM}, s{S_WM}, {L_STG}')
        a = self.vTS
        e(f'v_lshrrev_b32 v{t}, 5, v1\nv_lshlrev_b32 v{a}, 10, v{t}\nv_bfe_u32 v{t}, v1, 2, 2\nv_lshl_add_u32 v{a}, v{t}, 8, v{a}')
        e(f'v_xor_b32 v{t}, s{S_W}, v{t}\nv_lshl_add_u32 v{a}, v{t}, 6, v{a}')
        e(f'v_bfe_u32 v{t}, v1, 4, 1\nv_lshl_add_u32 v{a}, v{t}, 5, v{a}\nv_and_b32 v{t}, 3, v1\nv_lshl_add_u32 v{a}, v{t}, 3, v{a}')
        e(f'v_add_u32 v{a+1}, {L_STGX}, v{a}\nv_add_u32 v{a+2}, {L_STG + 65536}, v{a}\nv_add_u32 v{a+3}, 57344, v{a}\nv_mov_b32 v{a+4}, v{a}\nv_add_u32 v{a}, {L_STG}, v{a}')
        for q in range(4):
            e(f's_add_u32 s{S_T0}, s{S_ROT}, {q}\ns_and_b32 s{S_T0}, s{S_T0}, 3\ns_mul_i32 s{S_Q0+q}, s{S_T0}, {7*16*3584}')
        V.free(t); V.free(t2)
    @property
    def W1SLOT(self):
        if self.o.get('xg', True): return [0,1,2,3,4, 5,6,7,8,9, 0,1,2,3, 4,5,6,7,8,9, 10,11, 12,13,14,15,16,17]
        return [0,1,2,3,4, 5,6,7,8,9, 0,1,2,3,4, 0,1,2,3,5,6,7,8,9, 10,11,12,13]
    def w1_slot_off(self, k):
        s = self.W1SLOT[k]
        return s * STG_SLOT if s < 9 else (L_STGX - L_STG if s == 9 else (57344 + (s - 10)*STG_SLOT - L_STG if s < 12 else (s - 12)*STG_SLOT - L_STG))
    def w1_dma(self, k, tag, slot=None):
        e = self.e; sl = self.w1_slot_off(k)
        def m0(x): return f's_add_u32 m0, s{S_WM}, {x}' if x >= 0 else f's_sub_u32 m0, s{S_WM}, {-x}'
        return [lambda: e(f's_add_u32 s{S_WO}, s{S_Q0 + k // 7}, {(k % 7)*16*3584}'),
                lambda: e(m0(sl)),
                lambda: self.vmem(f'buffer_load_dwordx4 v{self.vW1}, s[{R_WG}:{R_WG+3}], s{S_WO} offen lds', tag),
                lambda: e(m0(sl + 4096)),
                lambda: self.vmem(f'buffer_load_dwordx4 v{self.vW1}, s[{R_WU}:{R_WU+3}], s{S_WO} offen lds', tag)]
    def w1_issue(self, k0, k1, tag):
        for k in range(k0, k1):
            for f in self.w1_dma(k, tag): f()
    def w1_reads(self, k):
        s = self.W1SLOT[k]
        if s == 9: a, sl = self.vTS + 1, 0
        elif s >= 12: a, sl = self.vTS + 4, (s - 12) * STG_SLOT
        elif s >= 10: a, sl = self.vTS + 3, (s - 10) * STG_SLOT
        else: a, sl = self.vTS, s * STG_SLOT
        assert sl + 6144 < 65536 + 8192
        out = []
        for q in range(4):
            off = sl + 2048 * q
            aa = a
            if off >= 65536: aa, off = self.vTS + 2, off - 65536
            out.append(lambda q=q, aa=aa, off=off: self.ds(f'ds_read_b64_tr_b16 {ar(8*k+2*q,2)}, v{aa} offset:{off}', 'w1r'))
        return out
    def w1_read(self, k0, k1):
        for k in range(k0, k1):
            for f in self.w1_reads(k): f()

    def phaseA(self):
        e = self.e; V = self.V; o = self.o
        self.c('================= phase A')
        par = V.alloc(6); t0 = V.alloc(1); t1 = V.alloc(1)
        e(f's_lshl_b32 s{S_T1}, s{S_CP}, 10\nv_lshl_add_u32 v{t0}, v0, 2, s{S_T1}\ns_lshl_b32 s{S_T0}, s{S_CP}, 2')
        e('s_waitcnt lgkmcnt(0)')
        for i, sp in enumerate((S_ARE, S_AIM, S_BRE, S_BIM, S_CRE, S_CIM)):
            self.vmem(f'global_load_dword v{par+i}, v{t0}, s[{sp}:{sp+1}]', 'par')
        e(f's_load_dword s{S_LD}, s[{S_LDT}:{S_LDT+1}], s{S_T0}\ns_load_dword s{S_DK}, s[{S_DSK}:{S_DSK+1}], s{S_T0}')
        self.srds()
        e(f's_mov_b32 s{S_TS+6}, s{S_M0}')
        self.stamp(0)
        XG = o.get('xg', True)
        xg = V.alloc(8); xa0 = V.alloc(1); xa1 = V.alloc(1)
        e(f's_lshl_b32 s{S_T0}, s{S_CP}, 2\nv_mul_u32_u24 v{xa0}, 7168, v0\nv_add_u32 v{xa0}, s{S_T0}, v{xa0}\nv_add_u32 v{xa1}, 4480, v{xa0}')
        def xgather(k):
            if k < 5: self.vmem(f'buffer_load_dword v{xg+k}, v{xa0}, s[{R_X}:{R_X+3}], 0 offen offset:{896*k}', 'xg')
            else: self.vmem(f'buffer_load_dword v{xg+k}, v{xa1}, s[{R_X}:{R_X+3}], 0 offen offset:{896*(k-5)}', 'xg')
        self.xgather = xgather
        tch = V.alloc(6, 2); self.tch = tch
        if o.get('touch_x', False):
            e(f's_lshl_b32 s{S_T0}, s{S_J}, 6\ns_lshl_b32 s{S_T1}, s{S_W}, 4\ns_add_u32 s{S_T0}, s{S_T0}, s{S_T1}')
            e(f'v_add_u32 v{tch}, s{S_T0}, v1\nv_mul_u32_u24 v{tch+1}, 9363, v{tch}\nv_lshrrev_b32 v{tch+1}, 16, v{tch+1}')
            e(f'v_mul_u32_u24 v{tch+2}, 7, v{tch+1}\nv_sub_u32 v{tch}, v{tch}, v{tch+2}\ns_lshl_b32 s{S_T0}, s{S_XCD}, 8\nv_add_u32 v{tch+1}, s{S_T0}, v{tch+1}')
            e(f'v_mul_u32_u24 v{tch+1}, 896, v{tch+1}\nv_lshl_add_u32 v{tch+1}, v{tch}, 7, v{tch+1}')
            e(f's_mov_b64 s[{S_M1}:{S_M1+1}], exec\ns_mov_b64 exec, 0xffff')
            self.vmem(f'buffer_load_dword v{tch+3}, v{tch+1}, s[{R_X}:{R_X+3}], 0 offen', 'tx')
            e(f's_mov_b64 exec, s[{S_M1}:{S_M1+1}]')
        self.map_bc()
        if o.get('touch_w1', False):
            e(f'v_mul_u32_u24 v{t1}, 4682, v0\nv_lshrrev_b32 v{t1}, 16, v{t1}\nv_mul_u32_u24 v{tch}, 14, v{t1}\nv_sub_u32 v{tch}, v0, v{tch}')
            e(f's_lshl_b32 s{S_T0}, s{S_J}, 4\nv_add_u32 v{t1}, s{S_T0}, v{t1}\nv_mul_u32_u24 v{t1}, 3584, v{t1}\nv_lshl_add_u32 v{t1}, v{tch}, 7, v{t1}')
            e(f's_and_b32 s{S_T0}, s{S_XCD}, 1\ns_mul_i32 s{S_T0}, s{S_T0}, 1792\nv_add_u32 v{t1}, s{S_T0}, v{t1}')
            e(f'v_cmp_gt_u32 vcc, 224, v0\ns_and_saveexec_b64 s[{S_M1}:{S_M1+1}], vcc')
            la = self.lab('tw'); e(f's_cbranch_execz {la}')
            self.vmem(f'buffer_load_dword v{tch}, v{t1}, s[{R_WG}:{R_WG+3}], 0 offen', 'tw')
            self.vmem(f'buffer_load_dword v{tch+1}, v{t1}, s[{R_WU}:{R_WU+3}], 0 offen', 'tw')
            self.label(la); e(f's_mov_b64 exec, s[{S_M1}:{S_M1+1}]')
        self.w1_setup()
        TW = o.get('touch_w1', False)
        if XG:
            for k in range(o.get('xg0', 3)): xgather(k)
        elif not TW: self.w1_issue(0, o.get('w0', 2), 'wa')
        self.stamp(1)
        ga = V.alloc(12, 2)
        self.ga = ga
        e(f'v_lshlrev_b32 v{t0}, 3, v0\nv_sub_u32 v{t0}, 2048, v{t0}')
        for k in range(1, 12):
            e(f'v_subrev_u32 v{ga+k-1}, {k}, v{t0}')
        e(f'v_mov_b32 v{ga+11}, 0')
        tt = V.alloc(2, 2)
        for k in range(0, 12, 2):
            a, b = ga + k, ga + k + 1
            e(f'v_max_i32 v{tt}, 0, v{a}\nv_max_i32 v{tt+1}, 0, v{b}')
            e(f'v_cvt_f32_u32 v{tt}, v{tt}\nv_cvt_f32_u32 v{tt+1}, v{tt+1}')
            e(f'v_cvt_pk_bf16_f32 v{t1}, v{tt}, v{tt+1}')
            e(f'v_lshlrev_b32 v{tt}, 16, v{t1}\nv_and_b32 v{tt+1}, 0xffff0000, v{t1}')
            e(f'v_cvt_u32_f32 v{tt}, v{tt}\nv_cvt_u32_f32 v{tt+1}, v{tt+1}')
            for x, r in ((tt, a), (tt + 1, b)):
                e(f'v_lshrrev_b32 v{t1}, 3, v{x}\nv_add_u32 v{x}, v{x}, v{t1}')
                if k >= 8:
                    e(f'v_cmp_gt_i32 vcc, 0, v{r}\nv_mov_b32 v{t1}, 2320\nv_cndmask_b32 v{x}, v{x}, v{t1}, vcc')
                e(f'v_lshlrev_b32 v{x}, 2, v{x}\nv_add_u32 v{r}, {L_K32}, v{x}')
        V.free(tt, 2)
        e('s_waitcnt lgkmcnt(0)'); self.lg.drain()
        e(f's_lshr_b32 s{S_T0}, s{S_W}, 1\ns_lshl_b32 s{S_T0}, s{S_T0}, 4')
        e(f's_lshr_b32 s{S_LD}, s{S_LD}, s{S_T0}\ns_lshl_b32 s{S_LD}, s{S_LD}, 16')
        e(f's_lshr_b32 s{S_DK}, s{S_DK}, s{S_T0}\ns_lshl_b32 s{S_DK}, s{S_DK}, 16')
        dt = V.alloc(2, 2); tt = V.alloc(2, 2)
        L_hi = struct.unpack('<f', struct.pack('<f', LOG2E))[0]; L_lo = LOG2E - L_hi
        e(f'v_mov_b32 v{dt}, s{S_LD}\nv_mul_f32 v{tt}, {fx(L_hi)}, v{dt}')
        e(f's_mov_b32 s{S_T1}, {fx(L_hi)}')
        e(f'v_fma_f32 v{tt+1}, v{dt}, s{S_T1}, -v{tt}\nv_fmac_f32 v{tt+1}, {fx(L_lo)}, v{dt}')
        e(f'v_exp_f32 v{tt}, v{tt}\nv_mul_f32 v{tt+1}, {fx(math.log(2))}, v{tt+1}')
        e(f'v_fma_f32 v{dt}, v{tt}, v{tt+1}, v{tt}')
        self.rbf(dt, dt)
        V.free(tt, 2)
        ka = self.kgen_setup()
        cv = self.conv_setup()
        xo = V.alloc(1)
        e(f's_lshr_b32 s{S_T0}, s{S_CP}, 2\ns_lshl_b32 s{S_T0}, s{S_T0}, 15\ns_and_b32 s{S_T1}, s{S_CP}, 3\ns_lshl_b32 s{S_T1}, s{S_T1}, 5\ns_add_u32 s{S_T0}, s{S_T0}, s{S_T1}\ns_add_u32 s{S_T0}, s{S_T0}, {WS_XT}\nv_lshl_add_u32 v{xo}, v0, 7, s{S_T0}')
        sa = V.alloc(1); nv = V.alloc(2, 2); lp = V.alloc(2, 2)
        e(f'v_lshlrev_b32 v{sa}, 6, v0\nv_mov_b32 v{nv+1}, 0')
        e(f'v_and_b32 v{lp+1}, 31, v1\nv_lshlrev_b32 v{lp+1}, 7, v{lp+1}\ns_lshl_b32 s{S_T0}, s{S_W}, 12\ns_add_u32 s{S_T0}, s{S_T0}, {WS_STATS + 4}\nv_add_u32 v{lp+1}, s{S_T0}, v{lp+1}')
        if WS_STATS: e(f'v_add_u32 v{sa}, {WS_STATS}, v{sa}')
        xs = list(range(o.get('xg0', 3), 8))
        if XG and xs: xgather(xs.pop(0))
        self.wait_vm('par')
        self.stamp(2)
        save_lines = self.lines; self.lines = []
        sc = V.alloc(12, 2)
        e(f'v_lshlrev_b32 v{sc+4}, 16, v{par+2}\nv_and_b32 v{sc+6}, 0xffff0000, v{par+2}')
        e(f'v_lshlrev_b32 v{sc+5}, 16, v{par+3}\nv_and_b32 v{sc+7}, 0xffff0000, v{par+3}')
        e(f'v_lshlrev_b32 v{sc+8}, 16, v{par+4}\nv_and_b32 v{sc+10}, 0xffff0000, v{par+4}')
        e(f'v_lshlrev_b32 v{sc+9}, 16, v{par+5}\nv_and_b32 v{sc+11}, 0xffff0000, v{par+5}')
        e(f'v_lshlrev_b32 v{sc}, 16, v{par}\nv_and_b32 v{sc+1}, 0xffff0000, v{par}')
        e(f'v_lshlrev_b32 v{sc+2}, 16, v{par+1}\nv_and_b32 v{sc+3}, 0xffff0000, v{par+1}')
        V.free(par, 6)
        for i in (4, 5, 6, 7, 0, 1, 2, 3): e(f'v_mul_f32 v{sc+i}, v{dt}, v{sc+i}')
        V.free(dt, 2)
        Q = lambda: V.alloc(4, 4)
        tq = Q(); pkt = V.alloc(4, 2); npk = [0]
        def qmul(d, a, b):
            self.cmul_multi([(d, a, b, None), (d + 2, a + 2, b + 2, None)])
        CB = Q()
        qmul(CB, sc + 8, sc + 4)
        mx = V.alloc(2, 2)
        e(f'v_max_f32 v{mx}, |v{CB}|, |v{CB+1}|\nv_max_f32 v{mx+1}, |v{CB+2}|, |v{CB+3}|')
        e(f'v_mul_f32 v{sc}, {fx(LOG2E)}, v{sc}\nv_mul_f32 v{sc+1}, {fx(LOG2E)}, v{sc+1}')
        e(f'v_max_f32 v{mx}, v{mx}, v{mx+1}')
        e(f'v_mul_f32 v{sc+2}, {fx(1/(2*math.pi))}, v{sc+2}\nv_mul_f32 v{sc+3}, {fx(1/(2*math.pi))}, v{sc+3}')
        for mod in ('quad_perm:[1,0,3,2]', 'quad_perm:[2,3,0,1]', 'row_half_mirror', 'row_mirror'):
            e(f'v_max_f32_dpp v{mx}, v{mx}, v{mx} {mod} row_mask:0xf bank_mask:0xf')
        for swap in ('v_permlane16_swap_b32', 'v_permlane32_swap_b32'):
            e(f'v_mov_b32 v{mx+1}, v{mx}\n{swap} v{mx}, v{mx+1}\nv_max_f32 v{mx}, v{mx}, v{mx+1}')
        e(f'v_readfirstlane_b32 s{S_T0}, v{mx}')
        e(f's_lshr_b32 s{S_T0}, s{S_T0}, 23\ns_max_u32 s{S_T0}, s{S_T0}, 14\ns_min_u32 s{S_T0}, s{S_T0}, 254')
        e(f's_sub_u32 s{S_T1}, 267, s{S_T0}\ns_lshl_b32 s{S_T1}, s{S_T1}, 23\ns_sub_u32 s{S_US}, s{S_T0}, 13\ns_lshl_b32 s{S_US}, s{S_US}, 23')
        V.free(mx, 2)
        if XG:
            if xs: xgather(xs.pop(0))
        elif not TW: self.w1_issue(o.get('w0', 2), 5, 'wa2')
        def direct(dst, ex):
            for m in range(2):
                if ex == 1:
                    e(f'v_exp_f32 v{tq+m}, v{sc+m}\nv_fract_f32 v{tq+2+m}, v{sc+2+m}')
                else:
                    e(f'v_mul_f32 v{tq+m}, {fx(float(ex))}, v{sc+m}\nv_mul_f32 v{tq+2+m}, {fx(float(ex))}, v{sc+2+m}')
            if ex != 1:
                for m in range(2): e(f'v_exp_f32 v{tq+m}, v{tq+m}\nv_fract_f32 v{tq+2+m}, v{tq+2+m}')
            for m in range(2):
                e(f'v_cos_f32 v{dst+2*m}, v{tq+2+m}\nv_sin_f32 v{dst+2*m+1}, v{tq+2+m}')
            for m in range(2):
                e(f'v_mul_f32 v{dst+2*m}, v{tq+m}, v{dst+2*m}\nv_mul_f32 v{dst+2*m+1}, v{tq+m}, v{dst+2*m+1}')
        wa = V.alloc(1)
        e(f'v_and_b32 v{wa}, 127, v0\nv_lshlrev_b32 v{wa}, 3, v{wa}\ns_lshr_b32 s{S_T0}, s{S_W}, 1\ns_mul_i32 s{S_T0}, s{S_T0}, {TBL_C}\nv_add_u32 v{wa}, s{S_T0}, v{wa}')
        def put(q, ent, conj=False):
            p = pkt + 2 * (npk[0] & 1); npk[0] += 1
            n = '-' if conj else ''
            e(f'v_cvt_pk_f16_f32 v{p}, v{q}, {n}v{q+1}\nv_cvt_pk_f16_f32 v{p+1}, v{q+2}, {n}v{q+3}')
            self.ds(f'ds_write_b64 v{wa}, {vr(p,2)} offset:{ent*TBL_E}')
        one = V.alloc(2, 2)
        e(f'v_mov_b32 v{one}, 0x3c00\nv_mov_b32 v{one+1}, 0x3c00')
        for ent in (0, 4, 12): self.ds(f'ds_write_b64 v{wa}, {vr(one,2)} offset:{ent*TBL_E}')
        V.free(one, 2)
        z1 = Q(); z2 = Q(); z3 = Q(); z4 = Q(); CS = Q()
        direct(z1, 1); put(z1, 1)
        for m in range(4): e(f'v_mul_f32 v{CS+m}, s{S_T1}, v{CB+m}')
        put(CS, 8, True)
        qmul(z2, z1, z1); put(z2, 2)
        qmul(z3, z2, z1); put(z3, 3)
        qmul(z4, z2, z2); put(z4, 5)
        qmul(z1, z4, z4); put(z1, 6)
        qmul(z2, z1, z4); put(z2, 7)
        qmul(z3, z1, z1); put(z3, 16)
        qmul(z1, z3, z3)
        qmul(z4, CS, z1); put(z4, 9, True)
        qmul(z2, z1, z1)
        qmul(z4, CS, z2); put(z4, 10, True)
        qmul(z3, z2, z1)
        qmul(z4, CS, z3); put(z4, 11, True)
        qmul(z1, z2, z2); put(z1, 13, True)
        qmul(z2, z1, z1); put(z2, 14, True)
        qmul(z3, z2, z1); put(z3, 15, True)
        qmul(z1, z2, z2); put(z1, 17, True)
        if XG and xs: xgather(xs.pop(0))
        self.xs = xs
        qmul(z2, z1, z1)
        qmul(z3, z2, z2)
        c48 = V.alloc(2, 2)
        e(f'v_mul_f32 v{c48}, v{CB}, v{z3}\nv_fma_f32 v{c48}, -v{CB+1}, v{z3+1}, v{c48}')
        e(f'v_fmac_f32 v{c48}, v{CB+2}, v{z3+2}\nv_fma_f32 v{c48}, -v{CB+3}, v{z3+3}, v{c48}')
        for q in (z1, z2, z3, z4, CB, CS, tq): V.free(q, 4)
        V.free(sc, 12); V.free(wa); V.free(pkt, 4)
        for mod in ('quad_perm:[1,0,3,2]', 'quad_perm:[2,3,0,1]', 'row_half_mirror', 'row_mirror'):
            e(f'v_add_f32_dpp v{c48}, v{c48}, v{c48} {mod} row_mask:0xf bank_mask:0xf')
        for swap in ('v_permlane16_swap_b32', 'v_permlane32_swap_b32'):
            e(f'v_mov_b32 v{c48+1}, v{c48}\n{swap} v{c48}, v{c48+1}\nv_add_f32 v{c48}, v{c48}, v{c48+1}')
        fl = self.lines; self.lines = save_lines
        self.lines.extend(resched(fl) if o.get('resched', True) else fl)
        if not TW and not XG: self.wait_vm('wa')
        self.wait_all_lg(); e('s_barrier')
        self.stamp(3)
        sg = V.alloc(16, 4); XP = V.alloc(8, 4)
        def light_loads(model=True):
            a = f'buffer_load_dword v{nv}, v{nv+1}, s[{R_DBG}:{R_DBG+3}], 0 offen sc1'
            b = f'buffer_load_dword v{lp}, v{lp+1}, s[{R_WS}:{R_WS+3}], 0 offen sc1'
            if model: self.vmem(a, 'lp'); self.vmem(b, 'lp')
            else: e(a); e(b)
        def light_wait():
            l0 = self.lab('lp'); l1 = self.lab('lpd'); l2 = self.lab('lpr')
            self.wait_vm('lp')
            e(f's_mov_b32 s{S_CNT}, 0')
            self.label(l0)
            e(f'v_readfirstlane_b32 s{S_NONCE}, v{nv}')
            e(f's_cmp_eq_u32 s{S_NONCE}, 0\ns_cbranch_scc1 {l2}')
            e(f'v_cmp_ne_u32 vcc, s{S_NONCE}, v{lp}\ns_cbranch_vccz {l1}')
            self.label(l2)
            e(f's_sleep {o.get("lsleep", 2)}')
            light_loads(False)
            e('s_waitcnt vmcnt(0)')
            e(f's_add_u32 s{S_CNT}, s{S_CNT}, 1\ns_cmp_lt_u32 s{S_CNT}, {SPIN_MAX}\ns_cbranch_scc1 {l0}')
            self.label(l1)
        def data_loads():
            for i in range(4): self.vmem(f'buffer_load_dwordx4 {vr(sg+4*i,4)}, v{sa}, s[{R_WS}:{R_WS+3}], 0 offen offset:{16*i} sc1', 'sg')
            self.vmem(f'buffer_load_dwordx4 {vr(XP,4)}, v{xo}, s[{R_WS}:{R_WS+3}], 0 offen sc1', 'sg')
            self.vmem(f'buffer_load_dwordx4 {vr(XP+4,4)}, v{xo}, s[{R_WS}:{R_WS+3}], 0 offen offset:16 sc1', 'sg')
        EARLY = o.get('early', True)
        self.light_loads = light_loads
        def full_poll():
            return [lambda: self.vmem(f'buffer_load_dword v{nv}, v{nv+1}, s[{R_DBG}:{R_DBG+3}], 0 offen sc1', 'sg')] + \
                   [lambda i=i: self.vmem(f'buffer_load_dwordx4 {vr(sg+4*i,4)}, v{sa}, s[{R_WS}:{R_WS+3}], 0 offen offset:{16*i} sc1', 'sg') for i in range(4)]
        self.full_poll = full_poll
        def after_main():
            if XG: return
            if EARLY: light_wait(); data_loads()
            else: light_loads()
            if TW: self.wait_vm('wa')
            else: self.wait_vm('wa2')
        def after_b2a():
            if XG:
                self.w1_issue(3, 5, 'wa'); return
            if TW: self.w1_read(0, 5)
            else: self.w1_read(o.get('w0', 2), 5)
            self.w1_issue(8, 9, 'wb')
        self.kgen_main(ka, c48, after_main, after_b2a)
        V.free(c48, 2)
        self.wait_all_lg(); e('s_barrier')
        self.stamp(4)
        gat = self.expand_gather()
        if not XG and not EARLY: light_wait(); data_loads()
        V.free(lp, 2)
        self.stamp(7)
        if XG: self.w1_issue(5, 6, 'wb')
        else: self.w1_issue(9, 10, 'wb')
        self.expand_write(gat)
        if XG: self.w1_issue(6, 7, 'wb')
        else: self.w1_issue(10, 11, 'wc')
        self.stamp(5)
        if XG:
            self.wait_vm('xg')
            e(f's_mov_b32 s{S_T0}, 0x05040100\ns_mov_b32 s{S_T1}, 0x07060302')
            for d in range(4):
                e(f'v_perm_b32 v{XP+d}, v{xg+2*d+1}, v{xg+2*d}, s{S_T0}\nv_perm_b32 v{XP+4+d}, v{xg+2*d+1}, v{xg+2*d}, s{S_T1}')
            self.verify_stats(sg, sa, nv, with_nonce=True)
        else: self.verify_stats(sg, sa, nv)
        V.free(nv, 2); V.free(xo); V.free(xg, 8); V.free(xa0); V.free(xa1)
        self.region(lambda: self.normalize(XP, sg))
        V.free(sg, 16); V.free(sa); V.free(XP, 8)
        if XG: self.wait_vm('wa')
        self.wait_all_lg(); e('s_barrier')
        self.stamp(6)
        if XG: self.w1_read(0, 5)
        if o.get('touch_wd2', False):
            ta = V.alloc(2)
            for q in range(2):
                e(f'v_add_u32 v{ta}, {224*q}, v0\nv_mul_u32_u24 v{ta+1}, 9363, v{ta}\nv_lshrrev_b32 v{ta+1}, 16, v{ta+1}\nv_mul_u32_u24 v{tch+q}, 7, v{ta+1}\nv_sub_u32 v{ta}, v{ta}, v{tch+q}')
                e(f's_lshl_b32 s{S_T0}, s{S_J}, 6\nv_add_u32 v{ta+1}, s{S_T0}, v{ta+1}\nv_mul_u32_u24 v{ta+1}, 896, v{ta+1}\nv_lshl_add_u32 v{ta+1}, v{ta}, 7, v{ta+1}')
                e(f'v_cmp_gt_u32 vcc, 224, v0\ns_and_saveexec_b64 s[{S_M1}:{S_M1+1}], vcc')
                la = self.lab('td'); e(f's_cbranch_execz {la}')
                e(f'buffer_load_dword v{tch+2+q}, v{ta+1}, s[{R_WD}:{R_WD+3}], 0 offen')
                self.label(la); e(f's_mov_b64 exec, s[{S_M1}:{S_M1+1}]')
            V.free(ta, 2)
        fill = []
        for k in (range(7, 10) if XG else range(11, 14)): fill += self.w1_dma(k, 'wc')
        self.conv(cv, fill)
        V.free(t0); V.free(t1)
        self.stamp(8)
        self.wait_vm('ht'); self.wait_all_lg(); e('s_barrier')
        self.signal(WS_FLAG2, 's2')
        self.stamp(9)
        V.free(tch, 6)
        self.cs = V.alloc(32, 4); self.ones = V.alloc(4, 4)
        for i in range(4): e(f'v_mov_b32 v{self.ones+i}, 0x3f803f80')
        _, setup = self.capture(self.phaseB_setup)
        self.K0 = 10 if XG else 14
        dma = [f for k in range(14 if XG else 15, 28) for f in self.w1_dma(k, 'we')]
        mains = []
        for k in range(self.K0):
            for u in range(2):
                c = '0' if k == 0 else vr(self.cs + 16*u, 16)
                mains.append(([], lambda k=k, u=u, c=c: e(f'v_mfma_f32_32x32x16_bf16 {vr(self.cs+16*u,16)}, {ar(8*k+4*u,4)}, {vr(self.ones,4)}, {c}'), 32, []))
        merged = []
        while dma or setup:
            for _ in range(2):
                if dma: merged.append(dma.pop(0))
            for _ in range(5):
                if setup: merged.append(setup.pop(0))
        self.sched(mains, [(x, 1) for x in merged])
        self.stamp(12)

    def cs_mfma(self, k0, k1):
        for k in range(k0, k1):
            for u in range(2):
                c = '0' if k == 0 else vr(self.cs + 16*u, 16)
                self.e(f'v_mfma_f32_32x32x16_bf16 {vr(self.cs+16*u,16)}, {ar(8*k+4*u,4)}, {vr(self.ones,4)}, {c}')

    def verify_stats(self, sg, sa, nv, with_nonce=False):
        e = self.e; V = self.V
        l0 = self.lab('sp'); l1 = self.lab('spd')
        t = V.alloc(2)
        self.wait_vm('sg')
        e(f's_mov_b32 s{S_CNT}, 0')
        self.label(l0)
        l2 = self.lab('spr')
        if with_nonce:
            e(f'v_readfirstlane_b32 s{S_NONCE}, v{nv}')
            e(f's_cmp_eq_u32 s{S_NONCE}, 0\ns_cbranch_scc1 {l2}')
        e(f'v_min3_u32 v{t}, v{sg+1}, v{sg+3}, v{sg+5}\nv_max3_u32 v{t+1}, v{sg+1}, v{sg+3}, v{sg+5}')
        e(f'v_min3_u32 v{t}, v{t}, v{sg+7}, v{sg+9}\nv_max3_u32 v{t+1}, v{t+1}, v{sg+7}, v{sg+9}')
        e(f'v_min3_u32 v{t}, v{t}, v{sg+11}, v{sg+13}\nv_max3_u32 v{t+1}, v{t+1}, v{sg+11}, v{sg+13}')
        e(f'v_min_u32 v{t}, v{t}, v{sg+15}\nv_max_u32 v{t+1}, v{t+1}, v{sg+15}')
        e(f'v_xor_b32 v{t}, s{S_NONCE}, v{t}\nv_xor_b32 v{t+1}, s{S_NONCE}, v{t+1}\nv_or_b32 v{t}, v{t}, v{t+1}\nv_cmp_ne_u32 vcc, 0, v{t}')
        e(f's_cbranch_vccz {l1}')
        self.label(l2)
        if with_nonce: e(f's_sleep 2\nbuffer_load_dword v{nv}, v{nv+1}, s[{R_DBG}:{R_DBG+3}], 0 offen sc1')
        for i in range(4): e(f'buffer_load_dwordx4 {vr(sg+4*i,4)}, v{sa}, s[{R_WS}:{R_WS+3}], 0 offen offset:{16*i} sc1')
        e('s_waitcnt vmcnt(0)')
        e(f's_add_u32 s{S_CNT}, s{S_CNT}, 1\ns_cmp_lt_u32 s{S_CNT}, {SPIN_MAX}\ns_cbranch_scc1 {l0}')
        self.label(l1)
        V.free(t, 2)

    def map_bc(self):
        e = self.e
        if self.o.get('mapB', '47') == 'rows':
            e(f's_cmp_ge_u32 s{S_J}, 14\ns_cselect_b32 s{S_T0}, 1, 0\ns_lshl_b32 s{S_RB}, s{S_XCD}, 1\ns_add_u32 s{S_RB}, s{S_RB}, s{S_T0}')
            e(f's_mul_i32 s{S_T0}, s{S_T0}, 14\ns_sub_u32 s{S_FB}, s{S_J}, s{S_T0}')
        else:
            e(f's_mul_i32 s{S_T0}, s{S_J}, 37\ns_lshr_b32 s{S_T0}, s{S_T0}, 8')
            e(f's_lshr_b32 s{S_RB}, s{S_XCD}, 1\ns_lshl_b32 s{S_RB}, s{S_RB}, 2\ns_add_u32 s{S_RB}, s{S_RB}, s{S_T0}')
            e(f's_mul_i32 s{S_T0}, s{S_T0}, 7\ns_sub_u32 s{S_FB}, s{S_J}, s{S_T0}\ns_and_b32 s{S_T0}, s{S_XCD}, 1\ns_mul_i32 s{S_T0}, s{S_T0}, 7\ns_add_u32 s{S_FB}, s{S_FB}, s{S_T0}')
        if self.o.get('rot', True): e(f's_and_b32 s{S_ROT}, s{S_RB}, 3')
        else: e(f's_mov_b32 s{S_ROT}, 0')
        e(f's_mul_i32 s{S_T0}, s{S_J}, 37\ns_lshr_b32 s{S_T0}, s{S_T0}, 8')
        e(f's_lshl_b32 s{S_RB2}, s{S_XCD}, 2\ns_add_u32 s{S_RB2}, s{S_RB2}, s{S_T0}\ns_mul_i32 s{S_T0}, s{S_T0}, 7\ns_sub_u32 s{S_DB}, s{S_J}, s{S_T0}')

    def kgen_setup(self):
        e = self.e; V = self.V
        aLo = V.alloc(1); aHi = V.alloc(1); aC = V.alloc(1); t = V.alloc(1)
        aEx = V.alloc(2); aS = V.alloc(2); aK = V.alloc(2)
        e(f's_lshr_b32 s{S_T0}, s{S_W}, 1\ns_mul_i32 s{S_T0}, s{S_T0}, {TBL_C}\ns_and_b32 s{S_T1}, s{S_W}, 1\ns_lshl_b32 s{S_T1}, s{S_T1}, 9\ns_add_u32 s{S_T0}, s{S_T0}, s{S_T1}')
        e(f'v_lshrrev_b32 v{t}, 4, v1\nv_lshlrev_b32 v{aC}, 4, v{t}\nv_add_u32 v{aC}, s{S_T0}, v{aC}')
        e(f'v_and_b32 v{t}, 3, v1\nv_mul_u32_u24 v{t}, {TBL_E}, v{t}\nv_add_u32 v{aLo}, v{aC}, v{t}')
        e(f'v_bfe_u32 v{t}, v1, 2, 2\nv_mul_u32_u24 v{t}, {TBL_E}, v{t}\nv_add_u32 v{aHi}, v{aC}, v{t}')
        e(f's_lshl_b32 s{S_T0}, s{S_W}, 12\ns_add_u32 s{S_T0}, s{S_T0}, {L_EX}\nv_lshl_add_u32 v{aEx}, v1, 4, s{S_T0}')
        e(f's_xor_b32 s{S_T1}, s{S_W}, 1\ns_lshl_b32 s{S_T0}, s{S_T1}, 12\ns_add_u32 s{S_T0}, s{S_T0}, {L_EX}\nv_lshl_add_u32 v{aEx+1}, v1, 4, s{S_T0}')
        e(f's_lshl_b32 s{S_T0}, s{S_W}, 2\ns_add_u32 s{S_T0}, s{S_T0}, {L_EX + 16384}\nv_mov_b32 v{aS}, s{S_T0}')
        e(f's_lshl_b32 s{S_T0}, s{S_T1}, 2\ns_add_u32 s{S_T0}, s{S_T0}, {L_EX + 16384}\nv_mov_b32 v{aS+1}, s{S_T0}')
        e(f'v_and_b32 v{aK}, 15, v1\nv_lshrrev_b32 v{t}, 3, v{aK}\nv_add_u32 v{aK}, v{aK}, v{t}')
        e(f'v_lshrrev_b32 v{t}, 4, v1\nv_mul_u32_u24 v{t}, 144, v{t}\nv_add_u32 v{aK}, v{aK}, v{t}\nv_lshlrev_b32 v{aK}, 2, v{aK}')
        e(f's_lshr_b32 s{S_T0}, s{S_W}, 1\ns_mul_i32 s{S_T0}, s{S_T0}, {K32_C}\ns_add_u32 s{S_T0}, s{S_T0}, {L_K32}\nv_mov_b32 v{aK+1}, s{S_T0}')
        e(f's_and_b32 s{S_T1}, s{S_W}, 1\ns_mul_i32 s{S_T1}, s{S_T1}, {4*576*2}\ns_add_u32 s{S_T1}, s{S_T1}, s{S_T0}\nv_add_u32 v{aK}, s{S_T1}, v{aK}')
        V.free(t)
        return (aLo, aHi, aC, aEx, aS, aK)

    def kgen_main(self, ka, c48, after_main, after_b2a):
        e = self.e; V = self.V
        self.c('---- kgen main (f16 operands)')
        aLo, aHi, aC, aEx, aS, aK = ka
        TB = [[V.alloc(4, 4) for _ in range(6)] for _ in range(2)]
        tmp = V.alloc(4, 4)
        PV = [[V.alloc(4, 4) for _ in range(2)] for _ in range(2)]
        PW = [V.alloc(4, 4) for _ in range(4)]
        D = [[V.alloc(4, 4) for s in range(2)] for t_ in range(4)]
        ents = ((aLo, 0), (aHi, 4), (aC, 16), (aLo, 8), (aHi, 12), (aC, 17))
        def rd(st, i):
            ad, ent = ents[i]
            self.ds(f'ds_read_b128 {vr(TB[st&1][i],4)}, v{ad} offset:{ent*TBL_E + st*64}', f'tb{st}')
        def cm(d, a, b):
            L = [f'v_pk_mul_f16 v{tmp+c}, v{a+c}, v{b+c} op_sel:[0,0] op_sel_hi:[0,1]' for c in range(4)]
            L += [f'v_pk_fma_f16 v{d+c}, v{a+c}, v{b+c}, v{tmp+c} op_sel:[1,1,0] op_sel_hi:[1,0,1] neg_lo:[0,1,0]' for c in range(4)]
            return L
        for i in range(6): rd(0, i)
        pend = []
        for st in range(8):
            T1, T2, Z16, T3, T4, Z512 = TB[st & 1]; pv = PV[st & 1]
            extra = []
            if st + 1 < 8: extra += [lambda i=i, st=st: rd(st + 1, i) for i in range(6)]
            if self.o.get('xg', True):
                if st in (1, 3, 4, 5) and self.xs: extra += [lambda k=self.xs.pop(0): self.xgather(k)]
                if st == self.o.get('pollstep', 6): extra += self.full_poll()
                wst = self.o.get('wst', [4, 6, 7])
                if st in wst: extra += self.w1_dma(wst.index(st), 'wa')
            else:
                if st == self.o.get('pollstep', 5) and self.o.get('early', True): extra += [lambda: self.light_loads()]
                if not self.o.get('touch_w1', False):
                    if st < self.o.get('w0', 2): extra += self.w1_reads(st)
                    ks = self.o.get('kdma', [0, 1, 2])
                    if st in ks: extra += self.w1_dma(5 + ks.index(st), 'wb')
                else:
                    extra += self.w1_dma(st, 'wa' if st < 5 else 'wb')
            self.wait_lg(f'tb{st}')
            blocks = [cm(pv[0], T1, T2), cm(pv[1], pv[0], Z16), cm(PW[0], T3, T4)]
            for tt in range(1, 4): blocks.append(cm(PW[tt], PW[tt-1], Z512))
            def popm():
                if pend:
                    pend.pop(0)()
                    for _ in range(2):
                        if extra: extra.pop(0)()
            for bi, ins in enumerate(blocks):
                for q, l in enumerate(ins):
                    e(l)
                    if q in (1, 5): popm()
                if bi >= 2:
                    tt = bi - 2
                    for s in range(2):
                        cin = '0' if st == 0 else vr(D[tt][s], 4)
                        pend.append(lambda tt=tt, s=s, cin=cin, pv=pv: e(f'v_mfma_f32_16x16x32_f16 {vr(D[tt][s],4)}, {vr(PW[tt],4)}, {vr(pv[s],4)}, {cin}'))
            while len(pend) > 2: popm()
            for x in extra: x()
        while pend: pend.pop(0)()
        self.stamp(13)
        after_main()
        us = V.alloc(2, 2)
        e(f'v_mov_b32 v{us}, s{S_US}')
        R4 = TB[0][:4]; Va = tmp
        def exch(half):
            snd = [(t_, s) for t_ in (2 - 2*half, 3 - 2*half) for s in range(2)]
            kp = [(t_, s) for t_ in (2*half, 2*half + 1) for s in range(2)]
            for i, (t_, s) in enumerate(snd):
                for r in (0, 2): e(f'v_pk_mul_f32 {vr(D[t_][s]+r,2)}, {vr(D[t_][s]+r,2)}, {vr(us,2)} op_sel_hi:[1,0]')
                self.ds(f'ds_write_b128 v{aEx}, {vr(D[t_][s],4)} offset:{1024*i}', 'exw')
            e(f's_mov_b64 s[{S_M1}:{S_M1+1}], exec\ns_mov_b64 exec, 1')
            self.ds(f'ds_write_b32 v{aS}, v{c48}', 'exw')
            e(f's_mov_b64 exec, s[{S_M1}:{S_M1+1}]')
            self.wait_all_lg()
            e('s_barrier')
            for i in range(4): self.ds(f'ds_read_b128 {vr(R4[i],4)}, v{aEx+1} offset:{1024*i}', f'ex{i}')
            self.ds(f'ds_read_b32 v{Va}, v{aS+1}', 'exc')
            for i, (t_, s) in enumerate(kp):
                self.wait_lg(f'ex{i}')
                for r in (0, 2): e(f'v_pk_fma_f32 {vr(D[t_][s]+r,2)}, {vr(D[t_][s]+r,2)}, {vr(us,2)}, {vr(R4[i]+r,2)} op_sel_hi:[1,0,1]')
                for r in range(4):
                    self.ds(f'ds_write_b32 v{aK}, v{D[t_][s]+r} offset:{4*(576*(i >> 1) + 36*r + 18*s)}')
            self.wait_lg('exc')
            e(f'v_add_f32 v{c48}, v{c48}, v{Va}\nv_mov_b32 v{c48+1}, 0')
            e(f's_mov_b64 s[{S_M1}:{S_M1+1}], exec\ns_mov_b64 exec, 1')
            self.ds(f'ds_write_b32 v{aK+1}, v{c48} offset:9216')
            self.ds(f'ds_write_b32 v{aK+1}, v{c48+1} offset:9280')
            e(f's_mov_b64 exec, s[{S_M1}:{S_M1+1}]')
        self.two_paths(exch)
        after_b2a()
        V.free(us, 2)
        for row in TB + PV:
            for x in row: V.free(x, 4)
        for x in PW: V.free(x, 4)
        V.free(tmp, 4)
        for row in D:
            for x in row: V.free(x, 4)
        for x in (aLo, aHi, aC): V.free(x)
        V.free(aEx, 2); V.free(aS, 2); V.free(aK, 2)

    def expand_gather(self):
        e = self.e; V = self.V; ga = self.ga
        self.c('---- expand K into 4 shifted bf16 copies')
        z = V.alloc(4, 4); t = V.alloc(1); t2 = V.alloc(1)
        g = V.alloc(22, 2)
        for i in range(4): e(f'v_mov_b32 v{z+i}, 0')
        e(f'v_lshrrev_b32 v{t}, 2, v0\nv_mul_u32_u24 v{t}, {KC_S}, v{t}\nv_and_b32 v{t2}, 3, v0\nv_lshl_add_u32 v{t}, v{t2}, 4, v{t}')
        e(f'v_cmp_gt_u32 vcc, 32, v0\ns_and_saveexec_b64 s[{S_M1}:{S_M1+1}], vcc')
        la = self.lab('zc'); e(f's_cbranch_execz {la}')
        e(f'ds_write_b128 v{t}, {vr(z,4)} offset:{L_KC + 4096}')
        self.label(la); e(f's_mov_b64 exec, s[{S_M1}:{S_M1+1}]')
        e(f'v_lshrrev_b32 v{t}, 6, v0\nv_mul_u32_u24 v{t}, {U_C}, v{t}\nv_lshl_add_u32 v{t}, v1, 4, v{t}')
        e(f'v_cmp_gt_u32 vcc, 128, v0\ns_and_saveexec_b64 s[{S_M1}:{S_M1+1}], vcc')
        la = self.lab('zu'); e(f's_cbranch_execz {la}')
        e(f'ds_write_b128 v{t}, {vr(z,4)} offset:{L_U}')
        self.label(la); e(f's_mov_b64 exec, s[{S_M1}:{S_M1+1}]')
        for k in range(11): self.ds(f'ds_read_b32 v{g+k}, v{ga+k} offset:0', 'g0')
        for k in range(11): self.ds(f'ds_read_b32 v{g+11+k}, v{ga+k} offset:{K32_C}', 'g1')
        V.free(t); V.free(t2); V.free(z, 4)
        return g
    def expand_write(self, g):
        e = self.e; V = self.V; ga = self.ga
        P = V.alloc(32, 4); wa = V.alloc(1)
        e(f'v_lshlrev_b32 v{wa}, 4, v0')
        for c in range(2):
            self.wait_lg(f'g{c}')
            v = lambda k: g + 11 * c + (k - 1)
            for sc_ in range(4):
                s = 4 - sc_
                for dd in range(4):
                    e(f'v_cvt_pk_bf16_f32 v{P+16*c+4*sc_+dd}, v{v(s+2*dd)}, v{v(s+2*dd+1)}')
                self.ds(f'ds_write_b128 v{wa}, {vr(P+16*c+4*sc_,4)} offset:{L_KC + c*KC_C + sc_*KC_S}')
        V.free(g, 22); V.free(P, 32); V.free(wa); V.free(ga, 12)

    def normalize(self, XP, sg):
        e = self.e; V = self.V
        self.c('---- LN1 normalize own columns')
        xa = V.alloc(16, 2)
        ms = V.alloc(16, 2)
        for k in range(8):
            e(f'v_lshlrev_b32 v{ms+k}, 16, v{sg+2*k}\nv_and_b32 v{ms+8+k}, 0xffff0000, v{sg+2*k}')
        for k in range(8): e(f'v_rcp_f32 v{ms+8+k}, v{ms+8+k}')
        wa = V.alloc(1); t = V.alloc(1)
        e(f'v_bfe_u32 v{t}, v0, 4, 1\nv_lshlrev_b32 v{t}, 1, v{t}\nv_xor_b32 v{wa}, v0, v{t}\nv_lshlrev_b32 v{wa}, 4, v{wa}')
        for c in range(2): self.ds(f'ds_write_b128 v{wa}, {vr(XP+4*c,4)} offset:{L_X + c*X_C}')
        for c in range(2):
            for d in range(4):
                e(f'v_lshlrev_b32 v{xa+8*c+2*d}, 16, v{XP+4*c+d}\nv_and_b32 v{xa+8*c+2*d+1}, 0xffff0000, v{XP+4*c+d}')
        UP = V.alloc(8, 4)
        for c in range(2):
            for d in range(4):
                x = xa + 8*c + 2*d
                e(f'v_pk_add_f32 {vr(x,2)}, {vr(x,2)}, {vr(ms+2*d,2)} neg_lo:[0,1] neg_hi:[0,1]')
            for d in range(4):
                x = xa + 8*c + 2*d
                e(f'v_cvt_pk_bf16_f32 v{x+1}, v{x}, v{x+1}')
            for d in range(4):
                x = xa + 8*c + 2*d
                e(f'v_lshlrev_b32 v{x}, 16, v{x+1}\nv_and_b32 v{x+1}, 0xffff0000, v{x+1}')
            for d in range(4):
                x = xa + 8*c + 2*d
                e(f'v_pk_mul_f32 {vr(x,2)}, {vr(x,2)}, {vr(ms+8+2*d,2)}')
            for d in range(4):
                x = xa + 8*c + 2*d
                e(f'v_cvt_pk_bf16_f32 v{UP+4*c+d}, v{x}, v{x+1}')
            self.ds(f'ds_write_b128 v{wa}, {vr(UP+4*c,4)} offset:{L_U + c*U_C + 1024}')
        V.free(ms, 16); V.free(xa, 16); V.free(UP, 8); V.free(wa); V.free(t)

    def conv_setup(self):
        e = self.e; V = self.V
        vF = V.alloc(1); vG = V.alloc(8); t = V.alloc(1); t2 = V.alloc(1)
        e(f's_lshr_b32 s{S_T0}, s{S_W}, 1\ns_mul_i32 s{S_T0}, s{S_T0}, {KC_C}\ns_and_b32 s{S_T1}, s{S_W}, 1\ns_lshl_b32 s{S_T2}, s{S_T1}, 9\ns_sub_u32 s{S_T0}, s{S_T0}, s{S_T2}\ns_add_u32 s{S_T0}, s{S_T0}, {L_KC + 24 + 512}')
        e(f'v_and_b32 v{t}, 3, v1\nv_mul_u32_u24 v{vF}, {KC_S}, v{t}')
        e(f'v_bfe_u32 v{t}, v1, 2, 2\nv_lshlrev_b32 v{t}, 3, v{t}\nv_sub_u32 v{vF}, v{vF}, v{t}')
        e(f'v_lshrrev_b32 v{t}, 4, v1\nv_lshl_add_u32 v{vF}, v{t}, 4, v{vF}\nv_add_u32 v{vF}, s{S_T0}, v{vF}')
        e(f's_lshr_b32 s{S_T0}, s{S_W}, 1\ns_mul_i32 s{S_T0}, s{S_T0}, {U_C}\ns_add_u32 s{S_T0}, s{S_T0}, {L_U}')
        e(f's_lshl_b32 s{S_T1}, s{S_T1}, 3')
        kg = V.alloc(1); col = V.alloc(1)
        e(f'v_lshrrev_b32 v{kg}, 4, v1\nv_and_b32 v{col}, 15, v1\nv_subrev_u32 v{col}, s{S_T1}, v{col}')
        for pp in range(8):
            e(f'v_add_u32 v{t}, {16 - pp}, v{col}')
            e(f'v_bfe_u32 v{t2}, v{t}, 2, 1\nv_lshlrev_b32 v{t2}, 1, v{t2}\nv_xor_b32 v{t2}, v{t2}, v{kg}')
            e(f'v_lshlrev_b32 v{t}, 6, v{t}\nv_lshl_add_u32 v{t}, v{t2}, 4, v{t}\nv_add_u32 v{vG+pp}, s{S_T0}, v{t}')
        V.free(kg); V.free(col)
        ua = V.alloc(1); xa_ = V.alloc(1); ra = V.alloc(2); sa = V.alloc(1)
        e(f'v_bfe_u32 v{t}, v1, 2, 1\nv_lshlrev_b32 v{t}, 1, v{t}\nv_lshrrev_b32 v{t2}, 4, v1\nv_xor_b32 v{t}, v{t}, v{t2}')
        e(f'v_and_b32 v{t2}, 15, v1\nv_lshlrev_b32 v{t2}, 6, v{t2}\nv_lshl_add_u32 v{ua}, v{t}, 4, v{t2}')
        e(f's_and_b32 s{S_T1}, s{S_W}, 1\ns_lshl_b32 s{S_T1}, s{S_T1}, 11')
        e(f's_lshr_b32 s{S_T0}, s{S_W}, 1\ns_mul_i32 s{S_T2}, s{S_T0}, {U_C}\ns_add_u32 s{S_T2}, s{S_T2}, s{S_T1}')
        e(f's_mul_i32 s{S_T3}, s{S_T0}, {X_C}\ns_add_u32 s{S_T3}, s{S_T3}, s{S_T1}')
        e(f'v_add_u32 v{xa_}, s{S_T3}, v{ua}\nv_add_u32 v{ua}, s{S_T2}, v{ua}')
        e(f'v_lshrrev_b32 v{t}, 4, v1\nv_lshl_add_u32 v{sa}, v{t}, 4, v{t2}')
        e(f's_lshl_b32 s{S_T2}, s{S_CP}, 1\ns_add_u32 s{S_T2}, s{S_T2}, s{S_T0}\ns_mul_i32 s{S_T2}, s{S_T2}, {HT_STRIDE}\ns_add_u32 s{S_T2}, s{S_T2}, s{S_T1}\ns_add_u32 s{S_T2}, s{S_T2}, {WS_HT}')
        e(f'v_add_u32 v{sa}, s{S_T2}, v{sa}')
        e(f's_lshl_b32 s{S_T0}, s{S_W}, 12\ns_add_u32 s{S_T0}, s{S_T0}, {L_RED}\nv_lshl_add_u32 v{ra}, v1, 4, s{S_T0}')
        e(f's_xor_b32 s{S_T0}, s{S_W}, 1\ns_lshl_b32 s{S_T0}, s{S_T0}, 12\ns_add_u32 s{S_T0}, s{S_T0}, {L_RED}\nv_lshl_add_u32 v{ra+1}, v1, 4, s{S_T0}')
        V.free(t); V.free(t2)
        return (vF, vG, ua, xa_, ra, sa)

    def conv(self, cv, fill):
        e = self.e; V = self.V
        vF, vG, ua, xa_, ra, sa = cv
        self.c('---- Toeplitz convolution')
        G = [V.alloc(16, 4) for _ in range(2)]
        F = V.alloc(32, 4)
        acc = V.alloc(32, 4)
        A = lambda b, m: acc + 8 * b + 4 * m
        def rdG(pp):
            for s in range(4): self.ds(f'ds_read_b128 {vr(G[pp&1]+4*s,4)}, v{vG+pp} offset:{1024*s}', f'G{pp}')
        def rdF(pp, q):
            for m in range(2):
                off = 32 * (111 - 32*q - 2*pp - m)
                self.ds(f'ds_read_b64 {vr(F+8*q+4*m,2)}, v{vF} offset:{off}', f'F{pp}_{q}')
                self.ds(f'ds_read_b64 {vr(F+8*q+4*m+2,2)}, v{vF} offset:{off+8}', f'F{pp}_{q}')
        rdG(0)
        for q in range(4): rdF(0, q)
        def rdG1(pp, s): self.ds(f'ds_read_b128 {vr(G[pp&1]+4*s,4)}, v{vG+pp} offset:{1024*s}', f'G{pp}')
        def rdF1(pp, q, m, h_):
            off = 32 * (111 - 32*q - 2*pp - m) + 8 * h_
            self.ds(f'ds_read_b64 {vr(F+8*q+4*m+2*h_,2)}, v{vF} offset:{off}', f'F{pp}_{q}')
        mains = []
        pend = []
        for pp in range(8):
            for q in range(4):
                first = True
                for m in range(2):
                    for s in range(4 - q):
                        b = q + s
                        cin = '0' if (pp == 0 and q == 0) else vr(A(b, m), 4)
                        pre = []
                        if first:
                            if q == 0: pre.append(lambda pp=pp: (self.wait_lg(f'G{pp}'), self.wait_lg(f'F{pp}_0')))
                            else: pre.append(lambda pp=pp, q=q: self.wait_lg(f'F{pp}_{q}'))
                            first = False
                        mf = lambda b=b, m=m, q=q, s=s, pp=pp, cin=cin: e(f'v_mfma_f32_16x16x32_bf16 {vr(A(b,m),4)}, {vr(F+8*q+4*m,4)}, {vr(G[pp&1]+4*s,4)}, {cin}')
                        post = [pend.pop(0)] if pend else []
                        mains.append((pre, mf, 16, post))
                    if pp + 1 < 8:
                        pend += [lambda pp=pp, q=q, m=m, h_=h_: rdF1(pp + 1, q, m, h_) for h_ in range(2)]
                if q == 0 and pp + 1 < 8:
                    pend += [lambda pp=pp, s=s: rdG1(pp + 1, s) for s in range(4)]
        assert not pend
        self.sched(mains, None, segs=[(0, 90, fill)])
        for x in G: V.free(x, 16)
        V.free(F, 32); V.free(vG, 8)
        self.stamp(10)
        UU = V.alloc(8, 4); XX = V.alloc(8, 4); t1f = V.alloc(16, 2); xf = V.alloc(16, 2); rr = V.alloc(16, 4)
        Y = V.alloc(8, 4); w8 = V.alloc(16, 2); dk = V.alloc(2, 2)
        for bb in range(2):
            self.ds(f'ds_read_b128 {vr(UU+4*bb,4)}, v{ua} offset:{L_U + 1024 + 1024*bb}', 'ux')
            self.ds(f'ds_read_b128 {vr(XX+4*bb,4)}, v{xa_} offset:{L_X + 1024*bb}', 'ux')
        e(f'v_mov_b32 v{dk}, s{S_DK}')
        def epi(half):
            snd = acc + 16 * (1 - half); keep = acc + 16 * half
            for i in range(4): self.ds(f'ds_write_b128 v{ra}, {vr(snd+4*i,4)} offset:{1024*i}', 'rw')
            self.wait_lg('ux')
            for q in range(8): e(f'v_lshlrev_b32 v{t1f+2*q}, 16, v{UU+q}\nv_and_b32 v{t1f+2*q+1}, 0xffff0000, v{UU+q}')
            for q in range(8): e(f'v_pk_mul_f32 {vr(t1f+2*q,2)}, {vr(t1f+2*q,2)}, {vr(dk,2)} op_sel_hi:[1,0]')
            for q in range(8): e(f'v_cvt_pk_bf16_f32 v{UU+q}, v{t1f+2*q}, v{t1f+2*q+1}')
            for q in range(8): e(f'v_lshlrev_b32 v{xf+2*q}, 16, v{XX+q}\nv_and_b32 v{xf+2*q+1}, 0xffff0000, v{XX+q}')
            for q in range(8): e(f'v_lshlrev_b32 v{t1f+2*q}, 16, v{UU+q}\nv_and_b32 v{t1f+2*q+1}, 0xffff0000, v{UU+q}')
            self.wait_vm('wc')
            self.wait_all_lg()
            e('s_barrier')
            for i in range(4): self.ds(f'ds_read_b128 {vr(rr+4*i,4)}, v{ra+1} offset:{1024*i}', 'red')
            self.wait_lg('red')
            for i in range(0, 16, 2): e(f'v_pk_add_f32 {vr(keep+i,2)}, {vr(keep+i,2)}, {vr(rr+i,2)}')
            for bb in range(2):
                k0 = keep + 8 * bb; y = Y + 4 * bb
                e(f'v_cvt_pk_bf16_f32 v{y}, v{k0}, v{k0+1}\nv_cvt_pk_bf16_f32 v{y+1}, v{k0+2}, v{k0+3}')
                e(f'v_cvt_pk_bf16_f32 v{y+2}, v{k0+4}, v{k0+5}\nv_cvt_pk_bf16_f32 v{y+3}, v{k0+6}, v{k0+7}')
            for bb in range(2):
                y = Y + 4 * bb
                e(f'v_permlane32_swap_b32 v{y}, v{y+2}\nv_permlane32_swap_b32 v{y+1}, v{y+3}')
            for bb in range(2):
                y = Y + 4 * bb
                e(f'v_permlane16_swap_b32 v{y}, v{y+2}\nv_permlane16_swap_b32 v{y+1}, v{y+3}')
            for q in range(8): e(f'v_lshlrev_b32 v{w8+2*q}, 16, v{Y+q}\nv_and_b32 v{w8+2*q+1}, 0xffff0000, v{Y+q}')
            for q in range(8): e(f'v_pk_add_f32 {vr(w8+2*q,2)}, {vr(w8+2*q,2)}, {vr(t1f+2*q,2)}')
            for q in range(8): e(f'v_cvt_pk_bf16_f32 v{Y+q}, v{w8+2*q}, v{w8+2*q+1}')
            for q in range(8): e(f'v_lshlrev_b32 v{w8+2*q}, 16, v{Y+q}\nv_and_b32 v{w8+2*q+1}, 0xffff0000, v{Y+q}')
            for q in range(8): e(f'v_pk_add_f32 {vr(w8+2*q,2)}, {vr(w8+2*q,2)}, {vr(xf+2*q,2)}')
            for bb in range(2):
                for d in range(4): e(f'v_cvt_pk_bf16_f32 v{Y+4*bb+d}, v{w8+8*bb+2*d}, v{w8+8*bb+2*d+1}')
                self.vmem(f'buffer_store_dwordx4 {vr(Y+4*bb,4)}, v{sa}, s[{R_WS}:{R_WS+3}], 0 offen offset:{1024*bb} sc1', 'ht')
        self.two_paths(epi)
        if self.o.get('xg', True):
            self.w1_read(5, 10)
            self.w1_issue(10, 14, 'we')
        else:
            self.w1_read(5, 14)
            self.w1_issue(14, 15, 'we')
        for x, n in ((UU,8),(XX,8),(t1f,16),(xf,16),(rr,16),(Y,8),(w8,16),(dk,2),(sa,1),(ua,1),(xa_,1),(ra,2),(acc,32),(vF,1)): V.free(x, n)

    def interleave(self, main, fill, per_gap):
        n = len(main); fi = 0
        for i, m in enumerate(main):
            m()
            tgt = (len(fill) * (i + 1) + n - 1) // n if per_gap is None else min(len(fill), fi + per_gap)
            while fi < tgt:
                fill[fi](); fi += 1
        while fi < len(fill):
            fill[fi](); fi += 1

    def sched(self, mains, fillers, tail_free=0, segs=None):
        def cost(x): return x[1] if isinstance(x, tuple) else 1
        def run(x): (x[0] if isinstance(x, tuple) else x)()
        n = len(mains)
        bud = []
        for i, (pre, m, dur, post) in enumerate(mains):
            b = (dur - 8) / 4 - sum(cost(x) for x in post)
            if i + 1 < n: b -= sum(cost(x) for x in mains[i+1][0])
            bud.append(b)
        if segs is None: segs = [(0, n - tail_free, fillers)]
        plan = [[] for _ in range(n)]
        for (a, b_, fl) in segs:
            free = sum(max(0, x) for x in bud[a:b_]); need = sum(cost(x) for x in fl)
            over = max(0.0, (need - free) / max(1, b_ - a)); frac = min(1.0, need / free) if free > 0 else 1.0
            fi = 0; credit = 0.0
            for i in range(a, b_):
                credit += max(0, bud[i]) * frac + over
                while fi < len(fl) and cost(fl[fi]) <= credit + 1e-9:
                    credit -= cost(fl[fi]); plan[i].append(fl[fi]); fi += 1
            plan[b_ - 1] += fl[fi:]
            for i in range(a, b_): bud[i] = 0
        for i, (pre, m, dur, post) in enumerate(mains):
            for x in pre: run(x)
            m()
            for x in post: run(x)
            for x in plan[i]: run(x)

    def poll_flags(self, base, nflags_expr_lanes, nloads, sbase=None, last_lanes=None, sleep=0):
        e = self.e; V = self.V
        skip = self.lab('pf'); l0 = self.lab('pl'); l1 = self.lab('pd')
        e(f's_cmp_lg_u32 s{S_W}, 0\ns_cbranch_scc1 {skip}')
        a = V.alloc(1); d = V.alloc(4, 2)
        e(f'v_mul_u32_u24 v{a}, {FLAG_STRIDE}, v1\nv_add_u32 v{a}, {base}, v{a}')
        if sbase is not None: e(f'v_add_u32 v{a}, s{sbase}, v{a}')
        e(f's_mov_b64 s[{S_M1}:{S_M1+1}], exec')
        if nflags_expr_lanes < 64: e(f's_mov_b64 exec, {hex((1 << nflags_expr_lanes) - 1)}')
        e(f's_mov_b32 s{S_CNT}, 0')
        self.label(l0)
        for k in range(nloads):
            e(f'buffer_load_dword v{d+k}, v{a}, s[{R_WS}:{R_WS+3}], 0 offen offset:{64*FLAG_STRIDE*k} sc1')
        e('s_waitcnt vmcnt(0)')
        e(f'v_cmp_ne_u32 vcc, s{S_NONCE}, v{d}')
        for k in range(1, nloads):
            e(f'v_cmp_ne_u32 s[{S_M2}:{S_M2+1}], s{S_NONCE}, v{d+k}')
            if last_lanes and k == nloads - 1:
                assert last_lanes == 32
                e(f's_and_b32 s{S_M2+1}, s{S_M2+1}, 0')
            e(f's_or_b64 vcc, vcc, s[{S_M2}:{S_M2+1}]')
        e(f's_cbranch_vccz {l1}')
        if sleep: e(f's_sleep {sleep}')
        e(f's_add_u32 s{S_CNT}, s{S_CNT}, 1\ns_cmp_lt_u32 s{S_CNT}, {SPIN_MAX}\ns_cbranch_scc1 {l0}')
        self.label(l1)
        e(f's_mov_b64 exec, s[{S_M1}:{S_M1+1}]')
        V.free(a); V.free(d, 4)
        self.label(skip)
        e('s_barrier')

    WDREG = ['A']*9 + ['B']*3 + ['C']*3 + ['A']*9 + ['B']*3 + ['C']
    WDIDX = list(range(9)) + [0,1,2] + [0,1,2] + list(range(9)) + [0,1,2] + [0]
    def wd_setup(self):
        e = self.e; V = self.V
        self.vWD = V.alloc(2); self.vWT = V.alloc(6)
        t = V.alloc(1); t2 = V.alloc(1); vD = self.vWD; vT = self.vWT
        e(f'v_lshrrev_b32 v{t}, 3, v1\nv_mul_u32_u24 v{vD}, 896, v{t}\nv_bfe_u32 v{t}, v1, 4, 1\nv_lshlrev_b32 v{t}, 2, v{t}\nv_and_b32 v{t2}, 7, v1\nv_xor_b32 v{t}, v{t}, v{t2}\nv_lshl_add_u32 v{vD}, v{t}, 4, v{vD}')
        e(f's_lshl_b32 s{S_T0}, s{S_DB}, 7\ns_mul_i32 s{S_T1}, s{S_W}, {448*896}\ns_add_u32 s{S_T0}, s{S_T0}, s{S_T1}\nv_add_u32 v{vD}, s{S_T0}, v{vD}\nv_add_u32 v{vD+1}, 7168, v{vD}')
        e(f'v_lshrrev_b32 v{t}, 5, v1\nv_lshlrev_b32 v{vT}, 9, v{t}\nv_bfe_u32 v{t}, v1, 2, 2\nv_lshl_add_u32 v{vT}, v{t}, 7, v{vT}')
        e(f'v_bfe_u32 v{t}, v1, 4, 1\nv_lshl_add_u32 v{vT}, v{t}, 5, v{vT}\nv_and_b32 v{t}, 3, v1\nv_lshl_add_u32 v{vT}, v{t}, 3, v{vT}')
        e(f'v_bfe_u32 v{t}, v1, 3, 1\nv_lshlrev_b32 v{t}, 6, v{t}')
        e(f'v_xor_b32 v{t2}, 64, v{t}\nv_add_u32 v{vT+1}, v{vT}, v{t2}\nv_add_u32 v{vT}, v{vT}, v{t}')
        e(f's_mul_i32 s{S_WA}, s{S_W}, 18432\ns_add_u32 s{S_WA}, s{S_WA}, 87040')
        e(f's_mul_i32 s{S_WB}, s{S_W}, 7168\ns_add_u32 s{S_WC}, s{S_WB}, 57344\ns_add_u32 s{S_WB}, s{S_WB}, 28672')
        e(f'v_add_u32 v{vT+2}, s{S_WB}, v{vT}\nv_add_u32 v{vT+3}, s{S_WB}, v{vT+1}\nv_add_u32 v{vT+4}, s{S_WC}, v{vT}\nv_add_u32 v{vT+5}, s{S_WC}, v{vT+1}')
        e(f'v_add_u32 v{vT}, s{S_WA}, v{vT}\nv_add_u32 v{vT+1}, s{S_WA}, v{vT+1}')
        e(f's_add_u32 s{S_T1}, s{S_DB}, s{S_RB2}' if self.o.get('rot2', True) else f's_mov_b32 s{S_T1}, 0')
        for q in range(4):
            e(f's_add_u32 s{S_T0}, s{S_T1}, {q}\ns_and_b32 s{S_T0}, s{S_T0}, 3\ns_mul_i32 s{S_RW0+q}, s{S_T0}, {7*16*896}\ns_mul_i32 s{S_RA0+q}, s{S_T0}, {7*1024}')
        V.free(t); V.free(t2)
    def wd_dma(self, k, tag):
        e = self.e; sb = {'A': S_WA, 'B': S_WB, 'C': S_WC}[self.WDREG[k]]; sl = self.WDIDX[k] * 2048
        return [lambda: e(f's_add_u32 s{S_WO}, s{S_RW0 + k//7}, {(k%7)*16*896}'),
                lambda: e(f's_add_u32 m0, s{sb}, {sl}'),
                lambda: self.vmem(f'buffer_load_dwordx4 v{self.vWD}, s[{R_WD}:{R_WD+3}], s{S_WO} offen lds', tag),
                lambda: e(f's_add_u32 m0, s{sb}, {sl + 1024}'),
                lambda: self.vmem(f'buffer_load_dwordx4 v{self.vWD+1}, s[{R_WD}:{R_WD+3}], s{S_WO} offen lds', tag)]
    def wd_reads(self, k):
        a = self.vWT + {'A': 0, 'B': 2, 'C': 4}[self.WDREG[k]]; sl = self.WDIDX[k] * 2048
        return [lambda mt=mt, hh=hh: self.ds(f'ds_read_b64_tr_b16 {ar(8*k+4*mt+2*hh,2)}, v{a+mt} offset:{sl + 1024*hh}', f'wdr{k}') for mt in range(2) for hh in range(2)]

    def phaseB_setup(self):
        e = self.e; V = self.V; o = self.o
        L_H = 0; HG = 28672; L_STP = 3 * HG
        HS = lambda g_: (g_ % 3) * HG
        S_HB, S_MB = S_T5, S_HID
        vD = V.alloc(1); vB = V.alloc(1); vS = V.alloc(1); t = V.alloc(1); t2 = V.alloc(1)
        e(f'v_lshrrev_b32 v{t}, 2, v1\nv_mul_u32_u24 v{vD}, {HT_STRIDE}, v{t}\nv_bfe_u32 v{t2}, v1, 4, 1\nv_lshlrev_b32 v{t2}, 1, v{t2}\nv_and_b32 v{t}, 3, v1\nv_xor_b32 v{t}, v{t}, v{t2}\nv_lshl_add_u32 v{vD}, v{t}, 4, v{vD}')
        e(f's_lshl_b32 s{S_T0}, s{S_RB}, 8\ns_add_u32 s{S_T0}, s{S_T0}, {WS_HT}\nv_add_u32 v{vD}, s{S_T0}, v{vD}')
        e(f's_mul_i32 s{S_HB}, s{S_W}, {16*HT_STRIDE}\ns_lshl_b32 s{S_MB}, s{S_W}, 10')
        e(f'v_lshrrev_b32 v{t}, 5, v1\nv_lshlrev_b32 v{vB}, 8, v{t}\nv_bfe_u32 v{t2}, v1, 4, 1\nv_xor_b32 v{t2}, v{t2}, v{t}\nv_lshl_add_u32 v{vB}, v{t2}, 5, v{vB}')
        e(f'v_bfe_u32 v{t}, v1, 2, 2\nv_lshl_add_u32 v{vB}, v{t}, 6, v{vB}\nv_and_b32 v{t}, 3, v1\nv_lshl_add_u32 v{vB}, v{t}, 3, v{vB}')
        e(f'v_lshrrev_b32 v{t}, 4, v1\nv_lshlrev_b32 v{vS}, 8, v{t}\nv_and_b32 v{t}, 1, v{t}\ns_and_b32 s{S_T0}, s{S_W}, 1\nv_xor_b32 v{t}, s{S_T0}, v{t}\nv_lshl_add_u32 v{vS}, v{t}, 5, v{vS}')
        e(f'v_bfe_u32 v{t}, v1, 2, 2\nv_lshl_add_u32 v{vS}, v{t}, 6, v{vS}\nv_and_b32 v{t}, 3, v1\nv_lshl_add_u32 v{vS}, v{t}, 3, v{vS}')
        e(f's_lshr_b32 s{S_T0}, s{S_W}, 1\ns_mul_i32 s{S_T0}, s{S_T0}, {7*2048}\nv_add_u32 v{vS}, s{S_T0}, v{vS}')
        vA = V.alloc(1)
        e(f's_mul_i32 s{S_T0}, s{S_RB}, {4*112}\ns_lshl_b32 s{S_T1}, s{S_FB}, 3\ns_add_u32 s{S_T0}, s{S_T0}, s{S_T1}\ns_lshl_b32 s{S_T1}, s{S_W}, 1\ns_add_u32 s{S_T0}, s{S_T0}, s{S_T1}')
        e(f's_lshl_b32 s{S_T0}, s{S_T0}, 10\ns_add_u32 s{S_T0}, s{S_T0}, {WS_ACT}\nv_lshl_add_u32 v{vA}, v1, 4, s{S_T0}')
        vG2 = V.alloc(1); sg2 = V.alloc(6, 2)
        e(f'v_and_b32 v{t}, 31, v1\nv_lshlrev_b32 v{vG2}, 3, v{t}\ns_lshl_b32 s{S_T0}, s{S_RB}, 10\ns_add_u32 s{S_T0}, s{S_T0}, {WS_STATS2}\nv_add_u32 v{vG2}, s{S_T0}, v{vG2}')
        NB = 6
        cs = self.cs; ones = self.ones
        B = V.alloc(4 * NB, 4); SB = V.alloc(8, 4); SG = V.alloc(8, 4)
        acc = [V.alloc(32, 4), V.alloc(32, 4)]
        st = V.alloc(6, 2); par = V.alloc(3); tmp = V.alloc(8, 4); pk = V.alloc(8, 4)
        vP = V.alloc(1); vPw = V.alloc(1)
        e(f'v_bfe_u32 v{t}, v1, 4, 1\nv_lshlrev_b32 v{vP}, 7, v{t}\nv_and_b32 v{t}, 15, v1\nv_lshl_add_u32 v{vP}, v{t}, 3, v{vP}\nv_add_u32 v{vP}, {L_STP}, v{vP}')
        e(f's_lshl_b32 s{S_T0}, s{S_W}, 7\ns_add_u32 s{S_T0}, s{S_T0}, {L_STP}\nv_lshl_add_u32 v{vPw}, v{t}, 3, s{S_T0}')
        K1, K2, K3, KD = 6, 8, 10, 12
        e(f's_mov_b32 s{K1}, 0x22222222\ns_mov_b32 s{K1+1}, 0x22222222\ns_mov_b32 s{K2}, 0x44444444\ns_mov_b32 s{K2+1}, 0x44444444')
        e(f's_mov_b32 s{K3}, 0x88888888\ns_mov_b32 s{K3+1}, 0x88888888\ns_mov_b32 s{KD}, 0x00f0000f\ns_mov_b32 s{KD+1}, 0xf0000f00')
        vBq = V.alloc(4); vS2 = V.alloc(1)
        e(f'v_add_u32 v{vS2}, 57344, v{vS}')
        for q in range(4):
            e(f's_add_u32 s{S_T0}, s{S_ROT}, {q}\ns_and_b32 s{S_T0}, s{S_T0}, 3\ns_mul_i32 s{S_T0}, s{S_T0}, {7*1024}\nv_add_u32 v{vBq+q}, s{S_T0}, v{vB}')
        S_KI = [0, 1, 3, 4, 5, 22, 23]
        for i in range(7):
            e(f's_add_u32 s{S_T0}, s{S_W}, {4*i}\ns_mul_i32 s{S_T1}, s{S_T0}, 37\ns_lshr_b32 s{S_T1}, s{S_T1}, 8')
            e(f's_mul_i32 s{S_T2}, s{S_T1}, 7\ns_sub_u32 s{S_T0}, s{S_T0}, s{S_T2}\ns_add_u32 s{S_T1}, s{S_T1}, s{S_ROT}\ns_and_b32 s{S_T1}, s{S_T1}, 3')
            e(f's_mul_i32 s{S_T1}, s{S_T1}, 7\ns_add_u32 s{S_KI[i]}, s{S_T1}, s{S_T0}')
        self.wd_setup()
        self.pb = dict(locals())

    def phaseB(self):
        e = self.e; V = self.V; o = self.o
        self.c('================= phase B')
        pb = self.pb
        L_H, HG, L_STP, HS, S_HB, S_MB = pb['L_H'], pb['HG'], pb['L_STP'], pb['HS'], pb['S_HB'], pb['S_MB']
        vD, vB, vS, t, t2, vA, vG2, sg2, NB, cs, ones, B, SB, SG = [pb[k] for k in 'vD vB vS t t2 vA vG2 sg2 NB cs ones B SB SG'.split()]
        acc, st, par, tmp, pk, vP, vPw, K1, K2, K3, KD, vBq, vS2 = [pb[k] for k in 'acc st par tmp pk vP vPw K1 K2 K3 KD vBq vS2'.split()]
        self.stamp(14)
        self.wait_vm('we'); e('s_barrier')
        self.stamp(15)
        self.w1_read(self.K0, 28)
        self.wait_all_lg()
        self.stamp(25)
        V.free(self.vTS, 5); V.free(self.vW1)
        self.poll_flags(WS_FLAG2 + 32*FLAG_STRIDE, 64, 4, last_lanes=32, sleep=self.o.get('wsleep', 2))
        self.vm.drain(); self.lg.drain()
        self.stamp(16)
        def hdma(g, i, tag=None):
            return [lambda: e(f's_add_u32 m0, s{S_MB}, {L_H + HS(g) + i*4096}'),
                    lambda: e(f's_add_u32 s{S_T1}, s{S_HB}, {i*4*16*HT_STRIDE + 64*g}'),
                    lambda: self.vmem(f'buffer_load_dwordx4 v{vD}, s[{R_WS}:{R_WS+3}], s{S_T1} offen {o.get("hflags", "sc1")} lds', tag or f'h{g}')]
        S_KI = pb['S_KI']; PROG = o.get('prog', True)
        for i in range(7):
            e(f's_lshl_b32 m0, s{S_KI[i]}, 10\ns_mul_i32 s{S_T1}, s{S_KI[i]}, {16*HT_STRIDE}')
            self.vmem(f'buffer_load_dwordx4 v{vD}, s[{R_WS}:{R_WS+3}], s{S_T1} offen {o.get("hflags", "sc1")} lds', 'h0a' if (i < 3 and PROG) else 'h0')
        self.cs_mfma(self.K0, 28)
        H1F = o.get('h1fill', True)
        if not H1F:
            for i in range(7):
                for f in hdma(1, i): f()
        def rdB(g, k):
            s = k % NB
            for h_ in range(2):
                self.ds(f'ds_read_b64_tr_b16 {vr(B+4*s+2*h_,2)}, v{vBq + k//7} offset:{HS(g) + (k%7)*1024 + 512*h_}', f'B{g}_{k}')
        def st_reads(g):
            for k_ in range(2): self.ds(f'ds_read_b64 {vr(st+2*k_,2)}, v{vP} offset:{(g&1)*512 + 256*k_}', f'st{g}')
        def epilogue_ops(g):
            A_ = acc[g & 1]; ops = []
            nm, rsl, s2 = par, par + 1, par + 2
            save = self.lines; self.lines = []
            if g == 0:
                self.ln_finalize(st, st + 1, st + 2, st + 3, st + 4)
            else:
                e(f'v_lshlrev_b32 v{st+2}, 16, v{sg2+2*(g-1)}')
                e(f'v_and_b32 v{st+3}, 0xffff0000, v{sg2+2*(g-1)}')
            e(f'v_sub_f32 v{nm}, 0, v{st+2}')
            e(f'v_rcp_f32 v{st+4}, v{st+3}')
            e(f'v_mul_f32 v{s2}, v{st+3}, v{st+3}')
            e(f'v_mul_f32 v{rsl}, {fx(-LOG2E)}, v{st+4}')
            fl = self.lines; self.lines = save
            if g == 0:
                def fin0():
                    self.wait_lg('st0')
                    e(f'v_add_f32 v{st}, v{st}, v{st+2}')
                ops.append(fin0)
                ops.append(lambda: e(f'v_add_f32 v{st+1}, v{st+1}, v{st+3}'))
            for l in fl: ops.append(lambda l=l: e(l))
            def el(r):
                G_, U_, T_ = A_ + r, A_ + 16 + r, tmp + (r & 7)
                return [f'v_fma_f32 v{G_}, v{cs+r}, v{nm}, v{G_}',
                        f'v_fma_f32 v{U_}, v{cs+16+r}, v{nm}, v{U_}',
                        f'v_mul_f32 v{T_}, v{rsl}, v{G_}',
                        f'v_mul_f32 v{G_}, v{G_}, v{U_}',
                        f'v_exp_f32 v{T_}, v{T_}',
                        f'v_fma_f32 v{T_}, v{T_}, v{s2}, v{s2}',
                        f'v_rcp_f32 v{T_}, v{T_}',
                        f'v_mul_f32 v{G_}, v{G_}, v{T_}']
            for q in range(4):
                els = [el(4*q + x) for x in range(4)]
                for s_ in range(8):
                    for x in range(4): ops.append((lambda l=els[x][s_]: e(l), 2 if s_ in (4, 6) else 1))
                for x in range(2):
                    r = 4*q + 2*x
                    ops.append(lambda r=r: e(f'v_cvt_pk_bf16_f32 v{pk + r//2}, v{A_+r}, v{A_+r+1}'))
                if q in (1, 3):
                    kk = q >> 1
                    ops.append(lambda kk=kk: self.vmem(f'buffer_store_dwordx4 {vr(pk+4*kk,4)}, v{vA}, s[{R_WS}:{R_WS+3}], s{S_T4} offen offset:{1024*kk} sc1', 'act'))
            return ops
        DS = 1.5
        def rdB1(g, k, h_):
            s = (28 * g + k) % NB
            return (lambda: self.ds(f'ds_read_b64_tr_b16 {vr(B+4*s+2*h_,2)}, v{vBq + k//7} offset:{HS(g) + (k%7)*1024 + 512*h_}', f'B{g}_{k}'), DS)
        def rs(g, i):
            sb = SB + 4 * (i & 1); out = []
            for h_ in range(2):
                b_, off = (vS, HS(g) + i*2048 + 1024*h_) if HS(g) < 57344 else (vS2, i*2048 + 1024*h_)
                out.append((lambda b_=b_, off=off, h_=h_, sb=sb, i=i: self.ds(f'ds_read_b64_tr_b16 {vr(sb+2*h_,2)}, v{b_} offset:{off}', f'S{g}_{i}'), DS))
            return out
        def s2_loads():
            return [lambda gg=gg: self.vmem(f'buffer_load_dwordx2 {vr(sg2+2*(gg-1),2)}, v{vG2}, s[{R_WS}:{R_WS+3}], 0 offen offset:{256*gg} sc1', 'sg2') for gg in range(1, 4)]
        def s2_check():
            l0 = self.lab('s2'); l1 = self.lab('s2d')
            self.wait_vm('sg2')
            e(f's_mov_b32 s{S_CNT}, 0')
            self.label(l0)
            e(f'v_cmp_ne_u32 vcc, s{S_NONCE}, v{sg2+1}')
            for gg in (2, 3): e(f'v_cmp_ne_u32 s[{S_M2}:{S_M2+1}], s{S_NONCE}, v{sg2+2*gg-1}\ns_or_b64 vcc, vcc, s[{S_M2}:{S_M2+1}]')
            e(f's_cbranch_vccz {l1}')
            for gg in range(1, 4): e(f'buffer_load_dwordx2 {vr(sg2+2*(gg-1),2)}, v{vG2}, s[{R_WS}:{R_WS+3}], 0 offen offset:{256*gg} sc1')
            e('s_waitcnt vmcnt(0)')
            e(f's_add_u32 s{S_CNT}, s{S_CNT}, 1\ns_cmp_lt_u32 s{S_CNT}, {SPIN_MAX}\ns_cbranch_scc1 {l0}')
            self.label(l1)
        def red_ops(g):
            return [lambda: e(f'v_cndmask_b32 v{SG}, v{SG}, v{SG+1}, s[{K1}:{K1+1}]'),
                    lambda: e(f'v_cndmask_b32 v{SG}, v{SG}, v{SG+2}, s[{K2}:{K2+1}]'),
                    lambda: e(f'v_cndmask_b32 v{SG+5}, v{SG}, v{SG+3}, s[{K3}:{K3+1}]'),
                    lambda: e(f's_mov_b64 exec, s[{KD}:{KD+1}]'),
                    lambda: self.ds(f'ds_write_b64 v{vPw}, {vr(SG+4,2)} offset:{(g&1)*512}', f'stw{g}'),
                    lambda: e('s_mov_b64 exec, -1')]
        self.wait_vm('h0a' if PROG else 'h0'); self.wait_all_lg(); e('s_barrier')
        self.stamp(17)
        for k in range(4):
            for h_ in range(2): rdB1(0, k, h_)[0]()
        if not PROG:
            for f in rs(0, 0) + rs(0, 1): f[0]()
        mains = []; segs = []
        KB = 22
        for g in range(4):
            A_ = acc[g & 1]; base = len(mains); pos = {}
            for k in range(28):
                cg = '0' if k == 0 else vr(A_, 16); cu = '0' if k == 0 else vr(A_ + 16, 16)
                pre = []
                if g == 1 and k == 2: pre.append(lambda: e('s_barrier'))
                if g in (2, 3) and k == 2: pre.append(lambda: e('s_barrier'))
                if g == 0 and k == 8 and PROG:
                    pre.append(lambda: self.wait_vm('h0')); pre.append(lambda: e('s_barrier'))
                if k == KB:
                    if g < 3: pre.append(lambda g=g: self.wait_vm(f'h{g+1}'))
                    if g == 0: pre.append(lambda g=g: self.wait_lg(f'stw{g}'))
                    pre.append(lambda: e('s_barrier'))
                    if o.get('passstamps'): pre.append(lambda g=g: self.stamp(26 + g))
                pre.append(lambda k=k, g=g: self.wait_lg(f'B{g}_{k}'))
                nx = (g, k + 4) if k + 4 < 28 else ((g + 1, k + 4 - 28) if g < 3 else None)
                p0 = [rdB1(nx[0], nx[1], 0)] if nx else []; p1 = [rdB1(nx[0], nx[1], 1)] if nx else []
                pos[k] = len(mains)
                mains.append((pre, lambda k=k, cg=cg, A_=A_, g=g: e(f'v_mfma_f32_32x32x16_bf16 {vr(A_,16)}, {ar(8*k,4)}, {vr(B+4*((28*g+k)%NB),4)}, {cg}'), 32, p0))
                mains.append(([], lambda k=k, cu=cu, A_=A_, g=g: e(f'v_mfma_f32_32x32x16_bf16 {vr(A_+16,16)}, {ar(8*k+4,4)}, {vr(B+4*((28*g+k)%NB),4)}, {cu}'), 32, p1))
                if g == 0:
                    gpos = [10, 11, 13, 14, 16, 17, 19] if PROG else [0, 3, 6, 9, 12, 15, 18]
                    spos = gpos if PROG else [x + 1 for x in gpos]
                    if k in gpos:
                        i_ = gpos.index(k); sb = SB + 4 * (i_ & 1); c_ = '0' if i_ == 0 else vr(SG, 4)
                        mains.append(([lambda i_=i_, g=g: self.wait_lg(f'S{g}_{i_}')], lambda sb=sb, c_=c_: e(f'v_mfma_f32_16x16x32_bf16 {vr(SG,4)}, {vr(sb,4)}, {vr(sb,4)}, {c_}'), 16, []))
                    if k in spos:
                        i_ = spos.index(k); sb = SB + 4 * (i_ & 1); c_ = '0' if i_ == 0 else vr(SG + 4, 4)
                        mains.append(([], lambda sb=sb, c_=c_: e(f'v_mfma_f32_16x16x32_bf16 {vr(SG+4,4)}, {vr(ones,4)}, {vr(sb,4)}, {c_}'), 16,
                                      rs(g, i_ + 2) if i_ + 2 < 7 else []))
            def addpost(k, items, which=0):
                pre_, m_, d_, post_ = mains[pos[k] + which]
                mains[pos[k] + which] = (pre_, m_, d_, post_ + items)
            if g == 0:
                addpost(KB - 1, red_ops(g), 1)
                if PROG:
                    r0 = rs(0, 0) + rs(0, 1)
                    addpost(8, r0[:2], 0); addpost(8, r0[2:], 1)
            if g == 3:
                for i_ in range(9):
                    rr = [(f, DS) for f in self.wd_reads(i_)]
                    for q in range(4): addpost(10 + 2*i_ + (q >> 1), [rr[q]], q & 1)
                pre_, m_, d_, post_ = mains[pos[10]]
                mains[pos[10]] = (pre_, m_, d_, post_[:1] + [lambda: self.wait_vm('wdA')] + post_[1:])
            if g == 1:
                addpost(4, s2_loads(), 1)
                addpost(26, [(s2_check, 8)], 1)
            ep = []
            if g > 0:
                if g == 1: ep.append(lambda g=g: st_reads(0))
                ep.append(lambda g=g: e(f's_mov_b32 s{S_T4}, {(g-1)*112*1024}'))
                ep += epilogue_ops(g - 1)
            mf = []; mf2 = []
            if g == 0:
                if H1F:
                    for i in range(7): mf2 += hdma(1, i)
                for i in range(7): mf += hdma(2, i)
            if g == 0:
                pass
            mf3 = []
            if g == 1:
                for i in range(7): mf2 += hdma(3, i)
                for k_ in range(0, 5): mf3 += self.wd_dma(k_, 'wdA')
            if g == 2:
                for k_ in range(5, 9): mf3 += self.wd_dma(k_, 'wdA')
                for k_ in range(9, 12): mf3 += self.wd_dma(k_, 'wdB')
            if g == 3:
                for k_ in range(12, 15): mf3 += self.wd_dma(k_, 'wdC')
            if o.get('x_noep'): ep = []
            merged = []; a_, c_ = list(ep), list(mf)
            ra = len(a_) / max(1, len(a_) + len(c_)); acc_ = 0.0
            while a_ or c_:
                acc_ += ra
                if (acc_ >= 1.0 - 1e-9 and a_) or not c_:
                    acc_ -= 1.0; merged.append(a_.pop(0))
                else: merged.append(c_.pop(0))
            end = len(mains) if g < 3 else len(mains) - 2
            if mf2: segs.append((pos[2], pos[12], mf2) if g else (pos[0], pos[6], mf2))
            if mf3: segs.append((pos[12] if mf2 else pos[2], pos[27] if g < 3 else pos[10], mf3))
            segs.append((pos[8] if (g == 0 and H1F) else base, end, merged))
        self.sched(mains, None, segs=segs)
        self.stamp(18)
        e(f's_mov_b32 s{S_T4}, {3*112*1024}')
        for f in epilogue_ops(3): (f[0] if isinstance(f, tuple) else f)()
        self.stamp(19)
        for x, n in ((vD,1),(vB,1),(vS,1),(t,1),(t2,1),(cs,32),(vA,1),(vG2,1),(sg2,6),(B,4*NB),(SB,8),(ones,4),(SG,8),(acc[0],32),(acc[1],32),(st,6),(par,3),(tmp,8),(pk,8),(vP,1),(vPw,1),(vBq,4),(vS2,1)):
            V.free(x, n)
        pass
        self.wait_lg('wdr3')
        for k_ in range(15, 19):
            for f in self.wd_dma(k_, 'wdD'): f()
        self.wait_vm('act'); e('s_barrier')
        e(f's_lshl_b32 s{S_T1}, s{S_RB}, 4\ns_add_u32 s{S_T1}, s{S_T1}, s{S_FB}')
        self.signal(WS_FLAG3, f's{S_T1}')
        self.stamp(20)

    def phaseC(self):
        e = self.e; V = self.V; o = self.o
        self.c('================= phase C')
        t = V.alloc(1); t2 = V.alloc(1)
        self.wait_all_lg()
        for k_ in range(19, 24):
            for f in self.wd_dma(k_, 'wdE'): f()
        self.wait_vm('wdC')
        for k_ in range(9, 15):
            for f in self.wd_reads(k_): f()
        self.wait_all_lg()
        for k_ in range(24, 28):
            for f in self.wd_dma(k_, 'wdF'): f()
        self.wait_vm('wdE')
        for k_ in range(15, 24):
            for f in self.wd_reads(k_): f()
        self.wait_vm('wdF')
        for k_ in range(24, 28):
            for f in self.wd_reads(k_): f()
        self.wait_all_lg()
        V.free(self.vWD, 2); V.free(self.vWT, 6)
        self.stamp(21)
        e(f's_lshr_b32 s{S_T0}, s{S_RB2}, 1\ns_mul_i32 s{S_T0}, s{S_T0}, {16*FLAG_STRIDE}')
        self.poll_flags(WS_FLAG3, 16, 1, sbase=S_T0, sleep=self.o.get('wsleep3', 1))
        self.vm.drain(); self.lg.drain()
        self.stamp(22)
        vA = V.alloc(1)
        e(f's_mul_i32 s{S_T0}, s{S_RB2}, {2*112}\ns_mul_i32 s{S_T1}, s{S_W}, 28\ns_add_u32 s{S_T0}, s{S_T0}, s{S_T1}\ns_lshl_b32 s{S_T0}, s{S_T0}, 10\ns_add_u32 s{S_T0}, s{S_T0}, {WS_ACT}\nv_lshl_add_u32 v{vA}, v1, 4, s{S_T0}')
        NR = o.get('NR', 7)
        Bf = V.alloc(8 * NR, 4); acc = V.alloc(64, 4)
        def ld(k):
            for nt in range(2):
                e(f's_add_u32 s{S_T1}, s{S_RA0 + k//7}, {(nt*112 + k%7)*1024}')
                self.vmem(f'buffer_load_dwordx4 {vr(Bf+8*(k%NR)+4*nt,4)}, v{vA}, s[{R_WS}:{R_WS+3}], s{S_T1} offen {o.get("aflags", "sc1")}', f'a{k}')
        for k in range(NR): ld(k)
        hres = V.alloc(8, 4); vR = V.alloc(1)
        e(f's_lshl_b32 s{S_T0}, s{S_RB2}, 1\ns_and_b32 s{S_T1}, s{S_W}, 1\ns_add_u32 s{S_T0}, s{S_T0}, s{S_T1}\ns_mul_i32 s{S_T0}, s{S_T0}, 28')
        e(f's_lshl_b32 s{S_T1}, s{S_DB}, 2\ns_add_u32 s{S_T0}, s{S_T0}, s{S_T1}\ns_and_b32 s{S_T1}, s{S_W}, 2\ns_add_u32 s{S_T0}, s{S_T0}, s{S_T1}\ns_lshl_b32 s{S_T0}, s{S_T0}, 10\ns_add_u32 s{S_T0}, s{S_T0}, {WS_HD}\nv_lshl_add_u32 v{vR}, v1, 4, s{S_T0}')
        A = lambda mt, nt: acc + 16 * (2 * mt + nt)
        for k in range(28):
            self.wait_vm(f'a{k}')
            for mt in range(2):
                for nt in range(2):
                    cin = '0' if k == 0 else vr(A(mt, nt), 16)
                    if o.get('x_nomfma2') and k > 0: continue
                    e(f'v_mfma_f32_32x32x16_bf16 {vr(A(mt,nt),16)}, {ar(8*k+4*mt,4)}, {vr(Bf+8*(k%NR)+4*nt,4)}, {cin}')
            if k + NR < 28: ld(k + NR)
            if o.get('g2stamps'):
                if k in (0, 7, 14, 21): self.stamp(26 + k // 7)
            if k == 28 - NR:
                for kk in range(2): self.vmem(f'buffer_load_dwordx4 {vr(hres+4*kk,4)}, v{vR}, s[{R_WS}:{R_WS+3}], 0 offen offset:{1024*kk} sc1', 'hres')
        self.stamp(23)
        V.free(Bf, 8 * NR)
        ra = V.alloc(1); keep = V.alloc(16, 4); rr = V.alloc(48, 4)
        e(f's_lshl_b32 s{S_T0}, s{S_W}, 12\nv_lshl_add_u32 v{ra}, v1, 4, s{S_T0}')
        labs = [self.lab(f'r{w}') for w in range(4)]; ld_ = self.lab('rd')
        for w in range(1, 4): e(f's_cmp_eq_u32 s{S_W}, {w}\ns_cbranch_scc1 {labs[w]}')
        for w in range(4):
            if w: self.label(labs[w]); e('s_nop 7\ns_nop 3')
            for T in range(4):
                if T == w: continue
                for q in range(4): e(f'ds_write_b128 v{ra}, {vr(acc+16*T+4*q,4)} offset:{T*16384 + q*1024}')
            for i in range(16): e(f'v_mov_b32 v{keep+i}, v{acc+16*w+i}')
            if w < 3: e(f's_branch {ld_}')
        self.label(ld_)
        e('s_waitcnt lgkmcnt(0)'); self.lg.drain()
        e('s_barrier')
        e(f's_lshl_b32 s{S_T0}, s{S_W}, 14\nv_lshl_add_u32 v{ra}, v1, 4, s{S_T0}')
        for j in range(1, 4):
            e(f's_add_u32 s{S_T1}, s{S_W}, {j}\ns_and_b32 s{S_T1}, s{S_T1}, 3\ns_lshl_b32 s{S_T1}, s{S_T1}, 12\nv_add_u32 v{t}, s{S_T1}, v{ra}')
            for q in range(4): self.ds(f'ds_read_b128 {vr(rr+16*(j-1)+4*q,4)}, v{t} offset:{q*1024}', f'rr{j}')
        vO = V.alloc(1)
        e(f'v_and_b32 v{t}, 31, v1\nv_mul_u32_u24 v{vO}, 896, v{t}\nv_lshrrev_b32 v{t}, 5, v1\nv_lshl_add_u32 v{vO}, v{t}, 4, v{vO}')
        e(f's_lshl_b32 s{S_T0}, s{S_RB2}, 1\ns_and_b32 s{S_T1}, s{S_W}, 1\ns_add_u32 s{S_T0}, s{S_T0}, s{S_T1}\ns_mul_i32 s{S_T0}, s{S_T0}, {32*896}')
        e(f's_lshl_b32 s{S_T1}, s{S_DB}, 7\ns_add_u32 s{S_T0}, s{S_T0}, s{S_T1}\ns_and_b32 s{S_T1}, s{S_W}, 2\ns_lshl_b32 s{S_T1}, s{S_T1}, 5\ns_add_u32 s{S_T0}, s{S_T0}, s{S_T1}\nv_add_u32 v{vO}, s{S_T0}, v{vO}')
        for j in range(1, 4):
            self.wait_lg(f'rr{j}')
            for i in range(0, 16, 2): e(f'v_pk_add_f32 {vr(keep+i,2)}, {vr(keep+i,2)}, {vr(rr+16*(j-1)+i,2)}')
        self.wait_vm('hres')
        P = V.alloc(8, 4); w8 = rr
        for d in range(8): e(f'v_cvt_pk_bf16_f32 v{P+d}, v{keep+2*d}, v{keep+2*d+1}')
        for d in range(8):
            e(f'v_lshlrev_b32 v{w8+2*d}, 16, v{P+d}\nv_and_b32 v{w8+2*d+1}, 0xffff0000, v{P+d}')
            e(f'v_lshlrev_b32 v{w8+16+2*d}, 16, v{hres+d}\nv_and_b32 v{w8+16+2*d+1}, 0xffff0000, v{hres+d}')
        for d in range(8): e(f'v_pk_add_f32 {vr(w8+2*d,2)}, {vr(w8+2*d,2)}, {vr(w8+16+2*d,2)}')
        for d in range(8): e(f'v_cvt_pk_bf16_f32 v{P+d}, v{w8+2*d}, v{w8+2*d+1}')
        for kk in range(2):
            b = P + 4 * kk
            e(f'v_permlane32_swap_b32 v{b}, v{b+2}\nv_permlane32_swap_b32 v{b+1}, v{b+3}')
        for kk in range(2):
            self.vmem(f'buffer_store_dwordx4 {vr(P+4*kk,4)}, v{vO}, s[{R_OUT}:{R_OUT+3}], 0 offen offset:{32*kk} {o.get("outflags", "")}', 'out')
        self.stamp(24)

    def build(self):
        e = self.e
        self.prologue()
        saveV = list(self.V.used)
        self.helper()
        self.V.used = saveV; self.vm.drain(); self.lg.drain()
        self.label('L_worker')
        self.phaseA()
        upto = self.o.get('upto', 'C')
        if upto in ('B', 'C'): self.phaseB()
        if upto == 'C': self.phaseC()
        self.stamps_out()
        if self.o.get('padto'):
            e('s_waitcnt vmcnt(0)')
            self.label('L_pad')
            e(f's_memrealtime s[{S_TS}:{S_TS+1}]\ns_waitcnt lgkmcnt(0)\ns_sub_u32 s{S_TS}, s{S_TS}, s{S_TS+6}\ns_cmp_lt_u32 s{S_TS}, {self.o.get("padto")}\ns_cbranch_scc1 L_pad')
        self.label('L_end')
        e('s_endpgm')

HEADER = open(os.path.join(os.path.dirname(os.path.abspath(__file__)), 'header.txt')).read() if os.path.exists(os.path.join(os.path.dirname(os.path.abspath(__file__)), 'header.txt')) else ''

def generate(opt):
    g = Gen(opt)
    g.build()
    lines, problems = fix_hazards(g.lines, verbose=opt.get('verbose', False))
    for p in problems: print('BACKEDGE HAZARD:', p, file=sys.stderr)
    out = [HEADER.rstrip('\n').replace('@@GRID@@', f'; @launch grid=(256,1,1) block=(256,1,1) lds={LDS_SIZE}')]
    out += ['.amdgcn_target "amdgcn-amd-amdhsa--gfx950"', '.text', f'.globl {NAME}', '.p2align 8', f'.type {NAME},@function', f'{NAME}:']
    for l in lines:
        out.append(l if l.endswith(':') else '    ' + l)
    out += ['.section .rodata,"a"', '.p2align 6', f'.amdhsa_kernel {NAME}',
            '  .amdhsa_next_free_vgpr 512', '  .amdhsa_next_free_sgpr 102', '  .amdhsa_accum_offset 256',
            '  .amdhsa_group_segment_fixed_size 0', '  .amdhsa_kernarg_size 128', '  .amdhsa_user_sgpr_count 2',
            '  .amdhsa_user_sgpr_kernarg_segment_ptr 1', '  .amdhsa_system_sgpr_workgroup_id_x 1',
            '  .amdhsa_float_denorm_mode_32 3', '.end_amdhsa_kernel', '']
    if opt.get('verbose'): print('max arch vgpr', g.V.hi, 'lines', len(lines))
    return '\n'.join(out)

if __name__ == '__main__':
    import json
    opt = json.loads(sys.argv[2]) if len(sys.argv) > 2 else {}
    opt['verbose'] = True
    txt = generate(opt)
    open(sys.argv[1], 'w').write(txt)
```

```python
import sys, os, math, struct
sys.path.insert(0, os.path.dirname(os.path.abspath(__file__)))
from asmlib import *

NAME = 'sequential_preLN__ssm_conv_s4__swiglu_ffn__prompt_kernel'
def f2u(x): return struct.unpack('<I', struct.pack('<f', x))[0]
def fx(x): return hex(f2u(x))
LOG2E = 1.4426950408889634
WS_STATS = 0x0
WS_FLAG2 = 0x4000
WS_FLAG3 = 0xC000
WS_STATS2 = 0x10000
WS_CS    = 0x14000
WS_HT    = 0x20000
HT_STRIDE = 4352
WS_HD    = 0x200000
WS_ACT   = 0x400000
WS_XT    = 0xB00000
XT_STRIDE = 4352
WS_DBG   = 0xE00000
WS_SIZE  = 0x2000000
FLAG_STRIDE = 16
TBL_E = 1088; TBL_C = 18 * TBL_E
L_TBL = 0
L_EX = 2 * TBL_C
L_K32 = 55680; K32_C = 9344
L_RED = L_K32
L_STG = 87040; STG_SLOT = 8192
L_STGX = 74496
L_KC = 0; KC_S = 4160; KC_C = 4 * KC_S
L_U = 2 * KC_C; U_C = 5120
L_X = L_U + 2 * U_C; X_C = 4096
LDS_SIZE = 163840
HX_STRIDE = 912
S_X, S_ARE, S_AIM, S_BRE, S_BIM, S_CRE, S_CIM, S_LDT, S_DSK, S_BX, S_WG, S_WU, S_WD, S_OUT, S_DBG, S_WS = range(4, 36, 2)
R_X, R_WS, R_DBG, R_WG, R_WU, R_WD, R_OUT = 36, 40, 44, 48, 52, 56, 60
S_W, S_NONCE, S_XCD, S_J, S_CP, S_T0, S_T1, S_T2, S_T3, S_T4, S_T5 = 64, 65, 66, 67, 68, 69, 70, 71, 72, 73, 74
S_LD, S_DK = 75, 76
S_RB, S_FB, S_RB2, S_DB = 77, 78, 79, 80
S_M0, S_M1, S_M2, S_M3 = 82, 84, 86, 88
S_CNT = 90
S_HID = 91
S_WM, S_WO, S_US = 81, 100, 101
S_ROT = 99
S_WA, S_WB, S_WC = 18, 19, 20
S_RW0, S_RA0 = 24, 28
S_Q0 = 14
S_TS = 92
SPIN_MAX = 5000

class Gen(Asm):
    def __init__(self, opt):
        super().__init__()
        self.o = opt
        self.V = Regs('v', 256, start=2)
        if opt.get('stamps'): self.V.take(254, 2)
        self.V.take(250, 4)
        self.uid = 0
    def lab(self, s):
        self.uid += 1
        return f'L{s}_{self.uid}'
    def srd(self, r, ptr, size):
        self.e(f's_mov_b32 s{r}, s{ptr}\ns_mov_b32 s{r+1}, s{ptr+1}\ns_mov_b32 s{r+2}, {hex(size)}\ns_mov_b32 s{r+3}, 0x20000')
    def cmul(self, d, a, b, t=None):
        t = d if t is None else t
        self.e(f'v_pk_mul_f32 {vr(t,2)}, {vr(a,2)}, {vr(b,2)} op_sel:[0,0] op_sel_hi:[0,1]')
        self.e(f'v_pk_fma_f32 {vr(d,2)}, {vr(a,2)}, {vr(b,2)}, {vr(t,2)} op_sel:[1,1,0] op_sel_hi:[1,0,1] neg_lo:[0,1,0]')
    def cmul_multi(self, items):
        for d, a, b, t in items:
            t = d if t is None else t
            self.e(f'v_pk_mul_f32 {vr(t,2)}, {vr(a,2)}, {vr(b,2)} op_sel:[0,0] op_sel_hi:[0,1]')
        for d, a, b, t in items:
            t = d if t is None else t
            self.e(f'v_pk_fma_f32 {vr(d,2)}, {vr(a,2)}, {vr(b,2)}, {vr(t,2)} op_sel:[1,1,0] op_sel_hi:[1,0,1] neg_lo:[0,1,0]')
    def stamp(self, i):
        dm = self.o.get('dbgmap')
        if dm and i in dm:
            lab = self.lab('ds')
            self.e(f's_cmp_lg_u32 s2, {self.o.get("dbgwg", 8)}\ns_cbranch_scc1 {lab}\ns_cmp_lg_u32 s{S_W}, 0\ns_cbranch_scc1 {lab}')
            self.e(f's_memrealtime s[{S_TS}:{S_TS+1}]\ns_waitcnt lgkmcnt(0)')
            v = self.V.alloc(2)
            self.e(f's_sub_u32 s{S_TS}, s{S_TS}, s{S_TS+6}\nv_mov_b32 v{v}, s{S_TS}\nv_mov_b32 v{v+1}, {4*(1+dm.index(i))}')
            self.e(f's_mov_b64 s[{S_TS+4}:{S_TS+5}], exec\ns_mov_b64 exec, 1')
            self.e(f'buffer_store_dword v{v}, v{v+1}, s[{R_DBG}:{R_DBG+3}], 0 offen')
            self.e(f's_mov_b64 exec, s[{S_TS+4}:{S_TS+5}]')
            self.V.free(v, 2)
            self.label(lab)
            self.e('s_waitcnt lgkmcnt(0)')
            self.lg.drain()
        if self.o.get('stamps') and (self.o.get('only') is None or i in self.o['only']):
            self.e(f's_memrealtime s[{S_TS}:{S_TS+1}]\ns_memtime s[{S_TS+4}:{S_TS+5}]')
            self.e('s_waitcnt lgkmcnt(0)'); self.lg.drain()
            self.e(f'v_writelane_b32 v254, s{S_TS}, {i}\nv_writelane_b32 v255, s{S_TS+4}, {i}')

    def stamps_out(self):
        if self.o.get('stamps'):
            e = self.e
            e(f's_lshl_b32 s{S_TS+2}, s2, 10\ns_lshl_b32 s{S_TS+3}, s{S_W}, 8\ns_add_u32 s{S_TS+2}, s{S_TS+2}, s{S_TS+3}\ns_add_u32 s{S_TS+2}, s{S_TS+2}, {WS_DBG}')
            e(f'v_lshl_add_u32 v252, v1, 2, s{S_TS+2}\ns_mov_b32 exec_lo, -1\ns_mov_b32 exec_hi, 0')
            e(f'buffer_store_dword v254, v252, s[{R_WS}:{R_WS+3}], 0 offen\nbuffer_store_dword v255, v252, s[{R_WS}:{R_WS+3}], 0 offen offset:128')

    def prologue(self):
        e = self.e
        e(f's_cmp_ge_u32 s2, 256\ns_cbranch_scc1 L_end')
        e(f's_load_dwordx16 s[4:19], s[0:1], 0\ns_load_dwordx16 s[20:35], s[0:1], 64')
        e(f's_memrealtime s[{S_M0}:{S_M0+1}]')
        e('v_and_b32 v1, 63, v0')
        if self.o.get('codepf', True):
            lpc = self.lab('pc'); a = 250
            e(f's_getpc_b64 s[{S_M2}:{S_M2+1}]')
            self.label(lpc)
            e(f's_sub_u32 s{S_M2}, s{S_M2}, {lpc}-{NAME}\ns_subb_u32 s{S_M2+1}, s{S_M2+1}, 0')
            e(f's_lshr_b32 s{S_T0}, s2, 3\ns_lshl_b32 s{S_T0}, s{S_T0}, 4')
            e(f'v_lshrrev_b32 v{a}, 6, v0\nv_lshl_add_u32 v{a}, v{a}, 2, v1\nv_add_u32 v{a}, s{S_T0}, v{a}\nv_lshlrev_b32 v{a}, 7, v{a}\nv_min_u32 v{a}, L_end-{NAME}, v{a}')
            e(f'v_mov_b32 v{a+3}, s{S_M2+1}\nv_add_co_u32 v{a+2}, vcc, s{S_M2}, v{a}\nv_addc_co_u32 v{a+3}, vcc, 0, v{a+3}, vcc')
            e(f's_mov_b64 s[{S_M1}:{S_M1+1}], exec\ns_mov_b64 exec, 15')
            e(f'global_load_dword v{a+1}, v[{a+2}:{a+3}], off')
            e(f's_mov_b64 exec, s[{S_M1}:{S_M1+1}]')
        if self.o.get('stamps'): e('v_mov_b32 v254, 0x5a5a5a5a\nv_mov_b32 v255, 0x5a5a5a5a')
        v = self.V.alloc(1)
        e(f'v_lshrrev_b32 v{v}, 6, v0')
        e(f's_and_b32 s{S_XCD}, s2, 7\ns_lshr_b32 s{S_J}, s2, 3')
        e(f'v_readfirstlane_b32 s{S_W}, v{v}')
        self.V.free(v)
        e(f's_cmp_lt_u32 s{S_J}, 4\ns_cbranch_scc1 L_helper')
        e(f's_sub_u32 s{S_J}, s{S_J}, 4\ns_mul_i32 s{S_CP}, s{S_XCD}, 28\ns_add_u32 s{S_CP}, s{S_CP}, s{S_J}\ns_branch L_worker')
        self.label('L_helper')

    def srds(self, skip=()):
        e = self.e
        for r, p, n in ((R_X, S_X, 2048*448*2), (R_WS, S_WS, WS_SIZE), (R_DBG, S_DBG, 256), (R_WG, S_WG, 448*1792*2), (R_WU, S_WU, 448*1792*2),
                        (R_WD, S_WD, 448*1792*2), (R_OUT, S_OUT, 2048*448*2)):
            if r not in skip: self.srd(r, p, n)

    def publish_nonce(self):
        e = self.e
        e(f's_or_b32 s{S_NONCE}, s{S_M0}, 1\ns_mov_b32 s{S_TS+6}, s{S_M0}')
        lab = self.lab('non')
        e(f's_or_b32 s{S_T0}, s2, s{S_W}\ns_cmp_lg_u32 s{S_T0}, 0\ns_cbranch_scc1 {lab}')
        v = self.V.alloc(2)
        e(f'v_mov_b32 v{v}, s{S_NONCE}\nv_mov_b32 v{v+1}, 0')
        e(f's_mov_b64 s[{S_M1}:{S_M1+1}], exec\ns_mov_b64 exec, 1')
        e(f'buffer_store_dword v{v}, v{v+1}, s[{R_DBG}:{R_DBG+3}], 0 offen sc1')
        e(f's_mov_b64 exec, s[{S_M1}:{S_M1+1}]')
        self.V.free(v, 2)
        self.label(lab)

    def capture(self, fn):
        save = self.lines; self.lines = []
        r = fn()
        fl = self.lines; self.lines = save
        return r, [(lambda l=l: self.e(l)) for l in fl if not l.startswith(';')]

    def region(self, fn):
        save = self.lines; self.lines = []
        r = fn()
        fl = self.lines; self.lines = save
        self.lines.extend(resched(fl) if self.o.get('resched', True) else fl)
        return r

    def two_paths(self, fn, nop=7):
        e = self.e; l1 = self.lab('p1'); ld = self.lab('pd')
        e(f's_and_b32 s{S_T5}, s{S_W}, 1\ns_cmp_lg_u32 s{S_T5}, 0\ns_cbranch_scc1 {l1}')
        st = (list(self.vm.q), list(self.lg.q), list(self.V.used))
        fn(0)
        e(f's_branch {ld}')
        end = (list(self.vm.q), list(self.lg.q), list(self.V.used))
        self.vm.q, self.lg.q, self.V.used = list(st[0]), list(st[1]), list(st[2])
        self.label(l1)
        e(f's_nop {nop}')
        fn(1)
        assert (self.vm.q, self.lg.q, self.V.used) == end, 'paths diverge'
        self.label(ld)

    def get_nonce(self):
        e = self.e
        v = self.V.alloc(2)
        l0 = self.lab('gn'); l1 = self.lab('gnd')
        e(f'v_mov_b32 v{v+1}, 0\ns_mov_b32 s{S_CNT}, 0')
        self.label(l0)
        e(f'buffer_load_dword v{v}, v{v+1}, s[{R_DBG}:{R_DBG+3}], 0 offen sc1')
        e('s_waitcnt vmcnt(0)'); self.vm.drain()
        e(f'v_readfirstlane_b32 s{S_NONCE}, v{v}')
        e(f's_cmp_lg_u32 s{S_NONCE}, 0\ns_cbranch_scc1 {l1}')
        e(f's_add_u32 s{S_CNT}, s{S_CNT}, 1\ns_cmp_lt_u32 s{S_CNT}, {SPIN_MAX}\ns_cbranch_scc1 {l0}')
        self.label(l1)
        self.V.free(v, 2)

    def helper(self):
        e = self.e; V = self.V
        self.c('================= helper: x^T + LN1 stats')
        e('s_waitcnt lgkmcnt(0)')
        self.srd(R_DBG, S_DBG, 256)
        self.publish_nonce()
        self.srd(R_X, S_X, 2048*448*2)
        e(f's_mov_b32 s{S_TS+6}, s{S_M0}')
        e(f's_lshl_b32 s{S_T0}, s{S_XCD}, 2\ns_add_u32 s{S_HID}, s{S_J}, s{S_T0}')
        va = V.alloc(1); t0 = V.alloc(1); t1 = V.alloc(1)
        e(f's_lshl_b32 s{S_T0}, s{S_HID}, 6\ns_lshl_b32 s{S_T1}, s{S_W}, 4\ns_add_u32 s{S_T0}, s{S_T0}, s{S_T1}')
        e(f's_mul_i32 s{S_T2}, s{S_T0}, 896\ns_mul_i32 s{S_T3}, s{S_T1}, {HX_STRIDE}')
        e(f'v_lshlrev_b32 v{va}, 4, v1')
        e(f's_mov_b64 s[{S_M1}:{S_M1+1}], exec\ns_mov_b32 exec_lo, -1\ns_mov_b32 exec_hi, 0x00ffffff')
        for r in range(16):
            e(f's_add_u32 m0, s{S_T3}, {r*HX_STRIDE}\ns_add_u32 s{S_T4}, s{S_T2}, {r*896}')
            self.vmem(f'buffer_load_dwordx4 v{va}, s[{R_X}:{R_X+3}], s{S_T4} offen lds', 'x')
        e(f's_mov_b64 exec, s[{S_M1}:{S_M1+1}]')
        self.srds(skip=(R_X, R_DBG))
        self.stamp(0)
        vT = V.alloc(1); vO = V.alloc(1); vA = V.alloc(1)
        e(f'v_lshrrev_b32 v{t0}, 4, v1\nv_lshlrev_b32 v{t0}, 1, v{t0}\nv_bfe_u32 v{t1}, v1, 1, 1\nv_add_u32 v{t0}, v{t0}, v{t1}\nv_lshlrev_b32 v{t0}, 3, v{t0}')
        e(f'v_bfe_u32 v{t1}, v1, 2, 2\nv_add_u32 v{t0}, v{t0}, v{t1}\nv_mul_u32_u24 v{vT}, {HX_STRIDE}, v{t0}')
        e(f'v_and_b32 v{t1}, 1, v1\nv_lshl_add_u32 v{vT}, v{t1}, 3, v{vT}\ns_lshl_b32 s{S_T0}, s{S_W}, 4\nv_add_u32 v{vT}, s{S_T0}, v{vT}')
        e(f's_lshl_b32 s{S_T0}, s{S_W}, 15\ns_lshl_b32 s{S_T1}, s{S_HID}, 10\ns_add_u32 s{S_T0}, s{S_T0}, s{S_T1}\ns_add_u32 s{S_T0}, s{S_T0}, {WS_XT}\nv_lshl_add_u32 v{vO}, v1, 4, s{S_T0}')
        e(f'v_and_b32 v{t0}, 15, v1\nv_lshrrev_b32 v{t1}, 4, v1')
        e(f's_lshl_b32 s{S_T0}, s{S_W}, 4\nv_add_u32 v{t0}, s{S_T0}, v{t0}\nv_mul_u32_u24 v{vA}, {HX_STRIDE}, v{t0}\nv_lshl_add_u32 v{vA}, v{t1}, 4, v{vA}')
        e(f's_lshl_b32 s{S_T0}, s{S_HID}, 6\nv_add_u32 v{t0}, s{S_T0}, v{t0}')
        XG = self.o.get('xg', True)
        self.get_nonce()
        Q = V.alloc(56, 4)
        if not XG:
            e('s_barrier')
            self.stamp(3)
            for u in range(14):
                for k_ in range(2):
                    self.ds(f'ds_read_b64_tr_b16 {vr(Q+4*u+2*k_,2)}, v{vT} offset:{64*u + 4*k_*HX_STRIDE}', f'q{u}')
            for u in range(14):
                self.wait_lg(f'q{u}')
                e(f's_mov_b32 s{S_T1}, {u*4*32768}')
                self.vmem(f'buffer_store_dwordx4 {vr(Q+4*u,4)}, v{vO}, s[{R_WS}:{R_WS+3}], s{S_T1} offen sc1', 'xt')
            self.stamp(4)
        else: self.stamp(3)
        xa = V.alloc(56, 4)
        for s in range(14): self.ds(f'ds_read_b128 {vr(xa+4*s,4)}, v{vA} offset:{64*s}', f'x{s}')
        acc = V.alloc(8, 4); ones = V.alloc(4, 4)
        for i in range(4): e(f'v_mov_b32 v{ones+i}, 0x3f803f80')
        e(f's_mov_b32 s6, 0x22222222\ns_mov_b32 s7, 0x22222222\ns_mov_b32 s8, 0x44444444\ns_mov_b32 s9, 0x44444444\ns_mov_b32 s10, 0x88888888\ns_mov_b32 s11, 0x88888888\ns_mov_b32 s12, 0x00f0000f\ns_mov_b32 s13, 0xf0000f00')
        for s in range(14):
            self.wait_lg(f'x{s}')
            e(f'v_mfma_f32_16x16x32_bf16 {vr(acc,4)}, {vr(xa+4*s,4)}, {vr(xa+4*s,4)}, {"0" if s == 0 else vr(acc,4)}')
            e(f'v_mfma_f32_16x16x32_bf16 {vr(acc+4,4)}, {vr(ones,4)}, {vr(xa+4*s,4)}, {"0" if s == 0 else vr(acc+4,4)}')
        e(f'v_cndmask_b32 v{acc}, v{acc}, v{acc+1}, s[6:7]\nv_cndmask_b32 v{acc}, v{acc}, v{acc+2}, s[8:9]\nv_cndmask_b32 v{acc+5}, v{acc}, v{acc+3}, s[10:11]')
        e(f'v_mov_b32 v{acc}, v{acc+4}\nv_mov_b32 v{acc+4}, v{acc+5}')
        S = acc; Qs = acc + 4
        pk = V.alloc(2, 2)
        self.ln_finalize(S, Qs, acc + 1, acc + 2, acc + 3)
        e(f'v_lshrrev_b32 v{pk}, 16, v{acc+1}\nv_or_b32 v{pk}, v{pk}, v{acc+2}')
        self.stamp(5)
        if not XG:
            self.wait_all_vm()
            e('s_barrier')
        self.stamp(6)
        e(f'v_mov_b32 v{pk+1}, s{S_NONCE}')
        e(f'v_lshlrev_b32 v{t0}, 3, v{t0}')
        if WS_STATS: e(f'v_add_u32 v{t0}, {WS_STATS}, v{t0}')
        e(f's_mov_b64 s[{S_M1}:{S_M1+1}], exec\ns_mov_b64 exec, s[12:13]')
        self.vmem(f'buffer_store_dwordx2 {vr(pk,2)}, v{t0}, s[{R_WS}:{R_WS+3}], 0 offen sc1', 'st')
        e(f's_mov_b64 exec, s[{S_M1}:{S_M1+1}]')
        self.stamp(1)
        V.free(pk, 2); V.free(acc, 8); V.free(ones, 4); V.free(xa, 56); V.free(Q, 56); V.free(vT); V.free(vO); V.free(vA)
        e('s_barrier')
        if self.o.get('hcs', False):
            self.c('helper: column sums')
            wv = V.alloc(28 * 4, 4); cs = V.alloc(8, 2)
            lg = self.lab('hg'); ld = self.lab('hd')
            e(f'v_lshrrev_b32 v{t0}, 4, v0\nv_and_b32 v{t1}, 15, v0')
            e(f'v_mul_u32_u24 v{va}, 3584, v{t0}\nv_min_u32 v{t1}, 13, v{t1}\nv_lshl_add_u32 v{va}, v{t1}, 4, v{va}')
            e(f's_and_b32 s{S_T0}, s{S_HID}, 15\ns_mul_i32 s{S_T0}, s{S_T0}, 224')
            e(f'v_add_u32 v{va}, s{S_T0}, v{va}')
            e(f's_cmp_ge_u32 s{S_HID}, 16\ns_cbranch_scc1 {lg}')
            save = list(self.vm.q)
            for k in range(28):
                e(f's_mov_b32 s{S_T1}, {k*16*3584}')
                self.vmem(f'buffer_load_dwordx4 {vr(wv+4*k,4)}, v{va}, s[{R_WG}:{R_WG+3}], s{S_T1} offen', f'w{k}')
            e(f's_branch {ld}')
            self.label(lg)
            self.vm.q = list(save)
            for k in range(28):
                e(f's_mov_b32 s{S_T1}, {k*16*3584}')
                self.vmem(f'buffer_load_dwordx4 {vr(wv+4*k,4)}, v{va}, s[{R_WU}:{R_WU+3}], s{S_T1} offen', f'w{k}')
            self.label(ld)
            e(f's_mov_b32 s{S_T2}, 0x00003f80\ns_mov_b32 s{S_T3}, 0x3f800000')
            for i in range(8): e(f'v_mov_b32 v{cs+i}, 0')
            for k in range(28):
                self.wait_vm(f'w{k}')
                for r in range(4):
                    e(f'v_dot2_f32_bf16 v{cs+2*r}, v{wv+4*k+r}, s{S_T2}, v{cs+2*r}')
                    e(f'v_dot2_f32_bf16 v{cs+2*r+1}, v{wv+4*k+r}, s{S_T3}, v{cs+2*r+1}')
            tmp = V.alloc(8, 2)
            for swap in ('v_permlane32_swap_b32', 'v_permlane16_swap_b32'):
                for i in range(8): e(f'v_mov_b32 v{tmp+i}, v{cs+i}')
                for i in range(8): e(f'{swap} v{cs+i}, v{tmp+i}')
                for i in range(8): e(f'v_add_f32 v{cs+i}, v{cs+i}, v{tmp+i}')
            e(f'v_and_b32 v{t1}, 15, v1\nv_lshlrev_b32 v{t0}, 5, v{t1}\ns_lshl_b32 s{S_T0}, s{S_W}, 9\nv_add_u32 v{t0}, s{S_T0}, v{t0}')
            self.ds(f'ds_write_b128 v{t0}, {vr(cs,4)}'); self.ds(f'ds_write_b128 v{t0}, {vr(cs+4,4)} offset:16')
            self.wait_all_lg(); e('s_barrier')
            e(f'v_lshlrev_b32 v{t0}, 2, v0')
            for w in range(4): self.ds(f'ds_read_b32 v{tmp+w}, v{t0} offset:{512*w}')
            self.wait_all_lg()
            e(f'v_add_f32 v{tmp}, v{tmp}, v{tmp+1}\nv_add_f32 v{tmp+2}, v{tmp+2}, v{tmp+3}\nv_add_f32 v{tmp}, v{tmp}, v{tmp+2}')
            e(f's_mul_i32 s{S_T0}, s{S_HID}, 448\ns_add_u32 s{S_T0}, s{S_T0}, {WS_CS}\nv_add_u32 v{t0}, s{S_T0}, v{t0}')
            e(f'v_cmp_gt_u32 vcc, 112, v0\ns_and_saveexec_b64 s[{S_M1}:{S_M1+1}], vcc')
            lx = self.lab('hcs')
            e(f's_cbranch_execz {lx}')
            e(f'buffer_store_dword v{tmp}, v{t0}, s[{R_WS}:{R_WS+3}], 0 offen sc1')
            self.label(lx)
            e(f's_mov_b64 exec, s[{S_M1}:{S_M1+1}]')
            V.free(tmp, 8); V.free(cs, 8); V.free(wv, 112)
            self.wait_all_vm(); e('s_barrier')
            self.signal(WS_FLAG2, 's2')
            self.stamp(10)
        tw = self.o.get('touch_wd', 'mall')
        if tw:
            nl = 13 if tw == 'l2' else 2
            tv = V.alloc(13); ta = V.alloc(2)
            if tw == 'l2': e(f's_mul_i32 s{S_T0}, s{S_J}, {448*896}')
            else: e(f's_mul_i32 s{S_T0}, s{S_HID}, {56*896}')
            for k in range(nl):
                e(f'v_add_u32 v{ta}, {256*k}, v0\nv_min_u32 v{ta}, {3135 if tw == "l2" else 391}, v{ta}\nv_mul_u32_u24 v{ta+1}, 9363, v{ta}\nv_lshrrev_b32 v{ta+1}, 16, v{ta+1}')
                e(f'v_mul_u32_u24 v{tv+k}, 7, v{ta+1}\nv_sub_u32 v{ta}, v{ta}, v{tv+k}\nv_mul_u32_u24 v{ta+1}, 896, v{ta+1}\nv_lshl_add_u32 v{ta+1}, v{ta}, 7, v{ta+1}')
                e(f'buffer_load_dword v{tv+k}, v{ta+1}, s[{R_WD}:{R_WD+3}], s{S_T0} offen')
            self.wait_all_vm()
            V.free(tv, 13); V.free(ta, 2)
        self.c('helper: LN2 stats + hD')
        vD = V.alloc(1); vB = V.alloc(2); vS = V.alloc(1); vHs = V.alloc(1)
        e(f'v_lshrrev_b32 v{t0}, 3, v1\nv_mul_u32_u24 v{vD}, {HT_STRIDE}, v{t0}\nv_bfe_u32 v{t0}, v1, 4, 1\nv_lshlrev_b32 v{t0}, 2, v{t0}\nv_and_b32 v{t1}, 7, v1\nv_xor_b32 v{t0}, v{t0}, v{t1}\nv_lshl_add_u32 v{vD}, v{t0}, 4, v{vD}')
        e(f's_lshl_b32 s{S_T0}, s{S_HID}, 7\ns_mul_i32 s{S_T1}, s{S_W}, {8*HT_STRIDE}\ns_add_u32 s{S_T0}, s{S_T0}, s{S_T1}\ns_add_u32 s{S_T0}, s{S_T0}, {WS_HT}\nv_add_u32 v{vD}, s{S_T0}, v{vD}')
        e(f'v_lshrrev_b32 v{t0}, 5, v1\nv_lshlrev_b32 v{vB}, 9, v{t0}\nv_bfe_u32 v{t0}, v1, 2, 2\nv_lshl_add_u32 v{vB}, v{t0}, 7, v{vB}')
        e(f'v_bfe_u32 v{t0}, v1, 4, 1\nv_lshl_add_u32 v{vB}, v{t0}, 5, v{vB}\nv_and_b32 v{t0}, 3, v1\nv_lshl_add_u32 v{vB}, v{t0}, 3, v{vB}')
        e(f'v_bfe_u32 v{t0}, v1, 3, 1\nv_lshlrev_b32 v{t0}, 6, v{t0}\nv_xor_b32 v{t1}, 64, v{t0}\nv_add_u32 v{vB+1}, v{vB}, v{t1}\nv_add_u32 v{vB}, v{vB}, v{t0}')
        e(f'v_lshrrev_b32 v{t0}, 4, v1\nv_lshlrev_b32 v{vS}, 9, v{t0}\nv_bfe_u32 v{t0}, v1, 2, 2\nv_lshl_add_u32 v{vS}, v{t0}, 7, v{vS}\nv_and_b32 v{t0}, 3, v1\nv_lshl_add_u32 v{vS}, v{t0}, 3, v{vS}')
        e(f'v_bfe_u32 v{t0}, v1, 3, 1\ns_lshr_b32 s{S_T0}, s{S_W}, 1\nv_xor_b32 v{t0}, s{S_T0}, v{t0}\nv_lshl_add_u32 v{vS}, v{t0}, 6, v{vS}\ns_and_b32 s{S_T0}, s{S_W}, 1\ns_lshl_b32 s{S_T0}, s{S_T0}, 5\nv_add_u32 v{vS}, s{S_T0}, v{vS}')
        e(f's_mul_i32 s{S_T0}, s{S_HID}, {2*28}\ns_add_u32 s{S_T0}, s{S_T0}, s{S_W}\ns_lshl_b32 s{S_T0}, s{S_T0}, 10\ns_add_u32 s{S_T0}, s{S_T0}, {WS_HD}\nv_lshl_add_u32 v{vHs}, v1, 4, s{S_T0}')
        ones = V.alloc(4, 4); SG = V.alloc(8, 4); SB = V.alloc(56, 4)
        for i in range(4): e(f'v_mov_b32 v{ones+i}, 0x3f803f80')
        K1, K2, K3 = 6, 8, 10
        e(f's_mov_b32 s{K1}, 0x22222222\ns_mov_b32 s{K1+1}, 0x22222222\ns_mov_b32 s{K2}, 0x44444444\ns_mov_b32 s{K2+1}, 0x44444444')
        e(f's_mov_b32 s{K3}, 0x88888888\ns_mov_b32 s{K3+1}, 0x88888888\ns_mov_b32 s12, 0x00f0000f\ns_mov_b32 s13, 0xf0000f00')
        if self.o.get('sentinel', True):
            self.poll_flags(WS_FLAG2 + 255*FLAG_STRIDE, 1, 1, sleep=self.o.get('hsleep', 20))
        self.poll_flags(WS_FLAG2 + 32*FLAG_STRIDE, 64, 4, last_lanes=32, sleep=self.o.get('hsleep2', 4))
        self.vm.drain(); self.lg.drain()
        self.stamp(7)
        e(f's_lshl_b32 s{S_T2}, s{S_W}, 10')
        for i in range(14):
            e(f's_add_u32 m0, s{S_T2}, {i*4096}\ns_mov_b32 s{S_T1}, {i*32*HT_STRIDE}')
            self.vmem(f'buffer_load_dwordx4 v{vD}, s[{R_WS}:{R_WS+3}], s{S_T1} offen sc1 lds', 'h')
        self.wait_all_vm(); e('s_barrier')
        self.stamp(8)
        for i in range(14):
            for h_ in range(2): self.ds(f'ds_read_b64_tr_b16 {vr(SB+4*i+2*h_,2)}, v{vS} offset:{i*4096 + 2048*h_}', f's{i}')
        for i in range(14):
            self.wait_lg(f's{i}')
            e(f'v_mfma_f32_16x16x32_bf16 {vr(SG,4)}, {vr(SB+4*i,4)}, {vr(SB+4*i,4)}, {"0" if i == 0 else vr(SG,4)}')
            e(f'v_mfma_f32_16x16x32_bf16 {vr(SG+4,4)}, {vr(ones,4)}, {vr(SB+4*i,4)}, {"0" if i == 0 else vr(SG+4,4)}')
        HB = V.alloc(56, 4)
        e(f'v_cndmask_b32 v{SG}, v{SG}, v{SG+1}, s[{K1}:{K1+1}]\nv_cndmask_b32 v{SG}, v{SG}, v{SG+2}, s[{K2}:{K2+1}]\nv_cndmask_b32 v{SG+5}, v{SG}, v{SG+3}, s[{K3}:{K3+1}]')
        self.ln_finalize(SG + 4, SG + 5, SG + 1, SG + 2, SG + 3)
        e(f'v_lshrrev_b32 v{SG}, 16, v{SG+1}\nv_or_b32 v{SG}, v{SG}, v{SG+2}\nv_mov_b32 v{SG+1}, s{S_NONCE}')
        e(f'v_and_b32 v{t0}, 15, v1\ns_lshl_b32 s{S_T0}, s{S_HID}, 6\ns_lshl_b32 s{S_T1}, s{S_W}, 4\ns_add_u32 s{S_T0}, s{S_T0}, s{S_T1}\nv_add_u32 v{t0}, s{S_T0}, v{t0}\nv_lshlrev_b32 v{t0}, 3, v{t0}\nv_add_u32 v{t0}, {WS_STATS2}, v{t0}')
        e(f's_mov_b64 s[{S_M1}:{S_M1+1}], exec\ns_mov_b64 exec, s[12:13]')
        self.vmem(f'buffer_store_dwordx2 {vr(SG,2)}, v{t0}, s[{R_WS}:{R_WS+3}], 0 offen sc1', 'st2')
        e(f's_mov_b64 exec, s[{S_M1}:{S_M1+1}]')
        self.stamp(9)
        e(f's_lshl_b32 s{S_T0}, s{S_W}, 11\nv_add_u32 v{vB}, s{S_T0}, v{vB}\nv_add_u32 v{vB+1}, s{S_T0}, v{vB+1}')
        for i in range(7):
            for gp in range(2):
                for h_ in range(2):
                    self.ds(f'ds_read_b64_tr_b16 {vr(HB+8*i+4*gp+2*h_,2)}, v{vB+gp} offset:{i*8192 + 1024*h_}', f'hb{i}_{gp}')
        for i in range(7):
            for gp in range(2):
                self.wait_lg(f'hb{i}_{gp}')
                e(f's_mov_b32 s{S_T1}, {(gp*28 + 4*i)*1024}')
                self.vmem(f'buffer_store_dwordx4 {vr(HB+8*i+4*gp,4)}, v{vHs}, s[{R_WS}:{R_WS+3}], s{S_T1} offen sc1', 'hd')
        self.wait_all_vm(); e('s_barrier')
        e(f's_lshr_b32 s{S_T1}, s{S_HID}, 1\ns_lshl_b32 s{S_T1}, s{S_T1}, 4\ns_and_b32 s{S_T2}, s{S_HID}, 1\ns_add_u32 s{S_T1}, s{S_T1}, s{S_T2}\ns_add_u32 s{S_T1}, s{S_T1}, 14')
        self.signal(WS_FLAG3, f's{S_T1}')
        self.stamp(2)
        self.stamps_out()
        e('s_branch L_end')

    def signal(self, base, sidx):
        e = self.e; V = self.V
        lab = self.lab('sig')
        e(f's_cmp_lg_u32 s{S_W}, 0\ns_cbranch_scc1 {lab}')
        v = V.alloc(2, 2)
        e(f's_mul_i32 s{S_T0}, {sidx}, {FLAG_STRIDE}\ns_add_u32 s{S_T0}, s{S_T0}, {base}')
        e(f'v_mov_b32 v{v}, s{S_NONCE}\nv_mov_b32 v{v+1}, s{S_T0}')
        e(f's_mov_b64 s[{S_M1}:{S_M1+1}], exec\ns_mov_b64 exec, 1')
        e(f'buffer_store_dword v{v}, v{v+1}, s[{R_WS}:{R_WS+3}], 0 offen sc1')
        e(f's_mov_b64 exec, s[{S_M1}:{S_M1+1}]')
        V.free(v, 2)
        self.label(lab)

    def rbf(self, d, s, pre=''):
        self.e(f'v_cvt_pk_bf16_f32 v{d}, v{s}, v{s}\nv_lshlrev_b32 v{d}, 16, v{d}')
    def ln_finalize(self, S, Q, dm, ds_, dt):
        e = self.e
        e(f'v_mul_f32 v{S}, {fx(1/448)}, v{S}')
        e(f'v_mul_f32 v{Q}, {fx(1/448)}, v{Q}')
        e(f'v_fma_f32 v{Q}, -v{S}, v{S}, v{Q}')
        e(f'v_max_f32 v{Q}, 0, v{Q}')
        self.rbf(dm, S)
        self.rbf(dt, Q)
        e(f'v_add_f32 v{dt}, {fx(1e-5)}, v{dt}')
        self.rbf(dt, dt)
        e(f'v_sqrt_f32 v{dt}, v{dt}')
        self.rbf(ds_, dt)

    def w1_setup(self):
        e = self.e; V = self.V
        self.vW1 = V.alloc(1); self.vTS = V.alloc(5)
        t = V.alloc(1); t2 = V.alloc(1)
        e(f'v_lshrrev_b32 v{t}, 4, v1\nv_mul_u32_u24 v{self.vW1}, 3584, v{t}\nv_lshlrev_b32 v{t}, 2, v{t}\nv_and_b32 v{t2}, 15, v1\nv_xor_b32 v{t}, v{t}, v{t2}\nv_lshl_add_u32 v{self.vW1}, v{t}, 4, v{self.vW1}')
        e(f's_lshl_b32 s{S_T0}, s{S_FB}, 8\ns_mul_i32 s{S_T1}, s{S_W}, {4*3584}\ns_add_u32 s{S_T0}, s{S_T0}, s{S_T1}\nv_add_u32 v{self.vW1}, s{S_T0}, v{self.vW1}')
        e(f's_lshl_b32 s{S_WM}, s{S_W}, 10\ns_add_u32 s{S_WM}, s{S_WM}, {L_STG}')
        a = self.vTS
        e(f'v_lshrrev_b32 v{t}, 5, v1\nv_lshlrev_b32 v{a}, 10, v{t}\nv_bfe_u32 v{t}, v1, 2, 2\nv_lshl_add_u32 v{a}, v{t}, 8, v{a}')
        e(f'v_xor_b32 v{t}, s{S_W}, v{t}\nv_lshl_add_u32 v{a}, v{t}, 6, v{a}')
        e(f'v_bfe_u32 v{t}, v1, 4, 1\nv_lshl_add_u32 v{a}, v{t}, 5, v{a}\nv_and_b32 v{t}, 3, v1\nv_lshl_add_u32 v{a}, v{t}, 3, v{a}')
        e(f'v_add_u32 v{a+1}, {L_STGX}, v{a}\nv_add_u32 v{a+2}, {L_STG + 65536}, v{a}\nv_add_u32 v{a+3}, 57344, v{a}\nv_mov_b32 v{a+4}, v{a}\nv_add_u32 v{a}, {L_STG}, v{a}')
        for q in range(4):
            e(f's_add_u32 s{S_T0}, s{S_ROT}, {q}\ns_and_b32 s{S_T0}, s{S_T0}, 3\ns_mul_i32 s{S_Q0+q}, s{S_T0}, {7*16*3584}')
        V.free(t); V.free(t2)
    @property
    def W1SLOT(self):
        if self.o.get('xg', True):
            if self.o.get('wsched', 'B') == 'B': return [0,1,2, 3,4,5,6,7,8,9, 0,1,2, 3,4,5,6,7,8,9, 10,11, 12,13,14,15,16,17]
            return [0,1,2,3,4, 5,6,7,8,9, 0,1,2,3, 4,5,6,7,8,9, 10,11, 12,13,14,15,16,17]
        return [0,1,2,3,4, 5,6,7,8,9, 0,1,2,3,4, 0,1,2,3,5,6,7,8,9, 10,11,12,13]
    def w1_slot_off(self, k):
        s = self.W1SLOT[k]
        return s * STG_SLOT if s < 9 else (L_STGX - L_STG if s == 9 else (57344 + (s - 10)*STG_SLOT - L_STG if s < 12 else (s - 12)*STG_SLOT - L_STG))
    def w1_dma(self, k, tag, slot=None):
        e = self.e; sl = self.w1_slot_off(k)
        def m0(x): return f's_add_u32 m0, s{S_WM}, {x}' if x >= 0 else f's_sub_u32 m0, s{S_WM}, {-x}'
        return [lambda: e(f's_add_u32 s{S_WO}, s{S_Q0 + k // 7}, {(k % 7)*16*3584}'),
                lambda: e(m0(sl)),
                lambda: self.vmem(f'buffer_load_dwordx4 v{self.vW1}, s[{R_WG}:{R_WG+3}], s{S_WO} offen lds', tag),
                lambda: e(m0(sl + 4096)),
                lambda: self.vmem(f'buffer_load_dwordx4 v{self.vW1}, s[{R_WU}:{R_WU+3}], s{S_WO} offen lds', tag)]
    def w1_issue(self, k0, k1, tag):
        for k in range(k0, k1):
            for f in self.w1_dma(k, tag): f()
    def w1_reads(self, k):
        s = self.W1SLOT[k]
        if s == 9: a, sl = self.vTS + 1, 0
        elif s >= 12: a, sl = self.vTS + 4, (s - 12) * STG_SLOT
        elif s >= 10: a, sl = self.vTS + 3, (s - 10) * STG_SLOT
        else: a, sl = self.vTS, s * STG_SLOT
        assert sl + 6144 < 65536 + 8192
        out = []
        for q in range(4):
            off = sl + 2048 * q
            aa = a
            if off >= 65536: aa, off = self.vTS + 2, off - 65536
            out.append(lambda q=q, aa=aa, off=off: self.ds(f'ds_read_b64_tr_b16 {ar(8*k+2*q,2)}, v{aa} offset:{off}', 'w1r'))
        return out
    def w1_read(self, k0, k1):
        for k in range(k0, k1):
            for f in self.w1_reads(k): f()

    def phaseA(self):
        e = self.e; V = self.V; o = self.o
        self.c('================= phase A')
        par = V.alloc(6); t0 = V.alloc(1); t1 = V.alloc(1)
        e(f's_lshl_b32 s{S_T1}, s{S_CP}, 10\nv_lshl_add_u32 v{t0}, v0, 2, s{S_T1}\ns_lshl_b32 s{S_T0}, s{S_CP}, 2')
        e('s_waitcnt lgkmcnt(0)')
        for i, sp in enumerate((S_ARE, S_AIM, S_BRE, S_BIM, S_CRE, S_CIM)):
            self.vmem(f'global_load_dword v{par+i}, v{t0}, s[{sp}:{sp+1}]', 'par')
        e(f's_load_dword s{S_LD}, s[{S_LDT}:{S_LDT+1}], s{S_T0}\ns_load_dword s{S_DK}, s[{S_DSK}:{S_DSK+1}], s{S_T0}')
        self.srds()
        e(f's_mov_b32 s{S_TS+6}, s{S_M0}')
        self.stamp(0)
        XG = o.get('xg', True)
        xg = V.alloc(8); xa0 = V.alloc(1); xa1 = V.alloc(1)
        e(f's_lshl_b32 s{S_T0}, s{S_CP}, 2\nv_mul_u32_u24 v{xa0}, 7168, v0\nv_add_u32 v{xa0}, s{S_T0}, v{xa0}\nv_add_u32 v{xa1}, 4480, v{xa0}')
        def xgather(k):
            if k < 5: self.vmem(f'buffer_load_dword v{xg+k}, v{xa0}, s[{R_X}:{R_X+3}], 0 offen offset:{896*k}', 'xg')
            else: self.vmem(f'buffer_load_dword v{xg+k}, v{xa1}, s[{R_X}:{R_X+3}], 0 offen offset:{896*(k-5)}', 'xg')
        self.xgather = xgather
        tch = V.alloc(6, 2); self.tch = tch
        if o.get('touch_x', False):
            e(f's_lshl_b32 s{S_T0}, s{S_J}, 6\ns_lshl_b32 s{S_T1}, s{S_W}, 4\ns_add_u32 s{S_T0}, s{S_T0}, s{S_T1}')
            e(f'v_add_u32 v{tch}, s{S_T0}, v1\nv_mul_u32_u24 v{tch+1}, 9363, v{tch}\nv_lshrrev_b32 v{tch+1}, 16, v{tch+1}')
            e(f'v_mul_u32_u24 v{tch+2}, 7, v{tch+1}\nv_sub_u32 v{tch}, v{tch}, v{tch+2}\ns_lshl_b32 s{S_T0}, s{S_XCD}, 8\nv_add_u32 v{tch+1}, s{S_T0}, v{tch+1}')
            e(f'v_mul_u32_u24 v{tch+1}, 896, v{tch+1}\nv_lshl_add_u32 v{tch+1}, v{tch}, 7, v{tch+1}')
            e(f's_mov_b64 s[{S_M1}:{S_M1+1}], exec\ns_mov_b64 exec, 0xffff')
            self.vmem(f'buffer_load_dword v{tch+3}, v{tch+1}, s[{R_X}:{R_X+3}], 0 offen', 'tx')
            e(f's_mov_b64 exec, s[{S_M1}:{S_M1+1}]')
        self.map_bc()
        if o.get('touch_w1', False):
            e(f'v_mul_u32_u24 v{t1}, 4682, v0\nv_lshrrev_b32 v{t1}, 16, v{t1}\nv_mul_u32_u24 v{tch}, 14, v{t1}\nv_sub_u32 v{tch}, v0, v{tch}')
            e(f's_lshl_b32 s{S_T0}, s{S_J}, 4\nv_add_u32 v{t1}, s{S_T0}, v{t1}\nv_mul_u32_u24 v{t1}, 3584, v{t1}\nv_lshl_add_u32 v{t1}, v{tch}, 7, v{t1}')
            e(f's_and_b32 s{S_T0}, s{S_XCD}, 1\ns_mul_i32 s{S_T0}, s{S_T0}, 1792\nv_add_u32 v{t1}, s{S_T0}, v{t1}')
            e(f'v_cmp_gt_u32 vcc, 224, v0\ns_and_saveexec_b64 s[{S_M1}:{S_M1+1}], vcc')
            la = self.lab('tw'); e(f's_cbranch_execz {la}')
            self.vmem(f'buffer_load_dword v{tch}, v{t1}, s[{R_WG}:{R_WG+3}], 0 offen', 'tw')
            self.vmem(f'buffer_load_dword v{tch+1}, v{t1}, s[{R_WU}:{R_WU+3}], 0 offen', 'tw')
            self.label(la); e(f's_mov_b64 exec, s[{S_M1}:{S_M1+1}]')
        self.w1_setup()
        TW = o.get('touch_w1', False)
        if XG:
            for k in range(o.get('xg0', 4)): xgather(k)
        elif not TW: self.w1_issue(0, o.get('w0', 2), 'wa')
        self.stamp(1)
        ga = V.alloc(12, 2)
        self.ga = ga
        e(f'v_lshlrev_b32 v{t0}, 3, v0\nv_sub_u32 v{t0}, 2048, v{t0}')
        for k in range(1, 12):
            e(f'v_subrev_u32 v{ga+k-1}, {k}, v{t0}')
        e(f'v_mov_b32 v{ga+11}, 0')
        tt = V.alloc(2, 2)
        for k in range(0, 12, 2):
            a, b = ga + k, ga + k + 1
            e(f'v_max_i32 v{tt}, 0, v{a}\nv_max_i32 v{tt+1}, 0, v{b}')
            e(f'v_cvt_f32_u32 v{tt}, v{tt}\nv_cvt_f32_u32 v{tt+1}, v{tt+1}')
            e(f'v_cvt_pk_bf16_f32 v{t1}, v{tt}, v{tt+1}')
            e(f'v_lshlrev_b32 v{tt}, 16, v{t1}\nv_and_b32 v{tt+1}, 0xffff0000, v{t1}')
            e(f'v_cvt_u32_f32 v{tt}, v{tt}\nv_cvt_u32_f32 v{tt+1}, v{tt+1}')
            for x, r in ((tt, a), (tt + 1, b)):
                e(f'v_lshrrev_b32 v{t1}, 3, v{x}\nv_add_u32 v{x}, v{x}, v{t1}')
                if k >= 8:
                    e(f'v_cmp_gt_i32 vcc, 0, v{r}\nv_mov_b32 v{t1}, 2320\nv_cndmask_b32 v{x}, v{x}, v{t1}, vcc')
                e(f'v_lshlrev_b32 v{x}, 2, v{x}\nv_add_u32 v{r}, {L_K32}, v{x}')
        V.free(tt, 2)
        e('s_waitcnt lgkmcnt(0)'); self.lg.drain()
        e(f's_lshr_b32 s{S_T0}, s{S_W}, 1\ns_lshl_b32 s{S_T0}, s{S_T0}, 4')
        e(f's_lshr_b32 s{S_LD}, s{S_LD}, s{S_T0}\ns_lshl_b32 s{S_LD}, s{S_LD}, 16')
        e(f's_lshr_b32 s{S_DK}, s{S_DK}, s{S_T0}\ns_lshl_b32 s{S_DK}, s{S_DK}, 16')
        dt = V.alloc(2, 2); tt = V.alloc(2, 2)
        L_hi = struct.unpack('<f', struct.pack('<f', LOG2E))[0]; L_lo = LOG2E - L_hi
        e(f'v_mov_b32 v{dt}, s{S_LD}\nv_mul_f32 v{tt}, {fx(L_hi)}, v{dt}')
        e(f's_mov_b32 s{S_T1}, {fx(L_hi)}')
        e(f'v_fma_f32 v{tt+1}, v{dt}, s{S_T1}, -v{tt}\nv_fmac_f32 v{tt+1}, {fx(L_lo)}, v{dt}')
        e(f'v_exp_f32 v{tt}, v{tt}\nv_mul_f32 v{tt+1}, {fx(math.log(2))}, v{tt+1}')
        e(f'v_fma_f32 v{dt}, v{tt}, v{tt+1}, v{tt}')
        self.rbf(dt, dt)
        V.free(tt, 2)
        nx0 = o.get('xg0', 4)
        if XG and o.get('xgmid', False): xgather(nx0); nx0 += 1
        ka = self.kgen_setup()
        cv = self.conv_setup()
        xo = V.alloc(1)
        e(f's_lshr_b32 s{S_T0}, s{S_CP}, 2\ns_lshl_b32 s{S_T0}, s{S_T0}, 15\ns_and_b32 s{S_T1}, s{S_CP}, 3\ns_lshl_b32 s{S_T1}, s{S_T1}, 5\ns_add_u32 s{S_T0}, s{S_T0}, s{S_T1}\ns_add_u32 s{S_T0}, s{S_T0}, {WS_XT}\nv_lshl_add_u32 v{xo}, v0, 7, s{S_T0}')
        sa = V.alloc(1); nv = V.alloc(2, 2); lp = V.alloc(2, 2)
        e(f'v_lshlrev_b32 v{sa}, 6, v0\nv_mov_b32 v{nv+1}, 0')
        e(f'v_and_b32 v{lp+1}, 31, v1\nv_lshlrev_b32 v{lp+1}, 7, v{lp+1}\ns_lshl_b32 s{S_T0}, s{S_W}, 12\ns_add_u32 s{S_T0}, s{S_T0}, {WS_STATS + 4}\nv_add_u32 v{lp+1}, s{S_T0}, v{lp+1}')
        if WS_STATS: e(f'v_add_u32 v{sa}, {WS_STATS}, v{sa}')
        xs = list(range(nx0, 8))
        if XG and xs: xgather(xs.pop(0))
        self.wait_vm('par')
        self.stamp(2)
        save_lines = self.lines; self.lines = []
        sc = V.alloc(12, 2)
        e(f'v_lshlrev_b32 v{sc+4}, 16, v{par+2}\nv_and_b32 v{sc+6}, 0xffff0000, v{par+2}')
        e(f'v_lshlrev_b32 v{sc+5}, 16, v{par+3}\nv_and_b32 v{sc+7}, 0xffff0000, v{par+3}')
        e(f'v_lshlrev_b32 v{sc+8}, 16, v{par+4}\nv_and_b32 v{sc+10}, 0xffff0000, v{par+4}')
        e(f'v_lshlrev_b32 v{sc+9}, 16, v{par+5}\nv_and_b32 v{sc+11}, 0xffff0000, v{par+5}')
        e(f'v_lshlrev_b32 v{sc}, 16, v{par}\nv_and_b32 v{sc+1}, 0xffff0000, v{par}')
        e(f'v_lshlrev_b32 v{sc+2}, 16, v{par+1}\nv_and_b32 v{sc+3}, 0xffff0000, v{par+1}')
        V.free(par, 6)
        for i in (4, 5, 6, 7, 0, 1, 2, 3): e(f'v_mul_f32 v{sc+i}, v{dt}, v{sc+i}')
        V.free(dt, 2)
        Q = lambda: V.alloc(4, 4)
        tq = Q(); pkt = V.alloc(4, 2); npk = [0]
        def qmul(d, a, b):
            self.cmul_multi([(d, a, b, None), (d + 2, a + 2, b + 2, None)])
        CB = Q()
        qmul(CB, sc + 8, sc + 4)
        mx = V.alloc(2, 2)
        e(f'v_max_f32 v{mx}, |v{CB}|, |v{CB+1}|\nv_max_f32 v{mx+1}, |v{CB+2}|, |v{CB+3}|')
        e(f'v_mul_f32 v{sc}, {fx(LOG2E)}, v{sc}\nv_mul_f32 v{sc+1}, {fx(LOG2E)}, v{sc+1}')
        e(f'v_max_f32 v{mx}, v{mx}, v{mx+1}')
        e(f'v_mul_f32 v{sc+2}, {fx(1/(2*math.pi))}, v{sc+2}\nv_mul_f32 v{sc+3}, {fx(1/(2*math.pi))}, v{sc+3}')
        for mod in ('quad_perm:[1,0,3,2]', 'quad_perm:[2,3,0,1]', 'row_half_mirror', 'row_mirror'):
            e(f'v_max_f32_dpp v{mx}, v{mx}, v{mx} {mod} row_mask:0xf bank_mask:0xf')
        for swap in ('v_permlane16_swap_b32', 'v_permlane32_swap_b32'):
            e(f'v_mov_b32 v{mx+1}, v{mx}\n{swap} v{mx}, v{mx+1}\nv_max_f32 v{mx}, v{mx}, v{mx+1}')
        e(f'v_readfirstlane_b32 s{S_T0}, v{mx}')
        e(f's_lshr_b32 s{S_T0}, s{S_T0}, 23\ns_max_u32 s{S_T0}, s{S_T0}, 14\ns_min_u32 s{S_T0}, s{S_T0}, 254')
        e(f's_sub_u32 s{S_T1}, 267, s{S_T0}\ns_lshl_b32 s{S_T1}, s{S_T1}, 23\ns_sub_u32 s{S_US}, s{S_T0}, 13\ns_lshl_b32 s{S_US}, s{S_US}, 23')
        V.free(mx, 2)
        if XG:
            if xs: xgather(xs.pop(0))
        elif not TW: self.w1_issue(o.get('w0', 2), 5, 'wa2')
        def direct(dst, ex):
            for m in range(2):
                if ex == 1:
                    e(f'v_exp_f32 v{tq+m}, v{sc+m}\nv_fract_f32 v{tq+2+m}, v{sc+2+m}')
                else:
                    e(f'v_mul_f32 v{tq+m}, {fx(float(ex))}, v{sc+m}\nv_mul_f32 v{tq+2+m}, {fx(float(ex))}, v{sc+2+m}')
            if ex != 1:
                for m in range(2): e(f'v_exp_f32 v{tq+m}, v{tq+m}\nv_fract_f32 v{tq+2+m}, v{tq+2+m}')
            for m in range(2):
                e(f'v_cos_f32 v{dst+2*m}, v{tq+2+m}\nv_sin_f32 v{dst+2*m+1}, v{tq+2+m}')
            for m in range(2):
                e(f'v_mul_f32 v{dst+2*m}, v{tq+m}, v{dst+2*m}\nv_mul_f32 v{dst+2*m+1}, v{tq+m}, v{dst+2*m+1}')
        wa = V.alloc(1)
        e(f'v_and_b32 v{wa}, 127, v0\nv_lshlrev_b32 v{wa}, 3, v{wa}\ns_lshr_b32 s{S_T0}, s{S_W}, 1\ns_mul_i32 s{S_T0}, s{S_T0}, {TBL_C}\nv_add_u32 v{wa}, s{S_T0}, v{wa}')
        def put(q, ent, conj=False):
            p = pkt + 2 * (npk[0] & 1); npk[0] += 1
            n = '-' if conj else ''
            e(f'v_cvt_pk_f16_f32 v{p}, v{q}, {n}v{q+1}\nv_cvt_pk_f16_f32 v{p+1}, v{q+2}, {n}v{q+3}')
            self.ds(f'ds_write_b64 v{wa}, {vr(p,2)} offset:{ent*TBL_E}')
        one = V.alloc(2, 2)
        e(f'v_mov_b32 v{one}, 0x3c00\nv_mov_b32 v{one+1}, 0x3c00')
        for ent in (0, 4, 12): self.ds(f'ds_write_b64 v{wa}, {vr(one,2)} offset:{ent*TBL_E}')
        V.free(one, 2)
        z1 = Q(); z2 = Q(); z3 = Q(); z4 = Q(); CS = Q()
        direct(z1, 1); put(z1, 1)
        for m in range(4): e(f'v_mul_f32 v{CS+m}, s{S_T1}, v{CB+m}')
        put(CS, 8, True)
        qmul(z2, z1, z1); put(z2, 2)
        qmul(z3, z2, z1); put(z3, 3)
        qmul(z4, z2, z2); put(z4, 5)
        qmul(z1, z4, z4); put(z1, 6)
        qmul(z2, z1, z4); put(z2, 7)
        qmul(z3, z1, z1); put(z3, 16)
        qmul(z1, z3, z3)
        qmul(z4, CS, z1); put(z4, 9, True)
        qmul(z2, z1, z1)
        qmul(z4, CS, z2); put(z4, 10, True)
        qmul(z3, z2, z1)
        qmul(z4, CS, z3); put(z4, 11, True)
        qmul(z1, z2, z2); put(z1, 13, True)
        qmul(z2, z1, z1); put(z2, 14, True)
        qmul(z3, z2, z1); put(z3, 15, True)
        qmul(z1, z2, z2); put(z1, 17, True)
        if XG and xs: xgather(xs.pop(0))
        self.xs = xs
        qmul(z2, z1, z1)
        qmul(z3, z2, z2)
        c48 = V.alloc(2, 2)
        e(f'v_mul_f32 v{c48}, v{CB}, v{z3}\nv_fma_f32 v{c48}, -v{CB+1}, v{z3+1}, v{c48}')
        e(f'v_fmac_f32 v{c48}, v{CB+2}, v{z3+2}\nv_fma_f32 v{c48}, -v{CB+3}, v{z3+3}, v{c48}')
        for q in (z1, z2, z3, z4, CB, CS, tq): V.free(q, 4)
        V.free(sc, 12); V.free(wa); V.free(pkt, 4)
        for mod in ('quad_perm:[1,0,3,2]', 'quad_perm:[2,3,0,1]', 'row_half_mirror', 'row_mirror'):
            e(f'v_add_f32_dpp v{c48}, v{c48}, v{c48} {mod} row_mask:0xf bank_mask:0xf')
        for swap in ('v_permlane16_swap_b32', 'v_permlane32_swap_b32'):
            e(f'v_mov_b32 v{c48+1}, v{c48}\n{swap} v{c48}, v{c48+1}\nv_add_f32 v{c48}, v{c48}, v{c48+1}')
        fl = self.lines; self.lines = save_lines
        self.lines.extend(resched(fl) if o.get('resched', True) else fl)
        if not TW and not XG: self.wait_vm('wa')
        self.wait_all_lg(); e('s_barrier')
        self.stamp(3)
        sg = V.alloc(16, 4); XP = V.alloc(8, 4)
        def light_loads(model=True):
            a = f'buffer_load_dword v{nv}, v{nv+1}, s[{R_DBG}:{R_DBG+3}], 0 offen sc1'
            b = f'buffer_load_dword v{lp}, v{lp+1}, s[{R_WS}:{R_WS+3}], 0 offen sc1'
            if model: self.vmem(a, 'lp'); self.vmem(b, 'lp')
            else: e(a); e(b)
        def light_wait():
            l0 = self.lab('lp'); l1 = self.lab('lpd'); l2 = self.lab('lpr')
            self.wait_vm('lp')
            e(f's_mov_b32 s{S_CNT}, 0')
            self.label(l0)
            e(f'v_readfirstlane_b32 s{S_NONCE}, v{nv}')
            e(f's_cmp_eq_u32 s{S_NONCE}, 0\ns_cbranch_scc1 {l2}')
            e(f'v_cmp_ne_u32 vcc, s{S_NONCE}, v{lp}\ns_cbranch_vccz {l1}')
            self.label(l2)
            e(f's_sleep {o.get("lsleep", 2)}')
            light_loads(False)
            e('s_waitcnt vmcnt(0)')
            e(f's_add_u32 s{S_CNT}, s{S_CNT}, 1\ns_cmp_lt_u32 s{S_CNT}, {SPIN_MAX}\ns_cbranch_scc1 {l0}')
            self.label(l1)
        def data_loads():
            for i in range(4): self.vmem(f'buffer_load_dwordx4 {vr(sg+4*i,4)}, v{sa}, s[{R_WS}:{R_WS+3}], 0 offen offset:{16*i} sc1', 'sg')
            self.vmem(f'buffer_load_dwordx4 {vr(XP,4)}, v{xo}, s[{R_WS}:{R_WS+3}], 0 offen sc1', 'sg')
            self.vmem(f'buffer_load_dwordx4 {vr(XP+4,4)}, v{xo}, s[{R_WS}:{R_WS+3}], 0 offen offset:16 sc1', 'sg')
        EARLY = o.get('early', True); WB = o.get('wsched', 'B') == 'B'
        self.light_loads = light_loads
        def full_poll():
            return [lambda: self.vmem(f'buffer_load_dword v{nv}, v{nv+1}, s[{R_DBG}:{R_DBG+3}], 0 offen sc1', 'sg')] + \
                   [lambda i=i: self.vmem(f'buffer_load_dwordx4 {vr(sg+4*i,4)}, v{sa}, s[{R_WS}:{R_WS+3}], 0 offen offset:{16*i} sc1', 'sg') for i in range(4)]
        self.full_poll = full_poll
        def after_main():
            if XG: return
            if EARLY: light_wait(); data_loads()
            else: light_loads()
            if TW: self.wait_vm('wa')
            else: self.wait_vm('wa2')
        def after_b2a():
            if XG:
                if WB: self.w1_issue(1, 3, 'wa')
                else: self.w1_issue(3, 5, 'wa')
                return
            if TW: self.w1_read(0, 5)
            else: self.w1_read(o.get('w0', 2), 5)
            self.w1_issue(8, 9, 'wb')
        self.kgen_main(ka, c48, after_main, after_b2a)
        V.free(c48, 2)
        self.wait_all_lg(); e('s_barrier')
        self.stamp(4)
        gat = self.expand_gather()
        if not XG and not EARLY: light_wait(); data_loads()
        V.free(lp, 2)
        self.stamp(7)
        if XG: self.w1_issue(*( (3, 4) if WB else (5, 6) ), 'wb')
        else: self.w1_issue(9, 10, 'wb')
        self.expand_write(gat)
        if XG: self.w1_issue(*( (4, 5) if WB else (6, 7) ), 'wb')
        else: self.w1_issue(10, 11, 'wc')
        self.stamp(5)
        if XG:
            self.wait_vm('xg')
            e(f's_mov_b32 s{S_T0}, 0x05040100\ns_mov_b32 s{S_T1}, 0x07060302')
            for d in range(4):
                e(f'v_perm_b32 v{XP+d}, v{xg+2*d+1}, v{xg+2*d}, s{S_T0}\nv_perm_b32 v{XP+4+d}, v{xg+2*d+1}, v{xg+2*d}, s{S_T1}')
            self.verify_stats(sg, sa, nv, with_nonce=True)
        else: self.verify_stats(sg, sa, nv)
        V.free(nv, 2); V.free(xo); V.free(xg, 8); V.free(xa0); V.free(xa1)
        self.region(lambda: self.normalize(XP, sg))
        V.free(sg, 16); V.free(sa); V.free(XP, 8)
        if XG: self.wait_vm('wa')
        self.wait_all_lg(); e('s_barrier')
        self.stamp(6)
        if XG: self.w1_read(0, 3 if WB else 5)
        if o.get('touch_wd2', False):
            ta = V.alloc(2)
            for q in range(2):
                e(f'v_add_u32 v{ta}, {224*q}, v0\nv_mul_u32_u24 v{ta+1}, 9363, v{ta}\nv_lshrrev_b32 v{ta+1}, 16, v{ta+1}\nv_mul_u32_u24 v{tch+q}, 7, v{ta+1}\nv_sub_u32 v{ta}, v{ta}, v{tch+q}')
                e(f's_lshl_b32 s{S_T0}, s{S_J}, 6\nv_add_u32 v{ta+1}, s{S_T0}, v{ta+1}\nv_mul_u32_u24 v{ta+1}, 896, v{ta+1}\nv_lshl_add_u32 v{ta+1}, v{ta}, 7, v{ta+1}')
                e(f'v_cmp_gt_u32 vcc, 224, v0\ns_and_saveexec_b64 s[{S_M1}:{S_M1+1}], vcc')
                la = self.lab('td'); e(f's_cbranch_execz {la}')
                e(f'buffer_load_dword v{tch+2+q}, v{ta+1}, s[{R_WD}:{R_WD+3}], 0 offen')
                self.label(la); e(f's_mov_b64 exec, s[{S_M1}:{S_M1+1}]')
            V.free(ta, 2)
        fill = []
        for k in ((range(5, 10) if WB else range(7, 10)) if XG else range(11, 14)): fill += self.w1_dma(k, 'wc')
        self.conv(cv, fill)
        V.free(t0); V.free(t1)
        self.stamp(8)
        self.wait_vm('ht'); self.wait_all_lg(); e('s_barrier')
        self.signal(WS_FLAG2, 's2')
        self.stamp(9)
        V.free(tch, 6)
        HCS = o.get('hcs', False)
        self.cs = V.alloc(32, 4); self.ones = V.alloc(4, 4)
        for i in range(4): e(f'v_mov_b32 v{self.ones+i}, 0x3f803f80')
        _, setup = self.capture(self.phaseB_setup)
        self.K0 = 10 if XG else 14
        dma = [f for k in range((13 if WB else 14) if XG else 15, 28) for f in self.w1_dma(k, 'we')]
        mains = []
        if not HCS:
            for k in range(self.K0):
                for u in range(2):
                    c = '0' if k == 0 else vr(self.cs + 16*u, 16)
                    mains.append(([], lambda k=k, u=u, c=c: e(f'v_mfma_f32_32x32x16_bf16 {vr(self.cs+16*u,16)}, {vr(self.ones,4)}, {ar(8*k+4*u,4)}, {c}'), 32, []))
        merged = []
        while dma or setup:
            for _ in range(2):
                if dma: merged.append(dma.pop(0))
            for _ in range(5):
                if setup: merged.append(setup.pop(0))
        if mains: self.sched(mains, [(x, 1) for x in merged])
        else:
            for x in merged: x()
        self.stamp(12)

    def cs_mfma(self, k0, k1):
        for k in range(k0, k1):
            for u in range(2):
                c = '0' if k == 0 else vr(self.cs + 16*u, 16)
                self.e(f'v_mfma_f32_32x32x16_bf16 {vr(self.cs+16*u,16)}, {vr(self.ones,4)}, {ar(8*k+4*u,4)}, {c}')

    def verify_stats(self, sg, sa, nv, with_nonce=False):
        e = self.e; V = self.V
        l0 = self.lab('sp'); l1 = self.lab('spd')
        t = V.alloc(2)
        self.wait_vm('sg')
        e(f's_mov_b32 s{S_CNT}, 0')
        self.label(l0)
        l2 = self.lab('spr')
        if with_nonce:
            e(f'v_readfirstlane_b32 s{S_NONCE}, v{nv}')
            e(f's_cmp_eq_u32 s{S_NONCE}, 0\ns_cbranch_scc1 {l2}')
        e(f'v_min3_u32 v{t}, v{sg+1}, v{sg+3}, v{sg+5}\nv_max3_u32 v{t+1}, v{sg+1}, v{sg+3}, v{sg+5}')
        e(f'v_min3_u32 v{t}, v{t}, v{sg+7}, v{sg+9}\nv_max3_u32 v{t+1}, v{t+1}, v{sg+7}, v{sg+9}')
        e(f'v_min3_u32 v{t}, v{t}, v{sg+11}, v{sg+13}\nv_max3_u32 v{t+1}, v{t+1}, v{sg+11}, v{sg+13}')
        e(f'v_min_u32 v{t}, v{t}, v{sg+15}\nv_max_u32 v{t+1}, v{t+1}, v{sg+15}')
        e(f'v_xor_b32 v{t}, s{S_NONCE}, v{t}\nv_xor_b32 v{t+1}, s{S_NONCE}, v{t+1}\nv_or_b32 v{t}, v{t}, v{t+1}\nv_cmp_ne_u32 vcc, 0, v{t}')
        e(f's_cbranch_vccz {l1}')
        self.label(l2)
        if with_nonce: e(f's_sleep 2\nbuffer_load_dword v{nv}, v{nv+1}, s[{R_DBG}:{R_DBG+3}], 0 offen sc1')
        for i in range(4): e(f'buffer_load_dwordx4 {vr(sg+4*i,4)}, v{sa}, s[{R_WS}:{R_WS+3}], 0 offen offset:{16*i} sc1')
        e('s_waitcnt vmcnt(0)')
        e(f's_add_u32 s{S_CNT}, s{S_CNT}, 1\ns_cmp_lt_u32 s{S_CNT}, {SPIN_MAX}\ns_cbranch_scc1 {l0}')
        self.label(l1)
        V.free(t, 2)

    def map_bc(self):
        e = self.e
        if self.o.get('mapB', '47') == 'rows':
            e(f's_cmp_ge_u32 s{S_J}, 14\ns_cselect_b32 s{S_T0}, 1, 0\ns_lshl_b32 s{S_RB}, s{S_XCD}, 1\ns_add_u32 s{S_RB}, s{S_RB}, s{S_T0}')
            e(f's_mul_i32 s{S_T0}, s{S_T0}, 14\ns_sub_u32 s{S_FB}, s{S_J}, s{S_T0}')
        else:
            e(f's_mul_i32 s{S_T0}, s{S_J}, 37\ns_lshr_b32 s{S_T0}, s{S_T0}, 8')
            e(f's_lshr_b32 s{S_RB}, s{S_XCD}, 1\ns_lshl_b32 s{S_RB}, s{S_RB}, 2\ns_add_u32 s{S_RB}, s{S_RB}, s{S_T0}')
            e(f's_mul_i32 s{S_T0}, s{S_T0}, 7\ns_sub_u32 s{S_FB}, s{S_J}, s{S_T0}\ns_and_b32 s{S_T0}, s{S_XCD}, 1\ns_mul_i32 s{S_T0}, s{S_T0}, 7\ns_add_u32 s{S_FB}, s{S_FB}, s{S_T0}')
        if self.o.get('rot', True): e(f's_and_b32 s{S_ROT}, s{S_RB}, 3')
        else: e(f's_mov_b32 s{S_ROT}, 0')
        e(f's_mul_i32 s{S_T0}, s{S_J}, 37\ns_lshr_b32 s{S_T0}, s{S_T0}, 8')
        e(f's_lshl_b32 s{S_RB2}, s{S_XCD}, 2\ns_add_u32 s{S_RB2}, s{S_RB2}, s{S_T0}\ns_mul_i32 s{S_T0}, s{S_T0}, 7\ns_sub_u32 s{S_DB}, s{S_J}, s{S_T0}')

    def kgen_setup(self):
        e = self.e; V = self.V
        aLo = V.alloc(1); aHi = V.alloc(1); aC = V.alloc(1); t = V.alloc(1)
        aEx = V.alloc(2); aS = V.alloc(2); aK = V.alloc(2)
        e(f's_lshr_b32 s{S_T0}, s{S_W}, 1\ns_mul_i32 s{S_T0}, s{S_T0}, {TBL_C}\ns_and_b32 s{S_T1}, s{S_W}, 1\ns_lshl_b32 s{S_T1}, s{S_T1}, 9\ns_add_u32 s{S_T0}, s{S_T0}, s{S_T1}')
        e(f'v_lshrrev_b32 v{t}, 4, v1\nv_lshlrev_b32 v{aC}, 4, v{t}\nv_add_u32 v{aC}, s{S_T0}, v{aC}')
        e(f'v_and_b32 v{t}, 3, v1\nv_mul_u32_u24 v{t}, {TBL_E}, v{t}\nv_add_u32 v{aLo}, v{aC}, v{t}')
        e(f'v_bfe_u32 v{t}, v1, 2, 2\nv_mul_u32_u24 v{t}, {TBL_E}, v{t}\nv_add_u32 v{aHi}, v{aC}, v{t}')
        e(f's_lshl_b32 s{S_T0}, s{S_W}, 12\ns_add_u32 s{S_T0}, s{S_T0}, {L_EX}\nv_lshl_add_u32 v{aEx}, v1, 4, s{S_T0}')
        e(f's_xor_b32 s{S_T1}, s{S_W}, 1\ns_lshl_b32 s{S_T0}, s{S_T1}, 12\ns_add_u32 s{S_T0}, s{S_T0}, {L_EX}\nv_lshl_add_u32 v{aEx+1}, v1, 4, s{S_T0}')
        e(f's_lshl_b32 s{S_T0}, s{S_W}, 2\ns_add_u32 s{S_T0}, s{S_T0}, {L_EX + 16384}\nv_mov_b32 v{aS}, s{S_T0}')
        e(f's_lshl_b32 s{S_T0}, s{S_T1}, 2\ns_add_u32 s{S_T0}, s{S_T0}, {L_EX + 16384}\nv_mov_b32 v{aS+1}, s{S_T0}')
        e(f'v_and_b32 v{aK}, 15, v1\nv_lshrrev_b32 v{t}, 3, v{aK}\nv_add_u32 v{aK}, v{aK}, v{t}')
        e(f'v_lshrrev_b32 v{t}, 4, v1\nv_mul_u32_u24 v{t}, 144, v{t}\nv_add_u32 v{aK}, v{aK}, v{t}\nv_lshlrev_b32 v{aK}, 2, v{aK}')
        e(f's_lshr_b32 s{S_T0}, s{S_W}, 1\ns_mul_i32 s{S_T0}, s{S_T0}, {K32_C}\ns_add_u32 s{S_T0}, s{S_T0}, {L_K32}\nv_mov_b32 v{aK+1}, s{S_T0}')
        e(f's_and_b32 s{S_T1}, s{S_W}, 1\ns_mul_i32 s{S_T1}, s{S_T1}, {4*576*2}\ns_add_u32 s{S_T1}, s{S_T1}, s{S_T0}\nv_add_u32 v{aK}, s{S_T1}, v{aK}')
        V.free(t)
        return (aLo, aHi, aC, aEx, aS, aK)

    def kgen_main(self, ka, c48, after_main, after_b2a):
        e = self.e; V = self.V
        self.c('---- kgen main (f16 operands)')
        aLo, aHi, aC, aEx, aS, aK = ka
        TB = [[V.alloc(4, 4) for _ in range(6)] for _ in range(2)]
        tmp = V.alloc(4, 4)
        PV = [[V.alloc(4, 4) for _ in range(2)] for _ in range(2)]
        PW = [V.alloc(4, 4) for _ in range(4)]
        D = [[V.alloc(4, 4) for s in range(2)] for t_ in range(4)]
        ents = ((aLo, 0), (aHi, 4), (aC, 16), (aLo, 8), (aHi, 12), (aC, 17))
        def rd(st, i):
            ad, ent = ents[i]
            self.ds(f'ds_read_b128 {vr(TB[st&1][i],4)}, v{ad} offset:{ent*TBL_E + st*64}', f'tb{st}')
        def cm(d, a, b):
            L = [f'v_pk_mul_f16 v{tmp+c}, v{a+c}, v{b+c} op_sel:[0,0] op_sel_hi:[0,1]' for c in range(4)]
            L += [f'v_pk_fma_f16 v{d+c}, v{a+c}, v{b+c}, v{tmp+c} op_sel:[1,1,0] op_sel_hi:[1,0,1] neg_lo:[0,1,0]' for c in range(4)]
            return L
        for i in range(6): rd(0, i)
        pend = []
        for st in range(8):
            T1, T2, Z16, T3, T4, Z512 = TB[st & 1]; pv = PV[st & 1]
            extra = []
            if st + 1 < 8: extra += [lambda i=i, st=st: rd(st + 1, i) for i in range(6)]
            if self.o.get('xg', True):
                if st in (1, 3, 4, 5) and self.xs: extra += [lambda k=self.xs.pop(0): self.xgather(k)]
                if st == self.o.get('pollstep', 6): extra += self.full_poll()
                wst = self.o.get('wst', [7] if self.o.get('wsched', 'B') == 'B' else [4, 6, 7])
                if st in wst: extra += self.w1_dma(wst.index(st), 'wa')
            else:
                if st == self.o.get('pollstep', 5) and self.o.get('early', True): extra += [lambda: self.light_loads()]
                if not self.o.get('touch_w1', False):
                    if st < self.o.get('w0', 2): extra += self.w1_reads(st)
                    ks = self.o.get('kdma', [0, 1, 2])
                    if st in ks: extra += self.w1_dma(5 + ks.index(st), 'wb')
                else:
                    extra += self.w1_dma(st, 'wa' if st < 5 else 'wb')
            self.wait_lg(f'tb{st}')
            blocks = [cm(pv[0], T1, T2), cm(pv[1], pv[0], Z16), cm(PW[0], T3, T4)]
            for tt in range(1, 4): blocks.append(cm(PW[tt], PW[tt-1], Z512))
            def popm():
                if pend:
                    pend.pop(0)()
                    for _ in range(2):
                        if extra: extra.pop(0)()
            for bi, ins in enumerate(blocks):
                for q, l in enumerate(ins):
                    e(l)
                    if q in (1, 5): popm()
                if bi >= 2:
                    tt = bi - 2
                    for s in range(2):
                        cin = '0' if st == 0 else vr(D[tt][s], 4)
                        pend.append(lambda tt=tt, s=s, cin=cin, pv=pv: e(f'v_mfma_f32_16x16x32_f16 {vr(D[tt][s],4)}, {vr(PW[tt],4)}, {vr(pv[s],4)}, {cin}'))
            while len(pend) > 2: popm()
            for x in extra: x()
        while pend: pend.pop(0)()
        self.stamp(13)
        after_main()
        us = V.alloc(2, 2)
        e(f'v_mov_b32 v{us}, s{S_US}')
        R4 = TB[0][:4]; Va = tmp
        def exch(half):
            snd = [(t_, s) for t_ in (2 - 2*half, 3 - 2*half) for s in range(2)]
            kp = [(t_, s) for t_ in (2*half, 2*half + 1) for s in range(2)]
            for i, (t_, s) in enumerate(snd):
                for r in (0, 2): e(f'v_pk_mul_f32 {vr(D[t_][s]+r,2)}, {vr(D[t_][s]+r,2)}, {vr(us,2)} op_sel_hi:[1,0]')
                self.ds(f'ds_write_b128 v{aEx}, {vr(D[t_][s],4)} offset:{1024*i}', 'exw')
            e(f's_mov_b64 s[{S_M1}:{S_M1+1}], exec\ns_mov_b64 exec, 1')
            self.ds(f'ds_write_b32 v{aS}, v{c48}', 'exw')
            e(f's_mov_b64 exec, s[{S_M1}:{S_M1+1}]')
            self.wait_all_lg()
            e('s_barrier')
            for i in range(4): self.ds(f'ds_read_b128 {vr(R4[i],4)}, v{aEx+1} offset:{1024*i}', f'ex{i}')
            self.ds(f'ds_read_b32 v{Va}, v{aS+1}', 'exc')
            for i, (t_, s) in enumerate(kp):
                self.wait_lg(f'ex{i}')
                for r in (0, 2): e(f'v_pk_fma_f32 {vr(D[t_][s]+r,2)}, {vr(D[t_][s]+r,2)}, {vr(us,2)}, {vr(R4[i]+r,2)} op_sel_hi:[1,0,1]')
                for r in range(4):
                    self.ds(f'ds_write_b32 v{aK}, v{D[t_][s]+r} offset:{4*(576*(i >> 1) + 36*r + 18*s)}')
            self.wait_lg('exc')
            e(f'v_add_f32 v{c48}, v{c48}, v{Va}\nv_mov_b32 v{c48+1}, 0')
            e(f's_mov_b64 s[{S_M1}:{S_M1+1}], exec\ns_mov_b64 exec, 1')
            self.ds(f'ds_write_b32 v{aK+1}, v{c48} offset:9216')
            self.ds(f'ds_write_b32 v{aK+1}, v{c48+1} offset:9280')
            e(f's_mov_b64 exec, s[{S_M1}:{S_M1+1}]')
        self.two_paths(exch)
        after_b2a()
        V.free(us, 2)
        for row in TB + PV:
            for x in row: V.free(x, 4)
        for x in PW: V.free(x, 4)
        V.free(tmp, 4)
        for row in D:
            for x in row: V.free(x, 4)
        for x in (aLo, aHi, aC): V.free(x)
        V.free(aEx, 2); V.free(aS, 2); V.free(aK, 2)

    def expand_gather(self):
        e = self.e; V = self.V; ga = self.ga
        self.c('---- expand K into 4 shifted bf16 copies')
        z = V.alloc(4, 4); t = V.alloc(1); t2 = V.alloc(1)
        g = V.alloc(22, 2)
        for i in range(4): e(f'v_mov_b32 v{z+i}, 0')
        e(f'v_lshrrev_b32 v{t}, 2, v0\nv_mul_u32_u24 v{t}, {KC_S}, v{t}\nv_and_b32 v{t2}, 3, v0\nv_lshl_add_u32 v{t}, v{t2}, 4, v{t}')
        e(f'v_cmp_gt_u32 vcc, 32, v0\ns_and_saveexec_b64 s[{S_M1}:{S_M1+1}], vcc')
        la = self.lab('zc'); e(f's_cbranch_execz {la}')
        e(f'ds_write_b128 v{t}, {vr(z,4)} offset:{L_KC + 4096}')
        self.label(la); e(f's_mov_b64 exec, s[{S_M1}:{S_M1+1}]')
        e(f'v_lshrrev_b32 v{t}, 6, v0\nv_mul_u32_u24 v{t}, {U_C}, v{t}\nv_lshl_add_u32 v{t}, v1, 4, v{t}')
        e(f'v_cmp_gt_u32 vcc, 128, v0\ns_and_saveexec_b64 s[{S_M1}:{S_M1+1}], vcc')
        la = self.lab('zu'); e(f's_cbranch_execz {la}')
        e(f'ds_write_b128 v{t}, {vr(z,4)} offset:{L_U}')
        self.label(la); e(f's_mov_b64 exec, s[{S_M1}:{S_M1+1}]')
        for k in range(11): self.ds(f'ds_read_b32 v{g+k}, v{ga+k} offset:0', 'g0')
        for k in range(11): self.ds(f'ds_read_b32 v{g+11+k}, v{ga+k} offset:{K32_C}', 'g1')
        V.free(t); V.free(t2); V.free(z, 4)
        return g
    def expand_write(self, g):
        e = self.e; V = self.V; ga = self.ga
        P = V.alloc(32, 4); wa = V.alloc(1)
        e(f'v_lshlrev_b32 v{wa}, 4, v0')
        for c in range(2):
            self.wait_lg(f'g{c}')
            v = lambda k: g + 11 * c + (k - 1)
            for sc_ in range(4):
                s = 4 - sc_
                for dd in range(4):
                    e(f'v_cvt_pk_bf16_f32 v{P+16*c+4*sc_+dd}, v{v(s+2*dd)}, v{v(s+2*dd+1)}')
                self.ds(f'ds_write_b128 v{wa}, {vr(P+16*c+4*sc_,4)} offset:{L_KC + c*KC_C + sc_*KC_S}')
        V.free(g, 22); V.free(P, 32); V.free(wa); V.free(ga, 12)

    def normalize(self, XP, sg):
        e = self.e; V = self.V
        self.c('---- LN1 normalize own columns')
        xa = V.alloc(16, 2)
        ms = V.alloc(16, 2)
        for k in range(8):
            e(f'v_lshlrev_b32 v{ms+k}, 16, v{sg+2*k}\nv_and_b32 v{ms+8+k}, 0xffff0000, v{sg+2*k}')
        for k in range(8): e(f'v_rcp_f32 v{ms+8+k}, v{ms+8+k}')
        wa = V.alloc(1); t = V.alloc(1)
        e(f'v_bfe_u32 v{t}, v0, 4, 1\nv_lshlrev_b32 v{t}, 1, v{t}\nv_xor_b32 v{wa}, v0, v{t}\nv_lshlrev_b32 v{wa}, 4, v{wa}')
        for c in range(2): self.ds(f'ds_write_b128 v{wa}, {vr(XP+4*c,4)} offset:{L_X + c*X_C}')
        for c in range(2):
            for d in range(4):
                e(f'v_lshlrev_b32 v{xa+8*c+2*d}, 16, v{XP+4*c+d}\nv_and_b32 v{xa+8*c+2*d+1}, 0xffff0000, v{XP+4*c+d}')
        UP = V.alloc(8, 4)
        for c in range(2):
            for d in range(4):
                x = xa + 8*c + 2*d
                e(f'v_pk_add_f32 {vr(x,2)}, {vr(x,2)}, {vr(ms+2*d,2)} neg_lo:[0,1] neg_hi:[0,1]')
            for d in range(4):
                x = xa + 8*c + 2*d
                e(f'v_cvt_pk_bf16_f32 v{x+1}, v{x}, v{x+1}')
            for d in range(4):
                x = xa + 8*c + 2*d
                e(f'v_lshlrev_b32 v{x}, 16, v{x+1}\nv_and_b32 v{x+1}, 0xffff0000, v{x+1}')
            for d in range(4):
                x = xa + 8*c + 2*d
                e(f'v_pk_mul_f32 {vr(x,2)}, {vr(x,2)}, {vr(ms+8+2*d,2)}')
            for d in range(4):
                x = xa + 8*c + 2*d
                e(f'v_cvt_pk_bf16_f32 v{UP+4*c+d}, v{x}, v{x+1}')
            self.ds(f'ds_write_b128 v{wa}, {vr(UP+4*c,4)} offset:{L_U + c*U_C + 1024}')
        V.free(ms, 16); V.free(xa, 16); V.free(UP, 8); V.free(wa); V.free(t)

    def conv_setup(self):
        e = self.e; V = self.V
        vF = V.alloc(1); vG = V.alloc(8); t = V.alloc(1); t2 = V.alloc(1)
        e(f's_lshr_b32 s{S_T0}, s{S_W}, 1\ns_mul_i32 s{S_T0}, s{S_T0}, {KC_C}\ns_and_b32 s{S_T1}, s{S_W}, 1\ns_lshl_b32 s{S_T2}, s{S_T1}, 9\ns_sub_u32 s{S_T0}, s{S_T0}, s{S_T2}\ns_add_u32 s{S_T0}, s{S_T0}, {L_KC + 24 + 512}')
        e(f'v_and_b32 v{t}, 3, v1\nv_mul_u32_u24 v{vF}, {KC_S}, v{t}')
        e(f'v_bfe_u32 v{t}, v1, 2, 2\nv_lshlrev_b32 v{t}, 3, v{t}\nv_sub_u32 v{vF}, v{vF}, v{t}')
        e(f'v_lshrrev_b32 v{t}, 4, v1\nv_lshl_add_u32 v{vF}, v{t}, 4, v{vF}\nv_add_u32 v{vF}, s{S_T0}, v{vF}')
        e(f's_lshr_b32 s{S_T0}, s{S_W}, 1\ns_mul_i32 s{S_T0}, s{S_T0}, {U_C}\ns_add_u32 s{S_T0}, s{S_T0}, {L_U}')
        e(f's_lshl_b32 s{S_T1}, s{S_T1}, 3')
        kg = V.alloc(1); col = V.alloc(1)
        e(f'v_lshrrev_b32 v{kg}, 4, v1\nv_and_b32 v{col}, 15, v1\nv_subrev_u32 v{col}, s{S_T1}, v{col}')
        for pp in range(8):
            e(f'v_add_u32 v{t}, {16 - pp}, v{col}')
            e(f'v_bfe_u32 v{t2}, v{t}, 2, 1\nv_lshlrev_b32 v{t2}, 1, v{t2}\nv_xor_b32 v{t2}, v{t2}, v{kg}')
            e(f'v_lshlrev_b32 v{t}, 6, v{t}\nv_lshl_add_u32 v{t}, v{t2}, 4, v{t}\nv_add_u32 v{vG+pp}, s{S_T0}, v{t}')
        V.free(kg); V.free(col)
        ua = V.alloc(1); xa_ = V.alloc(1); ra = V.alloc(2); sa = V.alloc(1)
        e(f'v_bfe_u32 v{t}, v1, 2, 1\nv_lshlrev_b32 v{t}, 1, v{t}\nv_lshrrev_b32 v{t2}, 4, v1\nv_xor_b32 v{t}, v{t}, v{t2}')
        e(f'v_and_b32 v{t2}, 15, v1\nv_lshlrev_b32 v{t2}, 6, v{t2}\nv_lshl_add_u32 v{ua}, v{t}, 4, v{t2}')
        e(f's_and_b32 s{S_T1}, s{S_W}, 1\ns_lshl_b32 s{S_T1}, s{S_T1}, 11')
        e(f's_lshr_b32 s{S_T0}, s{S_W}, 1\ns_mul_i32 s{S_T2}, s{S_T0}, {U_C}\ns_add_u32 s{S_T2}, s{S_T2}, s{S_T1}')
        e(f's_mul_i32 s{S_T3}, s{S_T0}, {X_C}\ns_add_u32 s{S_T3}, s{S_T3}, s{S_T1}')
        e(f'v_add_u32 v{xa_}, s{S_T3}, v{ua}\nv_add_u32 v{ua}, s{S_T2}, v{ua}')
        e(f'v_lshrrev_b32 v{t}, 4, v1\nv_lshl_add_u32 v{sa}, v{t}, 4, v{t2}')
        e(f's_lshl_b32 s{S_T2}, s{S_CP}, 1\ns_add_u32 s{S_T2}, s{S_T2}, s{S_T0}\ns_mul_i32 s{S_T2}, s{S_T2}, {HT_STRIDE}\ns_add_u32 s{S_T2}, s{S_T2}, s{S_T1}\ns_add_u32 s{S_T2}, s{S_T2}, {WS_HT}')
        e(f'v_add_u32 v{sa}, s{S_T2}, v{sa}')
        e(f's_lshl_b32 s{S_T0}, s{S_W}, 12\ns_add_u32 s{S_T0}, s{S_T0}, {L_RED}\nv_lshl_add_u32 v{ra}, v1, 4, s{S_T0}')
        e(f's_xor_b32 s{S_T0}, s{S_W}, 1\ns_lshl_b32 s{S_T0}, s{S_T0}, 12\ns_add_u32 s{S_T0}, s{S_T0}, {L_RED}\nv_lshl_add_u32 v{ra+1}, v1, 4, s{S_T0}')
        V.free(t); V.free(t2)
        return (vF, vG, ua, xa_, ra, sa)

    def conv(self, cv, fill):
        e = self.e; V = self.V
        vF, vG, ua, xa_, ra, sa = cv
        self.c('---- Toeplitz convolution')
        G = [V.alloc(16, 4) for _ in range(2)]
        F = V.alloc(32, 4)
        acc = V.alloc(32, 4)
        A = lambda b, m: acc + 8 * b + 4 * m
        def rdG(pp):
            for s in range(4): self.ds(f'ds_read_b128 {vr(G[pp&1]+4*s,4)}, v{vG+pp} offset:{1024*s}', f'G{pp}')
        def rdF(pp, q):
            for m in range(2):
                off = 32 * (111 - 32*q - 2*pp - m)
                self.ds(f'ds_read_b64 {vr(F+8*q+4*m,2)}, v{vF} offset:{off}', f'F{pp}_{q}')
                self.ds(f'ds_read_b64 {vr(F+8*q+4*m+2,2)}, v{vF} offset:{off+8}', f'F{pp}_{q}')
        rdG(0)
        for q in range(4): rdF(0, q)
        def rdG1(pp, s): self.ds(f'ds_read_b128 {vr(G[pp&1]+4*s,4)}, v{vG+pp} offset:{1024*s}', f'G{pp}')
        def rdF1(pp, q, m, h_):
            off = 32 * (111 - 32*q - 2*pp - m) + 8 * h_
            self.ds(f'ds_read_b64 {vr(F+8*q+4*m+2*h_,2)}, v{vF} offset:{off}', f'F{pp}_{q}')
        mains = []
        pend = []
        for pp in range(8):
            for q in range(4):
                first = True
                for m in range(2):
                    for s in range(4 - q):
                        b = q + s
                        cin = '0' if (pp == 0 and q == 0) else vr(A(b, m), 4)
                        pre = []
                        if first:
                            if q == 0: pre.append(lambda pp=pp: (self.wait_lg(f'G{pp}'), self.wait_lg(f'F{pp}_0')))
                            else: pre.append(lambda pp=pp, q=q: self.wait_lg(f'F{pp}_{q}'))
                            first = False
                        mf = lambda b=b, m=m, q=q, s=s, pp=pp, cin=cin: e(f'v_mfma_f32_16x16x32_bf16 {vr(A(b,m),4)}, {vr(F+8*q+4*m,4)}, {vr(G[pp&1]+4*s,4)}, {cin}')
                        post = [pend.pop(0)] if pend else []
                        mains.append((pre, mf, 16, post))
                    if pp + 1 < 8:
                        pend += [lambda pp=pp, q=q, m=m, h_=h_: rdF1(pp + 1, q, m, h_) for h_ in range(2)]
                if q == 0 and pp + 1 < 8:
                    pend += [lambda pp=pp, s=s: rdG1(pp + 1, s) for s in range(4)]
        assert not pend
        self.sched(mains, None, segs=[(0, self.o.get('cfill', 110), fill)])
        for x in G: V.free(x, 16)
        V.free(F, 32); V.free(vG, 8)
        self.stamp(10)
        UU = V.alloc(8, 4); XX = V.alloc(8, 4); t1f = V.alloc(16, 2); xf = V.alloc(16, 2); rr = V.alloc(16, 4)
        Y = V.alloc(8, 4); w8 = V.alloc(16, 2); dk = V.alloc(2, 2)
        for bb in range(2):
            self.ds(f'ds_read_b128 {vr(UU+4*bb,4)}, v{ua} offset:{L_U + 1024 + 1024*bb}', 'ux')
            self.ds(f'ds_read_b128 {vr(XX+4*bb,4)}, v{xa_} offset:{L_X + 1024*bb}', 'ux')
        e(f'v_mov_b32 v{dk}, s{S_DK}')
        def epi(half):
            snd = acc + 16 * (1 - half); keep = acc + 16 * half
            for i in range(4): self.ds(f'ds_write_b128 v{ra}, {vr(snd+4*i,4)} offset:{1024*i}', 'rw')
            self.wait_lg('ux')
            for q in range(8): e(f'v_lshlrev_b32 v{t1f+2*q}, 16, v{UU+q}\nv_and_b32 v{t1f+2*q+1}, 0xffff0000, v{UU+q}')
            for q in range(8): e(f'v_pk_mul_f32 {vr(t1f+2*q,2)}, {vr(t1f+2*q,2)}, {vr(dk,2)} op_sel_hi:[1,0]')
            for q in range(8): e(f'v_cvt_pk_bf16_f32 v{UU+q}, v{t1f+2*q}, v{t1f+2*q+1}')
            for q in range(8): e(f'v_lshlrev_b32 v{xf+2*q}, 16, v{XX+q}\nv_and_b32 v{xf+2*q+1}, 0xffff0000, v{XX+q}')
            for q in range(8): e(f'v_lshlrev_b32 v{t1f+2*q}, 16, v{UU+q}\nv_and_b32 v{t1f+2*q+1}, 0xffff0000, v{UU+q}')
            self.wait_vm('wc')
            self.wait_all_lg()
            e('s_barrier')
            for i in range(4): self.ds(f'ds_read_b128 {vr(rr+4*i,4)}, v{ra+1} offset:{1024*i}', 'red')
            self.wait_lg('red')
            for i in range(0, 16, 2): e(f'v_pk_add_f32 {vr(keep+i,2)}, {vr(keep+i,2)}, {vr(rr+i,2)}')
            for bb in range(2):
                k0 = keep + 8 * bb; y = Y + 4 * bb
                e(f'v_cvt_pk_bf16_f32 v{y}, v{k0}, v{k0+1}\nv_cvt_pk_bf16_f32 v{y+1}, v{k0+2}, v{k0+3}')
                e(f'v_cvt_pk_bf16_f32 v{y+2}, v{k0+4}, v{k0+5}\nv_cvt_pk_bf16_f32 v{y+3}, v{k0+6}, v{k0+7}')
            for bb in range(2):
                y = Y + 4 * bb
                e(f'v_permlane32_swap_b32 v{y}, v{y+2}\nv_permlane32_swap_b32 v{y+1}, v{y+3}')
            for bb in range(2):
                y = Y + 4 * bb
                e(f'v_permlane16_swap_b32 v{y}, v{y+2}\nv_permlane16_swap_b32 v{y+1}, v{y+3}')
            for q in range(8): e(f'v_lshlrev_b32 v{w8+2*q}, 16, v{Y+q}\nv_and_b32 v{w8+2*q+1}, 0xffff0000, v{Y+q}')
            for q in range(8): e(f'v_pk_add_f32 {vr(w8+2*q,2)}, {vr(w8+2*q,2)}, {vr(t1f+2*q,2)}')
            for q in range(8): e(f'v_cvt_pk_bf16_f32 v{Y+q}, v{w8+2*q}, v{w8+2*q+1}')
            for q in range(8): e(f'v_lshlrev_b32 v{w8+2*q}, 16, v{Y+q}\nv_and_b32 v{w8+2*q+1}, 0xffff0000, v{Y+q}')
            for q in range(8): e(f'v_pk_add_f32 {vr(w8+2*q,2)}, {vr(w8+2*q,2)}, {vr(xf+2*q,2)}')
            for bb in range(2):
                for d in range(4): e(f'v_cvt_pk_bf16_f32 v{Y+4*bb+d}, v{w8+8*bb+2*d}, v{w8+8*bb+2*d+1}')
                self.vmem(f'buffer_store_dwordx4 {vr(Y+4*bb,4)}, v{sa}, s[{R_WS}:{R_WS+3}], 0 offen offset:{1024*bb} sc1', 'ht')
        self.two_paths(epi)
        if self.o.get('xg', True):
            WB = self.o.get('wsched', 'B') == 'B'
            self.w1_read(3 if WB else 5, 10)
            self.w1_issue(10, 13 if WB else 14, 'we')
        else:
            self.w1_read(5, 14)
            self.w1_issue(14, 15, 'we')
        for x, n in ((UU,8),(XX,8),(t1f,16),(xf,16),(rr,16),(Y,8),(w8,16),(dk,2),(sa,1),(ua,1),(xa_,1),(ra,2),(acc,32),(vF,1)): V.free(x, n)

    def interleave(self, main, fill, per_gap):
        n = len(main); fi = 0
        for i, m in enumerate(main):
            m()
            tgt = (len(fill) * (i + 1) + n - 1) // n if per_gap is None else min(len(fill), fi + per_gap)
            while fi < tgt:
                fill[fi](); fi += 1
        while fi < len(fill):
            fill[fi](); fi += 1

    def sched(self, mains, fillers, tail_free=0, segs=None):
        def cost(x): return x[1] if isinstance(x, tuple) else 1
        def run(x): (x[0] if isinstance(x, tuple) else x)()
        n = len(mains)
        bud = []
        for i, (pre, m, dur, post) in enumerate(mains):
            b = (dur - 8) / 4 - sum(cost(x) for x in post)
            if i + 1 < n: b -= sum(cost(x) for x in mains[i+1][0])
            bud.append(b)
        if segs is None: segs = [(0, n - tail_free, fillers)]
        plan = [[] for _ in range(n)]; planned = [0.0] * n
        for (a, b_, fl) in segs:
            free = sum(max(0, x) for x in bud[a:b_]); need = sum(cost(x) for x in fl)
            over = max(0.0, (need - free) / max(1, b_ - a)); frac = min(1.0, need / free) if free > 0 else 1.0
            fi = 0; credit = 0.0
            for i in range(a, b_):
                credit += max(0, bud[i]) * frac + over
                while fi < len(fl) and cost(fl[fi]) <= credit + 1e-9:
                    credit -= cost(fl[fi]); plan[i].append(fl[fi]); fi += 1
            plan[b_ - 1] += fl[fi:]
            for i in range(a, b_):
                used = sum(cost(x) for x in plan[i]) - planned[i]
                planned[i] += used; bud[i] -= used
        for i, (pre, m, dur, post) in enumerate(mains):
            for x in pre: run(x)
            m()
            for x in post: run(x)
            for x in plan[i]: run(x)

    def poll_flags(self, base, nflags_expr_lanes, nloads, sbase=None, last_lanes=None, sleep=0):
        e = self.e; V = self.V
        skip = self.lab('pf'); l0 = self.lab('pl'); l1 = self.lab('pd')
        e(f's_cmp_lg_u32 s{S_W}, 0\ns_cbranch_scc1 {skip}')
        a = V.alloc(1); d = V.alloc(4, 2)
        e(f'v_mul_u32_u24 v{a}, {FLAG_STRIDE}, v1\nv_add_u32 v{a}, {base}, v{a}')
        if sbase is not None: e(f'v_add_u32 v{a}, s{sbase}, v{a}')
        e(f's_mov_b64 s[{S_M1}:{S_M1+1}], exec')
        if nflags_expr_lanes < 64: e(f's_mov_b64 exec, {hex((1 << nflags_expr_lanes) - 1)}')
        e(f's_mov_b32 s{S_CNT}, 0')
        self.label(l0)
        for k in range(nloads):
            e(f'buffer_load_dword v{d+k}, v{a}, s[{R_WS}:{R_WS+3}], 0 offen offset:{64*FLAG_STRIDE*k} sc1')
        e('s_waitcnt vmcnt(0)')
        e(f'v_cmp_ne_u32 vcc, s{S_NONCE}, v{d}')
        for k in range(1, nloads):
            e(f'v_cmp_ne_u32 s[{S_M2}:{S_M2+1}], s{S_NONCE}, v{d+k}')
            if last_lanes and k == nloads - 1:
                assert last_lanes == 32
                e(f's_and_b32 s{S_M2+1}, s{S_M2+1}, 0')
            e(f's_or_b64 vcc, vcc, s[{S_M2}:{S_M2+1}]')
        e(f's_cbranch_vccz {l1}')
        if sleep: e(f's_sleep {sleep}')
        e(f's_add_u32 s{S_CNT}, s{S_CNT}, 1\ns_cmp_lt_u32 s{S_CNT}, {SPIN_MAX}\ns_cbranch_scc1 {l0}')
        self.label(l1)
        e(f's_mov_b64 exec, s[{S_M1}:{S_M1+1}]')
        V.free(a); V.free(d, 4)
        self.label(skip)
        e('s_barrier')

    WDREG = ['A']*9 + ['B']*3 + ['C']*3 + ['A']*9 + ['B']*3 + ['C']
    WDIDX = list(range(9)) + [0,1,2] + [0,1,2] + list(range(9)) + [0,1,2] + [0]
    def wd_setup(self):
        e = self.e; V = self.V
        self.vWD = V.alloc(2); self.vWT = V.alloc(6)
        t = V.alloc(1); t2 = V.alloc(1); vD = self.vWD; vT = self.vWT
        e(f'v_lshrrev_b32 v{t}, 3, v1\nv_mul_u32_u24 v{vD}, 896, v{t}\nv_bfe_u32 v{t}, v1, 4, 1\nv_lshlrev_b32 v{t}, 2, v{t}\nv_and_b32 v{t2}, 7, v1\nv_xor_b32 v{t}, v{t}, v{t2}\nv_lshl_add_u32 v{vD}, v{t}, 4, v{vD}')
        e(f's_lshl_b32 s{S_T0}, s{S_DB}, 7\ns_mul_i32 s{S_T1}, s{S_W}, {448*896}\ns_add_u32 s{S_T0}, s{S_T0}, s{S_T1}\nv_add_u32 v{vD}, s{S_T0}, v{vD}\nv_add_u32 v{vD+1}, 7168, v{vD}')
        e(f'v_lshrrev_b32 v{t}, 5, v1\nv_lshlrev_b32 v{vT}, 9, v{t}\nv_bfe_u32 v{t}, v1, 2, 2\nv_lshl_add_u32 v{vT}, v{t}, 7, v{vT}')
        e(f'v_bfe_u32 v{t}, v1, 4, 1\nv_lshl_add_u32 v{vT}, v{t}, 5, v{vT}\nv_and_b32 v{t}, 3, v1\nv_lshl_add_u32 v{vT}, v{t}, 3, v{vT}')
        e(f'v_bfe_u32 v{t}, v1, 3, 1\nv_lshlrev_b32 v{t}, 6, v{t}')
        e(f'v_xor_b32 v{t2}, 64, v{t}\nv_add_u32 v{vT+1}, v{vT}, v{t2}\nv_add_u32 v{vT}, v{vT}, v{t}')
        e(f's_mul_i32 s{S_WA}, s{S_W}, 18432\ns_add_u32 s{S_WA}, s{S_WA}, 87040')
        e(f's_mul_i32 s{S_WB}, s{S_W}, 7168\ns_add_u32 s{S_WC}, s{S_WB}, 57344\ns_add_u32 s{S_WB}, s{S_WB}, 28672')
        e(f'v_add_u32 v{vT+2}, s{S_WB}, v{vT}\nv_add_u32 v{vT+3}, s{S_WB}, v{vT+1}\nv_add_u32 v{vT+4}, s{S_WC}, v{vT}\nv_add_u32 v{vT+5}, s{S_WC}, v{vT+1}')
        e(f'v_add_u32 v{vT}, s{S_WA}, v{vT}\nv_add_u32 v{vT+1}, s{S_WA}, v{vT+1}')
        e(f's_add_u32 s{S_T1}, s{S_DB}, s{S_RB2}' if self.o.get('rot2', True) else f's_mov_b32 s{S_T1}, 0')
        for q in range(4):
            e(f's_add_u32 s{S_T0}, s{S_T1}, {q}\ns_and_b32 s{S_T0}, s{S_T0}, 3\ns_mul_i32 s{S_RW0+q}, s{S_T0}, {7*16*896}\ns_mul_i32 s{S_RA0+q}, s{S_T0}, {7*1024}')
        V.free(t); V.free(t2)
    def wd_dma(self, k, tag):
        e = self.e; sb = {'A': S_WA, 'B': S_WB, 'C': S_WC}[self.WDREG[k]]; sl = self.WDIDX[k] * 2048
        d0 = lambda: self.vmem(f'buffer_load_dwordx4 v{self.vWD}, s[{R_WD}:{R_WD+3}], s{S_WO} offen lds', tag)
        d1 = lambda: self.vmem(f'buffer_load_dwordx4 v{self.vWD+1}, s[{R_WD}:{R_WD+3}], s{S_WO} offen lds', tag)
        d0.isvm = True; d1.isvm = True
        return [lambda: e(f's_add_u32 s{S_WO}, s{S_RW0 + k//7}, {(k%7)*16*896}'),
                lambda: e(f's_add_u32 m0, s{sb}, {sl}'), d0,
                lambda: e(f's_add_u32 m0, s{sb}, {sl + 1024}'), d1]
    def wd_reads(self, k):
        a = self.vWT + {'A': 0, 'B': 2, 'C': 4}[self.WDREG[k]]; sl = self.WDIDX[k] * 2048
        return [lambda mt=mt, hh=hh: self.ds(f'ds_read_b64_tr_b16 {ar(8*k+4*mt+2*hh,2)}, v{a+mt} offset:{sl + 1024*hh}', f'wdr{k}') for mt in range(2) for hh in range(2)]

    def phaseB_setup(self):
        e = self.e; V = self.V; o = self.o
        L_H = 0; HG = 28672; L_STP = 3 * HG
        HS = lambda g_: (g_ % 3) * HG
        S_HB, S_MB = S_T5, S_HID
        vD = V.alloc(1); vB = V.alloc(1); vS = V.alloc(1); t = V.alloc(1); t2 = V.alloc(1)
        e(f'v_lshrrev_b32 v{t}, 2, v1\nv_mul_u32_u24 v{vD}, {HT_STRIDE}, v{t}\nv_bfe_u32 v{t2}, v1, 4, 1\nv_lshlrev_b32 v{t2}, 1, v{t2}\nv_and_b32 v{t}, 3, v1\nv_xor_b32 v{t}, v{t}, v{t2}\nv_lshl_add_u32 v{vD}, v{t}, 4, v{vD}')
        e(f's_lshl_b32 s{S_T0}, s{S_RB}, 8\ns_add_u32 s{S_T0}, s{S_T0}, {WS_HT}\nv_add_u32 v{vD}, s{S_T0}, v{vD}')
        e(f's_mul_i32 s{S_HB}, s{S_W}, {16*HT_STRIDE}\ns_lshl_b32 s{S_MB}, s{S_W}, 10')
        e(f'v_lshrrev_b32 v{t}, 5, v1\nv_lshlrev_b32 v{vB}, 8, v{t}\nv_bfe_u32 v{t2}, v1, 4, 1\nv_xor_b32 v{t2}, v{t2}, v{t}\nv_lshl_add_u32 v{vB}, v{t2}, 5, v{vB}')
        e(f'v_bfe_u32 v{t}, v1, 2, 2\nv_lshl_add_u32 v{vB}, v{t}, 6, v{vB}\nv_and_b32 v{t}, 3, v1\nv_lshl_add_u32 v{vB}, v{t}, 3, v{vB}')
        e(f'v_lshrrev_b32 v{t}, 4, v1\nv_lshlrev_b32 v{vS}, 8, v{t}\nv_and_b32 v{t}, 1, v{t}\ns_and_b32 s{S_T0}, s{S_W}, 1\nv_xor_b32 v{t}, s{S_T0}, v{t}\nv_lshl_add_u32 v{vS}, v{t}, 5, v{vS}')
        e(f'v_bfe_u32 v{t}, v1, 2, 2\nv_lshl_add_u32 v{vS}, v{t}, 6, v{vS}\nv_and_b32 v{t}, 3, v1\nv_lshl_add_u32 v{vS}, v{t}, 3, v{vS}')
        e(f's_lshr_b32 s{S_T0}, s{S_W}, 1\ns_mul_i32 s{S_T0}, s{S_T0}, {7*2048}\nv_add_u32 v{vS}, s{S_T0}, v{vS}')
        vA = V.alloc(1)
        e(f's_mul_i32 s{S_T0}, s{S_RB}, {4*112}\ns_lshl_b32 s{S_T1}, s{S_FB}, 3\ns_add_u32 s{S_T0}, s{S_T0}, s{S_T1}\ns_lshl_b32 s{S_T1}, s{S_W}, 1\ns_add_u32 s{S_T0}, s{S_T0}, s{S_T1}')
        e(f's_lshl_b32 s{S_T0}, s{S_T0}, 10\ns_add_u32 s{S_T0}, s{S_T0}, {WS_ACT}\nv_lshl_add_u32 v{vA}, v1, 4, s{S_T0}')
        vG2 = V.alloc(1); sg2 = V.alloc(6, 2)
        e(f'v_and_b32 v{t}, 31, v1\nv_lshlrev_b32 v{vG2}, 3, v{t}\ns_lshl_b32 s{S_T0}, s{S_RB}, 10\ns_add_u32 s{S_T0}, s{S_T0}, {WS_STATS2}\nv_add_u32 v{vG2}, s{S_T0}, v{vG2}')
        vC = V.alloc(1)
        e(f'v_lshrrev_b32 v{t}, 5, v1\nv_lshlrev_b32 v{t}, 4, v{t}\ns_lshl_b32 s{S_T0}, s{S_FB}, 9\ns_lshl_b32 s{S_T1}, s{S_W}, 7\ns_add_u32 s{S_T0}, s{S_T0}, s{S_T1}\ns_add_u32 s{S_T0}, s{S_T0}, {WS_CS}\nv_add_u32 v{vC}, s{S_T0}, v{t}')
        NB = 6
        cs = self.cs; ones = self.ones
        B = V.alloc(4 * NB, 4); SB = V.alloc(8, 4); SG = V.alloc(8, 4)
        acc = [V.alloc(32, 4), V.alloc(32, 4)]
        st = V.alloc(6, 2); par = V.alloc(3); tmp = V.alloc(8, 4); pk = V.alloc(8, 4)
        vP = V.alloc(1); vPw = V.alloc(1)
        e(f'v_bfe_u32 v{t}, v1, 4, 1\nv_lshlrev_b32 v{vP}, 7, v{t}\nv_and_b32 v{t}, 15, v1\nv_lshl_add_u32 v{vP}, v{t}, 3, v{vP}\nv_add_u32 v{vP}, {L_STP}, v{vP}')
        e(f's_lshl_b32 s{S_T0}, s{S_W}, 7\ns_add_u32 s{S_T0}, s{S_T0}, {L_STP}\nv_lshl_add_u32 v{vPw}, v{t}, 3, s{S_T0}')
        K1, K2, K3, KD = 6, 8, 10, 12
        e(f's_mov_b32 s{K1}, 0x22222222\ns_mov_b32 s{K1+1}, 0x22222222\ns_mov_b32 s{K2}, 0x44444444\ns_mov_b32 s{K2+1}, 0x44444444')
        e(f's_mov_b32 s{K3}, 0x88888888\ns_mov_b32 s{K3+1}, 0x88888888\ns_mov_b32 s{KD}, 0x00f0000f\ns_mov_b32 s{KD+1}, 0xf0000f00')
        vBq = V.alloc(4); vS2 = V.alloc(1)
        e(f'v_add_u32 v{vS2}, 57344, v{vS}')
        for q in range(4):
            e(f's_add_u32 s{S_T0}, s{S_ROT}, {q}\ns_and_b32 s{S_T0}, s{S_T0}, 3\ns_mul_i32 s{S_T0}, s{S_T0}, {7*1024}\nv_add_u32 v{vBq+q}, s{S_T0}, v{vB}')
        S_KI = [0, 1, 3, 4, 5, 22, 23]
        for i in range(7):
            e(f's_add_u32 s{S_T0}, s{S_W}, {4*i}\ns_mul_i32 s{S_T1}, s{S_T0}, 37\ns_lshr_b32 s{S_T1}, s{S_T1}, 8')
            e(f's_mul_i32 s{S_T2}, s{S_T1}, 7\ns_sub_u32 s{S_T0}, s{S_T0}, s{S_T2}\ns_add_u32 s{S_T1}, s{S_T1}, s{S_ROT}\ns_and_b32 s{S_T1}, s{S_T1}, 3')
            e(f's_mul_i32 s{S_T1}, s{S_T1}, 7\ns_add_u32 s{S_KI[i]}, s{S_T1}, s{S_T0}')
        self.wd_setup()
        self.pb = dict(locals())

    def phaseB(self):
        e = self.e; V = self.V; o = self.o
        self.c('================= phase B')
        pb = self.pb
        L_H, HG, L_STP, HS, S_HB, S_MB = pb['L_H'], pb['HG'], pb['L_STP'], pb['HS'], pb['S_HB'], pb['S_MB']
        vD, vB, vS, t, t2, vA, vG2, sg2, NB, cs, ones, B, SB, SG = [pb[k] for k in 'vD vB vS t t2 vA vG2 sg2 NB cs ones B SB SG'.split()]
        acc, st, par, tmp, pk, vP, vPw, K1, K2, K3, KD, vBq, vS2 = [pb[k] for k in 'acc st par tmp pk vP vPw K1 K2 K3 KD vBq vS2'.split()]
        self.stamp(14)
        HCS = o.get('hcs', False); vC = pb['vC']
        self.wait_vm('we')
        if HCS: self.poll_flags(WS_FLAG2, 64, 4, sleep=self.o.get('wsleep', 2))
        else: self.poll_flags(WS_FLAG2 + 32*FLAG_STRIDE, 64, 4, last_lanes=32, sleep=self.o.get('wsleep', 2))
        self.stamp(15)
        zk = [k for k in range(self.K0, 28) if self.W1SLOT[k] >= 12]
        for k in zk: self.w1_read(k, k + 1)
        self.wait_all_lg(); e('s_barrier')
        self.rest_k = [k for k in range(self.K0, 28) if k not in zk]
        self.vm.drain(); self.lg.drain()
        self.stamp(16)
        def hdma(g, i, tag=None):
            d = lambda: self.vmem(f'buffer_load_dwordx4 v{vD}, s[{R_WS}:{R_WS+3}], s{S_T1} offen {o.get("hflags", "sc1")} lds', tag or f'h{g}')
            d.isvm = True
            return [lambda: e(f's_add_u32 m0, s{S_MB}, {L_H + HS(g) + i*4096}'),
                    lambda: e(f's_add_u32 s{S_T1}, s{S_HB}, {i*4*16*HT_STRIDE + 64*g}'), d]
        S_KI = pb['S_KI']; PROG = o.get('prog', True)
        for i in range(7):
            e(f's_lshl_b32 m0, s{S_KI[i]}, 10\ns_mul_i32 s{S_T1}, s{S_KI[i]}, {16*HT_STRIDE}')
            self.vmem(f'buffer_load_dwordx4 v{vD}, s[{R_WS}:{R_WS+3}], s{S_T1} offen {o.get("hflags", "sc1")} lds', 'h0a' if (i < 3 and PROG) else 'h0')
        for k in self.rest_k: self.w1_read(k, k + 1)
        self.wait_all_lg()
        V.free(self.vTS, 5); V.free(self.vW1)
        if HCS:
            e(f's_mov_b32 s{S_T2}, {1792*4}')
            for up in range(2):
                for rho in range(4):
                    self.vmem(f'buffer_load_dwordx4 {vr(cs+16*up+4*rho,4)}, v{vC}, s[{R_WS}:{R_WS+3}], {"s" + str(S_T2) if up else "0"} offen offset:{32*rho} sc1', 'cs')
        else: self.cs_mfma(self.K0, 28)
        assert not HCS
        csA = V.alloc(8, 4); mB = V.alloc(4, 4)
        for i in range(1, 4): e(f'v_mov_b32 v{mB+i}, 0\nv_mov_b32 v{csA+i}, 0\nv_mov_b32 v{csA+4+i}, 0')
        def build_csA():
            for u in range(2):
                c_ = cs + 16 * u; d_ = csA + 4 * u
                e(f'v_cvt_pk_bf16_f32 v{d_}, v{c_}, v{c_}\nv_lshlrev_b32 v{d_}, 16, v{d_}\nv_sub_f32 v{c_+1}, v{c_}, v{d_}')
                e(f'v_cvt_pk_bf16_f32 v{d_}, v{c_}, v{c_+1}')
                e(f'v_cmp_gt_u32 vcc, 32, v1\nv_cndmask_b32 v{d_}, 0, v{d_}, vcc')
        build_csA()
        H1F = o.get('h1fill', True)
        if not H1F:
            for i in range(7):
                for f in hdma(1, i): f()
        def rdB(g, k):
            s = k % NB
            for h_ in range(2):
                self.ds(f'ds_read_b64_tr_b16 {vr(B+4*s+2*h_,2)}, v{vBq + k//7} offset:{HS(g) + (k%7)*1024 + 512*h_}', f'B{g}_{k}')
        def st_reads(g):
            for k_ in range(2): self.ds(f'ds_read_b64 {vr(st+2*k_,2)}, v{vP} offset:{(g&1)*512 + 256*k_}', f'st{g}')
        def fin_ops(g):
            nm, rsl, s2 = par, par + 1, par + 2; ops = []
            save = self.lines; self.lines = []
            if g == 0:
                self.ln_finalize(st, st + 1, st + 2, st + 3, st + 4)
            else:
                e(f'v_lshlrev_b32 v{st+2}, 16, v{sg2+2*(g-1)}')
                e(f'v_and_b32 v{st+3}, 0xffff0000, v{sg2+2*(g-1)}')
            e(f'v_cvt_pk_bf16_f32 v{mB}, -v{st+2}, -v{st+2}')
            e(f'v_rcp_f32 v{st+4}, v{st+3}')
            e(f'v_mul_f32 v{s2}, v{st+3}, v{st+3}')
            e(f'v_mul_f32 v{rsl}, {fx(-LOG2E)}, v{st+4}')
            fl = self.lines; self.lines = save
            if g == 0:
                def fin0():
                    self.wait_lg('st0')
                    e(f'v_add_f32 v{st}, v{st}, v{st+2}')
                ops.append(fin0)
                ops.append(lambda: e(f'v_add_f32 v{st+1}, v{st+1}, v{st+3}'))
            for l in fl: ops.append(lambda l=l: e(l))
            return ops
        def fold_mfma(g, u):
            A_ = acc[g & 1] + 16 * u
            return lambda: e(f'v_mfma_f32_32x32x16_bf16 {vr(A_,16)}, {vr(csA+4*u,4)}, {vr(mB,4)}, {vr(A_,16)}')
        def epilogue_ops(g):
            A_ = acc[g & 1]; ops = []
            nm, rsl, s2 = par, par + 1, par + 2
            def el(r):
                G_, U_, T_ = A_ + r, A_ + 16 + r, tmp + (r & 7)
                return [f'v_mul_f32 v{T_}, v{rsl}, v{G_}',
                        f'v_mul_f32 v{G_}, v{G_}, v{U_}',
                        f'v_exp_f32 v{T_}, v{T_}',
                        f'v_fma_f32 v{T_}, v{T_}, v{s2}, v{s2}',
                        f'v_rcp_f32 v{T_}, v{T_}',
                        f'v_mul_f32 v{G_}, v{G_}, v{T_}']
            for q in range(4):
                els = [el(4*q + x) for x in range(4)]
                for s_ in range(6):
                    for x in range(4): ops.append((lambda l=els[x][s_]: e(l), 2 if s_ in (2, 4) else 1))
                for x in range(2):
                    r = 4*q + 2*x
                    ops.append(lambda r=r: e(f'v_cvt_pk_bf16_f32 v{pk + r//2}, v{A_+r}, v{A_+r+1}'))
                if q in (1, 3) and not (o.get('x_nost') and g < 3):
                    kk = q >> 1
                    ops.append(lambda kk=kk: self.vmem(f'buffer_store_dwordx4 {vr(pk+4*kk,4)}, v{vA}, s[{R_WS}:{R_WS+3}], s{S_T4} offen offset:{1024*kk} sc1', 'act'))
            return ops
        DS = 1.5
        def rdB1(g, k, h_):
            s = (28 * g + k) % NB
            return (lambda: self.ds(f'ds_read_b64_tr_b16 {vr(B+4*s+2*h_,2)}, v{vBq + k//7} offset:{HS(g) + (k%7)*1024 + 512*h_}', f'B{g}_{k}'), DS)
        def rs(g, i):
            sb = SB + 4 * (i & 1); out = []
            for h_ in range(2):
                b_, off = (vS, HS(g) + i*2048 + 1024*h_) if HS(g) < 57344 else (vS2, i*2048 + 1024*h_)
                out.append((lambda b_=b_, off=off, h_=h_, sb=sb, i=i: self.ds(f'ds_read_b64_tr_b16 {vr(sb+2*h_,2)}, v{b_} offset:{off}', f'S{g}_{i}'), DS))
            return out
        def s2_loads():
            return [lambda gg=gg: self.vmem(f'buffer_load_dwordx2 {vr(sg2+2*(gg-1),2)}, v{vG2}, s[{R_WS}:{R_WS+3}], 0 offen offset:{256*gg} sc1', 'sg2') for gg in range(1, 4)]
        def s2_check():
            l0 = self.lab('s2'); l1 = self.lab('s2d')
            self.wait_vm('sg2')
            e(f's_mov_b32 s{S_CNT}, 0')
            self.label(l0)
            e(f'v_cmp_ne_u32 vcc, s{S_NONCE}, v{sg2+1}')
            for gg in (2, 3): e(f'v_cmp_ne_u32 s[{S_M2}:{S_M2+1}], s{S_NONCE}, v{sg2+2*gg-1}\ns_or_b64 vcc, vcc, s[{S_M2}:{S_M2+1}]')
            e(f's_cbranch_vccz {l1}')
            for gg in range(1, 4): e(f'buffer_load_dwordx2 {vr(sg2+2*(gg-1),2)}, v{vG2}, s[{R_WS}:{R_WS+3}], 0 offen offset:{256*gg} sc1')
            e('s_waitcnt vmcnt(0)')
            e(f's_add_u32 s{S_CNT}, s{S_CNT}, 1\ns_cmp_lt_u32 s{S_CNT}, {SPIN_MAX}\ns_cbranch_scc1 {l0}')
            self.label(l1)
        def red_ops(g):
            return [lambda: e(f'v_cndmask_b32 v{SG}, v{SG}, v{SG+1}, s[{K1}:{K1+1}]'),
                    lambda: e(f'v_cndmask_b32 v{SG}, v{SG}, v{SG+2}, s[{K2}:{K2+1}]'),
                    lambda: e(f'v_cndmask_b32 v{SG+5}, v{SG}, v{SG+3}, s[{K3}:{K3+1}]'),
                    lambda: e(f's_mov_b64 exec, s[{KD}:{KD+1}]'),
                    lambda: self.ds(f'ds_write_b64 v{vPw}, {vr(SG+4,2)} offset:{(g&1)*512}', f'stw{g}'),
                    lambda: e('s_mov_b64 exec, -1')]
        self.wait_vm('h0a' if PROG else 'h0'); self.wait_all_lg(); e('s_barrier')
        self.stamp(17)
        for k in range(4):
            for h_ in range(2): rdB1(0, k, h_)[0]()
        if not PROG:
            for f in rs(0, 0) + rs(0, 1): f[0]()
        mains = []; segs = []
        KB = 22
        KF = 3
        for g in range(4):
            A_ = acc[g & 1]; base = len(mains); pos = {}
            for k in range(28):
                cg = '0' if k == 0 else vr(A_, 16); cu = '0' if k == 0 else vr(A_ + 16, 16)
                pre = []
                if g == 1 and k == 2: pre.append(lambda: e('s_barrier'))
                if g in (2, 3) and k == 2: pre.append(lambda: e('s_barrier'))
                if g == 0 and k == 8 and PROG:
                    pre.append(lambda: self.wait_vm('h0')); pre.append(lambda: e('s_barrier'))
                if k == KB:
                    if g < 3: pre.append(lambda g=g: self.wait_vm(f'h{g+1}'))
                    if g == 0: pre.append(lambda g=g: self.wait_lg(f'stw{g}'))
                    pre.append(lambda: e('s_barrier'))
                    if o.get('passstamps'): pre.append(lambda g=g: self.stamp(26 + g))
                pre.append(lambda k=k, g=g: self.wait_lg(f'B{g}_{k}'))
                nx = (g, k + 4) if k + 4 < 28 else ((g + 1, k + 4 - 28) if g < 3 else None)
                p0 = [rdB1(nx[0], nx[1], 0)] if nx else []; p1 = [rdB1(nx[0], nx[1], 1)] if nx else []
                pos[k] = len(mains)
                mains.append((pre, lambda k=k, cg=cg, A_=A_, g=g: e(f'v_mfma_f32_32x32x16_bf16 {vr(A_,16)}, {ar(8*k,4)}, {vr(B+4*((28*g+k)%NB),4)}, {cg}'), 32, p0))
                mains.append(([], lambda k=k, cu=cu, A_=A_, g=g: e(f'v_mfma_f32_32x32x16_bf16 {vr(A_+16,16)}, {ar(8*k+4,4)}, {vr(B+4*((28*g+k)%NB),4)}, {cu}'), 32, p1))
                if g > 0 and k == KF:
                    for u_ in range(2): mains.append(([], fold_mfma(g - 1, u_), 32, []))
                if g == 0:
                    gpos = [10, 11, 13, 14, 16, 17, 19] if PROG else [0, 3, 6, 9, 12, 15, 18]
                    spos = gpos if PROG else [x + 1 for x in gpos]
                    if k in gpos:
                        i_ = gpos.index(k); sb = SB + 4 * (i_ & 1); c_ = '0' if i_ == 0 else vr(SG, 4)
                        mains.append(([lambda i_=i_, g=g: self.wait_lg(f'S{g}_{i_}')], lambda sb=sb, c_=c_: e(f'v_mfma_f32_16x16x32_bf16 {vr(SG,4)}, {vr(sb,4)}, {vr(sb,4)}, {c_}'), 16, []))
                    if k in spos:
                        i_ = spos.index(k); sb = SB + 4 * (i_ & 1); c_ = '0' if i_ == 0 else vr(SG + 4, 4)
                        mains.append(([], lambda sb=sb, c_=c_: e(f'v_mfma_f32_16x16x32_bf16 {vr(SG+4,4)}, {vr(ones,4)}, {vr(sb,4)}, {c_}'), 16,
                                      rs(g, i_ + 2) if i_ + 2 < 7 else []))
            def addpost(k, items, which=0):
                pre_, m_, d_, post_ = mains[pos[k] + which]
                mains[pos[k] + which] = (pre_, m_, d_, post_ + items)
            if g == 0:
                addpost(KB - 1, red_ops(g), 1)
                if PROG:
                    r0 = rs(0, 0) + rs(0, 1)
                    addpost(8, r0[:2], 0); addpost(8, r0[2:], 1)
            if g == 3:
                for i_ in range(9):
                    rr = [(f, DS) for f in self.wd_reads(i_)]
                    for q in range(4): addpost(10 + 2*i_ + (q >> 1), [rr[q]], q & 1)
                pre_, m_, d_, post_ = mains[pos[10]]
                mains[pos[10]] = (pre_, m_, d_, post_[:1] + [lambda: self.wait_vm('wdA')] + post_[1:])
            if g == 1:
                addpost(o.get('s2k', 12), s2_loads(), 1)
                if not o.get('x_nos2'): addpost(27, [(s2_check, 8)], 1)
            ep = []
            if g > 0:
                fo = ([lambda: st_reads(0)] if g == 1 else []) + [lambda g=g: e(f's_mov_b32 s{S_T4}, {(g-1)*112*1024}')] + fin_ops(g - 1)
                segs.append((base, pos[KF] + 1, fo))
                ep += epilogue_ops(g - 1)
            mf = []; mf2 = []
            if g == 0:
                if H1F:
                    for i in range(7): mf2 += hdma(1, i)
                for i in range(7): mf += hdma(2, i)
            if g == 0:
                pass
            mf3 = []
            if g == 1:
                for i in range(7): mf2 += hdma(3, i)
                for k_ in range(0, 5): mf3 += self.wd_dma(k_, 'wdA')
            if g == 2:
                for k_ in range(5, 9): mf3 += self.wd_dma(k_, 'wdA')
                for k_ in range(9, 12): mf3 += self.wd_dma(k_, 'wdB')
            if g == 3:
                for k_ in range(12, 15): mf3 += self.wd_dma(k_, 'wdC')
            if o.get('x_noep'): ep = []
            CD = o.get('cdma', 4)
            def costed(lst):
                out = []
                for x in lst:
                    f = x[0] if isinstance(x, tuple) else x
                    vm = getattr(f, 'isvm', False)
                    out.append((f, CD) if vm else x)
                return out
            mf, mf2, mf3 = costed(mf), costed(mf2), costed(mf3)
            merged = []; a_, c_ = list(ep), list(mf)
            ra = len(a_) / max(1, len(a_) + len(c_)); acc_ = 0.0
            while a_ or c_:
                acc_ += ra
                if (acc_ >= 1.0 - 1e-9 and a_) or not c_:
                    acc_ -= 1.0; merged.append(a_.pop(0))
                else: merged.append(c_.pop(0))
            end = len(mains) if g < 3 else len(mains) - 2
            if o.get('x_nowd'): mf3 = []
            if mf2: segs.append((pos[2], pos[12], mf2) if g else (pos[0], pos[6], mf2))
            if mf3: segs.append((pos[12] if mf2 else pos[2], pos[27] if g < 3 else pos[10], mf3))
            segs.append((pos[8] if (g == 0 and H1F) else (pos[KF + 2] if g > 0 else base), end, merged))
        self.sched(mains, None, segs=segs)
        self.stamp(18)
        e(f's_mov_b32 s{S_T4}, {3*112*1024}')
        for f in fin_ops(3): f()
        for u_ in range(2): fold_mfma(3, u_)()
        for f in epilogue_ops(3): (f[0] if isinstance(f, tuple) else f)()
        self.stamp(19)
        for x, n in ((vD,1),(vB,1),(vS,1),(t,1),(t2,1),(cs,32),(vA,1),(vG2,1),(vC,1),(sg2,6),(B,4*NB),(SB,8),(ones,4),(SG,8),(acc[0],32),(acc[1],32),(st,6),(par,3),(tmp,8),(pk,8),(vP,1),(vPw,1),(vBq,4),(vS2,1),(csA,8),(mB,4)):
            V.free(x, n)
        pass
        self.wait_lg('wdr3')
        for k_ in range(15, 19):
            for f in self.wd_dma(k_, 'wdD'): f()
        self.wait_vm('act'); e('s_barrier')
        e(f's_lshl_b32 s{S_T1}, s{S_RB}, 4\ns_add_u32 s{S_T1}, s{S_T1}, s{S_FB}')
        self.signal(WS_FLAG3, f's{S_T1}')
        self.stamp(20)

    def phaseC(self):
        e = self.e; V = self.V; o = self.o
        self.c('================= phase C')
        t = V.alloc(1); t2 = V.alloc(1)
        self.wait_all_lg()
        for k_ in range(19, 24):
            for f in self.wd_dma(k_, 'wdE'): f()
        self.wait_vm('wdC')
        for k_ in range(9, 15):
            for f in self.wd_reads(k_): f()
        self.wait_all_lg()
        for k_ in range(24, 28):
            for f in self.wd_dma(k_, 'wdF'): f()
        self.stamp(21)
        self.wait_vm('wdF')
        e(f's_lshr_b32 s{S_T0}, s{S_RB2}, 1\ns_mul_i32 s{S_T0}, s{S_T0}, {16*FLAG_STRIDE}')
        self.poll_flags(WS_FLAG3, 16, 1, sbase=S_T0, sleep=self.o.get('wsleep3', 1))
        self.vm.drain(); self.lg.drain()
        self.stamp(22)
        vA = V.alloc(1)
        e(f's_mul_i32 s{S_T0}, s{S_RB2}, {2*112}\ns_mul_i32 s{S_T1}, s{S_W}, 28\ns_add_u32 s{S_T0}, s{S_T0}, s{S_T1}\ns_lshl_b32 s{S_T0}, s{S_T0}, 10\ns_add_u32 s{S_T0}, s{S_T0}, {WS_ACT}\nv_lshl_add_u32 v{vA}, v1, 4, s{S_T0}')
        NR = o.get('NR', 14)
        Bf = V.alloc(4 * NR, 4); acc = V.alloc(64, 4)
        def ld(i):
            nt, k = divmod(i, 28)
            e(f's_add_u32 s{S_T1}, s{S_RA0 + k//7}, {(nt*112 + k%7)*1024}')
            self.vmem(f'buffer_load_dwordx4 {vr(Bf+4*(i%NR),4)}, v{vA}, s[{R_WS}:{R_WS+3}], s{S_T1} offen {o.get("aflags", "sc1")}', f'a{i}')
        for i in range(NR): ld(i)
        for k_ in range(15, 28):
            for f in self.wd_reads(k_): f()
        self.wait_all_lg(); e('s_barrier')
        V.free(self.vWD, 2); V.free(self.vWT, 6)
        hres = V.alloc(8, 4); vR = V.alloc(1)
        e(f's_lshl_b32 s{S_T0}, s{S_RB2}, 1\ns_and_b32 s{S_T1}, s{S_W}, 1\ns_add_u32 s{S_T0}, s{S_T0}, s{S_T1}\ns_mul_i32 s{S_T0}, s{S_T0}, 28')
        e(f's_lshl_b32 s{S_T1}, s{S_DB}, 2\ns_add_u32 s{S_T0}, s{S_T0}, s{S_T1}\ns_and_b32 s{S_T1}, s{S_W}, 2\ns_add_u32 s{S_T0}, s{S_T0}, s{S_T1}\ns_lshl_b32 s{S_T0}, s{S_T0}, 10\ns_add_u32 s{S_T0}, s{S_T0}, {WS_HD}\nv_lshl_add_u32 v{vR}, v1, 4, s{S_T0}')
        A = lambda mt, nt: acc + 16 * (2 * mt + nt)
        ra = V.alloc(1)
        e(f's_lshl_b32 s{S_T0}, s{S_W}, 12\nv_lshl_add_u32 v{ra}, v1, 4, s{S_T0}')
        def redw(T, q): return lambda: self.ds(f'ds_write_b128 v{ra}, {vr(acc+16*T+4*q,4)} offset:{T*16384 + q*1024}', 'redw')
        mains = []
        for i in range(56):
            nt, k = divmod(i, 28)
            for mt in range(2):
                cin = '0' if k == 0 else vr(A(mt, nt), 16)
                pre = [lambda i=i: self.wait_vm(f'a{i}')] if mt == 0 else []
                post = []
                if mt == 1 and i + NR < 56: post = [lambda i=i: ld(i + NR)]
                if mt == 1 and i == 56 - NR:
                    post = post + [lambda kk=kk: self.vmem(f'buffer_load_dwordx4 {vr(hres+4*kk,4)}, v{vR}, s[{R_WS}:{R_WS+3}], 0 offen offset:{1024*kk} sc1', 'hres') for kk in range(2)]
                mains.append((pre, lambda mt=mt, nt=nt, k=k, i=i, cin=cin: e(f'v_mfma_f32_32x32x16_bf16 {vr(A(mt,nt),16)}, {ar(8*k+4*mt,4)}, {vr(Bf+4*(i%NR),4)}, {cin}'), 32, post))
        self.sched(mains, None, segs=[(62, 100, [(redw(T, q), 3) for T in (0, 2) for q in range(4)])])
        self.stamp(23)
        V.free(Bf, 4 * NR)
        for T in (1, 3):
            for q in range(4): redw(T, q)()
        self.wait_all_lg()
        e('s_barrier')
        rr = V.alloc(64, 4); keep = rr
        e(f's_lshl_b32 s{S_T0}, s{S_W}, 14\nv_lshl_add_u32 v{ra}, v1, 4, s{S_T0}')
        for j in range(4):
            for q in range(4): self.ds(f'ds_read_b128 {vr(rr+16*j+4*q,4)}, v{ra} offset:{j*4096 + q*1024}', f'rr{j}')
        vO = V.alloc(1)
        e(f'v_and_b32 v{t}, 31, v1\nv_mul_u32_u24 v{vO}, 896, v{t}\nv_lshrrev_b32 v{t}, 5, v1\nv_lshl_add_u32 v{vO}, v{t}, 4, v{vO}')
        e(f's_lshl_b32 s{S_T0}, s{S_RB2}, 1\ns_and_b32 s{S_T1}, s{S_W}, 1\ns_add_u32 s{S_T0}, s{S_T0}, s{S_T1}\ns_mul_i32 s{S_T0}, s{S_T0}, {32*896}')
        e(f's_lshl_b32 s{S_T1}, s{S_DB}, 7\ns_add_u32 s{S_T0}, s{S_T0}, s{S_T1}\ns_and_b32 s{S_T1}, s{S_W}, 2\ns_lshl_b32 s{S_T1}, s{S_T1}, 5\ns_add_u32 s{S_T0}, s{S_T0}, s{S_T1}\nv_add_u32 v{vO}, s{S_T0}, v{vO}')
        for j in range(1, 4):
            self.wait_lg(f'rr{j}')
            for i in range(0, 16, 2): e(f'v_pk_add_f32 {vr(keep+i,2)}, {vr(keep+i,2)}, {vr(rr+16*j+i,2)}')
        self.wait_vm('hres')
        P = V.alloc(8, 4); w8 = rr + 16
        for d in range(8): e(f'v_cvt_pk_bf16_f32 v{P+d}, v{keep+2*d}, v{keep+2*d+1}')
        for d in range(8):
            e(f'v_lshlrev_b32 v{w8+2*d}, 16, v{P+d}\nv_and_b32 v{w8+2*d+1}, 0xffff0000, v{P+d}')
            e(f'v_lshlrev_b32 v{w8+16+2*d}, 16, v{hres+d}\nv_and_b32 v{w8+16+2*d+1}, 0xffff0000, v{hres+d}')
        for d in range(8): e(f'v_pk_add_f32 {vr(w8+2*d,2)}, {vr(w8+2*d,2)}, {vr(w8+16+2*d,2)}')
        for d in range(8): e(f'v_cvt_pk_bf16_f32 v{P+d}, v{w8+2*d}, v{w8+2*d+1}')
        for kk in range(2):
            b = P + 4 * kk
            e(f'v_permlane32_swap_b32 v{b}, v{b+2}\nv_permlane32_swap_b32 v{b+1}, v{b+3}')
        for kk in range(2):
            self.vmem(f'buffer_store_dwordx4 {vr(P+4*kk,4)}, v{vO}, s[{R_OUT}:{R_OUT+3}], 0 offen offset:{32*kk} {o.get("outflags", "")}', 'out')
        self.stamp(24)

    def build(self):
        e = self.e
        self.prologue()
        saveV = list(self.V.used)
        self.helper()
        self.V.used = saveV; self.vm.drain(); self.lg.drain()
        self.label('L_worker')
        self.phaseA()
        upto = self.o.get('upto', 'C')
        if upto in ('B', 'C'): self.phaseB()
        if upto == 'C': self.phaseC()
        self.stamps_out()
        if self.o.get('padto'):
            e('s_waitcnt vmcnt(0)')
            self.label('L_pad')
            e(f's_memrealtime s[{S_TS}:{S_TS+1}]\ns_waitcnt lgkmcnt(0)\ns_sub_u32 s{S_TS}, s{S_TS}, s{S_TS+6}\ns_cmp_lt_u32 s{S_TS}, {self.o.get("padto")}\ns_cbranch_scc1 L_pad')
        self.label('L_end')
        e('s_endpgm')

HEADER = open(os.path.join(os.path.dirname(os.path.abspath(__file__)), 'header.txt')).read() if os.path.exists(os.path.join(os.path.dirname(os.path.abspath(__file__)), 'header.txt')) else ''

def generate(opt):
    g = Gen(opt)
    g.build()
    lines, problems = fix_hazards(g.lines, verbose=opt.get('verbose', False))
    for p in problems: print('BACKEDGE HAZARD:', p, file=sys.stderr)
    out = [HEADER.rstrip('\n').replace('@@GRID@@', f'; @launch grid=(256,1,1) block=(256,1,1) lds={LDS_SIZE}')]
    out += ['.amdgcn_target "amdgcn-amd-amdhsa--gfx950"', '.text', f'.globl {NAME}', '.p2align 8', f'.type {NAME},@function', f'{NAME}:']
    for l in lines:
        out.append(l if l.endswith(':') else '    ' + l)
    out += ['.section .rodata,"a"', '.p2align 6', f'.amdhsa_kernel {NAME}',
            '  .amdhsa_next_free_vgpr 512', '  .amdhsa_next_free_sgpr 102', '  .amdhsa_accum_offset 256',
            '  .amdhsa_group_segment_fixed_size 0', '  .amdhsa_kernarg_size 128', '  .amdhsa_user_sgpr_count 2',
            '  .amdhsa_user_sgpr_kernarg_segment_ptr 1', '  .amdhsa_system_sgpr_workgroup_id_x 1',
            '  .amdhsa_float_denorm_mode_32 3', '.end_amdhsa_kernel', '']
    if opt.get('verbose'): print('max arch vgpr', g.V.hi, 'lines', len(lines))
    return '\n'.join(out)

if __name__ == '__main__':
    import json
    opt = json.loads(sys.argv[2]) if len(sys.argv) > 2 else {}
    opt['verbose'] = True
    txt = generate(opt)
    open(sys.argv[1], 'w').write(txt)
```

```python
import sys, os, math, struct
sys.path.insert(0, os.path.dirname(os.path.abspath(__file__)))
from asmlib import *

NAME = 'sequential_preLN__ssm_conv_s4__swiglu_ffn__prompt_kernel'
def f2u(x): return struct.unpack('<I', struct.pack('<f', x))[0]
def fx(x): return hex(f2u(x))
LOG2E = 1.4426950408889634
WS_STATS = 0x0
WS_FLAG2 = 0x4000
WS_FLAG3 = 0xC000
WS_STATS2 = 0x10000
WS_CS    = 0x14000
WS_HT    = 0x20000
HT_STRIDE = 4352
WS_HD    = 0x200000
WS_ACT   = 0x400000
WS_XT    = 0xB00000
XT_STRIDE = 4352
WS_DBG   = 0xE00000
WS_SIZE  = 0x2000000
FLAG_STRIDE = 16
TBL_E = 1088; TBL_C = 18 * TBL_E
L_TBL = 0
L_EX = 2 * TBL_C
L_K32 = 55680; K32_C = 9344
L_RED = L_K32
L_STG = 87040; STG_SLOT = 8192
L_STGX = 74496
L_KC = 0; KC_S = 4160; KC_C = 4 * KC_S
L_U = 2 * KC_C; U_C = 5120
L_X = L_U + 2 * U_C; X_C = 4096
LDS_SIZE = 163840
HX_STRIDE = 912
S_X, S_ARE, S_AIM, S_BRE, S_BIM, S_CRE, S_CIM, S_LDT, S_DSK, S_BX, S_WG, S_WU, S_WD, S_OUT, S_DBG, S_WS = range(4, 36, 2)
R_X, R_WS, R_DBG, R_WG, R_WU, R_WD, R_OUT = 36, 40, 44, 48, 52, 56, 60
S_W, S_NONCE, S_XCD, S_J, S_CP, S_T0, S_T1, S_T2, S_T3, S_T4, S_T5 = 64, 65, 66, 67, 68, 69, 70, 71, 72, 73, 74
S_LD, S_DK = 75, 76
S_RB, S_FB, S_RB2, S_DB = 77, 78, 79, 80
S_M0, S_M1, S_M2, S_M3 = 82, 84, 86, 88
S_CNT = 90
S_HID = 91
S_WM, S_WO, S_US = 81, 100, 101
S_ROT = 99
S_WA, S_WB, S_WC = 18, 19, 20
S_RW0, S_RA0 = 24, 28
S_Q0 = 14
S_TS = 92
SPIN_MAX = 5000

class Gen(Asm):
    def __init__(self, opt):
        super().__init__()
        self.o = opt
        self.V = Regs('v', 256, start=2)
        if opt.get('stamps'): self.V.take(254, 2)
        self.V.take(250, 4)
        self.uid = 0
    def lab(self, s):
        self.uid += 1
        return f'L{s}_{self.uid}'
    def srd(self, r, ptr, size):
        self.e(f's_mov_b32 s{r}, s{ptr}\ns_mov_b32 s{r+1}, s{ptr+1}\ns_mov_b32 s{r+2}, {hex(size)}\ns_mov_b32 s{r+3}, 0x20000')
    def cmul(self, d, a, b, t=None):
        t = d if t is None else t
        self.e(f'v_pk_mul_f32 {vr(t,2)}, {vr(a,2)}, {vr(b,2)} op_sel:[0,0] op_sel_hi:[0,1]')
        self.e(f'v_pk_fma_f32 {vr(d,2)}, {vr(a,2)}, {vr(b,2)}, {vr(t,2)} op_sel:[1,1,0] op_sel_hi:[1,0,1] neg_lo:[0,1,0]')
    def cmul_multi(self, items):
        for d, a, b, t in items:
            t = d if t is None else t
            self.e(f'v_pk_mul_f32 {vr(t,2)}, {vr(a,2)}, {vr(b,2)} op_sel:[0,0] op_sel_hi:[0,1]')
        for d, a, b, t in items:
            t = d if t is None else t
            self.e(f'v_pk_fma_f32 {vr(d,2)}, {vr(a,2)}, {vr(b,2)}, {vr(t,2)} op_sel:[1,1,0] op_sel_hi:[1,0,1] neg_lo:[0,1,0]')
    def stamp(self, i):
        dm = self.o.get('dbgmap')
        if dm and i in dm:
            lab = self.lab('ds')
            self.e(f's_cmp_lg_u32 s2, {self.o.get("dbgwg", 8)}\ns_cbranch_scc1 {lab}\ns_cmp_lg_u32 s{S_W}, 0\ns_cbranch_scc1 {lab}')
            self.e(f's_memrealtime s[{S_TS}:{S_TS+1}]\ns_waitcnt lgkmcnt(0)')
            v = self.V.alloc(2)
            self.e(f's_sub_u32 s{S_TS}, s{S_TS}, s{S_TS+6}\nv_mov_b32 v{v}, s{S_TS}\nv_mov_b32 v{v+1}, {4*(1+dm.index(i))}')
            self.e(f's_mov_b64 s[{S_TS+4}:{S_TS+5}], exec\ns_mov_b64 exec, 1')
            self.e(f'buffer_store_dword v{v}, v{v+1}, s[{R_DBG}:{R_DBG+3}], 0 offen')
            self.e(f's_mov_b64 exec, s[{S_TS+4}:{S_TS+5}]')
            self.V.free(v, 2)
            self.label(lab)
            self.e('s_waitcnt lgkmcnt(0)')
            self.lg.drain()
        if self.o.get('stamps') and (self.o.get('only') is None or i in self.o['only']):
            self.e(f's_memrealtime s[{S_TS}:{S_TS+1}]\ns_memtime s[{S_TS+4}:{S_TS+5}]')
            self.e('s_waitcnt lgkmcnt(0)'); self.lg.drain()
            self.e(f'v_writelane_b32 v254, s{S_TS}, {i}\nv_writelane_b32 v255, s{S_TS+4}, {i}')

    def stamps_out(self):
        if self.o.get('stamps'):
            e = self.e
            e(f's_lshl_b32 s{S_TS+2}, s2, 10\ns_lshl_b32 s{S_TS+3}, s{S_W}, 8\ns_add_u32 s{S_TS+2}, s{S_TS+2}, s{S_TS+3}\ns_add_u32 s{S_TS+2}, s{S_TS+2}, {WS_DBG}')
            e(f'v_lshl_add_u32 v252, v1, 2, s{S_TS+2}\ns_mov_b32 exec_lo, -1\ns_mov_b32 exec_hi, 0')
            e(f'buffer_store_dword v254, v252, s[{R_WS}:{R_WS+3}], 0 offen\nbuffer_store_dword v255, v252, s[{R_WS}:{R_WS+3}], 0 offen offset:128')

    def prologue(self):
        e = self.e
        e(f's_cmp_ge_u32 s2, 256\ns_cbranch_scc1 L_end')
        e(f's_load_dwordx16 s[4:19], s[0:1], 0\ns_load_dwordx16 s[20:35], s[0:1], 64')
        e(f's_memrealtime s[{S_M0}:{S_M0+1}]')
        e('v_and_b32 v1, 63, v0')
        if self.o.get('codepf', True):
            lpc = self.lab('pc'); a = 250
            e(f's_getpc_b64 s[{S_M2}:{S_M2+1}]')
            self.label(lpc)
            e(f's_sub_u32 s{S_M2}, s{S_M2}, {lpc}-{NAME}\ns_subb_u32 s{S_M2+1}, s{S_M2+1}, 0')
            e(f's_lshr_b32 s{S_T0}, s2, 3\ns_lshl_b32 s{S_T0}, s{S_T0}, 4')
            e(f'v_lshrrev_b32 v{a}, 6, v0\nv_lshl_add_u32 v{a}, v{a}, 2, v1\nv_add_u32 v{a}, s{S_T0}, v{a}\nv_lshlrev_b32 v{a}, 7, v{a}\nv_min_u32 v{a}, L_end-{NAME}, v{a}')
            e(f'v_mov_b32 v{a+3}, s{S_M2+1}\nv_add_co_u32 v{a+2}, vcc, s{S_M2}, v{a}\nv_addc_co_u32 v{a+3}, vcc, 0, v{a+3}, vcc')
            e(f's_mov_b64 s[{S_M1}:{S_M1+1}], exec\ns_mov_b64 exec, 15')
            e(f'global_load_dword v{a+1}, v[{a+2}:{a+3}], off')
            e(f's_mov_b64 exec, s[{S_M1}:{S_M1+1}]')
        if self.o.get('stamps'): e('v_mov_b32 v254, 0x5a5a5a5a\nv_mov_b32 v255, 0x5a5a5a5a')
        v = self.V.alloc(1)
        e(f'v_lshrrev_b32 v{v}, 6, v0')
        e(f's_and_b32 s{S_XCD}, s2, 7\ns_lshr_b32 s{S_J}, s2, 3')
        e(f'v_readfirstlane_b32 s{S_W}, v{v}')
        self.V.free(v)
        e(f's_cmp_lt_u32 s{S_J}, 4\ns_cbranch_scc1 L_helper')
        e(f's_sub_u32 s{S_J}, s{S_J}, 4\ns_mul_i32 s{S_CP}, s{S_XCD}, 28\ns_add_u32 s{S_CP}, s{S_CP}, s{S_J}\ns_branch L_worker')
        self.label('L_helper')

    def srds(self, skip=()):
        e = self.e
        for r, p, n in ((R_X, S_X, 2048*448*2), (R_WS, S_WS, WS_SIZE), (R_DBG, S_DBG, 256), (R_WG, S_WG, 448*1792*2), (R_WU, S_WU, 448*1792*2),
                        (R_WD, S_WD, 448*1792*2), (R_OUT, S_OUT, 2048*448*2)):
            if r not in skip: self.srd(r, p, n)

    def publish_nonce(self):
        e = self.e
        e(f's_or_b32 s{S_NONCE}, s{S_M0}, 1\ns_mov_b32 s{S_TS+6}, s{S_M0}')
        lab = self.lab('non')
        e(f's_or_b32 s{S_T0}, s2, s{S_W}\ns_cmp_lg_u32 s{S_T0}, 0\ns_cbranch_scc1 {lab}')
        v = self.V.alloc(2)
        e(f'v_mov_b32 v{v}, s{S_NONCE}\nv_mov_b32 v{v+1}, 0')
        e(f's_mov_b64 s[{S_M1}:{S_M1+1}], exec\ns_mov_b64 exec, 1')
        e(f'buffer_store_dword v{v}, v{v+1}, s[{R_DBG}:{R_DBG+3}], 0 offen sc1')
        e(f's_mov_b64 exec, s[{S_M1}:{S_M1+1}]')
        self.V.free(v, 2)
        self.label(lab)

    def capture(self, fn):
        save = self.lines; self.lines = []
        r = fn()
        fl = self.lines; self.lines = save
        return r, [(lambda l=l: self.e(l)) for l in fl if not l.startswith(';')]

    def region(self, fn):
        save = self.lines; self.lines = []
        r = fn()
        fl = self.lines; self.lines = save
        self.lines.extend(resched(fl) if self.o.get('resched', True) else fl)
        return r

    def two_paths(self, fn, nop=7):
        e = self.e; l1 = self.lab('p1'); ld = self.lab('pd')
        e(f's_and_b32 s{S_T5}, s{S_W}, 1\ns_cmp_lg_u32 s{S_T5}, 0\ns_cbranch_scc1 {l1}')
        st = (list(self.vm.q), list(self.lg.q), list(self.V.used))
        fn(0)
        e(f's_branch {ld}')
        end = (list(self.vm.q), list(self.lg.q), list(self.V.used))
        self.vm.q, self.lg.q, self.V.used = list(st[0]), list(st[1]), list(st[2])
        self.label(l1)
        e(f's_nop {nop}')
        fn(1)
        assert (self.vm.q, self.lg.q, self.V.used) == end, 'paths diverge'
        self.label(ld)

    def get_nonce(self):
        e = self.e
        v = self.V.alloc(2)
        l0 = self.lab('gn'); l1 = self.lab('gnd')
        e(f'v_mov_b32 v{v+1}, 0\ns_mov_b32 s{S_CNT}, 0')
        self.label(l0)
        e(f'buffer_load_dword v{v}, v{v+1}, s[{R_DBG}:{R_DBG+3}], 0 offen sc1')
        e('s_waitcnt vmcnt(0)'); self.vm.drain()
        e(f'v_readfirstlane_b32 s{S_NONCE}, v{v}')
        e(f's_cmp_lg_u32 s{S_NONCE}, 0\ns_cbranch_scc1 {l1}')
        e(f's_add_u32 s{S_CNT}, s{S_CNT}, 1\ns_cmp_lt_u32 s{S_CNT}, {SPIN_MAX}\ns_cbranch_scc1 {l0}')
        self.label(l1)
        self.V.free(v, 2)

    def helper(self):
        e = self.e; V = self.V
        self.c('================= helper: x^T + LN1 stats')
        e('s_waitcnt lgkmcnt(0)')
        self.srd(R_DBG, S_DBG, 256)
        self.publish_nonce()
        self.srd(R_X, S_X, 2048*448*2)
        e(f's_mov_b32 s{S_TS+6}, s{S_M0}')
        e(f's_lshl_b32 s{S_T0}, s{S_XCD}, 2\ns_add_u32 s{S_HID}, s{S_J}, s{S_T0}')
        va = V.alloc(1); t0 = V.alloc(1); t1 = V.alloc(1)
        e(f's_lshl_b32 s{S_T0}, s{S_HID}, 6\ns_lshl_b32 s{S_T1}, s{S_W}, 4\ns_add_u32 s{S_T0}, s{S_T0}, s{S_T1}')
        e(f's_mul_i32 s{S_T2}, s{S_T0}, 896\ns_mul_i32 s{S_T3}, s{S_T1}, {HX_STRIDE}')
        e(f'v_lshlrev_b32 v{va}, 4, v1')
        e(f's_mov_b64 s[{S_M1}:{S_M1+1}], exec\ns_mov_b32 exec_lo, -1\ns_mov_b32 exec_hi, 0x00ffffff')
        for r in range(16):
            e(f's_add_u32 m0, s{S_T3}, {r*HX_STRIDE}\ns_add_u32 s{S_T4}, s{S_T2}, {r*896}')
            self.vmem(f'buffer_load_dwordx4 v{va}, s[{R_X}:{R_X+3}], s{S_T4} offen lds', 'x')
        e(f's_mov_b64 exec, s[{S_M1}:{S_M1+1}]')
        self.srds(skip=(R_X, R_DBG))
        self.stamp(0)
        vT = V.alloc(1); vO = V.alloc(1); vA = V.alloc(1)
        e(f'v_lshrrev_b32 v{t0}, 4, v1\nv_lshlrev_b32 v{t0}, 1, v{t0}\nv_bfe_u32 v{t1}, v1, 1, 1\nv_add_u32 v{t0}, v{t0}, v{t1}\nv_lshlrev_b32 v{t0}, 3, v{t0}')
        e(f'v_bfe_u32 v{t1}, v1, 2, 2\nv_add_u32 v{t0}, v{t0}, v{t1}\nv_mul_u32_u24 v{vT}, {HX_STRIDE}, v{t0}')
        e(f'v_and_b32 v{t1}, 1, v1\nv_lshl_add_u32 v{vT}, v{t1}, 3, v{vT}\ns_lshl_b32 s{S_T0}, s{S_W}, 4\nv_add_u32 v{vT}, s{S_T0}, v{vT}')
        e(f's_lshl_b32 s{S_T0}, s{S_W}, 15\ns_lshl_b32 s{S_T1}, s{S_HID}, 10\ns_add_u32 s{S_T0}, s{S_T0}, s{S_T1}\ns_add_u32 s{S_T0}, s{S_T0}, {WS_XT}\nv_lshl_add_u32 v{vO}, v1, 4, s{S_T0}')
        e(f'v_and_b32 v{t0}, 15, v1\nv_lshrrev_b32 v{t1}, 4, v1')
        e(f's_lshl_b32 s{S_T0}, s{S_W}, 4\nv_add_u32 v{t0}, s{S_T0}, v{t0}\nv_mul_u32_u24 v{vA}, {HX_STRIDE}, v{t0}\nv_lshl_add_u32 v{vA}, v{t1}, 4, v{vA}')
        e(f's_lshl_b32 s{S_T0}, s{S_HID}, 6\nv_add_u32 v{t0}, s{S_T0}, v{t0}')
        XG = self.o.get('xg', True)
        self.get_nonce()
        Q = V.alloc(56, 4)
        if not XG:
            e('s_barrier')
            self.stamp(3)
            for u in range(14):
                for k_ in range(2):
                    self.ds(f'ds_read_b64_tr_b16 {vr(Q+4*u+2*k_,2)}, v{vT} offset:{64*u + 4*k_*HX_STRIDE}', f'q{u}')
            for u in range(14):
                self.wait_lg(f'q{u}')
                e(f's_mov_b32 s{S_T1}, {u*4*32768}')
                self.vmem(f'buffer_store_dwordx4 {vr(Q+4*u,4)}, v{vO}, s[{R_WS}:{R_WS+3}], s{S_T1} offen sc1', 'xt')
            self.stamp(4)
        else: self.stamp(3)
        xa = V.alloc(56, 4)
        for s in range(14): self.ds(f'ds_read_b128 {vr(xa+4*s,4)}, v{vA} offset:{64*s}', f'x{s}')
        acc = V.alloc(8, 4); ones = V.alloc(4, 4)
        for i in range(4): e(f'v_mov_b32 v{ones+i}, 0x3f803f80')
        e(f's_mov_b32 s6, 0x22222222\ns_mov_b32 s7, 0x22222222\ns_mov_b32 s8, 0x44444444\ns_mov_b32 s9, 0x44444444\ns_mov_b32 s10, 0x88888888\ns_mov_b32 s11, 0x88888888\ns_mov_b32 s12, 0x00f0000f\ns_mov_b32 s13, 0xf0000f00')
        for s in range(14):
            self.wait_lg(f'x{s}')
            e(f'v_mfma_f32_16x16x32_bf16 {vr(acc,4)}, {vr(xa+4*s,4)}, {vr(xa+4*s,4)}, {"0" if s == 0 else vr(acc,4)}')
            e(f'v_mfma_f32_16x16x32_bf16 {vr(acc+4,4)}, {vr(ones,4)}, {vr(xa+4*s,4)}, {"0" if s == 0 else vr(acc+4,4)}')
        e(f'v_cndmask_b32 v{acc}, v{acc}, v{acc+1}, s[6:7]\nv_cndmask_b32 v{acc}, v{acc}, v{acc+2}, s[8:9]\nv_cndmask_b32 v{acc+5}, v{acc}, v{acc+3}, s[10:11]')
        e(f'v_mov_b32 v{acc}, v{acc+4}\nv_mov_b32 v{acc+4}, v{acc+5}')
        S = acc; Qs = acc + 4
        pk = V.alloc(2, 2)
        self.ln_finalize(S, Qs, acc + 1, acc + 2, acc + 3)
        e(f'v_lshrrev_b32 v{pk}, 16, v{acc+1}\nv_or_b32 v{pk}, v{pk}, v{acc+2}')
        self.stamp(5)
        if not XG:
            self.wait_all_vm()
            e('s_barrier')
        self.stamp(6)
        e(f'v_mov_b32 v{pk+1}, s{S_NONCE}')
        e(f'v_lshlrev_b32 v{t0}, 3, v{t0}')
        if WS_STATS: e(f'v_add_u32 v{t0}, {WS_STATS}, v{t0}')
        e(f's_mov_b64 s[{S_M1}:{S_M1+1}], exec\ns_mov_b64 exec, s[12:13]')
        self.vmem(f'buffer_store_dwordx2 {vr(pk,2)}, v{t0}, s[{R_WS}:{R_WS+3}], 0 offen sc1', 'st')
        e(f's_mov_b64 exec, s[{S_M1}:{S_M1+1}]')
        self.stamp(1)
        V.free(pk, 2); V.free(acc, 8); V.free(ones, 4); V.free(xa, 56); V.free(Q, 56); V.free(vT); V.free(vO); V.free(vA)
        e('s_barrier')
        if self.o.get('hcs', True):
            self.c('helper: column sums')
            wv = V.alloc(28 * 4, 4); cs = V.alloc(8, 2)
            lg = self.lab('hg'); ld = self.lab('hd')
            e(f'v_lshrrev_b32 v{t0}, 4, v0\nv_and_b32 v{t1}, 15, v0')
            e(f'v_mul_u32_u24 v{va}, 3584, v{t0}\nv_min_u32 v{t1}, 13, v{t1}\nv_lshl_add_u32 v{va}, v{t1}, 4, v{va}')
            e(f's_and_b32 s{S_T0}, s{S_HID}, 15\ns_mul_i32 s{S_T0}, s{S_T0}, 224')
            e(f'v_add_u32 v{va}, s{S_T0}, v{va}')
            e(f's_cmp_ge_u32 s{S_HID}, 16\ns_cbranch_scc1 {lg}')
            save = list(self.vm.q)
            for k in range(28):
                e(f's_mov_b32 s{S_T1}, {k*16*3584}')
                self.vmem(f'buffer_load_dwordx4 {vr(wv+4*k,4)}, v{va}, s[{R_WG}:{R_WG+3}], s{S_T1} offen', f'w{k}')
            e(f's_branch {ld}')
            self.label(lg)
            self.vm.q = list(save)
            for k in range(28):
                e(f's_mov_b32 s{S_T1}, {k*16*3584}')
                self.vmem(f'buffer_load_dwordx4 {vr(wv+4*k,4)}, v{va}, s[{R_WU}:{R_WU+3}], s{S_T1} offen', f'w{k}')
            self.label(ld)
            e(f's_mov_b32 s{S_T2}, 0x00003f80\ns_mov_b32 s{S_T3}, 0x3f800000')
            for i in range(8): e(f'v_mov_b32 v{cs+i}, 0')
            for k in range(28):
                self.wait_vm(f'w{k}')
                for r in range(4):
                    e(f'v_dot2_f32_bf16 v{cs+2*r}, v{wv+4*k+r}, s{S_T2}, v{cs+2*r}')
                    e(f'v_dot2_f32_bf16 v{cs+2*r+1}, v{wv+4*k+r}, s{S_T3}, v{cs+2*r+1}')
            tmp = V.alloc(8, 2)
            for swap in ('v_permlane32_swap_b32', 'v_permlane16_swap_b32'):
                for i in range(8): e(f'v_mov_b32 v{tmp+i}, v{cs+i}')
                for i in range(8): e(f'{swap} v{cs+i}, v{tmp+i}')
                for i in range(8): e(f'v_add_f32 v{cs+i}, v{cs+i}, v{tmp+i}')
            e(f'v_and_b32 v{t1}, 15, v1\nv_lshlrev_b32 v{t0}, 5, v{t1}\ns_lshl_b32 s{S_T0}, s{S_W}, 9\nv_add_u32 v{t0}, s{S_T0}, v{t0}')
            self.ds(f'ds_write_b128 v{t0}, {vr(cs,4)}'); self.ds(f'ds_write_b128 v{t0}, {vr(cs+4,4)} offset:16')
            self.wait_all_lg(); e('s_barrier')
            e(f'v_lshlrev_b32 v{t0}, 2, v0')
            for w in range(4): self.ds(f'ds_read_b32 v{tmp+w}, v{t0} offset:{512*w}')
            self.wait_all_lg()
            e(f'v_add_f32 v{tmp}, v{tmp}, v{tmp+1}\nv_add_f32 v{tmp+2}, v{tmp+2}, v{tmp+3}\nv_add_f32 v{tmp}, v{tmp}, v{tmp+2}')
            e(f's_mul_i32 s{S_T0}, s{S_HID}, 448\ns_add_u32 s{S_T0}, s{S_T0}, {WS_CS}\nv_add_u32 v{t0}, s{S_T0}, v{t0}')
            e(f'v_cmp_gt_u32 vcc, 112, v0\ns_and_saveexec_b64 s[{S_M1}:{S_M1+1}], vcc')
            lx = self.lab('hcs')
            e(f's_cbranch_execz {lx}')
            e(f'buffer_store_dword v{tmp}, v{t0}, s[{R_WS}:{R_WS+3}], 0 offen sc1')
            self.label(lx)
            e(f's_mov_b64 exec, s[{S_M1}:{S_M1+1}]')
            V.free(tmp, 8); V.free(cs, 8); V.free(wv, 112)
            self.wait_all_vm(); e('s_barrier')
            self.signal(WS_FLAG2, 's2')
            self.stamp(10)
        tw = self.o.get('touch_wd', 'mall')
        if tw:
            nl = 13 if tw == 'l2' else 2
            tv = V.alloc(13); ta = V.alloc(2)
            if tw == 'l2': e(f's_mul_i32 s{S_T0}, s{S_J}, {448*896}')
            else: e(f's_mul_i32 s{S_T0}, s{S_HID}, {56*896}')
            for k in range(nl):
                e(f'v_add_u32 v{ta}, {256*k}, v0\nv_min_u32 v{ta}, {3135 if tw == "l2" else 391}, v{ta}\nv_mul_u32_u24 v{ta+1}, 9363, v{ta}\nv_lshrrev_b32 v{ta+1}, 16, v{ta+1}')
                e(f'v_mul_u32_u24 v{tv+k}, 7, v{ta+1}\nv_sub_u32 v{ta}, v{ta}, v{tv+k}\nv_mul_u32_u24 v{ta+1}, 896, v{ta+1}\nv_lshl_add_u32 v{ta+1}, v{ta}, 7, v{ta+1}')
                e(f'buffer_load_dword v{tv+k}, v{ta+1}, s[{R_WD}:{R_WD+3}], s{S_T0} offen')
            self.wait_all_vm()
            V.free(tv, 13); V.free(ta, 2)
        self.c('helper: LN2 stats + hD')
        vD = V.alloc(1); vB = V.alloc(2); vS = V.alloc(1); vHs = V.alloc(1)
        e(f'v_lshrrev_b32 v{t0}, 3, v1\nv_mul_u32_u24 v{vD}, {HT_STRIDE}, v{t0}\nv_bfe_u32 v{t0}, v1, 4, 1\nv_lshlrev_b32 v{t0}, 2, v{t0}\nv_and_b32 v{t1}, 7, v1\nv_xor_b32 v{t0}, v{t0}, v{t1}\nv_lshl_add_u32 v{vD}, v{t0}, 4, v{vD}')
        e(f's_lshl_b32 s{S_T0}, s{S_HID}, 7\ns_mul_i32 s{S_T1}, s{S_W}, {8*HT_STRIDE}\ns_add_u32 s{S_T0}, s{S_T0}, s{S_T1}\ns_add_u32 s{S_T0}, s{S_T0}, {WS_HT}\nv_add_u32 v{vD}, s{S_T0}, v{vD}')
        e(f'v_lshrrev_b32 v{t0}, 5, v1\nv_lshlrev_b32 v{vB}, 9, v{t0}\nv_bfe_u32 v{t0}, v1, 2, 2\nv_lshl_add_u32 v{vB}, v{t0}, 7, v{vB}')
        e(f'v_bfe_u32 v{t0}, v1, 4, 1\nv_lshl_add_u32 v{vB}, v{t0}, 5, v{vB}\nv_and_b32 v{t0}, 3, v1\nv_lshl_add_u32 v{vB}, v{t0}, 3, v{vB}')
        e(f'v_bfe_u32 v{t0}, v1, 3, 1\nv_lshlrev_b32 v{t0}, 6, v{t0}\nv_xor_b32 v{t1}, 64, v{t0}\nv_add_u32 v{vB+1}, v{vB}, v{t1}\nv_add_u32 v{vB}, v{vB}, v{t0}')
        e(f'v_lshrrev_b32 v{t0}, 4, v1\nv_lshlrev_b32 v{vS}, 9, v{t0}\nv_bfe_u32 v{t0}, v1, 2, 2\nv_lshl_add_u32 v{vS}, v{t0}, 7, v{vS}\nv_and_b32 v{t0}, 3, v1\nv_lshl_add_u32 v{vS}, v{t0}, 3, v{vS}')
        e(f'v_bfe_u32 v{t0}, v1, 3, 1\ns_lshr_b32 s{S_T0}, s{S_W}, 1\nv_xor_b32 v{t0}, s{S_T0}, v{t0}\nv_lshl_add_u32 v{vS}, v{t0}, 6, v{vS}\ns_and_b32 s{S_T0}, s{S_W}, 1\ns_lshl_b32 s{S_T0}, s{S_T0}, 5\nv_add_u32 v{vS}, s{S_T0}, v{vS}')
        e(f's_mul_i32 s{S_T0}, s{S_HID}, {2*28}\ns_add_u32 s{S_T0}, s{S_T0}, s{S_W}\ns_lshl_b32 s{S_T0}, s{S_T0}, 10\ns_add_u32 s{S_T0}, s{S_T0}, {WS_HD}\nv_lshl_add_u32 v{vHs}, v1, 4, s{S_T0}')
        ones = V.alloc(4, 4); SG = V.alloc(8, 4); SB = V.alloc(56, 4)
        for i in range(4): e(f'v_mov_b32 v{ones+i}, 0x3f803f80')
        K1, K2, K3 = 6, 8, 10
        e(f's_mov_b32 s{K1}, 0x22222222\ns_mov_b32 s{K1+1}, 0x22222222\ns_mov_b32 s{K2}, 0x44444444\ns_mov_b32 s{K2+1}, 0x44444444')
        e(f's_mov_b32 s{K3}, 0x88888888\ns_mov_b32 s{K3+1}, 0x88888888\ns_mov_b32 s12, 0x00f0000f\ns_mov_b32 s13, 0xf0000f00')
        if self.o.get('sentinel', True):
            self.poll_flags(WS_FLAG2 + 255*FLAG_STRIDE, 1, 1, sleep=self.o.get('hsleep', 20))
        self.poll_flags(WS_FLAG2 + 32*FLAG_STRIDE, 64, 4, last_lanes=32, sleep=self.o.get('hsleep2', 4))
        self.vm.drain(); self.lg.drain()
        self.stamp(7)
        e(f's_lshl_b32 s{S_T2}, s{S_W}, 10')
        for i in range(14):
            e(f's_add_u32 m0, s{S_T2}, {i*4096}\ns_mov_b32 s{S_T1}, {i*32*HT_STRIDE}')
            self.vmem(f'buffer_load_dwordx4 v{vD}, s[{R_WS}:{R_WS+3}], s{S_T1} offen sc1 lds', 'h')
        self.wait_all_vm(); e('s_barrier')
        self.stamp(8)
        for i in range(14):
            for h_ in range(2): self.ds(f'ds_read_b64_tr_b16 {vr(SB+4*i+2*h_,2)}, v{vS} offset:{i*4096 + 2048*h_}', f's{i}')
        for i in range(14):
            self.wait_lg(f's{i}')
            e(f'v_mfma_f32_16x16x32_bf16 {vr(SG,4)}, {vr(SB+4*i,4)}, {vr(SB+4*i,4)}, {"0" if i == 0 else vr(SG,4)}')
            e(f'v_mfma_f32_16x16x32_bf16 {vr(SG+4,4)}, {vr(ones,4)}, {vr(SB+4*i,4)}, {"0" if i == 0 else vr(SG+4,4)}')
        HB = V.alloc(56, 4)
        e(f'v_cndmask_b32 v{SG}, v{SG}, v{SG+1}, s[{K1}:{K1+1}]\nv_cndmask_b32 v{SG}, v{SG}, v{SG+2}, s[{K2}:{K2+1}]\nv_cndmask_b32 v{SG+5}, v{SG}, v{SG+3}, s[{K3}:{K3+1}]')
        self.ln_finalize(SG + 4, SG + 5, SG + 1, SG + 2, SG + 3)
        e(f'v_lshrrev_b32 v{SG}, 16, v{SG+1}\nv_or_b32 v{SG}, v{SG}, v{SG+2}\nv_mov_b32 v{SG+1}, s{S_NONCE}')
        e(f'v_and_b32 v{t0}, 15, v1\ns_lshl_b32 s{S_T0}, s{S_HID}, 6\ns_lshl_b32 s{S_T1}, s{S_W}, 4\ns_add_u32 s{S_T0}, s{S_T0}, s{S_T1}\nv_add_u32 v{t0}, s{S_T0}, v{t0}\nv_lshlrev_b32 v{t0}, 3, v{t0}\nv_add_u32 v{t0}, {WS_STATS2}, v{t0}')
        e(f's_mov_b64 s[{S_M1}:{S_M1+1}], exec\ns_mov_b64 exec, s[12:13]')
        self.vmem(f'buffer_store_dwordx2 {vr(SG,2)}, v{t0}, s[{R_WS}:{R_WS+3}], 0 offen sc1', 'st2')
        e(f's_mov_b64 exec, s[{S_M1}:{S_M1+1}]')
        self.stamp(9)
        e(f's_lshl_b32 s{S_T0}, s{S_W}, 11\nv_add_u32 v{vB}, s{S_T0}, v{vB}\nv_add_u32 v{vB+1}, s{S_T0}, v{vB+1}')
        for i in range(7):
            for gp in range(2):
                for h_ in range(2):
                    self.ds(f'ds_read_b64_tr_b16 {vr(HB+8*i+4*gp+2*h_,2)}, v{vB+gp} offset:{i*8192 + 1024*h_}', f'hb{i}_{gp}')
        for i in range(7):
            for gp in range(2):
                self.wait_lg(f'hb{i}_{gp}')
                e(f's_mov_b32 s{S_T1}, {(gp*28 + 4*i)*1024}')
                self.vmem(f'buffer_store_dwordx4 {vr(HB+8*i+4*gp,4)}, v{vHs}, s[{R_WS}:{R_WS+3}], s{S_T1} offen sc1', 'hd')
        self.wait_all_vm(); e('s_barrier')
        e(f's_lshr_b32 s{S_T1}, s{S_HID}, 1\ns_lshl_b32 s{S_T1}, s{S_T1}, 4\ns_and_b32 s{S_T2}, s{S_HID}, 1\ns_add_u32 s{S_T1}, s{S_T1}, s{S_T2}\ns_add_u32 s{S_T1}, s{S_T1}, 14')
        self.signal(WS_FLAG3, f's{S_T1}')
        self.stamp(2)
        self.stamps_out()
        e('s_branch L_end')

    def signal(self, base, sidx):
        e = self.e; V = self.V
        lab = self.lab('sig')
        e(f's_cmp_lg_u32 s{S_W}, 0\ns_cbranch_scc1 {lab}')
        v = V.alloc(2, 2)
        e(f's_mul_i32 s{S_T0}, {sidx}, {FLAG_STRIDE}\ns_add_u32 s{S_T0}, s{S_T0}, {base}')
        e(f'v_mov_b32 v{v}, s{S_NONCE}\nv_mov_b32 v{v+1}, s{S_T0}')
        e(f's_mov_b64 s[{S_M1}:{S_M1+1}], exec\ns_mov_b64 exec, 1')
        e(f'buffer_store_dword v{v}, v{v+1}, s[{R_WS}:{R_WS+3}], 0 offen sc1')
        e(f's_mov_b64 exec, s[{S_M1}:{S_M1+1}]')
        V.free(v, 2)
        self.label(lab)

    def rbf(self, d, s, pre=''):
        self.e(f'v_cvt_pk_bf16_f32 v{d}, v{s}, v{s}\nv_lshlrev_b32 v{d}, 16, v{d}')
    def ln_finalize(self, S, Q, dm, ds_, dt):
        e = self.e
        e(f'v_mul_f32 v{S}, {fx(1/448)}, v{S}')
        e(f'v_mul_f32 v{Q}, {fx(1/448)}, v{Q}')
        e(f'v_fma_f32 v{Q}, -v{S}, v{S}, v{Q}')
        e(f'v_max_f32 v{Q}, 0, v{Q}')
        self.rbf(dm, S)
        self.rbf(dt, Q)
        e(f'v_add_f32 v{dt}, {fx(1e-5)}, v{dt}')
        self.rbf(dt, dt)
        e(f'v_sqrt_f32 v{dt}, v{dt}')
        self.rbf(ds_, dt)

    def w1_setup(self):
        e = self.e; V = self.V
        self.vW1 = V.alloc(1); self.vTS = V.alloc(5)
        t = V.alloc(1); t2 = V.alloc(1)
        e(f'v_lshrrev_b32 v{t}, 4, v1\nv_mul_u32_u24 v{self.vW1}, 3584, v{t}\nv_lshlrev_b32 v{t}, 2, v{t}\nv_and_b32 v{t2}, 15, v1\nv_xor_b32 v{t}, v{t}, v{t2}\nv_lshl_add_u32 v{self.vW1}, v{t}, 4, v{self.vW1}')
        e(f's_lshl_b32 s{S_T0}, s{S_FB}, 8\ns_mul_i32 s{S_T1}, s{S_W}, {4*3584}\ns_add_u32 s{S_T0}, s{S_T0}, s{S_T1}\nv_add_u32 v{self.vW1}, s{S_T0}, v{self.vW1}')
        e(f's_lshl_b32 s{S_WM}, s{S_W}, 10\ns_add_u32 s{S_WM}, s{S_WM}, {L_STG}')
        a = self.vTS
        e(f'v_lshrrev_b32 v{t}, 5, v1\nv_lshlrev_b32 v{a}, 10, v{t}\nv_bfe_u32 v{t}, v1, 2, 2\nv_lshl_add_u32 v{a}, v{t}, 8, v{a}')
        e(f'v_xor_b32 v{t}, s{S_W}, v{t}\nv_lshl_add_u32 v{a}, v{t}, 6, v{a}')
        e(f'v_bfe_u32 v{t}, v1, 4, 1\nv_lshl_add_u32 v{a}, v{t}, 5, v{a}\nv_and_b32 v{t}, 3, v1\nv_lshl_add_u32 v{a}, v{t}, 3, v{a}')
        e(f'v_add_u32 v{a+1}, {L_STGX}, v{a}\nv_add_u32 v{a+2}, {L_STG + 65536}, v{a}\nv_add_u32 v{a+3}, 57344, v{a}\nv_mov_b32 v{a+4}, v{a}\nv_add_u32 v{a}, {L_STG}, v{a}')
        for q in range(4):
            e(f's_add_u32 s{S_T0}, s{S_ROT}, {q}\ns_and_b32 s{S_T0}, s{S_T0}, 3\ns_mul_i32 s{S_Q0+q}, s{S_T0}, {7*16*3584}')
        V.free(t); V.free(t2)
    @property
    def W1SLOT(self):
        if self.o.get('xg', True):
            if self.o.get('wsched', 'B') == 'B': return [0,1,2, 3,4,5,6,7,8,9, 0,1,2, 3,4,5,6,7,8,9, 10,11, 12,13,14,15,16,17]
            return [0,1,2,3,4, 5,6,7,8,9, 0,1,2,3, 4,5,6,7,8,9, 10,11, 12,13,14,15,16,17]
        return [0,1,2,3,4, 5,6,7,8,9, 0,1,2,3,4, 0,1,2,3,5,6,7,8,9, 10,11,12,13]
    def w1_slot_off(self, k):
        s = self.W1SLOT[k]
        return s * STG_SLOT if s < 9 else (L_STGX - L_STG if s == 9 else (57344 + (s - 10)*STG_SLOT - L_STG if s < 12 else (s - 12)*STG_SLOT - L_STG))
    def w1_dma(self, k, tag, slot=None):
        e = self.e; sl = self.w1_slot_off(k)
        def m0(x): return f's_add_u32 m0, s{S_WM}, {x}' if x >= 0 else f's_sub_u32 m0, s{S_WM}, {-x}'
        return [lambda: e(f's_add_u32 s{S_WO}, s{S_Q0 + k // 7}, {(k % 7)*16*3584}'),
                lambda: e(m0(sl)),
                lambda: self.vmem(f'buffer_load_dwordx4 v{self.vW1}, s[{R_WG}:{R_WG+3}], s{S_WO} offen lds', tag),
                lambda: e(m0(sl + 4096)),
                lambda: self.vmem(f'buffer_load_dwordx4 v{self.vW1}, s[{R_WU}:{R_WU+3}], s{S_WO} offen lds', tag)]
    def w1_issue(self, k0, k1, tag):
        for k in range(k0, k1):
            for f in self.w1_dma(k, tag): f()
    def w1_reads(self, k):
        s = self.W1SLOT[k]
        if s == 9: a, sl = self.vTS + 1, 0
        elif s >= 12: a, sl = self.vTS + 4, (s - 12) * STG_SLOT
        elif s >= 10: a, sl = self.vTS + 3, (s - 10) * STG_SLOT
        else: a, sl = self.vTS, s * STG_SLOT
        assert sl + 6144 < 65536 + 8192
        out = []
        for q in range(4):
            off = sl + 2048 * q
            aa = a
            if off >= 65536: aa, off = self.vTS + 2, off - 65536
            out.append(lambda q=q, aa=aa, off=off: self.ds(f'ds_read_b64_tr_b16 {ar(8*k+2*q,2)}, v{aa} offset:{off}', 'w1r'))
        return out
    def w1_read(self, k0, k1):
        for k in range(k0, k1):
            for f in self.w1_reads(k): f()

    def phaseA(self):
        e = self.e; V = self.V; o = self.o
        self.c('================= phase A')
        par = V.alloc(6); t0 = V.alloc(1); t1 = V.alloc(1)
        e(f's_lshl_b32 s{S_T1}, s{S_CP}, 10\nv_lshl_add_u32 v{t0}, v0, 2, s{S_T1}\ns_lshl_b32 s{S_T0}, s{S_CP}, 2')
        e('s_waitcnt lgkmcnt(0)')
        for i, sp in enumerate((S_ARE, S_AIM, S_BRE, S_BIM, S_CRE, S_CIM)):
            self.vmem(f'global_load_dword v{par+i}, v{t0}, s[{sp}:{sp+1}]', 'par')
        e(f's_load_dword s{S_LD}, s[{S_LDT}:{S_LDT+1}], s{S_T0}\ns_load_dword s{S_DK}, s[{S_DSK}:{S_DSK+1}], s{S_T0}')
        self.srds()
        e(f's_mov_b32 s{S_TS+6}, s{S_M0}')
        self.stamp(0)
        XG = o.get('xg', True)
        xg = V.alloc(8); xa0 = V.alloc(1); xa1 = V.alloc(1)
        e(f's_lshl_b32 s{S_T0}, s{S_CP}, 2\nv_mul_u32_u24 v{xa0}, 7168, v0\nv_add_u32 v{xa0}, s{S_T0}, v{xa0}\nv_add_u32 v{xa1}, 4480, v{xa0}')
        def xgather(k):
            if k < 5: self.vmem(f'buffer_load_dword v{xg+k}, v{xa0}, s[{R_X}:{R_X+3}], 0 offen offset:{896*k}', 'xg')
            else: self.vmem(f'buffer_load_dword v{xg+k}, v{xa1}, s[{R_X}:{R_X+3}], 0 offen offset:{896*(k-5)}', 'xg')
        self.xgather = xgather
        tch = V.alloc(6, 2); self.tch = tch
        if o.get('touch_x', False):
            e(f's_lshl_b32 s{S_T0}, s{S_J}, 6\ns_lshl_b32 s{S_T1}, s{S_W}, 4\ns_add_u32 s{S_T0}, s{S_T0}, s{S_T1}')
            e(f'v_add_u32 v{tch}, s{S_T0}, v1\nv_mul_u32_u24 v{tch+1}, 9363, v{tch}\nv_lshrrev_b32 v{tch+1}, 16, v{tch+1}')
            e(f'v_mul_u32_u24 v{tch+2}, 7, v{tch+1}\nv_sub_u32 v{tch}, v{tch}, v{tch+2}\ns_lshl_b32 s{S_T0}, s{S_XCD}, 8\nv_add_u32 v{tch+1}, s{S_T0}, v{tch+1}')
            e(f'v_mul_u32_u24 v{tch+1}, 896, v{tch+1}\nv_lshl_add_u32 v{tch+1}, v{tch}, 7, v{tch+1}')
            e(f's_mov_b64 s[{S_M1}:{S_M1+1}], exec\ns_mov_b64 exec, 0xffff')
            self.vmem(f'buffer_load_dword v{tch+3}, v{tch+1}, s[{R_X}:{R_X+3}], 0 offen', 'tx')
            e(f's_mov_b64 exec, s[{S_M1}:{S_M1+1}]')
        self.map_bc()
        if o.get('touch_w1', False):
            e(f'v_mul_u32_u24 v{t1}, 4682, v0\nv_lshrrev_b32 v{t1}, 16, v{t1}\nv_mul_u32_u24 v{tch}, 14, v{t1}\nv_sub_u32 v{tch}, v0, v{tch}')
            e(f's_lshl_b32 s{S_T0}, s{S_J}, 4\nv_add_u32 v{t1}, s{S_T0}, v{t1}\nv_mul_u32_u24 v{t1}, 3584, v{t1}\nv_lshl_add_u32 v{t1}, v{tch}, 7, v{t1}')
            e(f's_and_b32 s{S_T0}, s{S_XCD}, 1\ns_mul_i32 s{S_T0}, s{S_T0}, 1792\nv_add_u32 v{t1}, s{S_T0}, v{t1}')
            e(f'v_cmp_gt_u32 vcc, 224, v0\ns_and_saveexec_b64 s[{S_M1}:{S_M1+1}], vcc')
            la = self.lab('tw'); e(f's_cbranch_execz {la}')
            self.vmem(f'buffer_load_dword v{tch}, v{t1}, s[{R_WG}:{R_WG+3}], 0 offen', 'tw')
            self.vmem(f'buffer_load_dword v{tch+1}, v{t1}, s[{R_WU}:{R_WU+3}], 0 offen', 'tw')
            self.label(la); e(f's_mov_b64 exec, s[{S_M1}:{S_M1+1}]')
        self.w1_setup()
        TW = o.get('touch_w1', False)
        if XG:
            for k in range(o.get('xg0', 4)): xgather(k)
        elif not TW: self.w1_issue(0, o.get('w0', 2), 'wa')
        self.stamp(1)
        ga = V.alloc(12, 2)
        self.ga = ga
        e(f'v_lshlrev_b32 v{t0}, 3, v0\nv_sub_u32 v{t0}, 2048, v{t0}')
        for k in range(1, 12):
            e(f'v_subrev_u32 v{ga+k-1}, {k}, v{t0}')
        e(f'v_mov_b32 v{ga+11}, 0')
        tt = V.alloc(2, 2)
        for k in range(0, 12, 2):
            a, b = ga + k, ga + k + 1
            e(f'v_max_i32 v{tt}, 0, v{a}\nv_max_i32 v{tt+1}, 0, v{b}')
            e(f'v_cvt_f32_u32 v{tt}, v{tt}\nv_cvt_f32_u32 v{tt+1}, v{tt+1}')
            e(f'v_cvt_pk_bf16_f32 v{t1}, v{tt}, v{tt+1}')
            e(f'v_lshlrev_b32 v{tt}, 16, v{t1}\nv_and_b32 v{tt+1}, 0xffff0000, v{t1}')
            e(f'v_cvt_u32_f32 v{tt}, v{tt}\nv_cvt_u32_f32 v{tt+1}, v{tt+1}')
            for x, r in ((tt, a), (tt + 1, b)):
                e(f'v_lshrrev_b32 v{t1}, 3, v{x}\nv_add_u32 v{x}, v{x}, v{t1}')
                if k >= 8:
                    e(f'v_cmp_gt_i32 vcc, 0, v{r}\nv_mov_b32 v{t1}, 2320\nv_cndmask_b32 v{x}, v{x}, v{t1}, vcc')
                e(f'v_lshlrev_b32 v{x}, 2, v{x}\nv_add_u32 v{r}, {L_K32}, v{x}')
        V.free(tt, 2)
        e('s_waitcnt lgkmcnt(0)'); self.lg.drain()
        e(f's_lshr_b32 s{S_T0}, s{S_W}, 1\ns_lshl_b32 s{S_T0}, s{S_T0}, 4')
        e(f's_lshr_b32 s{S_LD}, s{S_LD}, s{S_T0}\ns_lshl_b32 s{S_LD}, s{S_LD}, 16')
        e(f's_lshr_b32 s{S_DK}, s{S_DK}, s{S_T0}\ns_lshl_b32 s{S_DK}, s{S_DK}, 16')
        dt = V.alloc(2, 2); tt = V.alloc(2, 2)
        L_hi = struct.unpack('<f', struct.pack('<f', LOG2E))[0]; L_lo = LOG2E - L_hi
        e(f'v_mov_b32 v{dt}, s{S_LD}\nv_mul_f32 v{tt}, {fx(L_hi)}, v{dt}')
        e(f's_mov_b32 s{S_T1}, {fx(L_hi)}')
        e(f'v_fma_f32 v{tt+1}, v{dt}, s{S_T1}, -v{tt}\nv_fmac_f32 v{tt+1}, {fx(L_lo)}, v{dt}')
        e(f'v_exp_f32 v{tt}, v{tt}\nv_mul_f32 v{tt+1}, {fx(math.log(2))}, v{tt+1}')
        e(f'v_fma_f32 v{dt}, v{tt}, v{tt+1}, v{tt}')
        self.rbf(dt, dt)
        V.free(tt, 2)
        nx0 = o.get('xg0', 4)
        if XG and o.get('xgmid', False): xgather(nx0); nx0 += 1
        ka = self.kgen_setup()
        cv = self.conv_setup()
        xo = V.alloc(1)
        e(f's_lshr_b32 s{S_T0}, s{S_CP}, 2\ns_lshl_b32 s{S_T0}, s{S_T0}, 15\ns_and_b32 s{S_T1}, s{S_CP}, 3\ns_lshl_b32 s{S_T1}, s{S_T1}, 5\ns_add_u32 s{S_T0}, s{S_T0}, s{S_T1}\ns_add_u32 s{S_T0}, s{S_T0}, {WS_XT}\nv_lshl_add_u32 v{xo}, v0, 7, s{S_T0}')
        sa = V.alloc(1); nv = V.alloc(2, 2); lp = V.alloc(2, 2)
        e(f'v_lshlrev_b32 v{sa}, 6, v0\nv_mov_b32 v{nv+1}, 0')
        e(f'v_and_b32 v{lp+1}, 31, v1\nv_lshlrev_b32 v{lp+1}, 7, v{lp+1}\ns_lshl_b32 s{S_T0}, s{S_W}, 12\ns_add_u32 s{S_T0}, s{S_T0}, {WS_STATS + 4}\nv_add_u32 v{lp+1}, s{S_T0}, v{lp+1}')
        if WS_STATS: e(f'v_add_u32 v{sa}, {WS_STATS}, v{sa}')
        xs = list(range(nx0, 8))
        if XG and xs: xgather(xs.pop(0))
        self.wait_vm('par')
        self.stamp(2)
        save_lines = self.lines; self.lines = []
        sc = V.alloc(12, 2)
        e(f'v_lshlrev_b32 v{sc+4}, 16, v{par+2}\nv_and_b32 v{sc+6}, 0xffff0000, v{par+2}')
        e(f'v_lshlrev_b32 v{sc+5}, 16, v{par+3}\nv_and_b32 v{sc+7}, 0xffff0000, v{par+3}')
        e(f'v_lshlrev_b32 v{sc+8}, 16, v{par+4}\nv_and_b32 v{sc+10}, 0xffff0000, v{par+4}')
        e(f'v_lshlrev_b32 v{sc+9}, 16, v{par+5}\nv_and_b32 v{sc+11}, 0xffff0000, v{par+5}')
        e(f'v_lshlrev_b32 v{sc}, 16, v{par}\nv_and_b32 v{sc+1}, 0xffff0000, v{par}')
        e(f'v_lshlrev_b32 v{sc+2}, 16, v{par+1}\nv_and_b32 v{sc+3}, 0xffff0000, v{par+1}')
        V.free(par, 6)
        for i in (4, 5, 6, 7, 0, 1, 2, 3): e(f'v_mul_f32 v{sc+i}, v{dt}, v{sc+i}')
        V.free(dt, 2)
        Q = lambda: V.alloc(4, 4)
        tq = Q(); pkt = V.alloc(4, 2); npk = [0]
        def qmul(d, a, b):
            self.cmul_multi([(d, a, b, None), (d + 2, a + 2, b + 2, None)])
        CB = Q()
        qmul(CB, sc + 8, sc + 4)
        mx = V.alloc(2, 2)
        e(f'v_max_f32 v{mx}, |v{CB}|, |v{CB+1}|\nv_max_f32 v{mx+1}, |v{CB+2}|, |v{CB+3}|')
        e(f'v_mul_f32 v{sc}, {fx(LOG2E)}, v{sc}\nv_mul_f32 v{sc+1}, {fx(LOG2E)}, v{sc+1}')
        e(f'v_max_f32 v{mx}, v{mx}, v{mx+1}')
        e(f'v_mul_f32 v{sc+2}, {fx(1/(2*math.pi))}, v{sc+2}\nv_mul_f32 v{sc+3}, {fx(1/(2*math.pi))}, v{sc+3}')
        for mod in ('quad_perm:[1,0,3,2]', 'quad_perm:[2,3,0,1]', 'row_half_mirror', 'row_mirror'):
            e(f'v_max_f32_dpp v{mx}, v{mx}, v{mx} {mod} row_mask:0xf bank_mask:0xf')
        for swap in ('v_permlane16_swap_b32', 'v_permlane32_swap_b32'):
            e(f'v_mov_b32 v{mx+1}, v{mx}\n{swap} v{mx}, v{mx+1}\nv_max_f32 v{mx}, v{mx}, v{mx+1}')
        e(f'v_readfirstlane_b32 s{S_T0}, v{mx}')
        e(f's_lshr_b32 s{S_T0}, s{S_T0}, 23\ns_max_u32 s{S_T0}, s{S_T0}, 14\ns_min_u32 s{S_T0}, s{S_T0}, 254')
        e(f's_sub_u32 s{S_T1}, 267, s{S_T0}\ns_lshl_b32 s{S_T1}, s{S_T1}, 23\ns_sub_u32 s{S_US}, s{S_T0}, 13\ns_lshl_b32 s{S_US}, s{S_US}, 23')
        V.free(mx, 2)
        if XG:
            if xs: xgather(xs.pop(0))
        elif not TW: self.w1_issue(o.get('w0', 2), 5, 'wa2')
        def direct(dst, ex):
            for m in range(2):
                if ex == 1:
                    e(f'v_exp_f32 v{tq+m}, v{sc+m}\nv_fract_f32 v{tq+2+m}, v{sc+2+m}')
                else:
                    e(f'v_mul_f32 v{tq+m}, {fx(float(ex))}, v{sc+m}\nv_mul_f32 v{tq+2+m}, {fx(float(ex))}, v{sc+2+m}')
            if ex != 1:
                for m in range(2): e(f'v_exp_f32 v{tq+m}, v{tq+m}\nv_fract_f32 v{tq+2+m}, v{tq+2+m}')
            for m in range(2):
                e(f'v_cos_f32 v{dst+2*m}, v{tq+2+m}\nv_sin_f32 v{dst+2*m+1}, v{tq+2+m}')
            for m in range(2):
                e(f'v_mul_f32 v{dst+2*m}, v{tq+m}, v{dst+2*m}\nv_mul_f32 v{dst+2*m+1}, v{tq+m}, v{dst+2*m+1}')
        wa = V.alloc(1)
        e(f'v_and_b32 v{wa}, 127, v0\nv_lshlrev_b32 v{wa}, 3, v{wa}\ns_lshr_b32 s{S_T0}, s{S_W}, 1\ns_mul_i32 s{S_T0}, s{S_T0}, {TBL_C}\nv_add_u32 v{wa}, s{S_T0}, v{wa}')
        def put(q, ent, conj=False):
            p = pkt + 2 * (npk[0] & 1); npk[0] += 1
            n = '-' if conj else ''
            e(f'v_cvt_pk_f16_f32 v{p}, v{q}, {n}v{q+1}\nv_cvt_pk_f16_f32 v{p+1}, v{q+2}, {n}v{q+3}')
            self.ds(f'ds_write_b64 v{wa}, {vr(p,2)} offset:{ent*TBL_E}')
        one = V.alloc(2, 2)
        e(f'v_mov_b32 v{one}, 0x3c00\nv_mov_b32 v{one+1}, 0x3c00')
        for ent in (0, 4, 12): self.ds(f'ds_write_b64 v{wa}, {vr(one,2)} offset:{ent*TBL_E}')
        V.free(one, 2)
        z1 = Q(); z2 = Q(); z3 = Q(); z4 = Q(); CS = Q()
        direct(z1, 1); put(z1, 1)
        for m in range(4): e(f'v_mul_f32 v{CS+m}, s{S_T1}, v{CB+m}')
        put(CS, 8, True)
        qmul(z2, z1, z1); put(z2, 2)
        qmul(z3, z2, z1); put(z3, 3)
        qmul(z4, z2, z2); put(z4, 5)
        qmul(z1, z4, z4); put(z1, 6)
        qmul(z2, z1, z4); put(z2, 7)
        qmul(z3, z1, z1); put(z3, 16)
        qmul(z1, z3, z3)
        qmul(z4, CS, z1); put(z4, 9, True)
        qmul(z2, z1, z1)
        qmul(z4, CS, z2); put(z4, 10, True)
        qmul(z3, z2, z1)
        qmul(z4, CS, z3); put(z4, 11, True)
        qmul(z1, z2, z2); put(z1, 13, True)
        qmul(z2, z1, z1); put(z2, 14, True)
        qmul(z3, z2, z1); put(z3, 15, True)
        qmul(z1, z2, z2); put(z1, 17, True)
        if XG and xs: xgather(xs.pop(0))
        self.xs = xs
        qmul(z2, z1, z1)
        qmul(z3, z2, z2)
        c48 = V.alloc(2, 2)
        e(f'v_mul_f32 v{c48}, v{CB}, v{z3}\nv_fma_f32 v{c48}, -v{CB+1}, v{z3+1}, v{c48}')
        e(f'v_fmac_f32 v{c48}, v{CB+2}, v{z3+2}\nv_fma_f32 v{c48}, -v{CB+3}, v{z3+3}, v{c48}')
        for q in (z1, z2, z3, z4, CB, CS, tq): V.free(q, 4)
        V.free(sc, 12); V.free(wa); V.free(pkt, 4)
        for mod in ('quad_perm:[1,0,3,2]', 'quad_perm:[2,3,0,1]', 'row_half_mirror', 'row_mirror'):
            e(f'v_add_f32_dpp v{c48}, v{c48}, v{c48} {mod} row_mask:0xf bank_mask:0xf')
        for swap in ('v_permlane16_swap_b32', 'v_permlane32_swap_b32'):
            e(f'v_mov_b32 v{c48+1}, v{c48}\n{swap} v{c48}, v{c48+1}\nv_add_f32 v{c48}, v{c48}, v{c48+1}')
        fl = self.lines; self.lines = save_lines
        self.lines.extend(resched(fl) if o.get('resched', True) else fl)
        if not TW and not XG: self.wait_vm('wa')
        self.wait_all_lg(); e('s_barrier')
        self.stamp(3)
        sg = V.alloc(16, 4); XP = V.alloc(8, 4)
        def light_loads(model=True):
            a = f'buffer_load_dword v{nv}, v{nv+1}, s[{R_DBG}:{R_DBG+3}], 0 offen sc1'
            b = f'buffer_load_dword v{lp}, v{lp+1}, s[{R_WS}:{R_WS+3}], 0 offen sc1'
            if model: self.vmem(a, 'lp'); self.vmem(b, 'lp')
            else: e(a); e(b)
        def light_wait():
            l0 = self.lab('lp'); l1 = self.lab('lpd'); l2 = self.lab('lpr')
            self.wait_vm('lp')
            e(f's_mov_b32 s{S_CNT}, 0')
            self.label(l0)
            e(f'v_readfirstlane_b32 s{S_NONCE}, v{nv}')
            e(f's_cmp_eq_u32 s{S_NONCE}, 0\ns_cbranch_scc1 {l2}')
            e(f'v_cmp_ne_u32 vcc, s{S_NONCE}, v{lp}\ns_cbranch_vccz {l1}')
            self.label(l2)
            e(f's_sleep {o.get("lsleep", 2)}')
            light_loads(False)
            e('s_waitcnt vmcnt(0)')
            e(f's_add_u32 s{S_CNT}, s{S_CNT}, 1\ns_cmp_lt_u32 s{S_CNT}, {SPIN_MAX}\ns_cbranch_scc1 {l0}')
            self.label(l1)
        def data_loads():
            for i in range(4): self.vmem(f'buffer_load_dwordx4 {vr(sg+4*i,4)}, v{sa}, s[{R_WS}:{R_WS+3}], 0 offen offset:{16*i} sc1', 'sg')
            self.vmem(f'buffer_load_dwordx4 {vr(XP,4)}, v{xo}, s[{R_WS}:{R_WS+3}], 0 offen sc1', 'sg')
            self.vmem(f'buffer_load_dwordx4 {vr(XP+4,4)}, v{xo}, s[{R_WS}:{R_WS+3}], 0 offen offset:16 sc1', 'sg')
        EARLY = o.get('early', True); WB = o.get('wsched', 'B') == 'B'
        self.light_loads = light_loads
        def full_poll():
            return [lambda: self.vmem(f'buffer_load_dword v{nv}, v{nv+1}, s[{R_DBG}:{R_DBG+3}], 0 offen sc1', 'sg')] + \
                   [lambda i=i: self.vmem(f'buffer_load_dwordx4 {vr(sg+4*i,4)}, v{sa}, s[{R_WS}:{R_WS+3}], 0 offen offset:{16*i} sc1', 'sg') for i in range(4)]
        self.full_poll = full_poll
        def after_main():
            if XG: return
            if EARLY: light_wait(); data_loads()
            else: light_loads()
            if TW: self.wait_vm('wa')
            else: self.wait_vm('wa2')
        def after_b2a():
            if XG:
                if WB: self.w1_issue(1, 3, 'wa')
                else: self.w1_issue(3, 5, 'wa')
                return
            if TW: self.w1_read(0, 5)
            else: self.w1_read(o.get('w0', 2), 5)
            self.w1_issue(8, 9, 'wb')
        self.kgen_main(ka, c48, after_main, after_b2a)
        V.free(c48, 2)
        self.wait_all_lg(); e('s_barrier')
        self.stamp(4)
        gat = self.expand_gather()
        if not XG and not EARLY: light_wait(); data_loads()
        V.free(lp, 2)
        self.stamp(7)
        if XG: self.w1_issue(*( (3, 4) if WB else (5, 6) ), 'wb')
        else: self.w1_issue(9, 10, 'wb')
        self.expand_write(gat)
        if XG: self.w1_issue(*( (4, 5) if WB else (6, 7) ), 'wb')
        else: self.w1_issue(10, 11, 'wc')
        self.stamp(5)
        if XG:
            self.wait_vm('xg')
            e(f's_mov_b32 s{S_T0}, 0x05040100\ns_mov_b32 s{S_T1}, 0x07060302')
            for d in range(4):
                e(f'v_perm_b32 v{XP+d}, v{xg+2*d+1}, v{xg+2*d}, s{S_T0}\nv_perm_b32 v{XP+4+d}, v{xg+2*d+1}, v{xg+2*d}, s{S_T1}')
            self.verify_stats(sg, sa, nv, with_nonce=True)
        else: self.verify_stats(sg, sa, nv)
        V.free(nv, 2); V.free(xo); V.free(xg, 8); V.free(xa0); V.free(xa1)
        self.region(lambda: self.normalize(XP, sg))
        V.free(sg, 16); V.free(sa); V.free(XP, 8)
        if XG: self.wait_vm('wa')
        self.wait_all_lg(); e('s_barrier')
        self.stamp(6)
        if XG: self.w1_read(0, 3 if WB else 5)
        if o.get('touch_wd2', False):
            ta = V.alloc(2)
            for q in range(2):
                e(f'v_add_u32 v{ta}, {224*q}, v0\nv_mul_u32_u24 v{ta+1}, 9363, v{ta}\nv_lshrrev_b32 v{ta+1}, 16, v{ta+1}\nv_mul_u32_u24 v{tch+q}, 7, v{ta+1}\nv_sub_u32 v{ta}, v{ta}, v{tch+q}')
                e(f's_lshl_b32 s{S_T0}, s{S_J}, 6\nv_add_u32 v{ta+1}, s{S_T0}, v{ta+1}\nv_mul_u32_u24 v{ta+1}, 896, v{ta+1}\nv_lshl_add_u32 v{ta+1}, v{ta}, 7, v{ta+1}')
                e(f'v_cmp_gt_u32 vcc, 224, v0\ns_and_saveexec_b64 s[{S_M1}:{S_M1+1}], vcc')
                la = self.lab('td'); e(f's_cbranch_execz {la}')
                e(f'buffer_load_dword v{tch+2+q}, v{ta+1}, s[{R_WD}:{R_WD+3}], 0 offen')
                self.label(la); e(f's_mov_b64 exec, s[{S_M1}:{S_M1+1}]')
            V.free(ta, 2)
        fill = []
        for k in ((range(5, 10) if WB else range(7, 10)) if XG else range(11, 14)): fill += self.w1_dma(k, 'wc')
        self.conv(cv, fill)
        V.free(t0); V.free(t1)
        self.stamp(8)
        self.wait_vm('ht'); self.wait_all_lg(); e('s_barrier')
        self.signal(WS_FLAG2, 's2')
        self.stamp(9)
        V.free(tch, 6)
        HCS = o.get('hcs', True)
        self.cs = V.alloc(32, 4); self.ones = V.alloc(4, 4)
        for i in range(4): e(f'v_mov_b32 v{self.ones+i}, 0x3f803f80')
        _, setup = self.capture(self.phaseB_setup)
        self.K0 = 10 if XG else 14
        dma = [f for k in range((13 if WB else 14) if XG else 15, 28) for f in self.w1_dma(k, 'we')]
        mains = []
        if not HCS:
            for k in range(self.K0):
                for u in range(2):
                    c = '0' if k == 0 else vr(self.cs + 16*u, 16)
                    mains.append(([], lambda k=k, u=u, c=c: e(f'v_mfma_f32_32x32x16_bf16 {vr(self.cs+16*u,16)}, {vr(self.ones,4)}, {ar(8*k+4*u,4)}, {c}'), 32, []))
        merged = []
        while dma or setup:
            for _ in range(2):
                if dma: merged.append(dma.pop(0))
            for _ in range(5):
                if setup: merged.append(setup.pop(0))
        if mains: self.sched(mains, [(x, 1) for x in merged])
        else:
            for x in merged: x()
        self.stamp(12)

    def cs_mfma(self, k0, k1):
        for k in range(k0, k1):
            for u in range(2):
                c = '0' if k == 0 else vr(self.cs + 16*u, 16)
                self.e(f'v_mfma_f32_32x32x16_bf16 {vr(self.cs+16*u,16)}, {vr(self.ones,4)}, {ar(8*k+4*u,4)}, {c}')

    def verify_stats(self, sg, sa, nv, with_nonce=False):
        e = self.e; V = self.V
        l0 = self.lab('sp'); l1 = self.lab('spd')
        t = V.alloc(2)
        self.wait_vm('sg')
        e(f's_mov_b32 s{S_CNT}, 0')
        self.label(l0)
        l2 = self.lab('spr')
        if with_nonce:
            e(f'v_readfirstlane_b32 s{S_NONCE}, v{nv}')
            e(f's_cmp_eq_u32 s{S_NONCE}, 0\ns_cbranch_scc1 {l2}')
        e(f'v_min3_u32 v{t}, v{sg+1}, v{sg+3}, v{sg+5}\nv_max3_u32 v{t+1}, v{sg+1}, v{sg+3}, v{sg+5}')
        e(f'v_min3_u32 v{t}, v{t}, v{sg+7}, v{sg+9}\nv_max3_u32 v{t+1}, v{t+1}, v{sg+7}, v{sg+9}')
        e(f'v_min3_u32 v{t}, v{t}, v{sg+11}, v{sg+13}\nv_max3_u32 v{t+1}, v{t+1}, v{sg+11}, v{sg+13}')
        e(f'v_min_u32 v{t}, v{t}, v{sg+15}\nv_max_u32 v{t+1}, v{t+1}, v{sg+15}')
        e(f'v_xor_b32 v{t}, s{S_NONCE}, v{t}\nv_xor_b32 v{t+1}, s{S_NONCE}, v{t+1}\nv_or_b32 v{t}, v{t}, v{t+1}\nv_cmp_ne_u32 vcc, 0, v{t}')
        e(f's_cbranch_vccz {l1}')
        self.label(l2)
        if with_nonce: e(f's_sleep 2\nbuffer_load_dword v{nv}, v{nv+1}, s[{R_DBG}:{R_DBG+3}], 0 offen sc1')
        for i in range(4): e(f'buffer_load_dwordx4 {vr(sg+4*i,4)}, v{sa}, s[{R_WS}:{R_WS+3}], 0 offen offset:{16*i} sc1')
        e('s_waitcnt vmcnt(0)')
        e(f's_add_u32 s{S_CNT}, s{S_CNT}, 1\ns_cmp_lt_u32 s{S_CNT}, {SPIN_MAX}\ns_cbranch_scc1 {l0}')
        self.label(l1)
        V.free(t, 2)

    def map_bc(self):
        e = self.e
        if self.o.get('mapB', '47') == 'rows':
            e(f's_cmp_ge_u32 s{S_J}, 14\ns_cselect_b32 s{S_T0}, 1, 0\ns_lshl_b32 s{S_RB}, s{S_XCD}, 1\ns_add_u32 s{S_RB}, s{S_RB}, s{S_T0}')
            e(f's_mul_i32 s{S_T0}, s{S_T0}, 14\ns_sub_u32 s{S_FB}, s{S_J}, s{S_T0}')
        else:
            e(f's_mul_i32 s{S_T0}, s{S_J}, 37\ns_lshr_b32 s{S_T0}, s{S_T0}, 8')
            e(f's_lshr_b32 s{S_RB}, s{S_XCD}, 1\ns_lshl_b32 s{S_RB}, s{S_RB}, 2\ns_add_u32 s{S_RB}, s{S_RB}, s{S_T0}')
            e(f's_mul_i32 s{S_T0}, s{S_T0}, 7\ns_sub_u32 s{S_FB}, s{S_J}, s{S_T0}\ns_and_b32 s{S_T0}, s{S_XCD}, 1\ns_mul_i32 s{S_T0}, s{S_T0}, 7\ns_add_u32 s{S_FB}, s{S_FB}, s{S_T0}')
        if self.o.get('rot', True): e(f's_and_b32 s{S_ROT}, s{S_RB}, 3')
        else: e(f's_mov_b32 s{S_ROT}, 0')
        e(f's_mul_i32 s{S_T0}, s{S_J}, 37\ns_lshr_b32 s{S_T0}, s{S_T0}, 8')
        e(f's_lshl_b32 s{S_RB2}, s{S_XCD}, 2\ns_add_u32 s{S_RB2}, s{S_RB2}, s{S_T0}\ns_mul_i32 s{S_T0}, s{S_T0}, 7\ns_sub_u32 s{S_DB}, s{S_J}, s{S_T0}')

    def kgen_setup(self):
        e = self.e; V = self.V
        aLo = V.alloc(1); aHi = V.alloc(1); aC = V.alloc(1); t = V.alloc(1)
        aEx = V.alloc(2); aS = V.alloc(2); aK = V.alloc(2)
        e(f's_lshr_b32 s{S_T0}, s{S_W}, 1\ns_mul_i32 s{S_T0}, s{S_T0}, {TBL_C}\ns_and_b32 s{S_T1}, s{S_W}, 1\ns_lshl_b32 s{S_T1}, s{S_T1}, 9\ns_add_u32 s{S_T0}, s{S_T0}, s{S_T1}')
        e(f'v_lshrrev_b32 v{t}, 4, v1\nv_lshlrev_b32 v{aC}, 4, v{t}\nv_add_u32 v{aC}, s{S_T0}, v{aC}')
        e(f'v_and_b32 v{t}, 3, v1\nv_mul_u32_u24 v{t}, {TBL_E}, v{t}\nv_add_u32 v{aLo}, v{aC}, v{t}')
        e(f'v_bfe_u32 v{t}, v1, 2, 2\nv_mul_u32_u24 v{t}, {TBL_E}, v{t}\nv_add_u32 v{aHi}, v{aC}, v{t}')
        e(f's_lshl_b32 s{S_T0}, s{S_W}, 12\ns_add_u32 s{S_T0}, s{S_T0}, {L_EX}\nv_lshl_add_u32 v{aEx}, v1, 4, s{S_T0}')
        e(f's_xor_b32 s{S_T1}, s{S_W}, 1\ns_lshl_b32 s{S_T0}, s{S_T1}, 12\ns_add_u32 s{S_T0}, s{S_T0}, {L_EX}\nv_lshl_add_u32 v{aEx+1}, v1, 4, s{S_T0}')
        e(f's_lshl_b32 s{S_T0}, s{S_W}, 2\ns_add_u32 s{S_T0}, s{S_T0}, {L_EX + 16384}\nv_mov_b32 v{aS}, s{S_T0}')
        e(f's_lshl_b32 s{S_T0}, s{S_T1}, 2\ns_add_u32 s{S_T0}, s{S_T0}, {L_EX + 16384}\nv_mov_b32 v{aS+1}, s{S_T0}')
        e(f'v_and_b32 v{aK}, 15, v1\nv_lshrrev_b32 v{t}, 3, v{aK}\nv_add_u32 v{aK}, v{aK}, v{t}')
        e(f'v_lshrrev_b32 v{t}, 4, v1\nv_mul_u32_u24 v{t}, 144, v{t}\nv_add_u32 v{aK}, v{aK}, v{t}\nv_lshlrev_b32 v{aK}, 2, v{aK}')
        e(f's_lshr_b32 s{S_T0}, s{S_W}, 1\ns_mul_i32 s{S_T0}, s{S_T0}, {K32_C}\ns_add_u32 s{S_T0}, s{S_T0}, {L_K32}\nv_mov_b32 v{aK+1}, s{S_T0}')
        e(f's_and_b32 s{S_T1}, s{S_W}, 1\ns_mul_i32 s{S_T1}, s{S_T1}, {4*576*2}\ns_add_u32 s{S_T1}, s{S_T1}, s{S_T0}\nv_add_u32 v{aK}, s{S_T1}, v{aK}')
        V.free(t)
        return (aLo, aHi, aC, aEx, aS, aK)

    def kgen_main(self, ka, c48, after_main, after_b2a):
        e = self.e; V = self.V
        self.c('---- kgen main (f16 operands)')
        aLo, aHi, aC, aEx, aS, aK = ka
        TB = [[V.alloc(4, 4) for _ in range(6)] for _ in range(2)]
        tmp = V.alloc(4, 4)
        PV = [[V.alloc(4, 4) for _ in range(2)] for _ in range(2)]
        PW = [V.alloc(4, 4) for _ in range(4)]
        D = [[V.alloc(4, 4) for s in range(2)] for t_ in range(4)]
        ents = ((aLo, 0), (aHi, 4), (aC, 16), (aLo, 8), (aHi, 12), (aC, 17))
        def rd(st, i):
            ad, ent = ents[i]
            self.ds(f'ds_read_b128 {vr(TB[st&1][i],4)}, v{ad} offset:{ent*TBL_E + st*64}', f'tb{st}')
        def cm(d, a, b):
            L = [f'v_pk_mul_f16 v{tmp+c}, v{a+c}, v{b+c} op_sel:[0,0] op_sel_hi:[0,1]' for c in range(4)]
            L += [f'v_pk_fma_f16 v{d+c}, v{a+c}, v{b+c}, v{tmp+c} op_sel:[1,1,0] op_sel_hi:[1,0,1] neg_lo:[0,1,0]' for c in range(4)]
            return L
        for i in range(6): rd(0, i)
        pend = []
        for st in range(8):
            T1, T2, Z16, T3, T4, Z512 = TB[st & 1]; pv = PV[st & 1]
            extra = []
            if st + 1 < 8: extra += [lambda i=i, st=st: rd(st + 1, i) for i in range(6)]
            if self.o.get('xg', True):
                if st in (1, 3, 4, 5) and self.xs: extra += [lambda k=self.xs.pop(0): self.xgather(k)]
                if st == self.o.get('pollstep', 6): extra += self.full_poll()
                wst = self.o.get('wst', [7] if self.o.get('wsched', 'B') == 'B' else [4, 6, 7])
                if st in wst: extra += self.w1_dma(wst.index(st), 'wa')
            else:
                if st == self.o.get('pollstep', 5) and self.o.get('early', True): extra += [lambda: self.light_loads()]
                if not self.o.get('touch_w1', False):
                    if st < self.o.get('w0', 2): extra += self.w1_reads(st)
                    ks = self.o.get('kdma', [0, 1, 2])
                    if st in ks: extra += self.w1_dma(5 + ks.index(st), 'wb')
                else:
                    extra += self.w1_dma(st, 'wa' if st < 5 else 'wb')
            self.wait_lg(f'tb{st}')
            blocks = [cm(pv[0], T1, T2), cm(pv[1], pv[0], Z16), cm(PW[0], T3, T4)]
            for tt in range(1, 4): blocks.append(cm(PW[tt], PW[tt-1], Z512))
            def popm():
                if pend:
                    pend.pop(0)()
                    for _ in range(2):
                        if extra: extra.pop(0)()
            for bi, ins in enumerate(blocks):
                for q, l in enumerate(ins):
                    e(l)
                    if q in (1, 5): popm()
                if bi >= 2:
                    tt = bi - 2
                    for s in range(2):
                        cin = '0' if st == 0 else vr(D[tt][s], 4)
                        pend.append(lambda tt=tt, s=s, cin=cin, pv=pv: e(f'v_mfma_f32_16x16x32_f16 {vr(D[tt][s],4)}, {vr(PW[tt],4)}, {vr(pv[s],4)}, {cin}'))
            while len(pend) > 2: popm()
            for x in extra: x()
        while pend: pend.pop(0)()
        self.stamp(13)
        after_main()
        us = V.alloc(2, 2)
        e(f'v_mov_b32 v{us}, s{S_US}')
        R4 = TB[0][:4]; Va = tmp
        def exch(half):
            snd = [(t_, s) for t_ in (2 - 2*half, 3 - 2*half) for s in range(2)]
            kp = [(t_, s) for t_ in (2*half, 2*half + 1) for s in range(2)]
            for i, (t_, s) in enumerate(snd):
                for r in (0, 2): e(f'v_pk_mul_f32 {vr(D[t_][s]+r,2)}, {vr(D[t_][s]+r,2)}, {vr(us,2)} op_sel_hi:[1,0]')
                self.ds(f'ds_write_b128 v{aEx}, {vr(D[t_][s],4)} offset:{1024*i}', 'exw')
            e(f's_mov_b64 s[{S_M1}:{S_M1+1}], exec\ns_mov_b64 exec, 1')
            self.ds(f'ds_write_b32 v{aS}, v{c48}', 'exw')
            e(f's_mov_b64 exec, s[{S_M1}:{S_M1+1}]')
            self.wait_all_lg()
            e('s_barrier')
            for i in range(4): self.ds(f'ds_read_b128 {vr(R4[i],4)}, v{aEx+1} offset:{1024*i}', f'ex{i}')
            self.ds(f'ds_read_b32 v{Va}, v{aS+1}', 'exc')
            for i, (t_, s) in enumerate(kp):
                self.wait_lg(f'ex{i}')
                for r in (0, 2): e(f'v_pk_fma_f32 {vr(D[t_][s]+r,2)}, {vr(D[t_][s]+r,2)}, {vr(us,2)}, {vr(R4[i]+r,2)} op_sel_hi:[1,0,1]')
                for r in range(4):
                    self.ds(f'ds_write_b32 v{aK}, v{D[t_][s]+r} offset:{4*(576*(i >> 1) + 36*r + 18*s)}')
            self.wait_lg('exc')
            e(f'v_add_f32 v{c48}, v{c48}, v{Va}\nv_mov_b32 v{c48+1}, 0')
            e(f's_mov_b64 s[{S_M1}:{S_M1+1}], exec\ns_mov_b64 exec, 1')
            self.ds(f'ds_write_b32 v{aK+1}, v{c48} offset:9216')
            self.ds(f'ds_write_b32 v{aK+1}, v{c48+1} offset:9280')
            e(f's_mov_b64 exec, s[{S_M1}:{S_M1+1}]')
        self.two_paths(exch)
        after_b2a()
        V.free(us, 2)
        for row in TB + PV:
            for x in row: V.free(x, 4)
        for x in PW: V.free(x, 4)
        V.free(tmp, 4)
        for row in D:
            for x in row: V.free(x, 4)
        for x in (aLo, aHi, aC): V.free(x)
        V.free(aEx, 2); V.free(aS, 2); V.free(aK, 2)

    def expand_gather(self):
        e = self.e; V = self.V; ga = self.ga
        self.c('---- expand K into 4 shifted bf16 copies')
        z = V.alloc(4, 4); t = V.alloc(1); t2 = V.alloc(1)
        g = V.alloc(22, 2)
        for i in range(4): e(f'v_mov_b32 v{z+i}, 0')
        e(f'v_lshrrev_b32 v{t}, 2, v0\nv_mul_u32_u24 v{t}, {KC_S}, v{t}\nv_and_b32 v{t2}, 3, v0\nv_lshl_add_u32 v{t}, v{t2}, 4, v{t}')
        e(f'v_cmp_gt_u32 vcc, 32, v0\ns_and_saveexec_b64 s[{S_M1}:{S_M1+1}], vcc')
        la = self.lab('zc'); e(f's_cbranch_execz {la}')
        e(f'ds_write_b128 v{t}, {vr(z,4)} offset:{L_KC + 4096}')
        self.label(la); e(f's_mov_b64 exec, s[{S_M1}:{S_M1+1}]')
        e(f'v_lshrrev_b32 v{t}, 6, v0\nv_mul_u32_u24 v{t}, {U_C}, v{t}\nv_lshl_add_u32 v{t}, v1, 4, v{t}')
        e(f'v_cmp_gt_u32 vcc, 128, v0\ns_and_saveexec_b64 s[{S_M1}:{S_M1+1}], vcc')
        la = self.lab('zu'); e(f's_cbranch_execz {la}')
        e(f'ds_write_b128 v{t}, {vr(z,4)} offset:{L_U}')
        self.label(la); e(f's_mov_b64 exec, s[{S_M1}:{S_M1+1}]')
        for k in range(11): self.ds(f'ds_read_b32 v{g+k}, v{ga+k} offset:0', 'g0')
        for k in range(11): self.ds(f'ds_read_b32 v{g+11+k}, v{ga+k} offset:{K32_C}', 'g1')
        V.free(t); V.free(t2); V.free(z, 4)
        return g
    def expand_write(self, g):
        e = self.e; V = self.V; ga = self.ga
        P = V.alloc(32, 4); wa = V.alloc(1)
        e(f'v_lshlrev_b32 v{wa}, 4, v0')
        for c in range(2):
            self.wait_lg(f'g{c}')
            v = lambda k: g + 11 * c + (k - 1)
            for sc_ in range(4):
                s = 4 - sc_
                for dd in range(4):
                    e(f'v_cvt_pk_bf16_f32 v{P+16*c+4*sc_+dd}, v{v(s+2*dd)}, v{v(s+2*dd+1)}')
                self.ds(f'ds_write_b128 v{wa}, {vr(P+16*c+4*sc_,4)} offset:{L_KC + c*KC_C + sc_*KC_S}')
        V.free(g, 22); V.free(P, 32); V.free(wa); V.free(ga, 12)

    def normalize(self, XP, sg):
        e = self.e; V = self.V
        self.c('---- LN1 normalize own columns')
        xa = V.alloc(16, 2)
        ms = V.alloc(16, 2)
        for k in range(8):
            e(f'v_lshlrev_b32 v{ms+k}, 16, v{sg+2*k}\nv_and_b32 v{ms+8+k}, 0xffff0000, v{sg+2*k}')
        for k in range(8): e(f'v_rcp_f32 v{ms+8+k}, v{ms+8+k}')
        wa = V.alloc(1); t = V.alloc(1)
        e(f'v_bfe_u32 v{t}, v0, 4, 1\nv_lshlrev_b32 v{t}, 1, v{t}\nv_xor_b32 v{wa}, v0, v{t}\nv_lshlrev_b32 v{wa}, 4, v{wa}')
        for c in range(2): self.ds(f'ds_write_b128 v{wa}, {vr(XP+4*c,4)} offset:{L_X + c*X_C}')
        for c in range(2):
            for d in range(4):
                e(f'v_lshlrev_b32 v{xa+8*c+2*d}, 16, v{XP+4*c+d}\nv_and_b32 v{xa+8*c+2*d+1}, 0xffff0000, v{XP+4*c+d}')
        UP = V.alloc(8, 4)
        for c in range(2):
            for d in range(4):
                x = xa + 8*c + 2*d
                e(f'v_pk_add_f32 {vr(x,2)}, {vr(x,2)}, {vr(ms+2*d,2)} neg_lo:[0,1] neg_hi:[0,1]')
            for d in range(4):
                x = xa + 8*c + 2*d
                e(f'v_cvt_pk_bf16_f32 v{x+1}, v{x}, v{x+1}')
            for d in range(4):
                x = xa + 8*c + 2*d
                e(f'v_lshlrev_b32 v{x}, 16, v{x+1}\nv_and_b32 v{x+1}, 0xffff0000, v{x+1}')
            for d in range(4):
                x = xa + 8*c + 2*d
                e(f'v_pk_mul_f32 {vr(x,2)}, {vr(x,2)}, {vr(ms+8+2*d,2)}')
            for d in range(4):
                x = xa + 8*c + 2*d
                e(f'v_cvt_pk_bf16_f32 v{UP+4*c+d}, v{x}, v{x+1}')
            self.ds(f'ds_write_b128 v{wa}, {vr(UP+4*c,4)} offset:{L_U + c*U_C + 1024}')
        V.free(ms, 16); V.free(xa, 16); V.free(UP, 8); V.free(wa); V.free(t)

    def conv_setup(self):
        e = self.e; V = self.V
        vF = V.alloc(1); vG = V.alloc(8); t = V.alloc(1); t2 = V.alloc(1)
        e(f's_lshr_b32 s{S_T0}, s{S_W}, 1\ns_mul_i32 s{S_T0}, s{S_T0}, {KC_C}\ns_and_b32 s{S_T1}, s{S_W}, 1\ns_lshl_b32 s{S_T2}, s{S_T1}, 9\ns_sub_u32 s{S_T0}, s{S_T0}, s{S_T2}\ns_add_u32 s{S_T0}, s{S_T0}, {L_KC + 24 + 512}')
        e(f'v_and_b32 v{t}, 3, v1\nv_mul_u32_u24 v{vF}, {KC_S}, v{t}')
        e(f'v_bfe_u32 v{t}, v1, 2, 2\nv_lshlrev_b32 v{t}, 3, v{t}\nv_sub_u32 v{vF}, v{vF}, v{t}')
        e(f'v_lshrrev_b32 v{t}, 4, v1\nv_lshl_add_u32 v{vF}, v{t}, 4, v{vF}\nv_add_u32 v{vF}, s{S_T0}, v{vF}')
        e(f's_lshr_b32 s{S_T0}, s{S_W}, 1\ns_mul_i32 s{S_T0}, s{S_T0}, {U_C}\ns_add_u32 s{S_T0}, s{S_T0}, {L_U}')
        e(f's_lshl_b32 s{S_T1}, s{S_T1}, 3')
        kg = V.alloc(1); col = V.alloc(1)
        e(f'v_lshrrev_b32 v{kg}, 4, v1\nv_and_b32 v{col}, 15, v1\nv_subrev_u32 v{col}, s{S_T1}, v{col}')
        for pp in range(8):
            e(f'v_add_u32 v{t}, {16 - pp}, v{col}')
            e(f'v_bfe_u32 v{t2}, v{t}, 2, 1\nv_lshlrev_b32 v{t2}, 1, v{t2}\nv_xor_b32 v{t2}, v{t2}, v{kg}')
            e(f'v_lshlrev_b32 v{t}, 6, v{t}\nv_lshl_add_u32 v{t}, v{t2}, 4, v{t}\nv_add_u32 v{vG+pp}, s{S_T0}, v{t}')
        V.free(kg); V.free(col)
        ua = V.alloc(1); xa_ = V.alloc(1); ra = V.alloc(2); sa = V.alloc(1)
        e(f'v_bfe_u32 v{t}, v1, 2, 1\nv_lshlrev_b32 v{t}, 1, v{t}\nv_lshrrev_b32 v{t2}, 4, v1\nv_xor_b32 v{t}, v{t}, v{t2}')
        e(f'v_and_b32 v{t2}, 15, v1\nv_lshlrev_b32 v{t2}, 6, v{t2}\nv_lshl_add_u32 v{ua}, v{t}, 4, v{t2}')
        e(f's_and_b32 s{S_T1}, s{S_W}, 1\ns_lshl_b32 s{S_T1}, s{S_T1}, 11')
        e(f's_lshr_b32 s{S_T0}, s{S_W}, 1\ns_mul_i32 s{S_T2}, s{S_T0}, {U_C}\ns_add_u32 s{S_T2}, s{S_T2}, s{S_T1}')
        e(f's_mul_i32 s{S_T3}, s{S_T0}, {X_C}\ns_add_u32 s{S_T3}, s{S_T3}, s{S_T1}')
        e(f'v_add_u32 v{xa_}, s{S_T3}, v{ua}\nv_add_u32 v{ua}, s{S_T2}, v{ua}')
        e(f'v_lshrrev_b32 v{t}, 4, v1\nv_lshl_add_u32 v{sa}, v{t}, 4, v{t2}')
        e(f's_lshl_b32 s{S_T2}, s{S_CP}, 1\ns_add_u32 s{S_T2}, s{S_T2}, s{S_T0}\ns_mul_i32 s{S_T2}, s{S_T2}, {HT_STRIDE}\ns_add_u32 s{S_T2}, s{S_T2}, s{S_T1}\ns_add_u32 s{S_T2}, s{S_T2}, {WS_HT}')
        e(f'v_add_u32 v{sa}, s{S_T2}, v{sa}')
        e(f's_lshl_b32 s{S_T0}, s{S_W}, 12\ns_add_u32 s{S_T0}, s{S_T0}, {L_RED}\nv_lshl_add_u32 v{ra}, v1, 4, s{S_T0}')
        e(f's_xor_b32 s{S_T0}, s{S_W}, 1\ns_lshl_b32 s{S_T0}, s{S_T0}, 12\ns_add_u32 s{S_T0}, s{S_T0}, {L_RED}\nv_lshl_add_u32 v{ra+1}, v1, 4, s{S_T0}')
        V.free(t); V.free(t2)
        return (vF, vG, ua, xa_, ra, sa)

    def conv(self, cv, fill):
        e = self.e; V = self.V
        vF, vG, ua, xa_, ra, sa = cv
        self.c('---- Toeplitz convolution')
        G = [V.alloc(16, 4) for _ in range(2)]
        F = V.alloc(32, 4)
        acc = V.alloc(32, 4)
        A = lambda b, m: acc + 8 * b + 4 * m
        def rdG(pp):
            for s in range(4): self.ds(f'ds_read_b128 {vr(G[pp&1]+4*s,4)}, v{vG+pp} offset:{1024*s}', f'G{pp}')
        def rdF(pp, q):
            for m in range(2):
                off = 32 * (111 - 32*q - 2*pp - m)
                self.ds(f'ds_read_b64 {vr(F+8*q+4*m,2)}, v{vF} offset:{off}', f'F{pp}_{q}')
                self.ds(f'ds_read_b64 {vr(F+8*q+4*m+2,2)}, v{vF} offset:{off+8}', f'F{pp}_{q}')
        rdG(0)
        for q in range(4): rdF(0, q)
        def rdG1(pp, s): self.ds(f'ds_read_b128 {vr(G[pp&1]+4*s,4)}, v{vG+pp} offset:{1024*s}', f'G{pp}')
        def rdF1(pp, q, m, h_):
            off = 32 * (111 - 32*q - 2*pp - m) + 8 * h_
            self.ds(f'ds_read_b64 {vr(F+8*q+4*m+2*h_,2)}, v{vF} offset:{off}', f'F{pp}_{q}')
        mains = []
        pend = []
        for pp in range(8):
            for q in range(4):
                first = True
                for m in range(2):
                    for s in range(4 - q):
                        b = q + s
                        cin = '0' if (pp == 0 and q == 0) else vr(A(b, m), 4)
                        pre = []
                        if first:
                            if q == 0: pre.append(lambda pp=pp: (self.wait_lg(f'G{pp}'), self.wait_lg(f'F{pp}_0')))
                            else: pre.append(lambda pp=pp, q=q: self.wait_lg(f'F{pp}_{q}'))
                            first = False
                        mf = lambda b=b, m=m, q=q, s=s, pp=pp, cin=cin: e(f'v_mfma_f32_16x16x32_bf16 {vr(A(b,m),4)}, {vr(F+8*q+4*m,4)}, {vr(G[pp&1]+4*s,4)}, {cin}')
                        post = [pend.pop(0)] if pend else []
                        mains.append((pre, mf, 16, post))
                    if pp + 1 < 8:
                        pend += [lambda pp=pp, q=q, m=m, h_=h_: rdF1(pp + 1, q, m, h_) for h_ in range(2)]
                if q == 0 and pp + 1 < 8:
                    pend += [lambda pp=pp, s=s: rdG1(pp + 1, s) for s in range(4)]
        assert not pend
        self.sched(mains, None, segs=[(0, self.o.get('cfill', 110), fill)])
        for x in G: V.free(x, 16)
        V.free(F, 32); V.free(vG, 8)
        self.stamp(10)
        UU = V.alloc(8, 4); XX = V.alloc(8, 4); t1f = V.alloc(16, 2); xf = V.alloc(16, 2); rr = V.alloc(16, 4)
        Y = V.alloc(8, 4); w8 = V.alloc(16, 2); dk = V.alloc(2, 2)
        for bb in range(2):
            self.ds(f'ds_read_b128 {vr(UU+4*bb,4)}, v{ua} offset:{L_U + 1024 + 1024*bb}', 'ux')
            self.ds(f'ds_read_b128 {vr(XX+4*bb,4)}, v{xa_} offset:{L_X + 1024*bb}', 'ux')
        e(f'v_mov_b32 v{dk}, s{S_DK}')
        def epi(half):
            snd = acc + 16 * (1 - half); keep = acc + 16 * half
            for i in range(4): self.ds(f'ds_write_b128 v{ra}, {vr(snd+4*i,4)} offset:{1024*i}', 'rw')
            self.wait_lg('ux')
            for q in range(8): e(f'v_lshlrev_b32 v{t1f+2*q}, 16, v{UU+q}\nv_and_b32 v{t1f+2*q+1}, 0xffff0000, v{UU+q}')
            for q in range(8): e(f'v_pk_mul_f32 {vr(t1f+2*q,2)}, {vr(t1f+2*q,2)}, {vr(dk,2)} op_sel_hi:[1,0]')
            for q in range(8): e(f'v_cvt_pk_bf16_f32 v{UU+q}, v{t1f+2*q}, v{t1f+2*q+1}')
            for q in range(8): e(f'v_lshlrev_b32 v{xf+2*q}, 16, v{XX+q}\nv_and_b32 v{xf+2*q+1}, 0xffff0000, v{XX+q}')
            for q in range(8): e(f'v_lshlrev_b32 v{t1f+2*q}, 16, v{UU+q}\nv_and_b32 v{t1f+2*q+1}, 0xffff0000, v{UU+q}')
            self.wait_vm('wc')
            self.wait_all_lg()
            e('s_barrier')
            for i in range(4): self.ds(f'ds_read_b128 {vr(rr+4*i,4)}, v{ra+1} offset:{1024*i}', 'red')
            self.wait_lg('red')
            for i in range(0, 16, 2): e(f'v_pk_add_f32 {vr(keep+i,2)}, {vr(keep+i,2)}, {vr(rr+i,2)}')
            for bb in range(2):
                k0 = keep + 8 * bb; y = Y + 4 * bb
                e(f'v_cvt_pk_bf16_f32 v{y}, v{k0}, v{k0+1}\nv_cvt_pk_bf16_f32 v{y+1}, v{k0+2}, v{k0+3}')
                e(f'v_cvt_pk_bf16_f32 v{y+2}, v{k0+4}, v{k0+5}\nv_cvt_pk_bf16_f32 v{y+3}, v{k0+6}, v{k0+7}')
            for bb in range(2):
                y = Y + 4 * bb
                e(f'v_permlane32_swap_b32 v{y}, v{y+2}\nv_permlane32_swap_b32 v{y+1}, v{y+3}')
            for bb in range(2):
                y = Y + 4 * bb
                e(f'v_permlane16_swap_b32 v{y}, v{y+2}\nv_permlane16_swap_b32 v{y+1}, v{y+3}')
            for q in range(8): e(f'v_lshlrev_b32 v{w8+2*q}, 16, v{Y+q}\nv_and_b32 v{w8+2*q+1}, 0xffff0000, v{Y+q}')
            for q in range(8): e(f'v_pk_add_f32 {vr(w8+2*q,2)}, {vr(w8+2*q,2)}, {vr(t1f+2*q,2)}')
            for q in range(8): e(f'v_cvt_pk_bf16_f32 v{Y+q}, v{w8+2*q}, v{w8+2*q+1}')
            for q in range(8): e(f'v_lshlrev_b32 v{w8+2*q}, 16, v{Y+q}\nv_and_b32 v{w8+2*q+1}, 0xffff0000, v{Y+q}')
            for q in range(8): e(f'v_pk_add_f32 {vr(w8+2*q,2)}, {vr(w8+2*q,2)}, {vr(xf+2*q,2)}')
            for bb in range(2):
                for d in range(4): e(f'v_cvt_pk_bf16_f32 v{Y+4*bb+d}, v{w8+8*bb+2*d}, v{w8+8*bb+2*d+1}')
                self.vmem(f'buffer_store_dwordx4 {vr(Y+4*bb,4)}, v{sa}, s[{R_WS}:{R_WS+3}], 0 offen offset:{1024*bb} sc1', 'ht')
        self.two_paths(epi)
        if self.o.get('xg', True):
            WB = self.o.get('wsched', 'B') == 'B'
            self.w1_read(3 if WB else 5, 10)
            self.w1_issue(10, 13 if WB else 14, 'we')
        else:
            self.w1_read(5, 14)
            self.w1_issue(14, 15, 'we')
        for x, n in ((UU,8),(XX,8),(t1f,16),(xf,16),(rr,16),(Y,8),(w8,16),(dk,2),(sa,1),(ua,1),(xa_,1),(ra,2),(acc,32),(vF,1)): V.free(x, n)

    def interleave(self, main, fill, per_gap):
        n = len(main); fi = 0
        for i, m in enumerate(main):
            m()
            tgt = (len(fill) * (i + 1) + n - 1) // n if per_gap is None else min(len(fill), fi + per_gap)
            while fi < tgt:
                fill[fi](); fi += 1
        while fi < len(fill):
            fill[fi](); fi += 1

    def sched(self, mains, fillers, tail_free=0, segs=None):
        def cost(x): return x[1] if isinstance(x, tuple) else 1
        def run(x): (x[0] if isinstance(x, tuple) else x)()
        n = len(mains)
        bud = []
        for i, (pre, m, dur, post) in enumerate(mains):
            b = (dur - 8) / 4 - sum(cost(x) for x in post)
            if i + 1 < n: b -= sum(cost(x) for x in mains[i+1][0])
            bud.append(b)
        if segs is None: segs = [(0, n - tail_free, fillers)]
        plan = [[] for _ in range(n)]; planned = [0.0] * n
        for (a, b_, fl) in segs:
            free = sum(max(0, x) for x in bud[a:b_]); need = sum(cost(x) for x in fl)
            over = max(0.0, (need - free) / max(1, b_ - a)); frac = min(1.0, need / free) if free > 0 else 1.0
            fi = 0; credit = 0.0
            for i in range(a, b_):
                credit += max(0, bud[i]) * frac + over
                while fi < len(fl) and cost(fl[fi]) <= credit + 1e-9:
                    credit -= cost(fl[fi]); plan[i].append(fl[fi]); fi += 1
            plan[b_ - 1] += fl[fi:]
            for i in range(a, b_):
                used = sum(cost(x) for x in plan[i]) - planned[i]
                planned[i] += used; bud[i] -= used
        for i, (pre, m, dur, post) in enumerate(mains):
            for x in pre: run(x)
            m()
            for x in post: run(x)
            for x in plan[i]: run(x)

    def poll_flags(self, base, nflags_expr_lanes, nloads, sbase=None, last_lanes=None, sleep=0):
        e = self.e; V = self.V
        skip = self.lab('pf'); l0 = self.lab('pl'); l1 = self.lab('pd')
        e(f's_cmp_lg_u32 s{S_W}, 0\ns_cbranch_scc1 {skip}')
        a = V.alloc(1); d = V.alloc(4, 2)
        e(f'v_mul_u32_u24 v{a}, {FLAG_STRIDE}, v1\nv_add_u32 v{a}, {base}, v{a}')
        if sbase is not None: e(f'v_add_u32 v{a}, s{sbase}, v{a}')
        e(f's_mov_b64 s[{S_M1}:{S_M1+1}], exec')
        if nflags_expr_lanes < 64: e(f's_mov_b64 exec, {hex((1 << nflags_expr_lanes) - 1)}')
        e(f's_mov_b32 s{S_CNT}, 0')
        self.label(l0)
        for k in range(nloads):
            e(f'buffer_load_dword v{d+k}, v{a}, s[{R_WS}:{R_WS+3}], 0 offen offset:{64*FLAG_STRIDE*k} sc1')
        e('s_waitcnt vmcnt(0)')
        e(f'v_cmp_ne_u32 vcc, s{S_NONCE}, v{d}')
        for k in range(1, nloads):
            e(f'v_cmp_ne_u32 s[{S_M2}:{S_M2+1}], s{S_NONCE}, v{d+k}')
            if last_lanes and k == nloads - 1:
                assert last_lanes == 32
                e(f's_and_b32 s{S_M2+1}, s{S_M2+1}, 0')
            e(f's_or_b64 vcc, vcc, s[{S_M2}:{S_M2+1}]')
        e(f's_cbranch_vccz {l1}')
        if sleep: e(f's_sleep {sleep}')
        e(f's_add_u32 s{S_CNT}, s{S_CNT}, 1\ns_cmp_lt_u32 s{S_CNT}, {SPIN_MAX}\ns_cbranch_scc1 {l0}')
        self.label(l1)
        e(f's_mov_b64 exec, s[{S_M1}:{S_M1+1}]')
        V.free(a); V.free(d, 4)
        self.label(skip)
        e('s_barrier')

    WDREG = ['A']*9 + ['B']*3 + ['C']*3 + ['A']*9 + ['B']*3 + ['C']
    WDIDX = list(range(9)) + [0,1,2] + [0,1,2] + list(range(9)) + [0,1,2] + [0]
    def wd_setup(self):
        e = self.e; V = self.V
        self.vWD = V.alloc(2); self.vWT = V.alloc(6)
        t = V.alloc(1); t2 = V.alloc(1); vD = self.vWD; vT = self.vWT
        e(f'v_lshrrev_b32 v{t}, 3, v1\nv_mul_u32_u24 v{vD}, 896, v{t}\nv_bfe_u32 v{t}, v1, 4, 1\nv_lshlrev_b32 v{t}, 2, v{t}\nv_and_b32 v{t2}, 7, v1\nv_xor_b32 v{t}, v{t}, v{t2}\nv_lshl_add_u32 v{vD}, v{t}, 4, v{vD}')
        e(f's_lshl_b32 s{S_T0}, s{S_DB}, 7\ns_mul_i32 s{S_T1}, s{S_W}, {448*896}\ns_add_u32 s{S_T0}, s{S_T0}, s{S_T1}\nv_add_u32 v{vD}, s{S_T0}, v{vD}\nv_add_u32 v{vD+1}, 7168, v{vD}')
        e(f'v_lshrrev_b32 v{t}, 5, v1\nv_lshlrev_b32 v{vT}, 9, v{t}\nv_bfe_u32 v{t}, v1, 2, 2\nv_lshl_add_u32 v{vT}, v{t}, 7, v{vT}')
        e(f'v_bfe_u32 v{t}, v1, 4, 1\nv_lshl_add_u32 v{vT}, v{t}, 5, v{vT}\nv_and_b32 v{t}, 3, v1\nv_lshl_add_u32 v{vT}, v{t}, 3, v{vT}')
        e(f'v_bfe_u32 v{t}, v1, 3, 1\nv_lshlrev_b32 v{t}, 6, v{t}')
        e(f'v_xor_b32 v{t2}, 64, v{t}\nv_add_u32 v{vT+1}, v{vT}, v{t2}\nv_add_u32 v{vT}, v{vT}, v{t}')
        e(f's_mul_i32 s{S_WA}, s{S_W}, 18432\ns_add_u32 s{S_WA}, s{S_WA}, 87040')
        e(f's_mul_i32 s{S_WB}, s{S_W}, 7168\ns_add_u32 s{S_WC}, s{S_WB}, 57344\ns_add_u32 s{S_WB}, s{S_WB}, 28672')
        e(f'v_add_u32 v{vT+2}, s{S_WB}, v{vT}\nv_add_u32 v{vT+3}, s{S_WB}, v{vT+1}\nv_add_u32 v{vT+4}, s{S_WC}, v{vT}\nv_add_u32 v{vT+5}, s{S_WC}, v{vT+1}')
        e(f'v_add_u32 v{vT}, s{S_WA}, v{vT}\nv_add_u32 v{vT+1}, s{S_WA}, v{vT+1}')
        e(f's_add_u32 s{S_T1}, s{S_DB}, s{S_RB2}' if self.o.get('rot2', True) else f's_mov_b32 s{S_T1}, 0')
        for q in range(4):
            e(f's_add_u32 s{S_T0}, s{S_T1}, {q}\ns_and_b32 s{S_T0}, s{S_T0}, 3\ns_mul_i32 s{S_RW0+q}, s{S_T0}, {7*16*896}\ns_mul_i32 s{S_RA0+q}, s{S_T0}, {7*1024}')
        V.free(t); V.free(t2)
    def wd_dma(self, k, tag):
        e = self.e; sb = {'A': S_WA, 'B': S_WB, 'C': S_WC}[self.WDREG[k]]; sl = self.WDIDX[k] * 2048
        d0 = lambda: self.vmem(f'buffer_load_dwordx4 v{self.vWD}, s[{R_WD}:{R_WD+3}], s{S_WO} offen lds', tag)
        d1 = lambda: self.vmem(f'buffer_load_dwordx4 v{self.vWD+1}, s[{R_WD}:{R_WD+3}], s{S_WO} offen lds', tag)
        d0.isvm = True; d1.isvm = True
        return [lambda: e(f's_add_u32 s{S_WO}, s{S_RW0 + k//7}, {(k%7)*16*896}'),
                lambda: e(f's_add_u32 m0, s{sb}, {sl}'), d0,
                lambda: e(f's_add_u32 m0, s{sb}, {sl + 1024}'), d1]
    def wd_reads(self, k):
        a = self.vWT + {'A': 0, 'B': 2, 'C': 4}[self.WDREG[k]]; sl = self.WDIDX[k] * 2048
        return [lambda mt=mt, hh=hh: self.ds(f'ds_read_b64_tr_b16 {ar(8*k+4*mt+2*hh,2)}, v{a+mt} offset:{sl + 1024*hh}', f'wdr{k}') for mt in range(2) for hh in range(2)]

    def phaseB_setup(self):
        e = self.e; V = self.V; o = self.o
        L_H = 0; HG = 28672; L_STP = 3 * HG
        HS = lambda g_: (g_ % 3) * HG
        S_HB, S_MB = S_T5, S_HID
        vD = V.alloc(1); vB = V.alloc(1); vS = V.alloc(1); t = V.alloc(1); t2 = V.alloc(1)
        e(f'v_lshrrev_b32 v{t}, 2, v1\nv_mul_u32_u24 v{vD}, {HT_STRIDE}, v{t}\nv_bfe_u32 v{t2}, v1, 4, 1\nv_lshlrev_b32 v{t2}, 1, v{t2}\nv_and_b32 v{t}, 3, v1\nv_xor_b32 v{t}, v{t}, v{t2}\nv_lshl_add_u32 v{vD}, v{t}, 4, v{vD}')
        e(f's_lshl_b32 s{S_T0}, s{S_RB}, 8\ns_add_u32 s{S_T0}, s{S_T0}, {WS_HT}\nv_add_u32 v{vD}, s{S_T0}, v{vD}')
        e(f's_mul_i32 s{S_HB}, s{S_W}, {16*HT_STRIDE}\ns_lshl_b32 s{S_MB}, s{S_W}, 10')
        e(f'v_lshrrev_b32 v{t}, 5, v1\nv_lshlrev_b32 v{vB}, 8, v{t}\nv_bfe_u32 v{t2}, v1, 4, 1\nv_xor_b32 v{t2}, v{t2}, v{t}\nv_lshl_add_u32 v{vB}, v{t2}, 5, v{vB}')
        e(f'v_bfe_u32 v{t}, v1, 2, 2\nv_lshl_add_u32 v{vB}, v{t}, 6, v{vB}\nv_and_b32 v{t}, 3, v1\nv_lshl_add_u32 v{vB}, v{t}, 3, v{vB}')
        e(f'v_lshrrev_b32 v{t}, 4, v1\nv_lshlrev_b32 v{vS}, 8, v{t}\nv_and_b32 v{t}, 1, v{t}\ns_and_b32 s{S_T0}, s{S_W}, 1\nv_xor_b32 v{t}, s{S_T0}, v{t}\nv_lshl_add_u32 v{vS}, v{t}, 5, v{vS}')
        e(f'v_bfe_u32 v{t}, v1, 2, 2\nv_lshl_add_u32 v{vS}, v{t}, 6, v{vS}\nv_and_b32 v{t}, 3, v1\nv_lshl_add_u32 v{vS}, v{t}, 3, v{vS}')
        e(f's_lshr_b32 s{S_T0}, s{S_W}, 1\ns_mul_i32 s{S_T0}, s{S_T0}, {7*2048}\nv_add_u32 v{vS}, s{S_T0}, v{vS}')
        vA = V.alloc(1)
        e(f's_mul_i32 s{S_T0}, s{S_RB}, {4*112}\ns_lshl_b32 s{S_T1}, s{S_FB}, 3\ns_add_u32 s{S_T0}, s{S_T0}, s{S_T1}\ns_lshl_b32 s{S_T1}, s{S_W}, 1\ns_add_u32 s{S_T0}, s{S_T0}, s{S_T1}')
        e(f's_lshl_b32 s{S_T0}, s{S_T0}, 10\ns_add_u32 s{S_T0}, s{S_T0}, {WS_ACT}\nv_lshl_add_u32 v{vA}, v1, 4, s{S_T0}')
        vG2 = V.alloc(1); sg2 = V.alloc(6, 2)
        e(f'v_and_b32 v{t}, 31, v1\nv_lshlrev_b32 v{vG2}, 3, v{t}\ns_lshl_b32 s{S_T0}, s{S_RB}, 10\ns_add_u32 s{S_T0}, s{S_T0}, {WS_STATS2}\nv_add_u32 v{vG2}, s{S_T0}, v{vG2}')
        vC = V.alloc(1)
        e(f'v_and_b32 v{t}, 31, v1\nv_lshlrev_b32 v{t}, 2, v{t}\ns_lshl_b32 s{S_T0}, s{S_FB}, 9\ns_lshl_b32 s{S_T1}, s{S_W}, 7\ns_add_u32 s{S_T0}, s{S_T0}, s{S_T1}\ns_add_u32 s{S_T0}, s{S_T0}, {WS_CS}\nv_add_u32 v{vC}, s{S_T0}, v{t}')
        NB = 6
        cs = self.cs; ones = self.ones
        B = V.alloc(4 * NB, 4); SB = V.alloc(8, 4); SG = V.alloc(8, 4)
        acc = [V.alloc(32, 4), V.alloc(32, 4)]
        st = V.alloc(6, 2); par = V.alloc(3); tmp = V.alloc(8, 4); pk = V.alloc(8, 4)
        vP = V.alloc(1); vPw = V.alloc(1)
        e(f'v_bfe_u32 v{t}, v1, 4, 1\nv_lshlrev_b32 v{vP}, 7, v{t}\nv_and_b32 v{t}, 15, v1\nv_lshl_add_u32 v{vP}, v{t}, 3, v{vP}\nv_add_u32 v{vP}, {L_STP}, v{vP}')
        e(f's_lshl_b32 s{S_T0}, s{S_W}, 7\ns_add_u32 s{S_T0}, s{S_T0}, {L_STP}\nv_lshl_add_u32 v{vPw}, v{t}, 3, s{S_T0}')
        K1, K2, K3, KD = 6, 8, 10, 12
        e(f's_mov_b32 s{K1}, 0x22222222\ns_mov_b32 s{K1+1}, 0x22222222\ns_mov_b32 s{K2}, 0x44444444\ns_mov_b32 s{K2+1}, 0x44444444')
        e(f's_mov_b32 s{K3}, 0x88888888\ns_mov_b32 s{K3+1}, 0x88888888\ns_mov_b32 s{KD}, 0x00f0000f\ns_mov_b32 s{KD+1}, 0xf0000f00')
        vBq = V.alloc(4); vS2 = V.alloc(1)
        e(f'v_add_u32 v{vS2}, 57344, v{vS}')
        for q in range(4):
            e(f's_add_u32 s{S_T0}, s{S_ROT}, {q}\ns_and_b32 s{S_T0}, s{S_T0}, 3\ns_mul_i32 s{S_T0}, s{S_T0}, {7*1024}\nv_add_u32 v{vBq+q}, s{S_T0}, v{vB}')
        S_KI = [0, 1, 3, 4, 5, 22, 23]
        for i in range(7):
            e(f's_add_u32 s{S_T0}, s{S_W}, {4*i}\ns_mul_i32 s{S_T1}, s{S_T0}, 37\ns_lshr_b32 s{S_T1}, s{S_T1}, 8')
            e(f's_mul_i32 s{S_T2}, s{S_T1}, 7\ns_sub_u32 s{S_T0}, s{S_T0}, s{S_T2}\ns_add_u32 s{S_T1}, s{S_T1}, s{S_ROT}\ns_and_b32 s{S_T1}, s{S_T1}, 3')
            e(f's_mul_i32 s{S_T1}, s{S_T1}, 7\ns_add_u32 s{S_KI[i]}, s{S_T1}, s{S_T0}')
        self.wd_setup()
        self.pb = dict(locals())

    def phaseB(self):
        e = self.e; V = self.V; o = self.o
        self.c('================= phase B')
        pb = self.pb
        L_H, HG, L_STP, HS, S_HB, S_MB = pb['L_H'], pb['HG'], pb['L_STP'], pb['HS'], pb['S_HB'], pb['S_MB']
        vD, vB, vS, t, t2, vA, vG2, sg2, NB, cs, ones, B, SB, SG = [pb[k] for k in 'vD vB vS t t2 vA vG2 sg2 NB cs ones B SB SG'.split()]
        acc, st, par, tmp, pk, vP, vPw, K1, K2, K3, KD, vBq, vS2 = [pb[k] for k in 'acc st par tmp pk vP vPw K1 K2 K3 KD vBq vS2'.split()]
        self.stamp(14)
        HCS = o.get('hcs', True); vC = pb['vC']
        self.wait_vm('we')
        if HCS: self.poll_flags(WS_FLAG2, 64, 4, sleep=self.o.get('wsleep', 2))
        else: self.poll_flags(WS_FLAG2 + 32*FLAG_STRIDE, 64, 4, last_lanes=32, sleep=self.o.get('wsleep', 2))
        self.stamp(15)
        zk = [k for k in range(self.K0, 28) if self.W1SLOT[k] >= 12]
        for k in zk: self.w1_read(k, k + 1)
        self.wait_all_lg(); e('s_barrier')
        self.rest_k = [k for k in range(self.K0, 28) if k not in zk]
        self.vm.drain(); self.lg.drain()
        self.stamp(16)
        def hdma(g, i, tag=None):
            d = lambda: self.vmem(f'buffer_load_dwordx4 v{vD}, s[{R_WS}:{R_WS+3}], s{S_T1} offen {o.get("hflags", "sc1")} lds', tag or f'h{g}')
            d.isvm = True
            return [lambda: e(f's_add_u32 m0, s{S_MB}, {L_H + HS(g) + i*4096}'),
                    lambda: e(f's_add_u32 s{S_T1}, s{S_HB}, {i*4*16*HT_STRIDE + 64*g}'), d]
        S_KI = pb['S_KI']; PROG = o.get('prog', True)
        for i in range(7):
            e(f's_lshl_b32 m0, s{S_KI[i]}, 10\ns_mul_i32 s{S_T1}, s{S_KI[i]}, {16*HT_STRIDE}')
            self.vmem(f'buffer_load_dwordx4 v{vD}, s[{R_WS}:{R_WS+3}], s{S_T1} offen {o.get("hflags", "sc1")} lds', 'h0a' if (i < 3 and PROG) else 'h0')
        for k in self.rest_k: self.w1_read(k, k + 1)
        self.wait_all_lg()
        V.free(self.vTS, 5); V.free(self.vW1)
        if HCS:
            e(f's_mov_b32 s{S_T2}, {1792*4}')
            self.vmem(f'buffer_load_dword v{cs}, v{vC}, s[{R_WS}:{R_WS+3}], 0 offen sc1', 'cs')
            self.vmem(f'buffer_load_dword v{cs+16}, v{vC}, s[{R_WS}:{R_WS+3}], s{S_T2} offen sc1', 'cs')
        else: self.cs_mfma(self.K0, 28)
        csA = V.alloc(8, 4); mB = V.alloc(4, 4)
        for i in range(1, 4): e(f'v_mov_b32 v{mB+i}, 0\nv_mov_b32 v{csA+i}, 0\nv_mov_b32 v{csA+4+i}, 0')
        def build_csA():
            for u in range(2):
                c_ = cs + 16 * u; d_ = csA + 4 * u
                e(f'v_cvt_pk_bf16_f32 v{d_}, v{c_}, v{c_}\nv_lshlrev_b32 v{d_}, 16, v{d_}\nv_sub_f32 v{c_+1}, v{c_}, v{d_}')
                e(f'v_cvt_pk_bf16_f32 v{d_}, v{c_}, v{c_+1}')
                e(f'v_cmp_gt_u32 vcc, 32, v1\nv_cndmask_b32 v{d_}, 0, v{d_}, vcc')
        if not HCS: build_csA()
        H1F = o.get('h1fill', True)
        if not H1F:
            for i in range(7):
                for f in hdma(1, i): f()
        def rdB(g, k):
            s = k % NB
            for h_ in range(2):
                self.ds(f'ds_read_b64_tr_b16 {vr(B+4*s+2*h_,2)}, v{vBq + k//7} offset:{HS(g) + (k%7)*1024 + 512*h_}', f'B{g}_{k}')
        def st_reads(g):
            for k_ in range(2): self.ds(f'ds_read_b64 {vr(st+2*k_,2)}, v{vP} offset:{(g&1)*512 + 256*k_}', f'st{g}')
        def fin_ops(g):
            nm, rsl, s2 = par, par + 1, par + 2; ops = []
            save = self.lines; self.lines = []
            if g == 0:
                self.ln_finalize(st, st + 1, st + 2, st + 3, st + 4)
            else:
                e(f'v_lshlrev_b32 v{st+2}, 16, v{sg2+2*(g-1)}')
                e(f'v_and_b32 v{st+3}, 0xffff0000, v{sg2+2*(g-1)}')
            e(f'v_cvt_pk_bf16_f32 v{mB}, -v{st+2}, -v{st+2}')
            e(f'v_rcp_f32 v{st+4}, v{st+3}')
            e(f'v_mul_f32 v{s2}, v{st+3}, v{st+3}')
            e(f'v_mul_f32 v{rsl}, {fx(-LOG2E)}, v{st+4}')
            fl = self.lines; self.lines = save
            if g == 0:
                def fin0():
                    self.wait_lg('st0')
                    e(f'v_add_f32 v{st}, v{st}, v{st+2}')
                ops.append(fin0)
                ops.append(lambda: e(f'v_add_f32 v{st+1}, v{st+1}, v{st+3}'))
            for l in fl: ops.append(lambda l=l: e(l))
            return ops
        def fold_mfma(g, u):
            A_ = acc[g & 1] + 16 * u
            return lambda: e(f'v_mfma_f32_32x32x16_bf16 {vr(A_,16)}, {vr(csA+4*u,4)}, {vr(mB,4)}, {vr(A_,16)}')
        def epilogue_ops(g):
            A_ = acc[g & 1]; ops = []
            nm, rsl, s2 = par, par + 1, par + 2
            def el(r):
                G_, U_, T_ = A_ + r, A_ + 16 + r, tmp + (r & 7)
                return [f'v_mul_f32 v{T_}, v{rsl}, v{G_}',
                        f'v_mul_f32 v{G_}, v{G_}, v{U_}',
                        f'v_exp_f32 v{T_}, v{T_}',
                        f'v_fma_f32 v{T_}, v{T_}, v{s2}, v{s2}',
                        f'v_rcp_f32 v{T_}, v{T_}',
                        f'v_mul_f32 v{G_}, v{G_}, v{T_}']
            for q in range(4):
                els = [el(4*q + x) for x in range(4)]
                for s_ in range(6):
                    for x in range(4): ops.append((lambda l=els[x][s_]: e(l), 2 if s_ in (2, 4) else 1))
                for x in range(2):
                    r = 4*q + 2*x
                    ops.append(lambda r=r: e(f'v_cvt_pk_bf16_f32 v{pk + r//2}, v{A_+r}, v{A_+r+1}'))
                if q in (1, 3) and not (o.get('x_nost') and g < 3):
                    kk = q >> 1
                    ops.append(lambda kk=kk: self.vmem(f'buffer_store_dwordx4 {vr(pk+4*kk,4)}, v{vA}, s[{R_WS}:{R_WS+3}], s{S_T4} offen offset:{1024*kk} sc1', 'act'))
            return ops
        DS = 1.5
        def rdB1(g, k, h_):
            s = (28 * g + k) % NB
            return (lambda: self.ds(f'ds_read_b64_tr_b16 {vr(B+4*s+2*h_,2)}, v{vBq + k//7} offset:{HS(g) + (k%7)*1024 + 512*h_}', f'B{g}_{k}'), DS)
        def rs(g, i):
            sb = SB + 4 * (i & 1); out = []
            for h_ in range(2):
                b_, off = (vS, HS(g) + i*2048 + 1024*h_) if HS(g) < 57344 else (vS2, i*2048 + 1024*h_)
                out.append((lambda b_=b_, off=off, h_=h_, sb=sb, i=i: self.ds(f'ds_read_b64_tr_b16 {vr(sb+2*h_,2)}, v{b_} offset:{off}', f'S{g}_{i}'), DS))
            return out
        def s2_loads():
            return [lambda gg=gg: self.vmem(f'buffer_load_dwordx2 {vr(sg2+2*(gg-1),2)}, v{vG2}, s[{R_WS}:{R_WS+3}], 0 offen offset:{256*gg} sc1', 'sg2') for gg in range(1, 4)]
        def s2_check():
            l0 = self.lab('s2'); l1 = self.lab('s2d')
            self.wait_vm('sg2')
            e(f's_mov_b32 s{S_CNT}, 0')
            self.label(l0)
            e(f'v_cmp_ne_u32 vcc, s{S_NONCE}, v{sg2+1}')
            for gg in (2, 3): e(f'v_cmp_ne_u32 s[{S_M2}:{S_M2+1}], s{S_NONCE}, v{sg2+2*gg-1}\ns_or_b64 vcc, vcc, s[{S_M2}:{S_M2+1}]')
            e(f's_cbranch_vccz {l1}')
            for gg in range(1, 4): e(f'buffer_load_dwordx2 {vr(sg2+2*(gg-1),2)}, v{vG2}, s[{R_WS}:{R_WS+3}], 0 offen offset:{256*gg} sc1')
            e('s_waitcnt vmcnt(0)')
            e(f's_add_u32 s{S_CNT}, s{S_CNT}, 1\ns_cmp_lt_u32 s{S_CNT}, {SPIN_MAX}\ns_cbranch_scc1 {l0}')
            self.label(l1)
        def red_ops(g):
            return [lambda: e(f'v_cndmask_b32 v{SG}, v{SG}, v{SG+1}, s[{K1}:{K1+1}]'),
                    lambda: e(f'v_cndmask_b32 v{SG}, v{SG}, v{SG+2}, s[{K2}:{K2+1}]'),
                    lambda: e(f'v_cndmask_b32 v{SG+5}, v{SG}, v{SG+3}, s[{K3}:{K3+1}]'),
                    lambda: e(f's_mov_b64 exec, s[{KD}:{KD+1}]'),
                    lambda: self.ds(f'ds_write_b64 v{vPw}, {vr(SG+4,2)} offset:{(g&1)*512}', f'stw{g}'),
                    lambda: e('s_mov_b64 exec, -1')]
        self.wait_vm('h0a' if PROG else 'h0'); self.wait_all_lg(); e('s_barrier')
        self.stamp(17)
        for k in range(4):
            for h_ in range(2): rdB1(0, k, h_)[0]()
        if not PROG:
            for f in rs(0, 0) + rs(0, 1): f[0]()
        mains = []; segs = []
        KB = 22
        KF = 3
        for g in range(4):
            A_ = acc[g & 1]; base = len(mains); pos = {}
            for k in range(28):
                cg = '0' if k == 0 else vr(A_, 16); cu = '0' if k == 0 else vr(A_ + 16, 16)
                pre = []
                if g == 1 and k == 2: pre.append(lambda: e('s_barrier'))
                if g in (2, 3) and k == 2: pre.append(lambda: e('s_barrier'))
                if g == 0 and k == 8 and PROG:
                    pre.append(lambda: self.wait_vm('h0')); pre.append(lambda: e('s_barrier'))
                if k == KB:
                    if g < 3: pre.append(lambda g=g: self.wait_vm(f'h{g+1}'))
                    if g == 0: pre.append(lambda g=g: self.wait_lg(f'stw{g}'))
                    pre.append(lambda: e('s_barrier'))
                    if o.get('passstamps'): pre.append(lambda g=g: self.stamp(26 + g))
                pre.append(lambda k=k, g=g: self.wait_lg(f'B{g}_{k}'))
                nx = (g, k + 4) if k + 4 < 28 else ((g + 1, k + 4 - 28) if g < 3 else None)
                p0 = [rdB1(nx[0], nx[1], 0)] if nx else []; p1 = [rdB1(nx[0], nx[1], 1)] if nx else []
                pos[k] = len(mains)
                mains.append((pre, lambda k=k, cg=cg, A_=A_, g=g: e(f'v_mfma_f32_32x32x16_bf16 {vr(A_,16)}, {ar(8*k,4)}, {vr(B+4*((28*g+k)%NB),4)}, {cg}'), 32, p0))
                mains.append(([], lambda k=k, cu=cu, A_=A_, g=g: e(f'v_mfma_f32_32x32x16_bf16 {vr(A_+16,16)}, {ar(8*k+4,4)}, {vr(B+4*((28*g+k)%NB),4)}, {cu}'), 32, p1))
                if g > 0 and k == KF:
                    for u_ in range(2): mains.append(([], fold_mfma(g - 1, u_), 32, []))
                if g == 0:
                    gpos = [10, 11, 13, 14, 16, 17, 19] if PROG else [0, 3, 6, 9, 12, 15, 18]
                    spos = gpos if PROG else [x + 1 for x in gpos]
                    if k in gpos:
                        i_ = gpos.index(k); sb = SB + 4 * (i_ & 1); c_ = '0' if i_ == 0 else vr(SG, 4)
                        mains.append(([lambda i_=i_, g=g: self.wait_lg(f'S{g}_{i_}')], lambda sb=sb, c_=c_: e(f'v_mfma_f32_16x16x32_bf16 {vr(SG,4)}, {vr(sb,4)}, {vr(sb,4)}, {c_}'), 16, []))
                    if k in spos:
                        i_ = spos.index(k); sb = SB + 4 * (i_ & 1); c_ = '0' if i_ == 0 else vr(SG + 4, 4)
                        mains.append(([], lambda sb=sb, c_=c_: e(f'v_mfma_f32_16x16x32_bf16 {vr(SG+4,4)}, {vr(ones,4)}, {vr(sb,4)}, {c_}'), 16,
                                      rs(g, i_ + 2) if i_ + 2 < 7 else []))
            def addpost(k, items, which=0):
                pre_, m_, d_, post_ = mains[pos[k] + which]
                mains[pos[k] + which] = (pre_, m_, d_, post_ + items)
            if g == 0:
                addpost(KB - 1, red_ops(g), 1)
                if PROG:
                    r0 = rs(0, 0) + rs(0, 1)
                    addpost(8, r0[:2], 0); addpost(8, r0[2:], 1)
            if g == 3:
                for i_ in range(9):
                    rr = [(f, DS) for f in self.wd_reads(i_)]
                    for q in range(4): addpost(10 + 2*i_ + (q >> 1), [rr[q]], q & 1)
                pre_, m_, d_, post_ = mains[pos[10]]
                mains[pos[10]] = (pre_, m_, d_, post_[:1] + [lambda: self.wait_vm('wdA')] + post_[1:])
            if g == 1:
                addpost(o.get('s2k', 12), s2_loads(), 1)
                if not o.get('x_nos2'): addpost(27, [(s2_check, 8)], 1)
            ep = []
            if g > 0:
                fo = ([lambda: st_reads(0)] if g == 1 else []) + [lambda g=g: e(f's_mov_b32 s{S_T4}, {(g-1)*112*1024}')] + fin_ops(g - 1)
                segs.append((base, pos[KF] + 1, fo))
                ep += epilogue_ops(g - 1)
            mf = []; mf2 = []
            if g == 0 and HCS:
                _, bl = self.capture(build_csA)
                ep = [lambda: self.wait_vm('cs')] + bl
            if g == 0:
                if H1F:
                    for i in range(7): mf2 += hdma(1, i)
                for i in range(7): mf += hdma(2, i)
            if g == 0:
                pass
            mf3 = []
            if g == 1:
                for i in range(7): mf2 += hdma(3, i)
                for k_ in range(0, 5): mf3 += self.wd_dma(k_, 'wdA')
            if g == 2:
                for k_ in range(5, 9): mf3 += self.wd_dma(k_, 'wdA')
                for k_ in range(9, 12): mf3 += self.wd_dma(k_, 'wdB')
            if g == 3:
                for k_ in range(12, 15): mf3 += self.wd_dma(k_, 'wdC')
            if o.get('x_noep'): ep = []
            CD = o.get('cdma', 4)
            def costed(lst):
                out = []
                for x in lst:
                    f = x[0] if isinstance(x, tuple) else x
                    vm = getattr(f, 'isvm', False)
                    out.append((f, CD) if vm else x)
                return out
            mf, mf2, mf3 = costed(mf), costed(mf2), costed(mf3)
            merged = []; a_, c_ = list(ep), list(mf)
            ra = len(a_) / max(1, len(a_) + len(c_)); acc_ = 0.0
            while a_ or c_:
                acc_ += ra
                if (acc_ >= 1.0 - 1e-9 and a_) or not c_:
                    acc_ -= 1.0; merged.append(a_.pop(0))
                else: merged.append(c_.pop(0))
            end = len(mains) if g < 3 else len(mains) - 2
            if o.get('x_nowd'): mf3 = []
            if mf2: segs.append((pos[2], pos[12], mf2) if g else (pos[0], pos[6], mf2))
            if mf3: segs.append((pos[12] if mf2 else pos[2], pos[27] if g < 3 else pos[10], mf3))
            segs.append((pos[8] if (g == 0 and H1F) else (pos[KF + 2] if g > 0 else base), end, merged))
        self.sched(mains, None, segs=segs)
        self.stamp(18)
        e(f's_mov_b32 s{S_T4}, {3*112*1024}')
        for f in fin_ops(3): f()
        for u_ in range(2): fold_mfma(3, u_)()
        for f in epilogue_ops(3): (f[0] if isinstance(f, tuple) else f)()
        self.stamp(19)
        for x, n in ((vD,1),(vB,1),(vS,1),(t,1),(t2,1),(cs,32),(vA,1),(vG2,1),(vC,1),(sg2,6),(B,4*NB),(SB,8),(ones,4),(SG,8),(acc[0],32),(acc[1],32),(st,6),(par,3),(tmp,8),(pk,8),(vP,1),(vPw,1),(vBq,4),(vS2,1),(csA,8),(mB,4)):
            V.free(x, n)
        pass
        self.wait_lg('wdr3')
        for k_ in range(15, 19):
            for f in self.wd_dma(k_, 'wdD'): f()
        self.wait_vm('act'); e('s_barrier')
        e(f's_lshl_b32 s{S_T1}, s{S_RB}, 4\ns_add_u32 s{S_T1}, s{S_T1}, s{S_FB}')
        self.signal(WS_FLAG3, f's{S_T1}')
        self.stamp(20)

    def phaseC(self):
        e = self.e; V = self.V; o = self.o
        self.c('================= phase C')
        t = V.alloc(1); t2 = V.alloc(1)
        self.wait_all_lg()
        for k_ in range(19, 24):
            for f in self.wd_dma(k_, 'wdE'): f()
        self.wait_vm('wdC')
        for k_ in range(9, 15):
            for f in self.wd_reads(k_): f()
        self.wait_all_lg()
        for k_ in range(24, 28):
            for f in self.wd_dma(k_, 'wdF'): f()
        self.stamp(21)
        self.wait_vm('wdF')
        e(f's_lshr_b32 s{S_T0}, s{S_RB2}, 1\ns_mul_i32 s{S_T0}, s{S_T0}, {16*FLAG_STRIDE}')
        self.poll_flags(WS_FLAG3, 16, 1, sbase=S_T0, sleep=self.o.get('wsleep3', 1))
        self.vm.drain(); self.lg.drain()
        self.stamp(22)
        vA = V.alloc(1)
        e(f's_mul_i32 s{S_T0}, s{S_RB2}, {2*112}\ns_mul_i32 s{S_T1}, s{S_W}, 28\ns_add_u32 s{S_T0}, s{S_T0}, s{S_T1}\ns_lshl_b32 s{S_T0}, s{S_T0}, 10\ns_add_u32 s{S_T0}, s{S_T0}, {WS_ACT}\nv_lshl_add_u32 v{vA}, v1, 4, s{S_T0}')
        NR = o.get('NR', 10)
        Bf = V.alloc(4 * NR, 4); acc = V.alloc(64, 4)
        def ld(i):
            nt, k = divmod(i, 28)
            e(f's_add_u32 s{S_T1}, s{S_RA0 + k//7}, {(nt*112 + k%7)*1024}')
            self.vmem(f'buffer_load_dwordx4 {vr(Bf+4*(i%NR),4)}, v{vA}, s[{R_WS}:{R_WS+3}], s{S_T1} offen {o.get("aflags", "sc1")}', f'a{i}')
        for i in range(NR): ld(i)
        for k_ in range(15, 28):
            for f in self.wd_reads(k_): f()
        self.wait_all_lg(); e('s_barrier')
        V.free(self.vWD, 2); V.free(self.vWT, 6)
        hres = V.alloc(8, 4); vR = V.alloc(1)
        e(f's_lshl_b32 s{S_T0}, s{S_RB2}, 1\ns_and_b32 s{S_T1}, s{S_W}, 1\ns_add_u32 s{S_T0}, s{S_T0}, s{S_T1}\ns_mul_i32 s{S_T0}, s{S_T0}, 28')
        e(f's_lshl_b32 s{S_T1}, s{S_DB}, 2\ns_add_u32 s{S_T0}, s{S_T0}, s{S_T1}\ns_and_b32 s{S_T1}, s{S_W}, 2\ns_add_u32 s{S_T0}, s{S_T0}, s{S_T1}\ns_lshl_b32 s{S_T0}, s{S_T0}, 10\ns_add_u32 s{S_T0}, s{S_T0}, {WS_HD}\nv_lshl_add_u32 v{vR}, v1, 4, s{S_T0}')
        A = lambda mt, nt: acc + 16 * (2 * mt + nt)
        ra = V.alloc(1)
        e(f's_lshl_b32 s{S_T0}, s{S_W}, 12\nv_lshl_add_u32 v{ra}, v1, 4, s{S_T0}')
        def redw(T, q): return lambda: self.ds(f'ds_write_b128 v{ra}, {vr(acc+16*T+4*q,4)} offset:{T*16384 + q*1024}', 'redw')
        mains = []
        for i in range(56):
            nt, k = divmod(i, 28)
            for mt in range(2):
                cin = '0' if k == 0 else vr(A(mt, nt), 16)
                pre = [lambda i=i: self.wait_vm(f'a{i}')] if mt == 0 else []
                post = []
                if mt == 1 and i + NR < 56: post = [lambda i=i: ld(i + NR)]
                if mt == 1 and i == 56 - NR:
                    post = post + [lambda kk=kk: self.vmem(f'buffer_load_dwordx4 {vr(hres+4*kk,4)}, v{vR}, s[{R_WS}:{R_WS+3}], 0 offen offset:{1024*kk} sc1', 'hres') for kk in range(2)]
                mains.append((pre, lambda mt=mt, nt=nt, k=k, i=i, cin=cin: e(f'v_mfma_f32_32x32x16_bf16 {vr(A(mt,nt),16)}, {ar(8*k+4*mt,4)}, {vr(Bf+4*(i%NR),4)}, {cin}'), 32, post))
        self.sched(mains, None, segs=[(62, 100, [(redw(T, q), 3) for T in (0, 2) for q in range(4)])])
        self.stamp(23)
        V.free(Bf, 4 * NR)
        for T in (1, 3):
            for q in range(4): redw(T, q)()
        self.wait_all_lg()
        e('s_barrier')
        rr = V.alloc(64, 4); keep = rr
        e(f's_lshl_b32 s{S_T0}, s{S_W}, 14\nv_lshl_add_u32 v{ra}, v1, 4, s{S_T0}')
        for j in range(4):
            for q in range(4): self.ds(f'ds_read_b128 {vr(rr+16*j+4*q,4)}, v{ra} offset:{j*4096 + q*1024}', f'rr{j}')
        vO = V.alloc(1)
        e(f'v_and_b32 v{t}, 31, v1\nv_mul_u32_u24 v{vO}, 896, v{t}\nv_lshrrev_b32 v{t}, 5, v1\nv_lshl_add_u32 v{vO}, v{t}, 4, v{vO}')
        e(f's_lshl_b32 s{S_T0}, s{S_RB2}, 1\ns_and_b32 s{S_T1}, s{S_W}, 1\ns_add_u32 s{S_T0}, s{S_T0}, s{S_T1}\ns_mul_i32 s{S_T0}, s{S_T0}, {32*896}')
        e(f's_lshl_b32 s{S_T1}, s{S_DB}, 7\ns_add_u32 s{S_T0}, s{S_T0}, s{S_T1}\ns_and_b32 s{S_T1}, s{S_W}, 2\ns_lshl_b32 s{S_T1}, s{S_T1}, 5\ns_add_u32 s{S_T0}, s{S_T0}, s{S_T1}\nv_add_u32 v{vO}, s{S_T0}, v{vO}')
        for j in range(1, 4):
            self.wait_lg(f'rr{j}')
            for i in range(0, 16, 2): e(f'v_pk_add_f32 {vr(keep+i,2)}, {vr(keep+i,2)}, {vr(rr+16*j+i,2)}')
        self.wait_vm('hres')
        P = V.alloc(8, 4); w8 = rr + 16
        for d in range(8): e(f'v_cvt_pk_bf16_f32 v{P+d}, v{keep+2*d}, v{keep+2*d+1}')
        for d in range(8):
            e(f'v_lshlrev_b32 v{w8+2*d}, 16, v{P+d}\nv_and_b32 v{w8+2*d+1}, 0xffff0000, v{P+d}')
            e(f'v_lshlrev_b32 v{w8+16+2*d}, 16, v{hres+d}\nv_and_b32 v{w8+16+2*d+1}, 0xffff0000, v{hres+d}')
        for d in range(8): e(f'v_pk_add_f32 {vr(w8+2*d,2)}, {vr(w8+2*d,2)}, {vr(w8+16+2*d,2)}')
        for d in range(8): e(f'v_cvt_pk_bf16_f32 v{P+d}, v{w8+2*d}, v{w8+2*d+1}')
        for kk in range(2):
            b = P + 4 * kk
            e(f'v_permlane32_swap_b32 v{b}, v{b+2}\nv_permlane32_swap_b32 v{b+1}, v{b+3}')
        for kk in range(2):
            self.vmem(f'buffer_store_dwordx4 {vr(P+4*kk,4)}, v{vO}, s[{R_OUT}:{R_OUT+3}], 0 offen offset:{32*kk} {o.get("outflags", "")}', 'out')
        self.stamp(24)

    def build(self):
        e = self.e
        self.prologue()
        saveV = list(self.V.used)
        self.helper()
        self.V.used = saveV; self.vm.drain(); self.lg.drain()
        self.label('L_worker')
        self.phaseA()
        upto = self.o.get('upto', 'C')
        if upto in ('B', 'C'): self.phaseB()
        if upto == 'C': self.phaseC()
        self.stamps_out()
        if self.o.get('padto'):
            e('s_waitcnt vmcnt(0)')
            self.label('L_pad')
            e(f's_memrealtime s[{S_TS}:{S_TS+1}]\ns_waitcnt lgkmcnt(0)\ns_sub_u32 s{S_TS}, s{S_TS}, s{S_TS+6}\ns_cmp_lt_u32 s{S_TS}, {self.o.get("padto")}\ns_cbranch_scc1 L_pad')
        self.label('L_end')
        e('s_endpgm')

HEADER = open(os.path.join(os.path.dirname(os.path.abspath(__file__)), 'header.txt')).read() if os.path.exists(os.path.join(os.path.dirname(os.path.abspath(__file__)), 'header.txt')) else ''

def generate(opt):
    g = Gen(opt)
    g.build()
    lines, problems = fix_hazards(g.lines, verbose=opt.get('verbose', False))
    for p in problems: print('BACKEDGE HAZARD:', p, file=sys.stderr)
    out = [HEADER.rstrip('\n').replace('@@GRID@@', f'; @launch grid=(256,1,1) block=(256,1,1) lds={LDS_SIZE}')]
    out += ['.amdgcn_target "amdgcn-amd-amdhsa--gfx950"', '.text', f'.globl {NAME}', '.p2align 8', f'.type {NAME},@function', f'{NAME}:']
    for l in lines:
        out.append(l if l.endswith(':') else '    ' + l)
    out += ['.section .rodata,"a"', '.p2align 6', f'.amdhsa_kernel {NAME}',
            '  .amdhsa_next_free_vgpr 512', '  .amdhsa_next_free_sgpr 102', '  .amdhsa_accum_offset 256',
            '  .amdhsa_group_segment_fixed_size 0', '  .amdhsa_kernarg_size 128', '  .amdhsa_user_sgpr_count 2',
            '  .amdhsa_user_sgpr_kernarg_segment_ptr 1', '  .amdhsa_system_sgpr_workgroup_id_x 1',
            '  .amdhsa_float_denorm_mode_32 3', '.end_amdhsa_kernel', '']
    if opt.get('verbose'): print('max arch vgpr', g.V.hi, 'lines', len(lines))
    return '\n'.join(out)

if __name__ == '__main__':
    import json
    opt = json.loads(sys.argv[2]) if len(sys.argv) > 2 else {}
    opt['verbose'] = True
    txt = generate(opt)
    open(sys.argv[1], 'w').write(txt)
```

```python
import sys, os, math, struct
sys.path.insert(0, os.path.dirname(os.path.abspath(__file__)))
from asmlib import *

NAME = 'sequential_preLN__ssm_conv_s4__swiglu_ffn__prompt_kernel'
def f2u(x): return struct.unpack('<I', struct.pack('<f', x))[0]
def fx(x): return hex(f2u(x))
LOG2E = 1.4426950408889634
WS_STATS = 0x0
WS_FLAG2 = 0x4000
WS_FLAG3 = 0xC000
WS_STATS2 = 0x10000
WS_CS    = 0x14000
WS_HT    = 0x20000
HT_STRIDE = 4352
WS_HD    = 0x200000
WS_ACT   = 0x400000
WS_XT    = 0xB00000
XT_STRIDE = 4352
WS_DBG   = 0xE00000
WS_SIZE  = 0x2000000
FLAG_STRIDE = int(os.environ.get('FLAG_STRIDE', 16))
TBL_E = 1088; TBL_C = 18 * TBL_E
L_TBL = 0
L_EX = 2 * TBL_C
L_K32 = 55680; K32_C = 9344
L_RED = L_K32
L_STG = 87040; STG_SLOT = 8192
L_STGX = 74496
L_KC = 0; KC_S = 4160; KC_C = 4 * KC_S
L_U = 2 * KC_C; U_C = 5120
L_X = L_U + 2 * U_C; X_C = 4096
LDS_SIZE = 163840
HX_STRIDE = 912
S_X, S_ARE, S_AIM, S_BRE, S_BIM, S_CRE, S_CIM, S_LDT, S_DSK, S_BX, S_WG, S_WU, S_WD, S_OUT, S_DBG, S_WS = range(4, 36, 2)
R_X, R_WS, R_DBG, R_WG, R_WU, R_WD, R_OUT = 36, 40, 44, 48, 52, 56, 60
S_W, S_NONCE, S_XCD, S_J, S_CP, S_T0, S_T1, S_T2, S_T3, S_T4, S_T5 = 64, 65, 66, 67, 68, 69, 70, 71, 72, 73, 74
S_LD, S_DK = 75, 76
S_RB, S_FB, S_RB2, S_DB = 77, 78, 79, 80
S_M0, S_M1, S_M2, S_M3 = 82, 84, 86, 88
S_CNT = 90
S_HID = 91
S_WM, S_WO, S_US = 81, 100, 101
S_ROT = 99
S_WA, S_WB, S_WC = 18, 19, 20
S_RW0, S_RA0 = 24, 28
S_Q0 = 14
S_TS = 92
SPIN_MAX = 50000

class Gen(Asm):
    def __init__(self, opt):
        super().__init__()
        self.o = opt
        self.V = Regs('v', 256, start=2)
        if opt.get('stamps'): self.V.take(254, 2)
        self.V.take(250, 4)
        self.uid = 0
    def lab(self, s):
        self.uid += 1
        return f'L{s}_{self.uid}'
    def srd(self, r, ptr, size):
        self.e(f's_mov_b32 s{r}, s{ptr}\ns_mov_b32 s{r+1}, s{ptr+1}\ns_mov_b32 s{r+2}, {hex(size)}\ns_mov_b32 s{r+3}, 0x20000')
    def cmul(self, d, a, b, t=None):
        t = d if t is None else t
        self.e(f'v_pk_mul_f32 {vr(t,2)}, {vr(a,2)}, {vr(b,2)} op_sel:[0,0] op_sel_hi:[0,1]')
        self.e(f'v_pk_fma_f32 {vr(d,2)}, {vr(a,2)}, {vr(b,2)}, {vr(t,2)} op_sel:[1,1,0] op_sel_hi:[1,0,1] neg_lo:[0,1,0]')
    def cmul_multi(self, items):
        for d, a, b, t in items:
            t = d if t is None else t
            self.e(f'v_pk_mul_f32 {vr(t,2)}, {vr(a,2)}, {vr(b,2)} op_sel:[0,0] op_sel_hi:[0,1]')
        for d, a, b, t in items:
            t = d if t is None else t
            self.e(f'v_pk_fma_f32 {vr(d,2)}, {vr(a,2)}, {vr(b,2)}, {vr(t,2)} op_sel:[1,1,0] op_sel_hi:[1,0,1] neg_lo:[0,1,0]')
    def stamp(self, i):
        dm = self.o.get('dbgmap')
        if dm and i in dm:
            lab = self.lab('ds')
            self.e(f's_cmp_lg_u32 s2, {self.o.get("dbgwg", 8)}\ns_cbranch_scc1 {lab}\ns_cmp_lg_u32 s{S_W}, 0\ns_cbranch_scc1 {lab}')
            self.e(f's_memrealtime s[{S_TS}:{S_TS+1}]\ns_waitcnt lgkmcnt(0)')
            v = self.V.alloc(2)
            self.e(f's_sub_u32 s{S_TS}, s{S_TS}, s{S_TS+6}\nv_mov_b32 v{v}, s{S_TS}\nv_mov_b32 v{v+1}, {4*(1+dm.index(i))}')
            self.e(f's_mov_b64 s[{S_TS+4}:{S_TS+5}], exec\ns_mov_b64 exec, 1')
            self.e(f'buffer_store_dword v{v}, v{v+1}, s[{R_DBG}:{R_DBG+3}], 0 offen')
            self.e(f's_mov_b64 exec, s[{S_TS+4}:{S_TS+5}]')
            self.V.free(v, 2)
            self.label(lab)
            self.e('s_waitcnt lgkmcnt(0)')
            self.lg.drain()
        if self.o.get('stamps') and (self.o.get('only') is None or i in self.o['only']):
            self.e(f's_memrealtime s[{S_TS}:{S_TS+1}]\ns_memtime s[{S_TS+4}:{S_TS+5}]')
            self.e('s_waitcnt lgkmcnt(0)'); self.lg.drain()
            self.e(f'v_writelane_b32 v254, s{S_TS}, {i}\nv_writelane_b32 v255, s{S_TS+4}, {i}')

    def stamps_out(self):
        if self.o.get('stamps'):
            e = self.e
            e(f's_lshl_b32 s{S_TS+2}, s2, 10\ns_lshl_b32 s{S_TS+3}, s{S_W}, 8\ns_add_u32 s{S_TS+2}, s{S_TS+2}, s{S_TS+3}\ns_add_u32 s{S_TS+2}, s{S_TS+2}, {WS_DBG}')
            e(f'v_lshl_add_u32 v252, v1, 2, s{S_TS+2}\ns_mov_b32 exec_lo, -1\ns_mov_b32 exec_hi, 0')
            e(f'buffer_store_dword v254, v252, s[{R_WS}:{R_WS+3}], 0 offen\nbuffer_store_dword v255, v252, s[{R_WS}:{R_WS+3}], 0 offen offset:128')

    def prologue(self):
        e = self.e
        e(f's_cmp_ge_u32 s2, 256\ns_cbranch_scc1 L_end')
        e(f's_load_dwordx16 s[4:19], s[0:1], 0\ns_load_dwordx16 s[20:35], s[0:1], 64')
        e(f's_memrealtime s[{S_M0}:{S_M0+1}]')
        e('v_and_b32 v1, 63, v0')
        if self.o.get('codepf', True):
            lpc = self.lab('pc'); a = 250
            e(f's_getpc_b64 s[{S_M2}:{S_M2+1}]')
            self.label(lpc)
            e(f's_sub_u32 s{S_M2}, s{S_M2}, {lpc}-{NAME}\ns_subb_u32 s{S_M2+1}, s{S_M2+1}, 0')
            e(f's_lshr_b32 s{S_T0}, s2, 3\ns_lshl_b32 s{S_T0}, s{S_T0}, 4')
            e(f'v_lshrrev_b32 v{a}, 6, v0\nv_lshl_add_u32 v{a}, v{a}, 2, v1\nv_add_u32 v{a}, s{S_T0}, v{a}\nv_lshlrev_b32 v{a}, 7, v{a}\nv_min_u32 v{a}, L_end-{NAME}, v{a}')
            e(f'v_mov_b32 v{a+3}, s{S_M2+1}\nv_add_co_u32 v{a+2}, vcc, s{S_M2}, v{a}\nv_addc_co_u32 v{a+3}, vcc, 0, v{a+3}, vcc')
            e(f's_mov_b64 s[{S_M1}:{S_M1+1}], exec\ns_mov_b64 exec, 15')
            e(f'global_load_dword v{a+1}, v[{a+2}:{a+3}], off')
            e(f's_mov_b64 exec, s[{S_M1}:{S_M1+1}]')
        if self.o.get('stamps'): e('v_mov_b32 v254, 0x5a5a5a5a\nv_mov_b32 v255, 0x5a5a5a5a')
        v = self.V.alloc(1)
        e(f'v_lshrrev_b32 v{v}, 6, v0')
        e(f's_and_b32 s{S_XCD}, s2, 7\ns_lshr_b32 s{S_J}, s2, 3')
        e(f'v_readfirstlane_b32 s{S_W}, v{v}')
        self.V.free(v)
        if self.o.get('hfirst', True):
            e(f's_cmp_lt_u32 s{S_J}, 4\ns_cbranch_scc1 L_helper')
            e(f's_sub_u32 s{S_J}, s{S_J}, 4\ns_mul_i32 s{S_CP}, s{S_XCD}, 28\ns_add_u32 s{S_CP}, s{S_CP}, s{S_J}\ns_branch L_worker')
        else:
            e(f's_mul_i32 s{S_CP}, s{S_XCD}, 28\ns_add_u32 s{S_CP}, s{S_CP}, s{S_J}')
            e(f's_cmp_lt_u32 s{S_J}, 28\ns_cbranch_scc1 L_worker\ns_sub_u32 s{S_J}, s{S_J}, 28')
        self.label('L_helper')

    def srds(self, skip=()):
        e = self.e
        for r, p, n in ((R_X, S_X, 2048*448*2), (R_WS, S_WS, WS_SIZE), (R_DBG, S_DBG, 256), (R_WG, S_WG, 448*1792*2), (R_WU, S_WU, 448*1792*2),
                        (R_WD, S_WD, 448*1792*2), (R_OUT, S_OUT, 2048*448*2)):
            if r not in skip: self.srd(r, p, n)

    def publish_nonce(self):
        e = self.e
        e(f's_or_b32 s{S_NONCE}, s{S_M0}, 1\ns_mov_b32 s{S_TS+6}, s{S_M0}')
        lab = self.lab('non')
        e(f's_or_b32 s{S_T0}, s2, s{S_W}\ns_cmp_lg_u32 s{S_T0}, 0\ns_cbranch_scc1 {lab}')
        v = self.V.alloc(2)
        e(f'v_mov_b32 v{v}, s{S_NONCE}\nv_mov_b32 v{v+1}, 0')
        e(f's_mov_b64 s[{S_M1}:{S_M1+1}], exec\ns_mov_b64 exec, 1')
        e(f'buffer_store_dword v{v}, v{v+1}, s[{R_DBG}:{R_DBG+3}], 0 offen sc1')
        e(f's_mov_b64 exec, s[{S_M1}:{S_M1+1}]')
        self.V.free(v, 2)
        self.label(lab)

    def capture(self, fn):
        save = self.lines; self.lines = []
        r = fn()
        fl = self.lines; self.lines = save
        return r, [(lambda l=l: self.e(l)) for l in fl if not l.startswith(';')]

    def region(self, fn):
        save = self.lines; self.lines = []
        r = fn()
        fl = self.lines; self.lines = save
        self.lines.extend(resched(fl) if self.o.get('resched', True) else fl)
        return r

    def two_paths(self, fn, nop=7):
        e = self.e; l1 = self.lab('p1'); ld = self.lab('pd')
        e(f's_and_b32 s{S_T5}, s{S_W}, 1\ns_cmp_lg_u32 s{S_T5}, 0\ns_cbranch_scc1 {l1}')
        st = (list(self.vm.q), list(self.lg.q), list(self.V.used))
        fn(0)
        e(f's_branch {ld}')
        end = (list(self.vm.q), list(self.lg.q), list(self.V.used))
        self.vm.q, self.lg.q, self.V.used = list(st[0]), list(st[1]), list(st[2])
        self.label(l1)
        e(f's_nop {nop}')
        fn(1)
        assert (self.vm.q, self.lg.q, self.V.used) == end, 'paths diverge'
        self.label(ld)

    def get_nonce(self):
        e = self.e
        v = self.V.alloc(2)
        l0 = self.lab('gn'); l1 = self.lab('gnd')
        e(f'v_mov_b32 v{v+1}, 0\ns_mov_b32 s{S_CNT}, 0')
        self.label(l0)
        e(f'buffer_load_dword v{v}, v{v+1}, s[{R_DBG}:{R_DBG+3}], 0 offen sc1')
        e('s_waitcnt vmcnt(0)'); self.vm.drain()
        e(f'v_readfirstlane_b32 s{S_NONCE}, v{v}')
        e(f's_cmp_lg_u32 s{S_NONCE}, 0\ns_cbranch_scc1 {l1}')
        e(f's_add_u32 s{S_CNT}, s{S_CNT}, 1\ns_cmp_lt_u32 s{S_CNT}, {SPIN_MAX}\ns_cbranch_scc1 {l0}')
        self.label(l1)
        self.V.free(v, 2)

    def helper(self):
        e = self.e; V = self.V
        self.c('================= helper: x^T + LN1 stats')
        e('s_waitcnt lgkmcnt(0)')
        self.srd(R_DBG, S_DBG, 256)
        if self.o.get('hfirst', True): self.publish_nonce()
        self.srd(R_X, S_X, 2048*448*2)
        e(f's_mov_b32 s{S_TS+6}, s{S_M0}')
        e(f's_lshl_b32 s{S_T0}, s{S_XCD}, 2\ns_add_u32 s{S_HID}, s{S_J}, s{S_T0}')
        va = V.alloc(1); t0 = V.alloc(1); t1 = V.alloc(1)
        e(f's_lshl_b32 s{S_T0}, s{S_HID}, 6\ns_lshl_b32 s{S_T1}, s{S_W}, 4\ns_add_u32 s{S_T0}, s{S_T0}, s{S_T1}')
        e(f's_mul_i32 s{S_T2}, s{S_T0}, 896\ns_mul_i32 s{S_T3}, s{S_T1}, {HX_STRIDE}')
        e(f'v_lshlrev_b32 v{va}, 4, v1')
        e(f's_mov_b64 s[{S_M1}:{S_M1+1}], exec\ns_mov_b32 exec_lo, -1\ns_mov_b32 exec_hi, 0x00ffffff')
        for r in range(16):
            e(f's_add_u32 m0, s{S_T3}, {r*HX_STRIDE}\ns_add_u32 s{S_T4}, s{S_T2}, {r*896}')
            self.vmem(f'buffer_load_dwordx4 v{va}, s[{R_X}:{R_X+3}], s{S_T4} offen lds', 'x')
        e(f's_mov_b64 exec, s[{S_M1}:{S_M1+1}]')
        self.srds(skip=(R_X, R_DBG))
        self.stamp(0)
        vT = V.alloc(1); vO = V.alloc(1); vA = V.alloc(1)
        e(f'v_lshrrev_b32 v{t0}, 4, v1\nv_lshlrev_b32 v{t0}, 1, v{t0}\nv_bfe_u32 v{t1}, v1, 1, 1\nv_add_u32 v{t0}, v{t0}, v{t1}\nv_lshlrev_b32 v{t0}, 3, v{t0}')
        e(f'v_bfe_u32 v{t1}, v1, 2, 2\nv_add_u32 v{t0}, v{t0}, v{t1}\nv_mul_u32_u24 v{vT}, {HX_STRIDE}, v{t0}')
        e(f'v_and_b32 v{t1}, 1, v1\nv_lshl_add_u32 v{vT}, v{t1}, 3, v{vT}\ns_lshl_b32 s{S_T0}, s{S_W}, 4\nv_add_u32 v{vT}, s{S_T0}, v{vT}')
        e(f's_lshl_b32 s{S_T0}, s{S_W}, 15\ns_lshl_b32 s{S_T1}, s{S_HID}, 10\ns_add_u32 s{S_T0}, s{S_T0}, s{S_T1}\ns_add_u32 s{S_T0}, s{S_T0}, {WS_XT}\nv_lshl_add_u32 v{vO}, v1, 4, s{S_T0}')
        e(f'v_and_b32 v{t0}, 15, v1\nv_lshrrev_b32 v{t1}, 4, v1')
        e(f's_lshl_b32 s{S_T0}, s{S_W}, 4\nv_add_u32 v{t0}, s{S_T0}, v{t0}\nv_mul_u32_u24 v{vA}, {HX_STRIDE}, v{t0}\nv_lshl_add_u32 v{vA}, v{t1}, 4, v{vA}')
        e(f's_lshl_b32 s{S_T0}, s{S_HID}, 6\nv_add_u32 v{t0}, s{S_T0}, v{t0}')
        XG = self.o.get('xg', True)
        self.get_nonce()
        Q = V.alloc(56, 4)
        if not XG:
            e('s_barrier')
            self.stamp(3)
            for u in range(14):
                for k_ in range(2):
                    self.ds(f'ds_read_b64_tr_b16 {vr(Q+4*u+2*k_,2)}, v{vT} offset:{64*u + 4*k_*HX_STRIDE}', f'q{u}')
            for u in range(14):
                self.wait_lg(f'q{u}')
                e(f's_mov_b32 s{S_T1}, {u*4*32768}')
                self.vmem(f'buffer_store_dwordx4 {vr(Q+4*u,4)}, v{vO}, s[{R_WS}:{R_WS+3}], s{S_T1} offen sc1', 'xt')
            self.stamp(4)
        else: self.stamp(3)
        xa = V.alloc(56, 4)
        for s in range(14): self.ds(f'ds_read_b128 {vr(xa+4*s,4)}, v{vA} offset:{64*s}', f'x{s}')
        acc = V.alloc(8, 4); ones = V.alloc(4, 4)
        for i in range(4): e(f'v_mov_b32 v{ones+i}, 0x3f803f80')
        e(f's_mov_b32 s6, 0x22222222\ns_mov_b32 s7, 0x22222222\ns_mov_b32 s8, 0x44444444\ns_mov_b32 s9, 0x44444444\ns_mov_b32 s10, 0x88888888\ns_mov_b32 s11, 0x88888888\ns_mov_b32 s12, 0x00f0000f\ns_mov_b32 s13, 0xf0000f00')
        for s in range(14):
            self.wait_lg(f'x{s}')
            e(f'v_mfma_f32_16x16x32_bf16 {vr(acc,4)}, {vr(xa+4*s,4)}, {vr(xa+4*s,4)}, {"0" if s == 0 else vr(acc,4)}')
            e(f'v_mfma_f32_16x16x32_bf16 {vr(acc+4,4)}, {vr(ones,4)}, {vr(xa+4*s,4)}, {"0" if s == 0 else vr(acc+4,4)}')
        e(f'v_cndmask_b32 v{acc}, v{acc}, v{acc+1}, s[6:7]\nv_cndmask_b32 v{acc}, v{acc}, v{acc+2}, s[8:9]\nv_cndmask_b32 v{acc+5}, v{acc}, v{acc+3}, s[10:11]')
        e(f'v_mov_b32 v{acc}, v{acc+4}\nv_mov_b32 v{acc+4}, v{acc+5}')
        S = acc; Qs = acc + 4
        pk = V.alloc(2, 2)
        self.ln_finalize(S, Qs, acc + 1, acc + 2, acc + 3)
        e(f'v_lshrrev_b32 v{pk}, 16, v{acc+1}\nv_or_b32 v{pk}, v{pk}, v{acc+2}')
        self.stamp(5)
        if not XG:
            self.wait_all_vm()
            e('s_barrier')
        self.stamp(6)
        e(f'v_mov_b32 v{pk+1}, s{S_NONCE}')
        e(f'v_lshlrev_b32 v{t0}, 3, v{t0}')
        if WS_STATS: e(f'v_add_u32 v{t0}, {WS_STATS}, v{t0}')
        e(f's_mov_b64 s[{S_M1}:{S_M1+1}], exec\ns_mov_b64 exec, s[12:13]')
        self.vmem(f'buffer_store_dwordx2 {vr(pk,2)}, v{t0}, s[{R_WS}:{R_WS+3}], 0 offen sc1', 'st')
        e(f's_mov_b64 exec, s[{S_M1}:{S_M1+1}]')
        self.stamp(1)
        V.free(pk, 2); V.free(acc, 8); V.free(ones, 4); V.free(xa, 56); V.free(Q, 56); V.free(vT); V.free(vO); V.free(vA)
        e('s_barrier')
        if self.o.get('hcs', True):
            self.c('helper: column sums')
            wv = V.alloc(28 * 4, 4); cs = V.alloc(8, 2)
            lg = self.lab('hg'); ld = self.lab('hd')
            e(f'v_lshrrev_b32 v{t0}, 4, v0\nv_and_b32 v{t1}, 15, v0')
            e(f'v_mul_u32_u24 v{va}, 3584, v{t0}\nv_min_u32 v{t1}, 13, v{t1}\nv_lshl_add_u32 v{va}, v{t1}, 4, v{va}')
            e(f's_and_b32 s{S_T0}, s{S_HID}, 15\ns_mul_i32 s{S_T0}, s{S_T0}, 224')
            e(f'v_add_u32 v{va}, s{S_T0}, v{va}')
            e(f's_cmp_ge_u32 s{S_HID}, 16\ns_cbranch_scc1 {lg}')
            save = list(self.vm.q)
            for k in range(28):
                e(f's_mov_b32 s{S_T1}, {k*16*3584}')
                self.vmem(f'buffer_load_dwordx4 {vr(wv+4*k,4)}, v{va}, s[{R_WG}:{R_WG+3}], s{S_T1} offen', f'w{k}')
            e(f's_branch {ld}')
            self.label(lg)
            self.vm.q = list(save)
            for k in range(28):
                e(f's_mov_b32 s{S_T1}, {k*16*3584}')
                self.vmem(f'buffer_load_dwordx4 {vr(wv+4*k,4)}, v{va}, s[{R_WU}:{R_WU+3}], s{S_T1} offen', f'w{k}')
            self.label(ld)
            e(f's_mov_b32 s{S_T2}, 0x00003f80\ns_mov_b32 s{S_T3}, 0x3f800000')
            for i in range(8): e(f'v_mov_b32 v{cs+i}, 0')
            for k in range(28):
                self.wait_vm(f'w{k}')
                for r in range(4):
                    e(f'v_dot2_f32_bf16 v{cs+2*r}, v{wv+4*k+r}, s{S_T2}, v{cs+2*r}')
                    e(f'v_dot2_f32_bf16 v{cs+2*r+1}, v{wv+4*k+r}, s{S_T3}, v{cs+2*r+1}')
            tmp = V.alloc(8, 2)
            for swap in ('v_permlane32_swap_b32', 'v_permlane16_swap_b32'):
                for i in range(8): e(f'v_mov_b32 v{tmp+i}, v{cs+i}')
                for i in range(8): e(f'{swap} v{cs+i}, v{tmp+i}')
                for i in range(8): e(f'v_add_f32 v{cs+i}, v{cs+i}, v{tmp+i}')
            e(f'v_and_b32 v{t1}, 15, v1\nv_lshlrev_b32 v{t0}, 5, v{t1}\ns_lshl_b32 s{S_T0}, s{S_W}, 9\nv_add_u32 v{t0}, s{S_T0}, v{t0}')
            self.ds(f'ds_write_b128 v{t0}, {vr(cs,4)}'); self.ds(f'ds_write_b128 v{t0}, {vr(cs+4,4)} offset:16')
            self.wait_all_lg(); e('s_barrier')
            e(f'v_lshlrev_b32 v{t0}, 2, v0')
            for w in range(4): self.ds(f'ds_read_b32 v{tmp+w}, v{t0} offset:{512*w}')
            self.wait_all_lg()
            e(f'v_add_f32 v{tmp}, v{tmp}, v{tmp+1}\nv_add_f32 v{tmp+2}, v{tmp+2}, v{tmp+3}\nv_add_f32 v{tmp}, v{tmp}, v{tmp+2}')
            e(f's_mul_i32 s{S_T0}, s{S_HID}, 448\ns_add_u32 s{S_T0}, s{S_T0}, {WS_CS}\nv_add_u32 v{t0}, s{S_T0}, v{t0}')
            e(f'v_cmp_gt_u32 vcc, 112, v0\ns_and_saveexec_b64 s[{S_M1}:{S_M1+1}], vcc')
            lx = self.lab('hcs')
            e(f's_cbranch_execz {lx}')
            e(f'buffer_store_dword v{tmp}, v{t0}, s[{R_WS}:{R_WS+3}], 0 offen sc1')
            self.label(lx)
            e(f's_mov_b64 exec, s[{S_M1}:{S_M1+1}]')
            V.free(tmp, 8); V.free(cs, 8); V.free(wv, 112)
            self.wait_all_vm(); e('s_barrier')
            self.signal(WS_FLAG2, 's2')
            self.stamp(10)
        tw = self.o.get('touch_wd', 'mall')
        if tw:
            nl = 13 if tw == 'l2' else 2
            tv = V.alloc(13); ta = V.alloc(2)
            if tw == 'l2': e(f's_mul_i32 s{S_T0}, s{S_J}, {448*896}')
            else: e(f's_mul_i32 s{S_T0}, s{S_HID}, {56*896}')
            for k in range(nl):
                e(f'v_add_u32 v{ta}, {256*k}, v0\nv_min_u32 v{ta}, {3135 if tw == "l2" else 391}, v{ta}\nv_mul_u32_u24 v{ta+1}, 9363, v{ta}\nv_lshrrev_b32 v{ta+1}, 16, v{ta+1}')
                e(f'v_mul_u32_u24 v{tv+k}, 7, v{ta+1}\nv_sub_u32 v{ta}, v{ta}, v{tv+k}\nv_mul_u32_u24 v{ta+1}, 896, v{ta+1}\nv_lshl_add_u32 v{ta+1}, v{ta}, 7, v{ta+1}')
                e(f'buffer_load_dword v{tv+k}, v{ta+1}, s[{R_WD}:{R_WD+3}], s{S_T0} offen')
            self.wait_all_vm()
            V.free(tv, 13); V.free(ta, 2)
        self.c('helper: LN2 stats + hD')
        vD = V.alloc(1); vB = V.alloc(2); vS = V.alloc(1); vHs = V.alloc(1)
        e(f'v_lshrrev_b32 v{t0}, 3, v1\nv_mul_u32_u24 v{vD}, {HT_STRIDE}, v{t0}\nv_bfe_u32 v{t0}, v1, 4, 1\nv_lshlrev_b32 v{t0}, 2, v{t0}\nv_and_b32 v{t1}, 7, v1\nv_xor_b32 v{t0}, v{t0}, v{t1}\nv_lshl_add_u32 v{vD}, v{t0}, 4, v{vD}')
        e(f's_lshl_b32 s{S_T0}, s{S_HID}, 7\ns_mul_i32 s{S_T1}, s{S_W}, {8*HT_STRIDE}\ns_add_u32 s{S_T0}, s{S_T0}, s{S_T1}\ns_add_u32 s{S_T0}, s{S_T0}, {WS_HT}\nv_add_u32 v{vD}, s{S_T0}, v{vD}')
        e(f'v_lshrrev_b32 v{t0}, 5, v1\nv_lshlrev_b32 v{vB}, 9, v{t0}\nv_bfe_u32 v{t0}, v1, 2, 2\nv_lshl_add_u32 v{vB}, v{t0}, 7, v{vB}')
        e(f'v_bfe_u32 v{t0}, v1, 4, 1\nv_lshl_add_u32 v{vB}, v{t0}, 5, v{vB}\nv_and_b32 v{t0}, 3, v1\nv_lshl_add_u32 v{vB}, v{t0}, 3, v{vB}')
        e(f'v_bfe_u32 v{t0}, v1, 3, 1\nv_lshlrev_b32 v{t0}, 6, v{t0}\nv_xor_b32 v{t1}, 64, v{t0}\nv_add_u32 v{vB+1}, v{vB}, v{t1}\nv_add_u32 v{vB}, v{vB}, v{t0}')
        e(f'v_lshrrev_b32 v{t0}, 4, v1\nv_lshlrev_b32 v{vS}, 9, v{t0}\nv_bfe_u32 v{t0}, v1, 2, 2\nv_lshl_add_u32 v{vS}, v{t0}, 7, v{vS}\nv_and_b32 v{t0}, 3, v1\nv_lshl_add_u32 v{vS}, v{t0}, 3, v{vS}')
        e(f'v_bfe_u32 v{t0}, v1, 3, 1\ns_lshr_b32 s{S_T0}, s{S_W}, 1\nv_xor_b32 v{t0}, s{S_T0}, v{t0}\nv_lshl_add_u32 v{vS}, v{t0}, 6, v{vS}\ns_and_b32 s{S_T0}, s{S_W}, 1\ns_lshl_b32 s{S_T0}, s{S_T0}, 5\nv_add_u32 v{vS}, s{S_T0}, v{vS}')
        e(f's_mul_i32 s{S_T0}, s{S_HID}, {2*28}\ns_add_u32 s{S_T0}, s{S_T0}, s{S_W}\ns_lshl_b32 s{S_T0}, s{S_T0}, 10\ns_add_u32 s{S_T0}, s{S_T0}, {WS_HD}\nv_lshl_add_u32 v{vHs}, v1, 4, s{S_T0}')
        ones = V.alloc(4, 4); SG = V.alloc(8, 4); SB = V.alloc(56, 4)
        for i in range(4): e(f'v_mov_b32 v{ones+i}, 0x3f803f80')
        K1, K2, K3 = 6, 8, 10
        e(f's_mov_b32 s{K1}, 0x22222222\ns_mov_b32 s{K1+1}, 0x22222222\ns_mov_b32 s{K2}, 0x44444444\ns_mov_b32 s{K2+1}, 0x44444444')
        e(f's_mov_b32 s{K3}, 0x88888888\ns_mov_b32 s{K3+1}, 0x88888888\ns_mov_b32 s12, 0x00f0000f\ns_mov_b32 s13, 0xf0000f00')
        if self.o.get('sentinel', True):
            self.poll_flags(WS_FLAG2 + (255 if self.o.get('hfirst', True) else 223)*FLAG_STRIDE, 1, 1, sleep=self.o.get('hsleep', 20))
        self.poll_flags(WS_FLAG2 + (32 if self.o.get('hfirst', True) else 0)*FLAG_STRIDE, 64, 4, last_lanes=32, sleep=self.o.get('hsleep2', 4))
        self.vm.drain(); self.lg.drain()
        self.stamp(7)
        e(f's_lshl_b32 s{S_T2}, s{S_W}, 10')
        for i in range(14):
            e(f's_add_u32 m0, s{S_T2}, {i*4096}\ns_mov_b32 s{S_T1}, {i*32*HT_STRIDE}')
            self.vmem(f'buffer_load_dwordx4 v{vD}, s[{R_WS}:{R_WS+3}], s{S_T1} offen sc1 lds', 'h')
        self.wait_all_vm(); e('s_barrier')
        self.stamp(8)
        for i in range(14):
            for h_ in range(2): self.ds(f'ds_read_b64_tr_b16 {vr(SB+4*i+2*h_,2)}, v{vS} offset:{i*4096 + 2048*h_}', f's{i}')
        for i in range(14):
            self.wait_lg(f's{i}')
            e(f'v_mfma_f32_16x16x32_bf16 {vr(SG,4)}, {vr(SB+4*i,4)}, {vr(SB+4*i,4)}, {"0" if i == 0 else vr(SG,4)}')
            e(f'v_mfma_f32_16x16x32_bf16 {vr(SG+4,4)}, {vr(ones,4)}, {vr(SB+4*i,4)}, {"0" if i == 0 else vr(SG+4,4)}')
        HB = V.alloc(56, 4)
        e(f'v_cndmask_b32 v{SG}, v{SG}, v{SG+1}, s[{K1}:{K1+1}]\nv_cndmask_b32 v{SG}, v{SG}, v{SG+2}, s[{K2}:{K2+1}]\nv_cndmask_b32 v{SG+5}, v{SG}, v{SG+3}, s[{K3}:{K3+1}]')
        self.ln_finalize(SG + 4, SG + 5, SG + 1, SG + 2, SG + 3)
        e(f'v_lshrrev_b32 v{SG}, 16, v{SG+1}\nv_or_b32 v{SG}, v{SG}, v{SG+2}\nv_mov_b32 v{SG+1}, s{S_NONCE}')
        e(f'v_and_b32 v{t0}, 15, v1\ns_lshl_b32 s{S_T0}, s{S_HID}, 6\ns_lshl_b32 s{S_T1}, s{S_W}, 4\ns_add_u32 s{S_T0}, s{S_T0}, s{S_T1}\nv_add_u32 v{t0}, s{S_T0}, v{t0}\nv_lshlrev_b32 v{t0}, 3, v{t0}\nv_add_u32 v{t0}, {WS_STATS2}, v{t0}')
        e(f's_mov_b64 s[{S_M1}:{S_M1+1}], exec\ns_mov_b64 exec, s[12:13]')
        self.vmem(f'buffer_store_dwordx2 {vr(SG,2)}, v{t0}, s[{R_WS}:{R_WS+3}], 0 offen sc1', 'st2')
        e(f's_mov_b64 exec, s[{S_M1}:{S_M1+1}]')
        self.stamp(9)
        e(f's_lshl_b32 s{S_T0}, s{S_W}, 11\nv_add_u32 v{vB}, s{S_T0}, v{vB}\nv_add_u32 v{vB+1}, s{S_T0}, v{vB+1}')
        for i in range(7):
            for gp in range(2):
                for h_ in range(2):
                    self.ds(f'ds_read_b64_tr_b16 {vr(HB+8*i+4*gp+2*h_,2)}, v{vB+gp} offset:{i*8192 + 1024*h_}', f'hb{i}_{gp}')
        for i in range(7):
            for gp in range(2):
                self.wait_lg(f'hb{i}_{gp}')
                e(f's_mov_b32 s{S_T1}, {(gp*28 + 4*i)*1024}')
                self.vmem(f'buffer_store_dwordx4 {vr(HB+8*i+4*gp,4)}, v{vHs}, s[{R_WS}:{R_WS+3}], s{S_T1} offen sc1', 'hd')
        self.wait_all_vm(); e('s_barrier')
        e(f's_lshr_b32 s{S_T1}, s{S_HID}, 1\ns_lshl_b32 s{S_T1}, s{S_T1}, 4\ns_and_b32 s{S_T2}, s{S_HID}, 1\ns_add_u32 s{S_T1}, s{S_T1}, s{S_T2}\ns_add_u32 s{S_T1}, s{S_T1}, 14')
        self.signal(WS_FLAG3, f's{S_T1}')
        self.stamp(2)
        self.stamps_out()
        e('s_branch L_end')

    def signal(self, base, sidx):
        e = self.e; V = self.V
        lab = self.lab('sig')
        e(f's_cmp_lg_u32 s{S_W}, 0\ns_cbranch_scc1 {lab}')
        v = V.alloc(2, 2)
        e(f's_mul_i32 s{S_T0}, {sidx}, {FLAG_STRIDE}\ns_add_u32 s{S_T0}, s{S_T0}, {base}')
        e(f'v_mov_b32 v{v}, s{S_NONCE}\nv_mov_b32 v{v+1}, s{S_T0}')
        e(f's_mov_b64 s[{S_M1}:{S_M1+1}], exec\ns_mov_b64 exec, 1')
        e(f'buffer_store_dword v{v}, v{v+1}, s[{R_WS}:{R_WS+3}], 0 offen sc1')
        e(f's_mov_b64 exec, s[{S_M1}:{S_M1+1}]')
        V.free(v, 2)
        self.label(lab)

    def rbf(self, d, s, pre=''):
        self.e(f'v_cvt_pk_bf16_f32 v{d}, v{s}, v{s}\nv_lshlrev_b32 v{d}, 16, v{d}')
    def ln_finalize(self, S, Q, dm, ds_, dt):
        e = self.e
        e(f'v_mul_f32 v{S}, {fx(1/448)}, v{S}')
        e(f'v_mul_f32 v{Q}, {fx(1/448)}, v{Q}')
        e(f'v_fma_f32 v{Q}, -v{S}, v{S}, v{Q}')
        e(f'v_max_f32 v{Q}, 0, v{Q}')
        self.rbf(dm, S)
        self.rbf(dt, Q)
        e(f'v_add_f32 v{dt}, {fx(1e-5)}, v{dt}')
        self.rbf(dt, dt)
        e(f'v_sqrt_f32 v{dt}, v{dt}')
        self.rbf(ds_, dt)

    def w1_setup(self):
        e = self.e; V = self.V
        self.vW1 = V.alloc(1); self.vTS = V.alloc(5)
        t = V.alloc(1); t2 = V.alloc(1)
        e(f'v_lshrrev_b32 v{t}, 4, v1\nv_mul_u32_u24 v{self.vW1}, 3584, v{t}\nv_lshlrev_b32 v{t}, 2, v{t}\nv_and_b32 v{t2}, 15, v1\nv_xor_b32 v{t}, v{t}, v{t2}\nv_lshl_add_u32 v{self.vW1}, v{t}, 4, v{self.vW1}')
        e(f's_lshl_b32 s{S_T0}, s{S_FB}, 8\ns_mul_i32 s{S_T1}, s{S_W}, {4*3584}\ns_add_u32 s{S_T0}, s{S_T0}, s{S_T1}\nv_add_u32 v{self.vW1}, s{S_T0}, v{self.vW1}')
        e(f's_lshl_b32 s{S_WM}, s{S_W}, 10\ns_add_u32 s{S_WM}, s{S_WM}, {L_STG}')
        a = self.vTS
        e(f'v_lshrrev_b32 v{t}, 5, v1\nv_lshlrev_b32 v{a}, 10, v{t}\nv_bfe_u32 v{t}, v1, 2, 2\nv_lshl_add_u32 v{a}, v{t}, 8, v{a}')
        e(f'v_xor_b32 v{t}, s{S_W}, v{t}\nv_lshl_add_u32 v{a}, v{t}, 6, v{a}')
        e(f'v_bfe_u32 v{t}, v1, 4, 1\nv_lshl_add_u32 v{a}, v{t}, 5, v{a}\nv_and_b32 v{t}, 3, v1\nv_lshl_add_u32 v{a}, v{t}, 3, v{a}')
        e(f'v_add_u32 v{a+1}, {L_STGX}, v{a}\nv_add_u32 v{a+2}, {L_STG + 65536}, v{a}\nv_add_u32 v{a+3}, 57344, v{a}\nv_mov_b32 v{a+4}, v{a}\nv_add_u32 v{a}, {L_STG}, v{a}')
        for q in range(4):
            e(f's_add_u32 s{S_T0}, s{S_ROT}, {q}\ns_and_b32 s{S_T0}, s{S_T0}, 3\ns_mul_i32 s{S_Q0+q}, s{S_T0}, {7*16*3584}')
        V.free(t); V.free(t2)
    @property
    def W1SLOT(self):
        if self.o.get('xg', True):
            if self.o.get('wsched', 'B') == 'B': return [0,1,2, 3,4,5,6,7,8,9, 0,1,2, 3,4,5,6,7,8,9, 10,11, 12,13,14,15,16,17]
            return [0,1,2,3,4, 5,6,7,8,9, 0,1,2,3, 4,5,6,7,8,9, 10,11, 12,13,14,15,16,17]
        return [0,1,2,3,4, 5,6,7,8,9, 0,1,2,3,4, 0,1,2,3,5,6,7,8,9, 10,11,12,13]
    def w1_slot_off(self, k):
        s = self.W1SLOT[k]
        return s * STG_SLOT if s < 9 else (L_STGX - L_STG if s == 9 else (57344 + (s - 10)*STG_SLOT - L_STG if s < 12 else (s - 12)*STG_SLOT - L_STG))
    def w1_dma(self, k, tag, slot=None):
        e = self.e; sl = self.w1_slot_off(k)
        def m0(x): return f's_add_u32 m0, s{S_WM}, {x}' if x >= 0 else f's_sub_u32 m0, s{S_WM}, {-x}'
        return [lambda: e(f's_add_u32 s{S_WO}, s{S_Q0 + k // 7}, {(k % 7)*16*3584}'),
                lambda: e(m0(sl)),
                lambda: self.vmem(f'buffer_load_dwordx4 v{self.vW1}, s[{R_WG}:{R_WG+3}], s{S_WO} offen lds', tag),
                lambda: e(m0(sl + 4096)),
                lambda: self.vmem(f'buffer_load_dwordx4 v{self.vW1}, s[{R_WU}:{R_WU+3}], s{S_WO} offen lds', tag)]
    def w1_issue(self, k0, k1, tag):
        for k in range(k0, k1):
            for f in self.w1_dma(k, tag): f()
    def w1_reads(self, k):
        s = self.W1SLOT[k]
        if s == 9: a, sl = self.vTS + 1, 0
        elif s >= 12: a, sl = self.vTS + 4, (s - 12) * STG_SLOT
        elif s >= 10: a, sl = self.vTS + 3, (s - 10) * STG_SLOT
        else: a, sl = self.vTS, s * STG_SLOT
        assert sl + 6144 < 65536 + 8192
        out = []
        for q in range(4):
            off = sl + 2048 * q
            aa = a
            if off >= 65536: aa, off = self.vTS + 2, off - 65536
            out.append(lambda q=q, aa=aa, off=off: self.ds(f'ds_read_b64_tr_b16 {ar(8*k+2*q,2)}, v{aa} offset:{off}', 'w1r'))
        return out
    def w1_read(self, k0, k1):
        for k in range(k0, k1):
            for f in self.w1_reads(k): f()

    def phaseA(self):
        e = self.e; V = self.V; o = self.o
        self.c('================= phase A')
        par = V.alloc(6); t0 = V.alloc(1); t1 = V.alloc(1)
        e(f's_lshl_b32 s{S_T1}, s{S_CP}, 10\nv_lshl_add_u32 v{t0}, v0, 2, s{S_T1}\ns_lshl_b32 s{S_T0}, s{S_CP}, 2')
        e('s_waitcnt lgkmcnt(0)')
        for i, sp in enumerate((S_ARE, S_AIM, S_BRE, S_BIM, S_CRE, S_CIM)):
            self.vmem(f'global_load_dword v{par+i}, v{t0}, s[{sp}:{sp+1}]', 'par')
        e(f's_load_dword s{S_LD}, s[{S_LDT}:{S_LDT+1}], s{S_T0}\ns_load_dword s{S_DK}, s[{S_DSK}:{S_DSK+1}], s{S_T0}')
        self.srds()
        if not o.get('hfirst', True): self.publish_nonce()
        e(f's_mov_b32 s{S_TS+6}, s{S_M0}')
        self.stamp(0)
        XG = o.get('xg', True)
        xg = V.alloc(8); xa0 = V.alloc(1); xa1 = V.alloc(1)
        e(f's_lshl_b32 s{S_T0}, s{S_CP}, 2\nv_mul_u32_u24 v{xa0}, 7168, v0\nv_add_u32 v{xa0}, s{S_T0}, v{xa0}\nv_add_u32 v{xa1}, 4480, v{xa0}')
        def xgather(k):
            if k < 5: self.vmem(f'buffer_load_dword v{xg+k}, v{xa0}, s[{R_X}:{R_X+3}], 0 offen offset:{896*k}', 'xg')
            else: self.vmem(f'buffer_load_dword v{xg+k}, v{xa1}, s[{R_X}:{R_X+3}], 0 offen offset:{896*(k-5)}', 'xg')
        self.xgather = xgather
        tch = V.alloc(6, 2); self.tch = tch
        if o.get('touch_x', False):
            e(f's_lshl_b32 s{S_T0}, s{S_J}, 6\ns_lshl_b32 s{S_T1}, s{S_W}, 4\ns_add_u32 s{S_T0}, s{S_T0}, s{S_T1}')
            e(f'v_add_u32 v{tch}, s{S_T0}, v1\nv_mul_u32_u24 v{tch+1}, 9363, v{tch}\nv_lshrrev_b32 v{tch+1}, 16, v{tch+1}')
            e(f'v_mul_u32_u24 v{tch+2}, 7, v{tch+1}\nv_sub_u32 v{tch}, v{tch}, v{tch+2}\ns_lshl_b32 s{S_T0}, s{S_XCD}, 8\nv_add_u32 v{tch+1}, s{S_T0}, v{tch+1}')
            e(f'v_mul_u32_u24 v{tch+1}, 896, v{tch+1}\nv_lshl_add_u32 v{tch+1}, v{tch}, 7, v{tch+1}')
            e(f's_mov_b64 s[{S_M1}:{S_M1+1}], exec\ns_mov_b64 exec, 0xffff')
            self.vmem(f'buffer_load_dword v{tch+3}, v{tch+1}, s[{R_X}:{R_X+3}], 0 offen', 'tx')
            e(f's_mov_b64 exec, s[{S_M1}:{S_M1+1}]')
        self.map_bc()
        if o.get('touch_w1', False):
            e(f'v_mul_u32_u24 v{t1}, 4682, v0\nv_lshrrev_b32 v{t1}, 16, v{t1}\nv_mul_u32_u24 v{tch}, 14, v{t1}\nv_sub_u32 v{tch}, v0, v{tch}')
            e(f's_lshl_b32 s{S_T0}, s{S_J}, 4\nv_add_u32 v{t1}, s{S_T0}, v{t1}\nv_mul_u32_u24 v{t1}, 3584, v{t1}\nv_lshl_add_u32 v{t1}, v{tch}, 7, v{t1}')
            e(f's_and_b32 s{S_T0}, s{S_XCD}, 1\ns_mul_i32 s{S_T0}, s{S_T0}, 1792\nv_add_u32 v{t1}, s{S_T0}, v{t1}')
            e(f'v_cmp_gt_u32 vcc, 224, v0\ns_and_saveexec_b64 s[{S_M1}:{S_M1+1}], vcc')
            la = self.lab('tw'); e(f's_cbranch_execz {la}')
            self.vmem(f'buffer_load_dword v{tch}, v{t1}, s[{R_WG}:{R_WG+3}], 0 offen', 'tw')
            self.vmem(f'buffer_load_dword v{tch+1}, v{t1}, s[{R_WU}:{R_WU+3}], 0 offen', 'tw')
            self.label(la); e(f's_mov_b64 exec, s[{S_M1}:{S_M1+1}]')
        self.w1_setup()
        TW = o.get('touch_w1', False)
        if XG:
            for k in range(o.get('xg0', 4)): xgather(k)
        elif not TW: self.w1_issue(0, o.get('w0', 2), 'wa')
        self.stamp(1)
        ga = V.alloc(12, 2)
        self.ga = ga
        e(f'v_lshlrev_b32 v{t0}, 3, v0\nv_sub_u32 v{t0}, 2048, v{t0}')
        for k in range(1, 12):
            e(f'v_subrev_u32 v{ga+k-1}, {k}, v{t0}')
        e(f'v_mov_b32 v{ga+11}, 0')
        tt = V.alloc(2, 2)
        for k in range(0, 12, 2):
            a, b = ga + k, ga + k + 1
            e(f'v_max_i32 v{tt}, 0, v{a}\nv_max_i32 v{tt+1}, 0, v{b}')
            e(f'v_cvt_f32_u32 v{tt}, v{tt}\nv_cvt_f32_u32 v{tt+1}, v{tt+1}')
            e(f'v_cvt_pk_bf16_f32 v{t1}, v{tt}, v{tt+1}')
            e(f'v_lshlrev_b32 v{tt}, 16, v{t1}\nv_and_b32 v{tt+1}, 0xffff0000, v{t1}')
            e(f'v_cvt_u32_f32 v{tt}, v{tt}\nv_cvt_u32_f32 v{tt+1}, v{tt+1}')
            for x, r in ((tt, a), (tt + 1, b)):
                e(f'v_lshrrev_b32 v{t1}, 3, v{x}\nv_add_u32 v{x}, v{x}, v{t1}')
                if k >= 8:
                    e(f'v_cmp_gt_i32 vcc, 0, v{r}\nv_mov_b32 v{t1}, 2320\nv_cndmask_b32 v{x}, v{x}, v{t1}, vcc')
                e(f'v_lshlrev_b32 v{x}, 2, v{x}\nv_add_u32 v{r}, {L_K32}, v{x}')
        V.free(tt, 2)
        e('s_waitcnt lgkmcnt(0)'); self.lg.drain()
        e(f's_lshr_b32 s{S_T0}, s{S_W}, 1\ns_lshl_b32 s{S_T0}, s{S_T0}, 4')
        e(f's_lshr_b32 s{S_LD}, s{S_LD}, s{S_T0}\ns_lshl_b32 s{S_LD}, s{S_LD}, 16')
        e(f's_lshr_b32 s{S_DK}, s{S_DK}, s{S_T0}\ns_lshl_b32 s{S_DK}, s{S_DK}, 16')
        dt = V.alloc(2, 2); tt = V.alloc(2, 2)
        L_hi = struct.unpack('<f', struct.pack('<f', LOG2E))[0]; L_lo = LOG2E - L_hi
        e(f'v_mov_b32 v{dt}, s{S_LD}\nv_mul_f32 v{tt}, {fx(L_hi)}, v{dt}')
        e(f's_mov_b32 s{S_T1}, {fx(L_hi)}')
        e(f'v_fma_f32 v{tt+1}, v{dt}, s{S_T1}, -v{tt}\nv_fmac_f32 v{tt+1}, {fx(L_lo)}, v{dt}')
        e(f'v_exp_f32 v{tt}, v{tt}\nv_mul_f32 v{tt+1}, {fx(math.log(2))}, v{tt+1}')
        e(f'v_fma_f32 v{dt}, v{tt}, v{tt+1}, v{tt}')
        self.rbf(dt, dt)
        V.free(tt, 2)
        nx0 = o.get('xg0', 4)
        if XG and o.get('xgmid', False): xgather(nx0); nx0 += 1
        ka = self.kgen_setup()
        cv = self.conv_setup()
        xo = V.alloc(1)
        e(f's_lshr_b32 s{S_T0}, s{S_CP}, 2\ns_lshl_b32 s{S_T0}, s{S_T0}, 15\ns_and_b32 s{S_T1}, s{S_CP}, 3\ns_lshl_b32 s{S_T1}, s{S_T1}, 5\ns_add_u32 s{S_T0}, s{S_T0}, s{S_T1}\ns_add_u32 s{S_T0}, s{S_T0}, {WS_XT}\nv_lshl_add_u32 v{xo}, v0, 7, s{S_T0}')
        sa = V.alloc(1); nv = V.alloc(2, 2); lp = V.alloc(2, 2)
        e(f'v_lshlrev_b32 v{sa}, 6, v0\nv_mov_b32 v{nv+1}, 0')
        e(f'v_and_b32 v{lp+1}, 31, v1\nv_lshlrev_b32 v{lp+1}, 7, v{lp+1}\ns_lshl_b32 s{S_T0}, s{S_W}, 12\ns_add_u32 s{S_T0}, s{S_T0}, {WS_STATS + 4}\nv_add_u32 v{lp+1}, s{S_T0}, v{lp+1}')
        if WS_STATS: e(f'v_add_u32 v{sa}, {WS_STATS}, v{sa}')
        xs = list(range(nx0, 8))
        if XG and xs: xgather(xs.pop(0))
        self.wait_vm('par')
        self.stamp(2)
        save_lines = self.lines; self.lines = []
        sc = V.alloc(12, 2)
        e(f'v_lshlrev_b32 v{sc+4}, 16, v{par+2}\nv_and_b32 v{sc+6}, 0xffff0000, v{par+2}')
        e(f'v_lshlrev_b32 v{sc+5}, 16, v{par+3}\nv_and_b32 v{sc+7}, 0xffff0000, v{par+3}')
        e(f'v_lshlrev_b32 v{sc+8}, 16, v{par+4}\nv_and_b32 v{sc+10}, 0xffff0000, v{par+4}')
        e(f'v_lshlrev_b32 v{sc+9}, 16, v{par+5}\nv_and_b32 v{sc+11}, 0xffff0000, v{par+5}')
        e(f'v_lshlrev_b32 v{sc}, 16, v{par}\nv_and_b32 v{sc+1}, 0xffff0000, v{par}')
        e(f'v_lshlrev_b32 v{sc+2}, 16, v{par+1}\nv_and_b32 v{sc+3}, 0xffff0000, v{par+1}')
        V.free(par, 6)
        for i in (4, 5, 6, 7, 0, 1, 2, 3): e(f'v_mul_f32 v{sc+i}, v{dt}, v{sc+i}')
        V.free(dt, 2)
        Q = lambda: V.alloc(4, 4)
        tq = Q(); pkt = V.alloc(4, 2); npk = [0]
        def qmul(d, a, b):
            self.cmul_multi([(d, a, b, None), (d + 2, a + 2, b + 2, None)])
        CB = Q()
        qmul(CB, sc + 8, sc + 4)
        mx = V.alloc(2, 2)
        e(f'v_max_f32 v{mx}, |v{CB}|, |v{CB+1}|\nv_max_f32 v{mx+1}, |v{CB+2}|, |v{CB+3}|')
        e(f'v_mul_f32 v{sc}, {fx(LOG2E)}, v{sc}\nv_mul_f32 v{sc+1}, {fx(LOG2E)}, v{sc+1}')
        e(f'v_max_f32 v{mx}, v{mx}, v{mx+1}')
        e(f'v_mul_f32 v{sc+2}, {fx(1/(2*math.pi))}, v{sc+2}\nv_mul_f32 v{sc+3}, {fx(1/(2*math.pi))}, v{sc+3}')
        for mod in ('quad_perm:[1,0,3,2]', 'quad_perm:[2,3,0,1]', 'row_half_mirror', 'row_mirror'):
            e(f'v_max_f32_dpp v{mx}, v{mx}, v{mx} {mod} row_mask:0xf bank_mask:0xf')
        for swap in ('v_permlane16_swap_b32', 'v_permlane32_swap_b32'):
            e(f'v_mov_b32 v{mx+1}, v{mx}\n{swap} v{mx}, v{mx+1}\nv_max_f32 v{mx}, v{mx}, v{mx+1}')
        e(f'v_readfirstlane_b32 s{S_T0}, v{mx}')
        e(f's_lshr_b32 s{S_T0}, s{S_T0}, 23\ns_max_u32 s{S_T0}, s{S_T0}, 14\ns_min_u32 s{S_T0}, s{S_T0}, 254')
        e(f's_sub_u32 s{S_T1}, 267, s{S_T0}\ns_lshl_b32 s{S_T1}, s{S_T1}, 23\ns_sub_u32 s{S_US}, s{S_T0}, 13\ns_lshl_b32 s{S_US}, s{S_US}, 23')
        V.free(mx, 2)
        if XG:
            if xs: xgather(xs.pop(0))
        elif not TW: self.w1_issue(o.get('w0', 2), 5, 'wa2')
        def direct(dst, ex):
            for m in range(2):
                if ex == 1:
                    e(f'v_exp_f32 v{tq+m}, v{sc+m}\nv_fract_f32 v{tq+2+m}, v{sc+2+m}')
                else:
                    e(f'v_mul_f32 v{tq+m}, {fx(float(ex))}, v{sc+m}\nv_mul_f32 v{tq+2+m}, {fx(float(ex))}, v{sc+2+m}')
            if ex != 1:
                for m in range(2): e(f'v_exp_f32 v{tq+m}, v{tq+m}\nv_fract_f32 v{tq+2+m}, v{tq+2+m}')
            for m in range(2):
                e(f'v_cos_f32 v{dst+2*m}, v{tq+2+m}\nv_sin_f32 v{dst+2*m+1}, v{tq+2+m}')
            for m in range(2):
                e(f'v_mul_f32 v{dst+2*m}, v{tq+m}, v{dst+2*m}\nv_mul_f32 v{dst+2*m+1}, v{tq+m}, v{dst+2*m+1}')
        wa = V.alloc(1)
        e(f'v_and_b32 v{wa}, 127, v0\nv_lshlrev_b32 v{wa}, 3, v{wa}\ns_lshr_b32 s{S_T0}, s{S_W}, 1\ns_mul_i32 s{S_T0}, s{S_T0}, {TBL_C}\nv_add_u32 v{wa}, s{S_T0}, v{wa}')
        def put(q, ent, conj=False):
            p = pkt + 2 * (npk[0] & 1); npk[0] += 1
            n = '-' if conj else ''
            e(f'v_cvt_pk_f16_f32 v{p}, v{q}, {n}v{q+1}\nv_cvt_pk_f16_f32 v{p+1}, v{q+2}, {n}v{q+3}')
            self.ds(f'ds_write_b64 v{wa}, {vr(p,2)} offset:{ent*TBL_E}')
        one = V.alloc(2, 2)
        e(f'v_mov_b32 v{one}, 0x3c00\nv_mov_b32 v{one+1}, 0x3c00')
        for ent in (0, 4, 12): self.ds(f'ds_write_b64 v{wa}, {vr(one,2)} offset:{ent*TBL_E}')
        V.free(one, 2)
        z1 = Q(); z2 = Q(); z3 = Q(); z4 = Q(); CS = Q()
        direct(z1, 1); put(z1, 1)
        for m in range(4): e(f'v_mul_f32 v{CS+m}, s{S_T1}, v{CB+m}')
        put(CS, 8, True)
        qmul(z2, z1, z1); put(z2, 2)
        qmul(z3, z2, z1); put(z3, 3)
        qmul(z4, z2, z2); put(z4, 5)
        qmul(z1, z4, z4); put(z1, 6)
        qmul(z2, z1, z4); put(z2, 7)
        qmul(z3, z1, z1); put(z3, 16)
        qmul(z1, z3, z3)
        qmul(z4, CS, z1); put(z4, 9, True)
        qmul(z2, z1, z1)
        qmul(z4, CS, z2); put(z4, 10, True)
        qmul(z3, z2, z1)
        qmul(z4, CS, z3); put(z4, 11, True)
        qmul(z1, z2, z2); put(z1, 13, True)
        qmul(z2, z1, z1); put(z2, 14, True)
        qmul(z3, z2, z1); put(z3, 15, True)
        qmul(z1, z2, z2); put(z1, 17, True)
        if XG and xs: xgather(xs.pop(0))
        self.xs = xs
        qmul(z2, z1, z1)
        qmul(z3, z2, z2)
        c48 = V.alloc(2, 2)
        e(f'v_mul_f32 v{c48}, v{CB}, v{z3}\nv_fma_f32 v{c48}, -v{CB+1}, v{z3+1}, v{c48}')
        e(f'v_fmac_f32 v{c48}, v{CB+2}, v{z3+2}\nv_fma_f32 v{c48}, -v{CB+3}, v{z3+3}, v{c48}')
        for q in (z1, z2, z3, z4, CB, CS, tq): V.free(q, 4)
        V.free(sc, 12); V.free(wa); V.free(pkt, 4)
        for mod in ('quad_perm:[1,0,3,2]', 'quad_perm:[2,3,0,1]', 'row_half_mirror', 'row_mirror'):
            e(f'v_add_f32_dpp v{c48}, v{c48}, v{c48} {mod} row_mask:0xf bank_mask:0xf')
        for swap in ('v_permlane16_swap_b32', 'v_permlane32_swap_b32'):
            e(f'v_mov_b32 v{c48+1}, v{c48}\n{swap} v{c48}, v{c48+1}\nv_add_f32 v{c48}, v{c48}, v{c48+1}')
        fl = self.lines; self.lines = save_lines
        self.lines.extend(resched(fl) if o.get('resched', True) else fl)
        if not TW and not XG: self.wait_vm('wa')
        self.wait_all_lg(); e('s_barrier')
        self.stamp(3)
        sg = V.alloc(16, 4); XP = V.alloc(8, 4)
        def light_loads(model=True):
            a = f'buffer_load_dword v{nv}, v{nv+1}, s[{R_DBG}:{R_DBG+3}], 0 offen sc1'
            b = f'buffer_load_dword v{lp}, v{lp+1}, s[{R_WS}:{R_WS+3}], 0 offen sc1'
            if model: self.vmem(a, 'lp'); self.vmem(b, 'lp')
            else: e(a); e(b)
        def light_wait():
            l0 = self.lab('lp'); l1 = self.lab('lpd'); l2 = self.lab('lpr')
            self.wait_vm('lp')
            e(f's_mov_b32 s{S_CNT}, 0')
            self.label(l0)
            e(f'v_readfirstlane_b32 s{S_NONCE}, v{nv}')
            e(f's_cmp_eq_u32 s{S_NONCE}, 0\ns_cbranch_scc1 {l2}')
            e(f'v_cmp_ne_u32 vcc, s{S_NONCE}, v{lp}\ns_cbranch_vccz {l1}')
            self.label(l2)
            e(f's_sleep {o.get("lsleep", 2)}')
            light_loads(False)
            e('s_waitcnt vmcnt(0)')
            e(f's_add_u32 s{S_CNT}, s{S_CNT}, 1\ns_cmp_lt_u32 s{S_CNT}, {SPIN_MAX}\ns_cbranch_scc1 {l0}')
            self.label(l1)
        def data_loads():
            for i in range(4): self.vmem(f'buffer_load_dwordx4 {vr(sg+4*i,4)}, v{sa}, s[{R_WS}:{R_WS+3}], 0 offen offset:{16*i} sc1', 'sg')
            self.vmem(f'buffer_load_dwordx4 {vr(XP,4)}, v{xo}, s[{R_WS}:{R_WS+3}], 0 offen sc1', 'sg')
            self.vmem(f'buffer_load_dwordx4 {vr(XP+4,4)}, v{xo}, s[{R_WS}:{R_WS+3}], 0 offen offset:16 sc1', 'sg')
        EARLY = o.get('early', True); WB = o.get('wsched', 'B') == 'B'
        self.light_loads = light_loads
        def full_poll():
            return [lambda: self.vmem(f'buffer_load_dword v{nv}, v{nv+1}, s[{R_DBG}:{R_DBG+3}], 0 offen sc1', 'sg')] + \
                   [lambda i=i: self.vmem(f'buffer_load_dwordx4 {vr(sg+4*i,4)}, v{sa}, s[{R_WS}:{R_WS+3}], 0 offen offset:{16*i} sc1', 'sg') for i in range(4)]
        self.full_poll = full_poll
        def after_main():
            if XG: return
            if EARLY: light_wait(); data_loads()
            else: light_loads()
            if TW: self.wait_vm('wa')
            else: self.wait_vm('wa2')
        def after_b2a():
            if XG:
                if WB: self.w1_issue(1, 3, 'wa')
                else: self.w1_issue(3, 5, 'wa')
                return
            if TW: self.w1_read(0, 5)
            else: self.w1_read(o.get('w0', 2), 5)
            self.w1_issue(8, 9, 'wb')
        self.kgen_main(ka, c48, after_main, after_b2a)
        V.free(c48, 2)
        self.wait_all_lg(); e('s_barrier')
        self.stamp(4)
        gat = self.expand_gather()
        if not XG and not EARLY: light_wait(); data_loads()
        V.free(lp, 2)
        self.stamp(7)
        if XG: self.w1_issue(*( (3, 4) if WB else (5, 6) ), 'wb')
        else: self.w1_issue(9, 10, 'wb')
        self.expand_write(gat)
        if XG: self.w1_issue(*( (4, 5) if WB else (6, 7) ), 'wb')
        else: self.w1_issue(10, 11, 'wc')
        self.stamp(5)
        if XG:
            self.wait_vm('xg')
            e(f's_mov_b32 s{S_T0}, 0x05040100\ns_mov_b32 s{S_T1}, 0x07060302')
            for d in range(4):
                e(f'v_perm_b32 v{XP+d}, v{xg+2*d+1}, v{xg+2*d}, s{S_T0}\nv_perm_b32 v{XP+4+d}, v{xg+2*d+1}, v{xg+2*d}, s{S_T1}')
            self.verify_stats(sg, sa, nv, with_nonce=True)
        else: self.verify_stats(sg, sa, nv)
        V.free(nv, 2); V.free(xo); V.free(xg, 8); V.free(xa0); V.free(xa1)
        self.region(lambda: self.normalize(XP, sg))
        V.free(sg, 16); V.free(sa); V.free(XP, 8)
        if XG: self.wait_vm('wa')
        self.wait_all_lg(); e('s_barrier')
        self.stamp(6)
        if XG: self.w1_read(0, 3 if WB else 5)
        if o.get('touch_wd2', False):
            ta = V.alloc(2)
            for q in range(2):
                e(f'v_add_u32 v{ta}, {224*q}, v0\nv_mul_u32_u24 v{ta+1}, 9363, v{ta}\nv_lshrrev_b32 v{ta+1}, 16, v{ta+1}\nv_mul_u32_u24 v{tch+q}, 7, v{ta+1}\nv_sub_u32 v{ta}, v{ta}, v{tch+q}')
                e(f's_lshl_b32 s{S_T0}, s{S_J}, 6\nv_add_u32 v{ta+1}, s{S_T0}, v{ta+1}\nv_mul_u32_u24 v{ta+1}, 896, v{ta+1}\nv_lshl_add_u32 v{ta+1}, v{ta}, 7, v{ta+1}')
                e(f'v_cmp_gt_u32 vcc, 224, v0\ns_and_saveexec_b64 s[{S_M1}:{S_M1+1}], vcc')
                la = self.lab('td'); e(f's_cbranch_execz {la}')
                e(f'buffer_load_dword v{tch+2+q}, v{ta+1}, s[{R_WD}:{R_WD+3}], 0 offen')
                self.label(la); e(f's_mov_b64 exec, s[{S_M1}:{S_M1+1}]')
            V.free(ta, 2)
        fill = []
        for k in ((range(5, 10) if WB else range(7, 10)) if XG else range(11, 14)): fill += self.w1_dma(k, 'wc')
        self.conv(cv, fill)
        V.free(t0); V.free(t1)
        self.stamp(8)
        self.wait_vm('ht'); self.wait_all_lg(); e('s_barrier')
        self.signal(WS_FLAG2, 's2')
        self.stamp(9)
        V.free(tch, 6)
        HCS = o.get('hcs', True)
        self.cs = V.alloc(32, 4); self.ones = V.alloc(4, 4)
        for i in range(4): e(f'v_mov_b32 v{self.ones+i}, 0x3f803f80')
        _, setup = self.capture(self.phaseB_setup)
        self.K0 = 10 if XG else 14
        dma = [f for k in range((13 if WB else 14) if XG else 15, 28) for f in self.w1_dma(k, 'we')]
        mains = []
        if not HCS:
            for k in range(self.K0):
                for u in range(2):
                    c = '0' if k == 0 else vr(self.cs + 16*u, 16)
                    mains.append(([], lambda k=k, u=u, c=c: e(f'v_mfma_f32_32x32x16_bf16 {vr(self.cs+16*u,16)}, {vr(self.ones,4)}, {ar(8*k+4*u,4)}, {c}'), 32, []))
        merged = []
        while dma or setup:
            for _ in range(2):
                if dma: merged.append(dma.pop(0))
            for _ in range(5):
                if setup: merged.append(setup.pop(0))
        if mains: self.sched(mains, [(x, 1) for x in merged])
        else:
            for x in merged: x()
        self.stamp(12)

    def cs_mfma(self, k0, k1):
        for k in range(k0, k1):
            for u in range(2):
                c = '0' if k == 0 else vr(self.cs + 16*u, 16)
                self.e(f'v_mfma_f32_32x32x16_bf16 {vr(self.cs+16*u,16)}, {vr(self.ones,4)}, {ar(8*k+4*u,4)}, {c}')

    def verify_stats(self, sg, sa, nv, with_nonce=False):
        e = self.e; V = self.V
        l0 = self.lab('sp'); l1 = self.lab('spd')
        t = V.alloc(2)
        self.wait_vm('sg')
        e(f's_mov_b32 s{S_CNT}, 0')
        self.label(l0)
        l2 = self.lab('spr')
        if with_nonce:
            e(f'v_readfirstlane_b32 s{S_NONCE}, v{nv}')
            e(f's_cmp_eq_u32 s{S_NONCE}, 0\ns_cbranch_scc1 {l2}')
        e(f'v_min3_u32 v{t}, v{sg+1}, v{sg+3}, v{sg+5}\nv_max3_u32 v{t+1}, v{sg+1}, v{sg+3}, v{sg+5}')
        e(f'v_min3_u32 v{t}, v{t}, v{sg+7}, v{sg+9}\nv_max3_u32 v{t+1}, v{t+1}, v{sg+7}, v{sg+9}')
        e(f'v_min3_u32 v{t}, v{t}, v{sg+11}, v{sg+13}\nv_max3_u32 v{t+1}, v{t+1}, v{sg+11}, v{sg+13}')
        e(f'v_min_u32 v{t}, v{t}, v{sg+15}\nv_max_u32 v{t+1}, v{t+1}, v{sg+15}')
        e(f'v_xor_b32 v{t}, s{S_NONCE}, v{t}\nv_xor_b32 v{t+1}, s{S_NONCE}, v{t+1}\nv_or_b32 v{t}, v{t}, v{t+1}\nv_cmp_ne_u32 vcc, 0, v{t}')
        e(f's_cbranch_vccz {l1}')
        self.label(l2)
        if with_nonce: e(f's_sleep 2\nbuffer_load_dword v{nv}, v{nv+1}, s[{R_DBG}:{R_DBG+3}], 0 offen sc1')
        for i in range(4): e(f'buffer_load_dwordx4 {vr(sg+4*i,4)}, v{sa}, s[{R_WS}:{R_WS+3}], 0 offen offset:{16*i} sc1')
        e('s_waitcnt vmcnt(0)')
        e(f's_add_u32 s{S_CNT}, s{S_CNT}, 1\ns_cmp_lt_u32 s{S_CNT}, {SPIN_MAX}\ns_cbranch_scc1 {l0}')
        self.label(l1)
        V.free(t, 2)

    def map_bc(self):
        e = self.e
        if self.o.get('mapB', '47') == 'rows':
            e(f's_cmp_ge_u32 s{S_J}, 14\ns_cselect_b32 s{S_T0}, 1, 0\ns_lshl_b32 s{S_RB}, s{S_XCD}, 1\ns_add_u32 s{S_RB}, s{S_RB}, s{S_T0}')
            e(f's_mul_i32 s{S_T0}, s{S_T0}, 14\ns_sub_u32 s{S_FB}, s{S_J}, s{S_T0}')
        else:
            e(f's_mul_i32 s{S_T0}, s{S_J}, 37\ns_lshr_b32 s{S_T0}, s{S_T0}, 8')
            e(f's_lshr_b32 s{S_RB}, s{S_XCD}, 1\ns_lshl_b32 s{S_RB}, s{S_RB}, 2\ns_add_u32 s{S_RB}, s{S_RB}, s{S_T0}')
            e(f's_mul_i32 s{S_T0}, s{S_T0}, 7\ns_sub_u32 s{S_FB}, s{S_J}, s{S_T0}\ns_and_b32 s{S_T0}, s{S_XCD}, 1\ns_mul_i32 s{S_T0}, s{S_T0}, 7\ns_add_u32 s{S_FB}, s{S_FB}, s{S_T0}')
        if self.o.get('rot', True): e(f's_and_b32 s{S_ROT}, s{S_RB}, 3')
        else: e(f's_mov_b32 s{S_ROT}, 0')
        e(f's_mul_i32 s{S_T0}, s{S_J}, 37\ns_lshr_b32 s{S_T0}, s{S_T0}, 8')
        e(f's_lshl_b32 s{S_RB2}, s{S_XCD}, 2\ns_add_u32 s{S_RB2}, s{S_RB2}, s{S_T0}\ns_mul_i32 s{S_T0}, s{S_T0}, 7\ns_sub_u32 s{S_DB}, s{S_J}, s{S_T0}')

    def kgen_setup(self):
        e = self.e; V = self.V
        aLo = V.alloc(1); aHi = V.alloc(1); aC = V.alloc(1); t = V.alloc(1)
        aEx = V.alloc(2); aS = V.alloc(2); aK = V.alloc(2)
        e(f's_lshr_b32 s{S_T0}, s{S_W}, 1\ns_mul_i32 s{S_T0}, s{S_T0}, {TBL_C}\ns_and_b32 s{S_T1}, s{S_W}, 1\ns_lshl_b32 s{S_T1}, s{S_T1}, 9\ns_add_u32 s{S_T0}, s{S_T0}, s{S_T1}')
        e(f'v_lshrrev_b32 v{t}, 4, v1\nv_lshlrev_b32 v{aC}, 4, v{t}\nv_add_u32 v{aC}, s{S_T0}, v{aC}')
        e(f'v_and_b32 v{t}, 3, v1\nv_mul_u32_u24 v{t}, {TBL_E}, v{t}\nv_add_u32 v{aLo}, v{aC}, v{t}')
        e(f'v_bfe_u32 v{t}, v1, 2, 2\nv_mul_u32_u24 v{t}, {TBL_E}, v{t}\nv_add_u32 v{aHi}, v{aC}, v{t}')
        e(f's_lshl_b32 s{S_T0}, s{S_W}, 12\ns_add_u32 s{S_T0}, s{S_T0}, {L_EX}\nv_lshl_add_u32 v{aEx}, v1, 4, s{S_T0}')
        e(f's_xor_b32 s{S_T1}, s{S_W}, 1\ns_lshl_b32 s{S_T0}, s{S_T1}, 12\ns_add_u32 s{S_T0}, s{S_T0}, {L_EX}\nv_lshl_add_u32 v{aEx+1}, v1, 4, s{S_T0}')
        e(f's_lshl_b32 s{S_T0}, s{S_W}, 2\ns_add_u32 s{S_T0}, s{S_T0}, {L_EX + 16384}\nv_mov_b32 v{aS}, s{S_T0}')
        e(f's_lshl_b32 s{S_T0}, s{S_T1}, 2\ns_add_u32 s{S_T0}, s{S_T0}, {L_EX + 16384}\nv_mov_b32 v{aS+1}, s{S_T0}')
        e(f'v_and_b32 v{aK}, 15, v1\nv_lshrrev_b32 v{t}, 3, v{aK}\nv_add_u32 v{aK}, v{aK}, v{t}')
        e(f'v_lshrrev_b32 v{t}, 4, v1\nv_mul_u32_u24 v{t}, 144, v{t}\nv_add_u32 v{aK}, v{aK}, v{t}\nv_lshlrev_b32 v{aK}, 2, v{aK}')
        e(f's_lshr_b32 s{S_T0}, s{S_W}, 1\ns_mul_i32 s{S_T0}, s{S_T0}, {K32_C}\ns_add_u32 s{S_T0}, s{S_T0}, {L_K32}\nv_mov_b32 v{aK+1}, s{S_T0}')
        e(f's_and_b32 s{S_T1}, s{S_W}, 1\ns_mul_i32 s{S_T1}, s{S_T1}, {4*576*2}\ns_add_u32 s{S_T1}, s{S_T1}, s{S_T0}\nv_add_u32 v{aK}, s{S_T1}, v{aK}')
        V.free(t)
        return (aLo, aHi, aC, aEx, aS, aK)

    def kgen_main(self, ka, c48, after_main, after_b2a):
        e = self.e; V = self.V
        self.c('---- kgen main (f16 operands)')
        aLo, aHi, aC, aEx, aS, aK = ka
        TB = [[V.alloc(4, 4) for _ in range(6)] for _ in range(2)]
        tmp = V.alloc(4, 4)
        PV = [[V.alloc(4, 4) for _ in range(2)] for _ in range(2)]
        PW = [V.alloc(4, 4) for _ in range(4)]
        D = [[V.alloc(4, 4) for s in range(2)] for t_ in range(4)]
        ents = ((aLo, 0), (aHi, 4), (aC, 16), (aLo, 8), (aHi, 12), (aC, 17))
        def rd(st, i):
            ad, ent = ents[i]
            self.ds(f'ds_read_b128 {vr(TB[st&1][i],4)}, v{ad} offset:{ent*TBL_E + st*64}', f'tb{st}')
        def cm(d, a, b):
            L = [f'v_pk_mul_f16 v{tmp+c}, v{a+c}, v{b+c} op_sel:[0,0] op_sel_hi:[0,1]' for c in range(4)]
            L += [f'v_pk_fma_f16 v{d+c}, v{a+c}, v{b+c}, v{tmp+c} op_sel:[1,1,0] op_sel_hi:[1,0,1] neg_lo:[0,1,0]' for c in range(4)]
            return L
        for i in range(6): rd(0, i)
        pend = []
        for st in range(8):
            T1, T2, Z16, T3, T4, Z512 = TB[st & 1]; pv = PV[st & 1]
            extra = []
            if st + 1 < 8: extra += [lambda i=i, st=st: rd(st + 1, i) for i in range(6)]
            if self.o.get('xg', True):
                if st in (1, 3, 4, 5) and self.xs: extra += [lambda k=self.xs.pop(0): self.xgather(k)]
                if st == self.o.get('pollstep', 6): extra += self.full_poll()
                wst = self.o.get('wst', [7] if self.o.get('wsched', 'B') == 'B' else [4, 6, 7])
                if st in wst: extra += self.w1_dma(wst.index(st), 'wa')
            else:
                if st == self.o.get('pollstep', 5) and self.o.get('early', True): extra += [lambda: self.light_loads()]
                if not self.o.get('touch_w1', False):
                    if st < self.o.get('w0', 2): extra += self.w1_reads(st)
                    ks = self.o.get('kdma', [0, 1, 2])
                    if st in ks: extra += self.w1_dma(5 + ks.index(st), 'wb')
                else:
                    extra += self.w1_dma(st, 'wa' if st < 5 else 'wb')
            self.wait_lg(f'tb{st}')
            blocks = [cm(pv[0], T1, T2), cm(pv[1], pv[0], Z16), cm(PW[0], T3, T4)]
            for tt in range(1, 4): blocks.append(cm(PW[tt], PW[tt-1], Z512))
            def popm():
                if pend:
                    pend.pop(0)()
                    for _ in range(2):
                        if extra: extra.pop(0)()
            for bi, ins in enumerate(blocks):
                for q, l in enumerate(ins):
                    e(l)
                    if q in (1, 5): popm()
                if bi >= 2:
                    tt = bi - 2
                    for s in range(2):
                        cin = '0' if st == 0 else vr(D[tt][s], 4)
                        pend.append(lambda tt=tt, s=s, cin=cin, pv=pv: e(f'v_mfma_f32_16x16x32_f16 {vr(D[tt][s],4)}, {vr(PW[tt],4)}, {vr(pv[s],4)}, {cin}'))
            while len(pend) > 2: popm()
            for x in extra: x()
        while pend: pend.pop(0)()
        self.stamp(13)
        after_main()
        us = V.alloc(2, 2)
        e(f'v_mov_b32 v{us}, s{S_US}')
        R4 = TB[0][:4]; Va = tmp
        def exch(half):
            snd = [(t_, s) for t_ in (2 - 2*half, 3 - 2*half) for s in range(2)]
            kp = [(t_, s) for t_ in (2*half, 2*half + 1) for s in range(2)]
            for i, (t_, s) in enumerate(snd):
                for r in (0, 2): e(f'v_pk_mul_f32 {vr(D[t_][s]+r,2)}, {vr(D[t_][s]+r,2)}, {vr(us,2)} op_sel_hi:[1,0]')
                self.ds(f'ds_write_b128 v{aEx}, {vr(D[t_][s],4)} offset:{1024*i}', 'exw')
            e(f's_mov_b64 s[{S_M1}:{S_M1+1}], exec\ns_mov_b64 exec, 1')
            self.ds(f'ds_write_b32 v{aS}, v{c48}', 'exw')
            e(f's_mov_b64 exec, s[{S_M1}:{S_M1+1}]')
            self.wait_all_lg()
            e('s_barrier')
            for i in range(4): self.ds(f'ds_read_b128 {vr(R4[i],4)}, v{aEx+1} offset:{1024*i}', f'ex{i}')
            self.ds(f'ds_read_b32 v{Va}, v{aS+1}', 'exc')
            for i, (t_, s) in enumerate(kp):
                self.wait_lg(f'ex{i}')
                for r in (0, 2): e(f'v_pk_fma_f32 {vr(D[t_][s]+r,2)}, {vr(D[t_][s]+r,2)}, {vr(us,2)}, {vr(R4[i]+r,2)} op_sel_hi:[1,0,1]')
                for r in range(4):
                    self.ds(f'ds_write_b32 v{aK}, v{D[t_][s]+r} offset:{4*(576*(i >> 1) + 36*r + 18*s)}')
            self.wait_lg('exc')
            e(f'v_add_f32 v{c48}, v{c48}, v{Va}\nv_mov_b32 v{c48+1}, 0')
            e(f's_mov_b64 s[{S_M1}:{S_M1+1}], exec\ns_mov_b64 exec, 1')
            self.ds(f'ds_write_b32 v{aK+1}, v{c48} offset:9216')
            self.ds(f'ds_write_b32 v{aK+1}, v{c48+1} offset:9280')
            e(f's_mov_b64 exec, s[{S_M1}:{S_M1+1}]')
        self.two_paths(exch)
        after_b2a()
        V.free(us, 2)
        for row in TB + PV:
            for x in row: V.free(x, 4)
        for x in PW: V.free(x, 4)
        V.free(tmp, 4)
        for row in D:
            for x in row: V.free(x, 4)
        for x in (aLo, aHi, aC): V.free(x)
        V.free(aEx, 2); V.free(aS, 2); V.free(aK, 2)

    def expand_gather(self):
        e = self.e; V = self.V; ga = self.ga
        self.c('---- expand K into 4 shifted bf16 copies')
        z = V.alloc(4, 4); t = V.alloc(1); t2 = V.alloc(1)
        g = V.alloc(22, 2)
        for i in range(4): e(f'v_mov_b32 v{z+i}, 0')
        e(f'v_lshrrev_b32 v{t}, 2, v0\nv_mul_u32_u24 v{t}, {KC_S}, v{t}\nv_and_b32 v{t2}, 3, v0\nv_lshl_add_u32 v{t}, v{t2}, 4, v{t}')
        e(f'v_cmp_gt_u32 vcc, 32, v0\ns_and_saveexec_b64 s[{S_M1}:{S_M1+1}], vcc')
        la = self.lab('zc'); e(f's_cbranch_execz {la}')
        e(f'ds_write_b128 v{t}, {vr(z,4)} offset:{L_KC + 4096}')
        self.label(la); e(f's_mov_b64 exec, s[{S_M1}:{S_M1+1}]')
        e(f'v_lshrrev_b32 v{t}, 6, v0\nv_mul_u32_u24 v{t}, {U_C}, v{t}\nv_lshl_add_u32 v{t}, v1, 4, v{t}')
        e(f'v_cmp_gt_u32 vcc, 128, v0\ns_and_saveexec_b64 s[{S_M1}:{S_M1+1}], vcc')
        la = self.lab('zu'); e(f's_cbranch_execz {la}')
        e(f'ds_write_b128 v{t}, {vr(z,4)} offset:{L_U}')
        self.label(la); e(f's_mov_b64 exec, s[{S_M1}:{S_M1+1}]')
        for k in range(11): self.ds(f'ds_read_b32 v{g+k}, v{ga+k} offset:0', 'g0')
        for k in range(11): self.ds(f'ds_read_b32 v{g+11+k}, v{ga+k} offset:{K32_C}', 'g1')
        V.free(t); V.free(t2); V.free(z, 4)
        return g
    def expand_write(self, g):
        e = self.e; V = self.V; ga = self.ga
        P = V.alloc(32, 4); wa = V.alloc(1)
        e(f'v_lshlrev_b32 v{wa}, 4, v0')
        for c in range(2):
            self.wait_lg(f'g{c}')
            v = lambda k: g + 11 * c + (k - 1)
            for sc_ in range(4):
                s = 4 - sc_
                for dd in range(4):
                    e(f'v_cvt_pk_bf16_f32 v{P+16*c+4*sc_+dd}, v{v(s+2*dd)}, v{v(s+2*dd+1)}')
                self.ds(f'ds_write_b128 v{wa}, {vr(P+16*c+4*sc_,4)} offset:{L_KC + c*KC_C + sc_*KC_S}')
        V.free(g, 22); V.free(P, 32); V.free(wa); V.free(ga, 12)

    def normalize(self, XP, sg):
        e = self.e; V = self.V
        self.c('---- LN1 normalize own columns')
        xa = V.alloc(16, 2)
        ms = V.alloc(16, 2)
        for k in range(8):
            e(f'v_lshlrev_b32 v{ms+k}, 16, v{sg+2*k}\nv_and_b32 v{ms+8+k}, 0xffff0000, v{sg+2*k}')
        for k in range(8): e(f'v_rcp_f32 v{ms+8+k}, v{ms+8+k}')
        wa = V.alloc(1); t = V.alloc(1)
        e(f'v_bfe_u32 v{t}, v0, 4, 1\nv_lshlrev_b32 v{t}, 1, v{t}\nv_xor_b32 v{wa}, v0, v{t}\nv_lshlrev_b32 v{wa}, 4, v{wa}')
        for c in range(2): self.ds(f'ds_write_b128 v{wa}, {vr(XP+4*c,4)} offset:{L_X + c*X_C}')
        for c in range(2):
            for d in range(4):
                e(f'v_lshlrev_b32 v{xa+8*c+2*d}, 16, v{XP+4*c+d}\nv_and_b32 v{xa+8*c+2*d+1}, 0xffff0000, v{XP+4*c+d}')
        UP = V.alloc(8, 4)
        for c in range(2):
            for d in range(4):
                x = xa + 8*c + 2*d
                e(f'v_pk_add_f32 {vr(x,2)}, {vr(x,2)}, {vr(ms+2*d,2)} neg_lo:[0,1] neg_hi:[0,1]')
            for d in range(4):
                x = xa + 8*c + 2*d
                e(f'v_cvt_pk_bf16_f32 v{x+1}, v{x}, v{x+1}')
            for d in range(4):
                x = xa + 8*c + 2*d
                e(f'v_lshlrev_b32 v{x}, 16, v{x+1}\nv_and_b32 v{x+1}, 0xffff0000, v{x+1}')
            for d in range(4):
                x = xa + 8*c + 2*d
                e(f'v_pk_mul_f32 {vr(x,2)}, {vr(x,2)}, {vr(ms+8+2*d,2)}')
            for d in range(4):
                x = xa + 8*c + 2*d
                e(f'v_cvt_pk_bf16_f32 v{UP+4*c+d}, v{x}, v{x+1}')
            self.ds(f'ds_write_b128 v{wa}, {vr(UP+4*c,4)} offset:{L_U + c*U_C + 1024}')
        V.free(ms, 16); V.free(xa, 16); V.free(UP, 8); V.free(wa); V.free(t)

    def conv_setup(self):
        e = self.e; V = self.V
        vF = V.alloc(1); vG = V.alloc(8); t = V.alloc(1); t2 = V.alloc(1)
        e(f's_lshr_b32 s{S_T0}, s{S_W}, 1\ns_mul_i32 s{S_T0}, s{S_T0}, {KC_C}\ns_and_b32 s{S_T1}, s{S_W}, 1\ns_lshl_b32 s{S_T2}, s{S_T1}, 9\ns_sub_u32 s{S_T0}, s{S_T0}, s{S_T2}\ns_add_u32 s{S_T0}, s{S_T0}, {L_KC + 24 + 512}')
        e(f'v_and_b32 v{t}, 3, v1\nv_mul_u32_u24 v{vF}, {KC_S}, v{t}')
        e(f'v_bfe_u32 v{t}, v1, 2, 2\nv_lshlrev_b32 v{t}, 3, v{t}\nv_sub_u32 v{vF}, v{vF}, v{t}')
        e(f'v_lshrrev_b32 v{t}, 4, v1\nv_lshl_add_u32 v{vF}, v{t}, 4, v{vF}\nv_add_u32 v{vF}, s{S_T0}, v{vF}')
        e(f's_lshr_b32 s{S_T0}, s{S_W}, 1\ns_mul_i32 s{S_T0}, s{S_T0}, {U_C}\ns_add_u32 s{S_T0}, s{S_T0}, {L_U}')
        e(f's_lshl_b32 s{S_T1}, s{S_T1}, 3')
        kg = V.alloc(1); col = V.alloc(1)
        e(f'v_lshrrev_b32 v{kg}, 4, v1\nv_and_b32 v{col}, 15, v1\nv_subrev_u32 v{col}, s{S_T1}, v{col}')
        for pp in range(8):
            e(f'v_add_u32 v{t}, {16 - pp}, v{col}')
            e(f'v_bfe_u32 v{t2}, v{t}, 2, 1\nv_lshlrev_b32 v{t2}, 1, v{t2}\nv_xor_b32 v{t2}, v{t2}, v{kg}')
            e(f'v_lshlrev_b32 v{t}, 6, v{t}\nv_lshl_add_u32 v{t}, v{t2}, 4, v{t}\nv_add_u32 v{vG+pp}, s{S_T0}, v{t}')
        V.free(kg); V.free(col)
        ua = V.alloc(1); xa_ = V.alloc(1); ra = V.alloc(2); sa = V.alloc(1)
        e(f'v_bfe_u32 v{t}, v1, 2, 1\nv_lshlrev_b32 v{t}, 1, v{t}\nv_lshrrev_b32 v{t2}, 4, v1\nv_xor_b32 v{t}, v{t}, v{t2}')
        e(f'v_and_b32 v{t2}, 15, v1\nv_lshlrev_b32 v{t2}, 6, v{t2}\nv_lshl_add_u32 v{ua}, v{t}, 4, v{t2}')
        e(f's_and_b32 s{S_T1}, s{S_W}, 1\ns_lshl_b32 s{S_T1}, s{S_T1}, 11')
        e(f's_lshr_b32 s{S_T0}, s{S_W}, 1\ns_mul_i32 s{S_T2}, s{S_T0}, {U_C}\ns_add_u32 s{S_T2}, s{S_T2}, s{S_T1}')
        e(f's_mul_i32 s{S_T3}, s{S_T0}, {X_C}\ns_add_u32 s{S_T3}, s{S_T3}, s{S_T1}')
        e(f'v_add_u32 v{xa_}, s{S_T3}, v{ua}\nv_add_u32 v{ua}, s{S_T2}, v{ua}')
        e(f'v_lshrrev_b32 v{t}, 4, v1\nv_lshl_add_u32 v{sa}, v{t}, 4, v{t2}')
        e(f's_lshl_b32 s{S_T2}, s{S_CP}, 1\ns_add_u32 s{S_T2}, s{S_T2}, s{S_T0}\ns_mul_i32 s{S_T2}, s{S_T2}, {HT_STRIDE}\ns_add_u32 s{S_T2}, s{S_T2}, s{S_T1}\ns_add_u32 s{S_T2}, s{S_T2}, {WS_HT}')
        e(f'v_add_u32 v{sa}, s{S_T2}, v{sa}')
        e(f's_lshl_b32 s{S_T0}, s{S_W}, 12\ns_add_u32 s{S_T0}, s{S_T0}, {L_RED}\nv_lshl_add_u32 v{ra}, v1, 4, s{S_T0}')
        e(f's_xor_b32 s{S_T0}, s{S_W}, 1\ns_lshl_b32 s{S_T0}, s{S_T0}, 12\ns_add_u32 s{S_T0}, s{S_T0}, {L_RED}\nv_lshl_add_u32 v{ra+1}, v1, 4, s{S_T0}')
        V.free(t); V.free(t2)
        return (vF, vG, ua, xa_, ra, sa)

    def conv(self, cv, fill):
        e = self.e; V = self.V
        vF, vG, ua, xa_, ra, sa = cv
        self.c('---- Toeplitz convolution')
        G = [V.alloc(16, 4) for _ in range(2)]
        F = V.alloc(32, 4)
        acc = V.alloc(32, 4)
        A = lambda b, m: acc + 8 * b + 4 * m
        def rdG(pp):
            for s in range(4): self.ds(f'ds_read_b128 {vr(G[pp&1]+4*s,4)}, v{vG+pp} offset:{1024*s}', f'G{pp}')
        def rdF(pp, q):
            for m in range(2):
                off = 32 * (111 - 32*q - 2*pp - m)
                self.ds(f'ds_read_b64 {vr(F+8*q+4*m,2)}, v{vF} offset:{off}', f'F{pp}_{q}')
                self.ds(f'ds_read_b64 {vr(F+8*q+4*m+2,2)}, v{vF} offset:{off+8}', f'F{pp}_{q}')
        rdG(0)
        for q in range(4): rdF(0, q)
        def rdG1(pp, s): self.ds(f'ds_read_b128 {vr(G[pp&1]+4*s,4)}, v{vG+pp} offset:{1024*s}', f'G{pp}')
        def rdF1(pp, q, m, h_):
            off = 32 * (111 - 32*q - 2*pp - m) + 8 * h_
            self.ds(f'ds_read_b64 {vr(F+8*q+4*m+2*h_,2)}, v{vF} offset:{off}', f'F{pp}_{q}')
        mains = []
        pend = []
        for pp in range(8):
            for q in range(4):
                first = True
                for m in range(2):
                    for s in range(4 - q):
                        b = q + s
                        cin = '0' if (pp == 0 and q == 0) else vr(A(b, m), 4)
                        pre = []
                        if first:
                            if q == 0: pre.append(lambda pp=pp: (self.wait_lg(f'G{pp}'), self.wait_lg(f'F{pp}_0')))
                            else: pre.append(lambda pp=pp, q=q: self.wait_lg(f'F{pp}_{q}'))
                            first = False
                        mf = lambda b=b, m=m, q=q, s=s, pp=pp, cin=cin: e(f'v_mfma_f32_16x16x32_bf16 {vr(A(b,m),4)}, {vr(F+8*q+4*m,4)}, {vr(G[pp&1]+4*s,4)}, {cin}')
                        post = [pend.pop(0)] if pend else []
                        mains.append((pre, mf, 16, post))
                    if pp + 1 < 8:
                        pend += [lambda pp=pp, q=q, m=m, h_=h_: rdF1(pp + 1, q, m, h_) for h_ in range(2)]
                if q == 0 and pp + 1 < 8:
                    pend += [lambda pp=pp, s=s: rdG1(pp + 1, s) for s in range(4)]
        assert not pend
        self.sched(mains, None, segs=[(0, self.o.get('cfill', 110), fill)])
        for x in G: V.free(x, 16)
        V.free(F, 32); V.free(vG, 8)
        self.stamp(10)
        UU = V.alloc(8, 4); XX = V.alloc(8, 4); t1f = V.alloc(16, 2); xf = V.alloc(16, 2); rr = V.alloc(16, 4)
        Y = V.alloc(8, 4); w8 = V.alloc(16, 2); dk = V.alloc(2, 2)
        for bb in range(2):
            self.ds(f'ds_read_b128 {vr(UU+4*bb,4)}, v{ua} offset:{L_U + 1024 + 1024*bb}', 'ux')
            self.ds(f'ds_read_b128 {vr(XX+4*bb,4)}, v{xa_} offset:{L_X + 1024*bb}', 'ux')
        e(f'v_mov_b32 v{dk}, s{S_DK}')
        def epi(half):
            snd = acc + 16 * (1 - half); keep = acc + 16 * half
            for i in range(4): self.ds(f'ds_write_b128 v{ra}, {vr(snd+4*i,4)} offset:{1024*i}', 'rw')
            self.wait_lg('ux')
            for q in range(8): e(f'v_lshlrev_b32 v{t1f+2*q}, 16, v{UU+q}\nv_and_b32 v{t1f+2*q+1}, 0xffff0000, v{UU+q}')
            for q in range(8): e(f'v_pk_mul_f32 {vr(t1f+2*q,2)}, {vr(t1f+2*q,2)}, {vr(dk,2)} op_sel_hi:[1,0]')
            for q in range(8): e(f'v_cvt_pk_bf16_f32 v{UU+q}, v{t1f+2*q}, v{t1f+2*q+1}')
            for q in range(8): e(f'v_lshlrev_b32 v{xf+2*q}, 16, v{XX+q}\nv_and_b32 v{xf+2*q+1}, 0xffff0000, v{XX+q}')
            for q in range(8): e(f'v_lshlrev_b32 v{t1f+2*q}, 16, v{UU+q}\nv_and_b32 v{t1f+2*q+1}, 0xffff0000, v{UU+q}')
            self.wait_vm('wc')
            self.wait_all_lg()
            e('s_barrier')
            for i in range(4): self.ds(f'ds_read_b128 {vr(rr+4*i,4)}, v{ra+1} offset:{1024*i}', 'red')
            self.wait_lg('red')
            for i in range(0, 16, 2): e(f'v_pk_add_f32 {vr(keep+i,2)}, {vr(keep+i,2)}, {vr(rr+i,2)}')
            for bb in range(2):
                k0 = keep + 8 * bb; y = Y + 4 * bb
                e(f'v_cvt_pk_bf16_f32 v{y}, v{k0}, v{k0+1}\nv_cvt_pk_bf16_f32 v{y+1}, v{k0+2}, v{k0+3}')
                e(f'v_cvt_pk_bf16_f32 v{y+2}, v{k0+4}, v{k0+5}\nv_cvt_pk_bf16_f32 v{y+3}, v{k0+6}, v{k0+7}')
            for bb in range(2):
                y = Y + 4 * bb
                e(f'v_permlane32_swap_b32 v{y}, v{y+2}\nv_permlane32_swap_b32 v{y+1}, v{y+3}')
            for bb in range(2):
                y = Y + 4 * bb
                e(f'v_permlane16_swap_b32 v{y}, v{y+2}\nv_permlane16_swap_b32 v{y+1}, v{y+3}')
            for q in range(8): e(f'v_lshlrev_b32 v{w8+2*q}, 16, v{Y+q}\nv_and_b32 v{w8+2*q+1}, 0xffff0000, v{Y+q}')
            for q in range(8): e(f'v_pk_add_f32 {vr(w8+2*q,2)}, {vr(w8+2*q,2)}, {vr(t1f+2*q,2)}')
            for q in range(8): e(f'v_cvt_pk_bf16_f32 v{Y+q}, v{w8+2*q}, v{w8+2*q+1}')
            for q in range(8): e(f'v_lshlrev_b32 v{w8+2*q}, 16, v{Y+q}\nv_and_b32 v{w8+2*q+1}, 0xffff0000, v{Y+q}')
            for q in range(8): e(f'v_pk_add_f32 {vr(w8+2*q,2)}, {vr(w8+2*q,2)}, {vr(xf+2*q,2)}')
            for bb in range(2):
                for d in range(4): e(f'v_cvt_pk_bf16_f32 v{Y+4*bb+d}, v{w8+8*bb+2*d}, v{w8+8*bb+2*d+1}')
                self.vmem(f'buffer_store_dwordx4 {vr(Y+4*bb,4)}, v{sa}, s[{R_WS}:{R_WS+3}], 0 offen offset:{1024*bb} sc1', 'ht')
        self.two_paths(epi)
        if self.o.get('xg', True):
            WB = self.o.get('wsched', 'B') == 'B'
            self.w1_read(3 if WB else 5, 10)
            self.w1_issue(10, 13 if WB else 14, 'we')
        else:
            self.w1_read(5, 14)
            self.w1_issue(14, 15, 'we')
        for x, n in ((UU,8),(XX,8),(t1f,16),(xf,16),(rr,16),(Y,8),(w8,16),(dk,2),(sa,1),(ua,1),(xa_,1),(ra,2),(acc,32),(vF,1)): V.free(x, n)

    def interleave(self, main, fill, per_gap):
        n = len(main); fi = 0
        for i, m in enumerate(main):
            m()
            tgt = (len(fill) * (i + 1) + n - 1) // n if per_gap is None else min(len(fill), fi + per_gap)
            while fi < tgt:
                fill[fi](); fi += 1
        while fi < len(fill):
            fill[fi](); fi += 1

    def sched(self, mains, fillers, tail_free=0, segs=None):
        def cost(x): return x[1] if isinstance(x, tuple) else 1
        def run(x): (x[0] if isinstance(x, tuple) else x)()
        n = len(mains)
        bud = []
        for i, (pre, m, dur, post) in enumerate(mains):
            b = (dur - 8) / 4 - sum(cost(x) for x in post)
            if i + 1 < n: b -= sum(cost(x) for x in mains[i+1][0])
            bud.append(b)
        if segs is None: segs = [(0, n - tail_free, fillers)]
        plan = [[] for _ in range(n)]; planned = [0.0] * n
        for (a, b_, fl) in segs:
            free = sum(max(0, x) for x in bud[a:b_]); need = sum(cost(x) for x in fl)
            over = max(0.0, (need - free) / max(1, b_ - a)); frac = min(1.0, need / free) if free > 0 else 1.0
            fi = 0; credit = 0.0
            for i in range(a, b_):
                credit += max(0, bud[i]) * frac + over
                while fi < len(fl) and cost(fl[fi]) <= credit + 1e-9:
                    credit -= cost(fl[fi]); plan[i].append(fl[fi]); fi += 1
            plan[b_ - 1] += fl[fi:]
            for i in range(a, b_):
                used = sum(cost(x) for x in plan[i]) - planned[i]
                planned[i] += used; bud[i] -= used
        for i, (pre, m, dur, post) in enumerate(mains):
            for x in pre: run(x)
            m()
            for x in post: run(x)
            hoist = lambda x: getattr(x[0] if isinstance(x, tuple) else x, 'hoist', False) and self.o.get('hoist', True)
            for x in plan[i]:
                if hoist(x): run(x)
            for x in plan[i]:
                if not hoist(x): run(x)

    def poll_flags(self, base, nflags_expr_lanes, nloads, sbase=None, last_lanes=None, sleep=0):
        e = self.e; V = self.V
        skip = self.lab('pf'); l0 = self.lab('pl'); l1 = self.lab('pd')
        e(f's_cmp_lg_u32 s{S_W}, 0\ns_cbranch_scc1 {skip}')
        a = V.alloc(1); d = V.alloc(4, 2)
        e(f'v_mul_u32_u24 v{a}, {FLAG_STRIDE}, v1\nv_add_u32 v{a}, {base}, v{a}')
        if sbase is not None: e(f'v_add_u32 v{a}, s{sbase}, v{a}')
        e(f's_mov_b64 s[{S_M1}:{S_M1+1}], exec')
        if nflags_expr_lanes < 64: e(f's_mov_b64 exec, {hex((1 << nflags_expr_lanes) - 1)}')
        e(f's_mov_b32 s{S_CNT}, 0')
        self.label(l0)
        for k in range(nloads):
            if 64*FLAG_STRIDE*k < 4096: e(f'buffer_load_dword v{d+k}, v{a}, s[{R_WS}:{R_WS+3}], 0 offen offset:{64*FLAG_STRIDE*k} sc1')
            else: e(f's_mov_b32 s{S_T3}, {64*FLAG_STRIDE*k}\nbuffer_load_dword v{d+k}, v{a}, s[{R_WS}:{R_WS+3}], s{S_T3} offen sc1')
        e('s_waitcnt vmcnt(0)')
        e(f'v_cmp_ne_u32 vcc, s{S_NONCE}, v{d}')
        for k in range(1, nloads):
            e(f'v_cmp_ne_u32 s[{S_M2}:{S_M2+1}], s{S_NONCE}, v{d+k}')
            if last_lanes and k == nloads - 1:
                assert last_lanes == 32
                e(f's_and_b32 s{S_M2+1}, s{S_M2+1}, 0')
            e(f's_or_b64 vcc, vcc, s[{S_M2}:{S_M2+1}]')
        e(f's_cbranch_vccz {l1}')
        if sleep: e(f's_sleep {sleep}')
        e(f's_add_u32 s{S_CNT}, s{S_CNT}, 1\ns_cmp_lt_u32 s{S_CNT}, {SPIN_MAX}\ns_cbranch_scc1 {l0}')
        self.label(l1)
        e(f's_mov_b64 exec, s[{S_M1}:{S_M1+1}]')
        V.free(a); V.free(d, 4)
        self.label(skip)
        e('s_barrier')

    WDREG = ['A']*9 + ['B']*3 + ['C']*3 + ['A']*9 + ['B']*3 + ['C']
    WDIDX = list(range(9)) + [0,1,2] + [0,1,2] + list(range(9)) + [0,1,2] + [0]
    def wd_setup(self):
        e = self.e; V = self.V
        self.vWD = V.alloc(2); self.vWT = V.alloc(6)
        t = V.alloc(1); t2 = V.alloc(1); vD = self.vWD; vT = self.vWT
        e(f'v_lshrrev_b32 v{t}, 3, v1\nv_mul_u32_u24 v{vD}, 896, v{t}\nv_bfe_u32 v{t}, v1, 4, 1\nv_lshlrev_b32 v{t}, 2, v{t}\nv_and_b32 v{t2}, 7, v1\nv_xor_b32 v{t}, v{t}, v{t2}\nv_lshl_add_u32 v{vD}, v{t}, 4, v{vD}')
        e(f's_lshl_b32 s{S_T0}, s{S_DB}, 7\ns_mul_i32 s{S_T1}, s{S_W}, {448*896}\ns_add_u32 s{S_T0}, s{S_T0}, s{S_T1}\nv_add_u32 v{vD}, s{S_T0}, v{vD}\nv_add_u32 v{vD+1}, 7168, v{vD}')
        e(f'v_lshrrev_b32 v{t}, 5, v1\nv_lshlrev_b32 v{vT}, 9, v{t}\nv_bfe_u32 v{t}, v1, 2, 2\nv_lshl_add_u32 v{vT}, v{t}, 7, v{vT}')
        e(f'v_bfe_u32 v{t}, v1, 4, 1\nv_lshl_add_u32 v{vT}, v{t}, 5, v{vT}\nv_and_b32 v{t}, 3, v1\nv_lshl_add_u32 v{vT}, v{t}, 3, v{vT}')
        e(f'v_bfe_u32 v{t}, v1, 3, 1\nv_lshlrev_b32 v{t}, 6, v{t}')
        e(f'v_xor_b32 v{t2}, 64, v{t}\nv_add_u32 v{vT+1}, v{vT}, v{t2}\nv_add_u32 v{vT}, v{vT}, v{t}')
        e(f's_mul_i32 s{S_WA}, s{S_W}, 18432\ns_add_u32 s{S_WA}, s{S_WA}, 87040')
        e(f's_mul_i32 s{S_WB}, s{S_W}, 7168\ns_add_u32 s{S_WC}, s{S_WB}, 57344\ns_add_u32 s{S_WB}, s{S_WB}, 28672')
        e(f'v_add_u32 v{vT+2}, s{S_WB}, v{vT}\nv_add_u32 v{vT+3}, s{S_WB}, v{vT+1}\nv_add_u32 v{vT+4}, s{S_WC}, v{vT}\nv_add_u32 v{vT+5}, s{S_WC}, v{vT+1}')
        e(f'v_add_u32 v{vT}, s{S_WA}, v{vT}\nv_add_u32 v{vT+1}, s{S_WA}, v{vT+1}')
        e(f's_add_u32 s{S_T1}, s{S_DB}, s{S_RB2}' if self.o.get('rot2', True) else f's_mov_b32 s{S_T1}, 0')
        for q in range(4):
            e(f's_add_u32 s{S_T0}, s{S_T1}, {q}\ns_and_b32 s{S_T0}, s{S_T0}, 3\ns_mul_i32 s{S_RW0+q}, s{S_T0}, {7*16*896}\ns_mul_i32 s{S_RA0+q}, s{S_T0}, {7*1024}')
        V.free(t); V.free(t2)
    def wd_dma(self, k, tag):
        e = self.e; sb = {'A': S_WA, 'B': S_WB, 'C': S_WC}[self.WDREG[k]]; sl = self.WDIDX[k] * 2048
        d0 = lambda: self.vmem(f'buffer_load_dwordx4 v{self.vWD}, s[{R_WD}:{R_WD+3}], s{S_WO} offen lds', tag)
        d1 = lambda: self.vmem(f'buffer_load_dwordx4 v{self.vWD+1}, s[{R_WD}:{R_WD+3}], s{S_WO} offen lds', tag)
        d0.isvm = True; d1.isvm = True
        r = [lambda: e(f's_add_u32 s{S_WO}, s{S_RW0 + k//7}, {(k%7)*16*896}'),
             lambda: e(f's_add_u32 m0, s{sb}, {sl}'), d0,
             lambda: e(f's_add_u32 m0, s{sb}, {sl + 1024}'), d1]
        for x in r: x.hoist = True
        return r
    def wd_reads(self, k):
        a = self.vWT + {'A': 0, 'B': 2, 'C': 4}[self.WDREG[k]]; sl = self.WDIDX[k] * 2048
        return [lambda mt=mt, hh=hh: self.ds(f'ds_read_b64_tr_b16 {ar(8*k+4*mt+2*hh,2)}, v{a+mt} offset:{sl + 1024*hh}', f'wdr{k}') for mt in range(2) for hh in range(2)]

    def phaseB_setup(self):
        e = self.e; V = self.V; o = self.o
        L_H = 0; HG = 28672; L_STP = 3 * HG
        HS = lambda g_: (g_ % 3) * HG
        S_HB, S_MB = S_T5, S_HID
        vD = V.alloc(1); vB = V.alloc(1); vS = V.alloc(1); t = V.alloc(1); t2 = V.alloc(1)
        e(f'v_lshrrev_b32 v{t}, 2, v1\nv_mul_u32_u24 v{vD}, {HT_STRIDE}, v{t}\nv_bfe_u32 v{t2}, v1, 4, 1\nv_lshlrev_b32 v{t2}, 1, v{t2}\nv_and_b32 v{t}, 3, v1\nv_xor_b32 v{t}, v{t}, v{t2}\nv_lshl_add_u32 v{vD}, v{t}, 4, v{vD}')
        e(f's_lshl_b32 s{S_T0}, s{S_RB}, 8\ns_add_u32 s{S_T0}, s{S_T0}, {WS_HT}\nv_add_u32 v{vD}, s{S_T0}, v{vD}')
        e(f's_mul_i32 s{S_HB}, s{S_W}, {16*HT_STRIDE}\ns_lshl_b32 s{S_MB}, s{S_W}, 10')
        e(f'v_lshrrev_b32 v{t}, 5, v1\nv_lshlrev_b32 v{vB}, 8, v{t}\nv_bfe_u32 v{t2}, v1, 4, 1\nv_xor_b32 v{t2}, v{t2}, v{t}\nv_lshl_add_u32 v{vB}, v{t2}, 5, v{vB}')
        e(f'v_bfe_u32 v{t}, v1, 2, 2\nv_lshl_add_u32 v{vB}, v{t}, 6, v{vB}\nv_and_b32 v{t}, 3, v1\nv_lshl_add_u32 v{vB}, v{t}, 3, v{vB}')
        e(f'v_lshrrev_b32 v{t}, 4, v1\nv_lshlrev_b32 v{vS}, 8, v{t}\nv_and_b32 v{t}, 1, v{t}\ns_and_b32 s{S_T0}, s{S_W}, 1\nv_xor_b32 v{t}, s{S_T0}, v{t}\nv_lshl_add_u32 v{vS}, v{t}, 5, v{vS}')
        e(f'v_bfe_u32 v{t}, v1, 2, 2\nv_lshl_add_u32 v{vS}, v{t}, 6, v{vS}\nv_and_b32 v{t}, 3, v1\nv_lshl_add_u32 v{vS}, v{t}, 3, v{vS}')
        e(f's_lshr_b32 s{S_T0}, s{S_W}, 1\ns_mul_i32 s{S_T0}, s{S_T0}, {7*2048}\nv_add_u32 v{vS}, s{S_T0}, v{vS}')
        vA = V.alloc(1)
        e(f's_mul_i32 s{S_T0}, s{S_RB}, {4*112}\ns_lshl_b32 s{S_T1}, s{S_FB}, 3\ns_add_u32 s{S_T0}, s{S_T0}, s{S_T1}\ns_lshl_b32 s{S_T1}, s{S_W}, 1\ns_add_u32 s{S_T0}, s{S_T0}, s{S_T1}')
        e(f's_lshl_b32 s{S_T0}, s{S_T0}, 10\ns_add_u32 s{S_T0}, s{S_T0}, {WS_ACT}\nv_lshl_add_u32 v{vA}, v1, 4, s{S_T0}')
        vG2 = V.alloc(1); sg2 = V.alloc(6, 2)
        e(f'v_and_b32 v{t}, 31, v1\nv_lshlrev_b32 v{vG2}, 3, v{t}\ns_lshl_b32 s{S_T0}, s{S_RB}, 10\ns_add_u32 s{S_T0}, s{S_T0}, {WS_STATS2}\nv_add_u32 v{vG2}, s{S_T0}, v{vG2}')
        vC = V.alloc(1)
        e(f'v_and_b32 v{t}, 31, v1\nv_lshlrev_b32 v{t}, 2, v{t}\ns_lshl_b32 s{S_T0}, s{S_FB}, 9\ns_lshl_b32 s{S_T1}, s{S_W}, 7\ns_add_u32 s{S_T0}, s{S_T0}, s{S_T1}\ns_add_u32 s{S_T0}, s{S_T0}, {WS_CS}\nv_add_u32 v{vC}, s{S_T0}, v{t}')
        NB = 6
        cs = self.cs; ones = self.ones
        B = V.alloc(4 * NB, 4); SB = V.alloc(8, 4); SG = V.alloc(8, 4)
        acc = [V.alloc(32, 4), V.alloc(32, 4)]
        st = V.alloc(6, 2); par = V.alloc(3); tmp = V.alloc(8, 4); pk = V.alloc(8, 4)
        vP = V.alloc(1); vPw = V.alloc(1)
        e(f'v_bfe_u32 v{t}, v1, 4, 1\nv_lshlrev_b32 v{vP}, 7, v{t}\nv_and_b32 v{t}, 15, v1\nv_lshl_add_u32 v{vP}, v{t}, 3, v{vP}\nv_add_u32 v{vP}, {L_STP}, v{vP}')
        e(f's_lshl_b32 s{S_T0}, s{S_W}, 7\ns_add_u32 s{S_T0}, s{S_T0}, {L_STP}\nv_lshl_add_u32 v{vPw}, v{t}, 3, s{S_T0}')
        K1, K2, K3, KD = 6, 8, 10, 12
        e(f's_mov_b32 s{K1}, 0x22222222\ns_mov_b32 s{K1+1}, 0x22222222\ns_mov_b32 s{K2}, 0x44444444\ns_mov_b32 s{K2+1}, 0x44444444')
        e(f's_mov_b32 s{K3}, 0x88888888\ns_mov_b32 s{K3+1}, 0x88888888\ns_mov_b32 s{KD}, 0x00f0000f\ns_mov_b32 s{KD+1}, 0xf0000f00')
        vBq = V.alloc(4); vS2 = V.alloc(1)
        e(f'v_add_u32 v{vS2}, 57344, v{vS}')
        for q in range(4):
            e(f's_add_u32 s{S_T0}, s{S_ROT}, {q}\ns_and_b32 s{S_T0}, s{S_T0}, 3\ns_mul_i32 s{S_T0}, s{S_T0}, {7*1024}\nv_add_u32 v{vBq+q}, s{S_T0}, v{vB}')
        S_KI = [0, 1, 3, 4, 5, 22, 23]
        for i in range(7):
            e(f's_add_u32 s{S_T0}, s{S_W}, {4*i}\ns_mul_i32 s{S_T1}, s{S_T0}, 37\ns_lshr_b32 s{S_T1}, s{S_T1}, 8')
            e(f's_mul_i32 s{S_T2}, s{S_T1}, 7\ns_sub_u32 s{S_T0}, s{S_T0}, s{S_T2}\ns_add_u32 s{S_T1}, s{S_T1}, s{S_ROT}\ns_and_b32 s{S_T1}, s{S_T1}, 3')
            e(f's_mul_i32 s{S_T1}, s{S_T1}, 7\ns_add_u32 s{S_KI[i]}, s{S_T1}, s{S_T0}')
        self.wd_setup()
        self.pb = dict(locals())

    def phaseB(self):
        e = self.e; V = self.V; o = self.o
        self.c('================= phase B')
        pb = self.pb
        L_H, HG, L_STP, HS, S_HB, S_MB = pb['L_H'], pb['HG'], pb['L_STP'], pb['HS'], pb['S_HB'], pb['S_MB']
        vD, vB, vS, t, t2, vA, vG2, sg2, NB, cs, ones, B, SB, SG = [pb[k] for k in 'vD vB vS t t2 vA vG2 sg2 NB cs ones B SB SG'.split()]
        acc, st, par, tmp, pk, vP, vPw, K1, K2, K3, KD, vBq, vS2 = [pb[k] for k in 'acc st par tmp pk vP vPw K1 K2 K3 KD vBq vS2'.split()]
        self.stamp(14)
        HCS = o.get('hcs', True); vC = pb['vC']
        self.wait_vm('we')
        if HCS: self.poll_flags(WS_FLAG2, 64, 4, sleep=self.o.get('wsleep', 2))
        else: self.poll_flags(WS_FLAG2 + (32 if o.get('hfirst', True) else 0)*FLAG_STRIDE, 64, 4, last_lanes=32, sleep=self.o.get('wsleep', 2))
        self.stamp(15)
        zk = [k for k in range(self.K0, 28) if self.W1SLOT[k] >= 12]
        for k in zk: self.w1_read(k, k + 1)
        self.wait_all_lg(); e('s_barrier')
        self.rest_k = [k for k in range(self.K0, 28) if k not in zk]
        self.vm.drain(); self.lg.drain()
        self.stamp(16)
        def hdma(g, i, tag=None):
            d = lambda: self.vmem(f'buffer_load_dwordx4 v{vD}, s[{R_WS}:{R_WS+3}], s{S_T1} offen {o.get("hflags", "sc1")} lds', tag or f'h{g}')
            d.isvm = True
            r = [lambda: e(f's_add_u32 m0, s{S_MB}, {L_H + HS(g) + i*4096}'),
                 lambda: e(f's_add_u32 s{S_T1}, s{S_HB}, {i*4*16*HT_STRIDE + 64*g}'), d]
            for x in r: x.hoist = True
            return r
        S_KI = pb['S_KI']; PROG = o.get('prog', True)
        for i in range(7):
            e(f's_lshl_b32 m0, s{S_KI[i]}, 10\ns_mul_i32 s{S_T1}, s{S_KI[i]}, {16*HT_STRIDE}')
            self.vmem(f'buffer_load_dwordx4 v{vD}, s[{R_WS}:{R_WS+3}], s{S_T1} offen {o.get("hflags", "sc1")} lds', 'h0a' if (i < 3 and PROG) else 'h0')
        for k in self.rest_k: self.w1_read(k, k + 1)
        self.wait_all_lg()
        V.free(self.vTS, 5); V.free(self.vW1)
        if HCS:
            e(f's_mov_b32 s{S_T2}, {1792*4}')
            self.vmem(f'buffer_load_dword v{cs}, v{vC}, s[{R_WS}:{R_WS+3}], 0 offen sc1', 'cs')
            self.vmem(f'buffer_load_dword v{cs+16}, v{vC}, s[{R_WS}:{R_WS+3}], s{S_T2} offen sc1', 'cs')
        else: self.cs_mfma(self.K0, 28)
        csA = V.alloc(8, 4); mB = V.alloc(4, 4)
        for i in range(1, 4): e(f'v_mov_b32 v{mB+i}, 0\nv_mov_b32 v{csA+i}, 0\nv_mov_b32 v{csA+4+i}, 0')
        def build_csA():
            for u in range(2):
                c_ = cs + 16 * u; d_ = csA + 4 * u
                e(f'v_cvt_pk_bf16_f32 v{d_}, v{c_}, v{c_}\nv_lshlrev_b32 v{d_}, 16, v{d_}\nv_sub_f32 v{c_+1}, v{c_}, v{d_}')
                e(f'v_cvt_pk_bf16_f32 v{d_}, v{c_}, v{c_+1}')
                e(f'v_cmp_gt_u32 vcc, 32, v1\nv_cndmask_b32 v{d_}, 0, v{d_}, vcc')
        if not HCS: build_csA()
        H1F = o.get('h1fill', True)
        if not H1F:
            for i in range(7):
                for f in hdma(1, i): f()
        def rdB(g, k):
            s = k % NB
            for h_ in range(2):
                self.ds(f'ds_read_b64_tr_b16 {vr(B+4*s+2*h_,2)}, v{vBq + k//7} offset:{HS(g) + (k%7)*1024 + 512*h_}', f'B{g}_{k}')
        def st_reads(g):
            for k_ in range(2): self.ds(f'ds_read_b64 {vr(st+2*k_,2)}, v{vP} offset:{(g&1)*512 + 256*k_}', f'st{g}')
        def fin_ops(g):
            nm, rsl, s2 = par, par + 1, par + 2; ops = []
            save = self.lines; self.lines = []
            if g == 0:
                self.ln_finalize(st, st + 1, st + 2, st + 3, st + 4)
            else:
                e(f'v_lshlrev_b32 v{st+2}, 16, v{sg2+2*(g-1)}')
                e(f'v_and_b32 v{st+3}, 0xffff0000, v{sg2+2*(g-1)}')
            e(f'v_cvt_pk_bf16_f32 v{mB}, -v{st+2}, -v{st+2}')
            e(f'v_rcp_f32 v{st+4}, v{st+3}')
            e(f'v_mul_f32 v{s2}, v{st+3}, v{st+3}')
            e(f'v_mul_f32 v{rsl}, {fx(-LOG2E)}, v{st+4}')
            fl = self.lines; self.lines = save
            if g == 0:
                def fin0():
                    self.wait_lg('st0')
                    e(f'v_add_f32 v{st}, v{st}, v{st+2}')
                ops.append(fin0)
                ops.append(lambda: e(f'v_add_f32 v{st+1}, v{st+1}, v{st+3}'))
            for l in fl: ops.append(lambda l=l: e(l))
            return ops
        def fold_mfma(g, u):
            A_ = acc[g & 1] + 16 * u
            return lambda: e(f'v_mfma_f32_32x32x16_bf16 {vr(A_,16)}, {vr(csA+4*u,4)}, {vr(mB,4)}, {vr(A_,16)}')
        def epilogue_ops(g):
            A_ = acc[g & 1]; ops = []; delayed = []
            nm, rsl, s2 = par, par + 1, par + 2
            def el(r):
                G_, U_, T_ = A_ + r, A_ + 16 + r, tmp + (r & 7)
                return [f'v_mul_f32 v{T_}, v{rsl}, v{G_}',
                        f'v_mul_f32 v{G_}, v{G_}, v{U_}',
                        f'v_exp_f32 v{T_}, v{T_}',
                        f'v_fma_f32 v{T_}, v{T_}, v{s2}, v{s2}',
                        f'v_rcp_f32 v{T_}, v{T_}',
                        f'v_mul_f32 v{G_}, v{G_}, v{T_}']
            for q in range(4):
                els = [el(4*q + x) for x in range(4)]
                for s_ in range(6):
                    for x in range(4): ops.append((lambda l=els[x][s_]: e(l), 2 if s_ in (2, 4) else 1))
                for x in range(2):
                    r = 4*q + 2*x
                    cv_ = lambda r=r: e(f'v_cvt_pk_bf16_f32 v{pk + r//2}, v{A_+r}, v{A_+r+1}')
                    cv_.cvtmark = r // 2
                    ops.append(cv_)
                if q in (1, 3) and not (o.get('x_nost') and g < 3):
                    kk = q >> 1
                    stf = lambda kk=kk: self.vmem(f'buffer_store_dwordx4 {vr(pk+4*kk,4)}, v{vA}, s[{R_WS}:{R_WS+3}], s{S_T4} offen offset:{1024*kk} {o.get("actflags", "sc1")}', 'act')
                    if g < 3 and o.get('stdelay', True):
                        delayed.append([10, (stf, o.get('cst', 6))])
                    else: ops.append(stf)
            if delayed:
                res = []; pend = []
                marks = [i for i, x in enumerate(ops) if getattr(x, 'cvtmark', None) is not None]
                di = 0
                for i, x in enumerate(ops):
                    res.append(x)
                    if getattr(x, 'cvtmark', None) in (3, 7): pend.append([8, delayed[di][1]]); di += 1
                    for p in pend: p[0] -= 1
                    while pend and pend[0][0] <= 0:
                        it = pend.pop(0)[1]; it[0].hoist = True; res.append(it)
                for p in pend: res.append(p[1])
                ops = res
            return ops
        DS = 1.5
        def rdB1(g, k, h_):
            s = (28 * g + k) % NB
            return (lambda: self.ds(f'ds_read_b64_tr_b16 {vr(B+4*s+2*h_,2)}, v{vBq + k//7} offset:{HS(g) + (k%7)*1024 + 512*h_}', f'B{g}_{k}'), DS)
        def rs(g, i):
            sb = SB + 4 * (i & 1); out = []
            for h_ in range(2):
                b_, off = (vS, HS(g) + i*2048 + 1024*h_) if HS(g) < 57344 else (vS2, i*2048 + 1024*h_)
                out.append((lambda b_=b_, off=off, h_=h_, sb=sb, i=i: self.ds(f'ds_read_b64_tr_b16 {vr(sb+2*h_,2)}, v{b_} offset:{off}', f'S{g}_{i}'), DS))
            return out
        def s2_loads():
            return [lambda gg=gg: self.vmem(f'buffer_load_dwordx2 {vr(sg2+2*(gg-1),2)}, v{vG2}, s[{R_WS}:{R_WS+3}], 0 offen offset:{256*gg} sc1', 'sg2') for gg in range(1, 4)]
        def s2_check():
            l0 = self.lab('s2'); l1 = self.lab('s2d')
            self.wait_vm('sg2')
            e(f's_mov_b32 s{S_CNT}, 0')
            self.label(l0)
            e(f'v_cmp_ne_u32 vcc, s{S_NONCE}, v{sg2+1}')
            for gg in (2, 3): e(f'v_cmp_ne_u32 s[{S_M2}:{S_M2+1}], s{S_NONCE}, v{sg2+2*gg-1}\ns_or_b64 vcc, vcc, s[{S_M2}:{S_M2+1}]')
            e(f's_cbranch_vccz {l1}')
            for gg in range(1, 4): e(f'buffer_load_dwordx2 {vr(sg2+2*(gg-1),2)}, v{vG2}, s[{R_WS}:{R_WS+3}], 0 offen offset:{256*gg} sc1')
            e('s_waitcnt vmcnt(0)')
            e(f's_add_u32 s{S_CNT}, s{S_CNT}, 1\ns_cmp_lt_u32 s{S_CNT}, {SPIN_MAX}\ns_cbranch_scc1 {l0}')
            self.label(l1)
        def red_ops(g):
            return [lambda: e(f'v_cndmask_b32 v{SG}, v{SG}, v{SG+1}, s[{K1}:{K1+1}]'),
                    lambda: e(f'v_cndmask_b32 v{SG}, v{SG}, v{SG+2}, s[{K2}:{K2+1}]'),
                    lambda: e(f'v_cndmask_b32 v{SG+5}, v{SG}, v{SG+3}, s[{K3}:{K3+1}]'),
                    lambda: e(f's_mov_b64 exec, s[{KD}:{KD+1}]'),
                    lambda: self.ds(f'ds_write_b64 v{vPw}, {vr(SG+4,2)} offset:{(g&1)*512}', f'stw{g}'),
                    lambda: e('s_mov_b64 exec, -1')]
        self.wait_vm('h0a' if PROG else 'h0'); self.wait_all_lg(); e('s_barrier')
        self.stamp(17)
        for k in range(4):
            for h_ in range(2): rdB1(0, k, h_)[0]()
        if not PROG:
            for f in rs(0, 0) + rs(0, 1): f[0]()
        mains = []; segs = []
        KB = 22
        KF = 3
        for g in range(4):
            A_ = acc[g & 1]; base = len(mains); pos = {}
            for k in range(28):
                cg = '0' if k == 0 else vr(A_, 16); cu = '0' if k == 0 else vr(A_ + 16, 16)
                pre = []
                if g == 1 and k == 2: pre.append(lambda: e('s_barrier'))
                if g in (2, 3) and k == 2: pre.append(lambda: e('s_barrier'))
                if g == 0 and k == 8 and PROG:
                    pre.append(lambda: self.wait_vm('h0')); pre.append(lambda: e('s_barrier'))
                if k == KB:
                    if g < 3: pre.append(lambda g=g: self.wait_vm(f'h{g+1}'))
                    if g == 0: pre.append(lambda g=g: self.wait_lg(f'stw{g}'))
                    pre.append(lambda: e('s_barrier'))
                    if o.get('passstamps'): pre.append(lambda g=g: self.stamp(26 + g))
                pre.append(lambda k=k, g=g: self.wait_lg(f'B{g}_{k}'))
                nx = (g, k + 4) if k + 4 < 28 else ((g + 1, k + 4 - 28) if g < 3 else None)
                p0 = [rdB1(nx[0], nx[1], 0)] if nx else []; p1 = [rdB1(nx[0], nx[1], 1)] if nx else []
                pos[k] = len(mains)
                mains.append((pre, lambda k=k, cg=cg, A_=A_, g=g: e(f'v_mfma_f32_32x32x16_bf16 {vr(A_,16)}, {ar(8*k,4)}, {vr(B+4*((28*g+k)%NB),4)}, {cg}'), 32, p0))
                mains.append(([], lambda k=k, cu=cu, A_=A_, g=g: e(f'v_mfma_f32_32x32x16_bf16 {vr(A_+16,16)}, {ar(8*k+4,4)}, {vr(B+4*((28*g+k)%NB),4)}, {cu}'), 32, p1))
                if g > 0 and k == KF:
                    for u_ in range(2): mains.append(([], fold_mfma(g - 1, u_), 32, []))
                if g == 0:
                    gpos = [10, 11, 13, 14, 16, 17, 19] if PROG else [0, 3, 6, 9, 12, 15, 18]
                    spos = gpos if PROG else [x + 1 for x in gpos]
                    if k in gpos:
                        i_ = gpos.index(k); sb = SB + 4 * (i_ & 1); c_ = '0' if i_ == 0 else vr(SG, 4)
                        mains.append(([lambda i_=i_, g=g: self.wait_lg(f'S{g}_{i_}')], lambda sb=sb, c_=c_: e(f'v_mfma_f32_16x16x32_bf16 {vr(SG,4)}, {vr(sb,4)}, {vr(sb,4)}, {c_}'), 16, []))
                    if k in spos:
                        i_ = spos.index(k); sb = SB + 4 * (i_ & 1); c_ = '0' if i_ == 0 else vr(SG + 4, 4)
                        mains.append(([], lambda sb=sb, c_=c_: e(f'v_mfma_f32_16x16x32_bf16 {vr(SG+4,4)}, {vr(ones,4)}, {vr(sb,4)}, {c_}'), 16,
                                      rs(g, i_ + 2) if i_ + 2 < 7 else []))
            def addpost(k, items, which=0):
                pre_, m_, d_, post_ = mains[pos[k] + which]
                mains[pos[k] + which] = (pre_, m_, d_, post_ + items)
            if g == 0:
                addpost(KB - 1, red_ops(g), 1)
                if PROG:
                    r0 = rs(0, 0) + rs(0, 1)
                    addpost(8, r0[:2], 0); addpost(8, r0[2:], 1)
            if g == 3:
                for i_ in range(9):
                    rr = [(f, DS) for f in self.wd_reads(i_)]
                    for q in range(4): addpost(10 + 2*i_ + (q >> 1), [rr[q]], q & 1)
                pre_, m_, d_, post_ = mains[pos[10]]
                mains[pos[10]] = (pre_, m_, d_, post_[:1] + [lambda: self.wait_vm('wdA')] + post_[1:])
            if g == 1:
                addpost(o.get('s2k', 12), s2_loads(), 1)
                if not o.get('x_nos2'): addpost(27, [(s2_check, 8)], 1)
            ep = []
            if g > 0:
                fo = ([lambda: st_reads(0)] if g == 1 else []) + [lambda g=g: e(f's_mov_b32 s{S_T4}, {(g-1)*112*1024}')] + fin_ops(g - 1)
                segs.append((base, pos[KF] + 1, fo))
                ep += epilogue_ops(g - 1)
            mf = []; mf2 = []
            if g == 0 and HCS:
                _, bl = self.capture(build_csA)
                ep = [lambda: self.wait_vm('cs')] + bl
            if g == 0:
                if H1F:
                    for i in range(7): mf2 += hdma(1, i)
                for i in range(7): mf += hdma(2, i)
            if g == 0:
                pass
            mf3 = []
            if g == 1:
                for i in range(7): mf2 += hdma(3, i)
                for k_ in range(0, 5): mf3 += self.wd_dma(k_, 'wdA')
            if g == 2:
                for k_ in range(5, 9): mf3 += self.wd_dma(k_, 'wdA')
                for k_ in range(9, 12): mf3 += self.wd_dma(k_, 'wdB')
            if g == 3:
                for k_ in range(12, 15): mf3 += self.wd_dma(k_, 'wdC')
            if o.get('x_noep'): ep = []
            CD = o.get('cdma', 1)
            def costed(lst):
                out = []
                for x in lst:
                    f = x[0] if isinstance(x, tuple) else x
                    vm = getattr(f, 'isvm', False)
                    out.append((f, CD) if vm else x)
                return out
            mf, mf2, mf3 = costed(mf), costed(mf2), costed(mf3)
            merged = []; a_, c_ = list(ep), list(mf)
            ra = len(a_) / max(1, len(a_) + len(c_)); acc_ = 0.0
            while a_ or c_:
                acc_ += ra
                if (acc_ >= 1.0 - 1e-9 and a_) or not c_:
                    acc_ -= 1.0; merged.append(a_.pop(0))
                else: merged.append(c_.pop(0))
            end = len(mains) if g < 3 else len(mains) - 2
            if o.get('x_nowd'): mf3 = []
            if mf2: segs.append((pos[2], pos[12], mf2) if g else (pos[0], pos[6], mf2))
            if mf3: segs.append((pos[12] if mf2 else pos[2], pos[27] if g < 3 else pos[10], mf3))
            segs.append((pos[8] if (g == 0 and H1F) else (pos[KF + 2] if g > 0 else base), end, merged))
        self.sched(mains, None, segs=segs)
        self.stamp(18)
        e(f's_mov_b32 s{S_T4}, {3*112*1024}')
        for f in fin_ops(3): f()
        for u_ in range(2): fold_mfma(3, u_)()
        for f in epilogue_ops(3): (f[0] if isinstance(f, tuple) else f)()
        self.stamp(19)
        for x, n in ((vD,1),(vB,1),(vS,1),(t,1),(t2,1),(cs,32),(vA,1),(vG2,1),(vC,1),(sg2,6),(B,4*NB),(SB,8),(ones,4),(SG,8),(acc[0],32),(acc[1],32),(st,6),(par,3),(tmp,8),(pk,8),(vP,1),(vPw,1),(vBq,4),(vS2,1),(csA,8),(mB,4)):
            V.free(x, n)
        pass
        self.wait_lg('wdr3')
        for k_ in range(15, 19):
            for f in self.wd_dma(k_, 'wdD'): f()
        self.wait_vm('act'); e('s_barrier')
        e(f's_lshl_b32 s{S_T1}, s{S_RB}, 4\ns_add_u32 s{S_T1}, s{S_T1}, s{S_FB}')
        self.signal(WS_FLAG3, f's{S_T1}')
        self.stamp(20)

    def phaseC(self):
        e = self.e; V = self.V; o = self.o
        self.c('================= phase C')
        t = V.alloc(1); t2 = V.alloc(1)
        self.wait_all_lg()
        for k_ in range(19, 24):
            for f in self.wd_dma(k_, 'wdE'): f()
        self.wait_vm('wdC')
        for k_ in range(9, 15):
            for f in self.wd_reads(k_): f()
        self.wait_all_lg()
        for k_ in range(24, 28):
            for f in self.wd_dma(k_, 'wdF'): f()
        self.stamp(21)
        self.wait_vm('wdF')
        e(f's_lshr_b32 s{S_T0}, s{S_RB2}, 1\ns_mul_i32 s{S_T0}, s{S_T0}, {16*FLAG_STRIDE}')
        self.poll_flags(WS_FLAG3, 16, 1, sbase=S_T0, sleep=self.o.get('wsleep3', 1))
        self.vm.drain(); self.lg.drain()
        self.stamp(22)
        vA = V.alloc(1)
        e(f's_mul_i32 s{S_T0}, s{S_RB2}, {2*112}\ns_mul_i32 s{S_T1}, s{S_W}, 28\ns_add_u32 s{S_T0}, s{S_T0}, s{S_T1}\ns_lshl_b32 s{S_T0}, s{S_T0}, 10\ns_add_u32 s{S_T0}, s{S_T0}, {WS_ACT}\nv_lshl_add_u32 v{vA}, v1, 4, s{S_T0}')
        NR = o.get('NR', 10)
        Bf = V.alloc(4 * NR, 4); acc = V.alloc(64, 4)
        def ld(i):
            nt, k = divmod(i, 28)
            e(f's_add_u32 s{S_T1}, s{S_RA0 + k//7}, {(nt*112 + k%7)*1024}')
            self.vmem(f'buffer_load_dwordx4 {vr(Bf+4*(i%NR),4)}, v{vA}, s[{R_WS}:{R_WS+3}], s{S_T1} offen {o.get("aflags", "sc1")}', f'a{i}')
        for i in range(NR): ld(i)
        for k_ in range(15, 28):
            for f in self.wd_reads(k_): f()
        self.wait_all_lg(); e('s_barrier')
        V.free(self.vWD, 2); V.free(self.vWT, 6)
        hres = V.alloc(8, 4); vR = V.alloc(1)
        e(f's_lshl_b32 s{S_T0}, s{S_RB2}, 1\ns_and_b32 s{S_T1}, s{S_W}, 1\ns_add_u32 s{S_T0}, s{S_T0}, s{S_T1}\ns_mul_i32 s{S_T0}, s{S_T0}, 28')
        e(f's_lshl_b32 s{S_T1}, s{S_DB}, 2\ns_add_u32 s{S_T0}, s{S_T0}, s{S_T1}\ns_and_b32 s{S_T1}, s{S_W}, 2\ns_add_u32 s{S_T0}, s{S_T0}, s{S_T1}\ns_lshl_b32 s{S_T0}, s{S_T0}, 10\ns_add_u32 s{S_T0}, s{S_T0}, {WS_HD}\nv_lshl_add_u32 v{vR}, v1, 4, s{S_T0}')
        A = lambda mt, nt: acc + 16 * (2 * mt + nt)
        ra = V.alloc(1)
        e(f's_lshl_b32 s{S_T0}, s{S_W}, 12\nv_lshl_add_u32 v{ra}, v1, 4, s{S_T0}')
        def redw(T, q): return lambda: self.ds(f'ds_write_b128 v{ra}, {vr(acc+16*T+4*q,4)} offset:{T*16384 + q*1024}', 'redw')
        mains = []
        for i in range(56):
            nt, k = divmod(i, 28)
            for mt in range(2):
                cin = '0' if k == 0 else vr(A(mt, nt), 16)
                pre = [lambda i=i: self.wait_vm(f'a{i}')] if mt == 0 else []
                post = []
                if mt == 1 and i + NR < 56: post = [lambda i=i: ld(i + NR)]
                if mt == 1 and i == 56 - NR:
                    post = post + [lambda kk=kk: self.vmem(f'buffer_load_dwordx4 {vr(hres+4*kk,4)}, v{vR}, s[{R_WS}:{R_WS+3}], 0 offen offset:{1024*kk} sc1', 'hres') for kk in range(2)]
                mains.append((pre, lambda mt=mt, nt=nt, k=k, i=i, cin=cin: e(f'v_mfma_f32_32x32x16_bf16 {vr(A(mt,nt),16)}, {ar(8*k+4*mt,4)}, {vr(Bf+4*(i%NR),4)}, {cin}'), 32, post))
        self.sched(mains, None, segs=[(62, 100, [(redw(T, q), 3) for T in (0, 2) for q in range(4)])])
        self.stamp(23)
        V.free(Bf, 4 * NR)
        for T in (1, 3):
            for q in range(4): redw(T, q)()
        self.wait_all_lg()
        e('s_barrier')
        rr = V.alloc(64, 4); keep = rr
        e(f's_lshl_b32 s{S_T0}, s{S_W}, 14\nv_lshl_add_u32 v{ra}, v1, 4, s{S_T0}')
        for j in range(4):
            for q in range(4): self.ds(f'ds_read_b128 {vr(rr+16*j+4*q,4)}, v{ra} offset:{j*4096 + q*1024}', f'rr{j}')
        vO = V.alloc(1)
        e(f'v_and_b32 v{t}, 31, v1\nv_mul_u32_u24 v{vO}, 896, v{t}\nv_lshrrev_b32 v{t}, 5, v1\nv_lshl_add_u32 v{vO}, v{t}, 4, v{vO}')
        e(f's_lshl_b32 s{S_T0}, s{S_RB2}, 1\ns_and_b32 s{S_T1}, s{S_W}, 1\ns_add_u32 s{S_T0}, s{S_T0}, s{S_T1}\ns_mul_i32 s{S_T0}, s{S_T0}, {32*896}')
        e(f's_lshl_b32 s{S_T1}, s{S_DB}, 7\ns_add_u32 s{S_T0}, s{S_T0}, s{S_T1}\ns_and_b32 s{S_T1}, s{S_W}, 2\ns_lshl_b32 s{S_T1}, s{S_T1}, 5\ns_add_u32 s{S_T0}, s{S_T0}, s{S_T1}\nv_add_u32 v{vO}, s{S_T0}, v{vO}')
        for j in range(1, 4):
            self.wait_lg(f'rr{j}')
            for i in range(0, 16, 2): e(f'v_pk_add_f32 {vr(keep+i,2)}, {vr(keep+i,2)}, {vr(rr+16*j+i,2)}')
        self.wait_vm('hres')
        P = V.alloc(8, 4); w8 = rr + 16
        for d in range(8): e(f'v_cvt_pk_bf16_f32 v{P+d}, v{keep+2*d}, v{keep+2*d+1}')
        for d in range(8):
            e(f'v_lshlrev_b32 v{w8+2*d}, 16, v{P+d}\nv_and_b32 v{w8+2*d+1}, 0xffff0000, v{P+d}')
            e(f'v_lshlrev_b32 v{w8+16+2*d}, 16, v{hres+d}\nv_and_b32 v{w8+16+2*d+1}, 0xffff0000, v{hres+d}')
        for d in range(8): e(f'v_pk_add_f32 {vr(w8+2*d,2)}, {vr(w8+2*d,2)}, {vr(w8+16+2*d,2)}')
        for d in range(8): e(f'v_cvt_pk_bf16_f32 v{P+d}, v{w8+2*d}, v{w8+2*d+1}')
        for kk in range(2):
            b = P + 4 * kk
            e(f'v_permlane32_swap_b32 v{b}, v{b+2}\nv_permlane32_swap_b32 v{b+1}, v{b+3}')
        for kk in range(2):
            self.vmem(f'buffer_store_dwordx4 {vr(P+4*kk,4)}, v{vO}, s[{R_OUT}:{R_OUT+3}], 0 offen offset:{32*kk} {o.get("outflags", "")}', 'out')
        self.stamp(24)

    def build(self):
        e = self.e
        self.prologue()
        saveV = list(self.V.used)
        self.helper()
        self.V.used = saveV; self.vm.drain(); self.lg.drain()
        self.label('L_worker')
        self.phaseA()
        upto = self.o.get('upto', 'C')
        if upto in ('B', 'C'): self.phaseB()
        if upto == 'C': self.phaseC()
        self.stamps_out()
        if self.o.get('padto'):
            e('s_waitcnt vmcnt(0)')
            self.label('L_pad')
            e(f's_memrealtime s[{S_TS}:{S_TS+1}]\ns_waitcnt lgkmcnt(0)\ns_sub_u32 s{S_TS}, s{S_TS}, s{S_TS+6}\ns_cmp_lt_u32 s{S_TS}, {self.o.get("padto")}\ns_cbranch_scc1 L_pad')
        self.label('L_end')
        e('s_endpgm')

HEADER = open(os.path.join(os.path.dirname(os.path.abspath(__file__)), 'header.txt')).read() if os.path.exists(os.path.join(os.path.dirname(os.path.abspath(__file__)), 'header.txt')) else ''

def generate(opt):
    g = Gen(opt)
    g.build()
    lines, problems = fix_hazards(g.lines, verbose=opt.get('verbose', False))
    for p in problems: print('BACKEDGE HAZARD:', p, file=sys.stderr)
    out = [HEADER.rstrip('\n').replace('@@GRID@@', f'; @launch grid=(256,1,1) block=(256,1,1) lds={LDS_SIZE}')]
    out += ['.amdgcn_target "amdgcn-amd-amdhsa--gfx950"', '.text', f'.globl {NAME}', '.p2align 8', f'.type {NAME},@function', f'{NAME}:']
    for l in lines:
        out.append(l if l.endswith(':') else '    ' + l)
    out += ['.section .rodata,"a"', '.p2align 6', f'.amdhsa_kernel {NAME}',
            '  .amdhsa_next_free_vgpr 512', '  .amdhsa_next_free_sgpr 102', '  .amdhsa_accum_offset 256',
            '  .amdhsa_group_segment_fixed_size 0', '  .amdhsa_kernarg_size 128', '  .amdhsa_user_sgpr_count 2',
            '  .amdhsa_user_sgpr_kernarg_segment_ptr 1', '  .amdhsa_system_sgpr_workgroup_id_x 1',
            '  .amdhsa_float_denorm_mode_32 3', '.end_amdhsa_kernel', '']
    if opt.get('verbose'): print('max arch vgpr', g.V.hi, 'lines', len(lines))
    return '\n'.join(out)

if __name__ == '__main__':
    import json
    opt = json.loads(sys.argv[2]) if len(sys.argv) > 2 else {}
    opt['verbose'] = True
    txt = generate(opt)
    open(sys.argv[1], 'w').write(txt)
```

```python
import sys, os, math, struct
sys.path.insert(0, os.path.dirname(os.path.abspath(__file__)))
from asmlib import *

NAME = 'sequential_preLN__ssm_conv_s4__swiglu_ffn__prompt_kernel'
def f2u(x): return struct.unpack('<I', struct.pack('<f', x))[0]
def fx(x): return hex(f2u(x))
LOG2E = 1.4426950408889634
WS_STATS = 0x0
WS_FLAG2 = 0x4000
WS_FLAG3 = 0xC000
WS_STATS2 = 0x10000
WS_CS    = 0x14000
WS_HT    = 0x20000
HT_STRIDE = 4352
WS_HD    = 0x200000
WS_ACT   = 0x400000
WS_XT    = 0xB00000
XT_STRIDE = 4352
WS_DBG   = 0xE00000
WS_SIZE  = 0x2000000
FLAG_STRIDE = int(os.environ.get('FLAG_STRIDE', 16))
TBL_E = 1088; TBL_C = 18 * TBL_E
L_TBL = 0
L_EX = 2 * TBL_C
L_K32 = 55680; K32_C = 9344
L_RED = L_K32
L_STG = 87040; STG_SLOT = 8192
L_STGX = 74496
L_KC = 0; KC_S = 4160; KC_C = 4 * KC_S
L_U = 2 * KC_C; U_C = 5120
L_X = L_U + 2 * U_C; X_C = 4096
LDS_SIZE = 163840
HX_STRIDE = 912
S_X, S_ARE, S_AIM, S_BRE, S_BIM, S_CRE, S_CIM, S_LDT, S_DSK, S_BX, S_WG, S_WU, S_WD, S_OUT, S_DBG, S_WS = range(4, 36, 2)
R_X, R_WS, R_DBG, R_WG, R_WU, R_WD, R_OUT = 36, 40, 44, 48, 52, 56, 60
S_W, S_NONCE, S_XCD, S_J, S_CP, S_T0, S_T1, S_T2, S_T3, S_T4, S_T5 = 64, 65, 66, 67, 68, 69, 70, 71, 72, 73, 74
S_LD, S_DK = 75, 76
S_RB, S_FB, S_RB2, S_DB = 77, 78, 79, 80
S_M0, S_M1, S_M2, S_M3 = 82, 84, 86, 88
S_CNT = 90
S_HID = 91
S_WM, S_WO, S_US = 81, 100, 101
S_ROT = 99
S_WA, S_WB, S_WC = 18, 19, 20
S_RW0, S_RA0 = 24, 28
S_Q0 = 14
S_TS = 92
SPIN_MAX = 50000

class Gen(Asm):
    def __init__(self, opt):
        super().__init__()
        self.o = opt
        self.V = Regs('v', 256, start=2)
        if opt.get('stamps'): self.V.take(254, 2)
        self.V.take(250, 4)
        self.uid = 0
    def lab(self, s):
        self.uid += 1
        return f'L{s}_{self.uid}'
    def srd(self, r, ptr, size):
        self.e(f's_mov_b32 s{r}, s{ptr}\ns_mov_b32 s{r+1}, s{ptr+1}\ns_mov_b32 s{r+2}, {hex(size)}\ns_mov_b32 s{r+3}, 0x20000')
    def cmul(self, d, a, b, t=None):
        t = d if t is None else t
        self.e(f'v_pk_mul_f32 {vr(t,2)}, {vr(a,2)}, {vr(b,2)} op_sel:[0,0] op_sel_hi:[0,1]')
        self.e(f'v_pk_fma_f32 {vr(d,2)}, {vr(a,2)}, {vr(b,2)}, {vr(t,2)} op_sel:[1,1,0] op_sel_hi:[1,0,1] neg_lo:[0,1,0]')
    def cmul_multi(self, items):
        for d, a, b, t in items:
            t = d if t is None else t
            self.e(f'v_pk_mul_f32 {vr(t,2)}, {vr(a,2)}, {vr(b,2)} op_sel:[0,0] op_sel_hi:[0,1]')
        for d, a, b, t in items:
            t = d if t is None else t
            self.e(f'v_pk_fma_f32 {vr(d,2)}, {vr(a,2)}, {vr(b,2)}, {vr(t,2)} op_sel:[1,1,0] op_sel_hi:[1,0,1] neg_lo:[0,1,0]')
    def stamp(self, i):
        dm = self.o.get('dbgmap')
        if dm and i in dm:
            lab = self.lab('ds')
            self.e(f's_cmp_lg_u32 s2, {self.o.get("dbgwg", 8)}\ns_cbranch_scc1 {lab}\ns_cmp_lg_u32 s{S_W}, 0\ns_cbranch_scc1 {lab}')
            self.e(f's_memrealtime s[{S_TS}:{S_TS+1}]\ns_waitcnt lgkmcnt(0)')
            v = self.V.alloc(2)
            self.e(f's_sub_u32 s{S_TS}, s{S_TS}, s{S_TS+6}\nv_mov_b32 v{v}, s{S_TS}\nv_mov_b32 v{v+1}, {4*(1+dm.index(i))}')
            self.e(f's_mov_b64 s[{S_TS+4}:{S_TS+5}], exec\ns_mov_b64 exec, 1')
            self.e(f'buffer_store_dword v{v}, v{v+1}, s[{R_DBG}:{R_DBG+3}], 0 offen')
            self.e(f's_mov_b64 exec, s[{S_TS+4}:{S_TS+5}]')
            self.V.free(v, 2)
            self.label(lab)
            self.e('s_waitcnt lgkmcnt(0)')
            self.lg.drain()
        if self.o.get('stamps') and (self.o.get('only') is None or i in self.o['only']):
            self.e(f's_memrealtime s[{S_TS}:{S_TS+1}]\ns_memtime s[{S_TS+4}:{S_TS+5}]')
            self.e('s_waitcnt lgkmcnt(0)'); self.lg.drain()
            self.e(f'v_writelane_b32 v254, s{S_TS}, {i}\nv_writelane_b32 v255, s{S_TS+4}, {i}')

    def stamps_out(self):
        if self.o.get('stamps'):
            e = self.e
            e(f's_lshl_b32 s{S_TS+2}, s2, 10\ns_lshl_b32 s{S_TS+3}, s{S_W}, 8\ns_add_u32 s{S_TS+2}, s{S_TS+2}, s{S_TS+3}\ns_add_u32 s{S_TS+2}, s{S_TS+2}, {WS_DBG}')
            e(f'v_lshl_add_u32 v252, v1, 2, s{S_TS+2}\ns_mov_b32 exec_lo, -1\ns_mov_b32 exec_hi, 0')
            e(f'buffer_store_dword v254, v252, s[{R_WS}:{R_WS+3}], 0 offen\nbuffer_store_dword v255, v252, s[{R_WS}:{R_WS+3}], 0 offen offset:128')

    def prologue(self):
        e = self.e
        e(f's_cmp_ge_u32 s2, 256\ns_cbranch_scc1 L_end')
        e(f's_load_dwordx16 s[4:19], s[0:1], 0\ns_load_dwordx16 s[20:35], s[0:1], 64')
        e(f's_memrealtime s[{S_M0}:{S_M0+1}]')
        e('v_and_b32 v1, 63, v0')
        if self.o.get('codepf', True):
            lpc = self.lab('pc'); a = 250
            e(f's_getpc_b64 s[{S_M2}:{S_M2+1}]')
            self.label(lpc)
            e(f's_sub_u32 s{S_M2}, s{S_M2}, {lpc}-{NAME}\ns_subb_u32 s{S_M2+1}, s{S_M2+1}, 0')
            e(f's_lshr_b32 s{S_T0}, s2, 3\ns_lshl_b32 s{S_T0}, s{S_T0}, 4')
            e(f'v_lshrrev_b32 v{a}, 6, v0\nv_lshl_add_u32 v{a}, v{a}, 2, v1\nv_add_u32 v{a}, s{S_T0}, v{a}\nv_lshlrev_b32 v{a}, 7, v{a}\nv_min_u32 v{a}, L_end-{NAME}, v{a}')
            e(f'v_mov_b32 v{a+3}, s{S_M2+1}\nv_add_co_u32 v{a+2}, vcc, s{S_M2}, v{a}\nv_addc_co_u32 v{a+3}, vcc, 0, v{a+3}, vcc')
            e(f's_mov_b64 s[{S_M1}:{S_M1+1}], exec\ns_mov_b64 exec, 15')
            e(f'global_load_dword v{a+1}, v[{a+2}:{a+3}], off')
            e(f's_mov_b64 exec, s[{S_M1}:{S_M1+1}]')
        if self.o.get('stamps'): e('v_mov_b32 v254, 0x5a5a5a5a\nv_mov_b32 v255, 0x5a5a5a5a')
        v = self.V.alloc(1)
        e(f'v_lshrrev_b32 v{v}, 6, v0')
        e(f's_and_b32 s{S_XCD}, s2, 7\ns_lshr_b32 s{S_J}, s2, 3')
        e(f'v_readfirstlane_b32 s{S_W}, v{v}')
        self.V.free(v)
        if self.o.get('hfirst', True):
            e(f's_cmp_lt_u32 s{S_J}, 4\ns_cbranch_scc1 L_helper')
            e(f's_sub_u32 s{S_J}, s{S_J}, 4\ns_mul_i32 s{S_CP}, s{S_XCD}, 28\ns_add_u32 s{S_CP}, s{S_CP}, s{S_J}\ns_branch L_worker')
        else:
            e(f's_mul_i32 s{S_CP}, s{S_XCD}, 28\ns_add_u32 s{S_CP}, s{S_CP}, s{S_J}')
            e(f's_cmp_lt_u32 s{S_J}, 28\ns_cbranch_scc1 L_worker\ns_sub_u32 s{S_J}, s{S_J}, 28')
        self.label('L_helper')

    def srds(self, skip=()):
        e = self.e
        for r, p, n in ((R_X, S_X, 2048*448*2), (R_WS, S_WS, WS_SIZE), (R_DBG, S_DBG, 256), (R_WG, S_WG, 448*1792*2), (R_WU, S_WU, 448*1792*2),
                        (R_WD, S_WD, 448*1792*2), (R_OUT, S_OUT, 2048*448*2)):
            if r not in skip: self.srd(r, p, n)

    def publish_nonce(self):
        e = self.e
        e(f's_or_b32 s{S_NONCE}, s{S_M0}, 1\ns_mov_b32 s{S_TS+6}, s{S_M0}')
        lab = self.lab('non')
        e(f's_or_b32 s{S_T0}, s2, s{S_W}\ns_cmp_lg_u32 s{S_T0}, 0\ns_cbranch_scc1 {lab}')
        v = self.V.alloc(2)
        e(f'v_mov_b32 v{v}, s{S_NONCE}\nv_mov_b32 v{v+1}, 0')
        e(f's_mov_b64 s[{S_M1}:{S_M1+1}], exec\ns_mov_b64 exec, 1')
        e(f'buffer_store_dword v{v}, v{v+1}, s[{R_DBG}:{R_DBG+3}], 0 offen sc1')
        e(f's_mov_b64 exec, s[{S_M1}:{S_M1+1}]')
        self.V.free(v, 2)
        self.label(lab)

    def capture(self, fn):
        save = self.lines; self.lines = []
        r = fn()
        fl = self.lines; self.lines = save
        return r, [(lambda l=l: self.e(l)) for l in fl if not l.startswith(';')]

    def region(self, fn):
        save = self.lines; self.lines = []
        r = fn()
        fl = self.lines; self.lines = save
        self.lines.extend(resched(fl) if self.o.get('resched', True) else fl)
        return r

    def two_paths(self, fn, nop=7):
        e = self.e; l1 = self.lab('p1'); ld = self.lab('pd')
        e(f's_and_b32 s{S_T5}, s{S_W}, 1\ns_cmp_lg_u32 s{S_T5}, 0\ns_cbranch_scc1 {l1}')
        st = (list(self.vm.q), list(self.lg.q), list(self.V.used))
        fn(0)
        e(f's_branch {ld}')
        end = (list(self.vm.q), list(self.lg.q), list(self.V.used))
        self.vm.q, self.lg.q, self.V.used = list(st[0]), list(st[1]), list(st[2])
        self.label(l1)
        e(f's_nop {nop}')
        fn(1)
        assert (self.vm.q, self.lg.q, self.V.used) == end, 'paths diverge'
        self.label(ld)

    def get_nonce(self):
        e = self.e
        v = self.V.alloc(2)
        l0 = self.lab('gn'); l1 = self.lab('gnd')
        e(f'v_mov_b32 v{v+1}, 0\ns_mov_b32 s{S_CNT}, 0')
        self.label(l0)
        e(f'buffer_load_dword v{v}, v{v+1}, s[{R_DBG}:{R_DBG+3}], 0 offen sc1')
        e('s_waitcnt vmcnt(0)'); self.vm.drain()
        e(f'v_readfirstlane_b32 s{S_NONCE}, v{v}')
        e(f's_cmp_lg_u32 s{S_NONCE}, 0\ns_cbranch_scc1 {l1}')
        e(f's_add_u32 s{S_CNT}, s{S_CNT}, 1\ns_cmp_lt_u32 s{S_CNT}, {SPIN_MAX}\ns_cbranch_scc1 {l0}')
        self.label(l1)
        self.V.free(v, 2)

    def helper(self):
        e = self.e; V = self.V
        self.c('================= helper: x^T + LN1 stats')
        e('s_waitcnt lgkmcnt(0)')
        self.srd(R_DBG, S_DBG, 256)
        if self.o.get('hfirst', True): self.publish_nonce()
        self.srd(R_X, S_X, 2048*448*2)
        e(f's_mov_b32 s{S_TS+6}, s{S_M0}')
        e(f's_lshl_b32 s{S_T0}, s{S_XCD}, 2\ns_add_u32 s{S_HID}, s{S_J}, s{S_T0}')
        va = V.alloc(1); t0 = V.alloc(1); t1 = V.alloc(1)
        e(f's_lshl_b32 s{S_T0}, s{S_HID}, 6\ns_lshl_b32 s{S_T1}, s{S_W}, 4\ns_add_u32 s{S_T0}, s{S_T0}, s{S_T1}')
        e(f's_mul_i32 s{S_T2}, s{S_T0}, 896\ns_mul_i32 s{S_T3}, s{S_T1}, {HX_STRIDE}')
        e(f'v_lshlrev_b32 v{va}, 4, v1')
        e(f's_mov_b64 s[{S_M1}:{S_M1+1}], exec\ns_mov_b32 exec_lo, -1\ns_mov_b32 exec_hi, 0x00ffffff')
        for r in range(16):
            e(f's_add_u32 m0, s{S_T3}, {r*HX_STRIDE}\ns_add_u32 s{S_T4}, s{S_T2}, {r*896}')
            self.vmem(f'buffer_load_dwordx4 v{va}, s[{R_X}:{R_X+3}], s{S_T4} offen lds', 'x')
        e(f's_mov_b64 exec, s[{S_M1}:{S_M1+1}]')
        self.srds(skip=(R_X, R_DBG))
        self.stamp(0)
        vT = V.alloc(1); vO = V.alloc(1); vA = V.alloc(1)
        e(f'v_lshrrev_b32 v{t0}, 4, v1\nv_lshlrev_b32 v{t0}, 1, v{t0}\nv_bfe_u32 v{t1}, v1, 1, 1\nv_add_u32 v{t0}, v{t0}, v{t1}\nv_lshlrev_b32 v{t0}, 3, v{t0}')
        e(f'v_bfe_u32 v{t1}, v1, 2, 2\nv_add_u32 v{t0}, v{t0}, v{t1}\nv_mul_u32_u24 v{vT}, {HX_STRIDE}, v{t0}')
        e(f'v_and_b32 v{t1}, 1, v1\nv_lshl_add_u32 v{vT}, v{t1}, 3, v{vT}\ns_lshl_b32 s{S_T0}, s{S_W}, 4\nv_add_u32 v{vT}, s{S_T0}, v{vT}')
        e(f's_lshl_b32 s{S_T0}, s{S_W}, 15\ns_lshl_b32 s{S_T1}, s{S_HID}, 10\ns_add_u32 s{S_T0}, s{S_T0}, s{S_T1}\ns_add_u32 s{S_T0}, s{S_T0}, {WS_XT}\nv_lshl_add_u32 v{vO}, v1, 4, s{S_T0}')
        e(f'v_and_b32 v{t0}, 15, v1\nv_lshrrev_b32 v{t1}, 4, v1')
        e(f's_lshl_b32 s{S_T0}, s{S_W}, 4\nv_add_u32 v{t0}, s{S_T0}, v{t0}\nv_mul_u32_u24 v{vA}, {HX_STRIDE}, v{t0}\nv_lshl_add_u32 v{vA}, v{t1}, 4, v{vA}')
        e(f's_lshl_b32 s{S_T0}, s{S_HID}, 6\nv_add_u32 v{t0}, s{S_T0}, v{t0}')
        XG = self.o.get('xg', True)
        self.get_nonce()
        Q = V.alloc(56, 4)
        if not XG:
            e('s_barrier')
            self.stamp(3)
            for u in range(14):
                for k_ in range(2):
                    self.ds(f'ds_read_b64_tr_b16 {vr(Q+4*u+2*k_,2)}, v{vT} offset:{64*u + 4*k_*HX_STRIDE}', f'q{u}')
            for u in range(14):
                self.wait_lg(f'q{u}')
                e(f's_mov_b32 s{S_T1}, {u*4*32768}')
                self.vmem(f'buffer_store_dwordx4 {vr(Q+4*u,4)}, v{vO}, s[{R_WS}:{R_WS+3}], s{S_T1} offen sc1', 'xt')
            self.stamp(4)
        else: self.stamp(3)
        xa = V.alloc(56, 4)
        for s in range(14): self.ds(f'ds_read_b128 {vr(xa+4*s,4)}, v{vA} offset:{64*s}', f'x{s}')
        acc = V.alloc(8, 4); ones = V.alloc(4, 4)
        for i in range(4): e(f'v_mov_b32 v{ones+i}, 0x3f803f80')
        e(f's_mov_b32 s6, 0x22222222\ns_mov_b32 s7, 0x22222222\ns_mov_b32 s8, 0x44444444\ns_mov_b32 s9, 0x44444444\ns_mov_b32 s10, 0x88888888\ns_mov_b32 s11, 0x88888888\ns_mov_b32 s12, 0x00f0000f\ns_mov_b32 s13, 0xf0000f00')
        for s in range(14):
            self.wait_lg(f'x{s}')
            e(f'v_mfma_f32_16x16x32_bf16 {vr(acc,4)}, {vr(xa+4*s,4)}, {vr(xa+4*s,4)}, {"0" if s == 0 else vr(acc,4)}')
            e(f'v_mfma_f32_16x16x32_bf16 {vr(acc+4,4)}, {vr(ones,4)}, {vr(xa+4*s,4)}, {"0" if s == 0 else vr(acc+4,4)}')
        e(f'v_cndmask_b32 v{acc}, v{acc}, v{acc+1}, s[6:7]\nv_cndmask_b32 v{acc}, v{acc}, v{acc+2}, s[8:9]\nv_cndmask_b32 v{acc+5}, v{acc}, v{acc+3}, s[10:11]')
        e(f'v_mov_b32 v{acc}, v{acc+4}\nv_mov_b32 v{acc+4}, v{acc+5}')
        S = acc; Qs = acc + 4
        pk = V.alloc(2, 2)
        self.ln_finalize(S, Qs, acc + 1, acc + 2, acc + 3)
        e(f'v_lshrrev_b32 v{pk}, 16, v{acc+1}\nv_or_b32 v{pk}, v{pk}, v{acc+2}')
        self.stamp(5)
        if not XG:
            self.wait_all_vm()
            e('s_barrier')
        self.stamp(6)
        e(f'v_mov_b32 v{pk+1}, s{S_NONCE}')
        e(f'v_lshlrev_b32 v{t0}, 3, v{t0}')
        if WS_STATS: e(f'v_add_u32 v{t0}, {WS_STATS}, v{t0}')
        e(f's_mov_b64 s[{S_M1}:{S_M1+1}], exec\ns_mov_b64 exec, s[12:13]')
        self.vmem(f'buffer_store_dwordx2 {vr(pk,2)}, v{t0}, s[{R_WS}:{R_WS+3}], 0 offen sc1', 'st')
        e(f's_mov_b64 exec, s[{S_M1}:{S_M1+1}]')
        self.stamp(1)
        V.free(pk, 2); V.free(acc, 8); V.free(ones, 4); V.free(xa, 56); V.free(Q, 56); V.free(vT); V.free(vO); V.free(vA)
        e('s_barrier')
        if self.o.get('hcs', True):
            self.c('helper: column sums')
            wv = V.alloc(28 * 4, 4); cs = V.alloc(8, 2)
            lg = self.lab('hg'); ld = self.lab('hd')
            e(f'v_lshrrev_b32 v{t0}, 4, v0\nv_and_b32 v{t1}, 15, v0')
            e(f'v_mul_u32_u24 v{va}, 3584, v{t0}\nv_min_u32 v{t1}, 13, v{t1}\nv_lshl_add_u32 v{va}, v{t1}, 4, v{va}')
            e(f's_and_b32 s{S_T0}, s{S_HID}, 15\ns_mul_i32 s{S_T0}, s{S_T0}, 224')
            e(f'v_add_u32 v{va}, s{S_T0}, v{va}')
            e(f's_cmp_ge_u32 s{S_HID}, 16\ns_cbranch_scc1 {lg}')
            save = list(self.vm.q)
            for k in range(28):
                e(f's_mov_b32 s{S_T1}, {k*16*3584}')
                self.vmem(f'buffer_load_dwordx4 {vr(wv+4*k,4)}, v{va}, s[{R_WG}:{R_WG+3}], s{S_T1} offen', f'w{k}')
            e(f's_branch {ld}')
            self.label(lg)
            self.vm.q = list(save)
            for k in range(28):
                e(f's_mov_b32 s{S_T1}, {k*16*3584}')
                self.vmem(f'buffer_load_dwordx4 {vr(wv+4*k,4)}, v{va}, s[{R_WU}:{R_WU+3}], s{S_T1} offen', f'w{k}')
            self.label(ld)
            e(f's_mov_b32 s{S_T2}, 0x00003f80\ns_mov_b32 s{S_T3}, 0x3f800000')
            for i in range(8): e(f'v_mov_b32 v{cs+i}, 0')
            for k in range(28):
                self.wait_vm(f'w{k}')
                for r in range(4):
                    e(f'v_dot2_f32_bf16 v{cs+2*r}, v{wv+4*k+r}, s{S_T2}, v{cs+2*r}')
                    e(f'v_dot2_f32_bf16 v{cs+2*r+1}, v{wv+4*k+r}, s{S_T3}, v{cs+2*r+1}')
            tmp = V.alloc(8, 2)
            for swap in ('v_permlane32_swap_b32', 'v_permlane16_swap_b32'):
                for i in range(8): e(f'v_mov_b32 v{tmp+i}, v{cs+i}')
                for i in range(8): e(f'{swap} v{cs+i}, v{tmp+i}')
                for i in range(8): e(f'v_add_f32 v{cs+i}, v{cs+i}, v{tmp+i}')
            e(f'v_and_b32 v{t1}, 15, v1\nv_lshlrev_b32 v{t0}, 5, v{t1}\ns_lshl_b32 s{S_T0}, s{S_W}, 9\nv_add_u32 v{t0}, s{S_T0}, v{t0}')
            self.ds(f'ds_write_b128 v{t0}, {vr(cs,4)}'); self.ds(f'ds_write_b128 v{t0}, {vr(cs+4,4)} offset:16')
            self.wait_all_lg(); e('s_barrier')
            e(f'v_lshlrev_b32 v{t0}, 2, v0')
            for w in range(4): self.ds(f'ds_read_b32 v{tmp+w}, v{t0} offset:{512*w}')
            self.wait_all_lg()
            e(f'v_add_f32 v{tmp}, v{tmp}, v{tmp+1}\nv_add_f32 v{tmp+2}, v{tmp+2}, v{tmp+3}\nv_add_f32 v{tmp}, v{tmp}, v{tmp+2}')
            e(f's_mul_i32 s{S_T0}, s{S_HID}, 448\ns_add_u32 s{S_T0}, s{S_T0}, {WS_CS}\nv_add_u32 v{t0}, s{S_T0}, v{t0}')
            e(f'v_cmp_gt_u32 vcc, 112, v0\ns_and_saveexec_b64 s[{S_M1}:{S_M1+1}], vcc')
            lx = self.lab('hcs')
            e(f's_cbranch_execz {lx}')
            e(f'buffer_store_dword v{tmp}, v{t0}, s[{R_WS}:{R_WS+3}], 0 offen sc1')
            self.label(lx)
            e(f's_mov_b64 exec, s[{S_M1}:{S_M1+1}]')
            V.free(tmp, 8); V.free(cs, 8); V.free(wv, 112)
            self.wait_all_vm(); e('s_barrier')
            self.signal(WS_FLAG2, 's2')
            self.stamp(10)
        tw = self.o.get('touch_wd', 'mall')
        if tw:
            nl = 13 if tw == 'l2' else 2
            tv = V.alloc(13); ta = V.alloc(2)
            if tw == 'l2': e(f's_mul_i32 s{S_T0}, s{S_J}, {448*896}')
            else: e(f's_mul_i32 s{S_T0}, s{S_HID}, {56*896}')
            for k in range(nl):
                e(f'v_add_u32 v{ta}, {256*k}, v0\nv_min_u32 v{ta}, {3135 if tw == "l2" else 391}, v{ta}\nv_mul_u32_u24 v{ta+1}, 9363, v{ta}\nv_lshrrev_b32 v{ta+1}, 16, v{ta+1}')
                e(f'v_mul_u32_u24 v{tv+k}, 7, v{ta+1}\nv_sub_u32 v{ta}, v{ta}, v{tv+k}\nv_mul_u32_u24 v{ta+1}, 896, v{ta+1}\nv_lshl_add_u32 v{ta+1}, v{ta}, 7, v{ta+1}')
                e(f'buffer_load_dword v{tv+k}, v{ta+1}, s[{R_WD}:{R_WD+3}], s{S_T0} offen')
            self.wait_all_vm()
            V.free(tv, 13); V.free(ta, 2)
        self.c('helper: LN2 stats + hD')
        vD = V.alloc(1); vB = V.alloc(2); vS = V.alloc(1); vHs = V.alloc(1)
        e(f'v_lshrrev_b32 v{t0}, 3, v1\nv_mul_u32_u24 v{vD}, {HT_STRIDE}, v{t0}\nv_bfe_u32 v{t0}, v1, 4, 1\nv_lshlrev_b32 v{t0}, 2, v{t0}\nv_and_b32 v{t1}, 7, v1\nv_xor_b32 v{t0}, v{t0}, v{t1}\nv_lshl_add_u32 v{vD}, v{t0}, 4, v{vD}')
        e(f's_lshl_b32 s{S_T0}, s{S_HID}, 7\ns_mul_i32 s{S_T1}, s{S_W}, {8*HT_STRIDE}\ns_add_u32 s{S_T0}, s{S_T0}, s{S_T1}\ns_add_u32 s{S_T0}, s{S_T0}, {WS_HT}\nv_add_u32 v{vD}, s{S_T0}, v{vD}')
        e(f'v_lshrrev_b32 v{t0}, 5, v1\nv_lshlrev_b32 v{vB}, 9, v{t0}\nv_bfe_u32 v{t0}, v1, 2, 2\nv_lshl_add_u32 v{vB}, v{t0}, 7, v{vB}')
        e(f'v_bfe_u32 v{t0}, v1, 4, 1\nv_lshl_add_u32 v{vB}, v{t0}, 5, v{vB}\nv_and_b32 v{t0}, 3, v1\nv_lshl_add_u32 v{vB}, v{t0}, 3, v{vB}')
        e(f'v_bfe_u32 v{t0}, v1, 3, 1\nv_lshlrev_b32 v{t0}, 6, v{t0}\nv_xor_b32 v{t1}, 64, v{t0}\nv_add_u32 v{vB+1}, v{vB}, v{t1}\nv_add_u32 v{vB}, v{vB}, v{t0}')
        e(f'v_lshrrev_b32 v{t0}, 4, v1\nv_lshlrev_b32 v{vS}, 9, v{t0}\nv_bfe_u32 v{t0}, v1, 2, 2\nv_lshl_add_u32 v{vS}, v{t0}, 7, v{vS}\nv_and_b32 v{t0}, 3, v1\nv_lshl_add_u32 v{vS}, v{t0}, 3, v{vS}')
        e(f'v_bfe_u32 v{t0}, v1, 3, 1\ns_lshr_b32 s{S_T0}, s{S_W}, 1\nv_xor_b32 v{t0}, s{S_T0}, v{t0}\nv_lshl_add_u32 v{vS}, v{t0}, 6, v{vS}\ns_and_b32 s{S_T0}, s{S_W}, 1\ns_lshl_b32 s{S_T0}, s{S_T0}, 5\nv_add_u32 v{vS}, s{S_T0}, v{vS}')
        e(f's_mul_i32 s{S_T0}, s{S_HID}, {2*28}\ns_add_u32 s{S_T0}, s{S_T0}, s{S_W}\ns_lshl_b32 s{S_T0}, s{S_T0}, 10\ns_add_u32 s{S_T0}, s{S_T0}, {WS_HD}\nv_lshl_add_u32 v{vHs}, v1, 4, s{S_T0}')
        ones = V.alloc(4, 4); SG = V.alloc(8, 4); SB = V.alloc(56, 4)
        for i in range(4): e(f'v_mov_b32 v{ones+i}, 0x3f803f80')
        K1, K2, K3 = 6, 8, 10
        e(f's_mov_b32 s{K1}, 0x22222222\ns_mov_b32 s{K1+1}, 0x22222222\ns_mov_b32 s{K2}, 0x44444444\ns_mov_b32 s{K2+1}, 0x44444444')
        e(f's_mov_b32 s{K3}, 0x88888888\ns_mov_b32 s{K3+1}, 0x88888888\ns_mov_b32 s12, 0x00f0000f\ns_mov_b32 s13, 0xf0000f00')
        if self.o.get('sentinel', True):
            self.poll_flags(WS_FLAG2 + (255 if self.o.get('hfirst', True) else 223)*FLAG_STRIDE, 1, 1, sleep=self.o.get('hsleep', 20))
        self.poll_flags(WS_FLAG2 + (32 if self.o.get('hfirst', True) else 0)*FLAG_STRIDE, 64, 4, last_lanes=32, sleep=self.o.get('hsleep2', 4))
        self.vm.drain(); self.lg.drain()
        self.stamp(7)
        e(f's_lshl_b32 s{S_T2}, s{S_W}, 10')
        for i in range(14):
            e(f's_add_u32 m0, s{S_T2}, {i*4096}\ns_mov_b32 s{S_T1}, {i*32*HT_STRIDE}')
            self.vmem(f'buffer_load_dwordx4 v{vD}, s[{R_WS}:{R_WS+3}], s{S_T1} offen sc1 lds', 'h')
        self.wait_all_vm(); e('s_barrier')
        self.stamp(8)
        for i in range(14):
            for h_ in range(2): self.ds(f'ds_read_b64_tr_b16 {vr(SB+4*i+2*h_,2)}, v{vS} offset:{i*4096 + 2048*h_}', f's{i}')
        for i in range(14):
            self.wait_lg(f's{i}')
            e(f'v_mfma_f32_16x16x32_bf16 {vr(SG,4)}, {vr(SB+4*i,4)}, {vr(SB+4*i,4)}, {"0" if i == 0 else vr(SG,4)}')
            e(f'v_mfma_f32_16x16x32_bf16 {vr(SG+4,4)}, {vr(ones,4)}, {vr(SB+4*i,4)}, {"0" if i == 0 else vr(SG+4,4)}')
        HB = V.alloc(56, 4)
        e(f'v_cndmask_b32 v{SG}, v{SG}, v{SG+1}, s[{K1}:{K1+1}]\nv_cndmask_b32 v{SG}, v{SG}, v{SG+2}, s[{K2}:{K2+1}]\nv_cndmask_b32 v{SG+5}, v{SG}, v{SG+3}, s[{K3}:{K3+1}]')
        self.ln_finalize(SG + 4, SG + 5, SG + 1, SG + 2, SG + 3)
        e(f'v_lshrrev_b32 v{SG}, 16, v{SG+1}\nv_or_b32 v{SG}, v{SG}, v{SG+2}\nv_mov_b32 v{SG+1}, s{S_NONCE}')
        e(f'v_and_b32 v{t0}, 15, v1\ns_lshl_b32 s{S_T0}, s{S_HID}, 6\ns_lshl_b32 s{S_T1}, s{S_W}, 4\ns_add_u32 s{S_T0}, s{S_T0}, s{S_T1}\nv_add_u32 v{t0}, s{S_T0}, v{t0}\nv_lshlrev_b32 v{t0}, 3, v{t0}\nv_add_u32 v{t0}, {WS_STATS2}, v{t0}')
        e(f's_mov_b64 s[{S_M1}:{S_M1+1}], exec\ns_mov_b64 exec, s[12:13]')
        self.vmem(f'buffer_store_dwordx2 {vr(SG,2)}, v{t0}, s[{R_WS}:{R_WS+3}], 0 offen sc1', 'st2')
        e(f's_mov_b64 exec, s[{S_M1}:{S_M1+1}]')
        self.stamp(9)
        e(f's_lshl_b32 s{S_T0}, s{S_W}, 11\nv_add_u32 v{vB}, s{S_T0}, v{vB}\nv_add_u32 v{vB+1}, s{S_T0}, v{vB+1}')
        for i in range(7):
            for gp in range(2):
                for h_ in range(2):
                    self.ds(f'ds_read_b64_tr_b16 {vr(HB+8*i+4*gp+2*h_,2)}, v{vB+gp} offset:{i*8192 + 1024*h_}', f'hb{i}_{gp}')
        for i in range(7):
            for gp in range(2):
                self.wait_lg(f'hb{i}_{gp}')
                e(f's_mov_b32 s{S_T1}, {(gp*28 + 4*i)*1024}')
                self.vmem(f'buffer_store_dwordx4 {vr(HB+8*i+4*gp,4)}, v{vHs}, s[{R_WS}:{R_WS+3}], s{S_T1} offen sc1', 'hd')
        self.wait_all_vm(); e('s_barrier')
        e(f's_lshr_b32 s{S_T1}, s{S_HID}, 1\ns_lshl_b32 s{S_T1}, s{S_T1}, 4\ns_and_b32 s{S_T2}, s{S_HID}, 1\ns_add_u32 s{S_T1}, s{S_T1}, s{S_T2}\ns_add_u32 s{S_T1}, s{S_T1}, 14')
        self.signal(WS_FLAG3, f's{S_T1}')
        self.stamp(2)
        self.stamps_out()
        e('s_branch L_end')

    def signal(self, base, sidx):
        e = self.e; V = self.V
        lab = self.lab('sig')
        e(f's_cmp_lg_u32 s{S_W}, 0\ns_cbranch_scc1 {lab}')
        v = V.alloc(2, 2)
        e(f's_mul_i32 s{S_T0}, {sidx}, {FLAG_STRIDE}\ns_add_u32 s{S_T0}, s{S_T0}, {base}')
        e(f'v_mov_b32 v{v}, s{S_NONCE}\nv_mov_b32 v{v+1}, s{S_T0}')
        e(f's_mov_b64 s[{S_M1}:{S_M1+1}], exec\ns_mov_b64 exec, 1')
        e(f'buffer_store_dword v{v}, v{v+1}, s[{R_WS}:{R_WS+3}], 0 offen sc1')
        e(f's_mov_b64 exec, s[{S_M1}:{S_M1+1}]')
        V.free(v, 2)
        self.label(lab)

    def rbf(self, d, s, pre=''):
        self.e(f'v_cvt_pk_bf16_f32 v{d}, v{s}, v{s}\nv_lshlrev_b32 v{d}, 16, v{d}')
    def ln_finalize(self, S, Q, dm, ds_, dt):
        e = self.e
        e(f'v_mul_f32 v{S}, {fx(1/448)}, v{S}')
        e(f'v_mul_f32 v{Q}, {fx(1/448)}, v{Q}')
        e(f'v_fma_f32 v{Q}, -v{S}, v{S}, v{Q}')
        e(f'v_max_f32 v{Q}, 0, v{Q}')
        self.rbf(dm, S)
        self.rbf(dt, Q)
        e(f'v_add_f32 v{dt}, {fx(1e-5)}, v{dt}')
        self.rbf(dt, dt)
        e(f'v_sqrt_f32 v{dt}, v{dt}')
        self.rbf(ds_, dt)

    def w1_setup(self):
        e = self.e; V = self.V
        self.vW1 = V.alloc(1); self.vTS = V.alloc(5)
        t = V.alloc(1); t2 = V.alloc(1)
        e(f'v_lshrrev_b32 v{t}, 4, v1\nv_mul_u32_u24 v{self.vW1}, 3584, v{t}\nv_lshlrev_b32 v{t}, 2, v{t}\nv_and_b32 v{t2}, 15, v1\nv_xor_b32 v{t}, v{t}, v{t2}\nv_lshl_add_u32 v{self.vW1}, v{t}, 4, v{self.vW1}')
        e(f's_lshl_b32 s{S_T0}, s{S_FB}, 8\ns_mul_i32 s{S_T1}, s{S_W}, {4*3584}\ns_add_u32 s{S_T0}, s{S_T0}, s{S_T1}\nv_add_u32 v{self.vW1}, s{S_T0}, v{self.vW1}')
        e(f's_lshl_b32 s{S_WM}, s{S_W}, 10\ns_add_u32 s{S_WM}, s{S_WM}, {L_STG}')
        a = self.vTS
        e(f'v_lshrrev_b32 v{t}, 5, v1\nv_lshlrev_b32 v{a}, 10, v{t}\nv_bfe_u32 v{t}, v1, 2, 2\nv_lshl_add_u32 v{a}, v{t}, 8, v{a}')
        e(f'v_xor_b32 v{t}, s{S_W}, v{t}\nv_lshl_add_u32 v{a}, v{t}, 6, v{a}')
        e(f'v_bfe_u32 v{t}, v1, 4, 1\nv_lshl_add_u32 v{a}, v{t}, 5, v{a}\nv_and_b32 v{t}, 3, v1\nv_lshl_add_u32 v{a}, v{t}, 3, v{a}')
        e(f'v_add_u32 v{a+1}, {L_STGX}, v{a}\nv_add_u32 v{a+2}, {L_STG + 65536}, v{a}\nv_add_u32 v{a+3}, 57344, v{a}\nv_mov_b32 v{a+4}, v{a}\nv_add_u32 v{a}, {L_STG}, v{a}')
        for q in range(4):
            e(f's_add_u32 s{S_T0}, s{S_ROT}, {q}\ns_and_b32 s{S_T0}, s{S_T0}, 3\ns_mul_i32 s{S_Q0+q}, s{S_T0}, {7*16*3584}')
        V.free(t); V.free(t2)
    @property
    def W1SLOT(self):
        if self.o.get('xg', True):
            if self.o.get('wsched', 'B') == 'B': return [0,1,2, 3,4,5,6,7,8,9, 0,1,2, 3,4,5,6,7,8,9, 10,11, 12,13,14,15,16,17]
            return [0,1,2,3,4, 5,6,7,8,9, 0,1,2,3, 4,5,6,7,8,9, 10,11, 12,13,14,15,16,17]
        return [0,1,2,3,4, 5,6,7,8,9, 0,1,2,3,4, 0,1,2,3,5,6,7,8,9, 10,11,12,13]
    def w1_slot_off(self, k):
        s = self.W1SLOT[k]
        return s * STG_SLOT if s < 9 else (L_STGX - L_STG if s == 9 else (57344 + (s - 10)*STG_SLOT - L_STG if s < 12 else (s - 12)*STG_SLOT - L_STG))
    def w1_dma(self, k, tag, slot=None):
        e = self.e; sl = self.w1_slot_off(k)
        def m0(x): return f's_add_u32 m0, s{S_WM}, {x}' if x >= 0 else f's_sub_u32 m0, s{S_WM}, {-x}'
        return [lambda: e(f's_add_u32 s{S_WO}, s{S_Q0 + k // 7}, {(k % 7)*16*3584}'),
                lambda: e(m0(sl)),
                lambda: self.vmem(f'buffer_load_dwordx4 v{self.vW1}, s[{R_WG}:{R_WG+3}], s{S_WO} offen lds', tag),
                lambda: e(m0(sl + 4096)),
                lambda: self.vmem(f'buffer_load_dwordx4 v{self.vW1}, s[{R_WU}:{R_WU+3}], s{S_WO} offen lds', tag)]
    def w1_issue(self, k0, k1, tag):
        for k in range(k0, k1):
            for f in self.w1_dma(k, tag): f()
    def w1_reads(self, k):
        s = self.W1SLOT[k]
        if s == 9: a, sl = self.vTS + 1, 0
        elif s >= 12: a, sl = self.vTS + 4, (s - 12) * STG_SLOT
        elif s >= 10: a, sl = self.vTS + 3, (s - 10) * STG_SLOT
        else: a, sl = self.vTS, s * STG_SLOT
        assert sl + 6144 < 65536 + 8192
        out = []
        for q in range(4):
            off = sl + 2048 * q
            aa = a
            if off >= 65536: aa, off = self.vTS + 2, off - 65536
            out.append(lambda q=q, aa=aa, off=off: self.ds(f'ds_read_b64_tr_b16 {ar(8*k+2*q,2)}, v{aa} offset:{off}', 'w1r'))
        return out
    def w1_read(self, k0, k1):
        for k in range(k0, k1):
            for f in self.w1_reads(k): f()

    def phaseA(self):
        e = self.e; V = self.V; o = self.o
        self.c('================= phase A')
        par = V.alloc(6); t0 = V.alloc(1); t1 = V.alloc(1)
        e(f's_lshl_b32 s{S_T1}, s{S_CP}, 10\nv_lshl_add_u32 v{t0}, v0, 2, s{S_T1}\ns_lshl_b32 s{S_T0}, s{S_CP}, 2')
        e('s_waitcnt lgkmcnt(0)')
        for i, sp in enumerate((S_ARE, S_AIM, S_BRE, S_BIM, S_CRE, S_CIM)):
            self.vmem(f'global_load_dword v{par+i}, v{t0}, s[{sp}:{sp+1}]', 'par')
        e(f's_load_dword s{S_LD}, s[{S_LDT}:{S_LDT+1}], s{S_T0}\ns_load_dword s{S_DK}, s[{S_DSK}:{S_DSK+1}], s{S_T0}')
        self.srds()
        if not o.get('hfirst', True): self.publish_nonce()
        e(f's_mov_b32 s{S_TS+6}, s{S_M0}')
        self.stamp(0)
        XG = o.get('xg', True)
        xg = V.alloc(8); xa0 = V.alloc(1); xa1 = V.alloc(1)
        e(f's_lshl_b32 s{S_T0}, s{S_CP}, 2\nv_mul_u32_u24 v{xa0}, 7168, v0\nv_add_u32 v{xa0}, s{S_T0}, v{xa0}\nv_add_u32 v{xa1}, 4480, v{xa0}')
        def xgather(k):
            if k < 5: self.vmem(f'buffer_load_dword v{xg+k}, v{xa0}, s[{R_X}:{R_X+3}], 0 offen offset:{896*k}', 'xg')
            else: self.vmem(f'buffer_load_dword v{xg+k}, v{xa1}, s[{R_X}:{R_X+3}], 0 offen offset:{896*(k-5)}', 'xg')
        self.xgather = xgather
        tch = V.alloc(6, 2); self.tch = tch
        if o.get('touch_x', False):
            e(f's_lshl_b32 s{S_T0}, s{S_J}, 6\ns_lshl_b32 s{S_T1}, s{S_W}, 4\ns_add_u32 s{S_T0}, s{S_T0}, s{S_T1}')
            e(f'v_add_u32 v{tch}, s{S_T0}, v1\nv_mul_u32_u24 v{tch+1}, 9363, v{tch}\nv_lshrrev_b32 v{tch+1}, 16, v{tch+1}')
            e(f'v_mul_u32_u24 v{tch+2}, 7, v{tch+1}\nv_sub_u32 v{tch}, v{tch}, v{tch+2}\ns_lshl_b32 s{S_T0}, s{S_XCD}, 8\nv_add_u32 v{tch+1}, s{S_T0}, v{tch+1}')
            e(f'v_mul_u32_u24 v{tch+1}, 896, v{tch+1}\nv_lshl_add_u32 v{tch+1}, v{tch}, 7, v{tch+1}')
            e(f's_mov_b64 s[{S_M1}:{S_M1+1}], exec\ns_mov_b64 exec, 0xffff')
            self.vmem(f'buffer_load_dword v{tch+3}, v{tch+1}, s[{R_X}:{R_X+3}], 0 offen', 'tx')
            e(f's_mov_b64 exec, s[{S_M1}:{S_M1+1}]')
        self.map_bc()
        if o.get('touch_w1', False):
            e(f'v_mul_u32_u24 v{t1}, 4682, v0\nv_lshrrev_b32 v{t1}, 16, v{t1}\nv_mul_u32_u24 v{tch}, 14, v{t1}\nv_sub_u32 v{tch}, v0, v{tch}')
            e(f's_lshl_b32 s{S_T0}, s{S_J}, 4\nv_add_u32 v{t1}, s{S_T0}, v{t1}\nv_mul_u32_u24 v{t1}, 3584, v{t1}\nv_lshl_add_u32 v{t1}, v{tch}, 7, v{t1}')
            e(f's_and_b32 s{S_T0}, s{S_XCD}, 1\ns_mul_i32 s{S_T0}, s{S_T0}, 1792\nv_add_u32 v{t1}, s{S_T0}, v{t1}')
            e(f'v_cmp_gt_u32 vcc, 224, v0\ns_and_saveexec_b64 s[{S_M1}:{S_M1+1}], vcc')
            la = self.lab('tw'); e(f's_cbranch_execz {la}')
            self.vmem(f'buffer_load_dword v{tch}, v{t1}, s[{R_WG}:{R_WG+3}], 0 offen', 'tw')
            self.vmem(f'buffer_load_dword v{tch+1}, v{t1}, s[{R_WU}:{R_WU+3}], 0 offen', 'tw')
            self.label(la); e(f's_mov_b64 exec, s[{S_M1}:{S_M1+1}]')
        self.w1_setup()
        TW = o.get('touch_w1', False)
        if XG:
            for k in range(o.get('xg0', 4)): xgather(k)
        elif not TW: self.w1_issue(0, o.get('w0', 2), 'wa')
        self.stamp(1)
        ga = V.alloc(12, 2)
        self.ga = ga
        e(f'v_lshlrev_b32 v{t0}, 3, v0\nv_sub_u32 v{t0}, 2048, v{t0}')
        for k in range(1, 12):
            e(f'v_subrev_u32 v{ga+k-1}, {k}, v{t0}')
        e(f'v_mov_b32 v{ga+11}, 0')
        tt = V.alloc(2, 2)
        for k in range(0, 12, 2):
            a, b = ga + k, ga + k + 1
            e(f'v_max_i32 v{tt}, 0, v{a}\nv_max_i32 v{tt+1}, 0, v{b}')
            e(f'v_cvt_f32_u32 v{tt}, v{tt}\nv_cvt_f32_u32 v{tt+1}, v{tt+1}')
            e(f'v_cvt_pk_bf16_f32 v{t1}, v{tt}, v{tt+1}')
            e(f'v_lshlrev_b32 v{tt}, 16, v{t1}\nv_and_b32 v{tt+1}, 0xffff0000, v{t1}')
            e(f'v_cvt_u32_f32 v{tt}, v{tt}\nv_cvt_u32_f32 v{tt+1}, v{tt+1}')
            for x, r in ((tt, a), (tt + 1, b)):
                e(f'v_lshrrev_b32 v{t1}, 3, v{x}\nv_add_u32 v{x}, v{x}, v{t1}')
                if k >= 8:
                    e(f'v_cmp_gt_i32 vcc, 0, v{r}\nv_mov_b32 v{t1}, 2320\nv_cndmask_b32 v{x}, v{x}, v{t1}, vcc')
                e(f'v_lshlrev_b32 v{x}, 2, v{x}\nv_add_u32 v{r}, {L_K32}, v{x}')
        V.free(tt, 2)
        e('s_waitcnt lgkmcnt(0)'); self.lg.drain()
        e(f's_lshr_b32 s{S_T0}, s{S_W}, 1\ns_lshl_b32 s{S_T0}, s{S_T0}, 4')
        e(f's_lshr_b32 s{S_LD}, s{S_LD}, s{S_T0}\ns_lshl_b32 s{S_LD}, s{S_LD}, 16')
        e(f's_lshr_b32 s{S_DK}, s{S_DK}, s{S_T0}\ns_lshl_b32 s{S_DK}, s{S_DK}, 16')
        dt = V.alloc(2, 2); tt = V.alloc(2, 2)
        L_hi = struct.unpack('<f', struct.pack('<f', LOG2E))[0]; L_lo = LOG2E - L_hi
        e(f'v_mov_b32 v{dt}, s{S_LD}\nv_mul_f32 v{tt}, {fx(L_hi)}, v{dt}')
        e(f's_mov_b32 s{S_T1}, {fx(L_hi)}')
        e(f'v_fma_f32 v{tt+1}, v{dt}, s{S_T1}, -v{tt}\nv_fmac_f32 v{tt+1}, {fx(L_lo)}, v{dt}')
        e(f'v_exp_f32 v{tt}, v{tt}\nv_mul_f32 v{tt+1}, {fx(math.log(2))}, v{tt+1}')
        e(f'v_fma_f32 v{dt}, v{tt}, v{tt+1}, v{tt}')
        self.rbf(dt, dt)
        V.free(tt, 2)
        nx0 = o.get('xg0', 4)
        if XG and o.get('xgmid', False): xgather(nx0); nx0 += 1
        ka = self.kgen_setup()
        cv = self.conv_setup()
        xo = V.alloc(1)
        e(f's_lshr_b32 s{S_T0}, s{S_CP}, 2\ns_lshl_b32 s{S_T0}, s{S_T0}, 15\ns_and_b32 s{S_T1}, s{S_CP}, 3\ns_lshl_b32 s{S_T1}, s{S_T1}, 5\ns_add_u32 s{S_T0}, s{S_T0}, s{S_T1}\ns_add_u32 s{S_T0}, s{S_T0}, {WS_XT}\nv_lshl_add_u32 v{xo}, v0, 7, s{S_T0}')
        sa = V.alloc(1); nv = V.alloc(2, 2); lp = V.alloc(2, 2)
        e(f'v_lshlrev_b32 v{sa}, 6, v0\nv_mov_b32 v{nv+1}, 0')
        e(f'v_and_b32 v{lp+1}, 31, v1\nv_lshlrev_b32 v{lp+1}, 7, v{lp+1}\ns_lshl_b32 s{S_T0}, s{S_W}, 12\ns_add_u32 s{S_T0}, s{S_T0}, {WS_STATS + 4}\nv_add_u32 v{lp+1}, s{S_T0}, v{lp+1}')
        if WS_STATS: e(f'v_add_u32 v{sa}, {WS_STATS}, v{sa}')
        xs = list(range(nx0, 8))
        if XG and xs: xgather(xs.pop(0))
        self.wait_vm('par')
        self.stamp(2)
        save_lines = self.lines; self.lines = []
        sc = V.alloc(12, 2)
        e(f'v_lshlrev_b32 v{sc+4}, 16, v{par+2}\nv_and_b32 v{sc+6}, 0xffff0000, v{par+2}')
        e(f'v_lshlrev_b32 v{sc+5}, 16, v{par+3}\nv_and_b32 v{sc+7}, 0xffff0000, v{par+3}')
        e(f'v_lshlrev_b32 v{sc+8}, 16, v{par+4}\nv_and_b32 v{sc+10}, 0xffff0000, v{par+4}')
        e(f'v_lshlrev_b32 v{sc+9}, 16, v{par+5}\nv_and_b32 v{sc+11}, 0xffff0000, v{par+5}')
        e(f'v_lshlrev_b32 v{sc}, 16, v{par}\nv_and_b32 v{sc+1}, 0xffff0000, v{par}')
        e(f'v_lshlrev_b32 v{sc+2}, 16, v{par+1}\nv_and_b32 v{sc+3}, 0xffff0000, v{par+1}')
        V.free(par, 6)
        for i in (4, 5, 6, 7, 0, 1, 2, 3): e(f'v_mul_f32 v{sc+i}, v{dt}, v{sc+i}')
        V.free(dt, 2)
        Q = lambda: V.alloc(4, 4)
        tq = Q(); pkt = V.alloc(4, 2); npk = [0]
        def qmul(d, a, b):
            self.cmul_multi([(d, a, b, None), (d + 2, a + 2, b + 2, None)])
        CB = Q()
        qmul(CB, sc + 8, sc + 4)
        mx = V.alloc(2, 2)
        e(f'v_max_f32 v{mx}, |v{CB}|, |v{CB+1}|\nv_max_f32 v{mx+1}, |v{CB+2}|, |v{CB+3}|')
        e(f'v_mul_f32 v{sc}, {fx(LOG2E)}, v{sc}\nv_mul_f32 v{sc+1}, {fx(LOG2E)}, v{sc+1}')
        e(f'v_max_f32 v{mx}, v{mx}, v{mx+1}')
        e(f'v_mul_f32 v{sc+2}, {fx(1/(2*math.pi))}, v{sc+2}\nv_mul_f32 v{sc+3}, {fx(1/(2*math.pi))}, v{sc+3}')
        for mod in ('quad_perm:[1,0,3,2]', 'quad_perm:[2,3,0,1]', 'row_half_mirror', 'row_mirror'):
            e(f'v_max_f32_dpp v{mx}, v{mx}, v{mx} {mod} row_mask:0xf bank_mask:0xf')
        for swap in ('v_permlane16_swap_b32', 'v_permlane32_swap_b32'):
            e(f'v_mov_b32 v{mx+1}, v{mx}\n{swap} v{mx}, v{mx+1}\nv_max_f32 v{mx}, v{mx}, v{mx+1}')
        e(f'v_readfirstlane_b32 s{S_T0}, v{mx}')
        e(f's_lshr_b32 s{S_T0}, s{S_T0}, 23\ns_max_u32 s{S_T0}, s{S_T0}, 14\ns_min_u32 s{S_T0}, s{S_T0}, 254')
        e(f's_sub_u32 s{S_T1}, 267, s{S_T0}\ns_lshl_b32 s{S_T1}, s{S_T1}, 23\ns_sub_u32 s{S_US}, s{S_T0}, 13\ns_lshl_b32 s{S_US}, s{S_US}, 23')
        V.free(mx, 2)
        if XG:
            if xs: xgather(xs.pop(0))
        elif not TW: self.w1_issue(o.get('w0', 2), 5, 'wa2')
        def direct(dst, ex):
            for m in range(2):
                if ex == 1:
                    e(f'v_exp_f32 v{tq+m}, v{sc+m}\nv_fract_f32 v{tq+2+m}, v{sc+2+m}')
                else:
                    e(f'v_mul_f32 v{tq+m}, {fx(float(ex))}, v{sc+m}\nv_mul_f32 v{tq+2+m}, {fx(float(ex))}, v{sc+2+m}')
            if ex != 1:
                for m in range(2): e(f'v_exp_f32 v{tq+m}, v{tq+m}\nv_fract_f32 v{tq+2+m}, v{tq+2+m}')
            for m in range(2):
                e(f'v_cos_f32 v{dst+2*m}, v{tq+2+m}\nv_sin_f32 v{dst+2*m+1}, v{tq+2+m}')
            for m in range(2):
                e(f'v_mul_f32 v{dst+2*m}, v{tq+m}, v{dst+2*m}\nv_mul_f32 v{dst+2*m+1}, v{tq+m}, v{dst+2*m+1}')
        wa = V.alloc(1)
        e(f'v_and_b32 v{wa}, 127, v0\nv_lshlrev_b32 v{wa}, 3, v{wa}\ns_lshr_b32 s{S_T0}, s{S_W}, 1\ns_mul_i32 s{S_T0}, s{S_T0}, {TBL_C}\nv_add_u32 v{wa}, s{S_T0}, v{wa}')
        def put(q, ent, conj=False):
            p = pkt + 2 * (npk[0] & 1); npk[0] += 1
            n = '-' if conj else ''
            e(f'v_cvt_pk_f16_f32 v{p}, v{q}, {n}v{q+1}\nv_cvt_pk_f16_f32 v{p+1}, v{q+2}, {n}v{q+3}')
            self.ds(f'ds_write_b64 v{wa}, {vr(p,2)} offset:{ent*TBL_E}')
        one = V.alloc(2, 2)
        e(f'v_mov_b32 v{one}, 0x3c00\nv_mov_b32 v{one+1}, 0x3c00')
        for ent in (0, 4, 12): self.ds(f'ds_write_b64 v{wa}, {vr(one,2)} offset:{ent*TBL_E}')
        V.free(one, 2)
        z1 = Q(); z2 = Q(); z3 = Q(); z4 = Q(); CS = Q()
        direct(z1, 1); put(z1, 1)
        for m in range(4): e(f'v_mul_f32 v{CS+m}, s{S_T1}, v{CB+m}')
        put(CS, 8, True)
        qmul(z2, z1, z1); put(z2, 2)
        qmul(z3, z2, z1); put(z3, 3)
        qmul(z4, z2, z2); put(z4, 5)
        qmul(z1, z4, z4); put(z1, 6)
        qmul(z2, z1, z4); put(z2, 7)
        qmul(z3, z1, z1); put(z3, 16)
        qmul(z1, z3, z3)
        qmul(z4, CS, z1); put(z4, 9, True)
        qmul(z2, z1, z1)
        qmul(z4, CS, z2); put(z4, 10, True)
        qmul(z3, z2, z1)
        qmul(z4, CS, z3); put(z4, 11, True)
        qmul(z1, z2, z2); put(z1, 13, True)
        qmul(z2, z1, z1); put(z2, 14, True)
        qmul(z3, z2, z1); put(z3, 15, True)
        qmul(z1, z2, z2); put(z1, 17, True)
        if XG and xs: xgather(xs.pop(0))
        self.xs = xs
        qmul(z2, z1, z1)
        qmul(z3, z2, z2)
        c48 = V.alloc(2, 2)
        e(f'v_mul_f32 v{c48}, v{CB}, v{z3}\nv_fma_f32 v{c48}, -v{CB+1}, v{z3+1}, v{c48}')
        e(f'v_fmac_f32 v{c48}, v{CB+2}, v{z3+2}\nv_fma_f32 v{c48}, -v{CB+3}, v{z3+3}, v{c48}')
        for q in (z1, z2, z3, z4, CB, CS, tq): V.free(q, 4)
        V.free(sc, 12); V.free(wa); V.free(pkt, 4)
        for mod in ('quad_perm:[1,0,3,2]', 'quad_perm:[2,3,0,1]', 'row_half_mirror', 'row_mirror'):
            e(f'v_add_f32_dpp v{c48}, v{c48}, v{c48} {mod} row_mask:0xf bank_mask:0xf')
        for swap in ('v_permlane16_swap_b32', 'v_permlane32_swap_b32'):
            e(f'v_mov_b32 v{c48+1}, v{c48}\n{swap} v{c48}, v{c48+1}\nv_add_f32 v{c48}, v{c48}, v{c48+1}')
        fl = self.lines; self.lines = save_lines
        self.lines.extend(resched(fl) if o.get('resched', True) else fl)
        if not TW and not XG: self.wait_vm('wa')
        self.wait_all_lg(); e('s_barrier')
        self.stamp(3)
        sg = V.alloc(16, 4); XP = V.alloc(8, 4)
        def light_loads(model=True):
            a = f'buffer_load_dword v{nv}, v{nv+1}, s[{R_DBG}:{R_DBG+3}], 0 offen sc1'
            b = f'buffer_load_dword v{lp}, v{lp+1}, s[{R_WS}:{R_WS+3}], 0 offen sc1'
            if model: self.vmem(a, 'lp'); self.vmem(b, 'lp')
            else: e(a); e(b)
        def light_wait():
            l0 = self.lab('lp'); l1 = self.lab('lpd'); l2 = self.lab('lpr')
            self.wait_vm('lp')
            e(f's_mov_b32 s{S_CNT}, 0')
            self.label(l0)
            e(f'v_readfirstlane_b32 s{S_NONCE}, v{nv}')
            e(f's_cmp_eq_u32 s{S_NONCE}, 0\ns_cbranch_scc1 {l2}')
            e(f'v_cmp_ne_u32 vcc, s{S_NONCE}, v{lp}\ns_cbranch_vccz {l1}')
            self.label(l2)
            e(f's_sleep {o.get("lsleep", 2)}')
            light_loads(False)
            e('s_waitcnt vmcnt(0)')
            e(f's_add_u32 s{S_CNT}, s{S_CNT}, 1\ns_cmp_lt_u32 s{S_CNT}, {SPIN_MAX}\ns_cbranch_scc1 {l0}')
            self.label(l1)
        def data_loads():
            for i in range(4): self.vmem(f'buffer_load_dwordx4 {vr(sg+4*i,4)}, v{sa}, s[{R_WS}:{R_WS+3}], 0 offen offset:{16*i} sc1', 'sg')
            self.vmem(f'buffer_load_dwordx4 {vr(XP,4)}, v{xo}, s[{R_WS}:{R_WS+3}], 0 offen sc1', 'sg')
            self.vmem(f'buffer_load_dwordx4 {vr(XP+4,4)}, v{xo}, s[{R_WS}:{R_WS+3}], 0 offen offset:16 sc1', 'sg')
        EARLY = o.get('early', True); WB = o.get('wsched', 'B') == 'B'
        self.light_loads = light_loads
        def full_poll():
            return [lambda: self.vmem(f'buffer_load_dword v{nv}, v{nv+1}, s[{R_DBG}:{R_DBG+3}], 0 offen sc1', 'sg')] + \
                   [lambda i=i: self.vmem(f'buffer_load_dwordx4 {vr(sg+4*i,4)}, v{sa}, s[{R_WS}:{R_WS+3}], 0 offen offset:{16*i} sc1', 'sg') for i in range(4)]
        self.full_poll = full_poll
        def after_main():
            if XG: return
            if EARLY: light_wait(); data_loads()
            else: light_loads()
            if TW: self.wait_vm('wa')
            else: self.wait_vm('wa2')
        def after_b2a():
            if XG:
                if WB: self.w1_issue(1, 3, 'wa')
                else: self.w1_issue(3, 5, 'wa')
                return
            if TW: self.w1_read(0, 5)
            else: self.w1_read(o.get('w0', 2), 5)
            self.w1_issue(8, 9, 'wb')
        self.kgen_main(ka, c48, after_main, after_b2a)
        V.free(c48, 2)
        self.wait_all_lg(); e('s_barrier')
        self.stamp(4)
        gat = self.expand_gather()
        if not XG and not EARLY: light_wait(); data_loads()
        V.free(lp, 2)
        self.stamp(7)
        if XG: self.w1_issue(*( (3, 4) if WB else (5, 6) ), 'wb')
        else: self.w1_issue(9, 10, 'wb')
        self.expand_write(gat)
        if XG: self.w1_issue(*( (4, 5) if WB else (6, 7) ), 'wb')
        else: self.w1_issue(10, 11, 'wc')
        self.stamp(5)
        if XG:
            self.wait_vm('xg')
            e(f's_mov_b32 s{S_T0}, 0x05040100\ns_mov_b32 s{S_T1}, 0x07060302')
            for d in range(4):
                e(f'v_perm_b32 v{XP+d}, v{xg+2*d+1}, v{xg+2*d}, s{S_T0}\nv_perm_b32 v{XP+4+d}, v{xg+2*d+1}, v{xg+2*d}, s{S_T1}')
            self.verify_stats(sg, sa, nv, with_nonce=True)
        else: self.verify_stats(sg, sa, nv)
        V.free(nv, 2); V.free(xo); V.free(xg, 8); V.free(xa0); V.free(xa1)
        self.region(lambda: self.normalize(XP, sg))
        V.free(sg, 16); V.free(sa); V.free(XP, 8)
        if XG: self.wait_vm('wa')
        self.wait_all_lg(); e('s_barrier')
        self.stamp(6)
        if XG: self.w1_read(0, 3 if WB else 5)
        if o.get('touch_wd2', False):
            ta = V.alloc(2)
            for q in range(2):
                e(f'v_add_u32 v{ta}, {224*q}, v0\nv_mul_u32_u24 v{ta+1}, 9363, v{ta}\nv_lshrrev_b32 v{ta+1}, 16, v{ta+1}\nv_mul_u32_u24 v{tch+q}, 7, v{ta+1}\nv_sub_u32 v{ta}, v{ta}, v{tch+q}')
                e(f's_lshl_b32 s{S_T0}, s{S_J}, 6\nv_add_u32 v{ta+1}, s{S_T0}, v{ta+1}\nv_mul_u32_u24 v{ta+1}, 896, v{ta+1}\nv_lshl_add_u32 v{ta+1}, v{ta}, 7, v{ta+1}')
                e(f'v_cmp_gt_u32 vcc, 224, v0\ns_and_saveexec_b64 s[{S_M1}:{S_M1+1}], vcc')
                la = self.lab('td'); e(f's_cbranch_execz {la}')
                e(f'buffer_load_dword v{tch+2+q}, v{ta+1}, s[{R_WD}:{R_WD+3}], 0 offen')
                self.label(la); e(f's_mov_b64 exec, s[{S_M1}:{S_M1+1}]')
            V.free(ta, 2)
        fill = []
        for k in ((range(5, 10) if WB else range(7, 10)) if XG else range(11, 14)): fill += self.w1_dma(k, 'wc')
        self.conv(cv, fill)
        V.free(t0); V.free(t1)
        self.stamp(8)
        self.wait_vm('ht'); self.wait_all_lg(); e('s_barrier')
        self.signal(WS_FLAG2, 's2')
        self.stamp(9)
        V.free(tch, 6)
        HCS = o.get('hcs', True)
        self.cs = V.alloc(32, 4); self.ones = V.alloc(4, 4)
        for i in range(4): e(f'v_mov_b32 v{self.ones+i}, 0x3f803f80')
        _, setup = self.capture(self.phaseB_setup)
        self.K0 = 10 if XG else 14
        dma = [f for k in range((13 if WB else 14) if XG else 15, 28) for f in self.w1_dma(k, 'we')]
        mains = []
        if not HCS:
            for k in range(self.K0):
                for u in range(2):
                    c = '0' if k == 0 else vr(self.cs + 16*u, 16)
                    mains.append(([], lambda k=k, u=u, c=c: e(f'v_mfma_f32_32x32x16_bf16 {vr(self.cs+16*u,16)}, {vr(self.ones,4)}, {ar(8*k+4*u,4)}, {c}'), 32, []))
        merged = []
        while dma or setup:
            for _ in range(2):
                if dma: merged.append(dma.pop(0))
            for _ in range(5):
                if setup: merged.append(setup.pop(0))
        if mains: self.sched(mains, [(x, 1) for x in merged])
        else:
            for x in merged: x()
        self.stamp(12)

    def cs_mfma(self, k0, k1):
        for k in range(k0, k1):
            for u in range(2):
                c = '0' if k == 0 else vr(self.cs + 16*u, 16)
                self.e(f'v_mfma_f32_32x32x16_bf16 {vr(self.cs+16*u,16)}, {vr(self.ones,4)}, {ar(8*k+4*u,4)}, {c}')

    def verify_stats(self, sg, sa, nv, with_nonce=False):
        e = self.e; V = self.V
        l0 = self.lab('sp'); l1 = self.lab('spd')
        t = V.alloc(2)
        self.wait_vm('sg')
        e(f's_mov_b32 s{S_CNT}, 0')
        self.label(l0)
        l2 = self.lab('spr')
        if with_nonce:
            e(f'v_readfirstlane_b32 s{S_NONCE}, v{nv}')
            e(f's_cmp_eq_u32 s{S_NONCE}, 0\ns_cbranch_scc1 {l2}')
        e(f'v_min3_u32 v{t}, v{sg+1}, v{sg+3}, v{sg+5}\nv_max3_u32 v{t+1}, v{sg+1}, v{sg+3}, v{sg+5}')
        e(f'v_min3_u32 v{t}, v{t}, v{sg+7}, v{sg+9}\nv_max3_u32 v{t+1}, v{t+1}, v{sg+7}, v{sg+9}')
        e(f'v_min3_u32 v{t}, v{t}, v{sg+11}, v{sg+13}\nv_max3_u32 v{t+1}, v{t+1}, v{sg+11}, v{sg+13}')
        e(f'v_min_u32 v{t}, v{t}, v{sg+15}\nv_max_u32 v{t+1}, v{t+1}, v{sg+15}')
        e(f'v_xor_b32 v{t}, s{S_NONCE}, v{t}\nv_xor_b32 v{t+1}, s{S_NONCE}, v{t+1}\nv_or_b32 v{t}, v{t}, v{t+1}\nv_cmp_ne_u32 vcc, 0, v{t}')
        e(f's_cbranch_vccz {l1}')
        self.label(l2)
        if with_nonce: e(f's_sleep 2\nbuffer_load_dword v{nv}, v{nv+1}, s[{R_DBG}:{R_DBG+3}], 0 offen sc1')
        for i in range(4): e(f'buffer_load_dwordx4 {vr(sg+4*i,4)}, v{sa}, s[{R_WS}:{R_WS+3}], 0 offen offset:{16*i} sc1')
        e('s_waitcnt vmcnt(0)')
        e(f's_add_u32 s{S_CNT}, s{S_CNT}, 1\ns_cmp_lt_u32 s{S_CNT}, {SPIN_MAX}\ns_cbranch_scc1 {l0}')
        self.label(l1)
        V.free(t, 2)

    def map_bc(self):
        e = self.e
        if self.o.get('mapB', '47') == 'rows':
            e(f's_cmp_ge_u32 s{S_J}, 14\ns_cselect_b32 s{S_T0}, 1, 0\ns_lshl_b32 s{S_RB}, s{S_XCD}, 1\ns_add_u32 s{S_RB}, s{S_RB}, s{S_T0}')
            e(f's_mul_i32 s{S_T0}, s{S_T0}, 14\ns_sub_u32 s{S_FB}, s{S_J}, s{S_T0}')
        else:
            e(f's_mul_i32 s{S_T0}, s{S_J}, 37\ns_lshr_b32 s{S_T0}, s{S_T0}, 8')
            e(f's_lshr_b32 s{S_RB}, s{S_XCD}, 1\ns_lshl_b32 s{S_RB}, s{S_RB}, 2\ns_add_u32 s{S_RB}, s{S_RB}, s{S_T0}')
            e(f's_mul_i32 s{S_T0}, s{S_T0}, 7\ns_sub_u32 s{S_FB}, s{S_J}, s{S_T0}\ns_and_b32 s{S_T0}, s{S_XCD}, 1\ns_mul_i32 s{S_T0}, s{S_T0}, 7\ns_add_u32 s{S_FB}, s{S_FB}, s{S_T0}')
        if self.o.get('rot', True): e(f's_and_b32 s{S_ROT}, s{S_RB}, 3')
        else: e(f's_mov_b32 s{S_ROT}, 0')
        e(f's_mul_i32 s{S_T0}, s{S_J}, 37\ns_lshr_b32 s{S_T0}, s{S_T0}, 8')
        e(f's_lshl_b32 s{S_RB2}, s{S_XCD}, 2\ns_add_u32 s{S_RB2}, s{S_RB2}, s{S_T0}\ns_mul_i32 s{S_T0}, s{S_T0}, 7\ns_sub_u32 s{S_DB}, s{S_J}, s{S_T0}')

    def kgen_setup(self):
        e = self.e; V = self.V
        aLo = V.alloc(1); aHi = V.alloc(1); aC = V.alloc(1); t = V.alloc(1)
        aEx = V.alloc(2); aS = V.alloc(2); aK = V.alloc(2)
        e(f's_lshr_b32 s{S_T0}, s{S_W}, 1\ns_mul_i32 s{S_T0}, s{S_T0}, {TBL_C}\ns_and_b32 s{S_T1}, s{S_W}, 1\ns_lshl_b32 s{S_T1}, s{S_T1}, 9\ns_add_u32 s{S_T0}, s{S_T0}, s{S_T1}')
        e(f'v_lshrrev_b32 v{t}, 4, v1\nv_lshlrev_b32 v{aC}, 4, v{t}\nv_add_u32 v{aC}, s{S_T0}, v{aC}')
        e(f'v_and_b32 v{t}, 3, v1\nv_mul_u32_u24 v{t}, {TBL_E}, v{t}\nv_add_u32 v{aLo}, v{aC}, v{t}')
        e(f'v_bfe_u32 v{t}, v1, 2, 2\nv_mul_u32_u24 v{t}, {TBL_E}, v{t}\nv_add_u32 v{aHi}, v{aC}, v{t}')
        e(f's_lshl_b32 s{S_T0}, s{S_W}, 12\ns_add_u32 s{S_T0}, s{S_T0}, {L_EX}\nv_lshl_add_u32 v{aEx}, v1, 4, s{S_T0}')
        e(f's_xor_b32 s{S_T1}, s{S_W}, 1\ns_lshl_b32 s{S_T0}, s{S_T1}, 12\ns_add_u32 s{S_T0}, s{S_T0}, {L_EX}\nv_lshl_add_u32 v{aEx+1}, v1, 4, s{S_T0}')
        e(f's_lshl_b32 s{S_T0}, s{S_W}, 2\ns_add_u32 s{S_T0}, s{S_T0}, {L_EX + 16384}\nv_mov_b32 v{aS}, s{S_T0}')
        e(f's_lshl_b32 s{S_T0}, s{S_T1}, 2\ns_add_u32 s{S_T0}, s{S_T0}, {L_EX + 16384}\nv_mov_b32 v{aS+1}, s{S_T0}')
        e(f'v_and_b32 v{aK}, 15, v1\nv_lshrrev_b32 v{t}, 3, v{aK}\nv_add_u32 v{aK}, v{aK}, v{t}')
        e(f'v_lshrrev_b32 v{t}, 4, v1\nv_mul_u32_u24 v{t}, 144, v{t}\nv_add_u32 v{aK}, v{aK}, v{t}\nv_lshlrev_b32 v{aK}, 2, v{aK}')
        e(f's_lshr_b32 s{S_T0}, s{S_W}, 1\ns_mul_i32 s{S_T0}, s{S_T0}, {K32_C}\ns_add_u32 s{S_T0}, s{S_T0}, {L_K32}\nv_mov_b32 v{aK+1}, s{S_T0}')
        e(f's_and_b32 s{S_T1}, s{S_W}, 1\ns_mul_i32 s{S_T1}, s{S_T1}, {4*576*2}\ns_add_u32 s{S_T1}, s{S_T1}, s{S_T0}\nv_add_u32 v{aK}, s{S_T1}, v{aK}')
        V.free(t)
        return (aLo, aHi, aC, aEx, aS, aK)

    def kgen_main(self, ka, c48, after_main, after_b2a):
        e = self.e; V = self.V
        self.c('---- kgen main (f16 operands)')
        aLo, aHi, aC, aEx, aS, aK = ka
        TB = [[V.alloc(4, 4) for _ in range(6)] for _ in range(2)]
        tmp = V.alloc(4, 4)
        PV = [[V.alloc(4, 4) for _ in range(2)] for _ in range(2)]
        PW = [V.alloc(4, 4) for _ in range(4)]
        D = [[V.alloc(4, 4) for s in range(2)] for t_ in range(4)]
        ents = ((aLo, 0), (aHi, 4), (aC, 16), (aLo, 8), (aHi, 12), (aC, 17))
        def rd(st, i):
            ad, ent = ents[i]
            self.ds(f'ds_read_b128 {vr(TB[st&1][i],4)}, v{ad} offset:{ent*TBL_E + st*64}', f'tb{st}')
        def cm(d, a, b):
            L = [f'v_pk_mul_f16 v{tmp+c}, v{a+c}, v{b+c} op_sel:[0,0] op_sel_hi:[0,1]' for c in range(4)]
            L += [f'v_pk_fma_f16 v{d+c}, v{a+c}, v{b+c}, v{tmp+c} op_sel:[1,1,0] op_sel_hi:[1,0,1] neg_lo:[0,1,0]' for c in range(4)]
            return L
        for i in range(6): rd(0, i)
        pend = []
        for st in range(8):
            T1, T2, Z16, T3, T4, Z512 = TB[st & 1]; pv = PV[st & 1]
            extra = []
            if st + 1 < 8: extra += [lambda i=i, st=st: rd(st + 1, i) for i in range(6)]
            if self.o.get('xg', True):
                if st in (1, 3, 4, 5) and self.xs: extra += [lambda k=self.xs.pop(0): self.xgather(k)]
                if st == self.o.get('pollstep', 6): extra += self.full_poll()
                wst = self.o.get('wst', [7] if self.o.get('wsched', 'B') == 'B' else [4, 6, 7])
                if st in wst: extra += self.w1_dma(wst.index(st), 'wa')
            else:
                if st == self.o.get('pollstep', 5) and self.o.get('early', True): extra += [lambda: self.light_loads()]
                if not self.o.get('touch_w1', False):
                    if st < self.o.get('w0', 2): extra += self.w1_reads(st)
                    ks = self.o.get('kdma', [0, 1, 2])
                    if st in ks: extra += self.w1_dma(5 + ks.index(st), 'wb')
                else:
                    extra += self.w1_dma(st, 'wa' if st < 5 else 'wb')
            self.wait_lg(f'tb{st}')
            blocks = [cm(pv[0], T1, T2), cm(pv[1], pv[0], Z16), cm(PW[0], T3, T4)]
            for tt in range(1, 4): blocks.append(cm(PW[tt], PW[tt-1], Z512))
            def popm():
                if pend:
                    pend.pop(0)()
                    for _ in range(2):
                        if extra: extra.pop(0)()
            for bi, ins in enumerate(blocks):
                for q, l in enumerate(ins):
                    e(l)
                    if q in (1, 5): popm()
                if bi >= 2:
                    tt = bi - 2
                    for s in range(2):
                        cin = '0' if st == 0 else vr(D[tt][s], 4)
                        pend.append(lambda tt=tt, s=s, cin=cin, pv=pv: e(f'v_mfma_f32_16x16x32_f16 {vr(D[tt][s],4)}, {vr(PW[tt],4)}, {vr(pv[s],4)}, {cin}'))
            while len(pend) > 2: popm()
            for x in extra: x()
        while pend: pend.pop(0)()
        self.stamp(13)
        after_main()
        us = V.alloc(2, 2)
        e(f'v_mov_b32 v{us}, s{S_US}')
        R4 = TB[0][:4]; Va = tmp
        def exch(half):
            snd = [(t_, s) for t_ in (2 - 2*half, 3 - 2*half) for s in range(2)]
            kp = [(t_, s) for t_ in (2*half, 2*half + 1) for s in range(2)]
            for i, (t_, s) in enumerate(snd):
                for r in (0, 2): e(f'v_pk_mul_f32 {vr(D[t_][s]+r,2)}, {vr(D[t_][s]+r,2)}, {vr(us,2)} op_sel_hi:[1,0]')
                self.ds(f'ds_write_b128 v{aEx}, {vr(D[t_][s],4)} offset:{1024*i}', 'exw')
            e(f's_mov_b64 s[{S_M1}:{S_M1+1}], exec\ns_mov_b64 exec, 1')
            self.ds(f'ds_write_b32 v{aS}, v{c48}', 'exw')
            e(f's_mov_b64 exec, s[{S_M1}:{S_M1+1}]')
            self.wait_all_lg()
            e('s_barrier')
            for i in range(4): self.ds(f'ds_read_b128 {vr(R4[i],4)}, v{aEx+1} offset:{1024*i}', f'ex{i}')
            self.ds(f'ds_read_b32 v{Va}, v{aS+1}', 'exc')
            for i, (t_, s) in enumerate(kp):
                self.wait_lg(f'ex{i}')
                for r in (0, 2): e(f'v_pk_fma_f32 {vr(D[t_][s]+r,2)}, {vr(D[t_][s]+r,2)}, {vr(us,2)}, {vr(R4[i]+r,2)} op_sel_hi:[1,0,1]')
                for r in range(4):
                    self.ds(f'ds_write_b32 v{aK}, v{D[t_][s]+r} offset:{4*(576*(i >> 1) + 36*r + 18*s)}')
            self.wait_lg('exc')
            e(f'v_add_f32 v{c48}, v{c48}, v{Va}\nv_mov_b32 v{c48+1}, 0')
            e(f's_mov_b64 s[{S_M1}:{S_M1+1}], exec\ns_mov_b64 exec, 1')
            self.ds(f'ds_write_b32 v{aK+1}, v{c48} offset:9216')
            self.ds(f'ds_write_b32 v{aK+1}, v{c48+1} offset:9280')
            e(f's_mov_b64 exec, s[{S_M1}:{S_M1+1}]')
        self.two_paths(exch)
        after_b2a()
        V.free(us, 2)
        for row in TB + PV:
            for x in row: V.free(x, 4)
        for x in PW: V.free(x, 4)
        V.free(tmp, 4)
        for row in D:
            for x in row: V.free(x, 4)
        for x in (aLo, aHi, aC): V.free(x)
        V.free(aEx, 2); V.free(aS, 2); V.free(aK, 2)

    def expand_gather(self):
        e = self.e; V = self.V; ga = self.ga
        self.c('---- expand K into 4 shifted bf16 copies')
        z = V.alloc(4, 4); t = V.alloc(1); t2 = V.alloc(1)
        g = V.alloc(22, 2)
        for i in range(4): e(f'v_mov_b32 v{z+i}, 0')
        e(f'v_lshrrev_b32 v{t}, 2, v0\nv_mul_u32_u24 v{t}, {KC_S}, v{t}\nv_and_b32 v{t2}, 3, v0\nv_lshl_add_u32 v{t}, v{t2}, 4, v{t}')
        e(f'v_cmp_gt_u32 vcc, 32, v0\ns_and_saveexec_b64 s[{S_M1}:{S_M1+1}], vcc')
        la = self.lab('zc'); e(f's_cbranch_execz {la}')
        e(f'ds_write_b128 v{t}, {vr(z,4)} offset:{L_KC + 4096}')
        self.label(la); e(f's_mov_b64 exec, s[{S_M1}:{S_M1+1}]')
        e(f'v_lshrrev_b32 v{t}, 6, v0\nv_mul_u32_u24 v{t}, {U_C}, v{t}\nv_lshl_add_u32 v{t}, v1, 4, v{t}')
        e(f'v_cmp_gt_u32 vcc, 128, v0\ns_and_saveexec_b64 s[{S_M1}:{S_M1+1}], vcc')
        la = self.lab('zu'); e(f's_cbranch_execz {la}')
        e(f'ds_write_b128 v{t}, {vr(z,4)} offset:{L_U}')
        self.label(la); e(f's_mov_b64 exec, s[{S_M1}:{S_M1+1}]')
        for k in range(11): self.ds(f'ds_read_b32 v{g+k}, v{ga+k} offset:0', 'g0')
        for k in range(11): self.ds(f'ds_read_b32 v{g+11+k}, v{ga+k} offset:{K32_C}', 'g1')
        V.free(t); V.free(t2); V.free(z, 4)
        return g
    def expand_write(self, g):
        e = self.e; V = self.V; ga = self.ga
        P = V.alloc(32, 4); wa = V.alloc(1)
        e(f'v_lshlrev_b32 v{wa}, 4, v0')
        for c in range(2):
            self.wait_lg(f'g{c}')
            v = lambda k: g + 11 * c + (k - 1)
            for sc_ in range(4):
                s = 4 - sc_
                for dd in range(4):
                    e(f'v_cvt_pk_bf16_f32 v{P+16*c+4*sc_+dd}, v{v(s+2*dd)}, v{v(s+2*dd+1)}')
                self.ds(f'ds_write_b128 v{wa}, {vr(P+16*c+4*sc_,4)} offset:{L_KC + c*KC_C + sc_*KC_S}')
        V.free(g, 22); V.free(P, 32); V.free(wa); V.free(ga, 12)

    def normalize(self, XP, sg):
        e = self.e; V = self.V
        self.c('---- LN1 normalize own columns')
        xa = V.alloc(16, 2)
        ms = V.alloc(16, 2)
        for k in range(8):
            e(f'v_lshlrev_b32 v{ms+k}, 16, v{sg+2*k}\nv_and_b32 v{ms+8+k}, 0xffff0000, v{sg+2*k}')
        for k in range(8): e(f'v_rcp_f32 v{ms+8+k}, v{ms+8+k}')
        wa = V.alloc(1); t = V.alloc(1)
        e(f'v_bfe_u32 v{t}, v0, 4, 1\nv_lshlrev_b32 v{t}, 1, v{t}\nv_xor_b32 v{wa}, v0, v{t}\nv_lshlrev_b32 v{wa}, 4, v{wa}')
        for c in range(2): self.ds(f'ds_write_b128 v{wa}, {vr(XP+4*c,4)} offset:{L_X + c*X_C}')
        for c in range(2):
            for d in range(4):
                e(f'v_lshlrev_b32 v{xa+8*c+2*d}, 16, v{XP+4*c+d}\nv_and_b32 v{xa+8*c+2*d+1}, 0xffff0000, v{XP+4*c+d}')
        UP = V.alloc(8, 4)
        for c in range(2):
            for d in range(4):
                x = xa + 8*c + 2*d
                e(f'v_pk_add_f32 {vr(x,2)}, {vr(x,2)}, {vr(ms+2*d,2)} neg_lo:[0,1] neg_hi:[0,1]')
            for d in range(4):
                x = xa + 8*c + 2*d
                e(f'v_cvt_pk_bf16_f32 v{x+1}, v{x}, v{x+1}')
            for d in range(4):
                x = xa + 8*c + 2*d
                e(f'v_lshlrev_b32 v{x}, 16, v{x+1}\nv_and_b32 v{x+1}, 0xffff0000, v{x+1}')
            for d in range(4):
                x = xa + 8*c + 2*d
                e(f'v_pk_mul_f32 {vr(x,2)}, {vr(x,2)}, {vr(ms+8+2*d,2)}')
            for d in range(4):
                x = xa + 8*c + 2*d
                e(f'v_cvt_pk_bf16_f32 v{UP+4*c+d}, v{x}, v{x+1}')
            self.ds(f'ds_write_b128 v{wa}, {vr(UP+4*c,4)} offset:{L_U + c*U_C + 1024}')
        V.free(ms, 16); V.free(xa, 16); V.free(UP, 8); V.free(wa); V.free(t)

    def conv_setup(self):
        e = self.e; V = self.V
        vF = V.alloc(1); vG = V.alloc(8); t = V.alloc(1); t2 = V.alloc(1)
        e(f's_lshr_b32 s{S_T0}, s{S_W}, 1\ns_mul_i32 s{S_T0}, s{S_T0}, {KC_C}\ns_and_b32 s{S_T1}, s{S_W}, 1\ns_lshl_b32 s{S_T2}, s{S_T1}, 9\ns_sub_u32 s{S_T0}, s{S_T0}, s{S_T2}\ns_add_u32 s{S_T0}, s{S_T0}, {L_KC + 24 + 512}')
        e(f'v_and_b32 v{t}, 3, v1\nv_mul_u32_u24 v{vF}, {KC_S}, v{t}')
        e(f'v_bfe_u32 v{t}, v1, 2, 2\nv_lshlrev_b32 v{t}, 3, v{t}\nv_sub_u32 v{vF}, v{vF}, v{t}')
        e(f'v_lshrrev_b32 v{t}, 4, v1\nv_lshl_add_u32 v{vF}, v{t}, 4, v{vF}\nv_add_u32 v{vF}, s{S_T0}, v{vF}')
        e(f's_lshr_b32 s{S_T0}, s{S_W}, 1\ns_mul_i32 s{S_T0}, s{S_T0}, {U_C}\ns_add_u32 s{S_T0}, s{S_T0}, {L_U}')
        e(f's_lshl_b32 s{S_T1}, s{S_T1}, 3')
        kg = V.alloc(1); col = V.alloc(1)
        e(f'v_lshrrev_b32 v{kg}, 4, v1\nv_and_b32 v{col}, 15, v1\nv_subrev_u32 v{col}, s{S_T1}, v{col}')
        for pp in range(8):
            e(f'v_add_u32 v{t}, {16 - pp}, v{col}')
            e(f'v_bfe_u32 v{t2}, v{t}, 2, 1\nv_lshlrev_b32 v{t2}, 1, v{t2}\nv_xor_b32 v{t2}, v{t2}, v{kg}')
            e(f'v_lshlrev_b32 v{t}, 6, v{t}\nv_lshl_add_u32 v{t}, v{t2}, 4, v{t}\nv_add_u32 v{vG+pp}, s{S_T0}, v{t}')
        V.free(kg); V.free(col)
        ua = V.alloc(1); xa_ = V.alloc(1); ra = V.alloc(2); sa = V.alloc(1)
        e(f'v_bfe_u32 v{t}, v1, 2, 1\nv_lshlrev_b32 v{t}, 1, v{t}\nv_lshrrev_b32 v{t2}, 4, v1\nv_xor_b32 v{t}, v{t}, v{t2}')
        e(f'v_and_b32 v{t2}, 15, v1\nv_lshlrev_b32 v{t2}, 6, v{t2}\nv_lshl_add_u32 v{ua}, v{t}, 4, v{t2}')
        e(f's_and_b32 s{S_T1}, s{S_W}, 1\ns_lshl_b32 s{S_T1}, s{S_T1}, 11')
        e(f's_lshr_b32 s{S_T0}, s{S_W}, 1\ns_mul_i32 s{S_T2}, s{S_T0}, {U_C}\ns_add_u32 s{S_T2}, s{S_T2}, s{S_T1}')
        e(f's_mul_i32 s{S_T3}, s{S_T0}, {X_C}\ns_add_u32 s{S_T3}, s{S_T3}, s{S_T1}')
        e(f'v_add_u32 v{xa_}, s{S_T3}, v{ua}\nv_add_u32 v{ua}, s{S_T2}, v{ua}')
        e(f'v_lshrrev_b32 v{t}, 4, v1\nv_lshl_add_u32 v{sa}, v{t}, 4, v{t2}')
        e(f's_lshl_b32 s{S_T2}, s{S_CP}, 1\ns_add_u32 s{S_T2}, s{S_T2}, s{S_T0}\ns_mul_i32 s{S_T2}, s{S_T2}, {HT_STRIDE}\ns_add_u32 s{S_T2}, s{S_T2}, s{S_T1}\ns_add_u32 s{S_T2}, s{S_T2}, {WS_HT}')
        e(f'v_add_u32 v{sa}, s{S_T2}, v{sa}')
        e(f's_lshl_b32 s{S_T0}, s{S_W}, 12\ns_add_u32 s{S_T0}, s{S_T0}, {L_RED}\nv_lshl_add_u32 v{ra}, v1, 4, s{S_T0}')
        e(f's_xor_b32 s{S_T0}, s{S_W}, 1\ns_lshl_b32 s{S_T0}, s{S_T0}, 12\ns_add_u32 s{S_T0}, s{S_T0}, {L_RED}\nv_lshl_add_u32 v{ra+1}, v1, 4, s{S_T0}')
        V.free(t); V.free(t2)
        return (vF, vG, ua, xa_, ra, sa)

    def conv(self, cv, fill):
        e = self.e; V = self.V
        vF, vG, ua, xa_, ra, sa = cv
        self.c('---- Toeplitz convolution')
        G = [V.alloc(16, 4) for _ in range(2)]
        F = V.alloc(32, 4)
        acc = V.alloc(32, 4)
        A = lambda b, m: acc + 8 * b + 4 * m
        def rdG(pp):
            for s in range(4): self.ds(f'ds_read_b128 {vr(G[pp&1]+4*s,4)}, v{vG+pp} offset:{1024*s}', f'G{pp}')
        def rdF(pp, q):
            for m in range(2):
                off = 32 * (111 - 32*q - 2*pp - m)
                self.ds(f'ds_read_b64 {vr(F+8*q+4*m,2)}, v{vF} offset:{off}', f'F{pp}_{q}')
                self.ds(f'ds_read_b64 {vr(F+8*q+4*m+2,2)}, v{vF} offset:{off+8}', f'F{pp}_{q}')
        rdG(0)
        for q in range(4): rdF(0, q)
        def rdG1(pp, s): self.ds(f'ds_read_b128 {vr(G[pp&1]+4*s,4)}, v{vG+pp} offset:{1024*s}', f'G{pp}')
        def rdF1(pp, q, m, h_):
            off = 32 * (111 - 32*q - 2*pp - m) + 8 * h_
            self.ds(f'ds_read_b64 {vr(F+8*q+4*m+2*h_,2)}, v{vF} offset:{off}', f'F{pp}_{q}')
        mains = []
        pend = []
        for pp in range(8):
            for q in range(4):
                first = True
                for m in range(2):
                    for s in range(4 - q):
                        b = q + s
                        cin = '0' if (pp == 0 and q == 0) else vr(A(b, m), 4)
                        pre = []
                        if first:
                            if q == 0: pre.append(lambda pp=pp: (self.wait_lg(f'G{pp}'), self.wait_lg(f'F{pp}_0')))
                            else: pre.append(lambda pp=pp, q=q: self.wait_lg(f'F{pp}_{q}'))
                            first = False
                        mf = lambda b=b, m=m, q=q, s=s, pp=pp, cin=cin: e(f'v_mfma_f32_16x16x32_bf16 {vr(A(b,m),4)}, {vr(F+8*q+4*m,4)}, {vr(G[pp&1]+4*s,4)}, {cin}')
                        post = [pend.pop(0)] if pend else []
                        mains.append((pre, mf, 16, post))
                    if pp + 1 < 8:
                        pend += [lambda pp=pp, q=q, m=m, h_=h_: rdF1(pp + 1, q, m, h_) for h_ in range(2)]
                if q == 0 and pp + 1 < 8:
                    pend += [lambda pp=pp, s=s: rdG1(pp + 1, s) for s in range(4)]
        assert not pend
        self.sched(mains, None, segs=[(0, self.o.get('cfill', 110), fill)])
        for x in G: V.free(x, 16)
        V.free(F, 32); V.free(vG, 8)
        self.stamp(10)
        UU = V.alloc(8, 4); XX = V.alloc(8, 4); t1f = V.alloc(16, 2); xf = V.alloc(16, 2); rr = V.alloc(16, 4)
        Y = V.alloc(8, 4); w8 = V.alloc(16, 2); dk = V.alloc(2, 2)
        for bb in range(2):
            self.ds(f'ds_read_b128 {vr(UU+4*bb,4)}, v{ua} offset:{L_U + 1024 + 1024*bb}', 'ux')
            self.ds(f'ds_read_b128 {vr(XX+4*bb,4)}, v{xa_} offset:{L_X + 1024*bb}', 'ux')
        e(f'v_mov_b32 v{dk}, s{S_DK}')
        def epi(half):
            snd = acc + 16 * (1 - half); keep = acc + 16 * half
            for i in range(4): self.ds(f'ds_write_b128 v{ra}, {vr(snd+4*i,4)} offset:{1024*i}', 'rw')
            self.wait_lg('ux')
            for q in range(8): e(f'v_lshlrev_b32 v{t1f+2*q}, 16, v{UU+q}\nv_and_b32 v{t1f+2*q+1}, 0xffff0000, v{UU+q}')
            for q in range(8): e(f'v_pk_mul_f32 {vr(t1f+2*q,2)}, {vr(t1f+2*q,2)}, {vr(dk,2)} op_sel_hi:[1,0]')
            for q in range(8): e(f'v_cvt_pk_bf16_f32 v{UU+q}, v{t1f+2*q}, v{t1f+2*q+1}')
            for q in range(8): e(f'v_lshlrev_b32 v{xf+2*q}, 16, v{XX+q}\nv_and_b32 v{xf+2*q+1}, 0xffff0000, v{XX+q}')
            for q in range(8): e(f'v_lshlrev_b32 v{t1f+2*q}, 16, v{UU+q}\nv_and_b32 v{t1f+2*q+1}, 0xffff0000, v{UU+q}')
            self.wait_vm('wc')
            self.wait_all_lg()
            e('s_barrier')
            for i in range(4): self.ds(f'ds_read_b128 {vr(rr+4*i,4)}, v{ra+1} offset:{1024*i}', 'red')
            self.wait_lg('red')
            for i in range(0, 16, 2): e(f'v_pk_add_f32 {vr(keep+i,2)}, {vr(keep+i,2)}, {vr(rr+i,2)}')
            for bb in range(2):
                k0 = keep + 8 * bb; y = Y + 4 * bb
                e(f'v_cvt_pk_bf16_f32 v{y}, v{k0}, v{k0+1}\nv_cvt_pk_bf16_f32 v{y+1}, v{k0+2}, v{k0+3}')
                e(f'v_cvt_pk_bf16_f32 v{y+2}, v{k0+4}, v{k0+5}\nv_cvt_pk_bf16_f32 v{y+3}, v{k0+6}, v{k0+7}')
            for bb in range(2):
                y = Y + 4 * bb
                e(f'v_permlane32_swap_b32 v{y}, v{y+2}\nv_permlane32_swap_b32 v{y+1}, v{y+3}')
            for bb in range(2):
                y = Y + 4 * bb
                e(f'v_permlane16_swap_b32 v{y}, v{y+2}\nv_permlane16_swap_b32 v{y+1}, v{y+3}')
            for q in range(8): e(f'v_lshlrev_b32 v{w8+2*q}, 16, v{Y+q}\nv_and_b32 v{w8+2*q+1}, 0xffff0000, v{Y+q}')
            for q in range(8): e(f'v_pk_add_f32 {vr(w8+2*q,2)}, {vr(w8+2*q,2)}, {vr(t1f+2*q,2)}')
            for q in range(8): e(f'v_cvt_pk_bf16_f32 v{Y+q}, v{w8+2*q}, v{w8+2*q+1}')
            for q in range(8): e(f'v_lshlrev_b32 v{w8+2*q}, 16, v{Y+q}\nv_and_b32 v{w8+2*q+1}, 0xffff0000, v{Y+q}')
            for q in range(8): e(f'v_pk_add_f32 {vr(w8+2*q,2)}, {vr(w8+2*q,2)}, {vr(xf+2*q,2)}')
            for bb in range(2):
                for d in range(4): e(f'v_cvt_pk_bf16_f32 v{Y+4*bb+d}, v{w8+8*bb+2*d}, v{w8+8*bb+2*d+1}')
                self.vmem(f'buffer_store_dwordx4 {vr(Y+4*bb,4)}, v{sa}, s[{R_WS}:{R_WS+3}], 0 offen offset:{1024*bb} sc1', 'ht')
        self.two_paths(epi)
        if self.o.get('xg', True):
            WB = self.o.get('wsched', 'B') == 'B'
            self.w1_read(3 if WB else 5, 10)
            self.w1_issue(10, 13 if WB else 14, 'we')
        else:
            self.w1_read(5, 14)
            self.w1_issue(14, 15, 'we')
        for x, n in ((UU,8),(XX,8),(t1f,16),(xf,16),(rr,16),(Y,8),(w8,16),(dk,2),(sa,1),(ua,1),(xa_,1),(ra,2),(acc,32),(vF,1)): V.free(x, n)

    def interleave(self, main, fill, per_gap):
        n = len(main); fi = 0
        for i, m in enumerate(main):
            m()
            tgt = (len(fill) * (i + 1) + n - 1) // n if per_gap is None else min(len(fill), fi + per_gap)
            while fi < tgt:
                fill[fi](); fi += 1
        while fi < len(fill):
            fill[fi](); fi += 1

    def sched(self, mains, fillers, tail_free=0, segs=None):
        def cost(x): return x[1] if isinstance(x, tuple) else 1
        def run(x): (x[0] if isinstance(x, tuple) else x)()
        n = len(mains)
        bud = []
        for i, (pre, m, dur, post) in enumerate(mains):
            b = (dur - 8) / 4 - sum(cost(x) for x in post)
            if i + 1 < n: b -= sum(cost(x) for x in mains[i+1][0])
            bud.append(b)
        if segs is None: segs = [(0, n - tail_free, fillers)]
        plan = [[] for _ in range(n)]; planned = [0.0] * n
        for (a, b_, fl) in segs:
            free = sum(max(0, x) for x in bud[a:b_]); need = sum(cost(x) for x in fl)
            over = max(0.0, (need - free) / max(1, b_ - a)); frac = min(1.0, need / free) if free > 0 else 1.0
            fi = 0; credit = 0.0
            for i in range(a, b_):
                credit += max(0, bud[i]) * frac + over
                while fi < len(fl) and cost(fl[fi]) <= credit + 1e-9:
                    credit -= cost(fl[fi]); plan[i].append(fl[fi]); fi += 1
            plan[b_ - 1] += fl[fi:]
            for i in range(a, b_):
                used = sum(cost(x) for x in plan[i]) - planned[i]
                planned[i] += used; bud[i] -= used
        for i, (pre, m, dur, post) in enumerate(mains):
            for x in pre: run(x)
            m()
            for x in post: run(x)
            hoist = lambda x: getattr(x[0] if isinstance(x, tuple) else x, 'hoist', False) and self.o.get('hoist', True)
            for x in plan[i]:
                if hoist(x): run(x)
            for x in plan[i]:
                if not hoist(x): run(x)

    def poll_flags(self, base, nflags_expr_lanes, nloads, sbase=None, last_lanes=None, sleep=0):
        e = self.e; V = self.V
        skip = self.lab('pf'); l0 = self.lab('pl'); l1 = self.lab('pd')
        e(f's_cmp_lg_u32 s{S_W}, 0\ns_cbranch_scc1 {skip}')
        a = V.alloc(1); d = V.alloc(4, 2)
        e(f'v_mul_u32_u24 v{a}, {FLAG_STRIDE}, v1\nv_add_u32 v{a}, {base}, v{a}')
        if sbase is not None: e(f'v_add_u32 v{a}, s{sbase}, v{a}')
        e(f's_mov_b64 s[{S_M1}:{S_M1+1}], exec')
        if nflags_expr_lanes < 64: e(f's_mov_b64 exec, {hex((1 << nflags_expr_lanes) - 1)}')
        e(f's_mov_b32 s{S_CNT}, 0')
        self.label(l0)
        for k in range(nloads):
            if 64*FLAG_STRIDE*k < 4096: e(f'buffer_load_dword v{d+k}, v{a}, s[{R_WS}:{R_WS+3}], 0 offen offset:{64*FLAG_STRIDE*k} sc1')
            else: e(f's_mov_b32 s{S_T3}, {64*FLAG_STRIDE*k}\nbuffer_load_dword v{d+k}, v{a}, s[{R_WS}:{R_WS+3}], s{S_T3} offen sc1')
        e('s_waitcnt vmcnt(0)')
        e(f'v_cmp_ne_u32 vcc, s{S_NONCE}, v{d}')
        for k in range(1, nloads):
            e(f'v_cmp_ne_u32 s[{S_M2}:{S_M2+1}], s{S_NONCE}, v{d+k}')
            if last_lanes and k == nloads - 1:
                assert last_lanes == 32
                e(f's_and_b32 s{S_M2+1}, s{S_M2+1}, 0')
            e(f's_or_b64 vcc, vcc, s[{S_M2}:{S_M2+1}]')
        e(f's_cbranch_vccz {l1}')
        if sleep: e(f's_sleep {sleep}')
        e(f's_add_u32 s{S_CNT}, s{S_CNT}, 1\ns_cmp_lt_u32 s{S_CNT}, {SPIN_MAX}\ns_cbranch_scc1 {l0}')
        self.label(l1)
        e(f's_mov_b64 exec, s[{S_M1}:{S_M1+1}]')
        V.free(a); V.free(d, 4)
        self.label(skip)
        e('s_barrier')

    WDREG = ['A']*9 + ['B']*3 + ['C']*3 + ['A']*9 + ['B']*3 + ['C']
    WDIDX = list(range(9)) + [0,1,2] + [0,1,2] + list(range(9)) + [0,1,2] + [0]
    def wd_setup(self):
        e = self.e; V = self.V
        self.vWD = V.alloc(2); self.vWT = V.alloc(6)
        t = V.alloc(1); t2 = V.alloc(1); vD = self.vWD; vT = self.vWT
        e(f'v_lshrrev_b32 v{t}, 3, v1\nv_mul_u32_u24 v{vD}, 896, v{t}\nv_bfe_u32 v{t}, v1, 4, 1\nv_lshlrev_b32 v{t}, 2, v{t}\nv_and_b32 v{t2}, 7, v1\nv_xor_b32 v{t}, v{t}, v{t2}\nv_lshl_add_u32 v{vD}, v{t}, 4, v{vD}')
        e(f's_lshl_b32 s{S_T0}, s{S_DB}, 7\ns_mul_i32 s{S_T1}, s{S_W}, {448*896}\ns_add_u32 s{S_T0}, s{S_T0}, s{S_T1}\nv_add_u32 v{vD}, s{S_T0}, v{vD}\nv_add_u32 v{vD+1}, 7168, v{vD}')
        e(f'v_lshrrev_b32 v{t}, 5, v1\nv_lshlrev_b32 v{vT}, 9, v{t}\nv_bfe_u32 v{t}, v1, 2, 2\nv_lshl_add_u32 v{vT}, v{t}, 7, v{vT}')
        e(f'v_bfe_u32 v{t}, v1, 4, 1\nv_lshl_add_u32 v{vT}, v{t}, 5, v{vT}\nv_and_b32 v{t}, 3, v1\nv_lshl_add_u32 v{vT}, v{t}, 3, v{vT}')
        e(f'v_bfe_u32 v{t}, v1, 3, 1\nv_lshlrev_b32 v{t}, 6, v{t}')
        e(f'v_xor_b32 v{t2}, 64, v{t}\nv_add_u32 v{vT+1}, v{vT}, v{t2}\nv_add_u32 v{vT}, v{vT}, v{t}')
        e(f's_mul_i32 s{S_WA}, s{S_W}, 18432\ns_add_u32 s{S_WA}, s{S_WA}, 87040')
        e(f's_mul_i32 s{S_WB}, s{S_W}, 7168\ns_add_u32 s{S_WC}, s{S_WB}, 57344\ns_add_u32 s{S_WB}, s{S_WB}, 28672')
        e(f'v_add_u32 v{vT+2}, s{S_WB}, v{vT}\nv_add_u32 v{vT+3}, s{S_WB}, v{vT+1}\nv_add_u32 v{vT+4}, s{S_WC}, v{vT}\nv_add_u32 v{vT+5}, s{S_WC}, v{vT+1}')
        e(f'v_add_u32 v{vT}, s{S_WA}, v{vT}\nv_add_u32 v{vT+1}, s{S_WA}, v{vT+1}')
        e(f's_add_u32 s{S_T1}, s{S_DB}, s{S_RB2}' if self.o.get('rot2', True) else f's_mov_b32 s{S_T1}, 0')
        for q in range(4):
            e(f's_add_u32 s{S_T0}, s{S_T1}, {q}\ns_and_b32 s{S_T0}, s{S_T0}, 3\ns_mul_i32 s{S_RW0+q}, s{S_T0}, {7*16*896}\ns_mul_i32 s{S_RA0+q}, s{S_T0}, {7*1024}')
        V.free(t); V.free(t2)
    def wd_dma(self, k, tag):
        e = self.e; sb = {'A': S_WA, 'B': S_WB, 'C': S_WC}[self.WDREG[k]]; sl = self.WDIDX[k] * 2048
        d0 = lambda: self.vmem(f'buffer_load_dwordx4 v{self.vWD}, s[{R_WD}:{R_WD+3}], s{S_WO} offen lds', tag)
        d1 = lambda: self.vmem(f'buffer_load_dwordx4 v{self.vWD+1}, s[{R_WD}:{R_WD+3}], s{S_WO} offen lds', tag)
        d0.isvm = True; d1.isvm = True
        r = [lambda: e(f's_add_u32 s{S_WO}, s{S_RW0 + k//7}, {(k%7)*16*896}'),
             lambda: e(f's_add_u32 m0, s{sb}, {sl}'), d0,
             lambda: e(f's_add_u32 m0, s{sb}, {sl + 1024}'), d1]
        for x in r: x.hoist = True
        return r
    def wd_reads(self, k):
        a = self.vWT + {'A': 0, 'B': 2, 'C': 4}[self.WDREG[k]]; sl = self.WDIDX[k] * 2048
        return [lambda mt=mt, hh=hh: self.ds(f'ds_read_b64_tr_b16 {ar(8*k+4*mt+2*hh,2)}, v{a+mt} offset:{sl + 1024*hh}', f'wdr{k}') for mt in range(2) for hh in range(2)]

    def phaseB_setup(self):
        e = self.e; V = self.V; o = self.o
        L_H = 0; HG = 28672; L_STP = 3 * HG
        HS = lambda g_: (g_ % 3) * HG
        S_HB, S_MB = S_T5, S_HID
        vD = V.alloc(1); vB = V.alloc(1); vS = V.alloc(1); t = V.alloc(1); t2 = V.alloc(1)
        e(f'v_lshrrev_b32 v{t}, 2, v1\nv_mul_u32_u24 v{vD}, {HT_STRIDE}, v{t}\nv_bfe_u32 v{t2}, v1, 4, 1\nv_lshlrev_b32 v{t2}, 1, v{t2}\nv_and_b32 v{t}, 3, v1\nv_xor_b32 v{t}, v{t}, v{t2}\nv_lshl_add_u32 v{vD}, v{t}, 4, v{vD}')
        e(f's_lshl_b32 s{S_T0}, s{S_RB}, 8\ns_add_u32 s{S_T0}, s{S_T0}, {WS_HT}\nv_add_u32 v{vD}, s{S_T0}, v{vD}')
        e(f's_mul_i32 s{S_HB}, s{S_W}, {16*HT_STRIDE}\ns_lshl_b32 s{S_MB}, s{S_W}, 10')
        e(f'v_lshrrev_b32 v{t}, 5, v1\nv_lshlrev_b32 v{vB}, 8, v{t}\nv_bfe_u32 v{t2}, v1, 4, 1\nv_xor_b32 v{t2}, v{t2}, v{t}\nv_lshl_add_u32 v{vB}, v{t2}, 5, v{vB}')
        e(f'v_bfe_u32 v{t}, v1, 2, 2\nv_lshl_add_u32 v{vB}, v{t}, 6, v{vB}\nv_and_b32 v{t}, 3, v1\nv_lshl_add_u32 v{vB}, v{t}, 3, v{vB}')
        e(f'v_lshrrev_b32 v{t}, 4, v1\nv_lshlrev_b32 v{vS}, 8, v{t}\nv_and_b32 v{t}, 1, v{t}\ns_and_b32 s{S_T0}, s{S_W}, 1\nv_xor_b32 v{t}, s{S_T0}, v{t}\nv_lshl_add_u32 v{vS}, v{t}, 5, v{vS}')
        e(f'v_bfe_u32 v{t}, v1, 2, 2\nv_lshl_add_u32 v{vS}, v{t}, 6, v{vS}\nv_and_b32 v{t}, 3, v1\nv_lshl_add_u32 v{vS}, v{t}, 3, v{vS}')
        e(f's_lshr_b32 s{S_T0}, s{S_W}, 1\ns_mul_i32 s{S_T0}, s{S_T0}, {7*2048}\nv_add_u32 v{vS}, s{S_T0}, v{vS}')
        vA = V.alloc(1)
        e(f's_mul_i32 s{S_T0}, s{S_RB}, {4*112}\ns_lshl_b32 s{S_T1}, s{S_FB}, 3\ns_add_u32 s{S_T0}, s{S_T0}, s{S_T1}\ns_lshl_b32 s{S_T1}, s{S_W}, 1\ns_add_u32 s{S_T0}, s{S_T0}, s{S_T1}')
        e(f's_lshl_b32 s{S_T0}, s{S_T0}, 10\ns_add_u32 s{S_T0}, s{S_T0}, {WS_ACT}\nv_lshl_add_u32 v{vA}, v1, 4, s{S_T0}')
        vG2 = V.alloc(1); sg2 = V.alloc(6, 2)
        e(f'v_and_b32 v{t}, 31, v1\nv_lshlrev_b32 v{vG2}, 3, v{t}\ns_lshl_b32 s{S_T0}, s{S_RB}, 10\ns_add_u32 s{S_T0}, s{S_T0}, {WS_STATS2}\nv_add_u32 v{vG2}, s{S_T0}, v{vG2}')
        vC = V.alloc(1)
        e(f'v_and_b32 v{t}, 31, v1\nv_lshlrev_b32 v{t}, 2, v{t}\ns_lshl_b32 s{S_T0}, s{S_FB}, 9\ns_lshl_b32 s{S_T1}, s{S_W}, 7\ns_add_u32 s{S_T0}, s{S_T0}, s{S_T1}\ns_add_u32 s{S_T0}, s{S_T0}, {WS_CS}\nv_add_u32 v{vC}, s{S_T0}, v{t}')
        NB = 6
        cs = self.cs; ones = self.ones
        B = V.alloc(4 * NB, 4); SB = V.alloc(8, 4); SG = V.alloc(8, 4)
        acc = [V.alloc(32, 4), V.alloc(32, 4)]
        st = V.alloc(6, 2); par = V.alloc(3); tmp = V.alloc(8, 4); pk = V.alloc(8, 4)
        vP = V.alloc(1); vPw = V.alloc(1)
        e(f'v_bfe_u32 v{t}, v1, 4, 1\nv_lshlrev_b32 v{vP}, 7, v{t}\nv_and_b32 v{t}, 15, v1\nv_lshl_add_u32 v{vP}, v{t}, 3, v{vP}\nv_add_u32 v{vP}, {L_STP}, v{vP}')
        e(f's_lshl_b32 s{S_T0}, s{S_W}, 7\ns_add_u32 s{S_T0}, s{S_T0}, {L_STP}\nv_lshl_add_u32 v{vPw}, v{t}, 3, s{S_T0}')
        K1, K2, K3, KD = 6, 8, 10, 12
        e(f's_mov_b32 s{K1}, 0x22222222\ns_mov_b32 s{K1+1}, 0x22222222\ns_mov_b32 s{K2}, 0x44444444\ns_mov_b32 s{K2+1}, 0x44444444')
        e(f's_mov_b32 s{K3}, 0x88888888\ns_mov_b32 s{K3+1}, 0x88888888\ns_mov_b32 s{KD}, 0x00f0000f\ns_mov_b32 s{KD+1}, 0xf0000f00')
        vBq = V.alloc(4); vS2 = V.alloc(1)
        e(f'v_add_u32 v{vS2}, 57344, v{vS}')
        for q in range(4):
            e(f's_add_u32 s{S_T0}, s{S_ROT}, {q}\ns_and_b32 s{S_T0}, s{S_T0}, 3\ns_mul_i32 s{S_T0}, s{S_T0}, {7*1024}\nv_add_u32 v{vBq+q}, s{S_T0}, v{vB}')
        S_KI = [0, 1, 3, 4, 5, 22, 23]
        for i in range(7):
            e(f's_add_u32 s{S_T0}, s{S_W}, {4*i}\ns_mul_i32 s{S_T1}, s{S_T0}, 37\ns_lshr_b32 s{S_T1}, s{S_T1}, 8')
            e(f's_mul_i32 s{S_T2}, s{S_T1}, 7\ns_sub_u32 s{S_T0}, s{S_T0}, s{S_T2}\ns_add_u32 s{S_T1}, s{S_T1}, s{S_ROT}\ns_and_b32 s{S_T1}, s{S_T1}, 3')
            e(f's_mul_i32 s{S_T1}, s{S_T1}, 7\ns_add_u32 s{S_KI[i]}, s{S_T1}, s{S_T0}')
        self.wd_setup()
        self.pb = dict(locals())

    def phaseB(self):
        e = self.e; V = self.V; o = self.o
        self.c('================= phase B')
        pb = self.pb
        L_H, HG, L_STP, HS, S_HB, S_MB = pb['L_H'], pb['HG'], pb['L_STP'], pb['HS'], pb['S_HB'], pb['S_MB']
        vD, vB, vS, t, t2, vA, vG2, sg2, NB, cs, ones, B, SB, SG = [pb[k] for k in 'vD vB vS t t2 vA vG2 sg2 NB cs ones B SB SG'.split()]
        acc, st, par, tmp, pk, vP, vPw, K1, K2, K3, KD, vBq, vS2 = [pb[k] for k in 'acc st par tmp pk vP vPw K1 K2 K3 KD vBq vS2'.split()]
        self.stamp(14)
        HCS = o.get('hcs', True); vC = pb['vC']
        self.wait_vm('we')
        if HCS: self.poll_flags(WS_FLAG2, 64, 4, sleep=self.o.get('wsleep', 2))
        else: self.poll_flags(WS_FLAG2 + (32 if o.get('hfirst', True) else 0)*FLAG_STRIDE, 64, 4, last_lanes=32, sleep=self.o.get('wsleep', 2))
        self.stamp(15)
        zk = [k for k in range(self.K0, 28) if self.W1SLOT[k] >= 12]
        for k in zk: self.w1_read(k, k + 1)
        self.wait_all_lg(); e('s_barrier')
        self.rest_k = [k for k in range(self.K0, 28) if k not in zk]
        self.vm.drain(); self.lg.drain()
        self.stamp(16)
        def hdma(g, i, tag=None):
            d = lambda: self.vmem(f'buffer_load_dwordx4 v{vD}, s[{R_WS}:{R_WS+3}], s{S_T1} offen {o.get("hflags", "sc1")} lds', tag or f'h{g}')
            d.isvm = True
            r = [lambda: e(f's_add_u32 m0, s{S_MB}, {L_H + HS(g) + i*4096}'),
                 lambda: e(f's_add_u32 s{S_T1}, s{S_HB}, {i*4*16*HT_STRIDE + 64*g}'), d]
            for x in r: x.hoist = True
            return r
        S_KI = pb['S_KI']; PROG = o.get('prog', True)
        for i in range(7):
            e(f's_lshl_b32 m0, s{S_KI[i]}, 10\ns_mul_i32 s{S_T1}, s{S_KI[i]}, {16*HT_STRIDE}')
            self.vmem(f'buffer_load_dwordx4 v{vD}, s[{R_WS}:{R_WS+3}], s{S_T1} offen {o.get("hflags", "sc1")} lds', 'h0a' if (i < 3 and PROG) else 'h0')
        for k in self.rest_k: self.w1_read(k, k + 1)
        self.wait_all_lg()
        V.free(self.vTS, 5); V.free(self.vW1)
        if HCS:
            e(f's_mov_b32 s{S_T2}, {1792*4}')
            self.vmem(f'buffer_load_dword v{cs}, v{vC}, s[{R_WS}:{R_WS+3}], 0 offen sc1', 'cs')
            self.vmem(f'buffer_load_dword v{cs+16}, v{vC}, s[{R_WS}:{R_WS+3}], s{S_T2} offen sc1', 'cs')
        else: self.cs_mfma(self.K0, 28)
        csA = V.alloc(8, 4); mB = V.alloc(4, 4)
        for i in range(1, 4): e(f'v_mov_b32 v{mB+i}, 0\nv_mov_b32 v{csA+i}, 0\nv_mov_b32 v{csA+4+i}, 0')
        def build_csA():
            for u in range(2):
                c_ = cs + 16 * u; d_ = csA + 4 * u
                e(f'v_cvt_pk_bf16_f32 v{d_}, v{c_}, v{c_}\nv_lshlrev_b32 v{d_}, 16, v{d_}\nv_sub_f32 v{c_+1}, v{c_}, v{d_}')
                e(f'v_cvt_pk_bf16_f32 v{d_}, v{c_}, v{c_+1}')
                e(f'v_cmp_gt_u32 vcc, 32, v1\nv_cndmask_b32 v{d_}, 0, v{d_}, vcc')
        if not HCS: build_csA()
        H1F = o.get('h1fill', True)
        if not H1F:
            for i in range(7):
                for f in hdma(1, i): f()
        def rdB(g, k):
            s = k % NB
            for h_ in range(2):
                self.ds(f'ds_read_b64_tr_b16 {vr(B+4*s+2*h_,2)}, v{vBq + k//7} offset:{HS(g) + (k%7)*1024 + 512*h_}', f'B{g}_{k}')
        def st_reads(g):
            for k_ in range(2): self.ds(f'ds_read_b64 {vr(st+2*k_,2)}, v{vP} offset:{(g&1)*512 + 256*k_}', f'st{g}')
        def fin_ops(g):
            nm, rsl, s2 = par, par + 1, par + 2; ops = []
            save = self.lines; self.lines = []
            if g == 0:
                self.ln_finalize(st, st + 1, st + 2, st + 3, st + 4)
            else:
                e(f'v_lshlrev_b32 v{st+2}, 16, v{sg2+2*(g-1)}')
                e(f'v_and_b32 v{st+3}, 0xffff0000, v{sg2+2*(g-1)}')
            e(f'v_cvt_pk_bf16_f32 v{mB}, -v{st+2}, -v{st+2}')
            e(f'v_rcp_f32 v{st+4}, v{st+3}')
            e(f'v_mul_f32 v{s2}, v{st+3}, v{st+3}')
            e(f'v_mul_f32 v{rsl}, {fx(-LOG2E)}, v{st+4}')
            fl = self.lines; self.lines = save
            if g == 0:
                def fin0():
                    self.wait_lg('st0')
                    e(f'v_add_f32 v{st}, v{st}, v{st+2}')
                ops.append(fin0)
                ops.append(lambda: e(f'v_add_f32 v{st+1}, v{st+1}, v{st+3}'))
            for l in fl: ops.append(lambda l=l: e(l))
            return ops
        def fold_mfma(g, u):
            A_ = acc[g & 1] + 16 * u
            return lambda: e(f'v_mfma_f32_32x32x16_bf16 {vr(A_,16)}, {vr(csA+4*u,4)}, {vr(mB,4)}, {vr(A_,16)}')
        def epilogue_ops(g):
            A_ = acc[g & 1]; ops = []; delayed = []
            nm, rsl, s2 = par, par + 1, par + 2
            def el(r):
                G_, U_, T_ = A_ + r, A_ + 16 + r, tmp + (r & 7)
                return [f'v_mul_f32 v{T_}, v{rsl}, v{G_}',
                        f'v_mul_f32 v{G_}, v{G_}, v{U_}',
                        f'v_exp_f32 v{T_}, v{T_}',
                        f'v_fma_f32 v{T_}, v{T_}, v{s2}, v{s2}',
                        f'v_rcp_f32 v{T_}, v{T_}',
                        f'v_mul_f32 v{G_}, v{G_}, v{T_}']
            for q in range(4):
                els = [el(4*q + x) for x in range(4)]
                for s_ in range(6):
                    for x in range(4): ops.append((lambda l=els[x][s_]: e(l), 2 if s_ in (2, 4) else 1))
                for x in range(2):
                    r = 4*q + 2*x
                    cv_ = lambda r=r: e(f'v_cvt_pk_bf16_f32 v{pk + r//2}, v{A_+r}, v{A_+r+1}')
                    cv_.cvtmark = r // 2
                    ops.append(cv_)
                if q in (1, 3) and not (o.get('x_nost') and g < 3):
                    kk = q >> 1
                    stf = lambda kk=kk: self.vmem(f'buffer_store_dwordx4 {vr(pk+4*kk,4)}, v{vA}, s[{R_WS}:{R_WS+3}], s{S_T4} offen offset:{1024*kk} {o.get("actflags", "sc1")}', 'act')
                    if g < 3 and o.get('stdelay', True):
                        delayed.append([10, (stf, o.get('cst', 6))])
                    else: ops.append(stf)
            if delayed:
                res = []; pend = []
                marks = [i for i, x in enumerate(ops) if getattr(x, 'cvtmark', None) is not None]
                di = 0
                for i, x in enumerate(ops):
                    res.append(x)
                    if getattr(x, 'cvtmark', None) in (3, 7): pend.append([8, delayed[di][1]]); di += 1
                    for p in pend: p[0] -= 1
                    while pend and pend[0][0] <= 0:
                        it = pend.pop(0)[1]; it[0].hoist = True; res.append(it)
                for p in pend: res.append(p[1])
                ops = res
            return ops
        DS = 1.5
        def rdB1(g, k, h_):
            s = (28 * g + k) % NB
            return (lambda: self.ds(f'ds_read_b64_tr_b16 {vr(B+4*s+2*h_,2)}, v{vBq + k//7} offset:{HS(g) + (k%7)*1024 + 512*h_}', f'B{g}_{k}'), DS)
        def rs(g, i):
            sb = SB + 4 * (i & 1); out = []
            for h_ in range(2):
                b_, off = (vS, HS(g) + i*2048 + 1024*h_) if HS(g) < 57344 else (vS2, i*2048 + 1024*h_)
                out.append((lambda b_=b_, off=off, h_=h_, sb=sb, i=i: self.ds(f'ds_read_b64_tr_b16 {vr(sb+2*h_,2)}, v{b_} offset:{off}', f'S{g}_{i}'), DS))
            return out
        def s2_loads():
            return [lambda gg=gg: self.vmem(f'buffer_load_dwordx2 {vr(sg2+2*(gg-1),2)}, v{vG2}, s[{R_WS}:{R_WS+3}], 0 offen offset:{256*gg} sc1', 'sg2') for gg in range(1, 4)]
        def s2_check():
            l0 = self.lab('s2'); l1 = self.lab('s2d')
            self.wait_vm('sg2')
            e(f's_mov_b32 s{S_CNT}, 0')
            self.label(l0)
            e(f'v_cmp_ne_u32 vcc, s{S_NONCE}, v{sg2+1}')
            for gg in (2, 3): e(f'v_cmp_ne_u32 s[{S_M2}:{S_M2+1}], s{S_NONCE}, v{sg2+2*gg-1}\ns_or_b64 vcc, vcc, s[{S_M2}:{S_M2+1}]')
            e(f's_cbranch_vccz {l1}')
            for gg in range(1, 4): e(f'buffer_load_dwordx2 {vr(sg2+2*(gg-1),2)}, v{vG2}, s[{R_WS}:{R_WS+3}], 0 offen offset:{256*gg} sc1')
            e('s_waitcnt vmcnt(0)')
            e(f's_add_u32 s{S_CNT}, s{S_CNT}, 1\ns_cmp_lt_u32 s{S_CNT}, {SPIN_MAX}\ns_cbranch_scc1 {l0}')
            self.label(l1)
        def red_ops(g):
            return [lambda: e(f'v_cndmask_b32 v{SG}, v{SG}, v{SG+1}, s[{K1}:{K1+1}]'),
                    lambda: e(f'v_cndmask_b32 v{SG}, v{SG}, v{SG+2}, s[{K2}:{K2+1}]'),
                    lambda: e(f'v_cndmask_b32 v{SG+5}, v{SG}, v{SG+3}, s[{K3}:{K3+1}]'),
                    lambda: e(f's_mov_b64 exec, s[{KD}:{KD+1}]'),
                    lambda: self.ds(f'ds_write_b64 v{vPw}, {vr(SG+4,2)} offset:{(g&1)*512}', f'stw{g}'),
                    lambda: e('s_mov_b64 exec, -1')]
        self.wait_vm('h0a' if PROG else 'h0'); self.wait_all_lg(); e('s_barrier')
        self.stamp(17)
        for k in range(4):
            for h_ in range(2): rdB1(0, k, h_)[0]()
        if not PROG:
            for f in rs(0, 0) + rs(0, 1): f[0]()
        mains = []; segs = []
        KB = 22
        KF = 3
        for g in range(4):
            A_ = acc[g & 1]; base = len(mains); pos = {}
            for k in range(28):
                cg = '0' if k == 0 else vr(A_, 16); cu = '0' if k == 0 else vr(A_ + 16, 16)
                pre = []
                if g == 1 and k == 2: pre.append(lambda: e('s_barrier'))
                if g in (2, 3) and k == 2: pre.append(lambda: e('s_barrier'))
                if g == 0 and k == 8 and PROG:
                    pre.append(lambda: self.wait_vm('h0')); pre.append(lambda: e('s_barrier'))
                if k == KB:
                    if g < 3: pre.append(lambda g=g: self.wait_vm(f'h{g+1}'))
                    if g == 0: pre.append(lambda g=g: self.wait_lg(f'stw{g}'))
                    pre.append(lambda: e('s_barrier'))
                    if o.get('passstamps'): pre.append(lambda g=g: self.stamp(26 + g))
                pre.append(lambda k=k, g=g: self.wait_lg(f'B{g}_{k}'))
                nx = (g, k + 4) if k + 4 < 28 else ((g + 1, k + 4 - 28) if g < 3 else None)
                p0 = [rdB1(nx[0], nx[1], 0)] if nx else []; p1 = [rdB1(nx[0], nx[1], 1)] if nx else []
                pos[k] = len(mains)
                mains.append((pre, lambda k=k, cg=cg, A_=A_, g=g: e(f'v_mfma_f32_32x32x16_bf16 {vr(A_,16)}, {ar(8*k,4)}, {vr(B+4*((28*g+k)%NB),4)}, {cg}'), 32, p0))
                mains.append(([], lambda k=k, cu=cu, A_=A_, g=g: e(f'v_mfma_f32_32x32x16_bf16 {vr(A_+16,16)}, {ar(8*k+4,4)}, {vr(B+4*((28*g+k)%NB),4)}, {cu}'), 32, p1))
                if g > 0 and k == KF:
                    for u_ in range(2): mains.append(([], fold_mfma(g - 1, u_), 32, []))
                if g == 0:
                    gpos = [10, 11, 13, 14, 16, 17, 19] if PROG else [0, 3, 6, 9, 12, 15, 18]
                    spos = gpos if PROG else [x + 1 for x in gpos]
                    if k in gpos:
                        i_ = gpos.index(k); sb = SB + 4 * (i_ & 1); c_ = '0' if i_ == 0 else vr(SG, 4)
                        mains.append(([lambda i_=i_, g=g: self.wait_lg(f'S{g}_{i_}')], lambda sb=sb, c_=c_: e(f'v_mfma_f32_16x16x32_bf16 {vr(SG,4)}, {vr(sb,4)}, {vr(sb,4)}, {c_}'), 16, []))
                    if k in spos:
                        i_ = spos.index(k); sb = SB + 4 * (i_ & 1); c_ = '0' if i_ == 0 else vr(SG + 4, 4)
                        mains.append(([], lambda sb=sb, c_=c_: e(f'v_mfma_f32_16x16x32_bf16 {vr(SG+4,4)}, {vr(ones,4)}, {vr(sb,4)}, {c_}'), 16,
                                      rs(g, i_ + 2) if i_ + 2 < 7 else []))
            def addpost(k, items, which=0):
                pre_, m_, d_, post_ = mains[pos[k] + which]
                mains[pos[k] + which] = (pre_, m_, d_, post_ + items)
            if g == 0:
                addpost(KB - 1, red_ops(g), 1)
                if PROG:
                    r0 = rs(0, 0) + rs(0, 1)
                    addpost(8, r0[:2], 0); addpost(8, r0[2:], 1)
            if g == 3:
                for i_ in range(9):
                    rr = [(f, DS) for f in self.wd_reads(i_)]
                    for q in range(4): addpost(10 + 2*i_ + (q >> 1), [rr[q]], q & 1)
                pre_, m_, d_, post_ = mains[pos[10]]
                mains[pos[10]] = (pre_, m_, d_, post_[:1] + [lambda: self.wait_vm('wdA')] + post_[1:])
            if g == 1:
                addpost(o.get('s2k', 12), s2_loads(), 1)
                if not o.get('x_nos2'): addpost(27, [(s2_check, 8)], 1)
            ep = []
            if g > 0:
                fo = ([lambda: st_reads(0)] if g == 1 else []) + [lambda g=g: e(f's_mov_b32 s{S_T4}, {(g-1)*112*1024}')] + fin_ops(g - 1)
                segs.append((base, pos[KF] + 1, fo))
                ep += epilogue_ops(g - 1)
            mf = []; mf2 = []
            if g == 0 and HCS:
                _, bl = self.capture(build_csA)
                ep = [lambda: self.wait_vm('cs')] + bl
            if g == 0:
                if H1F:
                    for i in range(7): mf2 += hdma(1, i)
                for i in range(7): mf += hdma(2, i)
            if g == 0:
                pass
            mf3 = []
            if g == 1:
                for i in range(7): mf2 += hdma(3, i)
                for k_ in range(0, 5): mf3 += self.wd_dma(k_, 'wdA')
            if g == 2:
                for k_ in range(5, 9): mf3 += self.wd_dma(k_, 'wdA')
                for k_ in range(9, 12): mf3 += self.wd_dma(k_, 'wdB')
            if g == 3:
                for k_ in range(12, 15): mf3 += self.wd_dma(k_, 'wdC')
            if o.get('x_noep'): ep = []
            CD = o.get('cdma', 1)
            def costed(lst):
                out = []
                for x in lst:
                    f = x[0] if isinstance(x, tuple) else x
                    vm = getattr(f, 'isvm', False)
                    out.append((f, CD) if vm else x)
                return out
            mf, mf2, mf3 = costed(mf), costed(mf2), costed(mf3)
            merged = []; a_, c_ = list(ep), list(mf)
            ra = len(a_) / max(1, len(a_) + len(c_)); acc_ = 0.0
            while a_ or c_:
                acc_ += ra
                if (acc_ >= 1.0 - 1e-9 and a_) or not c_:
                    acc_ -= 1.0; merged.append(a_.pop(0))
                else: merged.append(c_.pop(0))
            end = len(mains) if g < 3 else len(mains) - 2
            if o.get('x_nowd'): mf3 = []
            if mf2: segs.append((pos[2], pos[12], mf2) if g else (pos[0], pos[6], mf2))
            if mf3: segs.append((pos[12] if mf2 else pos[2], pos[27] if g < 3 else pos[10], mf3))
            segs.append((pos[8] if (g == 0 and H1F) else (pos[KF + 2] if g > 0 else base), end, merged))
        self.sched(mains, None, segs=segs)
        self.stamp(18)
        e(f's_mov_b32 s{S_T4}, {3*112*1024}')
        for f in fin_ops(3): f()
        for u_ in range(2): fold_mfma(3, u_)()
        for f in epilogue_ops(3): (f[0] if isinstance(f, tuple) else f)()
        self.stamp(19)
        for x, n in ((vD,1),(vB,1),(vS,1),(t,1),(t2,1),(cs,32),(vA,1),(vG2,1),(vC,1),(sg2,6),(B,4*NB),(SB,8),(ones,4),(SG,8),(acc[0],32),(acc[1],32),(st,6),(par,3),(tmp,8),(pk,8),(vP,1),(vPw,1),(vBq,4),(vS2,1),(csA,8),(mB,4)):
            V.free(x, n)
        pass
        self.wait_lg('wdr3')
        for k_ in range(15, 19):
            for f in self.wd_dma(k_, 'wdD'): f()
        self.wait_vm('act'); e('s_barrier')
        e(f's_lshl_b32 s{S_T1}, s{S_RB}, 4\ns_add_u32 s{S_T1}, s{S_T1}, s{S_FB}')
        self.signal(WS_FLAG3, f's{S_T1}')
        self.stamp(20)

    def phaseC(self):
        e = self.e; V = self.V; o = self.o
        self.c('================= phase C')
        t = V.alloc(1); t2 = V.alloc(1)
        self.wait_all_lg()
        for k_ in range(19, 24):
            for f in self.wd_dma(k_, 'wdE'): f()
        self.wait_vm('wdC')
        for k_ in range(9, 15):
            for f in self.wd_reads(k_): f()
        self.wait_all_lg()
        for k_ in range(24, 28):
            for f in self.wd_dma(k_, 'wdF'): f()
        self.stamp(21)
        self.wait_vm('wdF')
        e(f's_lshr_b32 s{S_T0}, s{S_RB2}, 1\ns_mul_i32 s{S_T0}, s{S_T0}, {16*FLAG_STRIDE}')
        self.poll_flags(WS_FLAG3, 16, 1, sbase=S_T0, sleep=self.o.get('wsleep3', 1))
        self.vm.drain(); self.lg.drain()
        self.stamp(22)
        vA = V.alloc(1)
        e(f's_mul_i32 s{S_T0}, s{S_RB2}, {2*112}\ns_mul_i32 s{S_T1}, s{S_W}, 28\ns_add_u32 s{S_T0}, s{S_T0}, s{S_T1}\ns_lshl_b32 s{S_T0}, s{S_T0}, 10\ns_add_u32 s{S_T0}, s{S_T0}, {WS_ACT}\nv_lshl_add_u32 v{vA}, v1, 4, s{S_T0}')
        NR = o.get('NR', 10)
        Bf = V.alloc(4 * NR, 4); acc = V.alloc(64, 4)
        def ld(i):
            nt, k = divmod(i, 28)
            e(f's_add_u32 s{S_T1}, s{S_RA0 + k//7}, {(nt*112 + k%7)*1024}')
            self.vmem(f'buffer_load_dwordx4 {vr(Bf+4*(i%NR),4)}, v{vA}, s[{R_WS}:{R_WS+3}], s{S_T1} offen {o.get("aflags", "sc1")}', f'a{i}')
        for i in range(NR): ld(i)
        for k_ in range(15, 28):
            for f in self.wd_reads(k_): f()
        self.wait_all_lg(); e('s_barrier')
        V.free(self.vWD, 2); V.free(self.vWT, 6)
        hres = V.alloc(8, 4); vR = V.alloc(1)
        e(f's_lshl_b32 s{S_T0}, s{S_RB2}, 1\ns_and_b32 s{S_T1}, s{S_W}, 1\ns_add_u32 s{S_T0}, s{S_T0}, s{S_T1}\ns_mul_i32 s{S_T0}, s{S_T0}, 28')
        e(f's_lshl_b32 s{S_T1}, s{S_DB}, 2\ns_add_u32 s{S_T0}, s{S_T0}, s{S_T1}\ns_and_b32 s{S_T1}, s{S_W}, 2\ns_add_u32 s{S_T0}, s{S_T0}, s{S_T1}\ns_lshl_b32 s{S_T0}, s{S_T0}, 10\ns_add_u32 s{S_T0}, s{S_T0}, {WS_HD}\nv_lshl_add_u32 v{vR}, v1, 4, s{S_T0}')
        vO = V.alloc(1); dummy = V.alloc(1)
        e(f'v_and_b32 v{t}, 31, v1\nv_mul_u32_u24 v{vO}, 896, v{t}\nv_lshrrev_b32 v{t}, 5, v1\nv_lshl_add_u32 v{vO}, v{t}, 4, v{vO}')
        e(f's_lshl_b32 s{S_T0}, s{S_RB2}, 1\ns_and_b32 s{S_T1}, s{S_W}, 1\ns_add_u32 s{S_T0}, s{S_T0}, s{S_T1}\ns_mul_i32 s{S_T0}, s{S_T0}, {32*896}')
        e(f's_lshl_b32 s{S_T1}, s{S_DB}, 7\ns_add_u32 s{S_T0}, s{S_T0}, s{S_T1}\ns_and_b32 s{S_T1}, s{S_W}, 2\ns_lshl_b32 s{S_T1}, s{S_T1}, 5\ns_add_u32 s{S_T0}, s{S_T0}, s{S_T1}\nv_add_u32 v{vO}, s{S_T0}, v{vO}')
        A = lambda mt, nt: acc + 16 * (2 * mt + nt)
        ra = V.alloc(1)
        e(f's_lshl_b32 s{S_T0}, s{S_W}, 12\nv_lshl_add_u32 v{ra}, v1, 4, s{S_T0}')
        def redw(T, q): return lambda: self.ds(f'ds_write_b128 v{ra}, {vr(acc+16*T+4*q,4)} offset:{T*16384 + q*1024}', 'redw')
        mains = []
        for i in range(56):
            nt, k = divmod(i, 28)
            for mt in range(2):
                cin = '0' if k == 0 else vr(A(mt, nt), 16)
                pre = [lambda i=i: self.wait_vm(f'a{i}')] if mt == 0 else []
                post = []
                if mt == 1 and i + NR < 56: post = [lambda i=i: ld(i + NR)]
                if mt == 1 and i == 30 and o.get('touch_out', True):
                    post = post + [lambda: self.vmem(f'buffer_load_dword v{dummy}, v{vO}, s[{R_OUT}:{R_OUT+3}], 0 offen', 'dummy')]
                if mt == 1 and i == 56 - NR:
                    post = post + [lambda kk=kk: self.vmem(f'buffer_load_dwordx4 {vr(hres+4*kk,4)}, v{vR}, s[{R_WS}:{R_WS+3}], 0 offen offset:{1024*kk} sc1', 'hres') for kk in range(2)]
                mains.append((pre, lambda mt=mt, nt=nt, k=k, i=i, cin=cin: e(f'v_mfma_f32_32x32x16_bf16 {vr(A(mt,nt),16)}, {ar(8*k+4*mt,4)}, {vr(Bf+4*(i%NR),4)}, {cin}'), 32, post))
        self.sched(mains, None, segs=[(62, 100, [(redw(T, q), 3) for T in (0, 2) for q in range(4)])])
        self.stamp(23)
        V.free(Bf, 4 * NR)
        for T in (1, 3):
            for q in range(4): redw(T, q)()
        self.wait_all_lg()
        e('s_barrier')
        rr = V.alloc(64, 4); keep = rr
        e(f's_lshl_b32 s{S_T0}, s{S_W}, 14\nv_lshl_add_u32 v{ra}, v1, 4, s{S_T0}')
        for j in range(4):
            for q in range(4): self.ds(f'ds_read_b128 {vr(rr+16*j+4*q,4)}, v{ra} offset:{j*4096 + q*1024}', f'rr{j}')
        for j in range(1, 4):
            self.wait_lg(f'rr{j}')
            for i in range(0, 16, 2): e(f'v_pk_add_f32 {vr(keep+i,2)}, {vr(keep+i,2)}, {vr(rr+16*j+i,2)}')
        self.wait_vm('hres')
        P = V.alloc(8, 4); w8 = rr + 16
        for d in range(8): e(f'v_cvt_pk_bf16_f32 v{P+d}, v{keep+2*d}, v{keep+2*d+1}')
        for d in range(8):
            e(f'v_lshlrev_b32 v{w8+2*d}, 16, v{P+d}\nv_and_b32 v{w8+2*d+1}, 0xffff0000, v{P+d}')
            e(f'v_lshlrev_b32 v{w8+16+2*d}, 16, v{hres+d}\nv_and_b32 v{w8+16+2*d+1}, 0xffff0000, v{hres+d}')
        for d in range(8): e(f'v_pk_add_f32 {vr(w8+2*d,2)}, {vr(w8+2*d,2)}, {vr(w8+16+2*d,2)}')
        for d in range(8): e(f'v_cvt_pk_bf16_f32 v{P+d}, v{w8+2*d}, v{w8+2*d+1}')
        for kk in range(2):
            b = P + 4 * kk
            e(f'v_permlane32_swap_b32 v{b}, v{b+2}\nv_permlane32_swap_b32 v{b+1}, v{b+3}')
        for kk in range(2):
            self.vmem(f'buffer_store_dwordx4 {vr(P+4*kk,4)}, v{vO}, s[{R_OUT}:{R_OUT+3}], 0 offen offset:{32*kk} {o.get("outflags", "")}', 'out')
        self.stamp(24)

    def build(self):
        e = self.e
        self.prologue()
        saveV = list(self.V.used)
        self.helper()
        self.V.used = saveV; self.vm.drain(); self.lg.drain()
        self.label('L_worker')
        self.phaseA()
        upto = self.o.get('upto', 'C')
        if upto in ('B', 'C'): self.phaseB()
        if upto == 'C': self.phaseC()
        self.stamps_out()
        if self.o.get('padto'):
            e('s_waitcnt vmcnt(0)')
            self.label('L_pad')
            e(f's_memrealtime s[{S_TS}:{S_TS+1}]\ns_waitcnt lgkmcnt(0)\ns_sub_u32 s{S_TS}, s{S_TS}, s{S_TS+6}\ns_cmp_lt_u32 s{S_TS}, {self.o.get("padto")}\ns_cbranch_scc1 L_pad')
        self.label('L_end')
        e('s_endpgm')

HEADER = open(os.path.join(os.path.dirname(os.path.abspath(__file__)), 'header.txt')).read() if os.path.exists(os.path.join(os.path.dirname(os.path.abspath(__file__)), 'header.txt')) else ''

def generate(opt):
    g = Gen(opt)
    g.build()
    lines, problems = fix_hazards(g.lines, verbose=opt.get('verbose', False))
    for p in problems: print('BACKEDGE HAZARD:', p, file=sys.stderr)
    out = [HEADER.rstrip('\n').replace('@@GRID@@', f'; @launch grid=(256,1,1) block=(256,1,1) lds={LDS_SIZE}')]
    out += ['.amdgcn_target "amdgcn-amd-amdhsa--gfx950"', '.text', f'.globl {NAME}', '.p2align 8', f'.type {NAME},@function', f'{NAME}:']
    for l in lines:
        out.append(l if l.endswith(':') else '    ' + l)
    out += ['.section .rodata,"a"', '.p2align 6', f'.amdhsa_kernel {NAME}',
            '  .amdhsa_next_free_vgpr 512', '  .amdhsa_next_free_sgpr 102', '  .amdhsa_accum_offset 256',
            '  .amdhsa_group_segment_fixed_size 0', '  .amdhsa_kernarg_size 128', '  .amdhsa_user_sgpr_count 2',
            '  .amdhsa_user_sgpr_kernarg_segment_ptr 1', '  .amdhsa_system_sgpr_workgroup_id_x 1',
            '  .amdhsa_float_denorm_mode_32 3', '.end_amdhsa_kernel', '']
    if opt.get('verbose'): print('max arch vgpr', g.V.hi, 'lines', len(lines))
    return '\n'.join(out)

if __name__ == '__main__':
    import json
    opt = json.loads(sys.argv[2]) if len(sys.argv) > 2 else {}
    opt['verbose'] = True
    txt = generate(opt)
    open(sys.argv[1], 'w').write(txt)
```

```python
import sys, os, math, struct
sys.path.insert(0, os.path.dirname(os.path.abspath(__file__)))
from asmlib import *

NAME = 'sequential_preLN__ssm_conv_s4__swiglu_ffn__prompt_kernel'
def f2u(x): return struct.unpack('<I', struct.pack('<f', x))[0]
def fx(x): return hex(f2u(x))
LOG2E = 1.4426950408889634
WS_STATS = 0x0
WS_FLAG2 = 0x4000
WS_FLAG3 = 0xC000
WS_STATS2 = 0x10000
WS_CS    = 0x14000
WS_HT    = 0x20000
HT_STRIDE = 4352
WS_HD    = 0x200000
WS_ACT   = 0x400000
WS_XT    = 0xB00000
XT_STRIDE = 4352
WS_DBG   = 0xE00000
WS_SIZE  = 0x2000000
FLAG_STRIDE = int(os.environ.get('FLAG_STRIDE', 16))
TBL_E = 1088; TBL_C = 18 * TBL_E
L_TBL = 0
L_EX = 2 * TBL_C
L_K32 = 55680; K32_C = 9344
L_RED = L_K32
L_STG = 87040; STG_SLOT = 8192
L_STGX = 74496
L_KC = 0; KC_S = 4160; KC_C = 4 * KC_S
L_U = 2 * KC_C; U_C = 5120
L_X = L_U + 2 * U_C; X_C = 4096
LDS_SIZE = 163840
HX_STRIDE = 912
S_X, S_ARE, S_AIM, S_BRE, S_BIM, S_CRE, S_CIM, S_LDT, S_DSK, S_BX, S_WG, S_WU, S_WD, S_OUT, S_DBG, S_WS = range(4, 36, 2)
R_X, R_WS, R_DBG, R_WG, R_WU, R_WD, R_OUT = 36, 40, 44, 48, 52, 56, 60
S_W, S_NONCE, S_XCD, S_J, S_CP, S_T0, S_T1, S_T2, S_T3, S_T4, S_T5 = 64, 65, 66, 67, 68, 69, 70, 71, 72, 73, 74
S_LD, S_DK = 75, 76
S_RB, S_FB, S_RB2, S_DB = 77, 78, 79, 80
S_M0, S_M1, S_M2, S_M3 = 82, 84, 86, 88
S_CNT = 90
S_HID = 91
S_WM, S_WO, S_US = 81, 100, 101
S_ROT = 99
S_WA, S_WB, S_WC = 18, 19, 20
S_RW0, S_RA0 = 24, 28
S_Q0 = 14
S_TS = 92
SPIN_MAX = 50000

class Gen(Asm):
    def __init__(self, opt):
        super().__init__()
        self.o = opt
        self.V = Regs('v', 256, start=2)
        if opt.get('stamps'): self.V.take(254, 2)
        self.V.take(250, 4)
        self.uid = 0
    def lab(self, s):
        self.uid += 1
        return f'L{s}_{self.uid}'
    def srd(self, r, ptr, size):
        self.e(f's_mov_b32 s{r}, s{ptr}\ns_mov_b32 s{r+1}, s{ptr+1}\ns_mov_b32 s{r+2}, {hex(size)}\ns_mov_b32 s{r+3}, 0x20000')
    def cmul(self, d, a, b, t=None):
        t = d if t is None else t
        self.e(f'v_pk_mul_f32 {vr(t,2)}, {vr(a,2)}, {vr(b,2)} op_sel:[0,0] op_sel_hi:[0,1]')
        self.e(f'v_pk_fma_f32 {vr(d,2)}, {vr(a,2)}, {vr(b,2)}, {vr(t,2)} op_sel:[1,1,0] op_sel_hi:[1,0,1] neg_lo:[0,1,0]')
    def cmul_multi(self, items):
        for d, a, b, t in items:
            t = d if t is None else t
            self.e(f'v_pk_mul_f32 {vr(t,2)}, {vr(a,2)}, {vr(b,2)} op_sel:[0,0] op_sel_hi:[0,1]')
        for d, a, b, t in items:
            t = d if t is None else t
            self.e(f'v_pk_fma_f32 {vr(d,2)}, {vr(a,2)}, {vr(b,2)}, {vr(t,2)} op_sel:[1,1,0] op_sel_hi:[1,0,1] neg_lo:[0,1,0]')
    def stamp(self, i):
        dm = self.o.get('dbgmap')
        if dm and i in dm:
            lab = self.lab('ds')
            self.e(f's_cmp_lg_u32 s2, {self.o.get("dbgwg", 8)}\ns_cbranch_scc1 {lab}\ns_cmp_lg_u32 s{S_W}, 0\ns_cbranch_scc1 {lab}')
            self.e(f's_memrealtime s[{S_TS}:{S_TS+1}]\ns_waitcnt lgkmcnt(0)')
            v = self.V.alloc(2)
            self.e(f's_sub_u32 s{S_TS}, s{S_TS}, s{S_TS+6}\nv_mov_b32 v{v}, s{S_TS}\nv_mov_b32 v{v+1}, {4*(1+dm.index(i))}')
            self.e(f's_mov_b64 s[{S_TS+4}:{S_TS+5}], exec\ns_mov_b64 exec, 1')
            self.e(f'buffer_store_dword v{v}, v{v+1}, s[{R_DBG}:{R_DBG+3}], 0 offen')
            self.e(f's_mov_b64 exec, s[{S_TS+4}:{S_TS+5}]')
            self.V.free(v, 2)
            self.label(lab)
            self.e('s_waitcnt lgkmcnt(0)')
            self.lg.drain()
        if self.o.get('stamps') and (self.o.get('only') is None or i in self.o['only']):
            self.e(f's_memrealtime s[{S_TS}:{S_TS+1}]\ns_memtime s[{S_TS+4}:{S_TS+5}]')
            self.e('s_waitcnt lgkmcnt(0)'); self.lg.drain()
            self.e(f'v_writelane_b32 v254, s{S_TS}, {i}\nv_writelane_b32 v255, s{S_TS+4}, {i}')

    def stamps_out(self):
        if self.o.get('stamps'):
            e = self.e
            e(f's_lshl_b32 s{S_TS+2}, s2, 10\ns_lshl_b32 s{S_TS+3}, s{S_W}, 8\ns_add_u32 s{S_TS+2}, s{S_TS+2}, s{S_TS+3}\ns_add_u32 s{S_TS+2}, s{S_TS+2}, {WS_DBG}')
            e(f'v_lshl_add_u32 v252, v1, 2, s{S_TS+2}\ns_mov_b32 exec_lo, -1\ns_mov_b32 exec_hi, 0')
            e(f'buffer_store_dword v254, v252, s[{R_WS}:{R_WS+3}], 0 offen\nbuffer_store_dword v255, v252, s[{R_WS}:{R_WS+3}], 0 offen offset:128')

    def prologue(self):
        e = self.e
        e(f's_cmp_ge_u32 s2, 256\ns_cbranch_scc1 L_end')
        e(f's_load_dwordx16 s[4:19], s[0:1], 0\ns_load_dwordx16 s[20:35], s[0:1], 64')
        e(f's_memrealtime s[{S_M0}:{S_M0+1}]')
        e('v_and_b32 v1, 63, v0')
        if self.o.get('codepf', True):
            lpc = self.lab('pc'); a = 250
            e(f's_getpc_b64 s[{S_M2}:{S_M2+1}]')
            self.label(lpc)
            e(f's_sub_u32 s{S_M2}, s{S_M2}, {lpc}-{NAME}\ns_subb_u32 s{S_M2+1}, s{S_M2+1}, 0')
            e(f's_lshr_b32 s{S_T0}, s2, 3\ns_lshl_b32 s{S_T0}, s{S_T0}, 4')
            e(f'v_lshrrev_b32 v{a}, 6, v0\nv_lshl_add_u32 v{a}, v{a}, 2, v1\nv_add_u32 v{a}, s{S_T0}, v{a}\nv_lshlrev_b32 v{a}, 7, v{a}\nv_min_u32 v{a}, L_end-{NAME}, v{a}')
            e(f'v_mov_b32 v{a+3}, s{S_M2+1}\nv_add_co_u32 v{a+2}, vcc, s{S_M2}, v{a}\nv_addc_co_u32 v{a+3}, vcc, 0, v{a+3}, vcc')
            e(f's_mov_b64 s[{S_M1}:{S_M1+1}], exec\ns_mov_b64 exec, 15')
            e(f'global_load_dword v{a+1}, v[{a+2}:{a+3}], off')
            e(f's_mov_b64 exec, s[{S_M1}:{S_M1+1}]')
        if self.o.get('stamps'): e('v_mov_b32 v254, 0x5a5a5a5a\nv_mov_b32 v255, 0x5a5a5a5a')
        v = self.V.alloc(1)
        e(f'v_lshrrev_b32 v{v}, 6, v0')
        e(f's_and_b32 s{S_XCD}, s2, 7\ns_lshr_b32 s{S_J}, s2, 3')
        e(f'v_readfirstlane_b32 s{S_W}, v{v}')
        self.V.free(v)
        last = self.o.get('hlast', False)
        if self.o.get('hfirst', True):
            e(f's_cmp_lt_u32 s{S_J}, 4\ns_cbranch_scc1 L_helper')
            e(f's_sub_u32 s{S_J}, s{S_J}, 4\ns_mul_i32 s{S_CP}, s{S_XCD}, 28\ns_add_u32 s{S_CP}, s{S_CP}, s{S_J}')
            if not last: e('s_branch L_worker')
        else:
            assert not last
            e(f's_mul_i32 s{S_CP}, s{S_XCD}, 28\ns_add_u32 s{S_CP}, s{S_CP}, s{S_J}')
            e(f's_cmp_lt_u32 s{S_J}, 28\ns_cbranch_scc1 L_worker\ns_sub_u32 s{S_J}, s{S_J}, 28')

    def srds(self, skip=()):
        e = self.e
        for r, p, n in ((R_X, S_X, 2048*448*2), (R_WS, S_WS, WS_SIZE), (R_DBG, S_DBG, 256), (R_WG, S_WG, 448*1792*2), (R_WU, S_WU, 448*1792*2),
                        (R_WD, S_WD, 448*1792*2), (R_OUT, S_OUT, 2048*448*2)):
            if r not in skip: self.srd(r, p, n)

    def publish_nonce(self):
        e = self.e
        e(f's_or_b32 s{S_NONCE}, s{S_M0}, 1\ns_mov_b32 s{S_TS+6}, s{S_M0}')
        lab = self.lab('non')
        e(f's_or_b32 s{S_T0}, s2, s{S_W}\ns_cmp_lg_u32 s{S_T0}, 0\ns_cbranch_scc1 {lab}')
        v = self.V.alloc(2)
        e(f'v_mov_b32 v{v}, s{S_NONCE}\nv_mov_b32 v{v+1}, 0')
        e(f's_mov_b64 s[{S_M1}:{S_M1+1}], exec\ns_mov_b64 exec, 1')
        e(f'buffer_store_dword v{v}, v{v+1}, s[{R_DBG}:{R_DBG+3}], 0 offen sc1')
        e(f's_mov_b64 exec, s[{S_M1}:{S_M1+1}]')
        self.V.free(v, 2)
        self.label(lab)

    def capture(self, fn):
        save = self.lines; self.lines = []
        r = fn()
        fl = self.lines; self.lines = save
        return r, [(lambda l=l: self.e(l)) for l in fl if not l.startswith(';')]

    def region(self, fn):
        save = self.lines; self.lines = []
        r = fn()
        fl = self.lines; self.lines = save
        self.lines.extend(resched(fl) if self.o.get('resched', True) else fl)
        return r

    def two_paths(self, fn, nop=7):
        e = self.e; l1 = self.lab('p1'); ld = self.lab('pd')
        e(f's_and_b32 s{S_T5}, s{S_W}, 1\ns_cmp_lg_u32 s{S_T5}, 0\ns_cbranch_scc1 {l1}')
        st = (list(self.vm.q), list(self.lg.q), list(self.V.used))
        fn(0)
        e(f's_branch {ld}')
        end = (list(self.vm.q), list(self.lg.q), list(self.V.used))
        self.vm.q, self.lg.q, self.V.used = list(st[0]), list(st[1]), list(st[2])
        self.label(l1)
        e(f's_nop {nop}')
        fn(1)
        assert (self.vm.q, self.lg.q, self.V.used) == end, 'paths diverge'
        self.label(ld)

    def get_nonce(self):
        e = self.e
        v = self.V.alloc(2)
        l0 = self.lab('gn'); l1 = self.lab('gnd')
        e(f'v_mov_b32 v{v+1}, 0\ns_mov_b32 s{S_CNT}, 0')
        self.label(l0)
        e(f'buffer_load_dword v{v}, v{v+1}, s[{R_DBG}:{R_DBG+3}], 0 offen sc1')
        e('s_waitcnt vmcnt(0)'); self.vm.drain()
        e(f'v_readfirstlane_b32 s{S_NONCE}, v{v}')
        e(f's_cmp_lg_u32 s{S_NONCE}, 0\ns_cbranch_scc1 {l1}')
        e(f's_add_u32 s{S_CNT}, s{S_CNT}, 1\ns_cmp_lt_u32 s{S_CNT}, {SPIN_MAX}\ns_cbranch_scc1 {l0}')
        self.label(l1)
        self.V.free(v, 2)

    def helper(self):
        e = self.e; V = self.V
        self.c('================= helper: x^T + LN1 stats')
        e('s_waitcnt lgkmcnt(0)')
        self.srd(R_DBG, S_DBG, 256)
        if self.o.get('hfirst', True): self.publish_nonce()
        self.srd(R_X, S_X, 2048*448*2)
        e(f's_mov_b32 s{S_TS+6}, s{S_M0}')
        e(f's_lshl_b32 s{S_T0}, s{S_XCD}, 2\ns_add_u32 s{S_HID}, s{S_J}, s{S_T0}')
        va = V.alloc(1); t0 = V.alloc(1); t1 = V.alloc(1)
        e(f's_lshl_b32 s{S_T0}, s{S_HID}, 6\ns_lshl_b32 s{S_T1}, s{S_W}, 4\ns_add_u32 s{S_T0}, s{S_T0}, s{S_T1}')
        e(f's_mul_i32 s{S_T2}, s{S_T0}, 896\ns_mul_i32 s{S_T3}, s{S_T1}, {HX_STRIDE}')
        e(f'v_lshlrev_b32 v{va}, 4, v1')
        e(f's_mov_b64 s[{S_M1}:{S_M1+1}], exec\ns_mov_b32 exec_lo, -1\ns_mov_b32 exec_hi, 0x00ffffff')
        for r in range(16):
            e(f's_add_u32 m0, s{S_T3}, {r*HX_STRIDE}\ns_add_u32 s{S_T4}, s{S_T2}, {r*896}')
            self.vmem(f'buffer_load_dwordx4 v{va}, s[{R_X}:{R_X+3}], s{S_T4} offen lds', 'x')
        e(f's_mov_b64 exec, s[{S_M1}:{S_M1+1}]')
        self.srds(skip=(R_X, R_DBG))
        self.stamp(0)
        vT = V.alloc(1); vO = V.alloc(1); vA = V.alloc(1)
        e(f'v_lshrrev_b32 v{t0}, 4, v1\nv_lshlrev_b32 v{t0}, 1, v{t0}\nv_bfe_u32 v{t1}, v1, 1, 1\nv_add_u32 v{t0}, v{t0}, v{t1}\nv_lshlrev_b32 v{t0}, 3, v{t0}')
        e(f'v_bfe_u32 v{t1}, v1, 2, 2\nv_add_u32 v{t0}, v{t0}, v{t1}\nv_mul_u32_u24 v{vT}, {HX_STRIDE}, v{t0}')
        e(f'v_and_b32 v{t1}, 1, v1\nv_lshl_add_u32 v{vT}, v{t1}, 3, v{vT}\ns_lshl_b32 s{S_T0}, s{S_W}, 4\nv_add_u32 v{vT}, s{S_T0}, v{vT}')
        e(f's_lshl_b32 s{S_T0}, s{S_W}, 15\ns_lshl_b32 s{S_T1}, s{S_HID}, 10\ns_add_u32 s{S_T0}, s{S_T0}, s{S_T1}\ns_add_u32 s{S_T0}, s{S_T0}, {WS_XT}\nv_lshl_add_u32 v{vO}, v1, 4, s{S_T0}')
        e(f'v_and_b32 v{t0}, 15, v1\nv_lshrrev_b32 v{t1}, 4, v1')
        e(f's_lshl_b32 s{S_T0}, s{S_W}, 4\nv_add_u32 v{t0}, s{S_T0}, v{t0}\nv_mul_u32_u24 v{vA}, {HX_STRIDE}, v{t0}\nv_lshl_add_u32 v{vA}, v{t1}, 4, v{vA}')
        e(f's_lshl_b32 s{S_T0}, s{S_HID}, 6\nv_add_u32 v{t0}, s{S_T0}, v{t0}')
        XG = self.o.get('xg', True)
        self.get_nonce()
        Q = V.alloc(56, 4)
        if not XG:
            e('s_barrier')
            self.stamp(3)
            for u in range(14):
                for k_ in range(2):
                    self.ds(f'ds_read_b64_tr_b16 {vr(Q+4*u+2*k_,2)}, v{vT} offset:{64*u + 4*k_*HX_STRIDE}', f'q{u}')
            for u in range(14):
                self.wait_lg(f'q{u}')
                e(f's_mov_b32 s{S_T1}, {u*4*32768}')
                self.vmem(f'buffer_store_dwordx4 {vr(Q+4*u,4)}, v{vO}, s[{R_WS}:{R_WS+3}], s{S_T1} offen sc1', 'xt')
            self.stamp(4)
        else: self.stamp(3)
        xa = V.alloc(56, 4)
        for s in range(14): self.ds(f'ds_read_b128 {vr(xa+4*s,4)}, v{vA} offset:{64*s}', f'x{s}')
        acc = V.alloc(8, 4); ones = V.alloc(4, 4)
        for i in range(4): e(f'v_mov_b32 v{ones+i}, 0x3f803f80')
        e(f's_mov_b32 s6, 0x22222222\ns_mov_b32 s7, 0x22222222\ns_mov_b32 s8, 0x44444444\ns_mov_b32 s9, 0x44444444\ns_mov_b32 s10, 0x88888888\ns_mov_b32 s11, 0x88888888\ns_mov_b32 s12, 0x00f0000f\ns_mov_b32 s13, 0xf0000f00')
        for s in range(14):
            self.wait_lg(f'x{s}')
            e(f'v_mfma_f32_16x16x32_bf16 {vr(acc,4)}, {vr(xa+4*s,4)}, {vr(xa+4*s,4)}, {"0" if s == 0 else vr(acc,4)}')
            e(f'v_mfma_f32_16x16x32_bf16 {vr(acc+4,4)}, {vr(ones,4)}, {vr(xa+4*s,4)}, {"0" if s == 0 else vr(acc+4,4)}')
        e(f'v_cndmask_b32 v{acc}, v{acc}, v{acc+1}, s[6:7]\nv_cndmask_b32 v{acc}, v{acc}, v{acc+2}, s[8:9]\nv_cndmask_b32 v{acc+5}, v{acc}, v{acc+3}, s[10:11]')
        e(f'v_mov_b32 v{acc}, v{acc+4}\nv_mov_b32 v{acc+4}, v{acc+5}')
        S = acc; Qs = acc + 4
        pk = V.alloc(2, 2)
        self.ln_finalize(S, Qs, acc + 1, acc + 2, acc + 3)
        e(f'v_lshrrev_b32 v{pk}, 16, v{acc+1}\nv_or_b32 v{pk}, v{pk}, v{acc+2}')
        self.stamp(5)
        if not XG:
            self.wait_all_vm()
            e('s_barrier')
        self.stamp(6)
        e(f'v_mov_b32 v{pk+1}, s{S_NONCE}')
        e(f'v_lshlrev_b32 v{t0}, 3, v{t0}')
        if WS_STATS: e(f'v_add_u32 v{t0}, {WS_STATS}, v{t0}')
        e(f's_mov_b64 s[{S_M1}:{S_M1+1}], exec\ns_mov_b64 exec, s[12:13]')
        self.vmem(f'buffer_store_dwordx2 {vr(pk,2)}, v{t0}, s[{R_WS}:{R_WS+3}], 0 offen sc1', 'st')
        e(f's_mov_b64 exec, s[{S_M1}:{S_M1+1}]')
        self.stamp(1)
        V.free(pk, 2); V.free(acc, 8); V.free(ones, 4); V.free(xa, 56); V.free(Q, 56); V.free(vT); V.free(vO); V.free(vA)
        e('s_barrier')
        if self.o.get('hcs', True):
            self.c('helper: column sums')
            wv = V.alloc(28 * 4, 4); cs = V.alloc(8, 2)
            lg = self.lab('hg'); ld = self.lab('hd')
            e(f'v_lshrrev_b32 v{t0}, 4, v0\nv_and_b32 v{t1}, 15, v0')
            e(f'v_mul_u32_u24 v{va}, 3584, v{t0}\nv_min_u32 v{t1}, 13, v{t1}\nv_lshl_add_u32 v{va}, v{t1}, 4, v{va}')
            e(f's_and_b32 s{S_T0}, s{S_HID}, 15\ns_mul_i32 s{S_T0}, s{S_T0}, 224')
            e(f'v_add_u32 v{va}, s{S_T0}, v{va}')
            e(f's_cmp_ge_u32 s{S_HID}, 16\ns_cbranch_scc1 {lg}')
            save = list(self.vm.q)
            for k in range(28):
                e(f's_mov_b32 s{S_T1}, {k*16*3584}')
                self.vmem(f'buffer_load_dwordx4 {vr(wv+4*k,4)}, v{va}, s[{R_WG}:{R_WG+3}], s{S_T1} offen', f'w{k}')
            e(f's_branch {ld}')
            self.label(lg)
            self.vm.q = list(save)
            for k in range(28):
                e(f's_mov_b32 s{S_T1}, {k*16*3584}')
                self.vmem(f'buffer_load_dwordx4 {vr(wv+4*k,4)}, v{va}, s[{R_WU}:{R_WU+3}], s{S_T1} offen', f'w{k}')
            self.label(ld)
            e(f's_mov_b32 s{S_T2}, 0x00003f80\ns_mov_b32 s{S_T3}, 0x3f800000')
            for i in range(8): e(f'v_mov_b32 v{cs+i}, 0')
            for k in range(28):
                self.wait_vm(f'w{k}')
                for r in range(4):
                    e(f'v_dot2_f32_bf16 v{cs+2*r}, v{wv+4*k+r}, s{S_T2}, v{cs+2*r}')
                    e(f'v_dot2_f32_bf16 v{cs+2*r+1}, v{wv+4*k+r}, s{S_T3}, v{cs+2*r+1}')
            tmp = V.alloc(8, 2)
            for swap in ('v_permlane32_swap_b32', 'v_permlane16_swap_b32'):
                for i in range(8): e(f'v_mov_b32 v{tmp+i}, v{cs+i}')
                for i in range(8): e(f'{swap} v{cs+i}, v{tmp+i}')
                for i in range(8): e(f'v_add_f32 v{cs+i}, v{cs+i}, v{tmp+i}')
            e(f'v_and_b32 v{t1}, 15, v1\nv_lshlrev_b32 v{t0}, 5, v{t1}\ns_lshl_b32 s{S_T0}, s{S_W}, 9\nv_add_u32 v{t0}, s{S_T0}, v{t0}')
            self.ds(f'ds_write_b128 v{t0}, {vr(cs,4)}'); self.ds(f'ds_write_b128 v{t0}, {vr(cs+4,4)} offset:16')
            self.wait_all_lg(); e('s_barrier')
            e(f'v_lshlrev_b32 v{t0}, 2, v0')
            for w in range(4): self.ds(f'ds_read_b32 v{tmp+w}, v{t0} offset:{512*w}')
            self.wait_all_lg()
            e(f'v_add_f32 v{tmp}, v{tmp}, v{tmp+1}\nv_add_f32 v{tmp+2}, v{tmp+2}, v{tmp+3}\nv_add_f32 v{tmp}, v{tmp}, v{tmp+2}')
            e(f's_mul_i32 s{S_T0}, s{S_HID}, 448\ns_add_u32 s{S_T0}, s{S_T0}, {WS_CS}\nv_add_u32 v{t0}, s{S_T0}, v{t0}')
            e(f'v_cmp_gt_u32 vcc, 112, v0\ns_and_saveexec_b64 s[{S_M1}:{S_M1+1}], vcc')
            lx = self.lab('hcs')
            e(f's_cbranch_execz {lx}')
            e(f'buffer_store_dword v{tmp}, v{t0}, s[{R_WS}:{R_WS+3}], 0 offen sc1')
            self.label(lx)
            e(f's_mov_b64 exec, s[{S_M1}:{S_M1+1}]')
            V.free(tmp, 8); V.free(cs, 8); V.free(wv, 112)
            self.wait_all_vm(); e('s_barrier')
            self.signal(WS_FLAG2, 's2')
            self.stamp(10)
        tw = self.o.get('touch_wd', 'mall')
        if tw:
            nl = 13 if tw == 'l2' else 2
            tv = V.alloc(13); ta = V.alloc(2)
            if tw == 'l2': e(f's_mul_i32 s{S_T0}, s{S_J}, {448*896}')
            else: e(f's_mul_i32 s{S_T0}, s{S_HID}, {56*896}')
            for k in range(nl):
                e(f'v_add_u32 v{ta}, {256*k}, v0\nv_min_u32 v{ta}, {3135 if tw == "l2" else 391}, v{ta}\nv_mul_u32_u24 v{ta+1}, 9363, v{ta}\nv_lshrrev_b32 v{ta+1}, 16, v{ta+1}')
                e(f'v_mul_u32_u24 v{tv+k}, 7, v{ta+1}\nv_sub_u32 v{ta}, v{ta}, v{tv+k}\nv_mul_u32_u24 v{ta+1}, 896, v{ta+1}\nv_lshl_add_u32 v{ta+1}, v{ta}, 7, v{ta+1}')
                e(f'buffer_load_dword v{tv+k}, v{ta+1}, s[{R_WD}:{R_WD+3}], s{S_T0} offen')
            self.wait_all_vm()
            V.free(tv, 13); V.free(ta, 2)
        self.c('helper: LN2 stats + hD')
        vD = V.alloc(1); vB = V.alloc(2); vS = V.alloc(1); vHs = V.alloc(1)
        e(f'v_lshrrev_b32 v{t0}, 3, v1\nv_mul_u32_u24 v{vD}, {HT_STRIDE}, v{t0}\nv_bfe_u32 v{t0}, v1, 4, 1\nv_lshlrev_b32 v{t0}, 2, v{t0}\nv_and_b32 v{t1}, 7, v1\nv_xor_b32 v{t0}, v{t0}, v{t1}\nv_lshl_add_u32 v{vD}, v{t0}, 4, v{vD}')
        e(f's_lshl_b32 s{S_T0}, s{S_HID}, 7\ns_mul_i32 s{S_T1}, s{S_W}, {8*HT_STRIDE}\ns_add_u32 s{S_T0}, s{S_T0}, s{S_T1}\ns_add_u32 s{S_T0}, s{S_T0}, {WS_HT}\nv_add_u32 v{vD}, s{S_T0}, v{vD}')
        e(f'v_lshrrev_b32 v{t0}, 5, v1\nv_lshlrev_b32 v{vB}, 9, v{t0}\nv_bfe_u32 v{t0}, v1, 2, 2\nv_lshl_add_u32 v{vB}, v{t0}, 7, v{vB}')
        e(f'v_bfe_u32 v{t0}, v1, 4, 1\nv_lshl_add_u32 v{vB}, v{t0}, 5, v{vB}\nv_and_b32 v{t0}, 3, v1\nv_lshl_add_u32 v{vB}, v{t0}, 3, v{vB}')
        e(f'v_bfe_u32 v{t0}, v1, 3, 1\nv_lshlrev_b32 v{t0}, 6, v{t0}\nv_xor_b32 v{t1}, 64, v{t0}\nv_add_u32 v{vB+1}, v{vB}, v{t1}\nv_add_u32 v{vB}, v{vB}, v{t0}')
        e(f'v_lshrrev_b32 v{t0}, 4, v1\nv_lshlrev_b32 v{vS}, 9, v{t0}\nv_bfe_u32 v{t0}, v1, 2, 2\nv_lshl_add_u32 v{vS}, v{t0}, 7, v{vS}\nv_and_b32 v{t0}, 3, v1\nv_lshl_add_u32 v{vS}, v{t0}, 3, v{vS}')
        e(f'v_bfe_u32 v{t0}, v1, 3, 1\ns_lshr_b32 s{S_T0}, s{S_W}, 1\nv_xor_b32 v{t0}, s{S_T0}, v{t0}\nv_lshl_add_u32 v{vS}, v{t0}, 6, v{vS}\ns_and_b32 s{S_T0}, s{S_W}, 1\ns_lshl_b32 s{S_T0}, s{S_T0}, 5\nv_add_u32 v{vS}, s{S_T0}, v{vS}')
        e(f's_mul_i32 s{S_T0}, s{S_HID}, {2*28}\ns_add_u32 s{S_T0}, s{S_T0}, s{S_W}\ns_lshl_b32 s{S_T0}, s{S_T0}, 10\ns_add_u32 s{S_T0}, s{S_T0}, {WS_HD}\nv_lshl_add_u32 v{vHs}, v1, 4, s{S_T0}')
        ones = V.alloc(4, 4); SG = V.alloc(8, 4); SB = V.alloc(56, 4)
        for i in range(4): e(f'v_mov_b32 v{ones+i}, 0x3f803f80')
        K1, K2, K3 = 6, 8, 10
        e(f's_mov_b32 s{K1}, 0x22222222\ns_mov_b32 s{K1+1}, 0x22222222\ns_mov_b32 s{K2}, 0x44444444\ns_mov_b32 s{K2+1}, 0x44444444')
        e(f's_mov_b32 s{K3}, 0x88888888\ns_mov_b32 s{K3+1}, 0x88888888\ns_mov_b32 s12, 0x00f0000f\ns_mov_b32 s13, 0xf0000f00')
        if self.o.get('sentinel', True):
            self.poll_flags(WS_FLAG2 + (255 if self.o.get('hfirst', True) else 223)*FLAG_STRIDE, 1, 1, sleep=self.o.get('hsleep', 20))
        self.poll_flags(WS_FLAG2 + (32 if self.o.get('hfirst', True) else 0)*FLAG_STRIDE, 64, 4, last_lanes=32, sleep=self.o.get('hsleep2', 4))
        self.vm.drain(); self.lg.drain()
        self.stamp(7)
        e(f's_lshl_b32 s{S_T2}, s{S_W}, 10')
        for i in range(14):
            e(f's_add_u32 m0, s{S_T2}, {i*4096}\ns_mov_b32 s{S_T1}, {i*32*HT_STRIDE}')
            self.vmem(f'buffer_load_dwordx4 v{vD}, s[{R_WS}:{R_WS+3}], s{S_T1} offen sc1 lds', 'h')
        self.wait_all_vm(); e('s_barrier')
        self.stamp(8)
        for i in range(14):
            for h_ in range(2): self.ds(f'ds_read_b64_tr_b16 {vr(SB+4*i+2*h_,2)}, v{vS} offset:{i*4096 + 2048*h_}', f's{i}')
        for i in range(14):
            self.wait_lg(f's{i}')
            e(f'v_mfma_f32_16x16x32_bf16 {vr(SG,4)}, {vr(SB+4*i,4)}, {vr(SB+4*i,4)}, {"0" if i == 0 else vr(SG,4)}')
            e(f'v_mfma_f32_16x16x32_bf16 {vr(SG+4,4)}, {vr(ones,4)}, {vr(SB+4*i,4)}, {"0" if i == 0 else vr(SG+4,4)}')
        HB = V.alloc(56, 4)
        e(f'v_cndmask_b32 v{SG}, v{SG}, v{SG+1}, s[{K1}:{K1+1}]\nv_cndmask_b32 v{SG}, v{SG}, v{SG+2}, s[{K2}:{K2+1}]\nv_cndmask_b32 v{SG+5}, v{SG}, v{SG+3}, s[{K3}:{K3+1}]')
        self.ln_finalize(SG + 4, SG + 5, SG + 1, SG + 2, SG + 3)
        e(f'v_lshrrev_b32 v{SG}, 16, v{SG+1}\nv_or_b32 v{SG}, v{SG}, v{SG+2}\nv_mov_b32 v{SG+1}, s{S_NONCE}')
        e(f'v_and_b32 v{t0}, 15, v1\ns_lshl_b32 s{S_T0}, s{S_HID}, 6\ns_lshl_b32 s{S_T1}, s{S_W}, 4\ns_add_u32 s{S_T0}, s{S_T0}, s{S_T1}\nv_add_u32 v{t0}, s{S_T0}, v{t0}\nv_lshlrev_b32 v{t0}, 3, v{t0}\nv_add_u32 v{t0}, {WS_STATS2}, v{t0}')
        e(f's_mov_b64 s[{S_M1}:{S_M1+1}], exec\ns_mov_b64 exec, s[12:13]')
        self.vmem(f'buffer_store_dwordx2 {vr(SG,2)}, v{t0}, s[{R_WS}:{R_WS+3}], 0 offen sc1', 'st2')
        e(f's_mov_b64 exec, s[{S_M1}:{S_M1+1}]')
        self.stamp(9)
        e(f's_lshl_b32 s{S_T0}, s{S_W}, 11\nv_add_u32 v{vB}, s{S_T0}, v{vB}\nv_add_u32 v{vB+1}, s{S_T0}, v{vB+1}')
        for i in range(7):
            for gp in range(2):
                for h_ in range(2):
                    self.ds(f'ds_read_b64_tr_b16 {vr(HB+8*i+4*gp+2*h_,2)}, v{vB+gp} offset:{i*8192 + 1024*h_}', f'hb{i}_{gp}')
        for i in range(7):
            for gp in range(2):
                self.wait_lg(f'hb{i}_{gp}')
                e(f's_mov_b32 s{S_T1}, {(gp*28 + 4*i)*1024}')
                self.vmem(f'buffer_store_dwordx4 {vr(HB+8*i+4*gp,4)}, v{vHs}, s[{R_WS}:{R_WS+3}], s{S_T1} offen sc1', 'hd')
        self.wait_all_vm(); e('s_barrier')
        e(f's_lshr_b32 s{S_T1}, s{S_HID}, 1\ns_lshl_b32 s{S_T1}, s{S_T1}, 4\ns_and_b32 s{S_T2}, s{S_HID}, 1\ns_add_u32 s{S_T1}, s{S_T1}, s{S_T2}\ns_add_u32 s{S_T1}, s{S_T1}, 14')
        self.signal(WS_FLAG3, f's{S_T1}')
        self.stamp(2)
        self.stamps_out()
        e('s_branch L_end')

    def signal(self, base, sidx):
        e = self.e; V = self.V
        lab = self.lab('sig')
        e(f's_cmp_lg_u32 s{S_W}, 0\ns_cbranch_scc1 {lab}')
        v = V.alloc(2, 2)
        e(f's_mul_i32 s{S_T0}, {sidx}, {FLAG_STRIDE}\ns_add_u32 s{S_T0}, s{S_T0}, {base}')
        e(f'v_mov_b32 v{v}, s{S_NONCE}\nv_mov_b32 v{v+1}, s{S_T0}')
        e(f's_mov_b64 s[{S_M1}:{S_M1+1}], exec\ns_mov_b64 exec, 1')
        e(f'buffer_store_dword v{v}, v{v+1}, s[{R_WS}:{R_WS+3}], 0 offen sc1')
        e(f's_mov_b64 exec, s[{S_M1}:{S_M1+1}]')
        V.free(v, 2)
        self.label(lab)

    def rbf(self, d, s, pre=''):
        self.e(f'v_cvt_pk_bf16_f32 v{d}, v{s}, v{s}\nv_lshlrev_b32 v{d}, 16, v{d}')
    def ln_finalize(self, S, Q, dm, ds_, dt):
        e = self.e
        e(f'v_mul_f32 v{S}, {fx(1/448)}, v{S}')
        e(f'v_mul_f32 v{Q}, {fx(1/448)}, v{Q}')
        e(f'v_fma_f32 v{Q}, -v{S}, v{S}, v{Q}')
        e(f'v_max_f32 v{Q}, 0, v{Q}')
        self.rbf(dm, S)
        self.rbf(dt, Q)
        e(f'v_add_f32 v{dt}, {fx(1e-5)}, v{dt}')
        self.rbf(dt, dt)
        e(f'v_sqrt_f32 v{dt}, v{dt}')
        self.rbf(ds_, dt)

    def w1_setup(self):
        e = self.e; V = self.V
        self.vW1 = V.alloc(1); self.vTS = V.alloc(5)
        t = V.alloc(1); t2 = V.alloc(1)
        e(f'v_lshrrev_b32 v{t}, 4, v1\nv_mul_u32_u24 v{self.vW1}, 3584, v{t}\nv_lshlrev_b32 v{t}, 2, v{t}\nv_and_b32 v{t2}, 15, v1\nv_xor_b32 v{t}, v{t}, v{t2}\nv_lshl_add_u32 v{self.vW1}, v{t}, 4, v{self.vW1}')
        e(f's_lshl_b32 s{S_T0}, s{S_FB}, 8\ns_mul_i32 s{S_T1}, s{S_W}, {4*3584}\ns_add_u32 s{S_T0}, s{S_T0}, s{S_T1}\nv_add_u32 v{self.vW1}, s{S_T0}, v{self.vW1}')
        e(f's_lshl_b32 s{S_WM}, s{S_W}, 10\ns_add_u32 s{S_WM}, s{S_WM}, {L_STG}')
        a = self.vTS
        e(f'v_lshrrev_b32 v{t}, 5, v1\nv_lshlrev_b32 v{a}, 10, v{t}\nv_bfe_u32 v{t}, v1, 2, 2\nv_lshl_add_u32 v{a}, v{t}, 8, v{a}')
        e(f'v_xor_b32 v{t}, s{S_W}, v{t}\nv_lshl_add_u32 v{a}, v{t}, 6, v{a}')
        e(f'v_bfe_u32 v{t}, v1, 4, 1\nv_lshl_add_u32 v{a}, v{t}, 5, v{a}\nv_and_b32 v{t}, 3, v1\nv_lshl_add_u32 v{a}, v{t}, 3, v{a}')
        e(f'v_add_u32 v{a+1}, {L_STGX}, v{a}\nv_add_u32 v{a+2}, {L_STG + 65536}, v{a}\nv_add_u32 v{a+3}, 57344, v{a}\nv_mov_b32 v{a+4}, v{a}\nv_add_u32 v{a}, {L_STG}, v{a}')
        for q in range(4):
            e(f's_add_u32 s{S_T0}, s{S_ROT}, {q}\ns_and_b32 s{S_T0}, s{S_T0}, 3\ns_mul_i32 s{S_Q0+q}, s{S_T0}, {7*16*3584}')
        V.free(t); V.free(t2)
    @property
    def W1SLOT(self):
        if self.o.get('xg', True):
            if self.o.get('wsched', 'B') == 'B': return [0,1,2, 3,4,5,6,7,8,9, 0,1,2, 3,4,5,6,7,8,9, 10,11, 12,13,14,15,16,17]
            return [0,1,2,3,4, 5,6,7,8,9, 0,1,2,3, 4,5,6,7,8,9, 10,11, 12,13,14,15,16,17]
        return [0,1,2,3,4, 5,6,7,8,9, 0,1,2,3,4, 0,1,2,3,5,6,7,8,9, 10,11,12,13]
    def w1_slot_off(self, k):
        s = self.W1SLOT[k]
        return s * STG_SLOT if s < 9 else (L_STGX - L_STG if s == 9 else (57344 + (s - 10)*STG_SLOT - L_STG if s < 12 else (s - 12)*STG_SLOT - L_STG))
    def w1_dma(self, k, tag, slot=None):
        e = self.e; sl = self.w1_slot_off(k)
        def m0(x): return f's_add_u32 m0, s{S_WM}, {x}' if x >= 0 else f's_sub_u32 m0, s{S_WM}, {-x}'
        return [lambda: e(f's_add_u32 s{S_WO}, s{S_Q0 + k // 7}, {(k % 7)*16*3584}'),
                lambda: e(m0(sl)),
                lambda: self.vmem(f'buffer_load_dwordx4 v{self.vW1}, s[{R_WG}:{R_WG+3}], s{S_WO} offen lds', tag),
                lambda: e(m0(sl + 4096)),
                lambda: self.vmem(f'buffer_load_dwordx4 v{self.vW1}, s[{R_WU}:{R_WU+3}], s{S_WO} offen lds', tag)]
    def w1_issue(self, k0, k1, tag):
        for k in range(k0, k1):
            for f in self.w1_dma(k, tag): f()
    def w1_reads(self, k):
        s = self.W1SLOT[k]
        if s == 9: a, sl = self.vTS + 1, 0
        elif s >= 12: a, sl = self.vTS + 4, (s - 12) * STG_SLOT
        elif s >= 10: a, sl = self.vTS + 3, (s - 10) * STG_SLOT
        else: a, sl = self.vTS, s * STG_SLOT
        assert sl + 6144 < 65536 + 8192
        out = []
        for q in range(4):
            off = sl + 2048 * q
            aa = a
            if off >= 65536: aa, off = self.vTS + 2, off - 65536
            out.append(lambda q=q, aa=aa, off=off: self.ds(f'ds_read_b64_tr_b16 {ar(8*k+2*q,2)}, v{aa} offset:{off}', 'w1r'))
        return out
    def w1_read(self, k0, k1):
        for k in range(k0, k1):
            for f in self.w1_reads(k): f()

    def phaseA(self):
        e = self.e; V = self.V; o = self.o
        self.c('================= phase A')
        par = V.alloc(6); t0 = V.alloc(1); t1 = V.alloc(1)
        e(f's_lshl_b32 s{S_T1}, s{S_CP}, 10\nv_lshl_add_u32 v{t0}, v0, 2, s{S_T1}\ns_lshl_b32 s{S_T0}, s{S_CP}, 2')
        e('s_waitcnt lgkmcnt(0)')
        for i, sp in enumerate((S_ARE, S_AIM, S_BRE, S_BIM, S_CRE, S_CIM)):
            self.vmem(f'global_load_dword v{par+i}, v{t0}, s[{sp}:{sp+1}]', 'par')
        e(f's_load_dword s{S_LD}, s[{S_LDT}:{S_LDT+1}], s{S_T0}\ns_load_dword s{S_DK}, s[{S_DSK}:{S_DSK+1}], s{S_T0}')
        self.srds()
        if not o.get('hfirst', True): self.publish_nonce()
        e(f's_mov_b32 s{S_TS+6}, s{S_M0}')
        self.stamp(0)
        XG = o.get('xg', True)
        xg = V.alloc(8); xa0 = V.alloc(1); xa1 = V.alloc(1)
        e(f's_lshl_b32 s{S_T0}, s{S_CP}, 2\nv_mul_u32_u24 v{xa0}, 7168, v0\nv_add_u32 v{xa0}, s{S_T0}, v{xa0}\nv_add_u32 v{xa1}, 4480, v{xa0}')
        def xgather(k):
            if k < 5: self.vmem(f'buffer_load_dword v{xg+k}, v{xa0}, s[{R_X}:{R_X+3}], 0 offen offset:{896*k}', 'xg')
            else: self.vmem(f'buffer_load_dword v{xg+k}, v{xa1}, s[{R_X}:{R_X+3}], 0 offen offset:{896*(k-5)}', 'xg')
        self.xgather = xgather
        tch = V.alloc(6, 2); self.tch = tch
        if o.get('touch_x', False):
            e(f's_lshl_b32 s{S_T0}, s{S_J}, 6\ns_lshl_b32 s{S_T1}, s{S_W}, 4\ns_add_u32 s{S_T0}, s{S_T0}, s{S_T1}')
            e(f'v_add_u32 v{tch}, s{S_T0}, v1\nv_mul_u32_u24 v{tch+1}, 9363, v{tch}\nv_lshrrev_b32 v{tch+1}, 16, v{tch+1}')
            e(f'v_mul_u32_u24 v{tch+2}, 7, v{tch+1}\nv_sub_u32 v{tch}, v{tch}, v{tch+2}\ns_lshl_b32 s{S_T0}, s{S_XCD}, 8\nv_add_u32 v{tch+1}, s{S_T0}, v{tch+1}')
            e(f'v_mul_u32_u24 v{tch+1}, 896, v{tch+1}\nv_lshl_add_u32 v{tch+1}, v{tch}, 7, v{tch+1}')
            e(f's_mov_b64 s[{S_M1}:{S_M1+1}], exec\ns_mov_b64 exec, 0xffff')
            self.vmem(f'buffer_load_dword v{tch+3}, v{tch+1}, s[{R_X}:{R_X+3}], 0 offen', 'tx')
            e(f's_mov_b64 exec, s[{S_M1}:{S_M1+1}]')
        self.map_bc()
        if o.get('touch_w1', False):
            e(f'v_mul_u32_u24 v{t1}, 4682, v0\nv_lshrrev_b32 v{t1}, 16, v{t1}\nv_mul_u32_u24 v{tch}, 14, v{t1}\nv_sub_u32 v{tch}, v0, v{tch}')
            e(f's_lshl_b32 s{S_T0}, s{S_J}, 4\nv_add_u32 v{t1}, s{S_T0}, v{t1}\nv_mul_u32_u24 v{t1}, 3584, v{t1}\nv_lshl_add_u32 v{t1}, v{tch}, 7, v{t1}')
            e(f's_and_b32 s{S_T0}, s{S_XCD}, 1\ns_mul_i32 s{S_T0}, s{S_T0}, 1792\nv_add_u32 v{t1}, s{S_T0}, v{t1}')
            e(f'v_cmp_gt_u32 vcc, 224, v0\ns_and_saveexec_b64 s[{S_M1}:{S_M1+1}], vcc')
            la = self.lab('tw'); e(f's_cbranch_execz {la}')
            self.vmem(f'buffer_load_dword v{tch}, v{t1}, s[{R_WG}:{R_WG+3}], 0 offen', 'tw')
            self.vmem(f'buffer_load_dword v{tch+1}, v{t1}, s[{R_WU}:{R_WU+3}], 0 offen', 'tw')
            self.label(la); e(f's_mov_b64 exec, s[{S_M1}:{S_M1+1}]')
        self.w1_setup()
        TW = o.get('touch_w1', False)
        if XG:
            for k in range(o.get('xg0', 4)): xgather(k)
        elif not TW: self.w1_issue(0, o.get('w0', 2), 'wa')
        self.stamp(1)
        ga = V.alloc(12, 2)
        self.ga = ga
        e(f'v_lshlrev_b32 v{t0}, 3, v0\nv_sub_u32 v{t0}, 2048, v{t0}')
        for k in range(1, 12):
            e(f'v_subrev_u32 v{ga+k-1}, {k}, v{t0}')
        e(f'v_mov_b32 v{ga+11}, 0')
        tt = V.alloc(2, 2)
        for k in range(0, 12, 2):
            a, b = ga + k, ga + k + 1
            e(f'v_max_i32 v{tt}, 0, v{a}\nv_max_i32 v{tt+1}, 0, v{b}')
            e(f'v_cvt_f32_u32 v{tt}, v{tt}\nv_cvt_f32_u32 v{tt+1}, v{tt+1}')
            e(f'v_cvt_pk_bf16_f32 v{t1}, v{tt}, v{tt+1}')
            e(f'v_lshlrev_b32 v{tt}, 16, v{t1}\nv_and_b32 v{tt+1}, 0xffff0000, v{t1}')
            e(f'v_cvt_u32_f32 v{tt}, v{tt}\nv_cvt_u32_f32 v{tt+1}, v{tt+1}')
            for x, r in ((tt, a), (tt + 1, b)):
                e(f'v_lshrrev_b32 v{t1}, 3, v{x}\nv_add_u32 v{x}, v{x}, v{t1}')
                if k >= 8:
                    e(f'v_cmp_gt_i32 vcc, 0, v{r}\nv_mov_b32 v{t1}, 2320\nv_cndmask_b32 v{x}, v{x}, v{t1}, vcc')
                e(f'v_lshlrev_b32 v{x}, 2, v{x}\nv_add_u32 v{r}, {L_K32}, v{x}')
        V.free(tt, 2)
        e('s_waitcnt lgkmcnt(0)'); self.lg.drain()
        e(f's_lshr_b32 s{S_T0}, s{S_W}, 1\ns_lshl_b32 s{S_T0}, s{S_T0}, 4')
        e(f's_lshr_b32 s{S_LD}, s{S_LD}, s{S_T0}\ns_lshl_b32 s{S_LD}, s{S_LD}, 16')
        e(f's_lshr_b32 s{S_DK}, s{S_DK}, s{S_T0}\ns_lshl_b32 s{S_DK}, s{S_DK}, 16')
        dt = V.alloc(2, 2); tt = V.alloc(2, 2)
        L_hi = struct.unpack('<f', struct.pack('<f', LOG2E))[0]; L_lo = LOG2E - L_hi
        e(f'v_mov_b32 v{dt}, s{S_LD}\nv_mul_f32 v{tt}, {fx(L_hi)}, v{dt}')
        e(f's_mov_b32 s{S_T1}, {fx(L_hi)}')
        e(f'v_fma_f32 v{tt+1}, v{dt}, s{S_T1}, -v{tt}\nv_fmac_f32 v{tt+1}, {fx(L_lo)}, v{dt}')
        e(f'v_exp_f32 v{tt}, v{tt}\nv_mul_f32 v{tt+1}, {fx(math.log(2))}, v{tt+1}')
        e(f'v_fma_f32 v{dt}, v{tt}, v{tt+1}, v{tt}')
        self.rbf(dt, dt)
        V.free(tt, 2)
        nx0 = o.get('xg0', 4)
        if XG and o.get('xgmid', False): xgather(nx0); nx0 += 1
        ka = self.kgen_setup()
        cv = self.conv_setup()
        xo = V.alloc(1)
        e(f's_lshr_b32 s{S_T0}, s{S_CP}, 2\ns_lshl_b32 s{S_T0}, s{S_T0}, 15\ns_and_b32 s{S_T1}, s{S_CP}, 3\ns_lshl_b32 s{S_T1}, s{S_T1}, 5\ns_add_u32 s{S_T0}, s{S_T0}, s{S_T1}\ns_add_u32 s{S_T0}, s{S_T0}, {WS_XT}\nv_lshl_add_u32 v{xo}, v0, 7, s{S_T0}')
        sa = V.alloc(1); nv = V.alloc(2, 2); lp = V.alloc(2, 2)
        e(f'v_lshlrev_b32 v{sa}, 6, v0\nv_mov_b32 v{nv+1}, 0')
        e(f'v_and_b32 v{lp+1}, 31, v1\nv_lshlrev_b32 v{lp+1}, 7, v{lp+1}\ns_lshl_b32 s{S_T0}, s{S_W}, 12\ns_add_u32 s{S_T0}, s{S_T0}, {WS_STATS + 4}\nv_add_u32 v{lp+1}, s{S_T0}, v{lp+1}')
        if WS_STATS: e(f'v_add_u32 v{sa}, {WS_STATS}, v{sa}')
        xs = list(range(nx0, 8))
        if XG and xs: xgather(xs.pop(0))
        self.wait_vm('par')
        self.stamp(2)
        save_lines = self.lines; self.lines = []
        sc = V.alloc(12, 2)
        e(f'v_lshlrev_b32 v{sc+4}, 16, v{par+2}\nv_and_b32 v{sc+6}, 0xffff0000, v{par+2}')
        e(f'v_lshlrev_b32 v{sc+5}, 16, v{par+3}\nv_and_b32 v{sc+7}, 0xffff0000, v{par+3}')
        e(f'v_lshlrev_b32 v{sc+8}, 16, v{par+4}\nv_and_b32 v{sc+10}, 0xffff0000, v{par+4}')
        e(f'v_lshlrev_b32 v{sc+9}, 16, v{par+5}\nv_and_b32 v{sc+11}, 0xffff0000, v{par+5}')
        e(f'v_lshlrev_b32 v{sc}, 16, v{par}\nv_and_b32 v{sc+1}, 0xffff0000, v{par}')
        e(f'v_lshlrev_b32 v{sc+2}, 16, v{par+1}\nv_and_b32 v{sc+3}, 0xffff0000, v{par+1}')
        V.free(par, 6)
        for i in (4, 5, 6, 7, 0, 1, 2, 3): e(f'v_mul_f32 v{sc+i}, v{dt}, v{sc+i}')
        V.free(dt, 2)
        Q = lambda: V.alloc(4, 4)
        tq = Q(); pkt = V.alloc(4, 2); npk = [0]
        def qmul(d, a, b):
            self.cmul_multi([(d, a, b, None), (d + 2, a + 2, b + 2, None)])
        CB = Q()
        qmul(CB, sc + 8, sc + 4)
        mx = V.alloc(2, 2)
        e(f'v_max_f32 v{mx}, |v{CB}|, |v{CB+1}|\nv_max_f32 v{mx+1}, |v{CB+2}|, |v{CB+3}|')
        e(f'v_mul_f32 v{sc}, {fx(LOG2E)}, v{sc}\nv_mul_f32 v{sc+1}, {fx(LOG2E)}, v{sc+1}')
        e(f'v_max_f32 v{mx}, v{mx}, v{mx+1}')
        e(f'v_mul_f32 v{sc+2}, {fx(1/(2*math.pi))}, v{sc+2}\nv_mul_f32 v{sc+3}, {fx(1/(2*math.pi))}, v{sc+3}')
        for mod in ('quad_perm:[1,0,3,2]', 'quad_perm:[2,3,0,1]', 'row_half_mirror', 'row_mirror'):
            e(f'v_max_f32_dpp v{mx}, v{mx}, v{mx} {mod} row_mask:0xf bank_mask:0xf')
        for swap in ('v_permlane16_swap_b32', 'v_permlane32_swap_b32'):
            e(f'v_mov_b32 v{mx+1}, v{mx}\n{swap} v{mx}, v{mx+1}\nv_max_f32 v{mx}, v{mx}, v{mx+1}')
        e(f'v_readfirstlane_b32 s{S_T0}, v{mx}')
        e(f's_lshr_b32 s{S_T0}, s{S_T0}, 23\ns_max_u32 s{S_T0}, s{S_T0}, 14\ns_min_u32 s{S_T0}, s{S_T0}, 254')
        e(f's_sub_u32 s{S_T1}, 267, s{S_T0}\ns_lshl_b32 s{S_T1}, s{S_T1}, 23\ns_sub_u32 s{S_US}, s{S_T0}, 13\ns_lshl_b32 s{S_US}, s{S_US}, 23')
        V.free(mx, 2)
        if XG:
            if xs: xgather(xs.pop(0))
        elif not TW: self.w1_issue(o.get('w0', 2), 5, 'wa2')
        def direct(dst, ex):
            for m in range(2):
                if ex == 1:
                    e(f'v_exp_f32 v{tq+m}, v{sc+m}\nv_fract_f32 v{tq+2+m}, v{sc+2+m}')
                else:
                    e(f'v_mul_f32 v{tq+m}, {fx(float(ex))}, v{sc+m}\nv_mul_f32 v{tq+2+m}, {fx(float(ex))}, v{sc+2+m}')
            if ex != 1:
                for m in range(2): e(f'v_exp_f32 v{tq+m}, v{tq+m}\nv_fract_f32 v{tq+2+m}, v{tq+2+m}')
            for m in range(2):
                e(f'v_cos_f32 v{dst+2*m}, v{tq+2+m}\nv_sin_f32 v{dst+2*m+1}, v{tq+2+m}')
            for m in range(2):
                e(f'v_mul_f32 v{dst+2*m}, v{tq+m}, v{dst+2*m}\nv_mul_f32 v{dst+2*m+1}, v{tq+m}, v{dst+2*m+1}')
        wa = V.alloc(1)
        e(f'v_and_b32 v{wa}, 127, v0\nv_lshlrev_b32 v{wa}, 3, v{wa}\ns_lshr_b32 s{S_T0}, s{S_W}, 1\ns_mul_i32 s{S_T0}, s{S_T0}, {TBL_C}\nv_add_u32 v{wa}, s{S_T0}, v{wa}')
        def put(q, ent, conj=False):
            p = pkt + 2 * (npk[0] & 1); npk[0] += 1
            n = '-' if conj else ''
            e(f'v_cvt_pk_f16_f32 v{p}, v{q}, {n}v{q+1}\nv_cvt_pk_f16_f32 v{p+1}, v{q+2}, {n}v{q+3}')
            self.ds(f'ds_write_b64 v{wa}, {vr(p,2)} offset:{ent*TBL_E}')
        one = V.alloc(2, 2)
        e(f'v_mov_b32 v{one}, 0x3c00\nv_mov_b32 v{one+1}, 0x3c00')
        for ent in (0, 4, 12): self.ds(f'ds_write_b64 v{wa}, {vr(one,2)} offset:{ent*TBL_E}')
        V.free(one, 2)
        z1 = Q(); z2 = Q(); z3 = Q(); z4 = Q(); CS = Q()
        direct(z1, 1); put(z1, 1)
        for m in range(4): e(f'v_mul_f32 v{CS+m}, s{S_T1}, v{CB+m}')
        put(CS, 8, True)
        qmul(z2, z1, z1); put(z2, 2)
        qmul(z3, z2, z1); put(z3, 3)
        qmul(z4, z2, z2); put(z4, 5)
        qmul(z1, z4, z4); put(z1, 6)
        qmul(z2, z1, z4); put(z2, 7)
        qmul(z3, z1, z1); put(z3, 16)
        qmul(z1, z3, z3)
        qmul(z4, CS, z1); put(z4, 9, True)
        qmul(z2, z1, z1)
        qmul(z4, CS, z2); put(z4, 10, True)
        qmul(z3, z2, z1)
        qmul(z4, CS, z3); put(z4, 11, True)
        qmul(z1, z2, z2); put(z1, 13, True)
        qmul(z2, z1, z1); put(z2, 14, True)
        qmul(z3, z2, z1); put(z3, 15, True)
        qmul(z1, z2, z2); put(z1, 17, True)
        if XG and xs: xgather(xs.pop(0))
        self.xs = xs
        qmul(z2, z1, z1)
        qmul(z3, z2, z2)
        c48 = V.alloc(2, 2)
        e(f'v_mul_f32 v{c48}, v{CB}, v{z3}\nv_fma_f32 v{c48}, -v{CB+1}, v{z3+1}, v{c48}')
        e(f'v_fmac_f32 v{c48}, v{CB+2}, v{z3+2}\nv_fma_f32 v{c48}, -v{CB+3}, v{z3+3}, v{c48}')
        for q in (z1, z2, z3, z4, CB, CS, tq): V.free(q, 4)
        V.free(sc, 12); V.free(wa); V.free(pkt, 4)
        for mod in ('quad_perm:[1,0,3,2]', 'quad_perm:[2,3,0,1]', 'row_half_mirror', 'row_mirror'):
            e(f'v_add_f32_dpp v{c48}, v{c48}, v{c48} {mod} row_mask:0xf bank_mask:0xf')
        for swap in ('v_permlane16_swap_b32', 'v_permlane32_swap_b32'):
            e(f'v_mov_b32 v{c48+1}, v{c48}\n{swap} v{c48}, v{c48+1}\nv_add_f32 v{c48}, v{c48}, v{c48+1}')
        fl = self.lines; self.lines = save_lines
        self.lines.extend(resched(fl) if o.get('resched', True) else fl)
        if not TW and not XG: self.wait_vm('wa')
        self.wait_all_lg(); e('s_barrier')
        self.stamp(3)
        sg = V.alloc(16, 4); XP = V.alloc(8, 4)
        def light_loads(model=True):
            a = f'buffer_load_dword v{nv}, v{nv+1}, s[{R_DBG}:{R_DBG+3}], 0 offen sc1'
            b = f'buffer_load_dword v{lp}, v{lp+1}, s[{R_WS}:{R_WS+3}], 0 offen sc1'
            if model: self.vmem(a, 'lp'); self.vmem(b, 'lp')
            else: e(a); e(b)
        def light_wait():
            l0 = self.lab('lp'); l1 = self.lab('lpd'); l2 = self.lab('lpr')
            self.wait_vm('lp')
            e(f's_mov_b32 s{S_CNT}, 0')
            self.label(l0)
            e(f'v_readfirstlane_b32 s{S_NONCE}, v{nv}')
            e(f's_cmp_eq_u32 s{S_NONCE}, 0\ns_cbranch_scc1 {l2}')
            e(f'v_cmp_ne_u32 vcc, s{S_NONCE}, v{lp}\ns_cbranch_vccz {l1}')
            self.label(l2)
            e(f's_sleep {o.get("lsleep", 2)}')
            light_loads(False)
            e('s_waitcnt vmcnt(0)')
            e(f's_add_u32 s{S_CNT}, s{S_CNT}, 1\ns_cmp_lt_u32 s{S_CNT}, {SPIN_MAX}\ns_cbranch_scc1 {l0}')
            self.label(l1)
        def data_loads():
            for i in range(4): self.vmem(f'buffer_load_dwordx4 {vr(sg+4*i,4)}, v{sa}, s[{R_WS}:{R_WS+3}], 0 offen offset:{16*i} sc1', 'sg')
            self.vmem(f'buffer_load_dwordx4 {vr(XP,4)}, v{xo}, s[{R_WS}:{R_WS+3}], 0 offen sc1', 'sg')
            self.vmem(f'buffer_load_dwordx4 {vr(XP+4,4)}, v{xo}, s[{R_WS}:{R_WS+3}], 0 offen offset:16 sc1', 'sg')
        EARLY = o.get('early', True); WB = o.get('wsched', 'B') == 'B'
        self.light_loads = light_loads
        def full_poll():
            return [lambda: self.vmem(f'buffer_load_dword v{nv}, v{nv+1}, s[{R_DBG}:{R_DBG+3}], 0 offen sc1', 'sg')] + \
                   [lambda i=i: self.vmem(f'buffer_load_dwordx4 {vr(sg+4*i,4)}, v{sa}, s[{R_WS}:{R_WS+3}], 0 offen offset:{16*i} sc1', 'sg') for i in range(4)]
        self.full_poll = full_poll
        def after_main():
            if XG: return
            if EARLY: light_wait(); data_loads()
            else: light_loads()
            if TW: self.wait_vm('wa')
            else: self.wait_vm('wa2')
        def after_b2a():
            if XG:
                if WB: self.w1_issue(1, 3, 'wa')
                else: self.w1_issue(3, 5, 'wa')
                return
            if TW: self.w1_read(0, 5)
            else: self.w1_read(o.get('w0', 2), 5)
            self.w1_issue(8, 9, 'wb')
        self.kgen_main(ka, c48, after_main, after_b2a)
        V.free(c48, 2)
        self.wait_all_lg(); e('s_barrier')
        self.stamp(4)
        gat = self.expand_gather()
        if not XG and not EARLY: light_wait(); data_loads()
        V.free(lp, 2)
        self.stamp(7)
        if XG: self.w1_issue(*( (3, 4) if WB else (5, 6) ), 'wb')
        else: self.w1_issue(9, 10, 'wb')
        self.expand_write(gat)
        if XG: self.w1_issue(*( (4, 5) if WB else (6, 7) ), 'wb')
        else: self.w1_issue(10, 11, 'wc')
        self.stamp(5)
        if XG:
            self.wait_vm('xg')
            e(f's_mov_b32 s{S_T0}, 0x05040100\ns_mov_b32 s{S_T1}, 0x07060302')
            for d in range(4):
                e(f'v_perm_b32 v{XP+d}, v{xg+2*d+1}, v{xg+2*d}, s{S_T0}\nv_perm_b32 v{XP+4+d}, v{xg+2*d+1}, v{xg+2*d}, s{S_T1}')
            self.verify_stats(sg, sa, nv, with_nonce=True)
        else: self.verify_stats(sg, sa, nv)
        V.free(nv, 2); V.free(xo); V.free(xg, 8); V.free(xa0); V.free(xa1)
        self.region(lambda: self.normalize(XP, sg))
        V.free(sg, 16); V.free(sa); V.free(XP, 8)
        if XG: self.wait_vm('wa')
        self.wait_all_lg(); e('s_barrier')
        self.stamp(6)
        if XG: self.w1_read(0, 3 if WB else 5)
        if o.get('touch_wd2', False):
            ta = V.alloc(2)
            for q in range(2):
                e(f'v_add_u32 v{ta}, {224*q}, v0\nv_mul_u32_u24 v{ta+1}, 9363, v{ta}\nv_lshrrev_b32 v{ta+1}, 16, v{ta+1}\nv_mul_u32_u24 v{tch+q}, 7, v{ta+1}\nv_sub_u32 v{ta}, v{ta}, v{tch+q}')
                e(f's_lshl_b32 s{S_T0}, s{S_J}, 6\nv_add_u32 v{ta+1}, s{S_T0}, v{ta+1}\nv_mul_u32_u24 v{ta+1}, 896, v{ta+1}\nv_lshl_add_u32 v{ta+1}, v{ta}, 7, v{ta+1}')
                e(f'v_cmp_gt_u32 vcc, 224, v0\ns_and_saveexec_b64 s[{S_M1}:{S_M1+1}], vcc')
                la = self.lab('td'); e(f's_cbranch_execz {la}')
                e(f'buffer_load_dword v{tch+2+q}, v{ta+1}, s[{R_WD}:{R_WD+3}], 0 offen')
                self.label(la); e(f's_mov_b64 exec, s[{S_M1}:{S_M1+1}]')
            V.free(ta, 2)
        fill = []
        for k in ((range(5, 10) if WB else range(7, 10)) if XG else range(11, 14)): fill += self.w1_dma(k, 'wc')
        self.conv(cv, fill)
        V.free(t0); V.free(t1)
        self.stamp(8)
        self.wait_vm('ht'); self.wait_all_lg(); e('s_barrier')
        self.signal(WS_FLAG2, 's2')
        self.stamp(9)
        V.free(tch, 6)
        HCS = o.get('hcs', True)
        self.cs = V.alloc(32, 4); self.ones = V.alloc(4, 4)
        for i in range(4): e(f'v_mov_b32 v{self.ones+i}, 0x3f803f80')
        _, setup = self.capture(self.phaseB_setup)
        self.K0 = 10 if XG else 14
        dma = [f for k in range((13 if WB else 14) if XG else 15, 28) for f in self.w1_dma(k, 'we')]
        mains = []
        if not HCS:
            for k in range(self.K0):
                for u in range(2):
                    c = '0' if k == 0 else vr(self.cs + 16*u, 16)
                    mains.append(([], lambda k=k, u=u, c=c: e(f'v_mfma_f32_32x32x16_bf16 {vr(self.cs+16*u,16)}, {vr(self.ones,4)}, {ar(8*k+4*u,4)}, {c}'), 32, []))
        merged = []
        while dma or setup:
            for _ in range(2):
                if dma: merged.append(dma.pop(0))
            for _ in range(5):
                if setup: merged.append(setup.pop(0))
        if mains: self.sched(mains, [(x, 1) for x in merged])
        else:
            for x in merged: x()
        self.stamp(12)

    def cs_mfma(self, k0, k1):
        for k in range(k0, k1):
            for u in range(2):
                c = '0' if k == 0 else vr(self.cs + 16*u, 16)
                self.e(f'v_mfma_f32_32x32x16_bf16 {vr(self.cs+16*u,16)}, {vr(self.ones,4)}, {ar(8*k+4*u,4)}, {c}')

    def verify_stats(self, sg, sa, nv, with_nonce=False):
        e = self.e; V = self.V
        l0 = self.lab('sp'); l1 = self.lab('spd')
        t = V.alloc(2)
        self.wait_vm('sg')
        e(f's_mov_b32 s{S_CNT}, 0')
        self.label(l0)
        l2 = self.lab('spr')
        if with_nonce:
            e(f'v_readfirstlane_b32 s{S_NONCE}, v{nv}')
            e(f's_cmp_eq_u32 s{S_NONCE}, 0\ns_cbranch_scc1 {l2}')
        e(f'v_min3_u32 v{t}, v{sg+1}, v{sg+3}, v{sg+5}\nv_max3_u32 v{t+1}, v{sg+1}, v{sg+3}, v{sg+5}')
        e(f'v_min3_u32 v{t}, v{t}, v{sg+7}, v{sg+9}\nv_max3_u32 v{t+1}, v{t+1}, v{sg+7}, v{sg+9}')
        e(f'v_min3_u32 v{t}, v{t}, v{sg+11}, v{sg+13}\nv_max3_u32 v{t+1}, v{t+1}, v{sg+11}, v{sg+13}')
        e(f'v_min_u32 v{t}, v{t}, v{sg+15}\nv_max_u32 v{t+1}, v{t+1}, v{sg+15}')
        e(f'v_xor_b32 v{t}, s{S_NONCE}, v{t}\nv_xor_b32 v{t+1}, s{S_NONCE}, v{t+1}\nv_or_b32 v{t}, v{t}, v{t+1}\nv_cmp_ne_u32 vcc, 0, v{t}')
        e(f's_cbranch_vccz {l1}')
        self.label(l2)
        if with_nonce: e(f's_sleep 2\nbuffer_load_dword v{nv}, v{nv+1}, s[{R_DBG}:{R_DBG+3}], 0 offen sc1')
        for i in range(4): e(f'buffer_load_dwordx4 {vr(sg+4*i,4)}, v{sa}, s[{R_WS}:{R_WS+3}], 0 offen offset:{16*i} sc1')
        e('s_waitcnt vmcnt(0)')
        e(f's_add_u32 s{S_CNT}, s{S_CNT}, 1\ns_cmp_lt_u32 s{S_CNT}, {SPIN_MAX}\ns_cbranch_scc1 {l0}')
        self.label(l1)
        V.free(t, 2)

    def map_bc(self):
        e = self.e
        if self.o.get('mapB', '47') == 'rows':
            e(f's_cmp_ge_u32 s{S_J}, 14\ns_cselect_b32 s{S_T0}, 1, 0\ns_lshl_b32 s{S_RB}, s{S_XCD}, 1\ns_add_u32 s{S_RB}, s{S_RB}, s{S_T0}')
            e(f's_mul_i32 s{S_T0}, s{S_T0}, 14\ns_sub_u32 s{S_FB}, s{S_J}, s{S_T0}')
        else:
            e(f's_mul_i32 s{S_T0}, s{S_J}, 37\ns_lshr_b32 s{S_T0}, s{S_T0}, 8')
            e(f's_lshr_b32 s{S_RB}, s{S_XCD}, 1\ns_lshl_b32 s{S_RB}, s{S_RB}, 2\ns_add_u32 s{S_RB}, s{S_RB}, s{S_T0}')
            e(f's_mul_i32 s{S_T0}, s{S_T0}, 7\ns_sub_u32 s{S_FB}, s{S_J}, s{S_T0}\ns_and_b32 s{S_T0}, s{S_XCD}, 1\ns_mul_i32 s{S_T0}, s{S_T0}, 7\ns_add_u32 s{S_FB}, s{S_FB}, s{S_T0}')
        if self.o.get('rot', True): e(f's_and_b32 s{S_ROT}, s{S_RB}, 3')
        else: e(f's_mov_b32 s{S_ROT}, 0')
        e(f's_mul_i32 s{S_T0}, s{S_J}, 37\ns_lshr_b32 s{S_T0}, s{S_T0}, 8')
        e(f's_lshl_b32 s{S_RB2}, s{S_XCD}, 2\ns_add_u32 s{S_RB2}, s{S_RB2}, s{S_T0}\ns_mul_i32 s{S_T0}, s{S_T0}, 7\ns_sub_u32 s{S_DB}, s{S_J}, s{S_T0}')

    def kgen_setup(self):
        e = self.e; V = self.V
        aLo = V.alloc(1); aHi = V.alloc(1); aC = V.alloc(1); t = V.alloc(1)
        aEx = V.alloc(2); aS = V.alloc(2); aK = V.alloc(2)
        e(f's_lshr_b32 s{S_T0}, s{S_W}, 1\ns_mul_i32 s{S_T0}, s{S_T0}, {TBL_C}\ns_and_b32 s{S_T1}, s{S_W}, 1\ns_lshl_b32 s{S_T1}, s{S_T1}, 9\ns_add_u32 s{S_T0}, s{S_T0}, s{S_T1}')
        e(f'v_lshrrev_b32 v{t}, 4, v1\nv_lshlrev_b32 v{aC}, 4, v{t}\nv_add_u32 v{aC}, s{S_T0}, v{aC}')
        e(f'v_and_b32 v{t}, 3, v1\nv_mul_u32_u24 v{t}, {TBL_E}, v{t}\nv_add_u32 v{aLo}, v{aC}, v{t}')
        e(f'v_bfe_u32 v{t}, v1, 2, 2\nv_mul_u32_u24 v{t}, {TBL_E}, v{t}\nv_add_u32 v{aHi}, v{aC}, v{t}')
        e(f's_lshl_b32 s{S_T0}, s{S_W}, 12\ns_add_u32 s{S_T0}, s{S_T0}, {L_EX}\nv_lshl_add_u32 v{aEx}, v1, 4, s{S_T0}')
        e(f's_xor_b32 s{S_T1}, s{S_W}, 1\ns_lshl_b32 s{S_T0}, s{S_T1}, 12\ns_add_u32 s{S_T0}, s{S_T0}, {L_EX}\nv_lshl_add_u32 v{aEx+1}, v1, 4, s{S_T0}')
        e(f's_lshl_b32 s{S_T0}, s{S_W}, 2\ns_add_u32 s{S_T0}, s{S_T0}, {L_EX + 16384}\nv_mov_b32 v{aS}, s{S_T0}')
        e(f's_lshl_b32 s{S_T0}, s{S_T1}, 2\ns_add_u32 s{S_T0}, s{S_T0}, {L_EX + 16384}\nv_mov_b32 v{aS+1}, s{S_T0}')
        e(f'v_and_b32 v{aK}, 15, v1\nv_lshrrev_b32 v{t}, 3, v{aK}\nv_add_u32 v{aK}, v{aK}, v{t}')
        e(f'v_lshrrev_b32 v{t}, 4, v1\nv_mul_u32_u24 v{t}, 144, v{t}\nv_add_u32 v{aK}, v{aK}, v{t}\nv_lshlrev_b32 v{aK}, 2, v{aK}')
        e(f's_lshr_b32 s{S_T0}, s{S_W}, 1\ns_mul_i32 s{S_T0}, s{S_T0}, {K32_C}\ns_add_u32 s{S_T0}, s{S_T0}, {L_K32}\nv_mov_b32 v{aK+1}, s{S_T0}')
        e(f's_and_b32 s{S_T1}, s{S_W}, 1\ns_mul_i32 s{S_T1}, s{S_T1}, {4*576*2}\ns_add_u32 s{S_T1}, s{S_T1}, s{S_T0}\nv_add_u32 v{aK}, s{S_T1}, v{aK}')
        V.free(t)
        return (aLo, aHi, aC, aEx, aS, aK)

    def kgen_main(self, ka, c48, after_main, after_b2a):
        e = self.e; V = self.V
        self.c('---- kgen main (f16 operands)')
        aLo, aHi, aC, aEx, aS, aK = ka
        TB = [[V.alloc(4, 4) for _ in range(6)] for _ in range(2)]
        tmp = V.alloc(4, 4)
        PV = [[V.alloc(4, 4) for _ in range(2)] for _ in range(2)]
        PW = [V.alloc(4, 4) for _ in range(4)]
        D = [[V.alloc(4, 4) for s in range(2)] for t_ in range(4)]
        ents = ((aLo, 0), (aHi, 4), (aC, 16), (aLo, 8), (aHi, 12), (aC, 17))
        def rd(st, i):
            ad, ent = ents[i]
            self.ds(f'ds_read_b128 {vr(TB[st&1][i],4)}, v{ad} offset:{ent*TBL_E + st*64}', f'tb{st}')
        def cm(d, a, b):
            L = [f'v_pk_mul_f16 v{tmp+c}, v{a+c}, v{b+c} op_sel:[0,0] op_sel_hi:[0,1]' for c in range(4)]
            L += [f'v_pk_fma_f16 v{d+c}, v{a+c}, v{b+c}, v{tmp+c} op_sel:[1,1,0] op_sel_hi:[1,0,1] neg_lo:[0,1,0]' for c in range(4)]
            return L
        for i in range(6): rd(0, i)
        pend = []
        for st in range(8):
            T1, T2, Z16, T3, T4, Z512 = TB[st & 1]; pv = PV[st & 1]
            extra = []
            if st + 1 < 8: extra += [lambda i=i, st=st: rd(st + 1, i) for i in range(6)]
            if self.o.get('xg', True):
                if st in (1, 3, 4, 5) and self.xs: extra += [lambda k=self.xs.pop(0): self.xgather(k)]
                if st == self.o.get('pollstep', 6): extra += self.full_poll()
                wst = self.o.get('wst', [7] if self.o.get('wsched', 'B') == 'B' else [4, 6, 7])
                if st in wst: extra += self.w1_dma(wst.index(st), 'wa')
            else:
                if st == self.o.get('pollstep', 5) and self.o.get('early', True): extra += [lambda: self.light_loads()]
                if not self.o.get('touch_w1', False):
                    if st < self.o.get('w0', 2): extra += self.w1_reads(st)
                    ks = self.o.get('kdma', [0, 1, 2])
                    if st in ks: extra += self.w1_dma(5 + ks.index(st), 'wb')
                else:
                    extra += self.w1_dma(st, 'wa' if st < 5 else 'wb')
            self.wait_lg(f'tb{st}')
            blocks = [cm(pv[0], T1, T2), cm(pv[1], pv[0], Z16), cm(PW[0], T3, T4)]
            for tt in range(1, 4): blocks.append(cm(PW[tt], PW[tt-1], Z512))
            def popm():
                if pend:
                    pend.pop(0)()
                    for _ in range(2):
                        if extra: extra.pop(0)()
            for bi, ins in enumerate(blocks):
                for q, l in enumerate(ins):
                    e(l)
                    if q in (1, 5): popm()
                if bi >= 2:
                    tt = bi - 2
                    for s in range(2):
                        cin = '0' if st == 0 else vr(D[tt][s], 4)
                        pend.append(lambda tt=tt, s=s, cin=cin, pv=pv: e(f'v_mfma_f32_16x16x32_f16 {vr(D[tt][s],4)}, {vr(PW[tt],4)}, {vr(pv[s],4)}, {cin}'))
            while len(pend) > 2: popm()
            for x in extra: x()
        while pend: pend.pop(0)()
        self.stamp(13)
        after_main()
        us = V.alloc(2, 2)
        e(f'v_mov_b32 v{us}, s{S_US}')
        R4 = TB[0][:4]; Va = tmp
        def exch(half):
            snd = [(t_, s) for t_ in (2 - 2*half, 3 - 2*half) for s in range(2)]
            kp = [(t_, s) for t_ in (2*half, 2*half + 1) for s in range(2)]
            for i, (t_, s) in enumerate(snd):
                for r in (0, 2): e(f'v_pk_mul_f32 {vr(D[t_][s]+r,2)}, {vr(D[t_][s]+r,2)}, {vr(us,2)} op_sel_hi:[1,0]')
                self.ds(f'ds_write_b128 v{aEx}, {vr(D[t_][s],4)} offset:{1024*i}', 'exw')
            e(f's_mov_b64 s[{S_M1}:{S_M1+1}], exec\ns_mov_b64 exec, 1')
            self.ds(f'ds_write_b32 v{aS}, v{c48}', 'exw')
            e(f's_mov_b64 exec, s[{S_M1}:{S_M1+1}]')
            self.wait_all_lg()
            e('s_barrier')
            for i in range(4): self.ds(f'ds_read_b128 {vr(R4[i],4)}, v{aEx+1} offset:{1024*i}', f'ex{i}')
            self.ds(f'ds_read_b32 v{Va}, v{aS+1}', 'exc')
            for i, (t_, s) in enumerate(kp):
                self.wait_lg(f'ex{i}')
                for r in (0, 2): e(f'v_pk_fma_f32 {vr(D[t_][s]+r,2)}, {vr(D[t_][s]+r,2)}, {vr(us,2)}, {vr(R4[i]+r,2)} op_sel_hi:[1,0,1]')
                for r in range(4):
                    self.ds(f'ds_write_b32 v{aK}, v{D[t_][s]+r} offset:{4*(576*(i >> 1) + 36*r + 18*s)}')
            self.wait_lg('exc')
            e(f'v_add_f32 v{c48}, v{c48}, v{Va}\nv_mov_b32 v{c48+1}, 0')
            e(f's_mov_b64 s[{S_M1}:{S_M1+1}], exec\ns_mov_b64 exec, 1')
            self.ds(f'ds_write_b32 v{aK+1}, v{c48} offset:9216')
            self.ds(f'ds_write_b32 v{aK+1}, v{c48+1} offset:9280')
            e(f's_mov_b64 exec, s[{S_M1}:{S_M1+1}]')
        self.two_paths(exch)
        after_b2a()
        V.free(us, 2)
        for row in TB + PV:
            for x in row: V.free(x, 4)
        for x in PW: V.free(x, 4)
        V.free(tmp, 4)
        for row in D:
            for x in row: V.free(x, 4)
        for x in (aLo, aHi, aC): V.free(x)
        V.free(aEx, 2); V.free(aS, 2); V.free(aK, 2)

    def expand_gather(self):
        e = self.e; V = self.V; ga = self.ga
        self.c('---- expand K into 4 shifted bf16 copies')
        z = V.alloc(4, 4); t = V.alloc(1); t2 = V.alloc(1)
        g = V.alloc(22, 2)
        for i in range(4): e(f'v_mov_b32 v{z+i}, 0')
        e(f'v_lshrrev_b32 v{t}, 2, v0\nv_mul_u32_u24 v{t}, {KC_S}, v{t}\nv_and_b32 v{t2}, 3, v0\nv_lshl_add_u32 v{t}, v{t2}, 4, v{t}')
        e(f'v_cmp_gt_u32 vcc, 32, v0\ns_and_saveexec_b64 s[{S_M1}:{S_M1+1}], vcc')
        la = self.lab('zc'); e(f's_cbranch_execz {la}')
        e(f'ds_write_b128 v{t}, {vr(z,4)} offset:{L_KC + 4096}')
        self.label(la); e(f's_mov_b64 exec, s[{S_M1}:{S_M1+1}]')
        e(f'v_lshrrev_b32 v{t}, 6, v0\nv_mul_u32_u24 v{t}, {U_C}, v{t}\nv_lshl_add_u32 v{t}, v1, 4, v{t}')
        e(f'v_cmp_gt_u32 vcc, 128, v0\ns_and_saveexec_b64 s[{S_M1}:{S_M1+1}], vcc')
        la = self.lab('zu'); e(f's_cbranch_execz {la}')
        e(f'ds_write_b128 v{t}, {vr(z,4)} offset:{L_U}')
        self.label(la); e(f's_mov_b64 exec, s[{S_M1}:{S_M1+1}]')
        for k in range(11): self.ds(f'ds_read_b32 v{g+k}, v{ga+k} offset:0', 'g0')
        for k in range(11): self.ds(f'ds_read_b32 v{g+11+k}, v{ga+k} offset:{K32_C}', 'g1')
        V.free(t); V.free(t2); V.free(z, 4)
        return g
    def expand_write(self, g):
        e = self.e; V = self.V; ga = self.ga
        P = V.alloc(32, 4); wa = V.alloc(1)
        e(f'v_lshlrev_b32 v{wa}, 4, v0')
        for c in range(2):
            self.wait_lg(f'g{c}')
            v = lambda k: g + 11 * c + (k - 1)
            for sc_ in range(4):
                s = 4 - sc_
                for dd in range(4):
                    e(f'v_cvt_pk_bf16_f32 v{P+16*c+4*sc_+dd}, v{v(s+2*dd)}, v{v(s+2*dd+1)}')
                self.ds(f'ds_write_b128 v{wa}, {vr(P+16*c+4*sc_,4)} offset:{L_KC + c*KC_C + sc_*KC_S}')
        V.free(g, 22); V.free(P, 32); V.free(wa); V.free(ga, 12)

    def normalize(self, XP, sg):
        e = self.e; V = self.V
        self.c('---- LN1 normalize own columns')
        xa = V.alloc(16, 2)
        ms = V.alloc(16, 2)
        for k in range(8):
            e(f'v_lshlrev_b32 v{ms+k}, 16, v{sg+2*k}\nv_and_b32 v{ms+8+k}, 0xffff0000, v{sg+2*k}')
        for k in range(8): e(f'v_rcp_f32 v{ms+8+k}, v{ms+8+k}')
        wa = V.alloc(1); t = V.alloc(1)
        e(f'v_bfe_u32 v{t}, v0, 4, 1\nv_lshlrev_b32 v{t}, 1, v{t}\nv_xor_b32 v{wa}, v0, v{t}\nv_lshlrev_b32 v{wa}, 4, v{wa}')
        for c in range(2): self.ds(f'ds_write_b128 v{wa}, {vr(XP+4*c,4)} offset:{L_X + c*X_C}')
        for c in range(2):
            for d in range(4):
                e(f'v_lshlrev_b32 v{xa+8*c+2*d}, 16, v{XP+4*c+d}\nv_and_b32 v{xa+8*c+2*d+1}, 0xffff0000, v{XP+4*c+d}')
        UP = V.alloc(8, 4)
        for c in range(2):
            for d in range(4):
                x = xa + 8*c + 2*d
                e(f'v_pk_add_f32 {vr(x,2)}, {vr(x,2)}, {vr(ms+2*d,2)} neg_lo:[0,1] neg_hi:[0,1]')
            for d in range(4):
                x = xa + 8*c + 2*d
                e(f'v_cvt_pk_bf16_f32 v{x+1}, v{x}, v{x+1}')
            for d in range(4):
                x = xa + 8*c + 2*d
                e(f'v_lshlrev_b32 v{x}, 16, v{x+1}\nv_and_b32 v{x+1}, 0xffff0000, v{x+1}')
            for d in range(4):
                x = xa + 8*c + 2*d
                e(f'v_pk_mul_f32 {vr(x,2)}, {vr(x,2)}, {vr(ms+8+2*d,2)}')
            for d in range(4):
                x = xa + 8*c + 2*d
                e(f'v_cvt_pk_bf16_f32 v{UP+4*c+d}, v{x}, v{x+1}')
            self.ds(f'ds_write_b128 v{wa}, {vr(UP+4*c,4)} offset:{L_U + c*U_C + 1024}')
        V.free(ms, 16); V.free(xa, 16); V.free(UP, 8); V.free(wa); V.free(t)

    def conv_setup(self):
        e = self.e; V = self.V
        vF = V.alloc(1); vG = V.alloc(8); t = V.alloc(1); t2 = V.alloc(1)
        e(f's_lshr_b32 s{S_T0}, s{S_W}, 1\ns_mul_i32 s{S_T0}, s{S_T0}, {KC_C}\ns_and_b32 s{S_T1}, s{S_W}, 1\ns_lshl_b32 s{S_T2}, s{S_T1}, 9\ns_sub_u32 s{S_T0}, s{S_T0}, s{S_T2}\ns_add_u32 s{S_T0}, s{S_T0}, {L_KC + 24 + 512}')
        e(f'v_and_b32 v{t}, 3, v1\nv_mul_u32_u24 v{vF}, {KC_S}, v{t}')
        e(f'v_bfe_u32 v{t}, v1, 2, 2\nv_lshlrev_b32 v{t}, 3, v{t}\nv_sub_u32 v{vF}, v{vF}, v{t}')
        e(f'v_lshrrev_b32 v{t}, 4, v1\nv_lshl_add_u32 v{vF}, v{t}, 4, v{vF}\nv_add_u32 v{vF}, s{S_T0}, v{vF}')
        e(f's_lshr_b32 s{S_T0}, s{S_W}, 1\ns_mul_i32 s{S_T0}, s{S_T0}, {U_C}\ns_add_u32 s{S_T0}, s{S_T0}, {L_U}')
        e(f's_lshl_b32 s{S_T1}, s{S_T1}, 3')
        kg = V.alloc(1); col = V.alloc(1)
        e(f'v_lshrrev_b32 v{kg}, 4, v1\nv_and_b32 v{col}, 15, v1\nv_subrev_u32 v{col}, s{S_T1}, v{col}')
        for pp in range(8):
            e(f'v_add_u32 v{t}, {16 - pp}, v{col}')
            e(f'v_bfe_u32 v{t2}, v{t}, 2, 1\nv_lshlrev_b32 v{t2}, 1, v{t2}\nv_xor_b32 v{t2}, v{t2}, v{kg}')
            e(f'v_lshlrev_b32 v{t}, 6, v{t}\nv_lshl_add_u32 v{t}, v{t2}, 4, v{t}\nv_add_u32 v{vG+pp}, s{S_T0}, v{t}')
        V.free(kg); V.free(col)
        ua = V.alloc(1); xa_ = V.alloc(1); ra = V.alloc(2); sa = V.alloc(1)
        e(f'v_bfe_u32 v{t}, v1, 2, 1\nv_lshlrev_b32 v{t}, 1, v{t}\nv_lshrrev_b32 v{t2}, 4, v1\nv_xor_b32 v{t}, v{t}, v{t2}')
        e(f'v_and_b32 v{t2}, 15, v1\nv_lshlrev_b32 v{t2}, 6, v{t2}\nv_lshl_add_u32 v{ua}, v{t}, 4, v{t2}')
        e(f's_and_b32 s{S_T1}, s{S_W}, 1\ns_lshl_b32 s{S_T1}, s{S_T1}, 11')
        e(f's_lshr_b32 s{S_T0}, s{S_W}, 1\ns_mul_i32 s{S_T2}, s{S_T0}, {U_C}\ns_add_u32 s{S_T2}, s{S_T2}, s{S_T1}')
        e(f's_mul_i32 s{S_T3}, s{S_T0}, {X_C}\ns_add_u32 s{S_T3}, s{S_T3}, s{S_T1}')
        e(f'v_add_u32 v{xa_}, s{S_T3}, v{ua}\nv_add_u32 v{ua}, s{S_T2}, v{ua}')
        e(f'v_lshrrev_b32 v{t}, 4, v1\nv_lshl_add_u32 v{sa}, v{t}, 4, v{t2}')
        e(f's_lshl_b32 s{S_T2}, s{S_CP}, 1\ns_add_u32 s{S_T2}, s{S_T2}, s{S_T0}\ns_mul_i32 s{S_T2}, s{S_T2}, {HT_STRIDE}\ns_add_u32 s{S_T2}, s{S_T2}, s{S_T1}\ns_add_u32 s{S_T2}, s{S_T2}, {WS_HT}')
        e(f'v_add_u32 v{sa}, s{S_T2}, v{sa}')
        e(f's_lshl_b32 s{S_T0}, s{S_W}, 12\ns_add_u32 s{S_T0}, s{S_T0}, {L_RED}\nv_lshl_add_u32 v{ra}, v1, 4, s{S_T0}')
        e(f's_xor_b32 s{S_T0}, s{S_W}, 1\ns_lshl_b32 s{S_T0}, s{S_T0}, 12\ns_add_u32 s{S_T0}, s{S_T0}, {L_RED}\nv_lshl_add_u32 v{ra+1}, v1, 4, s{S_T0}')
        V.free(t); V.free(t2)
        return (vF, vG, ua, xa_, ra, sa)

    def conv(self, cv, fill):
        e = self.e; V = self.V
        vF, vG, ua, xa_, ra, sa = cv
        self.c('---- Toeplitz convolution')
        G = [V.alloc(16, 4) for _ in range(2)]
        F = V.alloc(32, 4)
        acc = V.alloc(32, 4)
        A = lambda b, m: acc + 8 * b + 4 * m
        def rdG(pp):
            for s in range(4): self.ds(f'ds_read_b128 {vr(G[pp&1]+4*s,4)}, v{vG+pp} offset:{1024*s}', f'G{pp}')
        def rdF(pp, q):
            for m in range(2):
                off = 32 * (111 - 32*q - 2*pp - m)
                self.ds(f'ds_read_b64 {vr(F+8*q+4*m,2)}, v{vF} offset:{off}', f'F{pp}_{q}')
                self.ds(f'ds_read_b64 {vr(F+8*q+4*m+2,2)}, v{vF} offset:{off+8}', f'F{pp}_{q}')
        rdG(0)
        for q in range(4): rdF(0, q)
        def rdG1(pp, s): self.ds(f'ds_read_b128 {vr(G[pp&1]+4*s,4)}, v{vG+pp} offset:{1024*s}', f'G{pp}')
        def rdF1(pp, q, m, h_):
            off = 32 * (111 - 32*q - 2*pp - m) + 8 * h_
            self.ds(f'ds_read_b64 {vr(F+8*q+4*m+2*h_,2)}, v{vF} offset:{off}', f'F{pp}_{q}')
        mains = []
        pend = []
        for pp in range(8):
            for q in range(4):
                first = True
                for m in range(2):
                    for s in range(4 - q):
                        b = q + s
                        cin = '0' if (pp == 0 and q == 0) else vr(A(b, m), 4)
                        pre = []
                        if first:
                            if q == 0: pre.append(lambda pp=pp: (self.wait_lg(f'G{pp}'), self.wait_lg(f'F{pp}_0')))
                            else: pre.append(lambda pp=pp, q=q: self.wait_lg(f'F{pp}_{q}'))
                            first = False
                        mf = lambda b=b, m=m, q=q, s=s, pp=pp, cin=cin: e(f'v_mfma_f32_16x16x32_bf16 {vr(A(b,m),4)}, {vr(F+8*q+4*m,4)}, {vr(G[pp&1]+4*s,4)}, {cin}')
                        post = [pend.pop(0)] if pend else []
                        mains.append((pre, mf, 16, post))
                    if pp + 1 < 8:
                        pend += [lambda pp=pp, q=q, m=m, h_=h_: rdF1(pp + 1, q, m, h_) for h_ in range(2)]
                if q == 0 and pp + 1 < 8:
                    pend += [lambda pp=pp, s=s: rdG1(pp + 1, s) for s in range(4)]
        assert not pend
        self.sched(mains, None, segs=[(0, self.o.get('cfill', 110), fill)])
        for x in G: V.free(x, 16)
        V.free(F, 32); V.free(vG, 8)
        self.stamp(10)
        UU = V.alloc(8, 4); XX = V.alloc(8, 4); t1f = V.alloc(16, 2); xf = V.alloc(16, 2); rr = V.alloc(16, 4)
        Y = V.alloc(8, 4); w8 = V.alloc(16, 2); dk = V.alloc(2, 2)
        for bb in range(2):
            self.ds(f'ds_read_b128 {vr(UU+4*bb,4)}, v{ua} offset:{L_U + 1024 + 1024*bb}', 'ux')
            self.ds(f'ds_read_b128 {vr(XX+4*bb,4)}, v{xa_} offset:{L_X + 1024*bb}', 'ux')
        e(f'v_mov_b32 v{dk}, s{S_DK}')
        def epi(half):
            snd = acc + 16 * (1 - half); keep = acc + 16 * half
            for i in range(4): self.ds(f'ds_write_b128 v{ra}, {vr(snd+4*i,4)} offset:{1024*i}', 'rw')
            self.wait_lg('ux')
            for q in range(8): e(f'v_lshlrev_b32 v{t1f+2*q}, 16, v{UU+q}\nv_and_b32 v{t1f+2*q+1}, 0xffff0000, v{UU+q}')
            for q in range(8): e(f'v_pk_mul_f32 {vr(t1f+2*q,2)}, {vr(t1f+2*q,2)}, {vr(dk,2)} op_sel_hi:[1,0]')
            for q in range(8): e(f'v_cvt_pk_bf16_f32 v{UU+q}, v{t1f+2*q}, v{t1f+2*q+1}')
            for q in range(8): e(f'v_lshlrev_b32 v{xf+2*q}, 16, v{XX+q}\nv_and_b32 v{xf+2*q+1}, 0xffff0000, v{XX+q}')
            for q in range(8): e(f'v_lshlrev_b32 v{t1f+2*q}, 16, v{UU+q}\nv_and_b32 v{t1f+2*q+1}, 0xffff0000, v{UU+q}')
            self.wait_vm('wc')
            self.wait_all_lg()
            e('s_barrier')
            for i in range(4): self.ds(f'ds_read_b128 {vr(rr+4*i,4)}, v{ra+1} offset:{1024*i}', 'red')
            self.wait_lg('red')
            for i in range(0, 16, 2): e(f'v_pk_add_f32 {vr(keep+i,2)}, {vr(keep+i,2)}, {vr(rr+i,2)}')
            for bb in range(2):
                k0 = keep + 8 * bb; y = Y + 4 * bb
                e(f'v_cvt_pk_bf16_f32 v{y}, v{k0}, v{k0+1}\nv_cvt_pk_bf16_f32 v{y+1}, v{k0+2}, v{k0+3}')
                e(f'v_cvt_pk_bf16_f32 v{y+2}, v{k0+4}, v{k0+5}\nv_cvt_pk_bf16_f32 v{y+3}, v{k0+6}, v{k0+7}')
            for bb in range(2):
                y = Y + 4 * bb
                e(f'v_permlane32_swap_b32 v{y}, v{y+2}\nv_permlane32_swap_b32 v{y+1}, v{y+3}')
            for bb in range(2):
                y = Y + 4 * bb
                e(f'v_permlane16_swap_b32 v{y}, v{y+2}\nv_permlane16_swap_b32 v{y+1}, v{y+3}')
            for q in range(8): e(f'v_lshlrev_b32 v{w8+2*q}, 16, v{Y+q}\nv_and_b32 v{w8+2*q+1}, 0xffff0000, v{Y+q}')
            for q in range(8): e(f'v_pk_add_f32 {vr(w8+2*q,2)}, {vr(w8+2*q,2)}, {vr(t1f+2*q,2)}')
            for q in range(8): e(f'v_cvt_pk_bf16_f32 v{Y+q}, v{w8+2*q}, v{w8+2*q+1}')
            for q in range(8): e(f'v_lshlrev_b32 v{w8+2*q}, 16, v{Y+q}\nv_and_b32 v{w8+2*q+1}, 0xffff0000, v{Y+q}')
            for q in range(8): e(f'v_pk_add_f32 {vr(w8+2*q,2)}, {vr(w8+2*q,2)}, {vr(xf+2*q,2)}')
            for bb in range(2):
                for d in range(4): e(f'v_cvt_pk_bf16_f32 v{Y+4*bb+d}, v{w8+8*bb+2*d}, v{w8+8*bb+2*d+1}')
                self.vmem(f'buffer_store_dwordx4 {vr(Y+4*bb,4)}, v{sa}, s[{R_WS}:{R_WS+3}], 0 offen offset:{1024*bb} sc1', 'ht')
        self.two_paths(epi)
        if self.o.get('xg', True):
            WB = self.o.get('wsched', 'B') == 'B'
            self.w1_read(3 if WB else 5, 10)
            self.w1_issue(10, 13 if WB else 14, 'we')
        else:
            self.w1_read(5, 14)
            self.w1_issue(14, 15, 'we')
        for x, n in ((UU,8),(XX,8),(t1f,16),(xf,16),(rr,16),(Y,8),(w8,16),(dk,2),(sa,1),(ua,1),(xa_,1),(ra,2),(acc,32),(vF,1)): V.free(x, n)

    def interleave(self, main, fill, per_gap):
        n = len(main); fi = 0
        for i, m in enumerate(main):
            m()
            tgt = (len(fill) * (i + 1) + n - 1) // n if per_gap is None else min(len(fill), fi + per_gap)
            while fi < tgt:
                fill[fi](); fi += 1
        while fi < len(fill):
            fill[fi](); fi += 1

    def sched(self, mains, fillers, tail_free=0, segs=None):
        def cost(x): return x[1] if isinstance(x, tuple) else 1
        def run(x): (x[0] if isinstance(x, tuple) else x)()
        n = len(mains)
        bud = []
        for i, (pre, m, dur, post) in enumerate(mains):
            b = (dur - 8) / 4 - sum(cost(x) for x in post)
            if i + 1 < n: b -= sum(cost(x) for x in mains[i+1][0])
            bud.append(b)
        if segs is None: segs = [(0, n - tail_free, fillers)]
        plan = [[] for _ in range(n)]; planned = [0.0] * n
        for (a, b_, fl) in segs:
            free = sum(max(0, x) for x in bud[a:b_]); need = sum(cost(x) for x in fl)
            over = max(0.0, (need - free) / max(1, b_ - a)); frac = min(1.0, need / free) if free > 0 else 1.0
            fi = 0; credit = 0.0
            for i in range(a, b_):
                credit += max(0, bud[i]) * frac + over
                while fi < len(fl) and cost(fl[fi]) <= credit + 1e-9:
                    credit -= cost(fl[fi]); plan[i].append(fl[fi]); fi += 1
            plan[b_ - 1] += fl[fi:]
            for i in range(a, b_):
                used = sum(cost(x) for x in plan[i]) - planned[i]
                planned[i] += used; bud[i] -= used
        for i, (pre, m, dur, post) in enumerate(mains):
            for x in pre: run(x)
            m()
            for x in post: run(x)
            hoist = lambda x: getattr(x[0] if isinstance(x, tuple) else x, 'hoist', False) and self.o.get('hoist', True)
            for x in plan[i]:
                if hoist(x): run(x)
            for x in plan[i]:
                if not hoist(x): run(x)

    def poll_flags(self, base, nflags_expr_lanes, nloads, sbase=None, last_lanes=None, sleep=0):
        e = self.e; V = self.V
        skip = self.lab('pf'); l0 = self.lab('pl'); l1 = self.lab('pd')
        e(f's_cmp_lg_u32 s{S_W}, 0\ns_cbranch_scc1 {skip}')
        a = V.alloc(1); d = V.alloc(4, 2)
        e(f'v_mul_u32_u24 v{a}, {FLAG_STRIDE}, v1\nv_add_u32 v{a}, {base}, v{a}')
        if sbase is not None: e(f'v_add_u32 v{a}, s{sbase}, v{a}')
        e(f's_mov_b64 s[{S_M1}:{S_M1+1}], exec')
        if nflags_expr_lanes < 64: e(f's_mov_b64 exec, {hex((1 << nflags_expr_lanes) - 1)}')
        e(f's_mov_b32 s{S_CNT}, 0')
        self.label(l0)
        for k in range(nloads):
            if 64*FLAG_STRIDE*k < 4096: e(f'buffer_load_dword v{d+k}, v{a}, s[{R_WS}:{R_WS+3}], 0 offen offset:{64*FLAG_STRIDE*k} sc1')
            else: e(f's_mov_b32 s{S_T3}, {64*FLAG_STRIDE*k}\nbuffer_load_dword v{d+k}, v{a}, s[{R_WS}:{R_WS+3}], s{S_T3} offen sc1')
        e('s_waitcnt vmcnt(0)')
        e(f'v_cmp_ne_u32 vcc, s{S_NONCE}, v{d}')
        for k in range(1, nloads):
            e(f'v_cmp_ne_u32 s[{S_M2}:{S_M2+1}], s{S_NONCE}, v{d+k}')
            if last_lanes and k == nloads - 1:
                assert last_lanes == 32
                e(f's_and_b32 s{S_M2+1}, s{S_M2+1}, 0')
            e(f's_or_b64 vcc, vcc, s[{S_M2}:{S_M2+1}]')
        e(f's_cbranch_vccz {l1}')
        if sleep: e(f's_sleep {sleep}')
        e(f's_add_u32 s{S_CNT}, s{S_CNT}, 1\ns_cmp_lt_u32 s{S_CNT}, {SPIN_MAX}\ns_cbranch_scc1 {l0}')
        self.label(l1)
        e(f's_mov_b64 exec, s[{S_M1}:{S_M1+1}]')
        V.free(a); V.free(d, 4)
        self.label(skip)
        e('s_barrier')

    WDREG = ['A']*9 + ['B']*3 + ['C']*3 + ['A']*9 + ['B']*3 + ['C']
    WDIDX = list(range(9)) + [0,1,2] + [0,1,2] + list(range(9)) + [0,1,2] + [0]
    def wd_setup(self):
        e = self.e; V = self.V
        self.vWD = V.alloc(2); self.vWT = V.alloc(6)
        t = V.alloc(1); t2 = V.alloc(1); vD = self.vWD; vT = self.vWT
        e(f'v_lshrrev_b32 v{t}, 3, v1\nv_mul_u32_u24 v{vD}, 896, v{t}\nv_bfe_u32 v{t}, v1, 4, 1\nv_lshlrev_b32 v{t}, 2, v{t}\nv_and_b32 v{t2}, 7, v1\nv_xor_b32 v{t}, v{t}, v{t2}\nv_lshl_add_u32 v{vD}, v{t}, 4, v{vD}')
        e(f's_lshl_b32 s{S_T0}, s{S_DB}, 7\ns_mul_i32 s{S_T1}, s{S_W}, {448*896}\ns_add_u32 s{S_T0}, s{S_T0}, s{S_T1}\nv_add_u32 v{vD}, s{S_T0}, v{vD}\nv_add_u32 v{vD+1}, 7168, v{vD}')
        e(f'v_lshrrev_b32 v{t}, 5, v1\nv_lshlrev_b32 v{vT}, 9, v{t}\nv_bfe_u32 v{t}, v1, 2, 2\nv_lshl_add_u32 v{vT}, v{t}, 7, v{vT}')
        e(f'v_bfe_u32 v{t}, v1, 4, 1\nv_lshl_add_u32 v{vT}, v{t}, 5, v{vT}\nv_and_b32 v{t}, 3, v1\nv_lshl_add_u32 v{vT}, v{t}, 3, v{vT}')
        e(f'v_bfe_u32 v{t}, v1, 3, 1\nv_lshlrev_b32 v{t}, 6, v{t}')
        e(f'v_xor_b32 v{t2}, 64, v{t}\nv_add_u32 v{vT+1}, v{vT}, v{t2}\nv_add_u32 v{vT}, v{vT}, v{t}')
        e(f's_mul_i32 s{S_WA}, s{S_W}, 18432\ns_add_u32 s{S_WA}, s{S_WA}, 87040')
        e(f's_mul_i32 s{S_WB}, s{S_W}, 7168\ns_add_u32 s{S_WC}, s{S_WB}, 57344\ns_add_u32 s{S_WB}, s{S_WB}, 28672')
        e(f'v_add_u32 v{vT+2}, s{S_WB}, v{vT}\nv_add_u32 v{vT+3}, s{S_WB}, v{vT+1}\nv_add_u32 v{vT+4}, s{S_WC}, v{vT}\nv_add_u32 v{vT+5}, s{S_WC}, v{vT+1}')
        e(f'v_add_u32 v{vT}, s{S_WA}, v{vT}\nv_add_u32 v{vT+1}, s{S_WA}, v{vT+1}')
        e(f's_add_u32 s{S_T1}, s{S_DB}, s{S_RB2}' if self.o.get('rot2', True) else f's_mov_b32 s{S_T1}, 0')
        for q in range(4):
            e(f's_add_u32 s{S_T0}, s{S_T1}, {q}\ns_and_b32 s{S_T0}, s{S_T0}, 3\ns_mul_i32 s{S_RW0+q}, s{S_T0}, {7*16*896}\ns_mul_i32 s{S_RA0+q}, s{S_T0}, {7*1024}')
        V.free(t); V.free(t2)
    def wd_dma(self, k, tag):
        e = self.e; sb = {'A': S_WA, 'B': S_WB, 'C': S_WC}[self.WDREG[k]]; sl = self.WDIDX[k] * 2048
        d0 = lambda: self.vmem(f'buffer_load_dwordx4 v{self.vWD}, s[{R_WD}:{R_WD+3}], s{S_WO} offen lds', tag)
        d1 = lambda: self.vmem(f'buffer_load_dwordx4 v{self.vWD+1}, s[{R_WD}:{R_WD+3}], s{S_WO} offen lds', tag)
        d0.isvm = True; d1.isvm = True
        r = [lambda: e(f's_add_u32 s{S_WO}, s{S_RW0 + k//7}, {(k%7)*16*896}'),
             lambda: e(f's_add_u32 m0, s{sb}, {sl}'), d0,
             lambda: e(f's_add_u32 m0, s{sb}, {sl + 1024}'), d1]
        for x in r: x.hoist = True
        return r
    def wd_reads(self, k):
        a = self.vWT + {'A': 0, 'B': 2, 'C': 4}[self.WDREG[k]]; sl = self.WDIDX[k] * 2048
        return [lambda mt=mt, hh=hh: self.ds(f'ds_read_b64_tr_b16 {ar(8*k+4*mt+2*hh,2)}, v{a+mt} offset:{sl + 1024*hh}', f'wdr{k}') for mt in range(2) for hh in range(2)]

    def phaseB_setup(self):
        e = self.e; V = self.V; o = self.o
        L_H = 0; HG = 28672; L_STP = 3 * HG
        HS = lambda g_: (g_ % 3) * HG
        S_HB, S_MB = S_T5, S_HID
        vD = V.alloc(1); vB = V.alloc(1); vS = V.alloc(1); t = V.alloc(1); t2 = V.alloc(1)
        e(f'v_lshrrev_b32 v{t}, 2, v1\nv_mul_u32_u24 v{vD}, {HT_STRIDE}, v{t}\nv_bfe_u32 v{t2}, v1, 4, 1\nv_lshlrev_b32 v{t2}, 1, v{t2}\nv_and_b32 v{t}, 3, v1\nv_xor_b32 v{t}, v{t}, v{t2}\nv_lshl_add_u32 v{vD}, v{t}, 4, v{vD}')
        e(f's_lshl_b32 s{S_T0}, s{S_RB}, 8\ns_add_u32 s{S_T0}, s{S_T0}, {WS_HT}\nv_add_u32 v{vD}, s{S_T0}, v{vD}')
        e(f's_mul_i32 s{S_HB}, s{S_W}, {16*HT_STRIDE}\ns_lshl_b32 s{S_MB}, s{S_W}, 10')
        e(f'v_lshrrev_b32 v{t}, 5, v1\nv_lshlrev_b32 v{vB}, 8, v{t}\nv_bfe_u32 v{t2}, v1, 4, 1\nv_xor_b32 v{t2}, v{t2}, v{t}\nv_lshl_add_u32 v{vB}, v{t2}, 5, v{vB}')
        e(f'v_bfe_u32 v{t}, v1, 2, 2\nv_lshl_add_u32 v{vB}, v{t}, 6, v{vB}\nv_and_b32 v{t}, 3, v1\nv_lshl_add_u32 v{vB}, v{t}, 3, v{vB}')
        e(f'v_lshrrev_b32 v{t}, 4, v1\nv_lshlrev_b32 v{vS}, 8, v{t}\nv_and_b32 v{t}, 1, v{t}\ns_and_b32 s{S_T0}, s{S_W}, 1\nv_xor_b32 v{t}, s{S_T0}, v{t}\nv_lshl_add_u32 v{vS}, v{t}, 5, v{vS}')
        e(f'v_bfe_u32 v{t}, v1, 2, 2\nv_lshl_add_u32 v{vS}, v{t}, 6, v{vS}\nv_and_b32 v{t}, 3, v1\nv_lshl_add_u32 v{vS}, v{t}, 3, v{vS}')
        e(f's_lshr_b32 s{S_T0}, s{S_W}, 1\ns_mul_i32 s{S_T0}, s{S_T0}, {7*2048}\nv_add_u32 v{vS}, s{S_T0}, v{vS}')
        vA = V.alloc(1)
        e(f's_mul_i32 s{S_T0}, s{S_RB}, {4*112}\ns_lshl_b32 s{S_T1}, s{S_FB}, 3\ns_add_u32 s{S_T0}, s{S_T0}, s{S_T1}\ns_lshl_b32 s{S_T1}, s{S_W}, 1\ns_add_u32 s{S_T0}, s{S_T0}, s{S_T1}')
        e(f's_lshl_b32 s{S_T0}, s{S_T0}, 10\ns_add_u32 s{S_T0}, s{S_T0}, {WS_ACT}\nv_lshl_add_u32 v{vA}, v1, 4, s{S_T0}')
        vG2 = V.alloc(1); sg2 = V.alloc(6, 2)
        e(f'v_and_b32 v{t}, 31, v1\nv_lshlrev_b32 v{vG2}, 3, v{t}\ns_lshl_b32 s{S_T0}, s{S_RB}, 10\ns_add_u32 s{S_T0}, s{S_T0}, {WS_STATS2}\nv_add_u32 v{vG2}, s{S_T0}, v{vG2}')
        vC = V.alloc(1)
        e(f'v_and_b32 v{t}, 31, v1\nv_lshlrev_b32 v{t}, 2, v{t}\ns_lshl_b32 s{S_T0}, s{S_FB}, 9\ns_lshl_b32 s{S_T1}, s{S_W}, 7\ns_add_u32 s{S_T0}, s{S_T0}, s{S_T1}\ns_add_u32 s{S_T0}, s{S_T0}, {WS_CS}\nv_add_u32 v{vC}, s{S_T0}, v{t}')
        NB = 6
        cs = self.cs; ones = self.ones
        B = V.alloc(4 * NB, 4); SB = V.alloc(8, 4); SG = V.alloc(8, 4)
        acc = [V.alloc(32, 4), V.alloc(32, 4)]
        st = V.alloc(6, 2); par = V.alloc(3); tmp = V.alloc(8, 4); pk = V.alloc(8, 4)
        vP = V.alloc(1); vPw = V.alloc(1)
        e(f'v_bfe_u32 v{t}, v1, 4, 1\nv_lshlrev_b32 v{vP}, 7, v{t}\nv_and_b32 v{t}, 15, v1\nv_lshl_add_u32 v{vP}, v{t}, 3, v{vP}\nv_add_u32 v{vP}, {L_STP}, v{vP}')
        e(f's_lshl_b32 s{S_T0}, s{S_W}, 7\ns_add_u32 s{S_T0}, s{S_T0}, {L_STP}\nv_lshl_add_u32 v{vPw}, v{t}, 3, s{S_T0}')
        K1, K2, K3, KD = 6, 8, 10, 12
        e(f's_mov_b32 s{K1}, 0x22222222\ns_mov_b32 s{K1+1}, 0x22222222\ns_mov_b32 s{K2}, 0x44444444\ns_mov_b32 s{K2+1}, 0x44444444')
        e(f's_mov_b32 s{K3}, 0x88888888\ns_mov_b32 s{K3+1}, 0x88888888\ns_mov_b32 s{KD}, 0x00f0000f\ns_mov_b32 s{KD+1}, 0xf0000f00')
        vBq = V.alloc(4); vS2 = V.alloc(1)
        e(f'v_add_u32 v{vS2}, 57344, v{vS}')
        for q in range(4):
            e(f's_add_u32 s{S_T0}, s{S_ROT}, {q}\ns_and_b32 s{S_T0}, s{S_T0}, 3\ns_mul_i32 s{S_T0}, s{S_T0}, {7*1024}\nv_add_u32 v{vBq+q}, s{S_T0}, v{vB}')
        S_KI = [0, 1, 3, 4, 5, 22, 23]
        for i in range(7):
            e(f's_add_u32 s{S_T0}, s{S_W}, {4*i}\ns_mul_i32 s{S_T1}, s{S_T0}, 37\ns_lshr_b32 s{S_T1}, s{S_T1}, 8')
            e(f's_mul_i32 s{S_T2}, s{S_T1}, 7\ns_sub_u32 s{S_T0}, s{S_T0}, s{S_T2}\ns_add_u32 s{S_T1}, s{S_T1}, s{S_ROT}\ns_and_b32 s{S_T1}, s{S_T1}, 3')
            e(f's_mul_i32 s{S_T1}, s{S_T1}, 7\ns_add_u32 s{S_KI[i]}, s{S_T1}, s{S_T0}')
        self.wd_setup()
        self.pb = dict(locals())

    def phaseB(self):
        e = self.e; V = self.V; o = self.o
        self.c('================= phase B')
        pb = self.pb
        L_H, HG, L_STP, HS, S_HB, S_MB = pb['L_H'], pb['HG'], pb['L_STP'], pb['HS'], pb['S_HB'], pb['S_MB']
        vD, vB, vS, t, t2, vA, vG2, sg2, NB, cs, ones, B, SB, SG = [pb[k] for k in 'vD vB vS t t2 vA vG2 sg2 NB cs ones B SB SG'.split()]
        acc, st, par, tmp, pk, vP, vPw, K1, K2, K3, KD, vBq, vS2 = [pb[k] for k in 'acc st par tmp pk vP vPw K1 K2 K3 KD vBq vS2'.split()]
        self.stamp(14)
        HCS = o.get('hcs', True); vC = pb['vC']
        self.wait_vm('we')
        if HCS: self.poll_flags(WS_FLAG2, 64, 4, sleep=self.o.get('wsleep', 2))
        else: self.poll_flags(WS_FLAG2 + (32 if o.get('hfirst', True) else 0)*FLAG_STRIDE, 64, 4, last_lanes=32, sleep=self.o.get('wsleep', 2))
        self.stamp(15)
        zk = [k for k in range(self.K0, 28) if self.W1SLOT[k] >= 12]
        for k in zk: self.w1_read(k, k + 1)
        self.wait_all_lg(); e('s_barrier')
        self.rest_k = [k for k in range(self.K0, 28) if k not in zk]
        self.vm.drain(); self.lg.drain()
        self.stamp(16)
        def hdma(g, i, tag=None):
            d = lambda: self.vmem(f'buffer_load_dwordx4 v{vD}, s[{R_WS}:{R_WS+3}], s{S_T1} offen {o.get("hflags", "sc1")} lds', tag or f'h{g}')
            d.isvm = True
            r = [lambda: e(f's_add_u32 m0, s{S_MB}, {L_H + HS(g) + i*4096}'),
                 lambda: e(f's_add_u32 s{S_T1}, s{S_HB}, {i*4*16*HT_STRIDE + 64*g}'), d]
            for x in r: x.hoist = True
            return r
        S_KI = pb['S_KI']; PROG = o.get('prog', True)
        for i in range(7):
            e(f's_lshl_b32 m0, s{S_KI[i]}, 10\ns_mul_i32 s{S_T1}, s{S_KI[i]}, {16*HT_STRIDE}')
            self.vmem(f'buffer_load_dwordx4 v{vD}, s[{R_WS}:{R_WS+3}], s{S_T1} offen {o.get("hflags", "sc1")} lds', 'h0a' if (i < 3 and PROG) else 'h0')
        for k in self.rest_k: self.w1_read(k, k + 1)
        self.wait_all_lg()
        V.free(self.vTS, 5); V.free(self.vW1)
        if HCS:
            e(f's_mov_b32 s{S_T2}, {1792*4}')
            self.vmem(f'buffer_load_dword v{cs}, v{vC}, s[{R_WS}:{R_WS+3}], 0 offen sc1', 'cs')
            self.vmem(f'buffer_load_dword v{cs+16}, v{vC}, s[{R_WS}:{R_WS+3}], s{S_T2} offen sc1', 'cs')
        else: self.cs_mfma(self.K0, 28)
        csA = V.alloc(8, 4); mB = V.alloc(4, 4)
        for i in range(1, 4): e(f'v_mov_b32 v{mB+i}, 0\nv_mov_b32 v{csA+i}, 0\nv_mov_b32 v{csA+4+i}, 0')
        def build_csA():
            for u in range(2):
                c_ = cs + 16 * u; d_ = csA + 4 * u
                e(f'v_cvt_pk_bf16_f32 v{d_}, v{c_}, v{c_}\nv_lshlrev_b32 v{d_}, 16, v{d_}\nv_sub_f32 v{c_+1}, v{c_}, v{d_}')
                e(f'v_cvt_pk_bf16_f32 v{d_}, v{c_}, v{c_+1}')
                e(f'v_cmp_gt_u32 vcc, 32, v1\nv_cndmask_b32 v{d_}, 0, v{d_}, vcc')
        if not HCS: build_csA()
        H1F = o.get('h1fill', True)
        if not H1F:
            for i in range(7):
                for f in hdma(1, i): f()
        def rdB(g, k):
            s = k % NB
            for h_ in range(2):
                self.ds(f'ds_read_b64_tr_b16 {vr(B+4*s+2*h_,2)}, v{vBq + k//7} offset:{HS(g) + (k%7)*1024 + 512*h_}', f'B{g}_{k}')
        def st_reads(g):
            for k_ in range(2): self.ds(f'ds_read_b64 {vr(st+2*k_,2)}, v{vP} offset:{(g&1)*512 + 256*k_}', f'st{g}')
        def fin_ops(g):
            nm, rsl, s2 = par, par + 1, par + 2; ops = []
            save = self.lines; self.lines = []
            if g == 0:
                self.ln_finalize(st, st + 1, st + 2, st + 3, st + 4)
            else:
                e(f'v_lshlrev_b32 v{st+2}, 16, v{sg2+2*(g-1)}')
                e(f'v_and_b32 v{st+3}, 0xffff0000, v{sg2+2*(g-1)}')
            e(f'v_cvt_pk_bf16_f32 v{mB}, -v{st+2}, -v{st+2}')
            e(f'v_rcp_f32 v{st+4}, v{st+3}')
            e(f'v_mul_f32 v{s2}, v{st+3}, v{st+3}')
            e(f'v_mul_f32 v{rsl}, {fx(-LOG2E)}, v{st+4}')
            fl = self.lines; self.lines = save
            if g == 0:
                def fin0():
                    self.wait_lg('st0')
                    e(f'v_add_f32 v{st}, v{st}, v{st+2}')
                ops.append(fin0)
                ops.append(lambda: e(f'v_add_f32 v{st+1}, v{st+1}, v{st+3}'))
            for l in fl: ops.append(lambda l=l: e(l))
            return ops
        def fold_mfma(g, u):
            A_ = acc[g & 1] + 16 * u
            return lambda: e(f'v_mfma_f32_32x32x16_bf16 {vr(A_,16)}, {vr(csA+4*u,4)}, {vr(mB,4)}, {vr(A_,16)}')
        def epilogue_ops(g):
            A_ = acc[g & 1]; ops = []; delayed = []
            nm, rsl, s2 = par, par + 1, par + 2
            def el(r):
                G_, U_, T_ = A_ + r, A_ + 16 + r, tmp + (r & 7)
                return [f'v_mul_f32 v{T_}, v{rsl}, v{G_}',
                        f'v_mul_f32 v{G_}, v{G_}, v{U_}',
                        f'v_exp_f32 v{T_}, v{T_}',
                        f'v_fma_f32 v{T_}, v{T_}, v{s2}, v{s2}',
                        f'v_rcp_f32 v{T_}, v{T_}',
                        f'v_mul_f32 v{G_}, v{G_}, v{T_}']
            for q in range(4):
                els = [el(4*q + x) for x in range(4)]
                for s_ in range(6):
                    for x in range(4): ops.append((lambda l=els[x][s_]: e(l), 2 if s_ in (2, 4) else 1))
                for x in range(2):
                    r = 4*q + 2*x
                    cv_ = lambda r=r: e(f'v_cvt_pk_bf16_f32 v{pk + r//2}, v{A_+r}, v{A_+r+1}')
                    cv_.cvtmark = r // 2
                    ops.append(cv_)
                if q in (1, 3) and not (o.get('x_nost') and g < 3):
                    kk = q >> 1
                    stf = lambda kk=kk: self.vmem(f'buffer_store_dwordx4 {vr(pk+4*kk,4)}, v{vA}, s[{R_WS}:{R_WS+3}], s{S_T4} offen offset:{1024*kk} {o.get("actflags", "sc1")}', 'act')
                    if g < 3 and o.get('stdelay', True):
                        delayed.append([10, (stf, o.get('cst', 6))])
                    else: ops.append(stf)
            if delayed:
                res = []; pend = []
                marks = [i for i, x in enumerate(ops) if getattr(x, 'cvtmark', None) is not None]
                di = 0
                for i, x in enumerate(ops):
                    res.append(x)
                    if getattr(x, 'cvtmark', None) in (3, 7): pend.append([8, delayed[di][1]]); di += 1
                    for p in pend: p[0] -= 1
                    while pend and pend[0][0] <= 0:
                        it = pend.pop(0)[1]; it[0].hoist = True; res.append(it)
                for p in pend: res.append(p[1])
                ops = res
            return ops
        DS = 1.5
        def rdB1(g, k, h_):
            s = (28 * g + k) % NB
            return (lambda: self.ds(f'ds_read_b64_tr_b16 {vr(B+4*s+2*h_,2)}, v{vBq + k//7} offset:{HS(g) + (k%7)*1024 + 512*h_}', f'B{g}_{k}'), DS)
        def rs(g, i):
            sb = SB + 4 * (i & 1); out = []
            for h_ in range(2):
                b_, off = (vS, HS(g) + i*2048 + 1024*h_) if HS(g) < 57344 else (vS2, i*2048 + 1024*h_)
                out.append((lambda b_=b_, off=off, h_=h_, sb=sb, i=i: self.ds(f'ds_read_b64_tr_b16 {vr(sb+2*h_,2)}, v{b_} offset:{off}', f'S{g}_{i}'), DS))
            return out
        def s2_loads():
            return [lambda gg=gg: self.vmem(f'buffer_load_dwordx2 {vr(sg2+2*(gg-1),2)}, v{vG2}, s[{R_WS}:{R_WS+3}], 0 offen offset:{256*gg} sc1', 'sg2') for gg in range(1, 4)]
        def s2_check():
            l0 = self.lab('s2'); l1 = self.lab('s2d')
            self.wait_vm('sg2')
            e(f's_mov_b32 s{S_CNT}, 0')
            self.label(l0)
            e(f'v_cmp_ne_u32 vcc, s{S_NONCE}, v{sg2+1}')
            for gg in (2, 3): e(f'v_cmp_ne_u32 s[{S_M2}:{S_M2+1}], s{S_NONCE}, v{sg2+2*gg-1}\ns_or_b64 vcc, vcc, s[{S_M2}:{S_M2+1}]')
            e(f's_cbranch_vccz {l1}')
            for gg in range(1, 4): e(f'buffer_load_dwordx2 {vr(sg2+2*(gg-1),2)}, v{vG2}, s[{R_WS}:{R_WS+3}], 0 offen offset:{256*gg} sc1')
            e('s_waitcnt vmcnt(0)')
            e(f's_add_u32 s{S_CNT}, s{S_CNT}, 1\ns_cmp_lt_u32 s{S_CNT}, {SPIN_MAX}\ns_cbranch_scc1 {l0}')
            self.label(l1)
        def red_ops(g):
            return [lambda: e(f'v_cndmask_b32 v{SG}, v{SG}, v{SG+1}, s[{K1}:{K1+1}]'),
                    lambda: e(f'v_cndmask_b32 v{SG}, v{SG}, v{SG+2}, s[{K2}:{K2+1}]'),
                    lambda: e(f'v_cndmask_b32 v{SG+5}, v{SG}, v{SG+3}, s[{K3}:{K3+1}]'),
                    lambda: e(f's_mov_b64 exec, s[{KD}:{KD+1}]'),
                    lambda: self.ds(f'ds_write_b64 v{vPw}, {vr(SG+4,2)} offset:{(g&1)*512}', f'stw{g}'),
                    lambda: e('s_mov_b64 exec, -1')]
        self.wait_vm('h0a' if PROG else 'h0'); self.wait_all_lg(); e('s_barrier')
        self.stamp(17)
        for k in range(4):
            for h_ in range(2): rdB1(0, k, h_)[0]()
        if not PROG:
            for f in rs(0, 0) + rs(0, 1): f[0]()
        mains = []; segs = []
        KB = 22
        KF = 3
        for g in range(4):
            A_ = acc[g & 1]; base = len(mains); pos = {}
            for k in range(28):
                cg = '0' if k == 0 else vr(A_, 16); cu = '0' if k == 0 else vr(A_ + 16, 16)
                pre = []
                if g == 1 and k == 2: pre.append(lambda: e('s_barrier'))
                if g in (2, 3) and k == 2: pre.append(lambda: e('s_barrier'))
                if g == 0 and k == 8 and PROG:
                    pre.append(lambda: self.wait_vm('h0')); pre.append(lambda: e('s_barrier'))
                if k == KB:
                    if g < 3: pre.append(lambda g=g: self.wait_vm(f'h{g+1}'))
                    if g == 0: pre.append(lambda g=g: self.wait_lg(f'stw{g}'))
                    pre.append(lambda: e('s_barrier'))
                    if o.get('passstamps'): pre.append(lambda g=g: self.stamp(26 + g))
                pre.append(lambda k=k, g=g: self.wait_lg(f'B{g}_{k}'))
                nx = (g, k + 4) if k + 4 < 28 else ((g + 1, k + 4 - 28) if g < 3 else None)
                p0 = [rdB1(nx[0], nx[1], 0)] if nx else []; p1 = [rdB1(nx[0], nx[1], 1)] if nx else []
                pos[k] = len(mains)
                mains.append((pre, lambda k=k, cg=cg, A_=A_, g=g: e(f'v_mfma_f32_32x32x16_bf16 {vr(A_,16)}, {ar(8*k,4)}, {vr(B+4*((28*g+k)%NB),4)}, {cg}'), 32, p0))
                mains.append(([], lambda k=k, cu=cu, A_=A_, g=g: e(f'v_mfma_f32_32x32x16_bf16 {vr(A_+16,16)}, {ar(8*k+4,4)}, {vr(B+4*((28*g+k)%NB),4)}, {cu}'), 32, p1))
                if g > 0 and k == KF:
                    for u_ in range(2): mains.append(([], fold_mfma(g - 1, u_), 32, []))
                if g == 0:
                    gpos = [10, 11, 13, 14, 16, 17, 19] if PROG else [0, 3, 6, 9, 12, 15, 18]
                    spos = gpos if PROG else [x + 1 for x in gpos]
                    if k in gpos:
                        i_ = gpos.index(k); sb = SB + 4 * (i_ & 1); c_ = '0' if i_ == 0 else vr(SG, 4)
                        mains.append(([lambda i_=i_, g=g: self.wait_lg(f'S{g}_{i_}')], lambda sb=sb, c_=c_: e(f'v_mfma_f32_16x16x32_bf16 {vr(SG,4)}, {vr(sb,4)}, {vr(sb,4)}, {c_}'), 16, []))
                    if k in spos:
                        i_ = spos.index(k); sb = SB + 4 * (i_ & 1); c_ = '0' if i_ == 0 else vr(SG + 4, 4)
                        mains.append(([], lambda sb=sb, c_=c_: e(f'v_mfma_f32_16x16x32_bf16 {vr(SG+4,4)}, {vr(ones,4)}, {vr(sb,4)}, {c_}'), 16,
                                      rs(g, i_ + 2) if i_ + 2 < 7 else []))
            def addpost(k, items, which=0):
                pre_, m_, d_, post_ = mains[pos[k] + which]
                mains[pos[k] + which] = (pre_, m_, d_, post_ + items)
            if g == 0:
                addpost(KB - 1, red_ops(g), 1)
                if PROG:
                    r0 = rs(0, 0) + rs(0, 1)
                    addpost(8, r0[:2], 0); addpost(8, r0[2:], 1)
            if g == 3:
                for i_ in range(9):
                    rr = [(f, DS) for f in self.wd_reads(i_)]
                    for q in range(4): addpost(10 + 2*i_ + (q >> 1), [rr[q]], q & 1)
                pre_, m_, d_, post_ = mains[pos[10]]
                mains[pos[10]] = (pre_, m_, d_, post_[:1] + [lambda: self.wait_vm('wdA')] + post_[1:])
            if g == 1:
                addpost(o.get('s2k', 12), s2_loads(), 1)
                if not o.get('x_nos2'): addpost(27, [(s2_check, 8)], 1)
            ep = []
            if g > 0:
                fo = ([lambda: st_reads(0)] if g == 1 else []) + [lambda g=g: e(f's_mov_b32 s{S_T4}, {(g-1)*112*1024}')] + fin_ops(g - 1)
                segs.append((base, pos[KF] + 1, fo))
                ep += epilogue_ops(g - 1)
            mf = []; mf2 = []
            if g == 0 and HCS:
                _, bl = self.capture(build_csA)
                ep = [lambda: self.wait_vm('cs')] + bl
            if g == 0:
                if H1F:
                    for i in range(7): mf2 += hdma(1, i)
                for i in range(7): mf += hdma(2, i)
            if g == 0:
                pass
            mf3 = []
            if g == 1:
                for i in range(7): mf2 += hdma(3, i)
                for k_ in range(0, 5): mf3 += self.wd_dma(k_, 'wdA')
            if g == 2:
                for k_ in range(5, 9): mf3 += self.wd_dma(k_, 'wdA')
                for k_ in range(9, 12): mf3 += self.wd_dma(k_, 'wdB')
            if g == 3:
                for k_ in range(12, 15): mf3 += self.wd_dma(k_, 'wdC')
            if o.get('x_noep'): ep = []
            CD = o.get('cdma', 1)
            def costed(lst):
                out = []
                for x in lst:
                    f = x[0] if isinstance(x, tuple) else x
                    vm = getattr(f, 'isvm', False)
                    out.append((f, CD) if vm else x)
                return out
            mf, mf2, mf3 = costed(mf), costed(mf2), costed(mf3)
            merged = []; a_, c_ = list(ep), list(mf)
            ra = len(a_) / max(1, len(a_) + len(c_)); acc_ = 0.0
            while a_ or c_:
                acc_ += ra
                if (acc_ >= 1.0 - 1e-9 and a_) or not c_:
                    acc_ -= 1.0; merged.append(a_.pop(0))
                else: merged.append(c_.pop(0))
            end = len(mains) if g < 3 else len(mains) - 2
            if o.get('x_nowd'): mf3 = []
            if mf2: segs.append((pos[2], pos[12], mf2) if g else (pos[0], pos[6], mf2))
            if mf3: segs.append((pos[12] if mf2 else pos[2], pos[27] if g < 3 else pos[10], mf3))
            segs.append((pos[8] if (g == 0 and H1F) else (pos[KF + 2] if g > 0 else base), end, merged))
        self.sched(mains, None, segs=segs)
        self.stamp(18)
        e(f's_mov_b32 s{S_T4}, {3*112*1024}')
        for f in fin_ops(3): f()
        for u_ in range(2): fold_mfma(3, u_)()
        for f in epilogue_ops(3): (f[0] if isinstance(f, tuple) else f)()
        self.stamp(19)
        for x, n in ((vD,1),(vB,1),(vS,1),(t,1),(t2,1),(cs,32),(vA,1),(vG2,1),(vC,1),(sg2,6),(B,4*NB),(SB,8),(ones,4),(SG,8),(acc[0],32),(acc[1],32),(st,6),(par,3),(tmp,8),(pk,8),(vP,1),(vPw,1),(vBq,4),(vS2,1),(csA,8),(mB,4)):
            V.free(x, n)
        pass
        self.wait_lg('wdr3')
        for k_ in range(15, 19):
            for f in self.wd_dma(k_, 'wdD'): f()
        self.wait_vm('act'); e('s_barrier')
        e(f's_lshl_b32 s{S_T1}, s{S_RB}, 4\ns_add_u32 s{S_T1}, s{S_T1}, s{S_FB}')
        self.signal(WS_FLAG3, f's{S_T1}')
        self.stamp(20)

    def phaseC(self):
        e = self.e; V = self.V; o = self.o
        self.c('================= phase C')
        t = V.alloc(1); t2 = V.alloc(1)
        self.wait_all_lg()
        for k_ in range(19, 24):
            for f in self.wd_dma(k_, 'wdE'): f()
        self.wait_vm('wdC')
        for k_ in range(9, 15):
            for f in self.wd_reads(k_): f()
        self.wait_all_lg()
        for k_ in range(24, 28):
            for f in self.wd_dma(k_, 'wdF'): f()
        self.stamp(21)
        self.wait_vm('wdF')
        e(f's_lshr_b32 s{S_T0}, s{S_RB2}, 1\ns_mul_i32 s{S_T0}, s{S_T0}, {16*FLAG_STRIDE}')
        self.poll_flags(WS_FLAG3, 16, 1, sbase=S_T0, sleep=self.o.get('wsleep3', 1))
        self.vm.drain(); self.lg.drain()
        self.stamp(22)
        vA = V.alloc(1)
        e(f's_mul_i32 s{S_T0}, s{S_RB2}, {2*112}\ns_mul_i32 s{S_T1}, s{S_W}, 28\ns_add_u32 s{S_T0}, s{S_T0}, s{S_T1}\ns_lshl_b32 s{S_T0}, s{S_T0}, 10\ns_add_u32 s{S_T0}, s{S_T0}, {WS_ACT}\nv_lshl_add_u32 v{vA}, v1, 4, s{S_T0}')
        NR = o.get('NR', 10)
        Bf = V.alloc(4 * NR, 4); acc = V.alloc(64, 4)
        def ld(i):
            nt, k = divmod(i, 28)
            e(f's_add_u32 s{S_T1}, s{S_RA0 + k//7}, {(nt*112 + k%7)*1024}')
            self.vmem(f'buffer_load_dwordx4 {vr(Bf+4*(i%NR),4)}, v{vA}, s[{R_WS}:{R_WS+3}], s{S_T1} offen {o.get("aflags", "sc1")}', f'a{i}')
        for i in range(NR): ld(i)
        for k_ in range(15, 28):
            for f in self.wd_reads(k_): f()
        self.wait_all_lg(); e('s_barrier')
        V.free(self.vWD, 2); V.free(self.vWT, 6)
        hres = V.alloc(8, 4); vR = V.alloc(1)
        e(f's_lshl_b32 s{S_T0}, s{S_RB2}, 1\ns_and_b32 s{S_T1}, s{S_W}, 1\ns_add_u32 s{S_T0}, s{S_T0}, s{S_T1}\ns_mul_i32 s{S_T0}, s{S_T0}, 28')
        e(f's_lshl_b32 s{S_T1}, s{S_DB}, 2\ns_add_u32 s{S_T0}, s{S_T0}, s{S_T1}\ns_and_b32 s{S_T1}, s{S_W}, 2\ns_add_u32 s{S_T0}, s{S_T0}, s{S_T1}\ns_lshl_b32 s{S_T0}, s{S_T0}, 10\ns_add_u32 s{S_T0}, s{S_T0}, {WS_HD}\nv_lshl_add_u32 v{vR}, v1, 4, s{S_T0}')
        vO = V.alloc(1); dummy = V.alloc(1)
        e(f'v_and_b32 v{t}, 31, v1\nv_mul_u32_u24 v{vO}, 896, v{t}\nv_lshrrev_b32 v{t}, 5, v1\nv_lshl_add_u32 v{vO}, v{t}, 4, v{vO}')
        e(f's_lshl_b32 s{S_T0}, s{S_RB2}, 1\ns_and_b32 s{S_T1}, s{S_W}, 1\ns_add_u32 s{S_T0}, s{S_T0}, s{S_T1}\ns_mul_i32 s{S_T0}, s{S_T0}, {32*896}')
        e(f's_lshl_b32 s{S_T1}, s{S_DB}, 7\ns_add_u32 s{S_T0}, s{S_T0}, s{S_T1}\ns_and_b32 s{S_T1}, s{S_W}, 2\ns_lshl_b32 s{S_T1}, s{S_T1}, 5\ns_add_u32 s{S_T0}, s{S_T0}, s{S_T1}\nv_add_u32 v{vO}, s{S_T0}, v{vO}')
        A = lambda mt, nt: acc + 16 * (2 * mt + nt)
        ra = V.alloc(1)
        e(f's_lshl_b32 s{S_T0}, s{S_W}, 12\nv_lshl_add_u32 v{ra}, v1, 4, s{S_T0}')
        def redw(T, q): return lambda: self.ds(f'ds_write_b128 v{ra}, {vr(acc+16*T+4*q,4)} offset:{T*16384 + q*1024}', 'redw')
        mains = []
        for i in range(56):
            nt, k = divmod(i, 28)
            for mt in range(2):
                cin = '0' if k == 0 else vr(A(mt, nt), 16)
                pre = [lambda i=i: self.wait_vm(f'a{i}')] if mt == 0 else []
                post = []
                if mt == 1 and i + NR < 56: post = [lambda i=i: ld(i + NR)]
                if mt == 1 and i == 30 and o.get('touch_out', False):
                    post = post + [lambda: self.vmem(f'buffer_load_dword v{dummy}, v{vO}, s[{R_OUT}:{R_OUT+3}], 0 offen', 'dummy')]
                if mt == 1 and i == 56 - NR:
                    post = post + [lambda kk=kk: self.vmem(f'buffer_load_dwordx4 {vr(hres+4*kk,4)}, v{vR}, s[{R_WS}:{R_WS+3}], 0 offen offset:{1024*kk} sc1', 'hres') for kk in range(2)]
                mains.append((pre, lambda mt=mt, nt=nt, k=k, i=i, cin=cin: e(f'v_mfma_f32_32x32x16_bf16 {vr(A(mt,nt),16)}, {ar(8*k+4*mt,4)}, {vr(Bf+4*(i%NR),4)}, {cin}'), 32, post))
        self.sched(mains, None, segs=[(62, 100, [(redw(T, q), 3) for T in (0, 2) for q in range(4)])])
        self.stamp(23)
        V.free(Bf, 4 * NR)
        for T in (1, 3):
            for q in range(4): redw(T, q)()
        self.wait_all_lg()
        e('s_barrier')
        rr = V.alloc(64, 4); keep = rr
        e(f's_lshl_b32 s{S_T0}, s{S_W}, 14\nv_lshl_add_u32 v{ra}, v1, 4, s{S_T0}')
        for j in range(4):
            for q in range(4): self.ds(f'ds_read_b128 {vr(rr+16*j+4*q,4)}, v{ra} offset:{j*4096 + q*1024}', f'rr{j}')
        for j in range(1, 4):
            self.wait_lg(f'rr{j}')
            for i in range(0, 16, 2): e(f'v_pk_add_f32 {vr(keep+i,2)}, {vr(keep+i,2)}, {vr(rr+16*j+i,2)}')
        self.wait_vm('hres')
        P = V.alloc(8, 4); w8 = rr + 16
        for d in range(8): e(f'v_cvt_pk_bf16_f32 v{P+d}, v{keep+2*d}, v{keep+2*d+1}')
        for d in range(8):
            e(f'v_lshlrev_b32 v{w8+2*d}, 16, v{P+d}\nv_and_b32 v{w8+2*d+1}, 0xffff0000, v{P+d}')
            e(f'v_lshlrev_b32 v{w8+16+2*d}, 16, v{hres+d}\nv_and_b32 v{w8+16+2*d+1}, 0xffff0000, v{hres+d}')
        for d in range(8): e(f'v_pk_add_f32 {vr(w8+2*d,2)}, {vr(w8+2*d,2)}, {vr(w8+16+2*d,2)}')
        for d in range(8): e(f'v_cvt_pk_bf16_f32 v{P+d}, v{w8+2*d}, v{w8+2*d+1}')
        for kk in range(2):
            b = P + 4 * kk
            e(f'v_permlane32_swap_b32 v{b}, v{b+2}\nv_permlane32_swap_b32 v{b+1}, v{b+3}')
        for kk in range(2):
            self.vmem(f'buffer_store_dwordx4 {vr(P+4*kk,4)}, v{vO}, s[{R_OUT}:{R_OUT+3}], 0 offen offset:{32*kk} {o.get("outflags", "")}', 'out')
        self.stamp(24)

    def build(self):
        e = self.e
        self.prologue()
        saveV = list(self.V.used)
        last = self.o.get('hlast', False)
        if not last:
            self.label('L_helper')
            self.helper()
            self.V.used = list(saveV); self.vm.drain(); self.lg.drain()
        self.label('L_worker')
        self.phaseA()
        upto = self.o.get('upto', 'C')
        if upto in ('B', 'C'): self.phaseB()
        if upto == 'C': self.phaseC()
        self.stamps_out()
        if self.o.get('padto'):
            e('s_waitcnt vmcnt(0)')
            self.label('L_pad')
            e(f's_memrealtime s[{S_TS}:{S_TS+1}]\ns_waitcnt lgkmcnt(0)\ns_sub_u32 s{S_TS}, s{S_TS}, s{S_TS+6}\ns_cmp_lt_u32 s{S_TS}, {self.o.get("padto")}\ns_cbranch_scc1 L_pad')
        if last:
            e('s_endpgm')
            self.V.used = list(saveV); self.vm.drain(); self.lg.drain()
            self.label('L_helper')
            self.helper()
        self.label('L_end')
        e('s_endpgm')

HEADER = open(os.path.join(os.path.dirname(os.path.abspath(__file__)), 'header.txt')).read() if os.path.exists(os.path.join(os.path.dirname(os.path.abspath(__file__)), 'header.txt')) else ''

def generate(opt):
    g = Gen(opt)
    g.build()
    lines, problems = fix_hazards(g.lines, verbose=opt.get('verbose', False))
    for p in problems: print('BACKEDGE HAZARD:', p, file=sys.stderr)
    out = [HEADER.rstrip('\n').replace('@@GRID@@', f'; @launch grid=(256,1,1) block=(256,1,1) lds={LDS_SIZE}')]
    out += ['.amdgcn_target "amdgcn-amd-amdhsa--gfx950"', '.text', f'.globl {NAME}', '.p2align 8', f'.type {NAME},@function', f'{NAME}:']
    for l in lines:
        out.append(l if l.endswith(':') else '    ' + l)
    out += ['.section .rodata,"a"', '.p2align 6', f'.amdhsa_kernel {NAME}',
            '  .amdhsa_next_free_vgpr 512', '  .amdhsa_next_free_sgpr 102', '  .amdhsa_accum_offset 256',
            '  .amdhsa_group_segment_fixed_size 0', '  .amdhsa_kernarg_size 128', '  .amdhsa_user_sgpr_count 2',
            '  .amdhsa_user_sgpr_kernarg_segment_ptr 1', '  .amdhsa_system_sgpr_workgroup_id_x 1',
            '  .amdhsa_float_denorm_mode_32 3', '.end_amdhsa_kernel', '']
    if opt.get('verbose'): print('max arch vgpr', g.V.hi, 'lines', len(lines))
    return '\n'.join(out)

if __name__ == '__main__':
    import json
    opt = json.loads(sys.argv[2]) if len(sys.argv) > 2 else {}
    opt['verbose'] = True
    txt = generate(opt)
    open(sys.argv[1], 'w').write(txt)
```
